```python
import torch

def _softmax(x, axis=-1):
    return torch.softmax(x, dim=axis)
def _gelu(x):
    return torch.nn.functional.gelu(x, approximate="tanh")
def _silu(x):
    return torch.nn.functional.silu(x)
def _sigmoid(x):
    return torch.sigmoid(x)
def _layernorm(x, axis=-1, eps=1e-5):
    m = x.mean(dim=axis, keepdim=True)
    v = x.var(dim=axis, keepdim=True, unbiased=False)
    return (x - m) / torch.sqrt(v + eps)
def _scatter_add(tgt, idx, src, axis=0):
    return tgt.clone().index_add_(axis, idx, src)
def _segment_sum(src, seg, n):
    out = torch.zeros((n,) + src.shape[1:], dtype=src.dtype)
    return out.index_add_(0, seg, src)
def _pad(x, pw):
    flat = tuple(v for pair in reversed(pw) for v in pair)
    return torch.nn.functional.pad(x, flat)

kernel_name = 'sequential_preLN__linear_attn_block__glu_gated_swiglu__prompt'

def setup_inputs():

    _w = (lambda a: (lambda t: t.to(torch.bfloat16) if t.is_floating_point() else t)(torch.as_tensor(a)))
    def _A_setup():
        B, S, D = 1, 2048, 512
        return {
            "x": _w((lambda *s: torch.randn(*s, dtype=torch.bfloat16) * 0.05)(B, S, D)),
            "wqkv": _w((lambda *s: torch.randn(*s, dtype=torch.bfloat16) * 0.05)(D, 3 * D)),
            "wo": _w((lambda *s: torch.randn(*s, dtype=torch.bfloat16) * 0.05)(D, D)),
        }
    _A_in = _A_setup()

    def _B_setup():
        B, S, D, F = 1, 2048, 512, 1792
        return {
            "x": _w((lambda *s: torch.randn(*s, dtype=torch.bfloat16) * 0.05)(B, S, D)),
            "w1": _w((lambda *s: torch.randn(*s, dtype=torch.bfloat16) * 0.2)(D, F) * (2.0 / D) ** 0.5),
            "w3": _w((lambda *s: torch.randn(*s, dtype=torch.bfloat16) * 0.2)(D, F) * (2.0 / D) ** 0.5),
            "w2": _w((lambda *s: torch.randn(*s, dtype=torch.bfloat16) * 0.2)(F, D) * (2.0 / F) ** 0.5),
        }
    _B_in = _B_setup()

    return {
        "A_x": _A_in["x"],
        "A_wqkv": _A_in["wqkv"],
        "A_wo": _A_in["wo"],
        "B_x": _B_in["x"],
        "B_w1": _B_in["w1"],
        "B_w3": _B_in["w3"],
        "B_w2": _B_in["w2"],
    }

def reference(A_x, A_wqkv, A_wo, B_x, B_w1, B_w3, B_w2):
    def _A_ref(x, wqkv, wo):
        B, S, D = x.shape
        H = 32; Dh = D // H
        qkv = (lambda x, *d: x.permute(*d))((x @ wqkv).reshape(B, S, 3, H, Dh), 2, 0, 3, 1, 4)
        q, k, v = qkv[0], qkv[1], qkv[2]
        phi = lambda t: torch.where(t > 0, t + 1, torch.exp(t)) + 1e-6
        pq, pk = phi(q), phi(k)
        kv = torch.einsum("bhsd,bhse->bhde", pk, v)
        z = torch.einsum("bhsd->bhd", pk)
        num = torch.einsum("bhqd,bhde->bhqe", pq, kv)
        den = torch.einsum("bhqd,bhd->bhq", pq, z)[..., None] + 1e-6
        o = num / den
        return (lambda x, *d: x.permute(*d))(o, 0, 2, 1, 3).reshape(B, S, D) @ wo

    def _B_ref(x, w1, w3, w2):
        gate = torch.einsum("bsd,df->bsf", x, w1)
        up = torch.einsum("bsd,df->bsf", x, w3)
        h = _silu(gate) * up
        out = torch.einsum("bsf,fd->bsd", h, w2)
        return out

    x = A_x
    h = x + _A_ref(_layernorm(x, axis=-1), A_wqkv, A_wo)
    h2 = h + _B_ref(_layernorm(h, axis=-1), B_w1, B_w3, B_w2)
    return h2
```

```python
import re

REG_RE = re.compile(r'(?<![\w.])([vas])\[(\d+):(\d+)\]|(?<![\w.])([vas])(\d+)(?![\w\[])|\b(vcc|exec|m0)\b')
TRANS = ('v_exp_f32', 'v_log_f32', 'v_rcp_f32', 'v_rsq_f32', 'v_sqrt_f32', 'v_sin_f32', 'v_cos_f32')


def regs_of(s):
    out = []
    for m in REG_RE.finditer(s):
        if m.group(1):
            out += [f"{m.group(1)}{i}" for i in range(int(m.group(2)), int(m.group(3)) + 1)]
        elif m.group(4):
            out.append(f"{m.group(4)}{m.group(5)}")
        else:
            out.append(m.group(6))
    return out


class Inst:
    __slots__ = ('text', 'op', 'kind', 'rd', 'wr', 'passes', 'tag', 'cond', 'srcc', 'srcab', 'wide', 'arg')

    def __init__(self, text, tag=None, cond=False):
        self.text = text
        self.tag = tag
        self.cond = cond
        self.passes = 0
        self.srcc = set()
        self.srcab = set()
        self.wide = False
        self.arg = None
        self.rd = set()
        self.wr = set()
        t = text.split(';')[0].strip()
        if t.endswith(':'):
            self.op = 'label'
            self.kind = 'label'
            return
        sp = t.split(None, 1)
        op = sp[0]
        self.op = op
        rest = sp[1] if len(sp) > 1 else ''
        ops = [o.strip() for o in rest.split(',')] if rest else []
        R = [regs_of(o) for o in ops]
        allr = [r for x in R for r in x]
        if op.startswith('v_mfma'):
            self.kind = 'mfma'
            self.wr = set(R[0])
            self.srcab = set(R[1]) | set(R[2])
            self.srcc = set(R[3])
            self.rd = self.srcab | self.srcc
            self.passes = 8 if '32x32x16' in op else 4 if '16x16x32' in op else 2 if '4x4x4' in op else None
            assert self.passes, op
        elif op.startswith('v_'):
            self.kind = 'trans' if op.replace('_e64', '').replace('_e32', '') in TRANS else 'valu'
            self.wr = set(R[0])
            self.rd = set(r for x in R[1:] for r in x)
            if 'swap' in op:
                self.wr = set(allr)
                self.rd = set(allr)
            if op.startswith(('v_fmac', 'v_dot2c', 'v_writelane')) or 'dpp' in text or 'row_' in text or 'quad_perm' in text:
                self.rd |= set(R[0])
            if '_co_' in op:
                self.wr |= set(R[1])
                self.rd = set(r for x in R[2:] for r in x)
        elif op.startswith(('buffer_load', 'global_load')):
            if re.search(r'\blds\b', rest) or '_lds_' in op:
                self.kind = 'dma'
                self.rd = set(allr) | {'m0'}
            else:
                self.kind = 'vload'
                self.wr = set(R[0])
                self.rd = set(r for x in R[1:] for r in x)
        elif op.startswith(('buffer_store', 'global_store', 'buffer_atomic', 'global_atomic')):
            self.kind = 'vstore'
            self.rd = set(allr)
            self.wide = op.endswith(('x3', 'x4'))
            if self.wide:
                self.arg = set(R[0]) if op.startswith('buffer') else set(R[1])
            if 'atomic' in op and re.search(r'\bsc0\b', rest):
                self.wr = set(R[0])
        elif op.startswith('ds_read') or op.startswith('ds_bperm') or op.startswith('ds_swizzle'):
            self.kind = 'dsr'
            self.wr = set(R[0])
            self.rd = set(r for x in R[1:] for r in x)
        elif op.startswith(('ds_write', 'ds_add')):
            self.kind = 'dsw'
            self.rd = set(allr)
        elif op.startswith(('s_load', 's_memtime', 's_memrealtime')):
            self.kind = 'smem'
            self.wr = set(R[0])
            self.rd = set(r for x in R[1:] for r in x)
        elif op == 's_waitcnt':
            self.kind = 'wait'
        elif op == 's_nop':
            self.kind = 'nop'
            self.arg = int(rest, 0)
        elif op in ('s_barrier', 's_sleep', 's_endpgm', 's_setprio'):
            self.kind = 'misc'
        elif op.startswith(('s_branch', 's_cbranch')):
            self.kind = 'branch'
            if 'vcc' in op:
                self.rd = {'vcc'}
        elif op.startswith('s_cmp') or op.startswith('s_bitcmp'):
            self.kind = 'salu'
            self.rd = set(allr)
        elif op.startswith('s_'):
            self.kind = 'salu'
            self.wr = set(R[0])
            self.rd = set(r for x in R[1:] for r in x)
            if 'saveexec' in op:
                self.wr.add('exec')
        elif op == 'WAITTAG':
            self.kind = 'waittag'
            self.arg = rest.split()
        elif op == 'WAITALL':
            self.kind = 'waitall'
            self.arg = rest.strip()
        elif op.startswith('.'):
            self.kind = 'label'
        else:
            raise ValueError(text)


class Seq(list):
    def __call__(self, text, tag=None, cond=False):
        for line in text.strip().split('\n'):
            line = line.strip()
            if line and not line.startswith(';'):
                self.append(Inst(line, tag, cond))
        return self


def insert_waits(prog):
    out = []
    vm = []
    lg = []
    smem_out = False

    def emit(nv, nl):
        parts = []
        if nv is not None:
            parts.append(f"vmcnt({min(nv, 63)})")
        if nl is not None:
            parts.append(f"lgkmcnt({min(nl, 15)})")
        out.append(Inst("s_waitcnt " + " ".join(parts)))

    for ins in prog:
        if ins.cond:
            touch = ins.rd | ins.wr
            for q in (vm, lg):
                for e in q:
                    assert not (e[0] & touch), f"cond inst touches pending reg: {ins.text}"
            out.append(ins)
            continue
        nv = nl = None
        if ins.kind == 'waittag':
            for name in ins.arg:
                for i in range(len(vm) - 1, -1, -1):
                    if vm[i][1] == name:
                        n = len(vm) - 1 - i
                        nv = n if nv is None else min(nv, n)
                        break
                for i in range(len(lg) - 1, -1, -1):
                    if lg[i][1] == name:
                        n = len(lg) - 1 - i
                        nl = n if nl is None else min(nl, n)
                        break
        elif ins.kind == 'waitall':
            if 'vm' in ins.arg:
                nv = 0
            if 'lgkm' in ins.arg:
                nl = 0
        elif ins.kind == 'wait':
            m = re.search(r'vmcnt\((\d+)\)', ins.text)
            if m:
                n = int(m.group(1))
                vm = vm[len(vm) - n:] if n < len(vm) else vm
            m = re.search(r'lgkmcnt\((\d+)\)', ins.text)
            if m:
                n = int(m.group(1))
                if n == 0:
                    lg = []
                    smem_out = False
                elif not smem_out:
                    lg = lg[len(lg) - n:] if n < len(lg) else lg
            out.append(ins)
            continue
        else:
            touch = ins.rd | ins.wr
            for i in range(len(vm) - 1, -1, -1):
                if vm[i][0] & touch:
                    nv = len(vm) - 1 - i
                    break
            for i in range(len(lg) - 1, -1, -1):
                if lg[i][0] & touch:
                    nl = len(lg) - 1 - i
                    break
        if nl is not None and smem_out:
            nl = 0
        if nv is not None or nl is not None:
            emit(nv, nl)
            if nv is not None:
                vm = vm[len(vm) - nv:] if nv else []
            if nl is not None:
                lg = lg[len(lg) - nl:] if nl else []
                if nl == 0:
                    smem_out = False
        if ins.kind in ('waittag', 'waitall'):
            continue
        if ins.kind in ('vload', 'vstore', 'dma'):
            if len(vm) >= 62:
                emit(61, None)
                vm = vm[len(vm) - 61:]
            vm.append((set(ins.wr), ins.tag))
        elif ins.kind in ('dsr', 'dsw'):
            if len(lg) >= 15:
                n = 0 if smem_out else 14
                emit(None, n)
                lg = lg[len(lg) - n:] if n else []
                smem_out = smem_out and n != 0
            lg.append((set(ins.wr), ins.tag))
        elif ins.kind == 'smem':
            lg.append((set(ins.wr), ins.tag))
            smem_out = True
        out.append(ins)
    return out


MF_VALU = {2: 5, 4: 8, 8: 12}
MF_OVL = {2: 4, 4: 6, 8: 10}
MF_WAR = {2: 1, 4: 3, 8: 7}


def need(p, c):
    n = 0
    isv = lambda r: r[0] in 'va' and r != 'vcc'
    pv = p.kind in ('valu', 'trans')
    cv = c.kind in ('valu', 'trans')
    cmem = c.kind in ('vload', 'vstore', 'dma', 'dsr', 'dsw')
    if pv:
        wv = {r for r in p.wr if isv(r)}
        ws = p.wr - wv
        if c.kind == 'mfma' and wv & c.rd:
            n = max(n, 2)
        if cv:
            if p.kind == 'trans' and wv & c.rd:
                n = max(n, 1)
            if 'permlane' in c.op and wv & c.rd:
                n = max(n, 2)
            if ('row_' in c.text or 'quad_perm' in c.text or 'dpp' in c.text) and wv & c.rd:
                n = max(n, 2)
            if c.op.startswith(('v_readfirstlane', 'v_readlane')) and wv & c.rd:
                n = max(n, 1)
            if ws & c.rd:
                n = max(n, 4 if c.op.startswith(('v_readlane', 'v_writelane')) else 2)
        if p.kind == 'trans' and cmem and wv & c.rd:
            n = max(n, 1)
        if c.kind in ('vload', 'vstore', 'dma') and ws & c.rd:
            n = max(n, 5)
        if c.kind in ('salu', 'smem') and ws & c.rd:
            n = max(n, 1)
        if c.kind == 'branch' and ws & c.rd:
            n = max(n, 5)
    if p.kind == 'mfma':
        if (cv or cmem) and p.wr & (c.rd | c.wr):
            n = max(n, MF_VALU[p.passes])
        if c.kind == 'mfma':
            if p.wr & c.srcab:
                n = max(n, MF_VALU[p.passes])
            if p.wr & c.srcc:
                if p.wr == c.srcc and p.passes == c.passes:
                    n = max(n, 2 if p.passes == 2 else 0)
                else:
                    n = max(n, MF_OVL[p.passes])
            elif p.wr & c.wr:
                n = max(n, MF_OVL[p.passes])
        if cv and p.srcc & c.wr:
            n = max(n, MF_WAR[p.passes])
    if p.kind == 'salu' and 'm0' in p.wr and c.kind == 'dma':
        n = max(n, 1)
    if p.kind == 'vstore' and p.wide and p.arg & c.wr:
        n = max(n, 2)
    return n


def insert_nops(prog):
    out = []
    hist = []
    pos = 0
    nnops = 0
    for ins in prog:
        if ins.kind == 'label':
            out.append(ins)
            continue
        req = 0
        for p, pp in hist:
            d = pos - pp
            w = need(p, ins)
            if w > d:
                req = max(req, w - d)
        if req:
            k = req
            while k > 0:
                t = min(k, 16)
                out.append(Inst(f"s_nop {t - 1}", cond=ins.cond))
                k -= t
            nnops += 1
            if not ins.cond:
                pos += req
        out.append(ins)
        if not ins.cond:
            pos += (ins.arg + 1) if ins.kind == 'nop' else 1
        if ins.kind in ('valu', 'trans', 'mfma', 'salu', 'vstore'):
            hist.append((ins, pos))
        hist = [(p, pp) for p, pp in hist if pos - pp < 14]
    return out, nnops


def finalize(prog):
    p = insert_waits(prog)
    p, n = insert_nops(p)
    return p


def weave(main, fills, start=0, end=None):
    end = len(main) if end is None else end
    n = end - start
    out = [list(g) for g in main]
    k = 0
    for i in range(n):
        tgt = (len(fills) * (i + 1) + n - 1) // n
        while k < tgt:
            f = fills[k]
            out[start + i] += f if isinstance(f, list) else [f]
            k += 1
    assert k == len(fills)
    return out


def flat(groups):
    return [i for g in groups for i in g]
```

```python
import sys, os
sys.path.insert(0, os.path.dirname(os.path.abspath(__file__)))
from dsl import *

NAME = "sequential_preLN__linear_attn_block__glu_gated_swiglu__prompt"

CNT = 0
KVM = 0x10000
ZP = 0x18000
ST = 0x20000
CS = 0x60000
STAMP = 0x80000
PQ = 0x100000
HB = 0x300000
HH = 0x500000
W13R = 0xC00000
W2R = 0x1000000
WS_SIZE = 0x1200000
C_KV, C_H, C_P1, C_P2, C_P3, C_R13, C_R2 = 0, 64, 80, 96, 112, 128, 160

X, WQKV, WO, W1, W3, W2, OUT, WS, DBG = [f"s[{a}:{a+3}]" for a in range(4, 40, 4)]
sW, sG, sM, sC0, sT0, sT1, sT2, sT3 = "s40", "s41", "s42", "s43", "s44", "s45", "s46", "s47"
sXB, sWB, sXL, sWL, sTB, sCB, sRQ, sLOG2E = "s48", "s49", "s50", "s51", "s52", "s53", "s54", "s55"
sU, sKC, sT4, sT5, sMSKHI, sEPS6 = "s56", "s57", "s58", "s59", "s60", "s61"
sHILANES = "s[62:63]"
sB4LANES = "s[64:65]"
sA, sB, sCc, sD = "s66", "s67", "s68", "s69"
STAMP0 = 74


def v(a, n=1):
    return f"v{a}" if n == 1 else f"v[{a}:{a+n-1}]"


def a_(a, n=1):
    return f"a{a}" if n == 1 else f"a[{a}:{a+n-1}]"


def mf32(d, A, B, c=None):
    return Inst(f"v_mfma_f32_32x32x16_bf16 {v(d,16)}, {A}, {B}, {v(d,16) if c is None else c}")


def mf16(d, A, B, c=None):
    return Inst(f"v_mfma_f32_16x16x32_bf16 {v(d,4)}, {A}, {B}, {v(d,4) if c is None else c}")


def mf4(d, A, B, c=None):
    return Inst(f"v_mfma_f32_4x4x4_16b_bf16 {v(d,4)}, {A}, {B}, {v(d,4) if c is None else c}")


def trpair(dst, addr, off, step):
    k, b = dst
    return [Inst(f"ds_read_b64_tr_b16 {k}[{b}:{b+1}], {addr} offset:{off}"),
            Inst(f"ds_read_b64_tr_b16 {k}[{b+2}:{b+3}], {addr} offset:{off+step}")]


class Gen:
    def __init__(self, opt):
        self.o = opt
        self.p = Seq()
        self.nl = 0
        self.nstamp = 0
        self.stamp_names = []

    def lab(self, s):
        self.nl += 1
        return f"L_{s}_{self.nl}"

    def stamp(self, name):
        if not self.o.get('stamps'):
            return
        p = self.p
        p("WAITALL lgkm")
        p("s_memrealtime s[72:73]")
        p("WAITALL lgkm")
        p(f"s_mov_b32 s{STAMP0+self.nstamp}, s72")
        self.nstamp += 1
        self.stamp_names.append(name)

    def signal(self, soff, vone="v14"):
        p = self.p
        L = self.lab("sig")
        p(f"v_mov_b32 {vone}, 1")
        p(f"s_cmp_lg_u32 {sW}, 0")
        p(f"s_cbranch_scc1 {L}")
        p(f"""s_mov_b64 exec, 1
             buffer_atomic_add {vone}, off, {WS}, {soff} sc1
             s_mov_b64 exec, -1""", cond=True)
        p(f"{L}:")

    def spin(self, vt, vaddr, soff, mask, vtarget, srd=WS, first_loaded=False, wave0=True, sleep=0):
        p = self.p
        Ld, Lp = self.lab("pd"), self.lab("pl")
        addr = f"{vaddr}, {srd}, {soff} offen" if vaddr else f"off, {srd}, {soff}"
        if first_loaded:
            p(f"v_cmp_gt_u32 vcc, {vtarget}, {vt}")
            p(f"s_and_b64 vcc, vcc, {mask}")
            p(f"s_cbranch_scc0 {Ld}")
        elif wave0:
            p(f"s_cmp_lg_u32 {sW}, 0")
            p(f"s_cbranch_scc1 {Ld}")
        p(f"s_mov_b32 {sT5}, 0", cond=True)
        p(f"s_mov_b64 exec, {mask}", cond=True)
        p(f"{Lp}:")
        if sleep:
            p(f"s_sleep {sleep}", cond=True)
        p(f"""buffer_load_dword {vt}, {addr} sc1
             s_add_u32 {sT5}, {sT5}, 1
             s_waitcnt vmcnt(0)
             v_cmp_gt_u32 vcc, {vtarget}, {vt}
             s_cmp_ge_u32 {sT5}, 0x8000
             s_cselect_b64 vcc, 0, vcc
             s_cmp_lg_u64 vcc, 0
             s_cbranch_scc1 {Lp}
             s_mov_b64 exec, -1""", cond=True)
        p(f"{Ld}:")

    def setup(self):
        p = self.p
        p(f"""s_cmp_ge_u32 s2, 256
             s_cbranch_scc1 L_end
             s_load_dwordx16 s[76:91], s[0:1], 0
             s_load_dwordx4 s[92:95], s[0:1], 64""")
        p("v_and_b32 v1, 63, v0\nv_lshrrev_b32 v14, 6, v0")
        p(f"v_readfirstlane_b32 {sW}, v14")
        for srd, sz in ((4, 0x200000), (8, 0x180000), (12, 0x80000), (16, 0x1C0000), (20, 0x1C0000),
                        (24, 0x1C0000), (28, 0x200000), (32, WS_SIZE), (36, 256)):
            p(f"s_mov_b32 s{srd+2}, {hex(sz)}\ns_mov_b32 s{srd+3}, 0x20000")
        p(f"""s_lshr_b32 {sT0}, s2, 3
             s_and_b32 {sRQ}, {sT0}, 3
             s_and_b32 {sG}, s2, 6
             s_lshl_b32 {sG}, {sG}, 1
             s_add_u32 {sG}, {sG}, {sRQ}
             s_lshr_b32 {sT1}, s2, 5
             s_and_b32 {sM}, s2, 1
             s_lshl_b32 {sM}, {sM}, 3
             s_add_u32 {sM}, {sM}, {sT1}
             s_lshl_b32 {sC0}, {sRQ}, 1
             s_add_u32 {sC0}, {sC0}, {sT1}
             s_lshl_b32 {sXB}, {sG}, 17
             s_lshl_b32 {sT0}, {sW}, 15
             s_add_u32 {sXB}, {sXB}, {sT0}
             s_mul_i32 {sWB}, {sW}, {16*3072}
             s_lshl_b32 {sT0}, {sM}, 6
             s_add_u32 {sWB}, {sWB}, {sT0}
             s_lshl_b32 {sXL}, {sW}, 14
             s_lshl_b32 {sWL}, {sW}, 11
             s_add_u32 {sWL}, {sWL}, 0x10000""")
        p("v_lshlrev_b32 v2, 4, v1")
        p("""v_lshrrev_b32 v14, 3, v1
             v_lshlrev_b32 v14, 10, v14
             v_and_b32 v15, 7, v1
             v_lshrrev_b32 v3, 4, v1
             v_xor_b32 v15, v15, v3
             v_lshl_add_u32 v6, v15, 4, v14
             v_xor_b32 v7, 64, v6
             v_add_u32 v7, 7168, v7
             v_add_u32 v8, 14336, v6
             v_add_u32 v9, 14336, v7""")
        p("""v_lshrrev_b32 v14, 2, v1
             v_mul_u32_u24 v14, 3072, v14
             v_and_b32 v15, 3, v1
             v_lshl_add_u32 v5, v15, 4, v14""")
        p("WAITALL lgkm")
        for srd, src in ((4, 76), (8, 78)):
            p(f"s_mov_b32 s{srd}, s{src}\ns_mov_b32 s{srd+1}, s{src+1}")

    def setup_late(self):
        p = self.p
        for srd, src in ((12, 80), (16, 84), (20, 86), (24, 88), (28, 90), (36, 92), (32, 94)):
            p(f"s_mov_b32 s{srd}, s{src}\ns_mov_b32 s{srd+1}, s{src+1}")

    def dmaA(self, c):
        S = Seq()
        S(f"""s_add_u32 {sT0}, {sC0}, {c}
             s_and_b32 {sT0}, {sT0}, 7
             s_mul_i32 {sT1}, {sT0}, {64*3072}
             s_add_u32 {sT1}, {sT1}, {sWB}
             s_add_u32 {sT1}, {sT1}, 1024
             s_add_u32 m0, {sWL}, {(c&3)*8192}
             s_lshl_b32 {sT0}, {sT0}, 7""")
        S(f"buffer_load_dwordx4 v5, {WQKV}, {sT1} offen lds", tag=f"A{c}")
        g = [list(S)]
        g.append([Inst(f"buffer_load_dwordx4 v5, {WQKV}, {sT1} offen offset:1024 lds", tag=f"A{c}")])
        S = Seq()
        S(f"s_add_u32 m0, {sXL}, {(c&3)*4096}\ns_add_u32 {sT0}, {sT0}, {sXB}")
        S(f"buffer_load_dwordx4 v6, {X}, {sT0} offen lds", tag=f"A{c}")
        g.append(list(S))
        for i in range(1, 4):
            g.append([Inst(f"buffer_load_dwordx4 v{6+i}, {X}, {sT0} offen offset:{i*1024} lds", tag=f"A{c}")])
        return g

    def dmaQ(self, c):
        S = Seq()
        S(f"""s_add_u32 {sT0}, {sC0}, {c}
             s_and_b32 {sT0}, {sT0}, 7
             s_mul_i32 {sT1}, {sT0}, {64*3072}
             s_add_u32 m0, {sT2}, {c*4096}
             s_add_u32 {sT1}, {sT1}, {sWB}""")
        S(f"buffer_load_dwordx4 v5, {WQKV}, {sT1} offen lds", tag=f"Q{c}")
        return list(S)

    def dmaWO(self, q):
        S = Seq()
        b, i = q >> 2, q & 3
        S(f"""s_add_u32 {sT0}, {sA}, {(256*b+16*i)*1024}
             s_and_b32 {sT0}, {sT0}, 0x7ffff
             s_add_u32 m0, {sXL}, {b*65536+i*4096}
             s_add_u32 {sT0}, {sT0}, {sB}""")
        g = []
        for k in range(4):
            S(f"buffer_load_dwordx4 v{6+k}, {WO}, {sT0} offen offset:{k*1024} lds", tag=f"WO{q}")
            g.append(list(S))
            S = Seq()
        return g

    def phaseA(self):
        p = self.p
        o = self.o
        for g in self.dmaA(0):
            p.extend(g)
        self.setup_late()
        Lz = self.lab("z")
        p(f"""v_mov_b32 v16, 0
             v_mov_b32 v17, 0
             v_mov_b32 v18, 0
             v_mov_b32 v19, 0
             s_sub_u32 {sT3}, s2, 224
             s_lshl_b32 {sT4}, {sT3}, 10
             s_mul_i32 {sT3}, {sT3}, 1536
             v_and_b32 v14, 1, v1
             v_lshlrev_b32 v14, 4, v14
             v_bfe_u32 v15, v1, 1, 1
             v_lshl_add_u32 v14, v15, 9, v14
             v_add_u32 v14, {hex(ZP)}, v14
             v_add_u32 v14, {sT4}, v14
             v_lshlrev_b32 v15, 8, v1
             v_add_u32 v15, {sT3}, v15
             v_subrev_u32 v15, 1024, v15
             v_cmp_gt_u32 vcc, 4, v1
             v_cndmask_b32 v14, v15, v14, vcc
             s_add_u32 {sT4}, {sT4}, {hex(KVM)}
             s_lshl_b32 {sD}, {sW}, 8
             s_add_u32 {sD}, {sD}, 224
             s_cmp_lt_u32 s2, {sD}
             s_cbranch_scc1 {Lz}""")
        p(f"""buffer_store_dwordx4 v[16:19], v2, {WS}, {sT4} offen sc1
             s_mov_b64 exec, 0x3ff
             buffer_store_dwordx4 v[16:19], v14, {WS}, 0 offen sc1
             s_mov_b64 exec, -1""", cond=True)
        p(f"{Lz}:")
        for g in self.dmaA(1):
            p.extend(g)
        if o.get('codepf', 1):
            p(f"""s_getpc_b64 s[70:71]
                 s_lshr_b32 {sT0}, s2, 3
                 s_lshl_b32 {sT0}, {sT0}, 2
                 s_add_u32 {sT0}, {sT0}, {sW}
                 s_lshl_b32 {sT0}, {sT0}, 9
                 v_and_b32 v14, 3, v1
                 v_lshlrev_b32 v14, 7, v14
                 v_add_u32 v14, {sT0}, v14
                 v_min_u32 v14, CODE_PF_MAX, v14
                 global_load_dword v15, v14, s[70:71]""")
        p(f"""s_mov_b32 {sLOG2E}, 0x3fb8aa3b
             s_mov_b32 {sMSKHI}, 0xffff0000
             s_mov_b32 {sEPS6}, 0x358637bd
             s_mov_b32 s62, 0
             s_mov_b32 s63, -1
             s_mov_b32 s64, 0xffff0000
             s_mov_b32 s65, 0xffff0000""")
        p(f"""v_and_b32 v20, 31, v1
             v_lshrrev_b32 v21, 5, v1
             v_bfe_u32 v22, v1, 1, 3
             v_xor_b32 v21, v21, v22
             v_lshlrev_b32 v21, 4, v21
             v_lshl_add_u32 v21, v20, 7, v21
             v_add_u32 v10, {sXL}, v21
             v_xor_b32 v11, 32, v10
             v_xor_b32 v12, 64, v10
             v_xor_b32 v13, 96, v10""")
        p("""v_lshrrev_b32 v20, 5, v1
             v_lshlrev_b32 v20, 9, v20
             v_bfe_u32 v21, v1, 2, 2
             v_lshl_add_u32 v20, v21, 6, v20
             v_bfe_u32 v21, v1, 4, 1
             v_lshl_add_u32 v20, v21, 5, v20
             v_add_u32 v20, 0x10000, v20
             v_and_b32 v21, 3, v1
             v_lshl_add_u32 v3, v21, 3, v20
             v_and_b32 v21, 1, v1
             v_lshl_add_u32 v4, v21, 4, v20
             v_bfe_u32 v21, v1, 1, 1
             v_lshl_add_u32 v4, v21, 3, v4""")
        p("""v_and_b32 v24, 3, v1
             v_lshrrev_b32 v25, 2, v1
             v_lshrrev_b32 v26, 4, v1
             v_xor_b32 v25, v25, v26
             v_and_b32 v25, 1, v25
             v_or_b32 v24, v24, v25
             v_cmp_eq_u32 vcc, 0, v24
             v_mov_b32 v20, 0x3f803f80
             v_mov_b32 v21, 0x3f803f80
             v_mov_b32 v22, 0x3f803f80
             v_mov_b32 v23, 0x3f803f80
             v_cndmask_b32 v16, 0, v20, vcc
             v_cndmask_b32 v17, 0, v20, vcc
             v_cndmask_b32 v18, 0, v20, vcc
             v_cndmask_b32 v19, 0, v20, vcc""")
        for b in (160, 164, 168, 172, 176):
            for k in (1, 2, 3):
                p(f"v_mov_b32 v{b+k}, 0")
        SEL, ONES = v(16, 4), v(20, 4)
        XS, XQ, CK, CV, CQ, ZA = 24, 28, 32, 36, 40, 44
        AK, AV, AQ, RB, AKV = 48, 64, 80, 96, 112

        def reads(s):
            c, j = s >> 2, s & 3
            r = [Inst(f"ds_read_b128 {a_(4*s,4)}, v{10+j} offset:{(c&3)*4096}")]
            base = (c & 3) * 8192 + j * 2048
            r += trpair(('v', 128 + 8 * (s & 1)), "v3", base, 256)
            r += trpair(('v', 132 + 8 * (s & 1)), "v4", base + 1024, 256)
            return r

        self.stamp("A_issued")
        p("WAITTAG A0\ns_barrier")
        self.stamp("A_c0")
        Lz = self.lab("z2")
        p(f"v_mov_b32 v14, 1\ns_cmp_lt_u32 s2, {sD}\ns_cbranch_scc1 {Lz}")
        p(f"""s_waitcnt vmcnt({6 + (1 if o.get('codepf',1) else 0)})
             s_mov_b64 exec, 1
             buffer_atomic_add v14, off, {DBG}, 0 sc1
             s_mov_b64 exec, -1""", cond=True)
        p(f"{Lz}:")
        p.extend(reads(0))
        p(f"s_lshl_b32 {sT2}, {sW}, 10\ns_add_u32 {sT2}, {sT2}, 0x18000")
        pend = self.dmaA(2)
        for s in range(32):
            c, j = s >> 2, s & 3
            xf = a_(4 * s, 4)
            kf, vf = v(128 + 8 * (s & 1), 4), v(132 + 8 * (s & 1), 4)
            z = "0" if s == 0 else None
            p.append(mf32(AK, xf, kf, z))
            if s < 31:
                if j == 3:
                    p(f"WAITTAG A{c+1}\ns_barrier")
                    assert not pend
                    if c + 3 < 8:
                        pend = self.dmaA(c + 3)
                    elif c + 3 == 8:
                        pend = [self.dmaQ(k) for k in range(0, 4)]
                        pend.append([Inst(f"buffer_load_dword v15, off, {DBG}, 0 sc1")])
                    else:
                        pend = [self.dmaQ(k) for k in range(4, 8)]
                p.extend(reads(s + 1))
            p.append(mf32(AV, xf, vf, z))
            for _ in range(2):
                if pend and not (j == 3 and _ == 1):
                    p.extend(pend.pop(0))
            p.append(mf4(XQ, a_(4 * s, 2), a_(4 * s, 2), z))
            p.append(mf16(XS, SEL, xf, z))
            p.append(mf16(CK, SEL, kf, z))
            p.append(mf4(XQ, a_(4 * s + 2, 2), a_(4 * s + 2, 2)))
            p.append(mf16(CV, SEL, vf, z))
        assert not pend
        self.stamp("A_loop")
        p(f"""s_lshr_b32 {sTB}, {sM}, 2
             s_lshl_b32 {sT0}, {sG}, 2
             s_add_u32 {sTB}, {sTB}, {sT0}
             s_and_b32 {sCB}, {sM}, 3
             s_lshl_b32 {sA}, {sRQ}, 17
             s_lshl_b32 {sT0}, {sW}, 16
             s_add_u32 {sA}, {sA}, {sT0}
             s_lshl_b32 {sB}, {sCB}, 8""")
        E = Seq()
        E("""v_lshrrev_b32 v196, 4, v1
             v_bfe_u32 v197, v1, 2, 2
             v_xor_b32 v197, v197, v196
             v_lshlrev_b32 v197, 6, v197
             v_lshl_add_u32 v197, v196, 10, v197
             v_and_b32 v196, 3, v1
             v_lshl_add_u32 v6, v196, 4, v197
             v_add_u32 v7, 3072, v6
             v_add_u32 v8, 6144, v6
             v_add_u32 v9, 9216, v6""")
        E(f"""v_and_b32 v196, 3, v1
             v_cmp_eq_u32 vcc, 1, v196
             v_cndmask_b32 v197, v{XQ}, v{XQ+1}, vcc
             v_cmp_eq_u32 vcc, 2, v196
             v_cndmask_b32 v197, v197, v{XQ+2}, vcc
             v_cmp_eq_u32 vcc, 3, v196
             v_cndmask_b32 v197, v197, v{XQ+3}, vcc
             v_mov_b32 v198, v197
             v_mul_f32 v199, 0x3b000000, v{XS}
             v_permlane32_swap_b32 v197, v198
             v_add_f32 v197, v197, v198
             v_mul_f32 v197, 0x3b000000, v197
             v_fma_f32 v197, -v199, v199, v197
             v_max_f32 v197, 0, v197
             v_add_f32 v197, 0x3727c5ac, v197
             v_rsq_f32 v14, v197
             v_cvt_pk_bf16_f32 v198, -v199, -v199
             v_cndmask_b32 v160, v198, 0, {sHILANES}""")

        def split2(dst, src, t):
            return Seq()(f"""v_cvt_pk_bf16_f32 v{t}, v{src}, v{src}
                 v_lshlrev_b32 v{t}, 16, v{t}
                 v_sub_f32 v{t}, v{src}, v{t}
                 v_cvt_pk_bf16_f32 v{dst}, v{src}, v{t}""")
        E.extend(split2(164, CK, 198))
        E.extend(split2(168, CV, 199))
        E.extend(split2(176, 14, 198))
        E(f"v_cndmask_b32 v176, v176, 0, {sHILANES}")
        E.append(mf32(AK, v(160, 4), v(164, 4)))
        E.append(mf32(RB, v(176, 4), ONES, "0"))
        E.append(mf32(AV, v(160, 4), v(168, 4)))

        def phi(acc, scale, T, dst):
            S = Seq()
            for h in range(2):
                r = range(8 * h, 8 * h + 8)
                for i in r:
                    S(f"v_fma_f32 v{acc+i}, v{acc+i}, {scale(i)}, {sEPS6}")
                for i in r:
                    S(f"v_mul_f32 v{T+i}, {sLOG2E}, v{acc+i}")
                for i in r:
                    S(f"v_exp_f32_e64 v{T+i}, v{T+i} clamp")
                for i in r:
                    S(f"v_max_f32 v{acc+i}, {sEPS6}, v{acc+i}")
                for i in r:
                    S(f"v_add_f32 v{acc+i}, v{acc+i}, v{T+i}")
                for i in range(4 * h, 4 * h + 4):
                    S(f"v_cvt_pk_bf16_f32 v{dst+i}, v{acc+2*i}, v{acc+2*i+1}")
            return S
        E2 = Seq()
        E2.extend(phi(AK, lambda i: f"v{RB+i}", 196, 180))
        for i in range(16):
            E2(f"v_mul_f32 v{AV+i}, v{AV+i}, v{RB+i}")
        for i in range(8):
            E2(f"v_cvt_pk_bf16_f32 v{188+i}, v{AV+2*i}, v{AV+2*i+1}")
        E2(f"""v_bfe_u32 v212, v1, 4, 1
             v_lshlrev_b32 v212, 10, v212
             v_lshrrev_b32 v213, 5, v1
             v_lshl_add_u32 v212, v213, 9, v212
             v_and_b32 v213, 15, v1
             v_lshl_add_u32 v212, v213, 4, v212
             v_add_u32 v212, {sWL}, v212
             v_and_b32 v213, 31, v1
             v_lshlrev_b32 v213, 2, v213
             s_lshl_b32 {sT3}, {sW}, 7
             s_add_u32 {sT3}, {sT3}, 0x12000
             v_add_u32 v213, {sT3}, v213""")
        def qreads(s):
            return trpair(('v', 144 + 4 * (s & 3)), "v4", 0x8000 + s * 1024, 256)
        Q = []
        for s in range(32):
            g = Seq()
            qf = v(144 + 4 * (s & 3), 4)
            z = "0" if s == 0 else None
            g.append(mf32(AQ, qf, a_(4 * s, 4), z))
            if s + 2 < 32:
                if s + 2 == 16:
                    g("WAITTAG Q7\ns_barrier")
                g.extend(qreads(s + 2))
            g.append(mf16(CQ, SEL, qf, z))
            Q.append(g)
        p.extend(E)
        p("WAITTAG Q3\ns_barrier")
        p.extend(qreads(0) + qreads(1))
        nq1 = o.get('nq1', 22)
        Qw = weave(Q, list(E2), 0, nq1)
        fw = self.dmaWO(0)
        for k in range(4):
            Qw[15 + k] += fw[k]
        p.extend(flat(Qw[:nq1]))
        p.append(mf32(AKV, v(180, 4), v(188, 4), "0"))
        p.append(mf16(ZA, SEL, v(180, 4), "0"))
        p.append(mf32(AKV, v(184, 4), v(192, 4)))
        p.append(mf16(ZA, SEL, v(184, 4)))
        rest = Qw[nq1:]
        p.extend(flat(rest[:3]))
        S = Seq()
        for i in range(8):
            S(f"v_cndmask_b32 v{196+i}, v{AKV+i}, v{AKV+8+i}, {sB4LANES}")
        S(f"""ds_write_b128 v212, v[196:199]
             ds_write_b128 v212, v[200:203] offset:256
             ds_write_b32 v213, v{ZA}""")
        S(f"""v_lshlrev_b32 v204, 2, v0
             v_add_u32 v205, 0x10000, v204
             v_and_b32 v206, 7, v1
             s_lshl_b32 {sT3}, {sW}, 5
             s_add_u32 {sT3}, {sT3}, 0x12000
             v_lshl_add_u32 v206, v206, 2, {sT3}
             v_and_b32 v207, 3, v1
             v_lshlrev_b32 v207, 2, v207
             v_bfe_u32 v208, v1, 2, 1
             v_lshl_add_u32 v207, v208, 9, v207
             v_cmp_gt_u32 vcc, 8, v1
             v_mov_b32 v208, 0x7ffffff0
             v_cndmask_b32 v207, v208, v207, vcc
             s_lshl_b32 {sT3}, {sM}, 11
             s_add_u32 {sT3}, {sT3}, {hex(KVM)}
             s_lshr_b32 {sT4}, {sW}, 1
             s_lshl_b32 {sT4}, {sT4}, 10
             s_add_u32 {sT4}, {sT4}, {sT3}
             s_and_b32 {sCc}, {sW}, 1
             s_lshl_b32 {sCc}, {sCc}, 4
             s_add_u32 {sT4}, {sT4}, {sCc}
             s_add_u32 {sT4}, {sT4}, {hex(ZP-KVM)}""")
        p.extend(flat(weave(rest[3:], list(S))))
        self.spin("v15", None, "0", "1", "32", srd=DBG, first_loaded=True, sleep=4)
        p("WAITALL lgkm\ns_barrier")
        for k in range(4):
            p(f"ds_read2st64_b32 v[{112+2*k}:{113+2*k}], v205 offset0:{8*k} offset1:{8*k+4}")
        p("ds_read2_b32 v[120:121], v206 offset0:0 offset1:32")
        p("ds_read2_b32 v[122:123], v206 offset0:64 offset1:96")
        p.extend(split2(172, CQ, 198))
        p.append(mf32(AQ, v(172, 4), v(160, 4)))
        p("""v_add_f32 v112, v112, v114
             v_add_f32 v113, v113, v115
             v_add_f32 v116, v116, v118
             v_add_f32 v117, v117, v119
             v_add_f32 v112, v112, v116
             v_add_f32 v113, v113, v117""")
        p(f"buffer_atomic_add_f32 v112, v204, {WS}, {sT3} offen", tag="pub1")
        p(f"buffer_atomic_add_f32 v113, v204, {WS}, {sT3} offen offset:1024", tag="pub1")
        p("""v_add_f32 v120, v120, v121
             v_add_f32 v122, v122, v123
             v_add_f32 v120, v120, v122""")
        p(f"buffer_atomic_add_f32 v120, v207, {WS}, {sT4} offen", tag="pub1")
        self.stamp("A_kvatom")
        p(f"""s_lshl_b32 {sT3}, {sG}, 2
             s_add_u32 {sT3}, {sT3}, {sW}
             s_lshl_b32 {sT3}, {sT3}, 15
             s_lshl_b32 {sT4}, {sM}, 11
             s_add_u32 {sT3}, {sT3}, {sT4}
             s_add_u32 {sT3}, {sT3}, {hex(PQ)}""")
        ph = phi(AQ, lambda i: "v14", 196, 212)
        h = len(ph) // 2
        p.extend(ph[:h])
        p(f"buffer_store_dwordx4 v[212:215], v2, {WS}, {sT3} offen sc1", tag="pub1")
        p.extend(ph[h:])
        p(f"buffer_store_dwordx4 v[216:219], v2, {WS}, {sT3} offen offset:1024 sc1", tag="pub1")
        self.stamp("A_pqst")
        for q in (1, 2):
            p.extend(flat(self.dmaWO(q)))
        nsh = o.get('nsh', 16)
        p(f"s_and_b32 {sT3}, s2, {nsh-1}\ns_lshl_b32 {sT3}, {sT3}, 8")
        p("WAITTAG pub1\ns_barrier")
        self.signal(sT3)
        self.stamp("A_sig")
        for q in range(3, 8):
            p.extend(flat(self.dmaWO(q)))
        p(f"""v_and_b32 v196, 31, v1
             v_lshrrev_b32 v197, 5, v1
             v_lshlrev_b32 v197, 4, v197
             v_lshl_add_u32 v5, v196, 10, v197
             s_lshl_b32 {sT3}, {sTB}, 15
             s_lshl_b32 {sT4}, {sW}, 6
             s_add_u32 {sT3}, {sT3}, {sT4}
             s_add_u32 {sT3}, {sT3}, {sB}
             buffer_load_dwordx4 v[220:223], v5, {X}, {sT3} offen
             buffer_load_dwordx4 v[224:227], v5, {X}, {sT3} offen offset:32""")

    def rloads(self):
        S = Seq()
        S(f"""s_lshr_b32 {sU}, s2, 3
             s_and_b32 {sKC}, s2, 7
             v_lshrrev_b32 v208, 3, v1
             v_and_b32 v209, 7, v1
             v_lshlrev_b32 v209, 4, v209
             v_mul_u32_u24 v210, 3584, v208
             v_add_u32 v210, v210, v209
             v_lshl_add_u32 v211, v208, 10, v209
             s_lshl_b32 {sT0}, {sKC}, 2
             s_add_u32 {sT0}, {sT0}, {sW}
             s_mul_i32 {sT0}, {sT0}, {16*3584}
             s_lshl_b32 {sT1}, {sU}, 7
             s_add_u32 {sT0}, {sT0}, {sT1}
             s_cmp_ge_u32 s2, 224
             s_cselect_b32 {sT0}, 0x7f000000, {sT0}
             s_add_u32 {sT1}, {sT0}, {8*3584}
             buffer_load_dwordx4 v[228:231], v210, {W1}, {sT0} offen
             buffer_load_dwordx4 v[232:235], v210, {W1}, {sT1} offen
             buffer_load_dwordx4 v[236:239], v210, {W3}, {sT0} offen
             buffer_load_dwordx4 v[240:243], v210, {W3}, {sT1} offen
             s_lshl_b32 {sT0}, {sU}, 2
             s_add_u32 {sT0}, {sT0}, {sW}
             s_lshl_b32 {sT0}, {sT0}, 14
             s_lshl_b32 {sT1}, {sKC}, 7
             s_add_u32 {sT0}, {sT0}, {sT1}
             s_add_u32 {sT1}, {sT0}, 8192
             buffer_load_dwordx4 v[244:247], v211, {W2}, {sT0} offen
             buffer_load_dwordx4 v[248:251], v211, {W2}, {sT1} offen""")
        return S

    def dmaW1(self, q):
        mat, kq = q & 1, q >> 1
        S = Seq()
        S(f"""s_add_u32 {sT0}, {sA}, {kq*128*3584}
             s_add_u32 m0, {sB}, {mat*65536 + kq*16384}""")
        g = []
        for k in range(4):
            S(f"buffer_load_dwordx4 v{(6 if mat == 0 else 10)+k}, {W3 if mat else W1}, {sT0} offen offset:{k*1024} lds", tag=f"W1_{q}")
            g.append(list(S))
            S = Seq()
        return g

    def phaseB(self):
        p = self.p
        o = self.o
        nsh = o.get('nsh', 16)
        p(f"""v_lshlrev_b32 v196, 8, v1
             v_lshrrev_b32 v197, 5, v1
             v_and_b32 v198, 15, v1
             v_lshl_add_u32 v198, v197, 4, v198
             v_lshlrev_b32 v198, 4, v198
             v_lshlrev_b32 v197, 4, v197
             v_add_u32 v197, {hex(ZP-KVM)}, v197
             v_cndmask_b32 v197, v198, v197, {sB4LANES}
             s_lshl_b32 {sT3}, {sW}, 13
             s_add_u32 {sT1}, {sT3}, {hex(KVM)}
             s_add_u32 {sT2}, {sT1}, 4096
             s_lshl_b32 {sT4}, {sTB}, 15
             s_add_u32 {sT3}, {sT3}, {sT4}
             s_add_u32 {sT3}, {sT3}, {hex(PQ)}
             s_add_u32 {sT4}, {sT3}, 4096""")
        p(f"""v_lshrrev_b32 v199, 5, v1
             v_lshlrev_b32 v199, 11, v199
             v_bfe_u32 v200, v1, 2, 2
             v_lshl_add_u32 v199, v200, 8, v199
             v_xor_b32 v200, {sW}, v200
             v_lshl_add_u32 v199, v200, 6, v199
             v_bfe_u32 v200, v1, 4, 1
             v_lshl_add_u32 v199, v200, 5, v199
             v_and_b32 v200, 1, v1
             v_lshl_add_u32 v199, v200, 4, v199
             v_bfe_u32 v200, v1, 1, 1
             v_lshl_add_u32 v199, v200, 3, v199""")
        for q in range(4):
            p(f"""s_add_u32 {sT0}, {sW}, {q+4}
                 s_sub_u32 {sCc}, {sT0}, {sRQ}
                 s_and_b32 {sCc}, {sCc}, 3
                 s_lshl_b32 {sCc}, {sCc}, 15
                 v_add_u32 v{10+q}, {sCc}, v199
                 s_and_b32 {sT0}, {sT0}, 3
                 s_lshl_b32 {sT0}, {sT0}, 13
                 s_add_u32 {sT0}, {sT0}, 0x20000
                 v_add_u32 v{252+q}, {sT0}, v2""")
        self.stamp("B_prepoll")
        self.spin("v15", "v196", "0", hex((1 << nsh) - 1) if nsh < 64 else "-1", str(256 // nsh), sleep=o.get('sleep1', 0))
        p("WAITALL vm\ns_barrier")
        self.stamp("B_sync1")
        for i in range(8):
            so = sT1 if i < 4 else sT2
            p(f"buffer_load_dwordx4 {v(48+8*i,4)}, v197, {WS}, {so} offen offset:{(i&3)*1024} sc1")
            p(f"buffer_load_dwordx4 {v(52+8*i,4)}, v197, {WS}, {so} offen offset:{(i&3)*1024+512} sc1")
            p(f"buffer_load_dwordx4 {a_(4*i,4)}, v2, {WS}, {sT3 if i < 4 else sT4} offen offset:{(i&3)*1024} sc1")
        p.extend(self.rloads())
        for i in range(32):
            p.extend(trpair(('a', 128 + 4 * i), f"v{10+(i>>3)}", (i & 7) * 4096, 1024))
        AH = 192
        for i in range(8):
            p(f"v_lshlrev_b32 v{AH+2*i}, 16, v{220+i}\nv_and_b32 v{AH+2*i+1}, {sMSKHI}, v{220+i}")
        p(f"""v_lshrrev_b32 v208, 3, v1
             v_mul_u32_u24 v208, 3584, v208
             v_and_b32 v209, 7, v1
             v_bfe_u32 v212, v1, 4, 1
             v_lshlrev_b32 v212, 2, v212
             v_xor_b32 v209, v209, v212
             v_lshl_add_u32 v6, v209, 4, v208
             v_xor_b32 v209, 2, v209
             v_lshl_add_u32 v10, v209, 4, v208""")
        for k in range(1, 4):
            p(f"v_add_u32 v{6+k}, {k*(8*3584-1024)}, v6\nv_add_u32 v{10+k}, {k*(8*3584-1024)}, v10")
        p(f"""s_mul_i32 {sA}, {sW}, {32*3584}
             s_lshl_b32 {sT0}, {sM}, 7
             s_add_u32 {sA}, {sA}, {sT0}
             s_lshl_b32 {sB}, {sW}, 12""")
        NA = [144, 160, 176]

        def cv(i):
            S = Seq()
            for k in range(4):
                S(f"v_cvt_pk_bf16_f32 v{112+4*i+k}, v{48+8*i+2*k}, v{48+8*i+2*k+1}")
            S.append(mf32(NA[i % 3], v(112 + 4 * i, 4), a_(4 * i, 4), "0"))
            return S

        def fin(i):
            n = NA[i % 3]
            S = Seq()
            S(f"v_add_f32 v{n+8}, {sEPS6}, v{n+8}\nv_rcp_f32 v{n+8}, v{n+8}")
            for k in range(8):
                S(f"v_mul_f32 v{n+k}, v{n+k}, v{n+8}")
            for k in range(4):
                S(f"v_cvt_pk_bf16_f32 v{48+4*i+k}, v{n+2*k}, v{n+2*k+1}")
            S(f"ds_write_b128 v252, {v(48+4*i,4)} offset:{i*1024}")
            return S
        p.extend(cv(0))
        p.extend(cv(1))
        for i in range(8):
            if i + 2 < 8:
                p.extend(cv(i + 2))
            p.extend(fin(i))
            if i >= 1:
                p.append(mf32(AH, a_(128 + 4 * (i - 1), 4), v(48 + 4 * (i - 1), 4)))
        self.stamp("B_st1")
        p("WAITALL lgkm\ns_barrier")

        def oread(i):
            return [Inst(f"ds_read_b128 {v(80+4*(i&7),4)}, v{252+(i>>3)} offset:{(i&7)*1024}")]
        for i in range(8, 12):
            p.extend(oread(i))
        p.append(mf32(AH, a_(128 + 28, 4), v(48 + 28, 4)))
        G = []
        for i in range(8, 32):
            g = [mf32(AH, a_(128 + 4 * i, 4), v(80 + 4 * (i & 7), 4))]
            if i + 4 < 32:
                g += oread(i + 4)
            G.append(g)
        G = weave(G, self.dmaW1(0) + self.dmaW1(1), 0, 16)
        p.extend(flat(G))
        p(f"""s_lshl_b32 {sT3}, {sTB}, 15
             s_lshl_b32 {sT4}, {sCB}, 2
             s_add_u32 {sT4}, {sT4}, {sW}
             s_lshl_b32 {sT1}, {sT4}, 11
             s_add_u32 {sT3}, {sT3}, {sT1}
             s_add_u32 {sT3}, {sT3}, {hex(HB)}
             s_lshl_b32 {sT1}, {sTB}, 12
             s_lshl_b32 {sT4}, {sT4}, 8
             s_add_u32 {sT4}, {sT4}, {sT1}
             s_add_u32 {sT4}, {sT4}, {hex(ST)}
             v_lshlrev_b32 v15, 2, v1""")
        for k in range(8):
            p(f"v_cvt_pk_bf16_f32 v{208+k}, v{AH+2*k}, v{AH+2*k+1}")
            if k == 3:
                p(f"buffer_store_dwordx4 v[208:211], v2, {WS}, {sT3} offen sc1", tag="pub2")
        p(f"buffer_store_dwordx4 v[212:215], v2, {WS}, {sT3} offen offset:1024 sc1", tag="pub2")
        p(f"v_add_f32 v216, v{AH}, v{AH+1}\nv_mul_f32 v217, v{AH}, v{AH}\nv_add_f32 v218, v{AH+2}, v{AH+3}\nv_mul_f32 v219, v{AH+1}, v{AH+1}")
        for k in range(2, 16):
            if k >= 4:
                p(f"v_add_f32 v{216+2*(k&1)}, v{216+2*(k&1)}, v{AH+k}")
            p(f"v_fmac_f32 v{217+2*(k&1)}, v{AH+k}, v{AH+k}")
        p("""v_add_f32 v216, v216, v218
             v_add_f32 v217, v217, v219
             v_permlane32_swap_b32 v216, v217
             v_add_f32 v216, v216, v217""")
        p(f"buffer_store_dword v216, v15, {WS}, {sT4} offen sc1", tag="pub2")
        self.stamp("B_hst")
        p.extend(flat(self.dmaW1(2) + self.dmaW1(3)))
        p(f"s_lshl_b32 {sD}, {sG}, 8\ns_add_u32 {sT3}, {sD}, {C_H*256}")
        p("WAITTAG pub2\ns_barrier")
        self.signal(sT3)
        self.stamp("B_sig")

    def phaseR(self):
        p = self.p
        RS = 0x20000
        p(f"""v_and_b32 v48, 7, v1
             v_bfe_u32 v49, v1, 4, 1
             v_lshlrev_b32 v49, 2, v49
             v_xor_b32 v48, v48, v49
             v_lshrrev_b32 v49, 3, v1
             v_lshlrev_b32 v49, 7, v49
             v_lshl_add_u32 v48, v48, 4, v49
             s_lshl_b32 {sT3}, {sW}, 11
             s_add_u32 {sT3}, {sT3}, {hex(RS)}
             v_add_u32 v48, {sT3}, v48
             v_xor_b32 v49, 32, v48
             ds_write_b128 v48, v[228:231]
             ds_write_b128 v48, v[232:235] offset:1024
             ds_write_b128 v49, v[236:239] offset:8192
             ds_write_b128 v49, v[240:243] offset:9216
             ds_write_b128 v48, v[244:247] offset:16384
             ds_write_b128 v48, v[248:251] offset:17408""")
        p.extend(flat(self.dmaW1(4) + self.dmaW1(5)))
        p(f"""v_lshrrev_b32 v50, 5, v1
             v_lshlrev_b32 v50, 10, v50
             v_bfe_u32 v51, v1, 2, 2
             v_lshl_add_u32 v50, v51, 7, v50
             v_and_b32 v51, 1, v1
             v_lshl_add_u32 v50, v51, 4, v50
             v_bfe_u32 v51, v1, 1, 1
             v_lshl_add_u32 v50, v51, 3, v50
             v_bfe_u32 v51, v1, 3, 1
             v_lshlrev_b32 v51, 1, v51
             v_bfe_u32 v52, v1, 4, 1
             v_xor_b32 v51, v51, v52
             v_lshl_add_u32 v53, v51, 5, v50
             v_lshl_add_u32 v42, v52, 16, v53
             v_xor_b32 v43, 32, v42
             v_xor_b32 v44, 64, v42
             v_xor_b32 v45, 96, v42
             s_lshl_b32 {sT4}, {sW}, 5
             v_xor_b32 v54, {sT4}, v53
             v_lshl_add_u32 v54, v52, 13, v54
             v_add_u32 v54, {hex(RS)}, v54
             v_add_u32 v55, {sT3}, v53
             v_xor_b32 v56, 64, v55""")
        p("WAITALL lgkm\ns_barrier")
        for s in range(4):
            p.extend(trpair(('v', 64 + 4 * s), "v54", s * 2048, 512))
        p.extend(trpair(('v', 80), "v55", 16384, 512))
        p.extend(trpair(('v', 84), "v56", 16384, 512))
        p(f"""s_lshl_b32 {sT1}, {sU}, 2
             s_add_u32 {sT1}, {sT1}, {sW}
             s_sub_u32 {sT2}, {sT1}, 64
             s_lshl_b32 {sT2}, {sT2}, 15
             s_lshl_b32 {sT3}, {sKC}, 12
             s_add_u32 {sT2}, {sT2}, {sT3}
             s_add_u32 {sT2}, {sT2}, {hex(W13R)}
             s_cmp_lt_u32 s2, 128
             s_cselect_b32 {sT2}, 0x7f000000, {sT2}
             s_mul_i32 {sT3}, {sKC}, {112*2048}
             s_lshl_b32 {sT4}, {sT1}, 11
             s_add_u32 {sT3}, {sT3}, {sT4}
             s_add_u32 {sT3}, {sT3}, {hex(W2R)}
             s_lshl_b32 {sT4}, {sT1}, 10
             s_lshr_b32 {sT1}, {sKC}, 2
             s_lshl_b32 {sT1}, {sT1}, 9
             s_add_u32 {sT4}, {sT4}, {sT1}
             s_and_b32 {sT1}, {sKC}, 3
             s_lshl_b32 {sT1}, {sT1}, 2
             s_add_u32 {sT4}, {sT4}, {sT1}
             s_add_u32 {sT4}, {sT4}, {hex(CS)}
             s_cmp_ge_u32 s2, 224
             s_cselect_b32 {sT2}, 0x7f000000, {sT2}
             s_cselect_b32 {sT3}, 0x7f000000, {sT3}
             s_cselect_b32 {sT4}, 0x7f000000, {sT4}
             v_mov_b32 v57, 0x00800000
             v_cndmask_b32 v57, v2, v57, {sHILANES}
             v_lshlrev_b32 v58, 4, v57
             v_cndmask_b32 v57, v57, v58, {sHILANES}""")
        for s in range(4):
            p.append(mf16(60, v(16, 4), v(64 + 4 * s, 4), "0" if s == 0 else None))
            p(f"buffer_store_dwordx4 {v(64+4*s,4)}, v2, {WS}, {sT2} offen offset:{s*1024} sc1", tag="pubR")
        p(f"buffer_store_dwordx4 v[80:83], v2, {WS}, {sT3} offen sc1", tag="pubR")
        p(f"buffer_store_dwordx4 v[84:87], v2, {WS}, {sT3} offen offset:1024 sc1", tag="pubR")
        p("""v_cvt_pk_bf16_f32 v58, v60, v60
             v_lshlrev_b32 v58, 16, v58
             v_sub_f32 v58, v60, v58
             v_cvt_pk_bf16_f32 v58, v60, v58""")
        p(f"buffer_store_dword v58, v57, {WS}, {sT4} offen sc1", tag="pubR")
        p.extend(flat(self.dmaW1(6) + self.dmaW1(7)))

    def signalR(self):
        p = self.p
        L = self.lab("sigR")
        p(f"""v_mov_b32 v14, 1
             s_add_u32 {sT0}, {sU}, {C_R13}
             s_add_u32 {sT1}, {sKC}, {C_R2}
             s_lshl_b32 {sT0}, {sT0}, 8
             s_lshl_b32 {sT1}, {sT1}, 8
             s_lshl_b32 {sT2}, {sW}, 8
             s_add_u32 {sT2}, {sT2}, s2
             s_cmp_ge_u32 {sT2}, 224
             s_cbranch_scc1 {L}""")
        p(f"""s_mov_b64 exec, 1
             buffer_atomic_add v14, off, {WS}, {sT0} sc1
             buffer_atomic_add v14, off, {WS}, {sT1} sc1
             s_mov_b64 exec, -1""", cond=True)
        p(f"{L}:")

    def phaseCD(self):
        p = self.p
        o = self.o
        sHB, sHS, sW2, sHL0, sHL1 = "s48", "s49", "s50", "s51", "s43"
        p(f"""s_lshl_b32 {sT0}, {sG}, 2
             s_add_u32 {sT0}, {sT0}, {sW}
             s_lshl_b32 {sHB}, {sT0}, 15
             s_add_u32 {sHB}, {sHB}, {hex(HB)}
             s_mul_i32 {sHS}, {sT0}, {112*1024}
             s_add_u32 {sHS}, {sHS}, {hex(HH)}
             s_lshl_b32 {sT4}, {sT0}, 12
             s_add_u32 {sT4}, {sT4}, {hex(ST)}
             s_add_u32 {sT3}, {sD}, {C_H*256}""")
        self.stamp("C_prepoll")
        self.spin("v14", None, sT3, "1", "16")
        p("WAITALL vm\ns_barrier")
        self.stamp("C_sync2")
        for s in range(32):
            if s % 4 == 0 and s:
                p(f"s_add_u32 {sHB}, {sHB}, 4096")
            p(f"buffer_load_dwordx4 {a_(4*s,4)}, v2, {WS}, {sHB} offen offset:{(s&3)*1024} sc1")
            if s == 7:
                self.signalR()
        ACC = [48, 64, 80, 96, 112]
        acc_of = [0, 1, 2, 3, 4, 0, 1]
        WR = 128
        CSF, MEANF, C1, C2 = 152, 180, 184, 185
        T = 186
        F0 = Seq()
        for k in range(16):
            F0(f"buffer_load_dword v{T+k}, v15, {WS}, {sT4} offen offset:{k*256} sc1")
        F1 = Seq()
        for st in (8, 4, 2, 1):
            for k in range(st):
                F1(f"v_add_f32 v{T+k}, v{T+k}, v{T+k+st}")
        F1(f"""v_mov_b32 v{T+1}, v{T}
             v_permlane32_swap_b32 v{T}, v{T+1}
             v_mul_f32 v{T}, 0x3b000000, v{T}
             v_mul_f32 v{T+1}, 0x3b000000, v{T+1}
             v_fma_f32 v{T+1}, -v{T}, v{T}, v{T+1}
             v_max_f32 v{T+1}, 0, v{T+1}
             v_add_f32 v{C2}, 0x3727c5ac, v{T+1}
             v_rsq_f32 v{C1}, v{C2}
             v_cvt_pk_bf16_f32 v{MEANF}, -v{T}, -v{T}
             v_mul_f32 v{C1}, 0xbfb8aa3b, v{C1}
             v_mov_b32 v{MEANF+1}, v{MEANF}
             v_mov_b32 v{MEANF+2}, v{MEANF}
             v_mov_b32 v{MEANF+3}, v{MEANF}""")
        F2 = Seq()
        F2(f"""s_mul_i32 {sT0}, {sM}, 3
             s_lshr_b32 {sT1}, {sT0}, 2
             s_add_u32 {sT1}, {sT1}, {C_R13+16}
             s_add_u32 {sT2}, {sT0}, 2
             s_lshr_b32 {sT2}, {sT2}, 2
             s_add_u32 {sT2}, {sT2}, {C_R13+16}
             s_add_u32 {sT0}, {sM}, {C_R13}
             s_and_b32 {sCB}, {sM}, 7
             s_add_u32 {sT3}, {sCB}, {C_R2}
             v_mov_b32 v210, {sT0}
             v_writelane_b32 v210, {sT1}, 1
             v_writelane_b32 v210, {sT2}, 2
             v_writelane_b32 v210, {sT3}, 3
             v_lshlrev_b32 v210, 8, v210
             v_mov_b32 v211, 8
             v_writelane_b32 v211, 28, 3""")
        F2(f"buffer_load_dword v212, v210, {WS}, 0 offen sc1")

        def g1reads(n):
            s, t = divmod(n, 3)
            return trpair(('v', WR + 4 * (n % 6)), f"v{42+t}", s * 2048, 512)
        G = []
        for n in range(96):
            s, t = divmod(n, 3)
            g = [mf32(ACC[t], v(WR + 4 * (n % 6), 4), a_(4 * s, 4), "0" if s == 0 else None)]
            if n + 4 < 96:
                g += g1reads(n + 4)
            else:
                g += trpair(('v', WR + 4 * ((n + 4) % 6)), "v45", (n + 4 - 96) * 2048, 512)
            G.append(g)
        for n in range(4):
            p.extend(g1reads(n))
        G = weave(G, list(F0), 24, 40)
        G = weave(G, list(F2), 40, 48)
        G = weave(G, list(F1), 48, 64)
        p.extend(flat(G[:64]))
        self.spin("v212", "v210", "0", "15", "v211", first_loaded=True, sleep=2)
        F3 = Seq()
        F3(f"s_lshl_b32 {sT0}, {sM}, 12\ns_add_u32 {sT0}, {sT0}, {hex(CS)}")
        for t in range(4):
            F3(f"buffer_load_dwordx4 {v(CSF+4*t,4)}, v2, {WS}, {sT0} offen offset:{t*1024} sc1")
        F3(f"s_mul_i32 {sT0}, {sM}, 3072\ns_add_u32 {sT0}, {sT0}, {hex(CS+64*1024)}")
        for t in range(3):
            F3(f"buffer_load_dwordx4 {v(CSF+16+4*t,4)}, v2, {WS}, {sT0} offen offset:{t*1024} sc1")
        F3(f"""s_mul_i32 {sA}, {sM}, {3*32768}
             s_lshl_b32 {sB}, {sW}, 13
             s_add_u32 {sA}, {sA}, {sB}
             s_add_u32 {sA}, {sA}, {hex(W13R)}""")

        def dmaT(t, ldsbase):
            g = []
            for h in range(2):
                S = Seq()
                S(f"s_add_u32 {sT0}, {sA}, {(t-4)*32768+h*4096}\ns_add_u32 m0, {sB}, {ldsbase+h*4096}")
                for k in range(4):
                    S(f"buffer_load_dwordx4 v2, {WS}, {sT0} offen offset:{k*1024} sc1 lds", tag=f"T{t}")
                    g.append(list(S))
                    S = Seq()
            return g
        steps = []
        for pr in range(4):
            for t in range(3):
                steps.append((0, 4 * pr + t))
        for pr in range(4):
            steps.append((0, 4 * pr + 3))
        for pr in range(4):
            steps.append((1, 3 * pr))
        for pr in range(4):
            for t in (1, 2):
                steps.append((1, 3 * pr + t))
        F4 = Seq()
        F4(f"""s_mul_i32 {sW2}, {sCB}, {112*2048}
             s_add_u32 {sW2}, {sW2}, {hex(W2R)}
             s_mul_i32 {sU}, {sW}, {12*2048}
             s_add_u32 {sU}, {sU}, {sW2}
             s_add_u32 {sU}, {sU}, {64*2048}
             s_lshl_b32 {sT0}, {sW}, 15
             s_add_u32 {sW2}, {sW2}, {sT0}
             s_and_b32 {sT0}, {sW}, 1
             s_lshl_b32 {sT0}, {sT0}, 10
             v_add_u32 v46, {sT0}, v2
             v_xor_b32 v47, 1024, v46""")
        w2l = []
        for i in range(16):
            kind, off = steps[i]
            assert kind == 0
            S = Seq()
            if off % 2 == 0 or i >= 12:
                S(f"s_add_u32 {sKC}, {sW2}, {(off & ~1)*2048}")
            S(f"buffer_load_dwordx4 {a_(128+8*i,4)}, v46, {WS}, {sKC} offen offset:{(off&1)*2048} sc1")
            w2l.append(list(S))
            w2l.append([Inst(f"buffer_load_dwordx4 {a_(132+8*i,4)}, v47, {WS}, {sKC} offen offset:{(off&1)*2048} sc1")])
        Gr = weave(G[64:], list(F3) + dmaT(4, 0x20000) + list(F4), 0, 30)
        p.extend(flat(Gr))
        for t in range(3):
            p.append(mf32(ACC[t], v(CSF + 4 * t, 4), v(MEANF, 4)))
        self.stamp("C_g1")

        def epi(t, tmp):
            A = ACC[acc_of[t]]
            S = Seq()
            for j in range(8):
                S(f"v_mul_f32 v{tmp+j}, v{A+j}, v{C1}")
            for j in range(8):
                S(f"v_exp_f32 v{tmp+j}, v{tmp+j}")
                S(f"v_mul_f32 v{A+j}, v{A+j}, v{A+8+j}")
            for j in range(8):
                S(f"v_fma_f32 v{tmp+j}, v{tmp+j}, v{C2}, v{C2}")
            for j in range(8):
                S(f"v_rcp_f32 v{tmp+j}, v{tmp+j}")
            for j in range(8):
                S(f"v_mul_f32 v{A+j}, v{A+j}, v{tmp+j}")
            for j in range(4):
                S(f"v_cvt_pk_bf16_f32 v{tmp+8+j}, v{A+2*j}, v{A+2*j+1}")
            if t < 4:
                S(f"s_lshl_b32 {sCc}, {sM}, 12\ns_add_u32 {sCc}, {sCc}, {sHS}")
                S(f"buffer_store_dwordx4 {v(tmp+8,4)}, v2, {WS}, {sCc} offen offset:{t*1024} sc1", tag=f"hh{t}")
            else:
                S(f"s_mul_i32 {sCc}, {sM}, 3072\ns_add_u32 {sCc}, {sCc}, {sHS}\ns_add_u32 {sCc}, {sCc}, 65536")
                S(f"buffer_store_dwordx4 {v(tmp+8,4)}, v2, {WS}, {sCc} offen offset:{(t-4)*1024} sc1", tag=f"hh{t}")
            return list(S)

        TB = {4: 0x20000, 5: 0, 6: 0x8000}
        p("v_add_u32 v41, 0x20000, v2")

        def tread(t, s, n):
            if t == 3:
                return trpair(('v', WR + 4 * (n % 6)), "v45", s * 2048, 512)
            if t == 4:
                return [Inst(f"ds_read_b128 {v(WR+4*(n%6),4)}, v41 offset:{s*1024}")]
            return [Inst(f"ds_read_b128 {v(WR+4*(n%6),4)}, v2 offset:{TB[t]+s*1024}")]

        def tilepass(t, n0, boundary):
            G = []
            for s in range(32):
                n = n0 + s
                g = [mf32(ACC[acc_of[t]], v(WR + 4 * (n % 6), 4), a_(4 * s, 4), "0" if s == 0 else None)]
                if s + 4 < 32:
                    g += tread(t, s + 4, n + 4)
                elif t < 6:
                    if s == 28:
                        g += boundary
                    g += tread(t + 1, s + 4 - 32, n + 4)
                G.append(g)
            G.append([mf32(ACC[acc_of[t]], v(CSF + 4 * t, 4), v(MEANF, 4))])
            return G

        def sub(fn):
            save = self.p
            self.p = Seq()
            fn()
            r = list(self.p)
            self.p = save
            return r

        def dmaW2(part):
            g = []
            rng = range(0, 4) if part == 0 else range(4, 6)
            for h in rng:
                S = Seq()
                if part == 0:
                    S(f"s_lshl_b32 {sT1}, {sW}, 14\ns_add_u32 m0, {sT1}, {0x10000+h*4096}")
                else:
                    S(f"s_add_u32 m0, {sB}, {0x20000+(h-4)*4096}")
                S(f"s_add_u32 {sT0}, {sU}, {h*4096}")
                for k in range(4):
                    S(f"buffer_load_dwordx4 v2, {WS}, {sT0} offen offset:{k*1024} sc1 lds", tag=f"W2L{part}")
                    g.append(list(S))
                    S = Seq()
            return g

        b3 = list(Seq()("WAITTAG T4\nWAITALL lgkm\ns_barrier"))
        G = tilepass(3, 96, b3)
        G = weave(G, epi(0, T) + epi(1, T + 12)[:26], 1, 33)
        G = weave(G, w2l[:16], 0, 28)
        p.extend(flat(G))
        self.stamp("C_t3")
        b4 = list(Seq()("WAITTAG T5\nWAITALL lgkm\ns_barrier"))
        G = tilepass(4, 128, b4)
        G = weave(G, epi(1, T + 12)[26:] + epi(2, T), 0, 24)
        G = weave(G, epi(3, T + 12)[:24], 24, 33)
        G = weave(G, dmaT(5, TB[5]) + dmaT(6, TB[6]), 0, 20)
        p.extend(flat(G))
        self.stamp("C_t4")
        def pub(tags, cnt):
            def f():
                self.p(f"s_add_u32 {sT3}, {sD}, {cnt*256}")
                self.p("WAITTAG " + " ".join(tags) + "\ns_barrier")
                self.signal(sT3)
            return sub(f)
        b5 = list(Seq()("WAITTAG T6\ns_barrier"))
        G = tilepass(5, 160, b5)
        G[6] += pub(["hh2"], C_P1)
        G = weave(G, epi(3, T + 12)[24:] + epi(4, T), 0, 28)
        G = weave(G, w2l[16:], 7, 28)
        p.extend(flat(G))
        self.stamp("C_t5")
        F5 = Seq()
        F5(f"""s_lshr_b32 {sT0}, {sM}, 3
             s_lshl_b32 {sT0}, {sT0}, 1
             s_lshl_b32 {sT1}, {sG}, 2
             s_add_u32 {sT0}, {sT0}, {sT1}
             s_lshr_b32 {sT1}, {sW}, 1
             s_add_u32 {sTB}, {sT0}, {sT1}
             s_mul_i32 {sHL0}, {sT0}, {112*1024}
             s_add_u32 {sHL0}, {sHL0}, {hex(HH)}
             s_mul_i32 {sHL1}, {sW}, {12*1024}
             s_add_u32 {sHL1}, {sHL1}, {sHL0}
             s_add_u32 {sHL1}, {sHL1}, 65536
             s_lshl_b32 {sT0}, {sW}, 14
             s_add_u32 {sHL0}, {sHL0}, {sT0}
             s_mul_i32 {sT0}, {sT1}, {112*1024}
             v_add_u32 v42, {sT0}, v2
             s_sub_u32 {sT0}, {112*1024}, {sT0}
             v_add_u32 v43, {sT0}, v2""")
        G = tilepass(6, 192, None)
        G[6] += pub(["hh4"], C_P2)
        G = weave(G, list(F5), 0, 5)
        G = weave(G, epi(5, T + 12), 3, 30)
        G = weave(G, dmaW2(0) + dmaW2(1), 7, 32)
        p.extend(flat(G))
        self.stamp("C_t6")
        p(f"s_add_u32 {sT3}, {sD}, {C_P1*256}")
        p(f"buffer_load_dword v212, off, {WS}, {sT3} sc1")
        p.extend(epi(6, T))
        self.spin("v212", None, sT3, "1", "16", first_loaded=True, sleep=1)
        self.stamp("C_end")

        def hhload(i):
            kind, off = steps[i]
            S = Seq()
            S(f"s_add_u32 {sKC}, {sHL1 if kind else sHL0}, {off*1024}")
            S(f"buffer_load_dwordx4 {a_(8*(i&15),4)}, v42, {WS}, {sKC} offen sc1")
            return [list(S), [Inst(f"buffer_load_dwordx4 {a_(8*(i&15)+4,4)}, v43, {WS}, {sKC} offen sc1")]]
        p(f"""s_lshl_b32 {sT0}, {sTB}, 15
             s_lshl_b32 {sT1}, {sCB}, 12
             s_add_u32 {sT0}, {sT0}, {sT1}
             s_and_b32 {sT1}, {sW}, 1
             s_lshl_b32 {sT1}, {sT1}, 11
             s_add_u32 {sT0}, {sT0}, {sT1}
             s_add_u32 {sT0}, {sT0}, {hex(HB)}""")
        for i in range(4):
            p.extend(flat(hhload(i)))
        p(f"s_add_u32 {sT3}, {sD}, {C_P3*256}")
        p("WAITTAG hh6\ns_barrier")
        self.signal(sT3)
        p(f"buffer_load_dwordx4 v[152:155], v2, {WS}, {sT0} offen sc1")
        p(f"buffer_load_dwordx4 v[156:159], v2, {WS}, {sT0} offen offset:1024 sc1")
        p(f"s_add_u32 {sT3}, {sD}, {C_P2*256}")
        p(f"buffer_load_dword v212, off, {WS}, {sT3} sc1")
        p(f"""s_lshl_b32 {sT1}, {sW}, 14
             s_add_u32 {sT1}, {sT1}, 0x10000
             v_add_u32 v44, {sT1}, v46
             v_add_u32 v45, {sT1}, v47
             s_add_u32 {sT1}, {sB}, 0x20000
             v_add_u32 v46, {sT1}, v46
             v_add_u32 v47, {sT1}, v47""")
        DA = [48, 64, 80, 96]

        def w2read(i):
            off = steps[i][1]
            r = []
            for a in range(2):
                d = v(WR + 8 * (i % 3) + 4 * a, 4)
                if off < 8:
                    r.append(Inst(f"ds_read_b128 {d}, v{44+a} offset:{off*2048}"))
                else:
                    r.append(Inst(f"ds_read_b128 {d}, v{46+a} offset:{(off-8)*2048}"))
            return r

        def w2f(i, a):
            return a_(128 + 8 * i + 4 * a, 4) if i < 16 else v(WR + 8 * (i % 3) + 4 * a, 4)
        LA = o.get('dla', 6)
        for i in range(4, LA):
            p.extend(flat(hhload(i)))
        for i in range(28):
            nxt = i + LA
            ld = []
            if nxt < 28:
                if nxt == 12:
                    self.spin("v212", None, sT3, "1", "16", first_loaded=True, sleep=1)
                if nxt == 16:
                    p(f"s_add_u32 {sT3}, {sD}, {C_P3*256}")
                    p(f"buffer_load_dword v212, off, {WS}, {sT3} sc1")
                if nxt == 20:
                    self.spin("v212", None, sT3, "1", "16", first_loaded=True, sleep=1)
                ld = hhload(nxt)
            if i == 14:
                p("WAITTAG W2L0 W2L1")
            order = [(1, 0), (1, 1), (0, 1), (0, 0)]
            for k, (a, b) in enumerate(order):
                z = "0" if i == 0 else None
                p.append(mf32(DA[a + 2 * b], w2f(i, a), a_(8 * (i & 15) + 4 * b, 4), z))
                if k in (0, 2) and ld:
                    p.extend(ld.pop(0))
                if k == 1 and 16 <= i + 2 < 28:
                    p.extend(w2read(i + 2))
        self.stamp("D_loop")
        for k in (1, 3, 2):
            p(f"""s_xor_b32 {sT0}, {sW}, {k}
                 s_mul_i32 {sT0}, {sT0}, 12288
                 v_add_u32 v{40+k}, {sT0}, v2""")
        for k in (1, 3, 2):
            for q in range(4):
                p(f"ds_write_b128 v{40+k}, {v(DA[k]+4*q,4)} offset:{(k-1)*4096+q*1024}")
        p(f"""s_mul_i32 {sT0}, {sW}, 12288
             v_add_u32 v40, {sT0}, v2
             s_lshl_b32 {sT0}, {sTB}, 15
             s_lshl_b32 {sT1}, {sCB}, 7
             s_add_u32 {sT0}, {sT0}, {sT1}
             s_and_b32 {sT1}, {sW}, 1
             s_lshl_b32 {sT1}, {sT1}, 6
             s_add_u32 {sT0}, {sT0}, {sT1}""")
        for i in range(8):
            p(f"""v_lshlrev_b32 v{112+2*i}, 16, v{152+i}
                 v_and_b32 v{113+2*i}, {sMSKHI}, v{152+i}""")
        for i in range(16):
            p(f"v_add_f32 v{48+i}, v{48+i}, v{112+i}")
        p("WAITALL lgkm\ns_barrier")
        for q in range(4):
            for k in range(3):
                p(f"ds_read_b128 {v(160+16*k+4*q,4)}, v40 offset:{k*4096+q*1024}")
        for q in range(4):
            for j in range(4):
                r = 4 * q + j
                p(f"v_add_f32 v{48+r}, v{48+r}, v{160+r}")
                p(f"v_add_f32 v{176+r}, v{176+r}, v{192+r}")
            for j in range(4):
                r = 4 * q + j
                p(f"v_add_f32 v{48+r}, v{48+r}, v{176+r}")
            for j in range(2):
                p(f"v_cvt_pk_bf16_f32 v{112+2*q+j}, v{48+4*q+2*j}, v{48+4*q+2*j+1}")
            if q & 1:
                p(f"buffer_store_dwordx4 {v(112+4*(q>>1),4)}, v5, {OUT}, {sT0} offen offset:{32*(q>>1)}")
        self.stamp("D_end")

    def finish(self):
        p = self.p
        if self.o.get('stamps'):
            p("WAITALL vm")
            self.stamp("drained")
            p(f"""s_lshl_b32 {sT0}, s2, 2
                 s_add_u32 {sT0}, {sT0}, {sW}
                 s_lshl_b32 {sT0}, {sT0}, 7
                 s_add_u32 {sT0}, {sT0}, {hex(STAMP)}
                 s_mov_b64 exec, 1""")
            for i in range(self.nstamp):
                p(f"v_mov_b32 v14, s{STAMP0+i}\nbuffer_store_dword v14, off, {WS}, {sT0} offset:{4*i}")
        p("L_end:\ns_endpgm")

    def build(self):
        if self.o.get('stamps'):
            self.p("s_memrealtime s[100:101]")
        self.setup()
        self.phaseA_wrap()
        self.phaseB()
        self.phaseR()
        self.phaseCD()
        self.finish()
        prog = finalize(self.p)
        return prog

    def phaseA_wrap(self):
        if self.o.get('stamps'):
            self.p(f"s_mov_b32 s{STAMP0}, s100")
            self.nstamp = 1
            self.stamp_names.append("start")
        self.phaseA()


def emit(opt):
    g = Gen(opt)
    prog = g.build()
    hdr = open(os.path.join(os.path.dirname(os.path.abspath(__file__)), "header.txt")).read()
    body = "\n".join(("" if i.kind == 'label' else "    ") + i.text for i in prog)
    txt = hdr + f"""; @launch grid=(256,1,1) block=(256,1,1) lds=163840
.amdgcn_target "amdgcn-amd-amdhsa--gfx950"
.set CODE_PF_MAX, {opt.get('code_bytes', 0)}
.text
.globl {NAME}_kernel
.p2align 8
.type {NAME}_kernel,@function
{NAME}_kernel:
{body}
.section .rodata,"a"
.p2align 6
.amdhsa_kernel {NAME}_kernel
  .amdhsa_next_free_vgpr 512
  .amdhsa_next_free_sgpr 102
  .amdhsa_accum_offset 256
  .amdhsa_group_segment_fixed_size 0
  .amdhsa_kernarg_size 80
  .amdhsa_user_sgpr_count 2
  .amdhsa_user_sgpr_kernarg_segment_ptr 1
  .amdhsa_system_sgpr_workgroup_id_x 1
.end_amdhsa_kernel
"""
    return txt, g.stamp_names


def code_size(txt):
    import subprocess, tempfile
    with tempfile.TemporaryDirectory() as d:
        open(d + "/k.s", "w").write(txt)
        r = subprocess.run(["clang", "-x", "assembler", "-target", "amdgcn-amd-amdhsa",
                            "-mcpu=gfx950", "-c", d + "/k.s", "-o", d + "/k.o"], capture_output=True, text=True)
        if r.returncode:
            print("\n".join(r.stderr.split("\n")[:30]))
            raise SystemExit(1)
        r = subprocess.run(["llvm-objdump", "-h", d + "/k.o"], capture_output=True, text=True)
        for line in r.stdout.split("\n"):
            f = line.split()
            if len(f) > 2 and f[1] == ".text":
                return int(f[2], 16)


def main():
    opt = {}
    out = None
    for a in sys.argv[1:]:
        if '=' in a:
            k, val = a.split('=')
            opt[k] = int(val, 0)
        else:
            out = a
    opt['code_bytes'] = 4096
    txt, names = emit(opt)
    sz = code_size(txt)
    opt['code_bytes'] = (sz - 1024) & ~3
    txt, names = emit(opt)
    open(out, "w").write(txt)
    if names:
        open(out + ".names", "w").write(" ".join(names))
    print(out, "code bytes", sz, "lines", txt.count("\n"), "stamps", len(names))


if __name__ == "__main__":
    main()
```

```python
import sys, os
sys.path.insert(0, os.path.dirname(os.path.abspath(__file__)))
from dsl import *

NAME = "sequential_preLN__linear_attn_block__glu_gated_swiglu__prompt"

CNT = 0
KVM = 0x10000
ZP = 0x18000
ST = 0x20000
CS = 0x60000
STAMP = 0x80000
PQ = 0x100000
HB = 0x300000
HH = 0x500000
W13R = 0xC00000
W2R = 0x1000000
WS_SIZE = 0x1200000
C_KV, C_H, C_P1, C_P2, C_P3, C_R13, C_R2 = 0, 64, 80, 96, 112, 128, 160

X, WQKV, WO, W1, W3, W2, OUT, WS, DBG = [f"s[{a}:{a+3}]" for a in range(4, 40, 4)]
sW, sG, sM, sC0, sT0, sT1, sT2, sT3 = "s40", "s41", "s42", "s43", "s44", "s45", "s46", "s47"
sXB, sWB, sXL, sWL, sTB, sCB, sRQ, sLOG2E = "s48", "s49", "s50", "s51", "s52", "s53", "s54", "s55"
sU, sKC, sT4, sT5, sMSKHI, sEPS6 = "s56", "s57", "s58", "s59", "s60", "s61"
sHILANES = "s[62:63]"
sB4LANES = "s[64:65]"
sA, sB, sCc, sD = "s66", "s67", "s68", "s69"
STAMP0 = 74


def v(a, n=1):
    return f"v{a}" if n == 1 else f"v[{a}:{a+n-1}]"


def a_(a, n=1):
    return f"a{a}" if n == 1 else f"a[{a}:{a+n-1}]"


def mf32(d, A, B, c=None):
    return Inst(f"v_mfma_f32_32x32x16_bf16 {v(d,16)}, {A}, {B}, {v(d,16) if c is None else c}")


def mf16(d, A, B, c=None):
    return Inst(f"v_mfma_f32_16x16x32_bf16 {v(d,4)}, {A}, {B}, {v(d,4) if c is None else c}")


def mf4(d, A, B, c=None):
    return Inst(f"v_mfma_f32_4x4x4_16b_bf16 {v(d,4)}, {A}, {B}, {v(d,4) if c is None else c}")


def trpair(dst, addr, off, step):
    k, b = dst
    return [Inst(f"ds_read_b64_tr_b16 {k}[{b}:{b+1}], {addr} offset:{off}"),
            Inst(f"ds_read_b64_tr_b16 {k}[{b+2}:{b+3}], {addr} offset:{off+step}")]


class Gen:
    def __init__(self, opt):
        self.o = opt
        self.p = Seq()
        self.nl = 0
        self.nstamp = 0
        self.stamp_names = []

    def lab(self, s):
        self.nl += 1
        return f"L_{s}_{self.nl}"

    def stamp(self, name):
        if not self.o.get('stamps'):
            return
        p = self.p
        p("WAITALL lgkm")
        p("s_memrealtime s[72:73]")
        p("WAITALL lgkm")
        p(f"s_mov_b32 s{STAMP0+self.nstamp}, s72")
        self.nstamp += 1
        self.stamp_names.append(name)

    def signal(self, soff, vone="v14"):
        p = self.p
        L = self.lab("sig")
        p(f"v_mov_b32 {vone}, 1")
        p(f"s_cmp_lg_u32 {sW}, 0")
        p(f"s_cbranch_scc1 {L}")
        p(f"""s_mov_b64 exec, 1
             buffer_atomic_add {vone}, off, {WS}, {soff} sc1
             s_mov_b64 exec, -1""", cond=True)
        p(f"{L}:")

    def spin(self, vt, vaddr, soff, mask, vtarget, srd=WS, first_loaded=False, wave0=True, sleep=0):
        p = self.p
        Ld, Lp = self.lab("pd"), self.lab("pl")
        addr = f"{vaddr}, {srd}, {soff} offen" if vaddr else f"off, {srd}, {soff}"
        if first_loaded:
            p(f"v_cmp_gt_u32 vcc, {vtarget}, {vt}")
            p(f"s_and_b64 vcc, vcc, {mask}")
            p(f"s_cbranch_scc0 {Ld}")
        elif wave0:
            p(f"s_cmp_lg_u32 {sW}, 0")
            p(f"s_cbranch_scc1 {Ld}")
        p(f"s_mov_b32 {sT5}, 0", cond=True)
        p(f"s_mov_b64 exec, {mask}", cond=True)
        p(f"{Lp}:")
        if sleep:
            p(f"s_sleep {sleep}", cond=True)
        p(f"""buffer_load_dword {vt}, {addr} sc1
             s_add_u32 {sT5}, {sT5}, 1
             s_waitcnt vmcnt(0)
             v_cmp_gt_u32 vcc, {vtarget}, {vt}
             s_cmp_ge_u32 {sT5}, 0x8000
             s_cselect_b64 vcc, 0, vcc
             s_cmp_lg_u64 vcc, 0
             s_cbranch_scc1 {Lp}
             s_mov_b64 exec, -1""", cond=True)
        p(f"{Ld}:")

    def setup(self):
        p = self.p
        p(f"""s_cmp_ge_u32 s2, 256
             s_cbranch_scc1 L_end
             s_load_dwordx16 s[76:91], s[0:1], 0
             s_load_dwordx4 s[92:95], s[0:1], 64""")
        p("v_and_b32 v1, 63, v0\nv_lshrrev_b32 v14, 6, v0")
        p(f"v_readfirstlane_b32 {sW}, v14")
        for srd, sz in ((4, 0x200000), (8, 0x180000), (12, 0x80000), (16, 0x1C0000), (20, 0x1C0000),
                        (24, 0x1C0000), (28, 0x200000), (32, WS_SIZE), (36, 256)):
            p(f"s_mov_b32 s{srd+2}, {hex(sz)}\ns_mov_b32 s{srd+3}, 0x20000")
        p(f"""s_lshr_b32 {sT0}, s2, 3
             s_and_b32 {sRQ}, {sT0}, 3
             s_and_b32 {sG}, s2, 6
             s_lshl_b32 {sG}, {sG}, 1
             s_add_u32 {sG}, {sG}, {sRQ}
             s_lshr_b32 {sT1}, s2, 5
             s_and_b32 {sM}, s2, 1
             s_lshl_b32 {sM}, {sM}, 3
             s_add_u32 {sM}, {sM}, {sT1}
             s_lshl_b32 {sC0}, {sRQ}, 1
             s_add_u32 {sC0}, {sC0}, {sT1}
             s_lshl_b32 {sXB}, {sG}, 17
             s_lshl_b32 {sT0}, {sW}, 15
             s_add_u32 {sXB}, {sXB}, {sT0}
             s_mul_i32 {sWB}, {sW}, {16*3072}
             s_lshl_b32 {sT0}, {sM}, 6
             s_add_u32 {sWB}, {sWB}, {sT0}
             s_lshl_b32 {sXL}, {sW}, 14
             s_lshl_b32 {sWL}, {sW}, 11
             s_add_u32 {sWL}, {sWL}, 0x10000""")
        p("v_lshlrev_b32 v2, 4, v1")
        p("""v_lshrrev_b32 v14, 3, v1
             v_lshlrev_b32 v14, 10, v14
             v_and_b32 v15, 7, v1
             v_lshrrev_b32 v3, 4, v1
             v_xor_b32 v15, v15, v3
             v_lshl_add_u32 v6, v15, 4, v14
             v_xor_b32 v7, 64, v6
             v_add_u32 v7, 7168, v7
             v_add_u32 v8, 14336, v6
             v_add_u32 v9, 14336, v7""")
        p("""v_lshrrev_b32 v14, 2, v1
             v_mul_u32_u24 v14, 3072, v14
             v_and_b32 v15, 3, v1
             v_lshl_add_u32 v5, v15, 4, v14""")
        p("WAITALL lgkm")
        for srd, src in ((4, 76), (8, 78)):
            p(f"s_mov_b32 s{srd}, s{src}\ns_mov_b32 s{srd+1}, s{src+1}")

    def setup_late(self):
        p = self.p
        for srd, src in ((12, 80), (16, 84), (20, 86), (24, 88), (28, 90), (36, 92), (32, 94)):
            p(f"s_mov_b32 s{srd}, s{src}\ns_mov_b32 s{srd+1}, s{src+1}")

    def dmaA(self, c):
        S = Seq()
        S(f"""s_add_u32 {sT0}, {sC0}, {c}
             s_and_b32 {sT0}, {sT0}, 7
             s_mul_i32 {sT1}, {sT0}, {64*3072}
             s_add_u32 {sT1}, {sT1}, {sWB}
             s_add_u32 {sT1}, {sT1}, 1024
             s_add_u32 m0, {sWL}, {(c&3)*8192}
             s_lshl_b32 {sT0}, {sT0}, 7""")
        S(f"buffer_load_dwordx4 v5, {WQKV}, {sT1} offen lds", tag=f"A{c}")
        g = [list(S)]
        g.append([Inst(f"buffer_load_dwordx4 v5, {WQKV}, {sT1} offen offset:1024 lds", tag=f"A{c}")])
        S = Seq()
        S(f"s_add_u32 m0, {sXL}, {(c&3)*4096}\ns_add_u32 {sT0}, {sT0}, {sXB}")
        S(f"buffer_load_dwordx4 v6, {X}, {sT0} offen lds", tag=f"A{c}")
        g.append(list(S))
        for i in range(1, 4):
            g.append([Inst(f"buffer_load_dwordx4 v{6+i}, {X}, {sT0} offen offset:{i*1024} lds", tag=f"A{c}")])
        return g

    def dmaQ(self, c):
        S = Seq()
        S(f"""s_add_u32 {sT0}, {sC0}, {c}
             s_and_b32 {sT0}, {sT0}, 7
             s_mul_i32 {sT1}, {sT0}, {64*3072}
             s_add_u32 m0, {sT2}, {c*4096}
             s_add_u32 {sT1}, {sT1}, {sWB}""")
        S(f"buffer_load_dwordx4 v5, {WQKV}, {sT1} offen lds", tag=f"Q{c}")
        return list(S)

    def dmaWO(self, q):
        S = Seq()
        b, i = q >> 2, q & 3
        S(f"""s_add_u32 {sT0}, {sA}, {(256*b+16*i)*1024}
             s_and_b32 {sT0}, {sT0}, 0x7ffff
             s_add_u32 m0, {sXL}, {b*65536+i*4096}
             s_add_u32 {sT0}, {sT0}, {sB}""")
        g = []
        for k in range(4):
            S(f"buffer_load_dwordx4 v{6+k}, {WO}, {sT0} offen offset:{k*1024} lds", tag=f"WO{q}")
            g.append(list(S))
            S = Seq()
        return g

    def phaseA(self):
        p = self.p
        o = self.o
        for g in self.dmaA(0):
            p.extend(g)
        self.setup_late()
        Lz = self.lab("z")
        p(f"""v_mov_b32 v16, 0
             v_mov_b32 v17, 0
             v_mov_b32 v18, 0
             v_mov_b32 v19, 0
             s_sub_u32 {sT3}, s2, 224
             s_lshl_b32 {sT4}, {sT3}, 10
             s_mul_i32 {sT3}, {sT3}, 1536
             v_and_b32 v14, 1, v1
             v_lshlrev_b32 v14, 4, v14
             v_bfe_u32 v15, v1, 1, 1
             v_lshl_add_u32 v14, v15, 9, v14
             v_add_u32 v14, {hex(ZP)}, v14
             v_add_u32 v14, {sT4}, v14
             v_lshlrev_b32 v15, 8, v1
             v_add_u32 v15, {sT3}, v15
             v_subrev_u32 v15, 1024, v15
             v_cmp_gt_u32 vcc, 4, v1
             v_cndmask_b32 v14, v15, v14, vcc
             s_add_u32 {sT4}, {sT4}, {hex(KVM)}
             s_lshl_b32 {sD}, {sW}, 8
             s_add_u32 {sD}, {sD}, 224
             s_cmp_lt_u32 s2, {sD}
             s_cbranch_scc1 {Lz}""")
        p(f"""buffer_store_dwordx4 v[16:19], v2, {WS}, {sT4} offen sc1
             s_mov_b64 exec, 0x3ff
             buffer_store_dwordx4 v[16:19], v14, {WS}, 0 offen sc1
             s_mov_b64 exec, -1""", cond=True)
        p(f"{Lz}:")
        for g in self.dmaA(1):
            p.extend(g)
        if o.get('codepf', 1):
            p(f"""s_getpc_b64 s[70:71]
                 s_lshr_b32 {sT0}, s2, 3
                 s_lshl_b32 {sT0}, {sT0}, 2
                 s_add_u32 {sT0}, {sT0}, {sW}
                 s_lshl_b32 {sT0}, {sT0}, 9
                 v_and_b32 v14, 3, v1
                 v_lshlrev_b32 v14, 7, v14
                 v_add_u32 v14, {sT0}, v14
                 v_min_u32 v14, CODE_PF_MAX, v14
                 global_load_dword v15, v14, s[70:71]""")
        p(f"""s_mov_b32 {sLOG2E}, 0x3fb8aa3b
             s_mov_b32 {sMSKHI}, 0xffff0000
             s_mov_b32 {sEPS6}, 0x358637bd
             s_mov_b32 s62, 0
             s_mov_b32 s63, -1
             s_mov_b32 s64, 0xffff0000
             s_mov_b32 s65, 0xffff0000""")
        p(f"""v_and_b32 v20, 31, v1
             v_lshrrev_b32 v21, 5, v1
             v_bfe_u32 v22, v1, 1, 3
             v_xor_b32 v21, v21, v22
             v_lshlrev_b32 v21, 4, v21
             v_lshl_add_u32 v21, v20, 7, v21
             v_add_u32 v10, {sXL}, v21
             v_xor_b32 v11, 32, v10
             v_xor_b32 v12, 64, v10
             v_xor_b32 v13, 96, v10""")
        p("""v_lshrrev_b32 v20, 5, v1
             v_lshlrev_b32 v20, 9, v20
             v_bfe_u32 v21, v1, 2, 2
             v_lshl_add_u32 v20, v21, 6, v20
             v_bfe_u32 v21, v1, 4, 1
             v_lshl_add_u32 v20, v21, 5, v20
             v_add_u32 v20, 0x10000, v20
             v_and_b32 v21, 3, v1
             v_lshl_add_u32 v3, v21, 3, v20
             v_and_b32 v21, 1, v1
             v_lshl_add_u32 v4, v21, 4, v20
             v_bfe_u32 v21, v1, 1, 1
             v_lshl_add_u32 v4, v21, 3, v4""")
        p("""v_and_b32 v24, 3, v1
             v_lshrrev_b32 v25, 2, v1
             v_lshrrev_b32 v26, 4, v1
             v_xor_b32 v25, v25, v26
             v_and_b32 v25, 1, v25
             v_or_b32 v24, v24, v25
             v_cmp_eq_u32 vcc, 0, v24
             v_mov_b32 v20, 0x3f803f80
             v_mov_b32 v21, 0x3f803f80
             v_mov_b32 v22, 0x3f803f80
             v_mov_b32 v23, 0x3f803f80
             v_cndmask_b32 v16, 0, v20, vcc
             v_cndmask_b32 v17, 0, v20, vcc
             v_cndmask_b32 v18, 0, v20, vcc
             v_cndmask_b32 v19, 0, v20, vcc""")
        for b in (160, 164, 168, 172, 176):
            for k in (1, 2, 3):
                p(f"v_mov_b32 v{b+k}, 0")
        SEL, ONES = v(16, 4), v(20, 4)
        XS, XQ, CK, CV, CQ, ZA = 24, 28, 32, 36, 40, 44
        AK, AV, AQ, RB, AKV = 48, 64, 80, 96, 112

        def reads(s):
            c, j = s >> 2, s & 3
            r = [Inst(f"ds_read_b128 {a_(4*s,4)}, v{10+j} offset:{(c&3)*4096}")]
            base = (c & 3) * 8192 + j * 2048
            r += trpair(('v', 128 + 8 * (s & 1)), "v3", base, 256)
            r += trpair(('v', 132 + 8 * (s & 1)), "v4", base + 1024, 256)
            return r

        self.stamp("A_issued")
        p("WAITTAG A0\ns_barrier")
        self.stamp("A_c0")
        Lz = self.lab("z2")
        p(f"v_mov_b32 v14, 1\ns_cmp_lt_u32 s2, {sD}\ns_cbranch_scc1 {Lz}")
        p(f"""s_waitcnt vmcnt({6 + (1 if o.get('codepf',1) else 0)})
             s_mov_b64 exec, 1
             buffer_atomic_add v14, off, {DBG}, 0 sc1
             s_mov_b64 exec, -1""", cond=True)
        p(f"{Lz}:")
        p.extend(reads(0))
        p(f"s_lshl_b32 {sT2}, {sW}, 10\ns_add_u32 {sT2}, {sT2}, 0x18000")
        pend = self.dmaA(2)
        for s in range(32):
            c, j = s >> 2, s & 3
            xf = a_(4 * s, 4)
            kf, vf = v(128 + 8 * (s & 1), 4), v(132 + 8 * (s & 1), 4)
            z = "0" if s == 0 else None
            p.append(mf32(AK, xf, kf, z))
            if s < 31:
                if j == 3:
                    p(f"WAITTAG A{c+1}\ns_barrier")
                    assert not pend
                    if c + 3 < 8:
                        pend = self.dmaA(c + 3)
                    elif c + 3 == 8:
                        pend = [self.dmaQ(k) for k in range(0, 4)]
                        pend.append([Inst(f"buffer_load_dword v15, off, {DBG}, 0 sc1")])
                    else:
                        pend = [self.dmaQ(k) for k in range(4, 8)]
                p.extend(reads(s + 1))
            p.append(mf32(AV, xf, vf, z))
            for _ in range(2):
                if pend and not (j == 3 and _ == 1):
                    p.extend(pend.pop(0))
            p.append(mf4(XQ, a_(4 * s, 2), a_(4 * s, 2), z))
            p.append(mf16(XS, SEL, xf, z))
            p.append(mf16(CK, SEL, kf, z))
            p.append(mf4(XQ, a_(4 * s + 2, 2), a_(4 * s + 2, 2)))
            p.append(mf16(CV, SEL, vf, z))
        assert not pend
        self.stamp("A_loop")
        p(f"""s_lshr_b32 {sTB}, {sM}, 2
             s_lshl_b32 {sT0}, {sG}, 2
             s_add_u32 {sTB}, {sTB}, {sT0}
             s_and_b32 {sCB}, {sM}, 3
             s_lshl_b32 {sA}, {sRQ}, 17
             s_lshl_b32 {sT0}, {sW}, 16
             s_add_u32 {sA}, {sA}, {sT0}
             s_lshl_b32 {sB}, {sCB}, 8""")
        E = Seq()
        E("""v_lshrrev_b32 v196, 4, v1
             v_bfe_u32 v197, v1, 2, 2
             v_xor_b32 v197, v197, v196
             v_lshlrev_b32 v197, 6, v197
             v_lshl_add_u32 v197, v196, 10, v197
             v_and_b32 v196, 3, v1
             v_lshl_add_u32 v6, v196, 4, v197
             v_add_u32 v7, 3072, v6
             v_add_u32 v8, 6144, v6
             v_add_u32 v9, 9216, v6""")
        E(f"""v_and_b32 v196, 3, v1
             v_cmp_eq_u32 vcc, 1, v196
             v_cndmask_b32 v197, v{XQ}, v{XQ+1}, vcc
             v_cmp_eq_u32 vcc, 2, v196
             v_cndmask_b32 v197, v197, v{XQ+2}, vcc
             v_cmp_eq_u32 vcc, 3, v196
             v_cndmask_b32 v197, v197, v{XQ+3}, vcc
             v_mov_b32 v198, v197
             v_mul_f32 v199, 0x3b000000, v{XS}
             v_permlane32_swap_b32 v197, v198
             v_add_f32 v197, v197, v198
             v_mul_f32 v197, 0x3b000000, v197
             v_fma_f32 v197, -v199, v199, v197
             v_max_f32 v197, 0, v197
             v_add_f32 v197, 0x3727c5ac, v197
             v_rsq_f32 v14, v197
             v_cvt_pk_bf16_f32 v198, -v199, -v199
             v_cndmask_b32 v160, v198, 0, {sHILANES}""")

        def split2(dst, src, t):
            return Seq()(f"""v_cvt_pk_bf16_f32 v{t}, v{src}, v{src}
                 v_lshlrev_b32 v{t}, 16, v{t}
                 v_sub_f32 v{t}, v{src}, v{t}
                 v_cvt_pk_bf16_f32 v{dst}, v{src}, v{t}""")
        E.extend(split2(164, CK, 198))
        E.extend(split2(168, CV, 199))
        E.extend(split2(176, 14, 198))
        E(f"v_cndmask_b32 v176, v176, 0, {sHILANES}")
        E.append(mf32(AK, v(160, 4), v(164, 4)))
        E.append(mf32(RB, v(176, 4), ONES, "0"))
        E.append(mf32(AV, v(160, 4), v(168, 4)))

        def phi(acc, scale, T, dst):
            S = Seq()
            for h in range(2):
                r = range(8 * h, 8 * h + 8)
                for i in r:
                    S(f"v_fma_f32 v{acc+i}, v{acc+i}, {scale(i)}, {sEPS6}")
                for i in r:
                    S(f"v_mul_f32 v{T+i}, {sLOG2E}, v{acc+i}")
                for i in r:
                    S(f"v_exp_f32_e64 v{T+i}, v{T+i} clamp")
                for i in r:
                    S(f"v_max_f32 v{acc+i}, {sEPS6}, v{acc+i}")
                for i in r:
                    S(f"v_add_f32 v{acc+i}, v{acc+i}, v{T+i}")
                for i in range(4 * h, 4 * h + 4):
                    S(f"v_cvt_pk_bf16_f32 v{dst+i}, v{acc+2*i}, v{acc+2*i+1}")
            return S
        E2 = Seq()
        E2.extend(phi(AK, lambda i: f"v{RB+i}", 196, 180))
        for i in range(16):
            E2(f"v_mul_f32 v{AV+i}, v{AV+i}, v{RB+i}")
        for i in range(8):
            E2(f"v_cvt_pk_bf16_f32 v{188+i}, v{AV+2*i}, v{AV+2*i+1}")
        E2(f"""v_bfe_u32 v212, v1, 4, 1
             v_lshlrev_b32 v212, 10, v212
             v_lshrrev_b32 v213, 5, v1
             v_lshl_add_u32 v212, v213, 9, v212
             v_and_b32 v213, 15, v1
             v_lshl_add_u32 v212, v213, 4, v212
             v_add_u32 v212, {sWL}, v212
             v_and_b32 v213, 31, v1
             v_lshlrev_b32 v213, 2, v213
             s_lshl_b32 {sT3}, {sW}, 7
             s_add_u32 {sT3}, {sT3}, 0x12000
             v_add_u32 v213, {sT3}, v213""")
        def qreads(s):
            return trpair(('v', 144 + 4 * (s & 3)), "v4", 0x8000 + s * 1024, 256)
        Q = []
        for s in range(32):
            g = Seq()
            qf = v(144 + 4 * (s & 3), 4)
            z = "0" if s == 0 else None
            g.append(mf32(AQ, qf, a_(4 * s, 4), z))
            if s + 2 < 32:
                if s + 2 == 16:
                    g("WAITTAG Q7\ns_barrier")
                g.extend(qreads(s + 2))
            g.append(mf16(CQ, SEL, qf, z))
            Q.append(g)
        p.extend(E)
        p("WAITTAG Q3\ns_barrier")
        p.extend(qreads(0) + qreads(1))
        nq1 = o.get('nq1', 22)
        Qw = weave(Q, list(E2), 0, nq1)
        fw = self.dmaWO(0)
        for k in range(4):
            Qw[15 + k] += fw[k]
        p.extend(flat(Qw[:nq1]))
        p.append(mf32(AKV, v(180, 4), v(188, 4), "0"))
        p.append(mf16(ZA, SEL, v(180, 4), "0"))
        p.append(mf32(AKV, v(184, 4), v(192, 4)))
        p.append(mf16(ZA, SEL, v(184, 4)))
        rest = Qw[nq1:]
        p.extend(flat(rest[:3]))
        S = Seq()
        for i in range(8):
            S(f"v_cndmask_b32 v{196+i}, v{AKV+i}, v{AKV+8+i}, {sB4LANES}")
        S(f"""ds_write_b128 v212, v[196:199]
             ds_write_b128 v212, v[200:203] offset:256
             ds_write_b32 v213, v{ZA}""")
        S(f"""v_lshlrev_b32 v204, 2, v0
             v_add_u32 v205, 0x10000, v204
             v_and_b32 v206, 7, v1
             s_lshl_b32 {sT3}, {sW}, 5
             s_add_u32 {sT3}, {sT3}, 0x12000
             v_lshl_add_u32 v206, v206, 2, {sT3}
             v_and_b32 v207, 3, v1
             v_lshlrev_b32 v207, 2, v207
             v_bfe_u32 v208, v1, 2, 1
             v_lshl_add_u32 v207, v208, 9, v207
             v_cmp_gt_u32 vcc, 8, v1
             v_mov_b32 v208, 0x7ffffff0
             v_cndmask_b32 v207, v208, v207, vcc
             s_lshl_b32 {sT3}, {sM}, 11
             s_add_u32 {sT3}, {sT3}, {hex(KVM)}
             s_lshr_b32 {sT4}, {sW}, 1
             s_lshl_b32 {sT4}, {sT4}, 10
             s_add_u32 {sT4}, {sT4}, {sT3}
             s_and_b32 {sCc}, {sW}, 1
             s_lshl_b32 {sCc}, {sCc}, 4
             s_add_u32 {sT4}, {sT4}, {sCc}
             s_add_u32 {sT4}, {sT4}, {hex(ZP-KVM)}""")
        p.extend(flat(weave(rest[3:], list(S))))
        self.spin("v15", None, "0", "1", "32", srd=DBG, first_loaded=True, sleep=4)
        p("WAITALL lgkm\ns_barrier")
        for k in range(4):
            p(f"ds_read2st64_b32 v[{112+2*k}:{113+2*k}], v205 offset0:{8*k} offset1:{8*k+4}")
        p("ds_read2_b32 v[120:121], v206 offset0:0 offset1:32")
        p("ds_read2_b32 v[122:123], v206 offset0:64 offset1:96")
        p.extend(split2(172, CQ, 198))
        p.append(mf32(AQ, v(172, 4), v(160, 4)))
        p("""v_add_f32 v112, v112, v114
             v_add_f32 v113, v113, v115
             v_add_f32 v116, v116, v118
             v_add_f32 v117, v117, v119
             v_add_f32 v112, v112, v116
             v_add_f32 v113, v113, v117""")
        p(f"buffer_atomic_add_f32 v112, v204, {WS}, {sT3} offen", tag="pub1")
        p(f"buffer_atomic_add_f32 v113, v204, {WS}, {sT3} offen offset:1024", tag="pub1")
        p("""v_add_f32 v120, v120, v121
             v_add_f32 v122, v122, v123
             v_add_f32 v120, v120, v122""")
        p(f"buffer_atomic_add_f32 v120, v207, {WS}, {sT4} offen", tag="pub1")
        self.stamp("A_kvatom")
        p(f"""s_lshl_b32 {sT3}, {sG}, 2
             s_add_u32 {sT3}, {sT3}, {sW}
             s_lshl_b32 {sT3}, {sT3}, 15
             s_lshl_b32 {sT4}, {sM}, 11
             s_add_u32 {sT3}, {sT3}, {sT4}
             s_add_u32 {sT3}, {sT3}, {hex(PQ)}""")
        ph = phi(AQ, lambda i: "v14", 196, 212)
        h = len(ph) // 2
        p.extend(ph[:h])
        p(f"buffer_store_dwordx4 v[212:215], v2, {WS}, {sT3} offen sc1", tag="pub1")
        p.extend(ph[h:])
        p(f"buffer_store_dwordx4 v[216:219], v2, {WS}, {sT3} offen offset:1024 sc1", tag="pub1")
        self.stamp("A_pqst")
        for q in (1, 2):
            p.extend(flat(self.dmaWO(q)))
        nsh = o.get('nsh', 16)
        p(f"s_and_b32 {sT3}, s2, {nsh-1}\ns_lshl_b32 {sT3}, {sT3}, 8")
        p("WAITTAG pub1\ns_barrier")
        self.signal(sT3)
        self.stamp("A_sig")
        for q in range(3, 8):
            p.extend(flat(self.dmaWO(q)))
        p(f"""v_and_b32 v196, 31, v1
             v_lshrrev_b32 v197, 5, v1
             v_lshlrev_b32 v197, 4, v197
             v_lshl_add_u32 v5, v196, 10, v197
             s_lshl_b32 {sT3}, {sTB}, 15
             s_lshl_b32 {sT4}, {sW}, 6
             s_add_u32 {sT3}, {sT3}, {sT4}
             s_add_u32 {sT3}, {sT3}, {sB}
             buffer_load_dwordx4 v[220:223], v5, {X}, {sT3} offen
             buffer_load_dwordx4 v[224:227], v5, {X}, {sT3} offen offset:32""")

    def rloads(self):
        S = Seq()
        S(f"""s_lshr_b32 {sU}, s2, 3
             s_and_b32 {sKC}, s2, 7
             v_lshrrev_b32 v208, 3, v1
             v_and_b32 v209, 7, v1
             v_lshlrev_b32 v209, 4, v209
             v_mul_u32_u24 v210, 3584, v208
             v_add_u32 v210, v210, v209
             v_lshl_add_u32 v211, v208, 10, v209
             s_lshl_b32 {sT0}, {sKC}, 2
             s_add_u32 {sT0}, {sT0}, {sW}
             s_mul_i32 {sT0}, {sT0}, {16*3584}
             s_lshl_b32 {sT1}, {sU}, 7
             s_add_u32 {sT0}, {sT0}, {sT1}
             s_cmp_ge_u32 s2, 224
             s_cselect_b32 {sT0}, 0x7f000000, {sT0}
             s_add_u32 {sT1}, {sT0}, {8*3584}
             buffer_load_dwordx4 v[228:231], v210, {W1}, {sT0} offen
             buffer_load_dwordx4 v[232:235], v210, {W1}, {sT1} offen
             buffer_load_dwordx4 v[236:239], v210, {W3}, {sT0} offen
             buffer_load_dwordx4 v[240:243], v210, {W3}, {sT1} offen
             s_lshl_b32 {sT0}, {sU}, 2
             s_add_u32 {sT0}, {sT0}, {sW}
             s_lshl_b32 {sT0}, {sT0}, 14
             s_lshl_b32 {sT1}, {sKC}, 7
             s_add_u32 {sT0}, {sT0}, {sT1}
             s_add_u32 {sT1}, {sT0}, 8192
             buffer_load_dwordx4 v[244:247], v211, {W2}, {sT0} offen
             buffer_load_dwordx4 v[248:251], v211, {W2}, {sT1} offen""")
        return S

    def dmaW1(self, q):
        mat, kq = q & 1, q >> 1
        S = Seq()
        S(f"""s_add_u32 {sT0}, {sA}, {kq*128*3584}
             s_add_u32 m0, {sB}, {mat*65536 + kq*16384}""")
        g = []
        for k in range(4):
            S(f"buffer_load_dwordx4 v{(6 if mat == 0 else 10)+k}, {W3 if mat else W1}, {sT0} offen offset:{k*1024} lds", tag=f"W1_{q}")
            g.append(list(S))
            S = Seq()
        return g

    def phaseB(self):
        p = self.p
        o = self.o
        nsh = o.get('nsh', 16)
        p(f"""v_lshlrev_b32 v196, 8, v1
             v_lshrrev_b32 v197, 5, v1
             v_and_b32 v198, 15, v1
             v_lshl_add_u32 v198, v197, 4, v198
             v_lshlrev_b32 v198, 4, v198
             v_lshlrev_b32 v197, 4, v197
             v_add_u32 v197, {hex(ZP-KVM)}, v197
             v_cndmask_b32 v197, v198, v197, {sB4LANES}
             s_lshl_b32 {sT3}, {sW}, 13
             s_add_u32 {sT1}, {sT3}, {hex(KVM)}
             s_add_u32 {sT2}, {sT1}, 4096
             s_lshl_b32 {sT4}, {sTB}, 15
             s_add_u32 {sT3}, {sT3}, {sT4}
             s_add_u32 {sT3}, {sT3}, {hex(PQ)}
             s_add_u32 {sT4}, {sT3}, 4096""")
        p(f"""v_lshrrev_b32 v199, 5, v1
             v_lshlrev_b32 v199, 11, v199
             v_bfe_u32 v200, v1, 2, 2
             v_lshl_add_u32 v199, v200, 8, v199
             v_xor_b32 v200, {sW}, v200
             v_lshl_add_u32 v199, v200, 6, v199
             v_bfe_u32 v200, v1, 4, 1
             v_lshl_add_u32 v199, v200, 5, v199
             v_and_b32 v200, 1, v1
             v_lshl_add_u32 v199, v200, 4, v199
             v_bfe_u32 v200, v1, 1, 1
             v_lshl_add_u32 v199, v200, 3, v199""")
        for q in range(4):
            p(f"""s_add_u32 {sT0}, {sW}, {q+4}
                 s_sub_u32 {sCc}, {sT0}, {sRQ}
                 s_and_b32 {sCc}, {sCc}, 3
                 s_lshl_b32 {sCc}, {sCc}, 15
                 v_add_u32 v{10+q}, {sCc}, v199
                 s_and_b32 {sT0}, {sT0}, 3
                 s_lshl_b32 {sT0}, {sT0}, 13
                 s_add_u32 {sT0}, {sT0}, 0x20000
                 v_add_u32 v{252+q}, {sT0}, v2""")
        self.stamp("B_prepoll")
        self.spin("v15", "v196", "0", hex((1 << nsh) - 1) if nsh < 64 else "-1", str(256 // nsh), sleep=o.get('sleep1', 0))
        p("WAITALL vm\ns_barrier")
        self.stamp("B_sync1")
        for i in range(8):
            so = sT1 if i < 4 else sT2
            p(f"buffer_load_dwordx4 {v(48+8*i,4)}, v197, {WS}, {so} offen offset:{(i&3)*1024} sc1")
            p(f"buffer_load_dwordx4 {v(52+8*i,4)}, v197, {WS}, {so} offen offset:{(i&3)*1024+512} sc1")
            p(f"buffer_load_dwordx4 {a_(4*i,4)}, v2, {WS}, {sT3 if i < 4 else sT4} offen offset:{(i&3)*1024} sc1")
        p.extend(self.rloads())
        for i in range(32):
            p.extend(trpair(('a', 128 + 4 * i), f"v{10+(i>>3)}", (i & 7) * 4096, 1024))
        AH = 192
        for i in range(8):
            p(f"v_lshlrev_b32 v{AH+2*i}, 16, v{220+i}\nv_and_b32 v{AH+2*i+1}, {sMSKHI}, v{220+i}")
        p(f"""v_lshrrev_b32 v208, 3, v1
             v_mul_u32_u24 v208, 3584, v208
             v_and_b32 v209, 7, v1
             v_bfe_u32 v212, v1, 4, 1
             v_lshlrev_b32 v212, 2, v212
             v_xor_b32 v209, v209, v212
             v_lshl_add_u32 v6, v209, 4, v208
             v_xor_b32 v209, 2, v209
             v_lshl_add_u32 v10, v209, 4, v208""")
        for k in range(1, 4):
            p(f"v_add_u32 v{6+k}, {k*(8*3584-1024)}, v6\nv_add_u32 v{10+k}, {k*(8*3584-1024)}, v10")
        p(f"""s_mul_i32 {sA}, {sW}, {32*3584}
             s_lshl_b32 {sT0}, {sM}, 7
             s_add_u32 {sA}, {sA}, {sT0}
             s_lshl_b32 {sB}, {sW}, 12""")
        NA = [144, 160, 176]

        def cv(i):
            S = Seq()
            for k in range(4):
                S(f"v_cvt_pk_bf16_f32 v{112+4*i+k}, v{48+8*i+2*k}, v{48+8*i+2*k+1}")
            S.append(mf32(NA[i % 3], v(112 + 4 * i, 4), a_(4 * i, 4), "0"))
            return S

        def fin(i):
            n = NA[i % 3]
            S = Seq()
            S(f"v_add_f32 v{n+8}, {sEPS6}, v{n+8}\nv_rcp_f32 v{n+8}, v{n+8}")
            for k in range(8):
                S(f"v_mul_f32 v{n+k}, v{n+k}, v{n+8}")
            for k in range(4):
                S(f"v_cvt_pk_bf16_f32 v{48+4*i+k}, v{n+2*k}, v{n+2*k+1}")
            S(f"ds_write_b128 v252, {v(48+4*i,4)} offset:{i*1024}")
            return S
        p.extend(cv(0))
        p.extend(cv(1))
        for i in range(8):
            if i + 2 < 8:
                p.extend(cv(i + 2))
            p.extend(fin(i))
            if i >= 1:
                p.append(mf32(AH, a_(128 + 4 * (i - 1), 4), v(48 + 4 * (i - 1), 4)))
        self.stamp("B_st1")
        p("WAITALL lgkm\ns_barrier")

        def oread(i):
            return [Inst(f"ds_read_b128 {v(80+4*(i&7),4)}, v{252+(i>>3)} offset:{(i&7)*1024}")]
        for i in range(8, 12):
            p.extend(oread(i))
        p.append(mf32(AH, a_(128 + 28, 4), v(48 + 28, 4)))
        G = []
        for i in range(8, 32):
            g = [mf32(AH, a_(128 + 4 * i, 4), v(80 + 4 * (i & 7), 4))]
            if i + 4 < 32:
                g += oread(i + 4)
            G.append(g)
        G = weave(G, self.dmaW1(0) + self.dmaW1(1), 0, 16)
        p.extend(flat(G))
        p(f"""s_lshl_b32 {sT3}, {sTB}, 15
             s_lshl_b32 {sT4}, {sCB}, 2
             s_add_u32 {sT4}, {sT4}, {sW}
             s_lshl_b32 {sT1}, {sT4}, 11
             s_add_u32 {sT3}, {sT3}, {sT1}
             s_add_u32 {sT3}, {sT3}, {hex(HB)}
             s_lshl_b32 {sT1}, {sTB}, 12
             s_lshl_b32 {sT4}, {sT4}, 8
             s_add_u32 {sT4}, {sT4}, {sT1}
             s_add_u32 {sT4}, {sT4}, {hex(ST)}
             v_lshlrev_b32 v15, 2, v1""")
        for k in range(8):
            p(f"v_cvt_pk_bf16_f32 v{208+k}, v{AH+2*k}, v{AH+2*k+1}")
            if k == 3:
                p(f"buffer_store_dwordx4 v[208:211], v2, {WS}, {sT3} offen sc1", tag="pub2")
        p(f"buffer_store_dwordx4 v[212:215], v2, {WS}, {sT3} offen offset:1024 sc1", tag="pub2")
        p(f"v_add_f32 v216, v{AH}, v{AH+1}\nv_mul_f32 v217, v{AH}, v{AH}\nv_add_f32 v218, v{AH+2}, v{AH+3}\nv_mul_f32 v219, v{AH+1}, v{AH+1}")
        for k in range(2, 16):
            if k >= 4:
                p(f"v_add_f32 v{216+2*(k&1)}, v{216+2*(k&1)}, v{AH+k}")
            p(f"v_fmac_f32 v{217+2*(k&1)}, v{AH+k}, v{AH+k}")
        p("""v_add_f32 v216, v216, v218
             v_add_f32 v217, v217, v219
             v_permlane32_swap_b32 v216, v217
             v_add_f32 v216, v216, v217""")
        p(f"buffer_store_dword v216, v15, {WS}, {sT4} offen sc1", tag="pub2")
        self.stamp("B_hst")
        p.extend(flat(self.dmaW1(2) + self.dmaW1(3)))
        p(f"s_lshl_b32 {sD}, {sG}, 8\ns_add_u32 {sT3}, {sD}, {C_H*256}")
        p("WAITTAG pub2\ns_barrier")
        self.signal(sT3)
        self.stamp("B_sig")

    def phaseR(self):
        p = self.p
        RS = 0x20000
        p(f"""v_and_b32 v48, 7, v1
             v_bfe_u32 v49, v1, 4, 1
             v_lshlrev_b32 v49, 2, v49
             v_xor_b32 v48, v48, v49
             v_lshrrev_b32 v49, 3, v1
             v_lshlrev_b32 v49, 7, v49
             v_lshl_add_u32 v48, v48, 4, v49
             s_lshl_b32 {sT3}, {sW}, 11
             s_add_u32 {sT3}, {sT3}, {hex(RS)}
             v_add_u32 v48, {sT3}, v48
             v_xor_b32 v49, 32, v48
             ds_write_b128 v48, v[228:231]
             ds_write_b128 v48, v[232:235] offset:1024
             ds_write_b128 v49, v[236:239] offset:8192
             ds_write_b128 v49, v[240:243] offset:9216
             ds_write_b128 v48, v[244:247] offset:16384
             ds_write_b128 v48, v[248:251] offset:17408""")
        p.extend(flat(self.dmaW1(4) + self.dmaW1(5)))
        p(f"""v_lshrrev_b32 v50, 5, v1
             v_lshlrev_b32 v50, 10, v50
             v_bfe_u32 v51, v1, 2, 2
             v_lshl_add_u32 v50, v51, 7, v50
             v_and_b32 v51, 1, v1
             v_lshl_add_u32 v50, v51, 4, v50
             v_bfe_u32 v51, v1, 1, 1
             v_lshl_add_u32 v50, v51, 3, v50
             v_bfe_u32 v51, v1, 3, 1
             v_lshlrev_b32 v51, 1, v51
             v_bfe_u32 v52, v1, 4, 1
             v_xor_b32 v51, v51, v52
             v_lshl_add_u32 v53, v51, 5, v50
             v_lshl_add_u32 v42, v52, 16, v53
             v_xor_b32 v43, 32, v42
             v_xor_b32 v44, 64, v42
             v_xor_b32 v45, 96, v42
             s_lshl_b32 {sT4}, {sW}, 5
             v_xor_b32 v54, {sT4}, v53
             v_lshl_add_u32 v54, v52, 13, v54
             v_add_u32 v54, {hex(RS)}, v54
             v_add_u32 v55, {sT3}, v53
             v_xor_b32 v56, 64, v55""")
        p("WAITALL lgkm\ns_barrier")
        for s in range(4):
            p.extend(trpair(('v', 64 + 4 * s), "v54", s * 2048, 512))
        p.extend(trpair(('v', 80), "v55", 16384, 512))
        p.extend(trpair(('v', 84), "v56", 16384, 512))
        p(f"""s_lshl_b32 {sT1}, {sU}, 2
             s_add_u32 {sT1}, {sT1}, {sW}
             s_sub_u32 {sT2}, {sT1}, 64
             s_lshl_b32 {sT2}, {sT2}, 15
             s_lshl_b32 {sT3}, {sKC}, 12
             s_add_u32 {sT2}, {sT2}, {sT3}
             s_add_u32 {sT2}, {sT2}, {hex(W13R)}
             s_cmp_lt_u32 s2, 128
             s_cselect_b32 {sT2}, 0x7f000000, {sT2}
             s_mul_i32 {sT3}, {sKC}, {112*2048}
             s_lshl_b32 {sT4}, {sT1}, 11
             s_add_u32 {sT3}, {sT3}, {sT4}
             s_add_u32 {sT3}, {sT3}, {hex(W2R)}
             s_lshl_b32 {sT4}, {sT1}, 10
             s_lshr_b32 {sT1}, {sKC}, 2
             s_lshl_b32 {sT1}, {sT1}, 9
             s_add_u32 {sT4}, {sT4}, {sT1}
             s_and_b32 {sT1}, {sKC}, 3
             s_lshl_b32 {sT1}, {sT1}, 2
             s_add_u32 {sT4}, {sT4}, {sT1}
             s_add_u32 {sT4}, {sT4}, {hex(CS)}
             s_cmp_ge_u32 s2, 224
             s_cselect_b32 {sT2}, 0x7f000000, {sT2}
             s_cselect_b32 {sT3}, 0x7f000000, {sT3}
             s_cselect_b32 {sT4}, 0x7f000000, {sT4}
             v_mov_b32 v57, 0x00800000
             v_cndmask_b32 v57, v2, v57, {sHILANES}
             v_lshlrev_b32 v58, 4, v57
             v_cndmask_b32 v57, v57, v58, {sHILANES}""")
        for s in range(4):
            p.append(mf16(60, v(16, 4), v(64 + 4 * s, 4), "0" if s == 0 else None))
            p(f"buffer_store_dwordx4 {v(64+4*s,4)}, v2, {WS}, {sT2} offen offset:{s*1024} sc1", tag="pubR")
        p(f"buffer_store_dwordx4 v[80:83], v2, {WS}, {sT3} offen sc1", tag="pubR")
        p(f"buffer_store_dwordx4 v[84:87], v2, {WS}, {sT3} offen offset:1024 sc1", tag="pubR")
        p("""v_cvt_pk_bf16_f32 v58, v60, v60
             v_lshlrev_b32 v58, 16, v58
             v_sub_f32 v58, v60, v58
             v_cvt_pk_bf16_f32 v58, v60, v58""")
        p(f"buffer_store_dword v58, v57, {WS}, {sT4} offen sc1", tag="pubR")
        p.extend(flat(self.dmaW1(6) + self.dmaW1(7)))

    def signalR(self):
        p = self.p
        L = self.lab("sigR")
        p(f"""v_mov_b32 v14, 1
             s_add_u32 {sT0}, {sU}, {C_R13}
             s_add_u32 {sT1}, {sKC}, {C_R2}
             s_lshl_b32 {sT0}, {sT0}, 8
             s_lshl_b32 {sT1}, {sT1}, 8
             s_lshl_b32 {sT2}, {sW}, 8
             s_add_u32 {sT2}, {sT2}, s2
             s_cmp_ge_u32 {sT2}, 224
             s_cbranch_scc1 {L}""")
        p(f"""s_mov_b64 exec, 1
             buffer_atomic_add v14, off, {WS}, {sT0} sc1
             buffer_atomic_add v14, off, {WS}, {sT1} sc1
             s_mov_b64 exec, -1""", cond=True)
        p(f"{L}:")

    def phaseCD(self):
        p = self.p
        o = self.o
        sHB, sHS, sW2, sHL0, sHL1 = "s48", "s49", "s50", "s51", "s43"
        p(f"""s_lshl_b32 {sT0}, {sG}, 2
             s_add_u32 {sT0}, {sT0}, {sW}
             s_lshl_b32 {sHB}, {sT0}, 15
             s_add_u32 {sHB}, {sHB}, {hex(HB)}
             s_mul_i32 {sHS}, {sT0}, {112*1024}
             s_add_u32 {sHS}, {sHS}, {hex(HH)}
             s_lshl_b32 {sT4}, {sT0}, 12
             s_add_u32 {sT4}, {sT4}, {hex(ST)}
             s_add_u32 {sT3}, {sD}, {C_H*256}""")
        self.stamp("C_prepoll")
        self.spin("v14", None, sT3, "1", "16")
        p("WAITALL vm\ns_barrier")
        self.stamp("C_sync2")
        for s in range(32):
            if s % 4 == 0 and s:
                p(f"s_add_u32 {sHB}, {sHB}, 4096")
            p(f"buffer_load_dwordx4 {a_(4*s,4)}, v2, {WS}, {sHB} offen offset:{(s&3)*1024} sc1")
            if s == 7:
                self.signalR()
        ACC = [48, 64, 80, 96, 112]
        acc_of = [0, 1, 2, 3, 4, 0, 1]
        WR = 128
        CSF, MEANF, C1, C2 = 152, 180, 184, 185
        T = 186
        F0 = Seq()
        for k in range(16):
            F0(f"buffer_load_dword v{T+k}, v15, {WS}, {sT4} offen offset:{k*256} sc1")
        F1 = Seq()
        for st in (8, 4, 2, 1):
            for k in range(st):
                F1(f"v_add_f32 v{T+k}, v{T+k}, v{T+k+st}")
        F1(f"""v_mov_b32 v{T+1}, v{T}
             v_permlane32_swap_b32 v{T}, v{T+1}
             v_mul_f32 v{T}, 0x3b000000, v{T}
             v_mul_f32 v{T+1}, 0x3b000000, v{T+1}
             v_fma_f32 v{T+1}, -v{T}, v{T}, v{T+1}
             v_max_f32 v{T+1}, 0, v{T+1}
             v_add_f32 v{C2}, 0x3727c5ac, v{T+1}
             v_rsq_f32 v{C1}, v{C2}
             v_cvt_pk_bf16_f32 v{MEANF}, -v{T}, -v{T}
             v_mul_f32 v{C1}, 0xbfb8aa3b, v{C1}
             v_mov_b32 v{MEANF+1}, v{MEANF}
             v_mov_b32 v{MEANF+2}, v{MEANF}
             v_mov_b32 v{MEANF+3}, v{MEANF}""")
        F2 = Seq()
        F2(f"""s_mul_i32 {sT0}, {sM}, 3
             s_lshr_b32 {sT1}, {sT0}, 2
             s_add_u32 {sT1}, {sT1}, {C_R13+16}
             s_add_u32 {sT2}, {sT0}, 2
             s_lshr_b32 {sT2}, {sT2}, 2
             s_add_u32 {sT2}, {sT2}, {C_R13+16}
             s_add_u32 {sT0}, {sM}, {C_R13}
             s_and_b32 {sCB}, {sM}, 7
             s_add_u32 {sT3}, {sCB}, {C_R2}
             v_mov_b32 v210, {sT0}
             v_writelane_b32 v210, {sT1}, 1
             v_writelane_b32 v210, {sT2}, 2
             v_writelane_b32 v210, {sT3}, 3
             v_lshlrev_b32 v210, 8, v210
             v_mov_b32 v211, 8
             v_writelane_b32 v211, 28, 3""")
        F2(f"buffer_load_dword v212, v210, {WS}, 0 offen sc1")

        def g1reads(n):
            s, t = divmod(n, 3)
            return trpair(('v', WR + 4 * (n % 6)), f"v{42+t}", s * 2048, 512)
        G = []
        for n in range(96):
            s, t = divmod(n, 3)
            g = [mf32(ACC[t], v(WR + 4 * (n % 6), 4), a_(4 * s, 4), "0" if s == 0 else None)]
            if n + 4 < 96:
                g += g1reads(n + 4)
            else:
                g += trpair(('v', WR + 4 * ((n + 4) % 6)), "v45", (n + 4 - 96) * 2048, 512)
            G.append(g)
        for n in range(4):
            p.extend(g1reads(n))
        G = weave(G, list(F0), 24, 40)
        G = weave(G, list(F2), 40, 48)
        G = weave(G, list(F1), 48, 64)
        p.extend(flat(G[:64]))
        self.spin("v212", "v210", "0", "15", "v211", first_loaded=True, sleep=2)
        F3 = Seq()
        F3(f"s_lshl_b32 {sT0}, {sM}, 12\ns_add_u32 {sT0}, {sT0}, {hex(CS)}")
        for t in range(4):
            F3(f"buffer_load_dwordx4 {v(CSF+4*t,4)}, v2, {WS}, {sT0} offen offset:{t*1024} sc1")
        F3(f"s_mul_i32 {sT0}, {sM}, 3072\ns_add_u32 {sT0}, {sT0}, {hex(CS+64*1024)}")
        for t in range(3):
            F3(f"buffer_load_dwordx4 {v(CSF+16+4*t,4)}, v2, {WS}, {sT0} offen offset:{t*1024} sc1")
        F3(f"""s_mul_i32 {sA}, {sM}, {3*32768}
             s_lshl_b32 {sB}, {sW}, 13
             s_add_u32 {sA}, {sA}, {sB}
             s_add_u32 {sA}, {sA}, {hex(W13R)}""")

        def dmaT(t, ldsbase):
            g = []
            for h in range(2):
                S = Seq()
                S(f"s_add_u32 {sT0}, {sA}, {(t-4)*32768+h*4096}\ns_add_u32 m0, {sB}, {ldsbase+h*4096}")
                for k in range(4):
                    S(f"buffer_load_dwordx4 v2, {WS}, {sT0} offen offset:{k*1024} sc1 lds", tag=f"T{t}")
                    g.append(list(S))
                    S = Seq()
            return g
        steps = []
        for pr in range(4):
            for t in range(3):
                steps.append((0, 4 * pr + t))
        for pr in range(4):
            steps.append((0, 4 * pr + 3))
        for pr in range(4):
            steps.append((1, 3 * pr))
        for pr in range(4):
            for t in (1, 2):
                steps.append((1, 3 * pr + t))
        F4 = Seq()
        F4(f"""s_mul_i32 {sW2}, {sCB}, {112*2048}
             s_add_u32 {sW2}, {sW2}, {hex(W2R)}
             s_mul_i32 {sU}, {sW}, {12*2048}
             s_add_u32 {sU}, {sU}, {sW2}
             s_add_u32 {sU}, {sU}, {64*2048}
             s_lshl_b32 {sT0}, {sW}, 15
             s_add_u32 {sW2}, {sW2}, {sT0}
             s_and_b32 {sT0}, {sW}, 1
             s_lshl_b32 {sT0}, {sT0}, 10
             v_add_u32 v46, {sT0}, v2
             v_xor_b32 v47, 1024, v46""")
        w2l = []
        for i in range(16):
            kind, off = steps[i]
            assert kind == 0
            S = Seq()
            if off % 2 == 0 or i >= 12:
                S(f"s_add_u32 {sKC}, {sW2}, {(off & ~1)*2048}")
            S(f"buffer_load_dwordx4 {a_(128+8*i,4)}, v46, {WS}, {sKC} offen offset:{(off&1)*2048} sc1")
            w2l.append(list(S))
            w2l.append([Inst(f"buffer_load_dwordx4 {a_(132+8*i,4)}, v47, {WS}, {sKC} offen offset:{(off&1)*2048} sc1")])
        Gr = weave(G[64:], list(F3) + dmaT(4, 0x20000) + list(F4), 0, 30)
        p.extend(flat(Gr))
        for t in range(3):
            p.append(mf32(ACC[t], v(CSF + 4 * t, 4), v(MEANF, 4)))
        self.stamp("C_g1")

        def epi(t, tmp):
            A = ACC[acc_of[t]]
            S = Seq()
            for j in range(8):
                S(f"v_mul_f32 v{tmp+j}, v{A+j}, v{C1}")
            for j in range(8):
                S(f"v_exp_f32 v{tmp+j}, v{tmp+j}")
                S(f"v_mul_f32 v{A+j}, v{A+j}, v{A+8+j}")
            for j in range(8):
                S(f"v_fma_f32 v{tmp+j}, v{tmp+j}, v{C2}, v{C2}")
            for j in range(8):
                S(f"v_rcp_f32 v{tmp+j}, v{tmp+j}")
            for j in range(8):
                S(f"v_mul_f32 v{A+j}, v{A+j}, v{tmp+j}")
            for j in range(4):
                S(f"v_cvt_pk_bf16_f32 v{tmp+8+j}, v{A+2*j}, v{A+2*j+1}")
            if t < 4:
                S(f"s_lshl_b32 {sCc}, {sM}, 12\ns_add_u32 {sCc}, {sCc}, {sHS}")
                S(f"buffer_store_dwordx4 {v(tmp+8,4)}, v2, {WS}, {sCc} offen offset:{t*1024} sc1", tag=f"hh{t}")
            else:
                S(f"s_mul_i32 {sCc}, {sM}, 3072\ns_add_u32 {sCc}, {sCc}, {sHS}\ns_add_u32 {sCc}, {sCc}, 65536")
                S(f"buffer_store_dwordx4 {v(tmp+8,4)}, v2, {WS}, {sCc} offen offset:{(t-4)*1024} sc1", tag=f"hh{t}")
            return list(S)

        TB = {4: 0x20000, 5: 0, 6: 0x8000}
        p("v_add_u32 v41, 0x20000, v2")

        def tread(t, s, n):
            if t == 3:
                return trpair(('v', WR + 4 * (n % 6)), "v45", s * 2048, 512)
            if t == 4:
                return [Inst(f"ds_read_b128 {v(WR+4*(n%6),4)}, v41 offset:{s*1024}")]
            return [Inst(f"ds_read_b128 {v(WR+4*(n%6),4)}, v2 offset:{TB[t]+s*1024}")]

        def tilepass(t, n0, boundary):
            G = []
            for s in range(32):
                n = n0 + s
                g = [mf32(ACC[acc_of[t]], v(WR + 4 * (n % 6), 4), a_(4 * s, 4), "0" if s == 0 else None)]
                if s + 4 < 32:
                    g += tread(t, s + 4, n + 4)
                elif t < 6:
                    if s == 28:
                        g += boundary
                    g += tread(t + 1, s + 4 - 32, n + 4)
                G.append(g)
            G.append([mf32(ACC[acc_of[t]], v(CSF + 4 * t, 4), v(MEANF, 4))])
            return G

        def sub(fn):
            save = self.p
            self.p = Seq()
            fn()
            r = list(self.p)
            self.p = save
            return r

        def dmaW2(part):
            g = []
            rng = range(0, 4) if part == 0 else range(4, 6)
            for h in rng:
                S = Seq()
                if part == 0:
                    S(f"s_lshl_b32 {sT1}, {sW}, 14\ns_add_u32 m0, {sT1}, {0x10000+h*4096}")
                else:
                    S(f"s_add_u32 m0, {sB}, {0x20000+(h-4)*4096}")
                S(f"s_add_u32 {sT0}, {sU}, {h*4096}")
                for k in range(4):
                    S(f"buffer_load_dwordx4 v2, {WS}, {sT0} offen offset:{k*1024} sc1 lds", tag=f"W2L{part}")
                    g.append(list(S))
                    S = Seq()
            return g

        b3 = list(Seq()("WAITTAG T4\nWAITALL lgkm\ns_barrier"))
        G = tilepass(3, 96, b3)
        G = weave(G, epi(0, T) + epi(1, T + 12)[:26], 1, 33)
        G = weave(G, w2l[:16], 0, 28)
        p.extend(flat(G))
        self.stamp("C_t3")
        b4 = list(Seq()("WAITTAG T5\nWAITALL lgkm\ns_barrier"))
        G = tilepass(4, 128, b4)
        G = weave(G, epi(1, T + 12)[26:] + epi(2, T), 0, 24)
        G = weave(G, epi(3, T + 12)[:24], 24, 33)
        G = weave(G, dmaT(5, TB[5]) + dmaT(6, TB[6]), 0, 20)
        p.extend(flat(G))
        self.stamp("C_t4")
        def pub(tags, cnt):
            def f():
                self.p(f"s_add_u32 {sT3}, {sD}, {cnt*256}")
                self.p("WAITTAG " + " ".join(tags) + "\ns_barrier")
                self.signal(sT3)
            return sub(f)
        b5 = list(Seq()("WAITTAG T6\ns_barrier"))
        G = tilepass(5, 160, b5)
        G[6] += pub(["hh2"], C_P1)
        G = weave(G, epi(3, T + 12)[24:] + epi(4, T), 0, 28)
        G = weave(G, w2l[16:], 7, 28)
        p.extend(flat(G))
        self.stamp("C_t5")
        F5 = Seq()
        F5(f"""s_lshr_b32 {sT0}, {sM}, 3
             s_lshl_b32 {sT0}, {sT0}, 1
             s_lshl_b32 {sT1}, {sG}, 2
             s_add_u32 {sT0}, {sT0}, {sT1}
             s_lshr_b32 {sT1}, {sW}, 1
             s_add_u32 {sTB}, {sT0}, {sT1}
             s_mul_i32 {sHL0}, {sT0}, {112*1024}
             s_add_u32 {sHL0}, {sHL0}, {hex(HH)}
             s_mul_i32 {sHL1}, {sW}, {12*1024}
             s_add_u32 {sHL1}, {sHL1}, {sHL0}
             s_add_u32 {sHL1}, {sHL1}, 65536
             s_lshl_b32 {sT0}, {sW}, 14
             s_add_u32 {sHL0}, {sHL0}, {sT0}
             s_mul_i32 {sT0}, {sT1}, {112*1024}
             v_add_u32 v42, {sT0}, v2
             s_sub_u32 {sT0}, {112*1024}, {sT0}
             v_add_u32 v43, {sT0}, v2""")
        G = tilepass(6, 192, None)
        G[6] += pub(["hh4"], C_P2)
        G = weave(G, list(F5), 0, 5)
        G = weave(G, epi(5, T + 12), 3, 30)
        G = weave(G, dmaW2(0) + dmaW2(1), 7, 32)
        p.extend(flat(G))
        self.stamp("C_t6")
        p(f"s_add_u32 {sT3}, {sD}, {C_P1*256}")
        p(f"buffer_load_dword v212, off, {WS}, {sT3} sc1")
        p.extend(epi(6, T))
        self.spin("v212", None, sT3, "1", "16", first_loaded=True, sleep=1)
        self.stamp("C_end")

        def hhload(i):
            kind, off = steps[i]
            S = Seq()
            S(f"s_add_u32 {sKC}, {sHL1 if kind else sHL0}, {off*1024}")
            S(f"buffer_load_dwordx4 {a_(8*(i&15),4)}, v42, {WS}, {sKC} offen sc1")
            return [list(S), [Inst(f"buffer_load_dwordx4 {a_(8*(i&15)+4,4)}, v43, {WS}, {sKC} offen sc1")]]
        p(f"""s_lshl_b32 {sT0}, {sTB}, 15
             s_lshl_b32 {sT1}, {sCB}, 12
             s_add_u32 {sT0}, {sT0}, {sT1}
             s_and_b32 {sT1}, {sW}, 1
             s_lshl_b32 {sT1}, {sT1}, 11
             s_add_u32 {sT0}, {sT0}, {sT1}
             s_add_u32 {sT0}, {sT0}, {hex(HB)}""")
        for i in range(4):
            p.extend(flat(hhload(i)))
        p(f"s_add_u32 {sT3}, {sD}, {C_P3*256}")
        p("WAITTAG hh6\ns_barrier")
        self.signal(sT3)
        p(f"buffer_load_dwordx4 v[152:155], v2, {WS}, {sT0} offen sc1")
        p(f"buffer_load_dwordx4 v[156:159], v2, {WS}, {sT0} offen offset:1024 sc1")
        p(f"s_add_u32 {sT3}, {sD}, {C_P2*256}")
        p(f"buffer_load_dword v212, off, {WS}, {sT3} sc1")
        p(f"""s_lshl_b32 {sT1}, {sW}, 14
             s_add_u32 {sT1}, {sT1}, 0x10000
             v_add_u32 v44, {sT1}, v46
             v_add_u32 v45, {sT1}, v47
             s_add_u32 {sT1}, {sB}, 0x20000
             v_add_u32 v46, {sT1}, v46
             v_add_u32 v47, {sT1}, v47""")
        DA = [48, 64, 80, 96]

        def w2read(i):
            off = steps[i][1]
            r = []
            for a in range(2):
                d = v(WR + 8 * (i % 3) + 4 * a, 4)
                if off < 8:
                    r.append(Inst(f"ds_read_b128 {d}, v{44+a} offset:{off*2048}"))
                else:
                    r.append(Inst(f"ds_read_b128 {d}, v{46+a} offset:{(off-8)*2048}"))
            return r

        def w2f(i, a):
            return a_(128 + 8 * i + 4 * a, 4) if i < 16 else v(WR + 8 * (i % 3) + 4 * a, 4)
        LA = o.get('dla', 6)
        for i in range(4, LA):
            p.extend(flat(hhload(i)))
        for i in range(28):
            nxt = i + LA
            ld = []
            if nxt < 28:
                if nxt == 12:
                    self.spin("v212", None, sT3, "1", "16", first_loaded=True, sleep=1)
                if nxt == 16:
                    p(f"s_add_u32 {sT3}, {sD}, {C_P3*256}")
                    p(f"buffer_load_dword v212, off, {WS}, {sT3} sc1")
                if nxt == 20:
                    self.spin("v212", None, sT3, "1", "16", first_loaded=True, sleep=1)
                ld = hhload(nxt)
            if i == 14:
                p("WAITTAG W2L0 W2L1")
            order = [(1, 0), (1, 1), (0, 1), (0, 0)]
            for k, (a, b) in enumerate(order):
                z = "0" if i == 0 else None
                p.append(mf32(DA[a + 2 * b], w2f(i, a), a_(8 * (i & 15) + 4 * b, 4), z))
                if k in (0, 2) and ld:
                    p.extend(ld.pop(0))
                if k == 1 and 16 <= i + 2 < 28:
                    p.extend(w2read(i + 2))
        self.stamp("D_loop")
        for k in (1, 3, 2):
            p(f"""s_xor_b32 {sT0}, {sW}, {k}
                 s_mul_i32 {sT0}, {sT0}, 12288
                 v_add_u32 v{40+k}, {sT0}, v2""")
        for k in (1, 3, 2):
            for q in range(4):
                p(f"ds_write_b128 v{40+k}, {v(DA[k]+4*q,4)} offset:{(k-1)*4096+q*1024}")
        p(f"""s_mul_i32 {sT0}, {sW}, 12288
             v_add_u32 v40, {sT0}, v2
             s_lshl_b32 {sT0}, {sTB}, 15
             s_lshl_b32 {sT1}, {sCB}, 7
             s_add_u32 {sT0}, {sT0}, {sT1}
             s_and_b32 {sT1}, {sW}, 1
             s_lshl_b32 {sT1}, {sT1}, 6
             s_add_u32 {sT0}, {sT0}, {sT1}""")
        for i in range(8):
            p(f"""v_lshlrev_b32 v{112+2*i}, 16, v{152+i}
                 v_and_b32 v{113+2*i}, {sMSKHI}, v{152+i}""")
        for i in range(16):
            p(f"v_add_f32 v{48+i}, v{48+i}, v{112+i}")
        p("WAITALL lgkm\ns_barrier")
        for q in range(4):
            for k in range(3):
                p(f"ds_read_b128 {v(160+16*k+4*q,4)}, v40 offset:{k*4096+q*1024}")
        for q in range(4):
            for j in range(4):
                r = 4 * q + j
                p(f"v_add_f32 v{48+r}, v{48+r}, v{160+r}")
                p(f"v_add_f32 v{176+r}, v{176+r}, v{192+r}")
            for j in range(4):
                r = 4 * q + j
                p(f"v_add_f32 v{48+r}, v{48+r}, v{176+r}")
            for j in range(2):
                p(f"v_cvt_pk_bf16_f32 v{112+2*q+j}, v{48+4*q+2*j}, v{48+4*q+2*j+1}")
            if q & 1:
                p(f"buffer_store_dwordx4 {v(112+4*(q>>1),4)}, v5, {OUT}, {sT0} offen offset:{32*(q>>1)}")
        self.stamp("D_end")

    def finish(self):
        p = self.p
        if self.o.get('stamps'):
            p("WAITALL vm")
            self.stamp("drained")
            p(f"""s_lshl_b32 {sT0}, s2, 2
                 s_add_u32 {sT0}, {sT0}, {sW}
                 s_lshl_b32 {sT0}, {sT0}, 7
                 s_add_u32 {sT0}, {sT0}, {hex(STAMP)}
                 s_mov_b64 exec, 1""")
            for i in range(self.nstamp):
                p(f"v_mov_b32 v14, s{STAMP0+i}\nbuffer_store_dword v14, off, {WS}, {sT0} offset:{4*i}")
        if self.o.get('padto'):
            p("WAITALL vm")
            p("L_pad:\ns_memrealtime s[72:73]\ns_waitcnt lgkmcnt(0)\ns_sub_u32 s72, s72, s100")
            p(f"s_cmp_lt_u32 s72, {self.o['padto']}\ns_cbranch_scc1 L_pad")
        p("L_end:\ns_endpgm")

    def build(self):
        if self.o.get('stamps') or self.o.get('padto'):
            self.p("s_memrealtime s[100:101]")
        self.setup()
        self.phaseA_wrap()
        self.phaseB()
        self.phaseR()
        self.phaseCD()
        self.finish()
        prog = finalize(self.p)
        return prog

    def phaseA_wrap(self):
        if self.o.get('stamps'):
            self.p(f"s_mov_b32 s{STAMP0}, s100")
            self.nstamp = 1
            self.stamp_names.append("start")
        self.phaseA()


def emit(opt):
    g = Gen(opt)
    prog = g.build()
    hdr = open(os.path.join(os.path.dirname(os.path.abspath(__file__)), "header.txt")).read()
    body = "\n".join(("" if i.kind == 'label' else "    ") + i.text for i in prog)
    txt = hdr + f"""; @launch grid=(256,1,1) block=(256,1,1) lds=163840
.amdgcn_target "amdgcn-amd-amdhsa--gfx950"
.set CODE_PF_MAX, {opt.get('code_bytes', 0)}
.text
.globl {NAME}_kernel
.p2align 8
.type {NAME}_kernel,@function
{NAME}_kernel:
{body}
.section .rodata,"a"
.p2align 6
.amdhsa_kernel {NAME}_kernel
  .amdhsa_next_free_vgpr 512
  .amdhsa_next_free_sgpr 102
  .amdhsa_accum_offset 256
  .amdhsa_group_segment_fixed_size 0
  .amdhsa_kernarg_size 80
  .amdhsa_user_sgpr_count 2
  .amdhsa_user_sgpr_kernarg_segment_ptr 1
  .amdhsa_system_sgpr_workgroup_id_x 1
.end_amdhsa_kernel
"""
    return txt, g.stamp_names


def code_size(txt):
    import subprocess, tempfile
    with tempfile.TemporaryDirectory() as d:
        open(d + "/k.s", "w").write(txt)
        r = subprocess.run(["clang", "-x", "assembler", "-target", "amdgcn-amd-amdhsa",
                            "-mcpu=gfx950", "-c", d + "/k.s", "-o", d + "/k.o"], capture_output=True, text=True)
        if r.returncode:
            print("\n".join(r.stderr.split("\n")[:30]))
            raise SystemExit(1)
        r = subprocess.run(["llvm-objdump", "-h", d + "/k.o"], capture_output=True, text=True)
        for line in r.stdout.split("\n"):
            f = line.split()
            if len(f) > 2 and f[1] == ".text":
                return int(f[2], 16)


def main():
    opt = {}
    out = None
    for a in sys.argv[1:]:
        if '=' in a:
            k, val = a.split('=')
            opt[k] = int(val, 0)
        else:
            out = a
    opt['code_bytes'] = 4096
    txt, names = emit(opt)
    sz = code_size(txt)
    opt['code_bytes'] = (sz - 1024) & ~3
    txt, names = emit(opt)
    open(out, "w").write(txt)
    if names:
        open(out + ".names", "w").write(" ".join(names))
    print(out, "code bytes", sz, "lines", txt.count("\n"), "stamps", len(names))


if __name__ == "__main__":
    main()
```

```python
import sys, os
sys.path.insert(0, os.path.dirname(os.path.abspath(__file__)))
from dsl import *

NAME = "sequential_preLN__linear_attn_block__glu_gated_swiglu__prompt"

CNT = 0
KVM = 0x10000
ZP = 0x18000
ST = 0x20000
CS = 0x60000
STAMP = 0x80000
PQ = 0x100000
HB = 0x300000
HH = 0x500000
W13R = 0xC00000
W2R = 0x1000000
WS_SIZE = 0x1200000
C_KV, C_H, C_P1, C_P2, C_P3, C_R13, C_R2 = 0, 64, 80, 96, 112, 128, 160

X, WQKV, WO, W1, W3, W2, OUT, WS, DBG = [f"s[{a}:{a+3}]" for a in range(4, 40, 4)]
sW, sG, sM, sC0, sT0, sT1, sT2, sT3 = "s40", "s41", "s42", "s43", "s44", "s45", "s46", "s47"
sXB, sWB, sXL, sWL, sTB, sCB, sRQ, sLOG2E = "s48", "s49", "s50", "s51", "s52", "s53", "s54", "s55"
sU, sKC, sT4, sT5, sMSKHI, sEPS6 = "s56", "s57", "s58", "s59", "s60", "s61"
sHILANES = "s[62:63]"
sB4LANES = "s[64:65]"
sA, sB, sCc, sD = "s66", "s67", "s68", "s69"
STAMP0 = 74


def v(a, n=1):
    return f"v{a}" if n == 1 else f"v[{a}:{a+n-1}]"


def a_(a, n=1):
    return f"a{a}" if n == 1 else f"a[{a}:{a+n-1}]"


def mf32(d, A, B, c=None):
    return Inst(f"v_mfma_f32_32x32x16_bf16 {v(d,16)}, {A}, {B}, {v(d,16) if c is None else c}")


def mf16(d, A, B, c=None):
    return Inst(f"v_mfma_f32_16x16x32_bf16 {v(d,4)}, {A}, {B}, {v(d,4) if c is None else c}")


def mf4(d, A, B, c=None):
    return Inst(f"v_mfma_f32_4x4x4_16b_bf16 {v(d,4)}, {A}, {B}, {v(d,4) if c is None else c}")


def trpair(dst, addr, off, step):
    k, b = dst
    return [Inst(f"ds_read_b64_tr_b16 {k}[{b}:{b+1}], {addr} offset:{off}"),
            Inst(f"ds_read_b64_tr_b16 {k}[{b+2}:{b+3}], {addr} offset:{off+step}")]


class Gen:
    def __init__(self, opt):
        self.o = opt
        self.p = Seq()
        self.nl = 0
        self.nstamp = 0
        self.stamp_names = []

    def lab(self, s):
        self.nl += 1
        return f"L_{s}_{self.nl}"

    def stamp(self, name):
        if not self.o.get('stamps'):
            return
        p = self.p
        p("WAITALL lgkm")
        p("s_memrealtime s[72:73]")
        p("WAITALL lgkm")
        p(f"s_mov_b32 s{STAMP0+self.nstamp}, s72")
        self.nstamp += 1
        self.stamp_names.append(name)

    def signal(self, soff, vone="v14"):
        p = self.p
        L = self.lab("sig")
        p(f"v_mov_b32 {vone}, 1")
        p(f"s_cmp_lg_u32 {sW}, 0")
        p(f"s_cbranch_scc1 {L}")
        p(f"""s_mov_b64 exec, 1
             buffer_atomic_add {vone}, off, {WS}, {soff} sc1
             s_mov_b64 exec, -1""", cond=True)
        p(f"{L}:")

    def spin(self, vt, vaddr, soff, mask, vtarget, srd=WS, first_loaded=False, wave0=True, sleep=0):
        p = self.p
        Ld, Lp = self.lab("pd"), self.lab("pl")
        addr = f"{vaddr}, {srd}, {soff} offen" if vaddr else f"off, {srd}, {soff}"
        if first_loaded:
            p(f"v_cmp_gt_u32 vcc, {vtarget}, {vt}")
            p(f"s_and_b64 vcc, vcc, {mask}")
            p(f"s_cbranch_scc0 {Ld}")
        elif wave0:
            p(f"s_cmp_lg_u32 {sW}, 0")
            p(f"s_cbranch_scc1 {Ld}")
        p(f"s_mov_b32 {sT5}, 0", cond=True)
        p(f"s_mov_b64 exec, {mask}", cond=True)
        p(f"{Lp}:")
        if sleep:
            p(f"s_sleep {sleep}", cond=True)
        p(f"""buffer_load_dword {vt}, {addr} sc1
             s_add_u32 {sT5}, {sT5}, 1
             s_waitcnt vmcnt(0)
             v_cmp_gt_u32 vcc, {vtarget}, {vt}
             s_cmp_ge_u32 {sT5}, 0x8000
             s_cselect_b64 vcc, 0, vcc
             s_cmp_lg_u64 vcc, 0
             s_cbranch_scc1 {Lp}
             s_mov_b64 exec, -1""", cond=True)
        p(f"{Ld}:")

    def setup(self):
        p = self.p
        p(f"""s_cmp_ge_u32 s2, 256
             s_cbranch_scc1 L_end
             s_load_dwordx16 s[76:91], s[0:1], 0
             s_load_dwordx4 s[92:95], s[0:1], 64""")
        p("v_and_b32 v1, 63, v0\nv_lshrrev_b32 v14, 6, v0")
        p(f"v_readfirstlane_b32 {sW}, v14")
        for srd, sz in ((4, 0x200000), (8, 0x180000), (12, 0x80000), (16, 0x1C0000), (20, 0x1C0000),
                        (24, 0x1C0000), (28, 0x200000), (32, WS_SIZE), (36, 256)):
            p(f"s_mov_b32 s{srd+2}, {hex(sz)}\ns_mov_b32 s{srd+3}, 0x20000")
        p(f"""s_lshr_b32 {sT0}, s2, 3
             s_and_b32 {sRQ}, {sT0}, 3
             s_and_b32 {sG}, s2, 6
             s_lshl_b32 {sG}, {sG}, 1
             s_add_u32 {sG}, {sG}, {sRQ}
             s_lshr_b32 {sT1}, s2, 5
             s_and_b32 {sM}, s2, 1
             s_lshl_b32 {sM}, {sM}, 3
             s_add_u32 {sM}, {sM}, {sT1}
             s_lshl_b32 {sC0}, {sRQ}, 1
             s_add_u32 {sC0}, {sC0}, {sT1}
             s_lshl_b32 {sXB}, {sG}, 17
             s_lshl_b32 {sT0}, {sW}, 15
             s_add_u32 {sXB}, {sXB}, {sT0}
             s_mul_i32 {sWB}, {sW}, {16*3072}
             s_lshl_b32 {sT0}, {sM}, 6
             s_add_u32 {sWB}, {sWB}, {sT0}
             s_lshl_b32 {sXL}, {sW}, 14
             s_lshl_b32 {sWL}, {sW}, 11
             s_add_u32 {sWL}, {sWL}, 0x10000""")
        p("v_lshlrev_b32 v2, 4, v1")
        p("""v_lshrrev_b32 v14, 3, v1
             v_lshlrev_b32 v14, 10, v14
             v_and_b32 v15, 7, v1
             v_lshrrev_b32 v3, 4, v1
             v_xor_b32 v15, v15, v3
             v_lshl_add_u32 v6, v15, 4, v14
             v_xor_b32 v7, 64, v6
             v_add_u32 v7, 7168, v7
             v_add_u32 v8, 14336, v6
             v_add_u32 v9, 14336, v7""")
        p("""v_lshrrev_b32 v14, 2, v1
             v_mul_u32_u24 v14, 3072, v14
             v_and_b32 v15, 3, v1
             v_lshl_add_u32 v5, v15, 4, v14""")
        p("WAITALL lgkm")
        for srd, src in ((4, 76), (8, 78)):
            p(f"s_mov_b32 s{srd}, s{src}\ns_mov_b32 s{srd+1}, s{src+1}")

    def setup_late(self):
        p = self.p
        for srd, src in ((12, 80), (16, 84), (20, 86), (24, 88), (28, 90), (36, 92), (32, 94)):
            p(f"s_mov_b32 s{srd}, s{src}\ns_mov_b32 s{srd+1}, s{src+1}")

    def dmaA(self, c):
        S = Seq()
        S(f"""s_add_u32 {sT0}, {sC0}, {c}
             s_and_b32 {sT0}, {sT0}, 7
             s_mul_i32 {sT1}, {sT0}, {64*3072}
             s_add_u32 {sT1}, {sT1}, {sWB}
             s_add_u32 {sT1}, {sT1}, 1024
             s_add_u32 m0, {sWL}, {(c&3)*8192}
             s_lshl_b32 {sT0}, {sT0}, 7""")
        S(f"buffer_load_dwordx4 v5, {WQKV}, {sT1} offen lds", tag=f"A{c}")
        g = [list(S)]
        g.append([Inst(f"buffer_load_dwordx4 v5, {WQKV}, {sT1} offen offset:1024 lds", tag=f"A{c}")])
        S = Seq()
        S(f"s_add_u32 m0, {sXL}, {(c&3)*4096}\ns_add_u32 {sT0}, {sT0}, {sXB}")
        S(f"buffer_load_dwordx4 v6, {X}, {sT0} offen lds", tag=f"A{c}")
        g.append(list(S))
        for i in range(1, 4):
            g.append([Inst(f"buffer_load_dwordx4 v{6+i}, {X}, {sT0} offen offset:{i*1024} lds", tag=f"A{c}")])
        return g

    def dmaQ(self, c):
        S = Seq()
        S(f"""s_add_u32 {sT0}, {sC0}, {c}
             s_and_b32 {sT0}, {sT0}, 7
             s_mul_i32 {sT1}, {sT0}, {64*3072}
             s_add_u32 m0, {sT2}, {c*4096}
             s_add_u32 {sT1}, {sT1}, {sWB}""")
        S(f"buffer_load_dwordx4 v5, {WQKV}, {sT1} offen lds", tag=f"Q{c}")
        return list(S)

    def dmaWO(self, q):
        S = Seq()
        b, i = q >> 2, q & 3
        S(f"""s_add_u32 {sT0}, {sA}, {(256*b+16*i)*1024}
             s_and_b32 {sT0}, {sT0}, 0x7ffff
             s_add_u32 m0, {sXL}, {b*65536+i*4096}
             s_add_u32 {sT0}, {sT0}, {sB}""")
        g = []
        for k in range(4):
            S(f"buffer_load_dwordx4 v{6+k}, {WO}, {sT0} offen offset:{k*1024} lds", tag=f"WO{q}")
            g.append(list(S))
            S = Seq()
        return g

    def phaseA(self):
        p = self.p
        o = self.o
        for g in self.dmaA(0):
            p.extend(g)
        self.setup_late()
        Lz = self.lab("z")
        p(f"""v_mov_b32 v16, 0
             v_mov_b32 v17, 0
             v_mov_b32 v18, 0
             v_mov_b32 v19, 0
             s_sub_u32 {sT3}, s2, 224
             s_lshl_b32 {sT4}, {sT3}, 10
             s_mul_i32 {sT3}, {sT3}, 1536
             v_and_b32 v14, 1, v1
             v_lshlrev_b32 v14, 4, v14
             v_bfe_u32 v15, v1, 1, 1
             v_lshl_add_u32 v14, v15, 9, v14
             v_add_u32 v14, {hex(ZP)}, v14
             v_add_u32 v14, {sT4}, v14
             v_lshlrev_b32 v15, 8, v1
             v_add_u32 v15, {sT3}, v15
             v_subrev_u32 v15, 1024, v15
             v_cmp_gt_u32 vcc, 4, v1
             v_cndmask_b32 v14, v15, v14, vcc
             s_add_u32 {sT4}, {sT4}, {hex(KVM)}
             s_lshl_b32 {sD}, {sW}, 8
             s_add_u32 {sD}, {sD}, 224
             s_cmp_lt_u32 s2, {sD}
             s_cbranch_scc1 {Lz}""")
        p(f"""buffer_store_dwordx4 v[16:19], v2, {WS}, {sT4} offen sc1
             s_mov_b64 exec, 0x3ff
             buffer_store_dwordx4 v[16:19], v14, {WS}, 0 offen sc1
             s_mov_b64 exec, -1""", cond=True)
        p(f"{Lz}:")
        for g in self.dmaA(1):
            p.extend(g)
        if o.get('codepf', 1):
            p(f"""s_getpc_b64 s[70:71]
                 s_lshr_b32 {sT0}, s2, 3
                 s_lshl_b32 {sT0}, {sT0}, 2
                 s_add_u32 {sT0}, {sT0}, {sW}
                 s_lshl_b32 {sT0}, {sT0}, 9
                 v_and_b32 v14, 3, v1
                 v_lshlrev_b32 v14, 7, v14
                 v_add_u32 v14, {sT0}, v14
                 v_min_u32 v14, CODE_PF_MAX, v14
                 global_load_dword v15, v14, s[70:71]""")
        p(f"""s_mov_b32 {sLOG2E}, 0x3fb8aa3b
             s_mov_b32 {sMSKHI}, 0xffff0000
             s_mov_b32 {sEPS6}, 0x358637bd
             s_mov_b32 s62, 0
             s_mov_b32 s63, -1
             s_mov_b32 s64, 0xffff0000
             s_mov_b32 s65, 0xffff0000""")
        p(f"""v_and_b32 v20, 31, v1
             v_lshrrev_b32 v21, 5, v1
             v_bfe_u32 v22, v1, 1, 3
             v_xor_b32 v21, v21, v22
             v_lshlrev_b32 v21, 4, v21
             v_lshl_add_u32 v21, v20, 7, v21
             v_add_u32 v10, {sXL}, v21
             v_xor_b32 v11, 32, v10
             v_xor_b32 v12, 64, v10
             v_xor_b32 v13, 96, v10""")
        p("""v_lshrrev_b32 v20, 5, v1
             v_lshlrev_b32 v20, 9, v20
             v_bfe_u32 v21, v1, 2, 2
             v_lshl_add_u32 v20, v21, 6, v20
             v_bfe_u32 v21, v1, 4, 1
             v_lshl_add_u32 v20, v21, 5, v20
             v_add_u32 v20, 0x10000, v20
             v_and_b32 v21, 3, v1
             v_lshl_add_u32 v3, v21, 3, v20
             v_and_b32 v21, 1, v1
             v_lshl_add_u32 v4, v21, 4, v20
             v_bfe_u32 v21, v1, 1, 1
             v_lshl_add_u32 v4, v21, 3, v4""")
        p("""v_and_b32 v24, 3, v1
             v_lshrrev_b32 v25, 2, v1
             v_lshrrev_b32 v26, 4, v1
             v_xor_b32 v25, v25, v26
             v_and_b32 v25, 1, v25
             v_or_b32 v24, v24, v25
             v_cmp_eq_u32 vcc, 0, v24
             v_mov_b32 v20, 0x3f803f80
             v_mov_b32 v21, 0x3f803f80
             v_mov_b32 v22, 0x3f803f80
             v_mov_b32 v23, 0x3f803f80
             v_cndmask_b32 v16, 0, v20, vcc
             v_cndmask_b32 v17, 0, v20, vcc
             v_cndmask_b32 v18, 0, v20, vcc
             v_cndmask_b32 v19, 0, v20, vcc""")
        for b in (160, 164, 168, 172, 176):
            for k in (1, 2, 3):
                p(f"v_mov_b32 v{b+k}, 0")
        SEL, ONES = v(16, 4), v(20, 4)
        XS, XQ, CK, CV, CQ, ZA = 24, 28, 32, 36, 40, 44
        AK, AV, AQ, RB, AKV = 48, 64, 80, 96, 112

        def reads(s):
            c, j = s >> 2, s & 3
            r = [Inst(f"ds_read_b128 {a_(4*s,4)}, v{10+j} offset:{(c&3)*4096}")]
            base = (c & 3) * 8192 + j * 2048
            r += trpair(('v', 128 + 8 * (s & 1)), "v3", base, 256)
            r += trpair(('v', 132 + 8 * (s & 1)), "v4", base + 1024, 256)
            return r

        self.stamp("A_issued")
        p("WAITTAG A0\ns_barrier")
        self.stamp("A_c0")
        Lz = self.lab("z2")
        p(f"v_mov_b32 v14, 1\ns_cmp_lt_u32 s2, {sD}\ns_cbranch_scc1 {Lz}")
        p(f"""s_waitcnt vmcnt({6 + (1 if o.get('codepf',1) else 0)})
             s_mov_b64 exec, 1
             buffer_atomic_add v14, off, {DBG}, 0 sc1
             s_mov_b64 exec, -1""", cond=True)
        p(f"{Lz}:")
        p.extend(reads(0))
        p(f"s_lshl_b32 {sT2}, {sW}, 10\ns_add_u32 {sT2}, {sT2}, 0x18000")
        pend = self.dmaA(2)
        for s in range(32):
            c, j = s >> 2, s & 3
            xf = a_(4 * s, 4)
            kf, vf = v(128 + 8 * (s & 1), 4), v(132 + 8 * (s & 1), 4)
            z = "0" if s == 0 else None
            p.append(mf32(AK, xf, kf, z))
            if s < 31:
                if j == 3:
                    p(f"WAITTAG A{c+1}\ns_barrier")
                    assert not pend
                    if c + 3 < 8:
                        pend = self.dmaA(c + 3)
                    elif c + 3 == 8:
                        pend = [self.dmaQ(k) for k in range(0, 4)]
                        pend.append([Inst(f"buffer_load_dword v15, off, {DBG}, 0 sc1")])
                    else:
                        pend = [self.dmaQ(k) for k in range(4, 8)]
                p.extend(reads(s + 1))
            p.append(mf32(AV, xf, vf, z))
            for _ in range(2):
                if pend and not (j == 3 and _ == 1):
                    p.extend(pend.pop(0))
            p.append(mf4(XQ, a_(4 * s, 2), a_(4 * s, 2), z))
            p.append(mf16(XS, SEL, xf, z))
            p.append(mf16(CK, SEL, kf, z))
            p.append(mf4(XQ, a_(4 * s + 2, 2), a_(4 * s + 2, 2)))
            p.append(mf16(CV, SEL, vf, z))
        assert not pend
        self.stamp("A_loop")
        p(f"""s_lshr_b32 {sTB}, {sM}, 2
             s_lshl_b32 {sT0}, {sG}, 2
             s_add_u32 {sTB}, {sTB}, {sT0}
             s_and_b32 {sCB}, {sM}, 3
             s_lshl_b32 {sA}, {sRQ}, 17
             s_lshl_b32 {sT0}, {sW}, 16
             s_add_u32 {sA}, {sA}, {sT0}
             s_lshl_b32 {sB}, {sCB}, 8""")
        E = Seq()
        E("""v_lshrrev_b32 v196, 4, v1
             v_bfe_u32 v197, v1, 2, 2
             v_xor_b32 v197, v197, v196
             v_lshlrev_b32 v197, 6, v197
             v_lshl_add_u32 v197, v196, 10, v197
             v_and_b32 v196, 3, v1
             v_lshl_add_u32 v6, v196, 4, v197
             v_add_u32 v7, 3072, v6
             v_add_u32 v8, 6144, v6
             v_add_u32 v9, 9216, v6""")
        E(f"""v_and_b32 v196, 3, v1
             v_cmp_eq_u32 vcc, 1, v196
             v_cndmask_b32 v197, v{XQ}, v{XQ+1}, vcc
             v_cmp_eq_u32 vcc, 2, v196
             v_cndmask_b32 v197, v197, v{XQ+2}, vcc
             v_cmp_eq_u32 vcc, 3, v196
             v_cndmask_b32 v197, v197, v{XQ+3}, vcc
             v_mov_b32 v198, v197
             v_mul_f32 v199, 0x3b000000, v{XS}
             v_permlane32_swap_b32 v197, v198
             v_add_f32 v197, v197, v198
             v_mul_f32 v197, 0x3b000000, v197
             v_fma_f32 v197, -v199, v199, v197
             v_max_f32 v197, 0, v197
             v_add_f32 v197, 0x3727c5ac, v197
             v_rsq_f32 v14, v197
             v_cvt_pk_bf16_f32 v198, -v199, -v199
             v_cndmask_b32 v160, v198, 0, {sHILANES}""")

        def split2(dst, src, t):
            return Seq()(f"""v_cvt_pk_bf16_f32 v{t}, v{src}, v{src}
                 v_lshlrev_b32 v{t}, 16, v{t}
                 v_sub_f32 v{t}, v{src}, v{t}
                 v_cvt_pk_bf16_f32 v{dst}, v{src}, v{t}""")
        E.extend(split2(164, CK, 198))
        E.extend(split2(168, CV, 199))
        E.extend(split2(176, 14, 198))
        E(f"v_cndmask_b32 v176, v176, 0, {sHILANES}")
        E.append(mf32(AK, v(160, 4), v(164, 4)))
        E.append(mf32(RB, v(176, 4), ONES, "0"))
        E.append(mf32(AV, v(160, 4), v(168, 4)))

        def phi(acc, scale, T, dst):
            S = Seq()
            for h in range(2):
                r = range(8 * h, 8 * h + 8)
                for i in r:
                    S(f"v_fma_f32 v{acc+i}, v{acc+i}, {scale(i)}, {sEPS6}")
                for i in r:
                    S(f"v_mul_f32 v{T+i}, {sLOG2E}, v{acc+i}")
                for i in r:
                    S(f"v_exp_f32_e64 v{T+i}, v{T+i} clamp")
                for i in r:
                    S(f"v_max_f32 v{acc+i}, {sEPS6}, v{acc+i}")
                for i in r:
                    S(f"v_add_f32 v{acc+i}, v{acc+i}, v{T+i}")
                for i in range(4 * h, 4 * h + 4):
                    S(f"v_cvt_pk_bf16_f32 v{dst+i}, v{acc+2*i}, v{acc+2*i+1}")
            return S
        E2 = Seq()
        E2.extend(phi(AK, lambda i: f"v{RB+i}", 196, 180))
        for i in range(16):
            E2(f"v_mul_f32 v{AV+i}, v{AV+i}, v{RB+i}")
        for i in range(8):
            E2(f"v_cvt_pk_bf16_f32 v{188+i}, v{AV+2*i}, v{AV+2*i+1}")
        E2(f"""v_bfe_u32 v212, v1, 4, 1
             v_lshlrev_b32 v212, 10, v212
             v_lshrrev_b32 v213, 5, v1
             v_lshl_add_u32 v212, v213, 9, v212
             v_and_b32 v213, 15, v1
             v_lshl_add_u32 v212, v213, 4, v212
             v_add_u32 v212, {sWL}, v212
             v_and_b32 v213, 31, v1
             v_lshlrev_b32 v213, 2, v213
             s_lshl_b32 {sT3}, {sW}, 7
             s_add_u32 {sT3}, {sT3}, 0x12000
             v_add_u32 v213, {sT3}, v213""")
        def qreads(s):
            return trpair(('v', 144 + 4 * (s & 3)), "v4", 0x8000 + s * 1024, 256)
        Q = []
        for s in range(32):
            g = Seq()
            qf = v(144 + 4 * (s & 3), 4)
            z = "0" if s == 0 else None
            g.append(mf32(AQ, qf, a_(4 * s, 4), z))
            if s + 2 < 32:
                if s + 2 == 16:
                    g("WAITTAG Q7\ns_barrier")
                g.extend(qreads(s + 2))
            g.append(mf16(CQ, SEL, qf, z))
            Q.append(g)
        p.extend(E)
        p("WAITTAG Q3\ns_barrier")
        p.extend(qreads(0) + qreads(1))
        nq1 = o.get('nq1', 22)
        Qw = weave(Q, list(E2), 0, nq1)
        fw = self.dmaWO(0)
        for k in range(4):
            Qw[15 + k] += fw[k]
        p.extend(flat(Qw[:nq1]))
        p.append(mf32(AKV, v(180, 4), v(188, 4), "0"))
        p.append(mf16(ZA, SEL, v(180, 4), "0"))
        p.append(mf32(AKV, v(184, 4), v(192, 4)))
        p.append(mf16(ZA, SEL, v(184, 4)))
        rest = Qw[nq1:]
        p.extend(flat(rest[:3]))
        S = Seq()
        for i in range(8):
            S(f"v_cndmask_b32 v{196+i}, v{AKV+i}, v{AKV+8+i}, {sB4LANES}")
        S(f"""ds_write_b128 v212, v[196:199]
             ds_write_b128 v212, v[200:203] offset:256
             ds_write_b32 v213, v{ZA}""")
        S(f"""v_lshlrev_b32 v204, 2, v0
             v_add_u32 v205, 0x10000, v204
             v_and_b32 v206, 7, v1
             s_lshl_b32 {sT3}, {sW}, 5
             s_add_u32 {sT3}, {sT3}, 0x12000
             v_lshl_add_u32 v206, v206, 2, {sT3}
             v_and_b32 v207, 3, v1
             v_lshlrev_b32 v207, 2, v207
             v_bfe_u32 v208, v1, 2, 1
             v_lshl_add_u32 v207, v208, 9, v207
             v_cmp_gt_u32 vcc, 8, v1
             v_mov_b32 v208, 0x7ffffff0
             v_cndmask_b32 v207, v208, v207, vcc
             s_lshl_b32 {sT3}, {sM}, 11
             s_add_u32 {sT3}, {sT3}, {hex(KVM)}
             s_lshr_b32 {sT4}, {sW}, 1
             s_lshl_b32 {sT4}, {sT4}, 10
             s_add_u32 {sT4}, {sT4}, {sT3}
             s_and_b32 {sCc}, {sW}, 1
             s_lshl_b32 {sCc}, {sCc}, 4
             s_add_u32 {sT4}, {sT4}, {sCc}
             s_add_u32 {sT4}, {sT4}, {hex(ZP-KVM)}""")
        p.extend(flat(weave(rest[3:], list(S))))
        self.spin("v15", None, "0", "1", "32", srd=DBG, first_loaded=True, sleep=4)
        p("WAITALL lgkm\ns_barrier")
        for k in range(4):
            p(f"ds_read2st64_b32 v[{112+2*k}:{113+2*k}], v205 offset0:{8*k} offset1:{8*k+4}")
        p("ds_read2_b32 v[120:121], v206 offset0:0 offset1:32")
        p("ds_read2_b32 v[122:123], v206 offset0:64 offset1:96")
        p.extend(split2(172, CQ, 198))
        p.append(mf32(AQ, v(172, 4), v(160, 4)))
        p("""v_add_f32 v112, v112, v114
             v_add_f32 v113, v113, v115
             v_add_f32 v116, v116, v118
             v_add_f32 v117, v117, v119
             v_add_f32 v112, v112, v116
             v_add_f32 v113, v113, v117""")
        p(f"buffer_atomic_add_f32 v112, v204, {WS}, {sT3} offen", tag="pub1")
        p(f"buffer_atomic_add_f32 v113, v204, {WS}, {sT3} offen offset:1024", tag="pub1")
        p("""v_add_f32 v120, v120, v121
             v_add_f32 v122, v122, v123
             v_add_f32 v120, v120, v122""")
        p(f"buffer_atomic_add_f32 v120, v207, {WS}, {sT4} offen", tag="pub1")
        self.stamp("A_kvatom")
        p(f"""s_lshl_b32 {sT3}, {sG}, 2
             s_add_u32 {sT3}, {sT3}, {sW}
             s_lshl_b32 {sT3}, {sT3}, 15
             s_lshl_b32 {sT4}, {sM}, 11
             s_add_u32 {sT3}, {sT3}, {sT4}
             s_add_u32 {sT3}, {sT3}, {hex(PQ)}""")
        ph = phi(AQ, lambda i: "v14", 196, 212)
        h = len(ph) // 2
        p.extend(ph[:h])
        p(f"buffer_store_dwordx4 v[212:215], v2, {WS}, {sT3} offen sc1", tag="pub1")
        p.extend(ph[h:])
        p(f"buffer_store_dwordx4 v[216:219], v2, {WS}, {sT3} offen offset:1024 sc1", tag="pub1")
        self.stamp("A_pqst")
        for q in (1, 2):
            p.extend(flat(self.dmaWO(q)))
        nsh = o.get('nsh', 16)
        p(f"s_and_b32 {sT3}, s2, {nsh-1}\ns_lshl_b32 {sT3}, {sT3}, 8")
        p("WAITTAG pub1\ns_barrier")
        self.signal(sT3)
        self.stamp("A_sig")
        for q in range(3, 8):
            p.extend(flat(self.dmaWO(q)))
        p(f"""v_and_b32 v196, 31, v1
             v_lshrrev_b32 v197, 5, v1
             v_lshlrev_b32 v197, 4, v197
             v_lshl_add_u32 v5, v196, 10, v197
             s_lshl_b32 {sT3}, {sTB}, 15
             s_lshl_b32 {sT4}, {sW}, 6
             s_add_u32 {sT3}, {sT3}, {sT4}
             s_add_u32 {sT3}, {sT3}, {sB}
             buffer_load_dwordx4 v[220:223], v5, {X}, {sT3} offen
             buffer_load_dwordx4 v[224:227], v5, {X}, {sT3} offen offset:32""")

    def rloads(self):
        S = Seq()
        S(f"""s_lshr_b32 {sU}, s2, 3
             s_and_b32 {sKC}, s2, 7
             v_lshrrev_b32 v208, 3, v1
             v_and_b32 v209, 7, v1
             v_lshlrev_b32 v209, 4, v209
             v_mul_u32_u24 v210, 3584, v208
             v_add_u32 v210, v210, v209
             v_lshl_add_u32 v211, v208, 10, v209
             s_lshl_b32 {sT0}, {sKC}, 2
             s_add_u32 {sT0}, {sT0}, {sW}
             s_mul_i32 {sT0}, {sT0}, {16*3584}
             s_lshl_b32 {sT1}, {sU}, 7
             s_add_u32 {sT0}, {sT0}, {sT1}
             s_cmp_ge_u32 s2, 224
             s_cselect_b32 {sT0}, 0x7f000000, {sT0}
             s_add_u32 {sT1}, {sT0}, {8*3584}
             buffer_load_dwordx4 v[228:231], v210, {W1}, {sT0} offen
             buffer_load_dwordx4 v[232:235], v210, {W1}, {sT1} offen
             buffer_load_dwordx4 v[236:239], v210, {W3}, {sT0} offen
             buffer_load_dwordx4 v[240:243], v210, {W3}, {sT1} offen
             s_lshl_b32 {sT0}, {sU}, 2
             s_add_u32 {sT0}, {sT0}, {sW}
             s_lshl_b32 {sT0}, {sT0}, 14
             s_lshl_b32 {sT1}, {sKC}, 7
             s_add_u32 {sT0}, {sT0}, {sT1}
             s_add_u32 {sT1}, {sT0}, 8192
             buffer_load_dwordx4 v[244:247], v211, {W2}, {sT0} offen
             buffer_load_dwordx4 v[248:251], v211, {W2}, {sT1} offen""")
        return S

    def dmaW1(self, q):
        mat, kq = q & 1, q >> 1
        S = Seq()
        S(f"""s_add_u32 {sT0}, {sA}, {kq*128*3584}
             s_add_u32 m0, {sB}, {mat*65536 + kq*16384}""")
        g = []
        for k in range(4):
            S(f"buffer_load_dwordx4 v{(6 if mat == 0 else 10)+k}, {W3 if mat else W1}, {sT0} offen offset:{k*1024} lds", tag=f"W1_{q}")
            g.append(list(S))
            S = Seq()
        return g

    def phaseB(self):
        p = self.p
        o = self.o
        nsh = o.get('nsh', 16)
        p(f"""v_lshlrev_b32 v196, 8, v1
             v_lshrrev_b32 v197, 5, v1
             v_and_b32 v198, 15, v1
             v_lshl_add_u32 v198, v197, 4, v198
             v_lshlrev_b32 v198, 4, v198
             v_lshlrev_b32 v197, 4, v197
             v_add_u32 v197, {hex(ZP-KVM)}, v197
             v_cndmask_b32 v197, v198, v197, {sB4LANES}
             s_lshl_b32 {sT3}, {sW}, 13
             s_add_u32 {sT1}, {sT3}, {hex(KVM)}
             s_add_u32 {sT2}, {sT1}, 4096
             s_lshl_b32 {sT4}, {sTB}, 15
             s_add_u32 {sT3}, {sT3}, {sT4}
             s_add_u32 {sT3}, {sT3}, {hex(PQ)}
             s_add_u32 {sT4}, {sT3}, 4096""")
        p(f"""v_lshrrev_b32 v199, 5, v1
             v_lshlrev_b32 v199, 11, v199
             v_bfe_u32 v200, v1, 2, 2
             v_lshl_add_u32 v199, v200, 8, v199
             v_xor_b32 v200, {sW}, v200
             v_lshl_add_u32 v199, v200, 6, v199
             v_bfe_u32 v200, v1, 4, 1
             v_lshl_add_u32 v199, v200, 5, v199
             v_and_b32 v200, 1, v1
             v_lshl_add_u32 v199, v200, 4, v199
             v_bfe_u32 v200, v1, 1, 1
             v_lshl_add_u32 v199, v200, 3, v199""")
        for q in range(4):
            p(f"""s_add_u32 {sT0}, {sW}, {q+4}
                 s_sub_u32 {sCc}, {sT0}, {sRQ}
                 s_and_b32 {sCc}, {sCc}, 3
                 s_lshl_b32 {sCc}, {sCc}, 15
                 v_add_u32 v{10+q}, {sCc}, v199
                 s_and_b32 {sT0}, {sT0}, 3
                 s_lshl_b32 {sT0}, {sT0}, 13
                 s_add_u32 {sT0}, {sT0}, 0x20000
                 v_add_u32 v{252+q}, {sT0}, v2""")
        self.stamp("B_prepoll")
        if o.get('padmin'):
            p(f"s_not_b32 s101, s100\nv_mov_b32 v14, s101\ns_mov_b64 exec, 1\nbuffer_atomic_umax v14, off, {DBG}, 0 offset:128 sc1\ns_mov_b64 exec, -1")
        self.spin("v15", "v196", "0", hex((1 << nsh) - 1) if nsh < 64 else "-1", str(256 // nsh), sleep=o.get('sleep1', 0))
        p("WAITALL vm\ns_barrier")
        self.stamp("B_sync1")
        for i in range(8):
            so = sT1 if i < 4 else sT2
            p(f"buffer_load_dwordx4 {v(48+8*i,4)}, v197, {WS}, {so} offen offset:{(i&3)*1024} sc1")
            p(f"buffer_load_dwordx4 {v(52+8*i,4)}, v197, {WS}, {so} offen offset:{(i&3)*1024+512} sc1")
            p(f"buffer_load_dwordx4 {a_(4*i,4)}, v2, {WS}, {sT3 if i < 4 else sT4} offen offset:{(i&3)*1024} sc1")
        p.extend(self.rloads())
        for i in range(32):
            p.extend(trpair(('a', 128 + 4 * i), f"v{10+(i>>3)}", (i & 7) * 4096, 1024))
        AH = 192
        for i in range(8):
            p(f"v_lshlrev_b32 v{AH+2*i}, 16, v{220+i}\nv_and_b32 v{AH+2*i+1}, {sMSKHI}, v{220+i}")
        p(f"""v_lshrrev_b32 v208, 3, v1
             v_mul_u32_u24 v208, 3584, v208
             v_and_b32 v209, 7, v1
             v_bfe_u32 v212, v1, 4, 1
             v_lshlrev_b32 v212, 2, v212
             v_xor_b32 v209, v209, v212
             v_lshl_add_u32 v6, v209, 4, v208
             v_xor_b32 v209, 2, v209
             v_lshl_add_u32 v10, v209, 4, v208""")
        for k in range(1, 4):
            p(f"v_add_u32 v{6+k}, {k*(8*3584-1024)}, v6\nv_add_u32 v{10+k}, {k*(8*3584-1024)}, v10")
        p(f"""s_mul_i32 {sA}, {sW}, {32*3584}
             s_lshl_b32 {sT0}, {sM}, 7
             s_add_u32 {sA}, {sA}, {sT0}
             s_lshl_b32 {sB}, {sW}, 12""")
        NA = [144, 160, 176]

        def cv(i):
            S = Seq()
            for k in range(4):
                S(f"v_cvt_pk_bf16_f32 v{112+4*i+k}, v{48+8*i+2*k}, v{48+8*i+2*k+1}")
            S.append(mf32(NA[i % 3], v(112 + 4 * i, 4), a_(4 * i, 4), "0"))
            return S

        def fin(i):
            n = NA[i % 3]
            S = Seq()
            S(f"v_add_f32 v{n+8}, {sEPS6}, v{n+8}\nv_rcp_f32 v{n+8}, v{n+8}")
            for k in range(8):
                S(f"v_mul_f32 v{n+k}, v{n+k}, v{n+8}")
            for k in range(4):
                S(f"v_cvt_pk_bf16_f32 v{48+4*i+k}, v{n+2*k}, v{n+2*k+1}")
            S(f"ds_write_b128 v252, {v(48+4*i,4)} offset:{i*1024}")
            return S
        p.extend(cv(0))
        p.extend(cv(1))
        for i in range(8):
            if i + 2 < 8:
                p.extend(cv(i + 2))
            p.extend(fin(i))
            if i >= 1:
                p.append(mf32(AH, a_(128 + 4 * (i - 1), 4), v(48 + 4 * (i - 1), 4)))
        self.stamp("B_st1")
        p("WAITALL lgkm\ns_barrier")

        def oread(i):
            return [Inst(f"ds_read_b128 {v(80+4*(i&7),4)}, v{252+(i>>3)} offset:{(i&7)*1024}")]
        for i in range(8, 12):
            p.extend(oread(i))
        p.append(mf32(AH, a_(128 + 28, 4), v(48 + 28, 4)))
        G = []
        for i in range(8, 32):
            g = [mf32(AH, a_(128 + 4 * i, 4), v(80 + 4 * (i & 7), 4))]
            if i + 4 < 32:
                g += oread(i + 4)
            G.append(g)
        G = weave(G, self.dmaW1(0) + self.dmaW1(1), 0, 16)
        p.extend(flat(G))
        p(f"""s_lshl_b32 {sT3}, {sTB}, 15
             s_lshl_b32 {sT4}, {sCB}, 2
             s_add_u32 {sT4}, {sT4}, {sW}
             s_lshl_b32 {sT1}, {sT4}, 11
             s_add_u32 {sT3}, {sT3}, {sT1}
             s_add_u32 {sT3}, {sT3}, {hex(HB)}
             s_lshl_b32 {sT1}, {sTB}, 12
             s_lshl_b32 {sT4}, {sT4}, 8
             s_add_u32 {sT4}, {sT4}, {sT1}
             s_add_u32 {sT4}, {sT4}, {hex(ST)}
             v_lshlrev_b32 v15, 2, v1""")
        for k in range(8):
            p(f"v_cvt_pk_bf16_f32 v{208+k}, v{AH+2*k}, v{AH+2*k+1}")
            if k == 3:
                p(f"buffer_store_dwordx4 v[208:211], v2, {WS}, {sT3} offen sc1", tag="pub2")
        p(f"buffer_store_dwordx4 v[212:215], v2, {WS}, {sT3} offen offset:1024 sc1", tag="pub2")
        p(f"v_add_f32 v216, v{AH}, v{AH+1}\nv_mul_f32 v217, v{AH}, v{AH}\nv_add_f32 v218, v{AH+2}, v{AH+3}\nv_mul_f32 v219, v{AH+1}, v{AH+1}")
        for k in range(2, 16):
            if k >= 4:
                p(f"v_add_f32 v{216+2*(k&1)}, v{216+2*(k&1)}, v{AH+k}")
            p(f"v_fmac_f32 v{217+2*(k&1)}, v{AH+k}, v{AH+k}")
        p("""v_add_f32 v216, v216, v218
             v_add_f32 v217, v217, v219
             v_permlane32_swap_b32 v216, v217
             v_add_f32 v216, v216, v217""")
        p(f"buffer_store_dword v216, v15, {WS}, {sT4} offen sc1", tag="pub2")
        self.stamp("B_hst")
        p.extend(flat(self.dmaW1(2) + self.dmaW1(3)))
        p(f"s_lshl_b32 {sD}, {sG}, 8\ns_add_u32 {sT3}, {sD}, {C_H*256}")
        p("WAITTAG pub2\ns_barrier")
        self.signal(sT3)
        self.stamp("B_sig")

    def phaseR(self):
        p = self.p
        RS = 0x20000
        p(f"""v_and_b32 v48, 7, v1
             v_bfe_u32 v49, v1, 4, 1
             v_lshlrev_b32 v49, 2, v49
             v_xor_b32 v48, v48, v49
             v_lshrrev_b32 v49, 3, v1
             v_lshlrev_b32 v49, 7, v49
             v_lshl_add_u32 v48, v48, 4, v49
             s_lshl_b32 {sT3}, {sW}, 11
             s_add_u32 {sT3}, {sT3}, {hex(RS)}
             v_add_u32 v48, {sT3}, v48
             v_xor_b32 v49, 32, v48
             ds_write_b128 v48, v[228:231]
             ds_write_b128 v48, v[232:235] offset:1024
             ds_write_b128 v49, v[236:239] offset:8192
             ds_write_b128 v49, v[240:243] offset:9216
             ds_write_b128 v48, v[244:247] offset:16384
             ds_write_b128 v48, v[248:251] offset:17408""")
        p.extend(flat(self.dmaW1(4) + self.dmaW1(5)))
        p(f"""v_lshrrev_b32 v50, 5, v1
             v_lshlrev_b32 v50, 10, v50
             v_bfe_u32 v51, v1, 2, 2
             v_lshl_add_u32 v50, v51, 7, v50
             v_and_b32 v51, 1, v1
             v_lshl_add_u32 v50, v51, 4, v50
             v_bfe_u32 v51, v1, 1, 1
             v_lshl_add_u32 v50, v51, 3, v50
             v_bfe_u32 v51, v1, 3, 1
             v_lshlrev_b32 v51, 1, v51
             v_bfe_u32 v52, v1, 4, 1
             v_xor_b32 v51, v51, v52
             v_lshl_add_u32 v53, v51, 5, v50
             v_lshl_add_u32 v42, v52, 16, v53
             v_xor_b32 v43, 32, v42
             v_xor_b32 v44, 64, v42
             v_xor_b32 v45, 96, v42
             s_lshl_b32 {sT4}, {sW}, 5
             v_xor_b32 v54, {sT4}, v53
             v_lshl_add_u32 v54, v52, 13, v54
             v_add_u32 v54, {hex(RS)}, v54
             v_add_u32 v55, {sT3}, v53
             v_xor_b32 v56, 64, v55""")
        p("WAITALL lgkm\ns_barrier")
        for s in range(4):
            p.extend(trpair(('v', 64 + 4 * s), "v54", s * 2048, 512))
        p.extend(trpair(('v', 80), "v55", 16384, 512))
        p.extend(trpair(('v', 84), "v56", 16384, 512))
        p(f"""s_lshl_b32 {sT1}, {sU}, 2
             s_add_u32 {sT1}, {sT1}, {sW}
             s_sub_u32 {sT2}, {sT1}, 64
             s_lshl_b32 {sT2}, {sT2}, 15
             s_lshl_b32 {sT3}, {sKC}, 12
             s_add_u32 {sT2}, {sT2}, {sT3}
             s_add_u32 {sT2}, {sT2}, {hex(W13R)}
             s_cmp_lt_u32 s2, 128
             s_cselect_b32 {sT2}, 0x7f000000, {sT2}
             s_mul_i32 {sT3}, {sKC}, {112*2048}
             s_lshl_b32 {sT4}, {sT1}, 11
             s_add_u32 {sT3}, {sT3}, {sT4}
             s_add_u32 {sT3}, {sT3}, {hex(W2R)}
             s_lshl_b32 {sT4}, {sT1}, 10
             s_lshr_b32 {sT1}, {sKC}, 2
             s_lshl_b32 {sT1}, {sT1}, 9
             s_add_u32 {sT4}, {sT4}, {sT1}
             s_and_b32 {sT1}, {sKC}, 3
             s_lshl_b32 {sT1}, {sT1}, 2
             s_add_u32 {sT4}, {sT4}, {sT1}
             s_add_u32 {sT4}, {sT4}, {hex(CS)}
             s_cmp_ge_u32 s2, 224
             s_cselect_b32 {sT2}, 0x7f000000, {sT2}
             s_cselect_b32 {sT3}, 0x7f000000, {sT3}
             s_cselect_b32 {sT4}, 0x7f000000, {sT4}
             v_mov_b32 v57, 0x00800000
             v_cndmask_b32 v57, v2, v57, {sHILANES}
             v_lshlrev_b32 v58, 4, v57
             v_cndmask_b32 v57, v57, v58, {sHILANES}""")
        for s in range(4):
            p.append(mf16(60, v(16, 4), v(64 + 4 * s, 4), "0" if s == 0 else None))
            p(f"buffer_store_dwordx4 {v(64+4*s,4)}, v2, {WS}, {sT2} offen offset:{s*1024} sc1", tag="pubR")
        p(f"buffer_store_dwordx4 v[80:83], v2, {WS}, {sT3} offen sc1", tag="pubR")
        p(f"buffer_store_dwordx4 v[84:87], v2, {WS}, {sT3} offen offset:1024 sc1", tag="pubR")
        p("""v_cvt_pk_bf16_f32 v58, v60, v60
             v_lshlrev_b32 v58, 16, v58
             v_sub_f32 v58, v60, v58
             v_cvt_pk_bf16_f32 v58, v60, v58""")
        p(f"buffer_store_dword v58, v57, {WS}, {sT4} offen sc1", tag="pubR")
        p.extend(flat(self.dmaW1(6) + self.dmaW1(7)))

    def signalR(self):
        p = self.p
        L = self.lab("sigR")
        p(f"""v_mov_b32 v14, 1
             s_add_u32 {sT0}, {sU}, {C_R13}
             s_add_u32 {sT1}, {sKC}, {C_R2}
             s_lshl_b32 {sT0}, {sT0}, 8
             s_lshl_b32 {sT1}, {sT1}, 8
             s_lshl_b32 {sT2}, {sW}, 8
             s_add_u32 {sT2}, {sT2}, s2
             s_cmp_ge_u32 {sT2}, 224
             s_cbranch_scc1 {L}""")
        p(f"""s_mov_b64 exec, 1
             buffer_atomic_add v14, off, {WS}, {sT0} sc1
             buffer_atomic_add v14, off, {WS}, {sT1} sc1
             s_mov_b64 exec, -1""", cond=True)
        p(f"{L}:")

    def phaseCD(self):
        p = self.p
        o = self.o
        sHB, sHS, sW2, sHL0, sHL1 = "s48", "s49", "s50", "s51", "s43"
        p(f"""s_lshl_b32 {sT0}, {sG}, 2
             s_add_u32 {sT0}, {sT0}, {sW}
             s_lshl_b32 {sHB}, {sT0}, 15
             s_add_u32 {sHB}, {sHB}, {hex(HB)}
             s_mul_i32 {sHS}, {sT0}, {112*1024}
             s_add_u32 {sHS}, {sHS}, {hex(HH)}
             s_lshl_b32 {sT4}, {sT0}, 12
             s_add_u32 {sT4}, {sT4}, {hex(ST)}
             s_add_u32 {sT3}, {sD}, {C_H*256}""")
        self.stamp("C_prepoll")
        self.spin("v14", None, sT3, "1", "16")
        p("WAITALL vm\ns_barrier")
        self.stamp("C_sync2")
        for s in range(32):
            if s % 4 == 0 and s:
                p(f"s_add_u32 {sHB}, {sHB}, 4096")
            p(f"buffer_load_dwordx4 {a_(4*s,4)}, v2, {WS}, {sHB} offen offset:{(s&3)*1024} sc1")
            if s == 7:
                self.signalR()
        ACC = [48, 64, 80, 96, 112]
        acc_of = [0, 1, 2, 3, 4, 0, 1]
        WR = 128
        CSF, MEANF, C1, C2 = 152, 180, 184, 185
        T = 186
        F0 = Seq()
        for k in range(16):
            F0(f"buffer_load_dword v{T+k}, v15, {WS}, {sT4} offen offset:{k*256} sc1")
        F1 = Seq()
        for st in (8, 4, 2, 1):
            for k in range(st):
                F1(f"v_add_f32 v{T+k}, v{T+k}, v{T+k+st}")
        F1(f"""v_mov_b32 v{T+1}, v{T}
             v_permlane32_swap_b32 v{T}, v{T+1}
             v_mul_f32 v{T}, 0x3b000000, v{T}
             v_mul_f32 v{T+1}, 0x3b000000, v{T+1}
             v_fma_f32 v{T+1}, -v{T}, v{T}, v{T+1}
             v_max_f32 v{T+1}, 0, v{T+1}
             v_add_f32 v{C2}, 0x3727c5ac, v{T+1}
             v_rsq_f32 v{C1}, v{C2}
             v_cvt_pk_bf16_f32 v{MEANF}, -v{T}, -v{T}
             v_mul_f32 v{C1}, 0xbfb8aa3b, v{C1}
             v_mov_b32 v{MEANF+1}, v{MEANF}
             v_mov_b32 v{MEANF+2}, v{MEANF}
             v_mov_b32 v{MEANF+3}, v{MEANF}""")
        F2 = Seq()
        F2(f"""s_mul_i32 {sT0}, {sM}, 3
             s_lshr_b32 {sT1}, {sT0}, 2
             s_add_u32 {sT1}, {sT1}, {C_R13+16}
             s_add_u32 {sT2}, {sT0}, 2
             s_lshr_b32 {sT2}, {sT2}, 2
             s_add_u32 {sT2}, {sT2}, {C_R13+16}
             s_add_u32 {sT0}, {sM}, {C_R13}
             s_and_b32 {sCB}, {sM}, 7
             s_add_u32 {sT3}, {sCB}, {C_R2}
             v_mov_b32 v210, {sT0}
             v_writelane_b32 v210, {sT1}, 1
             v_writelane_b32 v210, {sT2}, 2
             v_writelane_b32 v210, {sT3}, 3
             v_lshlrev_b32 v210, 8, v210
             v_mov_b32 v211, 8
             v_writelane_b32 v211, 28, 3""")
        F2(f"buffer_load_dword v212, v210, {WS}, 0 offen sc1")

        def g1reads(n):
            s, t = divmod(n, 3)
            return trpair(('v', WR + 4 * (n % 6)), f"v{42+t}", s * 2048, 512)
        G = []
        for n in range(96):
            s, t = divmod(n, 3)
            g = [mf32(ACC[t], v(WR + 4 * (n % 6), 4), a_(4 * s, 4), "0" if s == 0 else None)]
            if n + 4 < 96:
                g += g1reads(n + 4)
            else:
                g += trpair(('v', WR + 4 * ((n + 4) % 6)), "v45", (n + 4 - 96) * 2048, 512)
            G.append(g)
        for n in range(4):
            p.extend(g1reads(n))
        G = weave(G, list(F0), 24, 40)
        G = weave(G, list(F2), 40, 48)
        G = weave(G, list(F1), 48, 64)
        p.extend(flat(G[:64]))
        self.spin("v212", "v210", "0", "15", "v211", first_loaded=True, sleep=2)
        F3 = Seq()
        F3(f"s_lshl_b32 {sT0}, {sM}, 12\ns_add_u32 {sT0}, {sT0}, {hex(CS)}")
        for t in range(4):
            F3(f"buffer_load_dwordx4 {v(CSF+4*t,4)}, v2, {WS}, {sT0} offen offset:{t*1024} sc1")
        F3(f"s_mul_i32 {sT0}, {sM}, 3072\ns_add_u32 {sT0}, {sT0}, {hex(CS+64*1024)}")
        for t in range(3):
            F3(f"buffer_load_dwordx4 {v(CSF+16+4*t,4)}, v2, {WS}, {sT0} offen offset:{t*1024} sc1")
        F3(f"""s_mul_i32 {sA}, {sM}, {3*32768}
             s_lshl_b32 {sB}, {sW}, 13
             s_add_u32 {sA}, {sA}, {sB}
             s_add_u32 {sA}, {sA}, {hex(W13R)}""")

        def dmaT(t, ldsbase):
            g = []
            for h in range(2):
                S = Seq()
                S(f"s_add_u32 {sT0}, {sA}, {(t-4)*32768+h*4096}\ns_add_u32 m0, {sB}, {ldsbase+h*4096}")
                for k in range(4):
                    S(f"buffer_load_dwordx4 v2, {WS}, {sT0} offen offset:{k*1024} sc1 lds", tag=f"T{t}")
                    g.append(list(S))
                    S = Seq()
            return g
        steps = []
        for pr in range(4):
            for t in range(3):
                steps.append((0, 4 * pr + t))
        for pr in range(4):
            steps.append((0, 4 * pr + 3))
        for pr in range(4):
            steps.append((1, 3 * pr))
        for pr in range(4):
            for t in (1, 2):
                steps.append((1, 3 * pr + t))
        F4 = Seq()
        F4(f"""s_mul_i32 {sW2}, {sCB}, {112*2048}
             s_add_u32 {sW2}, {sW2}, {hex(W2R)}
             s_mul_i32 {sU}, {sW}, {12*2048}
             s_add_u32 {sU}, {sU}, {sW2}
             s_add_u32 {sU}, {sU}, {64*2048}
             s_lshl_b32 {sT0}, {sW}, 15
             s_add_u32 {sW2}, {sW2}, {sT0}
             s_and_b32 {sT0}, {sW}, 1
             s_lshl_b32 {sT0}, {sT0}, 10
             v_add_u32 v46, {sT0}, v2
             v_xor_b32 v47, 1024, v46""")
        w2l = []
        for i in range(16):
            kind, off = steps[i]
            assert kind == 0
            S = Seq()
            if off % 2 == 0 or i >= 12:
                S(f"s_add_u32 {sKC}, {sW2}, {(off & ~1)*2048}")
            S(f"buffer_load_dwordx4 {a_(128+8*i,4)}, v46, {WS}, {sKC} offen offset:{(off&1)*2048} sc1")
            w2l.append(list(S))
            w2l.append([Inst(f"buffer_load_dwordx4 {a_(132+8*i,4)}, v47, {WS}, {sKC} offen offset:{(off&1)*2048} sc1")])
        Gr = weave(G[64:], list(F3) + dmaT(4, 0x20000) + list(F4), 0, 30)
        p.extend(flat(Gr))
        for t in range(3):
            p.append(mf32(ACC[t], v(CSF + 4 * t, 4), v(MEANF, 4)))
        self.stamp("C_g1")

        def epi(t, tmp):
            A = ACC[acc_of[t]]
            S = Seq()
            for j in range(8):
                S(f"v_mul_f32 v{tmp+j}, v{A+j}, v{C1}")
            for j in range(8):
                S(f"v_exp_f32 v{tmp+j}, v{tmp+j}")
                S(f"v_mul_f32 v{A+j}, v{A+j}, v{A+8+j}")
            for j in range(8):
                S(f"v_fma_f32 v{tmp+j}, v{tmp+j}, v{C2}, v{C2}")
            for j in range(8):
                S(f"v_rcp_f32 v{tmp+j}, v{tmp+j}")
            for j in range(8):
                S(f"v_mul_f32 v{A+j}, v{A+j}, v{tmp+j}")
            for j in range(4):
                S(f"v_cvt_pk_bf16_f32 v{tmp+8+j}, v{A+2*j}, v{A+2*j+1}")
            if t < 4:
                S(f"s_lshl_b32 {sCc}, {sM}, 12\ns_add_u32 {sCc}, {sCc}, {sHS}")
                S(f"buffer_store_dwordx4 {v(tmp+8,4)}, v2, {WS}, {sCc} offen offset:{t*1024} sc1", tag=f"hh{t}")
            else:
                S(f"s_mul_i32 {sCc}, {sM}, 3072\ns_add_u32 {sCc}, {sCc}, {sHS}\ns_add_u32 {sCc}, {sCc}, 65536")
                S(f"buffer_store_dwordx4 {v(tmp+8,4)}, v2, {WS}, {sCc} offen offset:{(t-4)*1024} sc1", tag=f"hh{t}")
            return list(S)

        TB = {4: 0x20000, 5: 0, 6: 0x8000}
        p("v_add_u32 v41, 0x20000, v2")

        def tread(t, s, n):
            if t == 3:
                return trpair(('v', WR + 4 * (n % 6)), "v45", s * 2048, 512)
            if t == 4:
                return [Inst(f"ds_read_b128 {v(WR+4*(n%6),4)}, v41 offset:{s*1024}")]
            return [Inst(f"ds_read_b128 {v(WR+4*(n%6),4)}, v2 offset:{TB[t]+s*1024}")]

        def tilepass(t, n0, boundary):
            G = []
            for s in range(32):
                n = n0 + s
                g = [mf32(ACC[acc_of[t]], v(WR + 4 * (n % 6), 4), a_(4 * s, 4), "0" if s == 0 else None)]
                if s + 4 < 32:
                    g += tread(t, s + 4, n + 4)
                elif t < 6:
                    if s == 28:
                        g += boundary
                    g += tread(t + 1, s + 4 - 32, n + 4)
                G.append(g)
            G.append([mf32(ACC[acc_of[t]], v(CSF + 4 * t, 4), v(MEANF, 4))])
            return G

        def sub(fn):
            save = self.p
            self.p = Seq()
            fn()
            r = list(self.p)
            self.p = save
            return r

        def dmaW2(part):
            g = []
            rng = range(0, 4) if part == 0 else range(4, 6)
            for h in rng:
                S = Seq()
                if part == 0:
                    S(f"s_lshl_b32 {sT1}, {sW}, 14\ns_add_u32 m0, {sT1}, {0x10000+h*4096}")
                else:
                    S(f"s_add_u32 m0, {sB}, {0x20000+(h-4)*4096}")
                S(f"s_add_u32 {sT0}, {sU}, {h*4096}")
                for k in range(4):
                    S(f"buffer_load_dwordx4 v2, {WS}, {sT0} offen offset:{k*1024} sc1 lds", tag=f"W2L{part}")
                    g.append(list(S))
                    S = Seq()
            return g

        b3 = list(Seq()("WAITTAG T4\nWAITALL lgkm\ns_barrier"))
        G = tilepass(3, 96, b3)
        G = weave(G, epi(0, T) + epi(1, T + 12)[:26], 1, 33)
        G = weave(G, w2l[:16], 0, 28)
        p.extend(flat(G))
        self.stamp("C_t3")
        b4 = list(Seq()("WAITTAG T5\nWAITALL lgkm\ns_barrier"))
        G = tilepass(4, 128, b4)
        G = weave(G, epi(1, T + 12)[26:] + epi(2, T), 0, 24)
        G = weave(G, epi(3, T + 12)[:24], 24, 33)
        G = weave(G, dmaT(5, TB[5]) + dmaT(6, TB[6]), 0, 20)
        p.extend(flat(G))
        self.stamp("C_t4")
        def pub(tags, cnt):
            def f():
                self.p(f"s_add_u32 {sT3}, {sD}, {cnt*256}")
                self.p("WAITTAG " + " ".join(tags) + "\ns_barrier")
                self.signal(sT3)
            return sub(f)
        b5 = list(Seq()("WAITTAG T6\ns_barrier"))
        G = tilepass(5, 160, b5)
        G[6] += pub(["hh2"], C_P1)
        G = weave(G, epi(3, T + 12)[24:] + epi(4, T), 0, 28)
        G = weave(G, w2l[16:], 7, 28)
        p.extend(flat(G))
        self.stamp("C_t5")
        F5 = Seq()
        F5(f"""s_lshr_b32 {sT0}, {sM}, 3
             s_lshl_b32 {sT0}, {sT0}, 1
             s_lshl_b32 {sT1}, {sG}, 2
             s_add_u32 {sT0}, {sT0}, {sT1}
             s_lshr_b32 {sT1}, {sW}, 1
             s_add_u32 {sTB}, {sT0}, {sT1}
             s_mul_i32 {sHL0}, {sT0}, {112*1024}
             s_add_u32 {sHL0}, {sHL0}, {hex(HH)}
             s_mul_i32 {sHL1}, {sW}, {12*1024}
             s_add_u32 {sHL1}, {sHL1}, {sHL0}
             s_add_u32 {sHL1}, {sHL1}, 65536
             s_lshl_b32 {sT0}, {sW}, 14
             s_add_u32 {sHL0}, {sHL0}, {sT0}
             s_mul_i32 {sT0}, {sT1}, {112*1024}
             v_add_u32 v42, {sT0}, v2
             s_sub_u32 {sT0}, {112*1024}, {sT0}
             v_add_u32 v43, {sT0}, v2""")
        G = tilepass(6, 192, None)
        G[6] += pub(["hh4"], C_P2)
        G = weave(G, list(F5), 0, 5)
        G = weave(G, epi(5, T + 12), 3, 30)
        G = weave(G, dmaW2(0) + dmaW2(1), 7, 32)
        p.extend(flat(G))
        self.stamp("C_t6")
        p(f"s_add_u32 {sT3}, {sD}, {C_P1*256}")
        p(f"buffer_load_dword v212, off, {WS}, {sT3} sc1")
        p.extend(epi(6, T))
        self.spin("v212", None, sT3, "1", "16", first_loaded=True, sleep=1)
        self.stamp("C_end")

        def hhload(i):
            kind, off = steps[i]
            S = Seq()
            S(f"s_add_u32 {sKC}, {sHL1 if kind else sHL0}, {off*1024}")
            S(f"buffer_load_dwordx4 {a_(8*(i&15),4)}, v42, {WS}, {sKC} offen sc1")
            return [list(S), [Inst(f"buffer_load_dwordx4 {a_(8*(i&15)+4,4)}, v43, {WS}, {sKC} offen sc1")]]
        p(f"""s_lshl_b32 {sT0}, {sTB}, 15
             s_lshl_b32 {sT1}, {sCB}, 12
             s_add_u32 {sT0}, {sT0}, {sT1}
             s_and_b32 {sT1}, {sW}, 1
             s_lshl_b32 {sT1}, {sT1}, 11
             s_add_u32 {sT0}, {sT0}, {sT1}
             s_add_u32 {sT0}, {sT0}, {hex(HB)}""")
        for i in range(4):
            p.extend(flat(hhload(i)))
        p(f"s_add_u32 {sT3}, {sD}, {C_P3*256}")
        p("WAITTAG hh6\ns_barrier")
        self.signal(sT3)
        p(f"buffer_load_dwordx4 v[152:155], v2, {WS}, {sT0} offen sc1")
        p(f"buffer_load_dwordx4 v[156:159], v2, {WS}, {sT0} offen offset:1024 sc1")
        p(f"s_add_u32 {sT3}, {sD}, {C_P2*256}")
        p(f"buffer_load_dword v212, off, {WS}, {sT3} sc1")
        p(f"""s_lshl_b32 {sT1}, {sW}, 14
             s_add_u32 {sT1}, {sT1}, 0x10000
             v_add_u32 v44, {sT1}, v46
             v_add_u32 v45, {sT1}, v47
             s_add_u32 {sT1}, {sB}, 0x20000
             v_add_u32 v46, {sT1}, v46
             v_add_u32 v47, {sT1}, v47""")
        DA = [48, 64, 80, 96]

        def w2read(i):
            off = steps[i][1]
            r = []
            for a in range(2):
                d = v(WR + 8 * (i % 3) + 4 * a, 4)
                if off < 8:
                    r.append(Inst(f"ds_read_b128 {d}, v{44+a} offset:{off*2048}"))
                else:
                    r.append(Inst(f"ds_read_b128 {d}, v{46+a} offset:{(off-8)*2048}"))
            return r

        def w2f(i, a):
            return a_(128 + 8 * i + 4 * a, 4) if i < 16 else v(WR + 8 * (i % 3) + 4 * a, 4)
        LA = o.get('dla', 6)
        for i in range(4, LA):
            p.extend(flat(hhload(i)))
        for i in range(28):
            nxt = i + LA
            ld = []
            if nxt < 28:
                if nxt == 12:
                    self.spin("v212", None, sT3, "1", "16", first_loaded=True, sleep=1)
                if nxt == 16:
                    p(f"s_add_u32 {sT3}, {sD}, {C_P3*256}")
                    p(f"buffer_load_dword v212, off, {WS}, {sT3} sc1")
                if nxt == 20:
                    self.spin("v212", None, sT3, "1", "16", first_loaded=True, sleep=1)
                ld = hhload(nxt)
            if i == 14:
                p("WAITTAG W2L0 W2L1")
            order = [(1, 0), (1, 1), (0, 1), (0, 0)]
            for k, (a, b) in enumerate(order):
                z = "0" if i == 0 else None
                p.append(mf32(DA[a + 2 * b], w2f(i, a), a_(8 * (i & 15) + 4 * b, 4), z))
                if k in (0, 2) and ld:
                    p.extend(ld.pop(0))
                if k == 1 and 16 <= i + 2 < 28:
                    p.extend(w2read(i + 2))
        self.stamp("D_loop")
        for k in (1, 3, 2):
            p(f"""s_xor_b32 {sT0}, {sW}, {k}
                 s_mul_i32 {sT0}, {sT0}, 12288
                 v_add_u32 v{40+k}, {sT0}, v2""")
        for k in (1, 3, 2):
            for q in range(4):
                p(f"ds_write_b128 v{40+k}, {v(DA[k]+4*q,4)} offset:{(k-1)*4096+q*1024}")
        p(f"""s_mul_i32 {sT0}, {sW}, 12288
             v_add_u32 v40, {sT0}, v2
             s_lshl_b32 {sT0}, {sTB}, 15
             s_lshl_b32 {sT1}, {sCB}, 7
             s_add_u32 {sT0}, {sT0}, {sT1}
             s_and_b32 {sT1}, {sW}, 1
             s_lshl_b32 {sT1}, {sT1}, 6
             s_add_u32 {sT0}, {sT0}, {sT1}""")
        for i in range(8):
            p(f"""v_lshlrev_b32 v{112+2*i}, 16, v{152+i}
                 v_and_b32 v{113+2*i}, {sMSKHI}, v{152+i}""")
        for i in range(16):
            p(f"v_add_f32 v{48+i}, v{48+i}, v{112+i}")
        p("WAITALL lgkm\ns_barrier")
        for q in range(4):
            for k in range(3):
                p(f"ds_read_b128 {v(160+16*k+4*q,4)}, v40 offset:{k*4096+q*1024}")
        for q in range(4):
            for j in range(4):
                r = 4 * q + j
                p(f"v_add_f32 v{48+r}, v{48+r}, v{160+r}")
                p(f"v_add_f32 v{176+r}, v{176+r}, v{192+r}")
            for j in range(4):
                r = 4 * q + j
                p(f"v_add_f32 v{48+r}, v{48+r}, v{176+r}")
            for j in range(2):
                p(f"v_cvt_pk_bf16_f32 v{112+2*q+j}, v{48+4*q+2*j}, v{48+4*q+2*j+1}")
            if q & 1:
                p(f"buffer_store_dwordx4 {v(112+4*(q>>1),4)}, v5, {OUT}, {sT0} offen offset:{32*(q>>1)}" + ["", " sc1", " nt", " sc0 sc1"][o.get('outst', 0)])
        self.stamp("D_end")

    def finish(self):
        p = self.p
        if self.o.get('stamps'):
            p("WAITALL vm")
            self.stamp("drained")
            p(f"""s_lshl_b32 {sT0}, s2, 2
                 s_add_u32 {sT0}, {sT0}, {sW}
                 s_lshl_b32 {sT0}, {sT0}, 7
                 s_add_u32 {sT0}, {sT0}, {hex(STAMP)}
                 s_mov_b64 exec, 1""")
            for i in range(self.nstamp):
                p(f"v_mov_b32 v14, s{STAMP0+i}\nbuffer_store_dword v14, off, {WS}, {sT0} offset:{4*i}")
        if self.o.get('padto'):
            p("WAITALL vm")
            if self.o.get('padmin'):
                p(f"buffer_load_dword v14, off, {DBG}, 0 offset:128 sc1\nv_not_b32 v14, v14\nv_readfirstlane_b32 s100, v14")
            p("L_pad:\ns_memrealtime s[72:73]\ns_waitcnt lgkmcnt(0)\ns_sub_u32 s72, s72, s100")
            p(f"s_cmp_lt_u32 s72, {self.o['padto']}\ns_cbranch_scc1 L_pad")
        p("L_end:\ns_endpgm")

    def build(self):
        if self.o.get('stamps') or self.o.get('padto'):
            self.p("s_memrealtime s[100:101]")
        self.setup()
        self.phaseA_wrap()
        self.phaseB()
        self.phaseR()
        self.phaseCD()
        self.finish()
        prog = finalize(self.p)
        return prog

    def phaseA_wrap(self):
        if self.o.get('stamps'):
            self.p(f"s_mov_b32 s{STAMP0}, s100")
            self.nstamp = 1
            self.stamp_names.append("start")
        self.phaseA()


def emit(opt):
    g = Gen(opt)
    prog = g.build()
    hdr = open(os.path.join(os.path.dirname(os.path.abspath(__file__)), "header.txt")).read()
    body = "\n".join(("" if i.kind == 'label' else "    ") + i.text for i in prog)
    txt = hdr + f"""; @launch grid=(256,1,1) block=(256,1,1) lds=163840
.amdgcn_target "amdgcn-amd-amdhsa--gfx950"
.set CODE_PF_MAX, {opt.get('code_bytes', 0)}
.text
.globl {NAME}_kernel
.p2align 8
.type {NAME}_kernel,@function
{NAME}_kernel:
{body}
.section .rodata,"a"
.p2align 6
.amdhsa_kernel {NAME}_kernel
  .amdhsa_next_free_vgpr 512
  .amdhsa_next_free_sgpr 102
  .amdhsa_accum_offset 256
  .amdhsa_group_segment_fixed_size 0
  .amdhsa_kernarg_size 80
  .amdhsa_user_sgpr_count 2
  .amdhsa_user_sgpr_kernarg_segment_ptr 1
  .amdhsa_system_sgpr_workgroup_id_x 1
.end_amdhsa_kernel
"""
    return txt, g.stamp_names


def code_size(txt):
    import subprocess, tempfile
    with tempfile.TemporaryDirectory() as d:
        open(d + "/k.s", "w").write(txt)
        r = subprocess.run(["clang", "-x", "assembler", "-target", "amdgcn-amd-amdhsa",
                            "-mcpu=gfx950", "-c", d + "/k.s", "-o", d + "/k.o"], capture_output=True, text=True)
        if r.returncode:
            print("\n".join(r.stderr.split("\n")[:30]))
            raise SystemExit(1)
        r = subprocess.run(["llvm-objdump", "-h", d + "/k.o"], capture_output=True, text=True)
        for line in r.stdout.split("\n"):
            f = line.split()
            if len(f) > 2 and f[1] == ".text":
                return int(f[2], 16)


def main():
    opt = {}
    out = None
    for a in sys.argv[1:]:
        if '=' in a:
            k, val = a.split('=')
            opt[k] = int(val, 0)
        else:
            out = a
    opt['code_bytes'] = 4096
    txt, names = emit(opt)
    sz = code_size(txt)
    opt['code_bytes'] = (sz - 1024) & ~3
    txt, names = emit(opt)
    open(out, "w").write(txt)
    if names:
        open(out + ".names", "w").write(" ".join(names))
    print(out, "code bytes", sz, "lines", txt.count("\n"), "stamps", len(names))


if __name__ == "__main__":
    main()
```

```python
import sys, os
sys.path.insert(0, os.path.dirname(os.path.abspath(__file__)))
from dsl import *

NAME = "sequential_preLN__linear_attn_block__glu_gated_swiglu__prompt"

CNT = 0
KVM = 0x10000
ZP = 0x18000
ST = 0x20000
CS = 0x60000
STAMP = 0x80000
PQ = 0x100000
HB = 0x300000
HH = 0x500000
W13R = 0xC00000
W2R = 0x1000000
WS_SIZE = 0x1200000
C_KV, C_H, C_P1, C_P2, C_P3, C_R13, C_R2 = 0, 64, 80, 96, 112, 128, 160

X, WQKV, WO, W1, W3, W2, OUT, WS, DBG = [f"s[{a}:{a+3}]" for a in range(4, 40, 4)]
sW, sG, sM, sC0, sT0, sT1, sT2, sT3 = "s40", "s41", "s42", "s43", "s44", "s45", "s46", "s47"
sXB, sWB, sXL, sWL, sTB, sCB, sRQ, sLOG2E = "s48", "s49", "s50", "s51", "s52", "s53", "s54", "s55"
sU, sKC, sT4, sT5, sMSKHI, sEPS6 = "s56", "s57", "s58", "s59", "s60", "s61"
sHILANES = "s[62:63]"
sB4LANES = "s[64:65]"
sA, sB, sCc, sD = "s66", "s67", "s68", "s69"
STAMP0 = 74


def v(a, n=1):
    return f"v{a}" if n == 1 else f"v[{a}:{a+n-1}]"


def a_(a, n=1):
    return f"a{a}" if n == 1 else f"a[{a}:{a+n-1}]"


def mf32(d, A, B, c=None):
    return Inst(f"v_mfma_f32_32x32x16_bf16 {v(d,16)}, {A}, {B}, {v(d,16) if c is None else c}")


def mf16(d, A, B, c=None):
    return Inst(f"v_mfma_f32_16x16x32_bf16 {v(d,4)}, {A}, {B}, {v(d,4) if c is None else c}")


def mf4(d, A, B, c=None):
    return Inst(f"v_mfma_f32_4x4x4_16b_bf16 {v(d,4)}, {A}, {B}, {v(d,4) if c is None else c}")


def trpair(dst, addr, off, step):
    k, b = dst
    return [Inst(f"ds_read_b64_tr_b16 {k}[{b}:{b+1}], {addr} offset:{off}"),
            Inst(f"ds_read_b64_tr_b16 {k}[{b+2}:{b+3}], {addr} offset:{off+step}")]


class Gen:
    def __init__(self, opt):
        self.o = opt
        self.p = Seq()
        self.nl = 0
        self.nstamp = 0
        self.stamp_names = []

    def lab(self, s):
        self.nl += 1
        return f"L_{s}_{self.nl}"

    def stamp(self, name):
        if self.o.get('padat') == name:
            self.p("WAITALL lgkm\ns_memrealtime s[100:101]\nWAITALL lgkm")
        if not self.o.get('stamps'):
            return
        p = self.p
        p("WAITALL lgkm")
        p("s_memrealtime s[72:73]")
        p("WAITALL lgkm")
        p(f"s_mov_b32 s{STAMP0+self.nstamp}, s72")
        self.nstamp += 1
        self.stamp_names.append(name)

    def signal(self, soff, vone="v14"):
        p = self.p
        L = self.lab("sig")
        p(f"v_mov_b32 {vone}, 1")
        p(f"s_cmp_lg_u32 {sW}, 0")
        p(f"s_cbranch_scc1 {L}")
        p(f"""s_mov_b64 exec, 1
             buffer_atomic_add {vone}, off, {WS}, {soff} sc1
             s_mov_b64 exec, -1""", cond=True)
        p(f"{L}:")

    def spin(self, vt, vaddr, soff, mask, vtarget, srd=WS, first_loaded=False, wave0=True, sleep=0):
        p = self.p
        Ld, Lp = self.lab("pd"), self.lab("pl")
        addr = f"{vaddr}, {srd}, {soff} offen" if vaddr else f"off, {srd}, {soff}"
        if first_loaded:
            p(f"v_cmp_gt_u32 vcc, {vtarget}, {vt}")
            p(f"s_and_b64 vcc, vcc, {mask}")
            p(f"s_cbranch_scc0 {Ld}")
        elif wave0:
            p(f"s_cmp_lg_u32 {sW}, 0")
            p(f"s_cbranch_scc1 {Ld}")
        p(f"s_mov_b32 {sT5}, 0", cond=True)
        p(f"s_mov_b64 exec, {mask}", cond=True)
        p(f"{Lp}:")
        if sleep:
            p(f"s_sleep {sleep}", cond=True)
        p(f"""buffer_load_dword {vt}, {addr} sc1
             s_add_u32 {sT5}, {sT5}, 1
             s_waitcnt vmcnt(0)
             v_cmp_gt_u32 vcc, {vtarget}, {vt}
             s_cmp_ge_u32 {sT5}, 0x8000
             s_cselect_b64 vcc, 0, vcc
             s_cmp_lg_u64 vcc, 0
             s_cbranch_scc1 {Lp}
             s_mov_b64 exec, -1""", cond=True)
        p(f"{Ld}:")

    def setup(self):
        p = self.p
        p(f"""s_cmp_ge_u32 s2, 256
             s_cbranch_scc1 L_end
             s_load_dwordx16 s[76:91], s[0:1], 0
             s_load_dwordx4 s[92:95], s[0:1], 64""")
        p("v_and_b32 v1, 63, v0\nv_lshrrev_b32 v14, 6, v0")
        p(f"v_readfirstlane_b32 {sW}, v14")
        for srd, sz in ((4, 0x200000), (8, 0x180000), (12, 0x80000), (16, 0x1C0000), (20, 0x1C0000),
                        (24, 0x1C0000), (28, 0x200000), (32, WS_SIZE), (36, 256)):
            p(f"s_mov_b32 s{srd+2}, {hex(sz)}\ns_mov_b32 s{srd+3}, 0x20000")
        p(f"""s_lshr_b32 {sT0}, s2, 3
             s_and_b32 {sRQ}, {sT0}, 3
             s_and_b32 {sG}, s2, 6
             s_lshl_b32 {sG}, {sG}, 1
             s_add_u32 {sG}, {sG}, {sRQ}
             s_lshr_b32 {sT1}, s2, 5
             s_and_b32 {sM}, s2, 1
             s_lshl_b32 {sM}, {sM}, 3
             s_add_u32 {sM}, {sM}, {sT1}
             s_lshl_b32 {sC0}, {sRQ}, 1
             s_add_u32 {sC0}, {sC0}, {sT1}
             s_lshl_b32 {sXB}, {sG}, 17
             s_lshl_b32 {sT0}, {sW}, 15
             s_add_u32 {sXB}, {sXB}, {sT0}
             s_mul_i32 {sWB}, {sW}, {16*3072}
             s_lshl_b32 {sT0}, {sM}, 6
             s_add_u32 {sWB}, {sWB}, {sT0}
             s_lshl_b32 {sXL}, {sW}, 14
             s_lshl_b32 {sWL}, {sW}, 11
             s_add_u32 {sWL}, {sWL}, 0x10000""")
        p("v_lshlrev_b32 v2, 4, v1")
        p("""v_lshrrev_b32 v14, 3, v1
             v_lshlrev_b32 v14, 10, v14
             v_and_b32 v15, 7, v1
             v_lshrrev_b32 v3, 4, v1
             v_xor_b32 v15, v15, v3
             v_lshl_add_u32 v6, v15, 4, v14
             v_xor_b32 v7, 64, v6
             v_add_u32 v7, 7168, v7
             v_add_u32 v8, 14336, v6
             v_add_u32 v9, 14336, v7""")
        p("""v_lshrrev_b32 v14, 2, v1
             v_mul_u32_u24 v14, 3072, v14
             v_and_b32 v15, 3, v1
             v_lshl_add_u32 v5, v15, 4, v14""")
        p("WAITALL lgkm")
        for srd, src in ((4, 76), (8, 78)):
            p(f"s_mov_b32 s{srd}, s{src}\ns_mov_b32 s{srd+1}, s{src+1}")

    def setup_late(self):
        p = self.p
        for srd, src in ((12, 80), (16, 84), (20, 86), (24, 88), (28, 90), (36, 92), (32, 94)):
            p(f"s_mov_b32 s{srd}, s{src}\ns_mov_b32 s{srd+1}, s{src+1}")

    def dmaA(self, c):
        S = Seq()
        S(f"""s_add_u32 {sT0}, {sC0}, {c}
             s_and_b32 {sT0}, {sT0}, 7
             s_mul_i32 {sT1}, {sT0}, {64*3072}
             s_add_u32 {sT1}, {sT1}, {sWB}
             s_add_u32 {sT1}, {sT1}, 1024
             s_add_u32 m0, {sWL}, {(c&3)*8192}
             s_lshl_b32 {sT0}, {sT0}, 7""")
        S(f"buffer_load_dwordx4 v5, {WQKV}, {sT1} offen lds", tag=f"A{c}")
        g = [list(S)]
        g.append([Inst(f"buffer_load_dwordx4 v5, {WQKV}, {sT1} offen offset:1024 lds", tag=f"A{c}")])
        S = Seq()
        S(f"s_add_u32 m0, {sXL}, {(c&3)*4096}\ns_add_u32 {sT0}, {sT0}, {sXB}")
        S(f"buffer_load_dwordx4 v6, {X}, {sT0} offen lds", tag=f"A{c}")
        g.append(list(S))
        for i in range(1, 4):
            g.append([Inst(f"buffer_load_dwordx4 v{6+i}, {X}, {sT0} offen offset:{i*1024} lds", tag=f"A{c}")])
        return g

    def dmaQ(self, c):
        S = Seq()
        S(f"""s_add_u32 {sT0}, {sC0}, {c}
             s_and_b32 {sT0}, {sT0}, 7
             s_mul_i32 {sT1}, {sT0}, {64*3072}
             s_add_u32 m0, {sT2}, {c*4096}
             s_add_u32 {sT1}, {sT1}, {sWB}""")
        S(f"buffer_load_dwordx4 v5, {WQKV}, {sT1} offen lds", tag=f"Q{c}")
        return list(S)

    def dmaWO(self, q):
        S = Seq()
        b, i = q >> 2, q & 3
        S(f"""s_add_u32 {sT0}, {sA}, {(256*b+16*i)*1024}
             s_and_b32 {sT0}, {sT0}, 0x7ffff
             s_add_u32 m0, {sXL}, {b*65536+i*4096}
             s_add_u32 {sT0}, {sT0}, {sB}""")
        g = []
        for k in range(4):
            S(f"buffer_load_dwordx4 v{6+k}, {WO}, {sT0} offen offset:{k*1024} lds", tag=f"WO{q}")
            g.append(list(S))
            S = Seq()
        return g

    def phaseA(self):
        p = self.p
        o = self.o
        for g in self.dmaA(0):
            p.extend(g)
        self.setup_late()
        Lz = self.lab("z")
        p(f"""v_mov_b32 v16, 0
             v_mov_b32 v17, 0
             v_mov_b32 v18, 0
             v_mov_b32 v19, 0
             s_sub_u32 {sT3}, s2, 224
             s_lshl_b32 {sT4}, {sT3}, 10
             s_mul_i32 {sT3}, {sT3}, 1536
             v_and_b32 v14, 1, v1
             v_lshlrev_b32 v14, 4, v14
             v_bfe_u32 v15, v1, 1, 1
             v_lshl_add_u32 v14, v15, 9, v14
             v_add_u32 v14, {hex(ZP)}, v14
             v_add_u32 v14, {sT4}, v14
             v_lshlrev_b32 v15, 8, v1
             v_add_u32 v15, {sT3}, v15
             v_subrev_u32 v15, 1024, v15
             v_cmp_gt_u32 vcc, 4, v1
             v_cndmask_b32 v14, v15, v14, vcc
             s_add_u32 {sT4}, {sT4}, {hex(KVM)}
             s_lshl_b32 {sD}, {sW}, 8
             s_add_u32 {sD}, {sD}, 224
             s_cmp_lt_u32 s2, {sD}
             s_cbranch_scc1 {Lz}""")
        p(f"""buffer_store_dwordx4 v[16:19], v2, {WS}, {sT4} offen sc1
             s_mov_b64 exec, 0x3ff
             buffer_store_dwordx4 v[16:19], v14, {WS}, 0 offen sc1
             s_mov_b64 exec, -1""", cond=True)
        p(f"{Lz}:")
        for g in self.dmaA(1):
            p.extend(g)
        if o.get('codepf', 1):
            p(f"""s_getpc_b64 s[70:71]
                 s_lshr_b32 {sT0}, s2, 3
                 s_lshl_b32 {sT0}, {sT0}, 2
                 s_add_u32 {sT0}, {sT0}, {sW}
                 s_lshl_b32 {sT0}, {sT0}, 9
                 v_and_b32 v14, 3, v1
                 v_lshlrev_b32 v14, 7, v14
                 v_add_u32 v14, {sT0}, v14
                 v_min_u32 v14, CODE_PF_MAX, v14
                 global_load_dword v15, v14, s[70:71]""")
        p(f"""s_mov_b32 {sLOG2E}, 0x3fb8aa3b
             s_mov_b32 {sMSKHI}, 0xffff0000
             s_mov_b32 {sEPS6}, 0x358637bd
             s_mov_b32 s62, 0
             s_mov_b32 s63, -1
             s_mov_b32 s64, 0xffff0000
             s_mov_b32 s65, 0xffff0000""")
        p(f"""v_and_b32 v20, 31, v1
             v_lshrrev_b32 v21, 5, v1
             v_bfe_u32 v22, v1, 1, 3
             v_xor_b32 v21, v21, v22
             v_lshlrev_b32 v21, 4, v21
             v_lshl_add_u32 v21, v20, 7, v21
             v_add_u32 v10, {sXL}, v21
             v_xor_b32 v11, 32, v10
             v_xor_b32 v12, 64, v10
             v_xor_b32 v13, 96, v10""")
        p("""v_lshrrev_b32 v20, 5, v1
             v_lshlrev_b32 v20, 9, v20
             v_bfe_u32 v21, v1, 2, 2
             v_lshl_add_u32 v20, v21, 6, v20
             v_bfe_u32 v21, v1, 4, 1
             v_lshl_add_u32 v20, v21, 5, v20
             v_add_u32 v20, 0x10000, v20
             v_and_b32 v21, 3, v1
             v_lshl_add_u32 v3, v21, 3, v20
             v_and_b32 v21, 1, v1
             v_lshl_add_u32 v4, v21, 4, v20
             v_bfe_u32 v21, v1, 1, 1
             v_lshl_add_u32 v4, v21, 3, v4""")
        p("""v_and_b32 v24, 3, v1
             v_lshrrev_b32 v25, 2, v1
             v_lshrrev_b32 v26, 4, v1
             v_xor_b32 v25, v25, v26
             v_and_b32 v25, 1, v25
             v_or_b32 v24, v24, v25
             v_cmp_eq_u32 vcc, 0, v24
             v_mov_b32 v20, 0x3f803f80
             v_mov_b32 v21, 0x3f803f80
             v_mov_b32 v22, 0x3f803f80
             v_mov_b32 v23, 0x3f803f80
             v_cndmask_b32 v16, 0, v20, vcc
             v_cndmask_b32 v17, 0, v20, vcc
             v_cndmask_b32 v18, 0, v20, vcc
             v_cndmask_b32 v19, 0, v20, vcc""")
        for b in (160, 164, 168, 172, 176):
            for k in (1, 2, 3):
                p(f"v_mov_b32 v{b+k}, 0")
        SEL, ONES = v(16, 4), v(20, 4)
        XS, XQ, CK, CV, CQ, ZA = 24, 28, 32, 36, 40, 44
        AK, AV, AQ, RB, AKV = 48, 64, 80, 96, 112

        def reads(s):
            c, j = s >> 2, s & 3
            r = [Inst(f"ds_read_b128 {a_(4*s,4)}, v{10+j} offset:{(c&3)*4096}")]
            base = (c & 3) * 8192 + j * 2048
            r += trpair(('v', 128 + 8 * (s & 1)), "v3", base, 256)
            r += trpair(('v', 132 + 8 * (s & 1)), "v4", base + 1024, 256)
            return r

        self.stamp("A_issued")
        p("WAITTAG A0\ns_barrier")
        self.stamp("A_c0")
        Lz = self.lab("z2")
        p(f"v_mov_b32 v14, 1\ns_cmp_lt_u32 s2, {sD}\ns_cbranch_scc1 {Lz}")
        p(f"""s_waitcnt vmcnt({6 + (1 if o.get('codepf',1) else 0)})
             s_mov_b64 exec, 1
             buffer_atomic_add v14, off, {DBG}, 0 sc1
             s_mov_b64 exec, -1""", cond=True)
        p(f"{Lz}:")
        p.extend(reads(0))
        p(f"s_lshl_b32 {sT2}, {sW}, 10\ns_add_u32 {sT2}, {sT2}, 0x18000")
        pend = self.dmaA(2)
        for s in range(32):
            c, j = s >> 2, s & 3
            xf = a_(4 * s, 4)
            kf, vf = v(128 + 8 * (s & 1), 4), v(132 + 8 * (s & 1), 4)
            z = "0" if s == 0 else None
            p.append(mf32(AK, xf, kf, z))
            if s < 31:
                if j == 3:
                    p(f"WAITTAG A{c+1}\ns_barrier")
                    assert not pend
                    if c + 3 < 8:
                        pend = self.dmaA(c + 3)
                    elif c + 3 == 8:
                        pend = [self.dmaQ(k) for k in range(0, 4)]
                        pend.append([Inst(f"buffer_load_dword v15, off, {DBG}, 0 sc1")])
                    else:
                        pend = [self.dmaQ(k) for k in range(4, 8)]
                p.extend(reads(s + 1))
            p.append(mf32(AV, xf, vf, z))
            for _ in range(2):
                if pend and not (j == 3 and _ == 1):
                    p.extend(pend.pop(0))
            p.append(mf4(XQ, a_(4 * s, 2), a_(4 * s, 2), z))
            p.append(mf16(XS, SEL, xf, z))
            p.append(mf16(CK, SEL, kf, z))
            p.append(mf4(XQ, a_(4 * s + 2, 2), a_(4 * s + 2, 2)))
            p.append(mf16(CV, SEL, vf, z))
        assert not pend
        self.stamp("A_loop")
        p(f"""s_lshr_b32 {sTB}, {sM}, 2
             s_lshl_b32 {sT0}, {sG}, 2
             s_add_u32 {sTB}, {sTB}, {sT0}
             s_and_b32 {sCB}, {sM}, 3
             s_lshl_b32 {sA}, {sRQ}, 17
             s_lshl_b32 {sT0}, {sW}, 16
             s_add_u32 {sA}, {sA}, {sT0}
             s_lshl_b32 {sB}, {sCB}, 8""")
        E = Seq()
        E("""v_lshrrev_b32 v196, 4, v1
             v_bfe_u32 v197, v1, 2, 2
             v_xor_b32 v197, v197, v196
             v_lshlrev_b32 v197, 6, v197
             v_lshl_add_u32 v197, v196, 10, v197
             v_and_b32 v196, 3, v1
             v_lshl_add_u32 v6, v196, 4, v197
             v_add_u32 v7, 3072, v6
             v_add_u32 v8, 6144, v6
             v_add_u32 v9, 9216, v6""")
        E(f"""v_and_b32 v196, 3, v1
             v_cmp_eq_u32 vcc, 1, v196
             v_cndmask_b32 v197, v{XQ}, v{XQ+1}, vcc
             v_cmp_eq_u32 vcc, 2, v196
             v_cndmask_b32 v197, v197, v{XQ+2}, vcc
             v_cmp_eq_u32 vcc, 3, v196
             v_cndmask_b32 v197, v197, v{XQ+3}, vcc
             v_mov_b32 v198, v197
             v_mul_f32 v199, 0x3b000000, v{XS}
             v_permlane32_swap_b32 v197, v198
             v_add_f32 v197, v197, v198
             v_mul_f32 v197, 0x3b000000, v197
             v_fma_f32 v197, -v199, v199, v197
             v_max_f32 v197, 0, v197
             v_add_f32 v197, 0x3727c5ac, v197
             v_rsq_f32 v14, v197
             v_cvt_pk_bf16_f32 v198, -v199, -v199
             v_cndmask_b32 v160, v198, 0, {sHILANES}""")

        def split2(dst, src, t):
            return Seq()(f"""v_cvt_pk_bf16_f32 v{t}, v{src}, v{src}
                 v_lshlrev_b32 v{t}, 16, v{t}
                 v_sub_f32 v{t}, v{src}, v{t}
                 v_cvt_pk_bf16_f32 v{dst}, v{src}, v{t}""")
        E.extend(split2(164, CK, 198))
        E.extend(split2(168, CV, 199))
        E.extend(split2(176, 14, 198))
        E(f"v_cndmask_b32 v176, v176, 0, {sHILANES}")
        E.append(mf32(AK, v(160, 4), v(164, 4)))
        E.append(mf32(RB, v(176, 4), ONES, "0"))
        E.append(mf32(AV, v(160, 4), v(168, 4)))

        def phi(acc, scale, T, dst):
            S = Seq()
            for h in range(2):
                r = range(8 * h, 8 * h + 8)
                for i in r:
                    S(f"v_fma_f32 v{acc+i}, v{acc+i}, {scale(i)}, {sEPS6}")
                for i in r:
                    S(f"v_mul_f32 v{T+i}, {sLOG2E}, v{acc+i}")
                for i in r:
                    S(f"v_exp_f32_e64 v{T+i}, v{T+i} clamp")
                for i in r:
                    S(f"v_max_f32 v{acc+i}, {sEPS6}, v{acc+i}")
                for i in r:
                    S(f"v_add_f32 v{acc+i}, v{acc+i}, v{T+i}")
                for i in range(4 * h, 4 * h + 4):
                    S(f"v_cvt_pk_bf16_f32 v{dst+i}, v{acc+2*i}, v{acc+2*i+1}")
            return S
        E2 = Seq()
        E2.extend(phi(AK, lambda i: f"v{RB+i}", 196, 180))
        for i in range(16):
            E2(f"v_mul_f32 v{AV+i}, v{AV+i}, v{RB+i}")
        for i in range(8):
            E2(f"v_cvt_pk_bf16_f32 v{188+i}, v{AV+2*i}, v{AV+2*i+1}")
        E2(f"""v_bfe_u32 v212, v1, 4, 1
             v_lshlrev_b32 v212, 10, v212
             v_lshrrev_b32 v213, 5, v1
             v_lshl_add_u32 v212, v213, 9, v212
             v_and_b32 v213, 15, v1
             v_lshl_add_u32 v212, v213, 4, v212
             v_add_u32 v212, {sWL}, v212
             v_and_b32 v213, 31, v1
             v_lshlrev_b32 v213, 2, v213
             s_lshl_b32 {sT3}, {sW}, 7
             s_add_u32 {sT3}, {sT3}, 0x12000
             v_add_u32 v213, {sT3}, v213""")
        def qreads(s):
            return trpair(('v', 144 + 4 * (s & 3)), "v4", 0x8000 + s * 1024, 256)
        Q = []
        for s in range(32):
            g = Seq()
            qf = v(144 + 4 * (s & 3), 4)
            z = "0" if s == 0 else None
            g.append(mf32(AQ, qf, a_(4 * s, 4), z))
            if s + 2 < 32:
                if s + 2 == 16:
                    g("WAITTAG Q7\ns_barrier")
                g.extend(qreads(s + 2))
            g.append(mf16(CQ, SEL, qf, z))
            Q.append(g)
        p.extend(E)
        p("WAITTAG Q3\ns_barrier")
        p.extend(qreads(0) + qreads(1))
        nq1 = o.get('nq1', 22)
        Qw = weave(Q, list(E2), 0, nq1)
        fw = self.dmaWO(0)
        for k in range(4):
            Qw[15 + k] += fw[k]
        p.extend(flat(Qw[:nq1]))
        p.append(mf32(AKV, v(180, 4), v(188, 4), "0"))
        p.append(mf16(ZA, SEL, v(180, 4), "0"))
        p.append(mf32(AKV, v(184, 4), v(192, 4)))
        p.append(mf16(ZA, SEL, v(184, 4)))
        rest = Qw[nq1:]
        p.extend(flat(rest[:3]))
        S = Seq()
        for i in range(8):
            S(f"v_cndmask_b32 v{196+i}, v{AKV+i}, v{AKV+8+i}, {sB4LANES}")
        S(f"""ds_write_b128 v212, v[196:199]
             ds_write_b128 v212, v[200:203] offset:256
             ds_write_b32 v213, v{ZA}""")
        S(f"""v_lshlrev_b32 v204, 2, v0
             v_add_u32 v205, 0x10000, v204
             v_and_b32 v206, 7, v1
             s_lshl_b32 {sT3}, {sW}, 5
             s_add_u32 {sT3}, {sT3}, 0x12000
             v_lshl_add_u32 v206, v206, 2, {sT3}
             v_and_b32 v207, 3, v1
             v_lshlrev_b32 v207, 2, v207
             v_bfe_u32 v208, v1, 2, 1
             v_lshl_add_u32 v207, v208, 9, v207
             v_cmp_gt_u32 vcc, 8, v1
             v_mov_b32 v208, 0x7ffffff0
             v_cndmask_b32 v207, v208, v207, vcc
             s_lshl_b32 {sT3}, {sM}, 11
             s_add_u32 {sT3}, {sT3}, {hex(KVM)}
             s_lshr_b32 {sT4}, {sW}, 1
             s_lshl_b32 {sT4}, {sT4}, 10
             s_add_u32 {sT4}, {sT4}, {sT3}
             s_and_b32 {sCc}, {sW}, 1
             s_lshl_b32 {sCc}, {sCc}, 4
             s_add_u32 {sT4}, {sT4}, {sCc}
             s_add_u32 {sT4}, {sT4}, {hex(ZP-KVM)}""")
        p.extend(flat(weave(rest[3:], list(S))))
        self.spin("v15", None, "0", "1", "32", srd=DBG, first_loaded=True, sleep=4)
        p("WAITALL lgkm\ns_barrier")
        for k in range(4):
            p(f"ds_read2st64_b32 v[{112+2*k}:{113+2*k}], v205 offset0:{8*k} offset1:{8*k+4}")
        p("ds_read2_b32 v[120:121], v206 offset0:0 offset1:32")
        p("ds_read2_b32 v[122:123], v206 offset0:64 offset1:96")
        p.extend(split2(172, CQ, 198))
        p.append(mf32(AQ, v(172, 4), v(160, 4)))
        p("""v_add_f32 v112, v112, v114
             v_add_f32 v113, v113, v115
             v_add_f32 v116, v116, v118
             v_add_f32 v117, v117, v119
             v_add_f32 v112, v112, v116
             v_add_f32 v113, v113, v117""")
        p(f"buffer_atomic_add_f32 v112, v204, {WS}, {sT3} offen", tag="pub1")
        p(f"buffer_atomic_add_f32 v113, v204, {WS}, {sT3} offen offset:1024", tag="pub1")
        p("""v_add_f32 v120, v120, v121
             v_add_f32 v122, v122, v123
             v_add_f32 v120, v120, v122""")
        p(f"buffer_atomic_add_f32 v120, v207, {WS}, {sT4} offen", tag="pub1")
        self.stamp("A_kvatom")
        p(f"""s_lshl_b32 {sT3}, {sG}, 2
             s_add_u32 {sT3}, {sT3}, {sW}
             s_lshl_b32 {sT3}, {sT3}, 15
             s_lshl_b32 {sT4}, {sM}, 11
             s_add_u32 {sT3}, {sT3}, {sT4}
             s_add_u32 {sT3}, {sT3}, {hex(PQ)}""")
        ph = phi(AQ, lambda i: "v14", 196, 212)
        h = len(ph) // 2
        p.extend(ph[:h])
        p(f"buffer_store_dwordx4 v[212:215], v2, {WS}, {sT3} offen sc1", tag="pub1")
        p.extend(ph[h:])
        p(f"buffer_store_dwordx4 v[216:219], v2, {WS}, {sT3} offen offset:1024 sc1", tag="pub1")
        self.stamp("A_pqst")
        for q in (1, 2):
            p.extend(flat(self.dmaWO(q)))
        nsh = o.get('nsh', 16)
        p(f"s_and_b32 {sT3}, s2, {nsh-1}\ns_lshl_b32 {sT3}, {sT3}, 8")
        p("WAITTAG pub1\ns_barrier")
        self.signal(sT3)
        self.stamp("A_sig")
        for q in range(3, 8):
            p.extend(flat(self.dmaWO(q)))
        p(f"""v_and_b32 v196, 31, v1
             v_lshrrev_b32 v197, 5, v1
             v_lshlrev_b32 v197, 4, v197
             v_lshl_add_u32 v5, v196, 10, v197
             s_lshl_b32 {sT3}, {sTB}, 15
             s_lshl_b32 {sT4}, {sW}, 6
             s_add_u32 {sT3}, {sT3}, {sT4}
             s_add_u32 {sT3}, {sT3}, {sB}
             buffer_load_dwordx4 v[220:223], v5, {X}, {sT3} offen
             buffer_load_dwordx4 v[224:227], v5, {X}, {sT3} offen offset:32""")

    def rloads(self):
        S = Seq()
        S(f"""s_lshr_b32 {sU}, s2, 3
             s_and_b32 {sKC}, s2, 7
             v_lshrrev_b32 v208, 3, v1
             v_and_b32 v209, 7, v1
             v_lshlrev_b32 v209, 4, v209
             v_mul_u32_u24 v210, 3584, v208
             v_add_u32 v210, v210, v209
             v_lshl_add_u32 v211, v208, 10, v209
             s_lshl_b32 {sT0}, {sKC}, 2
             s_add_u32 {sT0}, {sT0}, {sW}
             s_mul_i32 {sT0}, {sT0}, {16*3584}
             s_lshl_b32 {sT1}, {sU}, 7
             s_add_u32 {sT0}, {sT0}, {sT1}
             s_cmp_ge_u32 s2, 224
             s_cselect_b32 {sT0}, 0x7f000000, {sT0}
             s_add_u32 {sT1}, {sT0}, {8*3584}
             buffer_load_dwordx4 v[228:231], v210, {W1}, {sT0} offen
             buffer_load_dwordx4 v[232:235], v210, {W1}, {sT1} offen
             buffer_load_dwordx4 v[236:239], v210, {W3}, {sT0} offen
             buffer_load_dwordx4 v[240:243], v210, {W3}, {sT1} offen
             s_lshl_b32 {sT0}, {sU}, 2
             s_add_u32 {sT0}, {sT0}, {sW}
             s_lshl_b32 {sT0}, {sT0}, 14
             s_lshl_b32 {sT1}, {sKC}, 7
             s_add_u32 {sT0}, {sT0}, {sT1}
             s_add_u32 {sT1}, {sT0}, 8192
             buffer_load_dwordx4 v[244:247], v211, {W2}, {sT0} offen
             buffer_load_dwordx4 v[248:251], v211, {W2}, {sT1} offen""")
        return S

    def dmaW1(self, q):
        mat, kq = q & 1, q >> 1
        S = Seq()
        S(f"""s_add_u32 {sT0}, {sA}, {kq*128*3584}
             s_add_u32 m0, {sB}, {mat*65536 + kq*16384}""")
        g = []
        for k in range(4):
            S(f"buffer_load_dwordx4 v{(6 if mat == 0 else 10)+k}, {W3 if mat else W1}, {sT0} offen offset:{k*1024} lds", tag=f"W1_{q}")
            g.append(list(S))
            S = Seq()
        return g

    def phaseB(self):
        p = self.p
        o = self.o
        nsh = o.get('nsh', 16)
        p(f"""v_lshlrev_b32 v196, 8, v1
             v_lshrrev_b32 v197, 5, v1
             v_and_b32 v198, 15, v1
             v_lshl_add_u32 v198, v197, 4, v198
             v_lshlrev_b32 v198, 4, v198
             v_lshlrev_b32 v197, 4, v197
             v_add_u32 v197, {hex(ZP-KVM)}, v197
             v_cndmask_b32 v197, v198, v197, {sB4LANES}
             s_lshl_b32 {sT3}, {sW}, 13
             s_add_u32 {sT1}, {sT3}, {hex(KVM)}
             s_add_u32 {sT2}, {sT1}, 4096
             s_lshl_b32 {sT4}, {sTB}, 15
             s_add_u32 {sT3}, {sT3}, {sT4}
             s_add_u32 {sT3}, {sT3}, {hex(PQ)}
             s_add_u32 {sT4}, {sT3}, 4096""")
        p(f"""v_lshrrev_b32 v199, 5, v1
             v_lshlrev_b32 v199, 11, v199
             v_bfe_u32 v200, v1, 2, 2
             v_lshl_add_u32 v199, v200, 8, v199
             v_xor_b32 v200, {sW}, v200
             v_lshl_add_u32 v199, v200, 6, v199
             v_bfe_u32 v200, v1, 4, 1
             v_lshl_add_u32 v199, v200, 5, v199
             v_and_b32 v200, 1, v1
             v_lshl_add_u32 v199, v200, 4, v199
             v_bfe_u32 v200, v1, 1, 1
             v_lshl_add_u32 v199, v200, 3, v199""")
        for q in range(4):
            p(f"""s_add_u32 {sT0}, {sW}, {q+4}
                 s_sub_u32 {sCc}, {sT0}, {sRQ}
                 s_and_b32 {sCc}, {sCc}, 3
                 s_lshl_b32 {sCc}, {sCc}, 15
                 v_add_u32 v{10+q}, {sCc}, v199
                 s_and_b32 {sT0}, {sT0}, 3
                 s_lshl_b32 {sT0}, {sT0}, 13
                 s_add_u32 {sT0}, {sT0}, 0x20000
                 v_add_u32 v{252+q}, {sT0}, v2""")
        self.stamp("B_prepoll")
        if o.get('padmin'):
            p(f"s_not_b32 s101, s100\nv_mov_b32 v14, s101\ns_mov_b64 exec, 1\nbuffer_atomic_umax v14, off, {DBG}, 0 offset:128 sc1\ns_mov_b64 exec, -1")
        self.spin("v15", "v196", "0", hex((1 << nsh) - 1) if nsh < 64 else "-1", str(256 // nsh), sleep=o.get('sleep1', 0))
        p("WAITALL vm\ns_barrier")
        self.stamp("B_sync1")
        for i in range(8):
            so = sT1 if i < 4 else sT2
            p(f"buffer_load_dwordx4 {v(48+8*i,4)}, v197, {WS}, {so} offen offset:{(i&3)*1024} sc1")
            p(f"buffer_load_dwordx4 {v(52+8*i,4)}, v197, {WS}, {so} offen offset:{(i&3)*1024+512} sc1")
            p(f"buffer_load_dwordx4 {a_(4*i,4)}, v2, {WS}, {sT3 if i < 4 else sT4} offen offset:{(i&3)*1024} sc1")
        p.extend(self.rloads())
        for i in range(32):
            p.extend(trpair(('a', 128 + 4 * i), f"v{10+(i>>3)}", (i & 7) * 4096, 1024))
        AH = 192
        for i in range(8):
            p(f"v_lshlrev_b32 v{AH+2*i}, 16, v{220+i}\nv_and_b32 v{AH+2*i+1}, {sMSKHI}, v{220+i}")
        p(f"""v_lshrrev_b32 v208, 3, v1
             v_mul_u32_u24 v208, 3584, v208
             v_and_b32 v209, 7, v1
             v_bfe_u32 v212, v1, 4, 1
             v_lshlrev_b32 v212, 2, v212
             v_xor_b32 v209, v209, v212
             v_lshl_add_u32 v6, v209, 4, v208
             v_xor_b32 v209, 2, v209
             v_lshl_add_u32 v10, v209, 4, v208""")
        for k in range(1, 4):
            p(f"v_add_u32 v{6+k}, {k*(8*3584-1024)}, v6\nv_add_u32 v{10+k}, {k*(8*3584-1024)}, v10")
        p(f"""s_mul_i32 {sA}, {sW}, {32*3584}
             s_lshl_b32 {sT0}, {sM}, 7
             s_add_u32 {sA}, {sA}, {sT0}
             s_lshl_b32 {sB}, {sW}, 12""")
        NA = [144, 160, 176]

        def cv(i):
            S = Seq()
            for k in range(4):
                S(f"v_cvt_pk_bf16_f32 v{112+4*i+k}, v{48+8*i+2*k}, v{48+8*i+2*k+1}")
            S.append(mf32(NA[i % 3], v(112 + 4 * i, 4), a_(4 * i, 4), "0"))
            return S

        def fin(i):
            n = NA[i % 3]
            S = Seq()
            S(f"v_add_f32 v{n+8}, {sEPS6}, v{n+8}\nv_rcp_f32 v{n+8}, v{n+8}")
            for k in range(8):
                S(f"v_mul_f32 v{n+k}, v{n+k}, v{n+8}")
            for k in range(4):
                S(f"v_cvt_pk_bf16_f32 v{48+4*i+k}, v{n+2*k}, v{n+2*k+1}")
            S(f"ds_write_b128 v252, {v(48+4*i,4)} offset:{i*1024}")
            return S
        p.extend(cv(0))
        p.extend(cv(1))
        for i in range(8):
            if i + 2 < 8:
                p.extend(cv(i + 2))
            p.extend(fin(i))
            if i >= 1:
                p.append(mf32(AH, a_(128 + 4 * (i - 1), 4), v(48 + 4 * (i - 1), 4)))
        self.stamp("B_st1")
        p("WAITALL lgkm\ns_barrier")

        def oread(i):
            return [Inst(f"ds_read_b128 {v(80+4*(i&7),4)}, v{252+(i>>3)} offset:{(i&7)*1024}")]
        for i in range(8, 12):
            p.extend(oread(i))
        p.append(mf32(AH, a_(128 + 28, 4), v(48 + 28, 4)))
        G = []
        for i in range(8, 32):
            g = [mf32(AH, a_(128 + 4 * i, 4), v(80 + 4 * (i & 7), 4))]
            if i + 4 < 32:
                g += oread(i + 4)
            G.append(g)
        G = weave(G, self.dmaW1(0) + self.dmaW1(1), 0, 16)
        p.extend(flat(G))
        p(f"""s_lshl_b32 {sT3}, {sTB}, 15
             s_lshl_b32 {sT4}, {sCB}, 2
             s_add_u32 {sT4}, {sT4}, {sW}
             s_lshl_b32 {sT1}, {sT4}, 11
             s_add_u32 {sT3}, {sT3}, {sT1}
             s_add_u32 {sT3}, {sT3}, {hex(HB)}
             s_lshl_b32 {sT1}, {sTB}, 12
             s_lshl_b32 {sT4}, {sT4}, 8
             s_add_u32 {sT4}, {sT4}, {sT1}
             s_add_u32 {sT4}, {sT4}, {hex(ST)}
             v_lshlrev_b32 v15, 2, v1""")
        for k in range(8):
            p(f"v_cvt_pk_bf16_f32 v{208+k}, v{AH+2*k}, v{AH+2*k+1}")
            if k == 3:
                p(f"buffer_store_dwordx4 v[208:211], v2, {WS}, {sT3} offen sc1", tag="pub2")
        p(f"buffer_store_dwordx4 v[212:215], v2, {WS}, {sT3} offen offset:1024 sc1", tag="pub2")
        p(f"v_add_f32 v216, v{AH}, v{AH+1}\nv_mul_f32 v217, v{AH}, v{AH}\nv_add_f32 v218, v{AH+2}, v{AH+3}\nv_mul_f32 v219, v{AH+1}, v{AH+1}")
        for k in range(2, 16):
            if k >= 4:
                p(f"v_add_f32 v{216+2*(k&1)}, v{216+2*(k&1)}, v{AH+k}")
            p(f"v_fmac_f32 v{217+2*(k&1)}, v{AH+k}, v{AH+k}")
        p("""v_add_f32 v216, v216, v218
             v_add_f32 v217, v217, v219
             v_permlane32_swap_b32 v216, v217
             v_add_f32 v216, v216, v217""")
        p(f"buffer_store_dword v216, v15, {WS}, {sT4} offen sc1", tag="pub2")
        self.stamp("B_hst")
        p.extend(flat(self.dmaW1(2) + self.dmaW1(3)))
        p(f"s_lshl_b32 {sD}, {sG}, 8\ns_add_u32 {sT3}, {sD}, {C_H*256}")
        p("WAITTAG pub2\ns_barrier")
        self.signal(sT3)
        self.stamp("B_sig")

    def phaseR(self):
        p = self.p
        RS = 0x20000
        p(f"""v_and_b32 v48, 7, v1
             v_bfe_u32 v49, v1, 4, 1
             v_lshlrev_b32 v49, 2, v49
             v_xor_b32 v48, v48, v49
             v_lshrrev_b32 v49, 3, v1
             v_lshlrev_b32 v49, 7, v49
             v_lshl_add_u32 v48, v48, 4, v49
             s_lshl_b32 {sT3}, {sW}, 11
             s_add_u32 {sT3}, {sT3}, {hex(RS)}
             v_add_u32 v48, {sT3}, v48
             v_xor_b32 v49, 32, v48
             ds_write_b128 v48, v[228:231]
             ds_write_b128 v48, v[232:235] offset:1024
             ds_write_b128 v49, v[236:239] offset:8192
             ds_write_b128 v49, v[240:243] offset:9216
             ds_write_b128 v48, v[244:247] offset:16384
             ds_write_b128 v48, v[248:251] offset:17408""")
        p.extend(flat(self.dmaW1(4) + self.dmaW1(5)))
        p(f"""v_lshrrev_b32 v50, 5, v1
             v_lshlrev_b32 v50, 10, v50
             v_bfe_u32 v51, v1, 2, 2
             v_lshl_add_u32 v50, v51, 7, v50
             v_and_b32 v51, 1, v1
             v_lshl_add_u32 v50, v51, 4, v50
             v_bfe_u32 v51, v1, 1, 1
             v_lshl_add_u32 v50, v51, 3, v50
             v_bfe_u32 v51, v1, 3, 1
             v_lshlrev_b32 v51, 1, v51
             v_bfe_u32 v52, v1, 4, 1
             v_xor_b32 v51, v51, v52
             v_lshl_add_u32 v53, v51, 5, v50
             v_lshl_add_u32 v42, v52, 16, v53
             v_xor_b32 v43, 32, v42
             v_xor_b32 v44, 64, v42
             v_xor_b32 v45, 96, v42
             s_lshl_b32 {sT4}, {sW}, 5
             v_xor_b32 v54, {sT4}, v53
             v_lshl_add_u32 v54, v52, 13, v54
             v_add_u32 v54, {hex(RS)}, v54
             v_add_u32 v55, {sT3}, v53
             v_xor_b32 v56, 64, v55""")
        p("WAITALL lgkm\ns_barrier")
        for s in range(4):
            p.extend(trpair(('v', 64 + 4 * s), "v54", s * 2048, 512))
        p.extend(trpair(('v', 80), "v55", 16384, 512))
        p.extend(trpair(('v', 84), "v56", 16384, 512))
        p(f"""s_lshl_b32 {sT1}, {sU}, 2
             s_add_u32 {sT1}, {sT1}, {sW}
             s_sub_u32 {sT2}, {sT1}, 64
             s_lshl_b32 {sT2}, {sT2}, 15
             s_lshl_b32 {sT3}, {sKC}, 12
             s_add_u32 {sT2}, {sT2}, {sT3}
             s_add_u32 {sT2}, {sT2}, {hex(W13R)}
             s_cmp_lt_u32 s2, 128
             s_cselect_b32 {sT2}, 0x7f000000, {sT2}
             s_mul_i32 {sT3}, {sKC}, {112*2048}
             s_lshl_b32 {sT4}, {sT1}, 11
             s_add_u32 {sT3}, {sT3}, {sT4}
             s_add_u32 {sT3}, {sT3}, {hex(W2R)}
             s_lshl_b32 {sT4}, {sT1}, 10
             s_lshr_b32 {sT1}, {sKC}, 2
             s_lshl_b32 {sT1}, {sT1}, 9
             s_add_u32 {sT4}, {sT4}, {sT1}
             s_and_b32 {sT1}, {sKC}, 3
             s_lshl_b32 {sT1}, {sT1}, 2
             s_add_u32 {sT4}, {sT4}, {sT1}
             s_add_u32 {sT4}, {sT4}, {hex(CS)}
             s_cmp_ge_u32 s2, 224
             s_cselect_b32 {sT2}, 0x7f000000, {sT2}
             s_cselect_b32 {sT3}, 0x7f000000, {sT3}
             s_cselect_b32 {sT4}, 0x7f000000, {sT4}
             v_mov_b32 v57, 0x00800000
             v_cndmask_b32 v57, v2, v57, {sHILANES}
             v_lshlrev_b32 v58, 4, v57
             v_cndmask_b32 v57, v57, v58, {sHILANES}""")
        for s in range(4):
            p.append(mf16(60, v(16, 4), v(64 + 4 * s, 4), "0" if s == 0 else None))
            p(f"buffer_store_dwordx4 {v(64+4*s,4)}, v2, {WS}, {sT2} offen offset:{s*1024} sc1", tag="pubR")
        p(f"buffer_store_dwordx4 v[80:83], v2, {WS}, {sT3} offen sc1", tag="pubR")
        p(f"buffer_store_dwordx4 v[84:87], v2, {WS}, {sT3} offen offset:1024 sc1", tag="pubR")
        p("""v_cvt_pk_bf16_f32 v58, v60, v60
             v_lshlrev_b32 v58, 16, v58
             v_sub_f32 v58, v60, v58
             v_cvt_pk_bf16_f32 v58, v60, v58""")
        p(f"buffer_store_dword v58, v57, {WS}, {sT4} offen sc1", tag="pubR")
        p.extend(flat(self.dmaW1(6) + self.dmaW1(7)))

    def signalR(self):
        p = self.p
        L = self.lab("sigR")
        p(f"""v_mov_b32 v14, 1
             s_add_u32 {sT0}, {sU}, {C_R13}
             s_add_u32 {sT1}, {sKC}, {C_R2}
             s_lshl_b32 {sT0}, {sT0}, 8
             s_lshl_b32 {sT1}, {sT1}, 8
             s_lshl_b32 {sT2}, {sW}, 8
             s_add_u32 {sT2}, {sT2}, s2
             s_cmp_ge_u32 {sT2}, 224
             s_cbranch_scc1 {L}""")
        p(f"""s_mov_b64 exec, 1
             buffer_atomic_add v14, off, {WS}, {sT0} sc1
             buffer_atomic_add v14, off, {WS}, {sT1} sc1
             s_mov_b64 exec, -1""", cond=True)
        p(f"{L}:")

    def phaseCD(self):
        p = self.p
        o = self.o
        sHB, sHS, sW2, sHL0, sHL1 = "s48", "s49", "s50", "s51", "s43"
        p(f"""s_lshl_b32 {sT0}, {sG}, 2
             s_add_u32 {sT0}, {sT0}, {sW}
             s_lshl_b32 {sHB}, {sT0}, 15
             s_add_u32 {sHB}, {sHB}, {hex(HB)}
             s_mul_i32 {sHS}, {sT0}, {112*1024}
             s_add_u32 {sHS}, {sHS}, {hex(HH)}
             s_lshl_b32 {sT4}, {sT0}, 12
             s_add_u32 {sT4}, {sT4}, {hex(ST)}
             s_add_u32 {sT3}, {sD}, {C_H*256}""")
        self.stamp("C_prepoll")
        self.spin("v14", None, sT3, "1", "16")
        p("WAITALL vm\ns_barrier")
        self.stamp("C_sync2")
        for s in range(32):
            if s % 4 == 0 and s:
                p(f"s_add_u32 {sHB}, {sHB}, 4096")
            p(f"buffer_load_dwordx4 {a_(4*s,4)}, v2, {WS}, {sHB} offen offset:{(s&3)*1024} sc1")
            if s == 7:
                self.signalR()
        ACC = [48, 64, 80, 96, 112]
        acc_of = [0, 1, 2, 3, 4, 0, 1]
        WR = 128
        CSF, MEANF, C1, C2 = 152, 180, 184, 185
        T = 186
        F0 = Seq()
        for k in range(16):
            F0(f"buffer_load_dword v{T+k}, v15, {WS}, {sT4} offen offset:{k*256} sc1")
        F1 = Seq()
        for st in (8, 4, 2, 1):
            for k in range(st):
                F1(f"v_add_f32 v{T+k}, v{T+k}, v{T+k+st}")
        F1(f"""v_mov_b32 v{T+1}, v{T}
             v_permlane32_swap_b32 v{T}, v{T+1}
             v_mul_f32 v{T}, 0x3b000000, v{T}
             v_mul_f32 v{T+1}, 0x3b000000, v{T+1}
             v_fma_f32 v{T+1}, -v{T}, v{T}, v{T+1}
             v_max_f32 v{T+1}, 0, v{T+1}
             v_add_f32 v{C2}, 0x3727c5ac, v{T+1}
             v_rsq_f32 v{C1}, v{C2}
             v_cvt_pk_bf16_f32 v{MEANF}, -v{T}, -v{T}
             v_mul_f32 v{C1}, 0xbfb8aa3b, v{C1}
             v_mov_b32 v{MEANF+1}, v{MEANF}
             v_mov_b32 v{MEANF+2}, v{MEANF}
             v_mov_b32 v{MEANF+3}, v{MEANF}""")
        F2 = Seq()
        F2(f"""s_mul_i32 {sT0}, {sM}, 3
             s_lshr_b32 {sT1}, {sT0}, 2
             s_add_u32 {sT1}, {sT1}, {C_R13+16}
             s_add_u32 {sT2}, {sT0}, 2
             s_lshr_b32 {sT2}, {sT2}, 2
             s_add_u32 {sT2}, {sT2}, {C_R13+16}
             s_add_u32 {sT0}, {sM}, {C_R13}
             s_and_b32 {sCB}, {sM}, 7
             s_add_u32 {sT3}, {sCB}, {C_R2}
             v_mov_b32 v210, {sT0}
             v_writelane_b32 v210, {sT1}, 1
             v_writelane_b32 v210, {sT2}, 2
             v_writelane_b32 v210, {sT3}, 3
             v_lshlrev_b32 v210, 8, v210
             v_mov_b32 v211, 8
             v_writelane_b32 v211, 28, 3""")
        F2(f"buffer_load_dword v212, v210, {WS}, 0 offen sc1")

        def g1reads(n):
            s, t = divmod(n, 3)
            return trpair(('v', WR + 4 * (n % 6)), f"v{42+t}", s * 2048, 512)
        G = []
        for n in range(96):
            s, t = divmod(n, 3)
            g = [mf32(ACC[t], v(WR + 4 * (n % 6), 4), a_(4 * s, 4), "0" if s == 0 else None)]
            if n + 4 < 96:
                g += g1reads(n + 4)
            else:
                g += trpair(('v', WR + 4 * ((n + 4) % 6)), "v45", (n + 4 - 96) * 2048, 512)
            G.append(g)
        for n in range(4):
            p.extend(g1reads(n))
        G = weave(G, list(F0), 24, 40)
        G = weave(G, list(F2), 40, 48)
        G = weave(G, list(F1), 48, 64)
        p.extend(flat(G[:64]))
        self.spin("v212", "v210", "0", "15", "v211", first_loaded=True, sleep=2)
        F3 = Seq()
        F3(f"s_lshl_b32 {sT0}, {sM}, 12\ns_add_u32 {sT0}, {sT0}, {hex(CS)}")
        for t in range(4):
            F3(f"buffer_load_dwordx4 {v(CSF+4*t,4)}, v2, {WS}, {sT0} offen offset:{t*1024} sc1")
        F3(f"s_mul_i32 {sT0}, {sM}, 3072\ns_add_u32 {sT0}, {sT0}, {hex(CS+64*1024)}")
        for t in range(3):
            F3(f"buffer_load_dwordx4 {v(CSF+16+4*t,4)}, v2, {WS}, {sT0} offen offset:{t*1024} sc1")
        F3(f"""s_mul_i32 {sA}, {sM}, {3*32768}
             s_lshl_b32 {sB}, {sW}, 13
             s_add_u32 {sA}, {sA}, {sB}
             s_add_u32 {sA}, {sA}, {hex(W13R)}""")

        def dmaT(t, ldsbase):
            g = []
            for h in range(2):
                S = Seq()
                S(f"s_add_u32 {sT0}, {sA}, {(t-4)*32768+h*4096}\ns_add_u32 m0, {sB}, {ldsbase+h*4096}")
                for k in range(4):
                    S(f"buffer_load_dwordx4 v2, {WS}, {sT0} offen offset:{k*1024} sc1 lds", tag=f"T{t}")
                    g.append(list(S))
                    S = Seq()
            return g
        steps = []
        for pr in range(4):
            for t in range(3):
                steps.append((0, 4 * pr + t))
        for pr in range(4):
            steps.append((0, 4 * pr + 3))
        for pr in range(4):
            steps.append((1, 3 * pr))
        for pr in range(4):
            for t in (1, 2):
                steps.append((1, 3 * pr + t))
        F4 = Seq()
        F4(f"""s_mul_i32 {sW2}, {sCB}, {112*2048}
             s_add_u32 {sW2}, {sW2}, {hex(W2R)}
             s_mul_i32 {sU}, {sW}, {12*2048}
             s_add_u32 {sU}, {sU}, {sW2}
             s_add_u32 {sU}, {sU}, {64*2048}
             s_lshl_b32 {sT0}, {sW}, 15
             s_add_u32 {sW2}, {sW2}, {sT0}
             s_and_b32 {sT0}, {sW}, 1
             s_lshl_b32 {sT0}, {sT0}, 10
             v_add_u32 v46, {sT0}, v2
             v_xor_b32 v47, 1024, v46""")
        w2l = []
        for i in range(16):
            kind, off = steps[i]
            assert kind == 0
            S = Seq()
            if off % 2 == 0 or i >= 12:
                S(f"s_add_u32 {sKC}, {sW2}, {(off & ~1)*2048}")
            S(f"buffer_load_dwordx4 {a_(128+8*i,4)}, v46, {WS}, {sKC} offen offset:{(off&1)*2048} sc1")
            w2l.append(list(S))
            w2l.append([Inst(f"buffer_load_dwordx4 {a_(132+8*i,4)}, v47, {WS}, {sKC} offen offset:{(off&1)*2048} sc1")])
        Gr = weave(G[64:], list(F3) + dmaT(4, 0x20000) + list(F4), 0, 30)
        p.extend(flat(Gr))
        for t in range(3):
            p.append(mf32(ACC[t], v(CSF + 4 * t, 4), v(MEANF, 4)))
        self.stamp("C_g1")

        def epi(t, tmp):
            A = ACC[acc_of[t]]
            S = Seq()
            for j in range(8):
                S(f"v_mul_f32 v{tmp+j}, v{A+j}, v{C1}")
            for j in range(8):
                S(f"v_exp_f32 v{tmp+j}, v{tmp+j}")
                S(f"v_mul_f32 v{A+j}, v{A+j}, v{A+8+j}")
            for j in range(8):
                S(f"v_fma_f32 v{tmp+j}, v{tmp+j}, v{C2}, v{C2}")
            for j in range(8):
                S(f"v_rcp_f32 v{tmp+j}, v{tmp+j}")
            for j in range(8):
                S(f"v_mul_f32 v{A+j}, v{A+j}, v{tmp+j}")
            for j in range(4):
                S(f"v_cvt_pk_bf16_f32 v{tmp+8+j}, v{A+2*j}, v{A+2*j+1}")
            if t < 4:
                S(f"s_lshl_b32 {sCc}, {sM}, 12\ns_add_u32 {sCc}, {sCc}, {sHS}")
                S(f"buffer_store_dwordx4 {v(tmp+8,4)}, v2, {WS}, {sCc} offen offset:{t*1024} sc1", tag=f"hh{t}")
            else:
                S(f"s_mul_i32 {sCc}, {sM}, 3072\ns_add_u32 {sCc}, {sCc}, {sHS}\ns_add_u32 {sCc}, {sCc}, 65536")
                S(f"buffer_store_dwordx4 {v(tmp+8,4)}, v2, {WS}, {sCc} offen offset:{(t-4)*1024} sc1", tag=f"hh{t}")
            return list(S)

        TB = {4: 0x20000, 5: 0, 6: 0x8000}
        p("v_add_u32 v41, 0x20000, v2")

        def tread(t, s, n):
            if t == 3:
                return trpair(('v', WR + 4 * (n % 6)), "v45", s * 2048, 512)
            if t == 4:
                return [Inst(f"ds_read_b128 {v(WR+4*(n%6),4)}, v41 offset:{s*1024}")]
            return [Inst(f"ds_read_b128 {v(WR+4*(n%6),4)}, v2 offset:{TB[t]+s*1024}")]

        def tilepass(t, n0, boundary):
            G = []
            for s in range(32):
                n = n0 + s
                g = [mf32(ACC[acc_of[t]], v(WR + 4 * (n % 6), 4), a_(4 * s, 4), "0" if s == 0 else None)]
                if s + 4 < 32:
                    g += tread(t, s + 4, n + 4)
                elif t < 6:
                    if s == 28:
                        g += boundary
                    g += tread(t + 1, s + 4 - 32, n + 4)
                G.append(g)
            G.append([mf32(ACC[acc_of[t]], v(CSF + 4 * t, 4), v(MEANF, 4))])
            return G

        def sub(fn):
            save = self.p
            self.p = Seq()
            fn()
            r = list(self.p)
            self.p = save
            return r

        def dmaW2(part):
            g = []
            rng = range(0, 4) if part == 0 else range(4, 6)
            for h in rng:
                S = Seq()
                if part == 0:
                    S(f"s_lshl_b32 {sT1}, {sW}, 14\ns_add_u32 m0, {sT1}, {0x10000+h*4096}")
                else:
                    S(f"s_add_u32 m0, {sB}, {0x20000+(h-4)*4096}")
                S(f"s_add_u32 {sT0}, {sU}, {h*4096}")
                for k in range(4):
                    S(f"buffer_load_dwordx4 v2, {WS}, {sT0} offen offset:{k*1024} sc1 lds", tag=f"W2L{part}")
                    g.append(list(S))
                    S = Seq()
            return g

        b3 = list(Seq()("WAITTAG T4\nWAITALL lgkm\ns_barrier"))
        G = tilepass(3, 96, b3)
        G = weave(G, epi(0, T) + epi(1, T + 12)[:26], 1, 33)
        G = weave(G, w2l[:16], 0, 28)
        p.extend(flat(G))
        self.stamp("C_t3")
        b4 = list(Seq()("WAITTAG T5\nWAITALL lgkm\ns_barrier"))
        G = tilepass(4, 128, b4)
        G = weave(G, epi(1, T + 12)[26:] + epi(2, T), 0, 24)
        G = weave(G, epi(3, T + 12)[:24], 24, 33)
        G = weave(G, dmaT(5, TB[5]) + dmaT(6, TB[6]), 0, 20)
        p.extend(flat(G))
        self.stamp("C_t4")
        def pub(tags, cnt):
            def f():
                self.p(f"s_add_u32 {sT3}, {sD}, {cnt*256}")
                self.p("WAITTAG " + " ".join(tags) + "\ns_barrier")
                self.signal(sT3)
            return sub(f)
        b5 = list(Seq()("WAITTAG T6\ns_barrier"))
        G = tilepass(5, 160, b5)
        G[6] += pub(["hh2"], C_P1)
        G = weave(G, epi(3, T + 12)[24:] + epi(4, T), 0, 28)
        G = weave(G, w2l[16:], 7, 28)
        p.extend(flat(G))
        self.stamp("C_t5")
        F5 = Seq()
        F5(f"""s_lshr_b32 {sT0}, {sM}, 3
             s_lshl_b32 {sT0}, {sT0}, 1
             s_lshl_b32 {sT1}, {sG}, 2
             s_add_u32 {sT0}, {sT0}, {sT1}
             s_lshr_b32 {sT1}, {sW}, 1
             s_add_u32 {sTB}, {sT0}, {sT1}
             s_mul_i32 {sHL0}, {sT0}, {112*1024}
             s_add_u32 {sHL0}, {sHL0}, {hex(HH)}
             s_mul_i32 {sHL1}, {sW}, {12*1024}
             s_add_u32 {sHL1}, {sHL1}, {sHL0}
             s_add_u32 {sHL1}, {sHL1}, 65536
             s_lshl_b32 {sT0}, {sW}, 14
             s_add_u32 {sHL0}, {sHL0}, {sT0}
             s_mul_i32 {sT0}, {sT1}, {112*1024}
             v_add_u32 v42, {sT0}, v2
             s_sub_u32 {sT0}, {112*1024}, {sT0}
             v_add_u32 v43, {sT0}, v2""")
        G = tilepass(6, 192, None)
        G[6] += pub(["hh4"], C_P2)
        G = weave(G, list(F5), 0, 5)
        G = weave(G, epi(5, T + 12), 3, 30)
        G = weave(G, dmaW2(0) + dmaW2(1), 7, 32)
        p.extend(flat(G))
        self.stamp("C_t6")
        p(f"s_add_u32 {sT3}, {sD}, {C_P1*256}")
        p(f"buffer_load_dword v212, off, {WS}, {sT3} sc1")
        p.extend(epi(6, T))
        self.spin("v212", None, sT3, "1", "16", first_loaded=True, sleep=1)
        self.stamp("C_end")

        def hhload(i):
            kind, off = steps[i]
            S = Seq()
            S(f"s_add_u32 {sKC}, {sHL1 if kind else sHL0}, {off*1024}")
            S(f"buffer_load_dwordx4 {a_(8*(i&15),4)}, v42, {WS}, {sKC} offen sc1")
            return [list(S), [Inst(f"buffer_load_dwordx4 {a_(8*(i&15)+4,4)}, v43, {WS}, {sKC} offen sc1")]]
        p(f"""s_lshl_b32 {sT0}, {sTB}, 15
             s_lshl_b32 {sT1}, {sCB}, 12
             s_add_u32 {sT0}, {sT0}, {sT1}
             s_and_b32 {sT1}, {sW}, 1
             s_lshl_b32 {sT1}, {sT1}, 11
             s_add_u32 {sT0}, {sT0}, {sT1}
             s_add_u32 {sT0}, {sT0}, {hex(HB)}""")
        for i in range(4):
            p.extend(flat(hhload(i)))
        p(f"s_add_u32 {sT3}, {sD}, {C_P3*256}")
        p("WAITTAG hh6\ns_barrier")
        self.signal(sT3)
        p(f"buffer_load_dwordx4 v[152:155], v2, {WS}, {sT0} offen sc1")
        p(f"buffer_load_dwordx4 v[156:159], v2, {WS}, {sT0} offen offset:1024 sc1")
        p(f"s_add_u32 {sT3}, {sD}, {C_P2*256}")
        p(f"buffer_load_dword v212, off, {WS}, {sT3} sc1")
        p(f"""s_lshl_b32 {sT1}, {sW}, 14
             s_add_u32 {sT1}, {sT1}, 0x10000
             v_add_u32 v44, {sT1}, v46
             v_add_u32 v45, {sT1}, v47
             s_add_u32 {sT1}, {sB}, 0x20000
             v_add_u32 v46, {sT1}, v46
             v_add_u32 v47, {sT1}, v47""")
        DA = [48, 64, 80, 96]

        def w2read(i):
            off = steps[i][1]
            r = []
            for a in range(2):
                d = v(WR + 8 * (i % 3) + 4 * a, 4)
                if off < 8:
                    r.append(Inst(f"ds_read_b128 {d}, v{44+a} offset:{off*2048}"))
                else:
                    r.append(Inst(f"ds_read_b128 {d}, v{46+a} offset:{(off-8)*2048}"))
            return r

        def w2f(i, a):
            return a_(128 + 8 * i + 4 * a, 4) if i < 16 else v(WR + 8 * (i % 3) + 4 * a, 4)
        LA = o.get('dla', 6)
        for i in range(4, LA):
            p.extend(flat(hhload(i)))
        for i in range(28):
            nxt = i + LA
            ld = []
            if nxt < 28:
                if nxt == 12:
                    self.spin("v212", None, sT3, "1", "16", first_loaded=True, sleep=1)
                if nxt == 16:
                    p(f"s_add_u32 {sT3}, {sD}, {C_P3*256}")
                    p(f"buffer_load_dword v212, off, {WS}, {sT3} sc1")
                if nxt == 20:
                    self.spin("v212", None, sT3, "1", "16", first_loaded=True, sleep=1)
                ld = hhload(nxt)
            if i == 14:
                p("WAITTAG W2L0 W2L1")
            order = [(1, 0), (1, 1), (0, 1), (0, 0)]
            for k, (a, b) in enumerate(order):
                z = "0" if i == 0 else None
                p.append(mf32(DA[a + 2 * b], w2f(i, a), a_(8 * (i & 15) + 4 * b, 4), z))
                if k in (0, 2) and ld:
                    p.extend(ld.pop(0))
                if k == 1 and 16 <= i + 2 < 28:
                    p.extend(w2read(i + 2))
        self.stamp("D_loop")
        for k in (1, 3, 2):
            p(f"""s_xor_b32 {sT0}, {sW}, {k}
                 s_mul_i32 {sT0}, {sT0}, 12288
                 v_add_u32 v{40+k}, {sT0}, v2""")
        for k in (1, 3, 2):
            for q in range(4):
                p(f"ds_write_b128 v{40+k}, {v(DA[k]+4*q,4)} offset:{(k-1)*4096+q*1024}")
        p(f"""s_mul_i32 {sT0}, {sW}, 12288
             v_add_u32 v40, {sT0}, v2
             s_lshl_b32 {sT0}, {sTB}, 15
             s_lshl_b32 {sT1}, {sCB}, 7
             s_add_u32 {sT0}, {sT0}, {sT1}
             s_and_b32 {sT1}, {sW}, 1
             s_lshl_b32 {sT1}, {sT1}, 6
             s_add_u32 {sT0}, {sT0}, {sT1}""")
        for i in range(8):
            p(f"""v_lshlrev_b32 v{112+2*i}, 16, v{152+i}
                 v_and_b32 v{113+2*i}, {sMSKHI}, v{152+i}""")
        for i in range(16):
            p(f"v_add_f32 v{48+i}, v{48+i}, v{112+i}")
        p("WAITALL lgkm\ns_barrier")
        for q in range(4):
            for k in range(3):
                p(f"ds_read_b128 {v(160+16*k+4*q,4)}, v40 offset:{k*4096+q*1024}")
        for q in range(4):
            for j in range(4):
                r = 4 * q + j
                p(f"v_add_f32 v{48+r}, v{48+r}, v{160+r}")
                p(f"v_add_f32 v{176+r}, v{176+r}, v{192+r}")
            for j in range(4):
                r = 4 * q + j
                p(f"v_add_f32 v{48+r}, v{48+r}, v{176+r}")
            for j in range(2):
                p(f"v_cvt_pk_bf16_f32 v{112+2*q+j}, v{48+4*q+2*j}, v{48+4*q+2*j+1}")
            if q & 1:
                p(f"buffer_store_dwordx4 {v(112+4*(q>>1),4)}, v5, {OUT}, {sT0} offen offset:{32*(q>>1)}" + ["", " sc1", " nt", " sc0 sc1"][o.get('outst', 0)])
        self.stamp("D_end")

    def finish(self):
        p = self.p
        if self.o.get('stamps'):
            p("WAITALL vm")
            self.stamp("drained")
            p(f"""s_lshl_b32 {sT0}, s2, 2
                 s_add_u32 {sT0}, {sT0}, {sW}
                 s_lshl_b32 {sT0}, {sT0}, 7
                 s_add_u32 {sT0}, {sT0}, {hex(STAMP)}
                 s_mov_b64 exec, 1""")
            for i in range(self.nstamp):
                p(f"v_mov_b32 v14, s{STAMP0+i}\nbuffer_store_dword v14, off, {WS}, {sT0} offset:{4*i}")
        if self.o.get('padto'):
            p("WAITALL vm")
            if self.o.get('padmin'):
                p(f"buffer_load_dword v14, off, {DBG}, 0 offset:128 sc1\nv_not_b32 v14, v14\nv_readfirstlane_b32 s100, v14")
            p("L_pad:\ns_memrealtime s[72:73]\ns_waitcnt lgkmcnt(0)\ns_sub_u32 s72, s72, s100")
            p(f"s_cmp_lt_u32 s72, {self.o['padto']}\ns_cbranch_scc1 L_pad")
        p("L_end:\ns_endpgm")

    def build(self):
        if self.o.get('stamps') or self.o.get('padto'):
            self.p("s_memrealtime s[100:101]")
        self.setup()
        self.phaseA_wrap()
        self.phaseB()
        self.phaseR()
        self.phaseCD()
        self.finish()
        prog = finalize(self.p)
        return prog

    def phaseA_wrap(self):
        if self.o.get('stamps'):
            self.p(f"s_mov_b32 s{STAMP0}, s100")
            self.nstamp = 1
            self.stamp_names.append("start")
        self.phaseA()


def emit(opt):
    g = Gen(opt)
    prog = g.build()
    hdr = open(os.path.join(os.path.dirname(os.path.abspath(__file__)), "header.txt")).read()
    body = "\n".join(("" if i.kind == 'label' else "    ") + i.text for i in prog)
    txt = hdr + f"""; @launch grid=(256,1,1) block=(256,1,1) lds=163840
.amdgcn_target "amdgcn-amd-amdhsa--gfx950"
.set CODE_PF_MAX, {opt.get('code_bytes', 0)}
.text
.globl {NAME}_kernel
.p2align 8
.type {NAME}_kernel,@function
{NAME}_kernel:
{body}
.section .rodata,"a"
.p2align 6
.amdhsa_kernel {NAME}_kernel
  .amdhsa_next_free_vgpr 512
  .amdhsa_next_free_sgpr 102
  .amdhsa_accum_offset 256
  .amdhsa_group_segment_fixed_size 0
  .amdhsa_kernarg_size 80
  .amdhsa_user_sgpr_count 2
  .amdhsa_user_sgpr_kernarg_segment_ptr 1
  .amdhsa_system_sgpr_workgroup_id_x 1
.end_amdhsa_kernel
"""
    return txt, g.stamp_names


def code_size(txt):
    import subprocess, tempfile
    with tempfile.TemporaryDirectory() as d:
        open(d + "/k.s", "w").write(txt)
        r = subprocess.run(["clang", "-x", "assembler", "-target", "amdgcn-amd-amdhsa",
                            "-mcpu=gfx950", "-c", d + "/k.s", "-o", d + "/k.o"], capture_output=True, text=True)
        if r.returncode:
            print("\n".join(r.stderr.split("\n")[:30]))
            raise SystemExit(1)
        r = subprocess.run(["llvm-objdump", "-h", d + "/k.o"], capture_output=True, text=True)
        for line in r.stdout.split("\n"):
            f = line.split()
            if len(f) > 2 and f[1] == ".text":
                return int(f[2], 16)


def main():
    opt = {}
    out = None
    for a in sys.argv[1:]:
        if '=' in a:
            k, val = a.split('=')
            try:
                opt[k] = int(val, 0)
            except ValueError:
                opt[k] = val
        else:
            out = a
    opt['code_bytes'] = 4096
    txt, names = emit(opt)
    sz = code_size(txt)
    opt['code_bytes'] = (sz - 1024) & ~3
    txt, names = emit(opt)
    open(out, "w").write(txt)
    if names:
        open(out + ".names", "w").write(" ".join(names))
    print(out, "code bytes", sz, "lines", txt.count("\n"), "stamps", len(names))


if __name__ == "__main__":
    main()
```

```python
import re

REG_RE = re.compile(r'(?<![\w.])([vas])\[(\d+):(\d+)\]|(?<![\w.])([vas])(\d+)(?![\w\[])|\b(vcc|exec|m0)\b')
TRANS = ('v_exp_f32', 'v_log_f32', 'v_rcp_f32', 'v_rsq_f32', 'v_sqrt_f32', 'v_sin_f32', 'v_cos_f32')


def regs_of(s):
    out = []
    for m in REG_RE.finditer(s):
        if m.group(1):
            out += [f"{m.group(1)}{i}" for i in range(int(m.group(2)), int(m.group(3)) + 1)]
        elif m.group(4):
            out.append(f"{m.group(4)}{m.group(5)}")
        else:
            out.append(m.group(6))
    return out


class Inst:
    __slots__ = ('text', 'op', 'kind', 'rd', 'wr', 'passes', 'tag', 'cond', 'srcc', 'srcab', 'wide', 'arg')

    def __init__(self, text, tag=None, cond=False):
        self.text = text
        self.tag = tag
        self.cond = cond
        self.passes = 0
        self.srcc = set()
        self.srcab = set()
        self.wide = False
        self.arg = None
        self.rd = set()
        self.wr = set()
        t = text.split(';')[0].strip()
        if t.endswith(':'):
            self.op = 'label'
            self.kind = 'label'
            return
        sp = t.split(None, 1)
        op = sp[0]
        self.op = op
        rest = sp[1] if len(sp) > 1 else ''
        ops = [o.strip() for o in rest.split(',')] if rest else []
        R = [regs_of(o) for o in ops]
        allr = [r for x in R for r in x]
        if op.startswith('v_mfma'):
            self.kind = 'mfma'
            self.wr = set(R[0])
            self.srcab = set(R[1]) | set(R[2])
            self.srcc = set(R[3])
            self.rd = self.srcab | self.srcc
            self.passes = 8 if '32x32x16' in op else 4 if '16x16x32' in op else 2 if '4x4x4' in op else None
            assert self.passes, op
        elif op.startswith('v_'):
            self.kind = 'trans' if op.replace('_e64', '').replace('_e32', '') in TRANS else 'valu'
            self.wr = set(R[0])
            self.rd = set(r for x in R[1:] for r in x)
            if 'swap' in op:
                self.wr = set(allr)
                self.rd = set(allr)
            if op.startswith(('v_fmac', 'v_dot2c', 'v_writelane')) or 'dpp' in text or 'row_' in text or 'quad_perm' in text:
                self.rd |= set(R[0])
            if '_co_' in op:
                self.wr |= set(R[1])
                self.rd = set(r for x in R[2:] for r in x)
        elif op.startswith(('buffer_load', 'global_load')):
            if re.search(r'\blds\b', rest) or '_lds_' in op:
                self.kind = 'dma'
                self.rd = set(allr) | {'m0'}
            else:
                self.kind = 'vload'
                self.wr = set(R[0])
                self.rd = set(r for x in R[1:] for r in x)
        elif op.startswith(('buffer_store', 'global_store', 'buffer_atomic', 'global_atomic')):
            self.kind = 'vstore'
            self.rd = set(allr)
            self.wide = op.endswith(('x3', 'x4'))
            if self.wide:
                self.arg = set(R[0]) if op.startswith('buffer') else set(R[1])
            if 'atomic' in op and re.search(r'\bsc0\b', rest):
                self.wr = set(R[0])
        elif op.startswith('ds_read') or op.startswith('ds_bperm') or op.startswith('ds_swizzle'):
            self.kind = 'dsr'
            self.wr = set(R[0])
            self.rd = set(r for x in R[1:] for r in x)
        elif op.startswith(('ds_write', 'ds_add')):
            self.kind = 'dsw'
            self.rd = set(allr)
        elif op.startswith(('s_load', 's_memtime', 's_memrealtime')):
            self.kind = 'smem'
            self.wr = set(R[0])
            self.rd = set(r for x in R[1:] for r in x)
        elif op == 's_waitcnt':
            self.kind = 'wait'
        elif op == 's_nop':
            self.kind = 'nop'
            self.arg = int(rest, 0)
        elif op in ('s_barrier', 's_sleep', 's_endpgm', 's_setprio'):
            self.kind = 'misc'
        elif op.startswith(('s_branch', 's_cbranch')):
            self.kind = 'branch'
            if 'vcc' in op:
                self.rd = {'vcc'}
        elif op.startswith('s_cmp') or op.startswith('s_bitcmp'):
            self.kind = 'salu'
            self.rd = set(allr)
        elif op.startswith('s_'):
            self.kind = 'salu'
            self.wr = set(R[0])
            self.rd = set(r for x in R[1:] for r in x)
            if 'saveexec' in op:
                self.wr.add('exec')
        elif op == 'WAITTAG':
            self.kind = 'waittag'
            self.arg = rest.split()
        elif op == 'WAITALL':
            self.kind = 'waitall'
            self.arg = rest.strip()
        elif op.startswith('.'):
            self.kind = 'label'
        else:
            raise ValueError(text)


class Seq(list):
    def __call__(self, text, tag=None, cond=False):
        for line in text.strip().split('\n'):
            line = line.strip()
            if line and not line.startswith(';'):
                self.append(Inst(line, tag, cond))
        return self


def insert_waits(prog):
    out = []
    vm = []
    lg = []
    smem_out = False

    def emit(nv, nl):
        parts = []
        if nv is not None:
            parts.append(f"vmcnt({min(nv, 63)})")
        if nl is not None:
            parts.append(f"lgkmcnt({min(nl, 15)})")
        out.append(Inst("s_waitcnt " + " ".join(parts)))

    for idx, ins in enumerate(prog):
        if ins.cond:
            touch = ins.rd | ins.wr
            for q in (vm, lg):
                for e in q:
                    assert not (e[0] & touch), f"cond inst touches pending reg: {ins.text}"
            out.append(ins)
            continue
        nv = nl = None
        if ins.kind == 'waittag':
            for name in ins.arg:
                for i in range(len(vm) - 1, -1, -1):
                    if vm[i][1] == name:
                        n = len(vm) - 1 - i
                        nv = n if nv is None else min(nv, n)
                        break
                for i in range(len(lg) - 1, -1, -1):
                    if lg[i][1] == name:
                        n = len(lg) - 1 - i
                        nl = n if nl is None else min(nl, n)
                        break
        elif ins.kind == 'waitall':
            if 'vm' in ins.arg:
                nv = 0
            if 'lgkm' in ins.arg:
                nl = 0
        elif ins.kind == 'wait':
            m = re.search(r'vmcnt\((\d+)\)', ins.text)
            if m:
                n = int(m.group(1))
                vm = vm[len(vm) - n:] if n < len(vm) else vm
            m = re.search(r'lgkmcnt\((\d+)\)', ins.text)
            if m:
                n = int(m.group(1))
                if n == 0:
                    lg = []
                    smem_out = False
                elif not smem_out:
                    lg = lg[len(lg) - n:] if n < len(lg) else lg
            out.append(ins)
            continue
        else:
            touch = ins.rd | ins.wr
            for i in range(len(vm) - 1, -1, -1):
                if vm[i][0] & touch:
                    nv = len(vm) - 1 - i
                    break
            for i in range(len(lg) - 1, -1, -1):
                if lg[i][0] & touch:
                    nl = len(lg) - 1 - i
                    break
            if nl is not None and ins.kind == 'mfma' and nl >= 3:
                for j in range(idx + 1, min(idx + 14, len(prog))):
                    nx = prog[j]
                    if nx.kind == 'mfma':
                        for i in range(len(lg) - 1, -1, -1):
                            if lg[i][0] & nx.rd:
                                n2 = len(lg) - 1 - i
                                if n2 < nl and n2 >= nl - 2 and 3 * n2 >= 2 * nl:
                                    nl = n2
                                break
                        break
        if nl is not None and smem_out:
            nl = 0
        if nv is not None or nl is not None:
            emit(nv, nl)
            if nv is not None:
                vm = vm[len(vm) - nv:] if nv else []
            if nl is not None:
                lg = lg[len(lg) - nl:] if nl else []
                if nl == 0:
                    smem_out = False
        if ins.kind in ('waittag', 'waitall'):
            continue
        if ins.kind in ('vload', 'vstore', 'dma'):
            if len(vm) >= 62:
                emit(61, None)
                vm = vm[len(vm) - 61:]
            vm.append((set(ins.wr), ins.tag))
        elif ins.kind in ('dsr', 'dsw'):
            if len(lg) >= 15:
                n = 0 if smem_out else 14
                emit(None, n)
                lg = lg[len(lg) - n:] if n else []
                smem_out = smem_out and n != 0
            lg.append((set(ins.wr), ins.tag))
        elif ins.kind == 'smem':
            lg.append((set(ins.wr), ins.tag))
            smem_out = True
        out.append(ins)
    return out


MF_VALU = {2: 5, 4: 8, 8: 12}
MF_OVL = {2: 4, 4: 6, 8: 10}
MF_WAR = {2: 1, 4: 3, 8: 7}


def need(p, c):
    n = 0
    isv = lambda r: r[0] in 'va' and r != 'vcc'
    pv = p.kind in ('valu', 'trans')
    cv = c.kind in ('valu', 'trans')
    cmem = c.kind in ('vload', 'vstore', 'dma', 'dsr', 'dsw')
    if pv:
        wv = {r for r in p.wr if isv(r)}
        ws = p.wr - wv
        if c.kind == 'mfma' and wv & c.rd:
            n = max(n, 2)
        if cv:
            if p.kind == 'trans' and wv & c.rd:
                n = max(n, 1)
            if 'permlane' in c.op and wv & c.rd:
                n = max(n, 2)
            if ('row_' in c.text or 'quad_perm' in c.text or 'dpp' in c.text) and wv & c.rd:
                n = max(n, 2)
            if c.op.startswith(('v_readfirstlane', 'v_readlane')) and wv & c.rd:
                n = max(n, 1)
            if ws & c.rd:
                n = max(n, 4 if c.op.startswith(('v_readlane', 'v_writelane')) else 2)
        if p.kind == 'trans' and cmem and wv & c.rd:
            n = max(n, 1)
        if c.kind in ('vload', 'vstore', 'dma') and ws & c.rd:
            n = max(n, 5)
        if c.kind in ('salu', 'smem') and ws & c.rd:
            n = max(n, 1)
        if c.kind == 'branch' and ws & c.rd:
            n = max(n, 5)
    if p.kind == 'mfma':
        if (cv or cmem) and p.wr & (c.rd | c.wr):
            n = max(n, MF_VALU[p.passes])
        if c.kind == 'mfma':
            if p.wr & c.srcab:
                n = max(n, MF_VALU[p.passes])
            if p.wr & c.srcc:
                if p.wr == c.srcc and p.passes == c.passes:
                    n = max(n, 2 if p.passes == 2 else 0)
                else:
                    n = max(n, MF_OVL[p.passes])
            elif p.wr & c.wr:
                n = max(n, MF_OVL[p.passes])
        if cv and p.srcc & c.wr:
            n = max(n, MF_WAR[p.passes])
    if p.kind == 'salu' and 'm0' in p.wr and c.kind == 'dma':
        n = max(n, 1)
    if p.kind == 'vstore' and p.wide and p.arg & c.wr:
        n = max(n, 2)
    return n


def insert_nops(prog):
    out = []
    hist = []
    pos = 0
    nnops = 0
    for ins in prog:
        if ins.kind == 'label':
            out.append(ins)
            continue
        req = 0
        for p, pp in hist:
            d = pos - pp
            w = need(p, ins)
            if w > d:
                req = max(req, w - d)
        if req:
            k = req
            while k > 0:
                t = min(k, 16)
                out.append(Inst(f"s_nop {t - 1}", cond=ins.cond))
                k -= t
            nnops += 1
            if not ins.cond:
                pos += req
        out.append(ins)
        if not ins.cond:
            pos += (ins.arg + 1) if ins.kind == 'nop' else 1
        if ins.kind in ('valu', 'trans', 'mfma', 'salu', 'vstore'):
            hist.append((ins, pos))
        hist = [(p, pp) for p, pp in hist if pos - pp < 14]
    return out, nnops


def hoist(prog):
    out = []
    for ins in prog:
        i = len(out)
        if ins.kind in ('dsr', 'dsw', 'vload', 'vstore', 'dma', 'salu') and not ins.cond and 'exec' not in ins.wr:
            while i > 0:
                q = out[i - 1]
                if q.kind not in ('valu', 'trans') or q.cond:
                    break
                if (q.wr & (ins.rd | ins.wr)) or (q.rd & ins.wr):
                    break
                i -= 1
            if i > 0 and out[i - 1].kind in ('valu', 'trans'):
                i = len(out)
        out.insert(i, ins)
    return out


def finalize(prog):
    p = insert_waits(hoist(prog))
    p, n = insert_nops(p)
    return p


def weave(main, fills, start=0, end=None):
    end = len(main) if end is None else end
    n = end - start
    out = [list(g) for g in main]
    k = 0
    for i in range(n):
        tgt = (len(fills) * (i + 1) + n - 1) // n
        while k < tgt:
            f = fills[k]
            out[start + i] += f if isinstance(f, list) else [f]
            k += 1
    assert k == len(fills)
    return out


def flat(groups):
    return [i for g in groups for i in g]
```

```python
import sys, os
sys.path.insert(0, os.path.dirname(os.path.abspath(__file__)))
from dsl import *

NAME = "sequential_preLN__linear_attn_block__glu_gated_swiglu__prompt"

CNT = 0
KVM = 0x10000
ZP = 0x18000
ST = 0x20000
CS = 0x60000
STAMP = 0x80000
PQ = 0x100000
HB = 0x300000
HH = 0x500000
W13R = 0xC00000
W2R = 0x1000000
WS_SIZE = 0x1200000
C_KV, C_H, C_P1, C_P2, C_P3, C_R13, C_R2 = 0, 64, 80, 96, 112, 128, 160

X, WQKV, WO, W1, W3, W2, OUT, WS, DBG = [f"s[{a}:{a+3}]" for a in range(4, 40, 4)]
sW, sG, sM, sC0, sT0, sT1, sT2, sT3 = "s40", "s41", "s42", "s43", "s44", "s45", "s46", "s47"
sXB, sWB, sXL, sWL, sTB, sCB, sRQ, sLOG2E = "s48", "s49", "s50", "s51", "s52", "s53", "s54", "s55"
sU, sKC, sT4, sT5, sMSKHI, sEPS6 = "s56", "s57", "s58", "s59", "s60", "s61"
sHILANES = "s[62:63]"
sB4LANES = "s[64:65]"
sA, sB, sCc, sD = "s66", "s67", "s68", "s69"
STV = 0
STAMP0 = 74


def v(a, n=1):
    return f"v{a}" if n == 1 else f"v[{a}:{a+n-1}]"


def a_(a, n=1):
    return f"a{a}" if n == 1 else f"a[{a}:{a+n-1}]"


def mf32(d, A, B, c=None):
    return Inst(f"v_mfma_f32_32x32x16_bf16 {v(d,16)}, {A}, {B}, {v(d,16) if c is None else c}")


def mf16(d, A, B, c=None):
    return Inst(f"v_mfma_f32_16x16x32_bf16 {v(d,4)}, {A}, {B}, {v(d,4) if c is None else c}")


def mf4(d, A, B, c=None):
    return Inst(f"v_mfma_f32_4x4x4_16b_bf16 {v(d,4)}, {A}, {B}, {v(d,4) if c is None else c}")


def trpair(dst, addr, off, step):
    k, b = dst
    return [Inst(f"ds_read_b64_tr_b16 {k}[{b}:{b+1}], {addr} offset:{off}"),
            Inst(f"ds_read_b64_tr_b16 {k}[{b+2}:{b+3}], {addr} offset:{off+step}")]


class Gen:
    def __init__(self, opt):
        self.o = opt
        self.p = Seq()
        self.nl = 0
        self.nstamp = 0
        self.stamp_names = []

    def lab(self, s):
        self.nl += 1
        return f"L_{s}_{self.nl}"

    def stamp(self, name):
        if self.o.get('padat') == name:
            self.p("WAITALL lgkm\ns_memrealtime s[100:101]\nWAITALL lgkm")
        if not self.o.get('stamps'):
            return
        p = self.p
        p("WAITALL lgkm")
        p("s_memrealtime s[72:73]" if self.o['stamps'] == 1 else "s_memtime s[72:73]")
        p("WAITALL lgkm")
        p(f"v_writelane_b32 v{STV}, s72, {self.nstamp}")
        self.nstamp += 1
        self.stamp_names.append(name)

    def signal(self, soff, vone="v14"):
        p = self.p
        L = self.lab("sig")
        p(f"v_mov_b32 {vone}, 1")
        p(f"s_cmp_lg_u32 {sW}, 0")
        p(f"s_cbranch_scc1 {L}")
        p(f"""s_mov_b64 exec, 1
             buffer_atomic_add {vone}, off, {WS}, {soff} sc1
             s_mov_b64 exec, -1""", cond=True)
        p(f"{L}:")

    def spin(self, vt, vaddr, soff, mask, vtarget, srd=WS, first_loaded=False, wave0=True, sleep=0):
        p = self.p
        Ld, Lp = self.lab("pd"), self.lab("pl")
        addr = f"{vaddr}, {srd}, {soff} offen" if vaddr else f"off, {srd}, {soff}"
        if first_loaded:
            p(f"v_cmp_gt_u32 vcc, {vtarget}, {vt}")
            p(f"s_and_b64 vcc, vcc, {mask}")
            p(f"s_cbranch_scc0 {Ld}")
        elif wave0:
            p(f"s_cmp_lg_u32 {sW}, 0")
            p(f"s_cbranch_scc1 {Ld}")
        p(f"s_mov_b32 {sT5}, 0", cond=True)
        p(f"s_mov_b64 exec, {mask}", cond=True)
        p(f"{Lp}:")
        if sleep:
            p(f"s_sleep {sleep}", cond=True)
        p(f"""buffer_load_dword {vt}, {addr} sc1
             s_add_u32 {sT5}, {sT5}, 1
             s_waitcnt vmcnt(0)
             v_cmp_gt_u32 vcc, {vtarget}, {vt}
             s_cmp_ge_u32 {sT5}, 0x8000
             s_cselect_b64 vcc, 0, vcc
             s_cmp_lg_u64 vcc, 0
             s_cbranch_scc1 {Lp}
             s_mov_b64 exec, -1""", cond=True)
        p(f"{Ld}:")

    def setup(self):
        p = self.p
        p(f"""s_cmp_ge_u32 s2, 256
             s_cbranch_scc1 L_end
             s_load_dwordx16 s[76:91], s[0:1], 0
             s_load_dwordx4 s[92:95], s[0:1], 64""")
        p("v_and_b32 v1, 63, v0\nv_lshrrev_b32 v14, 6, v0")
        p(f"v_readfirstlane_b32 {sW}, v14")
        for srd, sz in ((4, 0x200000), (8, 0x180000), (12, 0x80000), (16, 0x1C0000), (20, 0x1C0000),
                        (24, 0x1C0000), (28, 0x200000), (32, WS_SIZE), (36, 256)):
            p(f"s_mov_b32 s{srd+2}, {hex(sz)}\ns_mov_b32 s{srd+3}, 0x20000")
        p(f"""s_lshr_b32 {sT0}, s2, 3
             s_and_b32 {sRQ}, {sT0}, 3
             s_and_b32 {sG}, s2, 6
             s_lshl_b32 {sG}, {sG}, 1
             s_add_u32 {sG}, {sG}, {sRQ}
             s_lshr_b32 {sT1}, s2, 5
             s_and_b32 {sM}, s2, 1
             s_lshl_b32 {sM}, {sM}, 3
             s_add_u32 {sM}, {sM}, {sT1}
             s_lshl_b32 {sXB}, {sG}, 17
             s_lshl_b32 {sT0}, {sW}, 15
             s_add_u32 {sXB}, {sXB}, {sT0}
             s_mul_i32 {sWB}, {sW}, {16*3072}
             s_lshl_b32 {sT0}, {sM}, 6
             s_add_u32 {sWB}, {sWB}, {sT0}
             s_lshl_b32 {sXL}, {sW}, 14
             s_lshl_b32 {sWL}, {sW}, 10""")
        rot = self.o.get('rot', 4)
        if rot == 0:
            p(f"s_mov_b32 {sC0}, 0")
        elif rot == 1:
            p(f"s_lshl_b32 {sC0}, {sRQ}, 1\ns_add_u32 {sC0}, {sC0}, {sT1}")
        elif rot == 2:
            p(f"s_and_b32 {sC0}, s2, 6\ns_and_b32 {sT0}, s2, 1\ns_lshl_b32 {sT0}, {sT0}, 2\ns_add_u32 {sC0}, {sC0}, {sT0}")
        elif rot == 3:
            p(f"s_and_b32 {sC0}, {sT1}, 1\ns_lshl_b32 {sC0}, {sC0}, 2\ns_and_b32 {sT0}, s2, 1\ns_lshl_b32 {sT0}, {sT0}, 1\ns_add_u32 {sC0}, {sC0}, {sT0}\ns_bfe_u32 {sT0}, s2, 0x20001\ns_add_u32 {sC0}, {sC0}, {sT0}")
        elif rot == 4:
            p(f"s_add_u32 {sC0}, {sT1}, {sRQ}\ns_and_b32 {sC0}, {sC0}, 3\ns_lshl_b32 {sC0}, {sC0}, 1\ns_and_b32 {sT0}, s2, 1\ns_add_u32 {sC0}, {sC0}, {sT0}")
        p("v_lshlrev_b32 v2, 4, v1")
        p("""v_lshrrev_b32 v14, 3, v1
             v_lshlrev_b32 v14, 10, v14
             v_and_b32 v15, 7, v1
             v_lshrrev_b32 v3, 4, v1
             v_xor_b32 v15, v15, v3
             v_lshl_add_u32 v6, v15, 4, v14
             v_xor_b32 v7, 64, v6
             v_add_u32 v7, 7168, v7
             v_add_u32 v8, 14336, v6
             v_add_u32 v9, 14336, v7""")
        p("""v_lshrrev_b32 v14, 2, v1
             v_mul_u32_u24 v14, 3072, v14
             v_and_b32 v15, 3, v1
             v_lshl_add_u32 v5, v15, 4, v14""")
        p("WAITALL lgkm")
        for srd, src in ((4, 76), (8, 78)):
            p(f"s_mov_b32 s{srd}, s{src}\ns_mov_b32 s{srd+1}, s{src+1}")

    def setup_late(self):
        p = self.p
        for srd, src in ((12, 80), (16, 84), (20, 86), (24, 88), (28, 90), (36, 92), (32, 94)):
            p(f"s_mov_b32 s{srd}, s{src}\ns_mov_b32 s{srd+1}, s{src+1}")

    def kcalc(self, c):
        return f"""s_add_u32 {sT0}, {sC0}, {c}
             s_and_b32 {sT0}, {sT0}, 7
             s_mul_i32 {sT1}, {sT0}, {64*3072}
             s_add_u32 {sT1}, {sT1}, {sWB}"""

    def dmaA(self, c):
        S = Seq()
        S(self.kcalc(c))
        S(f"""s_add_u32 m0, {sWL}, {0x10000 + c*4096 - 1024}
             s_lshl_b32 {sT0}, {sT0}, 7""")
        S(f"buffer_load_dwordx4 v5, {WQKV}, {sT1} offen offset:1024 lds", tag=f"A{c}")
        g = [list(S)]
        S = Seq()
        S(f"s_add_u32 m0, {sXL}, {(c%3)*4096}\ns_add_u32 {sT0}, {sT0}, {sXB}")
        S(f"buffer_load_dwordx4 v6, {X}, {sT0} offen lds", tag=f"A{c}")
        g.append(list(S))
        for i in range(1, 4):
            g.append([Inst(f"buffer_load_dwordx4 v{6+i}, {X}, {sT0} offen offset:{i*1024} lds", tag=f"A{c}")])
        return g

    def dmaVQ(self, which, c):
        S = Seq()
        S(self.kcalc(c))
        if which == 'V':
            S(f"s_add_u32 m0, {sWL}, {0x18000 + c*4096 - 2048}")
            S(f"buffer_load_dwordx4 v5, {WQKV}, {sT1} offen offset:2048 lds", tag=f"V{c}")
        else:
            S(f"s_add_u32 m0, {sWL}, {0x20000 + c*4096}")
            S(f"buffer_load_dwordx4 v5, {WQKV}, {sT1} offen lds", tag=f"Q{c}")
        return list(S)

    def dmaWO(self, q):
        S = Seq()
        b, i = q >> 2, q & 3
        S(f"""s_add_u32 {sT0}, {sA}, {(256*b+16*i)*1024}
             s_and_b32 {sT0}, {sT0}, 0x7ffff
             s_add_u32 m0, {sXL}, {b*65536+i*4096}
             s_add_u32 {sT0}, {sT0}, {sB}""")
        g = []
        for k in range(4):
            S(f"buffer_load_dwordx4 v{6+k}, {WO}, {sT0} offen offset:{k*1024} lds", tag=f"WO{q}")
            g.append(list(S))
            S = Seq()
        return g

    def xf(self, L):
        x = self.o.get('x', '')
        out = []
        for i in L:
            if 'v' in x and i.kind in ('vload', 'dma') and not i.cond and 'dwordx4' in i.op:
                continue
            if 'e' in x and i.kind in ('valu', 'trans') and not i.cond and i.op.endswith(('f32', 'f32_e64')):
                continue
            if 'l' in x and i.kind == 'dsr':
                continue
            if 'b' in x and i.op == 's_barrier':
                continue
            if 's' in x and i.kind == 'vstore' and 'store' in i.op:
                continue
            out.append(i)
        return out

    def sub(self, fn):
        save = self.p
        self.p = Seq()
        fn()
        r = list(self.p)
        self.p = save
        return r

    def phaseA(self):
        p = self.p
        o = self.o
        for g in self.dmaA(0):
            p.extend(g)
        if o.get('codepf', 1):
            p(f"""s_getpc_b64 s[70:71]
                 s_lshr_b32 {sT3}, s2, 3
                 s_lshl_b32 {sT3}, {sT3}, 2
                 s_add_u32 {sT3}, {sT3}, {sW}
                 s_lshl_b32 {sT3}, {sT3}, 8
                 v_and_b32 v14, 1, v1
                 v_lshlrev_b32 v14, 7, v14
                 v_add_u32 v14, {sT3}, v14
                 v_min_u32 v14, CODE_PF_MAX, v14
                 global_load_dword v15, v14, s[70:71]""")
        self.setup_late()
        Lz = self.lab("z")
        p(f"""s_lshl_b32 {sD}, {sW}, 8
             s_add_u32 {sD}, {sD}, 224
             s_cmp_lt_u32 s2, {sD}
             s_cbranch_scc1 {Lz}""")
        p(f"""v_mov_b32 v16, 0
             v_mov_b32 v17, 0
             v_mov_b32 v18, 0
             v_mov_b32 v19, 0
             s_sub_u32 {sT3}, s2, 224
             s_lshl_b32 {sT4}, {sT3}, 10
             s_mul_i32 {sT3}, {sT3}, 1536
             v_and_b32 v20, 1, v1
             v_lshlrev_b32 v20, 4, v20
             v_bfe_u32 v21, v1, 1, 1
             v_lshl_add_u32 v20, v21, 9, v20
             v_add_u32 v20, {hex(ZP)}, v20
             v_add_u32 v20, {sT4}, v20
             v_lshlrev_b32 v21, 8, v1
             v_add_u32 v21, {sT3}, v21
             v_subrev_u32 v21, 1024, v21
             v_cmp_gt_u32 vcc, 4, v1
             v_cndmask_b32 v20, v21, v20, vcc
             s_add_u32 {sT4}, {sT4}, {hex(KVM)}
             buffer_store_dwordx4 v[16:19], v2, {WS}, {sT4} offen sc1
             s_mov_b64 exec, 0x3ff
             buffer_store_dwordx4 v[16:19], v20, {WS}, 0 offen sc1
             s_mov_b64 exec, -1""", cond=True)
        p(f"{Lz}:")
        for g in self.dmaA(1):
            p.extend(g)
        p(f"""s_mov_b32 {sLOG2E}, 0x3fb8aa3b
             s_mov_b32 {sMSKHI}, 0xffff0000
             s_mov_b32 {sEPS6}, 0x358637bd
             s_mov_b32 s62, 0
             s_mov_b32 s63, -1
             s_mov_b32 s64, 0xffff0000
             s_mov_b32 s65, 0xffff0000""")
        p(f"""v_and_b32 v20, 31, v1
             v_lshrrev_b32 v21, 5, v1
             v_bfe_u32 v22, v1, 1, 3
             v_xor_b32 v21, v21, v22
             v_lshlrev_b32 v21, 4, v21
             v_lshl_add_u32 v21, v20, 7, v21
             v_add_u32 v10, {sXL}, v21
             v_xor_b32 v11, 32, v10
             v_xor_b32 v12, 64, v10
             v_xor_b32 v13, 96, v10""")
        p(f"""v_lshrrev_b32 v20, 5, v1
             v_lshlrev_b32 v20, 9, v20
             v_bfe_u32 v21, v1, 2, 2
             v_lshl_add_u32 v20, v21, 6, v20
             v_bfe_u32 v21, v1, 4, 1
             v_lshl_add_u32 v20, v21, 5, v20
             v_add_u32 v20, 0x10000, v20
             v_and_b32 v21, 3, v1
             v_lshl_add_u32 v3, v21, 3, v20
             v_and_b32 v21, 1, v1
             v_lshl_add_u32 v4, v21, 4, v20
             v_bfe_u32 v21, v1, 1, 1
             v_lshl_add_u32 v4, v21, 3, v4
             v_add_u32 v4, 0x8000, v4
             v_add_u32 v252, {sWL}, v3
             v_add_u32 v253, {sWL}, v4""")
        p("""v_and_b32 v24, 3, v1
             v_lshrrev_b32 v25, 2, v1
             v_lshrrev_b32 v26, 4, v1
             v_xor_b32 v25, v25, v26
             v_and_b32 v25, 1, v25
             v_or_b32 v24, v24, v25
             v_cmp_eq_u32 vcc, 0, v24
             v_mov_b32 v20, 0x3f803f80
             v_mov_b32 v21, 0x3f803f80
             v_mov_b32 v22, 0x3f803f80
             v_mov_b32 v23, 0x3f803f80
             v_cndmask_b32 v16, 0, v20, vcc
             v_cndmask_b32 v17, 0, v20, vcc
             v_cndmask_b32 v18, 0, v20, vcc
             v_cndmask_b32 v19, 0, v20, vcc""")
        SEL, ONES = v(16, 4), v(20, 4)
        XS, XQ0, XQ1, CSA, ZA = 24, 28, 32, 36, 44
        AK, AV, AQ, RB, AKV = 48, 64, 80, 96, 112
        WR, CF = 128, 152
        XM, WP, RS_ = 160, 164, 176
        XCH = 12288 + 2560

        def wread(t, s):
            n = t * 32 + s
            addr, off = (("v3", 0), ("v4", 0), ("v4", 0x8000))[t]
            return trpair(('v', WR + 4 * (n % 6)), addr, off + s * 1024, 256)

        def wf(t, s):
            return v(WR + 4 * ((t * 32 + s) % 6), 4)

        def csread(t, c):
            addr, off = (("v252", 0), ("v253", 0), ("v253", 0x8000))[t]
            return trpair(('v', CF + 4 * (c & 1)), addr, off + c * 4096, 256)

        def csm(c):
            return mf16(CSA, SEL, v(CF + 4 * (c & 1), 4), "0" if c == 0 else None)

        def split2(dst, src, t):
            return Seq()(f"""v_cvt_pk_bf16_f32 v{t}, v{src}, v{src}
                 v_lshlrev_b32 v{t}, 16, v{t}
                 v_sub_f32 v{t}, v{src}, v{t}
                 v_cvt_pk_bf16_f32 v{dst}, v{src}, v{t}""")

        def cswrite(t):
            S = split2(41, CSA, 41)
            S(f"ds_write_b32 v254, v41 offset:{t*512}", tag=f"x{t}")
            return list(S)

        def csget(t):
            return [Inst(f"ds_read_b128 {v(WP+4*t,4)}, v255 offset:{t*512}")]

        def xread(s):
            return [Inst(f"ds_read_b128 {a_(4*s,4)}, v{10+(s&3)} offset:{((s>>2)%3)*4096}")]

        self.stamp("A_issued")
        p("WAITTAG A0\ns_barrier")
        self.stamp("A_c0")
        p.extend(xread(0) + wread(0, 0) + xread(1) + wread(0, 1) + csread(0, 0))
        Lz = self.lab("z2")
        p(f"v_mov_b32 v14, 1\ns_cmp_lt_u32 s2, {sD}\ns_cbranch_scc1 {Lz}")
        p(f"""s_waitcnt vmcnt(5)
             s_mov_b64 exec, 1
             buffer_atomic_add v14, off, {DBG}, 0 sc1
             s_mov_b64 exec, -1""", cond=True)
        p(f"{Lz}:")
        M = Seq()
        M(f"""v_and_b32 v254, 31, v1
             v_lshlrev_b32 v255, 4, v254
             v_add_u32 v255, {XCH}, v255
             s_lshl_b32 {sT3}, {sW}, 2
             v_add_u32 v254, {sT3}, v255
             v_mov_b32 v{RS_+1}, 0
             v_mov_b32 v{RS_+2}, 0
             v_mov_b32 v{RS_+3}, 0
             s_lshr_b32 {sTB}, {sM}, 2
             s_lshl_b32 {sT3}, {sG}, 2
             s_add_u32 {sTB}, {sTB}, {sT3}
             s_and_b32 {sCB}, {sM}, 3
             s_lshl_b32 {sA}, {sRQ}, 17
             s_lshl_b32 {sT3}, {sW}, 16
             s_add_u32 {sA}, {sA}, {sT3}
             s_lshl_b32 {sB}, {sCB}, 8
             v_bfe_u32 v220, v1, 4, 1
             v_lshlrev_b32 v220, 10, v220
             v_lshrrev_b32 v221, 5, v1
             v_lshl_add_u32 v220, v221, 9, v220
             v_and_b32 v221, 15, v1
             v_lshl_add_u32 v220, v221, 4, v220
             s_add_u32 {sT3}, {sXL}, 12288
             v_add_u32 v220, {sT3}, v220
             v_and_b32 v221, 31, v1
             v_lshl_add_u32 v221, v221, 2, {sT3}
             s_lshl_b32 {sT3}, {sW}, 8
             v_lshl_add_u32 v222, v1, 2, {sT3}
             v_add_u32 v223, 12288, v222
             v_and_b32 v224, 7, v1
             s_lshl_b32 {sT3}, {sW}, 5
             s_add_u32 {sT3}, {sT3}, {12288+2048}
             v_lshl_add_u32 v224, v224, 2, {sT3}
             v_and_b32 v225, 3, v1
             v_lshlrev_b32 v225, 2, v225
             v_bfe_u32 v226, v1, 2, 1
             v_lshl_add_u32 v225, v226, 9, v225
             v_cmp_gt_u32 vcc, 8, v1
             v_mov_b32 v226, 0x7ffffff0
             v_cndmask_b32 v225, v226, v225, vcc
             s_lshl_b32 {sU}, {sM}, 11
             s_add_u32 {sT2}, {sU}, {hex(KVM)}
             s_lshr_b32 {sT4}, {sW}, 1
             s_lshl_b32 {sT4}, {sT4}, 10
             s_add_u32 {sT4}, {sT4}, {sT2}
             s_and_b32 {sCc}, {sW}, 1
             s_lshl_b32 {sCc}, {sCc}, 4
             s_add_u32 {sT4}, {sT4}, {sCc}
             s_add_u32 {sT4}, {sT4}, {hex(ZP-KVM)}
             s_lshl_b32 {sKC}, {sG}, 2
             s_add_u32 {sKC}, {sKC}, {sW}
             s_lshl_b32 {sKC}, {sKC}, 15
             s_add_u32 {sKC}, {sKC}, {sU}
             s_add_u32 {sKC}, {sKC}, {hex(PQ)}
             v_and_b32 v226, 3, v1
             v_cmp_eq_u32 s[96:97], 1, v226
             v_cmp_eq_u32 s[98:99], 2, v226
             v_cmp_eq_u32 s[70:71], 3, v226""")
        M = list(M)
        pend = self.dmaA(2)
        for s in range(32):
            c, j = s >> 2, s & 3
            xf = a_(4 * s, 4)
            z = "0" if s == 0 else None
            p.append(mf32(AK, xf, wf(0, s), z))
            if j == 2 and c < 7:
                p(f"WAITTAG A{c+1}\ns_barrier")
                assert not pend
                if c + 3 < 8:
                    pend = self.dmaA(c + 3)
                elif c + 3 == 8:
                    pend = [self.dmaVQ('V', k) for k in range(0, 3)]
                    pend.append([Inst(f"buffer_load_dword v15, off, {DBG}, 0 sc1")])
                else:
                    pend = [self.dmaVQ('V', k) for k in range(3, 6)]
            if s == 30:
                p("WAITTAG V1 x0\ns_barrier")
            if s + 2 < 32:
                p.extend(xread(s + 2) + wread(0, s + 2))
            else:
                p.extend(wread(1, s + 2 - 32))
            if j == 3 and c < 7:
                p.extend(csread(0, c + 1))
            n = 3 if s < 2 else 2 if j == 3 else 1
            for _ in range(n):
                if pend:
                    p.extend(pend.pop(0))
            if j == 0:
                p.append(csm(c))
            p.append(mf16(XS, SEL, xf, z))
            for _ in range(3):
                if M and s >= 2:
                    p.append(M.pop(0))
            p.append(mf4(XQ0, a_(4 * s, 2), a_(4 * s, 2), z))
            p.append(mf4(XQ1, a_(4 * s + 2, 2), a_(4 * s + 2, 2), z))
            if s == 29:
                p.extend(cswrite(0))
        assert not pend and not M
        self.stamp("A_loop")

        def tilepass(t, acc, order):
            nm = "VQ"[t - 1]
            G = []
            for s in range(32):
                A_, B_ = (a_(4 * s, 4), wf(t, s)) if order == 0 else (wf(t, s), a_(4 * s, 4))
                g = Seq()
                g.append(mf32(acc, A_, B_, "0" if s == 0 else None))
                if s % 8 == 4 and s < 28:
                    g(f"WAITTAG {nm}{(s+4)//4+1}\ns_barrier")
                if s == 28:
                    g(f"WAITTAG x{t}" + (" Q1" if t == 1 else "") + "\ns_barrier")
                    g.extend(csget(t))
                if t == 1 and s < 2:
                    g.extend(wread(t, 2 + 2 * s) + wread(t, 3 + 2 * s))
                elif s + 4 < 32:
                    g.extend(wread(t, s + 4))
                elif t == 1:
                    g.extend(wread(2, s + 4 - 32))
                cs_at = {2: 0, 3: 1, 6: 2, 8: 3, 14: 4, 16: 5, 20: 6, 21: 7}
                if s in cs_at:
                    g.extend(csread(t, cs_at[s]))
                cm_at = {4: 0, 5: 1, 9: 2, 11: 3, 17: 4, 19: 5, 22: 6, 23: 7}
                if s in cm_at:
                    g.append(csm(cm_at[s]))
                if s == 25:
                    g.extend(cswrite(t))
                G.append(list(g))
            return G

        def phi(acc, scale, T, dst):
            S = Seq()
            for h in range(2):
                r = range(8 * h, 8 * h + 8)
                for i in r:
                    S(f"v_fma_f32 v{acc+i}, v{acc+i}, {scale(i)}, {sEPS6}")
                for i in r:
                    S(f"v_mul_f32 v{T+i}, {sLOG2E}, v{acc+i}")
                for i in r:
                    S(f"v_exp_f32_e64 v{T+i}, v{T+i} clamp")
                    S(f"v_max_f32 v{acc+i}, {sEPS6}, v{acc+i}")
                for i in r:
                    S(f"v_add_f32 v{acc+i}, v{acc+i}, v{T+i}")
                for i in range(4 * h, 4 * h + 4):
                    S(f"v_cvt_pk_bf16_f32 v{dst+i}, v{acc+2*i}, v{acc+2*i+1}")
            return S
        E = Seq()
        E.extend(csget(0))
        E(f"""v_mul_f32 v199, 0x3b000000, v{XS}
             v_cvt_pk_bf16_f32 v198, -v199, -v199
             v_cndmask_b32 v{XM}, v198, 0, {sHILANES}
             v_cndmask_b32 v{XM+1}, v198, 0, {sHILANES}
             v_cndmask_b32 v{XM+2}, v198, 0, {sHILANES}
             v_cndmask_b32 v{XM+3}, v198, 0, {sHILANES}""")
        for k in range(4):
            E(f"v_add_f32 v{XQ0+k}, v{XQ0+k}, v{XQ1+k}")
        E.append(mf32(AK, v(XM, 4), v(WP, 4)))
        E(f"""v_cndmask_b32 v197, v{XQ0}, v{XQ0+1}, s[96:97]
             v_cndmask_b32 v197, v197, v{XQ0+2}, s[98:99]
             v_cndmask_b32 v197, v197, v{XQ0+3}, s[70:71]
             v_mov_b32 v198, v197
             v_mul_f32 v199, v199, v199
             v_permlane32_swap_b32 v197, v198
             v_add_f32 v197, v197, v198
             v_mul_f32 v197, 0x3b000000, v197
             v_sub_f32 v197, v197, v199
             v_max_f32 v197, 0, v197
             v_add_f32 v197, 0x3727c5ac, v197
             v_rsq_f32 v40, v197""")
        E.extend(split2(RS_, 40, 198))
        E(f"v_cndmask_b32 v{RS_}, v{RS_}, 0, {sHILANES}")
        E.append(mf32(RB, v(RS_, 4), ONES, "0"))
        E("""v_lshrrev_b32 v196, 4, v1
             v_bfe_u32 v197, v1, 2, 2
             v_xor_b32 v197, v197, v196
             v_lshlrev_b32 v197, 6, v197
             v_lshl_add_u32 v197, v196, 10, v197
             v_and_b32 v196, 3, v1
             v_lshl_add_u32 v6, v196, 4, v197
             v_add_u32 v7, 3072, v6
             v_add_u32 v8, 6144, v6
             v_add_u32 v9, 9216, v6""")
        PK = phi(AK, lambda i: f"v{RB+i}", 196, 180)
        G = tilepass(1, AV, 0)
        dq = [self.dmaVQ('V', 6), self.dmaVQ('V', 7)] + [self.dmaVQ('Q', k) for k in range(6)]
        for k, d in enumerate(dq):
            G[4 * k + 1] += d
        n2 = o.get('pk2', 64)
        G = weave(G, list(E) + PK[:n2], 0, 32)
        p.extend(flat(G))
        p.append(mf32(AV, v(XM, 4), v(WP + 4, 4)))
        self.stamp("A_v")
        E = Seq()
        E.extend(PK[n2:])
        for i in range(16):
            E(f"v_mul_f32 v{AV+i}, v{AV+i}, v{RB+i}")
        for i in range(8):
            E(f"v_cvt_pk_bf16_f32 v{188+i}, v{AV+2*i}, v{AV+2*i+1}")
        G = tilepass(2, AQ, 1)
        G[1] += self.dmaVQ('Q', 6)
        G[5] += self.dmaVQ('Q', 7)
        wo = self.dmaWO(0) + self.dmaWO(1) + self.dmaWO(2)
        G = weave(G, wo, 9, 32)
        G = weave(G, list(E), 0, 12)
        G[12] += [mf32(AKV, v(180, 4), v(188, 4), "0"), mf32(AKV, v(184, 4), v(192, 4))]
        G[13] += [mf16(ZA, SEL, v(180, 4), "0"), mf16(ZA, SEL, v(184, 4))]
        S = Seq()
        for i in range(8):
            S(f"v_cndmask_b32 v{196+i}, v{AKV+i}, v{AKV+8+i}, {sB4LANES}")
        S(f"""ds_write_b128 v220, v[196:199]
             ds_write_b128 v220, v[200:203] offset:256""")
        S(f"ds_write_b32 v221, v{ZA} offset:2048", tag="kvp")
        G = weave(G, list(S), 15, 19)
        G[19] += self.sub(lambda: self.spin("v15", None, "0", "1", "32", srd=DBG, first_loaded=True, sleep=4))
        G[19] += [Inst("WAITTAG kvp")]
        S = Seq()
        for k in range(4):
            S(f"ds_read2st64_b32 v[{112+2*k}:{113+2*k}], v223 offset0:{64*k} offset1:{64*k+4}")
        S("ds_read2st64_b32 v[120:121], v224 offset0:0 offset1:64")
        S("ds_read2st64_b32 v[122:123], v224 offset0:128 offset1:192")
        G = weave(G, list(S), 21, 24)
        S = Seq()
        S("""v_add_f32 v112, v112, v114
             v_add_f32 v113, v113, v115
             v_add_f32 v116, v116, v118
             v_add_f32 v117, v117, v119
             v_add_f32 v112, v112, v116
             v_add_f32 v113, v113, v117
             v_add_f32 v120, v120, v121
             v_add_f32 v122, v122, v123
             v_add_f32 v120, v120, v122""")
        S(f"buffer_atomic_add_f32 v112, v222, {WS}, {sT2} offen", tag="pub1")
        S(f"buffer_atomic_add_f32 v113, v222, {WS}, {sT2} offen offset:1024", tag="pub1")
        S(f"buffer_atomic_add_f32 v120, v225, {WS}, {sT4} offen", tag="pub1")
        G = weave(G, list(S), 26, 31)
        p.extend(flat(G))
        p.append(mf32(AQ, v(WP + 8, 4), v(XM, 4)))
        self.stamp("A_q")
        p.extend(flat(self.dmaWO(4)))
        ph = phi(AQ, lambda i: "v40", 196, 212)
        h = len(ph) // 2
        p.extend(ph[:h])
        p(f"buffer_store_dwordx4 v[212:215], v2, {WS}, {sKC} offen sc1", tag="pub1")
        p.extend(flat(self.dmaWO(5)))
        p.extend(ph[h:])
        p(f"buffer_store_dwordx4 v[216:219], v2, {WS}, {sKC} offen offset:1024 sc1", tag="pub1")
        self.stamp("A_pqst")
        p.extend(self.rloads())
        nsh = o.get('nsh', 16)
        p(f"s_and_b32 {sT3}, s2, {nsh-1}\ns_lshl_b32 {sT3}, {sT3}, 8")
        p("WAITTAG pub1\ns_barrier")
        self.signal(sT3)
        self.stamp("A_sig")
        for q in (6, 7, 3):
            p.extend(flat(self.dmaWO(q)))
        p(f"""v_and_b32 v196, 31, v1
             v_lshrrev_b32 v197, 5, v1
             v_lshlrev_b32 v197, 4, v197
             v_lshl_add_u32 v5, v196, 10, v197
             s_lshl_b32 {sT3}, {sTB}, 15
             s_lshl_b32 {sT4}, {sW}, 6
             s_add_u32 {sT3}, {sT3}, {sT4}
             s_add_u32 {sT3}, {sT3}, {sB}
             buffer_load_dwordx4 v[220:223], v5, {X}, {sT3} offen
             buffer_load_dwordx4 v[224:227], v5, {X}, {sT3} offen offset:32""")

    def rloads(self):
        S = Seq()
        S(f"""s_lshr_b32 {sU}, s2, 3
             s_and_b32 {sKC}, s2, 7
             v_lshrrev_b32 v208, 3, v1
             v_and_b32 v209, 7, v1
             v_lshlrev_b32 v209, 4, v209
             v_mul_u32_u24 v210, 3584, v208
             v_add_u32 v210, v210, v209
             v_lshl_add_u32 v211, v208, 10, v209
             s_lshl_b32 {sT0}, {sKC}, 2
             s_add_u32 {sT0}, {sT0}, {sW}
             s_mul_i32 {sT0}, {sT0}, {16*3584}
             s_lshl_b32 {sT1}, {sU}, 7
             s_add_u32 {sT0}, {sT0}, {sT1}
             s_cmp_ge_u32 s2, 224
             s_cselect_b32 {sT0}, 0x7f000000, {sT0}
             s_add_u32 {sT1}, {sT0}, {8*3584}
             buffer_load_dwordx4 v[228:231], v210, {W1}, {sT0} offen
             buffer_load_dwordx4 v[232:235], v210, {W1}, {sT1} offen
             buffer_load_dwordx4 v[236:239], v210, {W3}, {sT0} offen
             buffer_load_dwordx4 v[240:243], v210, {W3}, {sT1} offen
             s_lshl_b32 {sT0}, {sU}, 2
             s_add_u32 {sT0}, {sT0}, {sW}
             s_lshl_b32 {sT0}, {sT0}, 14
             s_lshl_b32 {sT1}, {sKC}, 7
             s_add_u32 {sT0}, {sT0}, {sT1}
             s_add_u32 {sT1}, {sT0}, 8192
             buffer_load_dwordx4 v[244:247], v211, {W2}, {sT0} offen
             buffer_load_dwordx4 v[248:251], v211, {W2}, {sT1} offen""")
        return S

    def dmaW1(self, q):
        mat, kq = q & 1, q >> 1
        S = Seq()
        S(f"""s_add_u32 {sT0}, {sA}, {kq*128*3584}
             s_add_u32 m0, {sB}, {mat*65536 + kq*16384}""")
        g = []
        for k in range(4):
            S(f"buffer_load_dwordx4 v{(6 if mat == 0 else 10)+k}, {W3 if mat else W1}, {sT0} offen offset:{k*1024} lds", tag=f"W1_{q}")
            g.append(list(S))
            S = Seq()
        return g

    def phaseB(self):
        p = self.p
        o = self.o
        nsh = o.get('nsh', 16)
        RS = 0x20000
        sRW, sR2, sRC = "s96", "s97", "s98"
        p(f"""v_and_b32 v48, 7, v1
             v_bfe_u32 v49, v1, 4, 1
             v_lshlrev_b32 v49, 2, v49
             v_xor_b32 v48, v48, v49
             v_lshrrev_b32 v49, 3, v1
             v_lshlrev_b32 v49, 7, v49
             v_lshl_add_u32 v48, v48, 4, v49
             s_lshl_b32 {sT3}, {sW}, 11
             s_add_u32 {sT3}, {sT3}, {hex(RS)}
             v_add_u32 v48, {sT3}, v48
             v_xor_b32 v49, 32, v48""")
        p(f"""v_lshrrev_b32 v50, 5, v1
             v_lshlrev_b32 v50, 10, v50
             v_bfe_u32 v51, v1, 2, 2
             v_lshl_add_u32 v50, v51, 7, v50
             v_and_b32 v51, 1, v1
             v_lshl_add_u32 v50, v51, 4, v50
             v_bfe_u32 v51, v1, 1, 1
             v_lshl_add_u32 v50, v51, 3, v50
             v_bfe_u32 v51, v1, 3, 1
             v_lshlrev_b32 v51, 1, v51
             v_bfe_u32 v52, v1, 4, 1
             v_xor_b32 v51, v51, v52
             v_lshl_add_u32 v53, v51, 5, v50
             v_lshl_add_u32 v42, v52, 16, v53
             v_xor_b32 v43, 32, v42
             v_xor_b32 v44, 64, v42
             v_xor_b32 v45, 96, v42
             s_lshl_b32 {sT4}, {sW}, 5
             v_xor_b32 v54, {sT4}, v53
             v_lshl_add_u32 v54, v52, 13, v54
             v_add_u32 v54, {hex(RS)}, v54
             v_add_u32 v55, {sT3}, v53
             v_xor_b32 v56, 64, v55""")
        p(f"""v_lshrrev_b32 v199, 5, v1
             v_lshlrev_b32 v199, 11, v199
             v_bfe_u32 v200, v1, 2, 2
             v_lshl_add_u32 v199, v200, 8, v199
             v_xor_b32 v200, {sW}, v200
             v_lshl_add_u32 v199, v200, 6, v199
             v_bfe_u32 v200, v1, 4, 1
             v_lshl_add_u32 v199, v200, 5, v199
             v_and_b32 v200, 1, v1
             v_lshl_add_u32 v199, v200, 4, v199
             v_bfe_u32 v200, v1, 1, 1
             v_lshl_add_u32 v199, v200, 3, v199""")
        for q in range(4):
            p(f"""s_add_u32 {sT0}, {sW}, {q+4}
                 s_sub_u32 {sCc}, {sT0}, {sRQ}
                 s_and_b32 {sCc}, {sCc}, 3
                 s_lshl_b32 {sCc}, {sCc}, 15
                 v_add_u32 v{10+q}, {sCc}, v199
                 s_and_b32 {sT0}, {sT0}, 3
                 s_lshl_b32 {sT0}, {sT0}, 13
                 s_add_u32 {sT0}, {sT0}, 0x20000
                 v_add_u32 v{252+q}, {sT0}, v2""")
        p("""ds_write_b128 v48, v[228:231]
             ds_write_b128 v48, v[232:235] offset:1024
             ds_write_b128 v49, v[236:239] offset:8192
             ds_write_b128 v49, v[240:243] offset:9216
             ds_write_b128 v48, v[244:247] offset:16384
             ds_write_b128 v48, v[248:251] offset:17408""")
        p(f"""s_lshl_b32 {sT1}, {sU}, 2
             s_add_u32 {sT1}, {sT1}, {sW}
             s_sub_u32 {sRW}, {sT1}, 64
             s_lshl_b32 {sRW}, {sRW}, 15
             s_lshl_b32 {sT3}, {sKC}, 12
             s_add_u32 {sRW}, {sRW}, {sT3}
             s_add_u32 {sRW}, {sRW}, {hex(W13R)}
             s_cmp_lt_u32 s2, 128
             s_cselect_b32 {sRW}, 0x7f000000, {sRW}
             s_mul_i32 {sR2}, {sKC}, {112*2048}
             s_lshl_b32 {sT4}, {sT1}, 11
             s_add_u32 {sR2}, {sR2}, {sT4}
             s_add_u32 {sR2}, {sR2}, {hex(W2R)}
             s_lshl_b32 {sRC}, {sT1}, 10
             s_lshr_b32 {sT1}, {sKC}, 2
             s_lshl_b32 {sT1}, {sT1}, 9
             s_add_u32 {sRC}, {sRC}, {sT1}
             s_and_b32 {sT1}, {sKC}, 3
             s_lshl_b32 {sT1}, {sT1}, 2
             s_add_u32 {sRC}, {sRC}, {sT1}
             s_add_u32 {sRC}, {sRC}, {hex(CS)}
             s_cmp_ge_u32 s2, 224
             s_cselect_b32 {sRW}, 0x7f000000, {sRW}
             s_cselect_b32 {sR2}, 0x7f000000, {sR2}
             s_cselect_b32 {sRC}, 0x7f000000, {sRC}
             v_mov_b32 v46, 0x08000000
             v_cndmask_b32 v46, v2, v46, {sHILANES}""")
        p("WAITTAG WO3\nWAITALL lgkm\ns_barrier")
        self.stamp("B_wo")
        for s in range(4):
            p.extend(trpair(('v', 228 + 4 * s), "v54", s * 2048, 512))
        p.extend(trpair(('v', 244), "v55", 16384, 512))
        p.extend(trpair(('v', 248), "v56", 16384, 512))
        W = [trpair(('a', 128 + 4 * i), f"v{10+(i>>3)}", (i & 7) * 4096, 1024) for i in range(32)]
        for s in range(4):
            W[2 + s] = W[2 + s] + [mf16(36, v(16, 4), v(228 + 4 * s, 4), "0" if s == 0 else None)]
        p.extend(flat(W))
        AH = 192
        p("""v_cvt_pk_bf16_f32 v47, v36, v36
             v_lshlrev_b32 v47, 16, v47
             v_sub_f32 v47, v36, v47
             v_cvt_pk_bf16_f32 v47, v36, v47""")
        p(f"""v_lshlrev_b32 v40, 8, v1
             v_lshrrev_b32 v41, 5, v1
             v_and_b32 v198, 15, v1
             v_lshl_add_u32 v198, v41, 4, v198
             v_lshlrev_b32 v198, 4, v198
             v_lshlrev_b32 v41, 4, v41
             v_add_u32 v41, {hex(ZP-KVM)}, v41
             v_cndmask_b32 v41, v198, v41, {sB4LANES}
             s_lshl_b32 {sT3}, {sW}, 13
             s_add_u32 {sT1}, {sT3}, {hex(KVM)}
             s_add_u32 {sT2}, {sT1}, 4096
             s_lshl_b32 {sT4}, {sTB}, 15
             s_add_u32 {sT3}, {sT3}, {sT4}
             s_add_u32 {sT3}, {sT3}, {hex(PQ)}
             s_add_u32 {sT4}, {sT3}, 4096""")
        self.stamp("B_prepoll")
        self.spin("v15", "v40", "0", hex((1 << nsh) - 1) if nsh < 64 else "-1", str(256 // nsh), sleep=o.get('sleep1', 0))
        p("WAITALL lgkm\ns_barrier")
        self.stamp("B_sync1")
        for i in range(8):
            so = sT1 if i < 4 else sT2
            p(f"buffer_load_dwordx4 {v(48+8*i,4)}, v41, {WS}, {so} offen offset:{(i&3)*1024} sc1")
            p(f"buffer_load_dwordx4 {v(52+8*i,4)}, v41, {WS}, {so} offen offset:{(i&3)*1024+512} sc1")
            p(f"buffer_load_dwordx4 {a_(4*i,4)}, v2, {WS}, {sT3 if i < 4 else sT4} offen offset:{(i&3)*1024} sc1")
            if i == 2:
                for k in range(8):
                    p(f"v_lshlrev_b32 v{AH+2*k}, 16, v{220+k}\nv_and_b32 v{AH+2*k+1}, {sMSKHI}, v{220+k}")
                p(f"""v_lshrrev_b32 v208, 3, v1
                     v_mul_u32_u24 v208, 3584, v208
                     v_and_b32 v209, 7, v1
                     v_bfe_u32 v212, v1, 4, 1
                     v_lshlrev_b32 v212, 2, v212
                     v_xor_b32 v209, v209, v212
                     v_lshl_add_u32 v6, v209, 4, v208
                     v_xor_b32 v209, 2, v209
                     v_lshl_add_u32 v10, v209, 4, v208""")
                for k in range(1, 4):
                    p(f"v_add_u32 v{6+k}, {k*(8*3584-1024)}, v6\nv_add_u32 v{10+k}, {k*(8*3584-1024)}, v10")
                p("s_nop 0")
        p(f"""s_mul_i32 {sA}, {sW}, {32*3584}
             s_lshl_b32 {sT0}, {sM}, 7
             s_add_u32 {sA}, {sA}, {sT0}
             s_lshl_b32 {sB}, {sW}, 12""")
        RST = []
        for s in range(4):
            RST.append(Inst(f"buffer_store_dwordx4 {v(228+4*s,4)}, v2, {WS}, {sRW} offen offset:{s*1024} sc1", tag="pubR"))
        RST.append(Inst(f"buffer_store_dwordx4 v[244:247], v2, {WS}, {sR2} offen sc1", tag="pubR"))
        RST.append(Inst(f"buffer_store_dwordx4 v[248:251], v2, {WS}, {sR2} offen offset:1024 sc1", tag="pubR"))
        RST.append(Inst(f"buffer_store_dword v47, v46, {WS}, {sRC} offen sc1", tag="pubR"))
        w1q = [self.dmaW1(q) for q in range(8)]
        VM = [[r] for r in RST] + w1q[0] + w1q[1]
        NA = [144, 160, 176]

        def cv(i):
            S = Seq()
            for k in range(4):
                S(f"v_cvt_pk_bf16_f32 v{112+4*i+k}, v{48+8*i+2*k}, v{48+8*i+2*k+1}")
            S.append(mf32(NA[i % 3], v(112 + 4 * i, 4), a_(4 * i, 4), "0"))
            return S

        def fin(i):
            n = NA[i % 3]
            S = Seq()
            S(f"v_add_f32 v{n+8}, {sEPS6}, v{n+8}\nv_rcp_f32 v{n+8}, v{n+8}")
            for k in range(8):
                S(f"v_mul_f32 v{n+k}, v{n+k}, v{n+8}")
            for k in range(4):
                S(f"v_cvt_pk_bf16_f32 v{48+4*i+k}, v{n+2*k}, v{n+2*k+1}")
            return S
        p.extend(cv(0))
        p.extend(cv(1))
        for i in range(8):
            if i + 2 < 8:
                p.extend(cv(i + 2))
            for _ in range(2):
                if VM:
                    p.extend(VM.pop(0))
            p.extend(fin(i))
            if i >= 1:
                p.append(mf32(AH, a_(128 + 4 * (i - 1), 4), v(48 + 4 * (i - 1), 4)))
            p(f"ds_write_b128 v252, {v(48+4*i,4)} offset:{i*1024}")
        assert not VM
        self.stamp("B_st1")
        p("WAITALL lgkm\ns_barrier")

        def oread(i):
            return [Inst(f"ds_read_b128 {v(80+4*(i&7),4)}, v{252+(i>>3)} offset:{(i&7)*1024}")]
        for i in range(8, 12):
            p.extend(oread(i))
        p.append(mf32(AH, a_(128 + 28, 4), v(48 + 28, 4)))
        G = []
        for i in range(8, 32):
            g = [mf32(AH, a_(128 + 4 * i, 4), v(80 + 4 * (i & 7), 4))]
            if i + 4 < 32:
                g += oread(i + 4)
            G.append(g)
        G = weave(G, w1q[2] + w1q[3] + w1q[4], 0, 24)
        rs = o.get('rsig', 10)
        G[rs] += list(Seq()("WAITTAG pubR\ns_barrier")) + self.sub(self.signalR)
        S = Seq()
        S(f"""s_lshl_b32 {sT3}, {sTB}, 15
             s_lshl_b32 {sT4}, {sCB}, 2
             s_add_u32 {sT4}, {sT4}, {sW}
             s_lshl_b32 {sT1}, {sT4}, 11
             s_add_u32 {sT3}, {sT3}, {sT1}
             s_add_u32 {sT3}, {sT3}, {hex(HB)}
             s_lshl_b32 {sT1}, {sTB}, 12
             s_lshl_b32 {sT4}, {sT4}, 8
             s_add_u32 {sT4}, {sT4}, {sT1}
             s_add_u32 {sT4}, {sT4}, {hex(ST)}
             v_lshlrev_b32 v15, 2, v1""")
        G = weave(G, list(S), rs + 2, rs + 8)
        p.extend(flat(G))
        for k in range(8):
            p(f"v_cvt_pk_bf16_f32 v{208+k}, v{AH+2*k}, v{AH+2*k+1}")
            if k == 3:
                p(f"buffer_store_dwordx4 v[208:211], v2, {WS}, {sT3} offen sc1", tag="pub2")
        p(f"buffer_store_dwordx4 v[212:215], v2, {WS}, {sT3} offen offset:1024 sc1", tag="pub2")
        p(f"v_add_f32 v216, v{AH}, v{AH+1}\nv_mul_f32 v217, v{AH}, v{AH}\nv_add_f32 v218, v{AH+2}, v{AH+3}\nv_mul_f32 v219, v{AH+1}, v{AH+1}")
        for k in range(2, 16):
            if k >= 4:
                p(f"v_add_f32 v{216+2*(k&1)}, v{216+2*(k&1)}, v{AH+k}")
            p(f"v_fmac_f32 v{217+2*(k&1)}, v{AH+k}, v{AH+k}")
        p("""v_add_f32 v216, v216, v218
             v_add_f32 v217, v217, v219
             v_permlane32_swap_b32 v216, v217
             v_add_f32 v216, v216, v217""")
        p(f"buffer_store_dword v216, v15, {WS}, {sT4} offen sc1", tag="pub2")
        self.stamp("B_hst")
        p.extend(flat(w1q[5] + w1q[6]))
        p(f"s_lshl_b32 {sD}, {sG}, 8\ns_add_u32 {sT3}, {sD}, {C_H*256}")
        p("WAITTAG pub2\ns_barrier")
        self.signal(sT3)
        self.stamp("B_sig")
        p.extend(flat(w1q[7]))

    def signalR(self):
        p = self.p
        L = self.lab("sigR")
        p(f"""s_lshl_b32 {sT2}, {sW}, 8
             s_add_u32 {sT2}, {sT2}, s2
             s_cmp_ge_u32 {sT2}, 224
             s_cbranch_scc1 {L}""")
        p(f"""v_mov_b32 v14, 1
             s_add_u32 {sT2}, {sU}, {C_R13}
             s_add_u32 {sT1}, {sKC}, {C_R2}
             s_lshl_b32 {sT2}, {sT2}, 8
             s_lshl_b32 {sT1}, {sT1}, 8
             s_mov_b64 exec, 1
             buffer_atomic_add v14, off, {WS}, {sT2} sc1
             buffer_atomic_add v14, off, {WS}, {sT1} sc1
             s_mov_b64 exec, -1""", cond=True)
        p(f"{L}:")

    def phaseCD(self):
        p = self.p
        o = self.o
        sub = self.sub
        sHB, sHS, sW2, sHL0, sHL1, sHS2 = "s48", "s49", "s50", "s51", "s43", "s99"
        p(f"""s_mul_i32 {sT0}, {sM}, 3
             s_lshr_b32 {sT1}, {sT0}, 2
             s_add_u32 {sT1}, {sT1}, {C_R13+16}
             s_add_u32 {sT2}, {sT0}, 2
             s_lshr_b32 {sT2}, {sT2}, 2
             s_add_u32 {sT2}, {sT2}, {C_R13+16}
             s_add_u32 {sT0}, {sM}, {C_R13}
             s_and_b32 {sCB}, {sM}, 7
             s_add_u32 {sT3}, {sCB}, {C_R2}
             s_add_u32 {sT4}, {sG}, {C_H}
             v_mov_b32 v210, {sT0}
             v_writelane_b32 v210, {sT1}, 1
             v_writelane_b32 v210, {sT2}, 2
             v_writelane_b32 v210, {sT3}, 3
             v_writelane_b32 v210, {sT4}, 4
             v_lshlrev_b32 v210, 8, v210
             v_mov_b32 v211, 8
             v_writelane_b32 v211, 28, 3
             v_writelane_b32 v211, 16, 4""")
        p(f"""s_lshl_b32 {sT0}, {sG}, 2
             s_add_u32 {sT0}, {sT0}, {sW}
             s_lshl_b32 {sHB}, {sT0}, 15
             s_add_u32 {sHB}, {sHB}, {hex(HB)}
             s_mul_i32 {sHS}, {sT0}, {112*1024}
             s_add_u32 {sHS}, {sHS}, {hex(HH)}
             s_mul_i32 {sHS2}, {sM}, 3072
             s_add_u32 {sHS2}, {sHS2}, {sHS}
             s_add_u32 {sHS2}, {sHS2}, 65536
             s_lshl_b32 {sT1}, {sM}, 12
             s_add_u32 {sHS}, {sHS}, {sT1}
             s_lshl_b32 {sT4}, {sT0}, 12
             s_add_u32 {sT4}, {sT4}, {hex(ST)}
             s_mul_i32 {sA}, {sM}, {3*32768}
             s_lshl_b32 {sB}, {sW}, 13
             s_add_u32 {sA}, {sA}, {sB}
             s_add_u32 {sA}, {sA}, {hex(W13R)}
             s_mul_i32 {sW2}, {sCB}, {112*2048}
             s_add_u32 {sW2}, {sW2}, {hex(W2R)}
             s_mul_i32 {sU}, {sW}, {12*2048}
             s_add_u32 {sU}, {sU}, {sW2}
             s_add_u32 {sU}, {sU}, {64*2048}
             s_lshl_b32 {sT0}, {sW}, 15
             s_add_u32 {sW2}, {sW2}, {sT0}
             s_and_b32 {sT0}, {sW}, 1
             s_lshl_b32 {sT0}, {sT0}, 10
             v_add_u32 v46, {sT0}, v2
             v_xor_b32 v47, 1024, v46
             v_add_u32 v41, 0x20000, v2""")
        steps = []
        for pr in range(4):
            for t in range(3):
                steps.append((0, 4 * pr + t))
        for pr in range(4):
            steps.append((0, 4 * pr + 3))
        for pr in range(4):
            steps.append((1, 3 * pr))
        for pr in range(4):
            for t in (1, 2):
                steps.append((1, 3 * pr + t))
        w2l = []
        for i in range(16):
            kind, off = steps[i]
            S = Seq()
            if off % 2 == 0 or i >= 12:
                S(f"s_add_u32 {sKC}, {sW2}, {(off & ~1)*2048}")
            S(f"buffer_load_dwordx4 {a_(128+8*i,4)}, v46, {WS}, {sKC} offen offset:{(off&1)*2048} sc1")
            w2l.append(list(S))
            w2l.append([Inst(f"buffer_load_dwordx4 {a_(132+8*i,4)}, v47, {WS}, {sKC} offen offset:{(off&1)*2048} sc1")])
        npre = o.get('w2pre', 0)
        self.stamp("C_prepoll")
        if npre:
            self.spin("v212", "v210", "0", "15", "v211")
            p("s_barrier")
            p.extend(flat(w2l[:npre]))
            self.spin("v212", "v210", "0", "16", "v211")
        else:
            self.spin("v212", "v210", "0", "31", "v211")
        w2l = w2l[npre:]
        p("WAITTAG W1_7\ns_barrier")
        self.stamp("C_sync2")

        def hload(s):
            S = Seq()
            if s % 4 == 0 and s:
                S(f"s_add_u32 {sHB}, {sHB}, 4096")
            S(f"buffer_load_dwordx4 {a_(4*s,4)}, v2, {WS}, {sHB} offen offset:{(s&3)*1024} sc1")
            return list(S)
        HL = o.get('hla', 8)
        for s in range(HL):
            p.extend(hload(s))
        ACC = [48, 64, 80, 96, 112]
        acc_of = [0, 1, 2, 3, 0, 1, 2]
        WR = 128
        CSF, MEANF, C1, C2 = 152, 180, 184, 185
        T = 186
        F0 = Seq()
        for k in range(16):
            F0(f"buffer_load_dword v{214+k}, v15, {WS}, {sT4} offen offset:{k*256} sc1")
        F1 = Seq()
        U = 214
        for st in (8, 4, 2, 1):
            for k in range(st):
                F1(f"v_add_f32 v{U+k}, v{U+k}, v{U+k+st}")
        F1(f"""v_mov_b32 v{U+1}, v{U}
             v_permlane32_swap_b32 v{U}, v{U+1}
             v_mul_f32 v{U}, 0x3b000000, v{U}
             v_mul_f32 v{U+1}, 0x3b000000, v{U+1}
             v_cvt_pk_bf16_f32 v{MEANF}, -v{U}, -v{U}
             v_fma_f32 v{U+1}, -v{U}, v{U}, v{U+1}
             v_mov_b32 v{MEANF+1}, v{MEANF}
             v_max_f32 v{U+1}, 0, v{U+1}
             v_mov_b32 v{MEANF+2}, v{MEANF}
             v_add_f32 v{C2}, 0x3727c5ac, v{U+1}
             v_rsq_f32 v{C1}, v{C2}
             v_mov_b32 v{MEANF+3}, v{MEANF}
             v_mul_f32 v{C1}, 0xbfb8aa3b, v{C1}""")

        def csload(t):
            S = Seq()
            if t < 4:
                S(f"s_lshl_b32 {sT1}, {sM}, 12\ns_add_u32 {sT1}, {sT1}, {hex(CS+t*1024)}")
            else:
                S(f"s_mul_i32 {sT1}, {sM}, 3072\ns_add_u32 {sT1}, {sT1}, {hex(CS+(64+t-4)*1024)}")
            S(f"buffer_load_dwordx4 {v(CSF+4*t,4)}, v2, {WS}, {sT1} offen sc1")
            return list(S)

        def dmaT(t, ldsbase):
            g = []
            for h in range(2):
                S = Seq()
                S(f"s_add_u32 {sT0}, {sA}, {(t-4)*32768+h*4096}\ns_add_u32 m0, {sB}, {ldsbase+h*4096}")
                for k in range(4):
                    S(f"buffer_load_dwordx4 v2, {WS}, {sT0} offen offset:{k*1024} sc1 lds", tag=f"T{t}")
                    g.append(list(S))
                    S = Seq()
            return g

        TB = {4: 0x20000, 5: 0, 6: 0x8000}

        def tread(t, s, n):
            if t < 4:
                return trpair(('v', WR + 4 * (n % 6)), f"v{42+t}", s * 2048, 512)
            if t == 4:
                return [Inst(f"ds_read_b128 {v(WR+4*(n%6),4)}, v41 offset:{s*1024}")]
            return [Inst(f"ds_read_b128 {v(WR+4*(n%6),4)}, v2 offset:{TB[t]+s*1024}")]

        def corr(t):
            return mf32(ACC[acc_of[t]], v(CSF + 4 * t, 4), v(MEANF, 4))
        G = []
        for n in range(64):
            s, t = divmod(n, 2)
            g = [mf32(ACC[t], v(WR + 4 * (n % 6), 4), a_(4 * s, 4), "0" if s == 0 else None)]
            if n + 4 < 64:
                g += tread((n + 4) % 2, (n + 4) // 2, n + 4)
            else:
                g += tread(2, n + 4 - 64, n + 4)
            if t == 0 and s + HL < 32:
                g += hload(s + HL)
            G.append(g)
        for n in range(4):
            p.extend(tread(n % 2, n // 2, n))
        e0 = 2 * (32 - HL)
        G = weave(G, list(F0) + [csload(0), csload(1)], e0, 62)
        p.extend(flat(G))
        self.stamp("C_g1")

        def epi(t, tmp):
            A = ACC[acc_of[t]]
            S = Seq()
            for j in range(8):
                S(f"v_mul_f32 v{tmp+j}, v{A+j}, v{C1}")
            for j in range(8):
                S(f"v_exp_f32 v{tmp+j}, v{tmp+j}")
                S(f"v_mul_f32 v{A+j}, v{A+j}, v{A+8+j}")
            for j in range(8):
                S(f"v_fma_f32 v{tmp+j}, v{tmp+j}, v{C2}, v{C2}")
                if j >= 2:
                    S(f"v_rcp_f32 v{tmp+j-2}, v{tmp+j-2}")
            for j in range(8):
                S(f"v_mul_f32 v{A+j}, v{A+j}, v{tmp+j}")
                if j < 2:
                    S(f"v_rcp_f32 v{tmp+6+j}, v{tmp+6+j}")
            for j in range(4):
                S(f"v_cvt_pk_bf16_f32 v{tmp+8+j}, v{A+2*j}, v{A+2*j+1}")
            if t < 4:
                S(f"buffer_store_dwordx4 {v(tmp+8,4)}, v2, {WS}, {sHS} offen offset:{t*1024} sc1", tag=f"hh{t}")
            else:
                S(f"buffer_store_dwordx4 {v(tmp+8,4)}, v2, {WS}, {sHS2} offen offset:{(t-4)*1024} sc1", tag=f"hh{t}")
            return list(S)

        def tilepass(t, n0, boundary):
            G = []
            for s in range(32):
                n = n0 + s
                g = [mf32(ACC[acc_of[t]], v(WR + 4 * (n % 6), 4), a_(4 * s, 4), "0" if s == 0 else None)]
                if s + 4 < 32:
                    g += tread(t, s + 4, n + 4)
                elif t < 6:
                    if s == 28 and boundary:
                        g += boundary
                    g += tread(t + 1, s + 4 - 32, n + 4)
                G.append(g)
            G.append([corr(t)])
            return G

        def dmaW2(part):
            g = []
            rng = range(0, 4) if part == 0 else range(4, 6)
            for h in rng:
                S = Seq()
                if part == 0:
                    S(f"s_lshl_b32 {sT1}, {sW}, 14\ns_add_u32 m0, {sT1}, {0x10000+h*4096}")
                else:
                    S(f"s_add_u32 m0, {sB}, {0x20000+(h-4)*4096}")
                S(f"s_add_u32 {sT0}, {sU}, {h*4096}")
                for k in range(4):
                    S(f"buffer_load_dwordx4 v2, {WS}, {sT0} offen offset:{k*1024} sc1 lds", tag=f"W2L{part}")
                    g.append(list(S))
                    S = Seq()
            return g

        def pub(tags, cnt):
            def f():
                self.p(f"s_add_u32 {sT3}, {sD}, {cnt*256}")
                self.p("WAITTAG " + " ".join(tags) + "\ns_barrier")
                self.signal(sT3)
            return sub(f)

        def pollld(cnt):
            return list(Seq()(f"s_add_u32 {sT2}, {sD}, {cnt*256}\nbuffer_load_dword v212, off, {WS}, {sT2} sc1"))

        def pollchk():
            return sub(lambda: self.spin("v212", None, sT2, "1", "16", first_loaded=True, sleep=1))

        def hhload(i):
            kind, off = steps[i]
            S = Seq()
            S(f"s_add_u32 {sCc}, {sHL1 if kind else sHL0}, {off*1024}")
            S(f"buffer_load_dwordx4 {a_(8*(i&15),4)}, v42, {WS}, {sCc} offen sc1")
            return [list(S), [Inst(f"buffer_load_dwordx4 {a_(8*(i&15)+4,4)}, v43, {WS}, {sCc} offen sc1")]]

        EP = [epi(t, T + 12 * (t & 1)) for t in range(7)]
        bar = lambda s_: list(Seq()(s_))
        P = {2: tilepass(2, 64, None),
             3: tilepass(3, 96, bar("WAITTAG T4\nWAITALL lgkm\ns_barrier")),
             4: tilepass(4, 128, bar("WAITTAG T5\nWAITALL lgkm\ns_barrier")),
             5: tilepass(5, 160, bar("WAITTAG T6\ns_barrier")),
             6: tilepass(6, 192, None)}
        k1 = max(0, len(w2l) - 22)
        G = weave(P[2], [csload(t) for t in range(2, 7)] + w2l[:k1], 2, 32)
        G = weave(G, list(F1), 1, 8)
        G[8] += [corr(0), corr(1)]
        G = weave(G, EP[0] + EP[1][:12], 10, 33)
        p.extend(self.xf(flat(G)))
        self.stamp("C_t2")
        G = weave(P[3], dmaT(4, 0x20000) + w2l[k1:k1 + 6], 0, 28)
        G = weave(G, EP[1][12:] + EP[2][:30], 0, 33)
        p.extend(self.xf(flat(G)))
        self.stamp("C_t3")
        G = weave(P[4], dmaT(5, TB[5]) + dmaT(6, TB[6]), 0, 30)
        G = weave(G, EP[2][30:] + EP[3], 0, 33)
        G[29] += pub(["hh2"], C_P1)
        p.extend(self.xf(flat(G)))
        self.stamp("C_t4")
        F5 = Seq()
        F5(f"""s_lshr_b32 {sT0}, {sM}, 3
             s_lshl_b32 {sT0}, {sT0}, 1
             s_lshl_b32 {sT1}, {sG}, 2
             s_add_u32 {sT0}, {sT0}, {sT1}
             s_lshr_b32 {sT1}, {sW}, 1
             s_add_u32 {sTB}, {sT0}, {sT1}
             s_mul_i32 {sHL0}, {sT0}, {112*1024}
             s_add_u32 {sHL0}, {sHL0}, {hex(HH)}
             s_mul_i32 {sHL1}, {sW}, {12*1024}
             s_add_u32 {sHL1}, {sHL1}, {sHL0}
             s_add_u32 {sHL1}, {sHL1}, 65536
             s_lshl_b32 {sT0}, {sW}, 14
             s_add_u32 {sHL0}, {sHL0}, {sT0}
             s_mul_i32 {sT0}, {sT1}, {112*1024}
             v_add_u32 v42, {sT0}, v2
             s_sub_u32 {sT0}, {112*1024}, {sT0}
             v_add_u32 v43, {sT0}, v2
             s_lshl_b32 {sHB}, {sTB}, 15
             s_lshl_b32 {sT1}, {sCB}, 12
             s_add_u32 {sHB}, {sHB}, {sT1}
             s_and_b32 {sT1}, {sW}, 1
             s_lshl_b32 {sT1}, {sT1}, 11
             s_add_u32 {sHB}, {sHB}, {sT1}
             s_add_u32 {sHB}, {sHB}, {hex(HB)}""")
        G = weave(P[5], w2l[k1 + 6:], 0, 32)
        G = weave(G, EP[4], 2, 22)
        G = weave(G, list(F5), 22, 33)
        p.extend(self.xf(flat(G)))
        self.stamp("C_t5")
        LA = o.get('dla', 6)
        G = P[6]
        G[0] += pollld(C_P1)
        G = weave(G, dmaW2(0)[:8], 1, 12)
        G[10] += pub(["hh4"], C_P2)
        G[12] += pollchk()
        G = weave(G, [x for i in range(LA) for x in hhload(i)], 13, 33)
        G = weave(G, EP[5], 2, 30)
        p.extend(self.xf(flat(G)))
        self.stamp("C_t6")

        DA = [48, 64, 96, 112]

        def w2read(i):
            off = steps[i][1]
            r = []
            for a in range(2):
                d = v(WR + 8 * (i % 3) + 4 * a, 4)
                if off < 8:
                    r.append(Inst(f"ds_read_b128 {d}, v{44+a} offset:{off*2048}"))
                else:
                    r.append(Inst(f"ds_read_b128 {d}, v{46+a} offset:{(off-8)*2048}"))
            return r

        def w2f(i, a):
            return a_(128 + 8 * i + 4 * a, 4) if i < 16 else v(WR + 8 * (i % 3) + 4 * a, 4)
        G = []
        for i in range(28):
            nxt = i + LA
            ld = hhload(nxt) if nxt < 28 else []
            order = [(1, 0), (1, 1), (0, 1), (0, 0)]
            for k, (a, b) in enumerate(order):
                g = [mf32(DA[a + 2 * b], w2f(i, a), a_(8 * (i & 15) + 4 * b, 4), "0" if i == 0 else None)]
                if k == 0 and nxt in (12, 20):
                    g += pollchk()
                if k == 0 and i == 14:
                    g += bar("WAITTAG W2L0 W2L1")
                if k == 1 and 16 <= i + 2 < 28:
                    g += w2read(i + 2)
                if k in (0, 2) and ld:
                    g += ld.pop(0)
                if k == 3 and nxt + 3 in (12, 20):
                    g += pollld(C_P2 if nxt + 3 == 12 else C_P3)
                G.append(g)
        S = Seq()
        S(f"""s_lshl_b32 {sT1}, {sW}, 14
             s_add_u32 {sT1}, {sT1}, 0x10000
             v_add_u32 v44, {sT1}, v46
             v_add_u32 v45, {sT1}, v47
             s_add_u32 {sT1}, {sB}, 0x20000
             v_add_u32 v46, {sT1}, v46
             v_add_u32 v47, {sT1}, v47""")
        G[0] += list(S)
        G = weave(G, EP[6], 1, 14)
        pp = o.get('p3at', 30)
        G[pp] += pub(["hh6"], C_P3)
        G = weave(G, dmaW2(0)[8:] + dmaW2(1), 1, 48)
        G[100] += bar(f"buffer_load_dwordx4 v[152:155], v2, {WS}, {sHB} offen sc1")
        G[101] += bar(f"buffer_load_dwordx4 v[156:159], v2, {WS}, {sHB} offen offset:1024 sc1")
        S = Seq()
        for k in (1, 3, 2):
            S(f"""s_xor_b32 {sT0}, {sW}, {k}
                 s_mul_i32 {sT0}, {sT0}, 12288
                 v_add_u32 v{36+k}, {sT0}, v2""")
        S(f"""s_mul_i32 {sT0}, {sW}, 12288
             v_add_u32 v36, {sT0}, v2
             s_lshl_b32 {sT0}, {sTB}, 15
             s_lshl_b32 {sT1}, {sCB}, 7
             s_add_u32 {sT0}, {sT0}, {sT1}
             s_and_b32 {sT1}, {sW}, 1
             s_lshl_b32 {sT1}, {sT1}, 6
             s_add_u32 {sT0}, {sT0}, {sT1}""")
        G = weave(G, list(S), 102, 110)
        p.extend(self.xf(flat(G)))
        self.stamp("D_loop")
        for k in (1, 3, 2):
            for q in range(4):
                p(f"ds_write_b128 v{36+k}, {v(DA[k]+4*q,4)} offset:{(k-1)*4096+q*1024}")
        for i in range(8):
            p(f"""v_lshlrev_b32 v{80+2*i}, 16, v{152+i}
                 v_and_b32 v{81+2*i}, {sMSKHI}, v{152+i}""")
        for i in range(16):
            p(f"v_add_f32 v{48+i}, v{48+i}, v{80+i}")
        p("WAITALL lgkm\ns_barrier")
        for q in range(4):
            for k in range(3):
                p(f"ds_read_b128 {v(160+16*k+4*q,4)}, v36 offset:{k*4096+q*1024}")
        for q in range(4):
            for j in range(4):
                r = 4 * q + j
                p(f"v_add_f32 v{48+r}, v{48+r}, v{160+r}")
                p(f"v_add_f32 v{176+r}, v{176+r}, v{192+r}")
            for j in range(4):
                r = 4 * q + j
                p(f"v_add_f32 v{48+r}, v{48+r}, v{176+r}")
            for j in range(2):
                p(f"v_cvt_pk_bf16_f32 v{112+2*q+j}, v{48+4*q+2*j}, v{48+4*q+2*j+1}")
            if q & 1:
                p(f"buffer_store_dwordx4 {v(112+4*(q>>1),4)}, v5, {OUT}, {sT0} offen offset:{32*(q>>1)}" + ["", " sc1", " nt", " sc0 sc1"][o.get('outst', 0)])
        self.stamp("D_end")

    def finish(self):
        p = self.p
        if self.o.get('stamps'):
            p("WAITALL vm")
            self.stamp("drained")
            p(f"""s_lshl_b32 {sT0}, s2, 2
                 s_add_u32 {sT0}, {sT0}, {sW}
                 s_lshl_b32 {sT0}, {sT0}, 7
                 s_add_u32 {sT0}, {sT0}, {hex(STAMP)}
                 v_lshlrev_b32 v14, 2, v1
                 s_mov_b32 exec_hi, 0
                 buffer_store_dword v{STV}, v14, {WS}, {sT0} offen""")
        if self.o.get('padto'):
            p("WAITALL vm")
            if self.o.get('padmin'):
                p(f"buffer_load_dword v14, off, {DBG}, 0 offset:128 sc1\nv_not_b32 v14, v14\nv_readfirstlane_b32 s100, v14")
            p("L_pad:\ns_memrealtime s[72:73]\ns_waitcnt lgkmcnt(0)\ns_sub_u32 s72, s72, s100")
            p(f"s_cmp_lt_u32 s72, {self.o['padto']}\ns_cbranch_scc1 L_pad")
        p("L_end:\ns_endpgm")

    def build(self):
        if self.o.get('stamps') or self.o.get('padto'):
            self.p("s_memtime s[100:101]" if self.o.get('stamps') == 2 else "s_memrealtime s[100:101]")
        self.setup()
        self.phaseA_wrap()
        self.phaseB()
        self.phaseCD()
        self.finish()
        prog = finalize(self.p)
        return prog

    def phaseA_wrap(self):
        if self.o.get('stamps'):
            self.p(f"v_mov_b32 v{STV}, s100")
            self.nstamp = 1
            self.stamp_names.append("start")
        self.phaseA()


def emit(opt):
    g = Gen(opt)
    prog = g.build()
    hdr = open(os.path.join(os.path.dirname(os.path.abspath(__file__)), "header.txt")).read()
    body = "\n".join(("" if i.kind == 'label' else "    ") + i.text for i in prog)
    txt = hdr + f"""; @launch grid=(256,1,1) block=(256,1,1) lds=163840
.amdgcn_target "amdgcn-amd-amdhsa--gfx950"
.set CODE_PF_MAX, {opt.get('code_bytes', 0)}
.text
.globl {NAME}_kernel
.p2align 8
.type {NAME}_kernel,@function
{NAME}_kernel:
{body}
.section .rodata,"a"
.p2align 6
.amdhsa_kernel {NAME}_kernel
  .amdhsa_next_free_vgpr 512
  .amdhsa_next_free_sgpr 102
  .amdhsa_accum_offset 256
  .amdhsa_group_segment_fixed_size 0
  .amdhsa_kernarg_size 80
  .amdhsa_user_sgpr_count 2
  .amdhsa_user_sgpr_kernarg_segment_ptr 1
  .amdhsa_system_sgpr_workgroup_id_x 1
.end_amdhsa_kernel
"""
    return txt, g.stamp_names


def code_size(txt):
    import subprocess, tempfile
    with tempfile.TemporaryDirectory() as d:
        open(d + "/k.s", "w").write(txt)
        r = subprocess.run(["clang", "-x", "assembler", "-target", "amdgcn-amd-amdhsa",
                            "-mcpu=gfx950", "-c", d + "/k.s", "-o", d + "/k.o"], capture_output=True, text=True)
        if r.returncode:
            print("\n".join(r.stderr.split("\n")[:30]))
            raise SystemExit(1)
        r = subprocess.run(["llvm-objdump", "-h", d + "/k.o"], capture_output=True, text=True)
        for line in r.stdout.split("\n"):
            f = line.split()
            if len(f) > 2 and f[1] == ".text":
                return int(f[2], 16)


def main():
    opt = {}
    out = None
    for a in sys.argv[1:]:
        if '=' in a:
            k, val = a.split('=')
            try:
                opt[k] = int(val, 0)
            except ValueError:
                opt[k] = val
        else:
            out = a
    opt['code_bytes'] = 4096
    txt, names = emit(opt)
    sz = code_size(txt)
    opt['code_bytes'] = (sz - 1024) & ~3
    txt, names = emit(opt)
    open(out, "w").write(txt)
    if names:
        open(out + ".names", "w").write(" ".join(names))
    print(out, "code bytes", sz, "lines", txt.count("\n"), "stamps", len(names))


if __name__ == "__main__":
    main()
```

```python
import re

REG_RE = re.compile(r'(?<![\w.])([vas])\[(\d+):(\d+)\]|(?<![\w.])([vas])(\d+)(?![\w\[])|\b(vcc|exec|m0)\b')
TRANS = ('v_exp_f32', 'v_log_f32', 'v_rcp_f32', 'v_rsq_f32', 'v_sqrt_f32', 'v_sin_f32', 'v_cos_f32')


def regs_of(s):
    out = []
    for m in REG_RE.finditer(s):
        if m.group(1):
            out += [f"{m.group(1)}{i}" for i in range(int(m.group(2)), int(m.group(3)) + 1)]
        elif m.group(4):
            out.append(f"{m.group(4)}{m.group(5)}")
        else:
            out.append(m.group(6))
    return out


class Inst:
    __slots__ = ('text', 'op', 'kind', 'rd', 'wr', 'passes', 'tag', 'cond', 'srcc', 'srcab', 'wide', 'arg', 'ctx', 'ool')

    def __init__(self, text, tag=None, cond=False):
        self.text = text
        self.tag = tag
        self.cond = cond
        self.passes = 0
        self.srcc = set()
        self.srcab = set()
        self.wide = False
        self.arg = None
        self.ctx = None
        self.ool = None
        self.rd = set()
        self.wr = set()
        t = text.split(';')[0].strip()
        if t.endswith(':'):
            self.op = 'label'
            self.kind = 'label'
            return
        sp = t.split(None, 1)
        op = sp[0]
        self.op = op
        rest = sp[1] if len(sp) > 1 else ''
        ops = [o.strip() for o in rest.split(',')] if rest else []
        R = [regs_of(o) for o in ops]
        allr = [r for x in R for r in x]
        if op.startswith('v_mfma'):
            self.kind = 'mfma'
            self.wr = set(R[0])
            self.srcab = set(R[1]) | set(R[2])
            self.srcc = set(R[3])
            self.rd = self.srcab | self.srcc
            self.passes = 8 if '32x32x16' in op else 4 if '16x16x32' in op else 2 if '4x4x4' in op else None
            assert self.passes, op
        elif op.startswith('v_'):
            self.kind = 'trans' if op.replace('_e64', '').replace('_e32', '') in TRANS else 'valu'
            self.wr = set(R[0])
            self.rd = set(r for x in R[1:] for r in x)
            if 'swap' in op:
                self.wr = set(allr)
                self.rd = set(allr)
            if op.startswith(('v_fmac', 'v_dot2c', 'v_writelane')) or 'dpp' in text or 'row_' in text or 'quad_perm' in text:
                self.rd |= set(R[0])
            if '_co_' in op:
                self.wr |= set(R[1])
                self.rd = set(r for x in R[2:] for r in x)
        elif op.startswith(('buffer_load', 'global_load')):
            if re.search(r'\blds\b', rest) or '_lds_' in op:
                self.kind = 'dma'
                self.rd = set(allr) | {'m0'}
            else:
                self.kind = 'vload'
                self.wr = set(R[0])
                self.rd = set(r for x in R[1:] for r in x)
        elif op.startswith(('buffer_store', 'global_store', 'buffer_atomic', 'global_atomic')):
            self.kind = 'vstore'
            self.rd = set(allr)
            self.wide = op.endswith(('x3', 'x4'))
            if self.wide:
                self.arg = set(R[0]) if op.startswith('buffer') else set(R[1])
            if 'atomic' in op and re.search(r'\bsc0\b', rest):
                self.wr = set(R[0])
        elif op.startswith('ds_read') or op.startswith('ds_bperm') or op.startswith('ds_swizzle'):
            self.kind = 'dsr'
            self.wr = set(R[0])
            self.rd = set(r for x in R[1:] for r in x)
        elif op.startswith(('ds_write', 'ds_add')):
            self.kind = 'dsw'
            self.rd = set(allr)
        elif op.startswith(('s_load', 's_buffer_load', 's_memtime', 's_memrealtime')):
            self.kind = 'smem'
            self.wr = set(R[0])
            self.rd = set(r for x in R[1:] for r in x)
        elif op == 's_waitcnt':
            self.kind = 'wait'
        elif op == 's_nop':
            self.kind = 'nop'
            self.arg = int(rest, 0)
        elif op in ('s_barrier', 's_sleep', 's_endpgm', 's_setprio'):
            self.kind = 'misc'
        elif op.startswith(('s_branch', 's_cbranch')):
            self.kind = 'branch'
            if 'vcc' in op:
                self.rd = {'vcc'}
        elif op.startswith('s_cmp') or op.startswith('s_bitcmp'):
            self.kind = 'salu'
            self.rd = set(allr)
        elif op.startswith('s_'):
            self.kind = 'salu'
            self.wr = set(R[0])
            self.rd = set(r for x in R[1:] for r in x)
            if 'saveexec' in op:
                self.wr.add('exec')
        elif op == 'WAITTAG':
            self.kind = 'waittag'
            self.arg = rest.split()
        elif op == 'WAITALL':
            self.kind = 'waitall'
            self.arg = rest.strip()
        elif op.startswith('.'):
            self.kind = 'label'
        else:
            raise ValueError(text)


class Seq(list):
    def __call__(self, text, tag=None, cond=False):
        for line in text.strip().split('\n'):
            line = line.strip()
            if line and not line.startswith(';'):
                self.append(Inst(line, tag, cond))
        return self


def insert_waits(prog):
    out = []
    vm = []
    lg = []
    smem_out = False

    def emit(nv, nl):
        parts = []
        if nv is not None:
            parts.append(f"vmcnt({min(nv, 63)})")
        if nl is not None:
            parts.append(f"lgkmcnt({min(nl, 15)})")
        out.append(Inst("s_waitcnt " + " ".join(parts)))

    for idx, ins in enumerate(prog):
        if ins.cond:
            touch = ins.rd | ins.wr
            for q in (vm, lg):
                for e in q:
                    assert not (e[0] & touch), f"cond inst touches pending reg: {ins.text}"
            out.append(ins)
            continue
        nv = nl = None
        if ins.kind == 'waittag':
            for name in ins.arg:
                for i in range(len(vm) - 1, -1, -1):
                    if vm[i][1] == name:
                        n = len(vm) - 1 - i
                        nv = n if nv is None else min(nv, n)
                        break
                for i in range(len(lg) - 1, -1, -1):
                    if lg[i][1] == name:
                        n = len(lg) - 1 - i
                        nl = n if nl is None else min(nl, n)
                        break
        elif ins.kind == 'waitall':
            if 'vm' in ins.arg:
                nv = 0
            if 'lgkm' in ins.arg:
                nl = 0
        elif ins.kind == 'wait':
            m = re.search(r'vmcnt\((\d+)\)', ins.text)
            if m:
                n = int(m.group(1))
                vm = vm[len(vm) - n:] if n < len(vm) else vm
            m = re.search(r'lgkmcnt\((\d+)\)', ins.text)
            if m:
                n = int(m.group(1))
                if n == 0:
                    lg = []
                    smem_out = False
                elif not smem_out:
                    lg = lg[len(lg) - n:] if n < len(lg) else lg
            out.append(ins)
            continue
        else:
            touch = ins.rd | ins.wr
            for i in range(len(vm) - 1, -1, -1):
                if vm[i][0] & touch:
                    nv = len(vm) - 1 - i
                    break
            for i in range(len(lg) - 1, -1, -1):
                if lg[i][0] & touch:
                    nl = len(lg) - 1 - i
                    break
            if nl is not None and ins.kind == 'mfma' and nl >= 3:
                for j in range(idx + 1, min(idx + 14, len(prog))):
                    nx = prog[j]
                    if nx.kind == 'mfma':
                        for i in range(len(lg) - 1, -1, -1):
                            if lg[i][0] & nx.rd:
                                n2 = len(lg) - 1 - i
                                if n2 < nl and n2 >= nl - 2 and 3 * n2 >= 2 * nl:
                                    nl = n2
                                break
                        break
        if nl is not None and smem_out:
            nl = 0
        if nv is not None or nl is not None:
            emit(nv, nl)
            if nv is not None:
                vm = vm[len(vm) - nv:] if nv else []
            if nl is not None:
                lg = lg[len(lg) - nl:] if nl else []
                if nl == 0:
                    smem_out = False
        if ins.kind in ('waittag', 'waitall'):
            continue
        if ins.kind in ('vload', 'vstore', 'dma'):
            if len(vm) >= 62:
                emit(61, None)
                vm = vm[len(vm) - 61:]
            vm.append((set(ins.wr), ins.tag))
        elif ins.kind in ('dsr', 'dsw'):
            if len(lg) >= 15:
                n = 0 if smem_out else 14
                emit(None, n)
                lg = lg[len(lg) - n:] if n else []
                smem_out = smem_out and n != 0
            lg.append((set(ins.wr), ins.tag))
        elif ins.kind == 'smem':
            lg.append((set(ins.wr), ins.tag))
            smem_out = True
        out.append(ins)
    return out


MF_VALU = {2: 5, 4: 8, 8: 12}
MF_OVL = {2: 4, 4: 6, 8: 10}
MF_WAR = {2: 1, 4: 3, 8: 7}


def need(p, c):
    n = 0
    isv = lambda r: r[0] in 'va' and r != 'vcc'
    pv = p.kind in ('valu', 'trans')
    cv = c.kind in ('valu', 'trans')
    cmem = c.kind in ('vload', 'vstore', 'dma', 'dsr', 'dsw')
    if pv:
        wv = {r for r in p.wr if isv(r)}
        ws = p.wr - wv
        if c.kind == 'mfma' and wv & c.rd:
            n = max(n, 2)
        if cv:
            if p.kind == 'trans' and wv & c.rd:
                n = max(n, 1)
            if 'permlane' in c.op and wv & c.rd:
                n = max(n, 2)
            if ('row_' in c.text or 'quad_perm' in c.text or 'dpp' in c.text) and wv & c.rd:
                n = max(n, 2)
            if c.op.startswith(('v_readfirstlane', 'v_readlane')) and wv & c.rd:
                n = max(n, 1)
            if ws & c.rd:
                n = max(n, 4 if c.op.startswith(('v_readlane', 'v_writelane')) else 2)
        if p.kind == 'trans' and cmem and wv & c.rd:
            n = max(n, 1)
        if c.kind in ('vload', 'vstore', 'dma') and ws & c.rd:
            n = max(n, 5)
        if c.kind in ('salu', 'smem') and ws & c.rd:
            n = max(n, 1)
        if c.kind == 'branch' and ws & c.rd:
            n = max(n, 5)
    if p.kind == 'mfma':
        if (cv or cmem) and p.wr & (c.rd | c.wr):
            n = max(n, MF_VALU[p.passes])
        if c.kind == 'mfma':
            if p.wr & c.srcab:
                n = max(n, MF_VALU[p.passes])
            if p.wr & c.srcc:
                if p.wr == c.srcc and p.passes == c.passes:
                    n = max(n, 2 if p.passes == 2 else 0)
                else:
                    n = max(n, MF_OVL[p.passes])
            elif p.wr & c.wr:
                n = max(n, MF_OVL[p.passes])
        if cv and p.srcc & c.wr:
            n = max(n, MF_WAR[p.passes])
    if p.kind == 'salu' and 'm0' in p.wr and c.kind == 'dma':
        n = max(n, 1)
    if p.kind == 'vstore' and p.wide and p.arg & c.wr:
        n = max(n, 2)
    return n


def insert_nops(prog):
    out = []
    hist = []
    pos = 0
    nnops = 0
    for ins in prog:
        if ins.kind == 'label':
            out.append(ins)
            continue
        req = 0
        for p, pp in hist:
            d = pos - pp
            w = need(p, ins)
            if w > d:
                req = max(req, w - d)
        if req:
            k = req
            while k > 0:
                t = min(k, 16)
                out.append(Inst(f"s_nop {t - 1}", cond=ins.cond))
                out[-1].ool = ins.ool
                k -= t
            nnops += 1
            if not ins.cond:
                pos += req
        out.append(ins)
        if not ins.cond:
            pos += (ins.arg + 1) if ins.kind == 'nop' else 1
        if ins.kind in ('valu', 'trans', 'mfma', 'salu', 'vstore'):
            hist.append((ins, pos))
        hist = [(p, pp) for p, pp in hist if pos - pp < 14]
    return out, nnops


def hoist(prog):
    out = []
    for ins in prog:
        i = len(out)
        if ins.kind in ('dsr', 'dsw', 'vload', 'vstore', 'dma', 'salu') and not ins.cond and 'exec' not in ins.wr:
            while i > 0:
                q = out[i - 1]
                if q.kind not in ('valu', 'trans') or q.cond:
                    break
                if (q.wr & (ins.rd | ins.wr)) or (q.rd & ins.wr):
                    break
                i -= 1
            if i > 0 and out[i - 1].kind in ('valu', 'trans'):
                i = len(out)
        out.insert(i, ins)
    return out


_ctx = [0]


def ctx(groups):
    _ctx[0] += 1
    for g in groups:
        for i in (g if isinstance(g, list) else [g]):
            i.ctx = _ctx[0]
    return groups


def check(prog):
    own = {}
    for i in prog:
        if i.ctx is not None:
            own.setdefault(i.ctx, set()).update(r for r in i.wr if r[0] == 's' or r == 'm0')
    last = {}
    waited = set()
    for i in prog:
        if i.ctx is not None and i.kind in ('dma', 'vload', 'vstore'):
            for r in i.rd & own[i.ctx]:
                assert last.get(r) == i.ctx, f"scalar context broken at: {i.text}"
        for r in i.wr:
            last[r] = i.ctx
        if i.kind == 'waittag':
            waited.update(i.arg)
        elif i.tag and i.tag in waited and i.tag not in ('kvp', 'rtr'):
            raise AssertionError(f"op issued after wait on its tag {i.tag}: {i.text}")


def cost(i):
    if i.kind == 'valu':
        return 5.3 if i.op.startswith(('v_fma_', 'v_cvt_pk', 'v_cndmask', 'v_lshl_add', 'v_bfe', 'v_perm')) else 4.4
    if i.kind == 'trans':
        return 8.6
    if i.kind in ('label',):
        return 0
    return 4.3


def fill(prog, window=40):
    prog = list(prog)
    out = []
    now = 0.0
    free = 0.0
    lastp = 0
    ldage = {}
    i = 0
    while i < len(prog):
        ins = prog[i]
        if ins.kind == 'mfma' and not ins.cond:
            j = i + 1
            crossed_rd, crossed_wr = set(ins.rd), set(ins.wr)
            while free - now > 6.5 and j < min(i + window, len(prog)):
                c = prog[j]
                if c.cond or c.kind in ('label', 'branch', 'waitall', 'smem', 'nop') or 'exec' in c.wr:
                    break
                ok = c.kind in ('valu', 'trans') and not c.op.startswith(('v_writelane', 'v_readfirst', 'v_cmp'))
                if ok and (c.rd & crossed_wr or c.wr & (crossed_rd | crossed_wr)):
                    ok = False
                if ok:
                    for r in c.rd | c.wr:
                        if r in ldage and (ldage[r][0] == 'vload' or len(out) - ldage[r][1] < 24):
                            ok = False
                if ok:
                    d = 0
                    for q in reversed(out[-16:]):
                        if need(q, c) > d:
                            ok = False
                            break
                        if q.kind not in ('label', 'waittag', 'waitall') and not q.cond:
                            d += 1
                if ok and cost(c) > free - now - 2:
                    ok = False
                if ok:
                    out.append(c)
                    now += cost(c)
                    for r in c.rd | c.wr:
                        ldage.pop(r, None)
                    del prog[j]
                else:
                    crossed_rd |= c.rd
                    crossed_wr |= c.wr
                    j += 1
            now = max(now + 2, free)
            dur = {8: 32, 4: 16, 2: 8 if lastp == 2 else 16}[ins.passes]
            free = now + dur
            now += 8
            lastp = ins.passes
        elif not ins.cond:
            now += cost(ins)
        for r in ins.rd | ins.wr:
            ldage.pop(r, None)
        if ins.kind in ('vload', 'dsr'):
            for r in ins.wr:
                ldage[r] = (ins.kind, len(out))
        out.append(ins)
        i += 1
    return out


def m0fix(prog):
    p = list(prog)
    for i in range(1, len(p) - 1):
        a, b, c = p[i - 1], p[i], p[i + 1]
        if b.kind == 'salu' and 'm0' in b.wr and c.kind == 'dma' and not b.cond and not a.cond \
                and a.kind in ('dsr', 'mfma', 'valu', 'trans', 'vload', 'vstore') and not (a.wr & b.rd):
            p[i - 1], p[i] = b, a
    return p


def layout(prog):
    main = [i for i in prog if i.ool is None]
    rest = [i for i in prog if i.ool is not None]
    return main + rest


def finalize(prog, dofill=True):
    check(prog)
    p = hoist(prog)
    if dofill:
        p = fill(p)
    p = insert_waits(m0fix(p))
    p, n = insert_nops(p)
    return layout(p)


def weave(main, fills, start=0, end=None):
    end = len(main) if end is None else end
    n = end - start
    out = [list(g) for g in main]
    k = 0
    for i in range(n):
        tgt = (len(fills) * (i + 1) + n - 1) // n
        while k < tgt:
            f = fills[k]
            out[start + i] += f if isinstance(f, list) else [f]
            k += 1
    assert k == len(fills)
    return out


def flat(groups):
    return [i for g in groups for i in g]
```

```python
import sys, os
sys.path.insert(0, os.path.dirname(os.path.abspath(__file__)))
from dsl import *

NAME = "sequential_preLN__linear_attn_block__glu_gated_swiglu__prompt"

CNT = 0x20000
KVM = 0x10000
ST = 0x18000
CS = 0x1C000
ZP = 0x1F800
STAMP = 0xC0000
PQ = 0x100000
HB = 0x300000
HH = 0x500000
W13R = 0xC00000
W2R = 0x1000000
WS_SIZE = 0x1200000
HF = CNT + 128 * 256
PF = CNT + 256 * 256
OOB = 0x7f000000

X, WQKV, WO, W1, W3, W2, OUT, WS, DBG = [f"s[{a}:{a+3}]" for a in range(4, 40, 4)]
(sW, sG, sM, sC0, sT0, sT1, sT2, sT3, sXB, sWB, sXL, sWL, sTB, sCB, sRQ, sLOG2E,
 sU, sKC, sT4, sT5, sMSKHI, sEPS6) = [f"s{i}" for i in range(40, 62)]
sHILANES = "s[62:63]"
sB4LANES = "s[64:65]"
sA, sB, sCc, sD = "s66", "s67", "s68", "s69"
sKVA, sZA, sPQS, sRW, sR2, sRC, sKVL, sZL, sPQL, sXR, sHST, sSTA = [f"s{i}" for i in range(84, 96)]
STV = 0

L16, L4 = "v2", "v3"
WDMA, CSP = "v14", "v212"
TRK, TRP = 152, 156
XCW, XCR, KVW, ZW, ATA, KVR, ZR, ZAT = [f"v{i}" for i in range(213, 221)]
WOD, WOT, OAD = 221, 225, 229
ROWA, ZBW, ZBR, P256 = "v233", "v234", "v235", "v236"
RL1, RL3, RL2, RT13, RT2A, RT2B, CSAT, P4K = [f"v{i}" for i in range(237, 245)]
RCS = 248
FA1, FA2, PA2 = "v245", "v246", "v247"
sMA, sTA = "s3", "s74"


def v(a, n=1):
    return f"v{a}" if n == 1 else f"v[{a}:{a+n-1}]"


def a_(a, n=1):
    return f"a{a}" if n == 1 else f"a[{a}:{a+n-1}]"


def mf32(d, A, B, c=None):
    return Inst(f"v_mfma_f32_32x32x16_bf16 {v(d,16)}, {A}, {B}, {v(d,16) if c is None else c}")


def mf16(d, A, B, c=None):
    return Inst(f"v_mfma_f32_16x16x32_bf16 {v(d,4)}, {A}, {B}, {v(d,4) if c is None else c}")


def mf4(d, A, B, c=None):
    return Inst(f"v_mfma_f32_4x4x4_16b_bf16 {v(d,4)}, {A}, {B}, {v(d,4) if c is None else c}")


def trpair(dst, addr, off, step):
    k, b = dst
    return [Inst(f"ds_read_b64_tr_b16 {k}[{b}:{b+1}], {addr} offset:{off}"),
            Inst(f"ds_read_b64_tr_b16 {k}[{b+2}:{b+3}], {addr} offset:{off+step}")]


def split2(dst, src, t):
    return Seq()(f"""v_cvt_pk_bf16_f32 v{t}, v{src}, v{src}
         v_lshlrev_b32 v{t}, 16, v{t}
         v_sub_f32 v{t}, v{src}, v{t}
         v_cvt_pk_bf16_f32 v{dst}, v{src}, v{t}""")


cHB, cST, cHS, cHS2, cCS, cW2, cHL, cOUT, cHR, cPL, cPS, cPP = [f"s{i}" for i in range(75, 87)]
W2A, W2B, LB1, LB2, WLA, WLB, WLC, WLD = [f"v{i}" for i in range(6, 14)]
CSL, HHA, HHB = "v14", "v15", "v42"


class Gen:
    def __init__(self, opt):
        self.o = opt
        self.p = Seq()
        self.nl = 0
        self.nstamp = 0
        self.stamp_names = []

    def lab(self, s):
        self.nl += 1
        return f"L_{s}_{self.nl}"

    def stamp(self, name):
        if self.o.get('padat') == name:
            self.p("WAITALL lgkm\ns_memrealtime s[100:101]\nWAITALL lgkm")
        if self.o.get('stamps', 3) == 3:
            return
        fine = str(self.o.get('fine', ''))
        if name[0].islower() and name[0] not in fine:
            return
        if fine and name[0].isupper() and name[0].lower() not in fine and name not in ('C_t6', 'B_sync1', 'C_sync2'):
            return
        p = self.p
        p("WAITALL lgkm")
        p("s_memrealtime s[72:73]" if self.o['stamps'] == 1 else "s_memtime s[72:73]")
        p("WAITALL lgkm")
        p(f"v_writelane_b32 v{STV}, s72, {self.nstamp}")
        self.nstamp += 1
        self.stamp_names.append(name)

    def sub(self, fn):
        save = self.p
        self.p = Seq()
        fn()
        r = list(self.p)
        self.p = save
        return r

    def xf(self, L, key='x'):
        x = self.o.get(key, '')
        out = []
        for i in L:
            if 'v' in x and i.kind in ('vload', 'dma') and not i.cond and 'dwordx4' in i.op:
                continue
            if 'e' in x and i.kind in ('valu', 'trans') and not i.cond and i.op.endswith(('f32', 'f32_e64')):
                continue
            if 'l' in x and i.kind == 'dsr':
                continue
            if 's' in x and i.kind == 'vstore' and 'store' in i.op and not i.cond:
                continue
            if 'b' in x and i.op == 's_barrier':
                continue
            if 'm' in x and i.kind == 'mfma' and i.passes < 8:
                continue
            out.append(i)
        return out

    def ool(self, branch, text):
        p = self.p
        L, R = self.lab("o"), self.lab("r")
        p(f"{branch} {L}")
        n = len(p)
        p(f"{L}:\n{text}\ns_branch {R}", cond=True)
        for i in p[n:]:
            i.ool = L
        p(f"{R}:")

    def spin(self, vt, vaddr, soff, mask, target, srd=WS, mode='wave0', sleep=0, field=None):
        p = self.p
        Lp = self.lab("pl")
        addr = f"{vaddr}, {srd}, {soff} offen" if vaddr else f"off, {srd}, {soff}"
        ext = f"v_bfe_u32 {vt}, {vt}, {8*field}, 8\n" if field is not None else ""
        loop = f"""s_mov_b32 {sT5}, 0
             s_mov_b64 exec, {mask}
             {Lp}:
             {f's_sleep {sleep}' if sleep else ''}
             buffer_load_dword {vt}, {addr} sc1
             s_add_u32 {sT5}, {sT5}, 1
             s_waitcnt vmcnt(0)
             {ext}v_cmp_gt_u32 vcc, {target}, {vt}
             s_cmp_ge_u32 {sT5}, 0x8000
             s_cselect_b64 vcc, 0, vcc
             s_cmp_lg_u64 vcc, 0
             s_cbranch_scc1 {Lp}
             s_mov_b64 exec, -1"""
        if self.o.get('stamps') == 3:
            p(f"s_mov_b32 {sT5}, 0")
        if mode == 'check':
            p(f"{ext}v_cmp_gt_u32 vcc, {target}, {vt}\ns_and_b64 vcc, vcc, {mask}")
            self.ool("s_cbranch_scc1", loop)
        elif mode == 'wave0':
            Ld = self.lab("pd")
            p(f"s_cmp_lg_u32 {sW}, 0\ns_cbranch_scc1 {Ld}")
            p(loop, cond=True)
            p(f"{Ld}:")
        else:
            p(loop, cond=True)
            p("s_waitcnt vmcnt(0)")
        if self.o.get('stamps') == 3:
            p(f"v_writelane_b32 v{STV}, {sT5}, {self.nstamp}")
            self.nstamp += 1
            self.stamp_names.append(f"spin{self.nstamp}")

    def setup(self):
        p = self.p
        p(f"""s_cmp_ge_u32 s2, 256
             s_cbranch_scc1 L_end
             s_load_dwordx16 s[76:91], s[0:1], 0
             s_load_dwordx4 s[92:95], s[0:1], 64""")
        if self.o.get('xorid'):
            p(f"s_xor_b32 s2, s2, {self.o['xorid']}")
        p("v_and_b32 v1, 63, v0\nv_lshrrev_b32 v4, 6, v0")
        p(f"v_readfirstlane_b32 {sW}, v4")
        for srd, sz in ((4, 0x200000), (8, 0x180000)):
            p(f"s_mov_b32 s{srd+2}, {hex(sz)}\ns_mov_b32 s{srd+3}, 0x20000")
        p(f"""s_lshr_b32 {sU}, s2, 3
             s_and_b32 {sKC}, s2, 7
             s_and_b32 {sRQ}, {sU}, 3
             s_and_b32 {sG}, s2, 6
             s_lshl_b32 {sG}, {sG}, 1
             s_add_u32 {sG}, {sG}, {sRQ}
             s_lshr_b32 {sT1}, s2, 5
             s_and_b32 {sM}, s2, 1
             s_lshl_b32 {sM}, {sM}, 3
             s_add_u32 {sM}, {sM}, {sT1}
             s_lshl_b32 {sXL}, {sW}, 14
             s_lshl_b32 {sWL}, {sW}, 10""")
        rot = self.o.get('rot', 6)
        if rot < 5:
            p(f"s_mov_b32 {sMA}, {sM}\ns_lshl_b32 {sTA}, {sG}, 2\ns_add_u32 {sTA}, {sTA}, {sW}")
        else:
            p(f"""s_lshr_b32 {sMA}, s2, 4
                 s_xor_b32 {sMA}, {sMA}, 8
                 s_and_b32 {sTA}, s2, 6
                 s_lshl_b32 {sTA}, {sTA}, 3
                 s_and_b32 {sT0}, s2, 8
                 s_add_u32 {sTA}, {sTA}, {sT0}
                 s_and_b32 {sT0}, {sW}, 2
                 s_and_b32 {sT2}, s2, 1
                 s_add_u32 {sT0}, {sT0}, {sT2}
                 s_lshl_b32 {sT0}, {sT0}, 1
                 s_add_u32 {sTA}, {sTA}, {sT0}
                 s_and_b32 {sT0}, {sW}, 1
                 s_add_u32 {sTA}, {sTA}, {sT0}
                 s_add_u32 {sC0}, {sT1}, {sKC}""")
            if rot == 7:
                p(f"s_and_b32 {sT0}, {sU}, 1\ns_lshl_b32 {sT0}, {sT0}, 2\ns_add_u32 {sC0}, {sC0}, {sT0}")
            if rot == 8:
                p(f"s_lshl_b32 {sT0}, {sRQ}, 1\ns_add_u32 {sC0}, {sC0}, {sT0}")
            if rot == 9:
                p(f"s_and_b32 {sC0}, {sT1}, 3\ns_lshl_b32 {sC0}, {sC0}, 1\ns_add_u32 {sC0}, {sC0}, {sKC}")
        p(f"""s_lshl_b32 {sXB}, {sTA}, 15
             s_mul_i32 {sWB}, {sW}, {16*3072}
             s_lshl_b32 {sT0}, {sMA}, 6
             s_add_u32 {sWB}, {sWB}, {sT0}""")
        if rot == 0:
            p(f"s_mov_b32 {sC0}, 0")
        elif rot == 1:
            p(f"s_lshl_b32 {sC0}, {sRQ}, 1\ns_add_u32 {sC0}, {sC0}, {sT1}")
        elif rot == 2:
            p(f"s_and_b32 {sC0}, s2, 6\ns_and_b32 {sT0}, s2, 1\ns_lshl_b32 {sT0}, {sT0}, 2\ns_add_u32 {sC0}, {sC0}, {sT0}")
        elif rot == 3:
            p(f"s_and_b32 {sC0}, {sT1}, 1\ns_lshl_b32 {sC0}, {sC0}, 2\ns_and_b32 {sT0}, s2, 1\ns_lshl_b32 {sT0}, {sT0}, 1\ns_add_u32 {sC0}, {sC0}, {sT0}\ns_bfe_u32 {sT0}, s2, 0x20001\ns_add_u32 {sC0}, {sC0}, {sT0}")
        elif rot == 4:
            p(f"s_add_u32 {sC0}, {sT1}, {sRQ}\ns_and_b32 {sC0}, {sC0}, 3\ns_lshl_b32 {sC0}, {sC0}, 1\ns_and_b32 {sT0}, s2, 1\ns_add_u32 {sC0}, {sC0}, {sT0}")
        p(f"""v_lshlrev_b32 {L16}, 4, v1
             v_lshrrev_b32 v4, 3, v1
             v_lshlrev_b32 v4, 10, v4
             v_and_b32 v5, 7, v1
             v_lshrrev_b32 v3, 4, v1
             v_xor_b32 v5, v5, v3
             v_lshl_add_u32 v6, v5, 4, v4
             v_xor_b32 v7, 64, v6
             v_add_u32 v7, 7168, v7
             v_add_u32 v8, 14336, v6
             v_add_u32 v9, 14336, v7
             v_lshrrev_b32 v4, 2, v1
             v_mul_u32_u24 v4, 3072, v4
             v_and_b32 v5, 3, v1
             v_lshl_add_u32 {WDMA}, v5, 4, v4""")
        p("WAITALL lgkm")
        for srd, src in ((4, 76), (8, 78)):
            p(f"s_mov_b32 s{srd}, s{src}\ns_mov_b32 s{srd+1}, s{src+1}")

    def dmaA(self, c):
        S = Seq()
        wc = f"s{75+c}"
        S(f"""s_add_u32 {sT0}, {sC0}, {c}
             s_and_b32 {sT0}, {sT0}, 7
             s_mul_i32 {wc}, {sT0}, {64*3072}
             s_add_u32 {wc}, {wc}, {sWB}
             s_add_u32 m0, {sWL}, {0x10000 + c*4096 - 1024}
             s_lshl_b32 {sT0}, {sT0}, 7""")
        S(f"buffer_load_dwordx4 {WDMA}, {WQKV}, {wc} offen offset:1024 lds", tag=f"A{c}")
        g = [list(S)]
        S = Seq()
        S(f"s_add_u32 m0, {sXL}, {(c%3)*4096}\ns_add_u32 {sT0}, {sT0}, {sXB}")
        nt = " nt" if self.o.get('xnt', 1) else ""
        S(f"buffer_load_dwordx4 v6, {X}, {sT0} offen{nt} lds", tag=f"A{c}")
        g.append(list(S))
        for i in range(1, 4):
            g.append([Inst(f"buffer_load_dwordx4 v{6+i}, {X}, {sT0} offen offset:{i*1024}{nt} lds", tag=f"A{c}")])
        return ctx(g)

    def dmaVQ(self, which, c):
        S = Seq()
        if which == 'V':
            S(f"s_add_u32 m0, {sWL}, {0x18000 + c*4096 - 2048}")
            S(f"buffer_load_dwordx4 {WDMA}, {WQKV}, s{75+c} offen offset:2048 lds", tag=f"V{c}")
        else:
            S(f"s_add_u32 m0, {sWL}, {0x20000 + c*4096}")
            S(f"buffer_load_dwordx4 {WDMA}, {WQKV}, s{75+c} offen lds", tag=f"Q{c}")
        return list(S)

    def dmaWO(self, q):
        S = Seq()
        b, i = q >> 2, q & 3
        S(f"""s_add_u32 {sT0}, {sA}, {(256*b+16*i)*1024}
             s_add_u32 m0, {sXL}, {b*65536+i*4096}
             s_and_b32 {sT0}, {sT0}, 0x7ffff""")
        g = []
        for k in range(4):
            S(f"buffer_load_dwordx4 v{WOD+k}, {WO}, {sT0} offen offset:{k*1024} lds", tag="WO")
            g.append(list(S))
            S = Seq()
        return ctx(g)

    def rload(self, cohort):
        nt = " nt" if self.o.get('rnt', 1) else ""
        self.p(f"s_cmp_eq_u32 {sCc}, {cohort}")
        self.ool("s_cbranch_scc1", f"""s_lshl_b32 {sT4}, {sKC}, 2
             s_add_u32 {sT4}, {sT4}, {sW}
             s_mul_i32 {sT4}, {sT4}, {16*3584}
             s_lshl_b32 {sT5}, {sU}, 7
             s_add_u32 {sT4}, {sT4}, {sT5}
             s_mul_i32 {sT3}, {sW}, 6144
             s_add_u32 m0, {sT3}, 0x20000
             s_add_u32 {sT5}, {sT4}, {8*3584-1024}
             buffer_load_dwordx4 {RL1}, {W1}, {sT4} offen{nt} lds
             buffer_load_dwordx4 {RL1}, {W1}, {sT5} offen offset:1024{nt} lds
             s_add_u32 m0, {sT3}, {0x20000+2048}
             s_nop 0
             buffer_load_dwordx4 {RL3}, {W3}, {sT4} offen{nt} lds
             buffer_load_dwordx4 {RL3}, {W3}, {sT5} offen offset:1024{nt} lds
             s_add_u32 m0, {sT3}, {0x20000+4096}
             s_lshl_b32 {sT4}, {sU}, 2
             s_add_u32 {sT4}, {sT4}, {sW}
             s_lshl_b32 {sT4}, {sT4}, 14
             s_lshl_b32 {sT5}, {sKC}, 7
             s_add_u32 {sT4}, {sT4}, {sT5}
             s_add_u32 {sT5}, {sT4}, 7168
             buffer_load_dwordx4 {RL2}, {W2}, {sT4} offen{nt} lds
             buffer_load_dwordx4 {RL2}, {W2}, {sT5} offen offset:1024{nt} lds""")

    def misc(self):
        M = Seq()
        a, b, c, d = "v208", "v209", "v210", "v211"
        XCH = 12288 + 2560
        M(f"""v_lshlrev_b32 {L4}, 2, v1
             v_and_b32 {a}, 31, v1
             v_lshrrev_b32 {b}, 5, v1
             v_lshlrev_b32 {XCR}, 4, {a}
             v_lshl_add_u32 {KVW}, {b}, 10, {XCR}
             v_add_u32 {XCR}, {XCH}, {XCR}
             s_lshl_b32 {sT3}, {sW}, 2
             v_add_u32 {XCW}, {sT3}, {XCR}
             s_add_u32 {sT3}, {sXL}, 12288
             v_add_u32 {KVW}, {sT3}, {KVW}
             v_lshl_add_u32 {ZW}, {a}, 2, {sT3}
             v_lshlrev_b32 {ROWA}, 10, {a}
             v_lshl_add_u32 {ROWA}, {b}, 4, {ROWA}
             v_mov_b32 {c}, 0x08000000
             v_cndmask_b32 {CSAT}, {L4}, {c}, {sHILANES}
             s_lshl_b32 {sT3}, {sW}, 8
             v_add_u32 {ATA}, {sT3}, {L4}
             v_add_u32 {KVR}, 12288, {ATA}
             v_and_b32 {d}, 7, v1
             s_lshl_b32 {sT3}, {sW}, 5
             s_add_u32 {sT2}, {sT3}, {12288+2048}
             v_lshl_add_u32 {ZR}, {d}, 2, {sT2}
             v_cmp_gt_u32 vcc, 8, v1
             v_mov_b32 v177, 0
             v_mov_b32 v178, 0
             v_cndmask_b32 {ZAT}, {c}, {L4}, vcc
             v_mov_b32 v179, 0
             s_lshl_b32 {sZA}, {sMA}, 7
             s_add_u32 {sZA}, {sZA}, {sT3}
             s_add_u32 {sZA}, {sZA}, {hex(ZP)}
             s_lshl_b32 {sT2}, {sMA}, 11
             s_add_u32 {sKVA}, {sT2}, {hex(KVM)}
             s_add_u32 {sPQS}, {sXB}, {sT2}
             s_add_u32 {sPQS}, {sPQS}, {hex(PQ)}
             s_mov_b32 s96, 0x22222222
             s_mov_b32 s97, 0x22222222
             s_mov_b32 s98, 0x44444444
             s_mov_b32 s99, 0x44444444
             s_mov_b32 s70, 0x88888888
             s_mov_b32 s71, 0x88888888
             s_lshr_b32 {sTB}, {sM}, 2
             s_lshl_b32 {sT3}, {sG}, 2
             s_add_u32 {sTB}, {sTB}, {sT3}
             s_and_b32 {sCB}, {sM}, 3
             s_lshl_b32 {sA}, {sRQ}, 17
             s_lshl_b32 {sT3}, {sW}, 16
             s_add_u32 {sA}, {sA}, {sT3}
             s_lshl_b32 {sT3}, {sCB}, 8
             s_add_u32 {sA}, {sA}, {sT3}
             s_lshl_b32 {sXR}, {sTB}, 15
             s_lshl_b32 {sT2}, {sW}, 13
             s_add_u32 {sKVL}, {sT2}, {hex(KVM)}
             s_add_u32 {sPQL}, {sXR}, {sT2}
             s_add_u32 {sPQL}, {sPQL}, {hex(PQ)}
             s_lshl_b32 {sZL}, {sW}, 9
             s_add_u32 {sZL}, {sZL}, {hex(ZP)}
             s_lshl_b32 {sT2}, {sCB}, 2
             s_add_u32 {sT2}, {sT2}, {sW}
             s_lshl_b32 {sHST}, {sT2}, 11
             s_add_u32 {sHST}, {sHST}, {sXR}
             s_add_u32 {sHST}, {sHST}, {hex(HB)}
             s_lshl_b32 {sT2}, {sT2}, 6
             s_add_u32 {sXR}, {sXR}, {sT2}
             s_lshl_b32 {sSTA}, {sTB}, 8
             s_add_u32 {sSTA}, {sSTA}, {hex(ST)}
             s_lshl_b32 {sD}, {sTB}, 9
             s_add_u32 {sD}, {sD}, {hex(HF)}""")
        M(f"""v_lshrrev_b32 {a}, 4, v1
             v_bfe_u32 {c}, v1, 2, 2
             v_xor_b32 {d}, {c}, {a}
             v_lshlrev_b32 {d}, 6, {d}
             v_lshl_add_u32 {d}, {a}, 10, {d}
             v_and_b32 {a}, 3, v1
             v_lshl_add_u32 v{WOD}, {a}, 4, {d}
             v_add_u32 v{WOD+1}, 3072, v{WOD}
             v_add_u32 v{WOD+2}, 6144, v{WOD}
             v_add_u32 v{WOD+3}, 9216, v{WOD}""")
        M(f"""v_and_b32 {a}, 1, v1
             v_lshlrev_b32 {a}, 4, {a}
             v_bfe_u32 {d}, v1, 1, 1
             v_lshl_add_u32 {a}, {d}, 3, {a}
             v_lshl_add_u32 {RT2A}, {b}, 10, {a}
             v_lshl_add_u32 {RT2A}, {c}, 7, {RT2A}
             v_lshl_add_u32 {d}, {b}, 11, {a}
             v_lshl_add_u32 {d}, {c}, 8, {d}
             v_xor_b32 {c}, {sW}, {c}
             v_lshl_add_u32 {d}, {c}, 6, {d}
             v_bfe_u32 {c}, v1, 4, 1
             v_lshl_add_u32 {d}, {c}, 5, {d}""")
        for q in range(4):
            M(f"""s_add_u32 {sT2}, {sW}, {q+4}
                 s_sub_u32 {sT3}, {sT2}, {sRQ}
                 s_and_b32 {sT3}, {sT3}, 3
                 s_lshl_b32 {sT3}, {sT3}, 15
                 v_add_u32 v{WOT+q}, {sT3}, {d}
                 s_and_b32 {sT2}, {sT2}, 3
                 s_lshl_b32 {sT2}, {sT2}, 13
                 s_add_u32 {sT2}, {sT2}, 0x20000
                 v_add_u32 v{OAD+q}, {sT2}, {L16}""")
        M(f"""s_lshl_b32 {sT2}, {sW}, 13
             s_add_u32 {sT2}, {sT2}, {0x20000+7168}
             v_add_u32 {ZBW}, {sT2}, {L4}
             v_xor_b32 {d}, 1, {c}
             v_lshlrev_b32 {d}, 5, {d}
             v_lshl_add_u32 {d}, {b}, 4, {d}
             v_add_u32 {ZBR}, {sT2}, {d}
             v_lshlrev_b32 {P256}, 8, v1
             v_bfe_u32 {d}, v1, 3, 1
             v_lshlrev_b32 {d}, 1, {d}
             v_xor_b32 {d}, {d}, {c}
             v_lshl_add_u32 {RT2A}, {d}, 5, {RT2A}
             s_lshl_b32 {sT2}, {sW}, 5
             v_xor_b32 {RT13}, {sT2}, {RT2A}
             v_lshl_add_u32 {RT13}, {c}, 11, {RT13}
             v_add_u32 {RT13}, 0x20000, {RT13}
             s_mul_i32 {sT2}, {sW}, 6144
             s_add_u32 {sT2}, {sT2}, {0x20000+4096}
             v_add_u32 {RT2A}, {sT2}, {RT2A}
             v_xor_b32 {RT2B}, 64, {RT2A}
             v_lshlrev_b32 {P4K}, 12, v1
             v_or_b32 {P4K}, {P4K}, {ZAT}
             v_and_b32 {P4K}, 0xfffff000, {P4K}
             v_mov_b32 {FA1}, 0x08000000
             v_writelane_b32 {FA1}, 0, 0
             v_mov_b32 {FA2}, {FA1}
             s_movk_i32 {sT2}, 256
             v_writelane_b32 {FA2}, {sT2}, 1
             v_lshlrev_b32 {PA2}, 2, {FA2}
             v_lshlrev_b32 {d}, 2, {c}
             v_and_b32 {a}, 7, v1
             v_xor_b32 {a}, {a}, {d}
             v_lshlrev_b32 {a}, 4, {a}
             v_lshrrev_b32 {d}, 3, v1
             v_lshl_add_u32 {RL2}, {d}, 10, {a}
             v_mul_u32_u24 {d}, 3584, {d}
             v_add_u32 {RL1}, {d}, {a}
             v_xor_b32 {RL3}, 32, {RL1}""")
        M(f"""s_lshl_b32 {sT2}, {sU}, 2
             s_add_u32 {sT2}, {sT2}, {sW}
             s_lshl_b32 {sRW}, {sT2}, 15
             s_lshl_b32 {sT3}, {sKC}, 12
             s_add_u32 {sRW}, {sRW}, {sT3}
             s_add_u32 {sRW}, {sRW}, {hex(W13R)}
             s_mul_i32 {sR2}, {sKC}, {112*2048}
             s_lshl_b32 {sT3}, {sT2}, 11
             s_add_u32 {sR2}, {sR2}, {sT3}
             s_add_u32 {sR2}, {sR2}, {hex(W2R)}
             s_lshl_b32 {sRC}, {sT2}, 7
             s_add_u32 {sRC}, {sRC}, {hex(CS)}""")
        M2 = [[i] for i in M]
        M2.append(list(Seq()(f"""s_cmp_ge_u32 s2, 224
             s_cselect_b32 {sRW}, {hex(OOB)}, {sRW}
             s_cselect_b32 {sR2}, {hex(OOB)}, {sR2}
             s_cselect_b32 {sRC}, {hex(OOB)}, {sRC}""")))
        return M2

    def phaseA(self):
        p = self.p
        o = self.o
        for g in self.dmaA(0):
            p.extend(g)
        if o.get('codepf', 1):
            p(f"""s_getpc_b64 s[70:71]
                 s_lshl_b32 {sT3}, {sU}, 2
                 s_add_u32 {sT3}, {sT3}, {sW}
                 s_lshl_b32 {sT3}, {sT3}, 8
                 v_and_b32 v4, 1, v1
                 v_lshlrev_b32 v4, 7, v4
                 v_add_u32 v4, {sT3}, v4
                 v_min_u32 v4, CODE_PF_MAX, v4
                 global_load_dword v5, v4, s[70:71]""")
        d1 = self.dmaA(1)
        n1 = o.get('d1', 5)
        p.extend(flat(d1[:n1]))
        for srd, src, sz in ((12, 80, 0x80000), (16, 84, 0x1C0000), (20, 86, 0x1C0000), (24, 88, 0x1C0000),
                             (28, 90, 0x200000), (36, 92, 256), (32, 94, WS_SIZE)):
            p(f"s_mov_b64 s[{srd}:{srd+1}], s[{src}:{src+1}]\ns_mov_b32 s{srd+2}, {hex(sz)}\ns_mov_b32 s{srd+3}, 0x20000")
        p(f"""s_lshl_b32 {sB}, {sW}, 8
             s_add_u32 {sB}, {sB}, 224
             s_cmp_ge_u32 s2, {sB}""")
        self.ool("s_cbranch_scc1", f"""v_mov_b32 v16, 0
             v_mov_b32 v17, 0
             v_mov_b32 v18, 0
             v_mov_b32 v19, 0
             s_sub_u32 {sT3}, s2, 224
             s_lshl_b32 {sT4}, {sT3}, 11
             s_mul_i32 {sT3}, {sT3}, 10240
             s_add_u32 {sT3}, {sT3}, {hex(CNT)}
             v_lshlrev_b32 v21, 8, v1
             s_add_u32 {sT4}, {sT4}, {hex(KVM)}
             buffer_store_dwordx4 v[16:19], {L16}, {WS}, {sT4} offen sc1
             buffer_store_dwordx4 v[16:19], {L16}, {WS}, {sT4} offen offset:1024 sc1
             s_mov_b32 exec_hi, 0xff
             buffer_store_dwordx4 v[16:19], v21, {WS}, {sT3} offen sc1
             s_mov_b64 exec, -1""")
        ntouch = 0
        tch = Seq()
        if o.get('touch', 1):
            tch(f"""s_lshl_b32 {sT3}, s2, 2
                 s_add_u32 {sT3}, {sT3}, {sW}
                 s_lshr_b32 {sT4}, {sT3}, 1
                 s_mul_i32 {sT4}, {sT4}, 3072
                 s_and_b32 {sT2}, {sT3}, 1
                 s_lshl_b32 {sT2}, {sT2}, 11
                 s_add_u32 {sT4}, {sT4}, {sT2}
                 s_lshl_b32 {sT3}, {sT3}, 9
                 v_and_b32 v24, 7, v1
                 v_lshlrev_b32 v24, 7, v24
                 v_and_b32 v25, 0x180, v24
                 buffer_load_dword v26, v24, {WQKV}, {sT4} offen
                 buffer_load_dword v27, v25, {WO}, {sT3} offen""")
            ntouch = 2
        tat = o.get('tat', 2)
        if tat < 0:
            p.extend(tch)
        ncoh = o.get('ncoh', 4)
        p(f"""s_mov_b32 {sLOG2E}, 0x3fb8aa3b
             s_mov_b32 {sMSKHI}, 0xffff0000
             s_mov_b32 {sEPS6}, 0x358637bd
             s_mov_b32 s62, 0
             s_mov_b32 s63, -1
             s_mov_b32 s64, 0xffff0000
             s_mov_b32 s65, 0xffff0000
             s_and_b32 {sCc}, {sU}, {ncoh-1}
             s_cmp_ge_u32 s2, 224
             s_cselect_b32 {sCc}, 99, {sCc}""")
        p(f"""v_and_b32 v20, 31, v1
             v_lshrrev_b32 v21, 5, v1
             v_bfe_u32 v22, v1, 1, 3
             v_xor_b32 v22, v21, v22
             v_lshlrev_b32 v22, 4, v22
             v_lshl_add_u32 v22, v20, 7, v22
             s_lshl_b32 {sT3}, {sW}, 5
             s_add_u32 {sT3}, {sT3}, {sXL}
             v_xor_b32 v10, {sT3}, v22
             v_xor_b32 v11, 32, v10
             v_xor_b32 v12, 64, v10
             v_xor_b32 v13, 96, v10
             v_lshlrev_b32 v20, 9, v21
             v_bfe_u32 v21, v1, 2, 2
             v_lshl_add_u32 v20, v21, 6, v20
             v_bfe_u32 v21, v1, 4, 1
             v_lshl_add_u32 v20, v21, 5, v20
             s_add_u32 {sT3}, {sWL}, 0x10000
             v_add_u32 v20, {sT3}, v20
             v_and_b32 v21, 3, v1
             v_lshl_add_u32 v{TRK}, v21, 3, v20
             v_and_b32 v21, 1, v1
             v_lshl_add_u32 v{TRP}, v21, 4, v20
             v_bfe_u32 v21, v1, 1, 1
             v_lshl_add_u32 v{TRP}, v21, 3, v{TRP}
             v_add_u32 v{TRP}, 0x8000, v{TRP}
             v_xor_b32 v{TRK+1}, 1024, v{TRK}
             v_xor_b32 v{TRK+2}, 2048, v{TRK}
             v_xor_b32 v{TRK+3}, 3072, v{TRK}
             v_xor_b32 v{TRP+1}, 1024, v{TRP}
             v_xor_b32 v{TRP+2}, 2048, v{TRP}
             v_xor_b32 v{TRP+3}, 3072, v{TRP}
             v_and_b32 v28, 3, v1
             v_lshrrev_b32 v29, 2, v1
             v_lshrrev_b32 v30, 4, v1
             v_xor_b32 v29, v29, v30
             v_and_b32 v29, 1, v29
             v_or_b32 v28, v28, v29
             v_cmp_eq_u32 vcc, 0, v28
             v_mov_b32 v20, 0x3f803f80
             v_mov_b32 v21, 0x3f803f80
             v_mov_b32 v22, 0x3f803f80
             v_mov_b32 v23, 0x3f803f80
             v_cndmask_b32 v16, 0, v20, vcc
             v_cndmask_b32 v17, 0, v20, vcc
             v_cndmask_b32 v18, 0, v20, vcc
             v_cndmask_b32 v19, 0, v20, vcc
             v_mov_b32 v4, 1""")
        SEL, ONES = v(16, 4), v(20, 4)
        XS, XQ0, XQ1, CSA, ZA = (252 if ntouch else 24), 28, 32, 36, 44
        AK, AV, AQ, RB, AKV = 48, 64, 80, 96, 112
        WR = 128
        XM, WP, RS_ = 160, 164, 176

        def wread(t, s, dst=None):
            n = t * 32 + s
            addr, off = ((TRK, 0), (TRP, 0), (TRP, 0x8000))[t]
            return trpair(('v', WR + 4 * (n % 6) if dst is None else dst), f"v{addr+(s&3)}", off + (s >> 2) * 4096, 256)

        def wf(t, s):
            return v(WR + 4 * ((t * 32 + s) % 6), 4)

        def csm(f, first):
            return mf16(CSA, SEL, f, "0" if first else None)

        def cswrite(t):
            S = split2(41, CSA, 41)
            S(f"ds_write_b32 {XCW}, v41 offset:{t*512}", tag=f"x{t}")
            return list(S)

        def csget(t):
            return [Inst(f"ds_read_b128 {v(WP+4*t,4)}, {XCR} offset:{t*512}")]

        def xread(s):
            return [Inst(f"ds_read_b128 {a_(4*s,4)}, v{10+(s&3)} offset:{((s>>2)%3)*4096}")]

        RT = [trpair(('a', 128 + 4 * s), RT13, s * 6144, 512) for s in range(4)]
        RT += [trpair(('a', 144), RT2A, 0, 512), trpair(('a', 148), RT2B, 0, 512)]
        RT[-1][-1].tag = "rtr"
        RM = [mf16(RCS, SEL, a_(128 + 4 * s, 4), "0" if s == 0 else None) for s in range(4)]
        p.extend(flat(self.misc()))
        p.extend(flat(d1[n1:]))
        self.stamp("A_issued")
        p("WAITTAG A0\ns_barrier")
        self.stamp("A_c0")
        p.extend(xread(0) + wread(0, 0) + xread(1) + wread(0, 1))
        coh0 = o.get('coh0', 0)
        early_rt = coh0 + ncoh <= 4
        pend = self.dmaA(2)
        for s in range(32):
            c, j = s >> 2, s & 3
            xf = a_(4 * s, 4)
            z = "0" if s == 0 else None
            p.append(mf32(AK, xf, wf(0, s), z))
            if j == 2 and c < 7:
                p(f"WAITTAG A{c+1}\ns_barrier")
                self.stamp(f"a{c+1}")
                assert not pend
                if c == 1:
                    p(f"s_cmp_ge_u32 s2, {sB}")
                    self.ool("s_cbranch_scc1", f"buffer_atomic_add v4, {FA1}, {DBG}, 0 offen sc1")
                if c == tat:
                    p.extend(tch)
                if coh0 <= c < coh0 + ncoh:
                    self.rload(c - coh0)
                if c + 3 < 8:
                    pend = self.dmaA(c + 3)
                elif c + 3 == 8:
                    pend = [self.dmaVQ('V', k) for k in range(0, 3)]
                else:
                    pend = [self.dmaVQ('V', k) for k in range(3, 6)]
            if s == 30:
                p("WAITTAG V1 x0\ns_barrier")
            if s + 2 < 32:
                p.extend(xread(s + 2) + wread(0, s + 2))
            else:
                p.extend(wread(1, s + 2 - 32))
            n = 3 if s < 2 else 2 if j == 3 else 1
            for _ in range(n):
                if pend:
                    p.extend(pend.pop(0))
            if j == 0:
                p.append(csm(wf(0, s), s == 0))
            p.append(mf16(XS, SEL, xf, z))
            if early_rt and 22 <= s < 28:
                p.extend(RT[s - 22])
            p.append(mf4(XQ0, a_(4 * s, 2), a_(4 * s, 2), z))
            p.append(mf4(XQ1, a_(4 * s + 2, 2), a_(4 * s + 2, 2), z))
            if early_rt and s in (25, 26, 27, 29):
                p.append(RM.pop(0))
            if s == 29:
                p.extend(cswrite(0))
        assert not pend
        self.stamp("A_loop")

        def tilepass(t, acc, order):
            nm = "VQ"[t - 1]
            G = []
            for s in range(32):
                A_, B_ = (a_(4 * s, 4), wf(t, s)) if order == 0 else (wf(t, s), a_(4 * s, 4))
                g = Seq()
                g.append(mf32(acc, A_, B_, "0" if s == 0 else None))
                if s % 8 == 4 and s < 28:
                    g(f"WAITTAG {nm}{(s+4)//4+1} kvp rtr\ns_barrier")
                if s == 28:
                    g(f"WAITTAG x{t}" + (" Q1" if t == 1 else "") + "\ns_barrier")
                    g.extend(csget(t))
                if t == 1 and s < 2:
                    g.extend(wread(t, 2 + 2 * s) + wread(t, 3 + 2 * s))
                elif s + 4 < 32:
                    g.extend(wread(t, s + 4))
                elif t == 1:
                    g.extend(wread(2, s + 4 - 32))
                if s == 20:
                    g.extend(wread(t, 28, 204))
                if s % 4 == 0 and s < 28:
                    g.append(csm(wf(t, s), s == 0))
                if s == 22:
                    g.append(csm(v(204, 4), False))
                if s == 26:
                    g.extend(cswrite(t))
                G.append(list(g))
            return G

        def phi(acc, scale, T, dst):
            S = Seq()
            for h in range(2):
                r = range(8 * h, 8 * h + 8)
                for i in r:
                    S(f"v_fma_f32 v{acc+i}, v{acc+i}, {scale(i)}, {sEPS6}")
                for i in r:
                    S(f"v_mul_f32 v{T+(i&7)}, {sLOG2E}, v{acc+i}")
                for i in r:
                    S(f"v_exp_f32_e64 v{T+(i&7)}, v{T+(i&7)} clamp")
                    S(f"v_max_f32 v{acc+i}, {sEPS6}, v{acc+i}")
                for i in r:
                    S(f"v_add_f32 v{acc+i}, v{acc+i}, v{T+(i&7)}")
                for i in range(4 * h, 4 * h + 4):
                    S(f"v_cvt_pk_bf16_f32 v{dst+i}, v{acc+2*i}, v{acc+2*i+1}")
            return S
        E = Seq()
        E.extend(csget(0))
        E(f"""v_mul_f32 v199, 0x3b000000, v{XS}
             v_cvt_pk_bf16_f32 v198, -v199, -v199
             v_cndmask_b32 v{XM}, v198, 0, {sHILANES}
             v_cndmask_b32 v{XM+1}, v198, 0, {sHILANES}
             v_cndmask_b32 v{XM+2}, v198, 0, {sHILANES}
             v_cndmask_b32 v{XM+3}, v198, 0, {sHILANES}""")
        for k in range(4):
            E(f"v_add_f32 v{XQ0+k}, v{XQ0+k}, v{XQ1+k}")
        E.append(mf32(AK, v(XM, 4), v(WP, 4)))
        E(f"""v_cndmask_b32 v197, v{XQ0}, v{XQ0+1}, s[96:97]
             v_cndmask_b32 v197, v197, v{XQ0+2}, s[98:99]
             v_cndmask_b32 v197, v197, v{XQ0+3}, s[70:71]
             v_mov_b32 v198, v197
             v_mul_f32 v199, v199, v199
             v_permlane32_swap_b32 v197, v198
             v_add_f32 v197, v197, v198
             v_mul_f32 v197, 0x3b000000, v197
             v_sub_f32 v197, v197, v199
             v_max_f32 v197, 0, v197
             v_add_f32 v197, 0x3727c5ac, v197
             v_rsq_f32 v40, v197""")
        E.extend(split2(RS_, 40, 198))
        E(f"v_cndmask_b32 v{RS_}, v{RS_}, 0, {sHILANES}")
        E.append(mf32(RB, v(RS_, 4), ONES, "0"))
        PK = phi(AK, lambda i: f"v{RB+i}", 196, 180)
        G = tilepass(1, AV, 0)
        dq = [self.dmaVQ('V', 6), self.dmaVQ('V', 7)] + [self.dmaVQ('Q', k) for k in range(6)]
        for k, d in enumerate(dq):
            G[4 * k + 1] += d
        G[2] += [Inst(f"buffer_load_dword v5, {FA1}, {DBG}, 0 offen sc1")]
        if not early_rt:
            G = weave(G, RT, 0, 3)
            G = weave(G, RM, 5, 9)
        n2 = o.get('pk2', 76)
        G = weave(G, list(E), 0, 8)
        G = weave(G, PK[:n2], 10, 32)
        p.extend(flat(G))
        p.append(mf32(AV, v(XM, 4), v(WP + 4, 4)))
        self.stamp("A_v")
        E = Seq()
        E.extend(PK[n2:])
        for i in range(16):
            E(f"v_mul_f32 v{AV+i}, v{AV+i}, v{RB+i}")
        for i in range(8):
            E(f"v_cvt_pk_bf16_f32 v{188+i}, v{AV+2*i}, v{AV+2*i+1}")
        G = tilepass(2, AQ, 1)
        G[0] += self.dmaVQ('Q', 6)
        G[3] += self.dmaVQ('Q', 7)
        woq = flat([self.dmaWO(q) for q in (0, 1, 2, 4, 5, 6, 7, 3)])
        nw3 = o.get('wo3', 8)
        G = weave(G, woq[:nw3], 7, 32)
        G = weave(G, list(E), 0, 7)
        G[7] += [mf32(AKV, v(180, 4), v(188, 4), "0"), mf32(AKV, v(184, 4), v(192, 4)),
                 mf16(ZA, SEL, v(180, 4), "0"), mf16(ZA, SEL, v(184, 4))]
        G[8] += self.sub(lambda: self.spin("v5", None, "0", "1", "32", srd=DBG, mode='check', sleep=4))
        S = Seq()
        for i in range(8):
            S(f"v_cndmask_b32 v{196+i}, v{AKV+i}, v{AKV+8+i}, {sB4LANES}")
        S(f"""ds_write_b128 {KVW}, v[196:199]
             ds_write_b128 {KVW}, v[200:203] offset:512""")
        S(f"ds_write_b32 {ZW}, v{ZA} offset:2048", tag="kvp")
        G = weave(G, list(S), 9, 12)
        S = Seq()
        for k in range(4):
            S(f"ds_read2st64_b32 v[{112+2*k}:{113+2*k}], {KVR} offset0:{64*k} offset1:{64*k+4}")
        S(f"ds_read2st64_b32 v[120:121], {ZR} offset0:0 offset1:64")
        S(f"ds_read2st64_b32 v[122:123], {ZR} offset0:128 offset1:192")
        G = weave(G, list(S), 12, 14)
        S = Seq()
        S("""v_add_f32 v112, v112, v114
             v_add_f32 v113, v113, v115
             v_add_f32 v116, v116, v118
             v_add_f32 v117, v117, v119
             v_add_f32 v112, v112, v116
             v_add_f32 v113, v113, v117
             v_add_f32 v120, v120, v121
             v_add_f32 v122, v122, v123
             v_add_f32 v120, v120, v122""")
        S(f"buffer_atomic_add_f32 v112, {ATA}, {WS}, {sKVA} offen", tag="pub1")
        S(f"buffer_atomic_add_f32 v113, {ATA}, {WS}, {sKVA} offen offset:1024", tag="pub1")
        S(f"buffer_atomic_add_f32 v120, {ZAT}, {WS}, {sZA} offen", tag="pub1")
        G = weave(G, list(S), 15, 18)
        S = Seq()
        for s in range(4):
            S(f"buffer_store_dwordx4 {a_(128+4*s,4)}, {L16}, {WS}, {sRW} offen offset:{s*1024} sc1", tag="pub1")
        S(f"buffer_store_dwordx4 a[144:147], {L16}, {WS}, {sR2} offen sc1", tag="pub1")
        S(f"buffer_store_dwordx4 a[148:151], {L16}, {WS}, {sR2} offen offset:1024 sc1", tag="pub1")
        r0 = o.get('rst0', 4)
        G = weave(G, list(S), r0, r0 + o.get('rstn', 18))
        G[19] += [Inst(f"buffer_atomic_add_f32 v{RCS}, {CSAT}, {WS}, {sRC} offen", tag="pub1")]
        p.extend(flat(G))
        p.append(mf32(AQ, v(WP + 8, 4), v(XM, 4)))
        self.stamp("A_q")
        woq = woq[nw3:]
        t1, t2, t3 = o.get('wot1', 2), o.get('wot2', 2), o.get('wot3', 6)
        p.extend(flat(woq[:t1]))
        ph = phi(AQ, lambda i: "v40", 196, 180)
        h = len(ph) // 2
        p.extend(ph[:h])
        p(f"buffer_store_dwordx4 v[180:183], {L16}, {WS}, {sPQS} offen sc1", tag="pub1")
        p.extend(flat(woq[t1:t1 + t2]))
        p.extend(ph[h:])
        p(f"buffer_store_dwordx4 v[184:187], {L16}, {WS}, {sPQS} offen offset:1024 sc1", tag="pub1")
        self.stamp("A_pqst")
        p(f"""s_and_b32 {sT3}, {sU}, 15
             s_lshl_b32 {sT3}, {sT3}, 8
             s_add_u32 {sT3}, {sT3}, {hex(CNT)}
             s_cmp_eq_u32 {sW}, 0
             s_cselect_b32 {sT3}, {sT3}, {hex(OOB)}""")
        assert nw3 + t1 + t2 + t3 <= 28
        p.extend(flat(woq[t1 + t2:t1 + t2 + t3]))
        p("WAITTAG pub1\ns_barrier")
        p(f"buffer_atomic_add v4, {P4K}, {WS}, {sT3} offen sc1")
        self.stamp("A_sig")
        p.extend(flat(woq[t1 + t2 + t3:]))
        p(f"""buffer_load_dwordx4 v[24:27], {ROWA}, {X}, {sXR} offen
             buffer_load_dwordx4 v[28:31], {ROWA}, {X}, {sXR} offen offset:32""")

    def dmaT(self, t, slot):
        g = []
        for h in range(2):
            S = Seq()
            S(f"s_add_u32 m0, {sB}, {slot*32768+h*4096}\ns_add_u32 {sT0}, {sA}, {t*32768+h*4096}")
            for k in range(4):
                S(f"buffer_load_dwordx4 {L16}, {WS}, {sT0} offen offset:{k*1024} sc1 lds", tag=f"T{t}")
                g.append(list(S))
                S = Seq()
            ctx(g[-4:])
        return g

    def phaseB(self):
        p = self.p
        o = self.o
        AH = 192
        p(f"""s_mul_i32 {sA}, {sM}, {7*32768}
             s_lshl_b32 {sB}, {sW}, 13
             s_add_u32 {sA}, {sA}, {sB}
             s_add_u32 {sA}, {sA}, {hex(W13R)}
             s_add_u32 {sT1}, {sKVL}, 4096
             s_add_u32 {sT3}, {sPQL}, 4096
             s_lshl_b32 {sT4}, {sKC}, 12
             s_add_u32 {sT4}, {sT4}, {hex(CNT)}
             v_lshlrev_b32 v41, 3, v1""")
        self.stamp("B_prepoll")
        self.spin("v5", P256, sT4, "0xffff", "16", sleep=o.get('sleep1', 0))
        p("WAITTAG WO\ns_barrier")
        self.stamp("B_sync1")
        p(f"buffer_load_dwordx2 v[32:33], v41, {WS}, {sZL} offen sc1")
        LD = []
        for q in range(4):
            for i in (2 * q, 2 * q + 1):
                LD.append(Inst(f"buffer_load_dwordx4 {v(48+4*i,4)}, {L16}, {WS}, {sKVL if i < 4 else sT1} offen offset:{(i&3)*1024} sc1"))
            for i in (2 * q, 2 * q + 1):
                LD.append(Inst(f"buffer_load_dwordx4 {a_(4*i,4)}, {L16}, {WS}, {sPQL if i < 4 else sT3} offen offset:{(i&3)*1024} sc1"))
        p.extend(LD[:8])
        W = [trpair(('a', 128 + 4 * i), f"v{WOT+(i>>3)}", (i & 7) * 4096, 1024) for i in range(32)]
        W = weave(W, LD[8:], 16, 32)
        p.extend(flat(W))
        p(f"v_cvt_pk_bf16_f32 v32, v32, v33\nds_write_b32 {ZBW}, v32")
        for q in range(4):
            p(f"ds_read_b128 {v(96+4*q,4)}, {ZBR} offset:{q*64}")
        for k in range(8):
            p(f"v_lshlrev_b32 v{AH+2*k}, 16, v{24+k}\nv_and_b32 v{AH+2*k+1}, {sMSKHI}, v{24+k}")
        p("WAITALL lgkm\ns_barrier")
        self.stamp("B_wo")

        def prep(q):
            S = Seq()
            for k in range(4):
                S(f"v_cvt_pk_bf16_f32 v{80+4*q+k}, v{48+8*q+2*k}, v{48+8*q+2*k+1}")
            for k in range(4):
                S(f"v_cndmask_b32 v{112+8*q+k}, v{80+4*q+k}, v{96+4*q+k}, {sB4LANES}")
            for k in range(4):
                S(f"v_cndmask_b32 v{116+8*q+k}, v{96+4*q+k}, v{80+4*q+k}, {sB4LANES}")
            return S
        NA = [144, 160, 176]
        TQ = flat([self.dmaT(t, t) for t in range(4)])
        n1, n2, n3 = o.get('tq1', 8), o.get('tq2', 8), o.get('tq3', 8)

        def num(i):
            return mf32(NA[i % 3], v(112 + 4 * i, 4), a_(4 * i, 4), "0")

        def fin(i):
            n = NA[i % 3] + 8 * (i & 1)
            d = NA[i % 3] + 8 * (1 - (i & 1))
            S = Seq()
            S(f"v_add_f32 v{d}, {sEPS6}, v{d}\nv_rcp_f32 v{d}, v{d}")
            for k in range(8):
                S(f"v_mul_f32 v{n+k}, v{n+k}, v{d}")
            for k in range(4):
                S(f"v_cvt_pk_bf16_f32 v{48+4*i+k}, v{n+2*k}, v{n+2*k+1}")
            return S
        p.extend(prep(0))
        p.append(num(0))
        p.append(num(1))
        VM = TQ[:n1]
        for i in range(8):
            if i + 2 < 8:
                if i % 2 == 0:
                    p.extend(prep(i // 2 + 1))
                p.append(num(i + 2))
            for _ in range(-(-n1 // 8)):
                if VM:
                    p.extend(VM.pop(0))
            p.extend(fin(i))
            if i >= 1:
                p.append(mf32(AH, a_(128 + 4 * (i - 1), 4), v(48 + 4 * (i - 1), 4)))
            p(f"ds_write_b128 v{OAD}, {v(48+4*i,4)} offset:{i*1024}")
        assert not VM
        self.stamp("B_st1")
        p("WAITALL lgkm\ns_barrier")

        def oread(i):
            return [Inst(f"ds_read_b128 {v(80+4*(i&7),4)}, v{OAD+(i>>3)} offset:{(i&7)*1024}")]
        for i in range(8, 13):
            p.extend(oread(i))
        p.append(mf32(AH, a_(128 + 28, 4), v(48 + 28, 4)))
        G = []
        for i in range(8, 32):
            g = [mf32(AH, a_(128 + 4 * i, 4), v(80 + 4 * (i & 7), 4))]
            if i + 5 < 32:
                g += oread(i + 5)
            G.append(g)
        G = weave(G, TQ[n1:n1 + n2], 0, 24)
        G = weave(G, self.miscC(), 0, 22)
        p.extend(flat(G))
        for k in range(8):
            p(f"v_cvt_pk_bf16_f32 v{48+k}, v{AH+2*k}, v{AH+2*k+1}")
            if k == 3:
                p(f"buffer_store_dwordx4 v[48:51], {L16}, {WS}, {sHST} offen sc1", tag="pub2")
        p(f"buffer_store_dwordx4 v[52:55], {L16}, {WS}, {sHST} offen offset:1024 sc1", tag="pub2")
        p(f"v_add_f32 v56, v{AH}, v{AH+1}\nv_mul_f32 v57, v{AH}, v{AH}\nv_add_f32 v58, v{AH+2}, v{AH+3}\nv_mul_f32 v59, v{AH+1}, v{AH+1}")
        for k in range(2, 16):
            if k >= 4:
                p(f"v_add_f32 v{56+2*(k&1)}, v{56+2*(k&1)}, v{AH+k}")
            p(f"v_fmac_f32 v{57+2*(k&1)}, v{AH+k}, v{AH+k}")
        p("""v_add_f32 v56, v56, v58
             v_add_f32 v57, v57, v59
             v_permlane32_swap_b32 v56, v57
             v_add_f32 v56, v56, v57""")
        p(f"buffer_atomic_add_f32 v56, {L4}, {WS}, {sSTA} offen", tag="pub2")
        self.stamp("B_hst")
        p.extend(flat(TQ[n1 + n2:n1 + n2 + n3]))
        assert n1 + n2 >= 16
        p(f"WAITTAG pub2\nbuffer_atomic_add v4, {FA2}, {WS}, {sD} offen sc1\ns_barrier")
        self.stamp("B_sig")
        self.tq_rest = TQ[n1 + n2 + n3:]

    def miscC(self):
        M = Seq()
        M(f"""s_lshl_b32 {sT1}, {sG}, 2
             s_add_u32 {sT2}, {sT1}, {sW}
             s_lshl_b32 {cHB}, {sT2}, 15
             s_add_u32 {cHB}, {cHB}, {hex(HB)}
             s_lshl_b32 {cST}, {sT2}, 8
             s_add_u32 {cST}, {cST}, {hex(ST)}
             s_mul_i32 {cHS}, {sT2}, {112*1024}
             s_mul_i32 {sT3}, {sM}, 7168
             s_add_u32 {cHS}, {cHS}, {sT3}
             s_add_u32 {cHS}, {cHS}, {hex(HH)}
             s_add_u32 {cHS2}, {cHS}, 4096
             s_mul_i32 {cCS}, {sM}, {7*128}
             s_add_u32 {cCS}, {cCS}, {hex(CS)}
             s_and_b32 {sCB}, {sM}, 7
             s_mul_i32 {cW2}, {sCB}, {112*2048}
             s_mul_i32 {sT3}, {sW}, {28*2048}
             s_add_u32 {cW2}, {cW2}, {sT3}
             s_add_u32 {cW2}, {cW2}, {hex(W2R)}
             s_and_b32 {sT3}, {sW}, 1
             s_lshl_b32 {sT2}, {sT3}, 10
             v_add_u32 {W2A}, {sT2}, {L16}
             v_xor_b32 {W2B}, 1024, {W2A}
             v_add_u32 {LB1}, 0x10000, {L16}
             v_add_u32 {LB2}, 0x20000, {L16}
             s_add_u32 {sT2}, {sB}, 0x10000
             v_add_u32 {WLA}, {sT2}, {W2A}
             v_add_u32 {WLB}, {sT2}, {W2B}
             v_add_u32 {WLC}, 0x10000, {WLA}
             v_add_u32 {WLD}, 0x10000, {WLB}
             v_and_b32 {CSL}, 0x7c, {L4}
             s_lshr_b32 {sT2}, {sM}, 3
             s_lshl_b32 {sT2}, {sT2}, 1
             s_add_u32 {sT1}, {sT1}, {sT2}
             s_mul_i32 {cHL}, {sT1}, {112*1024}
             s_mul_i32 {sT2}, {sW}, {28*1024}
             s_add_u32 {cHL}, {cHL}, {sT2}
             s_add_u32 {cHL}, {cHL}, {hex(HH)}
             s_lshr_b32 {sT2}, {sW}, 1
             s_add_u32 {sT1}, {sT1}, {sT2}
             s_mul_i32 {sT2}, {sT2}, {112*1024}
             v_add_u32 {HHA}, {sT2}, {L16}
             s_sub_u32 {sT2}, {112*1024}, {sT2}
             v_add_u32 {HHB}, {sT2}, {L16}
             s_lshl_b32 {sT1}, {sT1}, 15
             s_lshl_b32 {sT2}, {sCB}, 1
             s_add_u32 {sT2}, {sT2}, {sT3}
             s_lshl_b32 {cOUT}, {sT2}, 6
             s_add_u32 {cOUT}, {cOUT}, {sT1}
             s_lshl_b32 {cHR}, {sT2}, 11
             s_add_u32 {cHR}, {cHR}, {sT1}
             s_add_u32 {cHR}, {cHR}, {hex(HB)}
             s_lshl_b32 {sT1}, {sG}, 2
             s_add_u32 {sT2}, {sT1}, {sW}
             s_lshl_b32 {cPL}, {sT2}, 1
             s_and_b32 {sT3}, s2, 1
             s_add_u32 {cPL}, {cPL}, {sT3}
             s_lshl_b32 {cPL}, {cPL}, 8
             s_add_u32 {cPL}, {cPL}, {hex(HF)}
             s_lshl_b32 {cPS}, {sT2}, 2
             s_lshr_b32 {sT3}, {sM}, 2
             s_add_u32 {cPS}, {cPS}, {sT3}
             s_lshl_b32 {cPS}, {cPS}, 8
             s_add_u32 {cPS}, {cPS}, {hex(PF)}
             s_lshr_b32 {sT3}, {sM}, 3
             s_lshl_b32 {sT3}, {sT3}, 1
             s_add_u32 {sT1}, {sT1}, {sT3}
             s_lshl_b32 {cPP}, {sT1}, 2
             s_add_u32 {cPP}, {cPP}, {sW}
             s_lshl_b32 {cPP}, {cPP}, 8
             s_add_u32 {cPP}, {cPP}, {hex(PF)}""")
        return list(M)

    def phaseCD(self):
        p = self.p
        o = self.o
        sub = self.sub
        bar = lambda s_: list(Seq()(s_))
        steps = [7 * pr + t for pr in range(4) for t in range(3)]
        steps += [7 * pr + 3 for pr in range(4)]
        steps += [7 * pr + t for t in (4, 5, 6) for pr in range(4)]
        w2l = []
        for i in range(16):
            S = Seq()
            S(f"s_add_u32 {sKC}, {cW2}, {steps[i]*2048}")
            S(f"buffer_load_dwordx4 {a_(128+8*i,4)}, {W2A}, {WS}, {sKC} offen sc1")
            w2l.append(list(S))
            w2l.append([Inst(f"buffer_load_dwordx4 {a_(132+8*i,4)}, {W2B}, {WS}, {sKC} offen sc1")])
            ctx(w2l[-2:])

        def dmaW2(part):
            g = []
            for k in range(4):
                S = Seq()
                S(f"s_add_u32 m0, {sB}, {(2+part)*32768+k*2048}\ns_add_u32 {sT0}, {cW2}, {steps[16+4*part+k]*2048}")
                S(f"buffer_load_dwordx4 {L16}, {WS}, {sT0} offen sc1 lds", tag=f"W2L{part}")
                g.append(list(S))
                g.append([Inst(f"buffer_load_dwordx4 {L16}, {WS}, {sT0} offen offset:1024 sc1 lds", tag=f"W2L{part}")])
                ctx(g[-2:])
            return g

        def pub(tag, st):
            if o.get('nopub'):
                return []
            return bar(f"WAITTAG {tag}\nbuffer_atomic_add v4, {FA1}, {WS}, {cPS} offen sc1\ns_add_u32 {cPS}, {cPS}, 65536")

        def pollld():
            if o.get('nopoll'):
                return []
            return bar(f"buffer_load_dword v5, {PA2}, {WS}, {cPP} offen sc1")

        def pollchk(st):
            if o.get('nopoll'):
                return []
            return sub(lambda: self.spin("v5", PA2, cPP, "3", "4", mode='check', sleep=o.get('sleep2', 2))) + bar(f"s_add_u32 {cPP}, {cPP}, 65536")

        FQ = self.tq_rest + self.dmaT(4, 4) + w2l
        npre = o.get('tq4', 8)
        p.extend(flat(FQ[:npre]))
        FQ = FQ[npre:]
        self.stamp("C_prepoll")
        self.spin("v5", None, cPL, "1", "16", mode='all', sleep=o.get('sleep3', 0))
        self.stamp("C_sync2")

        def hload(s):
            S = Seq()
            if s % 4 == 0 and s:
                S(f"s_add_u32 {cHB}, {cHB}, 4096")
            S(f"buffer_load_dwordx4 {a_(4*s,4)}, {L16}, {WS}, {cHB} offen offset:{(s&3)*1024} sc1")
            return list(S)
        HL = o.get('hla', 9)
        for s in range(HL):
            p.extend(hload(s))
        ACC = [48, 64, 80, 96, 112]
        acc_of = [0, 1, 2, 3, 0, 1, 2]
        slot_of = [0, 1, 2, 3, 4, 0, 1]
        WR, NR = 128, 8
        CSR, CSF, MEANF, C1, C2 = 160, 168, 176, 180, 181
        T = 184
        LK = o.get('lk', 5)
        F0 = Seq()
        F0(f"buffer_load_dword v{T}, {L4}, {WS}, {cST} offen sc1")
        for t in range(7):
            F0(f"buffer_load_dword v{CSR+t}, {CSL}, {WS}, {cCS} offen offset:{t*128} sc1")
        F1 = Seq()
        for k in (1, 2, 3, 5, 6, 7):
            F1(f"v_mov_b32 v{CSF+k}, 0")
        for k in (1, 2, 3):
            F1(f"v_mov_b32 v{MEANF+k}, 0")
        F1(f"""v_mov_b32 v{T+1}, v{T}
             v_permlane32_swap_b32 v{T}, v{T+1}
             v_mul_f32 v{T}, 0x3b000000, v{T}
             v_mul_f32 v{T+1}, 0x3b000000, v{T+1}
             v_cvt_pk_bf16_f32 v{MEANF}, -v{T}, -v{T}
             v_fma_f32 v{T+1}, -v{T}, v{T}, v{T+1}
             v_cndmask_b32 v{MEANF}, v{MEANF}, 0, {sHILANES}
             v_max_f32 v{T+1}, 0, v{T+1}
             v_add_f32 v{C2}, 0x3727c5ac, v{T+1}
             v_rsq_f32 v{C1}, v{C2}""")
        for t in range(7):
            F1.extend(split2(CSR + t, CSR + t, T + 2))
        F1(f"v_mul_f32 v{C1}, 0xbfb8aa3b, v{C1}")
        F1(f"v_mov_b32 v{CSF}, v{CSR}\nv_mov_b32 v{CSF+4}, v{CSR+1}")

        def tread(t, s, n):
            sl = slot_of[t]
            base = (L16, L16, LB1, LB1, LB2)[sl]
            return [Inst(f"ds_read_b128 {v(WR+4*(n%NR),4)}, {base} offset:{(sl&1)*32768*(sl<4)+s*1024}")]

        def corr(t):
            return mf32(ACC[acc_of[t]], v(CSF + 4 * (t & 1), 4), v(MEANF, 4))
        G = []
        for n in range(64):
            s, t = divmod(n, 2)
            g = [mf32(ACC[t], v(WR + 4 * (n % NR), 4), a_(4 * s, 4), "0" if s == 0 else None)]
            if n + LK < 64:
                g += tread((n + LK) % 2, (n + LK) // 2, n + LK)
            else:
                if n + LK == 64:
                    g += bar("WAITTAG T2\ns_barrier")
                g += tread(2, n + LK - 64, n + LK)
            if t == 0 and s + HL < 32:
                g += hload(s + HL)
            G.append(g)
        G.append([corr(0)])
        G.append([corr(1)])
        for n in range(LK):
            p.extend(tread(n % 2, n // 2, n))
        G = weave(G, list(F0), 8, 26)
        G = weave(G, list(F1), 44, 62)
        e0 = 2 * (32 - HL)
        ng = min(len(FQ), o.get('g1q', 8))
        G = weave(G, FQ[:ng], e0, 66)
        FQ = FQ[ng:]
        p.extend(flat(G))
        self.stamp("C_g1")

        def epi(t, tmp):
            A = ACC[acc_of[t]]
            S = Seq()
            for j in range(8):
                S(f"v_mul_f32 v{tmp+j}, v{A+j}, v{C1}")
            for j in range(8):
                S(f"v_exp_f32 v{tmp+j}, v{tmp+j}")
                S(f"v_mul_f32 v{A+j}, v{A+j}, v{A+8+j}")
            for j in range(8):
                S(f"v_fma_f32 v{tmp+j}, v{tmp+j}, v{C2}, v{C2}")
                if j >= 2:
                    S(f"v_rcp_f32 v{tmp+j-2}, v{tmp+j-2}")
            for j in range(8):
                S(f"v_mul_f32 v{A+j}, v{A+j}, v{tmp+j}")
                if j < 2:
                    S(f"v_rcp_f32 v{tmp+6+j}, v{tmp+6+j}")
            for j in range(4):
                S(f"v_cvt_pk_bf16_f32 v{tmp+8+j}, v{A+2*j}, v{A+2*j+1}")
            S(f"buffer_store_dwordx4 {v(tmp+8,4)}, {L16}, {WS}, {cHS if t < 4 else cHS2} offen offset:{(t&3)*1024} sc1", tag=f"hh{t}")
            return list(S)

        def tilepass(t, n0):
            G = []
            for s in range(32):
                n = n0 + s
                g = [mf32(ACC[acc_of[t]], v(WR + 4 * (n % NR), 4), a_(4 * s, 4), "0" if s == 0 else None)]
                if s + LK < 32:
                    g += tread(t, s + LK, n + LK)
                elif t < 6:
                    if s + LK == 32:
                        g += bar(f"WAITTAG T{t+1}\ns_barrier")
                    g += tread(t + 1, s + LK - 32, n + LK)
                if s == 16:
                    g += bar(f"v_mov_b32 v{CSF+4*(t&1)}, v{CSR+t}")
                G.append(g)
            G.append([corr(t)])
            return G

        def hhload(i):
            S = Seq()
            S(f"s_add_u32 {sCc}, {cHL}, {steps[i]*1024}")
            S(f"buffer_load_dwordx4 {a_(8*(i&15),4)}, {HHA}, {WS}, {sCc} offen sc1")
            return ctx([list(S), [Inst(f"buffer_load_dwordx4 {a_(8*(i&15)+4,4)}, {HHB}, {WS}, {sCc} offen sc1")]])

        EP = [epi(t, T + 12 * (t & 1)) for t in range(7)]
        P = {t: tilepass(t, 32 * t) for t in range(2, 7)}
        q = o.get('cq', 15)
        LA = o.get('dla', 7)
        G = weave(P[2], FQ[:q], 0, 32)
        FQ = self.dmaT(5, 0) + FQ[q:]
        FQ = FQ[:q] + self.dmaT(6, 1) + FQ[q:] + dmaW2(0) + dmaW2(1) + dmaW2(2)
        G = weave(G, EP[0] + EP[1][:26], 2, 33)
        p.extend(self.xf(flat(G)))
        self.stamp("C_t2")
        G = weave(P[3], FQ[:q], 0, 32)
        FQ = FQ[q:]
        G = weave(G, EP[1][26:] + EP[2], 0, 33)
        p.extend(self.xf(flat(G)))
        self.stamp("C_t3")
        G = weave(P[4], FQ[:q], 0, 32)
        FQ = FQ[q:]
        G = weave(G, EP[3], 2, 18)
        G[o.get('p1at', 26)] += pub("hh2", 0)
        p.extend(self.xf(flat(G)))
        self.stamp("C_t4")
        q5 = min(q, len(FQ) - 8)
        G = weave(P[5], FQ[:q5], 0, 32)
        FQ = FQ[q5:]
        G[16] += pollld()
        G = weave(G, EP[4], 2, 18)
        p.extend(self.xf(flat(G)))
        self.stamp("C_t5")
        G = P[6]
        G[1] += pollchk(0)
        hq = [x for i in range(LA) for x in hhload(i)]
        G = weave(G, hq, 2, 33)
        G = weave(G, EP[5], 2, 18)
        G[o.get('p2at', 12)] += pub("hh4", 1)
        p.extend(self.xf(flat(G)))
        self.stamp("C_t6")

        DA = [48, 64, 96, 112]

        def w2read(i):
            part, k = divmod(i - 16, 4)
            r = []
            for a in range(2):
                d = v(WR + 8 * (i % 4) + 4 * a, 4)
                ad = ((WLA, WLB), (WLA, WLB), (WLC, WLD))[part][a]
                r.append(Inst(f"ds_read_b128 {d}, {ad} offset:{(part&1)*32768+k*2048}"))
            return r

        def w2f(i, a):
            return a_(128 + 8 * i + 4 * a, 4) if i < 16 else v(WR + 8 * (i % 4) + 4 * a, 4)
        G = []
        for i in range(28):
            for k, (a, b) in enumerate([(1, 0), (1, 1), (0, 1), (0, 0)]):
                g = [mf32(DA[a + 2 * b], w2f(i, a), a_(8 * (i & 15) + 4 * b, 4), "0" if i == 0 else None)]
                if k == 1 and 16 <= i + 2 < 28:
                    if (i + 2) % 4 == 0:
                        g += bar(f"WAITTAG W2L{(i+2-16)//4}")
                    g += w2read(i + 2)
                G.append(g)
        c2, c3, c4 = o.get('c2', 22), o.get('c3', 54), o.get('c4', 78)
        l2, l3, l4 = o.get('l2', 6), o.get('l3', 37), o.get('l4', 64)
        G[l2] += pollld()
        G = weave(G, EP[6], 1, 11)
        G[o.get('p3at', 12)] += pub("hh5", 2)
        G[l3] += pollld()
        G[o.get('p4at', 38)] += pub("hh6", 3)
        G[40] += bar("s_barrier")
        hs = lambda a, b: [x for i in range(a, b) for x in hhload(i)]
        G = weave(G, hs(LA, 12), 0, c2)
        G[c2] += pollchk(1)
        nf = len(FQ) - 8
        G = weave(G, hs(12, 16) + FQ[:nf] + hs(16, 20), c2 + 1, c3)
        G[c3] += pollchk(2)
        G = weave(G, hs(20, 24), c3 + 1, l4)
        G[l4] += pollld()
        G = weave(G, FQ[nf:] + [bar(f"buffer_load_dwordx4 v[160:163], {L16}, {WS}, {cHR} offen sc1"),
                                bar(f"buffer_load_dwordx4 v[164:167], {L16}, {WS}, {cHR} offen offset:1024 sc1")], l4 + 1, c4)
        G[c4] += pollchk(3)
        G = weave(G, hs(24, 28), c4 + 1, c4 + 9)
        S = Seq()
        for k in range(4):
            S(f"""s_xor_b32 {sT0}, {sW}, {k}
                 s_mul_i32 {sT0}, {sT0}, 12288
                 v_add_u32 v{36+k}, {sT0}, {L16}""")
        for i in range(8):
            S(f"""v_lshlrev_b32 v{80+2*i}, 16, v{160+i}
                 v_and_b32 v{81+2*i}, {sMSKHI}, v{160+i}""")
        G = weave(G, list(S), 96, 110)
        for k in sorted(set(list(range(8, 112, 8)) + [c2 - 1, c2, c3 - 1, c3, c4 - 1, c4])):
            G[k] += sub(lambda: self.stamp(f"d{k}"))
        p.extend(self.xf(flat(G)))
        self.stamp("D_loop")
        for k in (1, 3, 2):
            for q_ in range(4):
                p(f"ds_write_b128 v{36+k}, {v(DA[k]+4*q_,4)} offset:{(k-1)*4096+q_*1024}")
        for i in range(16):
            p(f"v_add_f32 v{48+i}, v{48+i}, v{80+i}")
        p("WAITALL lgkm\ns_barrier")
        for q_ in range(4):
            for k in range(3):
                p(f"ds_read_b128 {v(160+16*k+4*q_,4)}, v36 offset:{k*4096+q_*1024}")
        for q_ in range(4):
            for j in range(4):
                r = 4 * q_ + j
                p(f"v_add_f32 v{48+r}, v{48+r}, v{160+r}")
                p(f"v_add_f32 v{176+r}, v{176+r}, v{192+r}")
            for j in range(4):
                r = 4 * q_ + j
                p(f"v_add_f32 v{48+r}, v{48+r}, v{176+r}")
            for j in range(2):
                p(f"v_cvt_pk_bf16_f32 v{112+2*q_+j}, v{48+4*q_+2*j}, v{48+4*q_+2*j+1}")
            if q_ & 1:
                p(f"buffer_store_dwordx4 {v(112+4*(q_>>1),4)}, {ROWA}, {OUT}, {cOUT} offen offset:{32*(q_>>1)}" + ["", " sc1", " nt", " sc0 sc1"][o.get('outst', 0)])
        self.stamp("D_end")

    def finish(self):
        p = self.p
        if self.o.get('stamps'):
            p("WAITALL vm")
            self.stamp("D_drained")
            p(f"""s_lshl_b32 {sT0}, s2, 2
                 s_add_u32 {sT0}, {sT0}, {sW}
                 s_lshl_b32 {sT0}, {sT0}, 7
                 s_add_u32 {sT0}, {sT0}, {hex(STAMP)}
                 s_mov_b32 exec_hi, 0
                 buffer_store_dword v{STV}, {L4}, {WS}, {sT0} offen""")
        if self.o.get('padto'):
            p("WAITALL vm")
            p("L_pad:\ns_memrealtime s[72:73]\ns_waitcnt lgkmcnt(0)\ns_sub_u32 s72, s72, s100")
            p(f"s_cmp_lt_u32 s72, {self.o['padto']}\ns_cbranch_scc1 L_pad")
        p("L_end:\ns_endpgm")

    def build(self):
        if self.o.get('stamps') or self.o.get('padto'):
            self.p("s_memtime s[100:101]" if self.o.get('stamps') == 2 else "s_memrealtime s[100:101]")
        self.setup()
        if self.o.get('stamps'):
            self.p(f"v_mov_b32 v{STV}, s100")
            self.nstamp = 1
            self.stamp_names.append("start")
        self.p.extend(self.xf(self.sub(self.phaseA), 'xa'))
        self.p.extend(self.xf(self.sub(self.phaseB), 'xb'))
        self.phaseCD()
        self.finish()
        return finalize(self.p, self.o.get('fill', 1))


def emit(opt):
    g = Gen(opt)
    prog = g.build()
    hdr = open(os.path.join(os.path.dirname(os.path.abspath(__file__)), "header.txt")).read()
    body = "\n".join(("" if i.kind == 'label' else "    ") + i.text for i in prog)
    txt = hdr + f"""; @launch grid=(256,1,1) block=(256,1,1) lds=163840
.amdgcn_target "amdgcn-amd-amdhsa--gfx950"
.set CODE_PF_MAX, {opt.get('code_bytes', 0)}
.text
.globl {NAME}_kernel
.p2align 8
.type {NAME}_kernel,@function
{NAME}_kernel:
{body}
.section .rodata,"a"
.p2align 6
.amdhsa_kernel {NAME}_kernel
  .amdhsa_next_free_vgpr 512
  .amdhsa_next_free_sgpr 102
  .amdhsa_accum_offset 256
  .amdhsa_group_segment_fixed_size 0
  .amdhsa_kernarg_size 80
  .amdhsa_user_sgpr_count 2
  .amdhsa_user_sgpr_kernarg_segment_ptr 1
  .amdhsa_system_sgpr_workgroup_id_x 1
.end_amdhsa_kernel
"""
    return txt, g.stamp_names


def code_size(txt):
    import subprocess, tempfile
    with tempfile.TemporaryDirectory() as d:
        open(d + "/k.s", "w").write(txt)
        r = subprocess.run(["clang", "-x", "assembler", "-target", "amdgcn-amd-amdhsa",
                            "-mcpu=gfx950", "-c", d + "/k.s", "-o", d + "/k.o"], capture_output=True, text=True)
        if r.returncode:
            print("\n".join(r.stderr.split("\n")[:30]))
            raise SystemExit(1)
        r = subprocess.run(["llvm-objdump", "-h", d + "/k.o"], capture_output=True, text=True)
        for line in r.stdout.split("\n"):
            f = line.split()
            if len(f) > 2 and f[1] == ".text":
                return int(f[2], 16)


def main():
    opt = {}
    out = None
    for a in sys.argv[1:]:
        if '=' in a:
            k, val = a.split('=')
            try:
                opt[k] = int(val, 0)
            except ValueError:
                opt[k] = val
        else:
            out = a
    opt['code_bytes'] = 4096
    txt, names = emit(opt)
    sz = code_size(txt)
    opt['code_bytes'] = (sz - 1024) & ~3
    txt, names = emit(opt)
    open(out, "w").write(txt)
    if names:
        open(out + ".names", "w").write(" ".join(names))
    print(out, "code bytes", sz, "lines", txt.count("\n"), "stamps", len(names))


if __name__ == "__main__":
    main()
```

```python
import sys, os
sys.path.insert(0, os.path.dirname(os.path.abspath(__file__)))
from dsl import *

NAME = "sequential_preLN__linear_attn_block__glu_gated_swiglu__prompt"

CNT = 0x20000
KVM = 0x10000
ST = 0x18000
CS = 0x1C000
ZP = 0x1F800
STAMP = 0xC0000
PQ = 0x400000
HB = 0x800000
HH = 0x1000000
W13R = 0x2000000
W2R = 0x2400000
PROBE = 0x100000
WS_SIZE = 0x2600000
OOB = 0x7f000000

X, WQKV, WO, W1, W3, W2, OUT, WS, DBG = [f"s[{a}:{a+3}]" for a in range(4, 40, 4)]
(sW, sG, sM, sC0, sT0, sT1, sT2, sT3, sXB, sWB, sXL, sWL, sTB, sCB, sRQ, sLOG2E,
 sU, sKC, sT4, sT5, sMSKHI, sEPS6) = [f"s{i}" for i in range(40, 62)]
sHILANES = "s[62:63]"
sB4LANES = "s[64:65]"
sA, sB, sCc, sD = "s66", "s67", "s68", "s69"
sKVA, sZA, sPQS, sRW, sR2, sRC, sKVL, sZL, sPQL, sSIG, sHST, sSTA = [f"s{i}" for i in range(84, 96)]
sMA, sTA, sHS = "s3", "s74", "s83"
sP1, sPE, sP2, sTBL = "s96", "s97", "s98", "s99"
STV = 0

VB, KB, XCH, RST, KVS = 0x10000, 0x18000, 0x20000, 0x22000, 0x10000

L16, L4 = "v2", "v3"
TRK, TRP = 152, 156
XCW, XCR, KVW, ZW, STW, KVR, ZR, ZAT, STR = [f"v{i}" for i in range(212, 221)]
WOD, WOT, OAD = 221, 225, 229
ROWA, ZBW, ZBR, P256 = "v233", "v234", "v235", "v236"
RL1, RL3, RL2, RT13, RT2A, RT2B, CSAT, P4K, FA1, LM8, PA2 = [f"v{i}" for i in range(237, 248)]
RCS = 248


def v(a, n=1):
    return f"v{a}" if n == 1 else f"v[{a}:{a+n-1}]"


def a_(a, n=1):
    return f"a{a}" if n == 1 else f"a[{a}:{a+n-1}]"


def mf32(d, A, B, c=None):
    return Inst(f"v_mfma_f32_32x32x16_bf16 {v(d,16)}, {A}, {B}, {v(d,16) if c is None else c}")


def mf16(d, A, B, c=None):
    return Inst(f"v_mfma_f32_16x16x32_bf16 {v(d,4)}, {A}, {B}, {v(d,4) if c is None else c}")


def mf4(d, A, B, c=None):
    return Inst(f"v_mfma_f32_4x4x4_16b_bf16 {v(d,4)}, {A}, {B}, {v(d,4) if c is None else c}")


def trpair(dst, addr, off, step):
    k, b = dst
    return [Inst(f"ds_read_b64_tr_b16 {k}[{b}:{b+1}], {addr} offset:{off}"),
            Inst(f"ds_read_b64_tr_b16 {k}[{b+2}:{b+3}], {addr} offset:{off+step}")]


def split2(dst, src, t):
    return Seq()(f"""v_cvt_pk_bf16_f32 v{t}, v{src}, v{src}
         v_lshlrev_b32 v{t}, 16, v{t}
         v_sub_f32 v{t}, v{src}, v{t}
         v_cvt_pk_bf16_f32 v{dst}, v{src}, v{t}""")


cHB, cST, cHS, cHR, cCS, cW2, cHL, cOUT, cHS2, cPL, cPP, cPQ, cPS = [f"s{i}" for i in range(75, 88)]
W2A, W2B, LB1, LB2, WLA, WLB, WLC, WLD = [f"v{i}" for i in range(6, 14)]
CSL, HHA, HHB, HPA = "v14", "v15", "v42", "v43"


class Gen:
    def __init__(self, opt):
        self.o = opt
        self.p = Seq()
        self.nl = 0
        self.nstamp = 0
        self.stamp_names = []

    def lab(self, s):
        self.nl += 1
        return f"L_{s}_{self.nl}"

    def stamp(self, name):
        if self.o.get('padat') == name:
            self.p("WAITALL lgkm\ns_memrealtime s[100:101]\nWAITALL lgkm")
        if self.o.get('stamps', 3) == 3:
            return
        fine = str(self.o.get('fine', ''))
        if name[0].islower() and name[0] not in fine:
            return
        if fine and name[0].isupper() and name[0].lower() not in fine and name not in ('C_t6', 'B_sync1', 'C_sync2', 'D_drained', 'A_loop', 'A_v', 'A_q'):
            return
        p = self.p
        if self.o.get('nb'):
            if self.nstamp > 1:
                p(f"v_writelane_b32 v{STV}, s72, {self.nstamp-1}", cond=True)
            p("s_memrealtime s[72:73]" if self.o['stamps'] == 1 else "s_memtime s[72:73]", cond=True)
            if name == 'D_drained':
                p(f"s_waitcnt lgkmcnt(0)\nv_writelane_b32 v{STV}, s72, {self.nstamp}", cond=True)
            self.nstamp += 1
            self.stamp_names.append(name)
            return
        p("WAITALL lgkm")
        p("s_memrealtime s[72:73]" if self.o['stamps'] == 1 else "s_memtime s[72:73]")
        p("WAITALL lgkm")
        p(f"v_writelane_b32 v{STV}, s72, {self.nstamp}")
        self.nstamp += 1
        self.stamp_names.append(name)

    def sub(self, fn):
        save = self.p
        self.p = Seq()
        fn()
        r = list(self.p)
        self.p = save
        return r

    def xf(self, L, key='x'):
        x = self.o.get(key, '')
        out = []
        for i in L:
            if 'v' in x and i.kind in ('vload', 'dma') and not i.cond and 'dwordx4' in i.op:
                continue
            if 'e' in x and i.kind in ('valu', 'trans') and not i.cond and i.op.endswith(('f32', 'f32_e64')):
                continue
            if 'l' in x and i.kind == 'dsr':
                continue
            if 's' in x and i.kind == 'vstore' and 'store' in i.op and not i.cond:
                continue
            if 'b' in x and i.op == 's_barrier':
                continue
            if 'm' in x and i.kind == 'mfma' and i.passes < 8:
                continue
            out.append(i)
        return out

    def ool(self, branch, text):
        p = self.p
        L, R = self.lab("o"), self.lab("r")
        p(f"{branch} {L}")
        n = len(p)
        p(f"{L}:\n{text}\ns_branch {R}", cond=True)
        for i in p[n:]:
            i.ool = L
        p(f"{R}:")

    def spin(self, vt, vaddr, soff, mask, target, srd=WS, mode='wave0', sleep=0, field=None):
        p = self.p
        Lp = self.lab("pl")
        addr = f"{vaddr}, {srd}, {soff} offen" if vaddr else f"off, {srd}, {soff}"
        ext = f"v_and_b32 v43, {field}, {vt}\n" if field is not None else ""
        vc = "v43" if field is not None else vt
        loop = f"""s_mov_b32 {sT5}, 0
             s_mov_b64 exec, {mask}
             {Lp}:
             {f's_sleep {sleep}' if sleep else ''}
             buffer_load_dword {vt}, {addr} sc1
             s_add_u32 {sT5}, {sT5}, 1
             s_waitcnt vmcnt(0)
             {ext}v_cmp_gt_u32 vcc, {target}, {vc}
             s_cmp_ge_u32 {sT5}, 0x8000
             s_cselect_b64 vcc, 0, vcc
             s_and_b64 exec, exec, vcc
             s_cbranch_scc1 {Lp}
             s_mov_b64 exec, -1"""
        if self.o.get('stamps') == 3:
            p(f"s_mov_b32 {sT5}, 0")
        if mode == 'check':
            p(f"{ext}v_cmp_gt_u32 vcc, {target}, {vc}\ns_and_b64 vcc, vcc, {mask}")
            self.ool("s_cbranch_scc1", loop)
        elif mode == 'wave0':
            Ld = self.lab("pd")
            p(f"s_cmp_lg_u32 {sW}, 0\ns_cbranch_scc1 {Ld}")
            p(loop, cond=True)
            p(f"{Ld}:")
        else:
            p(loop, cond=True)
            p("s_waitcnt vmcnt(0)")
        if self.o.get('stamps') == 3:
            p(f"v_writelane_b32 v{STV}, {sT5}, {self.nstamp}")
            self.nstamp += 1
            self.stamp_names.append(f"spin{self.nstamp}")

    def setup(self):
        p = self.p
        p(f"""s_cmp_ge_u32 s2, 256
             s_cbranch_scc1 L_end
             s_load_dwordx16 s[76:91], s[0:1], 0
             s_load_dwordx4 s[92:95], s[0:1], 64""")
        p("v_and_b32 v1, 63, v0\nv_lshrrev_b32 v4, 6, v0")
        p(f"v_readfirstlane_b32 {sW}, v4")
        p(f"""s_mov_b32 s6, 0x200000
             s_mov_b32 s7, 0x20000
             s_mov_b32 s10, 0x180000
             s_mov_b32 s11, 0x20000
             s_lshr_b32 {sU}, s2, 3
             s_and_b32 {sKC}, s2, 7
             s_and_b32 {sRQ}, {sU}, 3
             s_and_b32 {sG}, s2, 6
             s_lshl_b32 {sG}, {sG}, 1
             s_add_u32 {sG}, {sG}, {sRQ}
             s_lshr_b32 {sT1}, s2, 5
             s_and_b32 {sT2}, s2, 1
             s_lshl_b32 {sTA}, {sG}, 1
             s_add_u32 {sTA}, {sTA}, {sT2}
             s_lshl_b32 {sXL}, {sW}, 14
             s_lshl_b32 {sXB}, {sTA}, 16
             s_add_u32 {sXB}, {sXB}, {sXL}
             s_xor_b32 {sMA}, {sT1}, 4
             s_mul_i32 {sWB}, {sW}, {16*3072}
             s_lshl_b32 {sT0}, {sMA}, 7
             s_add_u32 {sWB}, {sWB}, {sT0}
             s_lshl_b32 {sWL}, {sW}, 11
             s_add_u32 {sC0}, {sT1}, {sKC}""")
        rot = self.o.get('rot', 6)
        if rot == 7:
            p(f"s_lshl_b32 {sT0}, {sU}, 2\ns_add_u32 {sC0}, {sC0}, {sT0}")
        if rot == 8:
            p(f"s_lshl_b32 {sT0}, {sRQ}, 1\ns_add_u32 {sC0}, {sC0}, {sT0}")
        if rot == 9:
            p(f"s_lshl_b32 {sC0}, {sT1}, 1\ns_add_u32 {sC0}, {sC0}, {sKC}")
        p(f"""v_lshrrev_b32 v4, 3, v1
             v_and_b32 v5, 7, v1
             v_lshrrev_b32 v3, 4, v1
             v_xor_b32 v6, v5, v3
             v_lshlrev_b32 v6, 4, v6
             v_lshl_add_u32 v6, v4, 10, v6
             v_xor_b32 v7, 64, v6
             v_add_u32 v7, 7168, v7
             v_and_b32 v3, 1, v3
             v_lshlrev_b32 v3, 2, v3
             v_xor_b32 v5, v5, v3
             v_lshlrev_b32 v5, 4, v5
             v_mul_u32_u24 v8, 3072, v4
             v_add_u32 v8, v8, v5
             v_add_u32 v9, {8*3072-1024}, v8""")
        p("WAITALL lgkm")
        p("s_mov_b64 s[4:5], s[76:77]\ns_mov_b64 s[8:9], s[78:79]")

    def dmaW(self, t, c):
        base, po = ((KB, 1024), (VB, 2048), (0, 0))[t]
        tag = f"{'AVQ'[t]}{c}"
        S = Seq()
        S(f"s_add_u32 m0, {sWL}, {base + c*8192 - po}")
        S(f"buffer_load_dwordx4 v8, {WQKV}, s{75+c} offen offset:{po} lds", tag=tag)
        return ctx([list(S), [Inst(f"buffer_load_dwordx4 v9, {WQKV}, s{75+c} offen offset:{po+1024} lds", tag=tag)]])

    def dmaA(self, c):
        wc = f"s{75+c}"
        g = self.dmaW(0, c)
        g[0] = list(Seq()(f"""s_add_u32 {sT0}, {sC0}, {c}
             s_and_b32 {sT0}, {sT0}, 7
             s_mul_i32 {wc}, {sT0}, {64*3072}
             s_add_u32 {wc}, {wc}, {sWB}
             s_lshl_b32 {sT0}, {sT0}, 7""")) + g[0]
        nt = " nt" if self.o.get('xnt', 0) else ""
        S = Seq()
        S(f"s_add_u32 m0, {sWL}, {c*8192}\ns_add_u32 {sT0}, {sT0}, {sXB}")
        S(f"buffer_load_dwordx4 v6, {X}, {sT0} offen{nt} lds", tag=f"A{c}")
        g += [list(S), [Inst(f"buffer_load_dwordx4 v7, {X}, {sT0} offen offset:1024{nt} lds", tag=f"A{c}")]]
        return ctx(g)

    def dmaWO(self, q):
        S = Seq()
        S(f"""s_add_u32 {sT0}, {sA}, {q*65536}
             s_add_u32 m0, {sB}, {q*16384}
             s_and_b32 {sT0}, {sT0}, 0x7ffff""")
        g = []
        for k in range(4):
            S(f"buffer_load_dwordx4 v{WOD+k}, {WO}, {sT0} offen offset:{k*1024} lds", tag="WO")
            g.append(list(S))
            S = Seq()
        return ctx(g)

    def rload(self):
        nt = " nt" if self.o.get('rnt', 1) else ""
        g = []
        for k, (ad, srd, s0, s1) in enumerate(((RL1, W1, sKVL, sZL), (RL3, W3, sKVL, sZL), (RL2, W2, sPQL, sHST))):
            g.append(list(Seq()(f"s_add_u32 m0, {sSTA}, {k*2048}\nbuffer_load_dwordx4 {ad}, {srd}, {s0} offen{nt} lds")))
            g.append(list(Seq()(f"buffer_load_dwordx4 {ad}, {srd}, {s1} offen offset:1024{nt} lds")))
            ctx(g[-2:])
        return g

    def miscA(self):
        M = Seq()
        a, b, c, d = "v208", "v209", "v210", "v211"
        M(f"""v_lshl_add_u32 {RL2}, v4, 10, v5
             v_mul_u32_u24 v4, 3584, v4
             v_add_u32 {RL1}, v4, v5
             v_xor_b32 {RL3}, 32, {RL1}
             v_mov_b32 v4, 1
             v_lshlrev_b32 {L4}, 2, v1
             s_mov_b32 {sLOG2E}, 0x3fb8aa3b
             s_mov_b32 {sMSKHI}, 0xffff0000
             s_mov_b32 {sEPS6}, 0x358637bd
             s_mov_b32 s62, 0
             s_mov_b32 s63, -1
             s_mov_b32 s64, 0xffff0000
             s_mov_b32 s65, 0xffff0000
             s_mov_b32 s96, 0x22222222
             s_mov_b32 s97, 0x22222222
             s_mov_b32 s98, 0x44444444
             s_mov_b32 s99, 0x44444444
             s_mov_b32 s70, 0x88888888
             s_mov_b32 s71, 0x88888888
             s_and_b32 {sM}, s2, 1
             s_lshl_b32 {sM}, {sM}, 3
             s_lshr_b32 {sT1}, s2, 5
             s_add_u32 {sM}, {sM}, {sT1}
             s_and_b32 {sCB}, {sM}, 3
             s_and_b32 {sT1}, {sW}, 1
             s_lshr_b32 {sT2}, {sW}, 1
             s_lshl_b32 {sMA}, {sMA}, 1
             s_add_u32 {sMA}, {sMA}, {sT2}
             s_lshl_b32 {sTA}, {sTA}, 1
             s_add_u32 {sTA}, {sTA}, {sT1}""")
        M(f"""v_and_b32 {a}, 31, v1
             v_lshrrev_b32 {b}, 5, v1
             v_bfe_u32 {c}, v1, 1, 3
             v_xor_b32 {c}, {b}, {c}
             v_lshlrev_b32 {c}, 4, {c}
             v_lshl_add_u32 {c}, {a}, 7, {c}
             s_lshl_b32 {sT3}, {sT1}, 12
             s_lshl_b32 {sT4}, {sW}, 5
             s_add_u32 {sT3}, {sT3}, {sT4}
             v_xor_b32 v10, {sT3}, {c}
             v_xor_b32 v11, 32, v10
             v_xor_b32 v12, 64, v10
             v_xor_b32 v13, 96, v10
             s_lshl_b32 {sT3}, {sCB}, 1
             s_add_u32 {sT3}, {sT3}, {sT2}
             s_sub_u32 {sT3}, {sT3}, {sC0}
             s_and_b32 {sT3}, {sT3}, 7
             s_lshl_b32 {sT3}, {sT3}, 1
             s_lshr_b32 {sT4}, s2, 7
             s_add_u32 {sT3}, {sT3}, {sT4}
             s_lshl_b32 {sT3}, {sT3}, 6
             s_add_u32 {sT3}, {sT3}, {sT1}
             s_lshl_b32 {sT3}, {sT3}, 6
             v_xor_b32 v14, {sT3}, {c}
             v_xor_b32 v15, 32, v14""")
        M(f"""s_lshl_b32 {sT3}, {sT2}, 8
             s_add_u32 {sT3}, {sT3}, {hex(XCH)}
             v_lshl_add_u32 {XCR}, {a}, 3, {sT3}
             s_lshl_b32 {sT3}, {sT1}, 2
             v_add_u32 {XCW}, {sT3}, {XCR}
             s_lshl_b32 {sT3}, {sW}, 9
             s_add_u32 {sT3}, {sT3}, {hex(XCH+2048)}
             v_lshl_add_u32 {STW}, v1, 3, {sT3}
             v_xor_b32 {STR}, 1024, {STW}
             v_lshlrev_b32 {KVW}, 4, {a}
             v_lshl_add_u32 {KVW}, {b}, 10, {KVW}
             s_add_u32 {sT3}, {sWL}, {hex(KVS)}
             v_add_u32 {KVW}, {sT3}, {KVW}
             s_lshl_b32 {sT3}, {sW}, 7
             s_add_u32 {sT3}, {sT3}, {hex(KVS+8192)}
             v_lshl_add_u32 {ZW}, {a}, 2, {sT3}
             s_lshl_b32 {sT3}, {sT2}, 2
             s_add_u32 {sT3}, {sT3}, {sT1}
             s_lshl_b32 {sT4}, {sT3}, 10
             s_add_u32 {sT4}, {sT4}, {hex(KVS)}
             v_add_u32 {KVR}, {sT4}, {L4}
             s_lshl_b32 {sT4}, {sT3}, 6
             s_add_u32 {sT4}, {sT4}, {hex(KVS+8192)}
             v_and_b32 {d}, 15, v1
             v_lshl_add_u32 {ZR}, {d}, 2, {sT4}
             v_lshrrev_b32 {d}, 4, v1
             v_lshl_add_u32 {ZAT}, {d}, 27, {L4}
             v_lshl_add_u32 {CSAT}, {b}, 27, {L4}
             v_lshrrev_b32 {LM8}, 3, v1
             v_lshlrev_b32 {LM8}, 27, {LM8}
             v_min_u32 {FA1}, 1, v1
             v_lshlrev_b32 {FA1}, 27, {FA1}
             s_lshl_b32 {sT3}, {sMA}, 1
             s_add_u32 {sT3}, {sT3}, {sT1}
             s_lshl_b32 {sKVA}, {sT3}, 10
             s_add_u32 {sKVA}, {sKVA}, {hex(KVM)}
             s_lshl_b32 {sZA}, {sT3}, 6
             s_add_u32 {sZA}, {sZA}, {hex(ZP)}
             s_lshl_b32 {sPQS}, {sTA}, 2
             s_lshr_b32 {sT3}, {sMA}, 2
             s_add_u32 {sPQS}, {sPQS}, {sT3}
             s_lshl_b32 {sPQS}, {sPQS}, 3
             s_and_b32 {sT3}, {sMA}, 3
             s_add_u32 {sPQS}, {sPQS}, {sT3}
             s_lshl_b32 {sPQS}, {sPQS}, 11
             s_add_u32 {sPQS}, {sPQS}, {hex(PQ)}
             s_lshl_b32 {sHS}, {sG}, 2
             s_add_u32 {sHS}, {sHS}, {sW}
             s_lshl_b32 {sHS}, {sHS}, 4
             s_add_u32 {sHS}, {sHS}, {sM}
             s_lshl_b32 {sHS}, {sHS}, 14
             s_add_u32 {sHS}, {sHS}, {hex(HH+4096)}""")
        M(f"""v_bfe_u32 {c}, v1, 2, 2
             v_lshlrev_b32 {a}, 10, {b}
             v_lshl_add_u32 {a}, {c}, 7, {a}
             v_bfe_u32 {c}, v1, 4, 1
             v_bfe_u32 {d}, v1, 3, 1
             v_lshl_add_u32 {d}, {d}, 1, {c}
             v_lshl_add_u32 {a}, {d}, 5, {a}
             v_and_b32 {d}, 1, v1
             v_lshl_add_u32 {RT2A}, {d}, 4, {a}
             v_bfe_u32 {d}, v1, 1, 1
             v_lshl_add_u32 {RT2A}, {d}, 3, {RT2A}
             v_and_b32 {d}, 3, v1
             v_lshl_add_u32 {a}, {d}, 3, {a}
             s_lshl_b32 {sT3}, {sT2}, 6
             s_add_u32 {sT3}, {sT3}, {sWL}
             s_add_u32 {sT4}, {sT3}, {hex(KB)}
             v_xor_b32 v{TRK}, {sT4}, {a}
             s_add_u32 {sT4}, {sT3}, {hex(VB)}
             v_xor_b32 v{TRP}, {sT4}, {RT2A}""")
        for j in range(1, 4):
            M(f"v_xor_b32 v{TRK+j}, {j*2048}, v{TRK}\nv_xor_b32 v{TRP+j}, {j*2048}, v{TRP}")
        M(f"""s_lshl_b32 {sT3}, {sW}, 5
             s_add_u32 {sT3}, {sT3}, {hex(RST)}
             v_xor_b32 {RT13}, {sT3}, {RT2A}
             v_lshl_add_u32 {RT13}, {c}, 11, {RT13}
             s_mul_i32 {sSTA}, {sW}, 6144
             s_add_u32 {sSTA}, {sSTA}, {hex(RST)}
             v_add_u32 {RT2A}, {sSTA}, {RT2A}
             v_xor_b32 {RT2B}, 64, {RT2A}""")
        M(f"""v_lshrrev_b32 {a}, 2, v1
             v_xor_b32 {a}, {a}, {c}
             v_and_b32 {a}, 1, {a}
             v_or_b32 {a}, {a}, {d}
             v_cmp_eq_u32 vcc, 0, {a}
             v_mov_b32 v20, 0x3f803f80
             v_mov_b32 v21, 0x3f803f80
             v_mov_b32 v22, 0x3f803f80
             v_mov_b32 v23, 0x3f803f80
             v_cndmask_b32 v16, 0, v20, vcc
             v_cndmask_b32 v17, 0, v20, vcc
             v_cndmask_b32 v18, 0, v20, vcc
             v_cndmask_b32 v19, 0, v20, vcc""")
        for r in (162, 163, 166, 167, 170, 171, 174, 175, 177, 178, 179):
            M(f"v_mov_b32 v{r}, 0")
        M(f"""v_lshrrev_b32 {a}, 4, v1
             v_bfe_u32 {c}, v1, 2, 2
             v_xor_b32 {c}, {c}, {a}
             v_lshlrev_b32 {c}, 6, {c}
             v_lshl_add_u32 {c}, {a}, 10, {c}
             v_lshl_add_u32 v{WOD}, {d}, 4, {c}
             v_add_u32 v{WOD+1}, 3072, v{WOD}
             v_add_u32 v{WOD+2}, 6144, v{WOD}
             v_add_u32 v{WOD+3}, 9216, v{WOD}
             s_lshl_b32 {sA}, {sRQ}, 17
             s_add_u32 {sA}, {sA}, {sXL}
             s_lshl_b32 {sT3}, {sCB}, 8
             s_add_u32 {sA}, {sA}, {sT3}""")
        M(f"""s_lshl_b32 {sT3}, {sKC}, 2
             s_add_u32 {sT3}, {sT3}, {sW}
             s_mul_i32 {sKVL}, {sT3}, {16*3584}
             s_lshl_b32 {sT3}, {sU}, 7
             s_add_u32 {sKVL}, {sKVL}, {sT3}
             s_lshl_b32 {sT2}, {sU}, 2
             s_add_u32 {sT2}, {sT2}, {sW}
             s_lshl_b32 {sPQL}, {sT2}, 14
             s_lshl_b32 {sT3}, {sKC}, 7
             s_add_u32 {sPQL}, {sPQL}, {sT3}
             s_add_u32 {sHST}, {sPQL}, 7168
             s_lshl_b32 {sRC}, {sT2}, 7
             s_add_u32 {sRC}, {sRC}, {hex(CS)}
             s_lshl_b32 {sRW}, {sT2}, 3
             s_add_u32 {sRW}, {sRW}, {sKC}
             s_lshl_b32 {sRW}, {sRW}, 12
             s_add_u32 {sRW}, {sRW}, {hex(W13R)}
             s_mul_i32 {sR2}, {sKC}, 112
             s_add_u32 {sR2}, {sR2}, {sT2}
             s_lshl_b32 {sR2}, {sR2}, 11
             s_add_u32 {sR2}, {sR2}, {hex(W2R)}
             s_cmp_ge_u32 s2, 224
             s_cselect_b32 {sRW}, {hex(OOB)}, {sRW}
             s_cselect_b32 {sR2}, {hex(OOB)}, {sR2}
             s_cselect_b32 {sRC}, {hex(OOB)}, {sRC}
             s_cselect_b32 {sKVL}, {hex(OOB)}, {sKVL}
             s_add_u32 {sZL}, {sKVL}, {8*3584-1024}
             s_and_b32 {sSIG}, {sU}, 15
             s_lshl_b32 {sSIG}, {sSIG}, 8
             s_add_u32 {sSIG}, {sSIG}, {hex(CNT)}
             s_cmp_eq_u32 {sW}, 0
             s_cselect_b32 {sSIG}, {sSIG}, {hex(OOB)}""")
        return M

    def miscB(self):
        M = Seq()
        a, b, c, d = "v208", "v209", "v210", "v211"
        M(f"""s_lshr_b32 {sTB}, {sM}, 2
             s_lshl_b32 {sT3}, {sG}, 2
             s_add_u32 {sTB}, {sTB}, {sT3}
             s_lshl_b32 {sKVL}, {sW}, 13
             s_add_u32 {sKVL}, {sKVL}, {hex(KVM)}
             s_lshl_b32 {sT2}, {sTB}, 16
             s_add_u32 {sPQL}, {sT2}, {sXL}
             s_add_u32 {sPQL}, {sPQL}, {hex(PQ)}
             s_xor_b32 {sPQL}, {sPQL}, {sP1}
             s_lshl_b32 {sZL}, {sW}, 9
             s_add_u32 {sZL}, {sZL}, {hex(ZP)}
             s_lshl_b32 {sHST}, {sCB}, 14
             s_add_u32 {sHST}, {sHST}, {sT2}
             s_add_u32 {sHST}, {sHST}, {sWL}
             s_add_u32 {sHST}, {sHST}, {hex(HB)}
             s_xor_b32 {sHST}, {sHST}, {sPE}
             s_lshl_b32 {sSTA}, {sTB}, 8
             s_add_u32 {sSTA}, {sSTA}, {hex(ST)}
             s_lshl_b32 {sD}, {sTB}, 2
             s_add_u32 {sD}, {sD}, {sCB}
             s_lshl_b32 {sD}, {sD}, 16
             s_add_u32 {sD}, {sD}, {sXL}
             s_add_u32 {sD}, {sD}, {hex(HH+7168)}
             s_xor_b32 {sD}, {sD}, {sP2}
             v_lshrrev_b32 {b}, 5, v1
             v_and_b32 {a}, 31, v1
             v_lshlrev_b32 {ROWA}, 10, {a}
             v_lshl_add_u32 {ROWA}, {b}, 4, {ROWA}
             v_bfe_u32 {c}, v1, 2, 2
             v_and_b32 {a}, 1, v1
             v_lshlrev_b32 {a}, 4, {a}
             v_bfe_u32 {d}, v1, 1, 1
             v_lshl_add_u32 {a}, {d}, 3, {a}
             v_lshl_add_u32 {d}, {b}, 11, {a}
             v_lshl_add_u32 {d}, {c}, 8, {d}
             v_xor_b32 {c}, {sW}, {c}
             v_lshl_add_u32 {d}, {c}, 6, {d}
             v_bfe_u32 {c}, v1, 4, 1
             v_lshl_add_u32 {d}, {c}, 5, {d}""")
        for q in range(4):
            M(f"""s_add_u32 {sT2}, {sW}, {q+4}
                 s_sub_u32 {sT3}, {sT2}, {sRQ}
                 s_and_b32 {sT3}, {sT3}, 3
                 s_lshl_b32 {sT3}, {sT3}, 15
                 v_add_u32 v{WOT+q}, {sT3}, {d}
                 s_and_b32 {sT2}, {sT2}, 3
                 s_lshl_b32 {sT2}, {sT2}, 13
                 s_add_u32 {sT2}, {sT2}, 0x20000
                 v_add_u32 v{OAD+q}, {sT2}, {L16}""")
        M(f"""s_lshl_b32 {sT2}, {sW}, 13
             s_add_u32 {sT2}, {sT2}, {0x20000+7168}
             v_add_u32 {ZBW}, {sT2}, {L4}
             v_xor_b32 {d}, 1, {c}
             v_lshlrev_b32 {d}, 5, {d}
             v_lshl_add_u32 {d}, {b}, 4, {d}
             v_add_u32 {ZBR}, {sT2}, {d}
             v_lshrrev_b32 {d}, 4, v1
             v_lshlrev_b32 {P256}, 8, v1
             v_lshl_add_u32 {P256}, {d}, 27, {P256}""")
        return M

    def phaseA(self):
        p = self.p
        o = self.o
        p.extend(flat(self.dmaA(0)))
        p(f"v_lshlrev_b32 {L16}, 4, v1")
        if o.get('codepf', 1):
            p(f"""s_getpc_b64 s[70:71]
                 s_lshl_b32 {sT3}, {sU}, 2
                 s_add_u32 {sT3}, {sT3}, {sW}
                 s_lshl_b32 {sT4}, {sT3}, 8
                 v_lshrrev_b32 v200, 5, v1
                 v_lshl_add_u32 v200, v200, 7, {sT4}
                 v_min_u32 v200, CODE_PF_MAX, v200
                 global_load_dword v201, v200, s[70:71]""")
        p.extend(flat(self.dmaA(1)))
        for srd, src, sz in ((12, 80, 0x80000), (16, 84, 0x1C0000), (20, 86, 0x1C0000), (24, 88, 0x1C0000),
                             (28, 90, 0x200000), (36, 92, 256), (32, 94, WS_SIZE)):
            p(f"s_mov_b64 s[{srd}:{srd+1}], s[{src}:{src+1}]\ns_mov_b32 s{srd+2}, {hex(sz)}\ns_mov_b32 s{srd+3}, 0x20000")
        if o.get('wsoff'):
            p(f"s_add_u32 s32, s32, {o['wsoff'] << 20}\ns_addc_u32 s33, s33, 0")
        Lz = self.lab("z")
        p(f"""s_lshl_b32 {sB}, {sW}, 8
             s_add_u32 {sB}, {sB}, 224
             s_cmp_lt_u32 s2, {sB}
             s_cbranch_scc1 {Lz}""")
        p(f"""s_sub_u32 {sT2}, s2, 224
             s_and_b32 {sCc}, {sU}, 1
             s_lshl_b32 {sT3}, {sCc}, 5
             s_add_u32 {sT3}, {sT3}, {sT2}
             s_lshl_b32 {sT3}, {sT3}, 8
             s_add_u32 {sT3}, {sT3}, {hex(PROBE)}
             s_xor_b32 {sT4}, {sT3}, 0x2000
             s_buffer_load_dword {sT5}, {WS}, {sT3} glc
             s_buffer_load_dword {sT5}, {WS}, {sT4} glc
             v_mov_b32 v16, 0
             v_mov_b32 v17, 0
             v_mov_b32 v18, 0
             v_mov_b32 v19, 0
             v_lshrrev_b32 v20, 3, v1
             v_lshl_add_u32 v20, v20, 7, {L16}
             s_lshl_b32 {sT4}, {sT2}, 11
             s_lshl_b32 {sT3}, {sT2}, 12
             s_add_u32 {sT3}, {sT3}, {hex(CNT)}
             s_add_u32 {sT4}, {sT4}, {hex(KVM)}
             s_waitcnt lgkmcnt(1)
             s_nop 7
             s_getreg_b32 {sT2}, hwreg(HW_REG_IB_STS, 8, 4)
             buffer_store_dwordx4 v[16:19], {L16}, {WS}, {sT4} offen sc1
             buffer_store_dwordx4 v[16:19], {L16}, {WS}, {sT4} offen offset:1024 sc1
             buffer_store_dwordx4 v[16:19], v20, {WS}, {sT3} offen sc1
             buffer_store_dwordx4 v[16:19], v20, {WS}, {sT3} offen offset:2048 sc1
             s_getreg_b32 {sT4}, hwreg(HW_REG_XCC_ID, 2, 1)
             s_min_u32 {sT2}, {sT2}, 1
             s_waitcnt lgkmcnt(0)
             s_cmp_eq_u32 {sT4}, {sCc}
             s_cselect_b32 {sT5}, 6, 12
             s_lshl_b32 {sT2}, {sT2}, {sT5}
             s_add_u32 {sT5}, {sKC}, 18
             s_lshl_b32 {sT4}, {sT4}, {sT5}
             s_cmp_eq_u32 {sU}, 28
             s_cselect_b32 {sT4}, {sT4}, 0
             s_add_u32 {sT2}, {sT2}, {sT4}
             s_add_u32 {sT2}, {sT2}, 1
             v_mov_b32 v46, {sT2}""", cond=True)
        p(f"{Lz}:")
        p.extend(self.miscA())
        tch = Seq()
        touch = o.get('touch', 7)
        tch(f"""s_lshl_b32 {sCc}, s2, 2
             s_add_u32 {sCc}, {sCc}, {sW}
             s_lshr_b32 {sT4}, {sCc}, 1
             s_mul_i32 {sT4}, {sT4}, 3072
             s_and_b32 {sT5}, {sCc}, 1
             s_lshl_b32 {sT5}, {sT5}, 11
             s_add_u32 {sT4}, {sT4}, {sT5}
             s_lshl_b32 {sCc}, {sCc}, 9
             v_lshrrev_b32 v202, 3, v1
             v_lshlrev_b32 v202, 7, v202
             v_lshrrev_b32 v42, 4, v1
             v_lshlrev_b32 v42, 7, v42""")
        if touch & 4:
            tch(f"""s_lshl_b32 {sT3}, {sU}, 2
                 s_add_u32 {sT3}, {sT3}, {sW}
                 s_mul_i32 {sT3}, {sT3}, {4*3072}
                 v_min_u32 v200, 11, v1
                 v_lshlrev_b32 v200, 10, v200
                 buffer_load_dword v198, v200, {WQKV}, {sT3} offen offset:384""")
        if touch & 1:
            tch(f"buffer_load_dword v203, v202, {WQKV}, {sT4} offen")
        p.extend(tch)
        SEL, ONES = v(16, 4), v(20, 4)
        XS, XQ0, XQ1, CSA, ZA = 252, 248, 32, 36, 44
        AK, AV, AQ, RB, AKV = 48, 64, 80, 96, 112
        WR = 128
        XM, WP, RS_ = 160, 164, 176

        def wread(t, s, dst=None):
            n = t * 32 + s
            addr = (TRK, TRP, TRK)[t]
            return trpair(('v', WR + 4 * (n % 6) if dst is None else dst), f"v{addr+(s&3)}", (s >> 2) * 8192, 512)

        def wf(t, s):
            return v(WR + 4 * ((t * 32 + s) % 6), 4)

        def csm(f, first):
            return mf16(CSA, SEL, f, "0" if first else None)

        def cswrite(t):
            S = split2(41, CSA, 41)
            S(f"ds_write_b32 {XCW}, v41 offset:{t*512}", tag=f"x{t}")
            return list(S)

        def csget(t):
            return [Inst(f"ds_read_b64 {v(WP+4*t,2)}, {XCR} offset:{t*512}")]

        def xread(s):
            return [Inst(f"ds_read_b128 {a_(4*s,4)}, v{10+(s&3)} offset:{(s>>2)*8192}")]

        p.extend(flat(self.dmaA(2)))
        self.stamp("A_issued")
        p("WAITTAG A0\ns_barrier")
        self.stamp("A_c0")
        p.extend(xread(0) + wread(0, 0) + xread(1) + wread(0, 1))
        pend = self.dmaA(3)
        for s in range(32):
            c, j = s >> 2, s & 3
            xf = a_(4 * s, 4)
            z = "0" if s == 0 else None
            p.append(mf32(AK, xf, wf(0, s), z))
            if j == 2 and c < 7:
                p(f"WAITTAG A{c+1}\ns_barrier")
                self.stamp(f"a{c+1}")
                assert not pend
                if c == 1:
                    p(f"s_cmp_ge_u32 s2, {sB}")
                    self.ool("s_cbranch_scc1", f"buffer_atomic_add v46, {FA1}, {DBG}, 0 offen sc1")
                if c + 4 < 8:
                    pend = self.dmaA(c + 4)
                else:
                    pend = self.dmaW(1, 2 * (c - 4)) + self.dmaW(1, 2 * (c - 4) + 1)
            if s == 30:
                p("WAITTAG V1\ns_barrier")
                pend = self.dmaW(1, 6)
            if s + 2 < 32:
                p.extend(xread(s + 2) + wread(0, s + 2))
            else:
                p.extend(wread(1, s + 2 - 32))
            if s == 28:
                p("ds_read_b128 v[24:27], v14\nds_read_b128 v[28:31], v15", tag="xres")
            for _ in range(2 if s < 2 else 1):
                if pend:
                    p.extend(pend.pop(0))
            if j % 2 == 0:
                p.append(csm(wf(0, s), s == 0))
            if j < 2:
                p.append(mf16(XS, SEL, xf, z))
                p.append(mf4(XQ0, a_(4 * s, 2), a_(4 * s, 2), z))
                p.append(mf4(XQ1, a_(4 * s + 2, 2), a_(4 * s + 2, 2), z))
            if s == 30:
                for k in range(4):
                    p(f"v_add_f32 v{XQ0+k}, v{XQ0+k}, v{XQ1+k}")
                p(f"""v_cndmask_b32 v197, v{XQ0}, v{XQ0+1}, s[96:97]
                     v_cndmask_b32 v197, v197, v{XQ0+2}, s[98:99]
                     v_cndmask_b32 v197, v197, v{XQ0+3}, s[70:71]
                     v_mov_b32 v196, v197""")
            if s == 31:
                p(f"""v_permlane32_swap_b32 v196, v197
                     v_add_f32 v{XS+1}, v196, v197
                     ds_write_b64 {STW}, {v(XS,2)}""")
                p.extend(cswrite(0))
        assert not pend
        self.stamp("A_loop")
        CT = (204, 208, ZA)

        def tilepass(t, acc, order):
            nm = "VQ"[t - 1]
            G = []
            for s in range(32):
                A_, B_ = (a_(4 * s, 4), wf(t, s)) if order == 0 else (wf(t, s), a_(4 * s, 4))
                g = Seq()
                g.append(mf32(acc, A_, B_, "0" if s == 0 else None))
                if t == 1 and s == 2:
                    g("WAITTAG x0 xres V3\ns_barrier")
                    g(f"ds_read_b64 v[198:199], {STR}")
                    g.extend(csget(0))
                if s % 8 == 4 and s < 28 and (t, s) != (1, 4):
                    g(f"WAITTAG {nm}{(s+4)//4+1} kvp\ns_barrier")
                if s == 28:
                    g(f"WAITTAG x{t}" + (" Q1" if t == 1 else "") + "\ns_barrier")
                    g.extend(csget(t))
                if t == 1 and s < 2:
                    g.extend(wread(t, 2 + 2 * s) + wread(t, 3 + 2 * s))
                elif s + 4 < 32:
                    g.extend(wread(t, s + 4))
                elif t == 1:
                    g.extend(wread(2, s + 4 - 32))
                if s in (20, 21, 22):
                    g.extend(wread(t, 26 + 2 * (s - 20), CT[s - 20]))
                if s % 2 == 0 and s < 26 and (t, s) != (1, 0):
                    g.append(csm(wf(t, s), (t, s) == (2, 0)))
                if (t, s) == (1, 1):
                    g.append(csm(wf(t, 0), True))
                if s in (23, 24, 25):
                    g.append(csm(v(CT[s - 23], 4), False))
                if s == 26:
                    g.extend(cswrite(t))
                G.append(list(g))
            return G

        def phi(acc, scale, T, dst):
            S = Seq()
            for h in range(2):
                r = range(8 * h, 8 * h + 8)
                for i in r:
                    S(f"v_fma_f32 v{acc+i}, v{acc+i}, {scale(i)}, {sEPS6}")
                for i in r:
                    S(f"v_mul_f32 v{T+(i&7)}, {sLOG2E}, v{acc+i}")
                for i in r:
                    S(f"v_exp_f32_e64 v{T+(i&7)}, v{T+(i&7)} clamp")
                    S(f"v_max_f32 v{acc+i}, {sEPS6}, v{acc+i}")
                for i in r:
                    S(f"v_add_f32 v{acc+i}, v{acc+i}, v{T+(i&7)}")
                for i in range(4 * h, 4 * h + 4):
                    S(f"v_cvt_pk_bf16_f32 v{dst+i}, v{acc+2*i}, v{acc+2*i+1}")
            return S
        E = Seq()
        E(f"""v_add_f32 v198, v198, v{XS}
             v_add_f32 v197, v199, v{XS+1}
             v_mul_f32 v199, 0x3b000000, v198
             v_mul_f32 v197, 0x3b000000, v197
             v_cvt_pk_bf16_f32 v198, -v199, -v199
             v_fma_f32 v197, -v199, v199, v197
             v_cndmask_b32 v{XM}, v198, 0, {sHILANES}
             v_cndmask_b32 v{XM+1}, v198, 0, {sHILANES}
             v_max_f32 v197, 0, v197
             v_add_f32 v197, 0x3727c5ac, v197
             v_rsq_f32 v40, v197""")
        E.append(mf32(AK, v(XM, 4), v(WP, 4)))
        E.extend(split2(RS_, 40, 198))
        E(f"v_cndmask_b32 v{RS_}, v{RS_}, 0, {sHILANES}")
        E.append(mf32(RB, v(RS_, 4), ONES, "0"))
        PK = phi(AK, lambda i: f"v{RB+i}", 196, 180)
        G = tilepass(1, AV, 0)
        G = weave(G, self.dmaW(1, 7), 0, 2)
        G = weave(G, flat([self.dmaW(2, k) for k in range(8)]), 3, o.get('q2end', 30))
        G[0] += [Inst(f"v_subrev_u32 v{TRK+j}, {hex(VB)}, v{TRP+j}") for j in range(4)]
        G[12] += [Inst(f"buffer_load_dword v5, {FA1}, {DBG}, 0 offen sc1")]
        n2 = o.get('pk2', 80)
        G = weave(G, list(E), 4, 8)
        G = weave(G, PK[:n2], 10, 32)
        for k in range(3, 31, 4):
            G[k] += self.sub(lambda: self.stamp(f"v{k}"))
        p.extend(flat(G))
        p.append(mf32(AV, v(XM, 4), v(WP + 4, 4)))
        self.stamp("A_v")
        E = Seq()
        E.extend(PK[n2:])
        for i in range(16):
            E(f"v_mul_f32 v{AV+i}, v{AV+i}, v{RB+i}")
        for i in range(8):
            E(f"v_cvt_pk_bf16_f32 v{188+i}, v{AV+2*i}, v{AV+2*i+1}")
        G = tilepass(2, AQ, 1)
        rq = self.rload()
        if touch & 2:
            rq = [[Inst(f"buffer_load_dword v42, v42, {WO}, {sCc} offen")]] + rq
        G = weave(G, rq, o.get('r0', 0), o.get('r1', 7))
        woq = flat([self.dmaWO(q) for q in (5, 6, 7, 0, 1, 2, 3, 4)])
        nw3 = o.get('wo3', 0)
        G[13] += [Inst(f"s_lshl_b32 {sB}, {sW}, 12")]
        if nw3:
            G = weave(G, woq[:nw3], 20, 32)
        G = weave(G, list(E), 0, 7)
        G[7] += [mf32(AKV, v(180, 4), v(188, 4), "0"), mf32(AKV, v(184, 4), v(192, 4)),
                 mf16(ZA, SEL, v(180, 4), "0"), mf16(ZA, SEL, v(184, 4))]
        G[8] += self.sub(lambda: self.spin("v5", None, "0", "1", "32", srd=DBG, mode='check', sleep=4, field=63))
        S = Seq()
        S(f"""v_readfirstlane_b32 {sT2}, v5
             s_bfe_u32 {sT3}, {sT2}, 0x60006
             s_bfe_u32 {sT4}, {sT2}, 0x6000c
             s_lshr_b32 {sT2}, {sT2}, 5""")
        S = [[i] for i in S] + [list(Seq()(f"""s_cmp_gt_u32 {sT4}, {sT3}
             s_cselect_b32 {sT3}, {'0, -1' if o.get('parx') else '-1, 0'}"""))]
        S += [[i] for i in Seq()(f"""s_xor_b32 {sTBL}, {sT2}, {sT3}
             s_lshr_b32 {sT2}, {sTBL}, {sKC}
             s_lshl_b32 {sT3}, {sG}, 10
             s_xor_b32 {sP1}, {sT2}, {sT3}
             s_and_b32 {sP1}, {sP1}, 0x2000
             s_xor_b32 {sPQS}, {sPQS}, {sP1}
             s_lshl_b32 {sT4}, {sG}, 12
             s_xor_b32 {sP2}, {sT2}, {sT4}
             s_and_b32 {sP2}, {sP2}, 0x2000
             s_and_b32 {sT2}, {sKC}, 6
             s_lshr_b32 {sT2}, {sTBL}, {sT2}
             s_xor_b32 {sPE}, {sT2}, {sT3}
             s_and_b32 {sPE}, {sPE}, 0x2000
             s_lshr_b32 {sT3}, {sW}, 1
             s_lshr_b32 {sT2}, {sT2}, {sT3}
             s_xor_b32 {sT2}, {sT2}, {sT4}
             s_and_b32 {sT2}, {sT2}, 0x2000
             s_xor_b32 {sHS}, {sHS}, {sT2}
             v_mov_b32 v176, 0
             v_lshrrev_b32_e64 {P4K}, v1, {sTBL}
             v_and_b32 {P4K}, 0x2000, {P4K}
             v_lshl_add_u32 {P4K}, v1, 14, {P4K}
             v_or_b32 {P4K}, {P4K}, {LM8}""")]
        S += [[Inst(f"buffer_store_dwordx4 v[176:179], {L16}, {WS}, {sHS} offen offset:3072 sc1", tag="pub1")]]
        G = weave(G, S, 19, 31)
        S = Seq()
        for i in range(8):
            S(f"v_cndmask_b32 v{196+i}, v{AKV+i}, v{AKV+8+i}, {sB4LANES}")
        S(f"""ds_write_b128 {KVW}, v[196:199]
             ds_write_b128 {KVW}, v[200:203] offset:512""")
        S(f"ds_write_b32 {ZW}, v{ZA}", tag="kvp")
        G = weave(G, list(S), 9, 11)
        S = Seq()
        for k in range(4):
            S(f"ds_read2st64_b32 v[{112+2*k}:{113+2*k}], {KVR} offset0:{k} offset1:{k+8}")
        S(f"ds_read2_b32 v[120:121], {ZR} offset0:0 offset1:32")
        G = weave(G, list(S), 12, 14)
        S = Seq()
        for k in range(5):
            S(f"v_add_f32 v{112+2*k}, v{112+2*k}, v{113+2*k}")
        for k in range(4):
            S(f"buffer_atomic_add_f32 v{112+2*k}, {L4}, {WS}, {sKVA} offen offset:{k*256}", tag="pub1")
        S(f"buffer_atomic_add_f32 v120, {ZAT}, {WS}, {sZA} offen", tag="pub1")
        G = weave(G, list(S), 15, 20)
        for k in range(3, 31, 4):
            G[k] += self.sub(lambda: self.stamp(f"v{k}"))
        p.extend(flat(G))
        p.append(mf32(AQ, v(WP + 8, 4), v(XM, 4)))
        self.stamp("A_q")
        woq = woq[nw3:]
        t3 = o.get('wot3', 8)
        assert nw3 + t3 <= 12
        ph = phi(AQ, lambda i: "v40", 196, 180)
        h = len(ph) // 2
        p.extend(ph[:h])
        p(f"buffer_store_dwordx4 v[180:183], {L16}, {WS}, {sPQS} offen sc1", tag="pub1")
        p.extend(ph[h:])
        p(f"buffer_store_dwordx4 v[184:187], {L16}, {WS}, {sPQS} offen offset:1024 sc1", tag="pub1")
        self.stamp("A_pqst")
        p.extend(flat(woq[:t3]))
        woq = woq[t3:]
        p("s_nop 0")
        p.extend(self.miscB())
        p("WAITTAG pub1\ns_barrier")
        p(f"buffer_atomic_add v4, {P4K}, {WS}, {sSIG} offen sc1")
        self.stamp("A_sig")
        for s in range(4):
            p.extend(trpair(('a', 128 + 4 * s), RT13, s * 6144, 512))
        p.extend(trpair(('a', 144), RT2A, 4096, 512) + trpair(('a', 148), RT2B, 4096, 512))
        t4 = o.get('wot4', 4)
        p.extend(flat(woq[:t4]))
        woq = woq[t4:]
        for s in range(4):
            p.append(mf16(RCS, SEL, a_(128 + 4 * s, 4), "0" if s == 0 else None))
            p(f"buffer_store_dwordx4 {a_(128+4*s,4)}, {L16}, {WS}, {sRW} offen offset:{s*1024} sc1", tag="pubR")
        p(f"buffer_store_dwordx4 a[144:147], {L16}, {WS}, {sR2} offen sc1", tag="pubR")
        p(f"buffer_store_dwordx4 a[148:151], {L16}, {WS}, {sR2} offen offset:1024 sc1", tag="pubR")
        p(f"buffer_atomic_add_f32 v{RCS}, {CSAT}, {WS}, {sRC} offen", tag="pubR")
        self.stamp("A_rst")
        p(f"s_add_u32 {sSIG}, {sSIG}, 4096")
        t5 = o.get('wot5', 99)
        p.extend(flat(woq[:t5]))
        self.rsig = f"buffer_atomic_add v4, {P4K}, {WS}, {sSIG} offen sc1"
        if t5 < len(woq):
            p("WAITTAG pubR\ns_barrier\n" + self.rsig)
            self.rsig = ""
            p.extend(flat(woq[t5:]))

    def dmaT(self, t, slot):
        g = []
        for h in range(2):
            S = Seq()
            S(f"s_add_u32 m0, {sB}, {slot*32768+h*4096}\ns_add_u32 {sT0}, {sA}, {t*32768+h*4096}")
            for k in range(4):
                S(f"buffer_load_dwordx4 {L16}, {WS}, {sT0} offen offset:{k*1024} sc1 lds", tag=f"T{t}")
                g.append(list(S))
                S = Seq()
            ctx(g[-4:])
        return g

    def phaseB(self):
        p = self.p
        o = self.o
        AH = 192
        p(f"""s_mul_i32 {sA}, {sM}, {7*32768}
             s_lshl_b32 {sB}, {sW}, 13
             s_add_u32 {sA}, {sA}, {sB}
             s_add_u32 {sA}, {sA}, {hex(W13R)}""")
        p.extend(self.miscC())
        p(f"""s_add_u32 {sT1}, {sKVL}, 4096
             s_add_u32 {sT3}, {sPQL}, 4096
             s_lshr_b32 {sT2}, {sTBL}, {sKC}
             s_and_b32 {sT2}, {sT2}, 0x2000
             s_lshl_b32 {sT4}, {sKC}, 14
             s_add_u32 {sT4}, {sT4}, {sT2}
             s_add_u32 {sT4}, {sT4}, {hex(CNT)}
             s_add_u32 {sCc}, {sT4}, 4096
             v_lshlrev_b32 v41, 3, v1""")
        for k in range(8):
            p(f"v_lshlrev_b32 v{AH+2*k}, 16, v{24+k}\nv_and_b32 v{AH+2*k+1}, {sMSKHI}, v{24+k}")
        W = [trpair(('a', 4 * i), f"v{WOT+(i>>3)}", (i & 7) * 4096, 1024) for i in range(32)]
        PQR = 224
        LD = [Inst(f"buffer_load_dwordx2 v[32:33], v41, {WS}, {sZL} offen sc1")]
        for q in range(4):
            for i in (2 * q, 2 * q + 1):
                LD.append(Inst(f"buffer_load_dwordx4 {v(48+4*i,4)}, {L16}, {WS}, {sKVL if i < 4 else sT1} offen offset:{(i&3)*1024} sc1"))
            for i in (2 * q, 2 * q + 1):
                LD.append(Inst(f"buffer_load_dwordx4 {a_(PQR+4*i,4)}, {L16}, {WS}, {sPQL if i < 4 else sT3} offen offset:{(i&3)*1024} sc1"))
        ZB = Seq()(f"v_cvt_pk_bf16_f32 v32, v32, v33\nds_write_b32 {ZBW}, v32")
        for k in range(4):
            ZB(f"ds_read_b128 {v(96+4*k,4)}, {ZBR} offset:{k*64}")
        if o.get('wofirst', 1):
            p("WAITTAG WO pubR\ns_barrier\n" + self.rsig)
            self.stamp("B_wo")
            p.extend(flat(W))
            self.stamp("B_prepoll")
            self.spin("v5", P256, sT4, "0xffff", "16", sleep=o.get('sleep1', 0))
            p("WAITALL lgkm\ns_barrier")
            self.stamp("B_sync1")
            p.extend(LD[:9] + ZB + LD[9:])
        else:
            self.stamp("B_prepoll")
            self.spin("v5", P256, sT4, "0xffff", "16", sleep=o.get('sleep1', 0))
            p("WAITTAG WO pubR\ns_barrier\n" + self.rsig)
            self.stamp("B_sync1")
            p.extend(LD[:9])
            p.extend(flat(weave(W, LD[9:], 16, 32)))
            p.extend(ZB)
            p("WAITALL lgkm\ns_barrier")
            self.stamp("B_wo")

        def prep(q):
            S = Seq()
            for k in range(4):
                S(f"v_cvt_pk_bf16_f32 v{80+4*q+k}, v{48+8*q+2*k}, v{48+8*q+2*k+1}")
            for k in range(4):
                S(f"v_cndmask_b32 v{112+8*q+k}, v{80+4*q+k}, v{96+4*q+k}, {sB4LANES}")
            for k in range(4):
                S(f"v_cndmask_b32 v{116+8*q+k}, v{96+4*q+k}, v{80+4*q+k}, {sB4LANES}")
            return S
        NA = [144, 160, 176]
        steps = [(pr, t) for pr in range(4) for t in range(3)]
        steps += [(pr, t) for t in (3, 4, 5, 6) for pr in range(4)]
        w2o = [(7 * pr + t) * 2048 for pr, t in steps]
        hho = [pr * 16384 + t * 1024 for pr, t in steps]
        w2l = []
        for i in range(16):
            S = Seq()
            S(f"s_add_u32 {sKC}, {cW2}, {w2o[i]}")
            S(f"buffer_load_dwordx4 {a_(128+8*i,4)}, {W2A}, {WS}, {sKC} offen sc1")
            w2l.append(list(S))
            w2l.append([Inst(f"buffer_load_dwordx4 {a_(132+8*i,4)}, {W2B}, {WS}, {sKC} offen sc1")])
            ctx(w2l[-2:])
        self.steps, self.w2o, self.hho = steps, w2o, hho
        TQ = flat([self.dmaT(t, t) for t in range(4)]) + w2l
        n1, n2, n3 = o.get('tq1', 6), o.get('tq2', 14), o.get('tq3', 10)

        def num(i):
            return mf32(NA[i % 3], v(112 + 4 * i, 4), a_(PQR + 4 * i, 4), "0")

        def fin(i):
            n = NA[i % 3] + 8 * (i & 1)
            d = NA[i % 3] + 8 * (1 - (i & 1))
            S = Seq()
            S(f"v_add_f32 v{d}, {sEPS6}, v{d}\nv_rcp_f32 v{d}, v{d}")
            for k in range(8):
                S(f"v_mul_f32 v{n+k}, v{n+k}, v{d}")
            for k in range(4):
                S(f"v_cvt_pk_bf16_f32 v{48+4*i+k}, v{n+2*k}, v{n+2*k+1}")
            return S
        p.extend(prep(0))
        p.append(num(0))
        p.append(num(1))
        VM = TQ[:n1]
        rl, rc = o.get('rl', 1), o.get('rc', 5)
        for i in range(8):
            if i + 2 < 8:
                if i % 2 == 0:
                    p.extend(prep(i // 2 + 1))
                p.append(num(i + 2))
            if i == rl:
                p(f"buffer_load_dword v5, {P256}, {WS}, {sCc} offen sc1")
            if i == rc:
                self.spin("v5", P256, sCc, "0xffff", "16", mode='check', sleep=4)
            if i >= rc:
                for _ in range(-(-n1 // (8 - rc))):
                    if VM:
                        p.extend(VM.pop(0))
            p.extend(fin(i))
            if i >= 1:
                p.append(mf32(AH, a_(4 * (i - 1), 4), v(48 + 4 * (i - 1), 4)))
            p(f"ds_write_b128 v{OAD}, {v(48+4*i,4)} offset:{i*1024}")
        assert not VM
        self.stamp("B_st1")
        p("WAITALL lgkm\ns_barrier")

        def oread(i):
            return [Inst(f"ds_read_b128 {v(80+4*(i&7),4)}, v{OAD+(i>>3)} offset:{(i&7)*1024}")]
        for i in range(8, 13):
            p.extend(oread(i))
        p.append(mf32(AH, a_(28, 4), v(48 + 28, 4)))
        G = []
        for i in range(8, 32):
            g = [mf32(AH, a_(4 * i, 4), v(80 + 4 * (i & 7), 4))]
            if i + 5 < 32:
                g += oread(i + 5)
            G.append(g)
        G = weave(G, TQ[n1:n1 + n2], 0, 24)
        p.extend(flat(G))
        for k in range(8):
            p(f"v_cvt_pk_bf16_f32 v{48+k}, v{AH+2*k}, v{AH+2*k+1}")
            if k == 3:
                p(f"buffer_store_dwordx4 v[48:51], {L16}, {WS}, {sHST} offen sc1", tag="pub2")
        p(f"buffer_store_dwordx4 v[52:55], {L16}, {WS}, {sHST} offen offset:1024 sc1", tag="pub2")
        p(f"v_add_f32 v56, v{AH}, v{AH+1}\nv_mul_f32 v57, v{AH}, v{AH}\nv_add_f32 v58, v{AH+2}, v{AH+3}\nv_mul_f32 v59, v{AH+1}, v{AH+1}")
        for k in range(2, 16):
            if k >= 4:
                p(f"v_add_f32 v{56+2*(k&1)}, v{56+2*(k&1)}, v{AH+k}")
            p(f"v_fmac_f32 v{57+2*(k&1)}, v{AH+k}, v{AH+k}")
        p("""v_add_f32 v56, v56, v58
             v_add_f32 v57, v57, v59
             v_permlane32_swap_b32 v56, v57
             v_add_f32 v56, v56, v57""")
        p(f"buffer_atomic_add_f32 v56, {L4}, {WS}, {sSTA} offen", tag="pub2")
        self.stamp("B_hst")
        p.extend(flat(TQ[n1 + n2:n1 + n2 + n3]))
        assert n1 + n2 >= 16
        p(f"WAITTAG pub2\nbuffer_store_dword v4, {FA1}, {WS}, {sD} offen offset:512 sc1\ns_barrier")
        self.stamp("B_sig")
        self.tq_rest = TQ[n1 + n2 + n3:]

    def miscC(self):
        M = Seq()
        M(f"""s_lshl_b32 {sT1}, {sG}, 2
             s_add_u32 {sT2}, {sT1}, {sW}
             s_lshl_b32 {cHB}, {sT2}, 16
             s_add_u32 {cHB}, {cHB}, {hex(HB)}
             s_xor_b32 {cHB}, {cHB}, {sPE}
             s_lshl_b32 {cST}, {sT2}, 8
             s_add_u32 {cST}, {cST}, {hex(ST)}
             s_sub_u32 {cHS}, {cHS2}, 4096
             s_lshl_b32 {sT3}, {sM}, 14
             s_sub_u32 {cPL}, {cHS2}, {sT3}
             s_add_u32 {cPL}, {cPL}, {3072+512}
             v_lshlrev_b32 {HPA}, 14, v1
             v_and_b32 {PA2}, 12, {L4}
             v_or_b32 {PA2}, {PA2}, {LM8}
             v_bfe_u32 v44, v1, 2, 1
             v_lshl_add_u32 {PA2}, v44, 18, {PA2}
             s_mul_i32 {cCS}, {sM}, {7*128}
             s_add_u32 {cCS}, {cCS}, {hex(CS)}
             s_and_b32 {sCB}, {sM}, 7
             s_mul_i32 {cW2}, {sCB}, {112*2048}
             s_mul_i32 {sT3}, {sW}, {28*2048}
             s_add_u32 {cW2}, {cW2}, {sT3}
             s_add_u32 {cW2}, {cW2}, {hex(W2R)}
             s_and_b32 {sT3}, {sW}, 1
             s_lshl_b32 {sT2}, {sT3}, 10
             v_add_u32 {W2A}, {sT2}, {L16}
             v_xor_b32 {W2B}, 1024, {W2A}
             v_add_u32 {LB1}, 0x10000, {L16}
             v_add_u32 {LB2}, 0x20000, {L16}
             s_add_u32 {sT2}, {sB}, 0x10000
             v_add_u32 {WLA}, {sT2}, {W2A}
             v_add_u32 {WLB}, {sT2}, {W2B}
             v_add_u32 {WLC}, 0x10000, {WLA}
             v_add_u32 {WLD}, 0x10000, {WLB}
             v_and_b32 {CSL}, 0x7c, {L4}
             s_lshr_b32 {sT2}, {sM}, 3
             s_lshl_b32 {sT2}, {sT2}, 1
             s_add_u32 {sT1}, {sT1}, {sT2}
             s_lshl_b32 {cHL}, {sT1}, 18
             s_lshl_b32 {sT2}, {sW}, 16
             s_add_u32 {cHL}, {cHL}, {sT2}
             s_add_u32 {cHL}, {cHL}, {hex(HH)}
             s_xor_b32 {cHL}, {cHL}, {sP2}
             s_lshr_b32 {sT2}, {sW}, 1
             s_add_u32 {sT1}, {sT1}, {sT2}
             s_lshl_b32 {sT2}, {sT2}, 18
             v_add_u32 {HHA}, {sT2}, {L16}
             v_xor_b32 {HHB}, 0x40000, {HHA}
             s_lshl_b32 {sT1}, {sT1}, 15
             s_lshl_b32 {sT2}, {sCB}, 1
             s_add_u32 {sT2}, {sT2}, {sT3}
             s_lshl_b32 {cOUT}, {sT2}, 6
             s_add_u32 {cOUT}, {cOUT}, {sT1}
             s_lshr_b32 {cHR}, {sT2}, 2
             s_lshl_b32 {cHR}, {cHR}, 13
             s_add_u32 {cHR}, {cHR}, {sT1}
             s_and_b32 {sT2}, {sT2}, 3
             s_lshl_b32 {sT2}, {sT2}, 10
             s_add_u32 {cHR}, {cHR}, {sT2}
             s_lshl_b32 {cHR}, {cHR}, 1
             s_add_u32 {cHR}, {cHR}, {hex(HB)}
             s_xor_b32 {cHR}, {cHR}, {sPE}
             s_add_u32 {cPP}, {cHL}, 7168
             s_add_u32 {cPQ}, {cPP}, 0x40000
             s_and_b32 {sT3}, {sM}, 3
             s_mul_i32 {sT3}, {sT3}, {16384-4}
             s_sub_u32 {cPS}, {cHS2}, {sT3}""")
        return list(M)

    def phaseCD(self):
        p = self.p
        o = self.o
        sub = self.sub
        bar = lambda s_: list(Seq()(s_))
        steps, w2o, hho = self.steps, self.w2o, self.hho

        def dmaW2(part):
            g = []
            for k in range(4):
                S = Seq()
                S(f"s_add_u32 m0, {sB}, {(2+part)*32768+k*2048}\ns_add_u32 {sT0}, {cW2}, {w2o[16+4*part+k]}")
                S(f"buffer_load_dwordx4 {L16}, {WS}, {sT0} offen sc1 lds", tag=f"W2L{part}")
                g.append(list(S))
                g.append([Inst(f"buffer_load_dwordx4 {L16}, {WS}, {sT0} offen offset:1024 sc1 lds", tag=f"W2L{part}")])
                ctx(g[-2:])
            return g

        def pub(tag, st):
            if o.get('nopub'):
                return []
            return bar(f"WAITTAG {tag}\nbuffer_store_dword v4, {FA1}, {WS}, {cPS} offen offset:{3072+128*st} sc1")

        vp = str(o.get('vp', 'x0123'))

        def pollld(st):
            if o.get('nopoll'):
                return []
            if str(st) in vp:
                return bar(f"buffer_load_dword v5, {PA2}, {WS}, {cPP} offen sc1")
            return list(Seq()(f"""s_buffer_load_dwordx4 s[8:11], {WS}, {cPP} glc
                 s_buffer_load_dwordx4 s[12:15], {WS}, {cPQ} glc""", cond=True))

        def pollchk(st):
            if o.get('nopoll'):
                return []
            if str(st) in vp:
                return sub(lambda: self.spin("v5", PA2, cPP, "0xff", "1", mode='check', sleep=o.get('sleep2', 2))) + \
                    bar(f"s_add_u32 {cPP}, {cPP}, 128\ns_add_u32 {cPQ}, {cPQ}, 128")
            red = """s_and_b64 s[8:9], s[8:9], s[10:11]
                 s_and_b64 s[12:13], s[12:13], s[14:15]
                 s_and_b64 s[8:9], s[8:9], s[12:13]
                 s_and_b32 s8, s8, s9"""

            def f():
                Lp = self.lab("sp")
                if o.get('stamps') == 3:
                    self.p(f"s_mov_b32 {sT5}, 0")
                self.p("WAITALL lgkm\n" + red)
                self.ool("s_cbranch_scc0", f"""s_mov_b32 {sT5}, 0
                     {Lp}:
                     s_sleep {o.get('sleep2', 2)}
                     s_buffer_load_dwordx4 s[8:11], {WS}, {cPP} glc
                     s_buffer_load_dwordx4 s[12:15], {WS}, {cPQ} glc
                     s_add_u32 {sT5}, {sT5}, 1
                     s_waitcnt lgkmcnt(0)
                     {red}
                     s_lshr_b32 s9, {sT5}, 15
                     s_or_b32 s8, s8, s9
                     s_cbranch_scc0 {Lp}""")
                self.p(f"s_add_u32 {cPP}, {cPP}, 128\ns_add_u32 {cPQ}, {cPQ}, 128")
                if o.get('stamps') == 3:
                    self.p(f"v_writelane_b32 v{STV}, {sT5}, {self.nstamp}")
                    self.nstamp += 1
                    self.stamp_names.append(f"P{st}")
            return sub(f)

        kt = max(0, len(self.tq_rest) - 32)
        FQ = self.tq_rest[:kt] + self.dmaT(4, 4) + self.tq_rest[kt:]
        npre = o.get('tq4', 12)
        p.extend(flat(FQ[:npre]))
        FQ = FQ[npre:]
        self.stamp("C_prepoll")
        self.spin("v5", HPA, cPL, "0xffff", "1", mode='all', sleep=o.get('sleep3', 0))
        self.stamp("C_sync2")

        def hload(s):
            S = Seq()
            if s % 4 == 0 and s:
                S(f"s_add_u32 {cHB}, {cHB}, {4096 if s % 8 else 12288}")
            S(f"buffer_load_dwordx4 {a_(4*s,4)}, {L16}, {WS}, {cHB} offen offset:{(s&3)*1024} sc1")
            return list(S)
        HL = o.get('hla', 9)
        for s in range(HL):
            p.extend(hload(s))
        ACC = [48, 64, 80, 96, 112]
        acc_of = [0, 1, 2, 3, 0, 1, 2]
        slot_of = [0, 1, 2, 3, 4, 0, 1]
        WR, NR = 128, 8
        CSR, CSF, MEANF, C1, C2 = 160, 168, 176, 180, 181
        T = 184
        LK = o.get('lk', 5)
        F0 = Seq()
        F0(f"buffer_load_dword v{T}, {L4}, {WS}, {cST} offen sc1")
        for t in range(7):
            F0(f"buffer_load_dword v{CSR+t}, {CSL}, {WS}, {cCS} offen offset:{t*128} sc1")
        F1 = Seq()
        for k in (1, 2, 3, 5, 6, 7):
            F1(f"v_mov_b32 v{CSF+k}, 0")
        for k in (1, 2, 3):
            F1(f"v_mov_b32 v{MEANF+k}, 0")
        F1(f"""v_mov_b32 v{T+1}, v{T}
             v_permlane32_swap_b32 v{T}, v{T+1}
             v_mul_f32 v{T}, 0x3b000000, v{T}
             v_mul_f32 v{T+1}, 0x3b000000, v{T+1}
             v_cvt_pk_bf16_f32 v{MEANF}, -v{T}, -v{T}
             v_fma_f32 v{T+1}, -v{T}, v{T}, v{T+1}
             v_cndmask_b32 v{MEANF}, v{MEANF}, 0, {sHILANES}
             v_max_f32 v{T+1}, 0, v{T+1}
             v_add_f32 v{C2}, 0x3727c5ac, v{T+1}
             v_rsq_f32 v{C1}, v{C2}""")
        for t in range(7):
            F1.extend(split2(CSR + t, CSR + t, T + 2))
        F1(f"v_mul_f32 v{C1}, 0xbfb8aa3b, v{C1}")
        F1(f"v_mov_b32 v{CSF}, v{CSR}\nv_mov_b32 v{CSF+4}, v{CSR+1}")

        def tread(t, s, n):
            sl = slot_of[t]
            base = (L16, L16, LB1, LB1, LB2)[sl]
            return [Inst(f"ds_read_b128 {v(WR+4*(n%NR),4)}, {base} offset:{(sl&1)*32768*(sl<4)+s*1024}")]

        def corr(t):
            return mf32(ACC[acc_of[t]], v(CSF + 4 * (t & 1), 4), v(MEANF, 4))
        G = []
        for n in range(64):
            s, t = divmod(n, 2)
            g = [mf32(ACC[t], v(WR + 4 * (n % NR), 4), a_(4 * s, 4), "0" if s == 0 else None)]
            if n + LK < 64:
                g += tread((n + LK) % 2, (n + LK) // 2, n + LK)
            else:
                if n + LK == 64:
                    g += bar("WAITTAG T2\ns_barrier")
                g += tread(2, n + LK - 64, n + LK)
            if t == 0 and s + HL < 32:
                g += hload(s + HL)
            G.append(g)
        G.append([corr(0)])
        G.append([corr(1)])
        for n in range(LK):
            p.extend(tread(n % 2, n // 2, n))
        G = weave(G, list(F0), 8, 26)
        G = weave(G, list(F1), 44, 62)
        e0 = 2 * (32 - HL)
        ng = min(len(FQ), o.get('g1q', 8))
        G = weave(G, FQ[:ng], e0, 66)
        FQ = FQ[ng:]
        p.extend(flat(G))
        self.stamp("C_g1")

        def epi(t, tmp):
            A = ACC[acc_of[t]]
            S = Seq()
            for j in range(8):
                S(f"v_mul_f32 v{tmp+j}, v{A+j}, v{C1}")
            for j in range(8):
                S(f"v_exp_f32 v{tmp+j}, v{tmp+j}")
                S(f"v_mul_f32 v{A+j}, v{A+j}, v{A+8+j}")
            for j in range(8):
                S(f"v_fma_f32 v{tmp+j}, v{tmp+j}, v{C2}, v{C2}")
                if j >= 2:
                    S(f"v_rcp_f32 v{tmp+j-2}, v{tmp+j-2}")
            for j in range(8):
                S(f"v_mul_f32 v{A+j}, v{A+j}, v{tmp+j}")
                if j < 2:
                    S(f"v_rcp_f32 v{tmp+6+j}, v{tmp+6+j}")
            for j in range(4):
                S(f"v_cvt_pk_bf16_f32 v{tmp+8+j}, v{A+2*j}, v{A+2*j+1}")
            S(f"buffer_store_dwordx4 {v(tmp+8,4)}, {L16}, {WS}, {cHS if t < 4 else cHS2} offen offset:{(t&3)*1024} sc1", tag=f"hh{t}")
            return list(S)

        def tilepass(t, n0):
            G = []
            for s in range(32):
                n = n0 + s
                g = [mf32(ACC[acc_of[t]], v(WR + 4 * (n % NR), 4), a_(4 * s, 4), "0" if s == 0 else None)]
                if s + LK < 32:
                    g += tread(t, s + LK, n + LK)
                elif t < 6:
                    if s + LK == 32:
                        g += bar(f"WAITTAG T{t+1}\ns_barrier")
                    g += tread(t + 1, s + LK - 32, n + LK)
                if s == 16:
                    g += bar(f"v_mov_b32 v{CSF+4*(t&1)}, v{CSR+t}")
                G.append(g)
            G.append([corr(t)])
            return G

        def hhload(i):
            S = Seq()
            S(f"s_add_u32 {sCc}, {cHL}, {hho[i]}")
            S(f"buffer_load_dwordx4 {a_(8*(i&15),4)}, {HHA}, {WS}, {sCc} offen sc1")
            return ctx([list(S), [Inst(f"buffer_load_dwordx4 {a_(8*(i&15)+4,4)}, {HHB}, {WS}, {sCc} offen sc1")]])

        EP = [epi(t, T + 12 * (t & 1)) for t in range(7)]
        P = {t: tilepass(t, 32 * t) for t in range(2, 7)}
        q = o.get('cq', 15)
        LA = o.get('dla', 7)
        G = weave(P[2], FQ[:q], 0, 32)
        FQ = self.dmaT(5, 0) + FQ[q:]
        FQ = FQ[:q] + self.dmaT(6, 1) + FQ[q:] + dmaW2(0) + dmaW2(1) + dmaW2(2)
        G = weave(G, EP[0] + EP[1][:26], 2, 33)
        p.extend(self.xf(flat(G)))
        self.stamp("C_t2")
        q3 = min(q, len(FQ) - 24)
        G = weave(P[3], FQ[:q3], 0, 32)
        FQ = FQ[q3:]
        G = weave(G, EP[1][26:] + EP[2], 0, 33)
        p.extend(self.xf(flat(G)))
        self.stamp("C_t3")
        q4 = min(q, len(FQ) - 16)
        G = weave(P[4], FQ[:q4], 0, 32)
        FQ = FQ[q4:]
        G = weave(G, EP[3], 2, 18)
        G[o.get('p1at', 26)] += pub("hh2", 0)
        p.extend(self.xf(flat(G)))
        self.stamp("C_t4")
        q5 = min(q, len(FQ) - 8)
        G = weave(P[5], FQ[:q5], 0, 32)
        FQ = FQ[q5:]
        G[o.get('l1', 14)] += pollld(0)
        G = weave(G, EP[4], 2, 18)
        p.extend(self.xf(flat(G)))
        self.stamp("C_t5")
        G = P[6]
        G[1] += pollchk(0)
        hq = [x for i in range(LA) for x in hhload(i)]
        G = weave(G, hq, 2, 33)
        G = weave(G, EP[5], 2, 18)
        G[o.get('p2at', 12)] += pub("hh4", 1)
        p.extend(self.xf(flat(G)))
        self.stamp("C_t6")

        DA = [48, 64, 96, 112]

        def w2r(i, a):
            return (128, 168, 128)[(i - 16) // 4] + 8 * (i % 4) + 4 * a

        def w2read(part):
            r = [bar(f"WAITTAG W2L{part}")]
            for k in range(4):
                for a in range(2):
                    ad = ((WLA, WLB), (WLA, WLB), (WLC, WLD))[part][a]
                    r.append([Inst(f"ds_read_b128 {v(w2r(16+4*part+k, a), 4)}, {ad} offset:{(part&1)*32768+k*2048}")])
            return r

        def w2f(i, a):
            return a_(128 + 8 * i + 4 * a, 4) if i < 16 else v(w2r(i, a), 4)
        G = []
        for i in range(28):
            for k, (a, b) in enumerate([(1, 0), (1, 1), (0, 1), (0, 0)]):
                G.append([mf32(DA[a + 2 * b], w2f(i, a), a_(8 * (i & 15) + 4 * b, 4), "0" if i == 0 else None)])
        c2, c3, c4 = o.get('c2', 22), o.get('c3', 54), o.get('c4', 78)
        l2, l3, l4 = o.get('l2', 6), o.get('l3', 37), o.get('l4', 64)
        G[l2] += pollld(1)
        G = weave(G, EP[6], 1, 11)
        G[o.get('p3at', 12)] += pub("hh5", 2)
        G[l3] += pollld(2)
        G[o.get('p4at', 38)] += pub("hh6", 3)
        G[40] += bar("s_barrier")
        hs = lambda a, b: [x for i in range(a, b) for x in hhload(i)]
        G = weave(G, hs(LA, 12), 0, c2)
        G[c2] += pollchk(1)
        nf = len(FQ) - 8
        G = weave(G, hs(12, 16) + FQ[:nf] + hs(16, 20), c2 + 1, c3)
        G[c3] += pollchk(2)
        G = weave(G, hs(20, 24), c3 + 1, l4)
        G[l4] += bar("WAITALL lgkm") + pollld(3)
        G = weave(G, FQ[nf:] + [bar(f"buffer_load_dwordx4 v[160:163], {L16}, {WS}, {cHR} offen sc1"),
                                bar(f"buffer_load_dwordx4 v[164:167], {L16}, {WS}, {cHR} offen offset:1024 sc1")], l4 + 1, c4)
        G[c4] += pollchk(3)
        G = weave(G, w2read(0), c2 + 1, c2 + 10)
        G = weave(G, w2read(1), c3 + 1, min(c3 + 8, l4))
        G = weave(G, w2read(2), max(c4 + 1, 82), 92)
        G = weave(G, hs(24, 28), c4 + 1, c4 + 9)
        S = Seq()
        for k in range(4):
            S(f"""s_xor_b32 {sT0}, {sW}, {k}
                 s_mul_i32 {sT0}, {sT0}, 12288
                 v_add_u32 v{36+k}, {sT0}, {L16}""")
        for i in range(8):
            S(f"""v_lshlrev_b32 v{80+2*i}, 16, v{160+i}
                 v_and_b32 v{81+2*i}, {sMSKHI}, v{160+i}""")
        G = weave(G, list(S), 96, 110)
        for k in sorted(set(list(range(8, 112, 8)) + [c2 - 1, c2, c3 - 1, c3, c4 - 1, c4])):
            G[k] += sub(lambda: self.stamp(f"d{k}"))
        p.extend(self.xf(flat(G)))
        self.stamp("D_loop")
        for k in (1, 3, 2):
            for q_ in range(4):
                p(f"ds_write_b128 v{36+k}, {v(DA[k]+4*q_,4)} offset:{(k-1)*4096+q_*1024}")
        for i in range(16):
            p(f"v_add_f32 v{48+i}, v{48+i}, v{80+i}")
        p("WAITALL lgkm\ns_barrier")
        for q_ in range(4):
            for k in range(3):
                p(f"ds_read_b128 {v(160+16*k+4*q_,4)}, v36 offset:{k*4096+q_*1024}")
        for q_ in range(4):
            for j in range(4):
                r = 4 * q_ + j
                p(f"v_add_f32 v{48+r}, v{48+r}, v{160+r}")
                p(f"v_add_f32 v{176+r}, v{176+r}, v{192+r}")
            for j in range(4):
                r = 4 * q_ + j
                p(f"v_add_f32 v{48+r}, v{48+r}, v{176+r}")
            for j in range(2):
                p(f"v_cvt_pk_bf16_f32 v{112+2*q_+j}, v{48+4*q_+2*j}, v{48+4*q_+2*j+1}")
            if q_ & 1:
                p(f"buffer_store_dwordx4 {v(112+4*(q_>>1),4)}, {ROWA}, {OUT}, {cOUT} offen offset:{32*(q_>>1)}" + ["", " sc1", " nt", " sc0 sc1"][o.get('outst', 0)])
        self.stamp("D_end")

    def finish(self):
        p = self.p
        if self.o.get('stamps'):
            p("WAITALL vm")
            self.stamp("D_drained")
            p(f"""s_lshl_b32 {sT0}, s2, 2
                 s_add_u32 {sT0}, {sT0}, {sW}
                 s_lshl_b32 {sT0}, {sT0}, 7
                 s_add_u32 {sT0}, {sT0}, {hex(STAMP)}
                 s_mov_b32 exec_hi, 0
                 buffer_store_dword v{STV}, {L4}, {WS}, {sT0} offen""")
        if self.o.get('padto'):
            p("WAITALL vm")
            p("L_pad:\ns_memrealtime s[72:73]\ns_waitcnt lgkmcnt(0)\ns_sub_u32 s72, s72, s100")
            p(f"s_cmp_lt_u32 s72, {self.o['padto']}\ns_cbranch_scc1 L_pad")
        p("L_end:\ns_endpgm")

    def build(self):
        if self.o.get('stamps') or self.o.get('padto'):
            self.p("s_memtime s[100:101]" if self.o.get('stamps') == 2 else "s_memrealtime s[100:101]")
        self.setup()
        if self.o.get('stamps'):
            self.p(f"v_mov_b32 v{STV}, s100")
            self.nstamp = 1
            self.stamp_names.append("start")
        self.p.extend(self.xf(self.sub(self.phaseA), 'xa'))
        self.p.extend(self.xf(self.sub(self.phaseB), 'xb'))
        self.phaseCD()
        self.finish()
        return finalize(self.p, self.o.get('fill', 1))


def emit(opt):
    g = Gen(opt)
    prog = g.build()
    hdr = open(os.path.join(os.path.dirname(os.path.abspath(__file__)), "header.txt")).read()
    body = "\n".join(("" if i.kind == 'label' else "    ") + i.text for i in prog)
    txt = hdr + f"""; @launch grid=(256,1,1) block=(256,1,1) lds=163840
.amdgcn_target "amdgcn-amd-amdhsa--gfx950"
.set CODE_PF_MAX, {opt.get('code_bytes', 0)}
.text
.globl {NAME}_kernel
.p2align 8
.type {NAME}_kernel,@function
{NAME}_kernel:
{body}
.section .rodata,"a"
.p2align 6
.amdhsa_kernel {NAME}_kernel
  .amdhsa_next_free_vgpr 512
  .amdhsa_next_free_sgpr 102
  .amdhsa_accum_offset 256
  .amdhsa_group_segment_fixed_size 0
  .amdhsa_kernarg_size 80
  .amdhsa_user_sgpr_count 2
  .amdhsa_user_sgpr_kernarg_segment_ptr 1
  .amdhsa_system_sgpr_workgroup_id_x 1
.end_amdhsa_kernel
"""
    return txt, g.stamp_names


def code_size(txt):
    import subprocess, tempfile
    with tempfile.TemporaryDirectory() as d:
        open(d + "/k.s", "w").write(txt)
        r = subprocess.run(["clang", "-x", "assembler", "-target", "amdgcn-amd-amdhsa",
                            "-mcpu=gfx950", "-c", d + "/k.s", "-o", d + "/k.o"], capture_output=True, text=True)
        if r.returncode:
            print("\n".join(r.stderr.split("\n")[:30]))
            raise SystemExit(1)
        r = subprocess.run(["llvm-objdump", "-h", d + "/k.o"], capture_output=True, text=True)
        for line in r.stdout.split("\n"):
            f = line.split()
            if len(f) > 2 and f[1] == ".text":
                return int(f[2], 16)


def main():
    opt = {}
    out = None
    for a in sys.argv[1:]:
        if '=' in a:
            k, val = a.split('=')
            try:
                opt[k] = int(val, 0)
            except ValueError:
                opt[k] = val
        else:
            out = a
    opt['code_bytes'] = 4096
    txt, names = emit(opt)
    sz = code_size(txt)
    opt['code_bytes'] = (sz - 1024) & ~3
    txt, names = emit(opt)
    open(out, "w").write(txt)
    if names:
        open(out + ".names", "w").write(" ".join(names))
    print(out, "code bytes", sz, "lines", txt.count("\n"), "stamps", len(names))


if __name__ == "__main__":
    main()
```

```python
import sys, os
sys.path.insert(0, os.path.dirname(os.path.abspath(__file__)))
from dsl import *

NAME = "sequential_preLN__linear_attn_block__glu_gated_swiglu__prompt"

CNT = 0x20000
KVM = 0x10000
ST = 0x18000
CS = 0x1C000
ZP = 0x1F800
STAMP = 0xC0000
PQ = 0x400000
HB = 0x800000
HH = 0x1000000
W13R = 0x2000000
W2R = 0x2400000
PROBE = 0x100000
WS_SIZE = 0x2600000
OOB = 0x7f000000

X, WQKV, WO, W1, W3, W2, OUT, WS, DBG = [f"s[{a}:{a+3}]" for a in range(4, 40, 4)]
(sW, sG, sM, sC0, sT0, sT1, sT2, sT3, sXB, sWB, sXL, sWL, sTB, sCB, sRQ, sLOG2E,
 sU, sKC, sT4, sT5, sMSKHI, sEPS6) = [f"s{i}" for i in range(40, 62)]
sHILANES = "s[62:63]"
sB4LANES = "s[64:65]"
sA, sB, sCc, sD = "s66", "s67", "s68", "s69"
sKVA, sZA, sPQS, sRW, sR2, sRC, sKVL, sZL, sPQL, sSIG, sHST, sSTA = [f"s{i}" for i in range(84, 96)]
sMA, sTA, sHS = "s3", "s74", "s83"
sP1, sPE, sP2, sTBL = "s96", "s97", "s98", "s99"
STV = 0

VB, KB, XCH, RST, KVS, ZS = 0x10000, 0x18000, 0x20000, 0x22000, 0, 0x21000

L16, L4 = "v2", "v3"
TRK, TRP = 152, 156
XCW, XCR, KVW, ZW, STW, KVR, ZR, ZAT, STR = [f"v{i}" for i in range(212, 221)]
WOD, WOT, OAD = 221, 225, 229
ROWA, ZBW, ZBR, P256 = "v233", "v234", "v235", "v236"
RL1, RL3, RL2, RT13, RT2A, RT2B, CSAT, P4K, FA1, LM8, PA2 = [f"v{i}" for i in range(237, 248)]
RCS = 248


def v(a, n=1):
    return f"v{a}" if n == 1 else f"v[{a}:{a+n-1}]"


def a_(a, n=1):
    return f"a{a}" if n == 1 else f"a[{a}:{a+n-1}]"


def mf32(d, A, B, c=None):
    return Inst(f"v_mfma_f32_32x32x16_bf16 {v(d,16)}, {A}, {B}, {v(d,16) if c is None else c}")


def mf16(d, A, B, c=None):
    return Inst(f"v_mfma_f32_16x16x32_bf16 {v(d,4)}, {A}, {B}, {v(d,4) if c is None else c}")


def mf4(d, A, B, c=None):
    return Inst(f"v_mfma_f32_4x4x4_16b_bf16 {v(d,4)}, {A}, {B}, {v(d,4) if c is None else c}")


def trpair(dst, addr, off, step):
    k, b = dst
    return [Inst(f"ds_read_b64_tr_b16 {k}[{b}:{b+1}], {addr} offset:{off}"),
            Inst(f"ds_read_b64_tr_b16 {k}[{b+2}:{b+3}], {addr} offset:{off+step}")]


def split2(dst, src, t):
    return Seq()(f"""v_cvt_pk_bf16_f32 v{t}, v{src}, v{src}
         v_lshlrev_b32 v{t}, 16, v{t}
         v_sub_f32 v{t}, v{src}, v{t}
         v_cvt_pk_bf16_f32 v{dst}, v{src}, v{t}""")


cHB, cST, cHS, cHR, cCS, cW2, cHL, cOUT, cHS2 = [f"s{i}" for i in range(75, 84)]
cPP, cPQ, cPS, cPL, bTA, bTL, bK2, bQ2, bGP, bRP = [f"s{i}" for i in (4, 5, 6, 7, 16, 17, 18, 19, 20, 21)]
W2A, W2B, LB1, LB2, WLA, WLB, WLC, WLD = [f"v{i}" for i in range(6, 14)]
CSL, HHA, HHB, HPA = "v14", "v15", "v42", "v43"


class Gen:
    def __init__(self, opt):
        self.o = opt
        self.p = Seq()
        self.nl = 0
        self.nstamp = 0
        self.stamp_names = []

    def lab(self, s):
        self.nl += 1
        return f"L_{s}_{self.nl}"

    def stamp(self, name):
        if self.o.get('padat') == name:
            self.p("WAITALL lgkm\ns_memrealtime s[100:101]\nWAITALL lgkm")
        if self.o.get('stamps', 3) == 3:
            return
        fine = str(self.o.get('fine', ''))
        if name[0].islower() and name[0] not in fine:
            return
        if fine and name[0].isupper() and name[0].lower() not in fine and name not in ('C_t6', 'B_sync1', 'C_sync2', 'D_drained', 'A_loop', 'A_v', 'A_q'):
            return
        p = self.p
        if self.o.get('nb'):
            if self.nstamp > 1:
                p(f"v_writelane_b32 v{STV}, s72, {self.nstamp-1}", cond=True)
            p("s_memrealtime s[72:73]" if self.o['stamps'] == 1 else "s_memtime s[72:73]", cond=True)
            if name == 'D_drained':
                p(f"s_waitcnt lgkmcnt(0)\nv_writelane_b32 v{STV}, s72, {self.nstamp}", cond=True)
            self.nstamp += 1
            self.stamp_names.append(name)
            return
        p("WAITALL lgkm")
        p("s_memrealtime s[72:73]" if self.o['stamps'] == 1 else "s_memtime s[72:73]")
        p("WAITALL lgkm")
        p(f"v_writelane_b32 v{STV}, s72, {self.nstamp}")
        self.nstamp += 1
        self.stamp_names.append(name)

    def sub(self, fn):
        save = self.p
        self.p = Seq()
        fn()
        r = list(self.p)
        self.p = save
        return r

    def xf(self, L, key='x'):
        x = self.o.get(key, '')
        out = []
        for i in L:
            if 'v' in x and i.kind in ('vload', 'dma') and not i.cond and 'dwordx4' in i.op:
                continue
            if 'e' in x and i.kind in ('valu', 'trans') and not i.cond and i.op.endswith(('f32', 'f32_e64')):
                continue
            if 'l' in x and i.kind == 'dsr':
                continue
            if 's' in x and i.kind == 'vstore' and 'store' in i.op and not i.cond:
                continue
            if 'b' in x and i.op == 's_barrier':
                continue
            if 'm' in x and i.kind == 'mfma' and i.passes < 8:
                continue
            out.append(i)
        return out

    def ool(self, branch, text):
        p = self.p
        L, R = self.lab("o"), self.lab("r")
        p(f"{branch} {L}")
        n = len(p)
        p(f"{L}:\n{text}\ns_branch {R}", cond=True)
        for i in p[n:]:
            i.ool = L
        p(f"{R}:")

    def spin(self, vt, vaddr, soff, mask, target, srd=WS, mode='wave0', sleep=0, field=None, wave=0):
        p = self.p
        Lp = self.lab("pl")
        addr = f"{vaddr}, {srd}, {soff} offen" if vaddr else f"off, {srd}, {soff}"
        ext = f"v_and_b32 v43, {field}, {vt}\n" if field is not None else ""
        vc = "v43" if field is not None else vt
        loop = f"""s_mov_b32 {sT5}, 0
             s_mov_b64 exec, {mask}
             {Lp}:
             {f's_sleep {sleep}' if sleep else ''}
             buffer_load_dword {vt}, {addr} sc1
             s_add_u32 {sT5}, {sT5}, 1
             s_waitcnt vmcnt(0)
             {ext}v_cmp_gt_u32 vcc, {target}, {vc}
             s_cmp_ge_u32 {sT5}, 0x8000
             s_cselect_b64 vcc, 0, vcc
             s_and_b64 exec, exec, vcc
             s_cbranch_scc1 {Lp}
             s_mov_b64 exec, -1"""
        if self.o.get('stamps') == 3:
            p(f"s_mov_b32 {sT5}, 0")
        if mode == 'check':
            p(f"{ext}v_cmp_gt_u32 vcc, {target}, {vc}\ns_and_b64 vcc, vcc, {mask}")
            self.ool("s_cbranch_scc1", loop)
        elif mode == 'wave0':
            Ld = self.lab("pd")
            p(f"s_cmp_lg_u32 {sW}, {wave}\ns_cbranch_scc1 {Ld}")
            p(loop, cond=True)
            p(f"{Ld}:")
        else:
            p(loop, cond=True)
            p("s_waitcnt vmcnt(0)")
        if self.o.get('stamps') == 3:
            p(f"v_writelane_b32 v{STV}, {sT5}, {self.nstamp}")
            self.nstamp += 1
            self.stamp_names.append(f"spin{self.nstamp}")

    def setup(self):
        p = self.p
        p(f"""s_cmp_ge_u32 s2, 256
             s_cbranch_scc1 L_end
             s_load_dwordx16 s[76:91], s[0:1], 0
             s_load_dwordx4 s[92:95], s[0:1], 64""")
        p("v_and_b32 v1, 63, v0\nv_lshrrev_b32 v4, 6, v0")
        p(f"v_readfirstlane_b32 {sW}, v4")
        p(f"""s_mov_b32 s6, 0x200000
             s_mov_b32 s7, 0x20000
             s_mov_b32 s10, 0x180000
             s_mov_b32 s11, 0x20000
             s_lshr_b32 {sU}, s2, 3
             s_and_b32 {sKC}, s2, 7
             s_and_b32 {sRQ}, {sU}, 3
             s_and_b32 {sG}, s2, 6
             s_lshl_b32 {sG}, {sG}, 1
             s_add_u32 {sG}, {sG}, {sRQ}
             s_lshr_b32 {sT1}, s2, 5
             s_and_b32 {sT2}, s2, 1
             s_lshl_b32 {sTA}, {sG}, 1
             s_add_u32 {sTA}, {sTA}, {sT2}
             s_lshl_b32 {sXL}, {sW}, 14
             s_lshl_b32 {sXB}, {sTA}, 16
             s_add_u32 {sXB}, {sXB}, {sXL}
             s_xor_b32 {sMA}, {sT1}, 4
             s_mul_i32 {sWB}, {sW}, {16*3072}
             s_lshl_b32 {sT0}, {sMA}, 7
             s_add_u32 {sWB}, {sWB}, {sT0}
             s_lshl_b32 {sWL}, {sW}, 11
             s_add_u32 {sC0}, {sT1}, {sKC}""")
        rot = self.o.get('rot', 6)
        if rot == 7:
            p(f"s_lshl_b32 {sT0}, {sU}, 2\ns_add_u32 {sC0}, {sC0}, {sT0}")
        if rot == 8:
            p(f"s_lshl_b32 {sT0}, {sRQ}, 1\ns_add_u32 {sC0}, {sC0}, {sT0}")
        if rot == 0:
            p(f"s_mov_b32 {sC0}, 0")
        if rot == 1:
            p(f"s_mov_b32 {sC0}, {sKC}")
        if rot == 9:
            p(f"s_lshl_b32 {sC0}, {sT1}, 1\ns_add_u32 {sC0}, {sC0}, {sKC}")
        p(f"""v_lshrrev_b32 v4, 3, v1
             v_and_b32 v5, 7, v1
             v_lshrrev_b32 v3, 4, v1
             v_xor_b32 v6, v5, v3
             v_lshlrev_b32 v6, 4, v6
             v_lshl_add_u32 v6, v4, 10, v6
             v_xor_b32 v7, 64, v6
             v_add_u32 v7, 7168, v7
             v_and_b32 v3, 1, v3
             v_lshlrev_b32 v3, 2, v3
             v_xor_b32 v5, v5, v3
             v_lshlrev_b32 v5, 4, v5
             v_mul_u32_u24 v8, 3072, v4
             v_add_u32 v8, v8, v5
             v_add_u32 v9, {8*3072-1024}, v8""")
        p("WAITALL lgkm")
        p("s_mov_b64 s[4:5], s[76:77]\ns_mov_b64 s[8:9], s[78:79]")

    def dmaW(self, t, c):
        base, po = ((KB, 1024), (VB, 2048), (0, 0))[t]
        tag = f"{'AVQ'[t]}{c}"
        S = Seq()
        S(f"s_add_u32 m0, {sWL}, {base + c*8192 - po}")
        S(f"buffer_load_dwordx4 v8, {WQKV}, s{75+c} offen offset:{po} lds", tag=tag)
        return ctx([list(S), [Inst(f"buffer_load_dwordx4 v9, {WQKV}, s{75+c} offen offset:{po+1024} lds", tag=tag)]])

    def dmaA(self, c):
        wc = f"s{75+c}"
        g = self.dmaW(0, c)
        g[0] = list(Seq()(f"""s_add_u32 {sT0}, {sC0}, {c}
             s_and_b32 {sT0}, {sT0}, 7
             s_mul_i32 {wc}, {sT0}, {64*3072}
             s_add_u32 {wc}, {wc}, {sWB}
             s_lshl_b32 {sT0}, {sT0}, 7""")) + g[0]
        nt = " nt" if self.o.get('xnt', 0) else ""
        S = Seq()
        S(f"s_add_u32 m0, {sWL}, {c*8192}\ns_add_u32 {sT0}, {sT0}, {sXB}")
        S(f"buffer_load_dwordx4 v6, {X}, {sT0} offen{nt} lds", tag=f"A{c}")
        g += [list(S), [Inst(f"buffer_load_dwordx4 v7, {X}, {sT0} offen offset:1024{nt} lds", tag=f"A{c}")]]
        return ctx(g)

    def dmaWO(self, q):
        S = Seq()
        S(f"""s_add_u32 {sT0}, {sA}, {q*65536}
             s_add_u32 m0, {sB}, {q*16384}
             s_and_b32 {sT0}, {sT0}, 0x7ffff""")
        g = []
        for k in range(4):
            S(f"buffer_load_dwordx4 v{WOD+k}, {WO}, {sT0} offen offset:{k*1024} lds", tag="WO")
            g.append(list(S))
            S = Seq()
        return ctx(g)

    def rload(self):
        nt = " nt" if self.o.get('rnt', 1) else ""
        g = []
        for k, (ad, srd, s0, s1) in enumerate(((RL1, W1, sKVL, sZL), (RL3, W3, sKVL, sZL), (RL2, W2, sPQL, sHST))):
            g.append(list(Seq()(f"s_add_u32 m0, {sSTA}, {k*2048}\nbuffer_load_dwordx4 {ad}, {srd}, {s0} offen{nt} lds")))
            g.append(list(Seq()(f"buffer_load_dwordx4 {ad}, {srd}, {s1} offen offset:1024{nt} lds")))
            ctx(g[-2:])
        return g

    def miscA(self):
        M = Seq()
        a, b, c, d = "v208", "v209", "v210", "v211"
        M(f"""v_lshl_add_u32 {RL2}, v4, 10, v5
             v_mul_u32_u24 v4, 3584, v4
             v_add_u32 {RL1}, v4, v5
             v_xor_b32 {RL3}, 32, {RL1}
             v_mov_b32 v4, 1
             v_lshlrev_b32 {L4}, 2, v1
             s_mov_b32 {sLOG2E}, 0x3fb8aa3b
             s_mov_b32 {sMSKHI}, 0xffff0000
             s_mov_b32 {sEPS6}, 0x358637bd
             s_mov_b32 s62, 0
             s_mov_b32 s63, -1
             s_mov_b32 s64, 0xffff0000
             s_mov_b32 s65, 0xffff0000
             s_mov_b32 s96, 0x22222222
             s_mov_b32 s97, 0x22222222
             s_mov_b32 s98, 0x44444444
             s_mov_b32 s99, 0x44444444
             s_mov_b32 s70, 0x88888888
             s_mov_b32 s71, 0x88888888
             s_and_b32 {sM}, s2, 1
             s_lshl_b32 {sM}, {sM}, 3
             s_lshr_b32 {sT1}, s2, 5
             s_add_u32 {sM}, {sM}, {sT1}
             s_and_b32 {sCB}, {sM}, 3
             s_and_b32 {sT1}, {sW}, 1
             s_lshr_b32 {sT2}, {sW}, 1
             s_lshl_b32 {sMA}, {sMA}, 1
             s_add_u32 {sMA}, {sMA}, {sT2}
             s_lshl_b32 {sTA}, {sTA}, 1
             s_add_u32 {sTA}, {sTA}, {sT1}""")
        M(f"""v_and_b32 {a}, 31, v1
             v_lshrrev_b32 {b}, 5, v1
             v_bfe_u32 {c}, v1, 1, 3
             v_xor_b32 {c}, {b}, {c}
             v_lshlrev_b32 {c}, 4, {c}
             v_lshl_add_u32 {c}, {a}, 7, {c}
             s_lshl_b32 {sT3}, {sT1}, 12
             s_lshl_b32 {sT4}, {sW}, 5
             s_add_u32 {sT3}, {sT3}, {sT4}
             v_xor_b32 v10, {sT3}, {c}
             v_xor_b32 v11, 32, v10
             v_xor_b32 v12, 64, v10
             v_xor_b32 v13, 96, v10
             s_lshl_b32 {sT3}, {sCB}, 1
             s_add_u32 {sT3}, {sT3}, {sT2}
             s_sub_u32 {sT3}, {sT3}, {sC0}
             s_and_b32 {sT3}, {sT3}, 7
             s_lshl_b32 {sT3}, {sT3}, 1
             s_lshr_b32 {sT4}, s2, 7
             s_add_u32 {sT3}, {sT3}, {sT4}
             s_lshl_b32 {sT3}, {sT3}, 6
             s_add_u32 {sT3}, {sT3}, {sT1}
             s_lshl_b32 {sT3}, {sT3}, 6
             v_xor_b32 v14, {sT3}, {c}
             v_xor_b32 v15, 32, v14""")
        M(f"""s_lshl_b32 {sT3}, {sT2}, 8
             s_add_u32 {sT3}, {sT3}, {hex(XCH)}
             v_lshl_add_u32 {XCR}, {a}, 3, {sT3}
             s_lshl_b32 {sT3}, {sT1}, 2
             v_add_u32 {XCW}, {sT3}, {XCR}
             s_lshl_b32 {sT3}, {sW}, 9
             s_add_u32 {sT3}, {sT3}, {hex(XCH+2048)}
             v_lshl_add_u32 {STW}, v1, 3, {sT3}
             v_xor_b32 {STR}, 1024, {STW}
             v_lshlrev_b32 {KVW}, 4, {a}
             v_lshl_add_u32 {KVW}, {b}, 10, {KVW}
             s_add_u32 {sT3}, {sWL}, {hex(KVS)}
             v_add_u32 {KVW}, {sT3}, {KVW}
             s_lshl_b32 {sT3}, {sW}, 7
             s_add_u32 {sT3}, {sT3}, {hex(ZS)}
             v_lshl_add_u32 {ZW}, {a}, 2, {sT3}
             s_lshl_b32 {sT3}, {sT2}, 2
             s_add_u32 {sT3}, {sT3}, {sT1}
             s_lshl_b32 {sT4}, {sT3}, 10
             s_add_u32 {sT4}, {sT4}, {hex(KVS)}
             v_add_u32 {KVR}, {sT4}, {L4}
             s_lshl_b32 {sT4}, {sT3}, 6
             s_add_u32 {sT4}, {sT4}, {hex(ZS)}
             v_and_b32 {d}, 15, v1
             v_lshl_add_u32 {ZR}, {d}, 2, {sT4}
             v_lshrrev_b32 {d}, 4, v1
             v_lshl_add_u32 {ZAT}, {d}, 27, {L4}
             v_lshl_add_u32 {CSAT}, {b}, 27, {L4}
             v_lshrrev_b32 {LM8}, 3, v1
             v_lshlrev_b32 {LM8}, 27, {LM8}
             v_min_u32 {FA1}, 1, v1
             v_lshlrev_b32 {FA1}, 27, {FA1}
             s_lshl_b32 {sT3}, {sMA}, 1
             s_add_u32 {sT3}, {sT3}, {sT1}
             s_lshl_b32 {sKVA}, {sT3}, 10
             s_add_u32 {sKVA}, {sKVA}, {hex(KVM)}
             s_lshl_b32 {sZA}, {sT3}, 6
             s_add_u32 {sZA}, {sZA}, {hex(ZP)}
             s_lshl_b32 {sPQS}, {sTA}, 2
             s_lshr_b32 {sT3}, {sMA}, 2
             s_add_u32 {sPQS}, {sPQS}, {sT3}
             s_lshl_b32 {sPQS}, {sPQS}, 3
             s_and_b32 {sT3}, {sMA}, 3
             s_add_u32 {sPQS}, {sPQS}, {sT3}
             s_lshl_b32 {sPQS}, {sPQS}, 11
             s_add_u32 {sPQS}, {sPQS}, {hex(PQ)}
             s_lshl_b32 {sHS}, {sG}, 2
             s_add_u32 {sHS}, {sHS}, {sW}
             s_lshl_b32 {sHS}, {sHS}, 4
             s_add_u32 {sHS}, {sHS}, {sM}
             s_lshl_b32 {sHS}, {sHS}, 14
             s_add_u32 {sHS}, {sHS}, {hex(HH+4096)}""")
        M(f"""v_bfe_u32 {c}, v1, 2, 2
             v_lshlrev_b32 {a}, 10, {b}
             v_lshl_add_u32 {a}, {c}, 7, {a}
             v_bfe_u32 {c}, v1, 4, 1
             v_bfe_u32 {d}, v1, 3, 1
             v_lshl_add_u32 {d}, {d}, 1, {c}
             v_lshl_add_u32 {a}, {d}, 5, {a}
             v_and_b32 {d}, 1, v1
             v_lshl_add_u32 {RT2A}, {d}, 4, {a}
             v_bfe_u32 {d}, v1, 1, 1
             v_lshl_add_u32 {RT2A}, {d}, 3, {RT2A}
             v_and_b32 {d}, 3, v1
             v_lshl_add_u32 {a}, {d}, 3, {a}
             s_lshl_b32 {sT3}, {sT2}, 6
             s_add_u32 {sT3}, {sT3}, {sWL}
             s_add_u32 {sT4}, {sT3}, {hex(KB)}
             v_xor_b32 v{TRK}, {sT4}, {a}
             s_add_u32 {sT4}, {sT3}, {hex(VB)}
             v_xor_b32 v{TRP}, {sT4}, {RT2A}""")
        for j in range(1, 4):
            M(f"v_xor_b32 v{TRK+j}, {j*2048}, v{TRK}\nv_xor_b32 v{TRP+j}, {j*2048}, v{TRP}")
        M(f"""s_lshl_b32 {sT3}, {sW}, 5
             s_add_u32 {sT3}, {sT3}, {hex(RST)}
             v_xor_b32 {RT13}, {sT3}, {RT2A}
             v_lshl_add_u32 {RT13}, {c}, 11, {RT13}
             s_mul_i32 {sSTA}, {sW}, 6144
             s_add_u32 {sSTA}, {sSTA}, {hex(RST)}
             v_add_u32 {RT2A}, {sSTA}, {RT2A}
             v_xor_b32 {RT2B}, 64, {RT2A}""")
        M(f"""v_lshrrev_b32 {a}, 2, v1
             v_xor_b32 {a}, {a}, {c}
             v_and_b32 {a}, 1, {a}
             v_or_b32 {a}, {a}, {d}
             v_cmp_eq_u32 vcc, 0, {a}
             v_mov_b32 v20, 0x3f803f80
             v_mov_b32 v21, 0x3f803f80
             v_mov_b32 v22, 0x3f803f80
             v_mov_b32 v23, 0x3f803f80
             v_cndmask_b32 v16, 0, v20, vcc
             v_cndmask_b32 v17, 0, v20, vcc
             v_cndmask_b32 v18, 0, v20, vcc
             v_cndmask_b32 v19, 0, v20, vcc""")
        for r in (162, 163, 166, 167, 170, 171, 174, 175, 177, 178, 179):
            M(f"v_mov_b32 v{r}, 0")
        M(f"""v_lshrrev_b32 {a}, 4, v1
             v_bfe_u32 {c}, v1, 2, 2
             v_xor_b32 {c}, {c}, {a}
             v_lshlrev_b32 {c}, 6, {c}
             v_lshl_add_u32 {c}, {a}, 10, {c}
             v_lshl_add_u32 v{WOD}, {d}, 4, {c}
             v_add_u32 v{WOD+1}, 3072, v{WOD}
             v_add_u32 v{WOD+2}, 6144, v{WOD}
             v_add_u32 v{WOD+3}, 9216, v{WOD}
             s_lshl_b32 {sA}, {sRQ}, 17
             s_add_u32 {sA}, {sA}, {sXL}
             s_lshl_b32 {sT3}, {sCB}, 8
             s_add_u32 {sA}, {sA}, {sT3}""")
        M(f"""s_lshl_b32 {sT3}, {sKC}, 2
             s_add_u32 {sT3}, {sT3}, {sW}
             s_mul_i32 {sKVL}, {sT3}, {16*3584}
             s_lshl_b32 {sT3}, {sU}, 7
             s_add_u32 {sKVL}, {sKVL}, {sT3}
             s_lshl_b32 {sT2}, {sU}, 2
             s_add_u32 {sT2}, {sT2}, {sW}
             s_lshl_b32 {sPQL}, {sT2}, 14
             s_lshl_b32 {sT3}, {sKC}, 7
             s_add_u32 {sPQL}, {sPQL}, {sT3}
             s_add_u32 {sHST}, {sPQL}, 7168
             s_lshl_b32 {sRC}, {sT2}, 7
             s_add_u32 {sRC}, {sRC}, {hex(CS)}
             s_lshl_b32 {sRW}, {sT2}, 3
             s_add_u32 {sRW}, {sRW}, {sKC}
             s_lshl_b32 {sRW}, {sRW}, 12
             s_add_u32 {sRW}, {sRW}, {hex(W13R)}
             s_mul_i32 {sR2}, {sKC}, 112
             s_add_u32 {sR2}, {sR2}, {sT2}
             s_lshl_b32 {sR2}, {sR2}, 11
             s_add_u32 {sR2}, {sR2}, {hex(W2R)}
             s_cmp_ge_u32 s2, 224
             s_cselect_b32 {sRW}, {hex(OOB)}, {sRW}
             s_cselect_b32 {sR2}, {hex(OOB)}, {sR2}
             s_cselect_b32 {sRC}, {hex(OOB)}, {sRC}
             s_cselect_b32 {sKVL}, {hex(OOB)}, {sKVL}
             s_add_u32 {sZL}, {sKVL}, {8*3584-1024}
             s_and_b32 {sSIG}, {sU}, 15
             s_lshl_b32 {sSIG}, {sSIG}, 8
             s_add_u32 {sSIG}, {sSIG}, {hex(CNT)}
             s_cmp_eq_u32 {sW}, 0
             s_cselect_b32 {sSIG}, {sSIG}, {hex(OOB)}""")
        return M

    def miscB(self):
        M = Seq()
        a, b, c, d = "v208", "v209", "v210", "v211"
        M(f"""s_lshr_b32 {sTB}, {sM}, 2
             s_lshl_b32 {sT3}, {sG}, 2
             s_add_u32 {sTB}, {sTB}, {sT3}
             s_lshl_b32 {sKVL}, {sW}, 13
             s_add_u32 {sKVL}, {sKVL}, {hex(KVM)}
             s_lshl_b32 {sT2}, {sTB}, 16
             s_add_u32 {sPQL}, {sT2}, {sXL}
             s_add_u32 {sPQL}, {sPQL}, {hex(PQ)}
             s_xor_b32 {sPQL}, {sPQL}, {sP1}
             s_lshl_b32 {sZL}, {sW}, 9
             s_add_u32 {sZL}, {sZL}, {hex(ZP)}
             s_lshl_b32 {sHST}, {sCB}, 14
             s_add_u32 {sHST}, {sHST}, {sT2}
             s_add_u32 {sHST}, {sHST}, {sWL}
             s_add_u32 {sHST}, {sHST}, {hex(HB)}
             s_xor_b32 {sHST}, {sHST}, {sPE}
             s_lshl_b32 {sSTA}, {sTB}, 8
             s_add_u32 {sSTA}, {sSTA}, {hex(ST)}
             s_lshl_b32 {sD}, {sTB}, 2
             s_add_u32 {sD}, {sD}, {sCB}
             s_lshl_b32 {sD}, {sD}, 16
             s_add_u32 {sD}, {sD}, {sXL}
             s_add_u32 {sD}, {sD}, {hex(HH+7168)}
             s_xor_b32 {sD}, {sD}, {sP2}
             v_lshrrev_b32 {b}, 5, v1
             v_and_b32 {a}, 31, v1
             v_lshlrev_b32 {ROWA}, 10, {a}
             v_lshl_add_u32 {ROWA}, {b}, 4, {ROWA}
             v_bfe_u32 {c}, v1, 2, 2
             v_and_b32 {a}, 1, v1
             v_lshlrev_b32 {a}, 4, {a}
             v_bfe_u32 {d}, v1, 1, 1
             v_lshl_add_u32 {a}, {d}, 3, {a}
             v_lshl_add_u32 {d}, {b}, 11, {a}
             v_lshl_add_u32 {d}, {c}, 8, {d}
             v_xor_b32 {c}, {sW}, {c}
             v_lshl_add_u32 {d}, {c}, 6, {d}
             v_bfe_u32 {c}, v1, 4, 1
             v_lshl_add_u32 {d}, {c}, 5, {d}""")
        for q in range(4):
            M(f"""s_add_u32 {sT2}, {sW}, {q+4}
                 s_sub_u32 {sT3}, {sT2}, {sRQ}
                 s_and_b32 {sT3}, {sT3}, 3
                 s_lshl_b32 {sT3}, {sT3}, 15
                 v_add_u32 v{WOT+q}, {sT3}, {d}
                 s_and_b32 {sT2}, {sT2}, 3
                 s_lshl_b32 {sT2}, {sT2}, 13
                 s_add_u32 {sT2}, {sT2}, 0x20000
                 v_add_u32 v{OAD+q}, {sT2}, {L16}""")
        M(f"""s_lshl_b32 {sT2}, {sW}, 13
             s_add_u32 {sT2}, {sT2}, {0x20000+7168}
             v_add_u32 {ZBW}, {sT2}, {L4}
             v_xor_b32 {d}, 1, {c}
             v_lshlrev_b32 {d}, 5, {d}
             v_lshl_add_u32 {d}, {b}, 4, {d}
             v_add_u32 {ZBR}, {sT2}, {d}
             v_lshrrev_b32 {d}, 4, v1
             v_lshlrev_b32 {P256}, 8, v1
             v_lshl_add_u32 {P256}, {d}, 27, {P256}
             s_mul_i32 {bTA}, {sM}, {7*32768}
             s_lshl_b32 {bTL}, {sW}, 13
             s_add_u32 {bTA}, {bTA}, {bTL}
             s_add_u32 {bTA}, {bTA}, {hex(W13R)}
             s_add_u32 {bK2}, {sKVL}, 4096
             s_add_u32 {bQ2}, {sPQL}, 4096
             s_lshr_b32 {sT2}, {sTBL}, {sKC}
             s_and_b32 {sT2}, {sT2}, 0x2000
             s_lshl_b32 {bGP}, {sKC}, 14
             s_add_u32 {bGP}, {bGP}, {sT2}
             s_add_u32 {bGP}, {bGP}, {hex(CNT)}
             s_add_u32 {bRP}, {bGP}, 4096
             v_lshlrev_b32 v41, 3, v1""")
        for k in range(8):
            M(f"v_lshlrev_b32 v{192+2*k}, 16, v{24+k}\nv_and_b32 v{193+2*k}, {sMSKHI}, v{24+k}")
        return M

    def phaseA(self):
        p = self.p
        o = self.o
        pre = o.get('pre', 0)
        if pre:
            nt = " nt" if o.get('xnt', 0) else ""
            p(f"""s_lshl_b32 {sT3}, {sMA}, 2
                 s_add_u32 {sT3}, {sT3}, {sW}
                 s_lshl_b32 {sT3}, {sT3}, 11
                 s_lshl_b32 {sT4}, {sTA}, 16
                 s_add_u32 {sT3}, {sT3}, {sT4}
                 s_lshl_b32 {sT4}, s2, 2
                 s_add_u32 {sT4}, {sT4}, {sW}
                 s_mul_i32 {sT4}, {sT4}, 1536
                 v_lshrrev_b32 v196, 2, v1
                 v_lshlrev_b32 v196, 7, v196
                 v_min_u32 v197, 1408, v196""")
            if pre & 1:
                p(f"buffer_load_dword v194, v196, {X}, {sT3} offen{nt}")
            if pre & 2:
                p(f"buffer_load_dword v195, v197, {WQKV}, {sT4} offen")
        p.extend(flat(self.dmaA(0)))
        p(f"v_lshlrev_b32 {L16}, 4, v1")
        if o.get('codepf', 1):
            p(f"""s_getpc_b64 s[70:71]
                 s_lshl_b32 {sT3}, {sU}, 2
                 s_add_u32 {sT3}, {sT3}, {sW}
                 s_lshl_b32 {sT4}, {sT3}, 8
                 v_lshrrev_b32 v200, 5, v1
                 v_lshl_add_u32 v200, v200, 7, {sT4}
                 v_min_u32 v200, CODE_PF_MAX, v200
                 global_load_dword v201, v200, s[70:71]""")
        d1 = self.dmaA(1)
        n1 = o.get('d1', 4)
        p.extend(flat(d1[:n1]))
        for srd, src, sz in ((12, 80, 0x80000), (16, 84, 0x1C0000), (20, 86, 0x1C0000), (24, 88, 0x1C0000),
                             (28, 90, 0x200000), (36, 92, 256), (32, 94, WS_SIZE)):
            p(f"s_mov_b64 s[{srd}:{srd+1}], s[{src}:{src+1}]\ns_mov_b32 s{srd+2}, {hex(sz)}\ns_mov_b32 s{srd+3}, 0x20000")
        if o.get('wsoff'):
            p(f"s_add_u32 s32, s32, {o['wsoff'] << 20}\ns_addc_u32 s33, s33, 0")
        Lz = self.lab("z")
        p(f"""s_lshl_b32 {sB}, {sW}, 8
             s_add_u32 {sB}, {sB}, 224
             s_cmp_lt_u32 s2, {sB}
             s_cbranch_scc1 {Lz}""")
        p(f"""s_sub_u32 {sT2}, s2, 224
             s_and_b32 {sCc}, {sU}, 1
             s_lshl_b32 {sT3}, {sCc}, 5
             s_add_u32 {sT3}, {sT3}, {sT2}
             s_lshl_b32 {sT3}, {sT3}, 8
             s_add_u32 {sT3}, {sT3}, {hex(PROBE)}
             s_xor_b32 {sT4}, {sT3}, 0x2000
             s_buffer_load_dword {sT5}, {WS}, {sT3} glc
             s_buffer_load_dword {sT5}, {WS}, {sT4} glc
             v_mov_b32 v16, 0
             v_mov_b32 v17, 0
             v_mov_b32 v18, 0
             v_mov_b32 v19, 0
             v_lshrrev_b32 v20, 3, v1
             v_lshl_add_u32 v20, v20, 7, {L16}
             s_lshl_b32 {sT4}, {sT2}, 11
             s_lshl_b32 {sT3}, {sT2}, 12
             s_add_u32 {sT3}, {sT3}, {hex(CNT)}
             s_add_u32 {sT4}, {sT4}, {hex(KVM)}
             s_waitcnt lgkmcnt(1)
             s_nop 7
             s_getreg_b32 {sT2}, hwreg(HW_REG_IB_STS, 8, 4)
             buffer_store_dwordx4 v[16:19], {L16}, {WS}, {sT4} offen sc1
             buffer_store_dwordx4 v[16:19], {L16}, {WS}, {sT4} offen offset:1024 sc1
             buffer_store_dwordx4 v[16:19], v20, {WS}, {sT3} offen sc1
             buffer_store_dwordx4 v[16:19], v20, {WS}, {sT3} offen offset:2048 sc1
             s_getreg_b32 {sT4}, hwreg(HW_REG_XCC_ID, 2, 1)
             s_min_u32 {sT2}, {sT2}, 1
             s_waitcnt lgkmcnt(0)
             s_cmp_eq_u32 {sT4}, {sCc}
             s_cselect_b32 {sT5}, 6, 12
             s_lshl_b32 {sT2}, {sT2}, {sT5}
             s_add_u32 {sT5}, {sKC}, 18
             s_lshl_b32 {sT4}, {sT4}, {sT5}
             s_cmp_eq_u32 {sU}, 28
             s_cselect_b32 {sT4}, {sT4}, 0
             s_add_u32 {sT2}, {sT2}, {sT4}
             s_add_u32 {sT2}, {sT2}, 1
             v_mov_b32 v46, {sT2}""", cond=True)
        p(f"{Lz}:")
        p.extend(self.miscA())
        tch = Seq()
        touch = o.get('touch', 7)
        tch(f"""s_lshl_b32 {sCc}, s2, 2
             s_add_u32 {sCc}, {sCc}, {sW}
             s_lshr_b32 {sT4}, {sCc}, 1
             s_mul_i32 {sT4}, {sT4}, 3072
             s_and_b32 {sT5}, {sCc}, 1
             s_lshl_b32 {sT5}, {sT5}, 11
             s_add_u32 {sT4}, {sT4}, {sT5}
             s_lshl_b32 {sCc}, {sCc}, 9
             v_lshrrev_b32 v202, 3, v1
             v_lshlrev_b32 v202, 7, v202
             v_lshrrev_b32 v42, 4, v1
             v_lshlrev_b32 v42, 7, v42""")
        if touch & 4:
            tch(f"""s_lshl_b32 {sT3}, {sU}, 2
                 s_add_u32 {sT3}, {sT3}, {sW}
                 s_mul_i32 {sT3}, {sT3}, {4*3072}
                 v_min_u32 v200, 11, v1
                 v_lshlrev_b32 v200, 10, v200
                 buffer_load_dword v198, v200, {WQKV}, {sT3} offen offset:384""")
        if touch & 1:
            tch(f"buffer_load_dword v203, v202, {WQKV}, {sT4} offen")
        p.extend(tch)
        SEL, ONES = v(16, 4), v(20, 4)
        XS, XQ0, XQ1, CSA, ZA = 252, 248, 32, 36, 44
        AK, AV, AQ, RB, AKV = 48, 64, 80, 96, 112
        WR = 128
        XM, WP, RS_ = 160, 164, 176

        def wread(t, s, dst=None):
            n = t * 32 + s
            addr = (TRK, TRP, TRK)[t]
            return trpair(('v', WR + 4 * (n % 6) if dst is None else dst), f"v{addr+(s&3)}", (s >> 2) * 8192, 512)

        def wf(t, s):
            return v(WR + 4 * ((t * 32 + s) % 6), 4)

        def csm(f, first):
            return mf16(CSA, SEL, f, "0" if first else None)

        def cswrite(t):
            S = split2(41, CSA, 41)
            S(f"ds_write_b32 {XCW}, v41 offset:{t*512}", tag=f"x{t}")
            return list(S)

        def csget(t):
            return [Inst(f"ds_read_b64 {v(WP+4*t,2)}, {XCR} offset:{t*512}")]

        def xread(s):
            return [Inst(f"ds_read_b128 {a_(4*s,4)}, v{10+(s&3)} offset:{(s>>2)*8192}")]

        p.extend(flat(d1[n1:]))
        d2 = self.dmaA(2)
        n2_ = o.get('d2', 4)
        p.extend(flat(d2[:n2_]))
        self.stamp("A_issued")
        p("WAITTAG A0\ns_barrier")
        self.stamp("A_c0")
        p.extend(xread(0) + wread(0, 0) + xread(1) + wread(0, 1))
        p.extend(flat(d2[n2_:]))
        pend = self.dmaA(3)
        for s in range(32):
            c, j = s >> 2, s & 3
            xf = a_(4 * s, 4)
            z = "0" if s == 0 else None
            p.append(mf32(AK, xf, wf(0, s), z))
            if j == 2 and c < 7:
                p(f"WAITTAG A{c+1}\ns_barrier")
                self.stamp(f"a{c+1}")
                assert not pend
                if c == 1:
                    p(f"s_cmp_ge_u32 s2, {sB}")
                    self.ool("s_cbranch_scc1", f"buffer_atomic_add v46, {FA1}, {DBG}, 0 offen sc1")
                if c + 4 < 8:
                    pend = self.dmaA(c + 4)
                else:
                    pend = self.dmaW(1, 2 * (c - 4)) + self.dmaW(1, 2 * (c - 4) + 1)
            if s == 30:
                p("WAITTAG V1\ns_barrier")
                pend = self.dmaW(1, 6)
            if s + 2 < 32:
                p.extend(xread(s + 2) + wread(0, s + 2))
            else:
                p.extend(wread(1, s + 2 - 32))
            if s == 28:
                p("ds_read_b128 v[24:27], v14\nds_read_b128 v[28:31], v15", tag="xres")
            for _ in range(2 if s < 2 else 1):
                if pend:
                    p.extend(pend.pop(0))
            if j % 2 == 0:
                p.append(csm(wf(0, s), s == 0))
            if j < 2:
                p.append(mf16(XS, SEL, xf, z))
                p.append(mf4(XQ0, a_(4 * s, 2), a_(4 * s, 2), z))
                p.append(mf4(XQ1, a_(4 * s + 2, 2), a_(4 * s + 2, 2), z))
            if s == 30:
                for k in range(4):
                    p(f"v_add_f32 v{XQ0+k}, v{XQ0+k}, v{XQ1+k}")
                p(f"""v_cndmask_b32 v197, v{XQ0}, v{XQ0+1}, s[96:97]
                     v_cndmask_b32 v197, v197, v{XQ0+2}, s[98:99]
                     v_cndmask_b32 v197, v197, v{XQ0+3}, s[70:71]
                     v_mov_b32 v196, v197""")
            if s == 31:
                p(f"""v_permlane32_swap_b32 v196, v197
                     v_add_f32 v{XS+1}, v196, v197
                     ds_write_b64 {STW}, {v(XS,2)}""")
                p.extend(cswrite(0))
        assert not pend
        self.stamp("A_loop")
        CT = (204, 208, ZA)

        def tilepass(t, acc, order):
            nm = "VQ"[t - 1]
            G = []
            for s in range(32):
                A_, B_ = (a_(4 * s, 4), wf(t, s)) if order == 0 else (wf(t, s), a_(4 * s, 4))
                g = Seq()
                g.append(mf32(acc, A_, B_, "0" if s == 0 else None))
                if t == 1 and s == 2:
                    g("WAITTAG x0 xres V3\ns_barrier")
                    g(f"ds_read_b64 v[198:199], {STR}")
                    g.extend(csget(0))
                if s % 8 == 4 and s < 28 and (t, s) != (1, 4):
                    g(f"WAITTAG {nm}{(s+4)//4+1} kvp\ns_barrier")
                if s == 28:
                    g(f"WAITTAG x{t}" + (" Q1" if t == 1 else "") + "\ns_barrier")
                    g.extend(csget(t))
                if t == 1 and s < 2:
                    g.extend(wread(t, 2 + 2 * s) + wread(t, 3 + 2 * s))
                elif s + 4 < 32:
                    g.extend(wread(t, s + 4))
                elif t == 1:
                    g.extend(wread(2, s + 4 - 32))
                if s in (20, 21, 22):
                    g.extend(wread(t, 26 + 2 * (s - 20), CT[s - 20]))
                if s % 2 == 0 and s < 26 and (t, s) != (1, 0):
                    g.append(csm(wf(t, s), (t, s) == (2, 0)))
                if (t, s) == (1, 1):
                    g.append(csm(wf(t, 0), True))
                if s in (23, 24, 25):
                    g.append(csm(v(CT[s - 23], 4), False))
                if s == 26:
                    g.extend(cswrite(t))
                G.append(list(g))
            return G

        def phi(acc, scale, T, dst):
            S = Seq()
            for h in range(2):
                r = range(8 * h, 8 * h + 8)
                for i in r:
                    S(f"v_fma_f32 v{acc+i}, v{acc+i}, {scale(i)}, {sEPS6}")
                for i in r:
                    S(f"v_mul_f32 v{T+(i&7)}, {sLOG2E}, v{acc+i}")
                for i in r:
                    S(f"v_exp_f32_e64 v{T+(i&7)}, v{T+(i&7)} clamp")
                    S(f"v_max_f32 v{acc+i}, {sEPS6}, v{acc+i}")
                for i in r:
                    S(f"v_add_f32 v{acc+i}, v{acc+i}, v{T+(i&7)}")
                for i in range(4 * h, 4 * h + 4):
                    S(f"v_cvt_pk_bf16_f32 v{dst+i}, v{acc+2*i}, v{acc+2*i+1}")
            return S
        E = Seq()
        E(f"""v_add_f32 v198, v198, v{XS}
             v_add_f32 v197, v199, v{XS+1}
             v_mul_f32 v199, 0x3b000000, v198
             v_mul_f32 v197, 0x3b000000, v197
             v_cvt_pk_bf16_f32 v198, -v199, -v199
             v_fma_f32 v197, -v199, v199, v197
             v_cndmask_b32 v{XM}, v198, 0, {sHILANES}
             v_cndmask_b32 v{XM+1}, v198, 0, {sHILANES}
             v_max_f32 v197, 0, v197
             v_add_f32 v197, 0x3727c5ac, v197
             v_rsq_f32 v40, v197""")
        E.append(mf32(AK, v(XM, 4), v(WP, 4)))
        E.extend(split2(RS_, 40, 198))
        E(f"v_cndmask_b32 v{RS_}, v{RS_}, 0, {sHILANES}")
        E.append(mf32(RB, v(RS_, 4), ONES, "0"))
        PK = phi(AK, lambda i: f"v{RB+i}", 196, 180)
        G = tilepass(1, AV, 0)
        G = weave(G, self.dmaW(1, 7), 0, 2)
        G = weave(G, flat([self.dmaW(2, k) for k in range(8)]), 3, o.get('q2end', 30))
        G[0] += [Inst(f"v_subrev_u32 v{TRK+j}, {hex(VB)}, v{TRP+j}") for j in range(4)]
        G[12] += [Inst(f"buffer_load_dword v5, {FA1}, {DBG}, 0 offen sc1")]
        n2 = o.get('pk2', 80)
        G = weave(G, list(E), 4, 8)
        G = weave(G, PK[:n2], 10, 32)
        for k in range(3, 31, 4):
            G[k] += self.sub(lambda: self.stamp(f"v{k}"))
        p.extend(flat(G))
        p.append(mf32(AV, v(XM, 4), v(WP + 4, 4)))
        self.stamp("A_v")
        E = Seq()
        E.extend(PK[n2:])
        for i in range(16):
            E(f"v_mul_f32 v{AV+i}, v{AV+i}, v{RB+i}")
        for i in range(8):
            E(f"v_cvt_pk_bf16_f32 v{188+i}, v{AV+2*i}, v{AV+2*i+1}")
        G = tilepass(2, AQ, 1)
        rq = self.rload()
        if o.get('nor'):
            rq = []
        if touch & 2:
            rq = [[Inst(f"buffer_load_dword v42, v42, {WO}, {sCc} offen")]] + rq
        G = weave(G, rq, o.get('r0', 0), o.get('r1', 7))
        if o.get('rwait'):
            G[o.get('r1', 7)] += list(Seq()("WAITALL vm")) + self.sub(lambda: self.stamp("A_rland"))
        woq = flat([self.dmaWO(q) for q in (4, 5, 6, 7, 0, 1, 2, 3)])
        nw3 = o.get('wo3', 0)
        G[13] += [Inst(f"s_lshl_b32 {sB}, {sW}, 12")]
        if nw3:
            G = weave(G, woq[:nw3], o.get('wo30', 26), 32)
        G = weave(G, list(E), 0, 7)
        G[7] += [mf32(AKV, v(180, 4), v(188, 4), "0"), mf32(AKV, v(184, 4), v(192, 4)),
                 mf16(ZA, SEL, v(180, 4), "0"), mf16(ZA, SEL, v(184, 4))]
        G[8] += self.sub(lambda: self.spin("v5", None, "0", "1", "32", srd=DBG, mode='check', sleep=4, field=63))
        S = Seq()
        S(f"""v_readfirstlane_b32 {sT2}, v5
             s_bfe_u32 {sT3}, {sT2}, 0x60006
             s_bfe_u32 {sT4}, {sT2}, 0x6000c
             s_lshr_b32 {sT2}, {sT2}, 5""")
        S = [[i] for i in S] + [list(Seq()(f"""s_cmp_gt_u32 {sT4}, {sT3}
             s_cselect_b32 {sT3}, {'0, -1' if o.get('parx') else '-1, 0'}"""))]
        S += [[i] for i in Seq()(f"""s_xor_b32 {sTBL}, {sT2}, {sT3}
             s_lshr_b32 {sT2}, {sTBL}, {sKC}
             s_lshl_b32 {sT3}, {sG}, 10
             s_xor_b32 {sP1}, {sT2}, {sT3}
             s_and_b32 {sP1}, {sP1}, 0x2000
             s_xor_b32 {sPQS}, {sPQS}, {sP1}
             s_lshl_b32 {sT4}, {sG}, 12
             s_xor_b32 {sP2}, {sT2}, {sT4}
             s_and_b32 {sP2}, {sP2}, 0x2000
             s_and_b32 {sT2}, {sKC}, 6
             s_lshr_b32 {sT2}, {sTBL}, {sT2}
             s_xor_b32 {sPE}, {sT2}, {sT3}
             s_and_b32 {sPE}, {sPE}, 0x2000
             s_lshr_b32 {sT3}, {sW}, 1
             s_lshr_b32 {sT2}, {sT2}, {sT3}
             s_xor_b32 {sT2}, {sT2}, {sT4}
             s_and_b32 {sT2}, {sT2}, 0x2000
             s_xor_b32 {sHS}, {sHS}, {sT2}
             v_mov_b32 v176, 0
             v_lshrrev_b32_e64 {P4K}, v1, {sTBL}
             v_and_b32 {P4K}, 0x2000, {P4K}
             v_lshl_add_u32 {P4K}, v1, 14, {P4K}
             v_or_b32 {P4K}, {P4K}, {LM8}""")]
        S += [[Inst(f"buffer_store_dwordx4 v[176:179], {L16}, {WS}, {sHS} offen offset:3072 sc1", tag="pub1")]]
        G = weave(G, S, 19, 31)
        S = Seq()
        for i in range(8):
            S(f"v_cndmask_b32 v{196+i}, v{AKV+i}, v{AKV+8+i}, {sB4LANES}")
        S(f"""ds_write_b128 {KVW}, v[196:199]
             ds_write_b128 {KVW}, v[200:203] offset:512""")
        S(f"ds_write_b32 {ZW}, v{ZA}", tag="kvp")
        G = weave(G, list(S), 9, 11)
        S = Seq()
        for k in range(4):
            S(f"ds_read2st64_b32 v[{112+2*k}:{113+2*k}], {KVR} offset0:{k} offset1:{k+8}")
        S(f"ds_read2_b32 v[120:121], {ZR} offset0:0 offset1:32")
        G = weave(G, list(S), 12, 14)
        S = Seq()
        for k in range(5):
            S(f"v_add_f32 v{112+2*k}, v{112+2*k}, v{113+2*k}")
        for k in range(4):
            S(f"buffer_atomic_add_f32 v{112+2*k}, {L4}, {WS}, {sKVA} offen offset:{k*256}", tag="pub1")
        S(f"buffer_atomic_add_f32 v120, {ZAT}, {WS}, {sZA} offen", tag="pub1")
        G = weave(G, list(S), 15, 20)
        for k in range(3, 31, 4):
            G[k] += self.sub(lambda: self.stamp(f"v{k}"))
        p.extend(flat(G))
        p.append(mf32(AQ, v(WP + 8, 4), v(XM, 4)))
        self.stamp("A_q")
        woq = woq[nw3:]
        t1, t3, t2 = o.get('wot1', 0), o.get('wot3', 8), o.get('wot2', 4)
        assert nw3 + t1 <= 16
        p.extend(flat(woq[:t1]))
        woq = woq[t1:]
        ph = phi(AQ, lambda i: "v40", 196, 180)
        h = len(ph) // 2
        p.extend(ph[:h])
        p(f"buffer_store_dwordx4 v[180:183], {L16}, {WS}, {sPQS} offen sc1", tag="pub1")
        p.extend(ph[h:])
        p(f"buffer_store_dwordx4 v[184:187], {L16}, {WS}, {sPQS} offen offset:1024 sc1", tag="pub1")
        self.stamp("A_pqst")
        p("s_barrier")
        MB = list(self.miscB()) + self.miscC()
        nb = o.get('mb1', 140)
        assert nb >= len(self.miscB())
        p.extend(flat(woq[:t3]))
        p("s_nop 0")
        p.extend(MB[:nb])
        p("s_nop 0")
        p.extend(flat(woq[t3:t3 + t2]))
        woq = woq[t3 + t2:]
        p("WAITTAG pub1\ns_barrier")
        p(f"buffer_atomic_add v4, {P4K}, {WS}, {sSIG} offen sc1")
        self.stamp("A_sig")
        for s in range(4):
            p.extend(trpair(('a', 128 + 4 * s), RT13, s * 6144, 512))
        p.extend(trpair(('a', 144), RT2A, 4096, 512) + trpair(('a', 148), RT2B, 4096, 512))
        t4 = o.get('wot4', 99)
        p.extend(flat(woq[:t4]))
        for s in range(4):
            p.append(mf16(RCS, SEL, a_(128 + 4 * s, 4), "0" if s == 0 else None))
            p(f"buffer_store_dwordx4 {a_(128+4*s,4)}, {L16}, {WS}, {sRW} offen offset:{s*1024} sc1", tag="pubR")
        p(f"buffer_store_dwordx4 a[144:147], {L16}, {WS}, {sR2} offen sc1", tag="pubR")
        p(f"buffer_store_dwordx4 a[148:151], {L16}, {WS}, {sR2} offen offset:1024 sc1", tag="pubR")
        p(f"buffer_atomic_add_f32 v{RCS}, {CSAT}, {WS}, {sRC} offen", tag="pubR")
        self.stamp("A_rst")
        p(f"s_add_u32 {sSIG}, {sSIG}, 4096")
        p.extend(flat(woq[t4:]))
        self.r_early = t4 < len(woq)
        self.mb_rest = MB[nb:]

    def dmaT(self, t, slot):
        g = []
        for h in range(2):
            S = Seq()
            S(f"s_add_u32 m0, {bTL}, {slot*32768+h*4096}\ns_add_u32 {sT0}, {bTA}, {t*32768+h*4096}")
            for k in range(4):
                S(f"buffer_load_dwordx4 {L16}, {WS}, {sT0} offen offset:{k*1024} sc1 lds", tag=f"T{t}")
                g.append(list(S))
                S = Seq()
            ctx(g[-4:])
        return g

    def phaseB(self):
        p = self.p
        o = self.o
        AH = 192
        W = [trpair(('a', 4 * i), f"v{WOT+(i>>3)}", (i & 7) * 4096, 1024) for i in range(32)]
        PQR = 224
        LD = [Inst(f"buffer_load_dwordx2 v[32:33], v41, {WS}, {sZL} offen sc1")]
        for q in range(4):
            for i in (2 * q, 2 * q + 1):
                LD.append(Inst(f"buffer_load_dwordx4 {v(48+4*i,4)}, {L16}, {WS}, {sKVL if i < 4 else bK2} offen offset:{(i&3)*1024} sc1"))
            for i in (2 * q, 2 * q + 1):
                LD.append(Inst(f"buffer_load_dwordx4 {a_(PQR+4*i,4)}, {L16}, {WS}, {sPQL if i < 4 else bQ2} offen offset:{(i&3)*1024} sc1"))
        ZB = Seq()(f"v_cvt_pk_bf16_f32 v32, v32, v33\nds_write_b32 {ZBW}, v32")
        for k in range(4):
            ZB(f"ds_read_b128 {v(96+4*k,4)}, {ZBR} offset:{k*64}")
        rsig = Inst(f"buffer_atomic_add v4, {P4K}, {WS}, {sSIG} offen sc1")
        p("WAITTAG WO\ns_barrier")
        if self.r_early:
            p.append(rsig)
        self.stamp("B_wo")
        p.extend(flat(W))
        p.extend(self.mb_rest)
        self.stamp("B_prepoll")
        self.spin("v5", P256, bGP, "0xffff", "16", sleep=o.get('sleep1', 0), wave=o.get('pw', 1))
        p("WAITTAG pubR\nWAITALL lgkm\ns_barrier")
        self.stamp("B_sync1")
        if not self.r_early:
            p.append(rsig)
        p.extend(LD[:9] + ZB + LD[9:])

        def prep(q):
            S = Seq()
            for k in range(4):
                S(f"v_cvt_pk_bf16_f32 v{80+4*q+k}, v{48+8*q+2*k}, v{48+8*q+2*k+1}")
            for k in range(4):
                S(f"v_cndmask_b32 v{112+8*q+k}, v{80+4*q+k}, v{96+4*q+k}, {sB4LANES}")
            for k in range(4):
                S(f"v_cndmask_b32 v{116+8*q+k}, v{96+4*q+k}, v{80+4*q+k}, {sB4LANES}")
            return S
        NA = [144, 160, 176]
        steps = [(pr, t) for pr in range(4) for t in range(3)]
        steps += [(pr, t) for t in (3, 4, 5, 6) for pr in range(4)]
        w2o = [(7 * pr + t) * 2048 for pr, t in steps]
        hho = [pr * 16384 + t * 1024 for pr, t in steps]
        w2l = []
        for i in range(16):
            S = Seq()
            S(f"s_add_u32 {sKC}, {cW2}, {w2o[i]}")
            S(f"buffer_load_dwordx4 {a_(128+8*i,4)}, {W2A}, {WS}, {sKC} offen sc1")
            w2l.append(list(S))
            w2l.append([Inst(f"buffer_load_dwordx4 {a_(132+8*i,4)}, {W2B}, {WS}, {sKC} offen sc1")])
            ctx(w2l[-2:])
        self.steps, self.w2o, self.hho = steps, w2o, hho
        TQ = flat([self.dmaT(t, t) for t in range(4)]) + w2l
        n1, n2, n3 = o.get('tq1', 4), o.get('tq2', 12), o.get('tq3', 10)

        def num(i):
            return mf32(NA[i % 3], v(112 + 4 * i, 4), a_(PQR + 4 * i, 4), "0")

        def fin(i):
            n = NA[i % 3] + 8 * (i & 1)
            d = NA[i % 3] + 8 * (1 - (i & 1))
            S = Seq()
            S(f"v_add_f32 v{d}, {sEPS6}, v{d}\nv_rcp_f32 v{d}, v{d}")
            for k in range(8):
                S(f"v_mul_f32 v{n+k}, v{n+k}, v{d}")
            for k in range(4):
                S(f"v_cvt_pk_bf16_f32 v{48+4*i+k}, v{n+2*k}, v{n+2*k+1}")
            return S
        p.extend(prep(0))
        p.append(num(0))
        p.append(num(1))
        rl, rc = o.get('rl', 5), o.get('rc', 12)
        if rc >= 8:
            n1 = 0
        VM = TQ[:n1]
        for i in range(8):
            if i + 2 < 8:
                if i % 2 == 0:
                    p.extend(prep(i // 2 + 1))
                p.append(num(i + 2))
            if i == rl:
                p(f"buffer_load_dword v5, {P256}, {WS}, {bRP} offen sc1")
            if i == rc:
                self.spin("v5", P256, bRP, "0xffff", "16", mode='check', sleep=4)
            if i >= rc:
                for _ in range(-(-n1 // (8 - rc))):
                    if VM:
                        p.extend(VM.pop(0))
            p.extend(fin(i))
            if i >= 1:
                p.append(mf32(AH, a_(4 * (i - 1), 4), v(48 + 4 * (i - 1), 4)))
            p(f"ds_write_b128 v{OAD}, {v(48+4*i,4)} offset:{i*1024}")
        assert not VM
        self.stamp("B_st1")
        p("WAITALL lgkm\ns_barrier")

        def oread(i):
            return [Inst(f"ds_read_b128 {v(80+4*(i&7),4)}, v{OAD+(i>>3)} offset:{(i&7)*1024}")]
        for i in range(8, 13):
            p.extend(oread(i))
        p.append(mf32(AH, a_(28, 4), v(48 + 28, 4)))
        G = []
        for i in range(8, 32):
            g = [mf32(AH, a_(4 * i, 4), v(80 + 4 * (i & 7), 4))]
            if i + 5 < 32:
                g += oread(i + 5)
            G.append(g)
        if rl >= 8:
            G[rl - 8] += [Inst(f"buffer_load_dword v5, {P256}, {WS}, {bRP} offen sc1")]
        if rc >= 8:
            G[rc - 8] += self.sub(lambda: self.spin("v5", P256, bRP, "0xffff", "16", mode='check', sleep=2))
        G = weave(G, TQ[n1:n1 + n2], max(0, rc - 7), 24)
        p.extend(flat(G))
        for k in range(8):
            p(f"v_cvt_pk_bf16_f32 v{48+k}, v{AH+2*k}, v{AH+2*k+1}")
            if k == 3:
                p(f"buffer_store_dwordx4 v[48:51], {L16}, {WS}, {sHST} offen sc1", tag="pub2")
        p(f"buffer_store_dwordx4 v[52:55], {L16}, {WS}, {sHST} offen offset:1024 sc1", tag="pub2")
        p(f"v_add_f32 v56, v{AH}, v{AH+1}\nv_mul_f32 v57, v{AH}, v{AH}\nv_add_f32 v58, v{AH+2}, v{AH+3}\nv_mul_f32 v59, v{AH+1}, v{AH+1}")
        for k in range(2, 16):
            if k >= 4:
                p(f"v_add_f32 v{56+2*(k&1)}, v{56+2*(k&1)}, v{AH+k}")
            p(f"v_fmac_f32 v{57+2*(k&1)}, v{AH+k}, v{AH+k}")
        p("""v_add_f32 v56, v56, v58
             v_add_f32 v57, v57, v59
             v_permlane32_swap_b32 v56, v57
             v_add_f32 v56, v56, v57""")
        p(f"buffer_atomic_add_f32 v56, {L4}, {WS}, {sSTA} offen", tag="pub2")
        self.stamp("B_hst")
        p.extend(flat(TQ[n1 + n2:n1 + n2 + n3]))
        p(f"WAITTAG pub2\nbuffer_store_dword v4, {FA1}, {WS}, {sD} offen offset:512 sc1\ns_barrier")
        self.t1_late = n1 + n2 < 16
        self.stamp("B_sig")
        self.tq_rest = TQ[n1 + n2 + n3:]

    def miscC(self):
        M = Seq()
        M(f"""s_lshl_b32 {sT1}, {sG}, 2
             s_add_u32 {sT2}, {sT1}, {sW}
             s_lshl_b32 {cHB}, {sT2}, 16
             s_add_u32 {cHB}, {cHB}, {hex(HB)}
             s_xor_b32 {cHB}, {cHB}, {sPE}
             s_lshl_b32 {cST}, {sT2}, 8
             s_add_u32 {cST}, {cST}, {hex(ST)}
             s_sub_u32 {cHS}, {cHS2}, 4096
             s_lshl_b32 {sT3}, {sM}, 14
             s_sub_u32 {cPL}, {cHS2}, {sT3}
             s_add_u32 {cPL}, {cPL}, {3072+512}
             v_lshlrev_b32 {HPA}, 14, v1
             v_and_b32 {PA2}, 12, {L4}
             v_or_b32 {PA2}, {PA2}, {LM8}
             v_bfe_u32 v44, v1, 2, 1
             v_lshl_add_u32 {PA2}, v44, 18, {PA2}
             s_mul_i32 {cCS}, {sM}, {7*128}
             s_add_u32 {cCS}, {cCS}, {hex(CS)}
             s_and_b32 {sCB}, {sM}, 7
             s_mul_i32 {cW2}, {sCB}, {112*2048}
             s_mul_i32 {sT3}, {sW}, {28*2048}
             s_add_u32 {cW2}, {cW2}, {sT3}
             s_add_u32 {cW2}, {cW2}, {hex(W2R)}
             s_and_b32 {sT3}, {sW}, 1
             s_lshl_b32 {sT2}, {sT3}, 10
             v_add_u32 {W2A}, {sT2}, {L16}
             v_xor_b32 {W2B}, 1024, {W2A}
             v_add_u32 {LB1}, 0x10000, {L16}
             v_add_u32 {LB2}, 0x20000, {L16}
             s_add_u32 {sT2}, {bTL}, 0x10000
             v_add_u32 {WLA}, {sT2}, {W2A}
             v_add_u32 {WLB}, {sT2}, {W2B}
             v_add_u32 {WLC}, 0x10000, {WLA}
             v_add_u32 {WLD}, 0x10000, {WLB}
             v_and_b32 {CSL}, 0x7c, {L4}
             s_lshr_b32 {sT2}, {sM}, 3
             s_lshl_b32 {sT2}, {sT2}, 1
             s_add_u32 {sT1}, {sT1}, {sT2}
             s_lshl_b32 {cHL}, {sT1}, 18
             s_lshl_b32 {sT2}, {sW}, 16
             s_add_u32 {cHL}, {cHL}, {sT2}
             s_add_u32 {cHL}, {cHL}, {hex(HH)}
             s_xor_b32 {cHL}, {cHL}, {sP2}
             s_lshr_b32 {sT2}, {sW}, 1
             s_add_u32 {sT1}, {sT1}, {sT2}
             s_lshl_b32 {sT2}, {sT2}, 18
             v_add_u32 {HHA}, {sT2}, {L16}
             v_xor_b32 {HHB}, 0x40000, {HHA}
             s_lshl_b32 {sT1}, {sT1}, 15
             s_lshl_b32 {sT2}, {sCB}, 1
             s_add_u32 {sT2}, {sT2}, {sT3}
             s_lshl_b32 {cOUT}, {sT2}, 6
             s_add_u32 {cOUT}, {cOUT}, {sT1}
             s_lshr_b32 {cHR}, {sT2}, 2
             s_lshl_b32 {cHR}, {cHR}, 13
             s_add_u32 {cHR}, {cHR}, {sT1}
             s_and_b32 {sT2}, {sT2}, 3
             s_lshl_b32 {sT2}, {sT2}, 10
             s_add_u32 {cHR}, {cHR}, {sT2}
             s_lshl_b32 {cHR}, {cHR}, 1
             s_add_u32 {cHR}, {cHR}, {hex(HB)}
             s_xor_b32 {cHR}, {cHR}, {sPE}
             s_add_u32 {cPP}, {cHL}, 7168
             s_add_u32 {cPQ}, {cPP}, 0x40000
             s_and_b32 {sT3}, {sM}, 3
             s_mul_i32 {sT3}, {sT3}, {16384-4}
             s_sub_u32 {cPS}, {cHS2}, {sT3}""")
        return list(M)

    def phaseCD(self):
        p = self.p
        o = self.o
        sub = self.sub
        bar = lambda s_: list(Seq()(s_))
        steps, w2o, hho = self.steps, self.w2o, self.hho

        def dmaW2(part):
            g = []
            for k in range(4):
                S = Seq()
                S(f"s_add_u32 m0, {bTL}, {(2+part)*32768+k*2048}\ns_add_u32 {sT0}, {cW2}, {w2o[16+4*part+k]}")
                S(f"buffer_load_dwordx4 {L16}, {WS}, {sT0} offen sc1 lds", tag=f"W2L{part}")
                g.append(list(S))
                g.append([Inst(f"buffer_load_dwordx4 {L16}, {WS}, {sT0} offen offset:1024 sc1 lds", tag=f"W2L{part}")])
                ctx(g[-2:])
            return g

        def pub(tag, st):
            if o.get('nopub'):
                return []
            return bar(f"WAITTAG {tag}\nbuffer_store_dword v4, {FA1}, {WS}, {cPS} offen offset:{3072+128*st} sc1")

        vp = str(o.get('vp', 'x0123'))

        def pollld(st):
            if o.get('nopoll'):
                return []
            if str(st) in vp:
                return bar(f"buffer_load_dword v5, {PA2}, {WS}, {cPP} offen sc1")
            return list(Seq()(f"""s_buffer_load_dwordx4 s[8:11], {WS}, {cPP} glc
                 s_buffer_load_dwordx4 s[12:15], {WS}, {cPQ} glc""", cond=True))

        def pollchk(st):
            if o.get('nopoll'):
                return []
            if str(st) in vp:
                return sub(lambda: self.spin("v5", PA2, cPP, "0xff", "1", mode='check', sleep=o.get('sleep2', 2))) + \
                    bar(f"s_add_u32 {cPP}, {cPP}, 128\ns_add_u32 {cPQ}, {cPQ}, 128")
            red = """s_and_b64 s[8:9], s[8:9], s[10:11]
                 s_and_b64 s[12:13], s[12:13], s[14:15]
                 s_and_b64 s[8:9], s[8:9], s[12:13]
                 s_and_b32 s8, s8, s9"""

            def f():
                Lp = self.lab("sp")
                if o.get('stamps') == 3:
                    self.p(f"s_mov_b32 {sT5}, 0")
                self.p("WAITALL lgkm\n" + red)
                self.ool("s_cbranch_scc0", f"""s_mov_b32 {sT5}, 0
                     {Lp}:
                     s_sleep {o.get('sleep2', 2)}
                     s_buffer_load_dwordx4 s[8:11], {WS}, {cPP} glc
                     s_buffer_load_dwordx4 s[12:15], {WS}, {cPQ} glc
                     s_add_u32 {sT5}, {sT5}, 1
                     s_waitcnt lgkmcnt(0)
                     {red}
                     s_lshr_b32 s9, {sT5}, 15
                     s_or_b32 s8, s8, s9
                     s_cbranch_scc0 {Lp}""")
                self.p(f"s_add_u32 {cPP}, {cPP}, 128\ns_add_u32 {cPQ}, {cPQ}, 128")
                if o.get('stamps') == 3:
                    self.p(f"v_writelane_b32 v{STV}, {sT5}, {self.nstamp}")
                    self.nstamp += 1
                    self.stamp_names.append(f"P{st}")
            return sub(f)

        kt = max(0, len(self.tq_rest) - 32)
        FQ = self.tq_rest[:kt] + self.dmaT(4, 4) + self.tq_rest[kt:]
        npre = o.get('tq4', 12)
        p.extend(flat(FQ[:npre]))
        FQ = FQ[npre:]
        self.stamp("C_prepoll")
        self.spin("v5", HPA, cPL, "0xffff", "1", mode='all', sleep=o.get('sleep3', 0))
        self.stamp("C_sync2")

        def hload(s):
            S = Seq()
            if s % 4 == 0 and s:
                S(f"s_add_u32 {cHB}, {cHB}, {4096 if s % 8 else 12288}")
            S(f"buffer_load_dwordx4 {a_(4*s,4)}, {L16}, {WS}, {cHB} offen offset:{(s&3)*1024} sc1")
            return list(S)
        HL = o.get('hla', 9)
        for s in range(HL):
            p.extend(hload(s))
        if self.t1_late:
            p("WAITTAG T1\ns_barrier")
        ACC = [48, 64, 80, 96, 112]
        acc_of = [0, 1, 2, 3, 0, 1, 2]
        slot_of = [0, 1, 2, 3, 4, 0, 1]
        WR, NR = 128, 8
        CSR, CSF, MEANF, C1, C2 = 160, 168, 176, 180, 181
        T = 184
        LK = o.get('lk', 5)
        F0 = Seq()
        F0(f"buffer_load_dword v{T}, {L4}, {WS}, {cST} offen sc1")
        for t in range(7):
            F0(f"buffer_load_dword v{CSR+t}, {CSL}, {WS}, {cCS} offen offset:{t*128} sc1")
        F1 = Seq()
        for k in (1, 2, 3, 5, 6, 7):
            F1(f"v_mov_b32 v{CSF+k}, 0")
        for k in (1, 2, 3):
            F1(f"v_mov_b32 v{MEANF+k}, 0")
        F1(f"""v_mov_b32 v{T+1}, v{T}
             v_permlane32_swap_b32 v{T}, v{T+1}
             v_mul_f32 v{T}, 0x3b000000, v{T}
             v_mul_f32 v{T+1}, 0x3b000000, v{T+1}
             v_cvt_pk_bf16_f32 v{MEANF}, -v{T}, -v{T}
             v_fma_f32 v{T+1}, -v{T}, v{T}, v{T+1}
             v_cndmask_b32 v{MEANF}, v{MEANF}, 0, {sHILANES}
             v_max_f32 v{T+1}, 0, v{T+1}
             v_add_f32 v{C2}, 0x3727c5ac, v{T+1}
             v_rsq_f32 v{C1}, v{C2}""")
        for t in range(7):
            F1.extend(split2(CSR + t, CSR + t, T + 2))
        F1(f"v_mul_f32 v{C1}, 0xbfb8aa3b, v{C1}")
        F1(f"v_mov_b32 v{CSF}, v{CSR}\nv_mov_b32 v{CSF+4}, v{CSR+1}")

        def tread(t, s, n):
            sl = slot_of[t]
            base = (L16, L16, LB1, LB1, LB2)[sl]
            return [Inst(f"ds_read_b128 {v(WR+4*(n%NR),4)}, {base} offset:{(sl&1)*32768*(sl<4)+s*1024}")]

        def corr(t):
            return mf32(ACC[acc_of[t]], v(CSF + 4 * (t & 1), 4), v(MEANF, 4))
        G = []
        for n in range(64):
            s, t = divmod(n, 2)
            g = [mf32(ACC[t], v(WR + 4 * (n % NR), 4), a_(4 * s, 4), "0" if s == 0 else None)]
            if n + LK < 64:
                g += tread((n + LK) % 2, (n + LK) // 2, n + LK)
            else:
                if n + LK == 64:
                    g += bar("WAITTAG T2\ns_barrier")
                g += tread(2, n + LK - 64, n + LK)
            if t == 0 and s + HL < 32:
                g += hload(s + HL)
            G.append(g)
        G.append([corr(0)])
        G.append([corr(1)])
        for n in range(LK):
            p.extend(tread(n % 2, n // 2, n))
        G = weave(G, list(F0), 8, 26)
        G = weave(G, list(F1), 44, 62)
        e0 = 2 * (32 - HL)
        ng = min(len(FQ), o.get('g1q', 8))
        G = weave(G, FQ[:ng], e0, 66)
        FQ = FQ[ng:]
        p.extend(flat(G))
        self.stamp("C_g1")

        def epi(t, tmp):
            A = ACC[acc_of[t]]
            S = Seq()
            for j in range(8):
                S(f"v_mul_f32 v{tmp+j}, v{A+j}, v{C1}")
            for j in range(8):
                S(f"v_exp_f32 v{tmp+j}, v{tmp+j}")
                S(f"v_mul_f32 v{A+j}, v{A+j}, v{A+8+j}")
            for j in range(8):
                S(f"v_fma_f32 v{tmp+j}, v{tmp+j}, v{C2}, v{C2}")
                if j >= 2:
                    S(f"v_rcp_f32 v{tmp+j-2}, v{tmp+j-2}")
            for j in range(8):
                S(f"v_mul_f32 v{A+j}, v{A+j}, v{tmp+j}")
                if j < 2:
                    S(f"v_rcp_f32 v{tmp+6+j}, v{tmp+6+j}")
            for j in range(4):
                S(f"v_cvt_pk_bf16_f32 v{tmp+8+j}, v{A+2*j}, v{A+2*j+1}")
            S(f"buffer_store_dwordx4 {v(tmp+8,4)}, {L16}, {WS}, {cHS if t < 4 else cHS2} offen offset:{(t&3)*1024} sc1", tag=f"hh{t}")
            return list(S)

        def tilepass(t, n0):
            G = []
            for s in range(32):
                n = n0 + s
                g = [mf32(ACC[acc_of[t]], v(WR + 4 * (n % NR), 4), a_(4 * s, 4), "0" if s == 0 else None)]
                if s + LK < 32:
                    g += tread(t, s + LK, n + LK)
                elif t < 6:
                    if s + LK == 32:
                        g += bar(f"WAITTAG T{t+1}\ns_barrier")
                    g += tread(t + 1, s + LK - 32, n + LK)
                if s == 16:
                    g += bar(f"v_mov_b32 v{CSF+4*(t&1)}, v{CSR+t}")
                G.append(g)
            G.append([corr(t)])
            return G

        def hhload(i):
            S = Seq()
            S(f"s_add_u32 {sCc}, {cHL}, {hho[i]}")
            S(f"buffer_load_dwordx4 {a_(8*(i&15),4)}, {HHA}, {WS}, {sCc} offen sc1")
            return ctx([list(S), [Inst(f"buffer_load_dwordx4 {a_(8*(i&15)+4,4)}, {HHB}, {WS}, {sCc} offen sc1")]])

        EP = [epi(t, T + 12 * (t & 1)) for t in range(7)]
        P = {t: tilepass(t, 32 * t) for t in range(2, 7)}
        q = o.get('cq', 15)
        LA = o.get('dla', 7)
        G = weave(P[2], FQ[:q], 0, 32)
        FQ = self.dmaT(5, 0) + FQ[q:]
        FQ = FQ[:q] + self.dmaT(6, 1) + FQ[q:] + dmaW2(0) + dmaW2(1) + dmaW2(2)
        G = weave(G, EP[0] + EP[1][:26], 2, 33)
        p.extend(self.xf(flat(G)))
        self.stamp("C_t2")
        q3 = min(q, len(FQ) - 24)
        G = weave(P[3], FQ[:q3], 0, 32)
        FQ = FQ[q3:]
        G = weave(G, EP[1][26:] + EP[2], 0, 33)
        p.extend(self.xf(flat(G)))
        self.stamp("C_t3")
        q4 = min(q, len(FQ) - 16)
        G = weave(P[4], FQ[:q4], 0, 32)
        FQ = FQ[q4:]
        G = weave(G, EP[3], 2, 18)
        G[o.get('p1at', 26)] += pub("hh2", 0)
        p.extend(self.xf(flat(G)))
        self.stamp("C_t4")
        q5 = min(q, len(FQ) - 8)
        G = weave(P[5], FQ[:q5], 0, 32)
        FQ = FQ[q5:]
        G[o.get('l1', 14)] += pollld(0)
        G = weave(G, EP[4], 2, 18)
        p.extend(self.xf(flat(G)))
        self.stamp("C_t5")
        G = P[6]
        G[1] += pollchk(0)
        hq = [x for i in range(LA) for x in hhload(i)]
        G = weave(G, hq, 2, 33)
        G = weave(G, EP[5], 2, 18)
        G[o.get('p2at', 12)] += pub("hh4", 1)
        p.extend(self.xf(flat(G)))
        self.stamp("C_t6")

        DA = [48, 64, 96, 112]

        def w2r(i, a):
            return (128, 168, 128)[(i - 16) // 4] + 8 * (i % 4) + 4 * a

        def w2read(part):
            r = [bar(f"WAITTAG W2L{part}")]
            for k in range(4):
                for a in range(2):
                    ad = ((WLA, WLB), (WLA, WLB), (WLC, WLD))[part][a]
                    r.append([Inst(f"ds_read_b128 {v(w2r(16+4*part+k, a), 4)}, {ad} offset:{(part&1)*32768+k*2048}")])
            return r

        def w2f(i, a):
            return a_(128 + 8 * i + 4 * a, 4) if i < 16 else v(w2r(i, a), 4)
        G = []
        for i in range(28):
            for k, (a, b) in enumerate([(1, 0), (1, 1), (0, 1), (0, 0)]):
                G.append([mf32(DA[a + 2 * b], w2f(i, a), a_(8 * (i & 15) + 4 * b, 4), "0" if i == 0 else None)])
        c2, c3, c4 = o.get('c2', 22), o.get('c3', 54), o.get('c4', 78)
        l2, l3, l4 = o.get('l2', 6), o.get('l3', 37), o.get('l4', 64)
        G[l2] += pollld(1)
        G = weave(G, EP[6], 1, 11)
        G[o.get('p3at', 12)] += pub("hh5", 2)
        G[l3] += pollld(2)
        G[o.get('p4at', 38)] += pub("hh6", 3)
        G[40] += bar("s_barrier")
        hs = lambda a, b: [x for i in range(a, b) for x in hhload(i)]
        G = weave(G, hs(LA, 12), 0, c2)
        G[c2] += pollchk(1)
        nf = len(FQ) - 8
        G = weave(G, hs(12, 16) + FQ[:nf] + hs(16, 20), c2 + 1, c3)
        G[c3] += pollchk(2)
        G = weave(G, hs(20, 24), c3 + 1, l4)
        G[l4] += bar("WAITALL lgkm") + pollld(3)
        G = weave(G, FQ[nf:] + [bar(f"buffer_load_dwordx4 v[160:163], {L16}, {WS}, {cHR} offen sc1"),
                                bar(f"buffer_load_dwordx4 v[164:167], {L16}, {WS}, {cHR} offen offset:1024 sc1")], l4 + 1, c4)
        G[c4] += pollchk(3)
        G = weave(G, w2read(0), c2 + 1, c2 + 10)
        G = weave(G, w2read(1), c3 + 1, min(c3 + 8, l4))
        G = weave(G, w2read(2), max(c4 + 1, 82), 92)
        G = weave(G, hs(24, 28), c4 + 1, c4 + 9)
        S = Seq()
        for k in range(4):
            S(f"""s_xor_b32 {sT0}, {sW}, {k}
                 s_mul_i32 {sT0}, {sT0}, 12288
                 v_add_u32 v{36+k}, {sT0}, {L16}""")
        for i in range(8):
            S(f"""v_lshlrev_b32 v{80+2*i}, 16, v{160+i}
                 v_and_b32 v{81+2*i}, {sMSKHI}, v{160+i}""")
        G = weave(G, list(S), 96, 110)
        for k in sorted(set(list(range(8, 112, 8)) + [c2 - 1, c2, c3 - 1, c3, c4 - 1, c4])):
            G[k] += sub(lambda: self.stamp(f"d{k}"))
        p.extend(self.xf(flat(G)))
        self.stamp("D_loop")
        for k in (1, 3, 2):
            for q_ in range(4):
                p(f"ds_write_b128 v{36+k}, {v(DA[k]+4*q_,4)} offset:{(k-1)*4096+q_*1024}")
        for i in range(16):
            p(f"v_add_f32 v{48+i}, v{48+i}, v{80+i}")
        p("WAITALL lgkm\ns_barrier")
        for q_ in range(4):
            for k in range(3):
                p(f"ds_read_b128 {v(160+16*k+4*q_,4)}, v36 offset:{k*4096+q_*1024}")
        for q_ in range(4):
            for j in range(4):
                r = 4 * q_ + j
                p(f"v_add_f32 v{48+r}, v{48+r}, v{160+r}")
                p(f"v_add_f32 v{176+r}, v{176+r}, v{192+r}")
            for j in range(4):
                r = 4 * q_ + j
                p(f"v_add_f32 v{48+r}, v{48+r}, v{176+r}")
            for j in range(2):
                p(f"v_cvt_pk_bf16_f32 v{112+2*q_+j}, v{48+4*q_+2*j}, v{48+4*q_+2*j+1}")
            if q_ & 1:
                p(f"buffer_store_dwordx4 {v(112+4*(q_>>1),4)}, {ROWA}, {OUT}, {cOUT} offen offset:{32*(q_>>1)}" + ["", " sc1", " nt", " sc0 sc1"][o.get('outst', 0)])
        self.stamp("D_end")

    def finish(self):
        p = self.p
        if self.o.get('stamps'):
            p("WAITALL vm")
            self.stamp("D_drained")
            p(f"""s_lshl_b32 {sT0}, s2, 2
                 s_add_u32 {sT0}, {sT0}, {sW}
                 s_lshl_b32 {sT0}, {sT0}, 7
                 s_add_u32 {sT0}, {sT0}, {hex(STAMP)}
                 s_mov_b32 exec_hi, 0
                 buffer_store_dword v{STV}, {L4}, {WS}, {sT0} offen""")
        if self.o.get('padto'):
            p("WAITALL vm")
            p("L_pad:\ns_memrealtime s[72:73]\ns_waitcnt lgkmcnt(0)\ns_sub_u32 s72, s72, s100")
            p(f"s_cmp_lt_u32 s72, {self.o['padto']}\ns_cbranch_scc1 L_pad")
        p("L_end:\ns_endpgm")

    def build(self):
        if self.o.get('stamps') or self.o.get('padto'):
            self.p("s_memtime s[100:101]" if self.o.get('stamps') == 2 else "s_memrealtime s[100:101]")
        self.setup()
        if self.o.get('stamps'):
            self.p(f"v_mov_b32 v{STV}, s100")
            self.nstamp = 1
            self.stamp_names.append("start")
        self.p.extend(self.xf(self.sub(self.phaseA), 'xa'))
        self.p.extend(self.xf(self.sub(self.phaseB), 'xb'))
        self.phaseCD()
        self.finish()
        return finalize(self.p, self.o.get('fill', 1))


def emit(opt):
    g = Gen(opt)
    prog = g.build()
    hdr = open(os.path.join(os.path.dirname(os.path.abspath(__file__)), "header.txt")).read()
    body = "\n".join(("" if i.kind == 'label' else "    ") + i.text for i in prog)
    txt = hdr + f"""; @launch grid=(256,1,1) block=(256,1,1) lds=163840
.amdgcn_target "amdgcn-amd-amdhsa--gfx950"
.set CODE_PF_MAX, {opt.get('code_bytes', 0)}
.text
.globl {NAME}_kernel
.p2align 8
.type {NAME}_kernel,@function
{NAME}_kernel:
{body}
.section .rodata,"a"
.p2align 6
.amdhsa_kernel {NAME}_kernel
  .amdhsa_next_free_vgpr 512
  .amdhsa_next_free_sgpr 102
  .amdhsa_accum_offset 256
  .amdhsa_group_segment_fixed_size 0
  .amdhsa_kernarg_size 80
  .amdhsa_user_sgpr_count 2
  .amdhsa_user_sgpr_kernarg_segment_ptr 1
  .amdhsa_system_sgpr_workgroup_id_x 1
.end_amdhsa_kernel
"""
    return txt, g.stamp_names


def code_size(txt):
    import subprocess, tempfile
    with tempfile.TemporaryDirectory() as d:
        open(d + "/k.s", "w").write(txt)
        r = subprocess.run(["clang", "-x", "assembler", "-target", "amdgcn-amd-amdhsa",
                            "-mcpu=gfx950", "-c", d + "/k.s", "-o", d + "/k.o"], capture_output=True, text=True)
        if r.returncode:
            print("\n".join(r.stderr.split("\n")[:30]))
            raise SystemExit(1)
        r = subprocess.run(["llvm-objdump", "-h", d + "/k.o"], capture_output=True, text=True)
        for line in r.stdout.split("\n"):
            f = line.split()
            if len(f) > 2 and f[1] == ".text":
                return int(f[2], 16)


def main():
    opt = {}
    out = None
    for a in sys.argv[1:]:
        if '=' in a:
            k, val = a.split('=')
            try:
                opt[k] = int(val, 0)
            except ValueError:
                opt[k] = val
        else:
            out = a
    opt['code_bytes'] = 4096
    txt, names = emit(opt)
    sz = code_size(txt)
    opt['code_bytes'] = (sz - 1024) & ~3
    txt, names = emit(opt)
    open(out, "w").write(txt)
    if names:
        open(out + ".names", "w").write(" ".join(names))
    print(out, "code bytes", sz, "lines", txt.count("\n"), "stamps", len(names))


if __name__ == "__main__":
    main()
```

```python
import re

REG_RE = re.compile(r'(?<![\w.])([vas])\[(\d+):(\d+)\]|(?<![\w.])([vas])(\d+)(?![\w\[])|\b(vcc|exec|m0)\b')
TRANS = ('v_exp_f32', 'v_log_f32', 'v_rcp_f32', 'v_rsq_f32', 'v_sqrt_f32', 'v_sin_f32', 'v_cos_f32')


def regs_of(s):
    out = []
    for m in REG_RE.finditer(s):
        if m.group(1):
            out += [f"{m.group(1)}{i}" for i in range(int(m.group(2)), int(m.group(3)) + 1)]
        elif m.group(4):
            out.append(f"{m.group(4)}{m.group(5)}")
        else:
            out.append(m.group(6))
    return out


class Inst:
    __slots__ = ('text', 'op', 'kind', 'rd', 'wr', 'passes', 'tag', 'cond', 'srcc', 'srcab', 'wide', 'arg', 'ctx', 'ool')

    def __init__(self, text, tag=None, cond=False):
        self.text = text
        self.tag = tag
        self.cond = cond
        self.passes = 0
        self.srcc = set()
        self.srcab = set()
        self.wide = False
        self.arg = None
        self.ctx = None
        self.ool = None
        self.rd = set()
        self.wr = set()
        t = text.split(';')[0].strip()
        if t.endswith(':'):
            self.op = 'label'
            self.kind = 'label'
            return
        sp = t.split(None, 1)
        op = sp[0]
        self.op = op
        rest = sp[1] if len(sp) > 1 else ''
        ops = [o.strip() for o in rest.split(',')] if rest else []
        R = [regs_of(o) for o in ops]
        allr = [r for x in R for r in x]
        if op.startswith('v_mfma'):
            self.kind = 'mfma'
            self.wr = set(R[0])
            self.srcab = set(R[1]) | set(R[2])
            self.srcc = set(R[3])
            self.rd = self.srcab | self.srcc
            self.passes = 8 if '32x32x16' in op else 4 if '16x16x32' in op else 2 if '4x4x4' in op else None
            assert self.passes, op
        elif op.startswith('v_'):
            self.kind = 'trans' if op.replace('_e64', '').replace('_e32', '') in TRANS else 'valu'
            self.wr = set(R[0])
            self.rd = set(r for x in R[1:] for r in x)
            if 'swap' in op:
                self.wr = set(allr)
                self.rd = set(allr)
            if op.startswith(('v_fmac', 'v_dot2c', 'v_writelane')) or 'dpp' in text or 'row_' in text or 'quad_perm' in text:
                self.rd |= set(R[0])
            if '_co_' in op:
                self.wr |= set(R[1])
                self.rd = set(r for x in R[2:] for r in x)
        elif op.startswith(('buffer_load', 'global_load')):
            if re.search(r'\blds\b', rest) or '_lds_' in op:
                self.kind = 'dma'
                self.rd = set(allr) | {'m0'}
            else:
                self.kind = 'vload'
                self.wr = set(R[0])
                self.rd = set(r for x in R[1:] for r in x)
        elif op.startswith(('buffer_store', 'global_store', 'buffer_atomic', 'global_atomic')):
            self.kind = 'vstore'
            self.rd = set(allr)
            self.wide = op.endswith(('x3', 'x4'))
            if self.wide:
                self.arg = set(R[0]) if op.startswith('buffer') else set(R[1])
            if 'atomic' in op and re.search(r'\bsc0\b', rest):
                self.wr = set(R[0])
        elif op.startswith('ds_read') or op.startswith('ds_bperm') or op.startswith('ds_swizzle'):
            self.kind = 'dsr'
            self.wr = set(R[0])
            self.rd = set(r for x in R[1:] for r in x)
        elif op.startswith(('ds_write', 'ds_add')):
            self.kind = 'dsw'
            self.rd = set(allr)
        elif op.startswith(('s_load', 's_buffer_load', 's_memtime', 's_memrealtime')):
            self.kind = 'smem'
            self.wr = set(R[0])
            self.rd = set(r for x in R[1:] for r in x)
        elif op == 's_waitcnt':
            self.kind = 'wait'
        elif op == 's_nop':
            self.kind = 'nop'
            self.arg = int(rest, 0)
        elif op in ('s_barrier', 's_sleep', 's_endpgm', 's_setprio'):
            self.kind = 'misc'
        elif op.startswith(('s_branch', 's_cbranch')):
            self.kind = 'branch'
            if 'vcc' in op:
                self.rd = {'vcc'}
        elif op.startswith('s_cmp') or op.startswith('s_bitcmp'):
            self.kind = 'salu'
            self.rd = set(allr)
        elif op.startswith('s_'):
            self.kind = 'salu'
            self.wr = set(R[0])
            self.rd = set(r for x in R[1:] for r in x)
            if 'saveexec' in op:
                self.wr.add('exec')
        elif op == 'WAITTAG':
            self.kind = 'waittag'
            self.arg = rest.split()
        elif op == 'WAITALL':
            self.kind = 'waitall'
            self.arg = rest.strip()
        elif op.startswith('.'):
            self.kind = 'label'
        else:
            raise ValueError(text)


class Seq(list):
    def __call__(self, text, tag=None, cond=False):
        for line in text.strip().split('\n'):
            line = line.strip()
            if line and not line.startswith(';'):
                self.append(Inst(line, tag, cond))
        return self


def insert_waits(prog):
    out = []
    vm = []
    lg = []
    smem_out = False

    def emit(nv, nl):
        parts = []
        if nv is not None:
            parts.append(f"vmcnt({min(nv, 63)})")
        if nl is not None:
            parts.append(f"lgkmcnt({min(nl, 15)})")
        out.append(Inst("s_waitcnt " + " ".join(parts)))

    for idx, ins in enumerate(prog):
        if ins.cond:
            touch = ins.rd | ins.wr
            for q in (vm, lg):
                for e in q:
                    assert not (e[0] & touch), f"cond inst touches pending reg: {ins.text}"
            out.append(ins)
            continue
        nv = nl = None
        if ins.kind == 'waittag':
            for name in ins.arg:
                for i in range(len(vm) - 1, -1, -1):
                    if vm[i][1] == name:
                        n = len(vm) - 1 - i
                        nv = n if nv is None else min(nv, n)
                        break
                for i in range(len(lg) - 1, -1, -1):
                    if lg[i][1] == name:
                        n = len(lg) - 1 - i
                        nl = n if nl is None else min(nl, n)
                        break
        elif ins.kind == 'waitall':
            if 'vm' in ins.arg:
                nv = 0
            if 'lgkm' in ins.arg:
                nl = 0
        elif ins.kind == 'wait':
            m = re.search(r'vmcnt\((\d+)\)', ins.text)
            if m:
                n = int(m.group(1))
                vm = vm[len(vm) - n:] if n < len(vm) else vm
            m = re.search(r'lgkmcnt\((\d+)\)', ins.text)
            if m:
                n = int(m.group(1))
                if n == 0:
                    lg = []
                    smem_out = False
                elif not smem_out:
                    lg = lg[len(lg) - n:] if n < len(lg) else lg
            out.append(ins)
            continue
        else:
            touch = ins.rd | ins.wr
            for i in range(len(vm) - 1, -1, -1):
                if vm[i][0] & touch:
                    nv = len(vm) - 1 - i
                    break
            for i in range(len(lg) - 1, -1, -1):
                if lg[i][0] & touch:
                    nl = len(lg) - 1 - i
                    break
            if nl is not None and ins.kind == 'mfma' and nl >= 3:
                seen = 0
                for j in range(idx + 1, min(idx + 16, len(prog))):
                    nx = prog[j]
                    if nx.kind == 'mfma':
                        seen += 1
                        n2 = None
                        for i in range(len(lg) - 1, -1, -1):
                            if lg[i][0] & nx.rd:
                                n2 = len(lg) - 1 - i
                                break
                        if n2 is not None and n2 < nl:
                            if n2 >= nl - 2 and 3 * n2 >= 2 * nl:
                                nl = n2
                            break
                        if seen >= 2:
                            break
        if nl is not None and smem_out:
            nl = 0
        if nv is not None or nl is not None:
            emit(nv, nl)
            if nv is not None:
                vm = vm[len(vm) - nv:] if nv else []
            if nl is not None:
                lg = lg[len(lg) - nl:] if nl else []
                if nl == 0:
                    smem_out = False
        if ins.kind in ('waittag', 'waitall'):
            continue
        if ins.kind in ('vload', 'vstore', 'dma'):
            if len(vm) >= 62:
                emit(61, None)
                vm = vm[len(vm) - 61:]
            vm.append((set(ins.wr), ins.tag))
        elif ins.kind in ('dsr', 'dsw'):
            if len(lg) >= 15:
                n = 0 if smem_out else 14
                emit(None, n)
                lg = lg[len(lg) - n:] if n else []
                smem_out = smem_out and n != 0
            lg.append((set(ins.wr), ins.tag))
        elif ins.kind == 'smem':
            lg.append((set(ins.wr), ins.tag))
            smem_out = True
        out.append(ins)
    return out


MF_VALU = {2: 5, 4: 8, 8: 12}
MF_OVL = {2: 4, 4: 6, 8: 10}
MF_WAR = {2: 1, 4: 3, 8: 7}


def need(p, c):
    n = 0
    isv = lambda r: r[0] in 'va' and r != 'vcc'
    pv = p.kind in ('valu', 'trans')
    cv = c.kind in ('valu', 'trans')
    cmem = c.kind in ('vload', 'vstore', 'dma', 'dsr', 'dsw')
    if pv:
        wv = {r for r in p.wr if isv(r)}
        ws = p.wr - wv
        if c.kind == 'mfma' and wv & c.rd:
            n = max(n, 2)
        if cv:
            if p.kind == 'trans' and wv & c.rd:
                n = max(n, 1)
            if 'permlane' in c.op and wv & c.rd:
                n = max(n, 2)
            if ('row_' in c.text or 'quad_perm' in c.text or 'dpp' in c.text) and wv & c.rd:
                n = max(n, 2)
            if c.op.startswith(('v_readfirstlane', 'v_readlane')) and wv & c.rd:
                n = max(n, 1)
            if ws & c.rd:
                n = max(n, 4 if c.op.startswith(('v_readlane', 'v_writelane')) else 2)
        if p.kind == 'trans' and cmem and wv & c.rd:
            n = max(n, 1)
        if c.kind in ('vload', 'vstore', 'dma') and ws & c.rd:
            n = max(n, 5)
        if c.kind in ('salu', 'smem') and ws & c.rd:
            n = max(n, 1)
        if c.kind == 'branch' and ws & c.rd:
            n = max(n, 5)
    if p.kind == 'mfma':
        if (cv or cmem) and p.wr & (c.rd | c.wr):
            n = max(n, MF_VALU[p.passes])
        if c.kind == 'mfma':
            if p.wr & c.srcab:
                n = max(n, MF_VALU[p.passes])
            if p.wr & c.srcc:
                if p.wr == c.srcc and p.passes == c.passes:
                    n = max(n, 2 if p.passes == 2 else 0)
                else:
                    n = max(n, MF_OVL[p.passes])
            elif p.wr & c.wr:
                n = max(n, MF_OVL[p.passes])
        if cv and p.srcc & c.wr:
            n = max(n, MF_WAR[p.passes])
    if p.kind == 'salu' and 'm0' in p.wr and c.kind == 'dma':
        n = max(n, 1)
    if p.kind == 'vstore' and p.wide and p.arg & c.wr:
        n = max(n, 2)
    return n


def insert_nops(prog):
    out = []
    hist = []
    pos = 0
    nnops = 0
    for ins in prog:
        if ins.kind == 'label':
            out.append(ins)
            continue
        req = 0
        for p, pp in hist:
            d = pos - pp
            w = need(p, ins)
            if w > d:
                req = max(req, w - d)
        if req:
            k = req
            while k > 0:
                t = min(k, 16)
                out.append(Inst(f"s_nop {t - 1}", cond=ins.cond))
                out[-1].ool = ins.ool
                k -= t
            nnops += 1
            if not ins.cond:
                pos += req
        out.append(ins)
        if not ins.cond:
            pos += (ins.arg + 1) if ins.kind == 'nop' else 1
        if ins.kind in ('valu', 'trans', 'mfma', 'salu', 'vstore'):
            hist.append((ins, pos))
        hist = [(p, pp) for p, pp in hist if pos - pp < 14]
    return out, nnops


def hoist(prog):
    out = []
    for ins in prog:
        i = len(out)
        if ins.kind in ('dsr', 'dsw', 'vload', 'vstore', 'dma', 'salu') and not ins.cond and 'exec' not in ins.wr:
            while i > 0:
                q = out[i - 1]
                if q.kind not in ('valu', 'trans') or q.cond:
                    break
                if (q.wr & (ins.rd | ins.wr)) or (q.rd & ins.wr):
                    break
                i -= 1
            if i > 0 and out[i - 1].kind in ('valu', 'trans'):
                i = len(out)
        out.insert(i, ins)
    return out


_ctx = [0]


def ctx(groups):
    _ctx[0] += 1
    for g in groups:
        for i in (g if isinstance(g, list) else [g]):
            i.ctx = _ctx[0]
    return groups


def check(prog):
    own = {}
    for i in prog:
        if i.ctx is not None:
            own.setdefault(i.ctx, set()).update(r for r in i.wr if r[0] == 's' or r == 'm0')
    last = {}
    waited = set()
    for i in prog:
        if i.ctx is not None and i.kind in ('dma', 'vload', 'vstore'):
            for r in i.rd & own[i.ctx]:
                assert last.get(r) == i.ctx, f"scalar context broken at: {i.text}"
        for r in i.wr:
            last[r] = i.ctx
        if i.kind == 'waittag':
            waited.update(i.arg)
        elif i.tag and i.tag in waited and i.tag not in ('kvp', 'rtr'):
            raise AssertionError(f"op issued after wait on its tag {i.tag}: {i.text}")


def cost(i):
    if i.kind == 'valu':
        return 5.3 if i.op.startswith(('v_fma_', 'v_cvt_pk', 'v_cndmask', 'v_lshl_add', 'v_bfe', 'v_perm')) else 4.4
    if i.kind == 'trans':
        return 8.6
    if i.kind in ('label',):
        return 0
    return 4.3


def fill(prog, window=40):
    prog = list(prog)
    out = []
    now = 0.0
    free = 0.0
    lastp = 0
    ldage = {}
    i = 0
    while i < len(prog):
        ins = prog[i]
        if ins.kind == 'mfma' and not ins.cond:
            j = i + 1
            crossed_rd, crossed_wr = set(ins.rd), set(ins.wr)
            while free - now > 6.5 and j < min(i + window, len(prog)):
                c = prog[j]
                if c.cond or c.kind in ('label', 'branch', 'waitall', 'smem', 'nop') or 'exec' in c.wr:
                    break
                ok = c.kind in ('valu', 'trans') and not c.op.startswith(('v_writelane', 'v_readfirst', 'v_cmp'))
                if ok and (c.rd & crossed_wr or c.wr & (crossed_rd | crossed_wr)):
                    ok = False
                if ok:
                    for r in c.rd | c.wr:
                        if r in ldage and (ldage[r][0] == 'vload' or len(out) - ldage[r][1] < 24):
                            ok = False
                if ok:
                    d = 0
                    for q in reversed(out[-16:]):
                        if need(q, c) > d:
                            ok = False
                            break
                        if q.kind not in ('label', 'waittag', 'waitall') and not q.cond:
                            d += 1
                if ok and cost(c) > free - now - 2:
                    ok = False
                if ok:
                    out.append(c)
                    now += cost(c)
                    for r in c.rd | c.wr:
                        ldage.pop(r, None)
                    del prog[j]
                else:
                    crossed_rd |= c.rd
                    crossed_wr |= c.wr
                    j += 1
            now = max(now + 2, free)
            dur = {8: 32, 4: 16, 2: 8 if lastp == 2 else 16}[ins.passes]
            free = now + dur
            now += 8
            lastp = ins.passes
        elif not ins.cond:
            now += cost(ins)
        for r in ins.rd | ins.wr:
            ldage.pop(r, None)
        if ins.kind in ('vload', 'dsr'):
            for r in ins.wr:
                ldage[r] = (ins.kind, len(out))
        out.append(ins)
        i += 1
    return out


def m0fix(prog):
    p = list(prog)
    for i in range(1, len(p) - 1):
        a, b, c = p[i - 1], p[i], p[i + 1]
        if b.kind == 'salu' and 'm0' in b.wr and c.kind == 'dma' and not b.cond and not a.cond \
                and a.kind in ('dsr', 'mfma', 'valu', 'trans', 'vload', 'vstore') and not (a.wr & b.rd):
            p[i - 1], p[i] = b, a
    return p


def layout(prog):
    main = [i for i in prog if i.ool is None]
    rest = [i for i in prog if i.ool is not None]
    return main + rest


def finalize(prog, dofill=True):
    check(prog)
    p = hoist(prog)
    if dofill:
        p = fill(p)
    p = insert_waits(m0fix(p))
    p, n = insert_nops(p)
    return layout(p)


def weave(main, fills, start=0, end=None):
    end = len(main) if end is None else end
    n = end - start
    out = [list(g) for g in main]
    k = 0
    for i in range(n):
        tgt = (len(fills) * (i + 1) + n - 1) // n
        while k < tgt:
            f = fills[k]
            out[start + i] += f if isinstance(f, list) else [f]
            k += 1
    assert k == len(fills)
    return out


def flat(groups):
    return [i for g in groups for i in g]
```

```python
import sys, os
sys.path.insert(0, os.path.dirname(os.path.abspath(__file__)))
from dsl import *

NAME = "sequential_preLN__linear_attn_block__glu_gated_swiglu__prompt"

CNT = 0x20000
KVM = 0x10000
ST = 0x18000
CS = 0x1C000
ZP = 0x1F800
STAMP = 0xC0000
PQ = 0x400000
HB = 0x800000
HH = 0x1000000
W13R = 0x2000000
W2R = 0x2800000
PROBE = 0x100000
WS_SIZE = 0x2C00000
OOB = 0x7f000000

X, WQKV, WO, W1, W3, W2, OUT, WS, DBG = [f"s[{a}:{a+3}]" for a in range(4, 40, 4)]
(sW, sG, sM, sC0, sT0, sT1, sT2, sT3, sXB, sWB, sXL, sWL, sTB, sCB, sRQ, sLOG2E,
 sU, sKC, sT4, sT5, sMSKHI, sEPS6) = [f"s{i}" for i in range(40, 62)]
sHILANES = "s[62:63]"
sB4LANES = "s[64:65]"
sA, sB, sCc, sD = "s66", "s67", "s68", "s69"
sKVA, sZA, sPQS, sRW, sR2, sRC, sKVL, sZL, sPQL, sSIG, sHST, sSTA = [f"s{i}" for i in range(84, 96)]
sMA, sTA, sHS = "s3", "s74", "s83"
sP1, sPE, sP2, sTBL = "s96", "s97", "s98", "s99"
STV = 0

VB, KB, XCH, RST, KVS, ZS = 0x10000, 0x18000, 0x20000, 0x22000, 0, 0x21000

L16, L4 = "v2", "v3"
TRK, TRP = 152, 156
XCW, XCR, KVW, ZW, STW, KVR, ZR, ZAT, STR = [f"v{i}" for i in range(212, 221)]
WOD, WOT, OAD = 221, 225, 229
ROWA, ZBW, ZBR, P256 = "v233", "v234", "v235", "v236"
RL1, RL3, RL2, RT13, RT2A, RT2B, CSAT, P4K, FA1, LM8, PA2 = [f"v{i}" for i in range(237, 248)]
RCS = 248


def v(a, n=1):
    return f"v{a}" if n == 1 else f"v[{a}:{a+n-1}]"


def a_(a, n=1):
    return f"a{a}" if n == 1 else f"a[{a}:{a+n-1}]"


def mf32(d, A, B, c=None):
    return Inst(f"v_mfma_f32_32x32x16_bf16 {v(d,16)}, {A}, {B}, {v(d,16) if c is None else c}")


def mf16(d, A, B, c=None):
    return Inst(f"v_mfma_f32_16x16x32_bf16 {v(d,4)}, {A}, {B}, {v(d,4) if c is None else c}")


def mf4(d, A, B, c=None):
    return Inst(f"v_mfma_f32_4x4x4_16b_bf16 {v(d,4)}, {A}, {B}, {v(d,4) if c is None else c}")


def trpair(dst, addr, off, step):
    k, b = dst
    return [Inst(f"ds_read_b64_tr_b16 {k}[{b}:{b+1}], {addr} offset:{off}"),
            Inst(f"ds_read_b64_tr_b16 {k}[{b+2}:{b+3}], {addr} offset:{off+step}")]


def par13(t):
    return (t >> 1) & 1


def par2(pr, t):
    return (pr >> 1) if t < 3 else (t & 1) ^ 1


def split2(dst, src, t):
    return Seq()(f"""v_cvt_pk_bf16_f32 v{t}, v{src}, v{src}
         v_lshlrev_b32 v{t}, 16, v{t}
         v_sub_f32 v{t}, v{src}, v{t}
         v_cvt_pk_bf16_f32 v{dst}, v{src}, v{t}""")


cHB, cST, cHS, cHR, cCS, cW2, cHL, cOUT, cHS2 = [f"s{i}" for i in range(75, 84)]
cPP, cPQ, cPS, cPL, bTA, bTL, bK2, bQ2, bGP, bRP, bTX, cW2x, sGC, sMC = [f"s{i}" for i in (4, 5, 6, 7, 16, 17, 18, 19, 20, 21, 22, 23, 24, 25)]
W2A, W2B, LB1, LB2, WLA, WLB, WLC, WLD = [f"v{i}" for i in range(6, 14)]
CSL, HHA, HHB, HPA, LB0 = "v14", "v15", "v42", "v43", "v212"


class Gen:
    def __init__(self, opt):
        self.o = opt
        self.p = Seq()
        self.nl = 0
        self.nstamp = 0
        self.stamp_names = []

    def lab(self, s):
        self.nl += 1
        return f"L_{s}_{self.nl}"

    def stamp(self, name):
        if self.o.get('padat') == name:
            self.p("WAITALL lgkm\ns_memrealtime s[100:101]\nWAITALL lgkm")
        if self.o.get('stamps', 3) == 3:
            return
        fine = str(self.o.get('fine', ''))
        if name[0].islower() and name[0] not in fine:
            return
        if fine and name[0].isupper() and name[0].lower() not in fine and name not in ('C_t6', 'B_sync1', 'C_sync2', 'D_drained', 'A_loop', 'A_v', 'A_q'):
            return
        p = self.p
        if self.o.get('nb'):
            if self.nstamp > 1:
                p(f"v_writelane_b32 v{STV}, s72, {self.nstamp-1}", cond=True)
            p("s_memrealtime s[72:73]" if self.o['stamps'] == 1 else "s_memtime s[72:73]", cond=True)
            if name == 'D_drained':
                p(f"s_waitcnt lgkmcnt(0)\nv_writelane_b32 v{STV}, s72, {self.nstamp}", cond=True)
            self.nstamp += 1
            self.stamp_names.append(name)
            return
        p("WAITALL lgkm")
        p("s_memrealtime s[72:73]" if self.o['stamps'] == 1 else "s_memtime s[72:73]")
        p("WAITALL lgkm")
        p(f"v_writelane_b32 v{STV}, s72, {self.nstamp}")
        self.nstamp += 1
        self.stamp_names.append(name)

    def sub(self, fn):
        save = self.p
        self.p = Seq()
        fn()
        r = list(self.p)
        self.p = save
        return r

    def xf(self, L, key='x'):
        x = self.o.get(key, '')
        out = []
        for i in L:
            if 'v' in x and i.kind in ('vload', 'dma') and not i.cond and 'dwordx4' in i.op:
                continue
            if 'e' in x and i.kind in ('valu', 'trans') and not i.cond and i.op.endswith(('f32', 'f32_e64')):
                continue
            if 'l' in x and i.kind == 'dsr':
                continue
            if 's' in x and i.kind == 'vstore' and 'store' in i.op and not i.cond:
                continue
            if 'b' in x and i.op == 's_barrier':
                continue
            if 'm' in x and i.kind == 'mfma' and i.passes < 8:
                continue
            out.append(i)
        return out

    def ool(self, branch, text):
        p = self.p
        L, R = self.lab("o"), self.lab("r")
        p(f"{branch} {L}")
        n = len(p)
        p(f"{L}:\n{text}\ns_branch {R}", cond=True)
        for i in p[n:]:
            i.ool = L
        p(f"{R}:")

    def spin(self, vt, vaddr, soff, mask, target, srd=WS, mode='wave0', sleep=0, field=None, wave=0):
        p = self.p
        Lp = self.lab("pl")
        addr = f"{vaddr}, {srd}, {soff} offen" if vaddr else f"off, {srd}, {soff}"
        ext = f"v_and_b32 v43, {field}, {vt}\n" if field is not None else ""
        vc = "v43" if field is not None else vt
        loop = f"""s_mov_b32 {sT5}, 0
             s_mov_b64 exec, {mask}
             {Lp}:
             {f's_sleep {sleep}' if sleep else ''}
             buffer_load_dword {vt}, {addr} sc1
             s_add_u32 {sT5}, {sT5}, 1
             s_waitcnt vmcnt(0)
             {ext}v_cmp_gt_u32 vcc, {target}, {vc}
             s_cmp_ge_u32 {sT5}, 0x8000
             s_cselect_b64 vcc, 0, vcc
             s_and_b64 exec, exec, vcc
             s_cbranch_scc1 {Lp}
             s_mov_b64 exec, -1"""
        if self.o.get('stamps') == 3:
            p(f"s_mov_b32 {sT5}, 0")
        if mode == 'check':
            p(f"{ext}v_cmp_gt_u32 vcc, {target}, {vc}\ns_and_b64 vcc, vcc, {mask}")
            self.ool("s_cbranch_scc1", loop)
        elif mode == 'wave0':
            Ld = self.lab("pd")
            p(f"s_cmp_lg_u32 {sW}, {wave}\ns_cbranch_scc1 {Ld}")
            p(loop, cond=True)
            p(f"{Ld}:")
        else:
            p(loop, cond=True)
            p("s_waitcnt vmcnt(0)")
        if self.o.get('stamps') == 3:
            p(f"v_writelane_b32 v{STV}, {sT5}, {self.nstamp}")
            self.nstamp += 1
            self.stamp_names.append(f"spin{self.nstamp}")

    def setup(self):
        p = self.p
        p(f"""s_cmp_ge_u32 s2, 256
             s_cbranch_scc1 L_end
             s_load_dwordx16 s[76:91], s[0:1], 0
             s_load_dwordx4 s[92:95], s[0:1], 64""")
        p("v_and_b32 v1, 63, v0\nv_lshrrev_b32 v4, 6, v0")
        p(f"v_readfirstlane_b32 {sW}, v4")
        p(f"""s_mov_b32 s6, 0x200000
             s_mov_b32 s7, 0x20000
             s_mov_b32 s10, 0x180000
             s_mov_b32 s11, 0x20000
             s_lshr_b32 {sU}, s2, 3
             s_and_b32 {sKC}, s2, 7
             s_and_b32 {sRQ}, {sU}, 3
             s_and_b32 {sG}, s2, 6
             s_lshl_b32 {sG}, {sG}, 1
             s_add_u32 {sG}, {sG}, {sRQ}
             s_lshr_b32 {sT1}, s2, 5
             s_and_b32 {sT2}, s2, 1
             s_lshl_b32 {sTA}, {sG}, 1
             s_add_u32 {sTA}, {sTA}, {sT2}
             s_lshl_b32 {sXL}, {sW}, 14
             s_lshl_b32 {sXB}, {sTA}, 16
             s_add_u32 {sXB}, {sXB}, {sXL}
             s_xor_b32 {sMA}, {sT1}, 4
             s_mul_i32 {sWB}, {sW}, {16*3072}
             s_lshl_b32 {sT0}, {sMA}, 7
             s_add_u32 {sWB}, {sWB}, {sT0}
             s_lshl_b32 {sWL}, {sW}, 11
             s_add_u32 {sC0}, {sT1}, {sKC}""")
        rot = self.o.get('rot', 6)
        if rot == 7:
            p(f"s_lshl_b32 {sT0}, {sU}, 2\ns_add_u32 {sC0}, {sC0}, {sT0}")
        if rot == 8:
            p(f"s_lshl_b32 {sT0}, {sRQ}, 1\ns_add_u32 {sC0}, {sC0}, {sT0}")
        if rot == 0:
            p(f"s_mov_b32 {sC0}, 0")
        if rot == 1:
            p(f"s_mov_b32 {sC0}, {sKC}")
        if rot == 9:
            p(f"s_lshl_b32 {sC0}, {sT1}, 1\ns_add_u32 {sC0}, {sC0}, {sKC}")
        p(f"""v_lshrrev_b32 v4, 3, v1
             v_and_b32 v5, 7, v1
             v_lshrrev_b32 v3, 4, v1
             v_xor_b32 v6, v5, v3
             v_lshlrev_b32 v6, 4, v6
             v_lshl_add_u32 v6, v4, 10, v6
             v_xor_b32 v7, 64, v6
             v_add_u32 v7, 7168, v7
             v_and_b32 v3, 1, v3
             v_lshlrev_b32 v3, 2, v3
             v_xor_b32 v5, v5, v3
             v_lshlrev_b32 v5, 4, v5
             v_mul_u32_u24 v8, 3072, v4
             v_add_u32 v8, v8, v5
             v_add_u32 v9, {8*3072-1024}, v8""")
        p("WAITALL lgkm")
        p("s_mov_b64 s[4:5], s[76:77]\ns_mov_b64 s[8:9], s[78:79]")

    def dmaW(self, t, c):
        base, po = ((KB, 1024), (VB, 2048), (0, 0))[t]
        tag = f"{'AVQ'[t]}{c}"
        S = Seq()
        S(f"s_add_u32 m0, {sWL}, {base + c*8192 - po}")
        S(f"buffer_load_dwordx4 v8, {WQKV}, s{75+c} offen offset:{po} lds", tag=tag)
        return ctx([list(S), [Inst(f"buffer_load_dwordx4 v9, {WQKV}, s{75+c} offen offset:{po+1024} lds", tag=tag)]])

    def dmaA(self, c):
        wc = f"s{75+c}"
        g = self.dmaW(0, c)
        g[0] = list(Seq()(f"""s_add_u32 {sT0}, {sC0}, {c}
             s_and_b32 {sT0}, {sT0}, 7
             s_mul_i32 {wc}, {sT0}, {64*3072}
             s_add_u32 {wc}, {wc}, {sWB}
             s_lshl_b32 {sT0}, {sT0}, 7""")) + g[0]
        nt = " nt" if self.o.get('xnt', 0) else ""
        S = Seq()
        S(f"s_add_u32 m0, {sWL}, {c*8192}\ns_add_u32 {sT0}, {sT0}, {sXB}")
        S(f"buffer_load_dwordx4 v6, {X}, {sT0} offen{nt} lds", tag=f"A{c}")
        g += [list(S), [Inst(f"buffer_load_dwordx4 v7, {X}, {sT0} offen offset:1024{nt} lds", tag=f"A{c}")]]
        return ctx(g)

    def dmaWO(self, q):
        S = Seq()
        S(f"""s_add_u32 {sT0}, {sA}, {q*65536}
             s_add_u32 m0, {sB}, {q*16384}
             s_and_b32 {sT0}, {sT0}, 0x7ffff""")
        g = []
        for k in range(4):
            S(f"buffer_load_dwordx4 v{WOD+k}, {WO}, {sT0} offen offset:{k*1024} lds", tag=f"WO{q>>2}")
            g.append(list(S))
            S = Seq()
        return ctx(g)

    def rload(self):
        nt = " nt" if self.o.get('rnt', 1) else ""
        g = []
        for k, (ad, srd, s0, s1) in enumerate(((RL1, W1, sKVL, sZL), (RL3, W3, sKVL, sZL), (RL2, W2, sPQL, sHST))):
            g.append(list(Seq()(f"s_add_u32 m0, {sSTA}, {k*2048}\nbuffer_load_dwordx4 {ad}, {srd}, {s0} offen{nt} lds")))
            g.append(list(Seq()(f"buffer_load_dwordx4 {ad}, {srd}, {s1} offen offset:1024{nt} lds")))
            ctx(g[-2:])
        return g

    def miscA(self):
        M = Seq()
        a, b, c, d = "v208", "v209", "v210", "v211"
        M(f"""v_lshl_add_u32 {RL2}, v4, 10, v5
             v_mul_u32_u24 v4, 3584, v4
             v_add_u32 {RL1}, v4, v5
             v_xor_b32 {RL3}, 32, {RL1}
             v_mov_b32 v4, 1
             v_lshlrev_b32 {L4}, 2, v1
             s_mov_b32 {sLOG2E}, 0x3fb8aa3b
             s_mov_b32 {sMSKHI}, 0xffff0000
             s_mov_b32 {sEPS6}, 0x358637bd
             s_mov_b32 s62, 0
             s_mov_b32 s63, -1
             s_mov_b32 s64, 0xffff0000
             s_mov_b32 s65, 0xffff0000
             s_mov_b32 s96, 0x22222222
             s_mov_b32 s97, 0x22222222
             s_mov_b32 s98, 0x44444444
             s_mov_b32 s99, 0x44444444
             s_mov_b32 s70, 0x88888888
             s_mov_b32 s71, 0x88888888
             s_and_b32 {sM}, s2, 1
             s_lshl_b32 {sM}, {sM}, 3
             s_lshr_b32 {sT1}, s2, 5
             s_add_u32 {sM}, {sM}, {sT1}
             s_and_b32 {sCB}, {sM}, 3
             s_and_b32 {sT1}, {sW}, 1
             s_lshr_b32 {sT2}, {sW}, 1
             s_lshl_b32 {sMA}, {sMA}, 1
             s_add_u32 {sMA}, {sMA}, {sT2}
             s_lshl_b32 {sTA}, {sTA}, 1
             s_add_u32 {sTA}, {sTA}, {sT1}""")
        M(f"""v_and_b32 {a}, 31, v1
             v_lshrrev_b32 {b}, 5, v1
             v_bfe_u32 {c}, v1, 1, 3
             v_xor_b32 {c}, {b}, {c}
             v_lshlrev_b32 {c}, 4, {c}
             v_lshl_add_u32 {c}, {a}, 7, {c}
             s_lshl_b32 {sT3}, {sT1}, 12
             s_lshl_b32 {sT4}, {sW}, 5
             s_add_u32 {sT3}, {sT3}, {sT4}
             v_xor_b32 v10, {sT3}, {c}
             v_xor_b32 v11, 32, v10
             v_xor_b32 v12, 64, v10
             v_xor_b32 v13, 96, v10
             s_lshl_b32 {sT3}, {sCB}, 1
             s_add_u32 {sT3}, {sT3}, {sT2}
             s_sub_u32 {sT3}, {sT3}, {sC0}
             s_and_b32 {sT3}, {sT3}, 7
             s_lshl_b32 {sT3}, {sT3}, 1
             s_lshr_b32 {sT4}, s2, 7
             s_add_u32 {sT3}, {sT3}, {sT4}
             s_lshl_b32 {sT3}, {sT3}, 6
             s_add_u32 {sT3}, {sT3}, {sT1}
             s_lshl_b32 {sT3}, {sT3}, 6
             v_xor_b32 v14, {sT3}, {c}
             v_xor_b32 v15, 32, v14""")
        M(f"""s_lshl_b32 {sT3}, {sT2}, 8
             s_add_u32 {sT3}, {sT3}, {hex(XCH)}
             v_lshl_add_u32 {XCR}, {a}, 3, {sT3}
             s_lshl_b32 {sT3}, {sT1}, 2
             v_add_u32 {XCW}, {sT3}, {XCR}
             s_lshl_b32 {sT3}, {sW}, 9
             s_add_u32 {sT3}, {sT3}, {hex(XCH+2048)}
             v_lshl_add_u32 {STW}, v1, 3, {sT3}
             v_xor_b32 {STR}, 1024, {STW}
             v_lshlrev_b32 {KVW}, 4, {a}
             v_lshl_add_u32 {KVW}, {b}, 10, {KVW}
             s_add_u32 {sT3}, {sWL}, {hex(KVS)}
             v_add_u32 {KVW}, {sT3}, {KVW}
             s_lshl_b32 {sT3}, {sW}, 7
             s_add_u32 {sT3}, {sT3}, {hex(ZS)}
             v_lshl_add_u32 {ZW}, {a}, 2, {sT3}
             s_lshl_b32 {sT3}, {sT2}, 2
             s_add_u32 {sT3}, {sT3}, {sT1}
             s_lshl_b32 {sT4}, {sT3}, 10
             s_add_u32 {sT4}, {sT4}, {hex(KVS)}
             v_add_u32 {KVR}, {sT4}, {L4}
             s_lshl_b32 {sT4}, {sT3}, 6
             s_add_u32 {sT4}, {sT4}, {hex(ZS)}
             v_and_b32 {d}, 15, v1
             v_lshl_add_u32 {ZR}, {d}, 2, {sT4}
             v_lshrrev_b32 {d}, 4, v1
             v_lshl_add_u32 {ZAT}, {d}, 27, {L4}
             v_lshl_add_u32 {CSAT}, {b}, 27, {L4}
             v_lshrrev_b32 {LM8}, 3, v1
             v_lshlrev_b32 {LM8}, 27, {LM8}
             v_min_u32 {FA1}, 1, v1
             v_lshlrev_b32 {FA1}, 27, {FA1}
             s_lshl_b32 {sT3}, {sMA}, 1
             s_add_u32 {sT3}, {sT3}, {sT1}
             s_lshl_b32 {sKVA}, {sT3}, 10
             s_add_u32 {sKVA}, {sKVA}, {hex(KVM)}
             s_lshl_b32 {sZA}, {sT3}, 6
             s_add_u32 {sZA}, {sZA}, {hex(ZP)}
             s_lshl_b32 {sPQS}, {sTA}, 2
             s_lshr_b32 {sT3}, {sMA}, 2
             s_add_u32 {sPQS}, {sPQS}, {sT3}
             s_lshl_b32 {sPQS}, {sPQS}, 3
             s_and_b32 {sT3}, {sMA}, 3
             s_add_u32 {sPQS}, {sPQS}, {sT3}
             s_lshl_b32 {sPQS}, {sPQS}, 11
             s_add_u32 {sPQS}, {sPQS}, {hex(PQ)}
             s_lshl_b32 {sHS}, {sG}, 2
             s_add_u32 {sHS}, {sHS}, {sW}
             s_lshl_b32 {sHS}, {sHS}, 4
             s_add_u32 {sHS}, {sHS}, {sM}
             s_lshl_b32 {sHS}, {sHS}, 14
             s_add_u32 {sHS}, {sHS}, {hex(HH+4096)}""")
        M(f"""v_bfe_u32 {c}, v1, 2, 2
             v_lshlrev_b32 {a}, 10, {b}
             v_lshl_add_u32 {a}, {c}, 7, {a}
             v_bfe_u32 {c}, v1, 4, 1
             v_bfe_u32 {d}, v1, 3, 1
             v_lshl_add_u32 {d}, {d}, 1, {c}
             v_lshl_add_u32 {a}, {d}, 5, {a}
             v_and_b32 {d}, 1, v1
             v_lshl_add_u32 {RT2A}, {d}, 4, {a}
             v_bfe_u32 {d}, v1, 1, 1
             v_lshl_add_u32 {RT2A}, {d}, 3, {RT2A}
             v_and_b32 {d}, 3, v1
             v_lshl_add_u32 {a}, {d}, 3, {a}
             s_lshl_b32 {sT3}, {sT2}, 6
             s_add_u32 {sT3}, {sT3}, {sWL}
             s_add_u32 {sT4}, {sT3}, {hex(KB)}
             v_xor_b32 v{TRK}, {sT4}, {a}
             s_add_u32 {sT4}, {sT3}, {hex(VB)}
             v_xor_b32 v{TRP}, {sT4}, {RT2A}""")
        for j in range(1, 4):
            M(f"v_xor_b32 v{TRK+j}, {j*2048}, v{TRK}\nv_xor_b32 v{TRP+j}, {j*2048}, v{TRP}")
        M(f"""s_lshl_b32 {sT3}, {sW}, 5
             s_add_u32 {sT3}, {sT3}, {hex(RST)}
             v_xor_b32 {RT13}, {sT3}, {a if self.o.get('c16', 1) else RT2A}
             v_lshl_add_u32 {RT13}, {c}, 11, {RT13}
             s_mul_i32 {sSTA}, {sW}, 6144
             s_add_u32 {sSTA}, {sSTA}, {hex(RST)}
             v_add_u32 {RT2A}, {sSTA}, {RT2A}
             v_xor_b32 {RT2B}, 64, {RT2A}""")
        M(f"""v_lshrrev_b32 {a}, 2, v1
             v_xor_b32 {a}, {a}, {c}
             v_and_b32 {a}, 1, {a}
             v_or_b32 {a}, {a}, {d}
             v_cmp_eq_u32 vcc, 0, {a}
             v_mov_b32 v20, 0x3f803f80
             v_mov_b32 v21, 0x3f803f80
             v_mov_b32 v22, 0x3f803f80
             v_mov_b32 v23, 0x3f803f80
             v_cndmask_b32 v16, 0, v20, vcc
             v_cndmask_b32 v17, 0, v20, vcc
             v_cndmask_b32 v18, 0, v20, vcc
             v_cndmask_b32 v19, 0, v20, vcc""")
        for r in (162, 163, 166, 167, 170, 171, 174, 175, 177, 178, 179):
            M(f"v_mov_b32 v{r}, 0")
        M(f"""v_lshrrev_b32 {a}, 4, v1
             v_bfe_u32 {c}, v1, 2, 2
             v_xor_b32 {c}, {c}, {a}
             v_lshlrev_b32 {c}, 6, {c}
             v_lshl_add_u32 {c}, {a}, 10, {c}
             v_lshl_add_u32 v{WOD}, {d}, 4, {c}
             v_add_u32 v{WOD+1}, 3072, v{WOD}
             v_add_u32 v{WOD+2}, 6144, v{WOD}
             v_add_u32 v{WOD+3}, 9216, v{WOD}
             s_lshl_b32 {sA}, {sRQ}, 17
             s_add_u32 {sA}, {sA}, {sXL}
             s_lshl_b32 {sT3}, {sCB}, 8
             s_add_u32 {sA}, {sA}, {sT3}""")
        M(f"""s_lshl_b32 {sT3}, {sKC}, 2
             s_add_u32 {sT3}, {sT3}, {sW}
             s_mul_i32 {sKVL}, {sT3}, {16*3584}
             s_lshl_b32 {sT3}, {sU}, 7
             s_add_u32 {sKVL}, {sKVL}, {sT3}
             s_lshl_b32 {sT2}, {sU}, 2
             s_add_u32 {sT2}, {sT2}, {sW}
             s_lshl_b32 {sPQL}, {sT2}, 14
             s_lshl_b32 {sT3}, {sKC}, 7
             s_add_u32 {sPQL}, {sPQL}, {sT3}
             s_add_u32 {sHST}, {sPQL}, 7168
             s_lshl_b32 {sRC}, {sT2}, 7
             s_add_u32 {sRC}, {sRC}, {hex(CS)}
             s_mul_i32 {sT3}, {sT2}, 9363
             s_lshr_b32 {sT3}, {sT3}, 16
             s_add_u32 {sT2}, {sT2}, {sT3}
             s_and_b32 {sT3}, {sKC}, 6
             s_add_u32 {sT3}, {sT3}, {sKC}
             s_lshl_b32 {sRW}, {sT2}, 4
             s_add_u32 {sRW}, {sRW}, {sT3}
             s_lshl_b32 {sRW}, {sRW}, 12
             s_add_u32 {sRW}, {sRW}, {hex(W13R)}
             s_andn2_b32 {sT3}, {sT2}, 3
             s_add_u32 {sT3}, {sT3}, {sT2}
             s_lshl_b32 {sR2}, {sKC}, 8
             s_add_u32 {sR2}, {sR2}, {sT3}
             s_lshl_b32 {sR2}, {sR2}, 11
             s_add_u32 {sR2}, {sR2}, {hex(W2R)}""")
        if self.o.get('grp', 1):
            m13 = sum((par13(t) ^ m) << (8 * m + t) for m in range(2) for t in range(8))
            m2 = sum(par2(pr, t) << (8 * pr + t) for pr in range(4) for t in range(8))
            M(f"""s_and_b32 {sT3}, {sT2}, 15
                 s_lshr_b32 {sT3}, {hex(m13)}, {sT3}
                 s_lshr_b32 {sT4}, {hex(m2)}, {sT2}
                 s_xor_b32 {sT4}, {sT4}, {sKC}""")
        else:
            M(f"s_lshr_b32 {sT3}, {sKC}, 1\ns_lshr_b32 {sT4}, {sT2}, 5")
        M(f"""s_and_b32 {sT3}, {sT3}, 1
             s_lshl_b32 {sT3}, {sT3}, 13
             s_add_u32 {sRW}, {sRW}, {sT3}
             s_and_b32 {sT4}, {sT4}, 1
             s_lshl_b32 {sT4}, {sT4}, 13
             s_add_u32 {sR2}, {sR2}, {sT4}
             s_cmp_ge_u32 s2, 224
             s_cselect_b32 {sRW}, {hex(OOB)}, {sRW}
             s_cselect_b32 {sR2}, {hex(OOB)}, {sR2}
             s_cselect_b32 {sRC}, {hex(OOB)}, {sRC}
             s_cselect_b32 {sKVL}, {hex(OOB)}, {sKVL}
             s_add_u32 {sZL}, {sKVL}, {8*3584-1024}
             s_and_b32 {sSIG}, {sU}, 15
             s_lshl_b32 {sSIG}, {sSIG}, 8
             s_add_u32 {sSIG}, {sSIG}, {hex(CNT)}
             s_cmp_eq_u32 {sW}, 0
             s_cselect_b32 {sSIG}, {sSIG}, {hex(OOB)}""")
        return M

    def miscB(self):
        M = Seq()
        a, b, c, d = "v208", "v209", "v210", "v211"
        M(f"""s_lshr_b32 {sTB}, {sM}, 2
             s_lshl_b32 {sT3}, {sG}, 2
             s_add_u32 {sTB}, {sTB}, {sT3}
             s_lshl_b32 {sT4}, {sRQ}, 1
             s_add_u32 {sT4}, {sT4}, {sW}
             s_and_b32 {sT4}, {sT4}, 7
             s_lshl_b32 {sKVL}, {sT4}, 12
             s_add_u32 {sKVL}, {sKVL}, {hex(KVM)}
             s_xor_b32 {bK2}, {sKVL}, 0x4000
             s_lshl_b32 {sT2}, {sTB}, 16
             s_and_b32 {sPQL}, {sT4}, 6
             s_add_u32 {sPQL}, {sPQL}, {sT4}
             s_lshl_b32 {sPQL}, {sPQL}, 12
             s_add_u32 {sPQL}, {sPQL}, {sT2}
             s_add_u32 {sPQL}, {sPQL}, {hex(PQ)}
             s_xor_b32 {sPQL}, {sPQL}, {sP1}
             s_xor_b32 {bQ2}, {sPQL}, 0x8000
             s_lshl_b32 {sT4}, {sT4}, 8
             s_mov_b32 {sZL}, {hex(ZP)}
             s_lshl_b32 {sHST}, {sCB}, 14
             s_add_u32 {sHST}, {sHST}, {sT2}
             s_add_u32 {sHST}, {sHST}, {sWL}
             s_add_u32 {sHST}, {sHST}, {hex(HB)}
             s_xor_b32 {sHST}, {sHST}, {sPE}
             s_lshl_b32 {sSTA}, {sTB}, 4
             s_add_u32 {sSTA}, {sSTA}, {sCB}
             s_lshl_b32 {sSTA}, {sSTA}, 14
             s_add_u32 {sSTA}, {sSTA}, {hex(HH+7168+768)}
             s_xor_b32 {sSTA}, {sSTA}, {sP2}
             s_lshl_b32 {sD}, {sTB}, 2
             s_add_u32 {sD}, {sD}, {sCB}
             s_lshl_b32 {sD}, {sD}, 16
             s_add_u32 {sD}, {sD}, {sXL}
             s_add_u32 {sD}, {sD}, {hex(HH+7168)}
             s_xor_b32 {sD}, {sD}, {sP2}
             v_lshrrev_b32 {b}, 5, v1
             v_and_b32 {a}, 31, v1
             v_lshlrev_b32 {ROWA}, 10, {a}
             v_lshl_add_u32 {ROWA}, {b}, 4, {ROWA}
             v_lshlrev_b32 v41, 3, {a}
             v_lshl_add_u32 v41, {b}, 10, v41
             v_xor_b32 v41, {sT4}, v41
             v_bfe_u32 {c}, v1, 2, 2
             v_and_b32 {a}, 1, v1
             v_lshlrev_b32 {a}, 4, {a}
             v_bfe_u32 {d}, v1, 1, 1
             v_lshl_add_u32 {a}, {d}, 3, {a}
             v_lshl_add_u32 {d}, {b}, 11, {a}
             v_lshl_add_u32 {d}, {c}, 8, {d}
             v_xor_b32 {c}, {sW}, {c}
             v_lshl_add_u32 {d}, {c}, 6, {d}
             v_bfe_u32 {c}, v1, 4, 1
             v_lshl_add_u32 {d}, {c}, 5, {d}""")
        for q in range(4):
            M(f"""s_xor_b32 {sT2}, {sW}, {q}
                 s_lshl_b32 {sT3}, {sT2}, 14
                 v_add_u32 v{WOT+q}, {sT3}, {d}
                 s_lshl_b32 {sT2}, {sT2}, 12
                 s_add_u32 {sT2}, {sT2}, 0x20000
                 v_add_u32 v{OAD+q}, {sT2}, {L16}""")
        M(f"""s_lshl_b32 {sT2}, {sW}, 12
             s_add_u32 {sT2}, {sT2}, {0x20000+16384+3072}
             v_add_u32 {ZBW}, {sT2}, {L4}
             v_xor_b32 {d}, 1, {c}
             v_lshlrev_b32 {d}, 5, {d}
             v_lshl_add_u32 {d}, {b}, 4, {d}
             v_add_u32 {ZBR}, {sT2}, {d}
             v_lshrrev_b32 {d}, 4, v1
             v_lshlrev_b32 {P256}, 8, v1
             v_lshl_add_u32 {P256}, {d}, 27, {P256}
             s_lshl_b32 {bTL}, {sW}, 13
             s_lshr_b32 {sT2}, {sTBL}, {sKC}
             s_and_b32 {sT2}, {sT2}, 0x2000
             s_lshl_b32 {bGP}, {sKC}, 14
             s_add_u32 {bGP}, {bGP}, {sT2}
             s_add_u32 {bGP}, {bGP}, {hex(CNT)}
             s_add_u32 {bRP}, {bGP}, 4096""")
        for k in range(8):
            M(f"v_lshlrev_b32 v{192+2*k}, 16, v{24+k}\nv_and_b32 v{193+2*k}, {sMSKHI}, v{24+k}")
        return M

    def phaseA(self):
        p = self.p
        o = self.o
        pre = o.get('pre', 0)
        if pre:
            nt = " nt" if o.get('xnt', 0) else ""
            p(f"""s_lshl_b32 {sT3}, {sMA}, 2
                 s_add_u32 {sT3}, {sT3}, {sW}
                 s_lshl_b32 {sT3}, {sT3}, 11
                 s_lshl_b32 {sT4}, {sTA}, 16
                 s_add_u32 {sT3}, {sT3}, {sT4}
                 s_lshl_b32 {sT4}, s2, 2
                 s_add_u32 {sT4}, {sT4}, {sW}
                 s_mul_i32 {sT4}, {sT4}, 1536
                 v_lshrrev_b32 v196, 2, v1
                 v_lshlrev_b32 v196, 7, v196
                 v_min_u32 v197, 1408, v196""")
            if pre & 1:
                p(f"buffer_load_dword v194, v196, {X}, {sT3} offen{nt}")
            if pre & 2:
                p(f"buffer_load_dword v195, v197, {WQKV}, {sT4} offen")
        p.extend(flat(self.dmaA(0)))
        p(f"v_lshlrev_b32 {L16}, 4, v1")
        if o.get('codepf', 1):
            p(f"""s_getpc_b64 s[70:71]
                 s_lshl_b32 {sT3}, {sU}, 2
                 s_add_u32 {sT3}, {sT3}, {sW}
                 s_lshl_b32 {sT4}, {sT3}, 8
                 v_lshrrev_b32 v200, 5, v1
                 v_lshl_add_u32 v200, v200, 7, {sT4}
                 v_min_u32 v200, CODE_PF_MAX, v200
                 global_load_dword v201, v200, s[70:71]""")
        d1 = self.dmaA(1)
        n1 = o.get('d1', 4)
        p.extend(flat(d1[:n1]))
        for srd, src, sz in ((12, 80, 0x80000), (16, 84, 0x1C0000), (20, 86, 0x1C0000), (24, 88, 0x1C0000),
                             (28, 90, 0x200000), (36, 92, 256), (32, 94, WS_SIZE)):
            p(f"s_mov_b64 s[{srd}:{srd+1}], s[{src}:{src+1}]\ns_mov_b32 s{srd+2}, {hex(sz)}\ns_mov_b32 s{srd+3}, 0x20000")
        if o.get('wsoff'):
            p(f"s_add_u32 s32, s32, {o['wsoff'] << 20}\ns_addc_u32 s33, s33, 0")
        Lz = self.lab("z")
        p(f"""s_lshl_b32 {sB}, {sW}, 8
             s_add_u32 {sB}, {sB}, 224
             s_cmp_lt_u32 s2, {sB}
             s_cbranch_scc1 {Lz}""")
        padr = f"""s_sub_u32 {sT2}, s2, 224
             s_and_b32 {sT1}, {sU}, 1
             s_lshl_b32 {sT3}, {sT1}, 5
             s_add_u32 {sT3}, {sT3}, {sT2}
             s_lshl_b32 {sT3}, {sT3}, 8
             s_add_u32 {sT3}, {sT3}, {hex(PROBE)}
             s_xor_b32 {sT4}, {sT3}, 0x2000
             s_waitcnt lgkmcnt(0)
             s_buffer_load_dword {sT5}, {WS}, {sT3} glc
             s_buffer_load_dword {sT5}, {WS}, {sT4} glc"""
        p(f"""{padr.replace(sT5, sD)}
             v_mov_b32 v16, 0
             v_mov_b32 v17, 0
             v_mov_b32 v18, 0
             v_mov_b32 v19, 0
             v_lshrrev_b32 v20, 3, v1
             v_lshl_add_u32 v20, v20, 7, {L16}
             s_lshl_b32 {sT4}, {sT2}, 11
             s_lshl_b32 {sT3}, {sT2}, 12
             s_add_u32 {sT3}, {sT3}, {hex(CNT)}
             s_add_u32 {sT4}, {sT4}, {hex(KVM)}
             buffer_store_dwordx4 v[16:19], {L16}, {WS}, {sT4} offen sc1
             buffer_store_dwordx4 v[16:19], {L16}, {WS}, {sT4} offen offset:1024 sc1
             buffer_store_dwordx4 v[16:19], v20, {WS}, {sT3} offen sc1
             buffer_store_dwordx4 v[16:19], v20, {WS}, {sT3} offen offset:2048 sc1""", cond=True)
        p(f"{Lz}:")
        probe = f"""{padr}
             s_getreg_b32 {sT4}, hwreg(HW_REG_XCC_ID, 2, 1)
             s_waitcnt lgkmcnt(1)
             s_nop {o.get('pnop', 15)}
             s_getreg_b32 {sT2}, hwreg(HW_REG_IB_STS, 8, 4)
             s_waitcnt lgkmcnt(0)
             s_min_u32 {sT2}, {sT2}, 1
             s_xor_b32 {sT1}, {sT1}, {sT4}
             s_cmp_lg_u32 {sT1}, {sT2}
             s_cselect_b32 {sT2}, 64, 4096
             s_add_u32 {sT2}, {sT2}, 1
             s_add_u32 {sT5}, {sKC}, 18
             s_lshl_b32 {sT4}, {sT4}, {sT5}
             s_cmp_eq_u32 {sU}, 28
             s_cselect_b32 {sT4}, {sT4}, 0
             s_add_u32 {sT2}, {sT2}, {sT4}
             v_mov_b32 v46, {sT2}"""
        p.extend(self.miscA())
        if o.get('pat', 0) == 0:
            Lz = self.lab("z")
            p(f"s_cmp_lt_u32 s2, {sB}\ns_cbranch_scc1 {Lz}")
            p(probe, cond=True)
            p(f"{Lz}:")
            probe = ""
        tch = Seq()
        touch = o.get('touch', 7)
        tch(f"""s_lshl_b32 {sCc}, s2, 2
             s_add_u32 {sCc}, {sCc}, {sW}
             s_lshr_b32 {sT4}, {sCc}, 1
             s_mul_i32 {sT4}, {sT4}, 3072
             s_and_b32 {sT5}, {sCc}, 1
             s_lshl_b32 {sT5}, {sT5}, 11
             s_add_u32 {sT4}, {sT4}, {sT5}
             s_lshl_b32 {sCc}, {sCc}, 9
             v_lshrrev_b32 v202, 3, v1
             v_lshlrev_b32 v202, 7, v202
             v_lshrrev_b32 v42, 4, v1
             v_lshlrev_b32 v42, 7, v42""")
        if touch & 4:
            tch(f"""s_lshl_b32 {sT3}, {sU}, 2
                 s_add_u32 {sT3}, {sT3}, {sW}
                 s_mul_i32 {sT3}, {sT3}, {4*3072}
                 v_min_u32 v200, 11, v1
                 v_lshlrev_b32 v200, 10, v200
                 buffer_load_dword v198, v200, {WQKV}, {sT3} offen offset:384""")
        if touch & 1:
            tch(f"buffer_load_dword v203, v202, {WQKV}, {sT4} offen")
        p.extend(tch)
        SEL, ONES = v(16, 4), v(20, 4)
        XS, XQ0, XQ1, CSA, ZA = 252, 248, 32, 36, 44
        AK, AV, AQ, RB, AKV = 48, 64, 80, 96, 112
        WR = 128
        XM, WP, RS_ = 160, 164, 176

        def wread(t, s, dst=None):
            n = t * 32 + s
            addr = (TRK, TRP, TRK)[t]
            return trpair(('v', WR + 4 * (n % 6) if dst is None else dst), f"v{addr+(s&3)}", (s >> 2) * 8192, 512)

        def wf(t, s):
            return v(WR + 4 * ((t * 32 + s) % 6), 4)

        def csm(f, first):
            return mf16(CSA, SEL, f, "0" if first else None)

        def cswrite(t):
            S = split2(41, CSA, 41)
            S(f"ds_write_b32 {XCW}, v41 offset:{t*512}", tag=f"x{t}")
            return list(S)

        def csget(t):
            return [Inst(f"ds_read_b64 {v(WP+4*t,2)}, {XCR} offset:{t*512}")]

        def xread(s):
            return [Inst(f"ds_read_b128 {a_(4*s,4)}, v{10+(s&3)} offset:{(s>>2)*8192}")]

        p.extend(flat(d1[n1:]))
        d2 = self.dmaA(2)
        n2_ = o.get('d2', 4)
        p.extend(flat(d2[:n2_]))
        self.stamp("A_issued")
        p("WAITTAG A0\ns_barrier")
        self.stamp("A_c0")
        p.extend(xread(0) + wread(0, 0) + xread(1) + wread(0, 1))
        p.extend(flat(d2[n2_:]))
        pend = self.dmaA(3)
        for s in range(32):
            c, j = s >> 2, s & 3
            xf = a_(4 * s, 4)
            z = "0" if s == 0 else None
            p.append(mf32(AK, xf, wf(0, s), z))
            if j == 2 and c < 7:
                p(f"WAITTAG A{c+1}\ns_barrier")
                self.stamp(f"a{c+1}")
                assert not pend
                if c == 1:
                    p(f"s_cmp_ge_u32 s2, {sB}")
                    self.ool("s_cbranch_scc1", f"{probe}\nbuffer_atomic_add v46, {FA1}, {DBG}, 0 offen sc1")
                if c + 4 < 8:
                    pend = self.dmaA(c + 4)
                else:
                    pend = self.dmaW(1, 2 * (c - 4)) + self.dmaW(1, 2 * (c - 4) + 1)
            if s == 30:
                p("WAITTAG V1\ns_barrier")
                pend = self.dmaW(1, 6)
            if s + 2 < 32:
                p.extend(xread(s + 2) + wread(0, s + 2))
            else:
                p.extend(wread(1, s + 2 - 32))
            if s == 28:
                p("ds_read_b128 v[24:27], v14\nds_read_b128 v[28:31], v15", tag="xres")
            for _ in range(2 if s < 2 else 1):
                if pend:
                    p.extend(pend.pop(0))
            if j % 2 == 0:
                p.append(csm(wf(0, s), s == 0))
            if j < 2:
                p.append(mf16(XS, SEL, xf, z))
                p.append(mf4(XQ0, a_(4 * s, 2), a_(4 * s, 2), z))
                p.append(mf4(XQ1, a_(4 * s + 2, 2), a_(4 * s + 2, 2), z))
            if s == 30:
                for k in range(4):
                    p(f"v_add_f32 v{XQ0+k}, v{XQ0+k}, v{XQ1+k}")
                p(f"""v_cndmask_b32 v197, v{XQ0}, v{XQ0+1}, s[96:97]
                     v_cndmask_b32 v197, v197, v{XQ0+2}, s[98:99]
                     v_cndmask_b32 v197, v197, v{XQ0+3}, s[70:71]
                     v_mov_b32 v196, v197""")
            if s == 31:
                p(f"""v_permlane32_swap_b32 v196, v197
                     v_add_f32 v{XS+1}, v196, v197
                     ds_write_b64 {STW}, {v(XS,2)}""")
                p.extend(cswrite(0))
        assert not pend
        self.stamp("A_loop")
        CT = (204, 208, ZA)
        kb = o.get('kb', 9)

        def tilepass(t, acc, order):
            nm = "VQ"[t - 1]
            G = []
            for s in range(32):
                A_, B_ = (a_(4 * s, 4), wf(t, s)) if order == 0 else (wf(t, s), a_(4 * s, 4))
                g = Seq()
                g.append(mf32(acc, A_, B_, "0" if s == 0 else None))
                if t == 1 and s == 2:
                    g("WAITTAG x0 xres V3\ns_barrier")
                    g(f"ds_read_b64 v[198:199], {STR}")
                    g.extend(csget(0))
                if s % 8 == 4 and s < 28 and (t, s) != (1, 4):
                    g(f"WAITTAG {nm}{(s+4)//4+1} kvp\ns_barrier")
                elif t == 2 and s == kb:
                    g("WAITTAG kvp\ns_barrier")
                if s == 28:
                    g(f"WAITTAG x{t}" + (" Q1" if t == 1 else "") + "\ns_barrier")
                    g.extend(csget(t))
                if t == 1 and s < 2:
                    g.extend(wread(t, 2 + 2 * s) + wread(t, 3 + 2 * s))
                elif s + 4 < 32:
                    g.extend(wread(t, s + 4))
                elif t == 1:
                    g.extend(wread(2, s + 4 - 32))
                if s in (20, 21, 22):
                    g.extend(wread(t, 26 + 2 * (s - 20), CT[s - 20]))
                if s % 2 == 0 and s < 26 and (t, s) != (1, 0):
                    g.append(csm(wf(t, s), (t, s) == (2, 0)))
                if (t, s) == (1, 1):
                    g.append(csm(wf(t, 0), True))
                if s in (23, 24, 25):
                    g.append(csm(v(CT[s - 23], 4), False))
                if s == 26:
                    g.extend(cswrite(t))
                G.append(list(g))
            return G

        def phi(acc, scale, T, dst):
            S = Seq()
            for h in range(2):
                r = range(8 * h, 8 * h + 8)
                for i in r:
                    S(f"v_fma_f32 v{acc+i}, v{acc+i}, {scale(i)}, {sEPS6}")
                for i in r:
                    S(f"v_mul_f32 v{T+(i&7)}, {sLOG2E}, v{acc+i}")
                for i in r:
                    S(f"v_exp_f32_e64 v{T+(i&7)}, v{T+(i&7)} clamp")
                    S(f"v_max_f32 v{acc+i}, {sEPS6}, v{acc+i}")
                for i in r:
                    S(f"v_add_f32 v{acc+i}, v{acc+i}, v{T+(i&7)}")
                for i in range(4 * h, 4 * h + 4):
                    S(f"v_cvt_pk_bf16_f32 v{dst+i}, v{acc+2*i}, v{acc+2*i+1}")
            return S
        E = Seq()
        E(f"""v_add_f32 v198, v198, v{XS}
             v_add_f32 v197, v199, v{XS+1}
             v_mul_f32 v199, 0x3b000000, v198
             v_mul_f32 v197, 0x3b000000, v197
             v_cvt_pk_bf16_f32 v198, -v199, -v199
             v_fma_f32 v197, -v199, v199, v197
             v_cndmask_b32 v{XM}, v198, 0, {sHILANES}
             v_cndmask_b32 v{XM+1}, v198, 0, {sHILANES}
             v_max_f32 v197, 0, v197
             v_add_f32 v197, 0x3727c5ac, v197
             v_rsq_f32 v40, v197""")
        E.append(mf32(AK, v(XM, 4), v(WP, 4)))
        E.extend(split2(RS_, 40, 198))
        E(f"v_cndmask_b32 v{RS_}, v{RS_}, 0, {sHILANES}")
        E.append(mf32(RB, v(RS_, 4), ONES, "0"))
        PK = phi(AK, lambda i: f"v{RB+i}", 196, 180)
        G = tilepass(1, AV, 0)
        G = weave(G, self.dmaW(1, 7), 0, 2)
        G = weave(G, flat([self.dmaW(2, k) for k in range(8)]), 3, o.get('q2end', 30))
        G[0] += [Inst(f"v_subrev_u32 v{TRK+j}, {hex(VB)}, v{TRP+j}") for j in range(4)]
        G[12] += [Inst(f"buffer_load_dword v5, {FA1}, {DBG}, 0 offen sc1")]
        n2 = o.get('pk2', 88)
        G = weave(G, list(E), 4, 8)
        G = weave(G, PK[:n2], 10, 32)
        for k in range(3, 31, 4):
            G[k] += self.sub(lambda: self.stamp(f"v{k}"))
        p.extend(flat(G))
        p.append(mf32(AV, v(XM, 4), v(WP + 4, 4)))
        self.stamp("A_v")
        E = Seq()
        E.extend(PK[n2:])
        for i in range(16):
            E(f"v_mul_f32 v{AV+i}, v{AV+i}, v{RB+i}")
        for i in range(8):
            E(f"v_cvt_pk_bf16_f32 v{188+i}, v{AV+2*i}, v{AV+2*i+1}")
        G = tilepass(2, AQ, 1)
        rq = self.rload()
        if o.get('nor'):
            rq = []
        if touch & 2:
            rq = [[Inst(f"buffer_load_dword v42, v42, {WO}, {sCc} offen")]] + rq
        G = weave(G, rq, o.get('r0', 0), o.get('r1', 7))
        if o.get('rwait'):
            G[o.get('r1', 7)] += list(Seq()("WAITALL vm")) + self.sub(lambda: self.stamp("A_rland"))
        woq = flat([self.dmaWO(q) for q in range(8)])
        nw3 = o.get('wo3', 0)
        G[13] += [Inst(f"s_lshl_b32 {sB}, {sW}, 12")]
        if nw3:
            G = weave(G, woq[:nw3], o.get('wo30', 26), 32)
        G = weave(G, list(E), 0, kb - 5)
        G[kb - 5] += [mf32(AKV, v(180, 4), v(188, 4), "0"), mf32(AKV, v(184, 4), v(192, 4)),
                 mf16(ZA, SEL, v(180, 4), "0"), mf16(ZA, SEL, v(184, 4))]
        G[kb - 4] += self.sub(lambda: self.spin("v5", None, "0", "1", "32", srd=DBG, mode='check', sleep=4, field=63))
        S = Seq()
        S(f"""v_readfirstlane_b32 {sT2}, v5
             s_bfe_u32 {sT3}, {sT2}, 0x60006
             s_bfe_u32 {sT4}, {sT2}, 0x6000c
             s_lshr_b32 {sT2}, {sT2}, 5""")
        S = [[i] for i in S] + [list(Seq()(f"""s_cmp_gt_u32 {sT4}, {sT3}
             s_cselect_b32 {sT3}, {'0, -1' if o.get('parx') else '-1, 0'}"""))]
        S += [[i] for i in Seq()(f"""s_xor_b32 {sTBL}, {sT2}, {sT3}
             s_lshr_b32 {sT2}, {sTBL}, {sKC}
             s_lshl_b32 {sT3}, {sG}, 10
             s_xor_b32 {sP1}, {sT2}, {sT3}
             s_and_b32 {sP1}, {sP1}, 0x2000
             s_xor_b32 {sPQS}, {sPQS}, {sP1}
             s_lshr_b32 {sPE}, {sTBL}, 3
             s_and_b32 {sPE}, {sPE}, 0x2000
             s_lshl_b32 {sT4}, {sG}, 12
             s_xor_b32 {sP2}, {sT3}, {sT4}
             s_and_b32 {sP2}, {sP2}, 0x2000
             s_xor_b32 {sP2}, {sP2}, {sPE}
             s_xor_b32 {sHS}, {sHS}, {sP2}
             v_mov_b32 v176, 0
             v_lshrrev_b32_e64 {P4K}, v1, {sTBL}
             v_and_b32 {P4K}, 0x2000, {P4K}
             v_lshl_add_u32 {P4K}, v1, 14, {P4K}
             v_or_b32 {P4K}, {P4K}, {LM8}""")]
        S += [[Inst(f"buffer_store_dwordx4 v[176:179], {L16}, {WS}, {sHS} offen offset:3072 sc1", tag="pub1")]]
        G = weave(G, S, 19, 31)
        S = Seq()
        for i in range(8):
            S(f"v_cndmask_b32 v{196+i}, v{AKV+i}, v{AKV+8+i}, {sB4LANES}")
        S(f"""ds_write_b128 {KVW}, v[196:199]
             ds_write_b128 {KVW}, v[200:203] offset:512""")
        S(f"ds_write_b32 {ZW}, v{ZA}", tag="kvp")
        G = weave(G, list(S), kb - 3, kb - 1)
        S = Seq()
        for k in range(4):
            S(f"ds_read2st64_b32 v[{112+2*k}:{113+2*k}], {KVR} offset0:{k} offset1:{k+8}")
        S(f"ds_read2_b32 v[120:121], {ZR} offset0:0 offset1:32")
        G = weave(G, list(S), kb, kb + 2)
        S = Seq()
        for k in range(5):
            S(f"v_add_f32 v{112+2*k}, v{112+2*k}, v{113+2*k}")
        for k in range(4):
            S(f"buffer_atomic_add_f32 v{112+2*k}, {L4}, {WS}, {sKVA} offen offset:{k*256}", tag="pub1")
        S(f"buffer_atomic_add_f32 v120, {ZAT}, {WS}, {sZA} offen", tag="pub1")
        G = weave(G, list(S), kb + 3, kb + 8)
        for k in range(3, 31, 4):
            G[k] += self.sub(lambda: self.stamp(f"v{k}"))
        p.extend(flat(G))
        p.append(mf32(AQ, v(WP + 8, 4), v(XM, 4)))
        self.stamp("A_q")
        woq = woq[nw3:]
        t1, t3, t2 = o.get('wot1', 0), o.get('wot3', 6), o.get('wot2', 2)
        assert nw3 + t1 == 0
        p.extend(flat(woq[:t1]))
        woq = woq[t1:]
        ph = phi(AQ, lambda i: "v40", 196, 180)
        h = len(ph) // 2
        p.extend(ph[:h])
        p(f"buffer_store_dwordx4 v[180:183], {L16}, {WS}, {sPQS} offen sc1", tag="pub1")
        p.extend(ph[h:])
        p(f"buffer_store_dwordx4 v[184:187], {L16}, {WS}, {sPQS} offen offset:1024 sc1", tag="pub1")
        self.stamp("A_pqst")
        p("s_barrier")
        MB = list(self.miscB()) + self.miscC()
        nb = o.get('mb1', 140)
        assert nb >= len(self.miscB())
        p.extend(flat(woq[:t3]))
        p("s_nop 0")
        p.extend(MB[:nb])
        p("s_nop 0")
        p.extend(flat(woq[t3:t3 + t2]))
        woq = woq[t3 + t2:]
        p("WAITTAG pub1\ns_barrier")
        p(f"buffer_atomic_add v4, {P4K}, {WS}, {sSIG} offen sc1")
        self.stamp("A_sig")
        for s in range(4):
            p.extend(trpair(('a', 128 + 4 * s), RT13, s * 6144, 512))
        p.extend(trpair(('a', 144), RT2A, 4096, 512) + trpair(('a', 148), RT2B, 4096, 512))
        t4 = o.get('wot4', 16)
        assert t3 + t2 + t4 >= 16
        p.extend(flat(woq[:t4]))
        for s in range(4):
            p.append(mf16(RCS, SEL, a_(128 + 4 * s, 4), "0" if s == 0 else None))
            p(f"buffer_store_dwordx4 {a_(128+4*s,4)}, {L16}, {WS}, {sRW} offen offset:{s*1024} sc1", tag="pubR")
        p(f"buffer_store_dwordx4 a[144:147], {L16}, {WS}, {sR2} offen sc1", tag="pubR")
        p(f"buffer_store_dwordx4 a[148:151], {L16}, {WS}, {sR2} offen offset:1024 sc1", tag="pubR")
        p(f"buffer_atomic_add_f32 v{RCS}, {CSAT}, {WS}, {sRC} offen", tag="pubR")
        self.stamp("A_rst")
        p(f"s_add_u32 {sSIG}, {sSIG}, 4096")
        self.wo_rest = woq[t4:]
        self.mb_rest = MB[nb:]

    def dmaT(self, t, slot):
        g = []
        for h in range(2):
            S = Seq()
            S(f"s_add_u32 m0, {bTL}, {slot*32768+h*4096}\ns_add_u32 {sT0}, {bTX if self.o.get('grp', 1) and par13(t) else bTA}, {t*65536+h*4096}")
            for k in range(4):
                S(f"buffer_load_dwordx4 {L16}, {WS}, {sT0} offen offset:{k*1024} sc1 lds", tag=f"T{t}")
                g.append(list(S))
                S = Seq()
            ctx(g[-4:])
        return g

    def phaseB(self):
        p = self.p
        o = self.o
        AH = 192
        W = [trpair(('a', 4 * i), f"v{WOT+((i>>2)&3)}", (i & 3) * 4096, 1024) for i in range(32)]
        PQR = 224
        LD = [Inst(f"buffer_load_dwordx2 v[32:33], v41, {WS}, {sZL} offen sc1")]
        for q in range(4):
            for i in (2 * q, 2 * q + 1):
                LD.append(Inst(f"buffer_load_dwordx4 {v(48+4*i,4)}, {L16}, {WS}, {sKVL if i < 4 else bK2} offen offset:{(i&3)*1024} sc1"))
            for i in (2 * q, 2 * q + 1):
                LD.append(Inst(f"buffer_load_dwordx4 {a_(PQR+4*i,4)}, {L16}, {WS}, {sPQL if i < 4 else bQ2} offen offset:{(i&3)*1024} sc1"))
        ZB = Seq()(f"v_cvt_pk_bf16_f32 v32, v32, v33\nds_write_b32 {ZBW}, v32")
        for k in range(4):
            ZB(f"ds_read_b128 {v(96+4*k,4)}, {ZBR} offset:{k*64}")
        p("WAITTAG WO0\ns_barrier")
        self.stamp("B_wo")
        p.extend(flat(W[:16]))
        for q in range(4):
            p(f"v_add_u32 v{WOT+q}, 0x10000, v{WOT+q}")
        p.extend(self.mb_rest)
        self.stamp("B_prepoll")
        self.spin("v5", P256, bGP, "0xffff", "16", sleep=o.get('sleep1', 1), wave=o.get('pw', 1))
        p("WAITTAG pubR\nWAITALL lgkm\ns_barrier")
        self.stamp("B_sync1")
        p(f"buffer_atomic_add v4, {P4K}, {WS}, {sSIG} offen sc1")
        nl0 = o.get('nl0', 13)
        p.extend(LD[:9] + ZB + LD[9:nl0])

        def prep(q):
            S = Seq()
            for k in range(4):
                S(f"v_cvt_pk_bf16_f32 v{80+4*q+k}, v{48+8*q+2*k}, v{48+8*q+2*k+1}")
            for k in range(4):
                S(f"v_cndmask_b32 v{112+8*q+k}, v{80+4*q+k}, v{96+4*q+k}, {sB4LANES}")
            for k in range(4):
                S(f"v_cndmask_b32 v{116+8*q+k}, v{96+4*q+k}, v{80+4*q+k}, {sB4LANES}")
            return S
        NA = [144, 160, 176]
        steps = [(pr, t) for pr in range(4) for t in range(3)]
        steps += [(pr, t) for t in (3, 4, 5, 6) for pr in range(4)]
        w2o = [f"{cW2x if o.get('grp', 1) and par2(pr, t) else cW2}, {pr * 32768 + (t >> 2) * 16384 + (t & 3) * 2048}" for pr, t in steps]
        hho = [pr * 16384 + t * 1024 for pr, t in steps]
        w2l = []
        for i in range(16):
            S = Seq()
            S(f"s_add_u32 {sKC}, {w2o[i]}")
            S(f"buffer_load_dwordx4 {a_(128+8*i,4)}, {W2A}, {WS}, {sKC} offen sc1")
            w2l.append(list(S))
            w2l.append([Inst(f"buffer_load_dwordx4 {a_(132+8*i,4)}, {W2B}, {WS}, {sKC} offen sc1")])
            ctx(w2l[-2:])
        self.steps, self.w2o, self.hho = steps, w2o, hho
        TQ = flat([self.dmaT(t, t) for t in range(2)]) + w2l
        n2, n3 = o.get('tq2', 6), o.get('tq3', 10)

        def num(i):
            return mf32(NA[i % 3], v(112 + 4 * i, 4), a_(PQR + 4 * i, 4), "0")

        def fin(i):
            n = NA[i % 3] + 8 * (i & 1)
            d = NA[i % 3] + 8 * (1 - (i & 1))
            S = Seq()
            S(f"v_add_f32 v{d}, {sEPS6}, v{d}\nv_rcp_f32 v{d}, v{d}")
            for k in range(8):
                S(f"v_mul_f32 v{n+k}, v{n+k}, v{d}")
            for k in range(4):
                S(f"v_cvt_pk_bf16_f32 v{48+4*i+k}, v{n+2*k}, v{n+2*k+1}")
            return S

        def owrite(i):
            return Inst(f"ds_write_b128 v{OAD}, {v(48+4*i,4)} offset:{(i>>2)*16384+(i&3)*1024}", tag=f"o{i}")

        OR = (16, 20, 36, 44, 208, 248)

        def oreg(k):
            return OR[k % 6] if k < 16 else 80 + 4 * (k & 7)

        def oread(k):
            return Inst(f"ds_read_b128 {v(oreg(k),4)}, v{OAD+((k>>2)&3)} offset:{(k>>4)*16384+(k&3)*1024}")

        def acc(k):
            own = (k & 12) == 0
            return mf32(AH, a_(4 * k, 4), v(48 + 4 * ((k >> 4) * 4 + (k & 3)) if own else oreg(k), 4))
        self.stamp("bz")
        p.extend(prep(0))
        self.stamp("bp")
        p.append(num(0))
        p.append(num(1))
        VM = [[x] for x in LD[nl0:]] + list(self.wo_rest)
        per = o.get('per', 3)
        rl, rc = o.get('rl', 7), o.get('rc', 8)
        kk = 4
        for i in range(8):
            if i + 2 < 8:
                if i % 2 == 0:
                    p.extend(prep(i // 2 + 1))
                p.append(num(i + 2))
            if i >= 1:
                p.append(owrite(i - 1))
            if i == 5:
                p("WAITTAG o3\ns_barrier")
                p.extend([oread(k) for k in range(4, 9)])
            for _ in range(per):
                if VM:
                    p.extend(VM.pop(0))
            if i == rl:
                p(f"buffer_load_dword v5, {P256}, {WS}, {bRP} offen sc1")
            F = fin(i)
            self.stamp(f"b{i}")
            if i < 5:
                p.extend(F[:7])
                if i >= 1:
                    p.append(acc(i - 1))
                p.extend(F[7:])
            else:
                cuts = (8, 14) if i == 5 else (2, 6, 10, 14)
                lo = 0
                for c in cuts:
                    p.extend(F[lo:c])
                    lo = c
                    p.append(acc(kk))
                    if kk + 5 < 16:
                        p.append(oread(kk + 5))
                    kk += 1
        p.append(owrite(7))
        assert not VM
        self.stamp("B_st1")
        p.append(acc(kk))
        p("WAITTAG WO1 o7\ns_barrier")
        for k in range(16, 20):
            p.extend(W[k])
        assert kk == 14
        G = [[acc(15)] + W[20] + [oread(20)]]
        for k in range(16, 32):
            g = [acc(k)]
            if k + 5 < 32:
                g += W[k + 5] + [oread(k + 5)]
            G.append(g)
        if rl >= 8:
            G[rl - 8] += [Inst(f"buffer_load_dword v5, {P256}, {WS}, {bRP} offen sc1")]
        G[rc] += self.sub(lambda: self.spin("v5", P256, bRP, "0xffff", "16", mode='check', sleep=2))
        G = weave(G, TQ[:n2], rc + 1, 17)
        p.extend(flat(G))
        for k in range(8):
            p(f"v_cvt_pk_bf16_f32 v{48+k}, v{AH+2*k}, v{AH+2*k+1}")
            if k == 3:
                p(f"buffer_store_dwordx4 v[48:51], {L16}, {WS}, {sHST} offen sc1", tag="pub2")
        p(f"buffer_store_dwordx4 v[52:55], {L16}, {WS}, {sHST} offen offset:1024 sc1", tag="pub2")
        p(f"v_add_f32 v56, v{AH}, v{AH+1}\nv_mul_f32 v57, v{AH}, v{AH}\nv_add_f32 v58, v{AH+2}, v{AH+3}\nv_mul_f32 v59, v{AH+1}, v{AH+1}")
        for k in range(2, 16):
            if k >= 4:
                p(f"v_add_f32 v{56+2*(k&1)}, v{56+2*(k&1)}, v{AH+k}")
            p(f"v_fmac_f32 v{57+2*(k&1)}, v{AH+k}, v{AH+k}")
        p("""v_add_f32 v56, v56, v58
             v_add_f32 v57, v57, v59
             v_permlane32_swap_b32 v56, v57
             v_add_f32 v56, v56, v57""")
        p(f"buffer_atomic_add_f32 v56, {L4}, {WS}, {sSTA} offen", tag="pub2")
        self.stamp("B_hst")
        p.extend(flat(TQ[n2:n2 + n3]))
        p(f"WAITTAG pub2\nbuffer_store_dword v4, {FA1}, {WS}, {sD} offen offset:512 sc1\ns_barrier")
        self.t1_late = n2 < 16
        self.stamp("B_sig")
        self.tq_rest = TQ[n2 + n3:]

    def miscC(self):
        M = Seq()
        M(f"""s_bfe_i32 {sT1}, {sTBL}, 0x10010
             s_xor_b32 {sT1}, {sT1}, {sTBL}
             s_and_b32 {sT1}, {sT1}, 0xe000
             s_bcnt1_i32_b32 {sT1}, {sT1}
             s_sub_u32 {sT1}, {sKC}, {sT1}""")
        if self.o.get('cmap', 1):
            M(f"""s_and_b32 {sGC}, {sT1}, 4
                 s_lshl_b32 {sGC}, {sGC}, 1
                 s_and_b32 {sT2}, {sU}, 7
                 s_add_u32 {sGC}, {sGC}, {sT2}
                 s_and_b32 {sMC}, {sT1}, 3
                 s_lshl_b32 {sMC}, {sMC}, 2
                 s_lshr_b32 {sT2}, {sU}, 3
                 s_add_u32 {sMC}, {sMC}, {sT2}""")
        else:
            M(f"""s_and_b32 {sGC}, {sT1}, 6
                 s_lshl_b32 {sGC}, {sGC}, 1
                 s_add_u32 {sGC}, {sGC}, {sRQ}
                 s_and_b32 {sMC}, {sT1}, 1
                 s_lshl_b32 {sMC}, {sMC}, 3
                 s_lshr_b32 {sT2}, {sU}, 2
                 s_add_u32 {sMC}, {sMC}, {sT2}""")
        M(f"""s_lshl_b32 {sT1}, {sGC}, 10
             s_lshl_b32 {sT2}, {sGC}, 12
             s_xor_b32 {sP2}, {sT1}, {sT2}
             s_and_b32 {sP2}, {sP2}, 0x2000
             s_xor_b32 {sP2}, {sP2}, {sPE}
             s_lshl_b32 {bTA}, {sMC}, 19
             s_add_u32 {bTA}, {bTA}, {sXL}
             s_and_b32 {sT2}, {sMC if self.o.get('grp', 1) else sW}, 1
             s_lshl_b32 {sT2}, {sT2}, 13
             s_add_u32 {bTA}, {bTA}, {sT2}
             s_add_u32 {bTA}, {bTA}, {hex(W13R)}
             s_xor_b32 {bTX}, {bTA}, 0x2000""")
        M(f"""s_lshl_b32 {sT1}, {sGC}, 2
             s_add_u32 {sT2}, {sT1}, {sW}
             s_lshl_b32 {cHS2}, {sT2}, 4
             s_add_u32 {cHS2}, {cHS2}, {sMC}
             s_lshl_b32 {cHS2}, {cHS2}, 14
             s_add_u32 {cHS2}, {cHS2}, {hex(HH+4096)}
             s_xor_b32 {cHS2}, {cHS2}, {sP2}
             s_lshl_b32 {cHB}, {sT2}, 16
             s_add_u32 {cHB}, {cHB}, {hex(HB)}
             s_xor_b32 {cHB}, {cHB}, {sPE}
             s_sub_u32 {cHS}, {cHS2}, 4096
             s_lshl_b32 {sT3}, {sMC}, 14
             s_sub_u32 {cPL}, {cHS2}, {sT3}
             s_add_u32 {cPL}, {cPL}, {3072+512}
             s_add_u32 {cST}, {cPL}, 256
             v_lshlrev_b32 {HPA}, 14, v1
             v_and_b32 {PA2}, 12, {L4}
             v_or_b32 {PA2}, {PA2}, {LM8}
             v_bfe_u32 v44, v1, 2, 1
             v_lshl_add_u32 {PA2}, v44, 18, {PA2}
             s_mul_i32 {cCS}, {sMC}, {7*128}
             s_add_u32 {cCS}, {cCS}, {hex(CS)}
             s_and_b32 {sCB}, {sMC}, 7
             s_lshl_b32 {cW2}, {sCB}, 19
             s_lshl_b32 {sT3}, {sW}, 17
             s_add_u32 {cW2}, {cW2}, {sT3}
             s_and_b32 {sT3}, {sCB if self.o.get('grp', 1) else sW}, 1
             s_lshl_b32 {sT3}, {sT3}, 13
             s_add_u32 {cW2}, {cW2}, {sT3}
             s_add_u32 {cW2}, {cW2}, {hex(W2R)}
             s_xor_b32 {cW2x}, {cW2}, 0x2000
             s_and_b32 {sT3}, {sW}, 1
             s_lshl_b32 {sT2}, {sT3}, 10
             v_add_u32 {W2A}, {sT2}, {L16}
             v_xor_b32 {W2B}, 1024, {W2A}
             v_lshrrev_b32 v44, 4, v1
             v_lshl_add_u32 {LB0}, v44, {8 if self.o.get('c16', 1) else 31}, {L16}
             v_and_b32 {LB0}, 0xffff, {LB0}
             v_add_u32 {LB1}, 0x10000, {LB0}
             v_add_u32 {LB2}, 0x20000, {LB0}
             s_add_u32 {sT2}, {bTL}, 0x10000
             v_add_u32 {WLA}, {sT2}, {W2A}
             v_add_u32 {WLB}, {sT2}, {W2B}
             v_add_u32 {WLC}, 0x10000, {WLA}
             v_add_u32 {WLD}, 0x10000, {WLB}
             v_and_b32 {CSL}, 0x7c, {L4}
             s_lshr_b32 {sT2}, {sMC}, 3
             s_lshl_b32 {sT2}, {sT2}, 1
             s_add_u32 {sT1}, {sT1}, {sT2}
             s_lshl_b32 {cHL}, {sT1}, 18
             s_lshl_b32 {sT2}, {sW}, 16
             s_add_u32 {cHL}, {cHL}, {sT2}
             s_add_u32 {cHL}, {cHL}, {hex(HH)}
             s_xor_b32 {cHL}, {cHL}, {sP2}
             s_lshr_b32 {sT2}, {sW}, 1
             s_add_u32 {sT1}, {sT1}, {sT2}
             s_lshl_b32 {sT2}, {sT2}, 18
             v_add_u32 {HHA}, {sT2}, {L16}
             v_xor_b32 {HHB}, 0x40000, {HHA}
             s_lshl_b32 {sT1}, {sT1}, 15
             s_lshl_b32 {sT2}, {sCB}, 1
             s_add_u32 {sT2}, {sT2}, {sT3}
             s_lshl_b32 {cOUT}, {sT2}, 6
             s_add_u32 {cOUT}, {cOUT}, {sT1}
             s_lshr_b32 {cHR}, {sT2}, 2
             s_lshl_b32 {cHR}, {cHR}, 13
             s_add_u32 {cHR}, {cHR}, {sT1}
             s_and_b32 {sT2}, {sT2}, 3
             s_lshl_b32 {sT2}, {sT2}, 10
             s_add_u32 {cHR}, {cHR}, {sT2}
             s_lshl_b32 {cHR}, {cHR}, 1
             s_add_u32 {cHR}, {cHR}, {hex(HB)}
             s_xor_b32 {cHR}, {cHR}, {sPE}
             s_add_u32 {cPP}, {cHL}, 7168
             s_add_u32 {cPQ}, {cPP}, 0x40000
             s_and_b32 {sT3}, {sMC}, 3
             s_mul_i32 {sT3}, {sT3}, {16384-4}
             s_sub_u32 {cPS}, {cHS2}, {sT3}""")
        return list(M)

    def phaseCD(self):
        p = self.p
        o = self.o
        sub = self.sub
        bar = lambda s_: list(Seq()(s_))
        steps, w2o, hho = self.steps, self.w2o, self.hho

        def dmaW2(part):
            g = []
            for k in range(4):
                S = Seq()
                S(f"s_add_u32 m0, {bTL}, {(2+part)*32768+k*2048}\ns_add_u32 {sT0}, {w2o[16+4*part+k]}")
                S(f"buffer_load_dwordx4 {L16}, {WS}, {sT0} offen sc1 lds", tag=f"W2L{part}")
                g.append(list(S))
                g.append([Inst(f"buffer_load_dwordx4 {L16}, {WS}, {sT0} offen offset:1024 sc1 lds", tag=f"W2L{part}")])
                ctx(g[-2:])
            return g

        def pub(tag, st):
            if o.get('nopub'):
                return []
            return bar(f"WAITTAG {tag}\nbuffer_store_dword v4, {FA1}, {WS}, {cPS} offen offset:{3072+128*st} sc1")

        vp = str(o.get('vp', 'x0123'))

        def pollld(st):
            if o.get('nopoll'):
                return []
            if str(st) in vp:
                return bar(f"buffer_load_dword v5, {PA2}, {WS}, {cPP} offen sc1")
            return list(Seq()(f"""s_buffer_load_dwordx4 s[8:11], {WS}, {cPP} glc
                 s_buffer_load_dwordx4 s[12:15], {WS}, {cPQ} glc""", cond=True))

        def pollchk(st):
            if o.get('nopoll'):
                return []
            if str(st) in vp:
                return sub(lambda: self.spin("v5", PA2, cPP, "0xff", "1", mode='check', sleep=o.get('sleep2', 2))) + \
                    bar(f"s_add_u32 {cPP}, {cPP}, 128\ns_add_u32 {cPQ}, {cPQ}, 128")
            red = """s_and_b64 s[8:9], s[8:9], s[10:11]
                 s_and_b64 s[12:13], s[12:13], s[14:15]
                 s_and_b64 s[8:9], s[8:9], s[12:13]
                 s_and_b32 s8, s8, s9"""

            def f():
                Lp = self.lab("sp")
                if o.get('stamps') == 3:
                    self.p(f"s_mov_b32 {sT5}, 0")
                self.p("WAITALL lgkm\n" + red)
                self.ool("s_cbranch_scc0", f"""s_mov_b32 {sT5}, 0
                     {Lp}:
                     s_sleep {o.get('sleep2', 2)}
                     s_buffer_load_dwordx4 s[8:11], {WS}, {cPP} glc
                     s_buffer_load_dwordx4 s[12:15], {WS}, {cPQ} glc
                     s_add_u32 {sT5}, {sT5}, 1
                     s_waitcnt lgkmcnt(0)
                     {red}
                     s_lshr_b32 s9, {sT5}, 15
                     s_or_b32 s8, s8, s9
                     s_cbranch_scc0 {Lp}""")
                self.p(f"s_add_u32 {cPP}, {cPP}, 128\ns_add_u32 {cPQ}, {cPQ}, 128")
                if o.get('stamps') == 3:
                    self.p(f"v_writelane_b32 v{STV}, {sT5}, {self.nstamp}")
                    self.nstamp += 1
                    self.stamp_names.append(f"P{st}")
            return sub(f)

        kt = max(0, len(self.tq_rest) - 32)
        FQ = self.tq_rest[:kt] + self.dmaT(2, 2) + self.dmaT(3, 3) + self.dmaT(4, 4) + self.tq_rest[kt:]
        npre = o.get('tq4', 12)
        p.extend(flat(FQ[:npre]))
        FQ = FQ[npre:]
        self.stamp("C_prepoll")
        self.spin("v5", HPA, cPL, "0xffff", "1", mode='all', sleep=o.get('sleep3', 0))
        self.stamp("C_sync2")

        c16 = o.get('c16', 1)
        fo = (lambda s: (s >> 1) * 2048 + (s & 1) * 256) if c16 else (lambda s: s * 1024)

        def hload(s):
            S = Seq()
            if s % 4 == 0 and s:
                S(f"s_add_u32 {cHB}, {cHB}, {4096 if s % 8 else 12288}")
            S(f"buffer_load_dwordx4 {a_(4*s,4)}, {LB0}, {WS}, {cHB} offen offset:{fo(s&3)} sc1")
            return list(S)
        HL = o.get('hla', 8)
        for s in range(HL):
            p.extend(hload(s))
        if self.t1_late:
            p("WAITTAG T1\ns_barrier")
        ACC = [48, 64, 80, 96, 112]
        acc_of = [0, 1, 2, 3, 0, 1, 2]
        slot_of = [0, 1, 2, 3, 4, 0, 1]
        WR, NR = 128, 8
        CSR, CSF, MEANF, C1, C2 = 160, 168, 176, 180, 181
        T = 184
        LK = o.get('lk', 5)
        F0 = Seq()
        for k in range(4):
            F0(f"buffer_load_dword v{T+4+k}, {L4}, {WS}, {cST} offen sc1\ns_add_u32 {cST}, {cST}, 16384")
        for t in range(7):
            F0(f"buffer_load_dword v{CSR+t}, {CSL}, {WS}, {cCS} offen offset:{t*128} sc1")
        F1 = Seq()
        for k in (1, 2, 3, 5, 6, 7):
            F1(f"v_mov_b32 v{CSF+k}, 0")
        for k in (1, 2, 3):
            F1(f"v_mov_b32 v{MEANF+k}, 0")
        CSU, CSG, MEANG = 213, 220, 228
        if c16:
            for k in (1, 2, 3, 5, 6, 7, 9, 10, 11):
                F1(f"v_mov_b32 v{CSG+k}, 0")
        F1(f"""v_add_f32 v{T}, v{T+4}, v{T+5}
             v_add_f32 v{T+1}, v{T+6}, v{T+7}
             v_add_f32 v{T}, v{T}, v{T+1}
             v_mov_b32 v{T+1}, v{T}
             v_permlane32_swap_b32 v{T}, v{T+1}
             v_mul_f32 v{T}, 0x3b000000, v{T}
             v_mul_f32 v{T+1}, 0x3b000000, v{T+1}
             v_cvt_pk_bf16_f32 v{MEANF}, -v{T}, -v{T}
             v_fma_f32 v{T+1}, -v{T}, v{T}, v{T+1}
             v_max_f32 v{T+1}, 0, v{T+1}
             v_add_f32 v{C2}, 0x3727c5ac, v{T+1}
             v_rsq_f32 v{C1}, v{C2}""")
        for t in range(7):
            F1.extend(split2(CSR + t, CSR + t, T + 2))
        F1(f"v_mul_f32 v{C1}, 0xbfb8aa3b, v{C1}")
        if c16:
            prs = [(MEANF, MEANG), (C1, C1 + 2), (C2, C2 + 2)] + [(CSR + t, CSU + t) for t in range(7)]
            for x, y in prs:
                F1(f"v_mov_b32 v{y}, v{x}")
            for x, y in prs:
                F1(f"v_permlane16_swap_b32 v{x}, v{y}")
            F1(f"""s_mov_b64 s[8:9], 0xffff
                 v_cndmask_b32 v{MEANF}, 0, v{MEANF}, s[8:9]
                 v_cndmask_b32 v{MEANG}, 0, v{MEANG}, s[8:9]
                 v_mov_b32 v{CSG}, v{CSU}
                 v_mov_b32 v{CSG+4}, v{CSU+1}""")
        else:
            F1(f"v_cndmask_b32 v{MEANF}, v{MEANF}, 0, {sHILANES}")
        F1(f"v_mov_b32 v{CSF}, v{CSR}\nv_mov_b32 v{CSF+4}, v{CSR+1}")

        def tread(t, s, n):
            sl = slot_of[t]
            base = (LB0, LB0, LB1, LB1, LB2)[sl]
            return [Inst(f"ds_read_b128 {v(WR+4*(n%NR),4)}, {base} offset:{(sl&1)*32768*(sl<4)+fo(s)}")]

        def corr(t):
            A = ACC[acc_of[t]]
            if c16:
                return [mf16(A + 8 * gu + 4 * th, v((CSF, CSG)[gu] + 4 * (t & 1), 4), v((MEANF, MEANG)[th], 4))
                        for gu, th in ((0, 0), (0, 1), (1, 1), (1, 0))]
            return [mf32(A, v(CSF + 4 * (t & 1), 4), v(MEANF, 4))]

        def cm(t, s, n):
            A, w = ACC[acc_of[t]], v(WR + 4 * (n % NR), 4)
            if not c16:
                return [mf32(A, w, a_(4 * s, 4), "0" if s == 0 else None)]
            gu = s & 1
            r = [mf16(A + 8 * gu + 4 * th, w, a_(8 * (s >> 1) + 4 * th, 4), "0" if s < 2 else None) for th in (gu, 1 - gu)]
            r[1].tag = "second"
            return r

        def spread(G):
            out = []
            for g in G:
                g = hoist(g)
                if len(g) > 1 and g[1].tag == "second":
                    m, rest, c, k = g[1], g[2:], 0, 0
                    m.tag = None
                    tot = sum(cost(x) for x in rest if not x.cond)
                    while k < len(rest) and c + cost(rest[k]) <= max(9.7, tot / 2 + 2.2) and not rest[k].cond \
                            and rest[k].kind not in ('branch', 'label') and not rest[k].op.startswith('v_cmp'):
                        c += cost(rest[k])
                        k += 1
                    g = [g[0]] + rest[:k] + [m] + rest[k:]
                out += g
            return out
        G = []
        for n in range(64):
            s, t = divmod(n, 2)
            g = cm(t, s, n)
            if n + LK < 64:
                g += tread((n + LK) % 2, (n + LK) // 2, n + LK)
            else:
                if n + LK == 64:
                    g += bar("WAITTAG T2\ns_barrier")
                g += tread(2, n + LK - 64, n + LK)
            if t == 0 and s + HL < 32:
                g += hload(s + HL)
            G.append(g)
        G.append(corr(0))
        G.append(corr(1))
        for n in range(LK):
            p.extend(tread(n % 2, n // 2, n))
        G = weave(G, list(F0), 4, 20)
        G = weave(G, list(F1), 36 if c16 else 44, 63)
        e0 = 2 * (32 - HL)
        ng = min(len(FQ), o.get('g1q', 8))
        G = weave(G, FQ[:ng], e0, 66)
        FQ = FQ[ng:]
        p.extend(spread(G))
        self.stamp("C_g1")

        def epi(t, tmp):
            A = ACC[acc_of[t]]
            S = Seq()
            for j in range(8):
                S(f"v_mul_f32 v{tmp+j}, v{A+j}, v{C1+2*c16*(j>>2)}")
            for j in range(8):
                S(f"v_exp_f32 v{tmp+j}, v{tmp+j}")
                S(f"v_mul_f32 v{A+j}, v{A+j}, v{A+8+j}")
            for j in range(8):
                S(f"v_fma_f32 v{tmp+j}, v{tmp+j}, v{C2+2*c16*(j>>2)}, v{C2+2*c16*(j>>2)}")
                if j >= 2:
                    S(f"v_rcp_f32 v{tmp+j-2}, v{tmp+j-2}")
            for j in range(8):
                S(f"v_mul_f32 v{A+j}, v{A+j}, v{tmp+j}")
                if j < 2:
                    S(f"v_rcp_f32 v{tmp+6+j}, v{tmp+6+j}")
            for j in (0, 2, 1, 3):
                S(f"v_cvt_pk_bf16_f32 v{tmp+8+j}, v{A+2*j}, v{A+2*j+1}")
            if c16:
                S(f"v_permlane16_swap_b32 v{tmp+8}, v{tmp+10}\nv_permlane16_swap_b32 v{tmp+9}, v{tmp+11}")
            S(f"buffer_store_dwordx4 {v(tmp+8,4)}, {L16}, {WS}, {cHS if t < 4 else cHS2} offen offset:{(t&3)*1024} sc1", tag=f"hh{t}")
            return list(S)

        def tilepass(t, n0):
            G = []
            for s in range(32):
                n = n0 + s
                g = cm(t, s, n)
                if s + LK < 32:
                    g += tread(t, s + LK, n + LK)
                elif t < 6:
                    if s + LK == 32:
                        g += bar(f"WAITTAG T{t+1}\ns_barrier")
                    g += tread(t + 1, s + LK - 32, n + LK)
                if s == 16:
                    g += bar(f"v_mov_b32 v{CSF+4*(t&1)}, v{CSR+t}")
                if s == 17 and c16:
                    g += bar(f"v_mov_b32 v{CSG+4*(t&1)}, v{CSU+t}")
                G.append(g)
            G.append(corr(t))
            return G

        def hhload(i):
            S = Seq()
            S(f"s_add_u32 {sCc}, {cHL}, {hho[i]}")
            S(f"buffer_load_dwordx4 {a_(8*(i&15),4)}, {HHA}, {WS}, {sCc} offen sc1")
            return ctx([list(S), [Inst(f"buffer_load_dwordx4 {a_(8*(i&15)+4,4)}, {HHB}, {WS}, {sCc} offen sc1")]])

        EP = [epi(t, T + 12 * (t & 1)) for t in range(7)]
        P = {t: tilepass(t, 32 * t) for t in range(2, 7)}
        q = o.get('cq', 17)
        ee = o.get('ee', 20)
        LA = o.get('dla', 7)
        G = weave(P[2], FQ[:q], 0, 32)
        FQ = self.dmaT(5, 0) + FQ[q:]
        FQ = FQ[:q] + self.dmaT(6, 1) + FQ[q:] + dmaW2(0) + dmaW2(1) + dmaW2(2)
        G = weave(G, EP[0] + EP[1][:26], 2, 33)
        p.extend(self.xf(spread(G)))
        self.stamp("C_t2")
        q3 = min(q, len(FQ) - 24)
        G = weave(P[3], FQ[:q3], 0, 32)
        FQ = FQ[q3:]
        G = weave(G, EP[1][26:] + EP[2], 0, 33)
        p.extend(self.xf(spread(G)))
        self.stamp("C_t3")
        q4 = min(q, len(FQ) - 16)
        G = weave(P[4], FQ[:q4], 0, 32)
        FQ = FQ[q4:]
        G = weave(G, EP[3], 2, ee)
        G[o.get('p1at', 26)] += pub("hh2", 0)
        p.extend(self.xf(spread(G)))
        self.stamp("C_t4")
        q5 = min(q, len(FQ) - 8)
        G = weave(P[5], FQ[:q5], 0, 32)
        FQ = FQ[q5:]
        G[o.get('l1', 14)] += pollld(0)
        G[1] += bar(f"buffer_load_dwordx4 v[24:27], {L16}, {WS}, {cHR} offen sc1")
        G[3] += bar(f"buffer_load_dwordx4 v[28:31], {L16}, {WS}, {cHR} offen offset:1024 sc1")
        G = weave(G, EP[4], 2, ee)
        p.extend(self.xf(spread(G)))
        self.stamp("C_t5")
        G = P[6]
        c1 = o.get('c1', 1)
        n6 = min(o.get('n6', 0), len(FQ))
        if n6:
            G = weave(G, FQ[:n6], 0, max(c1, 1))
            FQ = FQ[n6:]
        G[c1] += pollchk(0)
        hq = [x for i in range(LA) for x in hhload(i)]
        G = weave(G, hq, c1 + 1, 33)
        S = Seq()
        for i in range(8):
            S(f"v_lshlrev_b32 v{48+2*i}, 16, v{24+i}\nv_and_b32 v{49+2*i}, {sMSKHI}, v{24+i}")
        for k in range(4):
            S(f"""s_xor_b32 {sT1}, {sW}, {k}
                 s_mul_i32 {sT1}, {sT1}, 12288
                 v_add_u32 v{36+k}, {sT1}, {L16}""")
        G = weave(G, list(S), ee + 1, 33)
        G = weave(G, EP[5], 2, ee)
        G[o.get('p2at', 12)] += pub("hh4", 1)
        p.extend(self.xf(spread(G)))
        self.stamp("C_t6")

        DA = [48, 64, 96, 112]

        def w2r(i, a):
            return (128, 168, 128)[(i - 16) // 4] + 8 * (i % 4) + 4 * a

        def w2read(i):
            part, k = divmod(i - 16, 4)
            r = bar(f"WAITTAG W2L{part}") if k == 0 else []
            for a in range(2):
                ad = ((WLA, WLB), (WLA, WLB), (WLC, WLD))[part][a]
                r.append(Inst(f"ds_read_b128 {v(w2r(i, a), 4)}, {ad} offset:{(part&1)*32768+k*2048}"))
            return r

        def w2f(i, a):
            return a_(128 + 8 * i + 4 * a, 4) if i < 16 else v(w2r(i, a), 4)

        def dm(i, k):
            a, b = k & 1, k >> 1
            return mf32(DA[k], w2f(i, a), a_(8 * (i & 15) + 4 * b, 4), "0" if i == 0 and k else None)
        nl = o.get('nl', 4)
        G = [[dm(i, k)] for i in range(28 - nl) for k in (1, 3, 2, 0)]
        G += [[dm(i, k)] for k in (1, 3, 2, 0) for i in range(28 - nl, 28)]
        for i in range(16, 28):
            G[min(4 * i - 7, 4 * (28 - nl) - 8 + (i - (28 - nl)))] += w2read(i)
        c2, c3, c4 = o.get('c2', 22), o.get('c3', 54), o.get('c4', 76)
        l2, l3, l4 = o.get('l2', 6), o.get('l3', 37), o.get('l4', 62)
        G[l2] += pollld(1)
        G = weave(G, EP[6], 1, o.get('e6', 11))
        G[o.get('p3at', 12)] += pub("hh5", 2)
        G[l3] += pollld(2)
        G[o.get('p4at', 38)] += pub("hh6", 3)
        G[o.get('dbar', 40)] += bar("s_barrier")
        hs = lambda a, b: [x for i in range(a, b) for x in hhload(i)]
        G = weave(G, hs(LA, 12), 0, c2)
        G[c2] += pollchk(1)
        nf = max(0, len(FQ) - o.get('nf', 8))
        G = weave(G, hs(12, 16) + FQ[:nf] + hs(16, 20), c2 + 1, c3)
        G[c3] += pollchk(2)
        G = weave(G, hs(20, 24), c3 + 1, l4)
        G[l4] += pollld(3)
        G = weave(G, FQ[nf:], l4 + 1, c4)
        G[c4] += pollchk(3)
        G = weave(G, hs(24, 28), c4 + 1, c4 + o.get('h4', 9))
        WRT = [[Inst(f"ds_write_b128 v{36+k}, {v(DA[k]+4*q_,4)} offset:{(k-1)*4096+q_*1024}") for q_ in range(4)] for k in (1, 3, 2)]
        if nl >= 2:
            for n in range(3):
                G = weave(G, WRT[n], 112 - (3 - n) * nl + 1, 112 - (2 - n) * nl + (1 if n < 2 else 0))
        else:
            G[111] += flat(WRT)
        for k in sorted(set(list(range(8, 112, 8)) + [c2 - 1, c2, c3 - 1, c3, c4 - 1, c4])):
            G[k] += sub(lambda: self.stamp(f"d{k}"))
        p.extend(self.xf(flat(G)))
        self.stamp("D_loop")
        p("WAITALL lgkm\ns_barrier")
        for q_ in range(4):
            for k in range(3):
                p(f"ds_read_b128 {v(160+16*k+4*q_,4)}, v36 offset:{k*4096+q_*1024}")
        for q_ in range(4):
            for j in range(2):
                r = 4 * q_ + 2 * j
                p(f"v_pk_add_f32 {v(48+r,2)}, {v(48+r,2)}, {v(160+r,2)}")
                p(f"v_pk_add_f32 {v(176+r,2)}, {v(176+r,2)}, {v(192+r,2)}")
            for j in range(2):
                r = 4 * q_ + 2 * j
                p(f"v_pk_add_f32 {v(48+r,2)}, {v(48+r,2)}, {v(176+r,2)}")
            for j in range(2):
                p(f"v_cvt_pk_bf16_f32 v{112+2*q_+j}, v{48+4*q_+2*j}, v{48+4*q_+2*j+1}")
            if q_ & 1:
                p(f"buffer_store_dwordx4 {v(112+4*(q_>>1),4)}, {ROWA}, {OUT}, {cOUT} offen offset:{32*(q_>>1)}" + ["", " sc1", " nt", " sc0 sc1"][o.get('outst', 0)])
        self.stamp("D_end")

    def finish(self):
        p = self.p
        if self.o.get('stamps'):
            p("WAITALL vm")
            self.stamp("D_drained")
            p(f"""s_lshl_b32 {sT0}, s2, 2
                 s_add_u32 {sT0}, {sT0}, {sW}
                 s_lshl_b32 {sT0}, {sT0}, 7
                 s_add_u32 {sT0}, {sT0}, {hex(STAMP)}
                 s_mov_b32 exec_hi, 0
                 buffer_store_dword v{STV}, {L4}, {WS}, {sT0} offen""")
        if self.o.get('padto'):
            p("WAITALL vm")
            p("L_pad:\ns_memrealtime s[72:73]\ns_waitcnt lgkmcnt(0)\ns_sub_u32 s72, s72, s100")
            p(f"s_cmp_lt_u32 s72, {self.o['padto']}\ns_cbranch_scc1 L_pad")
        p("L_end:\ns_endpgm")

    def build(self):
        if self.o.get('stamps') or self.o.get('padto'):
            self.p("s_memtime s[100:101]" if self.o.get('stamps') == 2 else "s_memrealtime s[100:101]")
        self.setup()
        if self.o.get('stamps'):
            self.p(f"v_mov_b32 v{STV}, s100")
            self.nstamp = 1
            self.stamp_names.append("start")
        self.p.extend(self.xf(self.sub(self.phaseA), 'xa'))
        self.p.extend(self.xf(self.sub(self.phaseB), 'xb'))
        self.phaseCD()
        self.finish()
        sk = str(self.o.get('skel', ''))
        if sk:
            Q = Seq()
            for i in self.p:
                if 'm' in sk and i.kind == 'mfma':
                    r = sorted(i.srcab)
                    for x in (r[0], r[-1]):
                        Q(f"v_accvgpr_read_b32 v40, {x}" if x[0] == 'a' else f"v_mov_b32 v40, {x}")
                    continue
                if 'e' in sk and i.kind in ('valu', 'trans') and not i.cond and i.op.endswith(('f32', 'f32_e64')):
                    continue
                if 'v' in sk and i.kind in ('vload', 'dma') and not i.cond and 'dwordx4' in i.op:
                    continue
                if 's' in sk and i.kind == 'vstore' and not i.cond and (i.wide or 'f32' in i.op) and 'v[176:179]' not in i.text:
                    continue
                Q.append(i)
            self.p = Q
        ns = str(self.o.get('nosc', ''))
        for i in self.p:
            if i.kind in ('vload', 'dma') and 'dwordx' in i.op and not i.cond:
                for ch, regs in (('k', (sKVL, bK2, sZL)), ('q', (sPQL, bQ2)), ('h', (cHB,)), ('t', (sT0, sKC)), ('d', (sCc,))):
                    if ch in ns and any(f"{WS}, {r} " in i.text for r in regs):
                        i.text = i.text.replace(" sc1", "")
        return finalize(self.p, self.o.get('fill', 1))


def emit(opt):
    g = Gen(opt)
    prog = g.build()
    hdr = open(os.path.join(os.path.dirname(os.path.abspath(__file__)), "header.txt")).read()
    body = "\n".join(("" if i.kind == 'label' else "    ") + i.text for i in prog)
    txt = hdr + f"""; @launch grid=(256,1,1) block=(256,1,1) lds=163840
.amdgcn_target "amdgcn-amd-amdhsa--gfx950"
.set CODE_PF_MAX, {opt.get('code_bytes', 0)}
.text
.globl {NAME}_kernel
.p2align 8
.type {NAME}_kernel,@function
{NAME}_kernel:
{body}
.section .rodata,"a"
.p2align 6
.amdhsa_kernel {NAME}_kernel
  .amdhsa_next_free_vgpr 512
  .amdhsa_next_free_sgpr 102
  .amdhsa_accum_offset 256
  .amdhsa_group_segment_fixed_size 0
  .amdhsa_kernarg_size 80
  .amdhsa_user_sgpr_count 2
  .amdhsa_user_sgpr_kernarg_segment_ptr 1
  .amdhsa_system_sgpr_workgroup_id_x 1
.end_amdhsa_kernel
"""
    return txt, g.stamp_names


def code_size(txt):
    import subprocess, tempfile
    with tempfile.TemporaryDirectory() as d:
        open(d + "/k.s", "w").write(txt)
        r = subprocess.run(["clang", "-x", "assembler", "-target", "amdgcn-amd-amdhsa",
                            "-mcpu=gfx950", "-c", d + "/k.s", "-o", d + "/k.o"], capture_output=True, text=True)
        if r.returncode:
            print("\n".join(r.stderr.split("\n")[:30]))
            raise SystemExit(1)
        r = subprocess.run(["llvm-objdump", "-h", d + "/k.o"], capture_output=True, text=True)
        for line in r.stdout.split("\n"):
            f = line.split()
            if len(f) > 2 and f[1] == ".text":
                return int(f[2], 16)


def main():
    opt = {}
    out = None
    for a in sys.argv[1:]:
        if '=' in a:
            k, val = a.split('=')
            try:
                opt[k] = int(val, 0)
            except ValueError:
                opt[k] = val
        else:
            out = a
    opt['code_bytes'] = 4096
    txt, names = emit(opt)
    sz = code_size(txt)
    opt['code_bytes'] = (sz - 1024) & ~3
    txt, names = emit(opt)
    open(out, "w").write(txt)
    if names:
        open(out + ".names", "w").write(" ".join(names))
    print(out, "code bytes", sz, "lines", txt.count("\n"), "stamps", len(names))


if __name__ == "__main__":
    main()
```

```python
import re

REG_RE = re.compile(r'(?<![\w.])([vas])\[(\d+):(\d+)\]|(?<![\w.])([vas])(\d+)(?![\w\[])|\b(vcc|exec|m0)\b')
TRANS = ('v_exp_f32', 'v_log_f32', 'v_rcp_f32', 'v_rsq_f32', 'v_sqrt_f32', 'v_sin_f32', 'v_cos_f32')


def regs_of(s):
    out = []
    for m in REG_RE.finditer(s):
        if m.group(1):
            out += [f"{m.group(1)}{i}" for i in range(int(m.group(2)), int(m.group(3)) + 1)]
        elif m.group(4):
            out.append(f"{m.group(4)}{m.group(5)}")
        else:
            out.append(m.group(6))
    return out


class Inst:
    __slots__ = ('text', 'op', 'kind', 'rd', 'wr', 'passes', 'tag', 'cond', 'srcc', 'srcab', 'wide', 'arg', 'ctx', 'ool')

    def __init__(self, text, tag=None, cond=False):
        self.text = text
        self.tag = tag
        self.cond = cond
        self.passes = 0
        self.srcc = set()
        self.srcab = set()
        self.wide = False
        self.arg = None
        self.ctx = None
        self.ool = None
        self.rd = set()
        self.wr = set()
        t = text.split(';')[0].strip()
        if t.endswith(':'):
            self.op = 'label'
            self.kind = 'label'
            return
        sp = t.split(None, 1)
        op = sp[0]
        self.op = op
        rest = sp[1] if len(sp) > 1 else ''
        ops = [o.strip() for o in rest.split(',')] if rest else []
        R = [regs_of(o) for o in ops]
        allr = [r for x in R for r in x]
        if op.startswith('v_mfma'):
            self.kind = 'mfma'
            self.wr = set(R[0])
            self.srcab = set(R[1]) | set(R[2])
            self.srcc = set(R[3])
            self.rd = self.srcab | self.srcc
            self.passes = 8 if '32x32x16' in op else 4 if '16x16x32' in op else 2 if '4x4x4' in op else None
            assert self.passes, op
        elif op.startswith('v_'):
            self.kind = 'trans' if op.replace('_e64', '').replace('_e32', '') in TRANS else 'valu'
            self.wr = set(R[0])
            self.rd = set(r for x in R[1:] for r in x)
            if 'swap' in op:
                self.wr = set(allr)
                self.rd = set(allr)
            if op.startswith(('v_fmac', 'v_dot2c', 'v_writelane')) or 'dpp' in text or 'row_' in text or 'quad_perm' in text:
                self.rd |= set(R[0])
            if '_co_' in op:
                self.wr |= set(R[1])
                self.rd = set(r for x in R[2:] for r in x)
        elif op.startswith(('buffer_load', 'global_load')):
            if re.search(r'\blds\b', rest) or '_lds_' in op:
                self.kind = 'dma'
                self.rd = set(allr) | {'m0'}
            else:
                self.kind = 'vload'
                self.wr = set(R[0])
                self.rd = set(r for x in R[1:] for r in x)
        elif op.startswith(('buffer_store', 'global_store', 'buffer_atomic', 'global_atomic')):
            self.kind = 'vstore'
            self.rd = set(allr)
            self.wide = op.endswith(('x3', 'x4'))
            if self.wide:
                self.arg = set(R[0]) if op.startswith('buffer') else set(R[1])
            if 'atomic' in op and re.search(r'\bsc0\b', rest):
                self.wr = set(R[0])
        elif op.startswith('ds_read') or op.startswith('ds_bperm') or op.startswith('ds_swizzle'):
            self.kind = 'dsr'
            self.wr = set(R[0])
            self.rd = set(r for x in R[1:] for r in x)
        elif op.startswith(('ds_write', 'ds_add')):
            self.kind = 'dsw'
            self.rd = set(allr)
        elif op.startswith(('s_load', 's_buffer_load', 's_memtime', 's_memrealtime')):
            self.kind = 'smem'
            self.wr = set(R[0])
            self.rd = set(r for x in R[1:] for r in x)
        elif op == 's_waitcnt':
            self.kind = 'wait'
        elif op == 's_nop':
            self.kind = 'nop'
            self.arg = int(rest, 0)
        elif op in ('s_barrier', 's_sleep', 's_endpgm', 's_setprio'):
            self.kind = 'misc'
        elif op.startswith(('s_branch', 's_cbranch')):
            self.kind = 'branch'
            if 'vcc' in op:
                self.rd = {'vcc'}
        elif op.startswith('s_cmp') or op.startswith('s_bitcmp'):
            self.kind = 'salu'
            self.rd = set(allr)
        elif op.startswith('s_'):
            self.kind = 'salu'
            self.wr = set(R[0])
            self.rd = set(r for x in R[1:] for r in x)
            if 'saveexec' in op:
                self.wr.add('exec')
        elif op == 'FENCE':
            self.kind = 'waittag'
            self.arg = []
        elif op == 'WAITTAG':
            self.kind = 'waittag'
            self.arg = rest.split()
        elif op == 'WAITALL':
            self.kind = 'waitall'
            self.arg = rest.strip()
        elif op.startswith('.'):
            self.kind = 'label'
        else:
            raise ValueError(text)


class Seq(list):
    def __call__(self, text, tag=None, cond=False):
        for line in text.strip().split('\n'):
            line = line.strip()
            if line and not line.startswith(';'):
                self.append(Inst(line, tag, cond))
        return self


MERGE = 1


def insert_waits(prog):
    out = []
    vm = []
    lg = []
    smem_out = False

    def emit(nv, nl):
        parts = []
        if nv is not None:
            parts.append(f"vmcnt({min(nv, 63)})")
        if nl is not None:
            parts.append(f"lgkmcnt({min(nl, 15)})")
        out.append(Inst("s_waitcnt " + " ".join(parts)))

    for idx, ins in enumerate(prog):
        if ins.cond:
            touch = ins.rd | ins.wr
            for q in (vm, lg):
                for e in q:
                    assert not (e[0] & touch), f"cond inst touches pending reg: {ins.text}"
            out.append(ins)
            continue
        nv = nl = None
        if ins.kind == 'waittag':
            for name in ins.arg:
                for i in range(len(vm) - 1, -1, -1):
                    if vm[i][1] == name:
                        n = len(vm) - 1 - i
                        nv = n if nv is None else min(nv, n)
                        break
                for i in range(len(lg) - 1, -1, -1):
                    if lg[i][1] == name:
                        n = len(lg) - 1 - i
                        nl = n if nl is None else min(nl, n)
                        break
        elif ins.kind == 'waitall':
            if 'vm' in ins.arg:
                nv = 0
            if 'lgkm' in ins.arg:
                nl = 0
        elif ins.kind == 'wait':
            m = re.search(r'vmcnt\((\d+)\)', ins.text)
            if m:
                n = int(m.group(1))
                vm = vm[len(vm) - n:] if n < len(vm) else vm
            m = re.search(r'lgkmcnt\((\d+)\)', ins.text)
            if m:
                n = int(m.group(1))
                if n == 0:
                    lg = []
                    smem_out = False
                elif not smem_out:
                    lg = lg[len(lg) - n:] if n < len(lg) else lg
            out.append(ins)
            continue
        else:
            touch = ins.rd | ins.wr
            for i in range(len(vm) - 1, -1, -1):
                if vm[i][0] & touch:
                    nv = len(vm) - 1 - i
                    break
            for i in range(len(lg) - 1, -1, -1):
                if lg[i][0] & touch:
                    nl = len(lg) - 1 - i
                    break
            if nl is not None and ins.kind == 'mfma' and nl >= 3:
                seen = merged = 0
                n0 = nl
                for j in range(idx + 1, min(idx + 16 * MERGE, len(prog))):
                    nx = prog[j]
                    if nx.kind == 'mfma':
                        seen += 1
                        n2 = None
                        for i in range(len(lg) - 1, -1, -1):
                            if lg[i][0] & nx.rd:
                                n2 = len(lg) - 1 - i
                                break
                        if n2 is not None and n2 < nl:
                            if n2 >= nl - 2 and (3 * n2 >= 2 * n0 or (n2 >= 3 and n2 == nl - 1)):
                                nl = n2
                                merged += 1
                                seen = 0
                                if merged < MERGE:
                                    continue
                            break
                        if seen >= 2:
                            break
        if nl is not None and smem_out:
            nl = 0
        if nv is not None or nl is not None:
            emit(nv, nl)
            if nv is not None:
                vm = vm[len(vm) - nv:] if nv else []
            if nl is not None:
                lg = lg[len(lg) - nl:] if nl else []
                if nl == 0:
                    smem_out = False
        if ins.kind in ('waittag', 'waitall'):
            continue
        if ins.kind in ('vload', 'vstore', 'dma'):
            if len(vm) >= 62:
                emit(61, None)
                vm = vm[len(vm) - 61:]
            vm.append((set(ins.wr), ins.tag))
        elif ins.kind in ('dsr', 'dsw'):
            if len(lg) >= 15:
                n = 0 if smem_out else 14
                emit(None, n)
                lg = lg[len(lg) - n:] if n else []
                smem_out = smem_out and n != 0
            lg.append((set(ins.wr), ins.tag))
        elif ins.kind == 'smem':
            lg.append((set(ins.wr), ins.tag))
            smem_out = True
        out.append(ins)
    return out


MF_VALU = {2: 5, 4: 8, 8: 12}
MF_OVL = {2: 4, 4: 6, 8: 10}
MF_WAR = {2: 1, 4: 3, 8: 7}


def need(p, c):
    n = 0
    isv = lambda r: r[0] in 'va' and r != 'vcc'
    pv = p.kind in ('valu', 'trans')
    cv = c.kind in ('valu', 'trans')
    cmem = c.kind in ('vload', 'vstore', 'dma', 'dsr', 'dsw')
    if pv:
        wv = {r for r in p.wr if isv(r)}
        ws = p.wr - wv
        if c.kind == 'mfma' and wv & c.rd:
            n = max(n, 2)
        if cv:
            if p.kind == 'trans' and wv & c.rd:
                n = max(n, 1)
            if 'permlane' in c.op and wv & c.rd:
                n = max(n, 2)
            if ('row_' in c.text or 'quad_perm' in c.text or 'dpp' in c.text) and wv & c.rd:
                n = max(n, 2)
            if c.op.startswith(('v_readfirstlane', 'v_readlane')) and wv & c.rd:
                n = max(n, 1)
            if ws & c.rd:
                n = max(n, 4 if c.op.startswith(('v_readlane', 'v_writelane')) else 2)
        if p.kind == 'trans' and cmem and wv & c.rd:
            n = max(n, 1)
        if c.kind in ('vload', 'vstore', 'dma') and ws & c.rd:
            n = max(n, 5)
        if c.kind in ('salu', 'smem') and ws & c.rd:
            n = max(n, 1)
        if c.kind == 'branch' and ws & c.rd:
            n = max(n, 5)
    if p.kind == 'mfma':
        if (cv or cmem) and p.wr & (c.rd | c.wr):
            n = max(n, MF_VALU[p.passes])
        if c.kind == 'mfma':
            if p.wr & c.srcab:
                n = max(n, MF_VALU[p.passes])
            if p.wr & c.srcc:
                if p.wr == c.srcc and p.passes == c.passes:
                    n = max(n, 2 if p.passes == 2 else 0)
                else:
                    n = max(n, MF_OVL[p.passes])
            elif p.wr & c.wr:
                n = max(n, MF_OVL[p.passes])
        if cv and p.srcc & c.wr:
            n = max(n, MF_WAR[p.passes])
    if p.kind == 'salu' and 'm0' in p.wr and c.kind == 'dma':
        n = max(n, 1)
    if p.kind == 'vstore' and p.wide and p.arg & c.wr:
        n = max(n, 2)
    return n


def insert_nops(prog):
    out = []
    hist = []
    pos = 0
    nnops = 0
    for ins in prog:
        if ins.kind == 'label':
            out.append(ins)
            continue
        req = 0
        for p, pp in hist:
            d = pos - pp
            w = need(p, ins)
            if w > d:
                req = max(req, w - d)
        if req:
            k = req
            while k > 0:
                t = min(k, 16)
                out.append(Inst(f"s_nop {t - 1}", cond=ins.cond))
                out[-1].ool = ins.ool
                k -= t
            nnops += 1
            if not ins.cond:
                pos += req
        out.append(ins)
        if not ins.cond:
            pos += (ins.arg + 1) if ins.kind == 'nop' else 1
        if ins.kind in ('valu', 'trans', 'mfma', 'salu', 'vstore'):
            hist.append((ins, pos))
        hist = [(p, pp) for p, pp in hist if pos - pp < 14]
    return out, nnops


def hoist(prog):
    out = []
    for ins in prog:
        i = len(out)
        if ins.kind in ('dsr', 'dsw', 'vload', 'vstore', 'dma', 'salu') and not ins.cond and 'exec' not in ins.wr:
            while i > 0:
                q = out[i - 1]
                if q.kind not in ('valu', 'trans') or q.cond:
                    break
                if (q.wr & (ins.rd | ins.wr)) or (q.rd & ins.wr):
                    break
                i -= 1
            if i > 0 and out[i - 1].kind in ('valu', 'trans'):
                i = len(out)
        out.insert(i, ins)
    return out


_ctx = [0]


def ctx(groups):
    _ctx[0] += 1
    for g in groups:
        for i in (g if isinstance(g, list) else [g]):
            i.ctx = _ctx[0]
    return groups


def check(prog):
    own = {}
    for i in prog:
        if i.ctx is not None:
            own.setdefault(i.ctx, set()).update(r for r in i.wr if r[0] == 's' or r == 'm0')
    last = {}
    waited = set()
    for i in prog:
        if i.ctx is not None and i.kind in ('dma', 'vload', 'vstore'):
            for r in i.rd & own[i.ctx]:
                assert last.get(r) == i.ctx, f"scalar context broken at: {i.text}"
        for r in i.wr:
            last[r] = i.ctx
        if i.kind == 'waittag':
            waited.update(i.arg)
        elif i.tag and i.tag in waited and i.tag not in ('kvp', 'rtr'):
            raise AssertionError(f"op issued after wait on its tag {i.tag}: {i.text}")


def cost(i):
    if i.kind == 'valu':
        return 5.3 if i.op.startswith(('v_fma_', 'v_cvt_pk', 'v_cndmask', 'v_lshl_add', 'v_bfe', 'v_perm')) else 4.4
    if i.kind == 'trans':
        return 8.6
    if i.kind in ('label',):
        return 0
    return 4.3


def fill(prog, window=40):
    prog = list(prog)
    out = []
    now = 0.0
    free = 0.0
    lastp = 0
    ldage = {}
    i = 0
    while i < len(prog):
        ins = prog[i]
        if ins.kind == 'mfma' and not ins.cond:
            j = i + 1
            crossed_rd, crossed_wr = set(ins.rd), set(ins.wr)
            while free - now > 6.5 and j < min(i + window, len(prog)):
                c = prog[j]
                if c.cond or c.kind in ('label', 'branch', 'waitall', 'smem', 'nop') or 'exec' in c.wr:
                    break
                ok = c.kind in ('valu', 'trans') and not c.op.startswith(('v_writelane', 'v_readfirst', 'v_cmp'))
                if ok and (c.rd & crossed_wr or c.wr & (crossed_rd | crossed_wr)):
                    ok = False
                if ok:
                    for r in c.rd | c.wr:
                        if r in ldage and (ldage[r][0] == 'vload' or len(out) - ldage[r][1] < 24):
                            ok = False
                if ok:
                    d = 0
                    for q in reversed(out[-16:]):
                        if need(q, c) > d:
                            ok = False
                            break
                        if q.kind not in ('label', 'waittag', 'waitall') and not q.cond:
                            d += 1
                if ok and cost(c) > free - now - 2:
                    ok = False
                if ok:
                    out.append(c)
                    now += cost(c)
                    for r in c.rd | c.wr:
                        ldage.pop(r, None)
                    del prog[j]
                else:
                    crossed_rd |= c.rd
                    crossed_wr |= c.wr
                    j += 1
            now = max(now + 2, free)
            dur = {8: 32, 4: 16, 2: 8 if lastp == 2 else 16}[ins.passes]
            free = now + dur
            now += 8
            lastp = ins.passes
        elif not ins.cond:
            now += cost(ins)
        for r in ins.rd | ins.wr:
            ldage.pop(r, None)
        if ins.kind in ('vload', 'dsr'):
            for r in ins.wr:
                ldage[r] = (ins.kind, len(out))
        out.append(ins)
        i += 1
    return out


def m0fix(prog):
    p = list(prog)
    for i in range(1, len(p) - 1):
        a, b, c = p[i - 1], p[i], p[i + 1]
        if b.kind == 'salu' and 'm0' in b.wr and c.kind == 'dma' and not b.cond and not a.cond \
                and a.kind in ('dsr', 'mfma', 'valu', 'trans', 'vload', 'vstore') and not (a.wr & b.rd):
            p[i - 1], p[i] = b, a
    return p


def layout(prog):
    main = [i for i in prog if i.ool is None]
    rest = [i for i in prog if i.ool is not None]
    return main + rest


def finalize(prog, dofill=True):
    check(prog)
    p = hoist(prog)
    if dofill:
        p = fill(p)
    p = insert_waits(m0fix(p))
    p, n = insert_nops(p)
    return layout(p)


def weave(main, fills, start=0, end=None):
    end = len(main) if end is None else end
    n = end - start
    out = [list(g) for g in main]
    k = 0
    for i in range(n):
        tgt = (len(fills) * (i + 1) + n - 1) // n
        while k < tgt:
            f = fills[k]
            out[start + i] += f if isinstance(f, list) else [f]
            k += 1
    assert k == len(fills)
    return out


def flat(groups):
    return [i for g in groups for i in g]
```

```python
import sys, os
sys.path.insert(0, os.path.dirname(os.path.abspath(__file__)))
from dsl import *

NAME = "sequential_preLN__linear_attn_block__glu_gated_swiglu__prompt"

CNT = 0x20000
KVM = 0x10000
ST = 0x18000
CS = 0x1C000
ZP = 0x1F800
STAMP = 0xC0000
PQ = 0x400000
HB = 0x800000
HH = 0x1000000
W13R = 0x2000000
W2R = 0x2800000
PROBE = 0x100000
WS_SIZE = 0x2C00000
OOB = 0x7f000000

X, WQKV, WO, W1, W3, W2, OUT, WS, DBG = [f"s[{a}:{a+3}]" for a in range(4, 40, 4)]
(sW, sG, sM, sC0, sT0, sT1, sT2, sT3, sXB, sWB, sXL, sWL, sTB, sCB, sRQ, sLOG2E,
 sU, sKC, sT4, sT5, sMSKHI, sEPS6) = [f"s{i}" for i in range(40, 62)]
sHILANES = "s[62:63]"
sB4LANES = "s[64:65]"
sA, sB, sCc, sD = "s66", "s67", "s68", "s69"
sKVA, sZA, sPQS, sRW, sR2, sRC, sKVL, sZL, sPQL, sSIG, sHST, sSTA = [f"s{i}" for i in range(84, 96)]
sMA, sTA, sHS = "s3", "s74", "s83"
sP1, sPE, sP2, sTBL = "s96", "s97", "s98", "s99"
STV = 0

VB, KB, XCH, RST, KVS, ZS = 0x10000, 0x18000, 0x20000, 0x22000, 0, 0x21000

L16, L4 = "v2", "v3"
TRK, TRP = 152, 156
XCW, XCR, KVW, ZW, STW, KVR, ZR, ZAT, STR = [f"v{i}" for i in range(212, 221)]
WOD, WOT, OAD = 221, 225, 229
ROWA, ZBW, ZBR, P256 = "v233", "v234", "v235", "v236"
RL1, RL3, RL2, RT13, RT2A, RT2B, CSAT, P4K, FA1, LM8, PA2 = [f"v{i}" for i in range(237, 248)]
RCS = 248


def v(a, n=1):
    return f"v{a}" if n == 1 else f"v[{a}:{a+n-1}]"


def a_(a, n=1):
    return f"a{a}" if n == 1 else f"a[{a}:{a+n-1}]"


def mf32(d, A, B, c=None):
    return Inst(f"v_mfma_f32_32x32x16_bf16 {v(d,16)}, {A}, {B}, {v(d,16) if c is None else c}")


def mf16(d, A, B, c=None):
    return Inst(f"v_mfma_f32_16x16x32_bf16 {v(d,4)}, {A}, {B}, {v(d,4) if c is None else c}")


def mf4(d, A, B, c=None):
    return Inst(f"v_mfma_f32_4x4x4_16b_bf16 {v(d,4)}, {A}, {B}, {v(d,4) if c is None else c}")


def trpair(dst, addr, off, step):
    k, b = dst
    return [Inst(f"ds_read_b64_tr_b16 {k}[{b}:{b+1}], {addr} offset:{off}"),
            Inst(f"ds_read_b64_tr_b16 {k}[{b+2}:{b+3}], {addr} offset:{off+step}")]


def par13(t):
    return (t >> 1) & 1


def par2(pr, t):
    return (pr >> 1) if t < 3 else (t & 1) ^ 1


def split2(dst, src, t):
    return Seq()(f"""v_cvt_pk_bf16_f32 v{t}, v{src}, v{src}
         v_lshlrev_b32 v{t}, 16, v{t}
         v_sub_f32 v{t}, v{src}, v{t}
         v_cvt_pk_bf16_f32 v{dst}, v{src}, v{t}""")


cHB, cST, cHS, cHR, cCS, cW2, cHL, cOUT, cHS2 = [f"s{i}" for i in range(75, 84)]
cPP, cPQ, cPS, cPL, bTA, bTL, bK2, bQ2, bGP, bRP, bTX, cW2x, sGC, sMC = [f"s{i}" for i in (4, 5, 6, 7, 16, 17, 18, 19, 20, 21, 22, 23, 24, 25)]
W2A, W2B, LB1, LB2, WLA, WLB, WLC, WLD = [f"v{i}" for i in range(6, 14)]
CSL, HHA, HHB, HPA, LB0 = "v14", "v15", "v42", "v43", "v212"


class Gen:
    def __init__(self, opt):
        self.o = opt
        self.p = Seq()
        self.nl = 0
        self.nstamp = 0
        self.stamp_names = []

    def lab(self, s):
        self.nl += 1
        return f"L_{s}_{self.nl}"

    def stamp(self, name):
        if self.o.get('padat') == name:
            self.p("WAITALL lgkm\ns_memrealtime s[100:101]\nWAITALL lgkm")
        if self.o.get('stamps', 3) == 3:
            return
        fine = str(self.o.get('fine', ''))
        if name[0].islower() and name[0] not in fine:
            return
        if fine and name[0].isupper() and name[0].lower() not in fine and name not in ('C_t6', 'B_sync1', 'C_sync2', 'D_drained', 'A_loop', 'A_v', 'A_q'):
            return
        p = self.p
        if self.o.get('nb'):
            if self.nstamp > 1:
                p(f"v_writelane_b32 v{STV}, s72, {self.nstamp-1}", cond=True)
            p("s_memrealtime s[72:73]" if self.o['stamps'] == 1 else "s_memtime s[72:73]", cond=True)
            if name == 'D_drained':
                p(f"s_waitcnt lgkmcnt(0)\nv_writelane_b32 v{STV}, s72, {self.nstamp}", cond=True)
            self.nstamp += 1
            self.stamp_names.append(name)
            return
        p("WAITALL lgkm")
        p("s_memrealtime s[72:73]" if self.o['stamps'] == 1 else "s_memtime s[72:73]")
        p("WAITALL lgkm")
        p(f"v_writelane_b32 v{STV}, s72, {self.nstamp}")
        self.nstamp += 1
        self.stamp_names.append(name)

    def sub(self, fn):
        save = self.p
        self.p = Seq()
        fn()
        r = list(self.p)
        self.p = save
        return r

    def xf(self, L, key='x'):
        x = self.o.get(key, '')
        out = []
        for i in L:
            if 'v' in x and i.kind in ('vload', 'dma') and not i.cond and 'dwordx4' in i.op:
                continue
            if 'e' in x and i.kind in ('valu', 'trans') and not i.cond and i.op.endswith(('f32', 'f32_e64')):
                continue
            if 'l' in x and i.kind == 'dsr':
                continue
            if 's' in x and i.kind == 'vstore' and 'store' in i.op and not i.cond:
                continue
            if 'b' in x and i.op == 's_barrier':
                continue
            if 'm' in x and i.kind == 'mfma' and i.passes < 8:
                continue
            out.append(i)
        return out

    def ool(self, branch, text):
        p = self.p
        L, R = self.lab("o"), self.lab("r")
        p(f"{branch} {L}")
        n = len(p)
        p(f"{L}:\n{text}\ns_branch {R}", cond=True)
        for i in p[n:]:
            i.ool = L
        p(f"{R}:")

    def spin(self, vt, vaddr, soff, mask, target, srd=WS, mode='wave0', sleep=0, field=None, wave=0):
        p = self.p
        Lp = self.lab("pl")
        addr = f"{vaddr}, {srd}, {soff} offen" if vaddr else f"off, {srd}, {soff}"
        ext = f"v_and_b32 v43, {field}, {vt}\n" if field is not None else ""
        vc = "v43" if field is not None else vt
        loop = f"""s_mov_b32 {sT5}, 0
             s_mov_b64 exec, {mask}
             {Lp}:
             {f's_sleep {sleep}' if sleep else ''}
             buffer_load_dword {vt}, {addr} sc1
             s_add_u32 {sT5}, {sT5}, 1
             s_waitcnt vmcnt(0)
             {ext}v_cmp_gt_u32 vcc, {target}, {vc}
             s_cmp_ge_u32 {sT5}, 0x8000
             s_cselect_b64 vcc, 0, vcc
             s_and_b64 exec, exec, vcc
             s_cbranch_scc1 {Lp}
             s_mov_b64 exec, -1"""
        if self.o.get('stamps') == 3:
            p(f"s_mov_b32 {sT5}, 0")
        if mode == 'check':
            p(f"{ext}v_cmp_gt_u32 vcc, {target}, {vc}\ns_and_b64 vcc, vcc, {mask}")
            self.ool("s_cbranch_scc1", loop)
        elif mode == 'wave0':
            Ld = self.lab("pd")
            p(f"s_cmp_lg_u32 {sW}, {wave}\ns_cbranch_scc1 {Ld}")
            p(loop, cond=True)
            p(f"{Ld}:")
        else:
            p(loop, cond=True)
            p("s_waitcnt vmcnt(0)")
        if self.o.get('stamps') == 3:
            p(f"v_writelane_b32 v{STV}, {sT5}, {self.nstamp}")
            self.nstamp += 1
            self.stamp_names.append(f"spin{self.nstamp}")

    def setup(self):
        p = self.p
        p(f"""s_cmp_ge_u32 s2, 256
             s_cbranch_scc1 L_end
             s_load_dwordx16 s[76:91], s[0:1], 0
             s_load_dwordx4 s[92:95], s[0:1], 64""")
        p("v_and_b32 v1, 63, v0\nv_lshrrev_b32 v4, 6, v0")
        p(f"v_readfirstlane_b32 {sW}, v4")
        p(f"""s_mov_b32 s6, 0x200000
             s_mov_b32 s7, 0x20000
             s_mov_b32 s10, 0x180000
             s_mov_b32 s11, 0x20000
             s_lshr_b32 {sU}, s2, 3
             s_and_b32 {sKC}, s2, 7
             s_and_b32 {sRQ}, {sU}, 3
             s_and_b32 {sG}, s2, 6
             s_lshl_b32 {sG}, {sG}, 1
             s_add_u32 {sG}, {sG}, {sRQ}
             s_lshr_b32 {sT1}, s2, 5
             s_and_b32 {sT2}, s2, 1
             s_lshl_b32 {sTA}, {sG}, 1
             s_add_u32 {sTA}, {sTA}, {sT2}
             s_lshl_b32 {sXL}, {sW}, 14
             s_lshl_b32 {sXB}, {sTA}, 16
             s_add_u32 {sXB}, {sXB}, {sXL}
             s_xor_b32 {sMA}, {sT1}, 4
             s_mul_i32 {sWB}, {sW}, {16*3072}
             s_lshl_b32 {sT0}, {sMA}, 7
             s_add_u32 {sWB}, {sWB}, {sT0}
             s_lshl_b32 {sWL}, {sW}, 11
             s_add_u32 {sC0}, {sT1}, {sKC}""")
        rot = self.o.get('rot', 6)
        if rot == 7:
            p(f"s_lshl_b32 {sT0}, {sU}, 2\ns_add_u32 {sC0}, {sC0}, {sT0}")
        if rot == 8:
            p(f"s_lshl_b32 {sT0}, {sRQ}, 1\ns_add_u32 {sC0}, {sC0}, {sT0}")
        if rot == 0:
            p(f"s_mov_b32 {sC0}, 0")
        if rot == 1:
            p(f"s_mov_b32 {sC0}, {sKC}")
        if rot == 9:
            p(f"s_lshl_b32 {sC0}, {sT1}, 1\ns_add_u32 {sC0}, {sC0}, {sKC}")
        p(f"""v_lshrrev_b32 v4, 3, v1
             v_and_b32 v5, 7, v1
             v_lshrrev_b32 v3, 4, v1
             v_xor_b32 v6, v5, v3
             v_lshlrev_b32 v6, 4, v6
             v_lshl_add_u32 v6, v4, 10, v6
             v_xor_b32 v7, 64, v6
             v_add_u32 v7, 7168, v7
             v_and_b32 v3, 1, v3
             v_lshlrev_b32 v3, 2, v3
             v_xor_b32 v5, v5, v3
             v_lshlrev_b32 v5, 4, v5
             v_mul_u32_u24 v8, 3072, v4
             v_add_u32 v8, v8, v5
             v_add_u32 v9, {8*3072-1024}, v8""")
        p("WAITALL lgkm")
        p("s_mov_b64 s[4:5], s[76:77]\ns_mov_b64 s[8:9], s[78:79]")

    def dmaW(self, t, c):
        base, po = ((KB, 1024), (VB, 2048), (0, 0))[t]
        tag = f"{'AVQ'[t]}{c}"
        S = Seq()
        S(f"s_add_u32 m0, {sWL}, {base + c*8192 - po}")
        S(f"buffer_load_dwordx4 v8, {WQKV}, s{75+c} offen offset:{po} lds", tag=tag)
        return ctx([list(S), [Inst(f"buffer_load_dwordx4 v9, {WQKV}, s{75+c} offen offset:{po+1024} lds", tag=tag)]])

    def dmaA(self, c):
        wc = f"s{75+c}"
        g = self.dmaW(0, c)
        g[0] = list(Seq()(f"""s_add_u32 {sT0}, {sC0}, {c}
             s_and_b32 {sT0}, {sT0}, 7
             s_mul_i32 {wc}, {sT0}, {64*3072}
             s_add_u32 {wc}, {wc}, {sWB}
             s_lshl_b32 {sT0}, {sT0}, 7""")) + g[0]
        nt = " nt" if self.o.get('xnt', 0) else ""
        S = Seq()
        S(f"s_add_u32 m0, {sWL}, {c*8192}\ns_add_u32 {sT0}, {sT0}, {sXB}")
        S(f"buffer_load_dwordx4 v6, {X}, {sT0} offen{nt} lds", tag=f"A{c}")
        g += [list(S), [Inst(f"buffer_load_dwordx4 v7, {X}, {sT0} offen offset:1024{nt} lds", tag=f"A{c}")]]
        return ctx(g)

    def dmaWO(self, q):
        S = Seq()
        S(f"""s_add_u32 {sT0}, {sA}, {q*65536}
             s_add_u32 m0, {sB}, {q*16384}
             s_and_b32 {sT0}, {sT0}, 0x7ffff""")
        g = []
        for k in range(4):
            S(f"buffer_load_dwordx4 v{WOD+k}, {WO}, {sT0} offen offset:{k*1024} lds", tag=f"WO{q>>2}")
            g.append(list(S))
            S = Seq()
        return ctx(g)

    def rload(self):
        nt = " nt" if self.o.get('rnt', 1) else ""
        g = []
        for k, (ad, srd, s0, s1) in enumerate(((RL1, W1, sKVL, sZL), (RL3, W3, sKVL, sZL), (RL2, W2, sPQL, sHST))):
            g.append(list(Seq()(f"s_add_u32 m0, {sSTA}, {k*2048}\nbuffer_load_dwordx4 {ad}, {srd}, {s0} offen{nt} lds")))
            g.append(list(Seq()(f"buffer_load_dwordx4 {ad}, {srd}, {s1} offen offset:1024{nt} lds", tag=f"RL{k}")))
            ctx(g[-2:])
        return g[4:] + g[:4]

    def miscA(self):
        M = Seq()
        a, b, c, d = "v208", "v209", "v210", "v211"
        M(f"""v_lshl_add_u32 {RL2}, v4, 10, v5
             v_mul_u32_u24 v4, 3584, v4
             v_add_u32 {RL1}, v4, v5
             v_xor_b32 {RL3}, 32, {RL1}
             v_mov_b32 v4, 1
             v_lshlrev_b32 {L4}, 2, v1
             s_mov_b32 {sLOG2E}, 0x3fb8aa3b
             s_mov_b32 {sMSKHI}, 0xffff0000
             s_mov_b32 {sEPS6}, 0x358637bd
             s_mov_b32 s62, 0
             s_mov_b32 s63, -1
             s_mov_b32 s64, 0xffff0000
             s_mov_b32 s65, 0xffff0000
             s_mov_b32 s96, 0x22222222
             s_mov_b32 s97, 0x22222222
             s_mov_b32 s98, 0x44444444
             s_mov_b32 s99, 0x44444444
             s_mov_b32 s70, 0x88888888
             s_mov_b32 s71, 0x88888888
             s_and_b32 {sM}, s2, 1
             s_lshl_b32 {sM}, {sM}, 3
             s_lshr_b32 {sT1}, s2, 5
             s_add_u32 {sM}, {sM}, {sT1}
             s_and_b32 {sCB}, {sM}, 3
             s_and_b32 {sT1}, {sW}, 1
             s_lshr_b32 {sT2}, {sW}, 1
             s_lshl_b32 {sMA}, {sMA}, 1
             s_add_u32 {sMA}, {sMA}, {sT2}
             s_lshl_b32 {sTA}, {sTA}, 1
             s_add_u32 {sTA}, {sTA}, {sT1}""")
        M(f"""v_and_b32 {a}, 31, v1
             v_lshrrev_b32 {b}, 5, v1
             v_bfe_u32 {c}, v1, 1, 3
             v_xor_b32 {c}, {b}, {c}
             v_lshlrev_b32 {c}, 4, {c}
             v_lshl_add_u32 {c}, {a}, 7, {c}
             s_lshl_b32 {sT3}, {sT1}, 12
             s_lshl_b32 {sT4}, {sW}, 5
             s_add_u32 {sT3}, {sT3}, {sT4}
             v_xor_b32 v10, {sT3}, {c}
             v_xor_b32 v11, 32, v10
             v_xor_b32 v12, 64, v10
             v_xor_b32 v13, 96, v10
             s_lshl_b32 {sT3}, {sCB}, 1
             s_add_u32 {sT3}, {sT3}, {sT2}
             s_sub_u32 {sT3}, {sT3}, {sC0}
             s_and_b32 {sT3}, {sT3}, 7
             s_lshl_b32 {sT3}, {sT3}, 1
             s_lshr_b32 {sT4}, s2, 7
             s_add_u32 {sT3}, {sT3}, {sT4}
             s_lshl_b32 {sT3}, {sT3}, 6
             s_add_u32 {sT3}, {sT3}, {sT1}
             s_lshl_b32 {sT3}, {sT3}, 6
             v_xor_b32 v14, {sT3}, {c}
             v_xor_b32 v15, 32, v14""")
        M(f"""s_lshl_b32 {sT3}, {sT2}, 8
             s_add_u32 {sT3}, {sT3}, {hex(XCH)}
             v_lshl_add_u32 {XCR}, {a}, 3, {sT3}
             s_lshl_b32 {sT3}, {sT1}, 2
             v_add_u32 {XCW}, {sT3}, {XCR}
             s_lshl_b32 {sT3}, {sW}, 9
             s_add_u32 {sT3}, {sT3}, {hex(XCH+2048)}
             v_lshl_add_u32 {STW}, v1, 3, {sT3}
             v_xor_b32 {STR}, 1024, {STW}
             v_lshlrev_b32 {KVW}, 4, {a}
             v_lshl_add_u32 {KVW}, {b}, 10, {KVW}
             s_add_u32 {sT3}, {sWL}, {hex(KVS)}
             v_add_u32 {KVW}, {sT3}, {KVW}
             s_lshl_b32 {sT3}, {sW}, 7
             s_add_u32 {sT3}, {sT3}, {hex(ZS)}
             v_lshl_add_u32 {ZW}, {a}, 2, {sT3}
             s_lshl_b32 {sT3}, {sT2}, 2
             s_add_u32 {sT3}, {sT3}, {sT1}
             s_lshl_b32 {sT4}, {sT3}, 10
             s_add_u32 {sT4}, {sT4}, {hex(KVS)}
             v_add_u32 {KVR}, {sT4}, {L4}
             s_lshl_b32 {sT4}, {sT3}, 6
             s_add_u32 {sT4}, {sT4}, {hex(ZS)}
             v_and_b32 {d}, 15, v1
             v_lshl_add_u32 {ZR}, {d}, 2, {sT4}
             v_lshrrev_b32 {d}, 4, v1
             v_lshl_add_u32 {ZAT}, {d}, 27, {L4}
             v_lshl_add_u32 {CSAT}, {b}, 27, {L4}
             v_lshrrev_b32 {LM8}, 3, v1
             v_lshlrev_b32 {LM8}, 27, {LM8}
             v_min_u32 {FA1}, 1, v1
             v_lshlrev_b32 {FA1}, 27, {FA1}
             s_lshl_b32 {sT3}, {sMA}, 1
             s_add_u32 {sT3}, {sT3}, {sT1}
             s_lshl_b32 {sKVA}, {sT3}, 10
             s_add_u32 {sKVA}, {sKVA}, {hex(KVM)}
             s_lshl_b32 {sZA}, {sT3}, 6
             s_add_u32 {sZA}, {sZA}, {hex(ZP)}
             s_lshl_b32 {sPQS}, {sTA}, 2
             s_lshr_b32 {sT3}, {sMA}, 2
             s_add_u32 {sPQS}, {sPQS}, {sT3}
             s_lshl_b32 {sPQS}, {sPQS}, 3
             s_and_b32 {sT3}, {sMA}, 3
             s_add_u32 {sPQS}, {sPQS}, {sT3}
             s_lshl_b32 {sPQS}, {sPQS}, 11
             s_add_u32 {sPQS}, {sPQS}, {hex(PQ)}
             s_lshl_b32 {sHS}, {sG}, 2
             s_add_u32 {sHS}, {sHS}, {sW}
             s_lshl_b32 {sHS}, {sHS}, 4
             s_add_u32 {sHS}, {sHS}, {sM}
             s_lshl_b32 {sHS}, {sHS}, 14
             s_add_u32 {sHS}, {sHS}, {hex(HH+4096)}""")
        M(f"""v_bfe_u32 {c}, v1, 2, 2
             v_lshlrev_b32 {a}, 10, {b}
             v_lshl_add_u32 {a}, {c}, 7, {a}
             v_bfe_u32 {c}, v1, 4, 1
             v_bfe_u32 {d}, v1, 3, 1
             v_lshl_add_u32 {d}, {d}, 1, {c}
             v_lshl_add_u32 {a}, {d}, 5, {a}
             v_and_b32 {d}, 1, v1
             v_lshl_add_u32 {RT2A}, {d}, 4, {a}
             v_bfe_u32 {d}, v1, 1, 1
             v_lshl_add_u32 {RT2A}, {d}, 3, {RT2A}
             v_and_b32 {d}, 3, v1
             v_lshl_add_u32 {a}, {d}, 3, {a}
             s_lshl_b32 {sT3}, {sT2}, 6
             s_add_u32 {sT3}, {sT3}, {sWL}
             s_add_u32 {sT4}, {sT3}, {hex(KB)}
             v_xor_b32 v{TRK}, {sT4}, {a}
             s_add_u32 {sT4}, {sT3}, {hex(VB)}
             v_xor_b32 v{TRP}, {sT4}, {RT2A}""")
        for j in range(1, 4):
            M(f"v_xor_b32 v{TRK+j}, {j*2048}, v{TRK}\nv_xor_b32 v{TRP+j}, {j*2048}, v{TRP}")
        M(f"""s_lshl_b32 {sT3}, {sW}, 5
             s_add_u32 {sT3}, {sT3}, {hex(RST)}
             v_xor_b32 {RT13}, {sT3}, {a if self.o.get('c16', 1) else RT2A}
             v_lshl_add_u32 {RT13}, {c}, 11, {RT13}
             s_mul_i32 {sSTA}, {sW}, 6144
             s_add_u32 {sSTA}, {sSTA}, {hex(RST)}
             v_add_u32 {RT2A}, {sSTA}, {a if self.o.get('d16', 1) else RT2A}
             v_xor_b32 {RT2B}, 64, {RT2A}""")
        M(f"""v_lshrrev_b32 {a}, 2, v1
             v_xor_b32 {a}, {a}, {c}
             v_and_b32 {a}, 1, {a}
             v_or_b32 {a}, {a}, {d}
             v_cmp_eq_u32 vcc, 0, {a}
             v_mov_b32 v20, 0x3f803f80
             v_mov_b32 v21, 0x3f803f80
             v_mov_b32 v22, 0x3f803f80
             v_mov_b32 v23, 0x3f803f80
             v_cndmask_b32 v16, 0, v20, vcc
             v_cndmask_b32 v17, 0, v20, vcc
             v_cndmask_b32 v18, 0, v20, vcc
             v_cndmask_b32 v19, 0, v20, vcc""")
        for r in (162, 163, 166, 167, 170, 171, 174, 175, 177, 178, 179):
            M(f"v_mov_b32 v{r}, 0")
        M(f"""v_lshrrev_b32 {a}, 4, v1
             v_bfe_u32 {c}, v1, 2, 2
             v_xor_b32 {c}, {c}, {a}
             v_lshlrev_b32 {c}, 6, {c}
             v_lshl_add_u32 {c}, {a}, 10, {c}
             v_lshl_add_u32 v{WOD}, {d}, 4, {c}
             v_add_u32 v{WOD+1}, 3072, v{WOD}
             v_add_u32 v{WOD+2}, 6144, v{WOD}
             v_add_u32 v{WOD+3}, 9216, v{WOD}
             s_lshl_b32 {sA}, {sRQ}, 17
             s_add_u32 {sA}, {sA}, {sXL}
             s_lshl_b32 {sT3}, {sCB}, 8
             s_add_u32 {sA}, {sA}, {sT3}""")
        M(f"""s_lshl_b32 {sT3}, {sKC}, 2
             s_add_u32 {sT3}, {sT3}, {sW}
             s_mul_i32 {sKVL}, {sT3}, {16*3584}
             s_lshl_b32 {sT3}, {sU}, 7
             s_add_u32 {sKVL}, {sKVL}, {sT3}
             s_lshl_b32 {sT2}, {sU}, 2
             s_add_u32 {sT2}, {sT2}, {sW}
             s_lshl_b32 {sPQL}, {sT2}, 14
             s_lshl_b32 {sT3}, {sKC}, 7
             s_add_u32 {sPQL}, {sPQL}, {sT3}
             s_add_u32 {sHST}, {sPQL}, 7168
             s_lshl_b32 {sRC}, {sT2}, 7
             s_add_u32 {sRC}, {sRC}, {hex(CS)}
             s_mul_i32 {sT3}, {sT2}, 9363
             s_lshr_b32 {sT3}, {sT3}, 16
             s_add_u32 {sT2}, {sT2}, {sT3}
             s_and_b32 {sT3}, {sKC}, 6
             s_add_u32 {sT3}, {sT3}, {sKC}
             s_lshl_b32 {sRW}, {sT2}, 4
             s_add_u32 {sRW}, {sRW}, {sT3}
             s_lshl_b32 {sRW}, {sRW}, 12
             s_add_u32 {sRW}, {sRW}, {hex(W13R)}
             s_andn2_b32 {sT3}, {sT2}, 3
             s_add_u32 {sT3}, {sT3}, {sT2}
             s_lshl_b32 {sR2}, {sKC}, 8
             s_add_u32 {sR2}, {sR2}, {sT3}
             s_lshl_b32 {sR2}, {sR2}, 11
             s_add_u32 {sR2}, {sR2}, {hex(W2R)}""")
        if self.o.get('grp', 1):
            m13 = sum((par13(t) ^ m) << (8 * m + t) for m in range(2) for t in range(8))
            m2 = sum(par2(pr, t) << (8 * pr + t) for pr in range(4) for t in range(8))
            M(f"""s_and_b32 {sT3}, {sT2}, 15
                 s_lshr_b32 {sT3}, {hex(m13)}, {sT3}
                 s_lshr_b32 {sT4}, {hex(m2)}, {sT2}
                 s_xor_b32 {sT4}, {sT4}, {sKC}""")
        else:
            M(f"s_lshr_b32 {sT3}, {sKC}, 1\ns_lshr_b32 {sT4}, {sT2}, 5")
        M(f"""s_and_b32 {sT3}, {sT3}, 1
             s_lshl_b32 {sT3}, {sT3}, 13
             s_add_u32 {sRW}, {sRW}, {sT3}
             s_and_b32 {sT4}, {sT4}, 1
             s_lshl_b32 {sT4}, {sT4}, 13
             s_add_u32 {sR2}, {sR2}, {sT4}
             s_cmp_ge_u32 s2, 224
             s_cselect_b32 {sRW}, {hex(OOB)}, {sRW}
             s_cselect_b32 {sR2}, {hex(OOB)}, {sR2}
             s_cselect_b32 {sRC}, {hex(OOB)}, {sRC}
             s_cselect_b32 {sKVL}, {hex(OOB)}, {sKVL}
             s_add_u32 {sZL}, {sKVL}, {8*3584-1024}
             s_and_b32 {sSIG}, {sU}, 15
             s_lshl_b32 {sSIG}, {sSIG}, 8
             s_add_u32 {sSIG}, {sSIG}, {hex(CNT)}
             s_cmp_eq_u32 {sW}, 0
             s_cselect_b32 {sSIG}, {sSIG}, {hex(OOB)}""")
        return M

    def miscB(self):
        M = Seq()
        a, b, c, d = "v208", "v209", "v210", "v211"
        M(f"""s_lshr_b32 {sTB}, {sM}, 2
             s_lshl_b32 {sT3}, {sG}, 2
             s_add_u32 {sTB}, {sTB}, {sT3}
             s_lshl_b32 {sT4}, {sRQ}, 1
             s_add_u32 {sT4}, {sT4}, {sW}
             s_and_b32 {sT4}, {sT4}, 7
             s_lshl_b32 {sKVL}, {sT4}, 12
             s_add_u32 {sKVL}, {sKVL}, {hex(KVM)}
             s_xor_b32 {bK2}, {sKVL}, 0x4000
             s_lshl_b32 {sT2}, {sTB}, 16
             s_and_b32 {sPQL}, {sT4}, 6
             s_add_u32 {sPQL}, {sPQL}, {sT4}
             s_lshl_b32 {sPQL}, {sPQL}, 12
             s_add_u32 {sPQL}, {sPQL}, {sT2}
             s_add_u32 {sPQL}, {sPQL}, {hex(PQ)}
             s_xor_b32 {sPQL}, {sPQL}, {sP1}
             s_xor_b32 {bQ2}, {sPQL}, 0x8000
             s_lshl_b32 {sT4}, {sT4}, 8
             s_mov_b32 {sZL}, {hex(ZP)}
             s_lshl_b32 {sHST}, {sCB}, 14
             s_add_u32 {sHST}, {sHST}, {sT2}
             s_add_u32 {sHST}, {sHST}, {sWL}
             s_add_u32 {sHST}, {sHST}, {hex(HB)}
             s_xor_b32 {sHST}, {sHST}, {sPE}
             s_lshl_b32 {sSTA}, {sTB}, 4
             s_add_u32 {sSTA}, {sSTA}, {sCB}
             s_lshl_b32 {sSTA}, {sSTA}, 14
             s_add_u32 {sSTA}, {sSTA}, {hex(HH+7168+768)}
             s_xor_b32 {sSTA}, {sSTA}, {sP2}
             s_lshl_b32 {sD}, {sTB}, 2
             s_add_u32 {sD}, {sD}, {sCB}
             s_lshl_b32 {sD}, {sD}, 16
             s_add_u32 {sD}, {sD}, {sXL}
             s_add_u32 {sD}, {sD}, {hex(HH+7168)}
             s_xor_b32 {sD}, {sD}, {sP2}
             v_lshrrev_b32 {b}, 5, v1
             v_and_b32 {a}, 31, v1
             v_lshlrev_b32 {ROWA}, 10, {a}
             v_lshl_add_u32 {ROWA}, {b}, 4, {ROWA}
             v_lshlrev_b32 v41, 3, {a}
             v_lshl_add_u32 v41, {b}, 10, v41
             v_xor_b32 v41, {sT4}, v41
             v_bfe_u32 {c}, v1, 2, 2
             v_and_b32 {a}, 1, v1
             v_lshlrev_b32 {a}, 4, {a}
             v_bfe_u32 {d}, v1, 1, 1
             v_lshl_add_u32 {a}, {d}, 3, {a}
             v_lshl_add_u32 {d}, {b}, 11, {a}
             v_lshl_add_u32 {d}, {c}, 8, {d}
             v_xor_b32 {c}, {sW}, {c}
             v_lshl_add_u32 {d}, {c}, 6, {d}
             v_bfe_u32 {c}, v1, 4, 1
             v_lshl_add_u32 {d}, {c}, 5, {d}""")
        for q in range(4):
            M(f"""s_xor_b32 {sT2}, {sW}, {q}
                 s_lshl_b32 {sT3}, {sT2}, 14
                 v_add_u32 v{WOT+q}, {sT3}, {d}
                 s_lshl_b32 {sT2}, {sT2}, 12
                 s_add_u32 {sT2}, {sT2}, 0x20000
                 v_add_u32 v{OAD+q}, {sT2}, {L16}""")
        M(f"""s_lshl_b32 {sT2}, {sW}, 12
             s_add_u32 {sT2}, {sT2}, {0x20000+16384+3072}
             v_add_u32 {ZBW}, {sT2}, {L4}
             v_xor_b32 {d}, 1, {c}
             v_lshlrev_b32 {d}, 5, {d}
             v_lshl_add_u32 {d}, {b}, 4, {d}
             v_add_u32 {ZBR}, {sT2}, {d}
             v_lshrrev_b32 {d}, 4, v1
             v_lshlrev_b32 {P256}, 8, v1
             v_lshl_add_u32 {P256}, {d}, 27, {P256}
             s_lshl_b32 {bTL}, {sW}, 13
             s_lshr_b32 {sT2}, {sTBL}, {sKC}
             s_and_b32 {sT2}, {sT2}, 0x2000
             s_lshl_b32 {bGP}, {sKC}, 14
             s_add_u32 {bGP}, {bGP}, {sT2}
             s_add_u32 {bGP}, {bGP}, {hex(CNT)}
             s_add_u32 {bRP}, {bGP}, 4096""")
        for k in range(8):
            M(f"v_lshlrev_b32 v{192+2*k}, 16, v{24+k}\nv_and_b32 v{193+2*k}, {sMSKHI}, v{24+k}")
        return M

    def phaseA(self):
        p = self.p
        o = self.o
        pre = o.get('pre', 0)
        if pre:
            nt = " nt" if o.get('xnt', 0) else ""
            p(f"""s_lshl_b32 {sT3}, {sMA}, 2
                 s_add_u32 {sT3}, {sT3}, {sW}
                 s_lshl_b32 {sT3}, {sT3}, 11
                 s_lshl_b32 {sT4}, {sTA}, 16
                 s_add_u32 {sT3}, {sT3}, {sT4}
                 s_lshl_b32 {sT4}, s2, 2
                 s_add_u32 {sT4}, {sT4}, {sW}
                 s_mul_i32 {sT4}, {sT4}, 1536
                 v_lshrrev_b32 v196, 2, v1
                 v_lshlrev_b32 v196, 7, v196
                 v_min_u32 v197, 1408, v196""")
            if pre & 1:
                p(f"buffer_load_dword v194, v196, {X}, {sT3} offen{nt}")
            if pre & 2:
                p(f"buffer_load_dword v195, v197, {WQKV}, {sT4} offen")
        p.extend(flat(self.dmaA(0)))
        p(f"v_lshlrev_b32 {L16}, 4, v1")
        if o.get('codepf', 1):
            p(f"""s_getpc_b64 s[70:71]
                 s_lshl_b32 {sT3}, {sU}, 2
                 s_add_u32 {sT3}, {sT3}, {sW}
                 s_lshl_b32 {sT4}, {sT3}, 8
                 v_lshrrev_b32 v200, 5, v1
                 v_lshl_add_u32 v200, v200, 7, {sT4}
                 v_min_u32 v200, CODE_PF_MAX, v200
                 global_load_dword v201, v200, s[70:71]""")
        tch = Seq()
        touch = o.get('touch', 7)
        tch(f"""s_lshl_b32 {sCc}, s2, 2
             s_add_u32 {sCc}, {sCc}, {sW}
             s_lshr_b32 {sT4}, {sCc}, 1
             s_mul_i32 {sT4}, {sT4}, 3072
             s_and_b32 {sT5}, {sCc}, 1
             s_lshl_b32 {sT5}, {sT5}, 11
             s_add_u32 {sT4}, {sT4}, {sT5}
             s_lshl_b32 {sCc}, {sCc}, 9
             v_lshrrev_b32 v202, 3, v1
             v_lshlrev_b32 v202, 7, v202
             v_lshrrev_b32 v42, 4, v1
             v_lshlrev_b32 v42, 7, v42""")
        if touch & 4:
            tch(f"""s_lshl_b32 {sT3}, {sU}, 2
                 s_add_u32 {sT3}, {sT3}, {sW}
                 s_mul_i32 {sT3}, {sT3}, {4*3072}
                 v_min_u32 v200, 11, v1
                 v_lshlrev_b32 v200, 10, v200
                 buffer_load_dword v198, v200, {WQKV}, {sT3} offen offset:384""")
        if touch & 1:
            tch(f"buffer_load_dword v203, v202, {WQKV}, {sT4} offen")
        tat = o.get('tat', -1)
        if tat == -2:
            p.extend(tch)
        d1 = self.dmaA(1)
        n1 = o.get('d1', 4)
        p.extend(flat(d1[:n1]))
        if tat == -1:
            p.extend(tch)
        for srd, src, sz in ((12, 80, 0x80000), (16, 84, 0x1C0000), (20, 86, 0x1C0000), (24, 88, 0x1C0000),
                             (28, 90, 0x200000), (36, 92, 256), (32, 94, WS_SIZE)):
            p(f"s_mov_b64 s[{srd}:{srd+1}], s[{src}:{src+1}]\ns_mov_b32 s{srd+2}, {hex(sz)}\ns_mov_b32 s{srd+3}, 0x20000")
        if o.get('wsoff'):
            p(f"s_add_u32 s32, s32, {o['wsoff'] << 20}\ns_addc_u32 s33, s33, 0")
        Lz = self.lab("z")
        p(f"""s_lshl_b32 {sB}, {sW}, 8
             s_add_u32 {sB}, {sB}, 224
             s_cmp_lt_u32 s2, {sB}
             s_cbranch_scc1 {Lz}""")
        padr = f"""s_sub_u32 {sT2}, s2, 224
             s_and_b32 {sT1}, {sU}, 1
             s_lshl_b32 {sT3}, {sT1}, 5
             s_add_u32 {sT3}, {sT3}, {sT2}
             s_lshl_b32 {sT3}, {sT3}, 8
             s_add_u32 {sT3}, {sT3}, {hex(PROBE)}
             s_xor_b32 {sT4}, {sT3}, 0x2000
             s_waitcnt lgkmcnt(0)
             s_buffer_load_dword {sT5}, {WS}, {sT3} glc
             s_buffer_load_dword {sT5}, {WS}, {sT4} glc"""
        p(f"""{padr.replace(sT5, sD)}
             v_mov_b32 v16, 0
             v_mov_b32 v17, 0
             v_mov_b32 v18, 0
             v_mov_b32 v19, 0
             v_lshrrev_b32 v20, 3, v1
             v_lshl_add_u32 v20, v20, 7, {L16}
             s_lshl_b32 {sT4}, {sT2}, 11
             s_lshl_b32 {sT3}, {sT2}, 12
             s_add_u32 {sT3}, {sT3}, {hex(CNT)}
             s_add_u32 {sT4}, {sT4}, {hex(KVM)}
             buffer_store_dwordx4 v[16:19], {L16}, {WS}, {sT4} offen sc1
             buffer_store_dwordx4 v[16:19], {L16}, {WS}, {sT4} offen offset:1024 sc1
             buffer_store_dwordx4 v[16:19], v20, {WS}, {sT3} offen sc1
             buffer_store_dwordx4 v[16:19], v20, {WS}, {sT3} offen offset:2048 sc1""", cond=True)
        p(f"{Lz}:")
        probe = f"""{padr}
             s_getreg_b32 {sT4}, hwreg(HW_REG_XCC_ID, 2, 1)
             s_waitcnt lgkmcnt(1)
             s_nop {o.get('pnop', 15)}
             s_getreg_b32 {sT2}, hwreg(HW_REG_IB_STS, 8, 4)
             s_waitcnt lgkmcnt(0)
             s_min_u32 {sT2}, {sT2}, 1
             s_xor_b32 {sT1}, {sT1}, {sT4}
             s_cmp_lg_u32 {sT1}, {sT2}
             s_cselect_b32 {sT2}, 64, 4096
             s_add_u32 {sT2}, {sT2}, 1
             s_add_u32 {sT5}, {sKC}, 18
             s_lshl_b32 {sT4}, {sT4}, {sT5}
             s_cmp_eq_u32 {sU}, 28
             s_cselect_b32 {sT4}, {sT4}, 0
             s_add_u32 {sT2}, {sT2}, {sT4}
             v_mov_b32 v46, {sT2}"""
        p.extend(self.miscA())
        if o.get('pat', 0) == 0:
            Lz = self.lab("z")
            p(f"s_cmp_lt_u32 s2, {sB}\ns_cbranch_scc1 {Lz}")
            p(probe, cond=True)
            p(f"{Lz}:")
            probe = ""
        if tat == 0:
            p.extend(tch)
        SEL, ONES = v(16, 4), v(20, 4)
        XS, XQ0, XQ1, CSA, ZA = 252, 248, 32, 36, 44
        AK, AV, AQ, RB, AKV = 48, 64, 80, 96, 112
        WR = 128
        XM, WP, RS_ = 160, 164, 176

        def wread(t, s, dst=None):
            n = t * 32 + s
            addr = (TRK, TRP, TRK)[t]
            return trpair(('v', WR + 4 * (n % 6) if dst is None else dst), f"v{addr+(s&3)}", (s >> 2) * 8192, 512)

        def wf(t, s):
            return v(WR + 4 * ((t * 32 + s) % 6), 4)

        def csm(f, first):
            return mf16(CSA, SEL, f, "0" if first else None)

        def cswrite(t):
            S = split2(41, CSA, 41)
            S(f"ds_write_b32 {XCW}, v41 offset:{t*512}", tag=f"x{t}")
            return list(S)

        def csget(t):
            return [Inst(f"ds_read_b64 {v(WP+4*t,2)}, {XCR} offset:{t*512}")]

        def xread(s):
            return [Inst(f"ds_read_b128 {a_(4*s,4)}, v{10+(s&3)} offset:{(s>>2)*8192}")]

        p.extend(flat(d1[n1:]))
        d2 = self.dmaA(2)
        n2_ = o.get('d2', 4)
        p.extend(flat(d2[:n2_]))
        self.stamp("A_issued")
        p("WAITTAG A0\ns_barrier")
        self.stamp("A_c0")
        p.extend(xread(0) + wread(0, 0) + xread(1) + wread(0, 1))
        p.extend(flat(d2[n2_:]))
        ad = o.get('ad', 3)
        nv1 = o.get('nv1', 10)
        vq = flat([self.dmaW(1, k) for k in range(8)])
        pend = self.dmaA(3) if ad == 4 else []
        for s in range(32):
            c, j = s >> 2, s & 3
            xf = a_(4 * s, 4)
            z = "0" if s == 0 else None
            p.append(mf32(AK, xf, wf(0, s), z))
            if j == 2 and c < 7:
                p(f"WAITTAG A{c+1}\ns_barrier")
                self.stamp(f"a{c+1}")
                assert not pend
                if c == 1:
                    p(f"s_cmp_ge_u32 s2, {sB}")
                    self.ool("s_cbranch_scc1", f"{probe}\nbuffer_atomic_add v46, {FA1}, {DBG}, 0 offen sc1")
                if c + 1 == tat:
                    p.extend(tch)
                if c + ad < 8:
                    pend = self.dmaA(c + ad)
                else:
                    pend, vq = vq[:4], vq[4:]
            if s == 30:
                p("WAITTAG V1\ns_barrier")
                k = max(0, nv1 - (16 - len(vq)))
                assert k <= 2
                pend, vq = vq[:k], vq[k:]
            if s + 2 < 32:
                p.extend(xread(s + 2) + wread(0, s + 2))
            else:
                p.extend(wread(1, s + 2 - 32))
            if s == 28:
                p("ds_read_b128 v[24:27], v14\nds_read_b128 v[28:31], v15", tag="xres")
            for _ in range(2 if s < 2 else 1):
                if pend:
                    p.extend(pend.pop(0))
            if j % 2 == 0:
                p.append(csm(wf(0, s), s == 0))
            if j < 2:
                p.append(mf16(XS, SEL, xf, z))
                p.append(mf4(XQ0, a_(4 * s, 2), a_(4 * s, 2), z))
                p.append(mf4(XQ1, a_(4 * s + 2, 2), a_(4 * s + 2, 2), z))
            if s == 30:
                for k in range(4):
                    p(f"v_add_f32 v{XQ0+k}, v{XQ0+k}, v{XQ1+k}")
                p(f"""v_cndmask_b32 v197, v{XQ0}, v{XQ0+1}, s[96:97]
                     v_cndmask_b32 v197, v197, v{XQ0+2}, s[98:99]
                     v_cndmask_b32 v197, v197, v{XQ0+3}, s[70:71]
                     v_mov_b32 v196, v197""")
            if s == 31:
                p(f"""v_permlane32_swap_b32 v196, v197
                     v_add_f32 v{XS+1}, v196, v197
                     ds_write_b64 {STW}, {v(XS,2)}""")
                p.extend(cswrite(0))
        assert not pend
        self.stamp("A_loop")
        CT = (204, 208, ZA)
        kb = o.get('kb', 9)

        def tilepass(t, acc, order):
            nm = "VQ"[t - 1]
            G = []
            for s in range(32):
                A_, B_ = (a_(4 * s, 4), wf(t, s)) if order == 0 else (wf(t, s), a_(4 * s, 4))
                g = Seq()
                g.append(mf32(acc, A_, B_, "0" if s == 0 else None))
                if t == 1 and s == 2:
                    g("WAITTAG x0 xres" + (" V3" if ad == 4 else "") + "\ns_barrier")
                    g(f"ds_read_b64 v[198:199], {STR}")
                    g.extend(csget(0))
                if t == 2 and o.get('fb', 0) & 2:
                    if s == 4:
                        g("WAITTAG Q3\ns_barrier")
                    if s == kb:
                        assert kb <= 12
                        g("WAITTAG kvp Q7\ns_barrier")
                elif t == 1 and o.get('fb', 0) & 1:
                    if s == 12:
                        g("WAITTAG V7\ns_barrier")
                elif s % 8 == 4 and s < 28 and ((t, s) != (1, 4) or ad != 4):
                    g(f"WAITTAG {nm}{(s+4)//4+1} kvp\ns_barrier")
                elif t == 2 and s == kb:
                    g("WAITTAG kvp\ns_barrier")
                if s == 28:
                    g(f"WAITTAG x{t}" + (" Q1" if t == 1 else "") + "\ns_barrier")
                    g.extend(csget(t))
                if t == 1 and s < 2:
                    g.extend(wread(t, 2 + 2 * s) + wread(t, 3 + 2 * s))
                elif s + 4 < 32:
                    g.extend(wread(t, s + 4))
                elif t == 1:
                    g.extend(wread(2, s + 4 - 32))
                if s in (20, 21, 22):
                    g.extend(wread(t, 26 + 2 * (s - 20), CT[s - 20]))
                if s % 2 == 0 and s < 26 and (t, s) != (1, 0):
                    g.append(csm(wf(t, s), (t, s) == (2, 0)))
                if (t, s) == (1, 1):
                    g.append(csm(wf(t, 0), True))
                if s in (23, 24, 25):
                    g.append(csm(v(CT[s - 23], 4), False))
                if s == 26:
                    g.extend(cswrite(t))
                G.append(list(g))
            return G

        def phi(acc, scale, T, dst):
            S = Seq()
            for h in range(2):
                r = range(8 * h, 8 * h + 8)
                for i in r:
                    S(f"v_fma_f32 v{acc+i}, v{acc+i}, {scale(i)}, {sEPS6}")
                for i in r:
                    S(f"v_mul_f32 v{T+(i&7)}, {sLOG2E}, v{acc+i}")
                for i in r:
                    S(f"v_exp_f32_e64 v{T+(i&7)}, v{T+(i&7)} clamp")
                    S(f"v_max_f32 v{acc+i}, {sEPS6}, v{acc+i}")
                for i in r:
                    S(f"v_add_f32 v{acc+i}, v{acc+i}, v{T+(i&7)}")
                for i in range(4 * h, 4 * h + 4):
                    S(f"v_cvt_pk_bf16_f32 v{dst+i}, v{acc+2*i}, v{acc+2*i+1}")
            return S
        E = Seq()
        E(f"""v_add_f32 v198, v198, v{XS}
             v_add_f32 v197, v199, v{XS+1}
             v_mul_f32 v199, 0x3b000000, v198
             v_mul_f32 v197, 0x3b000000, v197
             v_cvt_pk_bf16_f32 v198, -v199, -v199
             v_fma_f32 v197, -v199, v199, v197
             v_cndmask_b32 v{XM}, v198, 0, {sHILANES}
             v_cndmask_b32 v{XM+1}, v198, 0, {sHILANES}
             v_max_f32 v197, 0, v197
             v_add_f32 v197, 0x3727c5ac, v197
             v_rsq_f32 v40, v197""")
        E.append(mf32(AK, v(XM, 4), v(WP, 4)))
        E.extend(split2(RS_, 40, 198))
        E(f"v_cndmask_b32 v{RS_}, v{RS_}, 0, {sHILANES}")
        E.append(mf32(RB, v(RS_, 4), ONES, "0"))
        PK = phi(AK, lambda i: f"v{RB+i}", 196, 180)
        G = tilepass(1, AV, 0)
        v2e = o.get('v2e', 9)
        qq = flat([self.dmaW(2, k) for k in range(8)])
        nq2 = o.get('nq2', 12)
        G = weave(G, vq, 0, v2e)
        G = weave(G, qq[:nq2], max(3, v2e), o.get('q2end', 32))
        G[0] += [Inst(f"v_subrev_u32 v{TRK+j}, {hex(VB)}, v{TRP+j}") for j in range(4)]
        G[12] += [Inst(f"buffer_load_dword v5, {FA1}, {DBG}, 0 offen sc1")]
        n2 = o.get('pk2', 88)
        G = weave(G, list(E), 4, 8)
        G = weave(G, PK[:n2], 10, 32)
        for k in range(3, 31, 4):
            G[k] += self.sub(lambda: self.stamp(f"v{k}"))
        p.extend(flat(G))
        p.append(mf32(AV, v(XM, 4), v(WP + 4, 4)))
        self.stamp("A_v")
        E = Seq()
        E.extend(PK[n2:])
        for i in range(16):
            E(f"v_mul_f32 v{AV+i}, v{AV+i}, v{RB+i}")
        for i in range(8):
            E(f"v_cvt_pk_bf16_f32 v{188+i}, v{AV+2*i}, v{AV+2*i+1}")
        G = tilepass(2, AQ, 1)
        rq = self.rload()
        if o.get('nor'):
            rq = []
        if touch & 2:
            rq = rq[:2] + [[Inst(f"buffer_load_dword v42, v42, {WO}, {sCc} offen")]] + rq[2:]
        e2 = o.get('e2', 0)
        R2T = trpair(('a', 144), RT2A, 4096, 512) + trpair(('a', 148), RT2B, 4096, 512)
        R2S = [Inst(f"buffer_store_dwordx4 a[144:147], {L16}, {WS}, {sR2} offen sc1", tag="pub1" if e2 else "pubR"),
               Inst(f"buffer_store_dwordx4 a[148:151], {L16}, {WS}, {sR2} offen offset:1024 sc1", tag="pub1" if e2 else "pubR")]
        if e2:
            G[e2] += [Inst("WAITTAG RL2")] + R2T
            G[e2 + 3] += R2S[:1]
            G[e2 + 5] += R2S[1:]
            R2T, R2S = [], []
        r0 = o.get('r0', 7)
        if nq2 < 16:
            G = weave(G, qq[nq2:], 0, r0)
        G = weave(G, rq, r0, o.get('r1', r0 + 7))
        if o.get('rwait'):
            G[o.get('r1', 7)] += list(Seq()("WAITALL vm")) + self.sub(lambda: self.stamp("A_rland"))
        woq = flat([self.dmaWO(q) for q in range(8)])
        nw3 = o.get('wo3', 0)
        G[13] += [Inst(f"s_lshl_b32 {sB}, {sW}, 12")]
        if nw3:
            G = weave(G, woq[:nw3], o.get('wo30', 26), 32)
        G = weave(G, list(E), 0, kb - 5)
        G[kb - 5] += [mf32(AKV, v(180, 4), v(188, 4), "0"), mf32(AKV, v(184, 4), v(192, 4)),
                 mf16(ZA, SEL, v(180, 4), "0"), mf16(ZA, SEL, v(184, 4))]
        G[kb - 4] += self.sub(lambda: self.spin("v5", None, "0", "1", "32", srd=DBG, mode='check', sleep=4, field=63))
        S = Seq()
        S(f"""v_readfirstlane_b32 {sT2}, v5
             s_bfe_u32 {sT3}, {sT2}, 0x60006
             s_bfe_u32 {sT4}, {sT2}, 0x6000c
             s_lshr_b32 {sT2}, {sT2}, 5""")
        S = [[i] for i in S] + [list(Seq()(f"""s_cmp_gt_u32 {sT4}, {sT3}
             s_cselect_b32 {sT3}, {'0, -1' if o.get('parx') else '-1, 0'}"""))]
        S += [[i] for i in Seq()(f"""s_xor_b32 {sTBL}, {sT2}, {sT3}
             s_lshr_b32 {sT2}, {sTBL}, {sKC}
             s_lshl_b32 {sT3}, {sG}, 10
             s_xor_b32 {sP1}, {sT2}, {sT3}
             s_and_b32 {sP1}, {sP1}, 0x2000
             s_xor_b32 {sPQS}, {sPQS}, {sP1}
             s_lshr_b32 {sPE}, {sTBL}, 3
             s_and_b32 {sPE}, {sPE}, 0x2000
             s_lshl_b32 {sT4}, {sG}, 12
             s_xor_b32 {sP2}, {sT3}, {sT4}
             s_and_b32 {sP2}, {sP2}, 0x2000
             s_xor_b32 {sP2}, {sP2}, {sPE}
             s_xor_b32 {sHS}, {sHS}, {sP2}
             v_mov_b32 v176, 0
             v_lshrrev_b32_e64 {P4K}, v1, {sTBL}
             v_and_b32 {P4K}, 0x2000, {P4K}
             v_lshl_add_u32 {P4K}, v1, 14, {P4K}
             v_or_b32 {P4K}, {P4K}, {LM8}""")]
        S += [[Inst(f"buffer_store_dwordx4 v[176:179], {L16}, {WS}, {sHS} offen offset:3072 sc1", tag="pub1")]]
        G = weave(G, S, 19, 31)
        S = Seq()
        for i in range(8):
            S(f"v_cndmask_b32 v{196+i}, v{AKV+i}, v{AKV+8+i}, {sB4LANES}")
        S(f"""ds_write_b128 {KVW}, v[196:199]
             ds_write_b128 {KVW}, v[200:203] offset:512""")
        S(f"ds_write_b32 {ZW}, v{ZA}", tag="kvp")
        G = weave(G, list(S), kb - 3, kb - 1)
        S = Seq()
        for k in range(4):
            S(f"ds_read2st64_b32 v[{112+2*k}:{113+2*k}], {KVR} offset0:{k} offset1:{k+8}")
        S(f"ds_read2_b32 v[120:121], {ZR} offset0:0 offset1:32")
        G = weave(G, list(S), kb, kb + 2)
        S = Seq()
        for k in range(5):
            S(f"v_add_f32 v{112+2*k}, v{112+2*k}, v{113+2*k}")
        for k in range(4):
            S(f"buffer_atomic_add_f32 v{112+2*k}, {L4}, {WS}, {sKVA} offen offset:{k*256}", tag="pub1")
        S(f"buffer_atomic_add_f32 v120, {ZAT}, {WS}, {sZA} offen", tag="pub1")
        G = weave(G, list(S), kb + 3, kb + 8)
        for k in range(3, 31, 4):
            G[k] += self.sub(lambda: self.stamp(f"v{k}"))
        p.extend(flat(G))
        p.append(mf32(AQ, v(WP + 8, 4), v(XM, 4)))
        self.stamp("A_q")
        woq = woq[nw3:]
        t1, t3, t2 = o.get('wot1', 0), o.get('wot3', 6), o.get('wot2', 2)
        assert nw3 + t1 == 0
        p.extend(flat(woq[:t1]))
        woq = woq[t1:]
        ph = phi(AQ, lambda i: "v40", 196, 180)
        h = len(ph) // 2
        p.extend(ph[:h])
        p(f"buffer_store_dwordx4 v[180:183], {L16}, {WS}, {sPQS} offen sc1", tag="pub1")
        p.extend(ph[h:])
        p(f"buffer_store_dwordx4 v[184:187], {L16}, {WS}, {sPQS} offen offset:1024 sc1", tag="pub1")
        self.stamp("A_pqst")
        p("s_barrier")
        MB = list(self.miscB()) + self.miscC()
        nb = o.get('mb1', 140)
        assert nb >= len(self.miscB())
        p.extend(flat(woq[:t3]))
        p("s_nop 0")
        p.extend(MB[:nb])
        p("s_nop 0")
        p.extend(flat(woq[t3:t3 + t2]))
        woq = woq[t3 + t2:]
        p("WAITTAG pub1\ns_barrier")
        p(f"buffer_atomic_add v4, {P4K}, {WS}, {sSIG} offen sc1")
        self.stamp("A_sig")
        for s in range(4):
            p.extend(trpair(('a', 128 + 4 * s), RT13, s * 6144, 512))
        p.extend(R2T)
        t4 = o.get('wot4', 16)
        assert t3 + t2 + t4 >= 16
        p.extend(flat(woq[:t4]))
        for s in range(4):
            p.append(mf16(RCS, SEL, a_(128 + 4 * s, 4), "0" if s == 0 else None))
            p(f"buffer_store_dwordx4 {a_(128+4*s,4)}, {L16}, {WS}, {sRW} offen offset:{s*1024} sc1", tag="pubR")
        p.extend(R2S)
        p(f"buffer_atomic_add_f32 v{RCS}, {CSAT}, {WS}, {sRC} offen", tag="pubR")
        self.stamp("A_rst")
        p(f"s_add_u32 {sSIG}, {sSIG}, 4096")
        self.wo_rest = woq[t4:]
        self.mb_rest = MB[nb:]

    def dmaT(self, t, slot):
        g = []
        for h in range(2):
            S = Seq()
            S(f"s_add_u32 m0, {bTL}, {slot*32768+h*4096}\ns_add_u32 {sT0}, {bTX if self.o.get('grp', 1) and par13(t) else bTA}, {t*65536+h*4096}")
            for k in range(4):
                S(f"buffer_load_dwordx4 {L16}, {WS}, {sT0} offen offset:{k*1024} sc1 lds", tag=f"T{t}")
                g.append(list(S))
                S = Seq()
            ctx(g[-4:])
        return g

    def phaseB(self):
        p = self.p
        o = self.o
        AH = 192
        W = [trpair(('a', 4 * i), f"v{WOT+((i>>2)&3)}", (i & 3) * 4096, 1024) for i in range(32)]
        PQR = 224
        LD = [Inst(f"buffer_load_dwordx2 v[32:33], v41, {WS}, {sZL} offen sc1")]
        for q in range(4):
            for i in (2 * q, 2 * q + 1):
                LD.append(Inst(f"buffer_load_dwordx4 {v(48+4*i,4)}, {L16}, {WS}, {sKVL if i < 4 else bK2} offen offset:{(i&3)*1024} sc1"))
            for i in (2 * q, 2 * q + 1):
                LD.append(Inst(f"buffer_load_dwordx4 {a_(PQR+4*i,4)}, {L16}, {WS}, {sPQL if i < 4 else bQ2} offen offset:{(i&3)*1024} sc1"))
        ZB = Seq()(f"v_cvt_pk_bf16_f32 v32, v32, v33\nds_write_b32 {ZBW}, v32")
        for k in range(4):
            ZB(f"ds_read_b128 {v(96+4*k,4)}, {ZBR} offset:{k*64}")
        p("WAITTAG WO0\ns_barrier")
        self.stamp("B_wo")
        pm = o.get('pm', 0)
        pl = list(Seq()(f"""s_cmp_eq_u32 {sW}, 1
             s_cselect_b32 {bGP}, {bGP}, {hex(OOB)}
             s_cselect_b64 s[26:27], 0xffff, 0
             buffer_load_dword v5, {P256}, {WS}, {bGP} offen sc1"""))
        if pm == 2:
            p.extend(pl)
        p.extend(flat(W[:16]))
        if pm == 1:
            p.extend(pl)
        for q in range(4):
            p(f"v_add_u32 v{WOT+q}, 0x10000, v{WOT+q}")
        mb2 = o.get('mb2', 30)
        p.extend(self.mb_rest[:mb2])
        self.stamp("B_prepoll")
        if pm:
            self.spin("v5", P256, bGP, "s[26:27]", "16", sleep=o.get('sleep1', 1), mode='check')
        else:
            self.spin("v5", P256, bGP, "0xffff", "16", sleep=o.get('sleep1', 1), wave=o.get('pw', 1))
        p("WAITTAG pubR\nWAITALL lgkm\ns_barrier")
        self.stamp("B_sync1")
        LD.insert(o.get('rsat', 0), Inst(f"buffer_atomic_add v4, {P4K}, {WS}, {sSIG} offen sc1"))
        nl0 = o.get('nl0', 14)
        p.extend(LD[:10] + [Inst('s_nop 0')] + self.mb_rest[mb2:] + ZB + LD[10:nl0])

        def prep(q):
            S = Seq()
            for k in range(4):
                S(f"v_cvt_pk_bf16_f32 v{80+4*q+k}, v{48+8*q+2*k}, v{48+8*q+2*k+1}")
            for k in range(4):
                S(f"v_cndmask_b32 v{112+8*q+k}, v{80+4*q+k}, v{96+4*q+k}, {sB4LANES}")
            for k in range(4):
                S(f"v_cndmask_b32 v{116+8*q+k}, v{96+4*q+k}, v{80+4*q+k}, {sB4LANES}")
            return S
        NA = [144, 160, 176]
        steps = [(pr + k, t) for pr in (0, 2) for t in range(3) for k in range(2)]
        d16 = o.get('d16', 1)
        steps += [(pr, t) for t in (3, 4, 5, 6) for pr in range(4)]
        w2o = [f"{cW2x if o.get('grp', 1) and par2(pr, t) else cW2}, {pr * 32768 + (t >> 2) * 16384 + (t & 3) * 2048}" for pr, t in steps]
        hho = [pr * 16384 + t * 1024 for pr, t in steps]
        w2l = []
        for i in range(16):
            S = Seq()
            if d16:
                ad = W2B if i & 1 else W2A
                if i % 2 == 0:
                    S(f"s_add_u32 {sKC}, {w2o[i]}")
                S(f"buffer_load_dwordx4 {a_(128+8*i,4)}, {ad}, {WS}, {sKC} offen sc1")
                w2l.append(list(S))
                w2l.append([Inst(f"buffer_load_dwordx4 {a_(132+8*i,4)}, {ad}, {WS}, {sKC} offen offset:256 sc1")])
                if i & 1:
                    ctx(w2l[-4:])
                continue
            S(f"s_add_u32 {sKC}, {w2o[i]}")
            S(f"buffer_load_dwordx4 {a_(128+8*i,4)}, {W2A}, {WS}, {sKC} offen sc1")
            w2l.append(list(S))
            w2l.append([Inst(f"buffer_load_dwordx4 {a_(132+8*i,4)}, {W2B}, {WS}, {sKC} offen sc1")])
            ctx(w2l[-2:])
        self.steps, self.w2o, self.hho = steps, w2o, hho
        nw1, nw2 = (o.get('nw1', 6), o.get('nw2', 6)) if o.get('e2', 0) else (0, 0)
        assert nw1 <= 24
        W1, W2_, w2l = w2l[:nw1], w2l[nw1:nw1 + nw2], w2l[nw1 + nw2:]
        self.n_w2rest = len(w2l)
        TQ = flat([self.dmaT(t, t) for t in range(2)]) + w2l
        n2, n3 = o.get('tq2', 6), o.get('tq3', 10)

        def num(i):
            return mf32(NA[i % 3], v(112 + 4 * i, 4), a_(PQR + 4 * i, 4), "0")

        def fin(i):
            n = NA[i % 3] + 8 * (i & 1)
            d = NA[i % 3] + 8 * (1 - (i & 1))
            S = Seq()
            S(f"v_add_f32 v{d}, {sEPS6}, v{d}\nv_rcp_f32 v{d}, v{d}")
            for k in range(8):
                S(f"v_mul_f32 v{n+k}, v{n+k}, v{d}")
            for k in range(4):
                S(f"v_cvt_pk_bf16_f32 v{48+4*i+k}, v{n+2*k}, v{n+2*k+1}")
            return S

        def owrite(i):
            return Inst(f"ds_write_b128 v{OAD}, {v(48+4*i,4)} offset:{(i>>2)*16384+(i&3)*1024}", tag=f"o{i}")

        OR = (16, 20, 36, 44, 208, 248)

        def oreg(k):
            return OR[k % 6] if k < 16 else 80 + 4 * (k & 7)

        def oread(k):
            return Inst(f"ds_read_b128 {v(oreg(k),4)}, v{OAD+((k>>2)&3)} offset:{(k>>4)*16384+(k&3)*1024}")

        def acc(k):
            own = (k & 12) == 0
            return mf32(AH, a_(4 * k, 4), v(48 + 4 * ((k >> 4) * 4 + (k & 3)) if own else oreg(k), 4))
        self.stamp("bz")
        p.extend(prep(0))
        self.stamp("bp")
        p.append(num(0))
        p.append(num(1))
        VM = [[x] for x in LD[nl0:]] + list(self.wo_rest)
        per = o.get('per', 3)
        rl, rc = o.get('rl', 7), o.get('rc', 8)
        kk = 4
        for i in range(8):
            if i + 2 < 8:
                if i % 2 == 0:
                    p.extend(prep(i // 2 + 1))
                p.append(num(i + 2))
            if i >= 1:
                p.append(owrite(i - 1))
            if i == 5:
                p("WAITTAG o3\ns_barrier")
                p.extend([oread(k) for k in range(4, 9)])
            for _ in range(per):
                if VM:
                    p.extend(VM.pop(0))
            if i == rl:
                p(f"buffer_load_dword v5, {P256}, {WS}, {bRP} offen sc1")
            if i >= 5:
                for _ in range(-(-nw1 // 3)):
                    if W1:
                        p.extend(W1.pop(0))
            F = fin(i)
            self.stamp(f"b{i}")
            if i < 5:
                p.extend(F[:7])
                if i >= 1:
                    p.append(acc(i - 1))
                p.extend(F[7:])
            else:
                cuts = (8, 14) if i == 5 else (2, 6, 10, 14)
                lo = 0
                for c in cuts:
                    p.extend(F[lo:c])
                    lo = c
                    p.append(acc(kk))
                    if kk + 5 < 16:
                        p.append(oread(kk + 5))
                    kk += 1
        p.append(owrite(7))
        assert not VM
        self.stamp("B_st1")
        p.append(acc(kk))
        p("WAITTAG WO1 o7\ns_barrier")
        for k in range(16, 20):
            p.extend(W[k])
        assert kk == 14
        G = [[acc(15)] + W[20] + [oread(20)]]
        for k in range(16, 32):
            g = [acc(k)]
            if k + 5 < 32:
                g += W[k + 5] + [oread(k + 5)]
            G.append(g)
        if rl >= 8:
            G[rl - 8] += [Inst(f"buffer_load_dword v5, {P256}, {WS}, {bRP} offen sc1")]
        G[rc] += self.sub(lambda: self.spin("v5", P256, bRP, "0xffff", "16", mode='check', sleep=2))
        G = weave(G, W2_, 0, rc)
        G = weave(G, TQ[:n2], rc + 1, 17)
        p.extend(flat(G))
        for k in range(8):
            p(f"v_cvt_pk_bf16_f32 v{48+k}, v{AH+2*k}, v{AH+2*k+1}")
            if k == 3:
                p(f"buffer_store_dwordx4 v[48:51], {L16}, {WS}, {sHST} offen sc1", tag="pub2")
        p(f"buffer_store_dwordx4 v[52:55], {L16}, {WS}, {sHST} offen offset:1024 sc1", tag="pub2")
        p(f"v_add_f32 v56, v{AH}, v{AH+1}\nv_mul_f32 v57, v{AH}, v{AH}\nv_add_f32 v58, v{AH+2}, v{AH+3}\nv_mul_f32 v59, v{AH+1}, v{AH+1}")
        for k in range(2, 16):
            if k >= 4:
                p(f"v_add_f32 v{56+2*(k&1)}, v{56+2*(k&1)}, v{AH+k}")
            p(f"v_fmac_f32 v{57+2*(k&1)}, v{AH+k}, v{AH+k}")
        p("""v_add_f32 v56, v56, v58
             v_add_f32 v57, v57, v59
             v_permlane32_swap_b32 v56, v57
             v_add_f32 v56, v56, v57""")
        p(f"buffer_atomic_add_f32 v56, {L4}, {WS}, {sSTA} offen", tag="pub2")
        self.stamp("B_hst")
        for t in range(7):
            p(f"buffer_load_dword v{160+t}, {CSL}, {WS}, {cCS} offen offset:{t*128} sc1")
        p.extend(flat(TQ[n2:n2 + n3]))
        p(f"WAITTAG pub2\nbuffer_store_dword v4, {FA1}, {WS}, {sD} offen offset:512 sc1\ns_barrier")
        self.t1_late = n2 < 16
        self.stamp("B_sig")
        self.tq_rest = TQ[n2 + n3:]

    def miscC(self):
        M = Seq()
        DL = "v45"
        if self.o.get('d16', 1):
            M(f"""v_bfe_u32 v46, v1, 4, 1
                 v_and_b32 {DL}, 0xf0, {L16}
                 v_lshl_add_u32 {DL}, v46, 9, {DL}
                 v_lshrrev_b32 v46, 5, v1""")
        else:
            M(f"v_mov_b32 {DL}, {L16}\nv_mov_b32 v46, 0")
        M(f"""s_bfe_i32 {sT1}, {sTBL}, 0x10010
             s_xor_b32 {sT1}, {sT1}, {sTBL}
             s_and_b32 {sT1}, {sT1}, 0xe000
             s_bcnt1_i32_b32 {sT1}, {sT1}
             s_sub_u32 {sT1}, {sKC}, {sT1}""")
        if self.o.get('cmap', 1):
            M(f"""s_and_b32 {sGC}, {sT1}, 4
                 s_lshl_b32 {sGC}, {sGC}, 1
                 s_and_b32 {sT2}, {sU}, 7
                 s_add_u32 {sGC}, {sGC}, {sT2}
                 s_and_b32 {sMC}, {sT1}, 3
                 s_lshl_b32 {sMC}, {sMC}, 2
                 s_lshr_b32 {sT2}, {sU}, 3
                 s_add_u32 {sMC}, {sMC}, {sT2}""")
        else:
            M(f"""s_and_b32 {sGC}, {sT1}, 6
                 s_lshl_b32 {sGC}, {sGC}, 1
                 s_add_u32 {sGC}, {sGC}, {sRQ}
                 s_and_b32 {sMC}, {sT1}, 1
                 s_lshl_b32 {sMC}, {sMC}, 3
                 s_lshr_b32 {sT2}, {sU}, 2
                 s_add_u32 {sMC}, {sMC}, {sT2}""")
        M(f"""s_lshl_b32 {sT1}, {sGC}, 10
             s_lshl_b32 {sT2}, {sGC}, 12
             s_xor_b32 {sP2}, {sT1}, {sT2}
             s_and_b32 {sP2}, {sP2}, 0x2000
             s_xor_b32 {sP2}, {sP2}, {sPE}
             s_lshl_b32 {bTA}, {sMC}, 19
             s_add_u32 {bTA}, {bTA}, {sXL}
             s_and_b32 {sT2}, {sMC if self.o.get('grp', 1) else sW}, 1
             s_lshl_b32 {sT2}, {sT2}, 13
             s_add_u32 {bTA}, {bTA}, {sT2}
             s_add_u32 {bTA}, {bTA}, {hex(W13R)}
             s_xor_b32 {bTX}, {bTA}, 0x2000""")
        M(f"""s_lshl_b32 {sT1}, {sGC}, 2
             s_add_u32 {sT2}, {sT1}, {sW}
             s_lshl_b32 {cHS2}, {sT2}, 4
             s_add_u32 {cHS2}, {cHS2}, {sMC}
             s_lshl_b32 {cHS2}, {cHS2}, 14
             s_add_u32 {cHS2}, {cHS2}, {hex(HH+4096)}
             s_xor_b32 {cHS2}, {cHS2}, {sP2}
             s_lshl_b32 {cHB}, {sT2}, 16
             s_add_u32 {cHB}, {cHB}, {hex(HB)}
             s_xor_b32 {cHB}, {cHB}, {sPE}
             s_sub_u32 {cHS}, {cHS2}, 4096
             s_lshl_b32 {sT3}, {sMC}, 14
             s_sub_u32 {cPL}, {cHS2}, {sT3}
             s_add_u32 {cPL}, {cPL}, {3072+512}
             s_add_u32 {cST}, {cPL}, 256
             v_lshlrev_b32 {HPA}, 14, v1
             v_and_b32 {PA2}, 12, {L4}
             v_or_b32 {PA2}, {PA2}, {LM8}
             v_bfe_u32 v44, v1, 2, 1
             v_lshl_add_u32 {PA2}, v44, 18, {PA2}
             s_mul_i32 {cCS}, {sMC}, {7*128}
             s_add_u32 {cCS}, {cCS}, {hex(CS)}
             s_and_b32 {sCB}, {sMC}, 7
             s_lshl_b32 {cW2}, {sCB}, 19
             s_lshl_b32 {sT3}, {sW}, 17
             s_add_u32 {cW2}, {cW2}, {sT3}
             s_and_b32 {sT3}, {sCB if self.o.get('grp', 1) else sW}, 1
             s_lshl_b32 {sT3}, {sT3}, 13
             s_add_u32 {cW2}, {cW2}, {sT3}
             s_add_u32 {cW2}, {cW2}, {hex(W2R)}
             s_xor_b32 {cW2x}, {cW2}, 0x2000
             s_and_b32 {sT3}, {sW}, 1
             s_lshl_b32 {sT2}, {sT3}, 10
             v_add_u32 {W2A}, {sT2}, {DL}
             v_xor_b32 {W2B}, 1024, {W2A}
             v_lshrrev_b32 v44, 4, v1
             v_lshl_add_u32 {LB0}, v44, {8 if self.o.get('c16', 1) else 31}, {L16}
             v_and_b32 {LB0}, 0xffff, {LB0}
             v_add_u32 {LB1}, 0x10000, {LB0}
             v_add_u32 {LB2}, 0x20000, {LB0}
             s_add_u32 {sT2}, {bTL}, 0x10000
             v_add_u32 {WLA}, {sT2}, {W2A}
             v_add_u32 {WLB}, {sT2}, {W2B}
             v_lshl_add_u32 {WLA}, v46, 11, {WLA}
             v_lshl_add_u32 {WLB}, v46, 11, {WLB}
             v_lshl_add_u32 {W2A}, v46, 15, {W2A}
             v_lshl_add_u32 {W2B}, v46, 15, {W2B}
             v_add_u32 {WLC}, 0x10000, {WLA}
             v_add_u32 {WLD}, 0x10000, {WLB}
             v_and_b32 {CSL}, 0x7c, {L4}
             s_lshr_b32 {sT2}, {sMC}, 3
             s_lshl_b32 {sT2}, {sT2}, 1
             s_add_u32 {sT1}, {sT1}, {sT2}
             s_lshl_b32 {cHL}, {sT1}, 18
             s_lshl_b32 {sT2}, {sW}, 16
             s_add_u32 {cHL}, {cHL}, {sT2}
             s_add_u32 {cHL}, {cHL}, {hex(HH)}
             s_xor_b32 {cHL}, {cHL}, {sP2}
             s_lshr_b32 {sT2}, {sW}, 1
             s_add_u32 {sT1}, {sT1}, {sT2}
             s_lshl_b32 {sT2}, {sT2}, 18
             v_add_u32 {HHA}, {sT2}, {DL}
             v_lshl_add_u32 {HHA}, v46, 14, {HHA}
             v_xor_b32 {HHB}, 0x40000, {HHA}
             s_lshl_b32 {sT1}, {sT1}, 15
             s_lshl_b32 {sT2}, {sCB}, 1
             s_add_u32 {sT2}, {sT2}, {sT3}
             s_lshl_b32 {cOUT}, {sT2}, 6
             s_add_u32 {cOUT}, {cOUT}, {sT1}
             s_lshr_b32 {cHR}, {sT2}, 2
             s_lshl_b32 {cHR}, {cHR}, 13
             s_add_u32 {cHR}, {cHR}, {sT1}
             s_and_b32 {sT2}, {sT2}, 3
             s_lshl_b32 {sT2}, {sT2}, 10
             s_add_u32 {cHR}, {cHR}, {sT2}
             s_lshl_b32 {cHR}, {cHR}, 1
             s_add_u32 {cHR}, {cHR}, {hex(HB)}
             s_xor_b32 {cHR}, {cHR}, {sPE}
             s_add_u32 {cPP}, {cHL}, 7168
             s_add_u32 {cPQ}, {cPP}, 0x40000
             s_and_b32 {sT3}, {sMC}, 3
             s_mul_i32 {sT3}, {sT3}, {16384-4}
             s_sub_u32 {cPS}, {cHS2}, {sT3}""")
        return list(M)

    def phaseCD(self):
        p = self.p
        o = self.o
        sub = self.sub
        bar = lambda s_: list(Seq()(s_))
        steps, w2o, hho = self.steps, self.w2o, self.hho

        def dmaW2(part):
            g = []
            for k in range(4):
                S = Seq()
                S(f"s_add_u32 m0, {bTL}, {(2+part)*32768+k*2048}\ns_add_u32 {sT0}, {w2o[16+4*part+k]}")
                S(f"buffer_load_dwordx4 {L16}, {WS}, {sT0} offen sc1 lds", tag=f"W2L{part}")
                g.append(list(S))
                g.append([Inst(f"buffer_load_dwordx4 {L16}, {WS}, {sT0} offen offset:1024 sc1 lds", tag=f"W2L{part}")])
                ctx(g[-2:])
            return g

        def pub(tag, st):
            if o.get('nopub'):
                return []
            return bar(f"WAITTAG {tag}\nbuffer_store_dword v4, {FA1}, {WS}, {cPS} offen offset:{3072+128*st} sc1")

        vp = str(o.get('vp', 'x0123'))

        def pollld(st):
            if o.get('nopoll'):
                return []
            if str(st) in vp:
                return bar(f"buffer_load_dword v5, {PA2}, {WS}, {cPP} offen sc1")
            return list(Seq()(f"""s_buffer_load_dwordx4 s[8:11], {WS}, {cPP} glc
                 s_buffer_load_dwordx4 s[12:15], {WS}, {cPQ} glc""", cond=True))

        def pollchk(st):
            if o.get('nopoll'):
                return []
            if str(st) in vp:
                return sub(lambda: self.spin("v5", PA2, cPP, "0xff", "1", mode='check', sleep=o.get('sleep2', 2))) + \
                    bar(f"s_add_u32 {cPP}, {cPP}, 128\ns_add_u32 {cPQ}, {cPQ}, 128")
            red = """s_and_b64 s[8:9], s[8:9], s[10:11]
                 s_and_b64 s[12:13], s[12:13], s[14:15]
                 s_and_b64 s[8:9], s[8:9], s[12:13]
                 s_and_b32 s8, s8, s9"""

            def f():
                Lp = self.lab("sp")
                if o.get('stamps') == 3:
                    self.p(f"s_mov_b32 {sT5}, 0")
                self.p("WAITALL lgkm\n" + red)
                self.ool("s_cbranch_scc0", f"""s_mov_b32 {sT5}, 0
                     {Lp}:
                     s_sleep {o.get('sleep2', 2)}
                     s_buffer_load_dwordx4 s[8:11], {WS}, {cPP} glc
                     s_buffer_load_dwordx4 s[12:15], {WS}, {cPQ} glc
                     s_add_u32 {sT5}, {sT5}, 1
                     s_waitcnt lgkmcnt(0)
                     {red}
                     s_lshr_b32 s9, {sT5}, 15
                     s_or_b32 s8, s8, s9
                     s_cbranch_scc0 {Lp}""")
                self.p(f"s_add_u32 {cPP}, {cPP}, 128\ns_add_u32 {cPQ}, {cPQ}, 128")
                if o.get('stamps') == 3:
                    self.p(f"v_writelane_b32 v{STV}, {sT5}, {self.nstamp}")
                    self.nstamp += 1
                    self.stamp_names.append(f"P{st}")
            return sub(f)

        kt = max(0, len(self.tq_rest) - self.n_w2rest)
        FQ = self.tq_rest[:kt] + self.dmaT(2, 2) + self.dmaT(3, 3) + self.dmaT(4, 4) + self.tq_rest[kt:]
        npre, npre2 = o.get('tq4', 12), o.get('tq5', 0)
        p.extend(flat(FQ[:npre]))
        FQ = FQ[npre:]
        c16 = o.get('c16', 1)
        CSR, CSF, MEANF, C1, C2 = 160, 168, 176, 180, 181
        CSU, CSG, MEANG = 213, 220, 228
        p("s_nop 0")
        for k in (1, 2, 3, 5, 6, 7, 9, 10, 11):
            p(f"v_mov_b32 v{CSF+k}, 0")
            if c16:
                p(f"v_mov_b32 v{CSG+k}, 0")
        for t in range(7):
            p.extend(split2(CSR + t, CSR + t, 184))
        if c16:
            for t in range(7):
                p(f"v_mov_b32 v{CSU+t}, v{CSR+t}")
            for t in range(7):
                p(f"v_permlane16_swap_b32 v{CSR+t}, v{CSU+t}")
            p(f"s_mov_b64 s[8:9], 0xffff\nv_mov_b32 v{CSG}, v{CSU}\nv_mov_b32 v{CSG+4}, v{CSU+1}")
        p(f"v_mov_b32 v{CSF}, v{CSR}\nv_mov_b32 v{CSF+4}, v{CSR+1}")
        p("s_nop 0")
        p.extend(flat(FQ[:npre2]))
        FQ = FQ[npre2:]
        self.stamp("C_prepoll")
        self.spin("v5", HPA, cPL, "0xffff", "1", mode='all', sleep=o.get('sleep3', 0))
        self.stamp("C_sync2")

        c16 = o.get('c16', 1)
        fo = (lambda s: (s >> 1) * 2048 + (s & 1) * 256) if c16 else (lambda s: s * 1024)

        def hload(s):
            S = Seq()
            if s % 4 == 0 and s:
                S(f"s_add_u32 {cHB}, {cHB}, {4096 if s % 8 else 12288}")
            S(f"buffer_load_dwordx4 {a_(4*s,4)}, {LB0}, {WS}, {cHB} offen offset:{fo(s&3)} sc1")
            return list(S)
        HL = o.get('hla', 10)
        for s in range(HL):
            p.extend(hload(s))
        if self.t1_late:
            p("WAITTAG T1\ns_barrier")
        ACC = [48, 64, 80, 96, 112]
        acc_of = [0, 1, 2, 3, 0, 1, 2]
        slot_of = [0, 1, 2, 3, 4, 0, 1]
        WR, NR = 128, 8
        CSR, CSF, MEANF, C1, C2 = 160, 168, 176, 180, 181
        T = 184
        LK = o.get('lk', 5)
        F0 = Seq()
        for k in range(4):
            F0(f"buffer_load_dword v{T+4+k}, {L4}, {WS}, {cST} offen sc1\ns_add_u32 {cST}, {cST}, 16384")
        F1 = Seq()
        F1(f"""v_add_f32 v{T}, v{T+4}, v{T+5}
             v_add_f32 v{T+1}, v{T+6}, v{T+7}
             v_add_f32 v{T}, v{T}, v{T+1}
             v_mov_b32 v{T+1}, v{T}
             v_permlane32_swap_b32 v{T}, v{T+1}
             v_mul_f32 v{T}, 0x3b000000, v{T}
             v_mul_f32 v{T+1}, 0x3b000000, v{T+1}
             v_cvt_pk_bf16_f32 v{MEANF}, -v{T}, -v{T}
             v_fma_f32 v{T+1}, -v{T}, v{T}, v{T+1}
             v_max_f32 v{T+1}, 0, v{T+1}
             v_add_f32 v{C2}, 0x3727c5ac, v{T+1}
             v_rsq_f32 v{C1}, v{C2}
             v_mul_f32 v{C1}, 0xbfb8aa3b, v{C1}""")
        if c16:
            prs = [(MEANF, MEANG), (C2, C2 + 2), (C1, C1 + 2)]
            for x, y in prs:
                F1(f"v_mov_b32 v{y}, v{x}")
            for x, y in prs:
                F1(f"v_permlane16_swap_b32 v{x}, v{y}")
            F1(f"""v_cndmask_b32 v{MEANF}, 0, v{MEANF}, s[8:9]
                 v_cndmask_b32 v{MEANG}, 0, v{MEANG}, s[8:9]""")
        else:
            F1(f"v_cndmask_b32 v{MEANF}, v{MEANF}, 0, {sHILANES}")

        def tread(t, s, n):
            sl = slot_of[t]
            base = (LB0, LB0, LB1, LB1, LB2)[sl]
            return [Inst(f"ds_read_b128 {v(WR+4*(n%NR),4)}, {base} offset:{(sl&1)*32768*(sl<4)+fo(s)}")]

        def corr(t):
            A = ACC[acc_of[t]]
            if c16:
                return [mf16(A + 8 * gu + 4 * th, v((CSF, CSG)[gu] + 4 * (t & 1), 4), v((MEANF, MEANG)[th], 4))
                        for gu, th in ((0, 0), (0, 1), (1, 1), (1, 0))]
            return [mf32(A, v(CSF + 4 * (t & 1), 4), v(MEANF, 4))]

        def cm(t, s, n):
            A, w = ACC[acc_of[t]], v(WR + 4 * (n % NR), 4)
            if not c16:
                return [mf32(A, w, a_(4 * s, 4), "0" if s == 0 else None)]
            gu = s & 1
            r = [mf16(A + 8 * gu + 4 * th, w, a_(8 * (s >> 1) + 4 * th, 4), "0" if s < 2 else None) for th in (gu, 1 - gu)]
            r[1].tag = "second"
            return r

        def spread(G):
            out = []
            for g in G:
                g = hoist(g)
                if len(g) > 1 and g[1].tag == "second":
                    m, rest, c, k = g[1], g[2:], 0, 0
                    m.tag = None
                    tot = sum(cost(x) for x in rest if not x.cond)
                    while k < len(rest) and c + cost(rest[k]) <= max(9.7, tot / 2 + 2.2) and not rest[k].cond \
                            and rest[k].kind not in ('branch', 'label') and not rest[k].op.startswith('v_cmp'):
                        c += cost(rest[k])
                        k += 1
                    g = [g[0]] + rest[:k] + [m] + rest[k:]
                out += g
            return out
        G = []
        for n in range(64):
            s, t = divmod(n, 2)
            g = cm(t, s, n)
            if n + LK < 64:
                g += tread((n + LK) % 2, (n + LK) // 2, n + LK)
            else:
                if n + LK == 64:
                    g += bar("WAITTAG T2\ns_barrier")
                g += tread(2, n + LK - 64, n + LK)
            if t == 0 and s + HL < 32:
                g += hload(s + HL)
            G.append(g)
        G.append(corr(0))
        G.append(corr(1))
        for n in range(LK):
            p.extend(tread(n % 2, n // 2, n))
        G = weave(G, list(F0), 1, o.get('f0', 20))
        G = weave(G, list(F1), o.get('f1', 40), 63)
        e0 = 2 * (32 - HL)
        ng = min(len(FQ), o.get('g1q', 8))
        G = weave(G, FQ[:ng], e0, 66)
        FQ = FQ[ng:]
        p.extend(spread(G))
        self.stamp("C_g1")

        def epi(t, tmp):
            A = ACC[acc_of[t]]
            S = Seq()
            for j in range(8):
                S(f"v_mul_f32 v{tmp+j}, v{A+j}, v{C1+2*c16*(j>>2)}")
            for j in range(8):
                S(f"v_exp_f32 v{tmp+j}, v{tmp+j}")
                S(f"v_mul_f32 v{A+j}, v{A+j}, v{A+8+j}")
            for j in range(8):
                S(f"v_fma_f32 v{tmp+j}, v{tmp+j}, v{C2+2*c16*(j>>2)}, v{C2+2*c16*(j>>2)}")
                if j >= 2:
                    S(f"v_rcp_f32 v{tmp+j-2}, v{tmp+j-2}")
            for j in range(8):
                S(f"v_mul_f32 v{A+j}, v{A+j}, v{tmp+j}")
                if j < 2:
                    S(f"v_rcp_f32 v{tmp+6+j}, v{tmp+6+j}")
            for j in (0, 2, 1, 3):
                S(f"v_cvt_pk_bf16_f32 v{tmp+8+j}, v{A+2*j}, v{A+2*j+1}")
            if c16:
                S(f"v_permlane16_swap_b32 v{tmp+8}, v{tmp+10}\nv_permlane16_swap_b32 v{tmp+9}, v{tmp+11}")
            S(f"buffer_store_dwordx4 {v(tmp+8,4)}, {L16}, {WS}, {cHS if t < 4 else cHS2} offen offset:{(t&3)*1024} sc1", tag=f"hh{t}")
            return list(S)

        def tilepass(t, n0):
            G = []
            for s in range(32):
                n = n0 + s
                g = cm(t, s, n)
                if s + LK < 32:
                    g += tread(t, s + LK, n + LK)
                elif t < 6:
                    if s + LK == 32:
                        g += bar(f"WAITTAG T{t+1}\ns_barrier")
                    g += tread(t + 1, s + LK - 32, n + LK)
                if s == 16:
                    g += bar(f"v_mov_b32 v{CSF+4*(t&1)}, v{CSR+t}")
                if s == 17 and c16:
                    g += bar(f"v_mov_b32 v{CSG+4*(t&1)}, v{CSU+t}")
                G.append(g)
            G.append(corr(t))
            return G

        d16 = o.get('d16', 1)

        def hhload(i):
            S = Seq()
            if d16:
                ad = HHB if i & 1 else HHA
                S(f"s_add_u32 {sCc}, {cHL}, {hho[i & ~1]}")
                S(f"buffer_load_dwordx4 {a_(8*(i&15),4)}, {ad}, {WS}, {sCc} offen sc1")
                return ctx([list(S), [Inst(f"buffer_load_dwordx4 {a_(8*(i&15)+4,4)}, {ad}, {WS}, {sCc} offen offset:256 sc1")]])
            S(f"s_add_u32 {sCc}, {cHL}, {hho[i]}")
            S(f"buffer_load_dwordx4 {a_(8*(i&15),4)}, {HHA}, {WS}, {sCc} offen sc1")
            return ctx([list(S), [Inst(f"buffer_load_dwordx4 {a_(8*(i&15)+4,4)}, {HHB}, {WS}, {sCc} offen sc1")]])

        EP = [epi(t, T + 12 * (t & 1)) for t in range(7)]
        P = {t: tilepass(t, 32 * t) for t in range(2, 7)}
        q = o.get('cq', 18)
        ee = o.get('ee', 20)
        LA = o.get('dla', 7)
        G = weave(P[2], FQ[:q], 0, 32)
        FQ = self.dmaT(5, 0) + FQ[q:]
        FQ = FQ[:q] + self.dmaT(6, 1) + FQ[q:] + dmaW2(0) + dmaW2(1) + dmaW2(2)
        G = weave(G, EP[0] + EP[1][:26], 2, 33)
        p.extend(self.xf(spread(G)))
        self.stamp("C_t2")
        q3 = min(q, len(FQ) - 24)
        G = weave(P[3], FQ[:q3], 0, 32)
        FQ = FQ[q3:]
        G = weave(G, EP[1][26:] + EP[2], 0, 33)
        p.extend(self.xf(spread(G)))
        self.stamp("C_t3")
        q4 = min(q, len(FQ) - 16)
        G = weave(P[4], FQ[:q4], 0, 32)
        FQ = FQ[q4:]
        G = weave(G, EP[3], 2, ee)
        G[o.get('p1at', 26)] += pub("hh2", 0)
        p.extend(self.xf(spread(G)))
        self.stamp("C_t4")
        q5 = min(q, len(FQ) - 8)
        G = weave(P[5], FQ[:q5], 0, 32)
        FQ = FQ[q5:]
        G[o.get('l1', 14)] += pollld(0)
        G[1] += bar(f"buffer_load_dwordx4 v[24:27], {L16}, {WS}, {cHR} offen sc1")
        G[3] += bar(f"buffer_load_dwordx4 v[28:31], {L16}, {WS}, {cHR} offen offset:1024 sc1")
        G = weave(G, EP[4], 2, ee)
        p.extend(self.xf(spread(G)))
        self.stamp("C_t5")
        G = P[6]
        c1 = o.get('c1', 1)
        n6 = min(o.get('n6', 0), len(FQ))
        if n6:
            G = weave(G, FQ[:n6], 0, max(c1, 1))
            FQ = FQ[n6:]
        G[c1] += pollchk(0)
        hq = [x for i in range(LA) for x in hhload(i)]
        G = weave(G, hq, c1 + 1, 33)
        S = Seq()
        if d16:
            for i in (24, 25, 28, 29):
                S(f"v_permlane16_swap_b32 v{i}, v{i+2}")
        for i in range(8):
            S(f"v_lshlrev_b32 v{48+2*i}, 16, v{24+i}\nv_and_b32 v{49+2*i}, {sMSKHI}, v{24+i}")
        for k in range(4):
            S(f"""s_xor_b32 {sT1}, {sW}, {k}
                 s_mul_i32 {sT1}, {sT1}, 12288
                 v_add_u32 v{36+k}, {sT1}, {L16}""")
        G = weave(G, list(S), ee + 1, 33)
        G = weave(G, EP[5], 2, ee)
        G[o.get('p2at', 12)] += pub("hh4", 1)
        p.extend(self.xf(spread(G)))
        self.stamp("C_t6")

        DA = [48, 64, 96, 112]

        def w2r(i, a):
            return (128, 168, 128)[(i - 16) // 4] + 8 * (i % 4) + 4 * a

        def w2read(i):
            part, k = divmod(i - 16, 4)
            r = bar(f"WAITTAG W2L{part}") if k == 0 else []
            for a in range(2):
                ad = ((WLA, WLB), (WLA, WLB), (WLC, WLD))[part][k & 1 if d16 else a]
                r.append(Inst(f"ds_read_b128 {v(w2r(i, a), 4)}, {ad} offset:{(part&1)*32768 + ((k&2)*2048 + a*256 if d16 else k*2048)}"))
            return r

        def w2f(i, a):
            return a_(128 + 8 * i + 4 * a, 4) if i < 16 else v(w2r(i, a), 4)

        def dm(i, k):
            a, b = k & 1, k >> 1
            if d16:
                j, ch = i & ~1, i & 1
                r = [mf16(DA[k] + 8 * ch + 4 * th, w2f(j + a, ch), a_(8 * ((j + b) & 15) + 4 * th, 4), "0" if j == 0 and k else None)
                     for th in (ch, 1 - ch)]
                r[1].tag = "second"
                return r
            return [mf32(DA[k], w2f(i, a), a_(8 * (i & 15) + 4 * b, 4), "0" if i == 0 and k else None)]
        nl = o.get('nl', 4)
        if d16:
            assert nl % 2 == 0
            G = [dm(j + ch, k) for j in range(0, 28 - nl, 2) for k in (0, 1, 3, 2) for ch in range(2)]
        else:
            G = [dm(i, k) for i in range(28 - nl) for k in (1, 3, 2, 0)]
        G += [dm(i, k) for k in (1, 3, 2, 0) for i in range(28 - nl, 28)]
        for i in range(16, 28):
            G[min(4 * i - 7 - 2 * d16 * (i & 1), 4 * (28 - nl) - 8 + (i - (28 - nl)))] += w2read(i)
        c2, c3, c4 = o.get('c2', 22), o.get('c3', 54), o.get('c4', 76)
        l2, l3, l4 = o.get('l2', 6), o.get('l3', 37), o.get('l4', 62)
        G[l2] += pollld(1)
        G = weave(G, EP[6], 1, o.get('e6', 11))
        G[o.get('p3at', 12)] += pub("hh5", 2)
        G[l3] += pollld(2)
        G[o.get('p4at', 38)] += pub("hh6", 3)
        G[o.get('dbar', 40)] += bar("s_barrier")
        hs = lambda a, b: [x for i in range(a, b) for x in hhload(i)]
        G = weave(G, hs(LA, 12), 0, c2)
        G[c2] += pollchk(1)
        nf = max(0, len(FQ) - o.get('nf', 8))
        G = weave(G, hs(12, 16) + FQ[:nf] + hs(16, 20), c2 + 1, c3)
        G[c3] += pollchk(2)
        G = weave(G, hs(20, 24), c3 + 1, l4)
        G[l4] += pollld(3)
        G = weave(G, FQ[nf:], l4 + 1, c4)
        G[c4] += pollchk(3)
        G = weave(G, hs(24, 28), c4 + 1, c4 + o.get('h4', 9))
        WRT = [[Inst(f"ds_write_b128 v{36+k}, {v(DA[k]+4*q_,4)} offset:{(k-1)*4096+q_*1024}") for q_ in range(4)] for k in (1, 3, 2)]
        if nl >= 2:
            for n in range(3):
                G = weave(G, WRT[n], 112 - (3 - n) * nl + 1, 112 - (2 - n) * nl + (1 if n < 2 else 0))
        else:
            G[111] += flat(WRT)
        for k in sorted(set(list(range(8, 112, 8)) + [c2 - 1, c2, c3 - 1, c3, c4 - 1, c4])):
            G[k] += sub(lambda: self.stamp(f"d{k}"))
        p.extend(self.xf(spread(G)))
        self.stamp("D_loop")
        p("WAITALL lgkm\ns_barrier")
        for q_ in range(4):
            for k in range(3):
                p(f"ds_read_b128 {v(160+16*k+4*q_,4)}, v36 offset:{k*4096+q_*1024}")
        for q_ in range(4):
            for j in range(2):
                r = 4 * q_ + 2 * j
                p(f"v_pk_add_f32 {v(48+r,2)}, {v(48+r,2)}, {v(160+r,2)}")
                p(f"v_pk_add_f32 {v(176+r,2)}, {v(176+r,2)}, {v(192+r,2)}")
            for j in range(2):
                r = 4 * q_ + 2 * j
                p(f"v_pk_add_f32 {v(48+r,2)}, {v(48+r,2)}, {v(176+r,2)}")
            for j in range(2):
                p(f"v_cvt_pk_bf16_f32 v{112+2*q_+j}, v{48+4*q_+2*j}, v{48+4*q_+2*j+1}")
            if q_ & 1 and d16:
                p(f"v_permlane16_swap_b32 v{110+2*q_}, v{112+2*q_}\nv_permlane16_swap_b32 v{111+2*q_}, v{113+2*q_}")
            if q_ & 1:
                p(f"buffer_store_dwordx4 {v(112+4*(q_>>1),4)}, {ROWA}, {OUT}, {cOUT} offen offset:{32*(q_>>1)}" + ["", " sc1", " nt", " sc0 sc1"][o.get('outst', 0)])
        self.stamp("D_end")

    def finish(self):
        p = self.p
        if self.o.get('stamps'):
            p("WAITALL vm")
            self.stamp("D_drained")
            p(f"""s_lshl_b32 {sT0}, s2, 2
                 s_add_u32 {sT0}, {sT0}, {sW}
                 s_lshl_b32 {sT0}, {sT0}, 7
                 s_add_u32 {sT0}, {sT0}, {hex(STAMP)}
                 s_mov_b32 exec_hi, 0
                 buffer_store_dword v{STV}, {L4}, {WS}, {sT0} offen""")
        if self.o.get('padto'):
            p("WAITALL vm")
            p("L_pad:\ns_memrealtime s[72:73]\ns_waitcnt lgkmcnt(0)\ns_sub_u32 s72, s72, s100")
            p(f"s_cmp_lt_u32 s72, {self.o['padto']}\ns_cbranch_scc1 L_pad")
        p("L_end:\ns_endpgm")

    def build(self):
        if self.o.get('stamps') or self.o.get('padto'):
            self.p("s_memtime s[100:101]" if self.o.get('stamps') == 2 else "s_memrealtime s[100:101]")
        self.setup()
        if self.o.get('stamps'):
            self.p(f"v_mov_b32 v{STV}, s100")
            self.nstamp = 1
            self.stamp_names.append("start")
        self.p.extend(self.xf(self.sub(self.phaseA), 'xa'))
        self.p.extend(self.xf(self.sub(self.phaseB), 'xb'))
        self.phaseCD()
        self.finish()
        sk = str(self.o.get('skel', ''))
        if sk:
            Q = Seq()
            for i in self.p:
                if 'm' in sk and i.kind == 'mfma':
                    r = sorted(i.srcab)
                    for x in (r[0], r[-1]):
                        Q(f"v_accvgpr_read_b32 v40, {x}" if x[0] == 'a' else f"v_mov_b32 v40, {x}")
                    continue
                if 'e' in sk and i.kind in ('valu', 'trans') and not i.cond and i.op.endswith(('f32', 'f32_e64')):
                    continue
                if 'v' in sk and i.kind in ('vload', 'dma') and not i.cond and 'dwordx4' in i.op:
                    continue
                if 's' in sk and i.kind == 'vstore' and not i.cond and (i.wide or 'f32' in i.op) and 'v[176:179]' not in i.text:
                    continue
                Q.append(i)
            self.p = Q
        ns = str(self.o.get('nosc', ''))
        for i in self.p:
            if i.kind in ('vload', 'dma') and 'dwordx' in i.op and not i.cond:
                for ch, regs in (('k', (sKVL, bK2, sZL)), ('q', (sPQL, bQ2)), ('h', (cHB,)), ('t', (sT0, sKC)), ('d', (sCc,))):
                    if ch in ns and any(f"{WS}, {r} " in i.text for r in regs):
                        i.text = i.text.replace(" sc1", "")
        import dsl
        dsl.MERGE = self.o.get('mg', 1)
        return finalize(self.p, self.o.get('fill', 1))


def emit(opt):
    g = Gen(opt)
    prog = g.build()
    hdr = open(os.path.join(os.path.dirname(os.path.abspath(__file__)), "header.txt")).read()
    body = "\n".join(("" if i.kind == 'label' else "    ") + i.text for i in prog)
    txt = hdr + f"""; @launch grid=(256,1,1) block=(256,1,1) lds=163840
.amdgcn_target "amdgcn-amd-amdhsa--gfx950"
.set CODE_PF_MAX, {opt.get('code_bytes', 0)}
.text
.globl {NAME}_kernel
.p2align 8
.type {NAME}_kernel,@function
{NAME}_kernel:
{body}
.section .rodata,"a"
.p2align 6
.amdhsa_kernel {NAME}_kernel
  .amdhsa_next_free_vgpr 512
  .amdhsa_next_free_sgpr 102
  .amdhsa_accum_offset 256
  .amdhsa_group_segment_fixed_size 0
  .amdhsa_kernarg_size 80
  .amdhsa_user_sgpr_count 2
  .amdhsa_user_sgpr_kernarg_segment_ptr 1
  .amdhsa_system_sgpr_workgroup_id_x 1
.end_amdhsa_kernel
"""
    return txt, g.stamp_names


def code_size(txt):
    import subprocess, tempfile
    with tempfile.TemporaryDirectory() as d:
        open(d + "/k.s", "w").write(txt)
        r = subprocess.run(["clang", "-x", "assembler", "-target", "amdgcn-amd-amdhsa",
                            "-mcpu=gfx950", "-c", d + "/k.s", "-o", d + "/k.o"], capture_output=True, text=True)
        if r.returncode:
            print("\n".join(r.stderr.split("\n")[:30]))
            raise SystemExit(1)
        r = subprocess.run(["llvm-objdump", "-h", d + "/k.o"], capture_output=True, text=True)
        for line in r.stdout.split("\n"):
            f = line.split()
            if len(f) > 2 and f[1] == ".text":
                return int(f[2], 16)


def main():
    opt = {}
    out = None
    for a in sys.argv[1:]:
        if '=' in a:
            k, val = a.split('=')
            try:
                opt[k] = int(val, 0)
            except ValueError:
                opt[k] = val
        else:
            out = a
    opt['code_bytes'] = 4096
    txt, names = emit(opt)
    sz = code_size(txt)
    opt['code_bytes'] = (sz - 1024) & ~3
    txt, names = emit(opt)
    open(out, "w").write(txt)
    if names:
        open(out + ".names", "w").write(" ".join(names))
    print(out, "code bytes", sz, "lines", txt.count("\n"), "stamps", len(names))


if __name__ == "__main__":
    main()
```

```python
import sys, os
sys.path.insert(0, os.path.dirname(os.path.abspath(__file__)))
from dsl import *

NAME = "sequential_preLN__linear_attn_block__glu_gated_swiglu__prompt"

CNT = 0x20000
KVM = 0x10000
ST = 0x18000
CS = 0x1C000
ZP = 0x1F800
STAMP = 0xC0000
PQ = 0x400000
HB = 0x800000
HH = 0x1000000
W13R = 0x2000000
W2R = 0x2800000
PROBE = 0x100000
WS_SIZE = 0x2C00000
OOB = 0x7f000000

X, WQKV, WO, W1, W3, W2, OUT, WS, DBG = [f"s[{a}:{a+3}]" for a in range(4, 40, 4)]
(sW, sG, sM, sC0, sT0, sT1, sT2, sT3, sXB, sWB, sXL, sWL, sTB, sCB, sRQ, sLOG2E,
 sU, sKC, sT4, sT5, sMSKHI, sEPS6) = [f"s{i}" for i in range(40, 62)]
sHILANES = "s[62:63]"
sB4LANES = "s[64:65]"
sA, sB, sCc, sD = "s66", "s67", "s68", "s69"
sKVA, sZA, sPQS, sRW, sR2, sRC, sKVL, sZL, sPQL, sSIG, sHST, sSTA = [f"s{i}" for i in range(84, 96)]
sMA, sTA, sHS = "s3", "s74", "s83"
sP1, sPE, sP2, sTBL = "s96", "s97", "s98", "s99"
STV = 0

VB, KB, XCH, RST, KVS, ZS = 0x10000, 0x18000, 0x20000, 0x22000, 0, 0x21000

L16, L4 = "v2", "v3"
TRK, TRP = 152, 156
XCW, XCR, KVW, ZW, STW, KVR, ZR, ZAT, STR = [f"v{i}" for i in range(212, 221)]
WOD, WOT, OAD = 221, 225, 229
ROWA, ZBW, ZBR, P256 = "v233", "v234", "v235", "v236"
RL1, RL3, RL2, RT13, RT2A, RT2B, CSAT, P4K, FA1, LM8, PA2 = [f"v{i}" for i in range(237, 248)]
RCS = 248


def v(a, n=1):
    return f"v{a}" if n == 1 else f"v[{a}:{a+n-1}]"


def a_(a, n=1):
    return f"a{a}" if n == 1 else f"a[{a}:{a+n-1}]"


def mf32(d, A, B, c=None):
    return Inst(f"v_mfma_f32_32x32x16_bf16 {v(d,16)}, {A}, {B}, {v(d,16) if c is None else c}")


def mf16(d, A, B, c=None):
    return Inst(f"v_mfma_f32_16x16x32_bf16 {v(d,4)}, {A}, {B}, {v(d,4) if c is None else c}")


def mf4(d, A, B, c=None):
    return Inst(f"v_mfma_f32_4x4x4_16b_bf16 {v(d,4)}, {A}, {B}, {v(d,4) if c is None else c}")


def trpair(dst, addr, off, step):
    k, b = dst
    return [Inst(f"ds_read_b64_tr_b16 {k}[{b}:{b+1}], {addr} offset:{off}"),
            Inst(f"ds_read_b64_tr_b16 {k}[{b+2}:{b+3}], {addr} offset:{off+step}")]


def par13(t):
    return (t >> 1) & 1


def par2(pr, t):
    return (pr >> 1) if t < 3 else (t & 1) ^ 1


def split2(dst, src, t):
    return Seq()(f"""v_cvt_pk_bf16_f32 v{t}, v{src}, v{src}
         v_lshlrev_b32 v{t}, 16, v{t}
         v_sub_f32 v{t}, v{src}, v{t}
         v_cvt_pk_bf16_f32 v{dst}, v{src}, v{t}""")


cHB, cST, cHS, cHR, cCS, cW2, cHL, cOUT, cHS2 = [f"s{i}" for i in range(75, 84)]
cPP, cPQ, cPS, cPL, bTA, bTL, bK2, bQ2, bGP, bRP, bTX, cW2x, sGC, sMC = [f"s{i}" for i in (4, 5, 6, 7, 16, 17, 18, 19, 20, 21, 22, 23, 24, 25)]
W2A, W2B, LB1, LB2, WLA, WLB, WLC, WLD = [f"v{i}" for i in range(6, 14)]
CSL, HHA, HHB, HPA, LB0 = "v14", "v15", "v42", "v43", "v212"


class Gen:
    def __init__(self, opt):
        self.o = opt
        self.p = Seq()
        self.nl = 0
        self.nstamp = 0
        self.stamp_names = []

    def lab(self, s):
        self.nl += 1
        return f"L_{s}_{self.nl}"

    def stamp(self, name):
        if self.o.get('padat') == name:
            self.p("WAITALL lgkm\ns_memrealtime s[100:101]\nWAITALL lgkm")
        if self.o.get('seg0') == name:
            self.p("WAITALL lgkm\ns_memrealtime s[72:73]\nWAITALL lgkm\ns_mov_b32 s101, s72")
        if self.o.get('seg1') == name:
            self.p("WAITALL lgkm\ns_memrealtime s[72:73]\nWAITALL lgkm\ns_sub_u32 s101, s72, s101\ns_lshl_b32 s101, s101, 4\ns_add_u32 s100, s100, s101")
        if self.o.get('stamps', 3) == 3:
            return
        fine = str(self.o.get('fine', ''))
        if name[0].islower() and name[0] not in fine:
            return
        if fine and name[0].isupper() and name[0].lower() not in fine and name not in ('C_t6', 'B_sync1', 'C_sync2', 'D_drained', 'A_loop', 'A_v', 'A_q'):
            return
        p = self.p
        if self.o.get('nb'):
            if self.nstamp > 1:
                p(f"v_writelane_b32 v{STV}, s72, {self.nstamp-1}", cond=True)
            p("s_memrealtime s[72:73]" if self.o['stamps'] == 1 else "s_memtime s[72:73]", cond=True)
            if name == 'D_drained':
                p(f"s_waitcnt lgkmcnt(0)\nv_writelane_b32 v{STV}, s72, {self.nstamp}", cond=True)
            self.nstamp += 1
            self.stamp_names.append(name)
            return
        p("WAITALL lgkm")
        p("s_memrealtime s[72:73]" if self.o['stamps'] == 1 else "s_memtime s[72:73]")
        p("WAITALL lgkm")
        p(f"v_writelane_b32 v{STV}, s72, {self.nstamp}")
        self.nstamp += 1
        self.stamp_names.append(name)

    def sub(self, fn):
        save = self.p
        self.p = Seq()
        fn()
        r = list(self.p)
        self.p = save
        return r

    def xf(self, L, key='x'):
        x = self.o.get(key, '')
        out = []
        for i in L:
            if 'v' in x and i.kind in ('vload', 'dma') and not i.cond and 'dwordx4' in i.op:
                continue
            if 'e' in x and i.kind in ('valu', 'trans') and not i.cond and i.op.endswith(('f32', 'f32_e64')):
                continue
            if 'l' in x and i.kind == 'dsr':
                continue
            if 's' in x and i.kind == 'vstore' and 'store' in i.op and not i.cond:
                continue
            if 'b' in x and i.op == 's_barrier':
                continue
            if 'm' in x and i.kind == 'mfma' and i.passes < 8:
                continue
            out.append(i)
        return out

    def ool(self, branch, text):
        p = self.p
        L, R = self.lab("o"), self.lab("r")
        p(f"{branch} {L}")
        n = len(p)
        p(f"{L}:\n{text}\ns_branch {R}", cond=True)
        for i in p[n:]:
            i.ool = L
        p(f"{R}:")

    def spin(self, vt, vaddr, soff, mask, target, srd=WS, mode='wave0', sleep=0, field=None, wave=0):
        p = self.p
        Lp = self.lab("pl")
        addr = f"{vaddr}, {srd}, {soff} offen" if vaddr else f"off, {srd}, {soff}"
        ext = f"v_and_b32 v43, {field}, {vt}\n" if field is not None else ""
        vc = "v43" if field is not None else vt
        loop = f"""s_mov_b32 {sT5}, 0
             s_mov_b64 exec, {mask}
             {Lp}:
             {f's_sleep {sleep}' if sleep else ''}
             buffer_load_dword {vt}, {addr} sc1
             s_add_u32 {sT5}, {sT5}, 1
             s_waitcnt vmcnt(0)
             {ext}v_cmp_gt_u32 vcc, {target}, {vc}
             s_cmp_ge_u32 {sT5}, 0x8000
             s_cselect_b64 vcc, 0, vcc
             s_and_b64 exec, exec, vcc
             s_cbranch_scc1 {Lp}
             s_mov_b64 exec, -1"""
        if self.o.get('stamps') == 3:
            p(f"s_mov_b32 {sT5}, 0")
        if mode == 'check':
            p(f"{ext}v_cmp_gt_u32 vcc, {target}, {vc}\ns_and_b64 vcc, vcc, {mask}")
            self.ool("s_cbranch_scc1", loop)
        elif mode == 'wave0':
            Ld = self.lab("pd")
            p(f"s_cmp_lg_u32 {sW}, {wave}\ns_cbranch_scc1 {Ld}")
            p(loop, cond=True)
            p(f"{Ld}:")
        else:
            p(loop, cond=True)
            p("s_waitcnt vmcnt(0)")
        if self.o.get('stamps') == 3:
            p(f"v_writelane_b32 v{STV}, {sT5}, {self.nstamp}")
            self.nstamp += 1
            self.stamp_names.append(f"spin{self.nstamp}")

    def setup(self):
        p = self.p
        p(f"""s_cmp_ge_u32 s2, 256
             s_cbranch_scc1 L_end
             s_load_dwordx16 s[76:91], s[0:1], 0
             s_load_dwordx4 s[92:95], s[0:1], 64""")
        p("v_and_b32 v1, 63, v0\nv_lshrrev_b32 v4, 6, v0")
        p(f"v_readfirstlane_b32 {sW}, v4")
        p(f"""s_mov_b32 s6, 0x200000
             s_mov_b32 s7, 0x20000
             s_mov_b32 s10, 0x180000
             s_mov_b32 s11, 0x20000
             s_lshr_b32 {sU}, s2, 3
             s_and_b32 {sKC}, s2, 7
             s_and_b32 {sRQ}, {sU}, 3
             s_and_b32 {sG}, s2, 6
             s_lshl_b32 {sG}, {sG}, 1
             s_add_u32 {sG}, {sG}, {sRQ}
             s_lshr_b32 {sT1}, s2, 5
             s_and_b32 {sT2}, s2, 1
             s_lshl_b32 {sTA}, {sG}, 1
             s_add_u32 {sTA}, {sTA}, {sT2}
             s_lshl_b32 {sXL}, {sW}, 14
             s_lshl_b32 {sXB}, {sTA}, 16
             s_add_u32 {sXB}, {sXB}, {sXL}
             s_xor_b32 {sMA}, {sT1}, 4
             s_mul_i32 {sWB}, {sW}, {16*3072}
             s_lshl_b32 {sT0}, {sMA}, 7
             s_add_u32 {sWB}, {sWB}, {sT0}
             s_lshl_b32 {sWL}, {sW}, 11
             s_add_u32 {sC0}, {sT1}, {sKC}""")
        rot = self.o.get('rot', 6)
        if rot == 7:
            p(f"s_lshl_b32 {sT0}, {sU}, 2\ns_add_u32 {sC0}, {sC0}, {sT0}")
        if rot == 8:
            p(f"s_lshl_b32 {sT0}, {sRQ}, 1\ns_add_u32 {sC0}, {sC0}, {sT0}")
        if rot == 0:
            p(f"s_mov_b32 {sC0}, 0")
        if rot == 1:
            p(f"s_mov_b32 {sC0}, {sKC}")
        if rot == 9:
            p(f"s_lshl_b32 {sC0}, {sT1}, 1\ns_add_u32 {sC0}, {sC0}, {sKC}")
        p(f"""v_lshrrev_b32 v4, 3, v1
             v_and_b32 v5, 7, v1
             v_lshrrev_b32 v3, 4, v1
             v_xor_b32 v6, v5, v3
             v_lshlrev_b32 v6, 4, v6
             v_lshl_add_u32 v6, v4, 10, v6
             v_xor_b32 v7, 64, v6
             v_add_u32 v7, 7168, v7
             v_and_b32 v3, 1, v3
             v_lshlrev_b32 v3, 2, v3
             v_xor_b32 v5, v5, v3
             v_lshlrev_b32 v5, 4, v5
             v_mul_u32_u24 v8, 3072, v4
             v_add_u32 v8, v8, v5
             v_add_u32 v9, {8*3072-1024}, v8""")
        p("WAITALL lgkm")
        p("s_mov_b64 s[4:5], s[76:77]\ns_mov_b64 s[8:9], s[78:79]")

    def dmaW(self, t, c):
        base, po = ((KB, 1024), (VB, 2048), (0, 0))[t]
        tag = f"{'AVQ'[t]}{c}"
        S = Seq()
        S(f"s_add_u32 m0, {sWL}, {base + c*8192 - po}")
        S(f"buffer_load_dwordx4 v8, {WQKV}, s{75+c} offen offset:{po} lds", tag=tag)
        return ctx([list(S), [Inst(f"buffer_load_dwordx4 v9, {WQKV}, s{75+c} offen offset:{po+1024} lds", tag=tag)]])

    def dmaA(self, c):
        wc = f"s{75+c}"
        g = self.dmaW(0, c)
        g[0] = list(Seq()(f"""s_add_u32 {sT0}, {sC0}, {c}
             s_and_b32 {sT0}, {sT0}, 7
             s_mul_i32 {wc}, {sT0}, {64*3072}
             s_add_u32 {wc}, {wc}, {sWB}
             s_lshl_b32 {sT0}, {sT0}, 7""")) + g[0]
        nt = " nt" if self.o.get('xnt', 0) else ""
        S = Seq()
        S(f"s_add_u32 m0, {sWL}, {c*8192}\ns_add_u32 {sT0}, {sT0}, {sXB}")
        S(f"buffer_load_dwordx4 v6, {X}, {sT0} offen{nt} lds", tag=f"A{c}")
        g += [list(S), [Inst(f"buffer_load_dwordx4 v7, {X}, {sT0} offen offset:1024{nt} lds", tag=f"A{c}")]]
        return ctx(g)

    def dmaWO(self, q):
        S = Seq()
        S(f"""s_add_u32 {sT0}, {sA}, {q*65536}
             s_add_u32 m0, {sB}, {q*16384}
             s_and_b32 {sT0}, {sT0}, 0x7ffff""")
        g = []
        for k in range(4):
            S(f"buffer_load_dwordx4 v{WOD+k}, {WO}, {sT0} offen offset:{k*1024} lds", tag=f"WO{q>>2}")
            g.append(list(S))
            S = Seq()
        return ctx(g)

    def rload(self):
        nt = " nt" if self.o.get('rnt', 1) else ""
        g = []
        for k, (ad, srd, s0, s1) in enumerate(((RL1, W1, sKVL, sZL), (RL3, W3, sKVL, sZL), (RL2, W2, sPQL, sHST))):
            g.append(list(Seq()(f"s_add_u32 m0, {sSTA}, {k*2048}\nbuffer_load_dwordx4 {ad}, {srd}, {s0} offen{nt} lds")))
            g.append(list(Seq()(f"buffer_load_dwordx4 {ad}, {srd}, {s1} offen offset:1024{nt} lds", tag=f"RL{k}")))
            ctx(g[-2:])
        return g[4:] + g[:4]

    def miscA(self):
        M = Seq()
        a, b, c, d = "v208", "v209", "v210", "v211"
        M(f"""v_lshl_add_u32 {RL2}, v4, 10, v5
             v_mul_u32_u24 v4, 3584, v4
             v_add_u32 {RL1}, v4, v5
             v_xor_b32 {RL3}, 32, {RL1}
             v_mov_b32 v4, 1
             v_lshlrev_b32 {L4}, 2, v1
             s_mov_b32 {sLOG2E}, 0x3fb8aa3b
             s_mov_b32 {sMSKHI}, 0xffff0000
             s_mov_b32 {sEPS6}, 0x358637bd
             s_mov_b32 s62, 0
             s_mov_b32 s63, -1
             s_mov_b32 s64, 0xffff0000
             s_mov_b32 s65, 0xffff0000
             s_mov_b32 s96, 0x22222222
             s_mov_b32 s97, 0x22222222
             s_mov_b32 s98, 0x44444444
             s_mov_b32 s99, 0x44444444
             s_mov_b32 s70, 0x88888888
             s_mov_b32 s71, 0x88888888
             s_and_b32 {sM}, s2, 1
             s_lshl_b32 {sM}, {sM}, 3
             s_lshr_b32 {sT1}, s2, 5
             s_add_u32 {sM}, {sM}, {sT1}
             s_and_b32 {sCB}, {sM}, 3
             s_and_b32 {sT1}, {sW}, 1
             s_lshr_b32 {sT2}, {sW}, 1
             s_lshl_b32 {sMA}, {sMA}, 1
             s_add_u32 {sMA}, {sMA}, {sT2}
             s_lshl_b32 {sTA}, {sTA}, 1
             s_add_u32 {sTA}, {sTA}, {sT1}""")
        M(f"""v_and_b32 {a}, 31, v1
             v_lshrrev_b32 {b}, 5, v1
             v_bfe_u32 {c}, v1, 1, 3
             v_xor_b32 {c}, {b}, {c}
             v_lshlrev_b32 {c}, 4, {c}
             v_lshl_add_u32 {c}, {a}, 7, {c}
             s_lshl_b32 {sT3}, {sT1}, 12
             s_lshl_b32 {sT4}, {sW}, 5
             s_add_u32 {sT3}, {sT3}, {sT4}
             v_xor_b32 v10, {sT3}, {c}
             v_xor_b32 v11, 32, v10
             v_xor_b32 v12, 64, v10
             v_xor_b32 v13, 96, v10
             s_lshl_b32 {sT3}, {sCB}, 1
             s_add_u32 {sT3}, {sT3}, {sT2}
             s_sub_u32 {sT3}, {sT3}, {sC0}
             s_and_b32 {sT3}, {sT3}, 7
             s_lshl_b32 {sT3}, {sT3}, 1
             s_lshr_b32 {sT4}, s2, 7
             s_add_u32 {sT3}, {sT3}, {sT4}
             s_lshl_b32 {sT3}, {sT3}, 6
             s_add_u32 {sT3}, {sT3}, {sT1}
             s_lshl_b32 {sT3}, {sT3}, 6
             v_xor_b32 v14, {sT3}, {c}
             v_xor_b32 v15, 32, v14""")
        M(f"""s_lshl_b32 {sT3}, {sT2}, 8
             s_add_u32 {sT3}, {sT3}, {hex(XCH)}
             v_lshl_add_u32 {XCR}, {a}, 3, {sT3}
             s_lshl_b32 {sT3}, {sT1}, 2
             v_add_u32 {XCW}, {sT3}, {XCR}
             s_lshl_b32 {sT3}, {sW}, 9
             s_add_u32 {sT3}, {sT3}, {hex(XCH+2048)}
             v_lshl_add_u32 {STW}, v1, 3, {sT3}
             v_xor_b32 {STR}, 1024, {STW}
             v_lshlrev_b32 {KVW}, 4, {a}
             v_lshl_add_u32 {KVW}, {b}, 10, {KVW}
             s_add_u32 {sT3}, {sWL}, {hex(KVS)}
             v_add_u32 {KVW}, {sT3}, {KVW}
             s_lshl_b32 {sT3}, {sW}, 7
             s_add_u32 {sT3}, {sT3}, {hex(ZS)}
             v_lshl_add_u32 {ZW}, {a}, 2, {sT3}
             s_lshl_b32 {sT3}, {sT2}, 2
             s_add_u32 {sT3}, {sT3}, {sT1}
             s_lshl_b32 {sT4}, {sT3}, 10
             s_add_u32 {sT4}, {sT4}, {hex(KVS)}
             v_add_u32 {KVR}, {sT4}, {L4}
             s_lshl_b32 {sT4}, {sT3}, 6
             s_add_u32 {sT4}, {sT4}, {hex(ZS)}
             v_and_b32 {d}, 15, v1
             v_lshl_add_u32 {ZR}, {d}, 2, {sT4}
             v_lshrrev_b32 {d}, 4, v1
             v_lshl_add_u32 {ZAT}, {d}, 27, {L4}
             v_lshl_add_u32 {CSAT}, {b}, 27, {L4}
             v_lshrrev_b32 {LM8}, 3, v1
             v_lshlrev_b32 {LM8}, 27, {LM8}
             v_min_u32 {FA1}, 1, v1
             v_lshlrev_b32 {FA1}, 27, {FA1}
             s_lshl_b32 {sT3}, {sMA}, 1
             s_add_u32 {sT3}, {sT3}, {sT1}
             s_lshl_b32 {sKVA}, {sT3}, 10
             s_add_u32 {sKVA}, {sKVA}, {hex(KVM)}
             s_lshl_b32 {sZA}, {sT3}, 6
             s_add_u32 {sZA}, {sZA}, {hex(ZP)}
             s_lshl_b32 {sPQS}, {sTA}, 2
             s_lshr_b32 {sT3}, {sMA}, 2
             s_add_u32 {sPQS}, {sPQS}, {sT3}
             s_lshl_b32 {sPQS}, {sPQS}, 3
             s_and_b32 {sT3}, {sMA}, 3
             s_add_u32 {sPQS}, {sPQS}, {sT3}
             s_lshl_b32 {sPQS}, {sPQS}, 11
             s_add_u32 {sPQS}, {sPQS}, {hex(PQ)}
             s_lshl_b32 {sHS}, {sG}, 2
             s_add_u32 {sHS}, {sHS}, {sW}
             s_lshl_b32 {sHS}, {sHS}, 4
             s_add_u32 {sHS}, {sHS}, {sM}
             s_lshl_b32 {sHS}, {sHS}, 14
             s_add_u32 {sHS}, {sHS}, {hex(HH+4096)}""")
        M(f"""v_bfe_u32 {c}, v1, 2, 2
             v_lshlrev_b32 {a}, 10, {b}
             v_lshl_add_u32 {a}, {c}, 7, {a}
             v_bfe_u32 {c}, v1, 4, 1
             v_bfe_u32 {d}, v1, 3, 1
             v_lshl_add_u32 {d}, {d}, 1, {c}
             v_lshl_add_u32 {a}, {d}, 5, {a}
             v_and_b32 {d}, 1, v1
             v_lshl_add_u32 {RT2A}, {d}, 4, {a}
             v_bfe_u32 {d}, v1, 1, 1
             v_lshl_add_u32 {RT2A}, {d}, 3, {RT2A}
             v_and_b32 {d}, 3, v1
             v_lshl_add_u32 {a}, {d}, 3, {a}
             s_lshl_b32 {sT3}, {sT2}, 6
             s_add_u32 {sT3}, {sT3}, {sWL}
             s_add_u32 {sT4}, {sT3}, {hex(KB)}
             v_xor_b32 v{TRK}, {sT4}, {a}
             s_add_u32 {sT4}, {sT3}, {hex(VB)}
             v_xor_b32 v{TRP}, {sT4}, {RT2A}""")
        for j in range(1, 4):
            M(f"v_xor_b32 v{TRK+j}, {j*2048}, v{TRK}\nv_xor_b32 v{TRP+j}, {j*2048}, v{TRP}")
        M(f"""s_lshl_b32 {sT3}, {sW}, 5
             s_add_u32 {sT3}, {sT3}, {hex(RST)}
             v_xor_b32 {RT13}, {sT3}, {a if self.o.get('c16', 1) else RT2A}
             v_lshl_add_u32 {RT13}, {c}, 11, {RT13}
             s_mul_i32 {sSTA}, {sW}, 6144
             s_add_u32 {sSTA}, {sSTA}, {hex(RST)}
             v_add_u32 {RT2A}, {sSTA}, {a if self.o.get('d16', 1) else RT2A}
             v_xor_b32 {RT2B}, 64, {RT2A}""")
        M(f"""v_lshrrev_b32 {a}, 2, v1
             v_xor_b32 {a}, {a}, {c}
             v_and_b32 {a}, 1, {a}
             v_or_b32 {a}, {a}, {d}
             v_cmp_eq_u32 vcc, 0, {a}
             v_mov_b32 v20, 0x3f803f80
             v_mov_b32 v21, 0x3f803f80
             v_mov_b32 v22, 0x3f803f80
             v_mov_b32 v23, 0x3f803f80
             v_cndmask_b32 v16, 0, v20, vcc
             v_cndmask_b32 v17, 0, v20, vcc
             v_cndmask_b32 v18, 0, v20, vcc
             v_cndmask_b32 v19, 0, v20, vcc""")
        for r in (162, 163, 166, 167, 170, 171, 174, 175, 177, 178, 179):
            M(f"v_mov_b32 v{r}, 0")
        M(f"""v_lshrrev_b32 {a}, 4, v1
             v_bfe_u32 {c}, v1, 2, 2
             v_xor_b32 {c}, {c}, {a}
             v_lshlrev_b32 {c}, 6, {c}
             v_lshl_add_u32 {c}, {a}, 10, {c}
             v_lshl_add_u32 v{WOD}, {d}, 4, {c}
             v_add_u32 v{WOD+1}, 3072, v{WOD}
             v_add_u32 v{WOD+2}, 6144, v{WOD}
             v_add_u32 v{WOD+3}, 9216, v{WOD}
             s_lshl_b32 {sA}, {sRQ}, 17
             s_add_u32 {sA}, {sA}, {sXL}
             s_lshl_b32 {sT3}, {sCB}, 8
             s_add_u32 {sA}, {sA}, {sT3}""")
        M(f"""s_lshl_b32 {sT3}, {sKC}, 2
             s_add_u32 {sT3}, {sT3}, {sW}
             s_mul_i32 {sKVL}, {sT3}, {16*3584}
             s_lshl_b32 {sT3}, {sU}, 7
             s_add_u32 {sKVL}, {sKVL}, {sT3}
             s_lshl_b32 {sT2}, {sU}, 2
             s_add_u32 {sT2}, {sT2}, {sW}
             s_lshl_b32 {sPQL}, {sT2}, 14
             s_lshl_b32 {sT3}, {sKC}, 7
             s_add_u32 {sPQL}, {sPQL}, {sT3}
             s_add_u32 {sHST}, {sPQL}, 7168
             s_lshl_b32 {sRC}, {sT2}, 7
             s_add_u32 {sRC}, {sRC}, {hex(CS)}
             s_mul_i32 {sT3}, {sT2}, 9363
             s_lshr_b32 {sT3}, {sT3}, 16
             s_add_u32 {sT2}, {sT2}, {sT3}
             s_and_b32 {sT3}, {sKC}, 6
             s_add_u32 {sT3}, {sT3}, {sKC}
             s_lshl_b32 {sRW}, {sT2}, 4
             s_add_u32 {sRW}, {sRW}, {sT3}
             s_lshl_b32 {sRW}, {sRW}, 12
             s_add_u32 {sRW}, {sRW}, {hex(W13R)}
             s_andn2_b32 {sT3}, {sT2}, 3
             s_add_u32 {sT3}, {sT3}, {sT2}
             s_lshl_b32 {sR2}, {sKC}, 8
             s_add_u32 {sR2}, {sR2}, {sT3}
             s_lshl_b32 {sR2}, {sR2}, 11
             s_add_u32 {sR2}, {sR2}, {hex(W2R)}""")
        if self.o.get('grp', 1):
            m13 = sum((par13(t) ^ m) << (8 * m + t) for m in range(2) for t in range(8))
            m2 = sum(par2(pr, t) << (8 * pr + t) for pr in range(4) for t in range(8))
            M(f"""s_and_b32 {sT3}, {sT2}, 15
                 s_lshr_b32 {sT3}, {hex(m13)}, {sT3}
                 s_lshr_b32 {sT4}, {hex(m2)}, {sT2}
                 s_xor_b32 {sT4}, {sT4}, {sKC}""")
        else:
            M(f"s_lshr_b32 {sT3}, {sKC}, 1\ns_lshr_b32 {sT4}, {sT2}, 5")
        M(f"""s_and_b32 {sT3}, {sT3}, 1
             s_lshl_b32 {sT3}, {sT3}, 13
             s_add_u32 {sRW}, {sRW}, {sT3}
             s_and_b32 {sT4}, {sT4}, 1
             s_lshl_b32 {sT4}, {sT4}, 13
             s_add_u32 {sR2}, {sR2}, {sT4}
             s_cmp_ge_u32 s2, 224
             s_cselect_b32 {sRW}, {hex(OOB)}, {sRW}
             s_cselect_b32 {sR2}, {hex(OOB)}, {sR2}
             s_cselect_b32 {sRC}, {hex(OOB)}, {sRC}
             s_cselect_b32 {sKVL}, {hex(OOB)}, {sKVL}
             s_add_u32 {sZL}, {sKVL}, {8*3584-1024}
             s_and_b32 {sSIG}, {sU}, 15
             s_lshl_b32 {sSIG}, {sSIG}, 8
             s_add_u32 {sSIG}, {sSIG}, {hex(CNT)}
             s_cmp_eq_u32 {sW}, 0
             s_cselect_b32 {sSIG}, {sSIG}, {hex(OOB)}""")
        return M

    def miscB(self):
        M = Seq()
        a, b, c, d = "v208", "v209", "v210", "v211"
        M(f"""s_lshr_b32 {sTB}, {sM}, 2
             s_lshl_b32 {sT3}, {sG}, 2
             s_add_u32 {sTB}, {sTB}, {sT3}
             s_lshl_b32 {sT4}, {sRQ}, 1
             s_add_u32 {sT4}, {sT4}, {sW}
             s_and_b32 {sT4}, {sT4}, 7
             s_lshl_b32 {sKVL}, {sT4}, 12
             s_add_u32 {sKVL}, {sKVL}, {hex(KVM)}
             s_xor_b32 {bK2}, {sKVL}, 0x4000
             s_lshl_b32 {sT2}, {sTB}, 16
             s_and_b32 {sPQL}, {sT4}, 6
             s_add_u32 {sPQL}, {sPQL}, {sT4}
             s_lshl_b32 {sPQL}, {sPQL}, 12
             s_add_u32 {sPQL}, {sPQL}, {sT2}
             s_add_u32 {sPQL}, {sPQL}, {hex(PQ)}
             s_xor_b32 {sPQL}, {sPQL}, {sP1}
             s_xor_b32 {bQ2}, {sPQL}, 0x8000
             s_lshl_b32 {sT4}, {sT4}, 8
             s_mov_b32 {sZL}, {hex(ZP)}
             s_lshl_b32 {sHST}, {sCB}, 14
             s_add_u32 {sHST}, {sHST}, {sT2}
             s_add_u32 {sHST}, {sHST}, {sWL}
             s_add_u32 {sHST}, {sHST}, {hex(HB)}
             s_xor_b32 {sHST}, {sHST}, {sPE}
             s_lshl_b32 {sSTA}, {sTB}, 4
             s_add_u32 {sSTA}, {sSTA}, {sCB}
             s_lshl_b32 {sSTA}, {sSTA}, 14
             s_add_u32 {sSTA}, {sSTA}, {hex(HH+7168+768)}
             s_xor_b32 {sSTA}, {sSTA}, {sP2}
             s_lshl_b32 {sD}, {sTB}, 2
             s_add_u32 {sD}, {sD}, {sCB}
             s_lshl_b32 {sD}, {sD}, 16
             s_add_u32 {sD}, {sD}, {sXL}
             s_add_u32 {sD}, {sD}, {hex(HH+7168)}
             s_xor_b32 {sD}, {sD}, {sP2}
             v_lshrrev_b32 {b}, 5, v1
             v_and_b32 {a}, 31, v1
             v_lshlrev_b32 {ROWA}, 10, {a}
             v_lshl_add_u32 {ROWA}, {b}, 4, {ROWA}
             v_lshlrev_b32 v41, 3, {a}
             v_lshl_add_u32 v41, {b}, 10, v41
             v_xor_b32 v41, {sT4}, v41
             v_bfe_u32 {c}, v1, 2, 2
             v_and_b32 {a}, 1, v1
             v_lshlrev_b32 {a}, 4, {a}
             v_bfe_u32 {d}, v1, 1, 1
             v_lshl_add_u32 {a}, {d}, 3, {a}
             v_lshl_add_u32 {d}, {b}, 11, {a}
             v_lshl_add_u32 {d}, {c}, 8, {d}
             v_xor_b32 {c}, {sW}, {c}
             v_lshl_add_u32 {d}, {c}, 6, {d}
             v_bfe_u32 {c}, v1, 4, 1
             v_lshl_add_u32 {d}, {c}, 5, {d}""")
        for q in range(4):
            M(f"""s_xor_b32 {sT2}, {sW}, {q}
                 s_lshl_b32 {sT3}, {sT2}, 14
                 v_add_u32 v{WOT+q}, {sT3}, {d}
                 s_lshl_b32 {sT2}, {sT2}, 12
                 s_add_u32 {sT2}, {sT2}, 0x20000
                 v_add_u32 v{OAD+q}, {sT2}, {L16}""")
        M(f"""s_lshl_b32 {sT2}, {sW}, 12
             s_add_u32 {sT2}, {sT2}, {0x20000+16384+3072}
             v_add_u32 {ZBW}, {sT2}, {L4}
             v_xor_b32 {d}, 1, {c}
             v_lshlrev_b32 {d}, 5, {d}
             v_lshl_add_u32 {d}, {b}, 4, {d}
             v_add_u32 {ZBR}, {sT2}, {d}
             v_lshrrev_b32 {d}, 4, v1
             v_lshlrev_b32 {P256}, 8, v1
             v_lshl_add_u32 {P256}, {d}, 27, {P256}
             s_lshl_b32 {bTL}, {sW}, 13
             s_lshr_b32 {sT2}, {sTBL}, {sKC}
             s_and_b32 {sT2}, {sT2}, 0x2000
             s_lshl_b32 {bGP}, {sKC}, 14
             s_add_u32 {bGP}, {bGP}, {sT2}
             s_add_u32 {bGP}, {bGP}, {hex(CNT)}
             s_add_u32 {bRP}, {bGP}, 4096""")
        for k in range(8):
            M(f"v_lshlrev_b32 v{192+2*k}, 16, v{24+k}\nv_and_b32 v{193+2*k}, {sMSKHI}, v{24+k}")
        return M

    def phaseA(self):
        p = self.p
        o = self.o
        pre = o.get('pre', 0)
        if pre:
            nt = " nt" if o.get('xnt', 0) else ""
            p(f"""s_lshl_b32 {sT3}, {sMA}, 2
                 s_add_u32 {sT3}, {sT3}, {sW}
                 s_lshl_b32 {sT3}, {sT3}, 11
                 s_lshl_b32 {sT4}, {sTA}, 16
                 s_add_u32 {sT3}, {sT3}, {sT4}
                 s_lshl_b32 {sT4}, s2, 2
                 s_add_u32 {sT4}, {sT4}, {sW}
                 s_mul_i32 {sT4}, {sT4}, 1536
                 v_lshrrev_b32 v196, 2, v1
                 v_lshlrev_b32 v196, 7, v196
                 v_min_u32 v197, 1408, v196""")
            if pre & 1:
                p(f"buffer_load_dword v194, v196, {X}, {sT3} offen{nt}")
            if pre & 2:
                p(f"buffer_load_dword v195, v197, {WQKV}, {sT4} offen")
        p.extend(flat(self.dmaA(0)))
        p(f"v_lshlrev_b32 {L16}, 4, v1")
        if o.get('codepf', 1):
            p(f"""s_getpc_b64 s[70:71]
                 s_lshl_b32 {sT3}, {sU}, 2
                 s_add_u32 {sT3}, {sT3}, {sW}
                 s_lshl_b32 {sT4}, {sT3}, 8
                 v_lshrrev_b32 v200, 5, v1
                 v_lshl_add_u32 v200, v200, 7, {sT4}
                 v_min_u32 v200, CODE_PF_MAX, v200
                 global_load_dword v201, v200, s[70:71]""")
        tch = Seq()
        touch = o.get('touch', 7)
        tch(f"""s_lshl_b32 {sCc}, s2, 2
             s_add_u32 {sCc}, {sCc}, {sW}
             s_lshr_b32 {sT4}, {sCc}, 1
             s_mul_i32 {sT4}, {sT4}, 3072
             s_and_b32 {sT5}, {sCc}, 1
             s_lshl_b32 {sT5}, {sT5}, 11
             s_add_u32 {sT4}, {sT4}, {sT5}
             s_lshl_b32 {sCc}, {sCc}, 9
             v_lshrrev_b32 v202, 3, v1
             v_lshlrev_b32 v202, 7, v202
             v_lshrrev_b32 v42, 4, v1
             v_lshlrev_b32 v42, 7, v42""")
        if touch & 4:
            tch(f"""s_lshl_b32 {sT3}, {sU}, 2
                 s_add_u32 {sT3}, {sT3}, {sW}
                 s_mul_i32 {sT3}, {sT3}, {4*3072}
                 v_min_u32 v200, 11, v1
                 v_lshlrev_b32 v200, 10, v200
                 buffer_load_dword v198, v200, {WQKV}, {sT3} offen offset:384""")
        if touch & 1:
            tch(f"buffer_load_dword v203, v202, {WQKV}, {sT4} offen")
        tat = o.get('tat', -1)
        if tat == -2:
            p.extend(tch)
        d1 = self.dmaA(1)
        n1 = o.get('d1', 4)
        p.extend(flat(d1[:n1]))
        if tat == -1:
            p.extend(tch)
        for srd, src, sz in ((12, 80, 0x80000), (16, 84, 0x1C0000), (20, 86, 0x1C0000), (24, 88, 0x1C0000),
                             (28, 90, 0x200000), (36, 92, 256), (32, 94, WS_SIZE)):
            p(f"s_mov_b64 s[{srd}:{srd+1}], s[{src}:{src+1}]\ns_mov_b32 s{srd+2}, {hex(sz)}\ns_mov_b32 s{srd+3}, 0x20000")
        if o.get('wsoff'):
            p(f"s_add_u32 s32, s32, {o['wsoff'] << 20}\ns_addc_u32 s33, s33, 0")
        Lz = self.lab("z")
        p(f"""s_lshl_b32 {sB}, {sW}, 8
             s_add_u32 {sB}, {sB}, 224
             s_cmp_lt_u32 s2, {sB}
             s_cbranch_scc1 {Lz}""")
        padr = f"""s_sub_u32 {sT2}, s2, 224
             s_and_b32 {sT1}, {sU}, 1
             s_lshl_b32 {sT3}, {sT1}, 5
             s_add_u32 {sT3}, {sT3}, {sT2}
             s_lshl_b32 {sT3}, {sT3}, 8
             s_add_u32 {sT3}, {sT3}, {hex(PROBE)}
             s_xor_b32 {sT4}, {sT3}, 0x2000
             s_waitcnt lgkmcnt(0)
             s_buffer_load_dword {sT5}, {WS}, {sT3} glc
             s_buffer_load_dword {sT5}, {WS}, {sT4} glc"""
        p(f"""{padr.replace(sT5, sD)}
             v_mov_b32 v16, 0
             v_mov_b32 v17, 0
             v_mov_b32 v18, 0
             v_mov_b32 v19, 0
             v_lshrrev_b32 v20, 3, v1
             v_lshl_add_u32 v20, v20, 7, {L16}
             s_lshl_b32 {sT4}, {sT2}, 11
             s_lshl_b32 {sT3}, {sT2}, 12
             s_add_u32 {sT3}, {sT3}, {hex(CNT)}
             s_add_u32 {sT4}, {sT4}, {hex(KVM)}
             buffer_store_dwordx4 v[16:19], {L16}, {WS}, {sT4} offen sc1
             buffer_store_dwordx4 v[16:19], {L16}, {WS}, {sT4} offen offset:1024 sc1
             buffer_store_dwordx4 v[16:19], v20, {WS}, {sT3} offen sc1
             buffer_store_dwordx4 v[16:19], v20, {WS}, {sT3} offen offset:2048 sc1""", cond=True)
        p(f"{Lz}:")
        probe = f"""{padr}
             s_getreg_b32 {sT4}, hwreg(HW_REG_XCC_ID, 2, 1)
             s_waitcnt lgkmcnt(1)
             s_nop {o.get('pnop', 15)}
             s_getreg_b32 {sT2}, hwreg(HW_REG_IB_STS, 8, 4)
             s_waitcnt lgkmcnt(0)
             s_min_u32 {sT2}, {sT2}, 1
             s_xor_b32 {sT1}, {sT1}, {sT4}
             s_cmp_lg_u32 {sT1}, {sT2}
             s_cselect_b32 {sT2}, 64, 4096
             s_add_u32 {sT2}, {sT2}, 1
             s_add_u32 {sT5}, {sKC}, 18
             s_lshl_b32 {sT4}, {sT4}, {sT5}
             s_cmp_eq_u32 {sU}, 28
             s_cselect_b32 {sT4}, {sT4}, 0
             s_add_u32 {sT2}, {sT2}, {sT4}
             v_mov_b32 v46, {sT2}"""
        p.extend(self.miscA())
        if o.get('pat', 0) == 0:
            Lz = self.lab("z")
            p(f"s_cmp_lt_u32 s2, {sB}\ns_cbranch_scc1 {Lz}")
            p(probe, cond=True)
            p(f"{Lz}:")
            probe = ""
        if tat == 0:
            p.extend(tch)
        SEL, ONES = v(16, 4), v(20, 4)
        XS, XQ0, XQ1, CSA, ZA = 252, 248, 32, 36, 44
        AK, AV, AQ, RB, AKV = 48, 64, 80, 96, 112
        WR = 128
        XM, WP, RS_ = 160, 164, 176

        def wread(t, s, dst=None):
            n = t * 32 + s
            addr = (TRK, TRP, TRK)[t]
            return trpair(('v', WR + 4 * (n % 6) if dst is None else dst), f"v{addr+(s&3)}", (s >> 2) * 8192, 512)

        def wf(t, s):
            return v(WR + 4 * ((t * 32 + s) % 6), 4)

        def csm(f, first):
            return mf16(CSA, SEL, f, "0" if first else None)

        def cswrite(t):
            S = split2(41, CSA, 41)
            S(f"ds_write_b32 {XCW}, v41 offset:{t*512}", tag=f"x{t}")
            return list(S)

        def csget(t):
            return [Inst(f"ds_read_b64 {v(WP+4*t,2)}, {XCR} offset:{t*512}")]

        def xread(s):
            return [Inst(f"ds_read_b128 {a_(4*s,4)}, v{10+(s&3)} offset:{(s>>2)*8192}")]

        p.extend(flat(d1[n1:]))
        d2 = self.dmaA(2)
        n2_ = o.get('d2', 4)
        p.extend(flat(d2[:n2_]))
        self.stamp("A_issued")
        p("WAITTAG A0\ns_barrier")
        self.stamp("A_c0")
        p.extend(xread(0) + wread(0, 0) + xread(1) + wread(0, 1))
        p.extend(flat(d2[n2_:]))
        ad = o.get('ad', 4)
        nv1 = o.get('nv1', 14)
        vq = flat([self.dmaW(1, k) for k in range(8)])
        pend = self.dmaA(3) if ad == 4 else []
        for s in range(32):
            c, j = s >> 2, s & 3
            xf = a_(4 * s, 4)
            z = "0" if s == 0 else None
            p.append(mf32(AK, xf, wf(0, s), z))
            if j == 2 and c < 7:
                p(f"WAITTAG A{c+1}\ns_barrier")
                self.stamp(f"a{c+1}")
                assert not pend
                if c == 1:
                    p(f"s_cmp_ge_u32 s2, {sB}")
                    self.ool("s_cbranch_scc1", f"{probe}\nbuffer_atomic_add v46, {FA1}, {DBG}, 0 offen sc1")
                if c + 1 == tat:
                    p.extend(tch)
                if c + ad < 8:
                    pend = self.dmaA(c + ad)
                else:
                    pend, vq = vq[:4], vq[4:]
            if s == 30:
                p("WAITTAG V1\ns_barrier")
                k = max(0, nv1 - (16 - len(vq)))
                assert k <= 2
                pend, vq = vq[:k], vq[k:]
            if s + 2 < 32:
                p.extend(xread(s + 2) + wread(0, s + 2))
            else:
                p.extend(wread(1, s + 2 - 32))
            if s == 28:
                p("ds_read_b128 v[24:27], v14\nds_read_b128 v[28:31], v15", tag="xres")
            for _ in range(2 if s < 2 else 1):
                if pend:
                    p.extend(pend.pop(0))
            if j % 2 == 0:
                p.append(csm(wf(0, s), s == 0))
            if j < 2:
                p.append(mf16(XS, SEL, xf, z))
                p.append(mf4(XQ0, a_(4 * s, 2), a_(4 * s, 2), z))
                p.append(mf4(XQ1, a_(4 * s + 2, 2), a_(4 * s + 2, 2), z))
            if s == 30:
                for k in range(4):
                    p(f"v_add_f32 v{XQ0+k}, v{XQ0+k}, v{XQ1+k}")
                p(f"""v_cndmask_b32 v197, v{XQ0}, v{XQ0+1}, s[96:97]
                     v_cndmask_b32 v197, v197, v{XQ0+2}, s[98:99]
                     v_cndmask_b32 v197, v197, v{XQ0+3}, s[70:71]
                     v_mov_b32 v196, v197""")
            if s == 31:
                p(f"""v_permlane32_swap_b32 v196, v197
                     v_add_f32 v{XS+1}, v196, v197
                     ds_write_b64 {STW}, {v(XS,2)}""")
                p.extend(cswrite(0))
        assert not pend
        self.stamp("A_loop")
        CT = (204, 208, ZA)
        kb = o.get('kb', 9)

        def tilepass(t, acc, order):
            nm = "VQ"[t - 1]
            G = []
            for s in range(32):
                A_, B_ = (a_(4 * s, 4), wf(t, s)) if order == 0 else (wf(t, s), a_(4 * s, 4))
                g = Seq()
                g.append(mf32(acc, A_, B_, "0" if s == 0 else None))
                if t == 1 and s == 2:
                    g("WAITTAG x0 xres" + (" V3" if ad == 4 else "") + "\ns_barrier")
                    g(f"ds_read_b64 v[198:199], {STR}")
                    g.extend(csget(0))
                if t == 2 and o.get('fb', 0) & 2:
                    if s == 4:
                        g("WAITTAG Q3\ns_barrier")
                    if s == kb:
                        assert kb <= 12
                        g("WAITTAG kvp Q7\ns_barrier")
                elif t == 1 and o.get('fb', 0) & 1:
                    if s == 12:
                        g("WAITTAG V7\ns_barrier")
                elif s % 8 == 4 and s < 28 and ((t, s) != (1, 4) or ad != 4):
                    g(f"WAITTAG {nm}{(s+4)//4+1} kvp\ns_barrier")
                elif t == 2 and s == kb:
                    g("WAITTAG kvp\ns_barrier")
                if s == 28:
                    g(f"WAITTAG x{t}" + (" Q1" if t == 1 else "") + "\ns_barrier")
                    g.extend(csget(t))
                if t == 1 and s < 2:
                    g.extend(wread(t, 2 + 2 * s) + wread(t, 3 + 2 * s))
                elif s + 4 < 32:
                    g.extend(wread(t, s + 4))
                elif t == 1:
                    g.extend(wread(2, s + 4 - 32))
                if s in (20, 21, 22):
                    g.extend(wread(t, 26 + 2 * (s - 20), CT[s - 20]))
                if s % 2 == 0 and s < 26 and (t, s) != (1, 0):
                    g.append(csm(wf(t, s), (t, s) == (2, 0)))
                if (t, s) == (1, 1):
                    g.append(csm(wf(t, 0), True))
                if s in (23, 24, 25):
                    g.append(csm(v(CT[s - 23], 4), False))
                if s == 26:
                    g.extend(cswrite(t))
                G.append(list(g))
            return G

        def phi(acc, scale, T, dst):
            S = Seq()
            for h in range(2):
                r = range(8 * h, 8 * h + 8)
                for i in r:
                    S(f"v_fma_f32 v{acc+i}, v{acc+i}, {scale(i)}, {sEPS6}")
                for i in r:
                    S(f"v_mul_f32 v{T+(i&7)}, {sLOG2E}, v{acc+i}")
                for i in r:
                    S(f"v_exp_f32_e64 v{T+(i&7)}, v{T+(i&7)} clamp")
                    S(f"v_max_f32 v{acc+i}, {sEPS6}, v{acc+i}")
                for i in r:
                    S(f"v_add_f32 v{acc+i}, v{acc+i}, v{T+(i&7)}")
                for i in range(4 * h, 4 * h + 4):
                    S(f"v_cvt_pk_bf16_f32 v{dst+i}, v{acc+2*i}, v{acc+2*i+1}")
            return S
        E = Seq()
        E(f"""v_add_f32 v198, v198, v{XS}
             v_add_f32 v197, v199, v{XS+1}
             v_mul_f32 v199, 0x3b000000, v198
             v_mul_f32 v197, 0x3b000000, v197
             v_cvt_pk_bf16_f32 v198, -v199, -v199
             v_fma_f32 v197, -v199, v199, v197
             v_cndmask_b32 v{XM}, v198, 0, {sHILANES}
             v_cndmask_b32 v{XM+1}, v198, 0, {sHILANES}
             v_max_f32 v197, 0, v197
             v_add_f32 v197, 0x3727c5ac, v197
             v_rsq_f32 v40, v197""")
        E.append(mf32(AK, v(XM, 4), v(WP, 4)))
        E.extend(split2(RS_, 40, 198))
        E(f"v_cndmask_b32 v{RS_}, v{RS_}, 0, {sHILANES}")
        E.append(mf32(RB, v(RS_, 4), ONES, "0"))
        PK = phi(AK, lambda i: f"v{RB+i}", 196, 180)
        G = tilepass(1, AV, 0)
        v2e = o.get('v2e', 2)
        qq = flat([self.dmaW(2, k) for k in range(8)])
        nq2 = o.get('nq2', 16)
        G = weave(G, vq, 0, v2e)
        G = weave(G, qq[:nq2], max(3, v2e), o.get('q2end', 30))
        G[0] += [Inst(f"v_subrev_u32 v{TRK+j}, {hex(VB)}, v{TRP+j}") for j in range(4)]
        G[12] += [Inst(f"buffer_load_dword v5, {FA1}, {DBG}, 0 offen sc1")]
        n2 = o.get('pk2', 88)
        G = weave(G, list(E), 4, 8)
        G = weave(G, PK[:n2], 10, 32)
        for k in range(3, 31, 4):
            G[k] += self.sub(lambda: self.stamp(f"v{k}"))
        p.extend(flat(G))
        p.append(mf32(AV, v(XM, 4), v(WP + 4, 4)))
        self.stamp("A_v")
        E = Seq()
        E.extend(PK[n2:])
        for i in range(16):
            E(f"v_mul_f32 v{AV+i}, v{AV+i}, v{RB+i}")
        for i in range(8):
            E(f"v_cvt_pk_bf16_f32 v{188+i}, v{AV+2*i}, v{AV+2*i+1}")
        G = tilepass(2, AQ, 1)
        rq = self.rload()
        if o.get('nor'):
            rq = []
        if touch & 2:
            rq = rq[:2] + [[Inst(f"buffer_load_dword v42, v42, {WO}, {sCc} offen")]] + rq[2:]
        e2 = o.get('e2', 0)
        R2T = trpair(('a', 144), RT2A, 4096, 512) + trpair(('a', 148), RT2B, 4096, 512)
        R2S = [Inst(f"buffer_store_dwordx4 a[144:147], {L16}, {WS}, {sR2} offen sc1", tag="pub1" if e2 else "pubR"),
               Inst(f"buffer_store_dwordx4 a[148:151], {L16}, {WS}, {sR2} offen offset:1024 sc1", tag="pub1" if e2 else "pubR")]
        if e2:
            G[e2] += [Inst("WAITTAG RL2")] + R2T
            G[e2 + 3] += R2S[:1]
            G[e2 + 5] += R2S[1:]
            R2T, R2S = [], []
        r0 = o.get('r0', 0)
        if nq2 < 16:
            G = weave(G, qq[nq2:], 0, r0)
        G = weave(G, rq, r0, o.get('r1', r0 + 7))
        if o.get('rwait'):
            G[o.get('r1', 7)] += list(Seq()("WAITALL vm")) + self.sub(lambda: self.stamp("A_rland"))
        woq = flat([self.dmaWO(q) for q in range(8)])
        nw3 = o.get('wo3', 0)
        G[13] += [Inst(f"s_lshl_b32 {sB}, {sW}, 12")]
        if nw3:
            G = weave(G, woq[:nw3], o.get('wo30', 26), 32)
        G = weave(G, list(E), 0, kb - 5)
        G[kb - 5] += [mf32(AKV, v(180, 4), v(188, 4), "0"), mf32(AKV, v(184, 4), v(192, 4)),
                 mf16(ZA, SEL, v(180, 4), "0"), mf16(ZA, SEL, v(184, 4))]
        G[kb - 4] += self.sub(lambda: self.spin("v5", None, "0", "1", "32", srd=DBG, mode='check', sleep=4, field=63))
        S = Seq()
        S(f"""v_readfirstlane_b32 {sT2}, v5
             s_bfe_u32 {sT3}, {sT2}, 0x60006
             s_bfe_u32 {sT4}, {sT2}, 0x6000c
             s_lshr_b32 {sT2}, {sT2}, 5""")
        S = [[i] for i in S] + [list(Seq()(f"""s_cmp_gt_u32 {sT4}, {sT3}
             s_cselect_b32 {sT3}, {'0, -1' if o.get('parx') else '-1, 0'}"""))]
        S += [[i] for i in Seq()(f"""s_xor_b32 {sTBL}, {sT2}, {sT3}
             s_lshr_b32 {sT2}, {sTBL}, {sKC}
             s_lshl_b32 {sT3}, {sG}, 10
             s_xor_b32 {sP1}, {sT2}, {sT3}
             s_and_b32 {sP1}, {sP1}, 0x2000
             s_xor_b32 {sPQS}, {sPQS}, {sP1}
             s_lshr_b32 {sPE}, {sTBL}, 3
             s_and_b32 {sPE}, {sPE}, 0x2000
             s_lshl_b32 {sT4}, {sG}, 12
             s_xor_b32 {sP2}, {sT3}, {sT4}
             s_and_b32 {sP2}, {sP2}, 0x2000
             s_xor_b32 {sP2}, {sP2}, {sPE}
             s_xor_b32 {sHS}, {sHS}, {sP2}
             v_mov_b32 v176, 0
             v_lshrrev_b32_e64 {P4K}, v1, {sTBL}
             v_and_b32 {P4K}, 0x2000, {P4K}
             v_lshl_add_u32 {P4K}, v1, 14, {P4K}
             v_or_b32 {P4K}, {P4K}, {LM8}""")]
        S += [[Inst(f"buffer_store_dwordx4 v[176:179], {L16}, {WS}, {sHS} offen offset:3072 sc1", tag="pub1")]]
        G = weave(G, S, 19, 31)
        S = Seq()
        for i in range(8):
            S(f"v_cndmask_b32 v{196+i}, v{AKV+i}, v{AKV+8+i}, {sB4LANES}")
        S(f"""ds_write_b128 {KVW}, v[196:199]
             ds_write_b128 {KVW}, v[200:203] offset:512""")
        S(f"ds_write_b32 {ZW}, v{ZA}", tag="kvp")
        G = weave(G, list(S), kb - 3, kb - 1)
        S = Seq()
        for k in range(4):
            S(f"ds_read2st64_b32 v[{112+2*k}:{113+2*k}], {KVR} offset0:{k} offset1:{k+8}")
        S(f"ds_read2_b32 v[120:121], {ZR} offset0:0 offset1:32")
        G = weave(G, list(S), kb, kb + 2)
        S = Seq()
        for k in range(5):
            S(f"v_add_f32 v{112+2*k}, v{112+2*k}, v{113+2*k}")
        for k in range(4):
            S(f"buffer_atomic_add_f32 v{112+2*k}, {L4}, {WS}, {sKVA} offen offset:{k*256}", tag="pub1")
        S(f"buffer_atomic_add_f32 v120, {ZAT}, {WS}, {sZA} offen", tag="pub1")
        G = weave(G, list(S), kb + 3, kb + 8)
        for k in range(3, 31, 4):
            G[k] += self.sub(lambda: self.stamp(f"v{k}"))
        p.extend(flat(G))
        p.append(mf32(AQ, v(WP + 8, 4), v(XM, 4)))
        self.stamp("A_q")
        woq = woq[nw3:]
        t1, t3, t2 = o.get('wot1', 0), o.get('wot3', 6), o.get('wot2', 2)
        assert nw3 + t1 == 0
        p.extend(flat(woq[:t1]))
        woq = woq[t1:]
        ph = phi(AQ, lambda i: "v40", 196, 180)
        h = len(ph) // 2
        p.extend(ph[:h])
        p(f"buffer_store_dwordx4 v[180:183], {L16}, {WS}, {sPQS} offen sc1", tag="pub1")
        p.extend(ph[h:])
        p(f"buffer_store_dwordx4 v[184:187], {L16}, {WS}, {sPQS} offen offset:1024 sc1", tag="pub1")
        self.stamp("A_pqst")
        p("s_barrier")
        MB = list(self.miscB()) + self.miscC()
        nb = o.get('mb1', 140)
        assert nb >= len(self.miscB())
        p.extend(flat(woq[:t3]))
        p("s_nop 0")
        p.extend(MB[:nb])
        p("s_nop 0")
        p.extend(flat(woq[t3:t3 + t2]))
        woq = woq[t3 + t2:]
        p("WAITTAG pub1\ns_barrier")
        p(f"buffer_atomic_add v4, {P4K}, {WS}, {sSIG} offen sc1")
        self.stamp("A_sig")
        for s in range(4):
            p.extend(trpair(('a', 128 + 4 * s), RT13, s * 6144, 512))
        p.extend(R2T)
        t4 = o.get('wot4', 16)
        assert t3 + t2 + t4 >= 16
        p.extend(flat(woq[:t4]))
        for s in range(4):
            p.append(mf16(RCS, SEL, a_(128 + 4 * s, 4), "0" if s == 0 else None))
            p(f"buffer_store_dwordx4 {a_(128+4*s,4)}, {L16}, {WS}, {sRW} offen offset:{s*1024} sc1", tag="pubR")
        p.extend(R2S)
        p(f"buffer_atomic_add_f32 v{RCS}, {CSAT}, {WS}, {sRC} offen", tag="pubR")
        self.stamp("A_rst")
        p(f"s_add_u32 {sSIG}, {sSIG}, 4096")
        self.wo_rest = woq[t4:]
        self.mb_rest = MB[nb:]

    def dmaT(self, t, slot):
        g = []
        for h in range(2):
            S = Seq()
            S(f"s_add_u32 m0, {bTL}, {slot*32768+h*4096}\ns_add_u32 {sT0}, {bTX if self.o.get('grp', 1) and par13(t) else bTA}, {t*65536+h*4096}")
            for k in range(4):
                S(f"buffer_load_dwordx4 {L16}, {WS}, {sT0} offen offset:{k*1024} sc1 lds", tag=f"T{t}")
                g.append(list(S))
                S = Seq()
            ctx(g[-4:])
        return g

    def phaseB(self):
        p = self.p
        o = self.o
        AH = 192
        W = [trpair(('a', 4 * i), f"v{WOT+((i>>2)&3)}", (i & 3) * 4096, 1024) for i in range(32)]
        PQR = 224
        LD = [Inst(f"buffer_load_dwordx2 v[32:33], v41, {WS}, {sZL} offen sc1")]
        for q in range(4):
            for i in (2 * q, 2 * q + 1):
                LD.append(Inst(f"buffer_load_dwordx4 {v(48+4*i,4)}, {L16}, {WS}, {sKVL if i < 4 else bK2} offen offset:{(i&3)*1024} sc1"))
            for i in (2 * q, 2 * q + 1):
                LD.append(Inst(f"buffer_load_dwordx4 {a_(PQR+4*i,4)}, {L16}, {WS}, {sPQL if i < 4 else bQ2} offen offset:{(i&3)*1024} sc1"))
        ZB = Seq()(f"v_cvt_pk_bf16_f32 v32, v32, v33\nds_write_b32 {ZBW}, v32")
        for k in range(4):
            ZB(f"ds_read_b128 {v(96+4*k,4)}, {ZBR} offset:{k*64}")
        p("WAITTAG WO0\ns_barrier")
        self.stamp("B_wo")
        pm = o.get('pm', 0)
        pl = list(Seq()(f"""s_cmp_eq_u32 {sW}, 1
             s_cselect_b32 {bGP}, {bGP}, {hex(OOB)}
             s_cselect_b64 s[26:27], 0xffff, 0
             buffer_load_dword v5, {P256}, {WS}, {bGP} offen sc1"""))
        if pm == 2:
            p.extend(pl)
        p.extend(flat(W[:16]))
        if pm == 1:
            p.extend(pl)
        for q in range(4):
            p(f"v_add_u32 v{WOT+q}, 0x10000, v{WOT+q}")
        mb2 = o.get('mb2', 30)
        p.extend(self.mb_rest[:mb2])
        self.stamp("B_prepoll")
        if pm:
            self.spin("v5", P256, bGP, "s[26:27]", "16", sleep=o.get('sleep1', 1), mode='check')
        else:
            self.spin("v5", P256, bGP, "0xffff", "16", sleep=o.get('sleep1', 1), wave=o.get('pw', 1))
        p("WAITTAG pubR\nWAITALL lgkm\ns_barrier")
        self.stamp("B_sync1")
        LD.insert(o.get('rsat', 0), Inst(f"buffer_atomic_add v4, {P4K}, {WS}, {sSIG} offen sc1"))
        nl0 = o.get('nl0', 14)
        p.extend(LD[:10] + [Inst('s_nop 0')] + self.mb_rest[mb2:] + ZB + LD[10:nl0])

        def prep(q):
            S = Seq()
            for k in range(4):
                S(f"v_cvt_pk_bf16_f32 v{80+4*q+k}, v{48+8*q+2*k}, v{48+8*q+2*k+1}")
            for k in range(4):
                S(f"v_cndmask_b32 v{112+8*q+k}, v{80+4*q+k}, v{96+4*q+k}, {sB4LANES}")
            for k in range(4):
                S(f"v_cndmask_b32 v{116+8*q+k}, v{96+4*q+k}, v{80+4*q+k}, {sB4LANES}")
            return S
        NA = [144, 160, 176]
        steps = [(pr + k, t) for pr in (0, 2) for t in range(3) for k in range(2)]
        d16 = o.get('d16', 1)
        steps += [(pr, t) for t in (3, 4, 5, 6) for pr in range(4)]
        w2o = [f"{cW2x if o.get('grp', 1) and par2(pr, t) else cW2}, {pr * 32768 + (t >> 2) * 16384 + (t & 3) * 2048}" for pr, t in steps]
        hho = [pr * 16384 + t * 1024 for pr, t in steps]
        w2l = []
        for i in range(16):
            S = Seq()
            if d16:
                ad = W2B if i & 1 else W2A
                if i % 2 == 0:
                    S(f"s_add_u32 {sKC}, {w2o[i]}")
                S(f"buffer_load_dwordx4 {a_(128+8*i,4)}, {ad}, {WS}, {sKC} offen sc1")
                w2l.append(list(S))
                w2l.append([Inst(f"buffer_load_dwordx4 {a_(132+8*i,4)}, {ad}, {WS}, {sKC} offen offset:256 sc1")])
                if i & 1:
                    ctx(w2l[-4:])
                continue
            S(f"s_add_u32 {sKC}, {w2o[i]}")
            S(f"buffer_load_dwordx4 {a_(128+8*i,4)}, {W2A}, {WS}, {sKC} offen sc1")
            w2l.append(list(S))
            w2l.append([Inst(f"buffer_load_dwordx4 {a_(132+8*i,4)}, {W2B}, {WS}, {sKC} offen sc1")])
            ctx(w2l[-2:])
        self.steps, self.w2o, self.hho = steps, w2o, hho
        nw1, nw2 = (o.get('nw1', 6), o.get('nw2', 6)) if o.get('e2', 0) else (0, 0)
        assert nw1 <= 24
        W1, W2_, w2l = w2l[:nw1], w2l[nw1:nw1 + nw2], w2l[nw1 + nw2:]
        self.n_w2rest = len(w2l)
        TQ = flat([self.dmaT(t, t) for t in range(2)]) + w2l
        n2, n3 = o.get('tq2', 6), o.get('tq3', 10)

        def num(i):
            return mf32(NA[i % 3], v(112 + 4 * i, 4), a_(PQR + 4 * i, 4), "0")

        def fin(i):
            n = NA[i % 3] + 8 * (i & 1)
            d = NA[i % 3] + 8 * (1 - (i & 1))
            S = Seq()
            S(f"v_add_f32 v{d}, {sEPS6}, v{d}\nv_rcp_f32 v{d}, v{d}")
            for k in range(8):
                S(f"v_mul_f32 v{n+k}, v{n+k}, v{d}")
            for k in range(4):
                S(f"v_cvt_pk_bf16_f32 v{48+4*i+k}, v{n+2*k}, v{n+2*k+1}")
            return S

        def owrite(i):
            return Inst(f"ds_write_b128 v{OAD}, {v(48+4*i,4)} offset:{(i>>2)*16384+(i&3)*1024}", tag=f"o{i}")

        OR = (16, 20, 36, 44, 208, 248)

        def oreg(k):
            return OR[k % 6] if k < 16 else 80 + 4 * (k & 7)

        def oread(k):
            return Inst(f"ds_read_b128 {v(oreg(k),4)}, v{OAD+((k>>2)&3)} offset:{(k>>4)*16384+(k&3)*1024}")

        def acc(k):
            own = (k & 12) == 0
            return mf32(AH, a_(4 * k, 4), v(48 + 4 * ((k >> 4) * 4 + (k & 3)) if own else oreg(k), 4))
        self.stamp("bz")
        p.extend(prep(0))
        self.stamp("bp")
        p.append(num(0))
        p.append(num(1))
        VM = [[x] for x in LD[nl0:]] + list(self.wo_rest)
        per = o.get('per', 3)
        rl, rc = o.get('rl', 7), o.get('rc', 8)
        kk = 4
        for i in range(8):
            if i + 2 < 8:
                if i % 2 == 0:
                    p.extend(prep(i // 2 + 1))
                p.append(num(i + 2))
            if i >= 1:
                p.append(owrite(i - 1))
            if i == 5:
                p("WAITTAG o3\ns_barrier")
                p.extend([oread(k) for k in range(4, 9)])
            for _ in range(per):
                if VM:
                    p.extend(VM.pop(0))
            if i == rl:
                p(f"buffer_load_dword v5, {P256}, {WS}, {bRP} offen sc1")
            if i >= 5:
                for _ in range(-(-nw1 // 3)):
                    if W1:
                        p.extend(W1.pop(0))
            F = fin(i)
            self.stamp(f"b{i}")
            if i < 5:
                p.extend(F[:7])
                if i >= 1:
                    p.append(acc(i - 1))
                p.extend(F[7:])
            else:
                cuts = (8, 14) if i == 5 else (2, 6, 10, 14)
                lo = 0
                for c in cuts:
                    p.extend(F[lo:c])
                    lo = c
                    p.append(acc(kk))
                    if kk + 5 < 16:
                        p.append(oread(kk + 5))
                    kk += 1
        p.append(owrite(7))
        assert not VM
        self.stamp("B_st1")
        p.append(acc(kk))
        p("WAITTAG WO1 o7\ns_barrier")
        for k in range(16, 20):
            p.extend(W[k])
        assert kk == 14
        G = [[acc(15)] + W[20] + [oread(20)]]
        for k in range(16, 32):
            g = [acc(k)]
            if k + 5 < 32:
                g += W[k + 5] + [oread(k + 5)]
            G.append(g)
        if rl >= 8:
            G[rl - 8] += [Inst(f"buffer_load_dword v5, {P256}, {WS}, {bRP} offen sc1")]
        G[rc] += self.sub(lambda: self.spin("v5", P256, bRP, "0xffff", "16", mode='check', sleep=2))
        G = weave(G, W2_, 0, rc)
        G = weave(G, TQ[:n2], rc + 1, 17)
        p.extend(flat(G))
        for k in range(8):
            p(f"v_cvt_pk_bf16_f32 v{48+k}, v{AH+2*k}, v{AH+2*k+1}")
            if k == 3:
                p(f"buffer_store_dwordx4 v[48:51], {L16}, {WS}, {sHST} offen sc1", tag="pub2")
        p(f"buffer_store_dwordx4 v[52:55], {L16}, {WS}, {sHST} offen offset:1024 sc1", tag="pub2")
        p(f"v_add_f32 v56, v{AH}, v{AH+1}\nv_mul_f32 v57, v{AH}, v{AH}\nv_add_f32 v58, v{AH+2}, v{AH+3}\nv_mul_f32 v59, v{AH+1}, v{AH+1}")
        for k in range(2, 16):
            if k >= 4:
                p(f"v_add_f32 v{56+2*(k&1)}, v{56+2*(k&1)}, v{AH+k}")
            p(f"v_fmac_f32 v{57+2*(k&1)}, v{AH+k}, v{AH+k}")
        p("""v_add_f32 v56, v56, v58
             v_add_f32 v57, v57, v59
             v_permlane32_swap_b32 v56, v57
             v_add_f32 v56, v56, v57""")
        p(f"buffer_atomic_add_f32 v56, {L4}, {WS}, {sSTA} offen", tag="pub2")
        self.stamp("B_hst")
        for t in range(7):
            p(f"buffer_load_dword v{160+t}, {CSL}, {WS}, {cCS} offen offset:{t*128} sc1")
        p.extend(flat(TQ[n2:n2 + n3]))
        p(f"WAITTAG pub2\nbuffer_store_dword v4, {FA1}, {WS}, {sD} offen offset:512 sc1\ns_barrier")
        self.t1_late = n2 < 16
        self.stamp("B_sig")
        self.tq_rest = TQ[n2 + n3:]

    def miscC(self):
        M = Seq()
        DL = "v45"
        if self.o.get('d16', 1):
            M(f"""v_bfe_u32 v46, v1, 4, 1
                 v_and_b32 {DL}, 0xf0, {L16}
                 v_lshl_add_u32 {DL}, v46, 9, {DL}
                 v_lshrrev_b32 v46, 5, v1""")
        else:
            M(f"v_mov_b32 {DL}, {L16}\nv_mov_b32 v46, 0")
        M(f"""s_bfe_i32 {sT1}, {sTBL}, 0x10010
             s_xor_b32 {sT1}, {sT1}, {sTBL}
             s_and_b32 {sT1}, {sT1}, 0xe000
             s_bcnt1_i32_b32 {sT1}, {sT1}
             s_sub_u32 {sT1}, {sKC}, {sT1}""")
        if self.o.get('cmap', 1):
            M(f"""s_and_b32 {sGC}, {sT1}, 4
                 s_lshl_b32 {sGC}, {sGC}, 1
                 s_and_b32 {sT2}, {sU}, 7
                 s_add_u32 {sGC}, {sGC}, {sT2}
                 s_and_b32 {sMC}, {sT1}, 3
                 s_lshl_b32 {sMC}, {sMC}, 2
                 s_lshr_b32 {sT2}, {sU}, 3
                 s_add_u32 {sMC}, {sMC}, {sT2}""")
        else:
            M(f"""s_and_b32 {sGC}, {sT1}, 6
                 s_lshl_b32 {sGC}, {sGC}, 1
                 s_add_u32 {sGC}, {sGC}, {sRQ}
                 s_and_b32 {sMC}, {sT1}, 1
                 s_lshl_b32 {sMC}, {sMC}, 3
                 s_lshr_b32 {sT2}, {sU}, 2
                 s_add_u32 {sMC}, {sMC}, {sT2}""")
        M(f"""s_lshl_b32 {sT1}, {sGC}, 10
             s_lshl_b32 {sT2}, {sGC}, 12
             s_xor_b32 {sP2}, {sT1}, {sT2}
             s_and_b32 {sP2}, {sP2}, 0x2000
             s_xor_b32 {sP2}, {sP2}, {sPE}
             s_lshl_b32 {bTA}, {sMC}, 19
             s_add_u32 {bTA}, {bTA}, {sXL}
             s_and_b32 {sT2}, {sMC if self.o.get('grp', 1) else sW}, 1
             s_lshl_b32 {sT2}, {sT2}, 13
             s_add_u32 {bTA}, {bTA}, {sT2}
             s_add_u32 {bTA}, {bTA}, {hex(W13R)}
             s_xor_b32 {bTX}, {bTA}, 0x2000""")
        M(f"""s_lshl_b32 {sT1}, {sGC}, 2
             s_add_u32 {sT2}, {sT1}, {sW}
             s_lshl_b32 {cHS2}, {sT2}, 4
             s_add_u32 {cHS2}, {cHS2}, {sMC}
             s_lshl_b32 {cHS2}, {cHS2}, 14
             s_add_u32 {cHS2}, {cHS2}, {hex(HH+4096)}
             s_xor_b32 {cHS2}, {cHS2}, {sP2}
             s_lshl_b32 {cHB}, {sT2}, 16
             s_add_u32 {cHB}, {cHB}, {hex(HB)}
             s_xor_b32 {cHB}, {cHB}, {sPE}
             s_sub_u32 {cHS}, {cHS2}, 4096
             s_lshl_b32 {sT3}, {sMC}, 14
             s_sub_u32 {cPL}, {cHS2}, {sT3}
             s_add_u32 {cPL}, {cPL}, {3072+512}
             s_add_u32 {cST}, {cPL}, 256
             v_lshlrev_b32 {HPA}, 14, v1
             v_and_b32 {PA2}, 12, {L4}
             v_or_b32 {PA2}, {PA2}, {LM8}
             v_bfe_u32 v44, v1, 2, 1
             v_lshl_add_u32 {PA2}, v44, 18, {PA2}
             s_mul_i32 {cCS}, {sMC}, {7*128}
             s_add_u32 {cCS}, {cCS}, {hex(CS)}
             s_and_b32 {sCB}, {sMC}, 7
             s_lshl_b32 {cW2}, {sCB}, 19
             s_lshl_b32 {sT3}, {sW}, 17
             s_add_u32 {cW2}, {cW2}, {sT3}
             s_and_b32 {sT3}, {sCB if self.o.get('grp', 1) else sW}, 1
             s_lshl_b32 {sT3}, {sT3}, 13
             s_add_u32 {cW2}, {cW2}, {sT3}
             s_add_u32 {cW2}, {cW2}, {hex(W2R)}
             s_xor_b32 {cW2x}, {cW2}, 0x2000
             s_and_b32 {sT3}, {sW}, 1
             s_lshl_b32 {sT2}, {sT3}, 10
             v_add_u32 {W2A}, {sT2}, {DL}
             v_xor_b32 {W2B}, 1024, {W2A}
             v_lshrrev_b32 v44, 4, v1
             v_lshl_add_u32 {LB0}, v44, {8 if self.o.get('c16', 1) else 31}, {L16}
             v_and_b32 {LB0}, 0xffff, {LB0}
             v_add_u32 {LB1}, 0x10000, {LB0}
             v_add_u32 {LB2}, 0x20000, {LB0}
             s_add_u32 {sT2}, {bTL}, 0x10000
             v_add_u32 {WLA}, {sT2}, {W2A}
             v_add_u32 {WLB}, {sT2}, {W2B}
             v_lshl_add_u32 {WLA}, v46, 11, {WLA}
             v_lshl_add_u32 {WLB}, v46, 11, {WLB}
             v_lshl_add_u32 {W2A}, v46, 15, {W2A}
             v_lshl_add_u32 {W2B}, v46, 15, {W2B}
             v_add_u32 {WLC}, 0x10000, {WLA}
             v_add_u32 {WLD}, 0x10000, {WLB}
             v_and_b32 {CSL}, 0x7c, {L4}
             s_lshr_b32 {sT2}, {sMC}, 3
             s_lshl_b32 {sT2}, {sT2}, 1
             s_add_u32 {sT1}, {sT1}, {sT2}
             s_lshl_b32 {cHL}, {sT1}, 18
             s_lshl_b32 {sT2}, {sW}, 16
             s_add_u32 {cHL}, {cHL}, {sT2}
             s_add_u32 {cHL}, {cHL}, {hex(HH)}
             s_xor_b32 {cHL}, {cHL}, {sP2}
             s_lshr_b32 {sT2}, {sW}, 1
             s_add_u32 {sT1}, {sT1}, {sT2}
             s_lshl_b32 {sT2}, {sT2}, 18
             v_add_u32 {HHA}, {sT2}, {DL}
             v_lshl_add_u32 {HHA}, v46, 14, {HHA}
             v_xor_b32 {HHB}, 0x40000, {HHA}
             s_lshl_b32 {sT1}, {sT1}, 15
             s_lshl_b32 {sT2}, {sCB}, 1
             s_add_u32 {sT2}, {sT2}, {sT3}
             s_lshl_b32 {cOUT}, {sT2}, 6
             s_add_u32 {cOUT}, {cOUT}, {sT1}
             s_lshr_b32 {cHR}, {sT2}, 2
             s_lshl_b32 {cHR}, {cHR}, 13
             s_add_u32 {cHR}, {cHR}, {sT1}
             s_and_b32 {sT2}, {sT2}, 3
             s_lshl_b32 {sT2}, {sT2}, 10
             s_add_u32 {cHR}, {cHR}, {sT2}
             s_lshl_b32 {cHR}, {cHR}, 1
             s_add_u32 {cHR}, {cHR}, {hex(HB)}
             s_xor_b32 {cHR}, {cHR}, {sPE}
             s_add_u32 {cPP}, {cHL}, 7168
             s_add_u32 {cPQ}, {cPP}, 0x40000
             s_and_b32 {sT3}, {sMC}, 3
             s_mul_i32 {sT3}, {sT3}, {16384-4}
             s_sub_u32 {cPS}, {cHS2}, {sT3}""")
        return list(M)

    def phaseCD(self):
        p = self.p
        o = self.o
        sub = self.sub
        bar = lambda s_: list(Seq()(s_))
        steps, w2o, hho = self.steps, self.w2o, self.hho

        def dmaW2(part):
            g = []
            for k in range(4):
                S = Seq()
                S(f"s_add_u32 m0, {bTL}, {(2+part)*32768+k*2048}\ns_add_u32 {sT0}, {w2o[16+4*part+k]}")
                S(f"buffer_load_dwordx4 {L16}, {WS}, {sT0} offen sc1 lds", tag=f"W2L{part}")
                g.append(list(S))
                g.append([Inst(f"buffer_load_dwordx4 {L16}, {WS}, {sT0} offen offset:1024 sc1 lds", tag=f"W2L{part}")])
                ctx(g[-2:])
            return g

        def pub(tag, st):
            if o.get('nopub'):
                return []
            return bar(f"WAITTAG {tag}\nbuffer_store_dword v4, {FA1}, {WS}, {cPS} offen offset:{3072+128*st} sc1")

        vp = str(o.get('vp', 'x0123'))

        def pollld(st):
            if o.get('nopoll'):
                return []
            if str(st) in vp:
                return bar(f"buffer_load_dword v5, {PA2}, {WS}, {cPP} offen sc1")
            return list(Seq()(f"""s_buffer_load_dwordx4 s[8:11], {WS}, {cPP} glc
                 s_buffer_load_dwordx4 s[12:15], {WS}, {cPQ} glc""", cond=True))

        def pollchk(st):
            if o.get('nopoll'):
                return []
            if str(st) in vp:
                return sub(lambda: self.spin("v5", PA2, cPP, "0xff", "1", mode='check', sleep=o.get('sleep2', 2))) + \
                    bar(f"s_add_u32 {cPP}, {cPP}, 128\ns_add_u32 {cPQ}, {cPQ}, 128")
            red = """s_and_b64 s[8:9], s[8:9], s[10:11]
                 s_and_b64 s[12:13], s[12:13], s[14:15]
                 s_and_b64 s[8:9], s[8:9], s[12:13]
                 s_and_b32 s8, s8, s9"""

            def f():
                Lp = self.lab("sp")
                if o.get('stamps') == 3:
                    self.p(f"s_mov_b32 {sT5}, 0")
                self.p("WAITALL lgkm\n" + red)
                self.ool("s_cbranch_scc0", f"""s_mov_b32 {sT5}, 0
                     {Lp}:
                     s_sleep {o.get('sleep2', 2)}
                     s_buffer_load_dwordx4 s[8:11], {WS}, {cPP} glc
                     s_buffer_load_dwordx4 s[12:15], {WS}, {cPQ} glc
                     s_add_u32 {sT5}, {sT5}, 1
                     s_waitcnt lgkmcnt(0)
                     {red}
                     s_lshr_b32 s9, {sT5}, 15
                     s_or_b32 s8, s8, s9
                     s_cbranch_scc0 {Lp}""")
                self.p(f"s_add_u32 {cPP}, {cPP}, 128\ns_add_u32 {cPQ}, {cPQ}, 128")
                if o.get('stamps') == 3:
                    self.p(f"v_writelane_b32 v{STV}, {sT5}, {self.nstamp}")
                    self.nstamp += 1
                    self.stamp_names.append(f"P{st}")
            return sub(f)

        kt = max(0, len(self.tq_rest) - self.n_w2rest)
        FQ = self.tq_rest[:kt] + self.dmaT(2, 2) + self.dmaT(3, 3) + self.dmaT(4, 4) + self.tq_rest[kt:]
        npre, npre2 = o.get('tq4', 12), o.get('tq5', 0)
        p.extend(flat(FQ[:npre]))
        FQ = FQ[npre:]
        c16 = o.get('c16', 1)
        CSR, CSF, MEANF, C1, C2 = 160, 168, 176, 180, 181
        CSU, CSG, MEANG = 213, 220, 228
        p("s_nop 0")
        for k in (1, 2, 3, 5, 6, 7, 9, 10, 11):
            p(f"v_mov_b32 v{CSF+k}, 0")
            if c16:
                p(f"v_mov_b32 v{CSG+k}, 0")
        for t in range(7):
            p.extend(split2(CSR + t, CSR + t, 184))
        if c16:
            for t in range(7):
                p(f"v_mov_b32 v{CSU+t}, v{CSR+t}")
            for t in range(7):
                p(f"v_permlane16_swap_b32 v{CSR+t}, v{CSU+t}")
            p(f"s_mov_b64 s[8:9], 0xffff\nv_mov_b32 v{CSG}, v{CSU}\nv_mov_b32 v{CSG+4}, v{CSU+1}")
        p(f"v_mov_b32 v{CSF}, v{CSR}\nv_mov_b32 v{CSF+4}, v{CSR+1}")
        p("s_nop 0")
        p.extend(flat(FQ[:npre2]))
        FQ = FQ[npre2:]
        self.stamp("C_prepoll")
        self.spin("v5", HPA, cPL, "0xffff", "1", mode='all', sleep=o.get('sleep3', 0))
        self.stamp("C_sync2")

        c16 = o.get('c16', 1)
        fo = (lambda s: (s >> 1) * 2048 + (s & 1) * 256) if c16 else (lambda s: s * 1024)

        def hload(s):
            S = Seq()
            if s % 4 == 0 and s:
                S(f"s_add_u32 {cHB}, {cHB}, {4096 if s % 8 else 12288}")
            S(f"buffer_load_dwordx4 {a_(4*s,4)}, {LB0}, {WS}, {cHB} offen offset:{fo(s&3)} sc1")
            return list(S)
        HL = o.get('hla', 10)
        for s in range(HL):
            p.extend(hload(s))
        if self.t1_late:
            p("WAITTAG T1\ns_barrier")
        ACC = [48, 64, 80, 96, 112]
        acc_of = [0, 1, 2, 3, 0, 1, 2]
        slot_of = [0, 1, 2, 3, 4, 0, 1]
        WR, NR = 128, 8
        CSR, CSF, MEANF, C1, C2 = 160, 168, 176, 180, 181
        T = 184
        LK = o.get('lk', 5)
        F0 = Seq()
        for k in range(4):
            F0(f"buffer_load_dword v{T+4+k}, {L4}, {WS}, {cST} offen sc1\ns_add_u32 {cST}, {cST}, 16384")
        F1 = Seq()
        F1(f"""v_add_f32 v{T}, v{T+4}, v{T+5}
             v_add_f32 v{T+1}, v{T+6}, v{T+7}
             v_add_f32 v{T}, v{T}, v{T+1}
             v_mov_b32 v{T+1}, v{T}
             v_permlane32_swap_b32 v{T}, v{T+1}
             v_mul_f32 v{T}, 0x3b000000, v{T}
             v_mul_f32 v{T+1}, 0x3b000000, v{T+1}
             v_cvt_pk_bf16_f32 v{MEANF}, -v{T}, -v{T}
             v_fma_f32 v{T+1}, -v{T}, v{T}, v{T+1}
             v_max_f32 v{T+1}, 0, v{T+1}
             v_add_f32 v{C2}, 0x3727c5ac, v{T+1}
             v_rsq_f32 v{C1}, v{C2}
             v_mul_f32 v{C1}, 0xbfb8aa3b, v{C1}""")
        if c16:
            prs = [(MEANF, MEANG), (C2, C2 + 2), (C1, C1 + 2)]
            for x, y in prs:
                F1(f"v_mov_b32 v{y}, v{x}")
            for x, y in prs:
                F1(f"v_permlane16_swap_b32 v{x}, v{y}")
            F1(f"""v_cndmask_b32 v{MEANF}, 0, v{MEANF}, s[8:9]
                 v_cndmask_b32 v{MEANG}, 0, v{MEANG}, s[8:9]""")
        else:
            F1(f"v_cndmask_b32 v{MEANF}, v{MEANF}, 0, {sHILANES}")

        def tread(t, s, n):
            sl = slot_of[t]
            base = (LB0, LB0, LB1, LB1, LB2)[sl]
            return [Inst(f"ds_read_b128 {v(WR+4*(n%NR),4)}, {base} offset:{(sl&1)*32768*(sl<4)+fo(s)}")]

        def corr(t):
            A = ACC[acc_of[t]]
            if c16:
                return [mf16(A + 8 * gu + 4 * th, v((CSF, CSG)[gu] + 4 * (t & 1), 4), v((MEANF, MEANG)[th], 4))
                        for gu, th in ((0, 0), (0, 1), (1, 1), (1, 0))]
            return [mf32(A, v(CSF + 4 * (t & 1), 4), v(MEANF, 4))]

        def cm(t, s, n):
            A, w = ACC[acc_of[t]], v(WR + 4 * (n % NR), 4)
            if not c16:
                return [mf32(A, w, a_(4 * s, 4), "0" if s == 0 else None)]
            gu = s & 1
            r = [mf16(A + 8 * gu + 4 * th, w, a_(8 * (s >> 1) + 4 * th, 4), "0" if s < 2 else None) for th in (gu, 1 - gu)]
            r[1].tag = "second"
            return r

        def spread(G):
            out = []
            for g in G:
                g = hoist(g)
                if len(g) > 1 and g[1].tag == "second":
                    m, rest, c, k = g[1], g[2:], 0, 0
                    m.tag = None
                    tot = sum(cost(x) for x in rest if not x.cond)
                    while k < len(rest) and c + cost(rest[k]) <= max(9.7, tot / 2 + 2.2) and not rest[k].cond \
                            and rest[k].kind not in ('branch', 'label') and not rest[k].op.startswith('v_cmp'):
                        c += cost(rest[k])
                        k += 1
                    g = [g[0]] + rest[:k] + [m] + rest[k:]
                out += g
            return out
        G = []
        for n in range(64):
            s, t = divmod(n, 2)
            g = cm(t, s, n)
            if n + LK < 64:
                g += tread((n + LK) % 2, (n + LK) // 2, n + LK)
            else:
                if n + LK == 64:
                    g += bar("WAITTAG T2\ns_barrier")
                g += tread(2, n + LK - 64, n + LK)
            if t == 0 and s + HL < 32:
                g += hload(s + HL)
            G.append(g)
        G.append(corr(0))
        G.append(corr(1))
        for n in range(LK):
            p.extend(tread(n % 2, n // 2, n))
        G = weave(G, list(F0), 1, o.get('f0', 20))
        G = weave(G, list(F1), o.get('f1', 40), 63)
        e0 = 2 * (32 - HL)
        ng = min(len(FQ), o.get('g1q', 8))
        G = weave(G, FQ[:ng], e0, 66)
        FQ = FQ[ng:]
        p.extend(spread(G))
        self.stamp("C_g1")

        def epi(t, tmp):
            A = ACC[acc_of[t]]
            S = Seq()
            for j in range(8):
                S(f"v_mul_f32 v{tmp+j}, v{A+j}, v{C1+2*c16*(j>>2)}")
            for j in range(8):
                S(f"v_exp_f32 v{tmp+j}, v{tmp+j}")
                S(f"v_mul_f32 v{A+j}, v{A+j}, v{A+8+j}")
            for j in range(8):
                S(f"v_fma_f32 v{tmp+j}, v{tmp+j}, v{C2+2*c16*(j>>2)}, v{C2+2*c16*(j>>2)}")
                if j >= 2:
                    S(f"v_rcp_f32 v{tmp+j-2}, v{tmp+j-2}")
            for j in range(8):
                S(f"v_mul_f32 v{A+j}, v{A+j}, v{tmp+j}")
                if j < 2:
                    S(f"v_rcp_f32 v{tmp+6+j}, v{tmp+6+j}")
            for j in (0, 2, 1, 3):
                S(f"v_cvt_pk_bf16_f32 v{tmp+8+j}, v{A+2*j}, v{A+2*j+1}")
            if c16:
                S(f"v_permlane16_swap_b32 v{tmp+8}, v{tmp+10}\nv_permlane16_swap_b32 v{tmp+9}, v{tmp+11}")
            S(f"buffer_store_dwordx4 {v(tmp+8,4)}, {L16}, {WS}, {cHS if t < 4 else cHS2} offen offset:{(t&3)*1024} sc1", tag=f"hh{t}")
            return list(S)

        def tilepass(t, n0):
            G = []
            for s in range(32):
                n = n0 + s
                g = cm(t, s, n)
                if s + LK < 32:
                    g += tread(t, s + LK, n + LK)
                elif t < 6:
                    if s + LK == 32:
                        g += bar(f"WAITTAG T{t+1}\ns_barrier")
                    g += tread(t + 1, s + LK - 32, n + LK)
                if s == 16:
                    g += bar(f"v_mov_b32 v{CSF+4*(t&1)}, v{CSR+t}")
                if s == 17 and c16:
                    g += bar(f"v_mov_b32 v{CSG+4*(t&1)}, v{CSU+t}")
                G.append(g)
            G.append(corr(t))
            return G

        d16 = o.get('d16', 1)

        def hhload(i):
            S = Seq()
            if d16:
                ad = HHB if i & 1 else HHA
                S(f"s_add_u32 {sCc}, {cHL}, {hho[i & ~1]}")
                S(f"buffer_load_dwordx4 {a_(8*(i&15),4)}, {ad}, {WS}, {sCc} offen sc1")
                return ctx([list(S), [Inst(f"buffer_load_dwordx4 {a_(8*(i&15)+4,4)}, {ad}, {WS}, {sCc} offen offset:256 sc1")]])
            S(f"s_add_u32 {sCc}, {cHL}, {hho[i]}")
            S(f"buffer_load_dwordx4 {a_(8*(i&15),4)}, {HHA}, {WS}, {sCc} offen sc1")
            return ctx([list(S), [Inst(f"buffer_load_dwordx4 {a_(8*(i&15)+4,4)}, {HHB}, {WS}, {sCc} offen sc1")]])

        EP = [epi(t, T + 12 * (t & 1)) for t in range(7)]
        P = {t: tilepass(t, 32 * t) for t in range(2, 7)}
        q = o.get('cq', 18)
        ee = o.get('ee', 20)
        LA = o.get('dla', 7)
        G = weave(P[2], FQ[:q], 0, 32)
        FQ = self.dmaT(5, 0) + FQ[q:]
        FQ = FQ[:q] + self.dmaT(6, 1) + FQ[q:] + dmaW2(0) + dmaW2(1) + dmaW2(2)
        G = weave(G, EP[0] + EP[1][:26], 2, 33)
        p.extend(self.xf(spread(G)))
        self.stamp("C_t2")
        q3 = min(q, len(FQ) - 24)
        G = weave(P[3], FQ[:q3], 0, 32)
        FQ = FQ[q3:]
        G = weave(G, EP[1][26:] + EP[2], 0, 33)
        p.extend(self.xf(spread(G)))
        self.stamp("C_t3")
        q4 = min(q, len(FQ) - 16)
        G = weave(P[4], FQ[:q4], 0, 32)
        FQ = FQ[q4:]
        G = weave(G, EP[3], 2, ee)
        G[o.get('p1at', 26)] += pub("hh2", 0)
        p.extend(self.xf(spread(G)))
        self.stamp("C_t4")
        q5 = min(q, len(FQ) - 8)
        G = weave(P[5], FQ[:q5], 0, 32)
        FQ = FQ[q5:]
        G[o.get('l1', 14)] += pollld(0)
        G[1] += bar(f"buffer_load_dwordx4 v[24:27], {L16}, {WS}, {cHR} offen sc1")
        G[3] += bar(f"buffer_load_dwordx4 v[28:31], {L16}, {WS}, {cHR} offen offset:1024 sc1")
        G = weave(G, EP[4], 2, ee)
        p.extend(self.xf(spread(G)))
        self.stamp("C_t5")
        G = P[6]
        c1 = o.get('c1', 1)
        n6 = min(o.get('n6', 0), len(FQ))
        if n6:
            G = weave(G, FQ[:n6], 0, max(c1, 1))
            FQ = FQ[n6:]
        G[c1] += pollchk(0)
        hq = [x for i in range(LA) for x in hhload(i)]
        G = weave(G, hq, c1 + 1, 33)
        S = Seq()
        if d16:
            for i in (24, 25, 28, 29):
                S(f"v_permlane16_swap_b32 v{i}, v{i+2}")
        for i in range(8):
            S(f"v_lshlrev_b32 v{48+2*i}, 16, v{24+i}\nv_and_b32 v{49+2*i}, {sMSKHI}, v{24+i}")
        for k in range(4):
            S(f"""s_xor_b32 {sT1}, {sW}, {k}
                 s_mul_i32 {sT1}, {sT1}, 12288
                 v_add_u32 v{36+k}, {sT1}, {L16}""")
        G = weave(G, list(S), ee + 1, 33)
        G = weave(G, EP[5], 2, ee)
        G[o.get('p2at', 12)] += pub("hh4", 1)
        p.extend(self.xf(spread(G)))
        self.stamp("C_t6")

        DA = [48, 64, 96, 112]

        def w2r(i, a):
            return (128, 168, 128)[(i - 16) // 4] + 8 * (i % 4) + 4 * a

        def w2read(i):
            part, k = divmod(i - 16, 4)
            r = bar(f"WAITTAG W2L{part}") if k == 0 else []
            for a in range(2):
                ad = ((WLA, WLB), (WLA, WLB), (WLC, WLD))[part][k & 1 if d16 else a]
                r.append(Inst(f"ds_read_b128 {v(w2r(i, a), 4)}, {ad} offset:{(part&1)*32768 + ((k&2)*2048 + a*256 if d16 else k*2048)}"))
            return r

        def w2f(i, a):
            return a_(128 + 8 * i + 4 * a, 4) if i < 16 else v(w2r(i, a), 4)

        def dm(i, k):
            a, b = k & 1, k >> 1
            if d16:
                j, ch = i & ~1, i & 1
                r = [mf16(DA[k] + 8 * ch + 4 * th, w2f(j + a, ch), a_(8 * ((j + b) & 15) + 4 * th, 4), "0" if j == 0 and k else None)
                     for th in (ch, 1 - ch)]
                r[1].tag = "second"
                return r
            return [mf32(DA[k], w2f(i, a), a_(8 * (i & 15) + 4 * b, 4), "0" if i == 0 and k else None)]
        nl = o.get('nl', 4)
        if d16:
            assert nl % 2 == 0
            G = [dm(j + ch, k) for j in range(0, 28 - nl, 2) for k in (0, 1, 3, 2) for ch in range(2)]
        else:
            G = [dm(i, k) for i in range(28 - nl) for k in (1, 3, 2, 0)]
        G += [dm(i, k) for k in (1, 3, 2, 0) for i in range(28 - nl, 28)]
        for i in range(16, 28):
            G[min(4 * i - 7 - 2 * d16 * (i & 1), 4 * (28 - nl) - 8 + (i - (28 - nl)))] += w2read(i)
        c2, c3, c4 = o.get('c2', 22), o.get('c3', 54), o.get('c4', 76)
        l2, l3, l4 = o.get('l2', 6), o.get('l3', 37), o.get('l4', 62)
        G[l2] += pollld(1)
        G = weave(G, EP[6], 1, o.get('e6', 11))
        G[o.get('p3at', 12)] += pub("hh5", 2)
        G[l3] += pollld(2)
        G[o.get('p4at', 38)] += pub("hh6", 3)
        G[o.get('dbar', 40)] += bar("s_barrier")
        hs = lambda a, b: [x for i in range(a, b) for x in hhload(i)]
        G = weave(G, hs(LA, 12), 0, c2)
        G[c2] += pollchk(1)
        nf = max(0, len(FQ) - o.get('nf', 8))
        G = weave(G, hs(12, 16) + FQ[:nf] + hs(16, 20), c2 + 1, c3)
        G[c3] += pollchk(2)
        G = weave(G, hs(20, 24), c3 + 1, l4)
        G[l4] += pollld(3)
        G = weave(G, FQ[nf:], l4 + 1, c4)
        G[c4] += pollchk(3)
        G = weave(G, hs(24, 28), c4 + 1, c4 + o.get('h4', 9))
        WRT = [[Inst(f"ds_write_b128 v{36+k}, {v(DA[k]+4*q_,4)} offset:{(k-1)*4096+q_*1024}") for q_ in range(4)] for k in (1, 3, 2)]
        if nl >= 2:
            for n in range(3):
                G = weave(G, WRT[n], 112 - (3 - n) * nl + 1, 112 - (2 - n) * nl + (1 if n < 2 else 0))
        else:
            G[111] += flat(WRT)
        for k in sorted(set(list(range(8, 112, 8)) + [c2 - 1, c2, c3 - 1, c3, c4 - 1, c4])):
            G[k] += sub(lambda: self.stamp(f"d{k}"))
        p.extend(self.xf(spread(G)))
        self.stamp("D_loop")
        p("WAITALL lgkm\ns_barrier")
        for q_ in range(4):
            for k in range(3):
                p(f"ds_read_b128 {v(160+16*k+4*q_,4)}, v36 offset:{k*4096+q_*1024}")
        for q_ in range(4):
            for j in range(2):
                r = 4 * q_ + 2 * j
                p(f"v_pk_add_f32 {v(48+r,2)}, {v(48+r,2)}, {v(160+r,2)}")
                p(f"v_pk_add_f32 {v(176+r,2)}, {v(176+r,2)}, {v(192+r,2)}")
            for j in range(2):
                r = 4 * q_ + 2 * j
                p(f"v_pk_add_f32 {v(48+r,2)}, {v(48+r,2)}, {v(176+r,2)}")
            for j in range(2):
                p(f"v_cvt_pk_bf16_f32 v{112+2*q_+j}, v{48+4*q_+2*j}, v{48+4*q_+2*j+1}")
            if q_ & 1 and d16:
                p(f"v_permlane16_swap_b32 v{110+2*q_}, v{112+2*q_}\nv_permlane16_swap_b32 v{111+2*q_}, v{113+2*q_}")
            if q_ & 1:
                p(f"buffer_store_dwordx4 {v(112+4*(q_>>1),4)}, {ROWA}, {OUT}, {cOUT} offen offset:{32*(q_>>1)}" + ["", " sc1", " nt", " sc0 sc1"][o.get('outst', 0)])
        self.stamp("D_end")

    def finish(self):
        p = self.p
        if self.o.get('stamps'):
            p("WAITALL vm")
            self.stamp("D_drained")
            p(f"""s_lshl_b32 {sT0}, s2, 2
                 s_add_u32 {sT0}, {sT0}, {sW}
                 s_lshl_b32 {sT0}, {sT0}, 7
                 s_add_u32 {sT0}, {sT0}, {hex(STAMP)}
                 s_mov_b32 exec_hi, 0
                 buffer_store_dword v{STV}, {L4}, {WS}, {sT0} offen""")
        if self.o.get('padto'):
            p("WAITALL vm")
            if self.o.get('seg0'):
                p(f"s_lshl_b32 s72, s2, 2\ns_add_u32 s72, s72, {sW}\ns_cmp_lg_u32 s72, 150\ns_cbranch_scc1 L_end")
            p("L_pad:\ns_memrealtime s[72:73]\ns_waitcnt lgkmcnt(0)\ns_sub_u32 s72, s72, s100")
            p(f"s_cmp_lt_i32 s72, {self.o['padto']}\ns_cbranch_scc1 L_pad")
        p("L_end:\ns_endpgm")

    def build(self):
        if self.o.get('stamps') or self.o.get('padto'):
            self.p("s_memtime s[100:101]" if self.o.get('stamps') == 2 else "s_memrealtime s[100:101]")
        self.setup()
        if self.o.get('stamps'):
            self.p(f"v_mov_b32 v{STV}, s100")
            self.nstamp = 1
            self.stamp_names.append("start")
        self.p.extend(self.xf(self.sub(self.phaseA), 'xa'))
        self.p.extend(self.xf(self.sub(self.phaseB), 'xb'))
        self.phaseCD()
        self.finish()
        sk = str(self.o.get('skel', ''))
        if sk:
            Q = Seq()
            for i in self.p:
                if 'm' in sk and i.kind == 'mfma':
                    r = sorted(i.srcab)
                    for x in (r[0], r[-1]):
                        Q(f"v_accvgpr_read_b32 v40, {x}" if x[0] == 'a' else f"v_mov_b32 v40, {x}")
                    continue
                if 'e' in sk and i.kind in ('valu', 'trans') and not i.cond and i.op.endswith(('f32', 'f32_e64')):
                    continue
                if 'v' in sk and i.kind in ('vload', 'dma') and not i.cond and 'dwordx4' in i.op:
                    continue
                if 's' in sk and i.kind == 'vstore' and not i.cond and (i.wide or 'f32' in i.op) and 'v[176:179]' not in i.text:
                    continue
                Q.append(i)
            self.p = Q
        ns = str(self.o.get('nosc', ''))
        for i in self.p:
            if i.kind in ('vload', 'dma') and 'dwordx' in i.op and not i.cond:
                for ch, regs in (('k', (sKVL, bK2, sZL)), ('q', (sPQL, bQ2)), ('h', (cHB,)), ('t', (sT0, sKC)), ('d', (sCc,))):
                    if ch in ns and any(f"{WS}, {r} " in i.text for r in regs):
                        i.text = i.text.replace(" sc1", "")
        import dsl
        dsl.MERGE = self.o.get('mg', 1)
        return finalize(self.p, self.o.get('fill', 1))


def emit(opt):
    g = Gen(opt)
    prog = g.build()
    hdr = open(os.path.join(os.path.dirname(os.path.abspath(__file__)), "header.txt")).read()
    body = "\n".join(("" if i.kind == 'label' else "    ") + i.text for i in prog)
    txt = hdr + f"""; @launch grid=(256,1,1) block=(256,1,1) lds=163840
.amdgcn_target "amdgcn-amd-amdhsa--gfx950"
.set CODE_PF_MAX, {opt.get('code_bytes', 0)}
.text
.globl {NAME}_kernel
.p2align 8
.type {NAME}_kernel,@function
{NAME}_kernel:
{body}
.section .rodata,"a"
.p2align 6
.amdhsa_kernel {NAME}_kernel
  .amdhsa_next_free_vgpr 512
  .amdhsa_next_free_sgpr 102
  .amdhsa_accum_offset 256
  .amdhsa_group_segment_fixed_size 0
  .amdhsa_kernarg_size 80
  .amdhsa_user_sgpr_count 2
  .amdhsa_user_sgpr_kernarg_segment_ptr 1
  .amdhsa_system_sgpr_workgroup_id_x 1
.end_amdhsa_kernel
"""
    return txt, g.stamp_names


def code_size(txt):
    import subprocess, tempfile
    with tempfile.TemporaryDirectory() as d:
        open(d + "/k.s", "w").write(txt)
        r = subprocess.run(["clang", "-x", "assembler", "-target", "amdgcn-amd-amdhsa",
                            "-mcpu=gfx950", "-c", d + "/k.s", "-o", d + "/k.o"], capture_output=True, text=True)
        if r.returncode:
            print("\n".join(r.stderr.split("\n")[:30]))
            raise SystemExit(1)
        r = subprocess.run(["llvm-objdump", "-h", d + "/k.o"], capture_output=True, text=True)
        for line in r.stdout.split("\n"):
            f = line.split()
            if len(f) > 2 and f[1] == ".text":
                return int(f[2], 16)


def main():
    opt = {}
    out = None
    for a in sys.argv[1:]:
        if '=' in a:
            k, val = a.split('=')
            try:
                opt[k] = int(val, 0)
            except ValueError:
                opt[k] = val
        else:
            out = a
    opt['code_bytes'] = 4096
    txt, names = emit(opt)
    sz = code_size(txt)
    opt['code_bytes'] = (sz - 1024) & ~3
    txt, names = emit(opt)
    open(out, "w").write(txt)
    if names:
        open(out + ".names", "w").write(" ".join(names))
    print(out, "code bytes", sz, "lines", txt.count("\n"), "stamps", len(names))


if __name__ == "__main__":
    main()
```

```python
import sys, os
sys.path.insert(0, os.path.dirname(os.path.abspath(__file__)))
from dsl import *

NAME = "sequential_preLN__linear_attn_block__glu_gated_swiglu__prompt"

CNT = 0x20000
KVM = 0x10000
ST = 0x18000
CS = 0x1C000
ZP = 0x1F800
STAMP = 0xC0000
PQ = 0x400000
HB = 0x800000
HH = 0x1000000
W13R = 0x2000000
W2R = 0x2800000
PROBE = 0x100000
WS_SIZE = 0x2C00000
OOB = 0x7f000000

X, WQKV, WO, W1, W3, W2, OUT, WS, DBG = [f"s[{a}:{a+3}]" for a in range(4, 40, 4)]
(sW, sG, sM, sC0, sT0, sT1, sT2, sT3, sXB, sWB, sXL, sWL, sTB, sCB, sRQ, sLOG2E,
 sU, sKC, sT4, sT5, sMSKHI, sEPS6) = [f"s{i}" for i in range(40, 62)]
sHILANES = "s[62:63]"
sB4LANES = "s[64:65]"
sA, sB, sCc, sD = "s66", "s67", "s68", "s69"
sKVA, sZA, sPQS, sRW, sR2, sRC, sKVL, sZL, sPQL, sSIG, sHST, sSTA = [f"s{i}" for i in range(84, 96)]
sMA, sTA, sHS = "s3", "s74", "s83"
sP1, sPE, sP2, sTBL = "s96", "s97", "s98", "s99"
STV = 0

VB, KB, XCH, RST, KVS, ZS = 0x10000, 0x18000, 0x20000, 0x22000, 0, 0x21000

L16, L4 = "v2", "v3"
TRK, TRP = 152, 156
XCW, XCR, KVW, ZW, STW, KVR, ZR, ZAT, STR = [f"v{i}" for i in range(212, 221)]
WOD, WOT, OAD = 221, 225, 229
ROWA, ZBW, ZBR, P256 = "v233", "v234", "v235", "v236"
RL1, RL3, RL2, RT13, RT2A, RT2B, CSAT, P4K, FA1, LM8, PA2 = [f"v{i}" for i in range(237, 248)]
RCS = 248


def v(a, n=1):
    return f"v{a}" if n == 1 else f"v[{a}:{a+n-1}]"


def a_(a, n=1):
    return f"a{a}" if n == 1 else f"a[{a}:{a+n-1}]"


def mf32(d, A, B, c=None):
    return Inst(f"v_mfma_f32_32x32x16_bf16 {v(d,16)}, {A}, {B}, {v(d,16) if c is None else c}")


def mf16(d, A, B, c=None):
    return Inst(f"v_mfma_f32_16x16x32_bf16 {v(d,4)}, {A}, {B}, {v(d,4) if c is None else c}")


def mf4(d, A, B, c=None):
    return Inst(f"v_mfma_f32_4x4x4_16b_bf16 {v(d,4)}, {A}, {B}, {v(d,4) if c is None else c}")


def trpair(dst, addr, off, step):
    k, b = dst
    return [Inst(f"ds_read_b64_tr_b16 {k}[{b}:{b+1}], {addr} offset:{off}"),
            Inst(f"ds_read_b64_tr_b16 {k}[{b+2}:{b+3}], {addr} offset:{off+step}")]


def par13(t):
    return (t >> 1) & 1


def par2(pr, t):
    return (pr >> 1) if t < 3 else (t & 1) ^ 1


def split2(dst, src, t):
    return Seq()(f"""v_cvt_pk_bf16_f32 v{t}, v{src}, v{src}
         v_lshlrev_b32 v{t}, 16, v{t}
         v_sub_f32 v{t}, v{src}, v{t}
         v_cvt_pk_bf16_f32 v{dst}, v{src}, v{t}""")


cHB, cST, cHS, cHR, cCS, cW2, cHL, cOUT, cHS2 = [f"s{i}" for i in range(75, 84)]
cPP, cPQ, cPS, cPL, bTA, bTL, bK2, bQ2, bGP, bRP, bTX, cW2x, sGC, sMC = [f"s{i}" for i in (4, 5, 6, 7, 16, 17, 18, 19, 20, 21, 22, 23, 24, 25)]
W2A, W2B, LB1, LB2, WLA, WLB, WLC, WLD = [f"v{i}" for i in range(6, 14)]
CSL, HHA, HHB, HPA, LB0 = "v14", "v15", "v42", "v43", "v212"


class Gen:
    def __init__(self, opt):
        self.o = opt
        self.p = Seq()
        self.nl = 0
        self.nstamp = 0
        self.stamp_names = []

    def lab(self, s):
        self.nl += 1
        return f"L_{s}_{self.nl}"

    def stamp(self, name):
        if self.o.get('padat') == name:
            self.p("WAITALL lgkm\ns_memrealtime s[100:101]\nWAITALL lgkm")
        if self.o.get('seg0') == name:
            self.p("WAITALL lgkm\ns_memrealtime s[72:73]\nWAITALL lgkm\ns_mov_b32 s101, s72")
        if self.o.get('seg1') == name:
            self.p("WAITALL lgkm\ns_memrealtime s[72:73]\nWAITALL lgkm\ns_sub_u32 s101, s72, s101\ns_lshl_b32 s101, s101, 4\ns_add_u32 s100, s100, s101")
        if self.o.get('stamps', 3) == 3:
            return
        fine = str(self.o.get('fine', ''))
        if name[0].islower() and name[0] not in fine:
            return
        if fine and name[0].isupper() and name[0].lower() not in fine and name not in ('C_t6', 'B_sync1', 'C_sync2', 'D_drained', 'A_loop', 'A_v', 'A_q'):
            return
        p = self.p
        if self.o.get('nb'):
            if self.nstamp > 1:
                p(f"v_writelane_b32 v{STV}, s72, {self.nstamp-1}", cond=True)
            p("s_memrealtime s[72:73]" if self.o['stamps'] == 1 else "s_memtime s[72:73]", cond=True)
            if name == 'D_drained':
                p(f"s_waitcnt lgkmcnt(0)\nv_writelane_b32 v{STV}, s72, {self.nstamp}", cond=True)
            self.nstamp += 1
            self.stamp_names.append(name)
            return
        p("WAITALL lgkm")
        p("s_memrealtime s[72:73]" if self.o['stamps'] == 1 else "s_memtime s[72:73]")
        p("WAITALL lgkm")
        p(f"v_writelane_b32 v{STV}, s72, {self.nstamp}")
        self.nstamp += 1
        self.stamp_names.append(name)

    def sub(self, fn):
        save = self.p
        self.p = Seq()
        fn()
        r = list(self.p)
        self.p = save
        return r

    def xf(self, L, key='x'):
        x = self.o.get(key, '')
        out = []
        for i in L:
            if 'v' in x and i.kind in ('vload', 'dma') and not i.cond and 'dwordx4' in i.op:
                continue
            if 'e' in x and i.kind in ('valu', 'trans') and not i.cond and i.op.endswith(('f32', 'f32_e64')):
                continue
            if 'l' in x and i.kind == 'dsr':
                continue
            if 's' in x and i.kind == 'vstore' and 'store' in i.op and not i.cond:
                continue
            if 'b' in x and i.op == 's_barrier':
                continue
            if 'm' in x and i.kind == 'mfma' and i.passes < 8:
                continue
            out.append(i)
        return out

    def ool(self, branch, text):
        p = self.p
        L, R = self.lab("o"), self.lab("r")
        p(f"{branch} {L}")
        n = len(p)
        p(f"{L}:\n{text}\ns_branch {R}", cond=True)
        for i in p[n:]:
            i.ool = L
        p(f"{R}:")

    def spin(self, vt, vaddr, soff, mask, target, srd=WS, mode='wave0', sleep=0, field=None, wave=0):
        p = self.p
        Lp = self.lab("pl")
        addr = f"{vaddr}, {srd}, {soff} offen" if vaddr else f"off, {srd}, {soff}"
        ext = f"v_and_b32 v43, {field}, {vt}\n" if field is not None else ""
        vc = "v43" if field is not None else vt
        loop = f"""s_mov_b32 {sT5}, 0
             s_mov_b64 exec, {mask}
             {Lp}:
             {f's_sleep {sleep}' if sleep else ''}
             buffer_load_dword {vt}, {addr} sc1
             s_add_u32 {sT5}, {sT5}, 1
             s_waitcnt vmcnt(0)
             {ext}v_cmp_gt_u32 vcc, {target}, {vc}
             s_cmp_ge_u32 {sT5}, 0x8000
             s_cselect_b64 vcc, 0, vcc
             s_and_b64 exec, exec, vcc
             s_cbranch_scc1 {Lp}
             s_mov_b64 exec, -1"""
        if self.o.get('stamps') == 3:
            p(f"s_mov_b32 {sT5}, 0")
        if mode == 'check':
            p(f"{ext}v_cmp_gt_u32 vcc, {target}, {vc}\ns_and_b64 vcc, vcc, {mask}")
            self.ool("s_cbranch_scc1", loop)
        elif mode == 'wave0':
            Ld = self.lab("pd")
            p(f"s_cmp_lg_u32 {sW}, {wave}\ns_cbranch_scc1 {Ld}")
            p(loop, cond=True)
            p(f"{Ld}:")
        else:
            p(loop, cond=True)
            p("s_waitcnt vmcnt(0)")
        if self.o.get('stamps') == 3:
            p(f"v_writelane_b32 v{STV}, {sT5}, {self.nstamp}")
            self.nstamp += 1
            self.stamp_names.append(f"spin{self.nstamp}")

    def setup(self):
        p = self.p
        p(f"""s_cmp_ge_u32 s2, 256
             s_cbranch_scc1 L_end
             s_load_dwordx16 s[76:91], s[0:1], 0
             s_load_dwordx4 s[92:95], s[0:1], 64""")
        p("v_and_b32 v1, 63, v0\nv_lshrrev_b32 v4, 6, v0")
        p(f"v_readfirstlane_b32 {sW}, v4")
        p(f"""s_mov_b32 s6, 0x200000
             s_mov_b32 s7, 0x20000
             s_mov_b32 s10, 0x180000
             s_mov_b32 s11, 0x20000
             s_lshr_b32 {sU}, s2, 3
             s_and_b32 {sKC}, s2, 7
             s_and_b32 {sRQ}, {sU}, 3
             s_and_b32 {sG}, s2, 6
             s_lshl_b32 {sG}, {sG}, 1
             s_add_u32 {sG}, {sG}, {sRQ}
             s_lshr_b32 {sT1}, s2, 5
             s_and_b32 {sT2}, s2, 1
             s_lshl_b32 {sTA}, {sG}, 1
             s_add_u32 {sTA}, {sTA}, {sT2}
             s_lshl_b32 {sXL}, {sW}, 14
             s_lshl_b32 {sXB}, {sTA}, 16
             s_add_u32 {sXB}, {sXB}, {sXL}
             s_xor_b32 {sMA}, {sT1}, 4
             s_mul_i32 {sWB}, {sW}, {16*3072}
             s_lshl_b32 {sT0}, {sMA}, 7
             s_add_u32 {sWB}, {sWB}, {sT0}
             s_lshl_b32 {sWL}, {sW}, 11
             s_add_u32 {sC0}, {sT1}, {sKC}""")
        rot = self.o.get('rot', 6)
        if rot == 7:
            p(f"s_lshl_b32 {sT0}, {sU}, 2\ns_add_u32 {sC0}, {sC0}, {sT0}")
        if rot == 8:
            p(f"s_lshl_b32 {sT0}, {sRQ}, 1\ns_add_u32 {sC0}, {sC0}, {sT0}")
        if rot == 0:
            p(f"s_mov_b32 {sC0}, 0")
        if rot == 1:
            p(f"s_mov_b32 {sC0}, {sKC}")
        if rot == 9:
            p(f"s_lshl_b32 {sC0}, {sT1}, 1\ns_add_u32 {sC0}, {sC0}, {sKC}")
        p(f"""v_lshrrev_b32 v4, 3, v1
             v_and_b32 v5, 7, v1
             v_lshrrev_b32 v3, 4, v1
             v_xor_b32 v6, v5, v3
             v_lshlrev_b32 v6, 4, v6
             v_lshl_add_u32 v6, v4, 10, v6
             v_xor_b32 v7, 64, v6
             v_add_u32 v7, 7168, v7
             v_and_b32 v3, 1, v3
             v_lshlrev_b32 v3, 2, v3
             v_xor_b32 v5, v5, v3
             v_lshlrev_b32 v5, 4, v5
             v_mul_u32_u24 v8, 3072, v4
             v_add_u32 v8, v8, v5
             v_add_u32 v9, {8*3072-1024}, v8""")
        p("WAITALL lgkm")
        p("s_mov_b64 s[4:5], s[76:77]\ns_mov_b64 s[8:9], s[78:79]")

    def dmaW(self, t, c):
        base, po = ((KB, 1024), (VB, 2048), (0, 0))[t]
        tag = f"{'AVQ'[t]}{c}"
        S = Seq()
        S(f"s_add_u32 m0, {sWL}, {base + c*8192 - po}")
        S(f"buffer_load_dwordx4 v8, {WQKV}, s{75+c} offen offset:{po} lds", tag=tag)
        return ctx([list(S), [Inst(f"buffer_load_dwordx4 v9, {WQKV}, s{75+c} offen offset:{po+1024} lds", tag=tag)]])

    def dmaA(self, c):
        wc = f"s{75+c}"
        g = self.dmaW(0, c)
        g[0] = list(Seq()(f"""s_add_u32 {sT0}, {sC0}, {c}
             s_and_b32 {sT0}, {sT0}, 7
             s_mul_i32 {wc}, {sT0}, {64*3072}
             s_add_u32 {wc}, {wc}, {sWB}
             s_lshl_b32 {sT0}, {sT0}, 7""")) + g[0]
        nt = " nt" if self.o.get('xnt', 0) else ""
        S = Seq()
        S(f"s_add_u32 m0, {sWL}, {c*8192}\ns_add_u32 {sT0}, {sT0}, {sXB}")
        S(f"buffer_load_dwordx4 v6, {X}, {sT0} offen{nt} lds", tag=f"A{c}")
        g += [list(S), [Inst(f"buffer_load_dwordx4 v7, {X}, {sT0} offen offset:1024{nt} lds", tag=f"A{c}")]]
        return ctx(g)

    def dmaWO(self, q):
        S = Seq()
        S(f"""s_add_u32 {sT0}, {sA}, {q*65536}
             s_add_u32 m0, {sB}, {q*16384}
             s_and_b32 {sT0}, {sT0}, 0x7ffff""")
        g = []
        for k in range(4):
            S(f"buffer_load_dwordx4 v{WOD+k}, {WO}, {sT0} offen offset:{k*1024} lds", tag=f"WO{q>>2}")
            g.append(list(S))
            S = Seq()
        return ctx(g)

    def rload(self):
        nt = " nt" if self.o.get('rnt', 1) else ""
        g = []
        for k, (ad, srd, s0, s1) in enumerate(((RL1, W1, sKVL, sZL), (RL3, W3, sKVL, sZL), (RL2, W2, sPQL, sHST))):
            g.append(list(Seq()(f"s_add_u32 m0, {sSTA}, {k*2048}\nbuffer_load_dwordx4 {ad}, {srd}, {s0} offen{nt} lds")))
            g.append(list(Seq()(f"buffer_load_dwordx4 {ad}, {srd}, {s1} offen offset:1024{nt} lds", tag=f"RL{k}")))
            ctx(g[-2:])
        return g[4:] + g[:4]

    def miscA(self):
        M = Seq()
        a, b, c, d = "v208", "v209", "v210", "v211"
        M(f"""v_lshl_add_u32 {RL2}, v4, 10, v5
             v_mul_u32_u24 v4, 3584, v4
             v_add_u32 {RL1}, v4, v5
             v_xor_b32 {RL3}, 32, {RL1}
             v_mov_b32 v4, 1
             v_lshlrev_b32 {L4}, 2, v1
             s_mov_b32 {sLOG2E}, 0x3fb8aa3b
             s_mov_b32 {sMSKHI}, 0xffff0000
             s_mov_b32 {sEPS6}, 0x358637bd
             s_mov_b32 s62, 0
             s_mov_b32 s63, -1
             s_mov_b32 s64, 0xffff0000
             s_mov_b32 s65, 0xffff0000
             s_mov_b32 s96, 0x22222222
             s_mov_b32 s97, 0x22222222
             s_mov_b32 s98, 0x44444444
             s_mov_b32 s99, 0x44444444
             s_mov_b32 s70, 0x88888888
             s_mov_b32 s71, 0x88888888
             s_and_b32 {sM}, s2, 1
             s_lshl_b32 {sM}, {sM}, 3
             s_lshr_b32 {sT1}, s2, 5
             s_add_u32 {sM}, {sM}, {sT1}
             s_and_b32 {sCB}, {sM}, 3
             s_and_b32 {sT1}, {sW}, 1
             s_lshr_b32 {sT2}, {sW}, 1
             s_lshl_b32 {sMA}, {sMA}, 1
             s_add_u32 {sMA}, {sMA}, {sT2}
             s_lshl_b32 {sTA}, {sTA}, 1
             s_add_u32 {sTA}, {sTA}, {sT1}""")
        M(f"""v_and_b32 {a}, 31, v1
             v_lshrrev_b32 {b}, 5, v1
             v_bfe_u32 {c}, v1, 1, 3
             v_xor_b32 {c}, {b}, {c}
             v_lshlrev_b32 {c}, 4, {c}
             v_lshl_add_u32 {c}, {a}, 7, {c}
             s_lshl_b32 {sT3}, {sT1}, 12
             s_lshl_b32 {sT4}, {sW}, 5
             s_add_u32 {sT3}, {sT3}, {sT4}
             v_xor_b32 v10, {sT3}, {c}
             v_xor_b32 v11, 32, v10
             v_xor_b32 v12, 64, v10
             v_xor_b32 v13, 96, v10
             s_lshl_b32 {sT3}, {sCB}, 1
             s_add_u32 {sT3}, {sT3}, {sT2}
             s_sub_u32 {sT3}, {sT3}, {sC0}
             s_and_b32 {sT3}, {sT3}, 7
             s_lshl_b32 {sT3}, {sT3}, 1
             s_lshr_b32 {sT4}, s2, 7
             s_add_u32 {sT3}, {sT3}, {sT4}
             s_lshl_b32 {sT3}, {sT3}, 6
             s_add_u32 {sT3}, {sT3}, {sT1}
             s_lshl_b32 {sT3}, {sT3}, 6
             v_xor_b32 v14, {sT3}, {c}
             v_xor_b32 v15, 32, v14""")
        M(f"""s_lshl_b32 {sT3}, {sT2}, 8
             s_add_u32 {sT3}, {sT3}, {hex(XCH)}
             v_lshl_add_u32 {XCR}, {a}, 3, {sT3}
             s_lshl_b32 {sT3}, {sT1}, 2
             v_add_u32 {XCW}, {sT3}, {XCR}
             s_lshl_b32 {sT3}, {sW}, 9
             s_add_u32 {sT3}, {sT3}, {hex(XCH+2048)}
             v_lshl_add_u32 {STW}, v1, 3, {sT3}
             v_xor_b32 {STR}, 1024, {STW}
             v_lshlrev_b32 {KVW}, 4, {a}
             v_lshl_add_u32 {KVW}, {b}, 10, {KVW}
             s_add_u32 {sT3}, {sWL}, {hex(KVS)}
             v_add_u32 {KVW}, {sT3}, {KVW}
             s_lshl_b32 {sT3}, {sW}, 7
             s_add_u32 {sT3}, {sT3}, {hex(ZS)}
             v_lshl_add_u32 {ZW}, {a}, 2, {sT3}
             s_lshl_b32 {sT3}, {sT2}, 2
             s_add_u32 {sT3}, {sT3}, {sT1}
             s_lshl_b32 {sT4}, {sT3}, 10
             s_add_u32 {sT4}, {sT4}, {hex(KVS)}
             v_add_u32 {KVR}, {sT4}, {L4}
             s_lshl_b32 {sT4}, {sT3}, 6
             s_add_u32 {sT4}, {sT4}, {hex(ZS)}
             v_and_b32 {d}, 15, v1
             v_lshl_add_u32 {ZR}, {d}, 2, {sT4}
             v_lshrrev_b32 {d}, 4, v1
             v_lshl_add_u32 {ZAT}, {d}, 27, {L4}
             v_lshl_add_u32 {CSAT}, {b}, 27, {L4}
             v_lshrrev_b32 {LM8}, 3, v1
             v_lshlrev_b32 {LM8}, 27, {LM8}
             v_min_u32 {FA1}, 1, v1
             v_lshlrev_b32 {FA1}, 27, {FA1}
             s_lshl_b32 {sT3}, {sMA}, 1
             s_add_u32 {sT3}, {sT3}, {sT1}
             s_lshl_b32 {sKVA}, {sT3}, 10
             s_add_u32 {sKVA}, {sKVA}, {hex(KVM)}
             s_lshl_b32 {sZA}, {sT3}, 6
             s_add_u32 {sZA}, {sZA}, {hex(ZP)}
             s_lshl_b32 {sPQS}, {sTA}, 2
             s_lshr_b32 {sT3}, {sMA}, 2
             s_add_u32 {sPQS}, {sPQS}, {sT3}
             s_lshl_b32 {sPQS}, {sPQS}, 3
             s_and_b32 {sT3}, {sMA}, 3
             s_add_u32 {sPQS}, {sPQS}, {sT3}
             s_lshl_b32 {sPQS}, {sPQS}, 11
             s_add_u32 {sPQS}, {sPQS}, {hex(PQ)}
             s_lshl_b32 {sHS}, {sG}, 2
             s_add_u32 {sHS}, {sHS}, {sW}
             s_lshl_b32 {sHS}, {sHS}, 4
             s_add_u32 {sHS}, {sHS}, {sM}
             s_lshl_b32 {sHS}, {sHS}, 14
             s_add_u32 {sHS}, {sHS}, {hex(HH+4096)}""")
        M(f"""v_bfe_u32 {c}, v1, 2, 2
             v_lshlrev_b32 {a}, 10, {b}
             v_lshl_add_u32 {a}, {c}, 7, {a}
             v_bfe_u32 {c}, v1, 4, 1
             v_bfe_u32 {d}, v1, 3, 1
             v_lshl_add_u32 {d}, {d}, 1, {c}
             v_lshl_add_u32 {a}, {d}, 5, {a}
             v_and_b32 {d}, 1, v1
             v_lshl_add_u32 {RT2A}, {d}, 4, {a}
             v_bfe_u32 {d}, v1, 1, 1
             v_lshl_add_u32 {RT2A}, {d}, 3, {RT2A}
             v_and_b32 {d}, 3, v1
             v_lshl_add_u32 {a}, {d}, 3, {a}
             s_lshl_b32 {sT3}, {sT2}, 6
             s_add_u32 {sT3}, {sT3}, {sWL}
             s_add_u32 {sT4}, {sT3}, {hex(KB)}
             v_xor_b32 v{TRK}, {sT4}, {a}
             s_add_u32 {sT4}, {sT3}, {hex(VB)}
             v_xor_b32 v{TRP}, {sT4}, {RT2A}""")
        for j in range(1, 4):
            M(f"v_xor_b32 v{TRK+j}, {j*2048}, v{TRK}\nv_xor_b32 v{TRP+j}, {j*2048}, v{TRP}")
        M(f"""s_lshl_b32 {sT3}, {sW}, 5
             s_add_u32 {sT3}, {sT3}, {hex(RST)}
             v_xor_b32 {RT13}, {sT3}, {a if self.o.get('c16', 1) else RT2A}
             v_lshl_add_u32 {RT13}, {c}, 11, {RT13}
             s_mul_i32 {sSTA}, {sW}, 6144
             s_add_u32 {sSTA}, {sSTA}, {hex(RST)}
             v_add_u32 {RT2A}, {sSTA}, {a if self.o.get('d16', 1) else RT2A}
             v_xor_b32 {RT2B}, 64, {RT2A}""")
        M(f"""v_lshrrev_b32 {a}, 2, v1
             v_xor_b32 {a}, {a}, {c}
             v_and_b32 {a}, 1, {a}
             v_or_b32 {a}, {a}, {d}
             v_cmp_eq_u32 vcc, 0, {a}
             v_mov_b32 v20, 0x3f803f80
             v_mov_b32 v21, 0x3f803f80
             v_mov_b32 v22, 0x3f803f80
             v_mov_b32 v23, 0x3f803f80
             v_cndmask_b32 v16, 0, v20, vcc
             v_cndmask_b32 v17, 0, v20, vcc
             v_cndmask_b32 v18, 0, v20, vcc
             v_cndmask_b32 v19, 0, v20, vcc""")
        for r in (162, 163, 166, 167, 170, 171, 174, 175, 177, 178, 179):
            M(f"v_mov_b32 v{r}, 0")
        M(f"""v_lshrrev_b32 {a}, 4, v1
             v_bfe_u32 {c}, v1, 2, 2
             v_xor_b32 {c}, {c}, {a}
             v_lshlrev_b32 {c}, 6, {c}
             v_lshl_add_u32 {c}, {a}, 10, {c}
             v_lshl_add_u32 v{WOD}, {d}, 4, {c}
             v_add_u32 v{WOD+1}, 3072, v{WOD}
             v_add_u32 v{WOD+2}, 6144, v{WOD}
             v_add_u32 v{WOD+3}, 9216, v{WOD}
             s_lshl_b32 {sA}, {sRQ}, 17
             s_add_u32 {sA}, {sA}, {sXL}
             s_lshl_b32 {sT3}, {sCB}, 8
             s_add_u32 {sA}, {sA}, {sT3}""")
        M(f"""s_lshl_b32 {sT3}, {sKC}, 2
             s_add_u32 {sT3}, {sT3}, {sW}
             s_mul_i32 {sKVL}, {sT3}, {16*3584}
             s_lshl_b32 {sT3}, {sU}, 7
             s_add_u32 {sKVL}, {sKVL}, {sT3}
             s_lshl_b32 {sT2}, {sU}, 2
             s_add_u32 {sT2}, {sT2}, {sW}
             s_lshl_b32 {sPQL}, {sT2}, 14
             s_lshl_b32 {sT3}, {sKC}, 7
             s_add_u32 {sPQL}, {sPQL}, {sT3}
             s_add_u32 {sHST}, {sPQL}, 7168
             s_lshl_b32 {sRC}, {sT2}, 7
             s_add_u32 {sRC}, {sRC}, {hex(CS)}
             s_mul_i32 {sT3}, {sT2}, 9363
             s_lshr_b32 {sT3}, {sT3}, 16
             s_add_u32 {sT2}, {sT2}, {sT3}
             s_and_b32 {sT3}, {sKC}, 6
             s_add_u32 {sT3}, {sT3}, {sKC}
             s_lshl_b32 {sRW}, {sT2}, 4
             s_add_u32 {sRW}, {sRW}, {sT3}
             s_lshl_b32 {sRW}, {sRW}, 12
             s_add_u32 {sRW}, {sRW}, {hex(W13R)}
             s_andn2_b32 {sT3}, {sT2}, 3
             s_add_u32 {sT3}, {sT3}, {sT2}
             s_lshl_b32 {sR2}, {sKC}, 8
             s_add_u32 {sR2}, {sR2}, {sT3}
             s_lshl_b32 {sR2}, {sR2}, 11
             s_add_u32 {sR2}, {sR2}, {hex(W2R)}""")
        if self.o.get('grp', 1):
            m13 = sum((par13(t) ^ m) << (8 * m + t) for m in range(2) for t in range(8))
            m2 = sum(par2(pr, t) << (8 * pr + t) for pr in range(4) for t in range(8))
            M(f"""s_and_b32 {sT3}, {sT2}, 15
                 s_lshr_b32 {sT3}, {hex(m13)}, {sT3}
                 s_lshr_b32 {sT4}, {hex(m2)}, {sT2}
                 s_xor_b32 {sT4}, {sT4}, {sKC}""")
        else:
            M(f"s_lshr_b32 {sT3}, {sKC}, 1\ns_lshr_b32 {sT4}, {sT2}, 5")
        M(f"""s_and_b32 {sT3}, {sT3}, 1
             s_lshl_b32 {sT3}, {sT3}, 13
             s_add_u32 {sRW}, {sRW}, {sT3}
             s_and_b32 {sT4}, {sT4}, 1
             s_lshl_b32 {sT4}, {sT4}, 13
             s_add_u32 {sR2}, {sR2}, {sT4}
             s_cmp_ge_u32 s2, 224
             s_cselect_b32 {sRW}, {hex(OOB)}, {sRW}
             s_cselect_b32 {sR2}, {hex(OOB)}, {sR2}
             s_cselect_b32 {sRC}, {hex(OOB)}, {sRC}
             s_cselect_b32 {sKVL}, {hex(OOB)}, {sKVL}
             s_add_u32 {sZL}, {sKVL}, {8*3584-1024}
             s_and_b32 {sSIG}, {sU}, 15
             s_lshl_b32 {sSIG}, {sSIG}, 8
             s_add_u32 {sSIG}, {sSIG}, {hex(CNT)}
             s_cmp_eq_u32 {sW}, 0
             s_cselect_b32 {sSIG}, {sSIG}, {hex(OOB)}""")
        return M

    def miscB(self):
        M = Seq()
        a, b, c, d = "v208", "v209", "v210", "v211"
        M(f"""s_lshr_b32 {sTB}, {sM}, 2
             s_lshl_b32 {sT3}, {sG}, 2
             s_add_u32 {sTB}, {sTB}, {sT3}
             s_lshl_b32 {sT4}, {sRQ}, 1
             s_add_u32 {sT4}, {sT4}, {sW}
             s_and_b32 {sT4}, {sT4}, 7
             s_lshl_b32 {sKVL}, {sT4}, 12
             s_add_u32 {sKVL}, {sKVL}, {hex(KVM)}
             s_xor_b32 {bK2}, {sKVL}, 0x4000
             s_lshl_b32 {sT2}, {sTB}, 16
             s_and_b32 {sPQL}, {sT4}, 6
             s_add_u32 {sPQL}, {sPQL}, {sT4}
             s_lshl_b32 {sPQL}, {sPQL}, 12
             s_add_u32 {sPQL}, {sPQL}, {sT2}
             s_add_u32 {sPQL}, {sPQL}, {hex(PQ)}
             s_xor_b32 {sPQL}, {sPQL}, {sP1}
             s_xor_b32 {bQ2}, {sPQL}, 0x8000
             s_lshl_b32 {sT4}, {sT4}, 8
             s_mov_b32 {sZL}, {hex(ZP)}
             s_lshl_b32 {sHST}, {sCB}, 14
             s_add_u32 {sHST}, {sHST}, {sT2}
             s_add_u32 {sHST}, {sHST}, {sWL}
             s_add_u32 {sHST}, {sHST}, {hex(HB)}
             s_xor_b32 {sHST}, {sHST}, {sPE}
             s_lshl_b32 {sSTA}, {sTB}, 4
             s_add_u32 {sSTA}, {sSTA}, {sCB}
             s_lshl_b32 {sSTA}, {sSTA}, 14
             s_add_u32 {sSTA}, {sSTA}, {hex(HH+7168+768)}
             s_xor_b32 {sSTA}, {sSTA}, {sP2}
             s_lshl_b32 {sD}, {sTB}, 2
             s_add_u32 {sD}, {sD}, {sCB}
             s_lshl_b32 {sD}, {sD}, 16
             s_add_u32 {sD}, {sD}, {sXL}
             s_add_u32 {sD}, {sD}, {hex(HH+7168)}
             s_xor_b32 {sD}, {sD}, {sP2}
             v_lshrrev_b32 {b}, 5, v1
             v_and_b32 {a}, 31, v1
             v_lshlrev_b32 {ROWA}, 10, {a}
             v_lshl_add_u32 {ROWA}, {b}, 4, {ROWA}
             v_lshlrev_b32 v41, 3, {a}
             v_lshl_add_u32 v41, {b}, 10, v41
             v_xor_b32 v41, {sT4}, v41
             v_bfe_u32 {c}, v1, 2, 2
             v_and_b32 {a}, 1, v1
             v_lshlrev_b32 {a}, 4, {a}
             v_bfe_u32 {d}, v1, 1, 1
             v_lshl_add_u32 {a}, {d}, 3, {a}
             v_lshl_add_u32 {d}, {b}, 11, {a}
             v_lshl_add_u32 {d}, {c}, 8, {d}
             v_xor_b32 {c}, {sW}, {c}
             v_lshl_add_u32 {d}, {c}, 6, {d}
             v_bfe_u32 {c}, v1, 4, 1
             v_lshl_add_u32 {d}, {c}, 5, {d}""")
        for q in range(4):
            M(f"""s_xor_b32 {sT2}, {sW}, {q}
                 s_lshl_b32 {sT3}, {sT2}, 14
                 v_add_u32 v{WOT+q}, {sT3}, {d}
                 s_lshl_b32 {sT2}, {sT2}, 12
                 s_add_u32 {sT2}, {sT2}, 0x20000
                 v_add_u32 v{OAD+q}, {sT2}, {L16}""")
        M(f"""s_lshl_b32 {sT2}, {sW}, 12
             s_add_u32 {sT2}, {sT2}, {0x20000+16384+3072}
             v_add_u32 {ZBW}, {sT2}, {L4}
             v_xor_b32 {d}, 1, {c}
             v_lshlrev_b32 {d}, 5, {d}
             v_lshl_add_u32 {d}, {b}, 4, {d}
             v_add_u32 {ZBR}, {sT2}, {d}
             v_lshrrev_b32 {d}, 4, v1
             v_lshlrev_b32 {P256}, 8, v1
             v_lshl_add_u32 {P256}, {d}, 27, {P256}
             s_lshl_b32 {bTL}, {sW}, 13
             s_lshr_b32 {sT2}, {sTBL}, {sKC}
             s_and_b32 {sT2}, {sT2}, 0x2000
             s_lshl_b32 {bGP}, {sKC}, 14
             s_add_u32 {bGP}, {bGP}, {sT2}
             s_add_u32 {bGP}, {bGP}, {hex(CNT)}
             s_add_u32 {bRP}, {bGP}, 4096""")
        for k in range(8):
            M(f"v_lshlrev_b32 v{192+2*k}, 16, v{24+k}\nv_and_b32 v{193+2*k}, {sMSKHI}, v{24+k}")
        return M

    def phaseA(self):
        p = self.p
        o = self.o
        pre = o.get('pre', 0)
        if pre:
            nt = " nt" if o.get('xnt', 0) else ""
            p(f"""s_lshl_b32 {sT3}, {sMA}, 2
                 s_add_u32 {sT3}, {sT3}, {sW}
                 s_lshl_b32 {sT3}, {sT3}, 11
                 s_lshl_b32 {sT4}, {sTA}, 16
                 s_add_u32 {sT3}, {sT3}, {sT4}
                 s_lshl_b32 {sT4}, s2, 2
                 s_add_u32 {sT4}, {sT4}, {sW}
                 s_mul_i32 {sT4}, {sT4}, 1536
                 v_lshrrev_b32 v196, 2, v1
                 v_lshlrev_b32 v196, 7, v196
                 v_min_u32 v197, 1408, v196""")
            if pre & 1:
                p(f"buffer_load_dword v194, v196, {X}, {sT3} offen{nt}")
            if pre & 2:
                p(f"buffer_load_dword v195, v197, {WQKV}, {sT4} offen")
        p.extend(flat(self.dmaA(0)))
        p(f"v_lshlrev_b32 {L16}, 4, v1")
        if o.get('codepf', 1):
            p(f"""s_getpc_b64 s[70:71]
                 s_lshl_b32 {sT3}, {sU}, 2
                 s_add_u32 {sT3}, {sT3}, {sW}
                 s_lshl_b32 {sT4}, {sT3}, 8
                 v_lshrrev_b32 v200, 5, v1
                 v_lshl_add_u32 v200, v200, 7, {sT4}
                 v_min_u32 v200, CODE_PF_MAX, v200
                 global_load_dword v201, v200, s[70:71]""")
        tch = Seq()
        touch = o.get('touch', 7)
        tch(f"""s_lshl_b32 {sCc}, s2, 2
             s_add_u32 {sCc}, {sCc}, {sW}
             s_lshr_b32 {sT4}, {sCc}, 1
             s_mul_i32 {sT4}, {sT4}, 3072
             s_and_b32 {sT5}, {sCc}, 1
             s_lshl_b32 {sT5}, {sT5}, 11
             s_add_u32 {sT4}, {sT4}, {sT5}
             s_lshl_b32 {sCc}, {sCc}, 9
             v_lshrrev_b32 v202, 3, v1
             v_lshlrev_b32 v202, 7, v202
             v_lshrrev_b32 v42, 4, v1
             v_lshlrev_b32 v42, 7, v42""")
        if touch & 4:
            tch(f"""s_lshl_b32 {sT3}, {sU}, 2
                 s_add_u32 {sT3}, {sT3}, {sW}
                 s_mul_i32 {sT3}, {sT3}, {4*3072}
                 v_min_u32 v200, 11, v1
                 v_lshlrev_b32 v200, 10, v200
                 buffer_load_dword v198, v200, {WQKV}, {sT3} offen offset:384""")
        if touch & 1:
            tch(f"buffer_load_dword v203, v202, {WQKV}, {sT4} offen")
        tat = o.get('tat', -1)
        if tat == -2:
            p.extend(tch)
        d1 = self.dmaA(1)
        n1 = o.get('d1', 4)
        p.extend(flat(d1[:n1]))
        if tat == -1:
            p.extend(tch)
        for srd, src, sz in ((12, 80, 0x80000), (16, 84, 0x1C0000), (20, 86, 0x1C0000), (24, 88, 0x1C0000),
                             (28, 90, 0x200000), (36, 92, 256), (32, 94, WS_SIZE)):
            p(f"s_mov_b64 s[{srd}:{srd+1}], s[{src}:{src+1}]\ns_mov_b32 s{srd+2}, {hex(sz)}\ns_mov_b32 s{srd+3}, 0x20000")
        if o.get('wsoff'):
            p(f"s_add_u32 s32, s32, {o['wsoff'] << 20}\ns_addc_u32 s33, s33, 0")
        Lz = self.lab("z")
        p(f"""s_lshl_b32 {sB}, {sW}, 8
             s_add_u32 {sB}, {sB}, 224
             s_cmp_lt_u32 s2, {sB}
             s_cbranch_scc1 {Lz}""")
        padr = f"""s_sub_u32 {sT2}, s2, 224
             s_and_b32 {sT1}, {sU}, 1
             s_lshl_b32 {sT3}, {sT1}, 5
             s_add_u32 {sT3}, {sT3}, {sT2}
             s_lshl_b32 {sT3}, {sT3}, 8
             s_add_u32 {sT3}, {sT3}, {hex(PROBE)}
             s_xor_b32 {sT4}, {sT3}, 0x2000
             s_waitcnt lgkmcnt(0)
             s_buffer_load_dword {sT5}, {WS}, {sT3} glc
             s_buffer_load_dword {sT5}, {WS}, {sT4} glc"""
        p(f"""{padr.replace(sT5, sD)}
             v_mov_b32 v16, 0
             v_mov_b32 v17, 0
             v_mov_b32 v18, 0
             v_mov_b32 v19, 0
             v_lshrrev_b32 v20, 3, v1
             v_lshl_add_u32 v20, v20, 7, {L16}
             s_lshl_b32 {sT4}, {sT2}, 11
             s_lshl_b32 {sT3}, {sT2}, 12
             s_add_u32 {sT3}, {sT3}, {hex(CNT)}
             s_add_u32 {sT4}, {sT4}, {hex(KVM)}
             buffer_store_dwordx4 v[16:19], {L16}, {WS}, {sT4} offen sc1
             buffer_store_dwordx4 v[16:19], {L16}, {WS}, {sT4} offen offset:1024 sc1
             buffer_store_dwordx4 v[16:19], v20, {WS}, {sT3} offen sc1
             buffer_store_dwordx4 v[16:19], v20, {WS}, {sT3} offen offset:2048 sc1""", cond=True)
        p(f"{Lz}:")
        probe = f"""{padr}
             s_getreg_b32 {sT4}, hwreg(HW_REG_XCC_ID, 2, 1)
             s_waitcnt lgkmcnt(1)
             s_nop {o.get('pnop', 15)}
             s_getreg_b32 {sT2}, hwreg(HW_REG_IB_STS, 8, 4)
             s_waitcnt lgkmcnt(0)
             s_min_u32 {sT2}, {sT2}, 1
             s_xor_b32 {sT1}, {sT1}, {sT4}
             s_cmp_lg_u32 {sT1}, {sT2}
             s_cselect_b32 {sT2}, 64, 4096
             s_add_u32 {sT2}, {sT2}, 1
             s_add_u32 {sT5}, {sKC}, 18
             s_lshl_b32 {sT4}, {sT4}, {sT5}
             s_cmp_eq_u32 {sU}, 28
             s_cselect_b32 {sT4}, {sT4}, 0
             s_add_u32 {sT2}, {sT2}, {sT4}
             v_mov_b32 v46, {sT2}"""
        p.extend(self.miscA())
        if o.get('pat', 0) == 0:
            Lz = self.lab("z")
            p(f"s_cmp_lt_u32 s2, {sB}\ns_cbranch_scc1 {Lz}")
            p(probe, cond=True)
            p(f"{Lz}:")
            probe = ""
        if tat == 0:
            p.extend(tch)
        SEL, ONES = v(16, 4), v(20, 4)
        XS, XQ0, XQ1, CSA, ZA = 252, 248, 32, 36, 44
        AK, AV, AQ, RB, AKV = 48, 64, 80, 96, 112
        WR = 128
        XM, WP, RS_ = 160, 164, 176

        def wread(t, s, dst=None):
            n = t * 32 + s
            addr = (TRK, TRP, TRK)[t]
            return trpair(('v', WR + 4 * (n % 6) if dst is None else dst), f"v{addr+(s&3)}", (s >> 2) * 8192, 512)

        def wf(t, s):
            return v(WR + 4 * ((t * 32 + s) % 6), 4)

        def csm(f, first):
            return mf16(CSA, SEL, f, "0" if first else None)

        def cswrite(t):
            S = split2(41, CSA, 41)
            S(f"ds_write_b32 {XCW}, v41 offset:{t*512}", tag=f"x{t}")
            return list(S)

        def csget(t):
            return [Inst(f"ds_read_b64 {v(WP+4*t,2)}, {XCR} offset:{t*512}")]

        def xread(s):
            return [Inst(f"ds_read_b128 {a_(4*s,4)}, v{10+(s&3)} offset:{(s>>2)*8192}")]

        p.extend(flat(d1[n1:]))
        d2 = self.dmaA(2)
        n2_ = o.get('d2', 4)
        p.extend(flat(d2[:n2_]))
        self.stamp("A_issued")
        p("WAITTAG A0\ns_barrier")
        self.stamp("A_c0")
        p.extend(xread(0) + wread(0, 0) + xread(1) + wread(0, 1))
        p.extend(flat(d2[n2_:]))
        ad = o.get('ad', 4)
        nv1 = o.get('nv1', 14)
        vq = flat([self.dmaW(1, k) for k in range(8)])
        pend = self.dmaA(3) if ad == 4 else []
        for s in range(32):
            c, j = s >> 2, s & 3
            xf = a_(4 * s, 4)
            z = "0" if s == 0 else None
            p.append(mf32(AK, xf, wf(0, s), z))
            if j == 2 and c < 7:
                p(f"WAITTAG A{c+1}\ns_barrier")
                self.stamp(f"a{c+1}")
                assert not pend
                if c == 1:
                    p(f"s_cmp_ge_u32 s2, {sB}")
                    self.ool("s_cbranch_scc1", f"{probe}\nbuffer_atomic_add v46, {FA1}, {DBG}, 0 offen sc1")
                if c + 1 == tat:
                    p.extend(tch)
                if c + ad < 8:
                    pend = self.dmaA(c + ad)
                else:
                    pend, vq = vq[:4], vq[4:]
            if s == 30:
                p("WAITTAG V1\ns_barrier")
                k = max(0, nv1 - (16 - len(vq)))
                assert k <= 2
                pend, vq = vq[:k], vq[k:]
            if s + 2 < 32:
                p.extend(xread(s + 2) + wread(0, s + 2))
            else:
                p.extend(wread(1, s + 2 - 32))
            if s == 28:
                p("ds_read_b128 v[24:27], v14\nds_read_b128 v[28:31], v15", tag="xres")
            for _ in range(2 if s < 2 else 1):
                if pend:
                    p.extend(pend.pop(0))
            if j % 2 == 0:
                p.append(csm(wf(0, s), s == 0))
            if j < 2:
                p.append(mf16(XS, SEL, xf, z))
                p.append(mf4(XQ0, a_(4 * s, 2), a_(4 * s, 2), z))
                p.append(mf4(XQ1, a_(4 * s + 2, 2), a_(4 * s + 2, 2), z))
            if s == 30:
                for k in range(4):
                    p(f"v_add_f32 v{XQ0+k}, v{XQ0+k}, v{XQ1+k}")
                p(f"""v_cndmask_b32 v197, v{XQ0}, v{XQ0+1}, s[96:97]
                     v_cndmask_b32 v197, v197, v{XQ0+2}, s[98:99]
                     v_cndmask_b32 v197, v197, v{XQ0+3}, s[70:71]
                     v_mov_b32 v196, v197""")
            if s == 31:
                p(f"""v_permlane32_swap_b32 v196, v197
                     v_add_f32 v{XS+1}, v196, v197
                     ds_write_b64 {STW}, {v(XS,2)}""")
                p.extend(cswrite(0))
        assert not pend
        self.stamp("A_loop")
        CT = (204, 208, ZA)
        kb = o.get('kb', 9)

        def tilepass(t, acc, order):
            nm = "VQ"[t - 1]
            G = []
            for s in range(32):
                A_, B_ = (a_(4 * s, 4), wf(t, s)) if order == 0 else (wf(t, s), a_(4 * s, 4))
                g = Seq()
                g.append(mf32(acc, A_, B_, "0" if s == 0 else None))
                if t == 1 and s == 2:
                    g("WAITTAG x0 xres" + (" V3" if ad == 4 else "") + "\ns_barrier")
                    g(f"ds_read_b64 v[198:199], {STR}")
                    g.extend(csget(0))
                if t == 2 and o.get('fb', 0) & 2:
                    if s == 4:
                        g("WAITTAG Q3\ns_barrier")
                    if s == kb:
                        assert kb <= 12
                        g("WAITTAG kvp Q7\ns_barrier")
                elif t == 1 and o.get('fb', 0) & 1:
                    if s == 12:
                        g("WAITTAG V7\ns_barrier")
                elif s % 8 == 4 and s < 28 and ((t, s) != (1, 4) or ad != 4):
                    g(f"WAITTAG {nm}{(s+4)//4+1} kvp\ns_barrier")
                elif t == 2 and s == kb:
                    g("WAITTAG kvp\ns_barrier")
                if s == 28:
                    g(f"WAITTAG x{t}" + (" Q1" if t == 1 else "") + "\ns_barrier")
                    g.extend(csget(t))
                if t == 1 and s < 2:
                    g.extend(wread(t, 2 + 2 * s) + wread(t, 3 + 2 * s))
                elif s + 4 < 32:
                    g.extend(wread(t, s + 4))
                elif t == 1:
                    g.extend(wread(2, s + 4 - 32))
                if s in (20, 21, 22):
                    g.extend(wread(t, 26 + 2 * (s - 20), CT[s - 20]))
                if s % 2 == 0 and s < 26 and (t, s) != (1, 0):
                    g.append(csm(wf(t, s), (t, s) == (2, 0)))
                if (t, s) == (1, 1):
                    g.append(csm(wf(t, 0), True))
                if s in (23, 24, 25):
                    g.append(csm(v(CT[s - 23], 4), False))
                if s == 26:
                    g.extend(cswrite(t))
                G.append(list(g))
            return G

        def phi(acc, scale, T, dst):
            S = Seq()
            for h in range(2):
                r = range(8 * h, 8 * h + 8)
                for i in r:
                    S(f"v_fma_f32 v{acc+i}, v{acc+i}, {scale(i)}, {sEPS6}")
                for i in r:
                    S(f"v_mul_f32 v{T+(i&7)}, {sLOG2E}, v{acc+i}")
                for i in r:
                    S(f"v_exp_f32_e64 v{T+(i&7)}, v{T+(i&7)} clamp")
                    S(f"v_max_f32 v{acc+i}, {sEPS6}, v{acc+i}")
                for i in r:
                    S(f"v_add_f32 v{acc+i}, v{acc+i}, v{T+(i&7)}")
                for i in range(4 * h, 4 * h + 4):
                    S(f"v_cvt_pk_bf16_f32 v{dst+i}, v{acc+2*i}, v{acc+2*i+1}")
            return S
        E = Seq()
        E(f"""v_add_f32 v198, v198, v{XS}
             v_add_f32 v197, v199, v{XS+1}
             v_mul_f32 v199, 0x3b000000, v198
             v_mul_f32 v197, 0x3b000000, v197
             v_cvt_pk_bf16_f32 v198, -v199, -v199
             v_fma_f32 v197, -v199, v199, v197
             v_cndmask_b32 v{XM}, v198, 0, {sHILANES}
             v_cndmask_b32 v{XM+1}, v198, 0, {sHILANES}
             v_max_f32 v197, 0, v197
             v_add_f32 v197, 0x3727c5ac, v197
             v_rsq_f32 v40, v197""")
        E.append(mf32(AK, v(XM, 4), v(WP, 4)))
        E.extend(split2(RS_, 40, 198))
        E(f"v_cndmask_b32 v{RS_}, v{RS_}, 0, {sHILANES}")
        E.append(mf32(RB, v(RS_, 4), ONES, "0"))
        PK = phi(AK, lambda i: f"v{RB+i}", 196, 180)
        G = tilepass(1, AV, 0)
        v2e = o.get('v2e', 2)
        qq = flat([self.dmaW(2, k) for k in range(8)])
        nq2 = o.get('nq2', 16)
        G = weave(G, vq, 0, v2e)
        G = weave(G, qq[:nq2], max(3, v2e), o.get('q2end', 30))
        G[0] += [Inst(f"v_subrev_u32 v{TRK+j}, {hex(VB)}, v{TRP+j}") for j in range(4)]
        G[12] += [Inst(f"buffer_load_dword v5, {FA1}, {DBG}, 0 offen sc1")]
        n2 = o.get('pk2', 88)
        G = weave(G, list(E), 4, 8)
        G = weave(G, PK[:n2], 10, 32)
        for k in range(3, 31, 4):
            G[k] += self.sub(lambda: self.stamp(f"v{k}"))
        p.extend(flat(G))
        p.append(mf32(AV, v(XM, 4), v(WP + 4, 4)))
        self.stamp("A_v")
        if o.get('skew') is not None:
            p(f"""s_not_b32 s101, s100
                 v_mov_b32 v43, s101
                 buffer_atomic_umax v43, {FA1}, {DBG}, 0 offen offset:128 sc1
                 v_mov_b32 v41, s100
                 buffer_atomic_umax v41, {FA1}, {DBG}, 0 offen offset:192 sc1""")
        E = Seq()
        E.extend(PK[n2:])
        for i in range(16):
            E(f"v_mul_f32 v{AV+i}, v{AV+i}, v{RB+i}")
        for i in range(8):
            E(f"v_cvt_pk_bf16_f32 v{188+i}, v{AV+2*i}, v{AV+2*i+1}")
        G = tilepass(2, AQ, 1)
        rq = self.rload()
        if o.get('nor'):
            rq = []
        if touch & 2:
            rq = rq[:2] + [[Inst(f"buffer_load_dword v42, v42, {WO}, {sCc} offen")]] + rq[2:]
        e2 = o.get('e2', 0)
        R2T = trpair(('a', 144), RT2A, 4096, 512) + trpair(('a', 148), RT2B, 4096, 512)
        R2S = [Inst(f"buffer_store_dwordx4 a[144:147], {L16}, {WS}, {sR2} offen sc1", tag="pub1" if e2 else "pubR"),
               Inst(f"buffer_store_dwordx4 a[148:151], {L16}, {WS}, {sR2} offen offset:1024 sc1", tag="pub1" if e2 else "pubR")]
        if e2:
            G[e2] += [Inst("WAITTAG RL2")] + R2T
            G[e2 + 3] += R2S[:1]
            G[e2 + 5] += R2S[1:]
            R2T, R2S = [], []
        r0 = o.get('r0', 0)
        if nq2 < 16:
            G = weave(G, qq[nq2:], 0, r0)
        G = weave(G, rq, r0, o.get('r1', r0 + 7))
        if o.get('rwait'):
            G[o.get('r1', 7)] += list(Seq()("WAITALL vm")) + self.sub(lambda: self.stamp("A_rland"))
        woq = flat([self.dmaWO(q) for q in range(8)])
        nw3 = o.get('wo3', 0)
        G[13] += [Inst(f"s_lshl_b32 {sB}, {sW}, 12")]
        if nw3:
            G = weave(G, woq[:nw3], o.get('wo30', 26), 32)
        G = weave(G, list(E), 0, kb - 5)
        G[kb - 5] += [mf32(AKV, v(180, 4), v(188, 4), "0"), mf32(AKV, v(184, 4), v(192, 4)),
                 mf16(ZA, SEL, v(180, 4), "0"), mf16(ZA, SEL, v(184, 4))]
        G[kb - 4] += self.sub(lambda: self.spin("v5", None, "0", "1", "32", srd=DBG, mode='check', sleep=4, field=63))
        S = Seq()
        S(f"""v_readfirstlane_b32 {sT2}, v5
             s_bfe_u32 {sT3}, {sT2}, 0x60006
             s_bfe_u32 {sT4}, {sT2}, 0x6000c
             s_lshr_b32 {sT2}, {sT2}, 5""")
        S = [[i] for i in S] + [list(Seq()(f"""s_cmp_gt_u32 {sT4}, {sT3}
             s_cselect_b32 {sT3}, {'0, -1' if o.get('parx') else '-1, 0'}"""))]
        S += [[i] for i in Seq()(f"""s_xor_b32 {sTBL}, {sT2}, {sT3}
             s_lshr_b32 {sT2}, {sTBL}, {sKC}
             s_lshl_b32 {sT3}, {sG}, 10
             s_xor_b32 {sP1}, {sT2}, {sT3}
             s_and_b32 {sP1}, {sP1}, 0x2000
             s_xor_b32 {sPQS}, {sPQS}, {sP1}
             s_lshr_b32 {sPE}, {sTBL}, 3
             s_and_b32 {sPE}, {sPE}, 0x2000
             s_lshl_b32 {sT4}, {sG}, 12
             s_xor_b32 {sP2}, {sT3}, {sT4}
             s_and_b32 {sP2}, {sP2}, 0x2000
             s_xor_b32 {sP2}, {sP2}, {sPE}
             s_xor_b32 {sHS}, {sHS}, {sP2}
             v_mov_b32 v176, 0
             v_lshrrev_b32_e64 {P4K}, v1, {sTBL}
             v_and_b32 {P4K}, 0x2000, {P4K}
             v_lshl_add_u32 {P4K}, v1, 14, {P4K}
             v_or_b32 {P4K}, {P4K}, {LM8}""")]
        S += [[Inst(f"buffer_store_dwordx4 v[176:179], {L16}, {WS}, {sHS} offen offset:3072 sc1", tag="pub1")]]
        G = weave(G, S, 19, 31)
        S = Seq()
        for i in range(8):
            S(f"v_cndmask_b32 v{196+i}, v{AKV+i}, v{AKV+8+i}, {sB4LANES}")
        S(f"""ds_write_b128 {KVW}, v[196:199]
             ds_write_b128 {KVW}, v[200:203] offset:512""")
        S(f"ds_write_b32 {ZW}, v{ZA}", tag="kvp")
        G = weave(G, list(S), kb - 3, kb - 1)
        S = Seq()
        for k in range(4):
            S(f"ds_read2st64_b32 v[{112+2*k}:{113+2*k}], {KVR} offset0:{k} offset1:{k+8}")
        S(f"ds_read2_b32 v[120:121], {ZR} offset0:0 offset1:32")
        G = weave(G, list(S), kb, kb + 2)
        S = Seq()
        for k in range(5):
            S(f"v_add_f32 v{112+2*k}, v{112+2*k}, v{113+2*k}")
        for k in range(4):
            S(f"buffer_atomic_add_f32 v{112+2*k}, {L4}, {WS}, {sKVA} offen offset:{k*256}", tag="pub1")
        S(f"buffer_atomic_add_f32 v120, {ZAT}, {WS}, {sZA} offen", tag="pub1")
        G = weave(G, list(S), kb + 3, kb + 8)
        for k in range(3, 31, 4):
            G[k] += self.sub(lambda: self.stamp(f"v{k}"))
        p.extend(flat(G))
        p.append(mf32(AQ, v(WP + 8, 4), v(XM, 4)))
        self.stamp("A_q")
        woq = woq[nw3:]
        t1, t3, t2 = o.get('wot1', 0), o.get('wot3', 6), o.get('wot2', 2)
        assert nw3 + t1 == 0
        p.extend(flat(woq[:t1]))
        woq = woq[t1:]
        ph = phi(AQ, lambda i: "v40", 196, 180)
        h = len(ph) // 2
        p.extend(ph[:h])
        p(f"buffer_store_dwordx4 v[180:183], {L16}, {WS}, {sPQS} offen sc1", tag="pub1")
        p.extend(ph[h:])
        p(f"buffer_store_dwordx4 v[184:187], {L16}, {WS}, {sPQS} offen offset:1024 sc1", tag="pub1")
        self.stamp("A_pqst")
        p("s_barrier")
        MB = list(self.miscB()) + self.miscC()
        nb = o.get('mb1', 140)
        assert nb >= len(self.miscB())
        p.extend(flat(woq[:t3]))
        p("s_nop 0")
        p.extend(MB[:nb])
        p("s_nop 0")
        p.extend(flat(woq[t3:t3 + t2]))
        woq = woq[t3 + t2:]
        p("WAITTAG pub1\ns_barrier")
        p(f"buffer_atomic_add v4, {P4K}, {WS}, {sSIG} offen sc1")
        self.stamp("A_sig")
        for s in range(4):
            p.extend(trpair(('a', 128 + 4 * s), RT13, s * 6144, 512))
        p.extend(R2T)
        t4 = o.get('wot4', 16)
        assert t3 + t2 + t4 >= 16
        p.extend(flat(woq[:t4]))
        for s in range(4):
            p.append(mf16(RCS, SEL, a_(128 + 4 * s, 4), "0" if s == 0 else None))
            p(f"buffer_store_dwordx4 {a_(128+4*s,4)}, {L16}, {WS}, {sRW} offen offset:{s*1024} sc1", tag="pubR")
        p.extend(R2S)
        p(f"buffer_atomic_add_f32 v{RCS}, {CSAT}, {WS}, {sRC} offen", tag="pubR")
        self.stamp("A_rst")
        p(f"s_add_u32 {sSIG}, {sSIG}, 4096")
        self.wo_rest = woq[t4:]
        self.mb_rest = MB[nb:]

    def dmaT(self, t, slot):
        g = []
        for h in range(2):
            S = Seq()
            S(f"s_add_u32 m0, {bTL}, {slot*32768+h*4096}\ns_add_u32 {sT0}, {bTX if self.o.get('grp', 1) and par13(t) else bTA}, {t*65536+h*4096}")
            for k in range(4):
                S(f"buffer_load_dwordx4 {L16}, {WS}, {sT0} offen offset:{k*1024} sc1 lds", tag=f"T{t}")
                g.append(list(S))
                S = Seq()
            ctx(g[-4:])
        return g

    def phaseB(self):
        p = self.p
        o = self.o
        AH = 192
        W = [trpair(('a', 4 * i), f"v{WOT+((i>>2)&3)}", (i & 3) * 4096, 1024) for i in range(32)]
        PQR = 224
        LD = [Inst(f"buffer_load_dwordx2 v[32:33], v41, {WS}, {sZL} offen sc1")]
        for q in range(4):
            for i in (2 * q, 2 * q + 1):
                LD.append(Inst(f"buffer_load_dwordx4 {v(48+4*i,4)}, {L16}, {WS}, {sKVL if i < 4 else bK2} offen offset:{(i&3)*1024} sc1"))
            for i in (2 * q, 2 * q + 1):
                LD.append(Inst(f"buffer_load_dwordx4 {a_(PQR+4*i,4)}, {L16}, {WS}, {sPQL if i < 4 else bQ2} offen offset:{(i&3)*1024} sc1"))
        ZB = Seq()(f"v_cvt_pk_bf16_f32 v32, v32, v33\nds_write_b32 {ZBW}, v32")
        for k in range(4):
            ZB(f"ds_read_b128 {v(96+4*k,4)}, {ZBR} offset:{k*64}")
        p("WAITTAG WO0\ns_barrier")
        self.stamp("B_wo")
        pm = o.get('pm', 0)
        pl = list(Seq()(f"""s_cmp_eq_u32 {sW}, 1
             s_cselect_b32 {bGP}, {bGP}, {hex(OOB)}
             s_cselect_b64 s[26:27], 0xffff, 0
             buffer_load_dword v5, {P256}, {WS}, {bGP} offen sc1"""))
        if pm == 2:
            p.extend(pl)
        p.extend(flat(W[:16]))
        if pm == 1:
            p.extend(pl)
        for q in range(4):
            p(f"v_add_u32 v{WOT+q}, 0x10000, v{WOT+q}")
        mb2 = o.get('mb2', 30)
        p.extend(self.mb_rest[:mb2])
        self.stamp("B_prepoll")
        if pm:
            self.spin("v5", P256, bGP, "s[26:27]", "16", sleep=o.get('sleep1', 1), mode='check')
        else:
            self.spin("v5", P256, bGP, "0xffff", "16", sleep=o.get('sleep1', 1), wave=o.get('pw', 1))
        p("WAITTAG pubR\nWAITALL lgkm\ns_barrier")
        self.stamp("B_sync1")
        LD.insert(o.get('rsat', 0), Inst(f"buffer_atomic_add v4, {P4K}, {WS}, {sSIG} offen sc1"))
        nl0 = o.get('nl0', 14)
        p.extend(LD[:10] + [Inst('s_nop 0')] + self.mb_rest[mb2:] + ZB + LD[10:nl0])

        def prep(q):
            S = Seq()
            for k in range(4):
                S(f"v_cvt_pk_bf16_f32 v{80+4*q+k}, v{48+8*q+2*k}, v{48+8*q+2*k+1}")
            for k in range(4):
                S(f"v_cndmask_b32 v{112+8*q+k}, v{80+4*q+k}, v{96+4*q+k}, {sB4LANES}")
            for k in range(4):
                S(f"v_cndmask_b32 v{116+8*q+k}, v{96+4*q+k}, v{80+4*q+k}, {sB4LANES}")
            return S
        NA = [144, 160, 176]
        steps = [(pr + k, t) for pr in (0, 2) for t in range(3) for k in range(2)]
        d16 = o.get('d16', 1)
        steps += [(pr, t) for t in (3, 4, 5, 6) for pr in range(4)]
        w2o = [f"{cW2x if o.get('grp', 1) and par2(pr, t) else cW2}, {pr * 32768 + (t >> 2) * 16384 + (t & 3) * 2048}" for pr, t in steps]
        hho = [pr * 16384 + t * 1024 for pr, t in steps]
        w2l = []
        for i in range(16):
            S = Seq()
            if d16:
                ad = W2B if i & 1 else W2A
                if i % 2 == 0:
                    S(f"s_add_u32 {sKC}, {w2o[i]}")
                S(f"buffer_load_dwordx4 {a_(128+8*i,4)}, {ad}, {WS}, {sKC} offen sc1")
                w2l.append(list(S))
                w2l.append([Inst(f"buffer_load_dwordx4 {a_(132+8*i,4)}, {ad}, {WS}, {sKC} offen offset:256 sc1")])
                if i & 1:
                    ctx(w2l[-4:])
                continue
            S(f"s_add_u32 {sKC}, {w2o[i]}")
            S(f"buffer_load_dwordx4 {a_(128+8*i,4)}, {W2A}, {WS}, {sKC} offen sc1")
            w2l.append(list(S))
            w2l.append([Inst(f"buffer_load_dwordx4 {a_(132+8*i,4)}, {W2B}, {WS}, {sKC} offen sc1")])
            ctx(w2l[-2:])
        self.steps, self.w2o, self.hho = steps, w2o, hho
        nw1, nw2 = (o.get('nw1', 6), o.get('nw2', 6)) if o.get('e2', 0) else (0, 0)
        assert nw1 <= 24
        W1, W2_, w2l = w2l[:nw1], w2l[nw1:nw1 + nw2], w2l[nw1 + nw2:]
        self.n_w2rest = len(w2l)
        TQ = flat([self.dmaT(t, t) for t in range(2)]) + w2l
        n2, n3 = o.get('tq2', 6), o.get('tq3', 10)

        def num(i):
            return mf32(NA[i % 3], v(112 + 4 * i, 4), a_(PQR + 4 * i, 4), "0")

        def fin(i):
            n = NA[i % 3] + 8 * (i & 1)
            d = NA[i % 3] + 8 * (1 - (i & 1))
            S = Seq()
            S(f"v_add_f32 v{d}, {sEPS6}, v{d}\nv_rcp_f32 v{d}, v{d}")
            for k in range(8):
                S(f"v_mul_f32 v{n+k}, v{n+k}, v{d}")
            for k in range(4):
                S(f"v_cvt_pk_bf16_f32 v{48+4*i+k}, v{n+2*k}, v{n+2*k+1}")
            return S

        def owrite(i):
            return Inst(f"ds_write_b128 v{OAD}, {v(48+4*i,4)} offset:{(i>>2)*16384+(i&3)*1024}", tag=f"o{i}")

        OR = (16, 20, 36, 44, 208, 248)

        def oreg(k):
            return OR[k % 6] if k < 16 else 80 + 4 * (k & 7)

        def oread(k):
            return Inst(f"ds_read_b128 {v(oreg(k),4)}, v{OAD+((k>>2)&3)} offset:{(k>>4)*16384+(k&3)*1024}")

        def acc(k):
            own = (k & 12) == 0
            return mf32(AH, a_(4 * k, 4), v(48 + 4 * ((k >> 4) * 4 + (k & 3)) if own else oreg(k), 4))
        self.stamp("bz")
        p.extend(prep(0))
        self.stamp("bp")
        p.append(num(0))
        p.append(num(1))
        VM = [[x] for x in LD[nl0:]] + list(self.wo_rest)
        per = o.get('per', 3)
        rl, rc = o.get('rl', 7), o.get('rc', 8)
        kk = 4
        for i in range(8):
            if i + 2 < 8:
                if i % 2 == 0:
                    p.extend(prep(i // 2 + 1))
                p.append(num(i + 2))
            if i >= 1:
                p.append(owrite(i - 1))
            if i == 5:
                p("WAITTAG o3\ns_barrier")
                p.extend([oread(k) for k in range(4, 9)])
            for _ in range(per):
                if VM:
                    p.extend(VM.pop(0))
            if i == rl:
                p(f"buffer_load_dword v5, {P256}, {WS}, {bRP} offen sc1")
            if i >= 5:
                for _ in range(-(-nw1 // 3)):
                    if W1:
                        p.extend(W1.pop(0))
            F = fin(i)
            self.stamp(f"b{i}")
            if i < 5:
                p.extend(F[:7])
                if i >= 1:
                    p.append(acc(i - 1))
                p.extend(F[7:])
            else:
                cuts = (8, 14) if i == 5 else (2, 6, 10, 14)
                lo = 0
                for c in cuts:
                    p.extend(F[lo:c])
                    lo = c
                    p.append(acc(kk))
                    if kk + 5 < 16:
                        p.append(oread(kk + 5))
                    kk += 1
        p.append(owrite(7))
        assert not VM
        self.stamp("B_st1")
        p.append(acc(kk))
        p("WAITTAG WO1 o7\ns_barrier")
        for k in range(16, 20):
            p.extend(W[k])
        assert kk == 14
        G = [[acc(15)] + W[20] + [oread(20)]]
        for k in range(16, 32):
            g = [acc(k)]
            if k + 5 < 32:
                g += W[k + 5] + [oread(k + 5)]
            G.append(g)
        if rl >= 8:
            G[rl - 8] += [Inst(f"buffer_load_dword v5, {P256}, {WS}, {bRP} offen sc1")]
        G[rc] += self.sub(lambda: self.spin("v5", P256, bRP, "0xffff", "16", mode='check', sleep=2))
        G = weave(G, W2_, 0, rc)
        G = weave(G, TQ[:n2], rc + 1, 17)
        p.extend(flat(G))
        for k in range(8):
            p(f"v_cvt_pk_bf16_f32 v{48+k}, v{AH+2*k}, v{AH+2*k+1}")
            if k == 3:
                p(f"buffer_store_dwordx4 v[48:51], {L16}, {WS}, {sHST} offen sc1", tag="pub2")
        p(f"buffer_store_dwordx4 v[52:55], {L16}, {WS}, {sHST} offen offset:1024 sc1", tag="pub2")
        p(f"v_add_f32 v56, v{AH}, v{AH+1}\nv_mul_f32 v57, v{AH}, v{AH}\nv_add_f32 v58, v{AH+2}, v{AH+3}\nv_mul_f32 v59, v{AH+1}, v{AH+1}")
        for k in range(2, 16):
            if k >= 4:
                p(f"v_add_f32 v{56+2*(k&1)}, v{56+2*(k&1)}, v{AH+k}")
            p(f"v_fmac_f32 v{57+2*(k&1)}, v{AH+k}, v{AH+k}")
        p("""v_add_f32 v56, v56, v58
             v_add_f32 v57, v57, v59
             v_permlane32_swap_b32 v56, v57
             v_add_f32 v56, v56, v57""")
        p(f"buffer_atomic_add_f32 v56, {L4}, {WS}, {sSTA} offen", tag="pub2")
        self.stamp("B_hst")
        for t in range(7):
            p(f"buffer_load_dword v{160+t}, {CSL}, {WS}, {cCS} offen offset:{t*128} sc1")
        p.extend(flat(TQ[n2:n2 + n3]))
        p(f"WAITTAG pub2\nbuffer_store_dword v4, {FA1}, {WS}, {sD} offen offset:512 sc1\ns_barrier")
        self.t1_late = n2 < 16
        self.stamp("B_sig")
        self.tq_rest = TQ[n2 + n3:]

    def miscC(self):
        M = Seq()
        DL = "v45"
        if self.o.get('d16', 1):
            M(f"""v_bfe_u32 v46, v1, 4, 1
                 v_and_b32 {DL}, 0xf0, {L16}
                 v_lshl_add_u32 {DL}, v46, 9, {DL}
                 v_lshrrev_b32 v46, 5, v1""")
        else:
            M(f"v_mov_b32 {DL}, {L16}\nv_mov_b32 v46, 0")
        M(f"""s_bfe_i32 {sT1}, {sTBL}, 0x10010
             s_xor_b32 {sT1}, {sT1}, {sTBL}
             s_and_b32 {sT1}, {sT1}, 0xe000
             s_bcnt1_i32_b32 {sT1}, {sT1}
             s_sub_u32 {sT1}, {sKC}, {sT1}""")
        if self.o.get('cmap', 1):
            M(f"""s_and_b32 {sGC}, {sT1}, 4
                 s_lshl_b32 {sGC}, {sGC}, 1
                 s_and_b32 {sT2}, {sU}, 7
                 s_add_u32 {sGC}, {sGC}, {sT2}
                 s_and_b32 {sMC}, {sT1}, 3
                 s_lshl_b32 {sMC}, {sMC}, 2
                 s_lshr_b32 {sT2}, {sU}, 3
                 s_add_u32 {sMC}, {sMC}, {sT2}""")
        else:
            M(f"""s_and_b32 {sGC}, {sT1}, 6
                 s_lshl_b32 {sGC}, {sGC}, 1
                 s_add_u32 {sGC}, {sGC}, {sRQ}
                 s_and_b32 {sMC}, {sT1}, 1
                 s_lshl_b32 {sMC}, {sMC}, 3
                 s_lshr_b32 {sT2}, {sU}, 2
                 s_add_u32 {sMC}, {sMC}, {sT2}""")
        M(f"""s_lshl_b32 {sT1}, {sGC}, 10
             s_lshl_b32 {sT2}, {sGC}, 12
             s_xor_b32 {sP2}, {sT1}, {sT2}
             s_and_b32 {sP2}, {sP2}, 0x2000
             s_xor_b32 {sP2}, {sP2}, {sPE}
             s_lshl_b32 {bTA}, {sMC}, 19
             s_add_u32 {bTA}, {bTA}, {sXL}
             s_and_b32 {sT2}, {sMC if self.o.get('grp', 1) else sW}, 1
             s_lshl_b32 {sT2}, {sT2}, 13
             s_add_u32 {bTA}, {bTA}, {sT2}
             s_add_u32 {bTA}, {bTA}, {hex(W13R)}
             s_xor_b32 {bTX}, {bTA}, 0x2000""")
        M(f"""s_lshl_b32 {sT1}, {sGC}, 2
             s_add_u32 {sT2}, {sT1}, {sW}
             s_lshl_b32 {cHS2}, {sT2}, 4
             s_add_u32 {cHS2}, {cHS2}, {sMC}
             s_lshl_b32 {cHS2}, {cHS2}, 14
             s_add_u32 {cHS2}, {cHS2}, {hex(HH+4096)}
             s_xor_b32 {cHS2}, {cHS2}, {sP2}
             s_lshl_b32 {cHB}, {sT2}, 16
             s_add_u32 {cHB}, {cHB}, {hex(HB)}
             s_xor_b32 {cHB}, {cHB}, {sPE}
             s_sub_u32 {cHS}, {cHS2}, 4096
             s_lshl_b32 {sT3}, {sMC}, 14
             s_sub_u32 {cPL}, {cHS2}, {sT3}
             s_add_u32 {cPL}, {cPL}, {3072+512}
             s_add_u32 {cST}, {cPL}, 256
             v_lshlrev_b32 {HPA}, 14, v1
             v_and_b32 {PA2}, 12, {L4}
             v_or_b32 {PA2}, {PA2}, {LM8}
             v_bfe_u32 v44, v1, 2, 1
             v_lshl_add_u32 {PA2}, v44, 18, {PA2}
             s_mul_i32 {cCS}, {sMC}, {7*128}
             s_add_u32 {cCS}, {cCS}, {hex(CS)}
             s_and_b32 {sCB}, {sMC}, 7
             s_lshl_b32 {cW2}, {sCB}, 19
             s_lshl_b32 {sT3}, {sW}, 17
             s_add_u32 {cW2}, {cW2}, {sT3}
             s_and_b32 {sT3}, {sCB if self.o.get('grp', 1) else sW}, 1
             s_lshl_b32 {sT3}, {sT3}, 13
             s_add_u32 {cW2}, {cW2}, {sT3}
             s_add_u32 {cW2}, {cW2}, {hex(W2R)}
             s_xor_b32 {cW2x}, {cW2}, 0x2000
             s_and_b32 {sT3}, {sW}, 1
             s_lshl_b32 {sT2}, {sT3}, 10
             v_add_u32 {W2A}, {sT2}, {DL}
             v_xor_b32 {W2B}, 1024, {W2A}
             v_lshrrev_b32 v44, 4, v1
             v_lshl_add_u32 {LB0}, v44, {8 if self.o.get('c16', 1) else 31}, {L16}
             v_and_b32 {LB0}, 0xffff, {LB0}
             v_add_u32 {LB1}, 0x10000, {LB0}
             v_add_u32 {LB2}, 0x20000, {LB0}
             s_add_u32 {sT2}, {bTL}, 0x10000
             v_add_u32 {WLA}, {sT2}, {W2A}
             v_add_u32 {WLB}, {sT2}, {W2B}
             v_lshl_add_u32 {WLA}, v46, 11, {WLA}
             v_lshl_add_u32 {WLB}, v46, 11, {WLB}
             v_lshl_add_u32 {W2A}, v46, 15, {W2A}
             v_lshl_add_u32 {W2B}, v46, 15, {W2B}
             v_add_u32 {WLC}, 0x10000, {WLA}
             v_add_u32 {WLD}, 0x10000, {WLB}
             v_and_b32 {CSL}, 0x7c, {L4}
             s_lshr_b32 {sT2}, {sMC}, 3
             s_lshl_b32 {sT2}, {sT2}, 1
             s_add_u32 {sT1}, {sT1}, {sT2}
             s_lshl_b32 {cHL}, {sT1}, 18
             s_lshl_b32 {sT2}, {sW}, 16
             s_add_u32 {cHL}, {cHL}, {sT2}
             s_add_u32 {cHL}, {cHL}, {hex(HH)}
             s_xor_b32 {cHL}, {cHL}, {sP2}
             s_lshr_b32 {sT2}, {sW}, 1
             s_add_u32 {sT1}, {sT1}, {sT2}
             s_lshl_b32 {sT2}, {sT2}, 18
             v_add_u32 {HHA}, {sT2}, {DL}
             v_lshl_add_u32 {HHA}, v46, 14, {HHA}
             v_xor_b32 {HHB}, 0x40000, {HHA}
             s_lshl_b32 {sT1}, {sT1}, 15
             s_lshl_b32 {sT2}, {sCB}, 1
             s_add_u32 {sT2}, {sT2}, {sT3}
             s_lshl_b32 {cOUT}, {sT2}, 6
             s_add_u32 {cOUT}, {cOUT}, {sT1}
             s_lshr_b32 {cHR}, {sT2}, 2
             s_lshl_b32 {cHR}, {cHR}, 13
             s_add_u32 {cHR}, {cHR}, {sT1}
             s_and_b32 {sT2}, {sT2}, 3
             s_lshl_b32 {sT2}, {sT2}, 10
             s_add_u32 {cHR}, {cHR}, {sT2}
             s_lshl_b32 {cHR}, {cHR}, 1
             s_add_u32 {cHR}, {cHR}, {hex(HB)}
             s_xor_b32 {cHR}, {cHR}, {sPE}
             s_add_u32 {cPP}, {cHL}, 7168
             s_add_u32 {cPQ}, {cPP}, 0x40000
             s_and_b32 {sT3}, {sMC}, 3
             s_mul_i32 {sT3}, {sT3}, {16384-4}
             s_sub_u32 {cPS}, {cHS2}, {sT3}""")
        return list(M)

    def phaseCD(self):
        p = self.p
        o = self.o
        sub = self.sub
        bar = lambda s_: list(Seq()(s_))
        steps, w2o, hho = self.steps, self.w2o, self.hho

        def dmaW2(part):
            g = []
            for k in range(4):
                S = Seq()
                S(f"s_add_u32 m0, {bTL}, {(2+part)*32768+k*2048}\ns_add_u32 {sT0}, {w2o[16+4*part+k]}")
                S(f"buffer_load_dwordx4 {L16}, {WS}, {sT0} offen sc1 lds", tag=f"W2L{part}")
                g.append(list(S))
                g.append([Inst(f"buffer_load_dwordx4 {L16}, {WS}, {sT0} offen offset:1024 sc1 lds", tag=f"W2L{part}")])
                ctx(g[-2:])
            return g

        def pub(tag, st):
            if o.get('nopub'):
                return []
            return bar(f"WAITTAG {tag}\nbuffer_store_dword v4, {FA1}, {WS}, {cPS} offen offset:{3072+128*st} sc1")

        vp = str(o.get('vp', 'x0123'))

        def pollld(st):
            if o.get('nopoll'):
                return []
            if str(st) in vp:
                return bar(f"buffer_load_dword v5, {PA2}, {WS}, {cPP} offen sc1")
            return list(Seq()(f"""s_buffer_load_dwordx4 s[8:11], {WS}, {cPP} glc
                 s_buffer_load_dwordx4 s[12:15], {WS}, {cPQ} glc""", cond=True))

        def pollchk(st):
            if o.get('nopoll'):
                return []
            if str(st) in vp:
                return sub(lambda: self.spin("v5", PA2, cPP, "0xff", "1", mode='check', sleep=o.get('sleep2', 2))) + \
                    bar(f"s_add_u32 {cPP}, {cPP}, 128\ns_add_u32 {cPQ}, {cPQ}, 128")
            red = """s_and_b64 s[8:9], s[8:9], s[10:11]
                 s_and_b64 s[12:13], s[12:13], s[14:15]
                 s_and_b64 s[8:9], s[8:9], s[12:13]
                 s_and_b32 s8, s8, s9"""

            def f():
                Lp = self.lab("sp")
                if o.get('stamps') == 3:
                    self.p(f"s_mov_b32 {sT5}, 0")
                self.p("WAITALL lgkm\n" + red)
                self.ool("s_cbranch_scc0", f"""s_mov_b32 {sT5}, 0
                     {Lp}:
                     s_sleep {o.get('sleep2', 2)}
                     s_buffer_load_dwordx4 s[8:11], {WS}, {cPP} glc
                     s_buffer_load_dwordx4 s[12:15], {WS}, {cPQ} glc
                     s_add_u32 {sT5}, {sT5}, 1
                     s_waitcnt lgkmcnt(0)
                     {red}
                     s_lshr_b32 s9, {sT5}, 15
                     s_or_b32 s8, s8, s9
                     s_cbranch_scc0 {Lp}""")
                self.p(f"s_add_u32 {cPP}, {cPP}, 128\ns_add_u32 {cPQ}, {cPQ}, 128")
                if o.get('stamps') == 3:
                    self.p(f"v_writelane_b32 v{STV}, {sT5}, {self.nstamp}")
                    self.nstamp += 1
                    self.stamp_names.append(f"P{st}")
            return sub(f)

        kt = max(0, len(self.tq_rest) - self.n_w2rest)
        FQ = self.tq_rest[:kt] + self.dmaT(2, 2) + self.dmaT(3, 3) + self.dmaT(4, 4) + self.tq_rest[kt:]
        npre, npre2 = o.get('tq4', 12), o.get('tq5', 0)
        p.extend(flat(FQ[:npre]))
        FQ = FQ[npre:]
        c16 = o.get('c16', 1)
        CSR, CSF, MEANF, C1, C2 = 160, 168, 176, 180, 181
        CSU, CSG, MEANG = 213, 220, 228
        p("s_nop 0")
        for k in (1, 2, 3, 5, 6, 7, 9, 10, 11):
            p(f"v_mov_b32 v{CSF+k}, 0")
            if c16:
                p(f"v_mov_b32 v{CSG+k}, 0")
        for t in range(7):
            p.extend(split2(CSR + t, CSR + t, 184))
        if c16:
            for t in range(7):
                p(f"v_mov_b32 v{CSU+t}, v{CSR+t}")
            for t in range(7):
                p(f"v_permlane16_swap_b32 v{CSR+t}, v{CSU+t}")
            p(f"s_mov_b64 s[8:9], 0xffff\nv_mov_b32 v{CSG}, v{CSU}\nv_mov_b32 v{CSG+4}, v{CSU+1}")
        p(f"v_mov_b32 v{CSF}, v{CSR}\nv_mov_b32 v{CSF+4}, v{CSR+1}")
        p("s_nop 0")
        p.extend(flat(FQ[:npre2]))
        FQ = FQ[npre2:]
        self.stamp("C_prepoll")
        self.spin("v5", HPA, cPL, "0xffff", "1", mode='all', sleep=o.get('sleep3', 0))
        self.stamp("C_sync2")

        c16 = o.get('c16', 1)
        fo = (lambda s: (s >> 1) * 2048 + (s & 1) * 256) if c16 else (lambda s: s * 1024)

        def hload(s):
            S = Seq()
            if s % 4 == 0 and s:
                S(f"s_add_u32 {cHB}, {cHB}, {4096 if s % 8 else 12288}")
            S(f"buffer_load_dwordx4 {a_(4*s,4)}, {LB0}, {WS}, {cHB} offen offset:{fo(s&3)} sc1")
            return list(S)
        HL = o.get('hla', 10)
        for s in range(HL):
            p.extend(hload(s))
        if self.t1_late:
            p("WAITTAG T1\ns_barrier")
        ACC = [48, 64, 80, 96, 112]
        acc_of = [0, 1, 2, 3, 0, 1, 2]
        slot_of = [0, 1, 2, 3, 4, 0, 1]
        WR, NR = 128, 8
        CSR, CSF, MEANF, C1, C2 = 160, 168, 176, 180, 181
        T = 184
        LK = o.get('lk', 5)
        F0 = Seq()
        for k in range(4):
            F0(f"buffer_load_dword v{T+4+k}, {L4}, {WS}, {cST} offen sc1\ns_add_u32 {cST}, {cST}, 16384")
        F1 = Seq()
        F1(f"""v_add_f32 v{T}, v{T+4}, v{T+5}
             v_add_f32 v{T+1}, v{T+6}, v{T+7}
             v_add_f32 v{T}, v{T}, v{T+1}
             v_mov_b32 v{T+1}, v{T}
             v_permlane32_swap_b32 v{T}, v{T+1}
             v_mul_f32 v{T}, 0x3b000000, v{T}
             v_mul_f32 v{T+1}, 0x3b000000, v{T+1}
             v_cvt_pk_bf16_f32 v{MEANF}, -v{T}, -v{T}
             v_fma_f32 v{T+1}, -v{T}, v{T}, v{T+1}
             v_max_f32 v{T+1}, 0, v{T+1}
             v_add_f32 v{C2}, 0x3727c5ac, v{T+1}
             v_rsq_f32 v{C1}, v{C2}
             v_mul_f32 v{C1}, 0xbfb8aa3b, v{C1}""")
        if c16:
            prs = [(MEANF, MEANG), (C2, C2 + 2), (C1, C1 + 2)]
            for x, y in prs:
                F1(f"v_mov_b32 v{y}, v{x}")
            for x, y in prs:
                F1(f"v_permlane16_swap_b32 v{x}, v{y}")
            F1(f"""v_cndmask_b32 v{MEANF}, 0, v{MEANF}, s[8:9]
                 v_cndmask_b32 v{MEANG}, 0, v{MEANG}, s[8:9]""")
        else:
            F1(f"v_cndmask_b32 v{MEANF}, v{MEANF}, 0, {sHILANES}")

        def tread(t, s, n):
            sl = slot_of[t]
            base = (LB0, LB0, LB1, LB1, LB2)[sl]
            return [Inst(f"ds_read_b128 {v(WR+4*(n%NR),4)}, {base} offset:{(sl&1)*32768*(sl<4)+fo(s)}")]

        def corr(t):
            A = ACC[acc_of[t]]
            if c16:
                return [mf16(A + 8 * gu + 4 * th, v((CSF, CSG)[gu] + 4 * (t & 1), 4), v((MEANF, MEANG)[th], 4))
                        for gu, th in ((0, 0), (0, 1), (1, 1), (1, 0))]
            return [mf32(A, v(CSF + 4 * (t & 1), 4), v(MEANF, 4))]

        def cm(t, s, n):
            A, w = ACC[acc_of[t]], v(WR + 4 * (n % NR), 4)
            if not c16:
                return [mf32(A, w, a_(4 * s, 4), "0" if s == 0 else None)]
            gu = s & 1
            r = [mf16(A + 8 * gu + 4 * th, w, a_(8 * (s >> 1) + 4 * th, 4), "0" if s < 2 else None) for th in (gu, 1 - gu)]
            r[1].tag = "second"
            return r

        def spread(G):
            out = []
            for g in G:
                g = hoist(g)
                if len(g) > 1 and g[1].tag == "second":
                    m, rest, c, k = g[1], g[2:], 0, 0
                    m.tag = None
                    tot = sum(cost(x) for x in rest if not x.cond)
                    while k < len(rest) and c + cost(rest[k]) <= max(9.7, tot / 2 + 2.2) and not rest[k].cond \
                            and rest[k].kind not in ('branch', 'label') and not rest[k].op.startswith('v_cmp'):
                        c += cost(rest[k])
                        k += 1
                    g = [g[0]] + rest[:k] + [m] + rest[k:]
                out += g
            return out
        G = []
        for n in range(64):
            s, t = divmod(n, 2)
            g = cm(t, s, n)
            if n + LK < 64:
                g += tread((n + LK) % 2, (n + LK) // 2, n + LK)
            else:
                if n + LK == 64:
                    g += bar("WAITTAG T2\ns_barrier")
                g += tread(2, n + LK - 64, n + LK)
            if t == 0 and s + HL < 32:
                g += hload(s + HL)
            G.append(g)
        G.append(corr(0))
        G.append(corr(1))
        for n in range(LK):
            p.extend(tread(n % 2, n // 2, n))
        G = weave(G, list(F0), 1, o.get('f0', 20))
        G = weave(G, list(F1), o.get('f1', 40), 63)
        e0 = 2 * (32 - HL)
        ng = min(len(FQ), o.get('g1q', 8))
        G = weave(G, FQ[:ng], e0, 66)
        FQ = FQ[ng:]
        p.extend(spread(G))
        self.stamp("C_g1")

        def epi(t, tmp):
            A = ACC[acc_of[t]]
            S = Seq()
            for j in range(8):
                S(f"v_mul_f32 v{tmp+j}, v{A+j}, v{C1+2*c16*(j>>2)}")
            for j in range(8):
                S(f"v_exp_f32 v{tmp+j}, v{tmp+j}")
                S(f"v_mul_f32 v{A+j}, v{A+j}, v{A+8+j}")
            for j in range(8):
                S(f"v_fma_f32 v{tmp+j}, v{tmp+j}, v{C2+2*c16*(j>>2)}, v{C2+2*c16*(j>>2)}")
                if j >= 2:
                    S(f"v_rcp_f32 v{tmp+j-2}, v{tmp+j-2}")
            for j in range(8):
                S(f"v_mul_f32 v{A+j}, v{A+j}, v{tmp+j}")
                if j < 2:
                    S(f"v_rcp_f32 v{tmp+6+j}, v{tmp+6+j}")
            for j in (0, 2, 1, 3):
                S(f"v_cvt_pk_bf16_f32 v{tmp+8+j}, v{A+2*j}, v{A+2*j+1}")
            if c16:
                S(f"v_permlane16_swap_b32 v{tmp+8}, v{tmp+10}\nv_permlane16_swap_b32 v{tmp+9}, v{tmp+11}")
            S(f"buffer_store_dwordx4 {v(tmp+8,4)}, {L16}, {WS}, {cHS if t < 4 else cHS2} offen offset:{(t&3)*1024} sc1", tag=f"hh{t}")
            return list(S)

        def tilepass(t, n0):
            G = []
            for s in range(32):
                n = n0 + s
                g = cm(t, s, n)
                if s + LK < 32:
                    g += tread(t, s + LK, n + LK)
                elif t < 6:
                    if s + LK == 32:
                        g += bar(f"WAITTAG T{t+1}\ns_barrier")
                    g += tread(t + 1, s + LK - 32, n + LK)
                if s == 16:
                    g += bar(f"v_mov_b32 v{CSF+4*(t&1)}, v{CSR+t}")
                if s == 17 and c16:
                    g += bar(f"v_mov_b32 v{CSG+4*(t&1)}, v{CSU+t}")
                G.append(g)
            G.append(corr(t))
            return G

        d16 = o.get('d16', 1)

        def hhload(i):
            S = Seq()
            if d16:
                ad = HHB if i & 1 else HHA
                S(f"s_add_u32 {sCc}, {cHL}, {hho[i & ~1]}")
                S(f"buffer_load_dwordx4 {a_(8*(i&15),4)}, {ad}, {WS}, {sCc} offen sc1")
                return ctx([list(S), [Inst(f"buffer_load_dwordx4 {a_(8*(i&15)+4,4)}, {ad}, {WS}, {sCc} offen offset:256 sc1")]])
            S(f"s_add_u32 {sCc}, {cHL}, {hho[i]}")
            S(f"buffer_load_dwordx4 {a_(8*(i&15),4)}, {HHA}, {WS}, {sCc} offen sc1")
            return ctx([list(S), [Inst(f"buffer_load_dwordx4 {a_(8*(i&15)+4,4)}, {HHB}, {WS}, {sCc} offen sc1")]])

        EP = [epi(t, T + 12 * (t & 1)) for t in range(7)]
        P = {t: tilepass(t, 32 * t) for t in range(2, 7)}
        q = o.get('cq', 18)
        ee = o.get('ee', 20)
        LA = o.get('dla', 7)
        G = weave(P[2], FQ[:q], 0, 32)
        FQ = self.dmaT(5, 0) + FQ[q:]
        FQ = FQ[:q] + self.dmaT(6, 1) + FQ[q:] + dmaW2(0) + dmaW2(1) + dmaW2(2)
        G = weave(G, EP[0] + EP[1][:26], 2, 33)
        p.extend(self.xf(spread(G)))
        self.stamp("C_t2")
        q3 = min(q, len(FQ) - 24)
        G = weave(P[3], FQ[:q3], 0, 32)
        FQ = FQ[q3:]
        G = weave(G, EP[1][26:] + EP[2], 0, 33)
        p.extend(self.xf(spread(G)))
        self.stamp("C_t3")
        q4 = min(q, len(FQ) - 16)
        G = weave(P[4], FQ[:q4], 0, 32)
        FQ = FQ[q4:]
        G = weave(G, EP[3], 2, ee)
        G[o.get('p1at', 26)] += pub("hh2", 0)
        p.extend(self.xf(spread(G)))
        self.stamp("C_t4")
        q5 = min(q, len(FQ) - 8)
        G = weave(P[5], FQ[:q5], 0, 32)
        FQ = FQ[q5:]
        G[o.get('l1', 14)] += pollld(0)
        G[1] += bar(f"buffer_load_dwordx4 v[24:27], {L16}, {WS}, {cHR} offen sc1")
        G[3] += bar(f"buffer_load_dwordx4 v[28:31], {L16}, {WS}, {cHR} offen offset:1024 sc1")
        G = weave(G, EP[4], 2, ee)
        p.extend(self.xf(spread(G)))
        self.stamp("C_t5")
        G = P[6]
        c1 = o.get('c1', 1)
        n6 = min(o.get('n6', 0), len(FQ))
        if n6:
            G = weave(G, FQ[:n6], 0, max(c1, 1))
            FQ = FQ[n6:]
        G[c1] += pollchk(0)
        hq = [x for i in range(LA) for x in hhload(i)]
        G = weave(G, hq, c1 + 1, 33)
        S = Seq()
        if d16:
            for i in (24, 25, 28, 29):
                S(f"v_permlane16_swap_b32 v{i}, v{i+2}")
        for i in range(8):
            S(f"v_lshlrev_b32 v{48+2*i}, 16, v{24+i}\nv_and_b32 v{49+2*i}, {sMSKHI}, v{24+i}")
        for k in range(4):
            S(f"""s_xor_b32 {sT1}, {sW}, {k}
                 s_mul_i32 {sT1}, {sT1}, 12288
                 v_add_u32 v{36+k}, {sT1}, {L16}""")
        G = weave(G, list(S), ee + 1, 33)
        G = weave(G, EP[5], 2, ee)
        G[o.get('p2at', 12)] += pub("hh4", 1)
        p.extend(self.xf(spread(G)))
        self.stamp("C_t6")

        DA = [48, 64, 96, 112]

        def w2r(i, a):
            return (128, 168, 128)[(i - 16) // 4] + 8 * (i % 4) + 4 * a

        def w2read(i):
            part, k = divmod(i - 16, 4)
            r = bar(f"WAITTAG W2L{part}") if k == 0 else []
            for a in range(2):
                ad = ((WLA, WLB), (WLA, WLB), (WLC, WLD))[part][k & 1 if d16 else a]
                r.append(Inst(f"ds_read_b128 {v(w2r(i, a), 4)}, {ad} offset:{(part&1)*32768 + ((k&2)*2048 + a*256 if d16 else k*2048)}"))
            return r

        def w2f(i, a):
            return a_(128 + 8 * i + 4 * a, 4) if i < 16 else v(w2r(i, a), 4)

        def dm(i, k):
            a, b = k & 1, k >> 1
            if d16:
                j, ch = i & ~1, i & 1
                r = [mf16(DA[k] + 8 * ch + 4 * th, w2f(j + a, ch), a_(8 * ((j + b) & 15) + 4 * th, 4), "0" if j == 0 and k else None)
                     for th in (ch, 1 - ch)]
                r[1].tag = "second"
                return r
            return [mf32(DA[k], w2f(i, a), a_(8 * (i & 15) + 4 * b, 4), "0" if i == 0 and k else None)]
        nl = o.get('nl', 4)
        if d16:
            assert nl % 2 == 0
            G = [dm(j + ch, k) for j in range(0, 28 - nl, 2) for k in (0, 1, 3, 2) for ch in range(2)]
        else:
            G = [dm(i, k) for i in range(28 - nl) for k in (1, 3, 2, 0)]
        G += [dm(i, k) for k in (1, 3, 2, 0) for i in range(28 - nl, 28)]
        for i in range(16, 28):
            G[min(4 * i - 7 - 2 * d16 * (i & 1), 4 * (28 - nl) - 8 + (i - (28 - nl)))] += w2read(i)
        c2, c3, c4 = o.get('c2', 22), o.get('c3', 54), o.get('c4', 76)
        l2, l3, l4 = o.get('l2', 6), o.get('l3', 37), o.get('l4', 62)
        G[l2] += pollld(1)
        G = weave(G, EP[6], 1, o.get('e6', 11))
        G[o.get('p3at', 12)] += pub("hh5", 2)
        G[l3] += pollld(2)
        G[o.get('p4at', 38)] += pub("hh6", 3)
        G[o.get('dbar', 40)] += bar("s_barrier")
        hs = lambda a, b: [x for i in range(a, b) for x in hhload(i)]
        G = weave(G, hs(LA, 12), 0, c2)
        G[c2] += pollchk(1)
        nf = max(0, len(FQ) - o.get('nf', 8))
        G = weave(G, hs(12, 16) + FQ[:nf] + hs(16, 20), c2 + 1, c3)
        G[c3] += pollchk(2)
        G = weave(G, hs(20, 24), c3 + 1, l4)
        G[l4] += pollld(3)
        G = weave(G, FQ[nf:], l4 + 1, c4)
        G[c4] += pollchk(3)
        G = weave(G, hs(24, 28), c4 + 1, c4 + o.get('h4', 9))
        WRT = [[Inst(f"ds_write_b128 v{36+k}, {v(DA[k]+4*q_,4)} offset:{(k-1)*4096+q_*1024}") for q_ in range(4)] for k in (1, 3, 2)]
        if nl >= 2:
            for n in range(3):
                G = weave(G, WRT[n], 112 - (3 - n) * nl + 1, 112 - (2 - n) * nl + (1 if n < 2 else 0))
        else:
            G[111] += flat(WRT)
        for k in sorted(set(list(range(8, 112, 8)) + [c2 - 1, c2, c3 - 1, c3, c4 - 1, c4])):
            G[k] += sub(lambda: self.stamp(f"d{k}"))
        p.extend(self.xf(spread(G)))
        self.stamp("D_loop")
        p("WAITALL lgkm\ns_barrier")
        for q_ in range(4):
            for k in range(3):
                p(f"ds_read_b128 {v(160+16*k+4*q_,4)}, v36 offset:{k*4096+q_*1024}")
        for q_ in range(4):
            for j in range(2):
                r = 4 * q_ + 2 * j
                p(f"v_pk_add_f32 {v(48+r,2)}, {v(48+r,2)}, {v(160+r,2)}")
                p(f"v_pk_add_f32 {v(176+r,2)}, {v(176+r,2)}, {v(192+r,2)}")
            for j in range(2):
                r = 4 * q_ + 2 * j
                p(f"v_pk_add_f32 {v(48+r,2)}, {v(48+r,2)}, {v(176+r,2)}")
            for j in range(2):
                p(f"v_cvt_pk_bf16_f32 v{112+2*q_+j}, v{48+4*q_+2*j}, v{48+4*q_+2*j+1}")
            if q_ & 1 and d16:
                p(f"v_permlane16_swap_b32 v{110+2*q_}, v{112+2*q_}\nv_permlane16_swap_b32 v{111+2*q_}, v{113+2*q_}")
            if q_ & 1:
                p(f"buffer_store_dwordx4 {v(112+4*(q_>>1),4)}, {ROWA}, {OUT}, {cOUT} offen offset:{32*(q_>>1)}" + ["", " sc1", " nt", " sc0 sc1"][o.get('outst', 0)])
        self.stamp("D_end")

    def finish(self):
        p = self.p
        if self.o.get('stamps'):
            p("WAITALL vm")
            self.stamp("D_drained")
            p(f"""s_lshl_b32 {sT0}, s2, 2
                 s_add_u32 {sT0}, {sT0}, {sW}
                 s_lshl_b32 {sT0}, {sT0}, 7
                 s_add_u32 {sT0}, {sT0}, {hex(STAMP)}
                 s_mov_b32 exec_hi, 0
                 buffer_store_dword v{STV}, {L4}, {WS}, {sT0} offen""")
        if self.o.get('padto'):
            p("WAITALL vm")
            if self.o.get('skew') is not None:
                p(f"""buffer_load_dword v43, off, {DBG}, 0 offset:128 sc1
                     buffer_load_dword v41, off, {DBG}, 0 offset:192 sc1
                     v_not_b32 v43, v43
                     v_readfirstlane_b32 s72, v43
                     v_readfirstlane_b32 s73, v41""")
                if self.o['skew'] < 0:
                    p("s_sub_u32 s101, s73, s72")
                else:
                    p("s_sub_u32 s101, s100, s72")
                p(f"""s_min_u32 s101, s101, 2000
                     s_lshl_b32 s101, s101, 3
                     s_add_u32 s100, s72, s101
                     s_lshl_b32 s72, s2, 2
                     s_add_u32 s72, s72, {sW}
                     s_cmp_lg_u32 s72, {max(self.o['skew'], 0) * 4}
                     s_cbranch_scc1 L_end""")
            if self.o.get('seg0'):
                p(f"s_lshl_b32 s72, s2, 2\ns_add_u32 s72, s72, {sW}\ns_cmp_lg_u32 s72, {self.o.get('segw', 150)}\ns_cbranch_scc1 L_end")
            p("L_pad:\ns_memrealtime s[72:73]\ns_waitcnt lgkmcnt(0)\ns_sub_u32 s72, s72, s100")
            p(f"s_cmp_lt_i32 s72, {self.o['padto']}\ns_cbranch_scc1 L_pad")
        p("L_end:\ns_endpgm")

    def build(self):
        if self.o.get('stamps') or self.o.get('padto'):
            self.p("s_memtime s[100:101]" if self.o.get('stamps') == 2 else "s_memrealtime s[100:101]")
        self.setup()
        if self.o.get('seg0') == 'start':
            self.p("s_mov_b32 s101, s100")
        if self.o.get('stamps'):
            self.p(f"v_mov_b32 v{STV}, s100")
            self.nstamp = 1
            self.stamp_names.append("start")
        self.p.extend(self.xf(self.sub(self.phaseA), 'xa'))
        self.p.extend(self.xf(self.sub(self.phaseB), 'xb'))
        self.phaseCD()
        self.finish()
        sk = str(self.o.get('skel', ''))
        if sk:
            Q = Seq()
            for i in self.p:
                if 'm' in sk and i.kind == 'mfma':
                    r = sorted(i.srcab)
                    for x in (r[0], r[-1]):
                        Q(f"v_accvgpr_read_b32 v40, {x}" if x[0] == 'a' else f"v_mov_b32 v40, {x}")
                    continue
                if 'e' in sk and i.kind in ('valu', 'trans') and not i.cond and i.op.endswith(('f32', 'f32_e64')):
                    continue
                if 'v' in sk and i.kind in ('vload', 'dma') and not i.cond and 'dwordx4' in i.op:
                    continue
                if 's' in sk and i.kind == 'vstore' and not i.cond and (i.wide or 'f32' in i.op) and 'v[176:179]' not in i.text:
                    continue
                Q.append(i)
            self.p = Q
        ns = str(self.o.get('nosc', ''))
        for i in self.p:
            if i.kind in ('vload', 'dma') and 'dwordx' in i.op and not i.cond:
                for ch, regs in (('k', (sKVL, bK2, sZL)), ('q', (sPQL, bQ2)), ('h', (cHB,)), ('t', (sT0, sKC)), ('d', (sCc,))):
                    if ch in ns and any(f"{WS}, {r} " in i.text for r in regs):
                        i.text = i.text.replace(" sc1", "")
        import dsl
        dsl.MERGE = self.o.get('mg', 1)
        return finalize(self.p, self.o.get('fill', 1))


def emit(opt):
    g = Gen(opt)
    prog = g.build()
    hdr = open(os.path.join(os.path.dirname(os.path.abspath(__file__)), "header.txt")).read()
    body = "\n".join(("" if i.kind == 'label' else "    ") + i.text for i in prog)
    txt = hdr + f"""; @launch grid=(256,1,1) block=(256,1,1) lds=163840
.amdgcn_target "amdgcn-amd-amdhsa--gfx950"
.set CODE_PF_MAX, {opt.get('code_bytes', 0)}
.text
.globl {NAME}_kernel
.p2align 8
.type {NAME}_kernel,@function
{NAME}_kernel:
{body}
.section .rodata,"a"
.p2align 6
.amdhsa_kernel {NAME}_kernel
  .amdhsa_next_free_vgpr 512
  .amdhsa_next_free_sgpr 102
  .amdhsa_accum_offset 256
  .amdhsa_group_segment_fixed_size 0
  .amdhsa_kernarg_size 80
  .amdhsa_user_sgpr_count 2
  .amdhsa_user_sgpr_kernarg_segment_ptr 1
  .amdhsa_system_sgpr_workgroup_id_x 1
.end_amdhsa_kernel
"""
    return txt, g.stamp_names


def code_size(txt):
    import subprocess, tempfile
    with tempfile.TemporaryDirectory() as d:
        open(d + "/k.s", "w").write(txt)
        r = subprocess.run(["clang", "-x", "assembler", "-target", "amdgcn-amd-amdhsa",
                            "-mcpu=gfx950", "-c", d + "/k.s", "-o", d + "/k.o"], capture_output=True, text=True)
        if r.returncode:
            print("\n".join(r.stderr.split("\n")[:30]))
            raise SystemExit(1)
        r = subprocess.run(["llvm-objdump", "-h", d + "/k.o"], capture_output=True, text=True)
        for line in r.stdout.split("\n"):
            f = line.split()
            if len(f) > 2 and f[1] == ".text":
                return int(f[2], 16)


def main():
    opt = {}
    out = None
    for a in sys.argv[1:]:
        if '=' in a:
            k, val = a.split('=')
            try:
                opt[k] = int(val, 0)
            except ValueError:
                opt[k] = val
        else:
            out = a
    opt['code_bytes'] = 4096
    txt, names = emit(opt)
    sz = code_size(txt)
    opt['code_bytes'] = (sz - 1024) & ~3
    txt, names = emit(opt)
    open(out, "w").write(txt)
    if names:
        open(out + ".names", "w").write(" ".join(names))
    print(out, "code bytes", sz, "lines", txt.count("\n"), "stamps", len(names))


if __name__ == "__main__":
    main()
```

```python
import sys, os
sys.path.insert(0, os.path.dirname(os.path.abspath(__file__)))
from dsl import *

NAME = "sequential_preLN__linear_attn_block__glu_gated_swiglu__prompt"

CNT = 0x20000
KVM = 0x10000
ST = 0x18000
CS = 0x1C000
ZP = 0x1F800
STAMP = 0xC0000
PQ = 0x400000
HB = 0x800000
HH = 0x1000000
W13R = 0x2000000
W2R = 0x2800000
PROBE = 0x100000
WS_SIZE = 0x2C00000
OOB = 0x7f000000

X, WQKV, WO, W1, W3, W2, OUT, WS, DBG = [f"s[{a}:{a+3}]" for a in range(4, 40, 4)]
(sW, sG, sM, sC0, sT0, sT1, sT2, sT3, sXB, sWB, sXL, sWL, sTB, sCB, sRQ, sLOG2E,
 sU, sKC, sT4, sT5, sMSKHI, sEPS6) = [f"s{i}" for i in range(40, 62)]
sHILANES = "s[62:63]"
sB4LANES = "s[64:65]"
sA, sB, sCc, sD = "s66", "s67", "s68", "s69"
sKVA, sZA, sPQS, sRW, sR2, sRC, sKVL, sZL, sPQL, sSIG, sHST, sSTA = [f"s{i}" for i in range(84, 96)]
sMA, sTA, sHS = "s3", "s74", "s83"
sP1, sPE, sP2, sTBL = "s96", "s97", "s98", "s99"
STV = 0

VB, KB, XCH, RST, KVS, ZS = 0x10000, 0x18000, 0x20000, 0x22000, 0, 0x21000

L16, L4 = "v2", "v3"
TRK, TRP = 152, 156
XCW, XCR, KVW, ZW, STW, KVR, ZR, ZAT, STR = [f"v{i}" for i in range(212, 221)]
WOD, WOT, OAD = 221, 225, 229
ROWA, ZBW, ZBR, P256 = "v233", "v234", "v235", "v236"
RL1, RL3, RL2, RT13, RT2A, RT2B, CSAT, P4K, FA1, LM8, PA2 = [f"v{i}" for i in range(237, 248)]
RCS = 248


def v(a, n=1):
    return f"v{a}" if n == 1 else f"v[{a}:{a+n-1}]"


def a_(a, n=1):
    return f"a{a}" if n == 1 else f"a[{a}:{a+n-1}]"


def mf32(d, A, B, c=None):
    return Inst(f"v_mfma_f32_32x32x16_bf16 {v(d,16)}, {A}, {B}, {v(d,16) if c is None else c}")


def mf16(d, A, B, c=None):
    return Inst(f"v_mfma_f32_16x16x32_bf16 {v(d,4)}, {A}, {B}, {v(d,4) if c is None else c}")


def mf4(d, A, B, c=None):
    return Inst(f"v_mfma_f32_4x4x4_16b_bf16 {v(d,4)}, {A}, {B}, {v(d,4) if c is None else c}")


def trpair(dst, addr, off, step):
    k, b = dst
    return [Inst(f"ds_read_b64_tr_b16 {k}[{b}:{b+1}], {addr} offset:{off}"),
            Inst(f"ds_read_b64_tr_b16 {k}[{b+2}:{b+3}], {addr} offset:{off+step}")]


def par13(t):
    return (t >> 1) & 1


def par2(pr, t):
    return (pr >> 1) if t < 3 else (t & 1) ^ 1


def split2(dst, src, t):
    return Seq()(f"""v_cvt_pk_bf16_f32 v{t}, v{src}, v{src}
         v_lshlrev_b32 v{t}, 16, v{t}
         v_sub_f32 v{t}, v{src}, v{t}
         v_cvt_pk_bf16_f32 v{dst}, v{src}, v{t}""")


cHB, cST, cHS, cHR, cCS, cW2, cHL, cOUT, cHS2 = [f"s{i}" for i in range(75, 84)]
cPP, cPQ, cPS, cPL, bTA, bTL, bK2, bQ2, bGP, bRP, bTX, cW2x, sGC, sMC = [f"s{i}" for i in (4, 5, 6, 7, 16, 17, 18, 19, 20, 21, 22, 23, 24, 25)]
W2A, W2B, LB1, LB2, WLA, WLB, WLC, WLD = [f"v{i}" for i in range(6, 14)]
CSL, HHA, HHB, HPA, LB0 = "v14", "v15", "v42", "v43", "v212"


class Gen:
    def __init__(self, opt):
        self.o = opt
        self.p = Seq()
        self.nl = 0
        self.nstamp = 0
        self.stamp_names = []

    def lab(self, s):
        self.nl += 1
        return f"L_{s}_{self.nl}"

    def stamp(self, name):
        if self.o.get('padat') == name:
            self.p("WAITALL lgkm\ns_memrealtime s[100:101]\nWAITALL lgkm")
        if self.o.get('seg0') == name:
            self.p("WAITALL lgkm\ns_memrealtime s[72:73]\nWAITALL lgkm\ns_mov_b32 s101, s72")
        if self.o.get('seg1') == name:
            self.p("WAITALL lgkm\ns_memrealtime s[72:73]\nWAITALL lgkm\ns_sub_u32 s101, s72, s101\ns_lshl_b32 s101, s101, 4\ns_add_u32 s100, s100, s101")
        if self.o.get('stamps', 3) == 3:
            return
        fine = str(self.o.get('fine', ''))
        if name[0].islower() and name[0] not in fine:
            return
        if fine and name[0].isupper() and name[0].lower() not in fine and name not in ('C_t6', 'B_sync1', 'C_sync2', 'D_drained', 'A_loop', 'A_v', 'A_q'):
            return
        p = self.p
        if self.o.get('nb'):
            if self.nstamp > 1:
                p(f"v_writelane_b32 v{STV}, s72, {self.nstamp-1}", cond=True)
            p("s_memrealtime s[72:73]" if self.o['stamps'] == 1 else "s_memtime s[72:73]", cond=True)
            if name == 'D_drained':
                p(f"s_waitcnt lgkmcnt(0)\nv_writelane_b32 v{STV}, s72, {self.nstamp}", cond=True)
            self.nstamp += 1
            self.stamp_names.append(name)
            return
        p("WAITALL lgkm")
        p("s_memrealtime s[72:73]" if self.o['stamps'] == 1 else "s_memtime s[72:73]")
        p("WAITALL lgkm")
        p(f"v_writelane_b32 v{STV}, s72, {self.nstamp}")
        self.nstamp += 1
        self.stamp_names.append(name)

    def sub(self, fn):
        save = self.p
        self.p = Seq()
        fn()
        r = list(self.p)
        self.p = save
        return r

    def xf(self, L, key='x'):
        x = self.o.get(key, '')
        out = []
        for i in L:
            if 'v' in x and i.kind in ('vload', 'dma') and not i.cond and 'dwordx4' in i.op:
                continue
            if 'e' in x and i.kind in ('valu', 'trans') and not i.cond and i.op.endswith(('f32', 'f32_e64')):
                continue
            if 'l' in x and i.kind == 'dsr':
                continue
            if 's' in x and i.kind == 'vstore' and 'store' in i.op and not i.cond:
                continue
            if 'b' in x and i.op == 's_barrier':
                continue
            if 'm' in x and i.kind == 'mfma' and i.passes < 8:
                continue
            out.append(i)
        return out

    def ool(self, branch, text):
        p = self.p
        L, R = self.lab("o"), self.lab("r")
        p(f"{branch} {L}")
        n = len(p)
        p(f"{L}:\n{text}\ns_branch {R}", cond=True)
        for i in p[n:]:
            i.ool = L
        p(f"{R}:")

    def spin(self, vt, vaddr, soff, mask, target, srd=WS, mode='wave0', sleep=0, field=None, wave=0):
        p = self.p
        Lp = self.lab("pl")
        addr = f"{vaddr}, {srd}, {soff} offen" if vaddr else f"off, {srd}, {soff}"
        ext = f"v_and_b32 v43, {field}, {vt}\n" if field is not None else ""
        vc = "v43" if field is not None else vt
        loop = f"""s_mov_b32 {sT5}, 0
             s_mov_b64 exec, {mask}
             {Lp}:
             {f's_sleep {sleep}' if sleep else ''}
             buffer_load_dword {vt}, {addr} sc1
             s_add_u32 {sT5}, {sT5}, 1
             s_waitcnt vmcnt(0)
             {ext}v_cmp_gt_u32 vcc, {target}, {vc}
             s_cmp_ge_u32 {sT5}, 0x8000
             s_cselect_b64 vcc, 0, vcc
             s_and_b64 exec, exec, vcc
             s_cbranch_scc1 {Lp}
             s_mov_b64 exec, -1"""
        if self.o.get('stamps') == 3:
            p(f"s_mov_b32 {sT5}, 0")
        if mode == 'check':
            p(f"{ext}v_cmp_gt_u32 vcc, {target}, {vc}\ns_and_b64 vcc, vcc, {mask}")
            self.ool("s_cbranch_scc1", loop)
        elif mode == 'wave0':
            Ld = self.lab("pd")
            p(f"s_cmp_lg_u32 {sW}, {wave}\ns_cbranch_scc1 {Ld}")
            p(loop, cond=True)
            p(f"{Ld}:")
        else:
            p(loop, cond=True)
            p("s_waitcnt vmcnt(0)")
        if self.o.get('stamps') == 3:
            p(f"v_writelane_b32 v{STV}, {sT5}, {self.nstamp}")
            self.nstamp += 1
            self.stamp_names.append(f"spin{self.nstamp}")

    def setup(self):
        p = self.p
        p(f"""s_cmp_ge_u32 s2, 256
             s_cbranch_scc1 L_end
             s_load_dwordx16 s[76:91], s[0:1], 0
             s_load_dwordx4 s[92:95], s[0:1], 64""")
        p("v_and_b32 v1, 63, v0\nv_lshrrev_b32 v4, 6, v0")
        p(f"v_readfirstlane_b32 {sW}, v4")
        p(f"""s_mov_b32 s6, 0x200000
             s_mov_b32 s7, 0x20000
             s_mov_b32 s10, 0x180000
             s_mov_b32 s11, 0x20000
             s_lshr_b32 {sU}, s2, 3
             s_and_b32 {sKC}, s2, 7
             s_and_b32 {sRQ}, {sU}, 3
             s_and_b32 {sG}, s2, 6
             s_lshl_b32 {sG}, {sG}, 1
             s_add_u32 {sG}, {sG}, {sRQ}
             s_lshr_b32 {sT1}, s2, 5
             s_and_b32 {sT2}, s2, 1
             s_lshl_b32 {sTA}, {sG}, 1
             s_add_u32 {sTA}, {sTA}, {sT2}
             s_lshl_b32 {sXL}, {sW}, 14
             s_lshl_b32 {sXB}, {sTA}, 16
             s_add_u32 {sXB}, {sXB}, {sXL}
             s_xor_b32 {sMA}, {sT1}, 4
             s_mul_i32 {sWB}, {sW}, {16*3072}
             s_lshl_b32 {sT0}, {sMA}, 7
             s_add_u32 {sWB}, {sWB}, {sT0}
             s_lshl_b32 {sWL}, {sW}, 11
             s_add_u32 {sC0}, {sT1}, {sKC}""")
        rot = self.o.get('rot', 6)
        if rot == 7:
            p(f"s_lshl_b32 {sT0}, {sU}, 2\ns_add_u32 {sC0}, {sC0}, {sT0}")
        if rot == 8:
            p(f"s_lshl_b32 {sT0}, {sRQ}, 1\ns_add_u32 {sC0}, {sC0}, {sT0}")
        if rot == 0:
            p(f"s_mov_b32 {sC0}, 0")
        if rot == 1:
            p(f"s_mov_b32 {sC0}, {sKC}")
        if rot == 9:
            p(f"s_lshl_b32 {sC0}, {sT1}, 1\ns_add_u32 {sC0}, {sC0}, {sKC}")
        p(f"""v_lshrrev_b32 v4, 3, v1
             v_and_b32 v5, 7, v1
             v_lshrrev_b32 v3, 4, v1
             v_xor_b32 v6, v5, v3
             v_lshlrev_b32 v6, 4, v6
             v_lshl_add_u32 v6, v4, 10, v6
             v_xor_b32 v7, 64, v6
             v_add_u32 v7, 7168, v7
             v_and_b32 v3, 1, v3
             v_lshlrev_b32 v3, 2, v3
             v_xor_b32 v5, v5, v3
             v_lshlrev_b32 v5, 4, v5
             v_mul_u32_u24 v8, 3072, v4
             v_add_u32 v8, v8, v5
             v_add_u32 v9, {8*3072-1024}, v8""")
        p("WAITALL lgkm")
        p("s_mov_b64 s[4:5], s[76:77]\ns_mov_b64 s[8:9], s[78:79]")

    def dmaW(self, t, c):
        base, po = ((KB, 1024), (VB, 2048), (0, 0))[t]
        tag = f"{'AVQ'[t]}{c}"
        S = Seq()
        S(f"s_add_u32 m0, {sWL}, {base + c*8192 - po}")
        S(f"buffer_load_dwordx4 v8, {WQKV}, s{75+c} offen offset:{po} lds", tag=tag)
        return ctx([list(S), [Inst(f"buffer_load_dwordx4 v9, {WQKV}, s{75+c} offen offset:{po+1024} lds", tag=tag)]])

    def dmaA(self, c):
        wc = f"s{75+c}"
        g = self.dmaW(0, c)
        g[0] = list(Seq()(f"""s_add_u32 {sT0}, {sC0}, {c}
             s_and_b32 {sT0}, {sT0}, 7
             s_mul_i32 {wc}, {sT0}, {64*3072}
             s_add_u32 {wc}, {wc}, {sWB}
             s_lshl_b32 {sT0}, {sT0}, 7""")) + g[0]
        nt = " nt" if self.o.get('xnt', 0) else ""
        S = Seq()
        S(f"s_add_u32 m0, {sWL}, {c*8192}\ns_add_u32 {sT0}, {sT0}, {sXB}")
        S(f"buffer_load_dwordx4 v6, {X}, {sT0} offen{nt} lds", tag=f"A{c}")
        g += [list(S), [Inst(f"buffer_load_dwordx4 v7, {X}, {sT0} offen offset:1024{nt} lds", tag=f"A{c}")]]
        return ctx(g)

    def dmaWO(self, q):
        S = Seq()
        S(f"""s_add_u32 {sT0}, {sA}, {q*65536}
             s_add_u32 m0, {sB}, {q*16384}
             s_and_b32 {sT0}, {sT0}, 0x7ffff""")
        g = []
        for k in range(4):
            S(f"buffer_load_dwordx4 v{WOD+k}, {WO}, {sT0} offen offset:{k*1024} lds", tag=f"WO{q>>2}")
            g.append(list(S))
            S = Seq()
        return ctx(g)

    def rload(self):
        nt = " nt" if self.o.get('rnt', 1) else ""
        g = []
        for k, (ad, srd, s0, s1) in enumerate(((RL1, W1, sKVL, sZL), (RL3, W3, sKVL, sZL), (RL2, W2, sPQL, sHST))):
            g.append(list(Seq()(f"s_add_u32 m0, {sSTA}, {k*2048}\nbuffer_load_dwordx4 {ad}, {srd}, {s0} offen{nt} lds")))
            g.append(list(Seq()(f"buffer_load_dwordx4 {ad}, {srd}, {s1} offen offset:1024{nt} lds", tag=f"RL{k}")))
            ctx(g[-2:])
        return g[4:] + g[:4]

    def miscA(self):
        M = Seq()
        a, b, c, d = "v208", "v209", "v210", "v211"
        M(f"""v_lshl_add_u32 {RL2}, v4, 10, v5
             v_mul_u32_u24 v4, 3584, v4
             v_add_u32 {RL1}, v4, v5
             v_xor_b32 {RL3}, 32, {RL1}
             v_mov_b32 v4, 1
             v_lshlrev_b32 {L4}, 2, v1
             s_mov_b32 {sLOG2E}, 0x3fb8aa3b
             s_mov_b32 {sMSKHI}, 0xffff0000
             s_mov_b32 {sEPS6}, 0x358637bd
             s_mov_b32 s62, 0
             s_mov_b32 s63, -1
             s_mov_b32 s64, 0xffff0000
             s_mov_b32 s65, 0xffff0000
             s_mov_b32 s96, 0x22222222
             s_mov_b32 s97, 0x22222222
             s_mov_b32 s98, 0x44444444
             s_mov_b32 s99, 0x44444444
             s_mov_b32 s70, 0x88888888
             s_mov_b32 s71, 0x88888888
             s_and_b32 {sM}, s2, 1
             s_lshl_b32 {sM}, {sM}, 3
             s_lshr_b32 {sT1}, s2, 5
             s_add_u32 {sM}, {sM}, {sT1}
             s_and_b32 {sCB}, {sM}, 3
             s_and_b32 {sT1}, {sW}, 1
             s_lshr_b32 {sT2}, {sW}, 1
             s_lshl_b32 {sMA}, {sMA}, 1
             s_add_u32 {sMA}, {sMA}, {sT2}
             s_lshl_b32 {sTA}, {sTA}, 1
             s_add_u32 {sTA}, {sTA}, {sT1}""")
        M(f"""v_and_b32 {a}, 31, v1
             v_lshrrev_b32 {b}, 5, v1
             v_bfe_u32 {c}, v1, 1, 3
             v_xor_b32 {c}, {b}, {c}
             v_lshlrev_b32 {c}, 4, {c}
             v_lshl_add_u32 {c}, {a}, 7, {c}
             s_lshl_b32 {sT3}, {sT1}, 12
             s_lshl_b32 {sT4}, {sW}, 5
             s_add_u32 {sT3}, {sT3}, {sT4}
             v_xor_b32 v10, {sT3}, {c}
             v_xor_b32 v11, 32, v10
             v_xor_b32 v12, 64, v10
             v_xor_b32 v13, 96, v10
             s_lshl_b32 {sT3}, {sCB}, 1
             s_add_u32 {sT3}, {sT3}, {sT2}
             s_sub_u32 {sT3}, {sT3}, {sC0}
             s_and_b32 {sT3}, {sT3}, 7
             s_lshl_b32 {sT3}, {sT3}, 1
             s_lshr_b32 {sT4}, s2, 7
             s_add_u32 {sT3}, {sT3}, {sT4}
             s_lshl_b32 {sT3}, {sT3}, 6
             s_add_u32 {sT3}, {sT3}, {sT1}
             s_lshl_b32 {sT3}, {sT3}, 6
             v_xor_b32 v14, {sT3}, {c}
             v_xor_b32 v15, 32, v14""")
        M(f"""s_lshl_b32 {sT3}, {sT2}, 8
             s_add_u32 {sT3}, {sT3}, {hex(XCH)}
             v_lshl_add_u32 {XCR}, {a}, 3, {sT3}
             s_lshl_b32 {sT3}, {sT1}, 2
             v_add_u32 {XCW}, {sT3}, {XCR}
             s_lshl_b32 {sT3}, {sW}, 9
             s_add_u32 {sT3}, {sT3}, {hex(XCH+2048)}
             v_lshl_add_u32 {STW}, v1, 3, {sT3}
             v_xor_b32 {STR}, 1024, {STW}
             v_lshlrev_b32 {KVW}, 4, {a}
             v_lshl_add_u32 {KVW}, {b}, 10, {KVW}
             s_add_u32 {sT3}, {sWL}, {hex(KVS)}
             v_add_u32 {KVW}, {sT3}, {KVW}
             s_lshl_b32 {sT3}, {sW}, 7
             s_add_u32 {sT3}, {sT3}, {hex(ZS)}
             v_lshl_add_u32 {ZW}, {a}, 2, {sT3}
             s_lshl_b32 {sT3}, {sT2}, 2
             s_add_u32 {sT3}, {sT3}, {sT1}
             s_lshl_b32 {sT4}, {sT3}, 10
             s_add_u32 {sT4}, {sT4}, {hex(KVS)}
             v_add_u32 {KVR}, {sT4}, {L4}
             s_lshl_b32 {sT4}, {sT3}, 6
             s_add_u32 {sT4}, {sT4}, {hex(ZS)}
             v_and_b32 {d}, 15, v1
             v_lshl_add_u32 {ZR}, {d}, 2, {sT4}
             v_lshrrev_b32 {d}, 4, v1
             v_lshl_add_u32 {ZAT}, {d}, 27, {L4}
             v_lshl_add_u32 {CSAT}, {b}, 27, {L4}
             v_lshrrev_b32 {LM8}, 3, v1
             v_lshlrev_b32 {LM8}, 27, {LM8}
             v_min_u32 {FA1}, 1, v1
             v_lshlrev_b32 {FA1}, 27, {FA1}
             s_lshl_b32 {sT3}, {sMA}, 1
             s_add_u32 {sT3}, {sT3}, {sT1}
             s_lshl_b32 {sKVA}, {sT3}, 10
             s_add_u32 {sKVA}, {sKVA}, {hex(KVM)}
             s_lshl_b32 {sZA}, {sT3}, 6
             s_add_u32 {sZA}, {sZA}, {hex(ZP)}
             s_lshl_b32 {sPQS}, {sTA}, 2
             s_lshr_b32 {sT3}, {sMA}, 2
             s_add_u32 {sPQS}, {sPQS}, {sT3}
             s_lshl_b32 {sPQS}, {sPQS}, 3
             s_and_b32 {sT3}, {sMA}, 3
             s_add_u32 {sPQS}, {sPQS}, {sT3}
             s_lshl_b32 {sPQS}, {sPQS}, 11
             s_add_u32 {sPQS}, {sPQS}, {hex(PQ)}
             s_lshl_b32 {sHS}, {sG}, 2
             s_add_u32 {sHS}, {sHS}, {sW}
             s_lshl_b32 {sHS}, {sHS}, 4
             s_add_u32 {sHS}, {sHS}, {sM}
             s_lshl_b32 {sHS}, {sHS}, 14
             s_add_u32 {sHS}, {sHS}, {hex(HH+4096)}""")
        M(f"""v_bfe_u32 {c}, v1, 2, 2
             v_lshlrev_b32 {a}, 10, {b}
             v_lshl_add_u32 {a}, {c}, 7, {a}
             v_bfe_u32 {c}, v1, 4, 1
             v_bfe_u32 {d}, v1, 3, 1
             v_lshl_add_u32 {d}, {d}, 1, {c}
             v_lshl_add_u32 {a}, {d}, 5, {a}
             v_and_b32 {d}, 1, v1
             v_lshl_add_u32 {RT2A}, {d}, 4, {a}
             v_bfe_u32 {d}, v1, 1, 1
             v_lshl_add_u32 {RT2A}, {d}, 3, {RT2A}
             v_and_b32 {d}, 3, v1
             v_lshl_add_u32 {a}, {d}, 3, {a}
             s_lshl_b32 {sT3}, {sT2}, 6
             s_add_u32 {sT3}, {sT3}, {sWL}
             s_add_u32 {sT4}, {sT3}, {hex(KB)}
             v_xor_b32 v{TRK}, {sT4}, {a}
             s_add_u32 {sT4}, {sT3}, {hex(VB)}
             v_xor_b32 v{TRP}, {sT4}, {RT2A}""")
        for j in range(1, 4):
            M(f"v_xor_b32 v{TRK+j}, {j*2048}, v{TRK}\nv_xor_b32 v{TRP+j}, {j*2048}, v{TRP}")
        M(f"""s_lshl_b32 {sT3}, {sW}, 5
             s_add_u32 {sT3}, {sT3}, {hex(RST)}
             v_xor_b32 {RT13}, {sT3}, {a if self.o.get('c16', 1) else RT2A}
             v_lshl_add_u32 {RT13}, {c}, 11, {RT13}
             s_mul_i32 {sSTA}, {sW}, 6144
             s_add_u32 {sSTA}, {sSTA}, {hex(RST)}
             v_add_u32 {RT2A}, {sSTA}, {a if self.o.get('d16', 1) else RT2A}
             v_xor_b32 {RT2B}, 64, {RT2A}""")
        M(f"""v_lshrrev_b32 {a}, 2, v1
             v_xor_b32 {a}, {a}, {c}
             v_and_b32 {a}, 1, {a}
             v_or_b32 {a}, {a}, {d}
             v_cmp_eq_u32 vcc, 0, {a}
             v_mov_b32 v20, 0x3f803f80
             v_mov_b32 v21, 0x3f803f80
             v_mov_b32 v22, 0x3f803f80
             v_mov_b32 v23, 0x3f803f80
             v_cndmask_b32 v16, 0, v20, vcc
             v_cndmask_b32 v17, 0, v20, vcc
             v_cndmask_b32 v18, 0, v20, vcc
             v_cndmask_b32 v19, 0, v20, vcc""")
        for r in (162, 163, 166, 167, 170, 171, 174, 175, 177, 178, 179):
            M(f"v_mov_b32 v{r}, 0")
        M(f"""v_lshrrev_b32 {a}, 4, v1
             v_bfe_u32 {c}, v1, 2, 2
             v_xor_b32 {c}, {c}, {a}
             v_lshlrev_b32 {c}, 6, {c}
             v_lshl_add_u32 {c}, {a}, 10, {c}
             v_lshl_add_u32 v{WOD}, {d}, 4, {c}
             v_add_u32 v{WOD+1}, 3072, v{WOD}
             v_add_u32 v{WOD+2}, 6144, v{WOD}
             v_add_u32 v{WOD+3}, 9216, v{WOD}
             s_lshl_b32 {sA}, {sRQ}, 17
             s_add_u32 {sA}, {sA}, {sXL}
             s_lshl_b32 {sT3}, {sCB}, 8
             s_add_u32 {sA}, {sA}, {sT3}""")
        M(f"""s_lshl_b32 {sT3}, {sKC}, 2
             s_add_u32 {sT3}, {sT3}, {sW}
             s_mul_i32 {sKVL}, {sT3}, {16*3584}
             s_lshl_b32 {sT3}, {sU}, 7
             s_add_u32 {sKVL}, {sKVL}, {sT3}
             s_lshl_b32 {sT2}, {sU}, 2
             s_add_u32 {sT2}, {sT2}, {sW}
             s_lshl_b32 {sPQL}, {sT2}, 14
             s_lshl_b32 {sT3}, {sKC}, 7
             s_add_u32 {sPQL}, {sPQL}, {sT3}
             s_add_u32 {sHST}, {sPQL}, 7168
             s_lshl_b32 {sRC}, {sT2}, 7
             s_add_u32 {sRC}, {sRC}, {hex(CS)}
             s_mul_i32 {sT3}, {sT2}, 9363
             s_lshr_b32 {sT3}, {sT3}, 16
             s_add_u32 {sT2}, {sT2}, {sT3}
             s_and_b32 {sT3}, {sKC}, 6
             s_add_u32 {sT3}, {sT3}, {sKC}
             s_lshl_b32 {sRW}, {sT2}, 4
             s_add_u32 {sRW}, {sRW}, {sT3}
             s_lshl_b32 {sRW}, {sRW}, 12
             s_add_u32 {sRW}, {sRW}, {hex(W13R)}
             s_andn2_b32 {sT3}, {sT2}, 3
             s_add_u32 {sT3}, {sT3}, {sT2}
             s_lshl_b32 {sR2}, {sKC}, 8
             s_add_u32 {sR2}, {sR2}, {sT3}
             s_lshl_b32 {sR2}, {sR2}, 11
             s_add_u32 {sR2}, {sR2}, {hex(W2R)}""")
        if self.o.get('grp', 1):
            m13 = sum((par13(t) ^ m) << (8 * m + t) for m in range(2) for t in range(8))
            m2 = sum(par2(pr, t) << (8 * pr + t) for pr in range(4) for t in range(8))
            M(f"""s_and_b32 {sT3}, {sT2}, 15
                 s_lshr_b32 {sT3}, {hex(m13)}, {sT3}
                 s_lshr_b32 {sT4}, {hex(m2)}, {sT2}
                 s_xor_b32 {sT4}, {sT4}, {sKC}""")
        else:
            M(f"s_lshr_b32 {sT3}, {sKC}, 1\ns_lshr_b32 {sT4}, {sT2}, 5")
        M(f"""s_and_b32 {sT3}, {sT3}, 1
             s_lshl_b32 {sT3}, {sT3}, 13
             s_add_u32 {sRW}, {sRW}, {sT3}
             s_and_b32 {sT4}, {sT4}, 1
             s_lshl_b32 {sT4}, {sT4}, 13
             s_add_u32 {sR2}, {sR2}, {sT4}
             s_cmp_ge_u32 s2, 224
             s_cselect_b32 {sRW}, {hex(OOB)}, {sRW}
             s_cselect_b32 {sR2}, {hex(OOB)}, {sR2}
             s_cselect_b32 {sRC}, {hex(OOB)}, {sRC}
             s_cselect_b32 {sKVL}, {hex(OOB)}, {sKVL}
             s_add_u32 {sZL}, {sKVL}, {8*3584-1024}
             s_and_b32 {sSIG}, {sU}, 15
             s_lshl_b32 {sSIG}, {sSIG}, 8
             s_add_u32 {sSIG}, {sSIG}, {hex(CNT)}
             s_cmp_eq_u32 {sW}, 0
             s_cselect_b32 {sSIG}, {sSIG}, {hex(OOB)}""")
        return M

    def miscB(self):
        M = Seq()
        a, b, c, d = "v208", "v209", "v210", "v211"
        M(f"""s_lshr_b32 {sTB}, {sM}, 2
             s_lshl_b32 {sT3}, {sG}, 2
             s_add_u32 {sTB}, {sTB}, {sT3}
             s_lshl_b32 {sT4}, {sRQ}, 1
             s_add_u32 {sT4}, {sT4}, {sW}
             s_and_b32 {sT4}, {sT4}, 7
             s_lshl_b32 {sKVL}, {sT4}, 12
             s_add_u32 {sKVL}, {sKVL}, {hex(KVM)}
             s_xor_b32 {bK2}, {sKVL}, 0x4000
             s_lshl_b32 {sT2}, {sTB}, 16
             s_and_b32 {sPQL}, {sT4}, 6
             s_add_u32 {sPQL}, {sPQL}, {sT4}
             s_lshl_b32 {sPQL}, {sPQL}, 12
             s_add_u32 {sPQL}, {sPQL}, {sT2}
             s_add_u32 {sPQL}, {sPQL}, {hex(PQ)}
             s_xor_b32 {sPQL}, {sPQL}, {sP1}
             s_xor_b32 {bQ2}, {sPQL}, 0x8000
             s_lshl_b32 {sT4}, {sT4}, 8
             s_mov_b32 {sZL}, {hex(ZP)}
             s_lshl_b32 {sHST}, {sCB}, 14
             s_add_u32 {sHST}, {sHST}, {sT2}
             s_add_u32 {sHST}, {sHST}, {sWL}
             s_add_u32 {sHST}, {sHST}, {hex(HB)}
             s_xor_b32 {sHST}, {sHST}, {sPE}
             s_lshl_b32 {sSTA}, {sTB}, 4
             s_add_u32 {sSTA}, {sSTA}, {sCB}
             s_lshl_b32 {sSTA}, {sSTA}, 14
             s_add_u32 {sSTA}, {sSTA}, {hex(HH+7168+768)}
             s_xor_b32 {sSTA}, {sSTA}, {sP2}
             s_lshl_b32 {sD}, {sTB}, 2
             s_add_u32 {sD}, {sD}, {sCB}
             s_lshl_b32 {sD}, {sD}, 16
             s_add_u32 {sD}, {sD}, {sXL}
             s_add_u32 {sD}, {sD}, {hex(HH+7168)}
             s_xor_b32 {sD}, {sD}, {sP2}
             v_lshrrev_b32 {b}, 5, v1
             v_and_b32 {a}, 31, v1
             v_lshlrev_b32 {ROWA}, 10, {a}
             v_lshl_add_u32 {ROWA}, {b}, 4, {ROWA}
             v_lshlrev_b32 v41, 3, {a}
             v_lshl_add_u32 v41, {b}, 10, v41
             v_xor_b32 v41, {sT4}, v41
             v_bfe_u32 {c}, v1, 2, 2
             v_and_b32 {a}, 1, v1
             v_lshlrev_b32 {a}, 4, {a}
             v_bfe_u32 {d}, v1, 1, 1
             v_lshl_add_u32 {a}, {d}, 3, {a}
             v_lshl_add_u32 {d}, {b}, 11, {a}
             v_lshl_add_u32 {d}, {c}, 8, {d}
             v_xor_b32 {c}, {sW}, {c}
             v_lshl_add_u32 {d}, {c}, 6, {d}
             v_bfe_u32 {c}, v1, 4, 1
             v_lshl_add_u32 {d}, {c}, 5, {d}""")
        for q in range(4):
            M(f"""s_xor_b32 {sT2}, {sW}, {q}
                 s_lshl_b32 {sT3}, {sT2}, 14
                 v_add_u32 v{WOT+q}, {sT3}, {d}
                 s_lshl_b32 {sT2}, {sT2}, 12
                 s_add_u32 {sT2}, {sT2}, 0x20000
                 v_add_u32 v{OAD+q}, {sT2}, {L16}""")
        M(f"""s_lshl_b32 {sT2}, {sW}, 12
             s_add_u32 {sT2}, {sT2}, {0x20000+16384+3072}
             v_add_u32 {ZBW}, {sT2}, {L4}
             v_xor_b32 {d}, 1, {c}
             v_lshlrev_b32 {d}, 5, {d}
             v_lshl_add_u32 {d}, {b}, 4, {d}
             v_add_u32 {ZBR}, {sT2}, {d}
             v_lshrrev_b32 {d}, 4, v1
             v_lshlrev_b32 {P256}, 8, v1
             v_lshl_add_u32 {P256}, {d}, 27, {P256}
             s_lshl_b32 {bTL}, {sW}, 13
             s_lshr_b32 {sT2}, {sTBL}, {sKC}
             s_and_b32 {sT2}, {sT2}, 0x2000
             s_lshl_b32 {bGP}, {sKC}, 14
             s_add_u32 {bGP}, {bGP}, {sT2}
             s_add_u32 {bGP}, {bGP}, {hex(CNT)}
             s_add_u32 {bRP}, {bGP}, 4096""")
        for k in range(8):
            M(f"v_lshlrev_b32 v{192+2*k}, 16, v{24+k}\nv_and_b32 v{193+2*k}, {sMSKHI}, v{24+k}")
        return M

    def phaseA(self):
        p = self.p
        o = self.o
        pre = o.get('pre', 0)
        if pre:
            nt = " nt" if o.get('xnt', 0) else ""
            p(f"""s_lshl_b32 {sT3}, {sMA}, 2
                 s_add_u32 {sT3}, {sT3}, {sW}
                 s_lshl_b32 {sT3}, {sT3}, 11
                 s_lshl_b32 {sT4}, {sTA}, 16
                 s_add_u32 {sT3}, {sT3}, {sT4}
                 s_lshl_b32 {sT4}, s2, 2
                 s_add_u32 {sT4}, {sT4}, {sW}
                 s_mul_i32 {sT4}, {sT4}, 1536
                 v_lshrrev_b32 v196, 2, v1
                 v_lshlrev_b32 v196, 7, v196
                 v_min_u32 v197, 1408, v196""")
            if pre & 1:
                p(f"buffer_load_dword v194, v196, {X}, {sT3} offen{nt}")
            if pre & 2:
                p(f"buffer_load_dword v195, v197, {WQKV}, {sT4} offen")
        p.extend(flat(self.dmaA(0)))
        p(f"v_lshlrev_b32 {L16}, 4, v1")
        if o.get('codepf', 1):
            p(f"""s_getpc_b64 s[70:71]
                 s_lshl_b32 {sT3}, {sU}, 2
                 s_add_u32 {sT3}, {sT3}, {sW}
                 s_lshl_b32 {sT4}, {sT3}, 8
                 v_lshrrev_b32 v200, 5, v1
                 v_lshl_add_u32 v200, v200, 7, {sT4}
                 v_min_u32 v200, CODE_PF_MAX, v200
                 global_load_dword v201, v200, s[70:71]""")
        tch = Seq()
        touch = o.get('touch', 7)
        tch(f"""s_lshl_b32 {sCc}, s2, 2
             s_add_u32 {sCc}, {sCc}, {sW}
             s_lshr_b32 {sT4}, {sCc}, 1
             s_mul_i32 {sT4}, {sT4}, 3072
             s_and_b32 {sT5}, {sCc}, 1
             s_lshl_b32 {sT5}, {sT5}, 11
             s_add_u32 {sT4}, {sT4}, {sT5}
             s_lshl_b32 {sCc}, {sCc}, 9
             v_lshrrev_b32 v202, 3, v1
             v_lshlrev_b32 v202, 7, v202
             v_lshrrev_b32 v42, 4, v1
             v_lshlrev_b32 v42, 7, v42""")
        if touch & 4:
            tch(f"""s_lshl_b32 {sT3}, {sU}, 2
                 s_add_u32 {sT3}, {sT3}, {sW}
                 s_mul_i32 {sT3}, {sT3}, {4*3072}
                 v_min_u32 v200, 11, v1
                 v_lshlrev_b32 v200, 10, v200
                 buffer_load_dword v198, v200, {WQKV}, {sT3} offen offset:384""")
        if touch & 1:
            tch(f"buffer_load_dword v203, v202, {WQKV}, {sT4} offen")
        tat = o.get('tat', -1)
        if tat == -2:
            p.extend(tch)
        d1 = self.dmaA(1)
        n1 = o.get('d1', 4)
        p.extend(flat(d1[:n1]))
        if tat == -1:
            p.extend(tch)
        for srd, src, sz in ((12, 80, 0x80000), (16, 84, 0x1C0000), (20, 86, 0x1C0000), (24, 88, 0x1C0000),
                             (28, 90, 0x200000), (36, 92, 256), (32, 94, WS_SIZE)):
            p(f"s_mov_b64 s[{srd}:{srd+1}], s[{src}:{src+1}]\ns_mov_b32 s{srd+2}, {hex(sz)}\ns_mov_b32 s{srd+3}, 0x20000")
        tlb = o.get('tlb', 1)
        if tlb:
            p(f"""v_min_u32 v194, 1, v1
                 v_lshlrev_b32 v194, 27, v194
                 s_lshl_b32 {sT3}, {sW}, 5
                 s_add_u32 {sT3}, {sT3}, {sU}
                 s_lshl_b32 {sT4}, {sT3}, 21
                 buffer_load_dword v195, v194, {WS}, {sT4} offen""")
            if tlb & 2:
                for k, srd in enumerate((OUT, W1, W3, W2, WO, DBG)):
                    p(f"""s_cmp_eq_u32 {sT3}, {24+k}
                         s_cselect_b32 {sT4}, 0, {hex(OOB)}
                         buffer_load_dword v{188+k}, v194, {srd}, {sT4} offen""")
        if o.get('wsoff'):
            p(f"s_add_u32 s32, s32, {o['wsoff'] << 20}\ns_addc_u32 s33, s33, 0")
        Lz = self.lab("z")
        p(f"""s_lshl_b32 {sB}, {sW}, 8
             s_add_u32 {sB}, {sB}, 224
             s_cmp_lt_u32 s2, {sB}
             s_cbranch_scc1 {Lz}""")
        padr = f"""s_sub_u32 {sT2}, s2, 224
             s_and_b32 {sT1}, {sU}, 1
             s_lshl_b32 {sT3}, {sT1}, 5
             s_add_u32 {sT3}, {sT3}, {sT2}
             s_lshl_b32 {sT3}, {sT3}, 8
             s_add_u32 {sT3}, {sT3}, {hex(PROBE)}
             s_xor_b32 {sT4}, {sT3}, 0x2000
             s_waitcnt lgkmcnt(0)
             s_buffer_load_dword {sT5}, {WS}, {sT3} glc
             s_buffer_load_dword {sT5}, {WS}, {sT4} glc"""
        p(f"""{padr.replace(sT5, sD)}
             v_mov_b32 v16, 0
             v_mov_b32 v17, 0
             v_mov_b32 v18, 0
             v_mov_b32 v19, 0
             v_lshrrev_b32 v20, 3, v1
             v_lshl_add_u32 v20, v20, 7, {L16}
             s_lshl_b32 {sT4}, {sT2}, 11
             s_lshl_b32 {sT3}, {sT2}, 12
             s_add_u32 {sT3}, {sT3}, {hex(CNT)}
             s_add_u32 {sT4}, {sT4}, {hex(KVM)}
             buffer_store_dwordx4 v[16:19], {L16}, {WS}, {sT4} offen sc1
             buffer_store_dwordx4 v[16:19], {L16}, {WS}, {sT4} offen offset:1024 sc1
             buffer_store_dwordx4 v[16:19], v20, {WS}, {sT3} offen sc1
             buffer_store_dwordx4 v[16:19], v20, {WS}, {sT3} offen offset:2048 sc1""", cond=True)
        p(f"{Lz}:")
        probe = f"""{padr}
             s_getreg_b32 {sT4}, hwreg(HW_REG_XCC_ID, 2, 1)
             s_waitcnt lgkmcnt(1)
             s_nop {o.get('pnop', 15)}
             s_getreg_b32 {sT2}, hwreg(HW_REG_IB_STS, 8, 4)
             s_waitcnt lgkmcnt(0)
             s_min_u32 {sT2}, {sT2}, 1
             s_xor_b32 {sT1}, {sT1}, {sT4}
             s_cmp_lg_u32 {sT1}, {sT2}
             s_cselect_b32 {sT2}, 64, 4096
             s_add_u32 {sT2}, {sT2}, 1
             s_add_u32 {sT5}, {sKC}, 18
             s_lshl_b32 {sT4}, {sT4}, {sT5}
             s_cmp_eq_u32 {sU}, 28
             s_cselect_b32 {sT4}, {sT4}, 0
             s_add_u32 {sT2}, {sT2}, {sT4}
             v_mov_b32 v46, {sT2}"""
        p.extend(self.miscA())
        if o.get('pat', 0) == 0:
            Lz = self.lab("z")
            p(f"s_cmp_lt_u32 s2, {sB}\ns_cbranch_scc1 {Lz}")
            p(probe, cond=True)
            p(f"{Lz}:")
            probe = ""
        if tat == 0:
            p.extend(tch)
        SEL, ONES = v(16, 4), v(20, 4)
        XS, XQ0, XQ1, CSA, ZA = 252, 248, 32, 36, 44
        AK, AV, AQ, RB, AKV = 48, 64, 80, 96, 112
        WR = 128
        XM, WP, RS_ = 160, 164, 176

        def wread(t, s, dst=None):
            n = t * 32 + s
            addr = (TRK, TRP, TRK)[t]
            return trpair(('v', WR + 4 * (n % 6) if dst is None else dst), f"v{addr+(s&3)}", (s >> 2) * 8192, 512)

        def wf(t, s):
            return v(WR + 4 * ((t * 32 + s) % 6), 4)

        def csm(f, first):
            return mf16(CSA, SEL, f, "0" if first else None)

        def cswrite(t):
            S = split2(41, CSA, 41)
            S(f"ds_write_b32 {XCW}, v41 offset:{t*512}", tag=f"x{t}")
            return list(S)

        def csget(t):
            return [Inst(f"ds_read_b64 {v(WP+4*t,2)}, {XCR} offset:{t*512}")]

        def xread(s):
            return [Inst(f"ds_read_b128 {a_(4*s,4)}, v{10+(s&3)} offset:{(s>>2)*8192}")]

        p.extend(flat(d1[n1:]))
        d2 = self.dmaA(2)
        n2_ = o.get('d2', 4)
        p.extend(flat(d2[:n2_]))
        self.stamp("A_issued")
        p("WAITTAG A0\ns_barrier")
        self.stamp("A_c0")
        p.extend(xread(0) + wread(0, 0) + xread(1) + wread(0, 1))
        p.extend(flat(d2[n2_:]))
        ad = o.get('ad', 4)
        nv1 = o.get('nv1', 14)
        vq = flat([self.dmaW(1, k) for k in range(8)])
        pend = self.dmaA(3) if ad == 4 else []
        for s in range(32):
            c, j = s >> 2, s & 3
            xf = a_(4 * s, 4)
            z = "0" if s == 0 else None
            p.append(mf32(AK, xf, wf(0, s), z))
            if j == 2 and c < 7:
                p(f"WAITTAG A{c+1}\ns_barrier")
                self.stamp(f"a{c+1}")
                assert not pend
                if c == 1:
                    p(f"s_cmp_ge_u32 s2, {sB}")
                    self.ool("s_cbranch_scc1", f"{probe}\nbuffer_atomic_add v46, {FA1}, {DBG}, 0 offen sc1")
                if c + 1 == tat:
                    p.extend(tch)
                if c + ad < 8:
                    pend = self.dmaA(c + ad)
                else:
                    pend, vq = vq[:4], vq[4:]
            if s == 30:
                p("WAITTAG V1\ns_barrier")
                k = max(0, nv1 - (16 - len(vq)))
                assert k <= 2
                pend, vq = vq[:k], vq[k:]
            if s + 2 < 32:
                p.extend(xread(s + 2) + wread(0, s + 2))
            else:
                p.extend(wread(1, s + 2 - 32))
            if s == 28:
                p("ds_read_b128 v[24:27], v14\nds_read_b128 v[28:31], v15", tag="xres")
            for _ in range(2 if s < 2 else 1):
                if pend:
                    p.extend(pend.pop(0))
            if j % 2 == 0:
                p.append(csm(wf(0, s), s == 0))
            if j < 2:
                p.append(mf16(XS, SEL, xf, z))
                p.append(mf4(XQ0, a_(4 * s, 2), a_(4 * s, 2), z))
                p.append(mf4(XQ1, a_(4 * s + 2, 2), a_(4 * s + 2, 2), z))
            if s == 30:
                for k in range(4):
                    p(f"v_add_f32 v{XQ0+k}, v{XQ0+k}, v{XQ1+k}")
                p(f"""v_cndmask_b32 v197, v{XQ0}, v{XQ0+1}, s[96:97]
                     v_cndmask_b32 v197, v197, v{XQ0+2}, s[98:99]
                     v_cndmask_b32 v197, v197, v{XQ0+3}, s[70:71]
                     v_mov_b32 v196, v197""")
            if s == 31:
                p(f"""v_permlane32_swap_b32 v196, v197
                     v_add_f32 v{XS+1}, v196, v197
                     ds_write_b64 {STW}, {v(XS,2)}""")
                p.extend(cswrite(0))
        assert not pend
        self.stamp("A_loop")
        CT = (204, 208, ZA)
        kb = o.get('kb', 9)

        def tilepass(t, acc, order):
            nm = "VQ"[t - 1]
            G = []
            for s in range(32):
                A_, B_ = (a_(4 * s, 4), wf(t, s)) if order == 0 else (wf(t, s), a_(4 * s, 4))
                g = Seq()
                g.append(mf32(acc, A_, B_, "0" if s == 0 else None))
                if t == 1 and s == 2:
                    g("WAITTAG x0 xres" + (" V3" if ad == 4 else "") + "\ns_barrier")
                    g(f"ds_read_b64 v[198:199], {STR}")
                    g.extend(csget(0))
                if t == 2 and o.get('fb', 0) & 2:
                    if s == 4:
                        g("WAITTAG Q3\ns_barrier")
                    if s == kb:
                        assert kb <= 12
                        g("WAITTAG kvp Q7\ns_barrier")
                elif t == 1 and o.get('fb', 0) & 1:
                    if s == 12:
                        g("WAITTAG V7\ns_barrier")
                elif s % 8 == 4 and s < 28 and ((t, s) != (1, 4) or ad != 4):
                    g(f"WAITTAG {nm}{(s+4)//4+1} kvp\ns_barrier")
                elif t == 2 and s == kb:
                    g("WAITTAG kvp\ns_barrier")
                if s == 28:
                    g(f"WAITTAG x{t}" + (" Q1" if t == 1 else "") + "\ns_barrier")
                    g.extend(csget(t))
                if t == 1 and s < 2:
                    g.extend(wread(t, 2 + 2 * s) + wread(t, 3 + 2 * s))
                elif s + 4 < 32:
                    g.extend(wread(t, s + 4))
                elif t == 1:
                    g.extend(wread(2, s + 4 - 32))
                if s in (20, 21, 22):
                    g.extend(wread(t, 26 + 2 * (s - 20), CT[s - 20]))
                if s % 2 == 0 and s < 26 and (t, s) != (1, 0):
                    g.append(csm(wf(t, s), (t, s) == (2, 0)))
                if (t, s) == (1, 1):
                    g.append(csm(wf(t, 0), True))
                if s in (23, 24, 25):
                    g.append(csm(v(CT[s - 23], 4), False))
                if s == 26:
                    g.extend(cswrite(t))
                G.append(list(g))
            return G

        def phi(acc, scale, T, dst):
            S = Seq()
            for h in range(2):
                r = range(8 * h, 8 * h + 8)
                for i in r:
                    S(f"v_fma_f32 v{acc+i}, v{acc+i}, {scale(i)}, {sEPS6}")
                for i in r:
                    S(f"v_mul_f32 v{T+(i&7)}, {sLOG2E}, v{acc+i}")
                for i in r:
                    S(f"v_exp_f32_e64 v{T+(i&7)}, v{T+(i&7)} clamp")
                    S(f"v_max_f32 v{acc+i}, {sEPS6}, v{acc+i}")
                for i in r:
                    S(f"v_add_f32 v{acc+i}, v{acc+i}, v{T+(i&7)}")
                for i in range(4 * h, 4 * h + 4):
                    S(f"v_cvt_pk_bf16_f32 v{dst+i}, v{acc+2*i}, v{acc+2*i+1}")
            return S
        E = Seq()
        E(f"""v_add_f32 v198, v198, v{XS}
             v_add_f32 v197, v199, v{XS+1}
             v_mul_f32 v199, 0x3b000000, v198
             v_mul_f32 v197, 0x3b000000, v197
             v_cvt_pk_bf16_f32 v198, -v199, -v199
             v_fma_f32 v197, -v199, v199, v197
             v_cndmask_b32 v{XM}, v198, 0, {sHILANES}
             v_cndmask_b32 v{XM+1}, v198, 0, {sHILANES}
             v_max_f32 v197, 0, v197
             v_add_f32 v197, 0x3727c5ac, v197
             v_rsq_f32 v40, v197""")
        E.append(mf32(AK, v(XM, 4), v(WP, 4)))
        E.extend(split2(RS_, 40, 198))
        E(f"v_cndmask_b32 v{RS_}, v{RS_}, 0, {sHILANES}")
        E.append(mf32(RB, v(RS_, 4), ONES, "0"))
        PK = phi(AK, lambda i: f"v{RB+i}", 196, 180)
        G = tilepass(1, AV, 0)
        v2e = o.get('v2e', 2)
        qq = flat([self.dmaW(2, k) for k in range(8)])
        nq2 = o.get('nq2', 16)
        G = weave(G, vq, 0, v2e)
        G = weave(G, qq[:nq2], max(3, v2e), o.get('q2end', 30))
        G[0] += [Inst(f"v_subrev_u32 v{TRK+j}, {hex(VB)}, v{TRP+j}") for j in range(4)]
        G[12] += [Inst(f"buffer_load_dword v5, {FA1}, {DBG}, 0 offen sc1")]
        n2 = o.get('pk2', 88)
        G = weave(G, list(E), 4, 8)
        G = weave(G, PK[:n2], 10, 32)
        for k in range(3, 31, 4):
            G[k] += self.sub(lambda: self.stamp(f"v{k}"))
        p.extend(flat(G))
        p.append(mf32(AV, v(XM, 4), v(WP + 4, 4)))
        self.stamp("A_v")
        if o.get('skew') is not None:
            p(f"""s_not_b32 s101, s100
                 v_mov_b32 v43, s101
                 buffer_atomic_umax v43, {FA1}, {DBG}, 0 offen offset:128 sc1
                 v_mov_b32 v41, s100
                 buffer_atomic_umax v41, {FA1}, {DBG}, 0 offen offset:192 sc1""")
        E = Seq()
        E.extend(PK[n2:])
        for i in range(16):
            E(f"v_mul_f32 v{AV+i}, v{AV+i}, v{RB+i}")
        for i in range(8):
            E(f"v_cvt_pk_bf16_f32 v{188+i}, v{AV+2*i}, v{AV+2*i+1}")
        G = tilepass(2, AQ, 1)
        rq = self.rload()
        if o.get('nor'):
            rq = []
        if touch & 2:
            rq = rq[:2] + [[Inst(f"buffer_load_dword v42, v42, {WO}, {sCc} offen")]] + rq[2:]
        e2 = o.get('e2', 0)
        R2T = trpair(('a', 144), RT2A, 4096, 512) + trpair(('a', 148), RT2B, 4096, 512)
        R2S = [Inst(f"buffer_store_dwordx4 a[144:147], {L16}, {WS}, {sR2} offen sc1", tag="pub1" if e2 else "pubR"),
               Inst(f"buffer_store_dwordx4 a[148:151], {L16}, {WS}, {sR2} offen offset:1024 sc1", tag="pub1" if e2 else "pubR")]
        if e2:
            G[e2] += [Inst("WAITTAG RL2")] + R2T
            G[e2 + 3] += R2S[:1]
            G[e2 + 5] += R2S[1:]
            R2T, R2S = [], []
        r0 = o.get('r0', 0)
        if nq2 < 16:
            G = weave(G, qq[nq2:], 0, r0)
        G = weave(G, rq, r0, o.get('r1', r0 + 7))
        if o.get('rwait'):
            G[o.get('r1', 7)] += list(Seq()("WAITALL vm")) + self.sub(lambda: self.stamp("A_rland"))
        woq = flat([self.dmaWO(q) for q in range(8)])
        nw3 = o.get('wo3', 0)
        G[13] += [Inst(f"s_lshl_b32 {sB}, {sW}, 12")]
        if nw3:
            G = weave(G, woq[:nw3], o.get('wo30', 26), 32)
        G = weave(G, list(E), 0, kb - 5)
        G[kb - 5] += [mf32(AKV, v(180, 4), v(188, 4), "0"), mf32(AKV, v(184, 4), v(192, 4)),
                 mf16(ZA, SEL, v(180, 4), "0"), mf16(ZA, SEL, v(184, 4))]
        G[kb - 4] += self.sub(lambda: self.spin("v5", None, "0", "1", "32", srd=DBG, mode='check', sleep=4, field=63))
        S = Seq()
        S(f"""v_readfirstlane_b32 {sT2}, v5
             s_bfe_u32 {sT3}, {sT2}, 0x60006
             s_bfe_u32 {sT4}, {sT2}, 0x6000c
             s_lshr_b32 {sT2}, {sT2}, 5""")
        S = [[i] for i in S] + [list(Seq()(f"""s_cmp_gt_u32 {sT4}, {sT3}
             s_cselect_b32 {sT3}, {'0, -1' if o.get('parx') else '-1, 0'}"""))]
        S += [[i] for i in Seq()(f"""s_xor_b32 {sTBL}, {sT2}, {sT3}
             s_lshr_b32 {sT2}, {sTBL}, {sKC}
             s_lshl_b32 {sT3}, {sG}, 10
             s_xor_b32 {sP1}, {sT2}, {sT3}
             s_and_b32 {sP1}, {sP1}, 0x2000
             s_xor_b32 {sPQS}, {sPQS}, {sP1}
             s_lshr_b32 {sPE}, {sTBL}, 3
             s_and_b32 {sPE}, {sPE}, 0x2000
             s_lshl_b32 {sT4}, {sG}, 12
             s_xor_b32 {sP2}, {sT3}, {sT4}
             s_and_b32 {sP2}, {sP2}, 0x2000
             s_xor_b32 {sP2}, {sP2}, {sPE}
             s_xor_b32 {sHS}, {sHS}, {sP2}
             v_mov_b32 v176, 0
             v_lshrrev_b32_e64 {P4K}, v1, {sTBL}
             v_and_b32 {P4K}, 0x2000, {P4K}
             v_lshl_add_u32 {P4K}, v1, 14, {P4K}
             v_or_b32 {P4K}, {P4K}, {LM8}""")]
        S += [[Inst(f"buffer_store_dwordx4 v[176:179], {L16}, {WS}, {sHS} offen offset:3072 sc1", tag="pub1")]]
        G = weave(G, S, 19, 31)
        S = Seq()
        for i in range(8):
            S(f"v_cndmask_b32 v{196+i}, v{AKV+i}, v{AKV+8+i}, {sB4LANES}")
        S(f"""ds_write_b128 {KVW}, v[196:199]
             ds_write_b128 {KVW}, v[200:203] offset:512""")
        S(f"ds_write_b32 {ZW}, v{ZA}", tag="kvp")
        G = weave(G, list(S), kb - 3, kb - 1)
        S = Seq()
        for k in range(4):
            S(f"ds_read2st64_b32 v[{112+2*k}:{113+2*k}], {KVR} offset0:{k} offset1:{k+8}")
        S(f"ds_read2_b32 v[120:121], {ZR} offset0:0 offset1:32")
        G = weave(G, list(S), kb, kb + 2)
        S = Seq()
        for k in range(5):
            S(f"v_add_f32 v{112+2*k}, v{112+2*k}, v{113+2*k}")
        for k in range(4):
            S(f"buffer_atomic_add_f32 v{112+2*k}, {L4}, {WS}, {sKVA} offen offset:{k*256}", tag="pub1")
        S(f"buffer_atomic_add_f32 v120, {ZAT}, {WS}, {sZA} offen", tag="pub1")
        G = weave(G, list(S), kb + 3, kb + 8)
        for k in range(3, 31, 4):
            G[k] += self.sub(lambda: self.stamp(f"v{k}"))
        p.extend(flat(G))
        p.append(mf32(AQ, v(WP + 8, 4), v(XM, 4)))
        self.stamp("A_q")
        woq = woq[nw3:]
        t1, t3, t2 = o.get('wot1', 0), o.get('wot3', 6), o.get('wot2', 2)
        assert nw3 + t1 == 0
        p.extend(flat(woq[:t1]))
        woq = woq[t1:]
        ph = phi(AQ, lambda i: "v40", 196, 180)
        h = len(ph) // 2
        p.extend(ph[:h])
        p(f"buffer_store_dwordx4 v[180:183], {L16}, {WS}, {sPQS} offen sc1", tag="pub1")
        p.extend(ph[h:])
        p(f"buffer_store_dwordx4 v[184:187], {L16}, {WS}, {sPQS} offen offset:1024 sc1", tag="pub1")
        self.stamp("A_pqst")
        p("s_barrier")
        MB = list(self.miscB()) + self.miscC()
        nb = o.get('mb1', 140)
        assert nb >= len(self.miscB())
        p.extend(flat(woq[:t3]))
        p("s_nop 0")
        p.extend(MB[:nb])
        p("s_nop 0")
        p.extend(flat(woq[t3:t3 + t2]))
        woq = woq[t3 + t2:]
        p("WAITTAG pub1\ns_barrier")
        p(f"buffer_atomic_add v4, {P4K}, {WS}, {sSIG} offen sc1")
        self.stamp("A_sig")
        for s in range(4):
            p.extend(trpair(('a', 128 + 4 * s), RT13, s * 6144, 512))
        p.extend(R2T)
        t4 = o.get('wot4', 16)
        assert t3 + t2 + t4 >= 16
        p.extend(flat(woq[:t4]))
        for s in range(4):
            p.append(mf16(RCS, SEL, a_(128 + 4 * s, 4), "0" if s == 0 else None))
            p(f"buffer_store_dwordx4 {a_(128+4*s,4)}, {L16}, {WS}, {sRW} offen offset:{s*1024} sc1", tag="pubR")
        p.extend(R2S)
        p(f"buffer_atomic_add_f32 v{RCS}, {CSAT}, {WS}, {sRC} offen", tag="pubR")
        self.stamp("A_rst")
        p(f"s_add_u32 {sSIG}, {sSIG}, 4096")
        self.wo_rest = woq[t4:]
        self.mb_rest = MB[nb:]

    def dmaT(self, t, slot):
        g = []
        for h in range(2):
            S = Seq()
            S(f"s_add_u32 m0, {bTL}, {slot*32768+h*4096}\ns_add_u32 {sT0}, {bTX if self.o.get('grp', 1) and par13(t) else bTA}, {t*65536+h*4096}")
            for k in range(4):
                S(f"buffer_load_dwordx4 {L16}, {WS}, {sT0} offen offset:{k*1024} sc1 lds", tag=f"T{t}")
                g.append(list(S))
                S = Seq()
            ctx(g[-4:])
        return g

    def phaseB(self):
        p = self.p
        o = self.o
        AH = 192
        W = [trpair(('a', 4 * i), f"v{WOT+((i>>2)&3)}", (i & 3) * 4096, 1024) for i in range(32)]
        PQR = 224
        LD = [Inst(f"buffer_load_dwordx2 v[32:33], v41, {WS}, {sZL} offen sc1")]
        for q in range(4):
            for i in (2 * q, 2 * q + 1):
                LD.append(Inst(f"buffer_load_dwordx4 {v(48+4*i,4)}, {L16}, {WS}, {sKVL if i < 4 else bK2} offen offset:{(i&3)*1024} sc1"))
            for i in (2 * q, 2 * q + 1):
                LD.append(Inst(f"buffer_load_dwordx4 {a_(PQR+4*i,4)}, {L16}, {WS}, {sPQL if i < 4 else bQ2} offen offset:{(i&3)*1024} sc1"))
        ZB = Seq()(f"v_cvt_pk_bf16_f32 v32, v32, v33\nds_write_b32 {ZBW}, v32")
        for k in range(4):
            ZB(f"ds_read_b128 {v(96+4*k,4)}, {ZBR} offset:{k*64}")
        p("WAITTAG WO0\ns_barrier")
        self.stamp("B_wo")
        pm = o.get('pm', 0)
        pl = list(Seq()(f"""s_cmp_eq_u32 {sW}, 1
             s_cselect_b32 {bGP}, {bGP}, {hex(OOB)}
             s_cselect_b64 s[26:27], 0xffff, 0
             buffer_load_dword v5, {P256}, {WS}, {bGP} offen sc1"""))
        if pm == 2:
            p.extend(pl)
        p.extend(flat(W[:16]))
        if pm == 1:
            p.extend(pl)
        for q in range(4):
            p(f"v_add_u32 v{WOT+q}, 0x10000, v{WOT+q}")
        mb2 = o.get('mb2', 30)
        p.extend(self.mb_rest[:mb2])
        self.stamp("B_prepoll")
        if pm:
            self.spin("v5", P256, bGP, "s[26:27]", "16", sleep=o.get('sleep1', 1), mode='check')
        else:
            self.spin("v5", P256, bGP, "0xffff", "16", sleep=o.get('sleep1', 1), wave=o.get('pw', 1))
        p("WAITTAG pubR\nWAITALL lgkm\ns_barrier")
        self.stamp("B_sync1")
        LD.insert(o.get('rsat', 0), Inst(f"buffer_atomic_add v4, {P4K}, {WS}, {sSIG} offen sc1"))
        nl0 = o.get('nl0', 14)
        p.extend(LD[:10] + [Inst('s_nop 0')] + self.mb_rest[mb2:] + ZB + LD[10:nl0])

        def prep(q):
            S = Seq()
            for k in range(4):
                S(f"v_cvt_pk_bf16_f32 v{80+4*q+k}, v{48+8*q+2*k}, v{48+8*q+2*k+1}")
            for k in range(4):
                S(f"v_cndmask_b32 v{112+8*q+k}, v{80+4*q+k}, v{96+4*q+k}, {sB4LANES}")
            for k in range(4):
                S(f"v_cndmask_b32 v{116+8*q+k}, v{96+4*q+k}, v{80+4*q+k}, {sB4LANES}")
            return S
        NA = [144, 160, 176]
        steps = [(pr + k, t) for pr in (0, 2) for t in range(3) for k in range(2)]
        d16 = o.get('d16', 1)
        steps += [(pr, t) for t in (3, 4, 5, 6) for pr in range(4)]
        w2o = [f"{cW2x if o.get('grp', 1) and par2(pr, t) else cW2}, {pr * 32768 + (t >> 2) * 16384 + (t & 3) * 2048}" for pr, t in steps]
        hho = [pr * 16384 + t * 1024 for pr, t in steps]
        w2l = []
        for i in range(16):
            S = Seq()
            if d16:
                ad = W2B if i & 1 else W2A
                if i % 2 == 0:
                    S(f"s_add_u32 {sKC}, {w2o[i]}")
                S(f"buffer_load_dwordx4 {a_(128+8*i,4)}, {ad}, {WS}, {sKC} offen sc1")
                w2l.append(list(S))
                w2l.append([Inst(f"buffer_load_dwordx4 {a_(132+8*i,4)}, {ad}, {WS}, {sKC} offen offset:256 sc1")])
                if i & 1:
                    ctx(w2l[-4:])
                continue
            S(f"s_add_u32 {sKC}, {w2o[i]}")
            S(f"buffer_load_dwordx4 {a_(128+8*i,4)}, {W2A}, {WS}, {sKC} offen sc1")
            w2l.append(list(S))
            w2l.append([Inst(f"buffer_load_dwordx4 {a_(132+8*i,4)}, {W2B}, {WS}, {sKC} offen sc1")])
            ctx(w2l[-2:])
        self.steps, self.w2o, self.hho = steps, w2o, hho
        nw1, nw2 = (o.get('nw1', 6), o.get('nw2', 6)) if o.get('e2', 0) else (0, 0)
        assert nw1 <= 24
        W1, W2_, w2l = w2l[:nw1], w2l[nw1:nw1 + nw2], w2l[nw1 + nw2:]
        self.n_w2rest = len(w2l)
        TQ = flat([self.dmaT(t, t) for t in range(2)]) + w2l
        n2, n3 = o.get('tq2', 6), o.get('tq3', 10)

        def num(i):
            return mf32(NA[i % 3], v(112 + 4 * i, 4), a_(PQR + 4 * i, 4), "0")

        def fin(i):
            n = NA[i % 3] + 8 * (i & 1)
            d = NA[i % 3] + 8 * (1 - (i & 1))
            S = Seq()
            S(f"v_add_f32 v{d}, {sEPS6}, v{d}\nv_rcp_f32 v{d}, v{d}")
            for k in range(8):
                S(f"v_mul_f32 v{n+k}, v{n+k}, v{d}")
            for k in range(4):
                S(f"v_cvt_pk_bf16_f32 v{48+4*i+k}, v{n+2*k}, v{n+2*k+1}")
            return S

        def owrite(i):
            return Inst(f"ds_write_b128 v{OAD}, {v(48+4*i,4)} offset:{(i>>2)*16384+(i&3)*1024}", tag=f"o{i}")

        OR = (16, 20, 36, 44, 208, 248)

        def oreg(k):
            return OR[k % 6] if k < 16 else 80 + 4 * (k & 7)

        def oread(k):
            return Inst(f"ds_read_b128 {v(oreg(k),4)}, v{OAD+((k>>2)&3)} offset:{(k>>4)*16384+(k&3)*1024}")

        def acc(k):
            own = (k & 12) == 0
            return mf32(AH, a_(4 * k, 4), v(48 + 4 * ((k >> 4) * 4 + (k & 3)) if own else oreg(k), 4))
        self.stamp("bz")
        p.extend(prep(0))
        self.stamp("bp")
        p.append(num(0))
        p.append(num(1))
        VM = [[x] for x in LD[nl0:]] + list(self.wo_rest)
        per = o.get('per', 3)
        rl, rc = o.get('rl', 7), o.get('rc', 8)
        kk = 4
        for i in range(8):
            if i + 2 < 8:
                if i % 2 == 0:
                    p.extend(prep(i // 2 + 1))
                p.append(num(i + 2))
            if i >= 1:
                p.append(owrite(i - 1))
            if i == 5:
                p("WAITTAG o3\ns_barrier")
                p.extend([oread(k) for k in range(4, 9)])
            for _ in range(per):
                if VM:
                    p.extend(VM.pop(0))
            if i == rl:
                p(f"buffer_load_dword v5, {P256}, {WS}, {bRP} offen sc1")
            if i >= 5:
                for _ in range(-(-nw1 // 3)):
                    if W1:
                        p.extend(W1.pop(0))
            F = fin(i)
            self.stamp(f"b{i}")
            if i < 5:
                p.extend(F[:7])
                if i >= 1:
                    p.append(acc(i - 1))
                p.extend(F[7:])
            else:
                cuts = (8, 14) if i == 5 else (2, 6, 10, 14)
                lo = 0
                for c in cuts:
                    p.extend(F[lo:c])
                    lo = c
                    p.append(acc(kk))
                    if kk + 5 < 16:
                        p.append(oread(kk + 5))
                    kk += 1
        p.append(owrite(7))
        assert not VM
        self.stamp("B_st1")
        p.append(acc(kk))
        p("WAITTAG WO1 o7\ns_barrier")
        for k in range(16, 20):
            p.extend(W[k])
        assert kk == 14
        G = [[acc(15)] + W[20] + [oread(20)]]
        for k in range(16, 32):
            g = [acc(k)]
            if k + 5 < 32:
                g += W[k + 5] + [oread(k + 5)]
            G.append(g)
        if rl >= 8:
            G[rl - 8] += [Inst(f"buffer_load_dword v5, {P256}, {WS}, {bRP} offen sc1")]
        G[rc] += self.sub(lambda: self.spin("v5", P256, bRP, "0xffff", "16", mode='check', sleep=2))
        G = weave(G, W2_, 0, rc)
        G = weave(G, TQ[:n2], rc + 1, 17)
        p.extend(flat(G))
        for k in range(8):
            p(f"v_cvt_pk_bf16_f32 v{48+k}, v{AH+2*k}, v{AH+2*k+1}")
            if k == 3:
                p(f"buffer_store_dwordx4 v[48:51], {L16}, {WS}, {sHST} offen sc1", tag="pub2")
        p(f"buffer_store_dwordx4 v[52:55], {L16}, {WS}, {sHST} offen offset:1024 sc1", tag="pub2")
        p(f"v_add_f32 v56, v{AH}, v{AH+1}\nv_mul_f32 v57, v{AH}, v{AH}\nv_add_f32 v58, v{AH+2}, v{AH+3}\nv_mul_f32 v59, v{AH+1}, v{AH+1}")
        for k in range(2, 16):
            if k >= 4:
                p(f"v_add_f32 v{56+2*(k&1)}, v{56+2*(k&1)}, v{AH+k}")
            p(f"v_fmac_f32 v{57+2*(k&1)}, v{AH+k}, v{AH+k}")
        p("""v_add_f32 v56, v56, v58
             v_add_f32 v57, v57, v59
             v_permlane32_swap_b32 v56, v57
             v_add_f32 v56, v56, v57""")
        p(f"buffer_atomic_add_f32 v56, {L4}, {WS}, {sSTA} offen", tag="pub2")
        self.stamp("B_hst")
        for t in range(7):
            p(f"buffer_load_dword v{160+t}, {CSL}, {WS}, {cCS} offen offset:{t*128} sc1")
        p.extend(flat(TQ[n2:n2 + n3]))
        p(f"WAITTAG pub2\nbuffer_store_dword v4, {FA1}, {WS}, {sD} offen offset:512 sc1\ns_barrier")
        self.t1_late = n2 < 16
        self.stamp("B_sig")
        self.tq_rest = TQ[n2 + n3:]

    def miscC(self):
        M = Seq()
        DL = "v45"
        if self.o.get('d16', 1):
            M(f"""v_bfe_u32 v46, v1, 4, 1
                 v_and_b32 {DL}, 0xf0, {L16}
                 v_lshl_add_u32 {DL}, v46, 9, {DL}
                 v_lshrrev_b32 v46, 5, v1""")
        else:
            M(f"v_mov_b32 {DL}, {L16}\nv_mov_b32 v46, 0")
        M(f"""s_bfe_i32 {sT1}, {sTBL}, 0x10010
             s_xor_b32 {sT1}, {sT1}, {sTBL}
             s_and_b32 {sT1}, {sT1}, 0xe000
             s_bcnt1_i32_b32 {sT1}, {sT1}
             s_sub_u32 {sT1}, {sKC}, {sT1}""")
        if self.o.get('cmap', 1):
            M(f"""s_and_b32 {sGC}, {sT1}, 4
                 s_lshl_b32 {sGC}, {sGC}, 1
                 s_and_b32 {sT2}, {sU}, 7
                 s_add_u32 {sGC}, {sGC}, {sT2}
                 s_and_b32 {sMC}, {sT1}, 3
                 s_lshl_b32 {sMC}, {sMC}, 2
                 s_lshr_b32 {sT2}, {sU}, 3
                 s_add_u32 {sMC}, {sMC}, {sT2}""")
        else:
            M(f"""s_and_b32 {sGC}, {sT1}, 6
                 s_lshl_b32 {sGC}, {sGC}, 1
                 s_add_u32 {sGC}, {sGC}, {sRQ}
                 s_and_b32 {sMC}, {sT1}, 1
                 s_lshl_b32 {sMC}, {sMC}, 3
                 s_lshr_b32 {sT2}, {sU}, 2
                 s_add_u32 {sMC}, {sMC}, {sT2}""")
        M(f"""s_lshl_b32 {sT1}, {sGC}, 10
             s_lshl_b32 {sT2}, {sGC}, 12
             s_xor_b32 {sP2}, {sT1}, {sT2}
             s_and_b32 {sP2}, {sP2}, 0x2000
             s_xor_b32 {sP2}, {sP2}, {sPE}
             s_lshl_b32 {bTA}, {sMC}, 19
             s_add_u32 {bTA}, {bTA}, {sXL}
             s_and_b32 {sT2}, {sMC if self.o.get('grp', 1) else sW}, 1
             s_lshl_b32 {sT2}, {sT2}, 13
             s_add_u32 {bTA}, {bTA}, {sT2}
             s_add_u32 {bTA}, {bTA}, {hex(W13R)}
             s_xor_b32 {bTX}, {bTA}, 0x2000""")
        M(f"""s_lshl_b32 {sT1}, {sGC}, 2
             s_add_u32 {sT2}, {sT1}, {sW}
             s_lshl_b32 {cHS2}, {sT2}, 4
             s_add_u32 {cHS2}, {cHS2}, {sMC}
             s_lshl_b32 {cHS2}, {cHS2}, 14
             s_add_u32 {cHS2}, {cHS2}, {hex(HH+4096)}
             s_xor_b32 {cHS2}, {cHS2}, {sP2}
             s_lshl_b32 {cHB}, {sT2}, 16
             s_add_u32 {cHB}, {cHB}, {hex(HB)}
             s_xor_b32 {cHB}, {cHB}, {sPE}
             s_sub_u32 {cHS}, {cHS2}, 4096
             s_lshl_b32 {sT3}, {sMC}, 14
             s_sub_u32 {cPL}, {cHS2}, {sT3}
             s_add_u32 {cPL}, {cPL}, {3072+512}
             s_add_u32 {cST}, {cPL}, 256
             v_lshlrev_b32 {HPA}, 14, v1
             v_and_b32 {PA2}, 12, {L4}
             v_or_b32 {PA2}, {PA2}, {LM8}
             v_bfe_u32 v44, v1, 2, 1
             v_lshl_add_u32 {PA2}, v44, 18, {PA2}
             s_mul_i32 {cCS}, {sMC}, {7*128}
             s_add_u32 {cCS}, {cCS}, {hex(CS)}
             s_and_b32 {sCB}, {sMC}, 7
             s_lshl_b32 {cW2}, {sCB}, 19
             s_lshl_b32 {sT3}, {sW}, 17
             s_add_u32 {cW2}, {cW2}, {sT3}
             s_and_b32 {sT3}, {sCB if self.o.get('grp', 1) else sW}, 1
             s_lshl_b32 {sT3}, {sT3}, 13
             s_add_u32 {cW2}, {cW2}, {sT3}
             s_add_u32 {cW2}, {cW2}, {hex(W2R)}
             s_xor_b32 {cW2x}, {cW2}, 0x2000
             s_and_b32 {sT3}, {sW}, 1
             s_lshl_b32 {sT2}, {sT3}, 10
             v_add_u32 {W2A}, {sT2}, {DL}
             v_xor_b32 {W2B}, 1024, {W2A}
             v_lshrrev_b32 v44, 4, v1
             v_lshl_add_u32 {LB0}, v44, {8 if self.o.get('c16', 1) else 31}, {L16}
             v_and_b32 {LB0}, 0xffff, {LB0}
             v_add_u32 {LB1}, 0x10000, {LB0}
             v_add_u32 {LB2}, 0x20000, {LB0}
             s_add_u32 {sT2}, {bTL}, 0x10000
             v_add_u32 {WLA}, {sT2}, {W2A}
             v_add_u32 {WLB}, {sT2}, {W2B}
             v_lshl_add_u32 {WLA}, v46, 11, {WLA}
             v_lshl_add_u32 {WLB}, v46, 11, {WLB}
             v_lshl_add_u32 {W2A}, v46, 15, {W2A}
             v_lshl_add_u32 {W2B}, v46, 15, {W2B}
             v_add_u32 {WLC}, 0x10000, {WLA}
             v_add_u32 {WLD}, 0x10000, {WLB}
             v_and_b32 {CSL}, 0x7c, {L4}
             s_lshr_b32 {sT2}, {sMC}, 3
             s_lshl_b32 {sT2}, {sT2}, 1
             s_add_u32 {sT1}, {sT1}, {sT2}
             s_lshl_b32 {cHL}, {sT1}, 18
             s_lshl_b32 {sT2}, {sW}, 16
             s_add_u32 {cHL}, {cHL}, {sT2}
             s_add_u32 {cHL}, {cHL}, {hex(HH)}
             s_xor_b32 {cHL}, {cHL}, {sP2}
             s_lshr_b32 {sT2}, {sW}, 1
             s_add_u32 {sT1}, {sT1}, {sT2}
             s_lshl_b32 {sT2}, {sT2}, 18
             v_add_u32 {HHA}, {sT2}, {DL}
             v_lshl_add_u32 {HHA}, v46, 14, {HHA}
             v_xor_b32 {HHB}, 0x40000, {HHA}
             s_lshl_b32 {sT1}, {sT1}, 15
             s_lshl_b32 {sT2}, {sCB}, 1
             s_add_u32 {sT2}, {sT2}, {sT3}
             s_lshl_b32 {cOUT}, {sT2}, 6
             s_add_u32 {cOUT}, {cOUT}, {sT1}
             s_lshr_b32 {cHR}, {sT2}, 2
             s_lshl_b32 {cHR}, {cHR}, 13
             s_add_u32 {cHR}, {cHR}, {sT1}
             s_and_b32 {sT2}, {sT2}, 3
             s_lshl_b32 {sT2}, {sT2}, 10
             s_add_u32 {cHR}, {cHR}, {sT2}
             s_lshl_b32 {cHR}, {cHR}, 1
             s_add_u32 {cHR}, {cHR}, {hex(HB)}
             s_xor_b32 {cHR}, {cHR}, {sPE}
             s_add_u32 {cPP}, {cHL}, 7168
             s_add_u32 {cPQ}, {cPP}, 0x40000
             s_and_b32 {sT3}, {sMC}, 3
             s_mul_i32 {sT3}, {sT3}, {16384-4}
             s_sub_u32 {cPS}, {cHS2}, {sT3}""")
        return list(M)

    def phaseCD(self):
        p = self.p
        o = self.o
        sub = self.sub
        bar = lambda s_: list(Seq()(s_))
        steps, w2o, hho = self.steps, self.w2o, self.hho

        def dmaW2(part):
            g = []
            for k in range(4):
                S = Seq()
                S(f"s_add_u32 m0, {bTL}, {(2+part)*32768+k*2048}\ns_add_u32 {sT0}, {w2o[16+4*part+k]}")
                S(f"buffer_load_dwordx4 {L16}, {WS}, {sT0} offen sc1 lds", tag=f"W2L{part}")
                g.append(list(S))
                g.append([Inst(f"buffer_load_dwordx4 {L16}, {WS}, {sT0} offen offset:1024 sc1 lds", tag=f"W2L{part}")])
                ctx(g[-2:])
            return g

        def pub(tag, st):
            if o.get('nopub'):
                return []
            return bar(f"WAITTAG {tag}\nbuffer_store_dword v4, {FA1}, {WS}, {cPS} offen offset:{3072+128*st} sc1")

        vp = str(o.get('vp', 'x0123'))

        def pollld(st):
            if o.get('nopoll'):
                return []
            if str(st) in vp:
                return bar(f"buffer_load_dword v5, {PA2}, {WS}, {cPP} offen sc1")
            return list(Seq()(f"""s_buffer_load_dwordx4 s[8:11], {WS}, {cPP} glc
                 s_buffer_load_dwordx4 s[12:15], {WS}, {cPQ} glc""", cond=True))

        def pollchk(st):
            if o.get('nopoll'):
                return []
            if str(st) in vp:
                return sub(lambda: self.spin("v5", PA2, cPP, "0xff", "1", mode='check', sleep=o.get('sleep2', 2))) + \
                    bar(f"s_add_u32 {cPP}, {cPP}, 128\ns_add_u32 {cPQ}, {cPQ}, 128")
            red = """s_and_b64 s[8:9], s[8:9], s[10:11]
                 s_and_b64 s[12:13], s[12:13], s[14:15]
                 s_and_b64 s[8:9], s[8:9], s[12:13]
                 s_and_b32 s8, s8, s9"""

            def f():
                Lp = self.lab("sp")
                if o.get('stamps') == 3:
                    self.p(f"s_mov_b32 {sT5}, 0")
                self.p("WAITALL lgkm\n" + red)
                self.ool("s_cbranch_scc0", f"""s_mov_b32 {sT5}, 0
                     {Lp}:
                     s_sleep {o.get('sleep2', 2)}
                     s_buffer_load_dwordx4 s[8:11], {WS}, {cPP} glc
                     s_buffer_load_dwordx4 s[12:15], {WS}, {cPQ} glc
                     s_add_u32 {sT5}, {sT5}, 1
                     s_waitcnt lgkmcnt(0)
                     {red}
                     s_lshr_b32 s9, {sT5}, 15
                     s_or_b32 s8, s8, s9
                     s_cbranch_scc0 {Lp}""")
                self.p(f"s_add_u32 {cPP}, {cPP}, 128\ns_add_u32 {cPQ}, {cPQ}, 128")
                if o.get('stamps') == 3:
                    self.p(f"v_writelane_b32 v{STV}, {sT5}, {self.nstamp}")
                    self.nstamp += 1
                    self.stamp_names.append(f"P{st}")
            return sub(f)

        kt = max(0, len(self.tq_rest) - self.n_w2rest)
        FQ = self.tq_rest[:kt] + self.dmaT(2, 2) + self.dmaT(3, 3) + self.dmaT(4, 4) + self.tq_rest[kt:]
        npre, npre2 = o.get('tq4', 12), o.get('tq5', 0)
        p.extend(flat(FQ[:npre]))
        FQ = FQ[npre:]
        c16 = o.get('c16', 1)
        CSR, CSF, MEANF, C1, C2 = 160, 168, 176, 180, 181
        CSU, CSG, MEANG = 213, 220, 228
        p("s_nop 0")
        for k in (1, 2, 3, 5, 6, 7, 9, 10, 11):
            p(f"v_mov_b32 v{CSF+k}, 0")
            if c16:
                p(f"v_mov_b32 v{CSG+k}, 0")
        for t in range(7):
            p.extend(split2(CSR + t, CSR + t, 184))
        if c16:
            for t in range(7):
                p(f"v_mov_b32 v{CSU+t}, v{CSR+t}")
            for t in range(7):
                p(f"v_permlane16_swap_b32 v{CSR+t}, v{CSU+t}")
            p(f"s_mov_b64 s[8:9], 0xffff\nv_mov_b32 v{CSG}, v{CSU}\nv_mov_b32 v{CSG+4}, v{CSU+1}")
        p(f"v_mov_b32 v{CSF}, v{CSR}\nv_mov_b32 v{CSF+4}, v{CSR+1}")
        p("s_nop 0")
        p.extend(flat(FQ[:npre2]))
        FQ = FQ[npre2:]
        self.stamp("C_prepoll")
        self.spin("v5", HPA, cPL, "0xffff", "1", mode='all', sleep=o.get('sleep3', 0))
        self.stamp("C_sync2")

        c16 = o.get('c16', 1)
        fo = (lambda s: (s >> 1) * 2048 + (s & 1) * 256) if c16 else (lambda s: s * 1024)

        def hload(s):
            S = Seq()
            if s % 4 == 0 and s:
                S(f"s_add_u32 {cHB}, {cHB}, {4096 if s % 8 else 12288}")
            S(f"buffer_load_dwordx4 {a_(4*s,4)}, {LB0}, {WS}, {cHB} offen offset:{fo(s&3)} sc1")
            return list(S)
        HL = o.get('hla', 10)
        for s in range(HL):
            p.extend(hload(s))
        if self.t1_late:
            p("WAITTAG T1\ns_barrier")
        ACC = [48, 64, 80, 96, 112]
        acc_of = [0, 1, 2, 3, 0, 1, 2]
        slot_of = [0, 1, 2, 3, 4, 0, 1]
        WR, NR = 128, 8
        CSR, CSF, MEANF, C1, C2 = 160, 168, 176, 180, 181
        T = 184
        LK = o.get('lk', 5)
        F0 = Seq()
        for k in range(4):
            F0(f"buffer_load_dword v{T+4+k}, {L4}, {WS}, {cST} offen sc1\ns_add_u32 {cST}, {cST}, 16384")
        F1 = Seq()
        F1(f"""v_add_f32 v{T}, v{T+4}, v{T+5}
             v_add_f32 v{T+1}, v{T+6}, v{T+7}
             v_add_f32 v{T}, v{T}, v{T+1}
             v_mov_b32 v{T+1}, v{T}
             v_permlane32_swap_b32 v{T}, v{T+1}
             v_mul_f32 v{T}, 0x3b000000, v{T}
             v_mul_f32 v{T+1}, 0x3b000000, v{T+1}
             v_cvt_pk_bf16_f32 v{MEANF}, -v{T}, -v{T}
             v_fma_f32 v{T+1}, -v{T}, v{T}, v{T+1}
             v_max_f32 v{T+1}, 0, v{T+1}
             v_add_f32 v{C2}, 0x3727c5ac, v{T+1}
             v_rsq_f32 v{C1}, v{C2}
             v_mul_f32 v{C1}, 0xbfb8aa3b, v{C1}""")
        if c16:
            prs = [(MEANF, MEANG), (C2, C2 + 2), (C1, C1 + 2)]
            for x, y in prs:
                F1(f"v_mov_b32 v{y}, v{x}")
            for x, y in prs:
                F1(f"v_permlane16_swap_b32 v{x}, v{y}")
            F1(f"""v_cndmask_b32 v{MEANF}, 0, v{MEANF}, s[8:9]
                 v_cndmask_b32 v{MEANG}, 0, v{MEANG}, s[8:9]""")
        else:
            F1(f"v_cndmask_b32 v{MEANF}, v{MEANF}, 0, {sHILANES}")

        def tread(t, s, n):
            sl = slot_of[t]
            base = (LB0, LB0, LB1, LB1, LB2)[sl]
            return [Inst(f"ds_read_b128 {v(WR+4*(n%NR),4)}, {base} offset:{(sl&1)*32768*(sl<4)+fo(s)}")]

        def corr(t):
            A = ACC[acc_of[t]]
            if c16:
                return [mf16(A + 8 * gu + 4 * th, v((CSF, CSG)[gu] + 4 * (t & 1), 4), v((MEANF, MEANG)[th], 4))
                        for gu, th in ((0, 0), (0, 1), (1, 1), (1, 0))]
            return [mf32(A, v(CSF + 4 * (t & 1), 4), v(MEANF, 4))]

        def cm(t, s, n):
            A, w = ACC[acc_of[t]], v(WR + 4 * (n % NR), 4)
            if not c16:
                return [mf32(A, w, a_(4 * s, 4), "0" if s == 0 else None)]
            gu = s & 1
            r = [mf16(A + 8 * gu + 4 * th, w, a_(8 * (s >> 1) + 4 * th, 4), "0" if s < 2 else None) for th in (gu, 1 - gu)]
            r[1].tag = "second"
            return r

        def spread(G):
            out = []
            for g in G:
                g = hoist(g)
                if len(g) > 1 and g[1].tag == "second":
                    m, rest, c, k = g[1], g[2:], 0, 0
                    m.tag = None
                    tot = sum(cost(x) for x in rest if not x.cond)
                    while k < len(rest) and c + cost(rest[k]) <= max(9.7, tot / 2 + 2.2) and not rest[k].cond \
                            and rest[k].kind not in ('branch', 'label') and not rest[k].op.startswith('v_cmp'):
                        c += cost(rest[k])
                        k += 1
                    g = [g[0]] + rest[:k] + [m] + rest[k:]
                out += g
            return out
        G = []
        for n in range(64):
            s, t = divmod(n, 2)
            g = cm(t, s, n)
            if n + LK < 64:
                g += tread((n + LK) % 2, (n + LK) // 2, n + LK)
            else:
                if n + LK == 64:
                    g += bar("WAITTAG T2\ns_barrier")
                g += tread(2, n + LK - 64, n + LK)
            if t == 0 and s + HL < 32:
                g += hload(s + HL)
            G.append(g)
        G.append(corr(0))
        G.append(corr(1))
        for n in range(LK):
            p.extend(tread(n % 2, n // 2, n))
        G = weave(G, list(F0), 1, o.get('f0', 20))
        G = weave(G, list(F1), o.get('f1', 40), 63)
        e0 = 2 * (32 - HL)
        ng = min(len(FQ), o.get('g1q', 8))
        G = weave(G, FQ[:ng], e0, 66)
        FQ = FQ[ng:]
        p.extend(spread(G))
        self.stamp("C_g1")

        def epi(t, tmp):
            A = ACC[acc_of[t]]
            S = Seq()
            for j in range(8):
                S(f"v_mul_f32 v{tmp+j}, v{A+j}, v{C1+2*c16*(j>>2)}")
            for j in range(8):
                S(f"v_exp_f32 v{tmp+j}, v{tmp+j}")
                S(f"v_mul_f32 v{A+j}, v{A+j}, v{A+8+j}")
            for j in range(8):
                S(f"v_fma_f32 v{tmp+j}, v{tmp+j}, v{C2+2*c16*(j>>2)}, v{C2+2*c16*(j>>2)}")
                if j >= 2:
                    S(f"v_rcp_f32 v{tmp+j-2}, v{tmp+j-2}")
            for j in range(8):
                S(f"v_mul_f32 v{A+j}, v{A+j}, v{tmp+j}")
                if j < 2:
                    S(f"v_rcp_f32 v{tmp+6+j}, v{tmp+6+j}")
            for j in (0, 2, 1, 3):
                S(f"v_cvt_pk_bf16_f32 v{tmp+8+j}, v{A+2*j}, v{A+2*j+1}")
            if c16:
                S(f"v_permlane16_swap_b32 v{tmp+8}, v{tmp+10}\nv_permlane16_swap_b32 v{tmp+9}, v{tmp+11}")
            S(f"buffer_store_dwordx4 {v(tmp+8,4)}, {L16}, {WS}, {cHS if t < 4 else cHS2} offen offset:{(t&3)*1024} sc1", tag=f"hh{t}")
            return list(S)

        def tilepass(t, n0):
            G = []
            for s in range(32):
                n = n0 + s
                g = cm(t, s, n)
                if s + LK < 32:
                    g += tread(t, s + LK, n + LK)
                elif t < 6:
                    if s + LK == 32:
                        g += bar(f"WAITTAG T{t+1}\ns_barrier")
                    g += tread(t + 1, s + LK - 32, n + LK)
                if s == 16:
                    g += bar(f"v_mov_b32 v{CSF+4*(t&1)}, v{CSR+t}")
                if s == 17 and c16:
                    g += bar(f"v_mov_b32 v{CSG+4*(t&1)}, v{CSU+t}")
                G.append(g)
            G.append(corr(t))
            return G

        d16 = o.get('d16', 1)

        def hhload(i):
            S = Seq()
            if d16:
                ad = HHB if i & 1 else HHA
                S(f"s_add_u32 {sCc}, {cHL}, {hho[i & ~1]}")
                S(f"buffer_load_dwordx4 {a_(8*(i&15),4)}, {ad}, {WS}, {sCc} offen sc1")
                return ctx([list(S), [Inst(f"buffer_load_dwordx4 {a_(8*(i&15)+4,4)}, {ad}, {WS}, {sCc} offen offset:256 sc1")]])
            S(f"s_add_u32 {sCc}, {cHL}, {hho[i]}")
            S(f"buffer_load_dwordx4 {a_(8*(i&15),4)}, {HHA}, {WS}, {sCc} offen sc1")
            return ctx([list(S), [Inst(f"buffer_load_dwordx4 {a_(8*(i&15)+4,4)}, {HHB}, {WS}, {sCc} offen sc1")]])

        EP = [epi(t, T + 12 * (t & 1)) for t in range(7)]
        P = {t: tilepass(t, 32 * t) for t in range(2, 7)}
        q = o.get('cq', 18)
        ee = o.get('ee', 20)
        LA = o.get('dla', 7)
        G = weave(P[2], FQ[:q], 0, 32)
        FQ = self.dmaT(5, 0) + FQ[q:]
        FQ = FQ[:q] + self.dmaT(6, 1) + FQ[q:] + dmaW2(0) + dmaW2(1) + dmaW2(2)
        G = weave(G, EP[0] + EP[1][:26], 2, 33)
        p.extend(self.xf(spread(G)))
        self.stamp("C_t2")
        q3 = min(q, len(FQ) - 24)
        G = weave(P[3], FQ[:q3], 0, 32)
        FQ = FQ[q3:]
        G = weave(G, EP[1][26:] + EP[2], 0, 33)
        p.extend(self.xf(spread(G)))
        self.stamp("C_t3")
        q4 = min(q, len(FQ) - 16)
        G = weave(P[4], FQ[:q4], 0, 32)
        FQ = FQ[q4:]
        G = weave(G, EP[3], 2, ee)
        G[o.get('p1at', 26)] += pub("hh2", 0)
        p.extend(self.xf(spread(G)))
        self.stamp("C_t4")
        q5 = min(q, len(FQ) - 8)
        G = weave(P[5], FQ[:q5], 0, 32)
        FQ = FQ[q5:]
        G[o.get('l1', 14)] += pollld(0)
        G[1] += bar(f"buffer_load_dwordx4 v[24:27], {L16}, {WS}, {cHR} offen sc1")
        G[3] += bar(f"buffer_load_dwordx4 v[28:31], {L16}, {WS}, {cHR} offen offset:1024 sc1")
        G = weave(G, EP[4], 2, ee)
        p.extend(self.xf(spread(G)))
        self.stamp("C_t5")
        G = P[6]
        c1 = o.get('c1', 1)
        n6 = min(o.get('n6', 0), len(FQ))
        if n6:
            G = weave(G, FQ[:n6], 0, max(c1, 1))
            FQ = FQ[n6:]
        G[c1] += pollchk(0)
        hq = [x for i in range(LA) for x in hhload(i)]
        G = weave(G, hq, c1 + 1, 33)
        S = Seq()
        if d16:
            for i in (24, 25, 28, 29):
                S(f"v_permlane16_swap_b32 v{i}, v{i+2}")
        for i in range(8):
            S(f"v_lshlrev_b32 v{48+2*i}, 16, v{24+i}\nv_and_b32 v{49+2*i}, {sMSKHI}, v{24+i}")
        for k in range(4):
            S(f"""s_xor_b32 {sT1}, {sW}, {k}
                 s_mul_i32 {sT1}, {sT1}, 12288
                 v_add_u32 v{36+k}, {sT1}, {L16}""")
        G = weave(G, list(S), ee + 1, 33)
        G = weave(G, EP[5], 2, ee)
        G[o.get('p2at', 12)] += pub("hh4", 1)
        p.extend(self.xf(spread(G)))
        self.stamp("C_t6")

        DA = [48, 64, 96, 112]

        def w2r(i, a):
            return (128, 168, 128)[(i - 16) // 4] + 8 * (i % 4) + 4 * a

        def w2read(i):
            part, k = divmod(i - 16, 4)
            r = bar(f"WAITTAG W2L{part}") if k == 0 else []
            for a in range(2):
                ad = ((WLA, WLB), (WLA, WLB), (WLC, WLD))[part][k & 1 if d16 else a]
                r.append(Inst(f"ds_read_b128 {v(w2r(i, a), 4)}, {ad} offset:{(part&1)*32768 + ((k&2)*2048 + a*256 if d16 else k*2048)}"))
            return r

        def w2f(i, a):
            return a_(128 + 8 * i + 4 * a, 4) if i < 16 else v(w2r(i, a), 4)

        def dm(i, k):
            a, b = k & 1, k >> 1
            if d16:
                j, ch = i & ~1, i & 1
                r = [mf16(DA[k] + 8 * ch + 4 * th, w2f(j + a, ch), a_(8 * ((j + b) & 15) + 4 * th, 4), "0" if j == 0 and k else None)
                     for th in (ch, 1 - ch)]
                r[1].tag = "second"
                return r
            return [mf32(DA[k], w2f(i, a), a_(8 * (i & 15) + 4 * b, 4), "0" if i == 0 and k else None)]
        nl = o.get('nl', 4)
        if d16:
            assert nl % 2 == 0
            G = [dm(j + ch, k) for j in range(0, 28 - nl, 2) for k in (0, 1, 3, 2) for ch in range(2)]
        else:
            G = [dm(i, k) for i in range(28 - nl) for k in (1, 3, 2, 0)]
        G += [dm(i, k) for k in (1, 3, 2, 0) for i in range(28 - nl, 28)]
        for i in range(16, 28):
            G[min(4 * i - 7 - 2 * d16 * (i & 1), 4 * (28 - nl) - 8 + (i - (28 - nl)))] += w2read(i)
        c2, c3, c4 = o.get('c2', 22), o.get('c3', 54), o.get('c4', 76)
        l2, l3, l4 = o.get('l2', 6), o.get('l3', 37), o.get('l4', 62)
        G[l2] += pollld(1)
        G = weave(G, EP[6], 1, o.get('e6', 11))
        G[o.get('p3at', 12)] += pub("hh5", 2)
        G[l3] += pollld(2)
        G[o.get('p4at', 38)] += pub("hh6", 3)
        G[o.get('dbar', 40)] += bar("s_barrier")
        hs = lambda a, b: [x for i in range(a, b) for x in hhload(i)]
        G = weave(G, hs(LA, 12), 0, c2)
        G[c2] += pollchk(1)
        nf = max(0, len(FQ) - o.get('nf', 8))
        G = weave(G, hs(12, 16) + FQ[:nf] + hs(16, 20), c2 + 1, c3)
        G[c3] += pollchk(2)
        G = weave(G, hs(20, 24), c3 + 1, l4)
        G[l4] += pollld(3)
        G = weave(G, FQ[nf:], l4 + 1, c4)
        G[c4] += pollchk(3)
        G = weave(G, hs(24, 28), c4 + 1, c4 + o.get('h4', 9))
        WRT = [[Inst(f"ds_write_b128 v{36+k}, {v(DA[k]+4*q_,4)} offset:{(k-1)*4096+q_*1024}") for q_ in range(4)] for k in (1, 3, 2)]
        if nl >= 2:
            for n in range(3):
                G = weave(G, WRT[n], 112 - (3 - n) * nl + 1, 112 - (2 - n) * nl + (1 if n < 2 else 0))
        else:
            G[111] += flat(WRT)
        for k in sorted(set(list(range(8, 112, 8)) + [c2 - 1, c2, c3 - 1, c3, c4 - 1, c4])):
            G[k] += sub(lambda: self.stamp(f"d{k}"))
        p.extend(self.xf(spread(G)))
        self.stamp("D_loop")
        p("WAITALL lgkm\ns_barrier")
        for q_ in range(4):
            for k in range(3):
                p(f"ds_read_b128 {v(160+16*k+4*q_,4)}, v36 offset:{k*4096+q_*1024}")
        for q_ in range(4):
            for j in range(2):
                r = 4 * q_ + 2 * j
                p(f"v_pk_add_f32 {v(48+r,2)}, {v(48+r,2)}, {v(160+r,2)}")
                p(f"v_pk_add_f32 {v(176+r,2)}, {v(176+r,2)}, {v(192+r,2)}")
            for j in range(2):
                r = 4 * q_ + 2 * j
                p(f"v_pk_add_f32 {v(48+r,2)}, {v(48+r,2)}, {v(176+r,2)}")
            for j in range(2):
                p(f"v_cvt_pk_bf16_f32 v{112+2*q_+j}, v{48+4*q_+2*j}, v{48+4*q_+2*j+1}")
            if q_ & 1 and d16:
                p(f"v_permlane16_swap_b32 v{110+2*q_}, v{112+2*q_}\nv_permlane16_swap_b32 v{111+2*q_}, v{113+2*q_}")
            if q_ & 1:
                p(f"buffer_store_dwordx4 {v(112+4*(q_>>1),4)}, {ROWA}, {OUT}, {cOUT} offen offset:{32*(q_>>1)}" + ["", " sc1", " nt", " sc0 sc1"][o.get('outst', 0)])
        self.stamp("D_end")

    def finish(self):
        p = self.p
        if self.o.get('stamps'):
            p("WAITALL vm")
            self.stamp("D_drained")
            p(f"""s_lshl_b32 {sT0}, s2, 2
                 s_add_u32 {sT0}, {sT0}, {sW}
                 s_lshl_b32 {sT0}, {sT0}, 7
                 s_add_u32 {sT0}, {sT0}, {hex(STAMP)}
                 s_mov_b32 exec_hi, 0
                 buffer_store_dword v{STV}, {L4}, {WS}, {sT0} offen""")
        if self.o.get('padto'):
            p("WAITALL vm")
            if self.o.get('skew') is not None:
                p(f"""buffer_load_dword v43, off, {DBG}, 0 offset:128 sc1
                     buffer_load_dword v41, off, {DBG}, 0 offset:192 sc1
                     v_not_b32 v43, v43
                     v_readfirstlane_b32 s72, v43
                     v_readfirstlane_b32 s73, v41""")
                if self.o['skew'] < 0:
                    p("s_sub_u32 s101, s73, s72")
                else:
                    p("s_sub_u32 s101, s100, s72")
                p(f"""s_min_u32 s101, s101, 2000
                     s_lshl_b32 s101, s101, 3
                     s_add_u32 s100, s72, s101
                     s_lshl_b32 s72, s2, 2
                     s_add_u32 s72, s72, {sW}
                     s_cmp_lg_u32 s72, {max(self.o['skew'], 0) * 4}
                     s_cbranch_scc1 L_end""")
            if self.o.get('seg0'):
                p(f"s_lshl_b32 s72, s2, 2\ns_add_u32 s72, s72, {sW}\ns_cmp_lg_u32 s72, {self.o.get('segw', 150)}\ns_cbranch_scc1 L_end")
            p("L_pad:\ns_memrealtime s[72:73]\ns_waitcnt lgkmcnt(0)\ns_sub_u32 s72, s72, s100")
            p(f"s_cmp_lt_i32 s72, {self.o['padto']}\ns_cbranch_scc1 L_pad")
        p("L_end:\ns_endpgm")

    def build(self):
        if self.o.get('stamps') or self.o.get('padto'):
            self.p("s_memtime s[100:101]" if self.o.get('stamps') == 2 else "s_memrealtime s[100:101]")
        self.setup()
        if self.o.get('seg0') == 'start':
            self.p("s_mov_b32 s101, s100")
        if self.o.get('stamps'):
            self.p(f"v_mov_b32 v{STV}, s100")
            self.nstamp = 1
            self.stamp_names.append("start")
        self.p.extend(self.xf(self.sub(self.phaseA), 'xa'))
        self.p.extend(self.xf(self.sub(self.phaseB), 'xb'))
        self.phaseCD()
        self.finish()
        sk = str(self.o.get('skel', ''))
        if sk:
            Q = Seq()
            for i in self.p:
                if 'm' in sk and i.kind == 'mfma':
                    r = sorted(i.srcab)
                    for x in (r[0], r[-1]):
                        Q(f"v_accvgpr_read_b32 v40, {x}" if x[0] == 'a' else f"v_mov_b32 v40, {x}")
                    continue
                if 'e' in sk and i.kind in ('valu', 'trans') and not i.cond and i.op.endswith(('f32', 'f32_e64')):
                    continue
                if 'v' in sk and i.kind in ('vload', 'dma') and not i.cond and 'dwordx4' in i.op:
                    continue
                if 's' in sk and i.kind == 'vstore' and not i.cond and (i.wide or 'f32' in i.op) and 'v[176:179]' not in i.text:
                    continue
                Q.append(i)
            self.p = Q
        ns = str(self.o.get('nosc', ''))
        for i in self.p:
            if i.kind in ('vload', 'dma') and 'dwordx' in i.op and not i.cond:
                for ch, regs in (('k', (sKVL, bK2, sZL)), ('q', (sPQL, bQ2)), ('h', (cHB,)), ('t', (sT0, sKC)), ('d', (sCc,))):
                    if ch in ns and any(f"{WS}, {r} " in i.text for r in regs):
                        i.text = i.text.replace(" sc1", "")
        import dsl
        dsl.MERGE = self.o.get('mg', 1)
        return finalize(self.p, self.o.get('fill', 1))


def emit(opt):
    g = Gen(opt)
    prog = g.build()
    hdr = open(os.path.join(os.path.dirname(os.path.abspath(__file__)), "header.txt")).read()
    body = "\n".join(("" if i.kind == 'label' else "    ") + i.text for i in prog)
    txt = hdr + f"""; @launch grid=(256,1,1) block=(256,1,1) lds=163840
.amdgcn_target "amdgcn-amd-amdhsa--gfx950"
.set CODE_PF_MAX, {opt.get('code_bytes', 0)}
.text
.globl {NAME}_kernel
.p2align 8
.type {NAME}_kernel,@function
{NAME}_kernel:
{body}
.section .rodata,"a"
.p2align 6
.amdhsa_kernel {NAME}_kernel
  .amdhsa_next_free_vgpr 512
  .amdhsa_next_free_sgpr 102
  .amdhsa_accum_offset 256
  .amdhsa_group_segment_fixed_size 0
  .amdhsa_kernarg_size 80
  .amdhsa_user_sgpr_count 2
  .amdhsa_user_sgpr_kernarg_segment_ptr 1
  .amdhsa_system_sgpr_workgroup_id_x 1
.end_amdhsa_kernel
"""
    return txt, g.stamp_names


def code_size(txt):
    import subprocess, tempfile
    with tempfile.TemporaryDirectory() as d:
        open(d + "/k.s", "w").write(txt)
        r = subprocess.run(["clang", "-x", "assembler", "-target", "amdgcn-amd-amdhsa",
                            "-mcpu=gfx950", "-c", d + "/k.s", "-o", d + "/k.o"], capture_output=True, text=True)
        if r.returncode:
            print("\n".join(r.stderr.split("\n")[:30]))
            raise SystemExit(1)
        r = subprocess.run(["llvm-objdump", "-h", d + "/k.o"], capture_output=True, text=True)
        for line in r.stdout.split("\n"):
            f = line.split()
            if len(f) > 2 and f[1] == ".text":
                return int(f[2], 16)


def main():
    opt = {}
    out = None
    for a in sys.argv[1:]:
        if '=' in a:
            k, val = a.split('=')
            try:
                opt[k] = int(val, 0)
            except ValueError:
                opt[k] = val
        else:
            out = a
    opt['code_bytes'] = 4096
    txt, names = emit(opt)
    sz = code_size(txt)
    opt['code_bytes'] = (sz - 1024) & ~3
    txt, names = emit(opt)
    open(out, "w").write(txt)
    if names:
        open(out + ".names", "w").write(" ".join(names))
    print(out, "code bytes", sz, "lines", txt.count("\n"), "stamps", len(names))


if __name__ == "__main__":
    main()
```

```python
import sys, os
sys.path.insert(0, os.path.dirname(os.path.abspath(__file__)))
from dsl import *

NAME = "sequential_preLN__linear_attn_block__glu_gated_swiglu__prompt"

CNT = 0x20000
KVM = 0x10000
ST = 0x18000
CS = 0x1C000
ZP = 0x1F800
STAMP = 0xC0000
PQ = 0x400000
HB = 0x800000
HH = 0x1000000
W13R = 0x2000000
W2R = 0x2800000
PROBE = 0x100000
WS_SIZE = 0x2C00000
OOB = 0x7f000000

X, WQKV, WO, W1, W3, W2, OUT, WS, DBG = [f"s[{a}:{a+3}]" for a in range(4, 40, 4)]
(sW, sG, sM, sC0, sT0, sT1, sT2, sT3, sXB, sWB, sXL, sWL, sTB, sCB, sRQ, sLOG2E,
 sU, sKC, sT4, sT5, sMSKHI, sEPS6) = [f"s{i}" for i in range(40, 62)]
sHILANES = "s[62:63]"
sB4LANES = "s[64:65]"
sA, sB, sCc, sD = "s66", "s67", "s68", "s69"
sKVA, sZA, sPQS, sRW, sR2, sRC, sKVL, sZL, sPQL, sSIG, sHST, sSTA = [f"s{i}" for i in range(84, 96)]
sMA, sTA, sHS = "s3", "s74", "s83"
sP1, sPE, sP2, sTBL = "s96", "s97", "s98", "s99"
STV = 0

VB, KB, XCH, RST, KVS, ZS = 0x10000, 0x18000, 0x20000, 0x22000, 0, 0x21000

L16, L4 = "v2", "v3"
TRK, TRP = 152, 156
XCW, XCR, KVW, ZW, STW, KVR, ZR, ZAT, STR = [f"v{i}" for i in range(212, 221)]
WOD, WOT, OAD = 221, 225, 229
ROWA, ZBW, ZBR, P256 = "v233", "v234", "v235", "v236"
RL1, RL3, RL2, RT13, RT2A, RT2B, CSAT, P4K, FA1, LM8, PA2 = [f"v{i}" for i in range(237, 248)]
RCS = 248


def v(a, n=1):
    return f"v{a}" if n == 1 else f"v[{a}:{a+n-1}]"


def a_(a, n=1):
    return f"a{a}" if n == 1 else f"a[{a}:{a+n-1}]"


def mf32(d, A, B, c=None):
    return Inst(f"v_mfma_f32_32x32x16_bf16 {v(d,16)}, {A}, {B}, {v(d,16) if c is None else c}")


def mf16(d, A, B, c=None):
    return Inst(f"v_mfma_f32_16x16x32_bf16 {v(d,4)}, {A}, {B}, {v(d,4) if c is None else c}")


def mf4(d, A, B, c=None):
    return Inst(f"v_mfma_f32_4x4x4_16b_bf16 {v(d,4)}, {A}, {B}, {v(d,4) if c is None else c}")


def trpair(dst, addr, off, step):
    k, b = dst
    return [Inst(f"ds_read_b64_tr_b16 {k}[{b}:{b+1}], {addr} offset:{off}"),
            Inst(f"ds_read_b64_tr_b16 {k}[{b+2}:{b+3}], {addr} offset:{off+step}")]


def par13(t):
    return (t >> 1) & 1


def par2(pr, t):
    return (pr >> 1) if t < 3 else (t & 1) ^ 1


def split2(dst, src, t):
    return Seq()(f"""v_cvt_pk_bf16_f32 v{t}, v{src}, v{src}
         v_lshlrev_b32 v{t}, 16, v{t}
         v_sub_f32 v{t}, v{src}, v{t}
         v_cvt_pk_bf16_f32 v{dst}, v{src}, v{t}""")


cHB, cST, cHS, cHR, cCS, cW2, cHL, cOUT, cHS2 = [f"s{i}" for i in range(75, 84)]
cPP, cPQ, cPS, cPL, bTA, bTL, bK2, bQ2, bGP, bRP, bTX, cW2x, sGC, sMC = [f"s{i}" for i in (4, 5, 6, 7, 16, 17, 18, 19, 20, 21, 22, 23, 24, 25)]
W2A, W2B, LB1, LB2, WLA, WLB, WLC, WLD = [f"v{i}" for i in range(6, 14)]
CSL, HHA, HHB, HPA, LB0 = "v14", "v15", "v42", "v43", "v212"


class Gen:
    def __init__(self, opt):
        self.o = opt
        self.p = Seq()
        self.nl = 0
        self.nstamp = 0
        self.stamp_names = []

    def lab(self, s):
        self.nl += 1
        return f"L_{s}_{self.nl}"

    def stamp(self, name):
        if self.o.get('padat') == name:
            self.p("WAITALL lgkm\ns_memrealtime s[100:101]\nWAITALL lgkm")
        if self.o.get('seg0') == name:
            self.p("WAITALL lgkm\ns_memrealtime s[72:73]\nWAITALL lgkm\ns_mov_b32 s101, s72")
        if self.o.get('seg1') == name:
            self.p("WAITALL lgkm\ns_memrealtime s[72:73]\nWAITALL lgkm\ns_sub_u32 s101, s72, s101\ns_lshl_b32 s101, s101, 4\ns_add_u32 s100, s100, s101")
        if self.o.get('stamps', 3) == 3:
            return
        fine = str(self.o.get('fine', ''))
        if name[0].islower() and name[0] not in fine:
            return
        if fine and name[0].isupper() and name[0].lower() not in fine and name not in ('C_t6', 'B_sync1', 'C_sync2', 'D_drained', 'A_loop', 'A_v', 'A_q'):
            return
        p = self.p
        if self.o.get('nb'):
            if self.nstamp > 1:
                p(f"v_writelane_b32 v{STV}, s72, {self.nstamp-1}", cond=True)
            p("s_memrealtime s[72:73]" if self.o['stamps'] == 1 else "s_memtime s[72:73]", cond=True)
            if name == 'D_drained':
                p(f"s_waitcnt lgkmcnt(0)\nv_writelane_b32 v{STV}, s72, {self.nstamp}", cond=True)
            self.nstamp += 1
            self.stamp_names.append(name)
            return
        p("WAITALL lgkm")
        p("s_memrealtime s[72:73]" if self.o['stamps'] == 1 else "s_memtime s[72:73]")
        p("WAITALL lgkm")
        p(f"v_writelane_b32 v{STV}, s72, {self.nstamp}")
        self.nstamp += 1
        self.stamp_names.append(name)

    def sub(self, fn):
        save = self.p
        self.p = Seq()
        fn()
        r = list(self.p)
        self.p = save
        return r

    def xf(self, L, key='x'):
        x = self.o.get(key, '')
        out = []
        for i in L:
            if 'v' in x and i.kind in ('vload', 'dma') and not i.cond and 'dwordx4' in i.op:
                continue
            if 'e' in x and i.kind in ('valu', 'trans') and not i.cond and i.op.endswith(('f32', 'f32_e64')):
                continue
            if 'l' in x and i.kind == 'dsr':
                continue
            if 's' in x and i.kind == 'vstore' and 'store' in i.op and not i.cond:
                continue
            if 'b' in x and i.op == 's_barrier':
                continue
            if 'm' in x and i.kind == 'mfma' and i.passes < 8:
                continue
            out.append(i)
        return out

    def ool(self, branch, text):
        p = self.p
        L, R = self.lab("o"), self.lab("r")
        p(f"{branch} {L}")
        n = len(p)
        p(f"{L}:\n{text}\ns_branch {R}", cond=True)
        for i in p[n:]:
            i.ool = L
        p(f"{R}:")

    def spin(self, vt, vaddr, soff, mask, target, srd=WS, mode='wave0', sleep=0, field=None, wave=0):
        p = self.p
        Lp = self.lab("pl")
        addr = f"{vaddr}, {srd}, {soff} offen" if vaddr else f"off, {srd}, {soff}"
        ext = f"v_and_b32 v43, {field}, {vt}\n" if field is not None else ""
        vc = "v43" if field is not None else vt
        loop = f"""s_mov_b32 {sT5}, 0
             s_mov_b64 exec, {mask}
             {Lp}:
             {f's_sleep {sleep}' if sleep else ''}
             buffer_load_dword {vt}, {addr} sc1
             s_add_u32 {sT5}, {sT5}, 1
             s_waitcnt vmcnt(0)
             {ext}v_cmp_gt_u32 vcc, {target}, {vc}
             s_cmp_ge_u32 {sT5}, 0x8000
             s_cselect_b64 vcc, 0, vcc
             s_and_b64 exec, exec, vcc
             s_cbranch_scc1 {Lp}
             s_mov_b64 exec, -1"""
        if self.o.get('stamps') == 3:
            p(f"s_mov_b32 {sT5}, 0")
        if mode == 'check':
            p(f"{ext}v_cmp_gt_u32 vcc, {target}, {vc}\ns_and_b64 vcc, vcc, {mask}")
            self.ool("s_cbranch_scc1", loop)
        elif mode == 'wave0':
            Ld = self.lab("pd")
            p(f"s_cmp_lg_u32 {sW}, {wave}\ns_cbranch_scc1 {Ld}")
            p(loop, cond=True)
            p(f"{Ld}:")
        else:
            p(loop, cond=True)
            p("s_waitcnt vmcnt(0)")
        if self.o.get('stamps') == 3:
            p(f"v_writelane_b32 v{STV}, {sT5}, {self.nstamp}")
            self.nstamp += 1
            self.stamp_names.append(f"spin{self.nstamp}")

    def setup(self):
        p = self.p
        p(f"""s_cmp_ge_u32 s2, 256
             s_cbranch_scc1 L_end
             s_load_dwordx16 s[76:91], s[0:1], 0
             s_load_dwordx4 s[92:95], s[0:1], 64""")
        p("v_and_b32 v1, 63, v0\nv_lshrrev_b32 v4, 6, v0")
        p(f"v_readfirstlane_b32 {sW}, v4")
        p(f"""s_mov_b32 s6, 0x200000
             s_mov_b32 s7, 0x20000
             s_mov_b32 s10, 0x180000
             s_mov_b32 s11, 0x20000
             s_lshr_b32 {sU}, s2, 3
             s_and_b32 {sKC}, s2, 7
             s_and_b32 {sRQ}, {sU}, 3
             s_and_b32 {sG}, s2, 6
             s_lshl_b32 {sG}, {sG}, 1
             s_add_u32 {sG}, {sG}, {sRQ}
             s_lshr_b32 {sT1}, s2, 5
             s_and_b32 {sT2}, s2, 1
             s_lshl_b32 {sTA}, {sG}, 1
             s_add_u32 {sTA}, {sTA}, {sT2}
             s_lshl_b32 {sXL}, {sW}, 14
             s_lshl_b32 {sXB}, {sTA}, 16
             s_add_u32 {sXB}, {sXB}, {sXL}
             s_xor_b32 {sMA}, {sT1}, 4
             s_mul_i32 {sWB}, {sW}, {16*3072}
             s_lshl_b32 {sT0}, {sMA}, 7
             s_add_u32 {sWB}, {sWB}, {sT0}
             s_lshl_b32 {sWL}, {sW}, 11
             s_add_u32 {sC0}, {sT1}, {sKC}""")
        rot = self.o.get('rot', 6)
        if rot == 7:
            p(f"s_lshl_b32 {sT0}, {sU}, 2\ns_add_u32 {sC0}, {sC0}, {sT0}")
        if rot == 8:
            p(f"s_lshl_b32 {sT0}, {sRQ}, 1\ns_add_u32 {sC0}, {sC0}, {sT0}")
        if rot == 0:
            p(f"s_mov_b32 {sC0}, 0")
        if rot == 1:
            p(f"s_mov_b32 {sC0}, {sKC}")
        if rot == 9:
            p(f"s_lshl_b32 {sC0}, {sT1}, 1\ns_add_u32 {sC0}, {sC0}, {sKC}")
        p(f"""v_lshrrev_b32 v4, 3, v1
             v_and_b32 v5, 7, v1
             v_lshrrev_b32 v3, 4, v1
             v_xor_b32 v6, v5, v3
             v_lshlrev_b32 v6, 4, v6
             v_lshl_add_u32 v6, v4, 10, v6
             v_xor_b32 v7, 64, v6
             v_add_u32 v7, 7168, v7
             v_and_b32 v3, 1, v3
             v_lshlrev_b32 v3, 2, v3
             v_xor_b32 v5, v5, v3
             v_lshlrev_b32 v5, 4, v5
             v_mul_u32_u24 v8, 3072, v4
             v_add_u32 v8, v8, v5
             v_add_u32 v9, {8*3072-1024}, v8""")
        p("WAITALL lgkm")
        p("s_mov_b64 s[4:5], s[76:77]\ns_mov_b64 s[8:9], s[78:79]")

    def dmaW(self, t, c):
        base, po = ((KB, 1024), (VB, 2048), (0, 0))[t]
        tag = f"{'AVQ'[t]}{c}"
        S = Seq()
        S(f"s_add_u32 m0, {sWL}, {base + c*8192 - po}")
        S(f"buffer_load_dwordx4 v8, {WQKV}, s{75+c} offen offset:{po} lds", tag=tag)
        return ctx([list(S), [Inst(f"buffer_load_dwordx4 v9, {WQKV}, s{75+c} offen offset:{po+1024} lds", tag=tag)]])

    def dmaA(self, c):
        wc = f"s{75+c}"
        g = self.dmaW(0, c)
        g[0] = list(Seq()(f"""s_add_u32 {sT0}, {sC0}, {c}
             s_and_b32 {sT0}, {sT0}, 7
             s_mul_i32 {wc}, {sT0}, {64*3072}
             s_add_u32 {wc}, {wc}, {sWB}
             s_lshl_b32 {sT0}, {sT0}, 7""")) + g[0]
        nt = " nt" if self.o.get('xnt', 0) else ""
        S = Seq()
        S(f"s_add_u32 m0, {sWL}, {c*8192}\ns_add_u32 {sT0}, {sT0}, {sXB}")
        S(f"buffer_load_dwordx4 v6, {X}, {sT0} offen{nt} lds", tag=f"A{c}")
        g += [list(S), [Inst(f"buffer_load_dwordx4 v7, {X}, {sT0} offen offset:1024{nt} lds", tag=f"A{c}")]]
        return ctx(g)

    def dmaWO(self, q):
        S = Seq()
        S(f"""s_add_u32 {sT0}, {sA}, {q*65536}
             s_add_u32 m0, {sB}, {q*16384}
             s_and_b32 {sT0}, {sT0}, 0x7ffff""")
        g = []
        for k in range(4):
            S(f"buffer_load_dwordx4 v{WOD+k}, {WO}, {sT0} offen offset:{k*1024} lds", tag=f"WO{q>>2}")
            g.append(list(S))
            S = Seq()
        return ctx(g)

    def rload(self):
        nt = " nt" if self.o.get('rnt', 1) else ""
        g = []
        for k, (ad, srd, s0, s1) in enumerate(((RL1, W1, sKVL, sZL), (RL3, W3, sKVL, sZL), (RL2, W2, sPQL, sHST))):
            g.append(list(Seq()(f"s_add_u32 m0, {sSTA}, {k*2048}\nbuffer_load_dwordx4 {ad}, {srd}, {s0} offen{nt} lds")))
            g.append(list(Seq()(f"buffer_load_dwordx4 {ad}, {srd}, {s1} offen offset:1024{nt} lds", tag=f"RL{k}")))
            ctx(g[-2:])
        return g[4:] + g[:4]

    def miscA(self):
        M = Seq()
        a, b, c, d = "v208", "v209", "v210", "v211"
        M(f"""v_lshl_add_u32 {RL2}, v4, 10, v5
             v_mul_u32_u24 v4, 3584, v4
             v_add_u32 {RL1}, v4, v5
             v_xor_b32 {RL3}, 32, {RL1}
             v_mov_b32 v4, 1
             v_lshlrev_b32 {L4}, 2, v1
             s_mov_b32 {sLOG2E}, 0x3fb8aa3b
             s_mov_b32 {sMSKHI}, 0xffff0000
             s_mov_b32 {sEPS6}, 0x358637bd
             s_mov_b32 s62, 0
             s_mov_b32 s63, -1
             s_mov_b32 s64, 0xffff0000
             s_mov_b32 s65, 0xffff0000
             s_mov_b32 s96, 0x22222222
             s_mov_b32 s97, 0x22222222
             s_mov_b32 s98, 0x44444444
             s_mov_b32 s99, 0x44444444
             s_mov_b32 s70, 0x88888888
             s_mov_b32 s71, 0x88888888
             s_and_b32 {sM}, s2, 1
             s_lshl_b32 {sM}, {sM}, 3
             s_lshr_b32 {sT1}, s2, 5
             s_add_u32 {sM}, {sM}, {sT1}
             s_and_b32 {sCB}, {sM}, 3
             s_and_b32 {sT1}, {sW}, 1
             s_lshr_b32 {sT2}, {sW}, 1
             s_lshl_b32 {sMA}, {sMA}, 1
             s_add_u32 {sMA}, {sMA}, {sT2}
             s_lshl_b32 {sTA}, {sTA}, 1
             s_add_u32 {sTA}, {sTA}, {sT1}""")
        M(f"""v_and_b32 {a}, 31, v1
             v_lshrrev_b32 {b}, 5, v1
             v_bfe_u32 {c}, v1, 1, 3
             v_xor_b32 {c}, {b}, {c}
             v_lshlrev_b32 {c}, 4, {c}
             v_lshl_add_u32 {c}, {a}, 7, {c}
             s_lshl_b32 {sT3}, {sT1}, 12
             s_lshl_b32 {sT4}, {sW}, 5
             s_add_u32 {sT3}, {sT3}, {sT4}
             v_xor_b32 v10, {sT3}, {c}
             v_xor_b32 v11, 32, v10
             v_xor_b32 v12, 64, v10
             v_xor_b32 v13, 96, v10
             s_lshl_b32 {sT3}, {sCB}, 1
             s_add_u32 {sT3}, {sT3}, {sT2}
             s_sub_u32 {sT3}, {sT3}, {sC0}
             s_and_b32 {sT3}, {sT3}, 7
             s_lshl_b32 {sT3}, {sT3}, 1
             s_lshr_b32 {sT4}, s2, 7
             s_add_u32 {sT3}, {sT3}, {sT4}
             s_lshl_b32 {sT3}, {sT3}, 6
             s_add_u32 {sT3}, {sT3}, {sT1}
             s_lshl_b32 {sT3}, {sT3}, 6
             v_xor_b32 v14, {sT3}, {c}
             v_xor_b32 v15, 32, v14""")
        M(f"""s_lshl_b32 {sT3}, {sT2}, 8
             s_add_u32 {sT3}, {sT3}, {hex(XCH)}
             v_lshl_add_u32 {XCR}, {a}, 3, {sT3}
             s_lshl_b32 {sT3}, {sT1}, 2
             v_add_u32 {XCW}, {sT3}, {XCR}
             s_lshl_b32 {sT3}, {sW}, 9
             s_add_u32 {sT3}, {sT3}, {hex(XCH+2048)}
             v_lshl_add_u32 {STW}, v1, 3, {sT3}
             v_xor_b32 {STR}, 1024, {STW}
             v_lshlrev_b32 {KVW}, 4, {a}
             v_lshl_add_u32 {KVW}, {b}, 10, {KVW}
             s_add_u32 {sT3}, {sWL}, {hex(KVS)}
             v_add_u32 {KVW}, {sT3}, {KVW}
             s_lshl_b32 {sT3}, {sW}, 7
             s_add_u32 {sT3}, {sT3}, {hex(ZS)}
             v_lshl_add_u32 {ZW}, {a}, 2, {sT3}
             s_lshl_b32 {sT3}, {sT2}, 2
             s_add_u32 {sT3}, {sT3}, {sT1}
             s_lshl_b32 {sT4}, {sT3}, 10
             s_add_u32 {sT4}, {sT4}, {hex(KVS)}
             v_add_u32 {KVR}, {sT4}, {L4}
             s_lshl_b32 {sT4}, {sT3}, 6
             s_add_u32 {sT4}, {sT4}, {hex(ZS)}
             v_and_b32 {d}, 15, v1
             v_lshl_add_u32 {ZR}, {d}, 2, {sT4}
             v_lshrrev_b32 {d}, 4, v1
             v_lshl_add_u32 {ZAT}, {d}, 27, {L4}
             v_lshl_add_u32 {CSAT}, {b}, 27, {L4}
             v_lshrrev_b32 {LM8}, 3, v1
             v_lshlrev_b32 {LM8}, 27, {LM8}
             v_min_u32 {FA1}, 1, v1
             v_lshlrev_b32 {FA1}, 27, {FA1}
             s_lshl_b32 {sT3}, {sMA}, 1
             s_add_u32 {sT3}, {sT3}, {sT1}
             s_lshl_b32 {sKVA}, {sT3}, 10
             s_add_u32 {sKVA}, {sKVA}, {hex(KVM)}
             s_lshl_b32 {sZA}, {sT3}, 6
             s_add_u32 {sZA}, {sZA}, {hex(ZP)}
             s_lshl_b32 {sPQS}, {sTA}, 2
             s_lshr_b32 {sT3}, {sMA}, 2
             s_add_u32 {sPQS}, {sPQS}, {sT3}
             s_lshl_b32 {sPQS}, {sPQS}, 3
             s_and_b32 {sT3}, {sMA}, 3
             s_add_u32 {sPQS}, {sPQS}, {sT3}
             s_lshl_b32 {sPQS}, {sPQS}, 11
             s_add_u32 {sPQS}, {sPQS}, {hex(PQ)}
             s_lshl_b32 {sHS}, {sG}, 2
             s_add_u32 {sHS}, {sHS}, {sW}
             s_lshl_b32 {sHS}, {sHS}, 4
             s_add_u32 {sHS}, {sHS}, {sM}
             s_lshl_b32 {sHS}, {sHS}, 14
             s_add_u32 {sHS}, {sHS}, {hex(HH+4096)}""")
        M(f"""v_bfe_u32 {c}, v1, 2, 2
             v_lshlrev_b32 {a}, 10, {b}
             v_lshl_add_u32 {a}, {c}, 7, {a}
             v_bfe_u32 {c}, v1, 4, 1
             v_bfe_u32 {d}, v1, 3, 1
             v_lshl_add_u32 {d}, {d}, 1, {c}
             v_lshl_add_u32 {a}, {d}, 5, {a}
             v_and_b32 {d}, 1, v1
             v_lshl_add_u32 {RT2A}, {d}, 4, {a}
             v_bfe_u32 {d}, v1, 1, 1
             v_lshl_add_u32 {RT2A}, {d}, 3, {RT2A}
             v_and_b32 {d}, 3, v1
             v_lshl_add_u32 {a}, {d}, 3, {a}
             s_lshl_b32 {sT3}, {sT2}, 6
             s_add_u32 {sT3}, {sT3}, {sWL}
             s_add_u32 {sT4}, {sT3}, {hex(KB)}
             v_xor_b32 v{TRK}, {sT4}, {a}
             s_add_u32 {sT4}, {sT3}, {hex(VB)}
             v_xor_b32 v{TRP}, {sT4}, {RT2A}""")
        for j in range(1, 4):
            M(f"v_xor_b32 v{TRK+j}, {j*2048}, v{TRK}\nv_xor_b32 v{TRP+j}, {j*2048}, v{TRP}")
        M(f"""s_lshl_b32 {sT3}, {sW}, 5
             s_add_u32 {sT3}, {sT3}, {hex(RST)}
             v_xor_b32 {RT13}, {sT3}, {a if self.o.get('c16', 1) else RT2A}
             v_lshl_add_u32 {RT13}, {c}, 11, {RT13}
             s_mul_i32 {sSTA}, {sW}, 6144
             s_add_u32 {sSTA}, {sSTA}, {hex(RST)}
             v_add_u32 {RT2A}, {sSTA}, {a if self.o.get('d16', 1) else RT2A}
             v_xor_b32 {RT2B}, 64, {RT2A}""")
        M(f"""v_lshrrev_b32 {a}, 2, v1
             v_xor_b32 {a}, {a}, {c}
             v_and_b32 {a}, 1, {a}
             v_or_b32 {a}, {a}, {d}
             v_cmp_eq_u32 vcc, 0, {a}
             v_mov_b32 v20, 0x3f803f80
             v_mov_b32 v21, 0x3f803f80
             v_mov_b32 v22, 0x3f803f80
             v_mov_b32 v23, 0x3f803f80
             v_cndmask_b32 v16, 0, v20, vcc
             v_cndmask_b32 v17, 0, v20, vcc
             v_cndmask_b32 v18, 0, v20, vcc
             v_cndmask_b32 v19, 0, v20, vcc""")
        for r in (162, 163, 166, 167, 170, 171, 174, 175, 177, 178, 179):
            M(f"v_mov_b32 v{r}, 0")
        M(f"""v_lshrrev_b32 {a}, 4, v1
             v_bfe_u32 {c}, v1, 2, 2
             v_xor_b32 {c}, {c}, {a}
             v_lshlrev_b32 {c}, 6, {c}
             v_lshl_add_u32 {c}, {a}, 10, {c}
             v_lshl_add_u32 v{WOD}, {d}, 4, {c}
             v_add_u32 v{WOD+1}, 3072, v{WOD}
             v_add_u32 v{WOD+2}, 6144, v{WOD}
             v_add_u32 v{WOD+3}, 9216, v{WOD}
             s_lshl_b32 {sA}, {sRQ}, 17
             s_add_u32 {sA}, {sA}, {sXL}
             s_lshl_b32 {sT3}, {sCB}, 8
             s_add_u32 {sA}, {sA}, {sT3}""")
        M(f"""s_lshl_b32 {sT3}, {sKC}, 2
             s_add_u32 {sT3}, {sT3}, {sW}
             s_mul_i32 {sKVL}, {sT3}, {16*3584}
             s_lshl_b32 {sT3}, {sU}, 7
             s_add_u32 {sKVL}, {sKVL}, {sT3}
             s_lshl_b32 {sT2}, {sU}, 2
             s_add_u32 {sT2}, {sT2}, {sW}
             s_lshl_b32 {sPQL}, {sT2}, 14
             s_lshl_b32 {sT3}, {sKC}, 7
             s_add_u32 {sPQL}, {sPQL}, {sT3}
             s_add_u32 {sHST}, {sPQL}, 7168
             s_lshl_b32 {sRC}, {sT2}, 7
             s_add_u32 {sRC}, {sRC}, {hex(CS)}
             s_mul_i32 {sT3}, {sT2}, 9363
             s_lshr_b32 {sT3}, {sT3}, 16
             s_add_u32 {sT2}, {sT2}, {sT3}
             s_and_b32 {sT3}, {sKC}, 6
             s_add_u32 {sT3}, {sT3}, {sKC}
             s_lshl_b32 {sRW}, {sT2}, 4
             s_add_u32 {sRW}, {sRW}, {sT3}
             s_lshl_b32 {sRW}, {sRW}, 12
             s_add_u32 {sRW}, {sRW}, {hex(W13R)}
             s_andn2_b32 {sT3}, {sT2}, 3
             s_add_u32 {sT3}, {sT3}, {sT2}
             s_lshl_b32 {sR2}, {sKC}, 8
             s_add_u32 {sR2}, {sR2}, {sT3}
             s_lshl_b32 {sR2}, {sR2}, 11
             s_add_u32 {sR2}, {sR2}, {hex(W2R)}""")
        if self.o.get('grp', 1):
            m13 = sum((par13(t) ^ m) << (8 * m + t) for m in range(2) for t in range(8))
            m2 = sum(par2(pr, t) << (8 * pr + t) for pr in range(4) for t in range(8))
            M(f"""s_and_b32 {sT3}, {sT2}, 15
                 s_lshr_b32 {sT3}, {hex(m13)}, {sT3}
                 s_lshr_b32 {sT4}, {hex(m2)}, {sT2}
                 s_xor_b32 {sT4}, {sT4}, {sKC}""")
        else:
            M(f"s_lshr_b32 {sT3}, {sKC}, 1\ns_lshr_b32 {sT4}, {sT2}, 5")
        M(f"""s_and_b32 {sT3}, {sT3}, 1
             s_lshl_b32 {sT3}, {sT3}, 13
             s_add_u32 {sRW}, {sRW}, {sT3}
             s_and_b32 {sT4}, {sT4}, 1
             s_lshl_b32 {sT4}, {sT4}, 13
             s_add_u32 {sR2}, {sR2}, {sT4}
             s_cmp_ge_u32 s2, 224
             s_cselect_b32 {sRW}, {hex(OOB)}, {sRW}
             s_cselect_b32 {sR2}, {hex(OOB)}, {sR2}
             s_cselect_b32 {sRC}, {hex(OOB)}, {sRC}
             s_cselect_b32 {sKVL}, {hex(OOB)}, {sKVL}
             s_add_u32 {sZL}, {sKVL}, {8*3584-1024}
             s_and_b32 {sSIG}, {sU}, 15
             s_lshl_b32 {sSIG}, {sSIG}, 8
             s_add_u32 {sSIG}, {sSIG}, {hex(CNT)}
             s_cmp_eq_u32 {sW}, 0
             s_cselect_b32 {sSIG}, {sSIG}, {hex(OOB)}""")
        return M

    def miscB(self):
        M = Seq()
        a, b, c, d = "v208", "v209", "v210", "v211"
        M(f"""s_lshr_b32 {sTB}, {sM}, 2
             s_lshl_b32 {sT3}, {sG}, 2
             s_add_u32 {sTB}, {sTB}, {sT3}
             s_lshl_b32 {sT4}, {sRQ}, 1
             s_add_u32 {sT4}, {sT4}, {sW}
             s_and_b32 {sT4}, {sT4}, 7
             s_lshl_b32 {sKVL}, {sT4}, 12
             s_add_u32 {sKVL}, {sKVL}, {hex(KVM)}
             s_xor_b32 {bK2}, {sKVL}, 0x4000
             s_lshl_b32 {sT2}, {sTB}, 16
             s_and_b32 {sPQL}, {sT4}, 6
             s_add_u32 {sPQL}, {sPQL}, {sT4}
             s_lshl_b32 {sPQL}, {sPQL}, 12
             s_add_u32 {sPQL}, {sPQL}, {sT2}
             s_add_u32 {sPQL}, {sPQL}, {hex(PQ)}
             s_xor_b32 {sPQL}, {sPQL}, {sP1}
             s_xor_b32 {bQ2}, {sPQL}, 0x8000
             s_lshl_b32 {sT4}, {sT4}, 8
             s_mov_b32 {sZL}, {hex(ZP)}
             s_lshl_b32 {sHST}, {sCB}, 14
             s_add_u32 {sHST}, {sHST}, {sT2}
             s_add_u32 {sHST}, {sHST}, {sWL}
             s_add_u32 {sHST}, {sHST}, {hex(HB)}
             s_xor_b32 {sHST}, {sHST}, {sPE}
             s_lshl_b32 {sSTA}, {sTB}, 4
             s_add_u32 {sSTA}, {sSTA}, {sCB}
             s_lshl_b32 {sSTA}, {sSTA}, 14
             s_add_u32 {sSTA}, {sSTA}, {hex(HH+7168+768)}
             s_xor_b32 {sSTA}, {sSTA}, {sP2}
             s_lshl_b32 {sD}, {sTB}, 2
             s_add_u32 {sD}, {sD}, {sCB}
             s_lshl_b32 {sD}, {sD}, 16
             s_add_u32 {sD}, {sD}, {sXL}
             s_add_u32 {sD}, {sD}, {hex(HH+7168)}
             s_xor_b32 {sD}, {sD}, {sP2}
             v_lshrrev_b32 {b}, 5, v1
             v_and_b32 {a}, 31, v1
             v_lshlrev_b32 {ROWA}, 10, {a}
             v_lshl_add_u32 {ROWA}, {b}, 4, {ROWA}
             v_lshlrev_b32 v41, 3, {a}
             v_lshl_add_u32 v41, {b}, 10, v41
             v_xor_b32 v41, {sT4}, v41
             v_bfe_u32 {c}, v1, 2, 2
             v_and_b32 {a}, 1, v1
             v_lshlrev_b32 {a}, 4, {a}
             v_bfe_u32 {d}, v1, 1, 1
             v_lshl_add_u32 {a}, {d}, 3, {a}
             v_lshl_add_u32 {d}, {b}, 11, {a}
             v_lshl_add_u32 {d}, {c}, 8, {d}
             v_xor_b32 {c}, {sW}, {c}
             v_lshl_add_u32 {d}, {c}, 6, {d}
             v_bfe_u32 {c}, v1, 4, 1
             v_lshl_add_u32 {d}, {c}, 5, {d}""")
        for q in range(4):
            M(f"""s_xor_b32 {sT2}, {sW}, {q}
                 s_lshl_b32 {sT3}, {sT2}, 14
                 v_add_u32 v{WOT+q}, {sT3}, {d}
                 s_lshl_b32 {sT2}, {sT2}, 12
                 s_add_u32 {sT2}, {sT2}, 0x20000
                 v_add_u32 v{OAD+q}, {sT2}, {L16}""")
        M(f"""s_lshl_b32 {sT2}, {sW}, 12
             s_add_u32 {sT2}, {sT2}, {0x20000+16384+3072}
             v_add_u32 {ZBW}, {sT2}, {L4}
             v_xor_b32 {d}, 1, {c}
             v_lshlrev_b32 {d}, 5, {d}
             v_lshl_add_u32 {d}, {b}, 4, {d}
             v_add_u32 {ZBR}, {sT2}, {d}
             v_lshrrev_b32 {d}, 4, v1
             v_lshlrev_b32 {P256}, 8, v1
             v_lshl_add_u32 {P256}, {d}, 27, {P256}
             s_lshl_b32 {bTL}, {sW}, 13
             s_lshr_b32 {sT2}, {sTBL}, {sKC}
             s_and_b32 {sT2}, {sT2}, 0x2000
             s_lshl_b32 {bGP}, {sKC}, 14
             s_add_u32 {bGP}, {bGP}, {sT2}
             s_add_u32 {bGP}, {bGP}, {hex(CNT)}
             s_add_u32 {bRP}, {bGP}, 4096""")
        for k in range(8):
            M(f"v_lshlrev_b32 v{192+2*k}, 16, v{24+k}\nv_and_b32 v{193+2*k}, {sMSKHI}, v{24+k}")
        return M

    def phaseA(self):
        p = self.p
        o = self.o
        pre = o.get('pre', 0)
        if pre:
            nt = " nt" if o.get('xnt', 0) else ""
            p(f"""s_lshl_b32 {sT3}, {sMA}, 2
                 s_add_u32 {sT3}, {sT3}, {sW}
                 s_lshl_b32 {sT3}, {sT3}, 11
                 s_lshl_b32 {sT4}, {sTA}, 16
                 s_add_u32 {sT3}, {sT3}, {sT4}
                 s_lshl_b32 {sT4}, s2, 2
                 s_add_u32 {sT4}, {sT4}, {sW}
                 s_mul_i32 {sT4}, {sT4}, 1536
                 v_lshrrev_b32 v196, 2, v1
                 v_lshlrev_b32 v196, 7, v196
                 v_min_u32 v197, 1408, v196""")
            if pre & 1:
                p(f"buffer_load_dword v194, v196, {X}, {sT3} offen{nt}")
            if pre & 2:
                p(f"buffer_load_dword v195, v197, {WQKV}, {sT4} offen")
        p.extend(flat(self.dmaA(0)))
        p(f"v_lshlrev_b32 {L16}, 4, v1")
        if o.get('codepf', 1):
            p(f"""s_getpc_b64 s[70:71]
                 s_lshl_b32 {sT3}, {sU}, 2
                 s_add_u32 {sT3}, {sT3}, {sW}
                 s_lshl_b32 {sT4}, {sT3}, 8
                 v_lshrrev_b32 v200, 5, v1
                 v_lshl_add_u32 v200, v200, 7, {sT4}
                 v_min_u32 v200, CODE_PF_MAX, v200
                 global_load_dword v201, v200, s[70:71]""")
        tch = Seq()
        touch = o.get('touch', 7)
        tch(f"""s_lshl_b32 {sCc}, s2, 2
             s_add_u32 {sCc}, {sCc}, {sW}
             s_lshr_b32 {sT4}, {sCc}, 1
             s_mul_i32 {sT4}, {sT4}, 3072
             s_and_b32 {sT5}, {sCc}, 1
             s_lshl_b32 {sT5}, {sT5}, 11
             s_add_u32 {sT4}, {sT4}, {sT5}
             s_lshl_b32 {sCc}, {sCc}, 9
             v_lshrrev_b32 v202, 3, v1
             v_lshlrev_b32 v202, 7, v202
             v_lshrrev_b32 v42, 4, v1
             v_lshlrev_b32 v42, 7, v42""")
        if touch & 4:
            tch(f"""s_lshl_b32 {sT3}, {sU}, 2
                 s_add_u32 {sT3}, {sT3}, {sW}
                 s_mul_i32 {sT3}, {sT3}, {4*3072}
                 v_min_u32 v200, 11, v1
                 v_lshlrev_b32 v200, 10, v200
                 buffer_load_dword v198, v200, {WQKV}, {sT3} offen offset:384""")
        if touch & 1:
            tch(f"buffer_load_dword v203, v202, {WQKV}, {sT4} offen")
        tat = o.get('tat', -1)
        if tat == -2:
            p.extend(tch)
        d1 = self.dmaA(1)
        n1 = o.get('d1', 4)
        p.extend(flat(d1[:n1]))
        if tat == -1:
            p.extend(tch)
        for srd, src, sz in ((12, 80, 0x80000), (16, 84, 0x1C0000), (20, 86, 0x1C0000), (24, 88, 0x1C0000),
                             (28, 90, 0x200000), (36, 92, 256), (32, 94, WS_SIZE)):
            p(f"s_mov_b64 s[{srd}:{srd+1}], s[{src}:{src+1}]\ns_mov_b32 s{srd+2}, {hex(sz)}\ns_mov_b32 s{srd+3}, 0x20000")
        tlb = o.get('tlb', 0)
        if tlb:
            p(f"""v_min_u32 v194, 1, v1
                 v_lshlrev_b32 v194, 27, v194
                 s_lshl_b32 {sT3}, {sW}, 5
                 s_add_u32 {sT3}, {sT3}, {sU}
                 s_lshl_b32 {sT4}, {sT3}, 21
                 buffer_load_dword v195, v194, {WS}, {sT4} offen""")
            if tlb & 2:
                for k, srd in enumerate((OUT, W1, W3, W2, WO, DBG)):
                    p(f"""s_cmp_eq_u32 {sT3}, {24+k}
                         s_cselect_b32 {sT4}, 0, {hex(OOB)}
                         buffer_load_dword v{188+k}, v194, {srd}, {sT4} offen""")
        if o.get('wsoff'):
            p(f"s_add_u32 s32, s32, {o['wsoff'] << 20}\ns_addc_u32 s33, s33, 0")
        Lz = self.lab("z")
        p(f"""s_lshl_b32 {sB}, {sW}, 8
             s_add_u32 {sB}, {sB}, 224
             s_cmp_lt_u32 s2, {sB}
             s_cbranch_scc1 {Lz}""")
        padr = f"""s_sub_u32 {sT2}, s2, 224
             s_and_b32 {sT1}, {sU}, 1
             s_lshl_b32 {sT3}, {sT1}, 5
             s_add_u32 {sT3}, {sT3}, {sT2}
             s_lshl_b32 {sT3}, {sT3}, 8
             s_add_u32 {sT3}, {sT3}, {hex(PROBE)}
             s_xor_b32 {sT4}, {sT3}, 0x2000
             s_waitcnt lgkmcnt(0)
             s_buffer_load_dword {sT5}, {WS}, {sT3} glc
             s_buffer_load_dword {sT5}, {WS}, {sT4} glc"""
        p(f"""{padr.replace(sT5, sD)}
             v_mov_b32 v16, 0
             v_mov_b32 v17, 0
             v_mov_b32 v18, 0
             v_mov_b32 v19, 0
             v_lshrrev_b32 v20, 3, v1
             v_lshl_add_u32 v20, v20, 7, {L16}
             s_lshl_b32 {sT4}, {sT2}, 11
             s_lshl_b32 {sT3}, {sT2}, 12
             s_add_u32 {sT3}, {sT3}, {hex(CNT)}
             s_add_u32 {sT4}, {sT4}, {hex(KVM)}
             buffer_store_dwordx4 v[16:19], {L16}, {WS}, {sT4} offen sc1
             buffer_store_dwordx4 v[16:19], {L16}, {WS}, {sT4} offen offset:1024 sc1
             buffer_store_dwordx4 v[16:19], v20, {WS}, {sT3} offen sc1
             buffer_store_dwordx4 v[16:19], v20, {WS}, {sT3} offen offset:2048 sc1""", cond=True)
        p(f"{Lz}:")
        probe = f"""{padr}
             s_getreg_b32 {sT4}, hwreg(HW_REG_XCC_ID, 2, 1)
             s_waitcnt lgkmcnt(1)
             s_nop {o.get('pnop', 15)}
             s_getreg_b32 {sT2}, hwreg(HW_REG_IB_STS, 8, 4)
             s_waitcnt lgkmcnt(0)
             s_min_u32 {sT2}, {sT2}, 1
             s_xor_b32 {sT1}, {sT1}, {sT4}
             s_cmp_lg_u32 {sT1}, {sT2}
             s_cselect_b32 {sT2}, 64, 4096
             s_add_u32 {sT2}, {sT2}, 1
             s_add_u32 {sT5}, {sKC}, 18
             s_lshl_b32 {sT4}, {sT4}, {sT5}
             s_cmp_eq_u32 {sU}, 28
             s_cselect_b32 {sT4}, {sT4}, 0
             s_add_u32 {sT2}, {sT2}, {sT4}
             v_mov_b32 v46, {sT2}"""
        p.extend(self.miscA())
        if o.get('pat', 0) == 0:
            Lz = self.lab("z")
            p(f"s_cmp_lt_u32 s2, {sB}\ns_cbranch_scc1 {Lz}")
            p(probe, cond=True)
            p(f"{Lz}:")
            probe = ""
        if tat == 0:
            p.extend(tch)
        SEL, ONES = v(16, 4), v(20, 4)
        XS, XQ0, XQ1, CSA, ZA = 252, 248, 32, 36, 44
        AK, AV, AQ, RB, AKV = 48, 64, 80, 96, 112
        WR = 128
        XM, WP, RS_ = 160, 164, 176

        def wread(t, s, dst=None):
            n = t * 32 + s
            addr = (TRK, TRP, TRK)[t]
            return trpair(('v', WR + 4 * (n % 6) if dst is None else dst), f"v{addr+(s&3)}", (s >> 2) * 8192, 512)

        def wf(t, s):
            return v(WR + 4 * ((t * 32 + s) % 6), 4)

        def csm(f, first):
            return mf16(CSA, SEL, f, "0" if first else None)

        def cswrite(t):
            S = split2(41, CSA, 41)
            S(f"ds_write_b32 {XCW}, v41 offset:{t*512}", tag=f"x{t}")
            return list(S)

        def csget(t):
            return [Inst(f"ds_read_b64 {v(WP+4*t,2)}, {XCR} offset:{t*512}")]

        def xread(s):
            return [Inst(f"ds_read_b128 {a_(4*s,4)}, v{10+(s&3)} offset:{(s>>2)*8192}")]

        p.extend(flat(d1[n1:]))
        d2 = self.dmaA(2)
        n2_ = o.get('d2', 4)
        p.extend(flat(d2[:n2_]))
        self.stamp("A_issued")
        p("WAITTAG A0\ns_barrier")
        self.stamp("A_c0")
        p.extend(xread(0) + wread(0, 0) + xread(1) + wread(0, 1))
        p.extend(flat(d2[n2_:]))
        ad = o.get('ad', 4)
        nv1 = o.get('nv1', 14)
        vq = flat([self.dmaW(1, k) for k in range(8)])
        pend = self.dmaA(3) if ad == 4 else []
        for s in range(32):
            c, j = s >> 2, s & 3
            xf = a_(4 * s, 4)
            z = "0" if s == 0 else None
            p.append(mf32(AK, xf, wf(0, s), z))
            if j == 2 and c < 7:
                p(f"WAITTAG A{c+1}\ns_barrier")
                self.stamp(f"a{c+1}")
                assert not pend
                if c == 1:
                    p(f"s_cmp_ge_u32 s2, {sB}")
                    self.ool("s_cbranch_scc1", f"{probe}\nbuffer_atomic_add v46, {FA1}, {DBG}, 0 offen sc1")
                if c + 1 == tat:
                    p.extend(tch)
                if c + ad < 8:
                    pend = self.dmaA(c + ad)
                else:
                    pend, vq = vq[:4], vq[4:]
            if s == 30:
                p("WAITTAG V1\ns_barrier")
                k = max(0, nv1 - (16 - len(vq)))
                assert k <= 2
                pend, vq = vq[:k], vq[k:]
            if s + 2 < 32:
                p.extend(xread(s + 2) + wread(0, s + 2))
            else:
                p.extend(wread(1, s + 2 - 32))
            if s == 28:
                p("ds_read_b128 v[24:27], v14\nds_read_b128 v[28:31], v15", tag="xres")
            for _ in range(2 if s < 2 else 1):
                if pend:
                    p.extend(pend.pop(0))
            if j % 2 == 0:
                p.append(csm(wf(0, s), s == 0))
            if j < 2:
                p.append(mf16(XS, SEL, xf, z))
                p.append(mf4(XQ0, a_(4 * s, 2), a_(4 * s, 2), z))
                p.append(mf4(XQ1, a_(4 * s + 2, 2), a_(4 * s + 2, 2), z))
            if s == 30:
                for k in range(4):
                    p(f"v_add_f32 v{XQ0+k}, v{XQ0+k}, v{XQ1+k}")
                p(f"""v_cndmask_b32 v197, v{XQ0}, v{XQ0+1}, s[96:97]
                     v_cndmask_b32 v197, v197, v{XQ0+2}, s[98:99]
                     v_cndmask_b32 v197, v197, v{XQ0+3}, s[70:71]
                     v_mov_b32 v196, v197""")
            if s == 31:
                p(f"""v_permlane32_swap_b32 v196, v197
                     v_add_f32 v{XS+1}, v196, v197
                     ds_write_b64 {STW}, {v(XS,2)}""")
                p.extend(cswrite(0))
        assert not pend
        self.stamp("A_loop")
        CT = (204, 208, ZA)
        kb = o.get('kb', 9)

        def tilepass(t, acc, order):
            nm = "VQ"[t - 1]
            G = []
            for s in range(32):
                A_, B_ = (a_(4 * s, 4), wf(t, s)) if order == 0 else (wf(t, s), a_(4 * s, 4))
                g = Seq()
                g.append(mf32(acc, A_, B_, "0" if s == 0 else None))
                if t == 1 and s == 2:
                    g("WAITTAG x0 xres" + (" V3" if ad == 4 else "") + "\ns_barrier")
                    g(f"ds_read_b64 v[198:199], {STR}")
                    g.extend(csget(0))
                if t == 2 and o.get('fb', 0) & 2:
                    if s == 4:
                        g("WAITTAG Q3\ns_barrier")
                    if s == kb:
                        assert kb <= 12
                        g("WAITTAG kvp Q7\ns_barrier")
                elif t == 1 and o.get('fb', 0) & 1:
                    if s == 12:
                        g("WAITTAG V7\ns_barrier")
                elif s % 8 == 4 and s < 28 and ((t, s) != (1, 4) or ad != 4):
                    g(f"WAITTAG {nm}{(s+4)//4+1} kvp\ns_barrier")
                elif t == 2 and s == kb:
                    g("WAITTAG kvp\ns_barrier")
                if s == 28:
                    g(f"WAITTAG x{t}" + (" Q1" if t == 1 else "") + "\ns_barrier")
                    g.extend(csget(t))
                if t == 1 and s < 2:
                    g.extend(wread(t, 2 + 2 * s) + wread(t, 3 + 2 * s))
                elif s + 4 < 32:
                    g.extend(wread(t, s + 4))
                elif t == 1:
                    g.extend(wread(2, s + 4 - 32))
                if s in (20, 21, 22):
                    g.extend(wread(t, 26 + 2 * (s - 20), CT[s - 20]))
                if s % 2 == 0 and s < 26 and (t, s) != (1, 0):
                    g.append(csm(wf(t, s), (t, s) == (2, 0)))
                if (t, s) == (1, 1):
                    g.append(csm(wf(t, 0), True))
                if s in (23, 24, 25):
                    g.append(csm(v(CT[s - 23], 4), False))
                if s == 26:
                    g.extend(cswrite(t))
                G.append(list(g))
            return G

        def phi(acc, scale, T, dst):
            S = Seq()
            for h in range(2):
                r = range(8 * h, 8 * h + 8)
                for i in r:
                    S(f"v_fma_f32 v{acc+i}, v{acc+i}, {scale(i)}, {sEPS6}")
                for i in r:
                    S(f"v_mul_f32 v{T+(i&7)}, {sLOG2E}, v{acc+i}")
                for i in r:
                    S(f"v_exp_f32_e64 v{T+(i&7)}, v{T+(i&7)} clamp")
                    S(f"v_max_f32 v{acc+i}, {sEPS6}, v{acc+i}")
                for i in r:
                    S(f"v_add_f32 v{acc+i}, v{acc+i}, v{T+(i&7)}")
                for i in range(4 * h, 4 * h + 4):
                    S(f"v_cvt_pk_bf16_f32 v{dst+i}, v{acc+2*i}, v{acc+2*i+1}")
            return S
        E = Seq()
        E(f"""v_add_f32 v198, v198, v{XS}
             v_add_f32 v197, v199, v{XS+1}
             v_mul_f32 v199, 0x3b000000, v198
             v_mul_f32 v197, 0x3b000000, v197
             v_cvt_pk_bf16_f32 v198, -v199, -v199
             v_fma_f32 v197, -v199, v199, v197
             v_cndmask_b32 v{XM}, v198, 0, {sHILANES}
             v_cndmask_b32 v{XM+1}, v198, 0, {sHILANES}
             v_max_f32 v197, 0, v197
             v_add_f32 v197, 0x3727c5ac, v197
             v_rsq_f32 v40, v197""")
        E.append(mf32(AK, v(XM, 4), v(WP, 4)))
        E.extend(split2(RS_, 40, 198))
        E(f"v_cndmask_b32 v{RS_}, v{RS_}, 0, {sHILANES}")
        E.append(mf32(RB, v(RS_, 4), ONES, "0"))
        PK = phi(AK, lambda i: f"v{RB+i}", 196, 180)
        G = tilepass(1, AV, 0)
        v2e = o.get('v2e', 2)
        qq = flat([self.dmaW(2, k) for k in range(8)])
        nq2 = o.get('nq2', 16)
        G = weave(G, vq, 0, v2e)
        G = weave(G, qq[:nq2], max(3, v2e), o.get('q2end', 30))
        G[0] += [Inst(f"v_subrev_u32 v{TRK+j}, {hex(VB)}, v{TRP+j}") for j in range(4)]
        G[12] += [Inst(f"buffer_load_dword v5, {FA1}, {DBG}, 0 offen sc1")]
        n2 = o.get('pk2', 88)
        G = weave(G, list(E), 4, 8)
        G = weave(G, PK[:n2], 10, 32)
        for k in range(3, 31, 4):
            G[k] += self.sub(lambda: self.stamp(f"v{k}"))
        p.extend(flat(G))
        p.append(mf32(AV, v(XM, 4), v(WP + 4, 4)))
        self.stamp("A_v")
        if o.get('skew') is not None:
            p(f"""s_not_b32 s101, s100
                 v_mov_b32 v43, s101
                 buffer_atomic_umax v43, {FA1}, {DBG}, 0 offen offset:128 sc1
                 v_mov_b32 v41, s100
                 buffer_atomic_umax v41, {FA1}, {DBG}, 0 offen offset:192 sc1""")
        E = Seq()
        E.extend(PK[n2:])
        for i in range(16):
            E(f"v_mul_f32 v{AV+i}, v{AV+i}, v{RB+i}")
        for i in range(8):
            E(f"v_cvt_pk_bf16_f32 v{188+i}, v{AV+2*i}, v{AV+2*i+1}")
        G = tilepass(2, AQ, 1)
        rq = self.rload()
        if o.get('nor'):
            rq = []
        if touch & 2:
            rq = rq[:2] + [[Inst(f"buffer_load_dword v42, v42, {WO}, {sCc} offen")]] + rq[2:]
        e2 = o.get('e2', 0)
        R2T = trpair(('a', 144), RT2A, 4096, 512) + trpair(('a', 148), RT2B, 4096, 512)
        R2S = [Inst(f"buffer_store_dwordx4 a[144:147], {L16}, {WS}, {sR2} offen sc1", tag="pub1" if e2 else "pubR"),
               Inst(f"buffer_store_dwordx4 a[148:151], {L16}, {WS}, {sR2} offen offset:1024 sc1", tag="pub1" if e2 else "pubR")]
        if e2:
            G[e2] += [Inst("WAITTAG RL2")] + R2T
            G[e2 + 3] += R2S[:1]
            G[e2 + 5] += R2S[1:]
            R2T, R2S = [], []
        r0 = o.get('r0', 0)
        if nq2 < 16:
            G = weave(G, qq[nq2:], 0, r0)
        G = weave(G, rq, r0, o.get('r1', r0 + 7))
        if o.get('rwait'):
            G[o.get('r1', 7)] += list(Seq()("WAITALL vm")) + self.sub(lambda: self.stamp("A_rland"))
        woq = flat([self.dmaWO(q) for q in range(8)])
        nw3 = o.get('wo3', 0)
        G[13] += [Inst(f"s_lshl_b32 {sB}, {sW}, 12")]
        if nw3:
            G = weave(G, woq[:nw3], o.get('wo30', 26), 32)
        G = weave(G, list(E), 0, kb - 5)
        G[kb - 5] += [mf32(AKV, v(180, 4), v(188, 4), "0"), mf32(AKV, v(184, 4), v(192, 4)),
                 mf16(ZA, SEL, v(180, 4), "0"), mf16(ZA, SEL, v(184, 4))]
        G[kb - 4] += self.sub(lambda: self.spin("v5", None, "0", "1", "32", srd=DBG, mode='check', sleep=4, field=63))
        S = Seq()
        S(f"""v_readfirstlane_b32 {sT2}, v5
             s_bfe_u32 {sT3}, {sT2}, 0x60006
             s_bfe_u32 {sT4}, {sT2}, 0x6000c
             s_lshr_b32 {sT2}, {sT2}, 5""")
        S = [[i] for i in S] + [list(Seq()(f"""s_cmp_gt_u32 {sT4}, {sT3}
             s_cselect_b32 {sT3}, {'0, -1' if o.get('parx') else '-1, 0'}"""))]
        S += [[i] for i in Seq()(f"""s_xor_b32 {sTBL}, {sT2}, {sT3}
             s_lshr_b32 {sT2}, {sTBL}, {sKC}
             s_lshl_b32 {sT3}, {sG}, 10
             s_xor_b32 {sP1}, {sT2}, {sT3}
             s_and_b32 {sP1}, {sP1}, 0x2000
             s_xor_b32 {sPQS}, {sPQS}, {sP1}
             s_lshr_b32 {sPE}, {sTBL}, 3
             s_and_b32 {sPE}, {sPE}, 0x2000
             s_lshl_b32 {sT4}, {sG}, 12
             s_xor_b32 {sP2}, {sT3}, {sT4}
             s_and_b32 {sP2}, {sP2}, 0x2000
             s_xor_b32 {sP2}, {sP2}, {sPE}
             s_xor_b32 {sHS}, {sHS}, {sP2}
             v_mov_b32 v176, 0
             v_lshrrev_b32_e64 {P4K}, v1, {sTBL}
             v_and_b32 {P4K}, 0x2000, {P4K}
             v_lshl_add_u32 {P4K}, v1, 14, {P4K}
             v_or_b32 {P4K}, {P4K}, {LM8}""")]
        S += [[Inst(f"buffer_store_dwordx4 v[176:179], {L16}, {WS}, {sHS} offen offset:3072 sc1", tag="pub1")]]
        G = weave(G, S, 19, 31)
        S = Seq()
        for i in range(8):
            S(f"v_cndmask_b32 v{196+i}, v{AKV+i}, v{AKV+8+i}, {sB4LANES}")
        S(f"""ds_write_b128 {KVW}, v[196:199]
             ds_write_b128 {KVW}, v[200:203] offset:512""")
        S(f"ds_write_b32 {ZW}, v{ZA}", tag="kvp")
        G = weave(G, list(S), kb - 3, kb - 1)
        S = Seq()
        for k in range(4):
            S(f"ds_read2st64_b32 v[{112+2*k}:{113+2*k}], {KVR} offset0:{k} offset1:{k+8}")
        S(f"ds_read2_b32 v[120:121], {ZR} offset0:0 offset1:32")
        G = weave(G, list(S), kb, kb + 2)
        S = Seq()
        for k in range(5):
            S(f"v_add_f32 v{112+2*k}, v{112+2*k}, v{113+2*k}")
        for k in range(4):
            S(f"buffer_atomic_add_f32 v{112+2*k}, {L4}, {WS}, {sKVA} offen offset:{k*256}", tag="pub1")
        S(f"buffer_atomic_add_f32 v120, {ZAT}, {WS}, {sZA} offen", tag="pub1")
        G = weave(G, list(S), kb + 3, kb + 8)
        for k in range(3, 31, 4):
            G[k] += self.sub(lambda: self.stamp(f"v{k}"))
        p.extend(flat(G))
        p.append(mf32(AQ, v(WP + 8, 4), v(XM, 4)))
        self.stamp("A_q")
        woq = woq[nw3:]
        t1, t3, t2 = o.get('wot1', 0), o.get('wot3', 6), o.get('wot2', 2)
        assert nw3 + t1 == 0
        p.extend(flat(woq[:t1]))
        woq = woq[t1:]
        ph = phi(AQ, lambda i: "v40", 196, 180)
        h = len(ph) // 2
        p.extend(ph[:h])
        p(f"buffer_store_dwordx4 v[180:183], {L16}, {WS}, {sPQS} offen sc1", tag="pub1")
        p.extend(ph[h:])
        p(f"buffer_store_dwordx4 v[184:187], {L16}, {WS}, {sPQS} offen offset:1024 sc1", tag="pub1")
        self.stamp("A_pqst")
        p("s_barrier")
        MB = list(self.miscB()) + self.miscC()
        nb = o.get('mb1', 140)
        assert nb >= len(self.miscB())
        p.extend(flat(woq[:t3]))
        p("s_nop 0")
        p.extend(MB[:nb])
        p("s_nop 0")
        p.extend(flat(woq[t3:t3 + t2]))
        woq = woq[t3 + t2:]
        p("WAITTAG pub1\ns_barrier")
        p(f"buffer_atomic_add v4, {P4K}, {WS}, {sSIG} offen sc1")
        self.stamp("A_sig")
        for s in range(4):
            p.extend(trpair(('a', 128 + 4 * s), RT13, s * 6144, 512))
        p.extend(R2T)
        t4 = o.get('wot4', 16)
        assert t3 + t2 + t4 >= 16
        p.extend(flat(woq[:t4]))
        for s in range(4):
            p.append(mf16(RCS, SEL, a_(128 + 4 * s, 4), "0" if s == 0 else None))
            p(f"buffer_store_dwordx4 {a_(128+4*s,4)}, {L16}, {WS}, {sRW} offen offset:{s*1024} sc1", tag="pubR")
        p.extend(R2S)
        p(f"buffer_atomic_add_f32 v{RCS}, {CSAT}, {WS}, {sRC} offen", tag="pubR")
        self.stamp("A_rst")
        p(f"s_add_u32 {sSIG}, {sSIG}, 4096")
        self.wo_rest = woq[t4:]
        self.mb_rest = MB[nb:]

    def dmaT(self, t, slot):
        g = []
        for h in range(2):
            S = Seq()
            S(f"s_add_u32 m0, {bTL}, {slot*32768+h*4096}\ns_add_u32 {sT0}, {bTX if self.o.get('grp', 1) and par13(t) else bTA}, {t*65536+h*4096}")
            for k in range(4):
                S(f"buffer_load_dwordx4 {L16}, {WS}, {sT0} offen offset:{k*1024} sc1 lds", tag=f"T{t}")
                g.append(list(S))
                S = Seq()
            ctx(g[-4:])
        return g

    def phaseB(self):
        p = self.p
        o = self.o
        AH = 192
        W = [trpair(('a', 4 * i), f"v{WOT+((i>>2)&3)}", (i & 3) * 4096, 1024) for i in range(32)]
        PQR = 224
        LD = [Inst(f"buffer_load_dwordx2 v[32:33], v41, {WS}, {sZL} offen sc1")]
        for q in range(4):
            for i in (2 * q, 2 * q + 1):
                LD.append(Inst(f"buffer_load_dwordx4 {v(48+4*i,4)}, {L16}, {WS}, {sKVL if i < 4 else bK2} offen offset:{(i&3)*1024} sc1"))
            for i in (2 * q, 2 * q + 1):
                LD.append(Inst(f"buffer_load_dwordx4 {a_(PQR+4*i,4)}, {L16}, {WS}, {sPQL if i < 4 else bQ2} offen offset:{(i&3)*1024} sc1"))
        ZB = Seq()(f"v_cvt_pk_bf16_f32 v32, v32, v33\nds_write_b32 {ZBW}, v32")
        for k in range(4):
            ZB(f"ds_read_b128 {v(96+4*k,4)}, {ZBR} offset:{k*64}")
        p("WAITTAG WO0\ns_barrier")
        self.stamp("B_wo")
        pm = o.get('pm', 0)
        pl = list(Seq()(f"""s_cmp_eq_u32 {sW}, 1
             s_cselect_b32 {bGP}, {bGP}, {hex(OOB)}
             s_cselect_b64 s[26:27], 0xffff, 0
             buffer_load_dword v5, {P256}, {WS}, {bGP} offen sc1"""))
        if pm == 2:
            p.extend(pl)
        p.extend(flat(W[:16]))
        if pm == 1:
            p.extend(pl)
        for q in range(4):
            p(f"v_add_u32 v{WOT+q}, 0x10000, v{WOT+q}")
        mb2 = o.get('mb2', 30)
        p.extend(self.mb_rest[:mb2])
        self.stamp("B_prepoll")
        if pm:
            self.spin("v5", P256, bGP, "s[26:27]", "16", sleep=o.get('sleep1', 1), mode='check')
        else:
            self.spin("v5", P256, bGP, "0xffff", "16", sleep=o.get('sleep1', 1), wave=o.get('pw', 1))
        p("WAITTAG pubR")
        self.stamp("B_rack")
        p("WAITALL lgkm\ns_barrier")
        self.stamp("B_sync1")
        LD.insert(o.get('rsat', 0), Inst(f"buffer_atomic_add v4, {P4K}, {WS}, {sSIG} offen sc1"))
        nl0 = o.get('nl0', 14)
        p.extend(LD[:10] + [Inst('s_nop 0')] + self.mb_rest[mb2:] + ZB + LD[10:nl0])

        def prep(q):
            S = Seq()
            for k in range(4):
                S(f"v_cvt_pk_bf16_f32 v{80+4*q+k}, v{48+8*q+2*k}, v{48+8*q+2*k+1}")
            for k in range(4):
                S(f"v_cndmask_b32 v{112+8*q+k}, v{80+4*q+k}, v{96+4*q+k}, {sB4LANES}")
            for k in range(4):
                S(f"v_cndmask_b32 v{116+8*q+k}, v{96+4*q+k}, v{80+4*q+k}, {sB4LANES}")
            return S
        NA = [144, 160, 176]
        steps = [(pr + k, t) for pr in (0, 2) for t in range(3) for k in range(2)]
        d16 = o.get('d16', 1)
        steps += [(pr, t) for t in (3, 4, 5, 6) for pr in range(4)]
        w2o = [f"{cW2x if o.get('grp', 1) and par2(pr, t) else cW2}, {pr * 32768 + (t >> 2) * 16384 + (t & 3) * 2048}" for pr, t in steps]
        hho = [pr * 16384 + t * 1024 for pr, t in steps]
        w2l = []
        for i in range(16):
            S = Seq()
            if d16:
                ad = W2B if i & 1 else W2A
                if i % 2 == 0:
                    S(f"s_add_u32 {sKC}, {w2o[i]}")
                S(f"buffer_load_dwordx4 {a_(128+8*i,4)}, {ad}, {WS}, {sKC} offen sc1")
                w2l.append(list(S))
                w2l.append([Inst(f"buffer_load_dwordx4 {a_(132+8*i,4)}, {ad}, {WS}, {sKC} offen offset:256 sc1")])
                if i & 1:
                    ctx(w2l[-4:])
                continue
            S(f"s_add_u32 {sKC}, {w2o[i]}")
            S(f"buffer_load_dwordx4 {a_(128+8*i,4)}, {W2A}, {WS}, {sKC} offen sc1")
            w2l.append(list(S))
            w2l.append([Inst(f"buffer_load_dwordx4 {a_(132+8*i,4)}, {W2B}, {WS}, {sKC} offen sc1")])
            ctx(w2l[-2:])
        self.steps, self.w2o, self.hho = steps, w2o, hho
        nw1, nw2 = (o.get('nw1', 6), o.get('nw2', 6)) if o.get('e2', 0) else (0, 0)
        assert nw1 <= 24
        W1, W2_, w2l = w2l[:nw1], w2l[nw1:nw1 + nw2], w2l[nw1 + nw2:]
        self.n_w2rest = len(w2l)
        TQ = flat([self.dmaT(t, t) for t in range(2)]) + w2l
        n2, n3 = o.get('tq2', 6), o.get('tq3', 10)

        def num(i):
            return mf32(NA[i % 3], v(112 + 4 * i, 4), a_(PQR + 4 * i, 4), "0")

        def fin(i):
            n = NA[i % 3] + 8 * (i & 1)
            d = NA[i % 3] + 8 * (1 - (i & 1))
            S = Seq()
            S(f"v_add_f32 v{d}, {sEPS6}, v{d}\nv_rcp_f32 v{d}, v{d}")
            for k in range(8):
                S(f"v_mul_f32 v{n+k}, v{n+k}, v{d}")
            for k in range(4):
                S(f"v_cvt_pk_bf16_f32 v{48+4*i+k}, v{n+2*k}, v{n+2*k+1}")
            return S

        def owrite(i):
            return Inst(f"ds_write_b128 v{OAD}, {v(48+4*i,4)} offset:{(i>>2)*16384+(i&3)*1024}", tag=f"o{i}")

        OR = (16, 20, 36, 44, 208, 248)

        def oreg(k):
            return OR[k % 6] if k < 16 else 80 + 4 * (k & 7)

        def oread(k):
            return Inst(f"ds_read_b128 {v(oreg(k),4)}, v{OAD+((k>>2)&3)} offset:{(k>>4)*16384+(k&3)*1024}")

        def acc(k):
            own = (k & 12) == 0
            return mf32(AH, a_(4 * k, 4), v(48 + 4 * ((k >> 4) * 4 + (k & 3)) if own else oreg(k), 4))
        self.stamp("bz")
        p.extend(prep(0))
        self.stamp("bp")
        p.append(num(0))
        p.append(num(1))
        VM = [[x] for x in LD[nl0:]] + list(self.wo_rest)
        per = o.get('per', 3)
        rl, rc = o.get('rl', 7), o.get('rc', 8)
        kk = 4
        for i in range(8):
            if i + 2 < 8:
                if i % 2 == 0:
                    p.extend(prep(i // 2 + 1))
                p.append(num(i + 2))
            if i >= 1:
                p.append(owrite(i - 1))
            if i == 5:
                p("WAITTAG o3\ns_barrier")
                p.extend([oread(k) for k in range(4, 9)])
            for _ in range(per):
                if VM:
                    p.extend(VM.pop(0))
            if i == rl:
                p(f"buffer_load_dword v5, {P256}, {WS}, {bRP} offen sc1")
            if i >= 5:
                for _ in range(-(-nw1 // 3)):
                    if W1:
                        p.extend(W1.pop(0))
            F = fin(i)
            self.stamp(f"b{i}")
            if i < 5:
                p.extend(F[:7])
                if i >= 1:
                    p.append(acc(i - 1))
                p.extend(F[7:])
            else:
                cuts = (8, 14) if i == 5 else (2, 6, 10, 14)
                lo = 0
                for c in cuts:
                    p.extend(F[lo:c])
                    lo = c
                    p.append(acc(kk))
                    if kk + 5 < 16:
                        p.append(oread(kk + 5))
                    kk += 1
        p.append(owrite(7))
        assert not VM
        self.stamp("B_st1")
        p.append(acc(kk))
        p("WAITTAG WO1 o7\ns_barrier")
        for k in range(16, 20):
            p.extend(W[k])
        assert kk == 14
        G = [[acc(15)] + W[20] + [oread(20)]]
        for k in range(16, 32):
            g = [acc(k)]
            if k + 5 < 32:
                g += W[k + 5] + [oread(k + 5)]
            G.append(g)
        if rl >= 8:
            G[rl - 8] += [Inst(f"buffer_load_dword v5, {P256}, {WS}, {bRP} offen sc1")]
        G[rc] += self.sub(lambda: self.spin("v5", P256, bRP, "0xffff", "16", mode='check', sleep=2))
        G = weave(G, W2_, 0, rc)
        G = weave(G, TQ[:n2], rc + 1, 17)
        p.extend(flat(G))
        for k in range(8):
            p(f"v_cvt_pk_bf16_f32 v{48+k}, v{AH+2*k}, v{AH+2*k+1}")
            if k == 3:
                p(f"buffer_store_dwordx4 v[48:51], {L16}, {WS}, {sHST} offen sc1", tag="pub2")
        p(f"buffer_store_dwordx4 v[52:55], {L16}, {WS}, {sHST} offen offset:1024 sc1", tag="pub2")
        p(f"v_add_f32 v56, v{AH}, v{AH+1}\nv_mul_f32 v57, v{AH}, v{AH}\nv_add_f32 v58, v{AH+2}, v{AH+3}\nv_mul_f32 v59, v{AH+1}, v{AH+1}")
        for k in range(2, 16):
            if k >= 4:
                p(f"v_add_f32 v{56+2*(k&1)}, v{56+2*(k&1)}, v{AH+k}")
            p(f"v_fmac_f32 v{57+2*(k&1)}, v{AH+k}, v{AH+k}")
        p("""v_add_f32 v56, v56, v58
             v_add_f32 v57, v57, v59
             v_permlane32_swap_b32 v56, v57
             v_add_f32 v56, v56, v57""")
        p(f"buffer_atomic_add_f32 v56, {L4}, {WS}, {sSTA} offen", tag="pub2")
        self.stamp("B_hst")
        for t in range(7):
            p(f"buffer_load_dword v{160+t}, {CSL}, {WS}, {cCS} offen offset:{t*128} sc1")
        p.extend(flat(TQ[n2:n2 + n3]))
        p(f"WAITTAG pub2\nbuffer_store_dword v4, {FA1}, {WS}, {sD} offen offset:512 sc1\ns_barrier")
        self.t1_late = n2 < 16
        self.stamp("B_sig")
        self.tq_rest = TQ[n2 + n3:]

    def miscC(self):
        M = Seq()
        DL = "v45"
        if self.o.get('d16', 1):
            M(f"""v_bfe_u32 v46, v1, 4, 1
                 v_and_b32 {DL}, 0xf0, {L16}
                 v_lshl_add_u32 {DL}, v46, 9, {DL}
                 v_lshrrev_b32 v46, 5, v1""")
        else:
            M(f"v_mov_b32 {DL}, {L16}\nv_mov_b32 v46, 0")
        M(f"""s_bfe_i32 {sT1}, {sTBL}, 0x10010
             s_xor_b32 {sT1}, {sT1}, {sTBL}
             s_and_b32 {sT1}, {sT1}, 0xe000
             s_bcnt1_i32_b32 {sT1}, {sT1}
             s_sub_u32 {sT1}, {sKC}, {sT1}""")
        if self.o.get('cmap', 1):
            M(f"""s_and_b32 {sGC}, {sT1}, 4
                 s_lshl_b32 {sGC}, {sGC}, 1
                 s_and_b32 {sT2}, {sU}, 7
                 s_add_u32 {sGC}, {sGC}, {sT2}
                 s_and_b32 {sMC}, {sT1}, 3
                 s_lshl_b32 {sMC}, {sMC}, 2
                 s_lshr_b32 {sT2}, {sU}, 3
                 s_add_u32 {sMC}, {sMC}, {sT2}""")
        else:
            M(f"""s_and_b32 {sGC}, {sT1}, 6
                 s_lshl_b32 {sGC}, {sGC}, 1
                 s_add_u32 {sGC}, {sGC}, {sRQ}
                 s_and_b32 {sMC}, {sT1}, 1
                 s_lshl_b32 {sMC}, {sMC}, 3
                 s_lshr_b32 {sT2}, {sU}, 2
                 s_add_u32 {sMC}, {sMC}, {sT2}""")
        M(f"""s_lshl_b32 {sT1}, {sGC}, 10
             s_lshl_b32 {sT2}, {sGC}, 12
             s_xor_b32 {sP2}, {sT1}, {sT2}
             s_and_b32 {sP2}, {sP2}, 0x2000
             s_xor_b32 {sP2}, {sP2}, {sPE}
             s_lshl_b32 {bTA}, {sMC}, 19
             s_add_u32 {bTA}, {bTA}, {sXL}
             s_and_b32 {sT2}, {sMC if self.o.get('grp', 1) else sW}, 1
             s_lshl_b32 {sT2}, {sT2}, 13
             s_add_u32 {bTA}, {bTA}, {sT2}
             s_add_u32 {bTA}, {bTA}, {hex(W13R)}
             s_xor_b32 {bTX}, {bTA}, 0x2000""")
        M(f"""s_lshl_b32 {sT1}, {sGC}, 2
             s_add_u32 {sT2}, {sT1}, {sW}
             s_lshl_b32 {cHS2}, {sT2}, 4
             s_add_u32 {cHS2}, {cHS2}, {sMC}
             s_lshl_b32 {cHS2}, {cHS2}, 14
             s_add_u32 {cHS2}, {cHS2}, {hex(HH+4096)}
             s_xor_b32 {cHS2}, {cHS2}, {sP2}
             s_lshl_b32 {cHB}, {sT2}, 16
             s_add_u32 {cHB}, {cHB}, {hex(HB)}
             s_xor_b32 {cHB}, {cHB}, {sPE}
             s_sub_u32 {cHS}, {cHS2}, 4096
             s_lshl_b32 {sT3}, {sMC}, 14
             s_sub_u32 {cPL}, {cHS2}, {sT3}
             s_add_u32 {cPL}, {cPL}, {3072+512}
             s_add_u32 {cST}, {cPL}, 256
             v_lshlrev_b32 {HPA}, 14, v1
             v_and_b32 {PA2}, 12, {L4}
             v_or_b32 {PA2}, {PA2}, {LM8}
             v_bfe_u32 v44, v1, 2, 1
             v_lshl_add_u32 {PA2}, v44, 18, {PA2}
             s_mul_i32 {cCS}, {sMC}, {7*128}
             s_add_u32 {cCS}, {cCS}, {hex(CS)}
             s_and_b32 {sCB}, {sMC}, 7
             s_lshl_b32 {cW2}, {sCB}, 19
             s_lshl_b32 {sT3}, {sW}, 17
             s_add_u32 {cW2}, {cW2}, {sT3}
             s_and_b32 {sT3}, {sCB if self.o.get('grp', 1) else sW}, 1
             s_lshl_b32 {sT3}, {sT3}, 13
             s_add_u32 {cW2}, {cW2}, {sT3}
             s_add_u32 {cW2}, {cW2}, {hex(W2R)}
             s_xor_b32 {cW2x}, {cW2}, 0x2000
             s_and_b32 {sT3}, {sW}, 1
             s_lshl_b32 {sT2}, {sT3}, 10
             v_add_u32 {W2A}, {sT2}, {DL}
             v_xor_b32 {W2B}, 1024, {W2A}
             v_lshrrev_b32 v44, 4, v1
             v_lshl_add_u32 {LB0}, v44, {8 if self.o.get('c16', 1) else 31}, {L16}
             v_and_b32 {LB0}, 0xffff, {LB0}
             v_add_u32 {LB1}, 0x10000, {LB0}
             v_add_u32 {LB2}, 0x20000, {LB0}
             s_add_u32 {sT2}, {bTL}, 0x10000
             v_add_u32 {WLA}, {sT2}, {W2A}
             v_add_u32 {WLB}, {sT2}, {W2B}
             v_lshl_add_u32 {WLA}, v46, 11, {WLA}
             v_lshl_add_u32 {WLB}, v46, 11, {WLB}
             v_lshl_add_u32 {W2A}, v46, 15, {W2A}
             v_lshl_add_u32 {W2B}, v46, 15, {W2B}
             v_add_u32 {WLC}, 0x10000, {WLA}
             v_add_u32 {WLD}, 0x10000, {WLB}
             v_and_b32 {CSL}, 0x7c, {L4}
             s_lshr_b32 {sT2}, {sMC}, 3
             s_lshl_b32 {sT2}, {sT2}, 1
             s_add_u32 {sT1}, {sT1}, {sT2}
             s_lshl_b32 {cHL}, {sT1}, 18
             s_lshl_b32 {sT2}, {sW}, 16
             s_add_u32 {cHL}, {cHL}, {sT2}
             s_add_u32 {cHL}, {cHL}, {hex(HH)}
             s_xor_b32 {cHL}, {cHL}, {sP2}
             s_lshr_b32 {sT2}, {sW}, 1
             s_add_u32 {sT1}, {sT1}, {sT2}
             s_lshl_b32 {sT2}, {sT2}, 18
             v_add_u32 {HHA}, {sT2}, {DL}
             v_lshl_add_u32 {HHA}, v46, 14, {HHA}
             v_xor_b32 {HHB}, 0x40000, {HHA}
             s_lshl_b32 {sT1}, {sT1}, 15
             s_lshl_b32 {sT2}, {sCB}, 1
             s_add_u32 {sT2}, {sT2}, {sT3}
             s_lshl_b32 {cOUT}, {sT2}, 6
             s_add_u32 {cOUT}, {cOUT}, {sT1}
             s_lshr_b32 {cHR}, {sT2}, 2
             s_lshl_b32 {cHR}, {cHR}, 13
             s_add_u32 {cHR}, {cHR}, {sT1}
             s_and_b32 {sT2}, {sT2}, 3
             s_lshl_b32 {sT2}, {sT2}, 10
             s_add_u32 {cHR}, {cHR}, {sT2}
             s_lshl_b32 {cHR}, {cHR}, 1
             s_add_u32 {cHR}, {cHR}, {hex(HB)}
             s_xor_b32 {cHR}, {cHR}, {sPE}
             s_add_u32 {cPP}, {cHL}, 7168
             s_add_u32 {cPQ}, {cPP}, 0x40000
             s_and_b32 {sT3}, {sMC}, 3
             s_mul_i32 {sT3}, {sT3}, {16384-4}
             s_sub_u32 {cPS}, {cHS2}, {sT3}""")
        return list(M)

    def phaseCD(self):
        p = self.p
        o = self.o
        sub = self.sub
        bar = lambda s_: list(Seq()(s_))
        steps, w2o, hho = self.steps, self.w2o, self.hho

        def dmaW2(part):
            g = []
            for k in range(4):
                S = Seq()
                S(f"s_add_u32 m0, {bTL}, {(2+part)*32768+k*2048}\ns_add_u32 {sT0}, {w2o[16+4*part+k]}")
                S(f"buffer_load_dwordx4 {L16}, {WS}, {sT0} offen sc1 lds", tag=f"W2L{part}")
                g.append(list(S))
                g.append([Inst(f"buffer_load_dwordx4 {L16}, {WS}, {sT0} offen offset:1024 sc1 lds", tag=f"W2L{part}")])
                ctx(g[-2:])
            return g

        def pub(tag, st):
            if o.get('nopub'):
                return []
            return bar(f"WAITTAG {tag}\nbuffer_store_dword v4, {FA1}, {WS}, {cPS} offen offset:{3072+128*st} sc1")

        vp = str(o.get('vp', 'x0123'))

        def pollld(st):
            if o.get('nopoll'):
                return []
            if str(st) in vp:
                return bar(f"buffer_load_dword v5, {PA2}, {WS}, {cPP} offen sc1")
            return list(Seq()(f"""s_buffer_load_dwordx4 s[8:11], {WS}, {cPP} glc
                 s_buffer_load_dwordx4 s[12:15], {WS}, {cPQ} glc""", cond=True))

        def pollchk(st):
            if o.get('nopoll'):
                return []
            if str(st) in vp:
                return sub(lambda: self.spin("v5", PA2, cPP, "0xff", "1", mode='check', sleep=o.get('sleep2', 2))) + \
                    bar(f"s_add_u32 {cPP}, {cPP}, 128\ns_add_u32 {cPQ}, {cPQ}, 128")
            red = """s_and_b64 s[8:9], s[8:9], s[10:11]
                 s_and_b64 s[12:13], s[12:13], s[14:15]
                 s_and_b64 s[8:9], s[8:9], s[12:13]
                 s_and_b32 s8, s8, s9"""

            def f():
                Lp = self.lab("sp")
                if o.get('stamps') == 3:
                    self.p(f"s_mov_b32 {sT5}, 0")
                self.p("WAITALL lgkm\n" + red)
                self.ool("s_cbranch_scc0", f"""s_mov_b32 {sT5}, 0
                     {Lp}:
                     s_sleep {o.get('sleep2', 2)}
                     s_buffer_load_dwordx4 s[8:11], {WS}, {cPP} glc
                     s_buffer_load_dwordx4 s[12:15], {WS}, {cPQ} glc
                     s_add_u32 {sT5}, {sT5}, 1
                     s_waitcnt lgkmcnt(0)
                     {red}
                     s_lshr_b32 s9, {sT5}, 15
                     s_or_b32 s8, s8, s9
                     s_cbranch_scc0 {Lp}""")
                self.p(f"s_add_u32 {cPP}, {cPP}, 128\ns_add_u32 {cPQ}, {cPQ}, 128")
                if o.get('stamps') == 3:
                    self.p(f"v_writelane_b32 v{STV}, {sT5}, {self.nstamp}")
                    self.nstamp += 1
                    self.stamp_names.append(f"P{st}")
            return sub(f)

        kt = max(0, len(self.tq_rest) - self.n_w2rest)
        FQ = self.tq_rest[:kt] + self.dmaT(2, 2) + self.dmaT(3, 3) + self.dmaT(4, 4) + self.tq_rest[kt:]
        npre, npre2 = o.get('tq4', 12), o.get('tq5', 0)
        p.extend(flat(FQ[:npre]))
        FQ = FQ[npre:]
        c16 = o.get('c16', 1)
        CSR, CSF, MEANF, C1, C2 = 160, 168, 176, 180, 181
        CSU, CSG, MEANG = 213, 220, 228
        p("s_nop 0")
        for k in (1, 2, 3, 5, 6, 7, 9, 10, 11):
            p(f"v_mov_b32 v{CSF+k}, 0")
            if c16:
                p(f"v_mov_b32 v{CSG+k}, 0")
        for t in range(7):
            p.extend(split2(CSR + t, CSR + t, 184))
        if c16:
            for t in range(7):
                p(f"v_mov_b32 v{CSU+t}, v{CSR+t}")
            for t in range(7):
                p(f"v_permlane16_swap_b32 v{CSR+t}, v{CSU+t}")
            p(f"s_mov_b64 s[8:9], 0xffff\nv_mov_b32 v{CSG}, v{CSU}\nv_mov_b32 v{CSG+4}, v{CSU+1}")
        p(f"v_mov_b32 v{CSF}, v{CSR}\nv_mov_b32 v{CSF+4}, v{CSR+1}")
        p("s_nop 0")
        p.extend(flat(FQ[:npre2]))
        FQ = FQ[npre2:]
        self.stamp("C_prepoll")
        self.spin("v5", HPA, cPL, "0xffff", "1", mode='all', sleep=o.get('sleep3', 0))
        self.stamp("C_sync2")

        c16 = o.get('c16', 1)
        fo = (lambda s: (s >> 1) * 2048 + (s & 1) * 256) if c16 else (lambda s: s * 1024)

        def hload(s):
            S = Seq()
            if s % 4 == 0 and s:
                S(f"s_add_u32 {cHB}, {cHB}, {4096 if s % 8 else 12288}")
            S(f"buffer_load_dwordx4 {a_(4*s,4)}, {LB0}, {WS}, {cHB} offen offset:{fo(s&3)} sc1")
            return list(S)
        HL = o.get('hla', 10)
        for s in range(HL):
            p.extend(hload(s))
        if self.t1_late:
            p("WAITTAG T1\ns_barrier")
        ACC = [48, 64, 80, 96, 112]
        acc_of = [0, 1, 2, 3, 0, 1, 2]
        slot_of = [0, 1, 2, 3, 4, 0, 1]
        WR, NR = 128, 8
        CSR, CSF, MEANF, C1, C2 = 160, 168, 176, 180, 181
        T = 184
        LK = o.get('lk', 5)
        F0 = Seq()
        for k in range(4):
            F0(f"buffer_load_dword v{T+4+k}, {L4}, {WS}, {cST} offen sc1\ns_add_u32 {cST}, {cST}, 16384")
        F1 = Seq()
        F1(f"""v_add_f32 v{T}, v{T+4}, v{T+5}
             v_add_f32 v{T+1}, v{T+6}, v{T+7}
             v_add_f32 v{T}, v{T}, v{T+1}
             v_mov_b32 v{T+1}, v{T}
             v_permlane32_swap_b32 v{T}, v{T+1}
             v_mul_f32 v{T}, 0x3b000000, v{T}
             v_mul_f32 v{T+1}, 0x3b000000, v{T+1}
             v_cvt_pk_bf16_f32 v{MEANF}, -v{T}, -v{T}
             v_fma_f32 v{T+1}, -v{T}, v{T}, v{T+1}
             v_max_f32 v{T+1}, 0, v{T+1}
             v_add_f32 v{C2}, 0x3727c5ac, v{T+1}
             v_rsq_f32 v{C1}, v{C2}
             v_mul_f32 v{C1}, 0xbfb8aa3b, v{C1}""")
        if c16:
            prs = [(MEANF, MEANG), (C2, C2 + 2), (C1, C1 + 2)]
            for x, y in prs:
                F1(f"v_mov_b32 v{y}, v{x}")
            for x, y in prs:
                F1(f"v_permlane16_swap_b32 v{x}, v{y}")
            F1(f"""v_cndmask_b32 v{MEANF}, 0, v{MEANF}, s[8:9]
                 v_cndmask_b32 v{MEANG}, 0, v{MEANG}, s[8:9]""")
        else:
            F1(f"v_cndmask_b32 v{MEANF}, v{MEANF}, 0, {sHILANES}")

        def tread(t, s, n):
            sl = slot_of[t]
            base = (LB0, LB0, LB1, LB1, LB2)[sl]
            return [Inst(f"ds_read_b128 {v(WR+4*(n%NR),4)}, {base} offset:{(sl&1)*32768*(sl<4)+fo(s)}")]

        def corr(t):
            A = ACC[acc_of[t]]
            if c16:
                return [mf16(A + 8 * gu + 4 * th, v((CSF, CSG)[gu] + 4 * (t & 1), 4), v((MEANF, MEANG)[th], 4))
                        for gu, th in ((0, 0), (0, 1), (1, 1), (1, 0))]
            return [mf32(A, v(CSF + 4 * (t & 1), 4), v(MEANF, 4))]

        def cm(t, s, n):
            A, w = ACC[acc_of[t]], v(WR + 4 * (n % NR), 4)
            if not c16:
                return [mf32(A, w, a_(4 * s, 4), "0" if s == 0 else None)]
            gu = s & 1
            r = [mf16(A + 8 * gu + 4 * th, w, a_(8 * (s >> 1) + 4 * th, 4), "0" if s < 2 else None) for th in (gu, 1 - gu)]
            r[1].tag = "second"
            return r

        def spread(G):
            out = []
            for g in G:
                g = hoist(g)
                if len(g) > 1 and g[1].tag == "second":
                    m, rest, c, k = g[1], g[2:], 0, 0
                    m.tag = None
                    tot = sum(cost(x) for x in rest if not x.cond)
                    while k < len(rest) and c + cost(rest[k]) <= max(9.7, tot / 2 + 2.2) and not rest[k].cond \
                            and rest[k].kind not in ('branch', 'label') and not rest[k].op.startswith('v_cmp'):
                        c += cost(rest[k])
                        k += 1
                    g = [g[0]] + rest[:k] + [m] + rest[k:]
                out += g
            return out
        G = []
        for n in range(64):
            s, t = divmod(n, 2)
            g = cm(t, s, n)
            if n + LK < 64:
                g += tread((n + LK) % 2, (n + LK) // 2, n + LK)
            else:
                if n + LK == 64:
                    g += bar("WAITTAG T2\ns_barrier")
                g += tread(2, n + LK - 64, n + LK)
            if t == 0 and s + HL < 32:
                g += hload(s + HL)
            G.append(g)
        G.append(corr(0))
        G.append(corr(1))
        for n in range(LK):
            p.extend(tread(n % 2, n // 2, n))
        G = weave(G, list(F0), 1, o.get('f0', 20))
        G = weave(G, list(F1), o.get('f1', 40), 63)
        e0 = 2 * (32 - HL)
        ng = min(len(FQ), o.get('g1q', 8))
        G = weave(G, FQ[:ng], e0, 66)
        FQ = FQ[ng:]
        p.extend(spread(G))
        self.stamp("C_g1")

        def epi(t, tmp):
            A = ACC[acc_of[t]]
            S = Seq()
            for j in range(8):
                S(f"v_mul_f32 v{tmp+j}, v{A+j}, v{C1+2*c16*(j>>2)}")
            for j in range(8):
                S(f"v_exp_f32 v{tmp+j}, v{tmp+j}")
                S(f"v_mul_f32 v{A+j}, v{A+j}, v{A+8+j}")
            for j in range(8):
                S(f"v_fma_f32 v{tmp+j}, v{tmp+j}, v{C2+2*c16*(j>>2)}, v{C2+2*c16*(j>>2)}")
                if j >= 2:
                    S(f"v_rcp_f32 v{tmp+j-2}, v{tmp+j-2}")
            for j in range(8):
                S(f"v_mul_f32 v{A+j}, v{A+j}, v{tmp+j}")
                if j < 2:
                    S(f"v_rcp_f32 v{tmp+6+j}, v{tmp+6+j}")
            for j in (0, 2, 1, 3):
                S(f"v_cvt_pk_bf16_f32 v{tmp+8+j}, v{A+2*j}, v{A+2*j+1}")
            if c16:
                S(f"v_permlane16_swap_b32 v{tmp+8}, v{tmp+10}\nv_permlane16_swap_b32 v{tmp+9}, v{tmp+11}")
            S(f"buffer_store_dwordx4 {v(tmp+8,4)}, {L16}, {WS}, {cHS if t < 4 else cHS2} offen offset:{(t&3)*1024} sc1", tag=f"hh{t}")
            return list(S)

        def tilepass(t, n0):
            G = []
            for s in range(32):
                n = n0 + s
                g = cm(t, s, n)
                if s + LK < 32:
                    g += tread(t, s + LK, n + LK)
                elif t < 6:
                    if s + LK == 32:
                        g += bar(f"WAITTAG T{t+1}\ns_barrier")
                    g += tread(t + 1, s + LK - 32, n + LK)
                if s == 16:
                    g += bar(f"v_mov_b32 v{CSF+4*(t&1)}, v{CSR+t}")
                if s == 17 and c16:
                    g += bar(f"v_mov_b32 v{CSG+4*(t&1)}, v{CSU+t}")
                G.append(g)
            G.append(corr(t))
            return G

        d16 = o.get('d16', 1)

        def hhload(i):
            S = Seq()
            if d16:
                ad = HHB if i & 1 else HHA
                S(f"s_add_u32 {sCc}, {cHL}, {hho[i & ~1]}")
                S(f"buffer_load_dwordx4 {a_(8*(i&15),4)}, {ad}, {WS}, {sCc} offen sc1")
                return ctx([list(S), [Inst(f"buffer_load_dwordx4 {a_(8*(i&15)+4,4)}, {ad}, {WS}, {sCc} offen offset:256 sc1")]])
            S(f"s_add_u32 {sCc}, {cHL}, {hho[i]}")
            S(f"buffer_load_dwordx4 {a_(8*(i&15),4)}, {HHA}, {WS}, {sCc} offen sc1")
            return ctx([list(S), [Inst(f"buffer_load_dwordx4 {a_(8*(i&15)+4,4)}, {HHB}, {WS}, {sCc} offen sc1")]])

        EP = [epi(t, T + 12 * (t & 1)) for t in range(7)]
        P = {t: tilepass(t, 32 * t) for t in range(2, 7)}
        q = o.get('cq', 18)
        ee = o.get('ee', 20)
        LA = o.get('dla', 7)
        G = weave(P[2], FQ[:q], 0, 32)
        FQ = self.dmaT(5, 0) + FQ[q:]
        FQ = FQ[:q] + self.dmaT(6, 1) + FQ[q:] + dmaW2(0) + dmaW2(1) + dmaW2(2)
        G = weave(G, EP[0] + EP[1][:26], 2, 33)
        p.extend(self.xf(spread(G)))
        self.stamp("C_t2")
        q3 = min(q, len(FQ) - 24)
        G = weave(P[3], FQ[:q3], 0, 32)
        FQ = FQ[q3:]
        G = weave(G, EP[1][26:] + EP[2], 0, 33)
        p.extend(self.xf(spread(G)))
        self.stamp("C_t3")
        q4 = min(q, len(FQ) - 16)
        G = weave(P[4], FQ[:q4], 0, 32)
        FQ = FQ[q4:]
        G = weave(G, EP[3], 2, ee)
        G[o.get('p1at', 26)] += pub("hh2", 0)
        p.extend(self.xf(spread(G)))
        self.stamp("C_t4")
        q5 = min(q, len(FQ) - 8)
        G = weave(P[5], FQ[:q5], 0, 32)
        FQ = FQ[q5:]
        G[o.get('l1', 14)] += pollld(0)
        G[1] += bar(f"buffer_load_dwordx4 v[24:27], {L16}, {WS}, {cHR} offen sc1")
        G[3] += bar(f"buffer_load_dwordx4 v[28:31], {L16}, {WS}, {cHR} offen offset:1024 sc1")
        G = weave(G, EP[4], 2, ee)
        p.extend(self.xf(spread(G)))
        self.stamp("C_t5")
        G = P[6]
        c1 = o.get('c1', 1)
        n6 = min(o.get('n6', 0), len(FQ))
        if n6:
            G = weave(G, FQ[:n6], 0, max(c1, 1))
            FQ = FQ[n6:]
        G[c1] += pollchk(0)
        hq = [x for i in range(LA) for x in hhload(i)]
        G = weave(G, hq, c1 + 1, 33)
        S = Seq()
        if d16:
            for i in (24, 25, 28, 29):
                S(f"v_permlane16_swap_b32 v{i}, v{i+2}")
        for i in range(8):
            S(f"v_lshlrev_b32 v{48+2*i}, 16, v{24+i}\nv_and_b32 v{49+2*i}, {sMSKHI}, v{24+i}")
        for k in range(4):
            S(f"""s_xor_b32 {sT1}, {sW}, {k}
                 s_mul_i32 {sT1}, {sT1}, 12288
                 v_add_u32 v{36+k}, {sT1}, {L16}""")
        G = weave(G, list(S), ee + 1, 33)
        G = weave(G, EP[5], 2, ee)
        G[o.get('p2at', 12)] += pub("hh4", 1)
        p.extend(self.xf(spread(G)))
        self.stamp("C_t6")

        DA = [48, 64, 96, 112]

        def w2r(i, a):
            return (128, 168, 128)[(i - 16) // 4] + 8 * (i % 4) + 4 * a

        def w2read(i):
            part, k = divmod(i - 16, 4)
            r = bar(f"WAITTAG W2L{part}") if k == 0 else []
            for a in range(2):
                ad = ((WLA, WLB), (WLA, WLB), (WLC, WLD))[part][k & 1 if d16 else a]
                r.append(Inst(f"ds_read_b128 {v(w2r(i, a), 4)}, {ad} offset:{(part&1)*32768 + ((k&2)*2048 + a*256 if d16 else k*2048)}"))
            return r

        def w2f(i, a):
            return a_(128 + 8 * i + 4 * a, 4) if i < 16 else v(w2r(i, a), 4)

        def dm(i, k):
            a, b = k & 1, k >> 1
            if d16:
                j, ch = i & ~1, i & 1
                r = [mf16(DA[k] + 8 * ch + 4 * th, w2f(j + a, ch), a_(8 * ((j + b) & 15) + 4 * th, 4), "0" if j == 0 and k else None)
                     for th in (ch, 1 - ch)]
                r[1].tag = "second"
                return r
            return [mf32(DA[k], w2f(i, a), a_(8 * (i & 15) + 4 * b, 4), "0" if i == 0 and k else None)]
        nl = o.get('nl', 4)
        if d16:
            assert nl % 2 == 0
            G = [dm(j + ch, k) for j in range(0, 28 - nl, 2) for k in (0, 1, 3, 2) for ch in range(2)]
        else:
            G = [dm(i, k) for i in range(28 - nl) for k in (1, 3, 2, 0)]
        G += [dm(i, k) for k in (1, 3, 2, 0) for i in range(28 - nl, 28)]
        for i in range(16, 28):
            G[min(4 * i - 7 - 2 * d16 * (i & 1), 4 * (28 - nl) - 8 + (i - (28 - nl)))] += w2read(i)
        c2, c3, c4 = o.get('c2', 22), o.get('c3', 54), o.get('c4', 76)
        l2, l3, l4 = o.get('l2', 6), o.get('l3', 37), o.get('l4', 62)
        G[l2] += pollld(1)
        G = weave(G, EP[6], 1, o.get('e6', 11))
        G[o.get('p3at', 12)] += pub("hh5", 2)
        G[l3] += pollld(2)
        G[o.get('p4at', 38)] += pub("hh6", 3)
        G[o.get('dbar', 40)] += bar("s_barrier")
        hs = lambda a, b: [x for i in range(a, b) for x in hhload(i)]
        G = weave(G, hs(LA, 12), 0, c2)
        G[c2] += pollchk(1)
        nf = max(0, len(FQ) - o.get('nf', 8))
        G = weave(G, hs(12, 16) + FQ[:nf] + hs(16, 20), c2 + 1, c3)
        G[c3] += pollchk(2)
        G = weave(G, hs(20, 24), c3 + 1, l4)
        G[l4] += pollld(3)
        G = weave(G, FQ[nf:], l4 + 1, c4)
        G[c4] += pollchk(3)
        G = weave(G, hs(24, 28), c4 + 1, c4 + o.get('h4', 9))
        WRT = [[Inst(f"ds_write_b128 v{36+k}, {v(DA[k]+4*q_,4)} offset:{(k-1)*4096+q_*1024}") for q_ in range(4)] for k in (1, 3, 2)]
        if nl >= 2:
            for n in range(3):
                G = weave(G, WRT[n], 112 - (3 - n) * nl + 1, 112 - (2 - n) * nl + (1 if n < 2 else 0))
        else:
            G[111] += flat(WRT)
        for k in sorted(set(list(range(8, 112, 8)) + [c2 - 1, c2, c3 - 1, c3, c4 - 1, c4])):
            G[k] += sub(lambda: self.stamp(f"d{k}"))
        p.extend(self.xf(spread(G)))
        self.stamp("D_loop")
        p("WAITALL lgkm\ns_barrier")
        for q_ in range(4):
            for k in range(3):
                p(f"ds_read_b128 {v(160+16*k+4*q_,4)}, v36 offset:{k*4096+q_*1024}")
        for q_ in range(4):
            for j in range(2):
                r = 4 * q_ + 2 * j
                p(f"v_pk_add_f32 {v(48+r,2)}, {v(48+r,2)}, {v(160+r,2)}")
                p(f"v_pk_add_f32 {v(176+r,2)}, {v(176+r,2)}, {v(192+r,2)}")
            for j in range(2):
                r = 4 * q_ + 2 * j
                p(f"v_pk_add_f32 {v(48+r,2)}, {v(48+r,2)}, {v(176+r,2)}")
            for j in range(2):
                p(f"v_cvt_pk_bf16_f32 v{112+2*q_+j}, v{48+4*q_+2*j}, v{48+4*q_+2*j+1}")
            if q_ & 1 and d16:
                p(f"v_permlane16_swap_b32 v{110+2*q_}, v{112+2*q_}\nv_permlane16_swap_b32 v{111+2*q_}, v{113+2*q_}")
            if q_ & 1:
                p(f"buffer_store_dwordx4 {v(112+4*(q_>>1),4)}, {ROWA}, {OUT}, {cOUT} offen offset:{32*(q_>>1)}" + ["", " sc1", " nt", " sc0 sc1"][o.get('outst', 0)])
        self.stamp("D_end")

    def finish(self):
        p = self.p
        if self.o.get('stamps'):
            p("WAITALL vm")
            self.stamp("D_drained")
            p(f"""s_lshl_b32 {sT0}, s2, 2
                 s_add_u32 {sT0}, {sT0}, {sW}
                 s_lshl_b32 {sT0}, {sT0}, 7
                 s_add_u32 {sT0}, {sT0}, {hex(STAMP)}
                 s_mov_b32 exec_hi, 0
                 buffer_store_dword v{STV}, {L4}, {WS}, {sT0} offen""")
        if self.o.get('padto'):
            p("WAITALL vm")
            if self.o.get('skew') is not None:
                p(f"""buffer_load_dword v43, off, {DBG}, 0 offset:128 sc1
                     buffer_load_dword v41, off, {DBG}, 0 offset:192 sc1
                     v_not_b32 v43, v43
                     v_readfirstlane_b32 s72, v43
                     v_readfirstlane_b32 s73, v41""")
                if self.o['skew'] < 0:
                    p("s_sub_u32 s101, s73, s72")
                else:
                    p("s_sub_u32 s101, s100, s72")
                p(f"""s_min_u32 s101, s101, 2000
                     s_lshl_b32 s101, s101, 3
                     s_add_u32 s100, s72, s101
                     s_lshl_b32 s72, s2, 2
                     s_add_u32 s72, s72, {sW}
                     s_cmp_lg_u32 s72, {max(self.o['skew'], 0) * 4}
                     s_cbranch_scc1 L_end""")
            if self.o.get('mx'):
                p(f"""s_lshl_b32 s72, s101, 8
                     s_add_u32 s72, s72, s2
                     v_mov_b32 v41, s72
                     s_cmp_eq_u32 {sW}, 0
                     s_cselect_b32 s73, 0, {hex(OOB)}
                     buffer_atomic_umax v41, {FA1}, {DBG}, s73 offen offset:192 sc1
                     s_waitcnt vmcnt(0)
                     L_pad0:
                     s_memrealtime s[72:73]
                     s_waitcnt lgkmcnt(0)
                     s_sub_u32 s72, s72, s100
                     s_cmp_lt_i32 s72, {self.o['padto']-200}
                     s_cbranch_scc1 L_pad0
                     buffer_load_dword v41, off, {DBG}, 0 offset:192 sc1
                     v_readfirstlane_b32 s72, v41""")
                if self.o['mx'] == 1:
                    p("s_lshl_b32 s101, s101, 8\ns_sub_u32 s101, s72, s101\ns_lshr_b32 s101, s101, 8\ns_min_u32 s101, s101, 1000\ns_lshl_b32 s101, s101, 4")
                elif self.o['mx'] == 2:
                    p("s_bfe_u32 s101, s72, 0x50003\ns_mul_i32 s101, s101, 200")
                else:
                    p("s_and_b32 s101, s72, 7\ns_mul_i32 s101, s101, 500")
                p("s_add_u32 s100, s100, s101")
            if self.o.get('seg0'):
                p(f"s_lshl_b32 s72, s2, 2\ns_add_u32 s72, s72, {sW}\ns_cmp_lg_u32 s72, {self.o.get('segw', 150)}\ns_cbranch_scc1 L_end")
            p("L_pad:\ns_memrealtime s[72:73]\ns_waitcnt lgkmcnt(0)\ns_sub_u32 s72, s72, s100")
            p(f"s_cmp_lt_i32 s72, {self.o['padto']}\ns_cbranch_scc1 L_pad")
        p("L_end:\ns_endpgm")

    def build(self):
        if self.o.get('stamps') or self.o.get('padto'):
            self.p("s_memtime s[100:101]" if self.o.get('stamps') == 2 else "s_memrealtime s[100:101]")
        self.setup()
        if self.o.get('seg0') == 'start':
            self.p("s_mov_b32 s101, s100")
        if self.o.get('stamps'):
            self.p(f"v_mov_b32 v{STV}, s100")
            self.nstamp = 1
            self.stamp_names.append("start")
        self.p.extend(self.xf(self.sub(self.phaseA), 'xa'))
        self.p.extend(self.xf(self.sub(self.phaseB), 'xb'))
        self.phaseCD()
        self.finish()
        sk = str(self.o.get('skel', ''))
        if sk:
            Q = Seq()
            for i in self.p:
                if 'm' in sk and i.kind == 'mfma':
                    r = sorted(i.srcab)
                    for x in (r[0], r[-1]):
                        Q(f"v_accvgpr_read_b32 v40, {x}" if x[0] == 'a' else f"v_mov_b32 v40, {x}")
                    continue
                if 'e' in sk and i.kind in ('valu', 'trans') and not i.cond and i.op.endswith(('f32', 'f32_e64')):
                    continue
                if 'v' in sk and i.kind in ('vload', 'dma') and not i.cond and 'dwordx4' in i.op:
                    continue
                if 's' in sk and i.kind == 'vstore' and not i.cond and (i.wide or 'f32' in i.op) and 'v[176:179]' not in i.text:
                    continue
                Q.append(i)
            self.p = Q
        ns = str(self.o.get('nosc', ''))
        for i in self.p:
            if i.kind in ('vload', 'dma') and 'dwordx' in i.op and not i.cond:
                for ch, regs in (('k', (sKVL, bK2, sZL)), ('q', (sPQL, bQ2)), ('h', (cHB,)), ('t', (sT0, sKC)), ('d', (sCc,))):
                    if ch in ns and any(f"{WS}, {r} " in i.text for r in regs):
                        i.text = i.text.replace(" sc1", "")
        import dsl
        dsl.MERGE = self.o.get('mg', 1)
        return finalize(self.p, self.o.get('fill', 1))


def emit(opt):
    g = Gen(opt)
    prog = g.build()
    hdr = open(os.path.join(os.path.dirname(os.path.abspath(__file__)), "header.txt")).read()
    body = "\n".join(("" if i.kind == 'label' else "    ") + i.text for i in prog)
    txt = hdr + f"""; @launch grid=(256,1,1) block=(256,1,1) lds=163840
.amdgcn_target "amdgcn-amd-amdhsa--gfx950"
.set CODE_PF_MAX, {opt.get('code_bytes', 0)}
.text
.globl {NAME}_kernel
.p2align 8
.type {NAME}_kernel,@function
{NAME}_kernel:
{body}
.section .rodata,"a"
.p2align 6
.amdhsa_kernel {NAME}_kernel
  .amdhsa_next_free_vgpr 512
  .amdhsa_next_free_sgpr 102
  .amdhsa_accum_offset 256
  .amdhsa_group_segment_fixed_size 0
  .amdhsa_kernarg_size 80
  .amdhsa_user_sgpr_count 2
  .amdhsa_user_sgpr_kernarg_segment_ptr 1
  .amdhsa_system_sgpr_workgroup_id_x 1
.end_amdhsa_kernel
"""
    return txt, g.stamp_names


def code_size(txt):
    import subprocess, tempfile
    with tempfile.TemporaryDirectory() as d:
        open(d + "/k.s", "w").write(txt)
        r = subprocess.run(["clang", "-x", "assembler", "-target", "amdgcn-amd-amdhsa",
                            "-mcpu=gfx950", "-c", d + "/k.s", "-o", d + "/k.o"], capture_output=True, text=True)
        if r.returncode:
            print("\n".join(r.stderr.split("\n")[:30]))
            raise SystemExit(1)
        r = subprocess.run(["llvm-objdump", "-h", d + "/k.o"], capture_output=True, text=True)
        for line in r.stdout.split("\n"):
            f = line.split()
            if len(f) > 2 and f[1] == ".text":
                return int(f[2], 16)


def main():
    opt = {}
    out = None
    for a in sys.argv[1:]:
        if '=' in a:
            k, val = a.split('=')
            try:
                opt[k] = int(val, 0)
            except ValueError:
                opt[k] = val
        else:
            out = a
    opt['code_bytes'] = 4096
    txt, names = emit(opt)
    sz = code_size(txt)
    opt['code_bytes'] = (sz - 1024) & ~3
    txt, names = emit(opt)
    open(out, "w").write(txt)
    if names:
        open(out + ".names", "w").write(" ".join(names))
    print(out, "code bytes", sz, "lines", txt.count("\n"), "stamps", len(names))


if __name__ == "__main__":
    main()
```

```python
import sys, os
sys.path.insert(0, os.path.dirname(os.path.abspath(__file__)))
from dsl import *

NAME = "sequential_preLN__linear_attn_block__glu_gated_swiglu__prompt"

CNT = 0x20000
KVM = 0x10000
ST = 0x18000
CS = 0x1C000
ZP = 0x1F800
STAMP = 0xC0000
PQ = 0x400000
HB = 0x800000
HH = 0x1000000
W13R = 0x2000000
W2R = 0x2800000
PROBE = 0x100000
WS_SIZE = 0x2C00000
OOB = 0x7f000000

X, WQKV, WO, W1, W3, W2, OUT, WS, DBG = [f"s[{a}:{a+3}]" for a in range(4, 40, 4)]
(sW, sG, sM, sC0, sT0, sT1, sT2, sT3, sXB, sWB, sXL, sWL, sTB, sCB, sRQ, sLOG2E,
 sU, sKC, sT4, sT5, sMSKHI, sEPS6) = [f"s{i}" for i in range(40, 62)]
sHILANES = "s[62:63]"
sB4LANES = "s[64:65]"
sA, sB, sCc, sD = "s66", "s67", "s68", "s69"
sKVA, sZA, sPQS, sRW, sR2, sRC, sKVL, sZL, sPQL, sSIG, sHST, sSTA = [f"s{i}" for i in range(84, 96)]
sMA, sTA, sHS = "s3", "s74", "s83"
sP1, sPE, sP2, sTBL = "s96", "s97", "s98", "s99"
STV = 0

VB, KB, XCH, RST, KVS, ZS = 0x10000, 0x18000, 0x20000, 0x22000, 0, 0x21000

L16, L4 = "v2", "v3"
TRK, TRP = 152, 156
XCW, XCR, KVW, ZW, STW, KVR, ZR, ZAT, STR = [f"v{i}" for i in range(212, 221)]
WOD, WOT, OAD = 221, 225, 229
ROWA, ZBW, ZBR, P256 = "v233", "v234", "v235", "v236"
RL1, RL3, RL2, RT13, RT2A, RT2B, CSAT, P4K, FA1, LM8, PA2 = [f"v{i}" for i in range(237, 248)]
RCS = 248


def v(a, n=1):
    return f"v{a}" if n == 1 else f"v[{a}:{a+n-1}]"


def a_(a, n=1):
    return f"a{a}" if n == 1 else f"a[{a}:{a+n-1}]"


def mf32(d, A, B, c=None):
    return Inst(f"v_mfma_f32_32x32x16_bf16 {v(d,16)}, {A}, {B}, {v(d,16) if c is None else c}")


def mf16(d, A, B, c=None):
    return Inst(f"v_mfma_f32_16x16x32_bf16 {v(d,4)}, {A}, {B}, {v(d,4) if c is None else c}")


def mf4(d, A, B, c=None):
    return Inst(f"v_mfma_f32_4x4x4_16b_bf16 {v(d,4)}, {A}, {B}, {v(d,4) if c is None else c}")


def trpair(dst, addr, off, step):
    k, b = dst
    return [Inst(f"ds_read_b64_tr_b16 {k}[{b}:{b+1}], {addr} offset:{off}"),
            Inst(f"ds_read_b64_tr_b16 {k}[{b+2}:{b+3}], {addr} offset:{off+step}")]


def par13(t):
    return (t >> 1) & 1


def par2(pr, t):
    return (pr >> 1) if t < 3 else (t & 1) ^ 1


def split2(dst, src, t):
    return Seq()(f"""v_cvt_pk_bf16_f32 v{t}, v{src}, v{src}
         v_lshlrev_b32 v{t}, 16, v{t}
         v_sub_f32 v{t}, v{src}, v{t}
         v_cvt_pk_bf16_f32 v{dst}, v{src}, v{t}""")


cHB, cST, cHS, cHR, cCS, cW2, cHL, cOUT, cHS2 = [f"s{i}" for i in range(75, 84)]
cPP, cPQ, cPS, cPL, bTA, bTL, bK2, bQ2, bGP, bRP, bTX, cW2x, sGC, sMC = [f"s{i}" for i in (4, 5, 6, 7, 16, 17, 18, 19, 20, 21, 22, 23, 24, 25)]
W2A, W2B, LB1, LB2, WLA, WLB, WLC, WLD = [f"v{i}" for i in range(6, 14)]
CSL, HHA, HHB, HPA, LB0 = "v14", "v15", "v42", "v43", "v212"


class Gen:
    def __init__(self, opt):
        self.o = opt
        self.p = Seq()
        self.nl = 0
        self.nstamp = 0
        self.stamp_names = []

    def lab(self, s):
        self.nl += 1
        return f"L_{s}_{self.nl}"

    def stamp(self, name):
        if self.o.get('padat') == name:
            self.p("WAITALL lgkm\ns_memrealtime s[100:101]\nWAITALL lgkm")
        if self.o.get('seg0') == name:
            self.p("WAITALL lgkm\ns_memrealtime s[72:73]\nWAITALL lgkm\ns_mov_b32 s101, s72")
        if self.o.get('seg1') == name:
            self.p("WAITALL lgkm\ns_memrealtime s[72:73]\nWAITALL lgkm\ns_sub_u32 s101, s72, s101\ns_lshl_b32 s101, s101, 4\ns_add_u32 s100, s100, s101")
        if self.o.get('stamps', 3) == 3:
            return
        fine = str(self.o.get('fine', ''))
        if name[0].islower() and name[0] not in fine:
            return
        if fine and name[0].isupper() and name[0].lower() not in fine and name not in ('C_t6', 'B_sync1', 'C_sync2', 'D_drained', 'A_loop', 'A_v', 'A_q'):
            return
        p = self.p
        if self.o.get('nb'):
            if self.nstamp > 1:
                p(f"v_writelane_b32 v{STV}, s72, {self.nstamp-1}", cond=True)
            p("s_memrealtime s[72:73]" if self.o['stamps'] == 1 else "s_memtime s[72:73]", cond=True)
            if name == 'D_drained':
                p(f"s_waitcnt lgkmcnt(0)\nv_writelane_b32 v{STV}, s72, {self.nstamp}", cond=True)
            self.nstamp += 1
            self.stamp_names.append(name)
            return
        p("WAITALL lgkm")
        p("s_memrealtime s[72:73]" if self.o['stamps'] == 1 else "s_memtime s[72:73]")
        p("WAITALL lgkm")
        p(f"v_writelane_b32 v{STV}, s72, {self.nstamp}")
        self.nstamp += 1
        self.stamp_names.append(name)

    def sub(self, fn):
        save = self.p
        self.p = Seq()
        fn()
        r = list(self.p)
        self.p = save
        return r

    def xf(self, L, key='x'):
        x = self.o.get(key, '')
        out = []
        for i in L:
            if 'v' in x and i.kind in ('vload', 'dma') and not i.cond and 'dwordx4' in i.op:
                continue
            if 'e' in x and i.kind in ('valu', 'trans') and not i.cond and i.op.endswith(('f32', 'f32_e64')):
                continue
            if 'l' in x and i.kind == 'dsr':
                continue
            if 's' in x and i.kind == 'vstore' and 'store' in i.op and not i.cond:
                continue
            if 'b' in x and i.op == 's_barrier':
                continue
            if 'm' in x and i.kind == 'mfma' and i.passes < 8:
                continue
            out.append(i)
        return out

    def ool(self, branch, text):
        p = self.p
        L, R = self.lab("o"), self.lab("r")
        p(f"{branch} {L}")
        n = len(p)
        p(f"{L}:\n{text}\ns_branch {R}", cond=True)
        for i in p[n:]:
            i.ool = L
        p(f"{R}:")

    def spin(self, vt, vaddr, soff, mask, target, srd=WS, mode='wave0', sleep=0, field=None, wave=0):
        p = self.p
        Lp = self.lab("pl")
        addr = f"{vaddr}, {srd}, {soff} offen" if vaddr else f"off, {srd}, {soff}"
        ext = f"v_and_b32 v43, {field}, {vt}\n" if field is not None else ""
        vc = "v43" if field is not None else vt
        loop = f"""s_mov_b32 {sT5}, 0
             s_mov_b64 exec, {mask}
             {Lp}:
             {f's_sleep {sleep}' if sleep else ''}
             buffer_load_dword {vt}, {addr} sc1
             s_add_u32 {sT5}, {sT5}, 1
             s_waitcnt vmcnt(0)
             {ext}v_cmp_gt_u32 vcc, {target}, {vc}
             s_cmp_ge_u32 {sT5}, 0x8000
             s_cselect_b64 vcc, 0, vcc
             s_and_b64 exec, exec, vcc
             s_cbranch_scc1 {Lp}
             s_mov_b64 exec, -1"""
        if self.o.get('stamps') == 3:
            p(f"s_mov_b32 {sT5}, 0")
        if mode == 'check':
            p(f"{ext}v_cmp_gt_u32 vcc, {target}, {vc}\ns_and_b64 vcc, vcc, {mask}")
            self.ool("s_cbranch_scc1", loop)
        elif mode == 'wave0':
            Ld = self.lab("pd")
            p(f"s_cmp_lg_u32 {sW}, {wave}\ns_cbranch_scc1 {Ld}")
            p(loop, cond=True)
            p(f"{Ld}:")
        else:
            p(loop, cond=True)
            p("s_waitcnt vmcnt(0)")
        if self.o.get('stamps') == 3:
            p(f"v_writelane_b32 v{STV}, {sT5}, {self.nstamp}")
            self.nstamp += 1
            self.stamp_names.append(f"spin{self.nstamp}")

    def setup(self):
        p = self.p
        p(f"""s_cmp_ge_u32 s2, 256
             s_cbranch_scc1 L_end
             s_load_dwordx16 s[76:91], s[0:1], 0
             s_load_dwordx4 s[92:95], s[0:1], 64""")
        p("v_and_b32 v1, 63, v0\nv_lshrrev_b32 v4, 6, v0")
        p(f"v_readfirstlane_b32 {sW}, v4")
        p(f"""s_mov_b32 s6, 0x200000
             s_mov_b32 s7, 0x20000
             s_mov_b32 s10, 0x180000
             s_mov_b32 s11, 0x20000
             s_lshr_b32 {sU}, s2, 3
             s_and_b32 {sKC}, s2, 7
             s_and_b32 {sRQ}, {sU}, 3
             s_and_b32 {sG}, s2, 6
             s_lshl_b32 {sG}, {sG}, 1
             s_add_u32 {sG}, {sG}, {sRQ}
             s_lshr_b32 {sT1}, s2, 5
             s_and_b32 {sT2}, s2, 1
             s_lshl_b32 {sTA}, {sG}, 1
             s_add_u32 {sTA}, {sTA}, {sT2}
             s_lshl_b32 {sXL}, {sW}, 14
             s_lshl_b32 {sXB}, {sTA}, 16
             s_add_u32 {sXB}, {sXB}, {sXL}
             s_xor_b32 {sMA}, {sT1}, 4
             s_mul_i32 {sWB}, {sW}, {16*3072}
             s_lshl_b32 {sT0}, {sMA}, 7
             s_add_u32 {sWB}, {sWB}, {sT0}
             s_lshl_b32 {sWL}, {sW}, 11
             s_add_u32 {sC0}, {sT1}, {sKC}""")
        rot = self.o.get('rot', 6)
        if rot == 7:
            p(f"s_lshl_b32 {sT0}, {sU}, 2\ns_add_u32 {sC0}, {sC0}, {sT0}")
        if rot == 8:
            p(f"s_lshl_b32 {sT0}, {sRQ}, 1\ns_add_u32 {sC0}, {sC0}, {sT0}")
        if rot == 0:
            p(f"s_mov_b32 {sC0}, 0")
        if rot == 1:
            p(f"s_mov_b32 {sC0}, {sKC}")
        if rot == 9:
            p(f"s_lshl_b32 {sC0}, {sT1}, 1\ns_add_u32 {sC0}, {sC0}, {sKC}")
        p(f"""v_lshrrev_b32 v4, 3, v1
             v_and_b32 v5, 7, v1
             v_lshrrev_b32 v3, 4, v1
             v_xor_b32 v6, v5, v3
             v_lshlrev_b32 v6, 4, v6
             v_lshl_add_u32 v6, v4, 10, v6
             v_xor_b32 v7, 64, v6
             v_add_u32 v7, 7168, v7
             v_and_b32 v3, 1, v3
             v_lshlrev_b32 v3, 2, v3
             v_xor_b32 v5, v5, v3
             v_lshlrev_b32 v5, 4, v5
             v_mul_u32_u24 v8, 3072, v4
             v_add_u32 v8, v8, v5
             v_add_u32 v9, {8*3072-1024}, v8""")
        p("WAITALL lgkm")
        p("s_mov_b64 s[4:5], s[76:77]\ns_mov_b64 s[8:9], s[78:79]")

    def dmaW(self, t, c):
        base, po = ((KB, 1024), (VB, 2048), (0, 0))[t]
        tag = f"{'AVQ'[t]}{c}"
        S = Seq()
        S(f"s_add_u32 m0, {sWL}, {base + c*8192 - po}")
        S(f"buffer_load_dwordx4 v8, {WQKV}, s{75+c} offen offset:{po} lds", tag=tag)
        return ctx([list(S), [Inst(f"buffer_load_dwordx4 v9, {WQKV}, s{75+c} offen offset:{po+1024} lds", tag=tag)]])

    def dmaA(self, c):
        wc = f"s{75+c}"
        g = self.dmaW(0, c)
        g[0] = list(Seq()(f"""s_add_u32 {sT0}, {sC0}, {c}
             s_and_b32 {sT0}, {sT0}, 7
             s_mul_i32 {wc}, {sT0}, {64*3072}
             s_add_u32 {wc}, {wc}, {sWB}
             s_lshl_b32 {sT0}, {sT0}, 7""")) + g[0]
        nt = " nt" if self.o.get('xnt', 0) else ""
        S = Seq()
        S(f"s_add_u32 m0, {sWL}, {c*8192}\ns_add_u32 {sT0}, {sT0}, {sXB}")
        S(f"buffer_load_dwordx4 v6, {X}, {sT0} offen{nt} lds", tag=f"A{c}")
        g += [list(S), [Inst(f"buffer_load_dwordx4 v7, {X}, {sT0} offen offset:1024{nt} lds", tag=f"A{c}")]]
        return ctx(g)

    def dmaWO(self, q):
        S = Seq()
        S(f"""s_add_u32 {sT0}, {sA}, {q*65536}
             s_add_u32 m0, {sB}, {q*16384}
             s_and_b32 {sT0}, {sT0}, 0x7ffff""")
        g = []
        for k in range(4):
            S(f"buffer_load_dwordx4 v{WOD+k}, {WO}, {sT0} offen offset:{k*1024} lds", tag=f"WO{q>>2}")
            g.append(list(S))
            S = Seq()
        return ctx(g)

    def rload(self):
        nt = " nt" if self.o.get('rnt', 1) else ""
        g = []
        for k, (ad, srd, s0, s1) in enumerate(((RL1, W1, sKVL, sZL), (RL3, W3, sKVL, sZL), (RL2, W2, sPQL, sHST))):
            g.append(list(Seq()(f"s_add_u32 m0, {sSTA}, {k*2048}\nbuffer_load_dwordx4 {ad}, {srd}, {s0} offen{nt} lds")))
            g.append(list(Seq()(f"buffer_load_dwordx4 {ad}, {srd}, {s1} offen offset:1024{nt} lds", tag=f"RL{k}")))
            ctx(g[-2:])
        return g[4:] + g[:4]

    def miscA(self):
        M = Seq()
        a, b, c, d = "v208", "v209", "v210", "v211"
        M(f"""v_lshl_add_u32 {RL2}, v4, 10, v5
             v_mul_u32_u24 v4, 3584, v4
             v_add_u32 {RL1}, v4, v5
             v_xor_b32 {RL3}, 32, {RL1}
             v_mov_b32 v4, 1
             v_lshlrev_b32 {L4}, 2, v1
             s_mov_b32 {sLOG2E}, 0x3fb8aa3b
             s_mov_b32 {sMSKHI}, 0xffff0000
             s_mov_b32 {sEPS6}, 0x358637bd
             s_mov_b32 s62, 0
             s_mov_b32 s63, -1
             s_mov_b32 s64, 0xffff0000
             s_mov_b32 s65, 0xffff0000
             s_mov_b32 s96, 0x22222222
             s_mov_b32 s97, 0x22222222
             s_mov_b32 s98, 0x44444444
             s_mov_b32 s99, 0x44444444
             s_mov_b32 s70, 0x88888888
             s_mov_b32 s71, 0x88888888
             s_and_b32 {sM}, s2, 1
             s_lshl_b32 {sM}, {sM}, 3
             s_lshr_b32 {sT1}, s2, 5
             s_add_u32 {sM}, {sM}, {sT1}
             s_and_b32 {sCB}, {sM}, 3
             s_and_b32 {sT1}, {sW}, 1
             s_lshr_b32 {sT2}, {sW}, 1
             s_lshl_b32 {sMA}, {sMA}, 1
             s_add_u32 {sMA}, {sMA}, {sT2}
             s_lshl_b32 {sTA}, {sTA}, 1
             s_add_u32 {sTA}, {sTA}, {sT1}""")
        M(f"""v_and_b32 {a}, 31, v1
             v_lshrrev_b32 {b}, 5, v1
             v_bfe_u32 {c}, v1, 1, 3
             v_xor_b32 {c}, {b}, {c}
             v_lshlrev_b32 {c}, 4, {c}
             v_lshl_add_u32 {c}, {a}, 7, {c}
             s_lshl_b32 {sT3}, {sT1}, 12
             s_lshl_b32 {sT4}, {sW}, 5
             s_add_u32 {sT3}, {sT3}, {sT4}
             v_xor_b32 v10, {sT3}, {c}
             v_xor_b32 v11, 32, v10
             v_xor_b32 v12, 64, v10
             v_xor_b32 v13, 96, v10
             s_lshl_b32 {sT3}, {sCB}, 1
             s_add_u32 {sT3}, {sT3}, {sT2}
             s_sub_u32 {sT3}, {sT3}, {sC0}
             s_and_b32 {sT3}, {sT3}, 7
             s_lshl_b32 {sT3}, {sT3}, 1
             s_lshr_b32 {sT4}, s2, 7
             s_add_u32 {sT3}, {sT3}, {sT4}
             s_lshl_b32 {sT3}, {sT3}, 6
             s_add_u32 {sT3}, {sT3}, {sT1}
             s_lshl_b32 {sT3}, {sT3}, 6
             v_xor_b32 v14, {sT3}, {c}
             v_xor_b32 v15, 32, v14""")
        M(f"""s_lshl_b32 {sT3}, {sT2}, 8
             s_add_u32 {sT3}, {sT3}, {hex(XCH)}
             v_lshl_add_u32 {XCR}, {a}, 3, {sT3}
             s_lshl_b32 {sT3}, {sT1}, 2
             v_add_u32 {XCW}, {sT3}, {XCR}
             s_lshl_b32 {sT3}, {sW}, 9
             s_add_u32 {sT3}, {sT3}, {hex(XCH+2048)}
             v_lshl_add_u32 {STW}, v1, 3, {sT3}
             v_xor_b32 {STR}, 1024, {STW}
             v_lshlrev_b32 {KVW}, 4, {a}
             v_lshl_add_u32 {KVW}, {b}, 10, {KVW}
             s_add_u32 {sT3}, {sWL}, {hex(KVS)}
             v_add_u32 {KVW}, {sT3}, {KVW}
             s_lshl_b32 {sT3}, {sW}, 7
             s_add_u32 {sT3}, {sT3}, {hex(ZS)}
             v_lshl_add_u32 {ZW}, {a}, 2, {sT3}
             s_lshl_b32 {sT3}, {sT2}, 2
             s_add_u32 {sT3}, {sT3}, {sT1}
             s_lshl_b32 {sT4}, {sT3}, 10
             s_add_u32 {sT4}, {sT4}, {hex(KVS)}
             v_add_u32 {KVR}, {sT4}, {L4}
             s_lshl_b32 {sT4}, {sT3}, 6
             s_add_u32 {sT4}, {sT4}, {hex(ZS)}
             v_and_b32 {d}, 15, v1
             v_lshl_add_u32 {ZR}, {d}, 2, {sT4}
             v_lshrrev_b32 {d}, 4, v1
             v_lshl_add_u32 {ZAT}, {d}, 27, {L4}
             v_lshl_add_u32 {CSAT}, {b}, 27, {L4}
             v_lshrrev_b32 {LM8}, 3, v1
             v_lshlrev_b32 {LM8}, 27, {LM8}
             v_min_u32 {FA1}, 1, v1
             v_lshlrev_b32 {FA1}, 27, {FA1}
             s_lshl_b32 {sT3}, {sMA}, 1
             s_add_u32 {sT3}, {sT3}, {sT1}
             s_lshl_b32 {sKVA}, {sT3}, 10
             s_add_u32 {sKVA}, {sKVA}, {hex(KVM)}
             s_lshl_b32 {sZA}, {sT3}, 6
             s_add_u32 {sZA}, {sZA}, {hex(ZP)}
             s_lshl_b32 {sPQS}, {sTA}, 2
             s_lshr_b32 {sT3}, {sMA}, 2
             s_add_u32 {sPQS}, {sPQS}, {sT3}
             s_lshl_b32 {sPQS}, {sPQS}, 3
             s_and_b32 {sT3}, {sMA}, 3
             s_add_u32 {sPQS}, {sPQS}, {sT3}
             s_lshl_b32 {sPQS}, {sPQS}, 11
             s_add_u32 {sPQS}, {sPQS}, {hex(PQ)}
             s_lshl_b32 {sHS}, {sG}, 2
             s_add_u32 {sHS}, {sHS}, {sW}
             s_lshl_b32 {sHS}, {sHS}, 4
             s_add_u32 {sHS}, {sHS}, {sM}
             s_lshl_b32 {sHS}, {sHS}, 14
             s_add_u32 {sHS}, {sHS}, {hex(HH+4096)}""")
        M(f"""v_bfe_u32 {c}, v1, 2, 2
             v_lshlrev_b32 {a}, 10, {b}
             v_lshl_add_u32 {a}, {c}, 7, {a}
             v_bfe_u32 {c}, v1, 4, 1
             v_bfe_u32 {d}, v1, 3, 1
             v_lshl_add_u32 {d}, {d}, 1, {c}
             v_lshl_add_u32 {a}, {d}, 5, {a}
             v_and_b32 {d}, 1, v1
             v_lshl_add_u32 {RT2A}, {d}, 4, {a}
             v_bfe_u32 {d}, v1, 1, 1
             v_lshl_add_u32 {RT2A}, {d}, 3, {RT2A}
             v_and_b32 {d}, 3, v1
             v_lshl_add_u32 {a}, {d}, 3, {a}
             s_lshl_b32 {sT3}, {sT2}, 6
             s_add_u32 {sT3}, {sT3}, {sWL}
             s_add_u32 {sT4}, {sT3}, {hex(KB)}
             v_xor_b32 v{TRK}, {sT4}, {a}
             s_add_u32 {sT4}, {sT3}, {hex(VB)}
             v_xor_b32 v{TRP}, {sT4}, {RT2A}""")
        for j in range(1, 4):
            M(f"v_xor_b32 v{TRK+j}, {j*2048}, v{TRK}\nv_xor_b32 v{TRP+j}, {j*2048}, v{TRP}")
        M(f"""s_lshl_b32 {sT3}, {sW}, 5
             s_add_u32 {sT3}, {sT3}, {hex(RST)}
             v_xor_b32 {RT13}, {sT3}, {a if self.o.get('c16', 1) else RT2A}
             v_lshl_add_u32 {RT13}, {c}, 11, {RT13}
             s_mul_i32 {sSTA}, {sW}, 6144
             s_add_u32 {sSTA}, {sSTA}, {hex(RST)}
             v_add_u32 {RT2A}, {sSTA}, {a if self.o.get('d16', 1) else RT2A}
             v_xor_b32 {RT2B}, 64, {RT2A}""")
        M(f"""v_lshrrev_b32 {a}, 2, v1
             v_xor_b32 {a}, {a}, {c}
             v_and_b32 {a}, 1, {a}
             v_or_b32 {a}, {a}, {d}
             v_cmp_eq_u32 vcc, 0, {a}
             v_mov_b32 v20, 0x3f803f80
             v_mov_b32 v21, 0x3f803f80
             v_mov_b32 v22, 0x3f803f80
             v_mov_b32 v23, 0x3f803f80
             v_cndmask_b32 v16, 0, v20, vcc
             v_cndmask_b32 v17, 0, v20, vcc
             v_cndmask_b32 v18, 0, v20, vcc
             v_cndmask_b32 v19, 0, v20, vcc""")
        for r in (162, 163, 166, 167, 170, 171, 174, 175, 177, 178, 179):
            M(f"v_mov_b32 v{r}, 0")
        M(f"""v_lshrrev_b32 {a}, 4, v1
             v_bfe_u32 {c}, v1, 2, 2
             v_xor_b32 {c}, {c}, {a}
             v_lshlrev_b32 {c}, 6, {c}
             v_lshl_add_u32 {c}, {a}, 10, {c}
             v_lshl_add_u32 v{WOD}, {d}, 4, {c}
             v_add_u32 v{WOD+1}, 3072, v{WOD}
             v_add_u32 v{WOD+2}, 6144, v{WOD}
             v_add_u32 v{WOD+3}, 9216, v{WOD}
             s_lshl_b32 {sA}, {sRQ}, 17
             s_add_u32 {sA}, {sA}, {sXL}
             s_lshl_b32 {sT3}, {sCB}, 8
             s_add_u32 {sA}, {sA}, {sT3}""")
        M(f"""s_lshl_b32 {sT3}, {sKC}, 2
             s_add_u32 {sT3}, {sT3}, {sW}
             s_mul_i32 {sKVL}, {sT3}, {16*3584}
             s_lshl_b32 {sT3}, {sU}, 7
             s_add_u32 {sKVL}, {sKVL}, {sT3}
             s_lshl_b32 {sT2}, {sU}, 2
             s_add_u32 {sT2}, {sT2}, {sW}
             s_lshl_b32 {sPQL}, {sT2}, 14
             s_lshl_b32 {sT3}, {sKC}, 7
             s_add_u32 {sPQL}, {sPQL}, {sT3}
             s_add_u32 {sHST}, {sPQL}, 7168
             s_lshl_b32 {sRC}, {sT2}, 7
             s_add_u32 {sRC}, {sRC}, {hex(CS)}
             s_mul_i32 {sT3}, {sT2}, 9363
             s_lshr_b32 {sT3}, {sT3}, 16
             s_add_u32 {sT2}, {sT2}, {sT3}
             s_and_b32 {sT3}, {sKC}, 6
             s_add_u32 {sT3}, {sT3}, {sKC}
             s_lshl_b32 {sRW}, {sT2}, 4
             s_add_u32 {sRW}, {sRW}, {sT3}
             s_lshl_b32 {sRW}, {sRW}, 12
             s_add_u32 {sRW}, {sRW}, {hex(W13R)}
             s_andn2_b32 {sT3}, {sT2}, 3
             s_add_u32 {sT3}, {sT3}, {sT2}
             s_lshl_b32 {sR2}, {sKC}, 8
             s_add_u32 {sR2}, {sR2}, {sT3}
             s_lshl_b32 {sR2}, {sR2}, 11
             s_add_u32 {sR2}, {sR2}, {hex(W2R)}""")
        if self.o.get('grp', 1):
            m13 = sum((par13(t) ^ m) << (8 * m + t) for m in range(2) for t in range(8))
            m2 = sum(par2(pr, t) << (8 * pr + t) for pr in range(4) for t in range(8))
            M(f"""s_and_b32 {sT3}, {sT2}, 15
                 s_lshr_b32 {sT3}, {hex(m13)}, {sT3}
                 s_lshr_b32 {sT4}, {hex(m2)}, {sT2}
                 s_xor_b32 {sT4}, {sT4}, {sKC}""")
        else:
            M(f"s_lshr_b32 {sT3}, {sKC}, 1\ns_lshr_b32 {sT4}, {sT2}, 5")
        M(f"""s_and_b32 {sT3}, {sT3}, 1
             s_lshl_b32 {sT3}, {sT3}, 13
             s_add_u32 {sRW}, {sRW}, {sT3}
             s_and_b32 {sT4}, {sT4}, 1
             s_lshl_b32 {sT4}, {sT4}, 13
             s_add_u32 {sR2}, {sR2}, {sT4}
             s_cmp_ge_u32 s2, 224
             s_cselect_b32 {sRW}, {hex(OOB)}, {sRW}
             s_cselect_b32 {sR2}, {hex(OOB)}, {sR2}
             s_cselect_b32 {sRC}, {hex(OOB)}, {sRC}
             s_cselect_b32 {sKVL}, {hex(OOB)}, {sKVL}
             s_add_u32 {sZL}, {sKVL}, {8*3584-1024}
             s_and_b32 {sSIG}, {sU}, 15
             s_lshl_b32 {sSIG}, {sSIG}, 8
             s_add_u32 {sSIG}, {sSIG}, {hex(CNT)}
             s_cmp_eq_u32 {sW}, 0
             s_cselect_b32 {sSIG}, {sSIG}, {hex(OOB)}""")
        return M

    def miscB(self):
        M = Seq()
        a, b, c, d = "v208", "v209", "v210", "v211"
        M(f"""s_lshr_b32 {sTB}, {sM}, 2
             s_lshl_b32 {sT3}, {sG}, 2
             s_add_u32 {sTB}, {sTB}, {sT3}
             s_lshl_b32 {sT4}, {sRQ}, 1
             s_add_u32 {sT4}, {sT4}, {sW}
             s_and_b32 {sT4}, {sT4}, 7
             s_lshl_b32 {sKVL}, {sT4}, 12
             s_add_u32 {sKVL}, {sKVL}, {hex(KVM)}
             s_xor_b32 {bK2}, {sKVL}, 0x4000
             s_lshl_b32 {sT2}, {sTB}, 16
             s_and_b32 {sPQL}, {sT4}, 6
             s_add_u32 {sPQL}, {sPQL}, {sT4}
             s_lshl_b32 {sPQL}, {sPQL}, 12
             s_add_u32 {sPQL}, {sPQL}, {sT2}
             s_add_u32 {sPQL}, {sPQL}, {hex(PQ)}
             s_xor_b32 {sPQL}, {sPQL}, {sP1}
             s_xor_b32 {bQ2}, {sPQL}, 0x8000
             s_lshl_b32 {sT4}, {sT4}, 8
             s_mov_b32 {sZL}, {hex(ZP)}
             s_lshl_b32 {sHST}, {sCB}, 14
             s_add_u32 {sHST}, {sHST}, {sT2}
             s_add_u32 {sHST}, {sHST}, {sWL}
             s_add_u32 {sHST}, {sHST}, {hex(HB)}
             s_xor_b32 {sHST}, {sHST}, {sPE}
             s_lshl_b32 {sSTA}, {sTB}, 4
             s_add_u32 {sSTA}, {sSTA}, {sCB}
             s_lshl_b32 {sSTA}, {sSTA}, 14
             s_add_u32 {sSTA}, {sSTA}, {hex(HH+7168+768)}
             s_xor_b32 {sSTA}, {sSTA}, {sP2}
             s_lshl_b32 {sD}, {sTB}, 2
             s_add_u32 {sD}, {sD}, {sCB}
             s_lshl_b32 {sD}, {sD}, 16
             s_add_u32 {sD}, {sD}, {sXL}
             s_add_u32 {sD}, {sD}, {hex(HH+7168)}
             s_xor_b32 {sD}, {sD}, {sP2}
             v_lshrrev_b32 {b}, 5, v1
             v_and_b32 {a}, 31, v1
             v_lshlrev_b32 {ROWA}, 10, {a}
             v_lshl_add_u32 {ROWA}, {b}, 4, {ROWA}
             v_lshlrev_b32 v41, 3, {a}
             v_lshl_add_u32 v41, {b}, 10, v41
             v_xor_b32 v41, {sT4}, v41
             v_bfe_u32 {c}, v1, 2, 2
             v_and_b32 {a}, 1, v1
             v_lshlrev_b32 {a}, 4, {a}
             v_bfe_u32 {d}, v1, 1, 1
             v_lshl_add_u32 {a}, {d}, 3, {a}
             v_lshl_add_u32 {d}, {b}, 11, {a}
             v_lshl_add_u32 {d}, {c}, 8, {d}
             v_xor_b32 {c}, {sW}, {c}
             v_lshl_add_u32 {d}, {c}, 6, {d}
             v_bfe_u32 {c}, v1, 4, 1
             v_lshl_add_u32 {d}, {c}, 5, {d}""")
        for q in range(4):
            M(f"""s_xor_b32 {sT2}, {sW}, {q}
                 s_lshl_b32 {sT3}, {sT2}, 14
                 v_add_u32 v{WOT+q}, {sT3}, {d}
                 s_lshl_b32 {sT2}, {sT2}, 12
                 s_add_u32 {sT2}, {sT2}, 0x20000
                 v_add_u32 v{OAD+q}, {sT2}, {L16}""")
        M(f"""s_lshl_b32 {sT2}, {sW}, 12
             s_add_u32 {sT2}, {sT2}, {0x20000+16384+3072}
             v_add_u32 {ZBW}, {sT2}, {L4}
             v_xor_b32 {d}, 1, {c}
             v_lshlrev_b32 {d}, 5, {d}
             v_lshl_add_u32 {d}, {b}, 4, {d}
             v_add_u32 {ZBR}, {sT2}, {d}
             v_lshrrev_b32 {d}, 4, v1
             v_lshlrev_b32 {P256}, 8, v1
             v_lshl_add_u32 {P256}, {d}, 27, {P256}
             s_lshl_b32 {bTL}, {sW}, 13
             s_lshr_b32 {sT2}, {sTBL}, {sKC}
             s_and_b32 {sT2}, {sT2}, 0x2000
             s_lshl_b32 {bGP}, {sKC}, 14
             s_add_u32 {bGP}, {bGP}, {sT2}
             s_add_u32 {bGP}, {bGP}, {hex(CNT)}
             s_add_u32 {bRP}, {bGP}, 4096""")
        for k in range(8):
            M(f"v_lshlrev_b32 v{192+2*k}, 16, v{24+k}\nv_and_b32 v{193+2*k}, {sMSKHI}, v{24+k}")
        return M

    def phaseA(self):
        p = self.p
        o = self.o
        pre = o.get('pre', 0)
        if pre:
            nt = " nt" if o.get('xnt', 0) else ""
            p(f"""s_lshl_b32 {sT3}, {sMA}, 2
                 s_add_u32 {sT3}, {sT3}, {sW}
                 s_lshl_b32 {sT3}, {sT3}, 11
                 s_lshl_b32 {sT4}, {sTA}, 16
                 s_add_u32 {sT3}, {sT3}, {sT4}
                 s_lshl_b32 {sT4}, s2, 2
                 s_add_u32 {sT4}, {sT4}, {sW}
                 s_mul_i32 {sT4}, {sT4}, 1536
                 v_lshrrev_b32 v196, 2, v1
                 v_lshlrev_b32 v196, 7, v196
                 v_min_u32 v197, 1408, v196""")
            if pre & 1:
                p(f"buffer_load_dword v194, v196, {X}, {sT3} offen{nt}")
            if pre & 2:
                p(f"buffer_load_dword v195, v197, {WQKV}, {sT4} offen")
        p.extend(flat(self.dmaA(0)))
        p(f"v_lshlrev_b32 {L16}, 4, v1")
        if o.get('codepf', 1):
            p(f"""s_getpc_b64 s[70:71]
                 s_lshl_b32 {sT3}, {sU}, 2
                 s_add_u32 {sT3}, {sT3}, {sW}
                 s_lshl_b32 {sT4}, {sT3}, 8
                 v_lshrrev_b32 v200, 5, v1
                 v_lshl_add_u32 v200, v200, 7, {sT4}
                 v_min_u32 v200, CODE_PF_MAX, v200
                 global_load_dword v201, v200, s[70:71]""")
        tch = Seq()
        touch = o.get('touch', 7)
        tch(f"""s_lshl_b32 {sCc}, s2, 2
             s_add_u32 {sCc}, {sCc}, {sW}
             s_lshr_b32 {sT4}, {sCc}, 1
             s_mul_i32 {sT4}, {sT4}, 3072
             s_and_b32 {sT5}, {sCc}, 1
             s_lshl_b32 {sT5}, {sT5}, 11
             s_add_u32 {sT4}, {sT4}, {sT5}
             s_lshl_b32 {sCc}, {sCc}, 9
             v_lshrrev_b32 v202, 3, v1
             v_lshlrev_b32 v202, 7, v202
             v_lshrrev_b32 v42, 4, v1
             v_lshlrev_b32 v42, 7, v42""")
        if touch & 4:
            tch(f"""s_lshl_b32 {sT3}, {sU}, 2
                 s_add_u32 {sT3}, {sT3}, {sW}
                 s_mul_i32 {sT3}, {sT3}, {4*3072}
                 v_min_u32 v200, 11, v1
                 v_lshlrev_b32 v200, 10, v200
                 buffer_load_dword v198, v200, {WQKV}, {sT3} offen offset:384""")
        if touch & 1:
            tch(f"buffer_load_dword v203, v202, {WQKV}, {sT4} offen")
        tat = o.get('tat', -1)
        if tat == -2:
            p.extend(tch)
        d1 = self.dmaA(1)
        n1 = o.get('d1', 4)
        p.extend(flat(d1[:n1]))
        if tat == -1:
            p.extend(tch)
        for srd, src, sz in ((12, 80, 0x80000), (16, 84, 0x1C0000), (20, 86, 0x1C0000), (24, 88, 0x1C0000),
                             (28, 90, 0x200000), (36, 92, 256), (32, 94, WS_SIZE)):
            p(f"s_mov_b64 s[{srd}:{srd+1}], s[{src}:{src+1}]\ns_mov_b32 s{srd+2}, {hex(sz)}\ns_mov_b32 s{srd+3}, 0x20000")
        tlb = o.get('tlb', 0)
        if tlb:
            p(f"""v_min_u32 v194, 1, v1
                 v_lshlrev_b32 v194, 27, v194
                 s_lshl_b32 {sT3}, {sW}, 5
                 s_add_u32 {sT3}, {sT3}, {sU}
                 s_lshl_b32 {sT4}, {sT3}, 21
                 buffer_load_dword v195, v194, {WS}, {sT4} offen""")
            if tlb & 2:
                for k, srd in enumerate((OUT, W1, W3, W2, WO, DBG)):
                    p(f"""s_cmp_eq_u32 {sT3}, {24+k}
                         s_cselect_b32 {sT4}, 0, {hex(OOB)}
                         buffer_load_dword v{188+k}, v194, {srd}, {sT4} offen""")
        if o.get('wsoff'):
            p(f"s_add_u32 s32, s32, {o['wsoff'] << 20}\ns_addc_u32 s33, s33, 0")
        Lz = self.lab("z")
        p(f"""s_lshl_b32 {sB}, {sW}, 8
             s_add_u32 {sB}, {sB}, 224
             s_cmp_lt_u32 s2, {sB}
             s_cbranch_scc1 {Lz}""")
        padr = f"""s_sub_u32 {sT2}, s2, 224
             s_and_b32 {sT1}, {sU}, 1
             s_lshl_b32 {sT3}, {sT1}, 5
             s_add_u32 {sT3}, {sT3}, {sT2}
             s_lshl_b32 {sT3}, {sT3}, 8
             s_add_u32 {sT3}, {sT3}, {hex(PROBE)}
             s_xor_b32 {sT4}, {sT3}, 0x2000
             s_waitcnt lgkmcnt(0)
             s_buffer_load_dword {sT5}, {WS}, {sT3} glc
             s_buffer_load_dword {sT5}, {WS}, {sT4} glc"""
        p(f"""{padr.replace(sT5, sD)}
             v_mov_b32 v16, 0
             v_mov_b32 v17, 0
             v_mov_b32 v18, 0
             v_mov_b32 v19, 0
             v_lshrrev_b32 v20, 3, v1
             v_lshl_add_u32 v20, v20, 7, {L16}
             s_lshl_b32 {sT4}, {sT2}, 11
             s_lshl_b32 {sT3}, {sT2}, 12
             s_add_u32 {sT3}, {sT3}, {hex(CNT)}
             s_add_u32 {sT4}, {sT4}, {hex(KVM)}
             buffer_store_dwordx4 v[16:19], {L16}, {WS}, {sT4} offen sc1
             buffer_store_dwordx4 v[16:19], {L16}, {WS}, {sT4} offen offset:1024 sc1
             buffer_store_dwordx4 v[16:19], v20, {WS}, {sT3} offen sc1
             buffer_store_dwordx4 v[16:19], v20, {WS}, {sT3} offen offset:2048 sc1""", cond=True)
        p(f"{Lz}:")
        probe = f"""{padr}
             s_getreg_b32 {sT4}, hwreg(HW_REG_XCC_ID, 2, 1)
             s_waitcnt lgkmcnt(1)
             s_nop {o.get('pnop', 15)}
             s_getreg_b32 {sT2}, hwreg(HW_REG_IB_STS, 8, 4)
             s_waitcnt lgkmcnt(0)
             s_min_u32 {sT2}, {sT2}, 1
             s_xor_b32 {sT1}, {sT1}, {sT4}
             s_cmp_lg_u32 {sT1}, {sT2}
             s_cselect_b32 {sT2}, 64, 4096
             s_add_u32 {sT2}, {sT2}, 1
             s_add_u32 {sT5}, {sKC}, 18
             s_lshl_b32 {sT4}, {sT4}, {sT5}
             s_cmp_eq_u32 {sU}, 28
             s_cselect_b32 {sT4}, {sT4}, 0
             s_add_u32 {sT2}, {sT2}, {sT4}
             v_mov_b32 v46, {sT2}"""
        p.extend(self.miscA())
        if o.get('pat', 0) == 0:
            Lz = self.lab("z")
            p(f"s_cmp_lt_u32 s2, {sB}\ns_cbranch_scc1 {Lz}")
            p(probe, cond=True)
            p(f"{Lz}:")
            probe = ""
        if tat == 0:
            p.extend(tch)
        SEL, ONES = v(16, 4), v(20, 4)
        XS, XQ0, XQ1, CSA, ZA = 252, 248, 32, 36, 44
        AK, AV, AQ, RB, AKV = 48, 64, 80, 96, 112
        WR = 128
        XM, WP, RS_ = 160, 164, 176

        def wread(t, s, dst=None):
            n = t * 32 + s
            addr = (TRK, TRP, TRK)[t]
            return trpair(('v', WR + 4 * (n % 6) if dst is None else dst), f"v{addr+(s&3)}", (s >> 2) * 8192, 512)

        def wf(t, s):
            return v(WR + 4 * ((t * 32 + s) % 6), 4)

        def csm(f, first):
            return mf16(CSA, SEL, f, "0" if first else None)

        def cswrite(t):
            S = split2(41, CSA, 41)
            S(f"ds_write_b32 {XCW}, v41 offset:{t*512}", tag=f"x{t}")
            return list(S)

        def csget(t):
            return [Inst(f"ds_read_b64 {v(WP+4*t,2)}, {XCR} offset:{t*512}")]

        def xread(s):
            return [Inst(f"ds_read_b128 {a_(4*s,4)}, v{10+(s&3)} offset:{(s>>2)*8192}")]

        p.extend(flat(d1[n1:]))
        d2 = self.dmaA(2)
        n2_ = o.get('d2', 4)
        p.extend(flat(d2[:n2_]))
        self.stamp("A_issued")
        p("WAITTAG A0\ns_barrier")
        self.stamp("A_c0")
        p.extend(xread(0) + wread(0, 0) + xread(1) + wread(0, 1))
        p.extend(flat(d2[n2_:]))
        ad = o.get('ad', 4)
        nv1 = o.get('nv1', 14)
        vq = flat([self.dmaW(1, k) for k in range(8)])
        pend = self.dmaA(3) if ad == 4 else []
        for s in range(32):
            c, j = s >> 2, s & 3
            xf = a_(4 * s, 4)
            z = "0" if s == 0 else None
            p.append(mf32(AK, xf, wf(0, s), z))
            if j == 2 and c < 7:
                p(f"WAITTAG A{c+1}\ns_barrier")
                self.stamp(f"a{c+1}")
                assert not pend
                if c == 1:
                    p(f"s_cmp_ge_u32 s2, {sB}")
                    self.ool("s_cbranch_scc1", f"{probe}\nbuffer_atomic_add v46, {FA1}, {DBG}, 0 offen sc1")
                if c + 1 == tat:
                    p.extend(tch)
                if c + ad < 8:
                    pend = self.dmaA(c + ad)
                else:
                    pend, vq = vq[:4], vq[4:]
            if s == 30:
                p("WAITTAG V1\ns_barrier")
                k = max(0, nv1 - (16 - len(vq)))
                assert k <= 2
                pend, vq = vq[:k], vq[k:]
            if s + 2 < 32:
                p.extend(xread(s + 2) + wread(0, s + 2))
            else:
                p.extend(wread(1, s + 2 - 32))
            if s == 28:
                p("ds_read_b128 v[24:27], v14\nds_read_b128 v[28:31], v15", tag="xres")
            for _ in range(2 if s < 2 else 1):
                if pend:
                    p.extend(pend.pop(0))
            if j % 2 == 0:
                p.append(csm(wf(0, s), s == 0))
            if j < 2:
                p.append(mf16(XS, SEL, xf, z))
                p.append(mf4(XQ0, a_(4 * s, 2), a_(4 * s, 2), z))
                p.append(mf4(XQ1, a_(4 * s + 2, 2), a_(4 * s + 2, 2), z))
            if s == 30:
                for k in range(4):
                    p(f"v_add_f32 v{XQ0+k}, v{XQ0+k}, v{XQ1+k}")
                p(f"""v_cndmask_b32 v197, v{XQ0}, v{XQ0+1}, s[96:97]
                     v_cndmask_b32 v197, v197, v{XQ0+2}, s[98:99]
                     v_cndmask_b32 v197, v197, v{XQ0+3}, s[70:71]
                     v_mov_b32 v196, v197""")
            if s == 31:
                p(f"""v_permlane32_swap_b32 v196, v197
                     v_add_f32 v{XS+1}, v196, v197
                     ds_write_b64 {STW}, {v(XS,2)}""")
                p.extend(cswrite(0))
        assert not pend
        self.stamp("A_loop")
        CT = (204, 208, ZA)
        kb = o.get('kb', 9)

        def tilepass(t, acc, order):
            nm = "VQ"[t - 1]
            G = []
            for s in range(32):
                A_, B_ = (a_(4 * s, 4), wf(t, s)) if order == 0 else (wf(t, s), a_(4 * s, 4))
                g = Seq()
                g.append(mf32(acc, A_, B_, "0" if s == 0 else None))
                if t == 1 and s == 2:
                    g("WAITTAG x0 xres" + (" V3" if ad == 4 else "") + "\ns_barrier")
                    g(f"ds_read_b64 v[198:199], {STR}")
                    g.extend(csget(0))
                if t == 2 and o.get('fb', 0) & 2:
                    if s == 4:
                        g("WAITTAG Q3\ns_barrier")
                    if s == kb:
                        assert kb <= 12
                        g("WAITTAG kvp Q7\ns_barrier")
                elif t == 1 and o.get('fb', 0) & 1:
                    if s == 12:
                        g("WAITTAG V7\ns_barrier")
                elif s % 8 == 4 and s < 28 and ((t, s) != (1, 4) or ad != 4):
                    g(f"WAITTAG {nm}{(s+4)//4+1} kvp\ns_barrier")
                elif t == 2 and s == kb:
                    g("WAITTAG kvp\ns_barrier")
                if s == 28:
                    g(f"WAITTAG x{t}" + (" Q1" if t == 1 else "") + "\ns_barrier")
                    g.extend(csget(t))
                if t == 1 and s < 2:
                    g.extend(wread(t, 2 + 2 * s) + wread(t, 3 + 2 * s))
                elif s + 4 < 32:
                    g.extend(wread(t, s + 4))
                elif t == 1:
                    g.extend(wread(2, s + 4 - 32))
                if s in (20, 21, 22):
                    g.extend(wread(t, 26 + 2 * (s - 20), CT[s - 20]))
                if s % 2 == 0 and s < 26 and (t, s) != (1, 0):
                    g.append(csm(wf(t, s), (t, s) == (2, 0)))
                if (t, s) == (1, 1):
                    g.append(csm(wf(t, 0), True))
                if s in (23, 24, 25):
                    g.append(csm(v(CT[s - 23], 4), False))
                if s == 26:
                    g.extend(cswrite(t))
                G.append(list(g))
            return G

        def phi(acc, scale, T, dst):
            S = Seq()
            for h in range(2):
                r = range(8 * h, 8 * h + 8)
                for i in r:
                    S(f"v_fma_f32 v{acc+i}, v{acc+i}, {scale(i)}, {sEPS6}")
                for i in r:
                    S(f"v_mul_f32 v{T+(i&7)}, {sLOG2E}, v{acc+i}")
                for i in r:
                    S(f"v_exp_f32_e64 v{T+(i&7)}, v{T+(i&7)} clamp")
                    S(f"v_max_f32 v{acc+i}, {sEPS6}, v{acc+i}")
                for i in r:
                    S(f"v_add_f32 v{acc+i}, v{acc+i}, v{T+(i&7)}")
                for i in range(4 * h, 4 * h + 4):
                    S(f"v_cvt_pk_bf16_f32 v{dst+i}, v{acc+2*i}, v{acc+2*i+1}")
            return S
        E = Seq()
        E(f"""v_add_f32 v198, v198, v{XS}
             v_add_f32 v197, v199, v{XS+1}
             v_mul_f32 v199, 0x3b000000, v198
             v_mul_f32 v197, 0x3b000000, v197
             v_cvt_pk_bf16_f32 v198, -v199, -v199
             v_fma_f32 v197, -v199, v199, v197
             v_cndmask_b32 v{XM}, v198, 0, {sHILANES}
             v_cndmask_b32 v{XM+1}, v198, 0, {sHILANES}
             v_max_f32 v197, 0, v197
             v_add_f32 v197, 0x3727c5ac, v197
             v_rsq_f32 v40, v197""")
        E.append(mf32(AK, v(XM, 4), v(WP, 4)))
        E.extend(split2(RS_, 40, 198))
        E(f"v_cndmask_b32 v{RS_}, v{RS_}, 0, {sHILANES}")
        E.append(mf32(RB, v(RS_, 4), ONES, "0"))
        PK = phi(AK, lambda i: f"v{RB+i}", 196, 180)
        G = tilepass(1, AV, 0)
        v2e = o.get('v2e', 2)
        qq = flat([self.dmaW(2, k) for k in range(8)])
        nq2 = o.get('nq2', 16)
        G = weave(G, vq, 0, v2e)
        G = weave(G, qq[:nq2], max(3, v2e), o.get('q2end', 30))
        G[0] += [Inst(f"v_subrev_u32 v{TRK+j}, {hex(VB)}, v{TRP+j}") for j in range(4)]
        G[12] += [Inst(f"buffer_load_dword v5, {FA1}, {DBG}, 0 offen sc1")]
        n2 = o.get('pk2', 88)
        G = weave(G, list(E), 4, 8)
        G = weave(G, PK[:n2], 10, 32)
        for k in range(3, 31, 4):
            G[k] += self.sub(lambda: self.stamp(f"v{k}"))
        p.extend(flat(G))
        p.append(mf32(AV, v(XM, 4), v(WP + 4, 4)))
        self.stamp("A_v")
        if o.get('skew') is not None:
            p(f"""s_not_b32 s101, s100
                 v_mov_b32 v43, s101
                 buffer_atomic_umax v43, {FA1}, {DBG}, 0 offen offset:128 sc1
                 v_mov_b32 v41, s100
                 buffer_atomic_umax v41, {FA1}, {DBG}, 0 offen offset:192 sc1""")
        E = Seq()
        E.extend(PK[n2:])
        for i in range(16):
            E(f"v_mul_f32 v{AV+i}, v{AV+i}, v{RB+i}")
        for i in range(8):
            E(f"v_cvt_pk_bf16_f32 v{188+i}, v{AV+2*i}, v{AV+2*i+1}")
        G = tilepass(2, AQ, 1)
        rq = self.rload()
        if o.get('nor'):
            rq = []
        if touch & 2:
            rq = rq[:2] + [[Inst(f"buffer_load_dword v42, v42, {WO}, {sCc} offen")]] + rq[2:]
        e2 = o.get('e2', 0)
        R2T = trpair(('a', 144), RT2A, 4096, 512) + trpair(('a', 148), RT2B, 4096, 512)
        R2S = [Inst(f"buffer_store_dwordx4 a[144:147], {L16}, {WS}, {sR2} offen sc1", tag="pub1" if e2 else "pubR"),
               Inst(f"buffer_store_dwordx4 a[148:151], {L16}, {WS}, {sR2} offen offset:1024 sc1", tag="pub1" if e2 else "pubR")]
        if e2:
            G[e2] += [Inst("WAITTAG RL2")] + R2T
            G[e2 + 3] += R2S[:1]
            G[e2 + 5] += R2S[1:]
            R2T, R2S = [], []
        r0 = o.get('r0', 0)
        if nq2 < 16:
            G = weave(G, qq[nq2:], 0, r0)
        G = weave(G, rq, r0, o.get('r1', r0 + 7))
        if o.get('rwait'):
            G[o.get('r1', 7)] += list(Seq()("WAITALL vm")) + self.sub(lambda: self.stamp("A_rland"))
        woq = flat([self.dmaWO(q) for q in range(8)])
        nw3 = o.get('wo3', 0)
        G[13] += [Inst(f"s_lshl_b32 {sB}, {sW}, 12")]
        if nw3:
            G = weave(G, woq[:nw3], o.get('wo30', 26), 32)
        G = weave(G, list(E), 0, kb - 5)
        G[kb - 5] += [mf32(AKV, v(180, 4), v(188, 4), "0"), mf32(AKV, v(184, 4), v(192, 4)),
                 mf16(ZA, SEL, v(180, 4), "0"), mf16(ZA, SEL, v(184, 4))]
        G[kb - 4] += self.sub(lambda: self.spin("v5", None, "0", "1", "32", srd=DBG, mode='check', sleep=4, field=63))
        S = Seq()
        S(f"""v_readfirstlane_b32 {sT2}, v5
             s_bfe_u32 {sT3}, {sT2}, 0x60006
             s_bfe_u32 {sT4}, {sT2}, 0x6000c
             s_lshr_b32 {sT2}, {sT2}, 5""")
        S = [[i] for i in S] + [list(Seq()(f"""s_cmp_gt_u32 {sT4}, {sT3}
             s_cselect_b32 {sT3}, {'0, -1' if o.get('parx') else '-1, 0'}"""))]
        S += [[i] for i in Seq()(f"""s_xor_b32 {sTBL}, {sT2}, {sT3}
             s_lshr_b32 {sT2}, {sTBL}, {sKC}
             s_lshl_b32 {sT3}, {sG}, 10
             s_xor_b32 {sP1}, {sT2}, {sT3}
             s_and_b32 {sP1}, {sP1}, 0x2000
             s_xor_b32 {sPQS}, {sPQS}, {sP1}
             s_lshr_b32 {sPE}, {sTBL}, 3
             s_and_b32 {sPE}, {sPE}, 0x2000
             s_lshl_b32 {sT4}, {sG}, 12
             s_xor_b32 {sP2}, {sT3}, {sT4}
             s_and_b32 {sP2}, {sP2}, 0x2000
             s_xor_b32 {sP2}, {sP2}, {sPE}
             s_xor_b32 {sHS}, {sHS}, {sP2}
             v_mov_b32 v176, 0
             v_lshrrev_b32_e64 {P4K}, v1, {sTBL}
             v_and_b32 {P4K}, 0x2000, {P4K}
             v_lshl_add_u32 {P4K}, v1, 14, {P4K}
             v_or_b32 {P4K}, {P4K}, {LM8}""")]
        S += [[Inst(f"buffer_store_dwordx4 v[176:179], {L16}, {WS}, {sHS} offen offset:3072 sc1", tag="pub1")]]
        G = weave(G, S, 19, 31)
        S = Seq()
        for i in range(8):
            S(f"v_cndmask_b32 v{196+i}, v{AKV+i}, v{AKV+8+i}, {sB4LANES}")
        S(f"""ds_write_b128 {KVW}, v[196:199]
             ds_write_b128 {KVW}, v[200:203] offset:512""")
        S(f"ds_write_b32 {ZW}, v{ZA}", tag="kvp")
        G = weave(G, list(S), kb - 3, kb - 1)
        S = Seq()
        for k in range(4):
            S(f"ds_read2st64_b32 v[{112+2*k}:{113+2*k}], {KVR} offset0:{k} offset1:{k+8}")
        S(f"ds_read2_b32 v[120:121], {ZR} offset0:0 offset1:32")
        G = weave(G, list(S), kb, kb + 2)
        S = Seq()
        for k in range(5):
            S(f"v_add_f32 v{112+2*k}, v{112+2*k}, v{113+2*k}")
        for k in range(4):
            S(f"buffer_atomic_add_f32 v{112+2*k}, {L4}, {WS}, {sKVA} offen offset:{k*256}", tag="pub1")
        S(f"buffer_atomic_add_f32 v120, {ZAT}, {WS}, {sZA} offen", tag="pub1")
        G = weave(G, list(S), kb + 3, kb + 8)
        for k in range(3, 31, 4):
            G[k] += self.sub(lambda: self.stamp(f"v{k}"))
        p.extend(flat(G))
        p.append(mf32(AQ, v(WP + 8, 4), v(XM, 4)))
        self.stamp("A_q")
        woq = woq[nw3:]
        t1, t3, t2 = o.get('wot1', 0), o.get('wot3', 6), o.get('wot2', 2)
        assert nw3 + t1 == 0
        p.extend(flat(woq[:t1]))
        woq = woq[t1:]
        ph = phi(AQ, lambda i: "v40", 196, 180)
        h = len(ph) // 2
        p.extend(ph[:h])
        p(f"buffer_store_dwordx4 v[180:183], {L16}, {WS}, {sPQS} offen sc1", tag="pub1")
        p.extend(ph[h:])
        p(f"buffer_store_dwordx4 v[184:187], {L16}, {WS}, {sPQS} offen offset:1024 sc1", tag="pub1")
        self.stamp("A_pqst")
        p("s_barrier")
        MB = list(self.miscB()) + self.miscC()
        nb = o.get('mb1', 140)
        assert nb >= len(self.miscB())
        p.extend(flat(woq[:t3]))
        p("s_nop 0")
        p.extend(MB[:nb])
        p("s_nop 0")
        p.extend(flat(woq[t3:t3 + t2]))
        woq = woq[t3 + t2:]
        p("WAITTAG pub1\ns_barrier")
        p(f"buffer_atomic_add v4, {P4K}, {WS}, {sSIG} offen sc1")
        self.stamp("A_sig")
        for s in range(4):
            p.extend(trpair(('a', 128 + 4 * s), RT13, s * 6144, 512))
        p.extend(R2T)
        t4 = o.get('wot4', 16)
        assert t3 + t2 + t4 >= 16
        p.extend(flat(woq[:t4]))
        for s in range(4):
            p.append(mf16(RCS, SEL, a_(128 + 4 * s, 4), "0" if s == 0 else None))
            p(f"buffer_store_dwordx4 {a_(128+4*s,4)}, {L16}, {WS}, {sRW} offen offset:{s*1024} {o.get('rfl', 'sc1').replace('_', ' ')}", tag=f"pubR{s}")
        p.extend(R2S)
        p(f"buffer_atomic_add_f32 v{RCS}, {CSAT}, {WS}, {sRC} offen", tag="pubC")
        self.stamp("A_rst")
        p(f"s_add_u32 {sSIG}, {sSIG}, 4096")
        self.wo_rest = woq[t4:]
        self.mb_rest = MB[nb:]

    def dmaT(self, t, slot):
        g = []
        for h in range(2):
            S = Seq()
            S(f"s_add_u32 m0, {bTL}, {slot*32768+h*4096}\ns_add_u32 {sT0}, {bTX if self.o.get('grp', 1) and par13(t) else bTA}, {t*65536+h*4096}")
            for k in range(4):
                S(f"buffer_load_dwordx4 {L16}, {WS}, {sT0} offen offset:{k*1024} sc1 lds", tag=f"T{t}")
                g.append(list(S))
                S = Seq()
            ctx(g[-4:])
        return g

    def phaseB(self):
        p = self.p
        o = self.o
        AH = 192
        W = [trpair(('a', 4 * i), f"v{WOT+((i>>2)&3)}", (i & 3) * 4096, 1024) for i in range(32)]
        PQR = 224
        LD = [Inst(f"buffer_load_dwordx2 v[32:33], v41, {WS}, {sZL} offen sc1")]
        for q in range(4):
            for i in (2 * q, 2 * q + 1):
                LD.append(Inst(f"buffer_load_dwordx4 {v(48+4*i,4)}, {L16}, {WS}, {sKVL if i < 4 else bK2} offen offset:{(i&3)*1024} sc1"))
            for i in (2 * q, 2 * q + 1):
                LD.append(Inst(f"buffer_load_dwordx4 {a_(PQR+4*i,4)}, {L16}, {WS}, {sPQL if i < 4 else bQ2} offen offset:{(i&3)*1024} sc1"))
        ZB = Seq()(f"v_cvt_pk_bf16_f32 v32, v32, v33\nds_write_b32 {ZBW}, v32")
        for k in range(4):
            ZB(f"ds_read_b128 {v(96+4*k,4)}, {ZBR} offset:{k*64}")
        p("WAITTAG WO0\ns_barrier")
        self.stamp("B_wo")
        pm = o.get('pm', 0)
        pl = list(Seq()(f"""s_cmp_eq_u32 {sW}, 1
             s_cselect_b32 {bGP}, {bGP}, {hex(OOB)}
             s_cselect_b64 s[26:27], 0xffff, 0
             buffer_load_dword v5, {P256}, {WS}, {bGP} offen sc1"""))
        if pm == 2:
            p.extend(pl)
        p.extend(flat(W[:16]))
        if pm == 1:
            p.extend(pl)
        for q in range(4):
            p(f"v_add_u32 v{WOT+q}, 0x10000, v{WOT+q}")
        mb2 = o.get('mb2', 30)
        p.extend(self.mb_rest[:mb2])
        self.stamp("B_prepoll")
        if pm:
            self.spin("v5", P256, bGP, "s[26:27]", "16", sleep=o.get('sleep1', 1), mode='check')
        else:
            self.spin("v5", P256, bGP, "0xffff", "16", sleep=o.get('sleep1', 1), wave=o.get('pw', 1))
        if o.get('seg0'):
            p("WAITTAG WO1x pubR0")
            self.stamp("B_r0")
            p("WAITTAG pubR3")
            self.stamp("B_r3")
            p("WAITTAG pubR")
            self.stamp("B_r5")
        p("WAITTAG pubC")
        self.stamp("B_rack")
        p("WAITALL lgkm\ns_barrier")
        self.stamp("B_sync1")
        LD.insert(o.get('rsat', 0), Inst(f"buffer_atomic_add v4, {P4K}, {WS}, {sSIG} offen sc1"))
        nl0 = o.get('nl0', 14)
        p.extend(LD[:10] + [Inst('s_nop 0')] + self.mb_rest[mb2:] + ZB + LD[10:nl0])

        def prep(q):
            S = Seq()
            for k in range(4):
                S(f"v_cvt_pk_bf16_f32 v{80+4*q+k}, v{48+8*q+2*k}, v{48+8*q+2*k+1}")
            for k in range(4):
                S(f"v_cndmask_b32 v{112+8*q+k}, v{80+4*q+k}, v{96+4*q+k}, {sB4LANES}")
            for k in range(4):
                S(f"v_cndmask_b32 v{116+8*q+k}, v{96+4*q+k}, v{80+4*q+k}, {sB4LANES}")
            return S
        NA = [144, 160, 176]
        steps = [(pr + k, t) for pr in (0, 2) for t in range(3) for k in range(2)]
        d16 = o.get('d16', 1)
        steps += [(pr, t) for t in (3, 4, 5, 6) for pr in range(4)]
        w2o = [f"{cW2x if o.get('grp', 1) and par2(pr, t) else cW2}, {pr * 32768 + (t >> 2) * 16384 + (t & 3) * 2048}" for pr, t in steps]
        hho = [pr * 16384 + t * 1024 for pr, t in steps]
        w2l = []
        for i in range(16):
            S = Seq()
            if d16:
                ad = W2B if i & 1 else W2A
                if i % 2 == 0:
                    S(f"s_add_u32 {sKC}, {w2o[i]}")
                S(f"buffer_load_dwordx4 {a_(128+8*i,4)}, {ad}, {WS}, {sKC} offen sc1")
                w2l.append(list(S))
                w2l.append([Inst(f"buffer_load_dwordx4 {a_(132+8*i,4)}, {ad}, {WS}, {sKC} offen offset:256 sc1")])
                if i & 1:
                    ctx(w2l[-4:])
                continue
            S(f"s_add_u32 {sKC}, {w2o[i]}")
            S(f"buffer_load_dwordx4 {a_(128+8*i,4)}, {W2A}, {WS}, {sKC} offen sc1")
            w2l.append(list(S))
            w2l.append([Inst(f"buffer_load_dwordx4 {a_(132+8*i,4)}, {W2B}, {WS}, {sKC} offen sc1")])
            ctx(w2l[-2:])
        self.steps, self.w2o, self.hho = steps, w2o, hho
        nw1, nw2 = (o.get('nw1', 6), o.get('nw2', 6)) if o.get('e2', 0) else (0, 0)
        assert nw1 <= 24
        W1, W2_, w2l = w2l[:nw1], w2l[nw1:nw1 + nw2], w2l[nw1 + nw2:]
        self.n_w2rest = len(w2l)
        TQ = flat([self.dmaT(t, t) for t in range(2)]) + w2l
        n2, n3 = o.get('tq2', 6), o.get('tq3', 10)

        def num(i):
            return mf32(NA[i % 3], v(112 + 4 * i, 4), a_(PQR + 4 * i, 4), "0")

        def fin(i):
            n = NA[i % 3] + 8 * (i & 1)
            d = NA[i % 3] + 8 * (1 - (i & 1))
            S = Seq()
            S(f"v_add_f32 v{d}, {sEPS6}, v{d}\nv_rcp_f32 v{d}, v{d}")
            for k in range(8):
                S(f"v_mul_f32 v{n+k}, v{n+k}, v{d}")
            for k in range(4):
                S(f"v_cvt_pk_bf16_f32 v{48+4*i+k}, v{n+2*k}, v{n+2*k+1}")
            return S

        def owrite(i):
            return Inst(f"ds_write_b128 v{OAD}, {v(48+4*i,4)} offset:{(i>>2)*16384+(i&3)*1024}", tag=f"o{i}")

        OR = (16, 20, 36, 44, 208, 248)

        def oreg(k):
            return OR[k % 6] if k < 16 else 80 + 4 * (k & 7)

        def oread(k):
            return Inst(f"ds_read_b128 {v(oreg(k),4)}, v{OAD+((k>>2)&3)} offset:{(k>>4)*16384+(k&3)*1024}")

        def acc(k):
            own = (k & 12) == 0
            return mf32(AH, a_(4 * k, 4), v(48 + 4 * ((k >> 4) * 4 + (k & 3)) if own else oreg(k), 4))
        self.stamp("bz")
        p.extend(prep(0))
        self.stamp("bp")
        p.append(num(0))
        p.append(num(1))
        VM = [[x] for x in LD[nl0:]] + list(self.wo_rest)
        per = o.get('per', 3)
        rl, rc = o.get('rl', 7), o.get('rc', 8)
        kk = 4
        for i in range(8):
            if i + 2 < 8:
                if i % 2 == 0:
                    p.extend(prep(i // 2 + 1))
                p.append(num(i + 2))
            if i >= 1:
                p.append(owrite(i - 1))
            if i == 5:
                p("WAITTAG o3\ns_barrier")
                p.extend([oread(k) for k in range(4, 9)])
            for _ in range(per):
                if VM:
                    p.extend(VM.pop(0))
            if i == rl:
                p(f"buffer_load_dword v5, {P256}, {WS}, {bRP} offen sc1")
            if i >= 5:
                for _ in range(-(-nw1 // 3)):
                    if W1:
                        p.extend(W1.pop(0))
            F = fin(i)
            self.stamp(f"b{i}")
            if i < 5:
                p.extend(F[:7])
                if i >= 1:
                    p.append(acc(i - 1))
                p.extend(F[7:])
            else:
                cuts = (8, 14) if i == 5 else (2, 6, 10, 14)
                lo = 0
                for c in cuts:
                    p.extend(F[lo:c])
                    lo = c
                    p.append(acc(kk))
                    if kk + 5 < 16:
                        p.append(oread(kk + 5))
                    kk += 1
        p.append(owrite(7))
        assert not VM
        self.stamp("B_st1")
        p.append(acc(kk))
        p("WAITTAG WO1 o7\ns_barrier")
        for k in range(16, 20):
            p.extend(W[k])
        assert kk == 14
        G = [[acc(15)] + W[20] + [oread(20)]]
        for k in range(16, 32):
            g = [acc(k)]
            if k + 5 < 32:
                g += W[k + 5] + [oread(k + 5)]
            G.append(g)
        if rl >= 8:
            G[rl - 8] += [Inst(f"buffer_load_dword v5, {P256}, {WS}, {bRP} offen sc1")]
        G[rc] += self.sub(lambda: self.spin("v5", P256, bRP, "0xffff", "16", mode='check', sleep=2))
        G = weave(G, W2_, 0, rc)
        G = weave(G, TQ[:n2], rc + 1, 17)
        p.extend(flat(G))
        for k in range(8):
            p(f"v_cvt_pk_bf16_f32 v{48+k}, v{AH+2*k}, v{AH+2*k+1}")
            if k == 3:
                p(f"buffer_store_dwordx4 v[48:51], {L16}, {WS}, {sHST} offen sc1", tag="pub2")
        p(f"buffer_store_dwordx4 v[52:55], {L16}, {WS}, {sHST} offen offset:1024 sc1", tag="pub2")
        p(f"v_add_f32 v56, v{AH}, v{AH+1}\nv_mul_f32 v57, v{AH}, v{AH}\nv_add_f32 v58, v{AH+2}, v{AH+3}\nv_mul_f32 v59, v{AH+1}, v{AH+1}")
        for k in range(2, 16):
            if k >= 4:
                p(f"v_add_f32 v{56+2*(k&1)}, v{56+2*(k&1)}, v{AH+k}")
            p(f"v_fmac_f32 v{57+2*(k&1)}, v{AH+k}, v{AH+k}")
        p("""v_add_f32 v56, v56, v58
             v_add_f32 v57, v57, v59
             v_permlane32_swap_b32 v56, v57
             v_add_f32 v56, v56, v57""")
        p(f"buffer_atomic_add_f32 v56, {L4}, {WS}, {sSTA} offen", tag="pub2")
        self.stamp("B_hst")
        for t in range(7):
            p(f"buffer_load_dword v{160+t}, {CSL}, {WS}, {cCS} offen offset:{t*128} sc1")
        p.extend(flat(TQ[n2:n2 + n3]))
        p(f"WAITTAG pub2\nbuffer_store_dword v4, {FA1}, {WS}, {sD} offen offset:512 sc1\ns_barrier")
        self.t1_late = n2 < 16
        self.stamp("B_sig")
        self.tq_rest = TQ[n2 + n3:]

    def miscC(self):
        M = Seq()
        DL = "v45"
        if self.o.get('d16', 1):
            M(f"""v_bfe_u32 v46, v1, 4, 1
                 v_and_b32 {DL}, 0xf0, {L16}
                 v_lshl_add_u32 {DL}, v46, 9, {DL}
                 v_lshrrev_b32 v46, 5, v1""")
        else:
            M(f"v_mov_b32 {DL}, {L16}\nv_mov_b32 v46, 0")
        M(f"""s_bfe_i32 {sT1}, {sTBL}, 0x10010
             s_xor_b32 {sT1}, {sT1}, {sTBL}
             s_and_b32 {sT1}, {sT1}, 0xe000
             s_bcnt1_i32_b32 {sT1}, {sT1}
             s_sub_u32 {sT1}, {sKC}, {sT1}""")
        if self.o.get('cmap', 1):
            M(f"""s_and_b32 {sGC}, {sT1}, 4
                 s_lshl_b32 {sGC}, {sGC}, 1
                 s_and_b32 {sT2}, {sU}, 7
                 s_add_u32 {sGC}, {sGC}, {sT2}
                 s_and_b32 {sMC}, {sT1}, 3
                 s_lshl_b32 {sMC}, {sMC}, 2
                 s_lshr_b32 {sT2}, {sU}, 3
                 s_add_u32 {sMC}, {sMC}, {sT2}""")
        else:
            M(f"""s_and_b32 {sGC}, {sT1}, 6
                 s_lshl_b32 {sGC}, {sGC}, 1
                 s_add_u32 {sGC}, {sGC}, {sRQ}
                 s_and_b32 {sMC}, {sT1}, 1
                 s_lshl_b32 {sMC}, {sMC}, 3
                 s_lshr_b32 {sT2}, {sU}, 2
                 s_add_u32 {sMC}, {sMC}, {sT2}""")
        M(f"""s_lshl_b32 {sT1}, {sGC}, 10
             s_lshl_b32 {sT2}, {sGC}, 12
             s_xor_b32 {sP2}, {sT1}, {sT2}
             s_and_b32 {sP2}, {sP2}, 0x2000
             s_xor_b32 {sP2}, {sP2}, {sPE}
             s_lshl_b32 {bTA}, {sMC}, 19
             s_add_u32 {bTA}, {bTA}, {sXL}
             s_and_b32 {sT2}, {sMC if self.o.get('grp', 1) else sW}, 1
             s_lshl_b32 {sT2}, {sT2}, 13
             s_add_u32 {bTA}, {bTA}, {sT2}
             s_add_u32 {bTA}, {bTA}, {hex(W13R)}
             s_xor_b32 {bTX}, {bTA}, 0x2000""")
        M(f"""s_lshl_b32 {sT1}, {sGC}, 2
             s_add_u32 {sT2}, {sT1}, {sW}
             s_lshl_b32 {cHS2}, {sT2}, 4
             s_add_u32 {cHS2}, {cHS2}, {sMC}
             s_lshl_b32 {cHS2}, {cHS2}, 14
             s_add_u32 {cHS2}, {cHS2}, {hex(HH+4096)}
             s_xor_b32 {cHS2}, {cHS2}, {sP2}
             s_lshl_b32 {cHB}, {sT2}, 16
             s_add_u32 {cHB}, {cHB}, {hex(HB)}
             s_xor_b32 {cHB}, {cHB}, {sPE}
             s_sub_u32 {cHS}, {cHS2}, 4096
             s_lshl_b32 {sT3}, {sMC}, 14
             s_sub_u32 {cPL}, {cHS2}, {sT3}
             s_add_u32 {cPL}, {cPL}, {3072+512}
             s_add_u32 {cST}, {cPL}, 256
             v_lshlrev_b32 {HPA}, 14, v1
             v_and_b32 {PA2}, 12, {L4}
             v_or_b32 {PA2}, {PA2}, {LM8}
             v_bfe_u32 v44, v1, 2, 1
             v_lshl_add_u32 {PA2}, v44, 18, {PA2}
             s_mul_i32 {cCS}, {sMC}, {7*128}
             s_add_u32 {cCS}, {cCS}, {hex(CS)}
             s_and_b32 {sCB}, {sMC}, 7
             s_lshl_b32 {cW2}, {sCB}, 19
             s_lshl_b32 {sT3}, {sW}, 17
             s_add_u32 {cW2}, {cW2}, {sT3}
             s_and_b32 {sT3}, {sCB if self.o.get('grp', 1) else sW}, 1
             s_lshl_b32 {sT3}, {sT3}, 13
             s_add_u32 {cW2}, {cW2}, {sT3}
             s_add_u32 {cW2}, {cW2}, {hex(W2R)}
             s_xor_b32 {cW2x}, {cW2}, 0x2000
             s_and_b32 {sT3}, {sW}, 1
             s_lshl_b32 {sT2}, {sT3}, 10
             v_add_u32 {W2A}, {sT2}, {DL}
             v_xor_b32 {W2B}, 1024, {W2A}
             v_lshrrev_b32 v44, 4, v1
             v_lshl_add_u32 {LB0}, v44, {8 if self.o.get('c16', 1) else 31}, {L16}
             v_and_b32 {LB0}, 0xffff, {LB0}
             v_add_u32 {LB1}, 0x10000, {LB0}
             v_add_u32 {LB2}, 0x20000, {LB0}
             s_add_u32 {sT2}, {bTL}, 0x10000
             v_add_u32 {WLA}, {sT2}, {W2A}
             v_add_u32 {WLB}, {sT2}, {W2B}
             v_lshl_add_u32 {WLA}, v46, 11, {WLA}
             v_lshl_add_u32 {WLB}, v46, 11, {WLB}
             v_lshl_add_u32 {W2A}, v46, 15, {W2A}
             v_lshl_add_u32 {W2B}, v46, 15, {W2B}
             v_add_u32 {WLC}, 0x10000, {WLA}
             v_add_u32 {WLD}, 0x10000, {WLB}
             v_and_b32 {CSL}, 0x7c, {L4}
             s_lshr_b32 {sT2}, {sMC}, 3
             s_lshl_b32 {sT2}, {sT2}, 1
             s_add_u32 {sT1}, {sT1}, {sT2}
             s_lshl_b32 {cHL}, {sT1}, 18
             s_lshl_b32 {sT2}, {sW}, 16
             s_add_u32 {cHL}, {cHL}, {sT2}
             s_add_u32 {cHL}, {cHL}, {hex(HH)}
             s_xor_b32 {cHL}, {cHL}, {sP2}
             s_lshr_b32 {sT2}, {sW}, 1
             s_add_u32 {sT1}, {sT1}, {sT2}
             s_lshl_b32 {sT2}, {sT2}, 18
             v_add_u32 {HHA}, {sT2}, {DL}
             v_lshl_add_u32 {HHA}, v46, 14, {HHA}
             v_xor_b32 {HHB}, 0x40000, {HHA}
             s_lshl_b32 {sT1}, {sT1}, 15
             s_lshl_b32 {sT2}, {sCB}, 1
             s_add_u32 {sT2}, {sT2}, {sT3}
             s_lshl_b32 {cOUT}, {sT2}, 6
             s_add_u32 {cOUT}, {cOUT}, {sT1}
             s_lshr_b32 {cHR}, {sT2}, 2
             s_lshl_b32 {cHR}, {cHR}, 13
             s_add_u32 {cHR}, {cHR}, {sT1}
             s_and_b32 {sT2}, {sT2}, 3
             s_lshl_b32 {sT2}, {sT2}, 10
             s_add_u32 {cHR}, {cHR}, {sT2}
             s_lshl_b32 {cHR}, {cHR}, 1
             s_add_u32 {cHR}, {cHR}, {hex(HB)}
             s_xor_b32 {cHR}, {cHR}, {sPE}
             s_add_u32 {cPP}, {cHL}, 7168
             s_add_u32 {cPQ}, {cPP}, 0x40000
             s_and_b32 {sT3}, {sMC}, 3
             s_mul_i32 {sT3}, {sT3}, {16384-4}
             s_sub_u32 {cPS}, {cHS2}, {sT3}""")
        return list(M)

    def phaseCD(self):
        p = self.p
        o = self.o
        sub = self.sub
        bar = lambda s_: list(Seq()(s_))
        steps, w2o, hho = self.steps, self.w2o, self.hho

        def dmaW2(part):
            g = []
            for k in range(4):
                S = Seq()
                S(f"s_add_u32 m0, {bTL}, {(2+part)*32768+k*2048}\ns_add_u32 {sT0}, {w2o[16+4*part+k]}")
                S(f"buffer_load_dwordx4 {L16}, {WS}, {sT0} offen sc1 lds", tag=f"W2L{part}")
                g.append(list(S))
                g.append([Inst(f"buffer_load_dwordx4 {L16}, {WS}, {sT0} offen offset:1024 sc1 lds", tag=f"W2L{part}")])
                ctx(g[-2:])
            return g

        def pub(tag, st):
            if o.get('nopub'):
                return []
            return bar(f"WAITTAG {tag}\nbuffer_store_dword v4, {FA1}, {WS}, {cPS} offen offset:{3072+128*st} sc1")

        vp = str(o.get('vp', 'x0123'))

        def pollld(st):
            if o.get('nopoll'):
                return []
            if str(st) in vp:
                return bar(f"buffer_load_dword v5, {PA2}, {WS}, {cPP} offen sc1")
            return list(Seq()(f"""s_buffer_load_dwordx4 s[8:11], {WS}, {cPP} glc
                 s_buffer_load_dwordx4 s[12:15], {WS}, {cPQ} glc""", cond=True))

        def pollchk(st):
            if o.get('nopoll'):
                return []
            if str(st) in vp:
                return sub(lambda: self.spin("v5", PA2, cPP, "0xff", "1", mode='check', sleep=o.get('sleep2', 2))) + \
                    bar(f"s_add_u32 {cPP}, {cPP}, 128\ns_add_u32 {cPQ}, {cPQ}, 128")
            red = """s_and_b64 s[8:9], s[8:9], s[10:11]
                 s_and_b64 s[12:13], s[12:13], s[14:15]
                 s_and_b64 s[8:9], s[8:9], s[12:13]
                 s_and_b32 s8, s8, s9"""

            def f():
                Lp = self.lab("sp")
                if o.get('stamps') == 3:
                    self.p(f"s_mov_b32 {sT5}, 0")
                self.p("WAITALL lgkm\n" + red)
                self.ool("s_cbranch_scc0", f"""s_mov_b32 {sT5}, 0
                     {Lp}:
                     s_sleep {o.get('sleep2', 2)}
                     s_buffer_load_dwordx4 s[8:11], {WS}, {cPP} glc
                     s_buffer_load_dwordx4 s[12:15], {WS}, {cPQ} glc
                     s_add_u32 {sT5}, {sT5}, 1
                     s_waitcnt lgkmcnt(0)
                     {red}
                     s_lshr_b32 s9, {sT5}, 15
                     s_or_b32 s8, s8, s9
                     s_cbranch_scc0 {Lp}""")
                self.p(f"s_add_u32 {cPP}, {cPP}, 128\ns_add_u32 {cPQ}, {cPQ}, 128")
                if o.get('stamps') == 3:
                    self.p(f"v_writelane_b32 v{STV}, {sT5}, {self.nstamp}")
                    self.nstamp += 1
                    self.stamp_names.append(f"P{st}")
            return sub(f)

        kt = max(0, len(self.tq_rest) - self.n_w2rest)
        FQ = self.tq_rest[:kt] + self.dmaT(2, 2) + self.dmaT(3, 3) + self.dmaT(4, 4) + self.tq_rest[kt:]
        npre, npre2 = o.get('tq4', 12), o.get('tq5', 0)
        p.extend(flat(FQ[:npre]))
        FQ = FQ[npre:]
        c16 = o.get('c16', 1)
        CSR, CSF, MEANF, C1, C2 = 160, 168, 176, 180, 181
        CSU, CSG, MEANG = 213, 220, 228
        p("s_nop 0")
        for k in (1, 2, 3, 5, 6, 7, 9, 10, 11):
            p(f"v_mov_b32 v{CSF+k}, 0")
            if c16:
                p(f"v_mov_b32 v{CSG+k}, 0")
        for t in range(7):
            p.extend(split2(CSR + t, CSR + t, 184))
        if c16:
            for t in range(7):
                p(f"v_mov_b32 v{CSU+t}, v{CSR+t}")
            for t in range(7):
                p(f"v_permlane16_swap_b32 v{CSR+t}, v{CSU+t}")
            p(f"s_mov_b64 s[8:9], 0xffff\nv_mov_b32 v{CSG}, v{CSU}\nv_mov_b32 v{CSG+4}, v{CSU+1}")
        p(f"v_mov_b32 v{CSF}, v{CSR}\nv_mov_b32 v{CSF+4}, v{CSR+1}")
        p("s_nop 0")
        p.extend(flat(FQ[:npre2]))
        FQ = FQ[npre2:]
        self.stamp("C_prepoll")
        self.spin("v5", HPA, cPL, "0xffff", "1", mode='all', sleep=o.get('sleep3', 0))
        self.stamp("C_sync2")

        c16 = o.get('c16', 1)
        fo = (lambda s: (s >> 1) * 2048 + (s & 1) * 256) if c16 else (lambda s: s * 1024)

        def hload(s):
            S = Seq()
            if s % 4 == 0 and s:
                S(f"s_add_u32 {cHB}, {cHB}, {4096 if s % 8 else 12288}")
            S(f"buffer_load_dwordx4 {a_(4*s,4)}, {LB0}, {WS}, {cHB} offen offset:{fo(s&3)} sc1")
            return list(S)
        HL = o.get('hla', 10)
        for s in range(HL):
            p.extend(hload(s))
        if self.t1_late:
            p("WAITTAG T1\ns_barrier")
        ACC = [48, 64, 80, 96, 112]
        acc_of = [0, 1, 2, 3, 0, 1, 2]
        slot_of = [0, 1, 2, 3, 4, 0, 1]
        WR, NR = 128, 8
        CSR, CSF, MEANF, C1, C2 = 160, 168, 176, 180, 181
        T = 184
        LK = o.get('lk', 5)
        F0 = Seq()
        for k in range(4):
            F0(f"buffer_load_dword v{T+4+k}, {L4}, {WS}, {cST} offen sc1\ns_add_u32 {cST}, {cST}, 16384")
        F1 = Seq()
        F1(f"""v_add_f32 v{T}, v{T+4}, v{T+5}
             v_add_f32 v{T+1}, v{T+6}, v{T+7}
             v_add_f32 v{T}, v{T}, v{T+1}
             v_mov_b32 v{T+1}, v{T}
             v_permlane32_swap_b32 v{T}, v{T+1}
             v_mul_f32 v{T}, 0x3b000000, v{T}
             v_mul_f32 v{T+1}, 0x3b000000, v{T+1}
             v_cvt_pk_bf16_f32 v{MEANF}, -v{T}, -v{T}
             v_fma_f32 v{T+1}, -v{T}, v{T}, v{T+1}
             v_max_f32 v{T+1}, 0, v{T+1}
             v_add_f32 v{C2}, 0x3727c5ac, v{T+1}
             v_rsq_f32 v{C1}, v{C2}
             v_mul_f32 v{C1}, 0xbfb8aa3b, v{C1}""")
        if c16:
            prs = [(MEANF, MEANG), (C2, C2 + 2), (C1, C1 + 2)]
            for x, y in prs:
                F1(f"v_mov_b32 v{y}, v{x}")
            for x, y in prs:
                F1(f"v_permlane16_swap_b32 v{x}, v{y}")
            F1(f"""v_cndmask_b32 v{MEANF}, 0, v{MEANF}, s[8:9]
                 v_cndmask_b32 v{MEANG}, 0, v{MEANG}, s[8:9]""")
        else:
            F1(f"v_cndmask_b32 v{MEANF}, v{MEANF}, 0, {sHILANES}")

        def tread(t, s, n):
            sl = slot_of[t]
            base = (LB0, LB0, LB1, LB1, LB2)[sl]
            return [Inst(f"ds_read_b128 {v(WR+4*(n%NR),4)}, {base} offset:{(sl&1)*32768*(sl<4)+fo(s)}")]

        def corr(t):
            A = ACC[acc_of[t]]
            if c16:
                return [mf16(A + 8 * gu + 4 * th, v((CSF, CSG)[gu] + 4 * (t & 1), 4), v((MEANF, MEANG)[th], 4))
                        for gu, th in ((0, 0), (0, 1), (1, 1), (1, 0))]
            return [mf32(A, v(CSF + 4 * (t & 1), 4), v(MEANF, 4))]

        def cm(t, s, n):
            A, w = ACC[acc_of[t]], v(WR + 4 * (n % NR), 4)
            if not c16:
                return [mf32(A, w, a_(4 * s, 4), "0" if s == 0 else None)]
            gu = s & 1
            r = [mf16(A + 8 * gu + 4 * th, w, a_(8 * (s >> 1) + 4 * th, 4), "0" if s < 2 else None) for th in (gu, 1 - gu)]
            r[1].tag = "second"
            return r

        def spread(G):
            out = []
            for g in G:
                g = hoist(g)
                if len(g) > 1 and g[1].tag == "second":
                    m, rest, c, k = g[1], g[2:], 0, 0
                    m.tag = None
                    tot = sum(cost(x) for x in rest if not x.cond)
                    while k < len(rest) and c + cost(rest[k]) <= max(9.7, tot / 2 + 2.2) and not rest[k].cond \
                            and rest[k].kind not in ('branch', 'label') and not rest[k].op.startswith('v_cmp'):
                        c += cost(rest[k])
                        k += 1
                    g = [g[0]] + rest[:k] + [m] + rest[k:]
                out += g
            return out
        G = []
        for n in range(64):
            s, t = divmod(n, 2)
            g = cm(t, s, n)
            if n + LK < 64:
                g += tread((n + LK) % 2, (n + LK) // 2, n + LK)
            else:
                if n + LK == 64:
                    g += bar("WAITTAG T2\ns_barrier")
                g += tread(2, n + LK - 64, n + LK)
            if t == 0 and s + HL < 32:
                g += hload(s + HL)
            G.append(g)
        G.append(corr(0))
        G.append(corr(1))
        for n in range(LK):
            p.extend(tread(n % 2, n // 2, n))
        G = weave(G, list(F0), 1, o.get('f0', 20))
        G = weave(G, list(F1), o.get('f1', 40), 63)
        e0 = 2 * (32 - HL)
        ng = min(len(FQ), o.get('g1q', 8))
        G = weave(G, FQ[:ng], e0, 66)
        FQ = FQ[ng:]
        p.extend(spread(G))
        self.stamp("C_g1")

        def epi(t, tmp):
            A = ACC[acc_of[t]]
            S = Seq()
            for j in range(8):
                S(f"v_mul_f32 v{tmp+j}, v{A+j}, v{C1+2*c16*(j>>2)}")
            for j in range(8):
                S(f"v_exp_f32 v{tmp+j}, v{tmp+j}")
                S(f"v_mul_f32 v{A+j}, v{A+j}, v{A+8+j}")
            for j in range(8):
                S(f"v_fma_f32 v{tmp+j}, v{tmp+j}, v{C2+2*c16*(j>>2)}, v{C2+2*c16*(j>>2)}")
                if j >= 2:
                    S(f"v_rcp_f32 v{tmp+j-2}, v{tmp+j-2}")
            for j in range(8):
                S(f"v_mul_f32 v{A+j}, v{A+j}, v{tmp+j}")
                if j < 2:
                    S(f"v_rcp_f32 v{tmp+6+j}, v{tmp+6+j}")
            for j in (0, 2, 1, 3):
                S(f"v_cvt_pk_bf16_f32 v{tmp+8+j}, v{A+2*j}, v{A+2*j+1}")
            if c16:
                S(f"v_permlane16_swap_b32 v{tmp+8}, v{tmp+10}\nv_permlane16_swap_b32 v{tmp+9}, v{tmp+11}")
            S(f"buffer_store_dwordx4 {v(tmp+8,4)}, {L16}, {WS}, {cHS if t < 4 else cHS2} offen offset:{(t&3)*1024} sc1", tag=f"hh{t}")
            return list(S)

        def tilepass(t, n0):
            G = []
            for s in range(32):
                n = n0 + s
                g = cm(t, s, n)
                if s + LK < 32:
                    g += tread(t, s + LK, n + LK)
                elif t < 6:
                    if s + LK == 32:
                        g += bar(f"WAITTAG T{t+1}\ns_barrier")
                    g += tread(t + 1, s + LK - 32, n + LK)
                if s == 16:
                    g += bar(f"v_mov_b32 v{CSF+4*(t&1)}, v{CSR+t}")
                if s == 17 and c16:
                    g += bar(f"v_mov_b32 v{CSG+4*(t&1)}, v{CSU+t}")
                G.append(g)
            G.append(corr(t))
            return G

        d16 = o.get('d16', 1)

        def hhload(i):
            S = Seq()
            if d16:
                ad = HHB if i & 1 else HHA
                S(f"s_add_u32 {sCc}, {cHL}, {hho[i & ~1]}")
                S(f"buffer_load_dwordx4 {a_(8*(i&15),4)}, {ad}, {WS}, {sCc} offen sc1")
                return ctx([list(S), [Inst(f"buffer_load_dwordx4 {a_(8*(i&15)+4,4)}, {ad}, {WS}, {sCc} offen offset:256 sc1")]])
            S(f"s_add_u32 {sCc}, {cHL}, {hho[i]}")
            S(f"buffer_load_dwordx4 {a_(8*(i&15),4)}, {HHA}, {WS}, {sCc} offen sc1")
            return ctx([list(S), [Inst(f"buffer_load_dwordx4 {a_(8*(i&15)+4,4)}, {HHB}, {WS}, {sCc} offen sc1")]])

        EP = [epi(t, T + 12 * (t & 1)) for t in range(7)]
        P = {t: tilepass(t, 32 * t) for t in range(2, 7)}
        q = o.get('cq', 18)
        ee = o.get('ee', 20)
        LA = o.get('dla', 7)
        G = weave(P[2], FQ[:q], 0, 32)
        FQ = self.dmaT(5, 0) + FQ[q:]
        FQ = FQ[:q] + self.dmaT(6, 1) + FQ[q:] + dmaW2(0) + dmaW2(1) + dmaW2(2)
        G = weave(G, EP[0] + EP[1][:26], 2, 33)
        p.extend(self.xf(spread(G)))
        self.stamp("C_t2")
        q3 = min(q, len(FQ) - 24)
        G = weave(P[3], FQ[:q3], 0, 32)
        FQ = FQ[q3:]
        G = weave(G, EP[1][26:] + EP[2], 0, 33)
        p.extend(self.xf(spread(G)))
        self.stamp("C_t3")
        q4 = min(q, len(FQ) - 16)
        G = weave(P[4], FQ[:q4], 0, 32)
        FQ = FQ[q4:]
        G = weave(G, EP[3], 2, ee)
        G[o.get('p1at', 26)] += pub("hh2", 0)
        p.extend(self.xf(spread(G)))
        self.stamp("C_t4")
        q5 = min(q, len(FQ) - 8)
        G = weave(P[5], FQ[:q5], 0, 32)
        FQ = FQ[q5:]
        G[o.get('l1', 14)] += pollld(0)
        G[1] += bar(f"buffer_load_dwordx4 v[24:27], {L16}, {WS}, {cHR} offen sc1")
        G[3] += bar(f"buffer_load_dwordx4 v[28:31], {L16}, {WS}, {cHR} offen offset:1024 sc1")
        G = weave(G, EP[4], 2, ee)
        p.extend(self.xf(spread(G)))
        self.stamp("C_t5")
        G = P[6]
        c1 = o.get('c1', 1)
        n6 = min(o.get('n6', 0), len(FQ))
        if n6:
            G = weave(G, FQ[:n6], 0, max(c1, 1))
            FQ = FQ[n6:]
        G[c1] += pollchk(0)
        hq = [x for i in range(LA) for x in hhload(i)]
        G = weave(G, hq, c1 + 1, 33)
        S = Seq()
        if d16:
            for i in (24, 25, 28, 29):
                S(f"v_permlane16_swap_b32 v{i}, v{i+2}")
        for i in range(8):
            S(f"v_lshlrev_b32 v{48+2*i}, 16, v{24+i}\nv_and_b32 v{49+2*i}, {sMSKHI}, v{24+i}")
        for k in range(4):
            S(f"""s_xor_b32 {sT1}, {sW}, {k}
                 s_mul_i32 {sT1}, {sT1}, 12288
                 v_add_u32 v{36+k}, {sT1}, {L16}""")
        G = weave(G, list(S), ee + 1, 33)
        G = weave(G, EP[5], 2, ee)
        G[o.get('p2at', 12)] += pub("hh4", 1)
        p.extend(self.xf(spread(G)))
        self.stamp("C_t6")

        DA = [48, 64, 96, 112]

        def w2r(i, a):
            return (128, 168, 128)[(i - 16) // 4] + 8 * (i % 4) + 4 * a

        def w2read(i):
            part, k = divmod(i - 16, 4)
            r = bar(f"WAITTAG W2L{part}") if k == 0 else []
            for a in range(2):
                ad = ((WLA, WLB), (WLA, WLB), (WLC, WLD))[part][k & 1 if d16 else a]
                r.append(Inst(f"ds_read_b128 {v(w2r(i, a), 4)}, {ad} offset:{(part&1)*32768 + ((k&2)*2048 + a*256 if d16 else k*2048)}"))
            return r

        def w2f(i, a):
            return a_(128 + 8 * i + 4 * a, 4) if i < 16 else v(w2r(i, a), 4)

        def dm(i, k):
            a, b = k & 1, k >> 1
            if d16:
                j, ch = i & ~1, i & 1
                r = [mf16(DA[k] + 8 * ch + 4 * th, w2f(j + a, ch), a_(8 * ((j + b) & 15) + 4 * th, 4), "0" if j == 0 and k else None)
                     for th in (ch, 1 - ch)]
                r[1].tag = "second"
                return r
            return [mf32(DA[k], w2f(i, a), a_(8 * (i & 15) + 4 * b, 4), "0" if i == 0 and k else None)]
        nl = o.get('nl', 4)
        if d16:
            assert nl % 2 == 0
            G = [dm(j + ch, k) for j in range(0, 28 - nl, 2) for k in (0, 1, 3, 2) for ch in range(2)]
        else:
            G = [dm(i, k) for i in range(28 - nl) for k in (1, 3, 2, 0)]
        G += [dm(i, k) for k in (1, 3, 2, 0) for i in range(28 - nl, 28)]
        for i in range(16, 28):
            G[min(4 * i - 7 - 2 * d16 * (i & 1), 4 * (28 - nl) - 8 + (i - (28 - nl)))] += w2read(i)
        c2, c3, c4 = o.get('c2', 22), o.get('c3', 54), o.get('c4', 76)
        l2, l3, l4 = o.get('l2', 6), o.get('l3', 37), o.get('l4', 62)
        G[l2] += pollld(1)
        G = weave(G, EP[6], 1, o.get('e6', 11))
        G[o.get('p3at', 12)] += pub("hh5", 2)
        G[l3] += pollld(2)
        G[o.get('p4at', 38)] += pub("hh6", 3)
        G[o.get('dbar', 40)] += bar("s_barrier")
        hs = lambda a, b: [x for i in range(a, b) for x in hhload(i)]
        G = weave(G, hs(LA, 12), 0, c2)
        G[c2] += pollchk(1)
        nf = max(0, len(FQ) - o.get('nf', 8))
        G = weave(G, hs(12, 16) + FQ[:nf] + hs(16, 20), c2 + 1, c3)
        G[c3] += pollchk(2)
        G = weave(G, hs(20, 24), c3 + 1, l4)
        G[l4] += pollld(3)
        G = weave(G, FQ[nf:], l4 + 1, c4)
        G[c4] += pollchk(3)
        G = weave(G, hs(24, 28), c4 + 1, c4 + o.get('h4', 9))
        WRT = [[Inst(f"ds_write_b128 v{36+k}, {v(DA[k]+4*q_,4)} offset:{(k-1)*4096+q_*1024}") for q_ in range(4)] for k in (1, 3, 2)]
        if nl >= 2:
            for n in range(3):
                G = weave(G, WRT[n], 112 - (3 - n) * nl + 1, 112 - (2 - n) * nl + (1 if n < 2 else 0))
        else:
            G[111] += flat(WRT)
        for k in sorted(set(list(range(8, 112, 8)) + [c2 - 1, c2, c3 - 1, c3, c4 - 1, c4])):
            G[k] += sub(lambda: self.stamp(f"d{k}"))
        p.extend(self.xf(spread(G)))
        self.stamp("D_loop")
        p("WAITALL lgkm\ns_barrier")
        for q_ in range(4):
            for k in range(3):
                p(f"ds_read_b128 {v(160+16*k+4*q_,4)}, v36 offset:{k*4096+q_*1024}")
        for q_ in range(4):
            for j in range(2):
                r = 4 * q_ + 2 * j
                p(f"v_pk_add_f32 {v(48+r,2)}, {v(48+r,2)}, {v(160+r,2)}")
                p(f"v_pk_add_f32 {v(176+r,2)}, {v(176+r,2)}, {v(192+r,2)}")
            for j in range(2):
                r = 4 * q_ + 2 * j
                p(f"v_pk_add_f32 {v(48+r,2)}, {v(48+r,2)}, {v(176+r,2)}")
            for j in range(2):
                p(f"v_cvt_pk_bf16_f32 v{112+2*q_+j}, v{48+4*q_+2*j}, v{48+4*q_+2*j+1}")
            if q_ & 1 and d16:
                p(f"v_permlane16_swap_b32 v{110+2*q_}, v{112+2*q_}\nv_permlane16_swap_b32 v{111+2*q_}, v{113+2*q_}")
            if q_ & 1:
                p(f"buffer_store_dwordx4 {v(112+4*(q_>>1),4)}, {ROWA}, {OUT}, {cOUT} offen offset:{32*(q_>>1)}" + ["", " sc1", " nt", " sc0 sc1"][o.get('outst', 0)])
        self.stamp("D_end")

    def finish(self):
        p = self.p
        if self.o.get('stamps'):
            p("WAITALL vm")
            self.stamp("D_drained")
            p(f"""s_lshl_b32 {sT0}, s2, 2
                 s_add_u32 {sT0}, {sT0}, {sW}
                 s_lshl_b32 {sT0}, {sT0}, 7
                 s_add_u32 {sT0}, {sT0}, {hex(STAMP)}
                 s_mov_b32 exec_hi, 0
                 buffer_store_dword v{STV}, {L4}, {WS}, {sT0} offen""")
        if self.o.get('padto'):
            p("WAITALL vm")
            if self.o.get('skew') is not None:
                p(f"""buffer_load_dword v43, off, {DBG}, 0 offset:128 sc1
                     buffer_load_dword v41, off, {DBG}, 0 offset:192 sc1
                     v_not_b32 v43, v43
                     v_readfirstlane_b32 s72, v43
                     v_readfirstlane_b32 s73, v41""")
                if self.o['skew'] < 0:
                    p("s_sub_u32 s101, s73, s72")
                else:
                    p("s_sub_u32 s101, s100, s72")
                p(f"""s_min_u32 s101, s101, 2000
                     s_lshl_b32 s101, s101, 3
                     s_add_u32 s100, s72, s101
                     s_lshl_b32 s72, s2, 2
                     s_add_u32 s72, s72, {sW}
                     s_cmp_lg_u32 s72, {max(self.o['skew'], 0) * 4}
                     s_cbranch_scc1 L_end""")
            if self.o.get('mx'):
                p(f"""s_lshl_b32 s72, s101, 8
                     s_add_u32 s72, s72, s2
                     v_mov_b32 v41, s72
                     s_cmp_eq_u32 {sW}, 0
                     s_cselect_b32 s73, 0, {hex(OOB)}
                     buffer_atomic_umax v41, {FA1}, {DBG}, s73 offen offset:192 sc1
                     s_waitcnt vmcnt(0)
                     L_pad0:
                     s_memrealtime s[72:73]
                     s_waitcnt lgkmcnt(0)
                     s_sub_u32 s72, s72, s100
                     s_cmp_lt_i32 s72, {self.o['padto']-200}
                     s_cbranch_scc1 L_pad0
                     buffer_load_dword v41, off, {DBG}, 0 offset:192 sc1
                     v_readfirstlane_b32 s72, v41""")
                if self.o['mx'] == 1:
                    p("s_lshl_b32 s101, s101, 8\ns_sub_u32 s101, s72, s101\ns_lshr_b32 s101, s101, 8\ns_min_u32 s101, s101, 1000\ns_lshl_b32 s101, s101, 4")
                elif self.o['mx'] == 2:
                    p("s_bfe_u32 s101, s72, 0x50003\ns_mul_i32 s101, s101, 200")
                else:
                    p("s_and_b32 s101, s72, 7\ns_mul_i32 s101, s101, 500")
                p("s_add_u32 s100, s100, s101")
            if self.o.get('seg0'):
                p(f"s_lshl_b32 s72, s2, 2\ns_add_u32 s72, s72, {sW}\ns_cmp_lg_u32 s72, {self.o.get('segw', 150)}\ns_cbranch_scc1 L_end")
            p("L_pad:\ns_memrealtime s[72:73]\ns_waitcnt lgkmcnt(0)\ns_sub_u32 s72, s72, s100")
            p(f"s_cmp_lt_i32 s72, {self.o['padto']}\ns_cbranch_scc1 L_pad")
        p("L_end:\ns_endpgm")

    def build(self):
        if self.o.get('stamps') or self.o.get('padto'):
            self.p("s_memtime s[100:101]" if self.o.get('stamps') == 2 else "s_memrealtime s[100:101]")
        self.setup()
        if self.o.get('seg0') == 'start':
            self.p("s_mov_b32 s101, s100")
        if self.o.get('stamps'):
            self.p(f"v_mov_b32 v{STV}, s100")
            self.nstamp = 1
            self.stamp_names.append("start")
        self.p.extend(self.xf(self.sub(self.phaseA), 'xa'))
        self.p.extend(self.xf(self.sub(self.phaseB), 'xb'))
        self.phaseCD()
        self.finish()
        sk = str(self.o.get('skel', ''))
        if sk:
            Q = Seq()
            for i in self.p:
                if 'm' in sk and i.kind == 'mfma':
                    r = sorted(i.srcab)
                    for x in (r[0], r[-1]):
                        Q(f"v_accvgpr_read_b32 v40, {x}" if x[0] == 'a' else f"v_mov_b32 v40, {x}")
                    continue
                if 'e' in sk and i.kind in ('valu', 'trans') and not i.cond and i.op.endswith(('f32', 'f32_e64')):
                    continue
                if 'v' in sk and i.kind in ('vload', 'dma') and not i.cond and 'dwordx4' in i.op:
                    continue
                if 's' in sk and i.kind == 'vstore' and not i.cond and (i.wide or 'f32' in i.op) and 'v[176:179]' not in i.text:
                    continue
                Q.append(i)
            self.p = Q
        ns = str(self.o.get('nosc', ''))
        for i in self.p:
            if i.kind in ('vload', 'dma') and 'dwordx' in i.op and not i.cond:
                for ch, regs in (('k', (sKVL, bK2, sZL)), ('q', (sPQL, bQ2)), ('h', (cHB,)), ('t', (sT0, sKC)), ('d', (sCc,))):
                    if ch in ns and any(f"{WS}, {r} " in i.text for r in regs):
                        i.text = i.text.replace(" sc1", "")
        import dsl
        dsl.MERGE = self.o.get('mg', 1)
        return finalize(self.p, self.o.get('fill', 1))


def emit(opt):
    g = Gen(opt)
    prog = g.build()
    hdr = open(os.path.join(os.path.dirname(os.path.abspath(__file__)), "header.txt")).read()
    body = "\n".join(("" if i.kind == 'label' else "    ") + i.text for i in prog)
    txt = hdr + f"""; @launch grid=(256,1,1) block=(256,1,1) lds=163840
.amdgcn_target "amdgcn-amd-amdhsa--gfx950"
.set CODE_PF_MAX, {opt.get('code_bytes', 0)}
.text
.globl {NAME}_kernel
.p2align 8
.type {NAME}_kernel,@function
{NAME}_kernel:
{body}
.section .rodata,"a"
.p2align 6
.amdhsa_kernel {NAME}_kernel
  .amdhsa_next_free_vgpr 512
  .amdhsa_next_free_sgpr 102
  .amdhsa_accum_offset 256
  .amdhsa_group_segment_fixed_size 0
  .amdhsa_kernarg_size 80
  .amdhsa_user_sgpr_count 2
  .amdhsa_user_sgpr_kernarg_segment_ptr 1
  .amdhsa_system_sgpr_workgroup_id_x 1
.end_amdhsa_kernel
"""
    return txt, g.stamp_names


def code_size(txt):
    import subprocess, tempfile
    with tempfile.TemporaryDirectory() as d:
        open(d + "/k.s", "w").write(txt)
        r = subprocess.run(["clang", "-x", "assembler", "-target", "amdgcn-amd-amdhsa",
                            "-mcpu=gfx950", "-c", d + "/k.s", "-o", d + "/k.o"], capture_output=True, text=True)
        if r.returncode:
            print("\n".join(r.stderr.split("\n")[:30]))
            raise SystemExit(1)
        r = subprocess.run(["llvm-objdump", "-h", d + "/k.o"], capture_output=True, text=True)
        for line in r.stdout.split("\n"):
            f = line.split()
            if len(f) > 2 and f[1] == ".text":
                return int(f[2], 16)


def main():
    opt = {}
    out = None
    for a in sys.argv[1:]:
        if '=' in a:
            k, val = a.split('=')
            try:
                opt[k] = int(val, 0)
            except ValueError:
                opt[k] = val
        else:
            out = a
    opt['code_bytes'] = 4096
    txt, names = emit(opt)
    sz = code_size(txt)
    opt['code_bytes'] = (sz - 1024) & ~3
    txt, names = emit(opt)
    open(out, "w").write(txt)
    if names:
        open(out + ".names", "w").write(" ".join(names))
    print(out, "code bytes", sz, "lines", txt.count("\n"), "stamps", len(names))


if __name__ == "__main__":
    main()
```

```python
import sys, os
sys.path.insert(0, os.path.dirname(os.path.abspath(__file__)))
from dsl import *

NAME = "sequential_preLN__linear_attn_block__glu_gated_swiglu__prompt"

CNT = 0x20000
KVM = 0x10000
ST = 0x18000
CS = 0x1C000
ZP = 0x1F800
STAMP = 0xC0000
PQ = 0x400000
HB = 0x800000
HH = 0x1000000
W13R = 0x2000000
W2R = 0x2800000
PROBE = 0x100000
WS_SIZE = 0x2C00000
OOB = 0x7f000000

X, WQKV, WO, W1, W3, W2, OUT, WS, DBG = [f"s[{a}:{a+3}]" for a in range(4, 40, 4)]
(sW, sG, sM, sC0, sT0, sT1, sT2, sT3, sXB, sWB, sXL, sWL, sTB, sCB, sRQ, sLOG2E,
 sU, sKC, sT4, sT5, sMSKHI, sEPS6) = [f"s{i}" for i in range(40, 62)]
sHILANES = "s[62:63]"
sB4LANES = "s[64:65]"
sA, sB, sCc, sD = "s66", "s67", "s68", "s69"
sKVA, sZA, sPQS, sRW, sR2, sRC, sKVL, sZL, sPQL, sSIG, sHST, sSTA = [f"s{i}" for i in range(84, 96)]
sMA, sTA, sHS = "s3", "s74", "s83"
sP1, sPE, sP2, sTBL = "s96", "s97", "s98", "s99"
STV = 0

VB, KB, XCH, RST, KVS, ZS = 0x10000, 0x18000, 0x20000, 0x22000, 0, 0x21000

L16, L4 = "v2", "v3"
TRK, TRP = 152, 156
XCW, XCR, KVW, ZW, STW, KVR, ZR, ZAT, STR = [f"v{i}" for i in range(212, 221)]
WOD, WOT, OAD = 221, 225, 229
ROWA, ZBW, ZBR, P256 = "v233", "v234", "v235", "v236"
RL1, RL3, RL2, RT13, RT2A, RT2B, CSAT, P4K, FA1, LM8, PA2 = [f"v{i}" for i in range(237, 248)]
RCS = 248
L16H = "v47"


def v(a, n=1):
    return f"v{a}" if n == 1 else f"v[{a}:{a+n-1}]"


def a_(a, n=1):
    return f"a{a}" if n == 1 else f"a[{a}:{a+n-1}]"


def mf32(d, A, B, c=None):
    return Inst(f"v_mfma_f32_32x32x16_bf16 {v(d,16)}, {A}, {B}, {v(d,16) if c is None else c}")


def mf16(d, A, B, c=None):
    return Inst(f"v_mfma_f32_16x16x32_bf16 {v(d,4)}, {A}, {B}, {v(d,4) if c is None else c}")


def mf4(d, A, B, c=None):
    return Inst(f"v_mfma_f32_4x4x4_16b_bf16 {v(d,4)}, {A}, {B}, {v(d,4) if c is None else c}")


def trpair(dst, addr, off, step):
    k, b = dst
    return [Inst(f"ds_read_b64_tr_b16 {k}[{b}:{b+1}], {addr} offset:{off}"),
            Inst(f"ds_read_b64_tr_b16 {k}[{b+2}:{b+3}], {addr} offset:{off+step}")]


def par13(t):
    return (t >> 1) & 1


def par2(pr, t):
    return (pr >> 1) if t < 3 else (t & 1) ^ 1


def split2(dst, src, t):
    return Seq()(f"""v_cvt_pk_bf16_f32 v{t}, v{src}, v{src}
         v_lshlrev_b32 v{t}, 16, v{t}
         v_sub_f32 v{t}, v{src}, v{t}
         v_cvt_pk_bf16_f32 v{dst}, v{src}, v{t}""")


cHB, cST, cHS, cHR, cCS, cW2, cHL, cOUT, cHS2 = [f"s{i}" for i in range(75, 84)]
cPP, cPQ, cPS, cPL, bTA, bTL, bK2, bQ2, bGP, bRP, bTX, cW2x, sGC, sMC = [f"s{i}" for i in (4, 5, 6, 7, 16, 17, 18, 19, 20, 21, 22, 23, 24, 25)]
W2A, W2B, LB1, LB2, WLA, WLB, WLC, WLD = [f"v{i}" for i in range(6, 14)]
CSL, HHA, HHB, HPA, LB0 = "v14", "v15", "v42", "v43", "v212"


class Gen:
    def __init__(self, opt):
        self.o = opt
        self.p = Seq()
        self.nl = 0
        self.nstamp = 0
        self.stamp_names = []

    def lab(self, s):
        self.nl += 1
        return f"L_{s}_{self.nl}"

    def stamp(self, name):
        if self.o.get('padat') == name:
            self.p("WAITALL lgkm\ns_memrealtime s[100:101]\nWAITALL lgkm")
        if self.o.get('seg0') == name:
            self.p("WAITALL lgkm\ns_memrealtime s[72:73]\nWAITALL lgkm\ns_mov_b32 s101, s72")
        if self.o.get('seg1') == name:
            self.p("WAITALL lgkm\ns_memrealtime s[72:73]\nWAITALL lgkm\ns_sub_u32 s101, s72, s101\ns_lshl_b32 s101, s101, 4\ns_add_u32 s100, s100, s101")
        if self.o.get('stamps', 3) == 3:
            return
        fine = str(self.o.get('fine', ''))
        if name[0].islower() and name[0] not in fine:
            return
        if fine and name[0].isupper() and name[0].lower() not in fine and name not in ('C_t6', 'B_sync1', 'C_sync2', 'D_drained', 'A_loop', 'A_v', 'A_q'):
            return
        p = self.p
        if self.o.get('nb'):
            if self.nstamp > 1:
                p(f"v_writelane_b32 v{STV}, s72, {self.nstamp-1}", cond=True)
            p("s_memrealtime s[72:73]" if self.o['stamps'] == 1 else "s_memtime s[72:73]", cond=True)
            if name == 'D_drained':
                p(f"s_waitcnt lgkmcnt(0)\nv_writelane_b32 v{STV}, s72, {self.nstamp}", cond=True)
            self.nstamp += 1
            self.stamp_names.append(name)
            return
        p("WAITALL lgkm")
        p("s_memrealtime s[72:73]" if self.o['stamps'] == 1 else "s_memtime s[72:73]")
        p("WAITALL lgkm")
        p(f"v_writelane_b32 v{STV}, s72, {self.nstamp}")
        self.nstamp += 1
        self.stamp_names.append(name)

    def sub(self, fn):
        save = self.p
        self.p = Seq()
        fn()
        r = list(self.p)
        self.p = save
        return r

    def xf(self, L, key='x'):
        x = self.o.get(key, '')
        out = []
        for i in L:
            if 'v' in x and i.kind in ('vload', 'dma') and not i.cond and 'dwordx4' in i.op:
                continue
            if 'e' in x and i.kind in ('valu', 'trans') and not i.cond and i.op.endswith(('f32', 'f32_e64')):
                continue
            if 'l' in x and i.kind == 'dsr':
                continue
            if 's' in x and i.kind == 'vstore' and 'store' in i.op and not i.cond:
                continue
            if 'b' in x and i.op == 's_barrier':
                continue
            if 'm' in x and i.kind == 'mfma' and i.passes < 8:
                continue
            out.append(i)
        return out

    def ool(self, branch, text):
        p = self.p
        L, R = self.lab("o"), self.lab("r")
        p(f"{branch} {L}")
        n = len(p)
        p(f"{L}:\n{text}\ns_branch {R}", cond=True)
        for i in p[n:]:
            i.ool = L
        p(f"{R}:")

    def spin(self, vt, vaddr, soff, mask, target, srd=WS, mode='wave0', sleep=0, field=None, wave=0):
        p = self.p
        Lp = self.lab("pl")
        addr = f"{vaddr}, {srd}, {soff} offen" if vaddr else f"off, {srd}, {soff}"
        ext = f"v_and_b32 v43, {field}, {vt}\n" if field is not None else ""
        vc = "v43" if field is not None else vt
        loop = f"""s_mov_b32 {sT5}, 0
             s_mov_b64 exec, {mask}
             {Lp}:
             {f's_sleep {sleep}' if sleep else ''}
             buffer_load_dword {vt}, {addr} sc1
             s_add_u32 {sT5}, {sT5}, 1
             s_waitcnt vmcnt(0)
             {ext}v_cmp_gt_u32 vcc, {target}, {vc}
             s_cmp_ge_u32 {sT5}, 0x8000
             s_cselect_b64 vcc, 0, vcc
             s_and_b64 exec, exec, vcc
             s_cbranch_scc1 {Lp}
             s_mov_b64 exec, -1"""
        if self.o.get('stamps') == 3:
            p(f"s_mov_b32 {sT5}, 0")
        if mode == 'check':
            p(f"{ext}v_cmp_gt_u32 vcc, {target}, {vc}\ns_and_b64 vcc, vcc, {mask}")
            self.ool("s_cbranch_scc1", loop)
        elif mode == 'wave0':
            Ld = self.lab("pd")
            p(f"s_cmp_lg_u32 {sW}, {wave}\ns_cbranch_scc1 {Ld}")
            p(loop, cond=True)
            p(f"{Ld}:")
        else:
            p(loop, cond=True)
            p("s_waitcnt vmcnt(0)")
        if self.o.get('stamps') == 3:
            p(f"v_writelane_b32 v{STV}, {sT5}, {self.nstamp}")
            self.nstamp += 1
            self.stamp_names.append(f"spin{self.nstamp}")

    def setup(self):
        p = self.p
        p(f"""s_cmp_ge_u32 s2, 256
             s_cbranch_scc1 L_end
             s_load_dwordx16 s[76:91], s[0:1], 0
             s_load_dwordx4 s[92:95], s[0:1], 64""")
        p("v_and_b32 v1, 63, v0\nv_lshrrev_b32 v4, 6, v0")
        p(f"v_readfirstlane_b32 {sW}, v4")
        p(f"""s_mov_b32 s6, 0x200000
             s_mov_b32 s7, 0x20000
             s_mov_b32 s10, 0x180000
             s_mov_b32 s11, 0x20000
             s_lshr_b32 {sU}, s2, 3
             s_and_b32 {sKC}, s2, 7
             s_and_b32 {sRQ}, {sU}, 3
             s_and_b32 {sG}, s2, 6
             s_lshl_b32 {sG}, {sG}, 1
             s_add_u32 {sG}, {sG}, {sRQ}
             s_lshr_b32 {sT1}, s2, 5
             s_and_b32 {sT2}, s2, 1
             s_lshl_b32 {sTA}, {sG}, 1
             s_add_u32 {sTA}, {sTA}, {sT2}
             s_lshl_b32 {sXL}, {sW}, 14
             s_lshl_b32 {sXB}, {sTA}, 16
             s_add_u32 {sXB}, {sXB}, {sXL}
             s_xor_b32 {sMA}, {sT1}, 4
             s_mul_i32 {sWB}, {sW}, {16*3072}
             s_lshl_b32 {sT0}, {sMA}, 7
             s_add_u32 {sWB}, {sWB}, {sT0}
             s_lshl_b32 {sWL}, {sW}, 11
             s_add_u32 {sC0}, {sT1}, {sKC}""")
        rot = self.o.get('rot', 6)
        if rot == 7:
            p(f"s_lshl_b32 {sT0}, {sU}, 2\ns_add_u32 {sC0}, {sC0}, {sT0}")
        if rot == 8:
            p(f"s_lshl_b32 {sT0}, {sRQ}, 1\ns_add_u32 {sC0}, {sC0}, {sT0}")
        if rot == 0:
            p(f"s_mov_b32 {sC0}, 0")
        if rot == 1:
            p(f"s_mov_b32 {sC0}, {sKC}")
        if rot == 9:
            p(f"s_lshl_b32 {sC0}, {sT1}, 1\ns_add_u32 {sC0}, {sC0}, {sKC}")
        p(f"""v_lshrrev_b32 v4, 3, v1
             v_and_b32 v5, 7, v1
             v_lshrrev_b32 v3, 4, v1
             v_xor_b32 v6, v5, v3
             v_lshlrev_b32 v6, 4, v6
             v_lshl_add_u32 v6, v4, 10, v6
             v_xor_b32 v7, 64, v6
             v_add_u32 v7, 7168, v7
             v_and_b32 v3, 1, v3
             v_lshlrev_b32 v3, 2, v3
             v_xor_b32 v5, v5, v3
             v_lshlrev_b32 v5, 4, v5
             v_mul_u32_u24 v8, 3072, v4
             v_add_u32 v8, v8, v5
             v_add_u32 v9, {8*3072-1024}, v8""")
        p("WAITALL lgkm")
        p("s_mov_b64 s[4:5], s[76:77]\ns_mov_b64 s[8:9], s[78:79]")

    def dmaW(self, t, c):
        base, po = ((KB, 1024), (VB, 2048), (0, 0))[t]
        tag = f"{'AVQ'[t]}{c}"
        S = Seq()
        S(f"s_add_u32 m0, {sWL}, {base + c*8192 - po}")
        S(f"buffer_load_dwordx4 v8, {WQKV}, s{75+c} offen offset:{po} lds", tag=tag)
        return ctx([list(S), [Inst(f"buffer_load_dwordx4 v9, {WQKV}, s{75+c} offen offset:{po+1024} lds", tag=tag)]])

    def dmaA(self, c):
        wc = f"s{75+c}"
        g = self.dmaW(0, c)
        g[0] = list(Seq()(f"""s_add_u32 {sT0}, {sC0}, {c}
             s_and_b32 {sT0}, {sT0}, 7
             s_mul_i32 {wc}, {sT0}, {64*3072}
             s_add_u32 {wc}, {wc}, {sWB}
             s_lshl_b32 {sT0}, {sT0}, 7""")) + g[0]
        nt = " nt" if self.o.get('xnt', 0) else ""
        S = Seq()
        S(f"s_add_u32 m0, {sWL}, {c*8192}\ns_add_u32 {sT0}, {sT0}, {sXB}")
        S(f"buffer_load_dwordx4 v6, {X}, {sT0} offen{nt} lds", tag=f"A{c}")
        g += [list(S), [Inst(f"buffer_load_dwordx4 v7, {X}, {sT0} offen offset:1024{nt} lds", tag=f"A{c}")]]
        return ctx(g)

    def dmaWO(self, q):
        S = Seq()
        S(f"""s_add_u32 {sT0}, {sA}, {q*65536}
             s_add_u32 m0, {sB}, {q*16384}
             s_and_b32 {sT0}, {sT0}, 0x7ffff""")
        g = []
        for k in range(4):
            S(f"buffer_load_dwordx4 v{WOD+k}, {WO}, {sT0} offen offset:{k*1024} lds", tag=f"WO{q>>2}")
            g.append(list(S))
            S = Seq()
        return ctx(g)

    def rload(self):
        nt = " nt" if self.o.get('rnt', 1) else ""
        g = []
        for k, (ad, srd, s0, s1) in enumerate(((RL1, W1, sKVL, sZL), (RL3, W3, sKVL, sZL), (RL2, W2, sPQL, sHST))):
            g.append(list(Seq()(f"s_add_u32 m0, {sSTA}, {k*2048}\nbuffer_load_dwordx4 {ad}, {srd}, {s0} offen{nt} lds")))
            g.append(list(Seq()(f"buffer_load_dwordx4 {ad}, {srd}, {s1} offen offset:1024{nt} lds", tag=f"RL{k}")))
            ctx(g[-2:])
        return g[4:] + g[:4]

    def miscA(self):
        M = Seq()
        a, b, c, d = "v208", "v209", "v210", "v211"
        M(f"""v_lshl_add_u32 {RL2}, v4, 10, v5
             v_mul_u32_u24 v4, 3584, v4
             v_add_u32 {RL1}, v4, v5
             v_xor_b32 {RL3}, 32, {RL1}
             v_mov_b32 v4, 1
             v_lshlrev_b32 {L4}, 2, v1
             s_mov_b32 {sLOG2E}, 0x3fb8aa3b
             s_mov_b32 {sMSKHI}, 0xffff0000
             s_mov_b32 {sEPS6}, 0x358637bd
             s_mov_b32 s62, 0
             s_mov_b32 s63, -1
             s_mov_b32 s64, 0xffff0000
             s_mov_b32 s65, 0xffff0000
             s_mov_b32 s96, 0x22222222
             s_mov_b32 s97, 0x22222222
             s_mov_b32 s98, 0x44444444
             s_mov_b32 s99, 0x44444444
             s_mov_b32 s70, 0x88888888
             s_mov_b32 s71, 0x88888888
             s_and_b32 {sM}, s2, 1
             s_lshl_b32 {sM}, {sM}, 3
             s_lshr_b32 {sT1}, s2, 5
             s_add_u32 {sM}, {sM}, {sT1}
             s_and_b32 {sCB}, {sM}, 3
             s_and_b32 {sT1}, {sW}, 1
             s_lshr_b32 {sT2}, {sW}, 1
             s_lshl_b32 {sMA}, {sMA}, 1
             s_add_u32 {sMA}, {sMA}, {sT2}
             s_lshl_b32 {sTA}, {sTA}, 1
             s_add_u32 {sTA}, {sTA}, {sT1}""")
        M(f"""v_and_b32 {a}, 31, v1
             v_lshrrev_b32 {b}, 5, v1
             v_bfe_u32 {c}, v1, 1, 3
             v_xor_b32 {c}, {b}, {c}
             v_lshlrev_b32 {c}, 4, {c}
             v_lshl_add_u32 {c}, {a}, 7, {c}
             s_lshl_b32 {sT3}, {sT1}, 12
             s_lshl_b32 {sT4}, {sW}, 5
             s_add_u32 {sT3}, {sT3}, {sT4}
             v_xor_b32 v10, {sT3}, {c}
             v_xor_b32 v11, 32, v10
             v_xor_b32 v12, 64, v10
             v_xor_b32 v13, 96, v10
             s_lshl_b32 {sT3}, {sCB}, 1
             s_add_u32 {sT3}, {sT3}, {sT2}
             s_sub_u32 {sT3}, {sT3}, {sC0}
             s_and_b32 {sT3}, {sT3}, 7
             s_lshl_b32 {sT3}, {sT3}, 1
             s_lshr_b32 {sT4}, s2, 7
             s_add_u32 {sT3}, {sT3}, {sT4}
             s_lshl_b32 {sT3}, {sT3}, 6
             s_add_u32 {sT3}, {sT3}, {sT1}
             s_lshl_b32 {sT3}, {sT3}, 6
             v_xor_b32 v14, {sT3}, {c}
             v_xor_b32 v15, 32, v14""")
        M(f"""s_lshl_b32 {sT3}, {sT2}, 8
             s_add_u32 {sT3}, {sT3}, {hex(XCH)}
             v_lshl_add_u32 {XCR}, {a}, 3, {sT3}
             s_lshl_b32 {sT3}, {sT1}, 2
             v_add_u32 {XCW}, {sT3}, {XCR}
             s_lshl_b32 {sT3}, {sW}, 9
             s_add_u32 {sT3}, {sT3}, {hex(XCH+2048)}
             v_lshl_add_u32 {STW}, v1, 3, {sT3}
             v_xor_b32 {STR}, 1024, {STW}
             v_lshlrev_b32 {KVW}, 4, {a}
             v_lshl_add_u32 {KVW}, {b}, 10, {KVW}
             s_add_u32 {sT3}, {sWL}, {hex(KVS)}
             v_add_u32 {KVW}, {sT3}, {KVW}
             s_lshl_b32 {sT3}, {sW}, 7
             s_add_u32 {sT3}, {sT3}, {hex(ZS)}
             v_lshl_add_u32 {ZW}, {a}, 2, {sT3}
             s_lshl_b32 {sT3}, {sT2}, 2
             s_add_u32 {sT3}, {sT3}, {sT1}
             s_lshl_b32 {sT4}, {sT3}, 10
             s_add_u32 {sT4}, {sT4}, {hex(KVS)}
             v_add_u32 {KVR}, {sT4}, {L4}
             s_lshl_b32 {sT4}, {sT3}, 6
             s_add_u32 {sT4}, {sT4}, {hex(ZS)}
             v_and_b32 {d}, 15, v1
             v_lshl_add_u32 {ZR}, {d}, 2, {sT4}
             v_lshrrev_b32 {d}, 4, v1
             v_lshl_add_u32 {ZAT}, {d}, 27, {L4}
             v_lshl_add_u32 {CSAT}, {b}, 27, {L4}
             v_lshrrev_b32 {LM8}, 3, v1
             v_lshlrev_b32 {LM8}, 27, {LM8}
             v_min_u32 {FA1}, 1, v1
             v_lshlrev_b32 {FA1}, 27, {FA1}
             s_lshl_b32 {sT3}, {sMA}, 1
             s_add_u32 {sT3}, {sT3}, {sT1}
             s_lshl_b32 {sKVA}, {sT3}, 10
             s_add_u32 {sKVA}, {sKVA}, {hex(KVM)}
             s_lshl_b32 {sZA}, {sT3}, 6
             s_add_u32 {sZA}, {sZA}, {hex(ZP)}
             s_lshl_b32 {sPQS}, {sTA}, 2
             s_lshr_b32 {sT3}, {sMA}, 2
             s_add_u32 {sPQS}, {sPQS}, {sT3}
             s_lshl_b32 {sPQS}, {sPQS}, 3
             s_and_b32 {sT3}, {sMA}, 3
             s_add_u32 {sPQS}, {sPQS}, {sT3}
             s_lshl_b32 {sPQS}, {sPQS}, 11
             s_add_u32 {sPQS}, {sPQS}, {hex(PQ)}
             s_lshl_b32 {sHS}, {sG}, 2
             s_add_u32 {sHS}, {sHS}, {sW}
             s_lshl_b32 {sHS}, {sHS}, 4
             s_add_u32 {sHS}, {sHS}, {sM}
             s_lshl_b32 {sHS}, {sHS}, 14
             s_add_u32 {sHS}, {sHS}, {hex(HH+4096)}""")
        M(f"""v_bfe_u32 {c}, v1, 2, 2
             v_lshlrev_b32 {a}, 10, {b}
             v_lshl_add_u32 {a}, {c}, 7, {a}
             v_bfe_u32 {c}, v1, 4, 1
             v_bfe_u32 {d}, v1, 3, 1
             v_lshl_add_u32 {d}, {d}, 1, {c}
             v_lshl_add_u32 {a}, {d}, 5, {a}
             v_and_b32 {d}, 1, v1
             v_lshl_add_u32 {RT2A}, {d}, 4, {a}
             v_bfe_u32 {d}, v1, 1, 1
             v_lshl_add_u32 {RT2A}, {d}, 3, {RT2A}
             v_and_b32 {d}, 3, v1
             v_lshl_add_u32 {a}, {d}, 3, {a}
             s_lshl_b32 {sT3}, {sT2}, 6
             s_add_u32 {sT3}, {sT3}, {sWL}
             s_add_u32 {sT4}, {sT3}, {hex(KB)}
             v_xor_b32 v{TRK}, {sT4}, {a}
             s_add_u32 {sT4}, {sT3}, {hex(VB)}
             v_xor_b32 v{TRP}, {sT4}, {RT2A}""")
        for j in range(1, 4):
            M(f"v_xor_b32 v{TRK+j}, {j*2048}, v{TRK}\nv_xor_b32 v{TRP+j}, {j*2048}, v{TRP}")
        M(f"""s_lshl_b32 {sT3}, {sW}, 5
             s_add_u32 {sT3}, {sT3}, {hex(RST)}
             v_xor_b32 {RT13}, {sT3}, {a if self.o.get('c16', 1) else RT2A}
             v_lshl_add_u32 {RT13}, {c}, 11, {RT13}
             s_mul_i32 {sSTA}, {sW}, 6144
             s_add_u32 {sSTA}, {sSTA}, {hex(RST)}
             v_add_u32 {RT2A}, {sSTA}, {a if self.o.get('d16', 1) else RT2A}
             v_xor_b32 {RT2B}, 64, {RT2A}""")
        M(f"""v_lshrrev_b32 {a}, 2, v1
             v_xor_b32 {a}, {a}, {c}
             v_and_b32 {a}, 1, {a}
             v_or_b32 {a}, {a}, {d}
             v_cmp_eq_u32 vcc, 0, {a}
             v_mov_b32 v20, 0x3f803f80
             v_mov_b32 v21, 0x3f803f80
             v_mov_b32 v22, 0x3f803f80
             v_mov_b32 v23, 0x3f803f80
             v_cndmask_b32 v16, 0, v20, vcc
             v_cndmask_b32 v17, 0, v20, vcc
             v_cndmask_b32 v18, 0, v20, vcc
             v_cndmask_b32 v19, 0, v20, vcc""")
        for r in (162, 163, 166, 167, 170, 171, 174, 175, 177, 178, 179):
            M(f"v_mov_b32 v{r}, 0")
        M(f"""v_lshrrev_b32 {a}, 4, v1
             v_bfe_u32 {c}, v1, 2, 2
             v_xor_b32 {c}, {c}, {a}
             v_lshlrev_b32 {c}, 6, {c}
             v_lshl_add_u32 {c}, {a}, 10, {c}
             v_lshl_add_u32 v{WOD}, {d}, 4, {c}
             v_add_u32 v{WOD+1}, 3072, v{WOD}
             v_add_u32 v{WOD+2}, 6144, v{WOD}
             v_add_u32 v{WOD+3}, 9216, v{WOD}
             s_lshl_b32 {sA}, {sRQ}, 17
             s_add_u32 {sA}, {sA}, {sXL}
             s_lshl_b32 {sT3}, {sCB}, 8
             s_add_u32 {sA}, {sA}, {sT3}""")
        M(f"""s_lshl_b32 {sT3}, {sKC}, 2
             s_add_u32 {sT3}, {sT3}, {sW}
             s_mul_i32 {sKVL}, {sT3}, {16*3584}
             s_lshl_b32 {sT3}, {sU}, 7
             s_add_u32 {sKVL}, {sKVL}, {sT3}
             s_lshl_b32 {sT2}, {sU}, 2
             s_add_u32 {sT2}, {sT2}, {sW}
             s_lshl_b32 {sPQL}, {sT2}, 14
             s_lshl_b32 {sT3}, {sKC}, 7
             s_add_u32 {sPQL}, {sPQL}, {sT3}
             s_add_u32 {sHST}, {sPQL}, 7168
             s_lshl_b32 {sRC}, {sT2}, 7
             s_add_u32 {sRC}, {sRC}, {hex(CS)}
             s_mul_i32 {sT3}, {sT2}, 9363
             s_lshr_b32 {sT3}, {sT3}, 16
             s_add_u32 {sT2}, {sT2}, {sT3}
             s_and_b32 {sT3}, {sKC}, 6
             s_add_u32 {sT3}, {sT3}, {sKC}
             s_lshl_b32 {sRW}, {sT2}, 4
             s_add_u32 {sRW}, {sRW}, {sT3}
             s_lshl_b32 {sRW}, {sRW}, 12
             s_add_u32 {sRW}, {sRW}, {hex(W13R)}
             s_andn2_b32 {sT3}, {sT2}, 3
             s_add_u32 {sT3}, {sT3}, {sT2}
             s_lshl_b32 {sR2}, {sKC}, 8
             s_add_u32 {sR2}, {sR2}, {sT3}
             s_lshl_b32 {sR2}, {sR2}, 11
             s_add_u32 {sR2}, {sR2}, {hex(W2R)}""")
        dup = self.o.get('dup', 3)
        if self.o.get('grp', 1):
            m13 = sum((par13(t) ^ m) << (8 * m + t) for m in range(2) for t in range(8))
            m2 = sum(par2(pr, t) << (8 * pr + t) for pr in range(4) for t in range(8))
            M(f"""s_and_b32 {sT3}, {sT2}, 15
                 s_lshr_b32 {sT3}, {hex(m13)}, {sT3}
                 s_lshr_b32 {sT4}, {hex(m2)}, {sT2}
                 s_xor_b32 {sT4}, {sT4}, {sKC}""")
        else:
            M(f"s_lshr_b32 {sT3}, {sKC}, 1\ns_lshr_b32 {sT4}, {sT2}, 5")
        M(f"""s_and_b32 {sT3}, {sT3}, {0 if dup & 1 else 1}
             s_lshl_b32 {sT3}, {sT3}, 13
             s_add_u32 {sRW}, {sRW}, {sT3}
             s_and_b32 {sT4}, {sT4}, {0 if dup & 2 else 1}
             s_lshl_b32 {sT4}, {sT4}, 13
             s_add_u32 {sR2}, {sR2}, {sT4}
             s_cmp_ge_u32 s2, 224
             s_cselect_b32 {sRW}, {hex(OOB)}, {sRW}
             s_cselect_b32 {sR2}, {hex(OOB)}, {sR2}
             s_cselect_b32 {sRC}, {hex(OOB)}, {sRC}
             s_cselect_b32 {sKVL}, {hex(OOB)}, {sKVL}
             s_add_u32 {sZL}, {sKVL}, {8*3584-1024}
             s_and_b32 {sSIG}, {sU}, 15
             s_lshl_b32 {sSIG}, {sSIG}, 8
             s_add_u32 {sSIG}, {sSIG}, {hex(CNT)}
             s_cmp_eq_u32 {sW}, 0
             s_cselect_b32 {sSIG}, {sSIG}, {hex(OOB)}""")
        return M

    def miscB(self):
        M = Seq()
        a, b, c, d = "v208", "v209", "v210", "v211"
        M(f"""s_lshr_b32 {sTB}, {sM}, 2
             s_lshl_b32 {sT3}, {sG}, 2
             s_add_u32 {sTB}, {sTB}, {sT3}
             s_lshl_b32 {sT4}, {sRQ}, 1
             s_add_u32 {sT4}, {sT4}, {sW}
             s_and_b32 {sT4}, {sT4}, 7
             s_lshl_b32 {sKVL}, {sT4}, 12
             s_add_u32 {sKVL}, {sKVL}, {hex(KVM)}
             s_xor_b32 {bK2}, {sKVL}, 0x4000
             s_lshl_b32 {sT2}, {sTB}, 16
             s_and_b32 {sPQL}, {sT4}, 6
             s_add_u32 {sPQL}, {sPQL}, {sT4}
             s_lshl_b32 {sPQL}, {sPQL}, 12
             s_add_u32 {sPQL}, {sPQL}, {sT2}
             s_add_u32 {sPQL}, {sPQL}, {hex(PQ)}
             s_xor_b32 {sPQL}, {sPQL}, {sP1}
             s_xor_b32 {bQ2}, {sPQL}, 0x8000
             s_lshl_b32 {sT4}, {sT4}, 8
             s_mov_b32 {sZL}, {hex(ZP)}
             s_lshl_b32 {sHST}, {sCB}, 14
             s_add_u32 {sHST}, {sHST}, {sT2}
             s_add_u32 {sHST}, {sHST}, {sWL}
             s_add_u32 {sHST}, {sHST}, {hex(HB)}
             s_xor_b32 {sHST}, {sHST}, {sPE}
             s_lshl_b32 {sSTA}, {sTB}, 4
             s_add_u32 {sSTA}, {sSTA}, {sCB}
             s_lshl_b32 {sSTA}, {sSTA}, 14
             s_add_u32 {sSTA}, {sSTA}, {hex(HH+7168+768)}
             s_xor_b32 {sSTA}, {sSTA}, {sP2}
             s_lshl_b32 {sD}, {sTB}, 2
             s_add_u32 {sD}, {sD}, {sCB}
             s_lshl_b32 {sD}, {sD}, 16
             s_add_u32 {sD}, {sD}, {sXL}
             s_add_u32 {sD}, {sD}, {hex(HH+7168)}
             s_xor_b32 {sD}, {sD}, {sP2}
             v_lshrrev_b32 {b}, 5, v1
             v_and_b32 {a}, 31, v1
             v_lshlrev_b32 {ROWA}, 10, {a}
             v_lshl_add_u32 {ROWA}, {b}, 4, {ROWA}
             v_lshlrev_b32 v41, 3, {a}
             v_lshl_add_u32 v41, {b}, 10, v41
             v_xor_b32 v41, {sT4}, v41
             v_bfe_u32 {c}, v1, 2, 2
             v_and_b32 {a}, 1, v1
             v_lshlrev_b32 {a}, 4, {a}
             v_bfe_u32 {d}, v1, 1, 1
             v_lshl_add_u32 {a}, {d}, 3, {a}
             v_lshl_add_u32 {d}, {b}, 11, {a}
             v_lshl_add_u32 {d}, {c}, 8, {d}
             v_xor_b32 {c}, {sW}, {c}
             v_lshl_add_u32 {d}, {c}, 6, {d}
             v_bfe_u32 {c}, v1, 4, 1
             v_lshl_add_u32 {d}, {c}, 5, {d}""")
        for q in range(4):
            M(f"""s_xor_b32 {sT2}, {sW}, {q}
                 s_lshl_b32 {sT3}, {sT2}, 14
                 v_add_u32 v{WOT+q}, {sT3}, {d}
                 s_lshl_b32 {sT2}, {sT2}, 12
                 s_add_u32 {sT2}, {sT2}, 0x20000
                 v_add_u32 v{OAD+q}, {sT2}, {L16}""")
        M(f"""s_lshl_b32 {sT2}, {sW}, 12
             s_add_u32 {sT2}, {sT2}, {0x20000+16384+3072}
             v_add_u32 {ZBW}, {sT2}, {L4}
             v_xor_b32 {d}, 1, {c}
             v_lshlrev_b32 {d}, 5, {d}
             v_lshl_add_u32 {d}, {b}, 4, {d}
             v_add_u32 {ZBR}, {sT2}, {d}
             v_lshrrev_b32 {d}, 4, v1
             v_lshlrev_b32 {P256}, 8, v1
             v_lshl_add_u32 {P256}, {d}, 27, {P256}
             s_lshl_b32 {bTL}, {sW}, 13
             s_lshr_b32 {sT2}, {sTBL}, {sKC}
             s_and_b32 {sT2}, {sT2}, 0x2000
             s_lshl_b32 {bGP}, {sKC}, 14
             s_add_u32 {bGP}, {bGP}, {sT2}
             s_add_u32 {bGP}, {bGP}, {hex(CNT)}
             s_add_u32 {bRP}, {bGP}, 4096""")
        for k in range(8):
            M(f"v_lshlrev_b32 v{192+2*k}, 16, v{24+k}\nv_and_b32 v{193+2*k}, {sMSKHI}, v{24+k}")
        return M

    def phaseA(self):
        p = self.p
        o = self.o
        pre = o.get('pre', 0)
        if pre:
            nt = " nt" if o.get('xnt', 0) else ""
            p(f"""s_lshl_b32 {sT3}, {sMA}, 2
                 s_add_u32 {sT3}, {sT3}, {sW}
                 s_lshl_b32 {sT3}, {sT3}, 11
                 s_lshl_b32 {sT4}, {sTA}, 16
                 s_add_u32 {sT3}, {sT3}, {sT4}
                 s_lshl_b32 {sT4}, s2, 2
                 s_add_u32 {sT4}, {sT4}, {sW}
                 s_mul_i32 {sT4}, {sT4}, 1536
                 v_lshrrev_b32 v196, 2, v1
                 v_lshlrev_b32 v196, 7, v196
                 v_min_u32 v197, 1408, v196""")
            if pre & 1:
                p(f"buffer_load_dword v194, v196, {X}, {sT3} offen{nt}")
            if pre & 2:
                p(f"buffer_load_dword v195, v197, {WQKV}, {sT4} offen")
        p.extend(flat(self.dmaA(0)))
        p(f"v_lshlrev_b32 {L16}, 4, v1")
        if o.get('codepf', 1):
            p(f"""s_getpc_b64 s[70:71]
                 s_lshl_b32 {sT3}, {sU}, 2
                 s_add_u32 {sT3}, {sT3}, {sW}
                 s_lshl_b32 {sT4}, {sT3}, 8
                 v_lshrrev_b32 v200, 5, v1
                 v_lshl_add_u32 v200, v200, 7, {sT4}
                 v_min_u32 v200, CODE_PF_MAX, v200
                 global_load_dword v201, v200, s[70:71]""")
        tch = Seq()
        touch = o.get('touch', 7)
        tch(f"""s_lshl_b32 {sCc}, s2, 2
             s_add_u32 {sCc}, {sCc}, {sW}
             s_lshr_b32 {sT4}, {sCc}, 1
             s_mul_i32 {sT4}, {sT4}, 3072
             s_and_b32 {sT5}, {sCc}, 1
             s_lshl_b32 {sT5}, {sT5}, 11
             s_add_u32 {sT4}, {sT4}, {sT5}
             s_lshl_b32 {sCc}, {sCc}, 9
             v_lshrrev_b32 v202, 3, v1
             v_lshlrev_b32 v202, 7, v202
             v_lshrrev_b32 v42, 4, v1
             v_lshlrev_b32 v42, 7, v42""")
        if touch & 4:
            tch(f"""s_lshl_b32 {sT3}, {sU}, 2
                 s_add_u32 {sT3}, {sT3}, {sW}
                 s_mul_i32 {sT3}, {sT3}, {4*3072}
                 v_min_u32 v200, 11, v1
                 v_lshlrev_b32 v200, 10, v200
                 buffer_load_dword v198, v200, {WQKV}, {sT3} offen offset:384""")
        if touch & 1:
            tch(f"buffer_load_dword v203, v202, {WQKV}, {sT4} offen")
        tat = o.get('tat', -1)
        if tat == -2:
            p.extend(tch)
        d1 = self.dmaA(1)
        n1 = o.get('d1', 4)
        p.extend(flat(d1[:n1]))
        if tat == -1:
            p.extend(tch)
        for srd, src, sz in ((12, 80, 0x80000), (16, 84, 0x1C0000), (20, 86, 0x1C0000), (24, 88, 0x1C0000),
                             (28, 90, 0x200000), (36, 92, 256), (32, 94, WS_SIZE)):
            p(f"s_mov_b64 s[{srd}:{srd+1}], s[{src}:{src+1}]\ns_mov_b32 s{srd+2}, {hex(sz)}\ns_mov_b32 s{srd+3}, 0x20000")
        tlb = o.get('tlb', 0)
        if tlb:
            p(f"""v_min_u32 v194, 1, v1
                 v_lshlrev_b32 v194, 27, v194
                 s_lshl_b32 {sT3}, {sW}, 5
                 s_add_u32 {sT3}, {sT3}, {sU}
                 s_lshl_b32 {sT4}, {sT3}, 21
                 buffer_load_dword v195, v194, {WS}, {sT4} offen""")
            if tlb & 2:
                for k, srd in enumerate((OUT, W1, W3, W2, WO, DBG)):
                    p(f"""s_cmp_eq_u32 {sT3}, {24+k}
                         s_cselect_b32 {sT4}, 0, {hex(OOB)}
                         buffer_load_dword v{188+k}, v194, {srd}, {sT4} offen""")
        if o.get('wsoff'):
            p(f"s_add_u32 s32, s32, {o['wsoff'] << 20}\ns_addc_u32 s33, s33, 0")
        Lz = self.lab("z")
        p(f"""s_lshl_b32 {sB}, {sW}, 8
             s_add_u32 {sB}, {sB}, 224
             s_cmp_lt_u32 s2, {sB}
             s_cbranch_scc1 {Lz}""")
        padr = f"""s_sub_u32 {sT2}, s2, 224
             s_and_b32 {sT1}, {sU}, 1
             s_lshl_b32 {sT3}, {sT1}, 5
             s_add_u32 {sT3}, {sT3}, {sT2}
             s_lshl_b32 {sT3}, {sT3}, 8
             s_add_u32 {sT3}, {sT3}, {hex(PROBE)}
             s_xor_b32 {sT4}, {sT3}, 0x2000
             s_waitcnt lgkmcnt(0)
             s_buffer_load_dword {sT5}, {WS}, {sT3} glc
             s_buffer_load_dword {sT5}, {WS}, {sT4} glc"""
        p(f"""{padr.replace(sT5, sD)}
             v_mov_b32 v16, 0
             v_mov_b32 v17, 0
             v_mov_b32 v18, 0
             v_mov_b32 v19, 0
             v_lshrrev_b32 v20, 3, v1
             v_lshl_add_u32 v20, v20, 7, {L16}
             s_lshl_b32 {sT4}, {sT2}, 11
             s_lshl_b32 {sT3}, {sT2}, 12
             s_add_u32 {sT3}, {sT3}, {hex(CNT)}
             s_add_u32 {sT4}, {sT4}, {hex(KVM)}
             buffer_store_dwordx4 v[16:19], {L16}, {WS}, {sT4} offen sc1
             buffer_store_dwordx4 v[16:19], {L16}, {WS}, {sT4} offen offset:1024 sc1
             buffer_store_dwordx4 v[16:19], v20, {WS}, {sT3} offen sc1
             buffer_store_dwordx4 v[16:19], v20, {WS}, {sT3} offen offset:2048 sc1""", cond=True)
        p(f"{Lz}:")
        probe = f"""{padr}
             s_getreg_b32 {sT4}, hwreg(HW_REG_XCC_ID, 2, 1)
             s_waitcnt lgkmcnt(1)
             s_nop {o.get('pnop', 15)}
             s_getreg_b32 {sT2}, hwreg(HW_REG_IB_STS, 8, 4)
             s_waitcnt lgkmcnt(0)
             s_min_u32 {sT2}, {sT2}, 1
             s_xor_b32 {sT1}, {sT1}, {sT4}
             s_cmp_lg_u32 {sT1}, {sT2}
             s_cselect_b32 {sT2}, 64, 4096
             s_add_u32 {sT2}, {sT2}, 1
             s_add_u32 {sT5}, {sKC}, 18
             s_lshl_b32 {sT4}, {sT4}, {sT5}
             s_cmp_eq_u32 {sU}, 28
             s_cselect_b32 {sT4}, {sT4}, 0
             s_add_u32 {sT2}, {sT2}, {sT4}
             v_mov_b32 v46, {sT2}"""
        p.extend(self.miscA())
        if o.get('pat', 0) == 0:
            Lz = self.lab("z")
            p(f"s_cmp_lt_u32 s2, {sB}\ns_cbranch_scc1 {Lz}")
            p(probe, cond=True)
            p(f"{Lz}:")
            probe = ""
        if tat == 0:
            p.extend(tch)
        SEL, ONES = v(16, 4), v(20, 4)
        XS, XQ0, XQ1, CSA, ZA = 252, 248, 32, 36, 44
        AK, AV, AQ, RB, AKV = 48, 64, 80, 96, 112
        WR = 128
        XM, WP, RS_ = 160, 164, 176

        def wread(t, s, dst=None):
            n = t * 32 + s
            addr = (TRK, TRP, TRK)[t]
            return trpair(('v', WR + 4 * (n % 6) if dst is None else dst), f"v{addr+(s&3)}", (s >> 2) * 8192, 512)

        def wf(t, s):
            return v(WR + 4 * ((t * 32 + s) % 6), 4)

        def csm(f, first):
            return mf16(CSA, SEL, f, "0" if first else None)

        def cswrite(t):
            S = split2(41, CSA, 41)
            S(f"ds_write_b32 {XCW}, v41 offset:{t*512}", tag=f"x{t}")
            return list(S)

        def csget(t):
            return [Inst(f"ds_read_b64 {v(WP+4*t,2)}, {XCR} offset:{t*512}")]

        def xread(s):
            return [Inst(f"ds_read_b128 {a_(4*s,4)}, v{10+(s&3)} offset:{(s>>2)*8192}")]

        p.extend(flat(d1[n1:]))
        d2 = self.dmaA(2)
        n2_ = o.get('d2', 4)
        p.extend(flat(d2[:n2_]))
        self.stamp("A_issued")
        p("WAITTAG A0\ns_barrier")
        self.stamp("A_c0")
        p.extend(xread(0) + wread(0, 0) + xread(1) + wread(0, 1))
        p.extend(flat(d2[n2_:]))
        ad = o.get('ad', 4)
        nv1 = o.get('nv1', 14)
        vq = flat([self.dmaW(1, k) for k in range(8)])
        pend = self.dmaA(3) if ad == 4 else []
        for s in range(32):
            c, j = s >> 2, s & 3
            xf = a_(4 * s, 4)
            z = "0" if s == 0 else None
            p.append(mf32(AK, xf, wf(0, s), z))
            if j == 2 and c < 7:
                p(f"WAITTAG A{c+1}\ns_barrier")
                self.stamp(f"a{c+1}")
                assert not pend
                if c == 1:
                    p(f"s_cmp_ge_u32 s2, {sB}")
                    self.ool("s_cbranch_scc1", f"{probe}\nbuffer_atomic_add v46, {FA1}, {DBG}, 0 offen sc1")
                if c + 1 == tat:
                    p.extend(tch)
                if c + ad < 8:
                    pend = self.dmaA(c + ad)
                else:
                    pend, vq = vq[:4], vq[4:]
            if s == 30:
                p("WAITTAG V1\ns_barrier")
                k = max(0, nv1 - (16 - len(vq)))
                assert k <= 2
                pend, vq = vq[:k], vq[k:]
            if s + 2 < 32:
                p.extend(xread(s + 2) + wread(0, s + 2))
            else:
                p.extend(wread(1, s + 2 - 32))
            if s == 28:
                p("ds_read_b128 v[24:27], v14\nds_read_b128 v[28:31], v15", tag="xres")
            for _ in range(2 if s < 2 else 1):
                if pend:
                    p.extend(pend.pop(0))
            if j % 2 == 0:
                p.append(csm(wf(0, s), s == 0))
            if j < 2:
                p.append(mf16(XS, SEL, xf, z))
                p.append(mf4(XQ0, a_(4 * s, 2), a_(4 * s, 2), z))
                p.append(mf4(XQ1, a_(4 * s + 2, 2), a_(4 * s + 2, 2), z))
            if s == 30:
                for k in range(4):
                    p(f"v_add_f32 v{XQ0+k}, v{XQ0+k}, v{XQ1+k}")
                p(f"""v_cndmask_b32 v197, v{XQ0}, v{XQ0+1}, s[96:97]
                     v_cndmask_b32 v197, v197, v{XQ0+2}, s[98:99]
                     v_cndmask_b32 v197, v197, v{XQ0+3}, s[70:71]
                     v_mov_b32 v196, v197""")
            if s == 31:
                p(f"""v_permlane32_swap_b32 v196, v197
                     v_add_f32 v{XS+1}, v196, v197
                     ds_write_b64 {STW}, {v(XS,2)}""")
                p.extend(cswrite(0))
        assert not pend
        self.stamp("A_loop")
        CT = (204, 208, ZA)
        kb = o.get('kb', 9)

        def tilepass(t, acc, order):
            nm = "VQ"[t - 1]
            G = []
            for s in range(32):
                A_, B_ = (a_(4 * s, 4), wf(t, s)) if order == 0 else (wf(t, s), a_(4 * s, 4))
                g = Seq()
                g.append(mf32(acc, A_, B_, "0" if s == 0 else None))
                if t == 1 and s == 2:
                    g("WAITTAG x0 xres" + (" V3" if ad == 4 else "") + "\ns_barrier")
                    g(f"ds_read_b64 v[198:199], {STR}")
                    g.extend(csget(0))
                if t == 2 and o.get('fb', 0) & 2:
                    if s == 4:
                        g("WAITTAG Q3\ns_barrier")
                    if s == kb:
                        assert kb <= 12
                        g("WAITTAG kvp Q7\ns_barrier")
                elif t == 1 and o.get('fb', 0) & 1:
                    if s == 12:
                        g("WAITTAG V7\ns_barrier")
                elif s % 8 == 4 and s < 28 and ((t, s) != (1, 4) or ad != 4):
                    g(f"WAITTAG {nm}{(s+4)//4+1} kvp\ns_barrier")
                elif t == 2 and s == kb:
                    g("WAITTAG kvp\ns_barrier")
                if s == 28:
                    g(f"WAITTAG x{t}" + (" Q1" if t == 1 else "") + "\ns_barrier")
                    g.extend(csget(t))
                if t == 1 and s < 2:
                    g.extend(wread(t, 2 + 2 * s) + wread(t, 3 + 2 * s))
                elif s + 4 < 32:
                    g.extend(wread(t, s + 4))
                elif t == 1:
                    g.extend(wread(2, s + 4 - 32))
                if s in (20, 21, 22):
                    g.extend(wread(t, 26 + 2 * (s - 20), CT[s - 20]))
                if s % 2 == 0 and s < 26 and (t, s) != (1, 0):
                    g.append(csm(wf(t, s), (t, s) == (2, 0)))
                if (t, s) == (1, 1):
                    g.append(csm(wf(t, 0), True))
                if s in (23, 24, 25):
                    g.append(csm(v(CT[s - 23], 4), False))
                if s == 26:
                    g.extend(cswrite(t))
                G.append(list(g))
            return G

        def phi(acc, scale, T, dst):
            S = Seq()
            for h in range(2):
                r = range(8 * h, 8 * h + 8)
                for i in r:
                    S(f"v_fma_f32 v{acc+i}, v{acc+i}, {scale(i)}, {sEPS6}")
                for i in r:
                    S(f"v_mul_f32 v{T+(i&7)}, {sLOG2E}, v{acc+i}")
                for i in r:
                    S(f"v_exp_f32_e64 v{T+(i&7)}, v{T+(i&7)} clamp")
                    S(f"v_max_f32 v{acc+i}, {sEPS6}, v{acc+i}")
                for i in r:
                    S(f"v_add_f32 v{acc+i}, v{acc+i}, v{T+(i&7)}")
                for i in range(4 * h, 4 * h + 4):
                    S(f"v_cvt_pk_bf16_f32 v{dst+i}, v{acc+2*i}, v{acc+2*i+1}")
            return S
        E = Seq()
        E(f"""v_add_f32 v198, v198, v{XS}
             v_add_f32 v197, v199, v{XS+1}
             v_mul_f32 v199, 0x3b000000, v198
             v_mul_f32 v197, 0x3b000000, v197
             v_cvt_pk_bf16_f32 v198, -v199, -v199
             v_fma_f32 v197, -v199, v199, v197
             v_cndmask_b32 v{XM}, v198, 0, {sHILANES}
             v_cndmask_b32 v{XM+1}, v198, 0, {sHILANES}
             v_max_f32 v197, 0, v197
             v_add_f32 v197, 0x3727c5ac, v197
             v_rsq_f32 v40, v197""")
        E.append(mf32(AK, v(XM, 4), v(WP, 4)))
        E.extend(split2(RS_, 40, 198))
        E(f"v_cndmask_b32 v{RS_}, v{RS_}, 0, {sHILANES}")
        E.append(mf32(RB, v(RS_, 4), ONES, "0"))
        PK = phi(AK, lambda i: f"v{RB+i}", 196, 180)
        G = tilepass(1, AV, 0)
        v2e = o.get('v2e', 2)
        qq = flat([self.dmaW(2, k) for k in range(8)])
        nq2 = o.get('nq2', 16)
        G = weave(G, vq, 0, v2e)
        G = weave(G, qq[:nq2], max(3, v2e), o.get('q2end', 30))
        G[0] += [Inst(f"v_subrev_u32 v{TRK+j}, {hex(VB)}, v{TRP+j}") for j in range(4)]
        G[12] += [Inst(f"buffer_load_dword v5, {FA1}, {DBG}, 0 offen sc1")]
        n2 = o.get('pk2', 88)
        G = weave(G, list(E), 4, 8)
        G = weave(G, PK[:n2], 10, 32)
        for k in range(3, 31, 4):
            G[k] += self.sub(lambda: self.stamp(f"v{k}"))
        p.extend(flat(G))
        p.append(mf32(AV, v(XM, 4), v(WP + 4, 4)))
        self.stamp("A_v")
        if o.get('skew') is not None:
            p(f"""s_not_b32 s101, s100
                 v_mov_b32 v43, s101
                 buffer_atomic_umax v43, {FA1}, {DBG}, 0 offen offset:128 sc1
                 v_mov_b32 v41, s100
                 buffer_atomic_umax v41, {FA1}, {DBG}, 0 offen offset:192 sc1""")
        E = Seq()
        E.extend(PK[n2:])
        for i in range(16):
            E(f"v_mul_f32 v{AV+i}, v{AV+i}, v{RB+i}")
        for i in range(8):
            E(f"v_cvt_pk_bf16_f32 v{188+i}, v{AV+2*i}, v{AV+2*i+1}")
        G = tilepass(2, AQ, 1)
        rq = self.rload()
        if o.get('nor'):
            rq = []
        if touch & 2:
            rq = rq[:2] + [[Inst(f"buffer_load_dword v42, v42, {WO}, {sCc} offen")]] + rq[2:]
        e2 = o.get('e2', 0)
        R2T = trpair(('a', 144), RT2A, 4096, 512) + trpair(('a', 148), RT2B, 4096, 512)
        R2S = [Inst(f"buffer_store_dwordx4 a[144:147], {L16}, {WS}, {sR2} offen sc1", tag="pub1" if e2 else "pubR"),
               Inst(f"buffer_store_dwordx4 a[148:151], {L16}, {WS}, {sR2} offen offset:1024 sc1", tag="pub1" if e2 else "pubR")]
        dup = o.get('dup', 3)
        if dup & 2:
            assert not e2
            R2S += [Inst(x.text.replace(L16, L16H), tag=x.tag) for x in R2S]
        if e2:
            G[e2] += [Inst("WAITTAG RL2")] + R2T
            G[e2 + 3] += R2S[:1]
            G[e2 + 5] += R2S[1:]
            R2T, R2S = [], []
        r0 = o.get('r0', 0)
        if nq2 < 16:
            G = weave(G, qq[nq2:], 0, r0)
        G = weave(G, rq, r0, o.get('r1', r0 + 7))
        if o.get('rwait'):
            G[o.get('r1', 7)] += list(Seq()("WAITALL vm")) + self.sub(lambda: self.stamp("A_rland"))
        woq = flat([self.dmaWO(q) for q in range(8)])
        nw3 = o.get('wo3', 0)
        G[13] += [Inst(f"s_lshl_b32 {sB}, {sW}, 12")]
        if nw3:
            G = weave(G, woq[:nw3], o.get('wo30', 26), 32)
        G = weave(G, list(E), 0, kb - 5)
        G[kb - 5] += [mf32(AKV, v(180, 4), v(188, 4), "0"), mf32(AKV, v(184, 4), v(192, 4)),
                 mf16(ZA, SEL, v(180, 4), "0"), mf16(ZA, SEL, v(184, 4))]
        G[kb - 4] += self.sub(lambda: self.spin("v5", None, "0", "1", "32", srd=DBG, mode='check', sleep=4, field=63))
        S = Seq()
        S(f"""v_readfirstlane_b32 {sT2}, v5
             s_bfe_u32 {sT3}, {sT2}, 0x60006
             s_bfe_u32 {sT4}, {sT2}, 0x6000c
             s_lshr_b32 {sT2}, {sT2}, 5""")
        S = [[i] for i in S] + [list(Seq()(f"""s_cmp_gt_u32 {sT4}, {sT3}
             s_cselect_b32 {sT3}, {'0, -1' if o.get('parx') else '-1, 0'}"""))]
        S += [[i] for i in Seq()(f"""s_xor_b32 {sTBL}, {sT2}, {sT3}
             s_lshr_b32 {sT2}, {sTBL}, {sKC}
             s_lshl_b32 {sT3}, {sG}, 10
             s_xor_b32 {sP1}, {sT2}, {sT3}
             s_and_b32 {sP1}, {sP1}, 0x2000
             s_xor_b32 {sPQS}, {sPQS}, {sP1}
             s_lshr_b32 {sPE}, {sTBL}, 3
             s_and_b32 {sPE}, {sPE}, 0x2000
             s_lshl_b32 {sT4}, {sG}, 12
             s_xor_b32 {sP2}, {sT3}, {sT4}
             s_and_b32 {sP2}, {sP2}, 0x2000
             s_xor_b32 {sP2}, {sP2}, {sPE}
             s_xor_b32 {sHS}, {sHS}, {sP2}
             v_mov_b32 v176, 0
             v_lshrrev_b32_e64 {P4K}, v1, {sTBL}
             v_and_b32 {P4K}, 0x2000, {P4K}
             v_lshl_add_u32 {P4K}, v1, 14, {P4K}
             v_or_b32 {P4K}, {P4K}, {LM8}""")]
        S += [[Inst(f"buffer_store_dwordx4 v[176:179], {L16}, {WS}, {sHS} offen offset:3072 sc1", tag="pub1")]]
        G = weave(G, S, 19, 31)
        S = Seq()
        for i in range(8):
            S(f"v_cndmask_b32 v{196+i}, v{AKV+i}, v{AKV+8+i}, {sB4LANES}")
        S(f"""ds_write_b128 {KVW}, v[196:199]
             ds_write_b128 {KVW}, v[200:203] offset:512""")
        S(f"ds_write_b32 {ZW}, v{ZA}", tag="kvp")
        G = weave(G, list(S), kb - 3, kb - 1)
        S = Seq()
        for k in range(4):
            S(f"ds_read2st64_b32 v[{112+2*k}:{113+2*k}], {KVR} offset0:{k} offset1:{k+8}")
        S(f"ds_read2_b32 v[120:121], {ZR} offset0:0 offset1:32")
        G = weave(G, list(S), kb, kb + 2)
        S = Seq()
        for k in range(5):
            S(f"v_add_f32 v{112+2*k}, v{112+2*k}, v{113+2*k}")
        for k in range(4):
            S(f"buffer_atomic_add_f32 v{112+2*k}, {L4}, {WS}, {sKVA} offen offset:{k*256}", tag="pub1")
        S(f"buffer_atomic_add_f32 v120, {ZAT}, {WS}, {sZA} offen", tag="pub1")
        G = weave(G, list(S), kb + 3, kb + 8)
        for k in range(3, 31, 4):
            G[k] += self.sub(lambda: self.stamp(f"v{k}"))
        p.extend(flat(G))
        p.append(mf32(AQ, v(WP + 8, 4), v(XM, 4)))
        self.stamp("A_q")
        woq = woq[nw3:]
        t1, t3, t2 = o.get('wot1', 0), o.get('wot3', 6), o.get('wot2', 2)
        assert nw3 + t1 == 0
        p.extend(flat(woq[:t1]))
        woq = woq[t1:]
        ph = phi(AQ, lambda i: "v40", 196, 180)
        h = len(ph) // 2
        p.extend(ph[:h])
        p(f"buffer_store_dwordx4 v[180:183], {L16}, {WS}, {sPQS} offen sc1", tag="pub1")
        p.extend(ph[h:])
        p(f"buffer_store_dwordx4 v[184:187], {L16}, {WS}, {sPQS} offen offset:1024 sc1", tag="pub1")
        self.stamp("A_pqst")
        p("s_barrier")
        MB = list(self.miscB()) + self.miscC()
        nb = o.get('mb1', 140)
        assert nb >= len(self.miscB())
        p.extend(flat(woq[:t3]))
        p("s_nop 0")
        p.extend(MB[:nb])
        p("s_nop 0")
        p.extend(flat(woq[t3:t3 + t2]))
        woq = woq[t3 + t2:]
        p("WAITTAG pub1\ns_barrier")
        p(f"buffer_atomic_add v4, {P4K}, {WS}, {sSIG} offen sc1")
        self.stamp("A_sig")
        for s in range(4):
            p.extend(trpair(('a', 128 + 4 * s), RT13, s * 6144, 512))
        p.extend(R2T)
        p(f"v_add_u32 {L16H}, 0x2000, {L16}")
        t4 = o.get('wot4', 16)
        assert t3 + t2 + t4 >= 16
        p.extend(flat(woq[:t4]))
        for s in range(4):
            p.append(mf16(RCS, SEL, a_(128 + 4 * s, 4), "0" if s == 0 else None))
            p(f"buffer_store_dwordx4 {a_(128+4*s,4)}, {L16}, {WS}, {sRW} offen offset:{s*1024} {o.get('rfl', 'sc1').replace('_', ' ')}", tag=f"pubR{s}")
            if dup & 1:
                p(f"buffer_store_dwordx4 {a_(128+4*s,4)}, {L16H}, {WS}, {sRW} offen offset:{s*1024} sc1", tag=f"pubR{s}")
        p.extend(R2S)
        p(f"buffer_atomic_add_f32 v{RCS}, {CSAT}, {WS}, {sRC} offen", tag="pubC")
        self.stamp("A_rst")
        p(f"s_add_u32 {sSIG}, {sSIG}, 4096")
        self.wo_rest = woq[t4:]
        self.mb_rest = MB[nb:]

    def dmaT(self, t, slot):
        g = []
        for h in range(2):
            S = Seq()
            S(f"s_add_u32 m0, {bTL}, {slot*32768+h*4096}\ns_add_u32 {sT0}, {bTX if self.o.get('grp', 1) and par13(t) and not self.o.get('dup', 3) & 1 else bTA}, {t*65536+h*4096}")
            for k in range(4):
                S(f"buffer_load_dwordx4 {L16}, {WS}, {sT0} offen offset:{k*1024} sc1 lds", tag=f"T{t}")
                g.append(list(S))
                S = Seq()
            ctx(g[-4:])
        return g

    def phaseB(self):
        p = self.p
        o = self.o
        AH = 192
        W = [trpair(('a', 4 * i), f"v{WOT+((i>>2)&3)}", (i & 3) * 4096, 1024) for i in range(32)]
        PQR = 224
        LD = [Inst(f"buffer_load_dwordx2 v[32:33], v41, {WS}, {sZL} offen sc1")]
        for q in range(4):
            for i in (2 * q, 2 * q + 1):
                LD.append(Inst(f"buffer_load_dwordx4 {v(48+4*i,4)}, {L16}, {WS}, {sKVL if i < 4 else bK2} offen offset:{(i&3)*1024} sc1"))
            for i in (2 * q, 2 * q + 1):
                LD.append(Inst(f"buffer_load_dwordx4 {a_(PQR+4*i,4)}, {L16}, {WS}, {sPQL if i < 4 else bQ2} offen offset:{(i&3)*1024} sc1"))
        ZB = Seq()(f"v_cvt_pk_bf16_f32 v32, v32, v33\nds_write_b32 {ZBW}, v32")
        for k in range(4):
            ZB(f"ds_read_b128 {v(96+4*k,4)}, {ZBR} offset:{k*64}")
        p("WAITTAG WO0\ns_barrier")
        self.stamp("B_wo")
        pm = o.get('pm', 0)
        pl = list(Seq()(f"""s_cmp_eq_u32 {sW}, 1
             s_cselect_b32 {bGP}, {bGP}, {hex(OOB)}
             s_cselect_b64 s[26:27], 0xffff, 0
             buffer_load_dword v5, {P256}, {WS}, {bGP} offen sc1"""))
        if pm == 2:
            p.extend(pl)
        p.extend(flat(W[:16]))
        if pm == 1:
            p.extend(pl)
        for q in range(4):
            p(f"v_add_u32 v{WOT+q}, 0x10000, v{WOT+q}")
        mb2 = o.get('mb2', 30)
        p.extend(self.mb_rest[:mb2])
        self.stamp("B_prepoll")
        if pm:
            self.spin("v5", P256, bGP, "s[26:27]", "16", sleep=o.get('sleep1', 1), mode='check')
        else:
            self.spin("v5", P256, bGP, "0xffff", "16", sleep=o.get('sleep1', 1), wave=o.get('pw', 1))
        if o.get('seg0'):
            p("WAITTAG WO1x pubR0")
            self.stamp("B_r0")
            p("WAITTAG pubR3")
            self.stamp("B_r3")
            p("WAITTAG pubR")
            self.stamp("B_r5")
        p("WAITTAG pubC")
        self.stamp("B_rack")
        p("WAITALL lgkm\ns_barrier")
        self.stamp("B_sync1")
        LD.insert(o.get('rsat', 0), Inst(f"buffer_atomic_add v4, {P4K}, {WS}, {sSIG} offen sc1"))
        nl0 = o.get('nl0', 14)
        p.extend(LD[:10] + [Inst('s_nop 0')] + self.mb_rest[mb2:] + ZB + LD[10:nl0])

        def prep(q):
            S = Seq()
            for k in range(4):
                S(f"v_cvt_pk_bf16_f32 v{80+4*q+k}, v{48+8*q+2*k}, v{48+8*q+2*k+1}")
            for k in range(4):
                S(f"v_cndmask_b32 v{112+8*q+k}, v{80+4*q+k}, v{96+4*q+k}, {sB4LANES}")
            for k in range(4):
                S(f"v_cndmask_b32 v{116+8*q+k}, v{96+4*q+k}, v{80+4*q+k}, {sB4LANES}")
            return S
        NA = [144, 160, 176]
        steps = [(pr + k, t) for pr in (0, 2) for t in range(3) for k in range(2)]
        d16 = o.get('d16', 1)
        steps += [(pr, t) for t in (3, 4, 5, 6) for pr in range(4)]
        w2o = [f"{cW2x if o.get('grp', 1) and par2(pr, t) and not o.get('dup', 3) & 2 else cW2}, {pr * 32768 + (t >> 2) * 16384 + (t & 3) * 2048}" for pr, t in steps]
        hho = [pr * 16384 + t * 1024 for pr, t in steps]
        w2l = []
        for i in range(16):
            S = Seq()
            if d16:
                ad = W2B if i & 1 else W2A
                if i % 2 == 0:
                    S(f"s_add_u32 {sKC}, {w2o[i]}")
                S(f"buffer_load_dwordx4 {a_(128+8*i,4)}, {ad}, {WS}, {sKC} offen sc1")
                w2l.append(list(S))
                w2l.append([Inst(f"buffer_load_dwordx4 {a_(132+8*i,4)}, {ad}, {WS}, {sKC} offen offset:256 sc1")])
                if i & 1:
                    ctx(w2l[-4:])
                continue
            S(f"s_add_u32 {sKC}, {w2o[i]}")
            S(f"buffer_load_dwordx4 {a_(128+8*i,4)}, {W2A}, {WS}, {sKC} offen sc1")
            w2l.append(list(S))
            w2l.append([Inst(f"buffer_load_dwordx4 {a_(132+8*i,4)}, {W2B}, {WS}, {sKC} offen sc1")])
            ctx(w2l[-2:])
        self.steps, self.w2o, self.hho = steps, w2o, hho
        nw1, nw2 = (o.get('nw1', 6), o.get('nw2', 6)) if o.get('e2', 0) else (0, 0)
        assert nw1 <= 24
        W1, W2_, w2l = w2l[:nw1], w2l[nw1:nw1 + nw2], w2l[nw1 + nw2:]
        self.n_w2rest = len(w2l)
        TQ = flat([self.dmaT(t, t) for t in range(2)]) + w2l
        n2, n3 = o.get('tq2', 6), o.get('tq3', 10)

        def num(i):
            return mf32(NA[i % 3], v(112 + 4 * i, 4), a_(PQR + 4 * i, 4), "0")

        def fin(i):
            n = NA[i % 3] + 8 * (i & 1)
            d = NA[i % 3] + 8 * (1 - (i & 1))
            S = Seq()
            S(f"v_add_f32 v{d}, {sEPS6}, v{d}\nv_rcp_f32 v{d}, v{d}")
            for k in range(8):
                S(f"v_mul_f32 v{n+k}, v{n+k}, v{d}")
            for k in range(4):
                S(f"v_cvt_pk_bf16_f32 v{48+4*i+k}, v{n+2*k}, v{n+2*k+1}")
            return S

        def owrite(i):
            return Inst(f"ds_write_b128 v{OAD}, {v(48+4*i,4)} offset:{(i>>2)*16384+(i&3)*1024}", tag=f"o{i}")

        OR = (16, 20, 36, 44, 208, 248)

        def oreg(k):
            return OR[k % 6] if k < 16 else 80 + 4 * (k & 7)

        def oread(k):
            return Inst(f"ds_read_b128 {v(oreg(k),4)}, v{OAD+((k>>2)&3)} offset:{(k>>4)*16384+(k&3)*1024}")

        def acc(k):
            own = (k & 12) == 0
            return mf32(AH, a_(4 * k, 4), v(48 + 4 * ((k >> 4) * 4 + (k & 3)) if own else oreg(k), 4))
        self.stamp("bz")
        p.extend(prep(0))
        self.stamp("bp")
        p.append(num(0))
        p.append(num(1))
        VM = [[x] for x in LD[nl0:]] + list(self.wo_rest)
        per = o.get('per', 3)
        rl, rc = o.get('rl', 7), o.get('rc', 8)
        kk = 4
        for i in range(8):
            if i + 2 < 8:
                if i % 2 == 0:
                    p.extend(prep(i // 2 + 1))
                p.append(num(i + 2))
            if i >= 1:
                p.append(owrite(i - 1))
            if i == 5:
                p("WAITTAG o3\ns_barrier")
                p.extend([oread(k) for k in range(4, 9)])
            for _ in range(per):
                if VM:
                    p.extend(VM.pop(0))
            if i == rl:
                p(f"buffer_load_dword v5, {P256}, {WS}, {bRP} offen sc1")
            if i >= 5:
                for _ in range(-(-nw1 // 3)):
                    if W1:
                        p.extend(W1.pop(0))
            F = fin(i)
            self.stamp(f"b{i}")
            if i < 5:
                p.extend(F[:7])
                if i >= 1:
                    p.append(acc(i - 1))
                p.extend(F[7:])
            else:
                cuts = (8, 14) if i == 5 else (2, 6, 10, 14)
                lo = 0
                for c in cuts:
                    p.extend(F[lo:c])
                    lo = c
                    p.append(acc(kk))
                    if kk + 5 < 16:
                        p.append(oread(kk + 5))
                    kk += 1
        p.append(owrite(7))
        assert not VM
        self.stamp("B_st1")
        p.append(acc(kk))
        p("WAITTAG WO1 o7\ns_barrier")
        for k in range(16, 20):
            p.extend(W[k])
        assert kk == 14
        G = [[acc(15)] + W[20] + [oread(20)]]
        for k in range(16, 32):
            g = [acc(k)]
            if k + 5 < 32:
                g += W[k + 5] + [oread(k + 5)]
            G.append(g)
        if rl >= 8:
            G[rl - 8] += [Inst(f"buffer_load_dword v5, {P256}, {WS}, {bRP} offen sc1")]
        G[rc] += self.sub(lambda: self.spin("v5", P256, bRP, "0xffff", "16", mode='check', sleep=2))
        G = weave(G, W2_, 0, rc)
        G = weave(G, TQ[:n2], rc + 1, 17)
        p.extend(flat(G))
        for k in range(8):
            p(f"v_cvt_pk_bf16_f32 v{48+k}, v{AH+2*k}, v{AH+2*k+1}")
            if k == 3:
                p(f"buffer_store_dwordx4 v[48:51], {L16}, {WS}, {sHST} offen sc1", tag="pub2")
        p(f"buffer_store_dwordx4 v[52:55], {L16}, {WS}, {sHST} offen offset:1024 sc1", tag="pub2")
        p(f"v_add_f32 v56, v{AH}, v{AH+1}\nv_mul_f32 v57, v{AH}, v{AH}\nv_add_f32 v58, v{AH+2}, v{AH+3}\nv_mul_f32 v59, v{AH+1}, v{AH+1}")
        for k in range(2, 16):
            if k >= 4:
                p(f"v_add_f32 v{56+2*(k&1)}, v{56+2*(k&1)}, v{AH+k}")
            p(f"v_fmac_f32 v{57+2*(k&1)}, v{AH+k}, v{AH+k}")
        p("""v_add_f32 v56, v56, v58
             v_add_f32 v57, v57, v59
             v_permlane32_swap_b32 v56, v57
             v_add_f32 v56, v56, v57""")
        p(f"buffer_atomic_add_f32 v56, {L4}, {WS}, {sSTA} offen", tag="pub2")
        self.stamp("B_hst")
        for t in range(7):
            p(f"buffer_load_dword v{160+t}, {CSL}, {WS}, {cCS} offen offset:{t*128} sc1")
        p.extend(flat(TQ[n2:n2 + n3]))
        p(f"WAITTAG pub2\nbuffer_store_dword v4, {FA1}, {WS}, {sD} offen offset:512 sc1\ns_barrier")
        self.t1_late = n2 < 16
        self.stamp("B_sig")
        self.tq_rest = TQ[n2 + n3:]

    def miscC(self):
        M = Seq()
        def half(d, x):
            return f"s_and_b32 {d}, {x if self.o.get('grp', 1) else sW}, 1\ns_lshl_b32 {d}, {d}, 13"

        def near(d, x):
            return f"s_lshl_b32 {d}, {x}, 11\ns_xor_b32 {d}, {d}, {bGP}\ns_and_b32 {d}, {d}, 0x2000"
        DL = "v45"
        if self.o.get('d16', 1):
            M(f"""v_bfe_u32 v46, v1, 4, 1
                 v_and_b32 {DL}, 0xf0, {L16}
                 v_lshl_add_u32 {DL}, v46, 9, {DL}
                 v_lshrrev_b32 v46, 5, v1""")
        else:
            M(f"v_mov_b32 {DL}, {L16}\nv_mov_b32 v46, 0")
        M(f"""s_bfe_i32 {sT1}, {sTBL}, 0x10010
             s_xor_b32 {sT1}, {sT1}, {sTBL}
             s_and_b32 {sT1}, {sT1}, 0xe000
             s_bcnt1_i32_b32 {sT1}, {sT1}
             s_sub_u32 {sT1}, {sKC}, {sT1}""")
        if self.o.get('cmap', 1):
            M(f"""s_and_b32 {sGC}, {sT1}, 4
                 s_lshl_b32 {sGC}, {sGC}, 1
                 s_and_b32 {sT2}, {sU}, 7
                 s_add_u32 {sGC}, {sGC}, {sT2}
                 s_and_b32 {sMC}, {sT1}, 3
                 s_lshl_b32 {sMC}, {sMC}, 2
                 s_lshr_b32 {sT2}, {sU}, 3
                 s_add_u32 {sMC}, {sMC}, {sT2}""")
        else:
            M(f"""s_and_b32 {sGC}, {sT1}, 6
                 s_lshl_b32 {sGC}, {sGC}, 1
                 s_add_u32 {sGC}, {sGC}, {sRQ}
                 s_and_b32 {sMC}, {sT1}, 1
                 s_lshl_b32 {sMC}, {sMC}, 3
                 s_lshr_b32 {sT2}, {sU}, 2
                 s_add_u32 {sMC}, {sMC}, {sT2}""")
        M(f"""s_lshl_b32 {sT1}, {sGC}, 10
             s_lshl_b32 {sT2}, {sGC}, 12
             s_xor_b32 {sP2}, {sT1}, {sT2}
             s_and_b32 {sP2}, {sP2}, 0x2000
             s_xor_b32 {sP2}, {sP2}, {sPE}
             s_lshl_b32 {bTA}, {sMC}, 19
             s_add_u32 {bTA}, {bTA}, {sXL}
             {near(sT2, sMC) if self.o.get('dup', 3) & 1 else half(sT2, sMC)}
             s_add_u32 {bTA}, {bTA}, {sT2}
             s_add_u32 {bTA}, {bTA}, {hex(W13R)}
             s_xor_b32 {bTX}, {bTA}, 0x2000""")
        M(f"""s_lshl_b32 {sT1}, {sGC}, 2
             s_add_u32 {sT2}, {sT1}, {sW}
             s_lshl_b32 {cHS2}, {sT2}, 4
             s_add_u32 {cHS2}, {cHS2}, {sMC}
             s_lshl_b32 {cHS2}, {cHS2}, 14
             s_add_u32 {cHS2}, {cHS2}, {hex(HH+4096)}
             s_xor_b32 {cHS2}, {cHS2}, {sP2}
             s_lshl_b32 {cHB}, {sT2}, 16
             s_add_u32 {cHB}, {cHB}, {hex(HB)}
             s_xor_b32 {cHB}, {cHB}, {sPE}
             s_sub_u32 {cHS}, {cHS2}, 4096
             s_lshl_b32 {sT3}, {sMC}, 14
             s_sub_u32 {cPL}, {cHS2}, {sT3}
             s_add_u32 {cPL}, {cPL}, {3072+512}
             s_add_u32 {cST}, {cPL}, 256
             v_lshlrev_b32 {HPA}, 14, v1
             v_and_b32 {PA2}, 12, {L4}
             v_or_b32 {PA2}, {PA2}, {LM8}
             v_bfe_u32 v44, v1, 2, 1
             v_lshl_add_u32 {PA2}, v44, 18, {PA2}
             s_mul_i32 {cCS}, {sMC}, {7*128}
             s_add_u32 {cCS}, {cCS}, {hex(CS)}
             s_and_b32 {sCB}, {sMC}, 7
             s_lshl_b32 {cW2}, {sCB}, 19
             s_lshl_b32 {sT3}, {sW}, 17
             s_add_u32 {cW2}, {cW2}, {sT3}
             {near(sT3, sCB) if self.o.get('dup', 3) & 2 else half(sT3, sCB)}
             s_add_u32 {cW2}, {cW2}, {sT3}
             s_add_u32 {cW2}, {cW2}, {hex(W2R)}
             s_xor_b32 {cW2x}, {cW2}, 0x2000
             s_and_b32 {sT3}, {sW}, 1
             s_lshl_b32 {sT2}, {sT3}, 10
             v_add_u32 {W2A}, {sT2}, {DL}
             v_xor_b32 {W2B}, 1024, {W2A}
             v_lshrrev_b32 v44, 4, v1
             v_lshl_add_u32 {LB0}, v44, {8 if self.o.get('c16', 1) else 31}, {L16}
             v_and_b32 {LB0}, 0xffff, {LB0}
             v_add_u32 {LB1}, 0x10000, {LB0}
             v_add_u32 {LB2}, 0x20000, {LB0}
             s_add_u32 {sT2}, {bTL}, 0x10000
             v_add_u32 {WLA}, {sT2}, {W2A}
             v_add_u32 {WLB}, {sT2}, {W2B}
             v_lshl_add_u32 {WLA}, v46, 11, {WLA}
             v_lshl_add_u32 {WLB}, v46, 11, {WLB}
             v_lshl_add_u32 {W2A}, v46, 15, {W2A}
             v_lshl_add_u32 {W2B}, v46, 15, {W2B}
             v_add_u32 {WLC}, 0x10000, {WLA}
             v_add_u32 {WLD}, 0x10000, {WLB}
             v_and_b32 {CSL}, 0x7c, {L4}
             s_lshr_b32 {sT2}, {sMC}, 3
             s_lshl_b32 {sT2}, {sT2}, 1
             s_add_u32 {sT1}, {sT1}, {sT2}
             s_lshl_b32 {cHL}, {sT1}, 18
             s_lshl_b32 {sT2}, {sW}, 16
             s_add_u32 {cHL}, {cHL}, {sT2}
             s_add_u32 {cHL}, {cHL}, {hex(HH)}
             s_xor_b32 {cHL}, {cHL}, {sP2}
             s_lshr_b32 {sT2}, {sW}, 1
             s_add_u32 {sT1}, {sT1}, {sT2}
             s_lshl_b32 {sT2}, {sT2}, 18
             v_add_u32 {HHA}, {sT2}, {DL}
             v_lshl_add_u32 {HHA}, v46, 14, {HHA}
             v_xor_b32 {HHB}, 0x40000, {HHA}
             s_lshl_b32 {sT1}, {sT1}, 15
             s_lshl_b32 {sT2}, {sCB}, 1
             s_add_u32 {sT2}, {sT2}, {sT3}
             s_lshl_b32 {cOUT}, {sT2}, 6
             s_add_u32 {cOUT}, {cOUT}, {sT1}
             s_lshr_b32 {cHR}, {sT2}, 2
             s_lshl_b32 {cHR}, {cHR}, 13
             s_add_u32 {cHR}, {cHR}, {sT1}
             s_and_b32 {sT2}, {sT2}, 3
             s_lshl_b32 {sT2}, {sT2}, 10
             s_add_u32 {cHR}, {cHR}, {sT2}
             s_lshl_b32 {cHR}, {cHR}, 1
             s_add_u32 {cHR}, {cHR}, {hex(HB)}
             s_xor_b32 {cHR}, {cHR}, {sPE}
             s_add_u32 {cPP}, {cHL}, 7168
             s_add_u32 {cPQ}, {cPP}, 0x40000
             s_and_b32 {sT3}, {sMC}, 3
             s_mul_i32 {sT3}, {sT3}, {16384-4}
             s_sub_u32 {cPS}, {cHS2}, {sT3}""")
        return list(M)

    def phaseCD(self):
        p = self.p
        o = self.o
        sub = self.sub
        bar = lambda s_: list(Seq()(s_))
        steps, w2o, hho = self.steps, self.w2o, self.hho

        def dmaW2(part):
            g = []
            for k in range(4):
                S = Seq()
                S(f"s_add_u32 m0, {bTL}, {(2+part)*32768+k*2048}\ns_add_u32 {sT0}, {w2o[16+4*part+k]}")
                S(f"buffer_load_dwordx4 {L16}, {WS}, {sT0} offen sc1 lds", tag=f"W2L{part}")
                g.append(list(S))
                g.append([Inst(f"buffer_load_dwordx4 {L16}, {WS}, {sT0} offen offset:1024 sc1 lds", tag=f"W2L{part}")])
                ctx(g[-2:])
            return g

        def pub(tag, st):
            if o.get('nopub'):
                return []
            return bar(f"WAITTAG {tag}\nbuffer_store_dword v4, {FA1}, {WS}, {cPS} offen offset:{3072+128*st} sc1")

        vp = str(o.get('vp', 'x0123'))

        def pollld(st):
            if o.get('nopoll'):
                return []
            if str(st) in vp:
                return bar(f"buffer_load_dword v5, {PA2}, {WS}, {cPP} offen sc1")
            return list(Seq()(f"""s_buffer_load_dwordx4 s[8:11], {WS}, {cPP} glc
                 s_buffer_load_dwordx4 s[12:15], {WS}, {cPQ} glc""", cond=True))

        def pollchk(st):
            if o.get('nopoll'):
                return []
            if str(st) in vp:
                return sub(lambda: self.spin("v5", PA2, cPP, "0xff", "1", mode='check', sleep=o.get('sleep2', 2))) + \
                    bar(f"s_add_u32 {cPP}, {cPP}, 128\ns_add_u32 {cPQ}, {cPQ}, 128")
            red = """s_and_b64 s[8:9], s[8:9], s[10:11]
                 s_and_b64 s[12:13], s[12:13], s[14:15]
                 s_and_b64 s[8:9], s[8:9], s[12:13]
                 s_and_b32 s8, s8, s9"""

            def f():
                Lp = self.lab("sp")
                if o.get('stamps') == 3:
                    self.p(f"s_mov_b32 {sT5}, 0")
                self.p("WAITALL lgkm\n" + red)
                self.ool("s_cbranch_scc0", f"""s_mov_b32 {sT5}, 0
                     {Lp}:
                     s_sleep {o.get('sleep2', 2)}
                     s_buffer_load_dwordx4 s[8:11], {WS}, {cPP} glc
                     s_buffer_load_dwordx4 s[12:15], {WS}, {cPQ} glc
                     s_add_u32 {sT5}, {sT5}, 1
                     s_waitcnt lgkmcnt(0)
                     {red}
                     s_lshr_b32 s9, {sT5}, 15
                     s_or_b32 s8, s8, s9
                     s_cbranch_scc0 {Lp}""")
                self.p(f"s_add_u32 {cPP}, {cPP}, 128\ns_add_u32 {cPQ}, {cPQ}, 128")
                if o.get('stamps') == 3:
                    self.p(f"v_writelane_b32 v{STV}, {sT5}, {self.nstamp}")
                    self.nstamp += 1
                    self.stamp_names.append(f"P{st}")
            return sub(f)

        kt = max(0, len(self.tq_rest) - self.n_w2rest)
        FQ = self.tq_rest[:kt] + self.dmaT(2, 2) + self.dmaT(3, 3) + self.dmaT(4, 4) + self.tq_rest[kt:]
        npre, npre2 = o.get('tq4', 12), o.get('tq5', 0)
        p.extend(flat(FQ[:npre]))
        FQ = FQ[npre:]
        c16 = o.get('c16', 1)
        CSR, CSF, MEANF, C1, C2 = 160, 168, 176, 180, 181
        CSU, CSG, MEANG = 213, 220, 228
        p("s_nop 0")
        for k in (1, 2, 3, 5, 6, 7, 9, 10, 11):
            p(f"v_mov_b32 v{CSF+k}, 0")
            if c16:
                p(f"v_mov_b32 v{CSG+k}, 0")
        for t in range(7):
            p.extend(split2(CSR + t, CSR + t, 184))
        if c16:
            for t in range(7):
                p(f"v_mov_b32 v{CSU+t}, v{CSR+t}")
            for t in range(7):
                p(f"v_permlane16_swap_b32 v{CSR+t}, v{CSU+t}")
            p(f"s_mov_b64 s[8:9], 0xffff\nv_mov_b32 v{CSG}, v{CSU}\nv_mov_b32 v{CSG+4}, v{CSU+1}")
        p(f"v_mov_b32 v{CSF}, v{CSR}\nv_mov_b32 v{CSF+4}, v{CSR+1}")
        p("s_nop 0")
        p.extend(flat(FQ[:npre2]))
        FQ = FQ[npre2:]
        self.stamp("C_prepoll")
        self.spin("v5", HPA, cPL, "0xffff", "1", mode='all', sleep=o.get('sleep3', 0))
        self.stamp("C_sync2")

        c16 = o.get('c16', 1)
        fo = (lambda s: (s >> 1) * 2048 + (s & 1) * 256) if c16 else (lambda s: s * 1024)

        def hload(s):
            S = Seq()
            if s % 4 == 0 and s:
                S(f"s_add_u32 {cHB}, {cHB}, {4096 if s % 8 else 12288}")
            S(f"buffer_load_dwordx4 {a_(4*s,4)}, {LB0}, {WS}, {cHB} offen offset:{fo(s&3)} sc1")
            return list(S)
        HL = o.get('hla', 10)
        for s in range(HL):
            p.extend(hload(s))
        if self.t1_late:
            p("WAITTAG T1\ns_barrier")
        ACC = [48, 64, 80, 96, 112]
        acc_of = [0, 1, 2, 3, 0, 1, 2]
        slot_of = [0, 1, 2, 3, 4, 0, 1]
        WR, NR = 128, 8
        CSR, CSF, MEANF, C1, C2 = 160, 168, 176, 180, 181
        T = 184
        LK = o.get('lk', 5)
        F0 = Seq()
        for k in range(4):
            F0(f"buffer_load_dword v{T+4+k}, {L4}, {WS}, {cST} offen sc1\ns_add_u32 {cST}, {cST}, 16384")
        F1 = Seq()
        F1(f"""v_add_f32 v{T}, v{T+4}, v{T+5}
             v_add_f32 v{T+1}, v{T+6}, v{T+7}
             v_add_f32 v{T}, v{T}, v{T+1}
             v_mov_b32 v{T+1}, v{T}
             v_permlane32_swap_b32 v{T}, v{T+1}
             v_mul_f32 v{T}, 0x3b000000, v{T}
             v_mul_f32 v{T+1}, 0x3b000000, v{T+1}
             v_cvt_pk_bf16_f32 v{MEANF}, -v{T}, -v{T}
             v_fma_f32 v{T+1}, -v{T}, v{T}, v{T+1}
             v_max_f32 v{T+1}, 0, v{T+1}
             v_add_f32 v{C2}, 0x3727c5ac, v{T+1}
             v_rsq_f32 v{C1}, v{C2}
             v_mul_f32 v{C1}, 0xbfb8aa3b, v{C1}""")
        if c16:
            prs = [(MEANF, MEANG), (C2, C2 + 2), (C1, C1 + 2)]
            for x, y in prs:
                F1(f"v_mov_b32 v{y}, v{x}")
            for x, y in prs:
                F1(f"v_permlane16_swap_b32 v{x}, v{y}")
            F1(f"""v_cndmask_b32 v{MEANF}, 0, v{MEANF}, s[8:9]
                 v_cndmask_b32 v{MEANG}, 0, v{MEANG}, s[8:9]""")
        else:
            F1(f"v_cndmask_b32 v{MEANF}, v{MEANF}, 0, {sHILANES}")

        def tread(t, s, n):
            sl = slot_of[t]
            base = (LB0, LB0, LB1, LB1, LB2)[sl]
            return [Inst(f"ds_read_b128 {v(WR+4*(n%NR),4)}, {base} offset:{(sl&1)*32768*(sl<4)+fo(s)}")]

        def corr(t):
            A = ACC[acc_of[t]]
            if c16:
                return [mf16(A + 8 * gu + 4 * th, v((CSF, CSG)[gu] + 4 * (t & 1), 4), v((MEANF, MEANG)[th], 4))
                        for gu, th in ((0, 0), (0, 1), (1, 1), (1, 0))]
            return [mf32(A, v(CSF + 4 * (t & 1), 4), v(MEANF, 4))]

        def cm(t, s, n):
            A, w = ACC[acc_of[t]], v(WR + 4 * (n % NR), 4)
            if not c16:
                return [mf32(A, w, a_(4 * s, 4), "0" if s == 0 else None)]
            gu = s & 1
            r = [mf16(A + 8 * gu + 4 * th, w, a_(8 * (s >> 1) + 4 * th, 4), "0" if s < 2 else None) for th in (gu, 1 - gu)]
            r[1].tag = "second"
            return r

        def spread(G):
            out = []
            for g in G:
                g = hoist(g)
                if len(g) > 1 and g[1].tag == "second":
                    m, rest, c, k = g[1], g[2:], 0, 0
                    m.tag = None
                    tot = sum(cost(x) for x in rest if not x.cond)
                    while k < len(rest) and c + cost(rest[k]) <= max(9.7, tot / 2 + 2.2) and not rest[k].cond \
                            and rest[k].kind not in ('branch', 'label') and not rest[k].op.startswith('v_cmp'):
                        c += cost(rest[k])
                        k += 1
                    g = [g[0]] + rest[:k] + [m] + rest[k:]
                out += g
            return out
        G = []
        for n in range(64):
            s, t = divmod(n, 2)
            g = cm(t, s, n)
            if n + LK < 64:
                g += tread((n + LK) % 2, (n + LK) // 2, n + LK)
            else:
                if n + LK == 64:
                    g += bar("WAITTAG T2\ns_barrier")
                g += tread(2, n + LK - 64, n + LK)
            if t == 0 and s + HL < 32:
                g += hload(s + HL)
            G.append(g)
        G.append(corr(0))
        G.append(corr(1))
        for n in range(LK):
            p.extend(tread(n % 2, n // 2, n))
        G = weave(G, list(F0), 1, o.get('f0', 20))
        G = weave(G, list(F1), o.get('f1', 40), 63)
        e0 = 2 * (32 - HL)
        ng = min(len(FQ), o.get('g1q', 8))
        G = weave(G, FQ[:ng], e0, 66)
        FQ = FQ[ng:]
        p.extend(spread(G))
        self.stamp("C_g1")

        def epi(t, tmp):
            A = ACC[acc_of[t]]
            S = Seq()
            for j in range(8):
                S(f"v_mul_f32 v{tmp+j}, v{A+j}, v{C1+2*c16*(j>>2)}")
            for j in range(8):
                S(f"v_exp_f32 v{tmp+j}, v{tmp+j}")
                S(f"v_mul_f32 v{A+j}, v{A+j}, v{A+8+j}")
            for j in range(8):
                S(f"v_fma_f32 v{tmp+j}, v{tmp+j}, v{C2+2*c16*(j>>2)}, v{C2+2*c16*(j>>2)}")
                if j >= 2:
                    S(f"v_rcp_f32 v{tmp+j-2}, v{tmp+j-2}")
            for j in range(8):
                S(f"v_mul_f32 v{A+j}, v{A+j}, v{tmp+j}")
                if j < 2:
                    S(f"v_rcp_f32 v{tmp+6+j}, v{tmp+6+j}")
            for j in (0, 2, 1, 3):
                S(f"v_cvt_pk_bf16_f32 v{tmp+8+j}, v{A+2*j}, v{A+2*j+1}")
            if c16:
                S(f"v_permlane16_swap_b32 v{tmp+8}, v{tmp+10}\nv_permlane16_swap_b32 v{tmp+9}, v{tmp+11}")
            S(f"buffer_store_dwordx4 {v(tmp+8,4)}, {L16}, {WS}, {cHS if t < 4 else cHS2} offen offset:{(t&3)*1024} sc1", tag=f"hh{t}")
            return list(S)

        def tilepass(t, n0):
            G = []
            for s in range(32):
                n = n0 + s
                g = cm(t, s, n)
                if s + LK < 32:
                    g += tread(t, s + LK, n + LK)
                elif t < 6:
                    if s + LK == 32:
                        g += bar(f"WAITTAG T{t+1}\ns_barrier")
                    g += tread(t + 1, s + LK - 32, n + LK)
                if s == 16:
                    g += bar(f"v_mov_b32 v{CSF+4*(t&1)}, v{CSR+t}")
                if s == 17 and c16:
                    g += bar(f"v_mov_b32 v{CSG+4*(t&1)}, v{CSU+t}")
                G.append(g)
            G.append(corr(t))
            return G

        d16 = o.get('d16', 1)

        def hhload(i):
            S = Seq()
            if d16:
                ad = HHB if i & 1 else HHA
                S(f"s_add_u32 {sCc}, {cHL}, {hho[i & ~1]}")
                S(f"buffer_load_dwordx4 {a_(8*(i&15),4)}, {ad}, {WS}, {sCc} offen sc1")
                return ctx([list(S), [Inst(f"buffer_load_dwordx4 {a_(8*(i&15)+4,4)}, {ad}, {WS}, {sCc} offen offset:256 sc1")]])
            S(f"s_add_u32 {sCc}, {cHL}, {hho[i]}")
            S(f"buffer_load_dwordx4 {a_(8*(i&15),4)}, {HHA}, {WS}, {sCc} offen sc1")
            return ctx([list(S), [Inst(f"buffer_load_dwordx4 {a_(8*(i&15)+4,4)}, {HHB}, {WS}, {sCc} offen sc1")]])

        EP = [epi(t, T + 12 * (t & 1)) for t in range(7)]
        P = {t: tilepass(t, 32 * t) for t in range(2, 7)}
        q = o.get('cq', 18)
        ee = o.get('ee', 20)
        LA = o.get('dla', 7)
        G = weave(P[2], FQ[:q], 0, 32)
        FQ = self.dmaT(5, 0) + FQ[q:]
        FQ = FQ[:q] + self.dmaT(6, 1) + FQ[q:] + dmaW2(0) + dmaW2(1) + dmaW2(2)
        G = weave(G, EP[0] + EP[1][:26], 2, 33)
        p.extend(self.xf(spread(G)))
        self.stamp("C_t2")
        q3 = min(q, len(FQ) - 24)
        G = weave(P[3], FQ[:q3], 0, 32)
        FQ = FQ[q3:]
        G = weave(G, EP[1][26:] + EP[2], 0, 33)
        p.extend(self.xf(spread(G)))
        self.stamp("C_t3")
        q4 = min(q, len(FQ) - 16)
        G = weave(P[4], FQ[:q4], 0, 32)
        FQ = FQ[q4:]
        G = weave(G, EP[3], 2, ee)
        G[o.get('p1at', 26)] += pub("hh2", 0)
        p.extend(self.xf(spread(G)))
        self.stamp("C_t4")
        q5 = min(q, len(FQ) - 8)
        G = weave(P[5], FQ[:q5], 0, 32)
        FQ = FQ[q5:]
        G[o.get('l1', 14)] += pollld(0)
        G[1] += bar(f"buffer_load_dwordx4 v[24:27], {L16}, {WS}, {cHR} offen sc1")
        G[3] += bar(f"buffer_load_dwordx4 v[28:31], {L16}, {WS}, {cHR} offen offset:1024 sc1")
        G = weave(G, EP[4], 2, ee)
        p.extend(self.xf(spread(G)))
        self.stamp("C_t5")
        G = P[6]
        c1 = o.get('c1', 1)
        n6 = min(o.get('n6', 0), len(FQ))
        if n6:
            G = weave(G, FQ[:n6], 0, max(c1, 1))
            FQ = FQ[n6:]
        G[c1] += pollchk(0)
        hq = [x for i in range(LA) for x in hhload(i)]
        G = weave(G, hq, c1 + 1, 33)
        S = Seq()
        if d16:
            for i in (24, 25, 28, 29):
                S(f"v_permlane16_swap_b32 v{i}, v{i+2}")
        for i in range(8):
            S(f"v_lshlrev_b32 v{48+2*i}, 16, v{24+i}\nv_and_b32 v{49+2*i}, {sMSKHI}, v{24+i}")
        for k in range(4):
            S(f"""s_xor_b32 {sT1}, {sW}, {k}
                 s_mul_i32 {sT1}, {sT1}, 12288
                 v_add_u32 v{36+k}, {sT1}, {L16}""")
        G = weave(G, list(S), ee + 1, 33)
        G = weave(G, EP[5], 2, ee)
        G[o.get('p2at', 12)] += pub("hh4", 1)
        p.extend(self.xf(spread(G)))
        self.stamp("C_t6")

        DA = [48, 64, 96, 112]

        def w2r(i, a):
            return (128, 168, 128)[(i - 16) // 4] + 8 * (i % 4) + 4 * a

        def w2read(i):
            part, k = divmod(i - 16, 4)
            r = bar(f"WAITTAG W2L{part}") if k == 0 else []
            for a in range(2):
                ad = ((WLA, WLB), (WLA, WLB), (WLC, WLD))[part][k & 1 if d16 else a]
                r.append(Inst(f"ds_read_b128 {v(w2r(i, a), 4)}, {ad} offset:{(part&1)*32768 + ((k&2)*2048 + a*256 if d16 else k*2048)}"))
            return r

        def w2f(i, a):
            return a_(128 + 8 * i + 4 * a, 4) if i < 16 else v(w2r(i, a), 4)

        def dm(i, k):
            a, b = k & 1, k >> 1
            if d16:
                j, ch = i & ~1, i & 1
                r = [mf16(DA[k] + 8 * ch + 4 * th, w2f(j + a, ch), a_(8 * ((j + b) & 15) + 4 * th, 4), "0" if j == 0 and k else None)
                     for th in (ch, 1 - ch)]
                r[1].tag = "second"
                return r
            return [mf32(DA[k], w2f(i, a), a_(8 * (i & 15) + 4 * b, 4), "0" if i == 0 and k else None)]
        nl = o.get('nl', 4)
        if d16:
            assert nl % 2 == 0
            G = [dm(j + ch, k) for j in range(0, 28 - nl, 2) for k in (0, 1, 3, 2) for ch in range(2)]
        else:
            G = [dm(i, k) for i in range(28 - nl) for k in (1, 3, 2, 0)]
        G += [dm(i, k) for k in (1, 3, 2, 0) for i in range(28 - nl, 28)]
        for i in range(16, 28):
            G[min(4 * i - 7 - 2 * d16 * (i & 1), 4 * (28 - nl) - 8 + (i - (28 - nl)))] += w2read(i)
        c2, c3, c4 = o.get('c2', 22), o.get('c3', 54), o.get('c4', 76)
        l2, l3, l4 = o.get('l2', 6), o.get('l3', 37), o.get('l4', 62)
        G[l2] += pollld(1)
        G = weave(G, EP[6], 1, o.get('e6', 11))
        G[o.get('p3at', 12)] += pub("hh5", 2)
        G[l3] += pollld(2)
        G[o.get('p4at', 38)] += pub("hh6", 3)
        G[o.get('dbar', 40)] += bar("s_barrier")
        hs = lambda a, b: [x for i in range(a, b) for x in hhload(i)]
        G = weave(G, hs(LA, 12), 0, c2)
        G[c2] += pollchk(1)
        nf = max(0, len(FQ) - o.get('nf', 8))
        G = weave(G, hs(12, 16) + FQ[:nf] + hs(16, 20), c2 + 1, c3)
        G[c3] += pollchk(2)
        G = weave(G, hs(20, 24), c3 + 1, l4)
        G[l4] += pollld(3)
        G = weave(G, FQ[nf:], l4 + 1, c4)
        G[c4] += pollchk(3)
        G = weave(G, hs(24, 28), c4 + 1, c4 + o.get('h4', 9))
        WRT = [[Inst(f"ds_write_b128 v{36+k}, {v(DA[k]+4*q_,4)} offset:{(k-1)*4096+q_*1024}") for q_ in range(4)] for k in (1, 3, 2)]
        if nl >= 2:
            for n in range(3):
                G = weave(G, WRT[n], 112 - (3 - n) * nl + 1, 112 - (2 - n) * nl + (1 if n < 2 else 0))
        else:
            G[111] += flat(WRT)
        for k in sorted(set(list(range(8, 112, 8)) + [c2 - 1, c2, c3 - 1, c3, c4 - 1, c4])):
            G[k] += sub(lambda: self.stamp(f"d{k}"))
        p.extend(self.xf(spread(G)))
        self.stamp("D_loop")
        p("WAITALL lgkm\ns_barrier")
        for q_ in range(4):
            for k in range(3):
                p(f"ds_read_b128 {v(160+16*k+4*q_,4)}, v36 offset:{k*4096+q_*1024}")
        for q_ in range(4):
            for j in range(2):
                r = 4 * q_ + 2 * j
                p(f"v_pk_add_f32 {v(48+r,2)}, {v(48+r,2)}, {v(160+r,2)}")
                p(f"v_pk_add_f32 {v(176+r,2)}, {v(176+r,2)}, {v(192+r,2)}")
            for j in range(2):
                r = 4 * q_ + 2 * j
                p(f"v_pk_add_f32 {v(48+r,2)}, {v(48+r,2)}, {v(176+r,2)}")
            for j in range(2):
                p(f"v_cvt_pk_bf16_f32 v{112+2*q_+j}, v{48+4*q_+2*j}, v{48+4*q_+2*j+1}")
            if q_ & 1 and d16:
                p(f"v_permlane16_swap_b32 v{110+2*q_}, v{112+2*q_}\nv_permlane16_swap_b32 v{111+2*q_}, v{113+2*q_}")
            if q_ & 1:
                p(f"buffer_store_dwordx4 {v(112+4*(q_>>1),4)}, {ROWA}, {OUT}, {cOUT} offen offset:{32*(q_>>1)}" + ["", " sc1", " nt", " sc0 sc1"][o.get('outst', 0)])
        self.stamp("D_end")

    def finish(self):
        p = self.p
        if self.o.get('stamps'):
            p("WAITALL vm")
            self.stamp("D_drained")
            p(f"""s_lshl_b32 {sT0}, s2, 2
                 s_add_u32 {sT0}, {sT0}, {sW}
                 s_lshl_b32 {sT0}, {sT0}, 7
                 s_add_u32 {sT0}, {sT0}, {hex(STAMP)}
                 s_mov_b32 exec_hi, 0
                 buffer_store_dword v{STV}, {L4}, {WS}, {sT0} offen""")
        if self.o.get('padto'):
            p("WAITALL vm")
            if self.o.get('skew') is not None:
                p(f"""buffer_load_dword v43, off, {DBG}, 0 offset:128 sc1
                     buffer_load_dword v41, off, {DBG}, 0 offset:192 sc1
                     v_not_b32 v43, v43
                     v_readfirstlane_b32 s72, v43
                     v_readfirstlane_b32 s73, v41""")
                if self.o['skew'] < 0:
                    p("s_sub_u32 s101, s73, s72")
                else:
                    p("s_sub_u32 s101, s100, s72")
                p(f"""s_min_u32 s101, s101, 2000
                     s_lshl_b32 s101, s101, 3
                     s_add_u32 s100, s72, s101
                     s_lshl_b32 s72, s2, 2
                     s_add_u32 s72, s72, {sW}
                     s_cmp_lg_u32 s72, {max(self.o['skew'], 0) * 4}
                     s_cbranch_scc1 L_end""")
            if self.o.get('mx'):
                p(f"""s_lshl_b32 s72, s101, 8
                     s_add_u32 s72, s72, s2
                     v_mov_b32 v41, s72
                     s_cmp_eq_u32 {sW}, 0
                     s_cselect_b32 s73, 0, {hex(OOB)}
                     buffer_atomic_umax v41, {FA1}, {DBG}, s73 offen offset:192 sc1
                     s_waitcnt vmcnt(0)
                     L_pad0:
                     s_memrealtime s[72:73]
                     s_waitcnt lgkmcnt(0)
                     s_sub_u32 s72, s72, s100
                     s_cmp_lt_i32 s72, {self.o['padto']-200}
                     s_cbranch_scc1 L_pad0
                     buffer_load_dword v41, off, {DBG}, 0 offset:192 sc1
                     v_readfirstlane_b32 s72, v41""")
                if self.o['mx'] == 1:
                    p("s_lshl_b32 s101, s101, 8\ns_sub_u32 s101, s72, s101\ns_lshr_b32 s101, s101, 8\ns_min_u32 s101, s101, 1000\ns_lshl_b32 s101, s101, 4")
                elif self.o['mx'] == 2:
                    p("s_bfe_u32 s101, s72, 0x50003\ns_mul_i32 s101, s101, 200")
                else:
                    p("s_and_b32 s101, s72, 7\ns_mul_i32 s101, s101, 500")
                p("s_add_u32 s100, s100, s101")
            if self.o.get('seg0'):
                p(f"s_lshl_b32 s72, s2, 2\ns_add_u32 s72, s72, {sW}\ns_cmp_lg_u32 s72, {self.o.get('segw', 150)}\ns_cbranch_scc1 L_end")
            p("L_pad:\ns_memrealtime s[72:73]\ns_waitcnt lgkmcnt(0)\ns_sub_u32 s72, s72, s100")
            p(f"s_cmp_lt_i32 s72, {self.o['padto']}\ns_cbranch_scc1 L_pad")
        p("L_end:\ns_endpgm")

    def build(self):
        if self.o.get('stamps') or self.o.get('padto'):
            self.p("s_memtime s[100:101]" if self.o.get('stamps') == 2 else "s_memrealtime s[100:101]")
        self.setup()
        if self.o.get('seg0') == 'start':
            self.p("s_mov_b32 s101, s100")
        if self.o.get('stamps'):
            self.p(f"v_mov_b32 v{STV}, s100")
            self.nstamp = 1
            self.stamp_names.append("start")
        self.p.extend(self.xf(self.sub(self.phaseA), 'xa'))
        self.p.extend(self.xf(self.sub(self.phaseB), 'xb'))
        self.phaseCD()
        self.finish()
        sk = str(self.o.get('skel', ''))
        if sk:
            Q = Seq()
            for i in self.p:
                if 'm' in sk and i.kind == 'mfma':
                    r = sorted(i.srcab)
                    for x in (r[0], r[-1]):
                        Q(f"v_accvgpr_read_b32 v40, {x}" if x[0] == 'a' else f"v_mov_b32 v40, {x}")
                    continue
                if 'e' in sk and i.kind in ('valu', 'trans') and not i.cond and i.op.endswith(('f32', 'f32_e64')):
                    continue
                if 'v' in sk and i.kind in ('vload', 'dma') and not i.cond and 'dwordx4' in i.op:
                    continue
                if 's' in sk and i.kind == 'vstore' and not i.cond and (i.wide or 'f32' in i.op) and 'v[176:179]' not in i.text:
                    continue
                Q.append(i)
            self.p = Q
        ns = str(self.o.get('nosc', ''))
        for i in self.p:
            if i.kind in ('vload', 'dma') and 'dwordx' in i.op and not i.cond:
                for ch, regs in (('k', (sKVL, bK2, sZL)), ('q', (sPQL, bQ2)), ('h', (cHB,)), ('t', (sT0, sKC)), ('d', (sCc,))):
                    if ch in ns and any(f"{WS}, {r} " in i.text for r in regs):
                        i.text = i.text.replace(" sc1", "")
        import dsl
        dsl.MERGE = self.o.get('mg', 1)
        return finalize(self.p, self.o.get('fill', 1))


def emit(opt):
    g = Gen(opt)
    prog = g.build()
    hdr = open(os.path.join(os.path.dirname(os.path.abspath(__file__)), "header.txt")).read()
    body = "\n".join(("" if i.kind == 'label' else "    ") + i.text for i in prog)
    txt = hdr + f"""; @launch grid=(256,1,1) block=(256,1,1) lds=163840
.amdgcn_target "amdgcn-amd-amdhsa--gfx950"
.set CODE_PF_MAX, {opt.get('code_bytes', 0)}
.text
.globl {NAME}_kernel
.p2align 8
.type {NAME}_kernel,@function
{NAME}_kernel:
{body}
.section .rodata,"a"
.p2align 6
.amdhsa_kernel {NAME}_kernel
  .amdhsa_next_free_vgpr 512
  .amdhsa_next_free_sgpr 102
  .amdhsa_accum_offset 256
  .amdhsa_group_segment_fixed_size 0
  .amdhsa_kernarg_size 80
  .amdhsa_user_sgpr_count 2
  .amdhsa_user_sgpr_kernarg_segment_ptr 1
  .amdhsa_system_sgpr_workgroup_id_x 1
.end_amdhsa_kernel
"""
    return txt, g.stamp_names


def code_size(txt):
    import subprocess, tempfile
    with tempfile.TemporaryDirectory() as d:
        open(d + "/k.s", "w").write(txt)
        r = subprocess.run(["clang", "-x", "assembler", "-target", "amdgcn-amd-amdhsa",
                            "-mcpu=gfx950", "-c", d + "/k.s", "-o", d + "/k.o"], capture_output=True, text=True)
        if r.returncode:
            print("\n".join(r.stderr.split("\n")[:30]))
            raise SystemExit(1)
        r = subprocess.run(["llvm-objdump", "-h", d + "/k.o"], capture_output=True, text=True)
        for line in r.stdout.split("\n"):
            f = line.split()
            if len(f) > 2 and f[1] == ".text":
                return int(f[2], 16)


def main():
    opt = {}
    out = None
    for a in sys.argv[1:]:
        if '=' in a:
            k, val = a.split('=')
            try:
                opt[k] = int(val, 0)
            except ValueError:
                opt[k] = val
        else:
            out = a
    opt['code_bytes'] = 4096
    txt, names = emit(opt)
    sz = code_size(txt)
    opt['code_bytes'] = (sz - 1024) & ~3
    txt, names = emit(opt)
    open(out, "w").write(txt)
    if names:
        open(out + ".names", "w").write(" ".join(names))
    print(out, "code bytes", sz, "lines", txt.count("\n"), "stamps", len(names))


if __name__ == "__main__":
    main()
```

```python
import sys, os
sys.path.insert(0, os.path.dirname(os.path.abspath(__file__)))
from dsl import *

NAME = "sequential_preLN__linear_attn_block__glu_gated_swiglu__prompt"

CNT = 0x20000
KVM = 0x10000
ST = 0x18000
CS = 0x1C000
ZP = 0x1F800
STAMP = 0xC0000
PQ = 0x400000
HB = 0x800000
HH = 0x1000000
W13R = 0x2000000
W2R = 0x2800000
PROBE = 0x100000
WS_SIZE = 0x2C00000
OOB = 0x7f000000

X, WQKV, WO, W1, W3, W2, OUT, WS, DBG = [f"s[{a}:{a+3}]" for a in range(4, 40, 4)]
(sW, sG, sM, sC0, sT0, sT1, sT2, sT3, sXB, sWB, sXL, sWL, sTB, sCB, sRQ, sLOG2E,
 sU, sKC, sT4, sT5, sMSKHI, sEPS6) = [f"s{i}" for i in range(40, 62)]
sHILANES = "s[62:63]"
sB4LANES = "s[64:65]"
sA, sB, sCc, sD = "s66", "s67", "s68", "s69"
sKVA, sZA, sPQS, sRW, sR2, sRC, sKVL, sZL, sPQL, sSIG, sHST, sSTA = [f"s{i}" for i in range(84, 96)]
sMA, sTA, sHS = "s3", "s74", "s83"
sP1, sPE, sP2, sTBL = "s96", "s97", "s98", "s99"
STV = 0

VB, KB, XCH, RST, KVS, ZS = 0x10000, 0x18000, 0x20000, 0x22000, 0, 0x21000

L16, L4 = "v2", "v3"
TRK, TRP = 152, 156
XCW, XCR, KVW, ZW, STW, KVR, ZR, ZAT, STR = [f"v{i}" for i in range(212, 221)]
WOD, WOT, OAD = 221, 225, 229
ROWA, ZBW, ZBR, P256 = "v233", "v234", "v235", "v236"
RL1, RL3, RL2, RT13, RT2A, RT2B, CSAT, P4K, FA1, LM8, PA2 = [f"v{i}" for i in range(237, 248)]
RCS = 248
L16H = "v47"


def v(a, n=1):
    return f"v{a}" if n == 1 else f"v[{a}:{a+n-1}]"


def a_(a, n=1):
    return f"a{a}" if n == 1 else f"a[{a}:{a+n-1}]"


def mf32(d, A, B, c=None):
    return Inst(f"v_mfma_f32_32x32x16_bf16 {v(d,16)}, {A}, {B}, {v(d,16) if c is None else c}")


def mf16(d, A, B, c=None):
    return Inst(f"v_mfma_f32_16x16x32_bf16 {v(d,4)}, {A}, {B}, {v(d,4) if c is None else c}")


def mf4(d, A, B, c=None):
    return Inst(f"v_mfma_f32_4x4x4_16b_bf16 {v(d,4)}, {A}, {B}, {v(d,4) if c is None else c}")


def trpair(dst, addr, off, step):
    k, b = dst
    return [Inst(f"ds_read_b64_tr_b16 {k}[{b}:{b+1}], {addr} offset:{off}"),
            Inst(f"ds_read_b64_tr_b16 {k}[{b+2}:{b+3}], {addr} offset:{off+step}")]


def par13(t):
    return (t >> 1) & 1


def par2(pr, t):
    return (pr >> 1) if t < 3 else (t & 1) ^ 1


def split2(dst, src, t):
    return Seq()(f"""v_cvt_pk_bf16_f32 v{t}, v{src}, v{src}
         v_lshlrev_b32 v{t}, 16, v{t}
         v_sub_f32 v{t}, v{src}, v{t}
         v_cvt_pk_bf16_f32 v{dst}, v{src}, v{t}""")


cHB, cST, cHS, cHR, cCS, cW2, cHL, cOUT, cHS2 = [f"s{i}" for i in range(75, 84)]
cPP, cPQ, cPS, cPL, bTA, bTL, bK2, bQ2, bGP, bRP, bTX, cW2x, sGC, sMC = [f"s{i}" for i in (4, 5, 6, 7, 16, 17, 18, 19, 20, 21, 22, 23, 24, 25)]
W2A, W2B, LB1, LB2, WLA, WLB, WLC, WLD = [f"v{i}" for i in range(6, 14)]
CSL, HHA, HHB, HPA, LB0 = "v14", "v15", "v42", "v43", "v212"


class Gen:
    def __init__(self, opt):
        self.o = opt
        self.p = Seq()
        self.nl = 0
        self.nstamp = 0
        self.stamp_names = []

    def lab(self, s):
        self.nl += 1
        return f"L_{s}_{self.nl}"

    def stamp(self, name):
        if self.o.get('padat') == name:
            self.p("WAITALL lgkm\ns_memrealtime s[100:101]\nWAITALL lgkm")
        if self.o.get('seg0') == name:
            self.p("WAITALL lgkm\ns_memrealtime s[72:73]\nWAITALL lgkm\ns_mov_b32 s101, s72")
        if self.o.get('seg1') == name:
            self.p("WAITALL lgkm\ns_memrealtime s[72:73]\nWAITALL lgkm\ns_sub_u32 s101, s72, s101")
            if self.o.get('lo') is not None:
                self.p(f"s_cmp_lt_u32 s101, {self.o['thr']}\ns_movk_i32 s101, {self.o['hi']}\ns_cselect_b32 s101, {self.o['lo']}, s101")
            else:
                self.p("s_lshl_b32 s101, s101, 4")
            self.p("s_add_u32 s100, s100, s101")
        if self.o.get('stamps', 3) == 3:
            return
        fine = str(self.o.get('fine', ''))
        if name[0].islower() and name[0] not in fine:
            return
        if fine and name[0].isupper() and name[0].lower() not in fine and name not in ('C_t6', 'B_sync1', 'C_sync2', 'D_drained', 'A_loop', 'A_v', 'A_q'):
            return
        p = self.p
        if self.o.get('nb'):
            if self.nstamp > 1:
                p(f"v_writelane_b32 v{STV}, s72, {self.nstamp-1}", cond=True)
            p("s_memrealtime s[72:73]" if self.o['stamps'] == 1 else "s_memtime s[72:73]", cond=True)
            if name == 'D_drained':
                p(f"s_waitcnt lgkmcnt(0)\nv_writelane_b32 v{STV}, s72, {self.nstamp}", cond=True)
            self.nstamp += 1
            self.stamp_names.append(name)
            return
        p("WAITALL lgkm")
        p("s_memrealtime s[72:73]" if self.o['stamps'] == 1 else "s_memtime s[72:73]")
        p("WAITALL lgkm")
        p(f"v_writelane_b32 v{STV}, s72, {self.nstamp}")
        self.nstamp += 1
        self.stamp_names.append(name)

    def sub(self, fn):
        save = self.p
        self.p = Seq()
        fn()
        r = list(self.p)
        self.p = save
        return r

    def xf(self, L, key='x'):
        x = self.o.get(key, '')
        out = []
        for i in L:
            if 'v' in x and i.kind in ('vload', 'dma') and not i.cond and 'dwordx4' in i.op:
                continue
            if 'e' in x and i.kind in ('valu', 'trans') and not i.cond and i.op.endswith(('f32', 'f32_e64')):
                continue
            if 'l' in x and i.kind == 'dsr':
                continue
            if 's' in x and i.kind == 'vstore' and 'store' in i.op and not i.cond:
                continue
            if 'b' in x and i.op == 's_barrier':
                continue
            if 'm' in x and i.kind == 'mfma' and i.passes < 8:
                continue
            out.append(i)
        return out

    def ool(self, branch, text):
        p = self.p
        L, R = self.lab("o"), self.lab("r")
        p(f"{branch} {L}")
        n = len(p)
        p(f"{L}:\n{text}\ns_branch {R}", cond=True)
        for i in p[n:]:
            i.ool = L
        p(f"{R}:")

    def spin(self, vt, vaddr, soff, mask, target, srd=WS, mode='wave0', sleep=0, field=None, wave=0):
        p = self.p
        Lp = self.lab("pl")
        addr = f"{vaddr}, {srd}, {soff} offen" if vaddr else f"off, {srd}, {soff}"
        ext = f"v_and_b32 v43, {field}, {vt}\n" if field is not None else ""
        vc = "v43" if field is not None else vt
        loop = f"""s_mov_b32 {sT5}, 0
             s_mov_b64 exec, {mask}
             {Lp}:
             {f's_sleep {sleep}' if sleep else ''}
             buffer_load_dword {vt}, {addr} sc1
             s_add_u32 {sT5}, {sT5}, 1
             s_waitcnt vmcnt(0)
             {ext}v_cmp_gt_u32 vcc, {target}, {vc}
             s_cmp_ge_u32 {sT5}, 0x8000
             s_cselect_b64 vcc, 0, vcc
             s_and_b64 exec, exec, vcc
             s_cbranch_scc1 {Lp}
             s_mov_b64 exec, -1"""
        if self.o.get('stamps') == 3:
            p(f"s_mov_b32 {sT5}, 0")
        if mode == 'check':
            p(f"{ext}v_cmp_gt_u32 vcc, {target}, {vc}\ns_and_b64 vcc, vcc, {mask}")
            self.ool("s_cbranch_scc1", loop)
        elif mode == 'wave0':
            Ld = self.lab("pd")
            p(f"s_cmp_lg_u32 {sW}, {wave}\ns_cbranch_scc1 {Ld}")
            p(loop, cond=True)
            p(f"{Ld}:")
        else:
            p(loop, cond=True)
            p("s_waitcnt vmcnt(0)")
        if self.o.get('stamps') == 3:
            p(f"v_writelane_b32 v{STV}, {sT5}, {self.nstamp}")
            self.nstamp += 1
            self.stamp_names.append(f"spin{self.nstamp}")

    def setup(self):
        p = self.p
        p(f"""s_cmp_ge_u32 s2, 256
             s_cbranch_scc1 L_end
             s_load_dwordx16 s[76:91], s[0:1], 0
             s_load_dwordx4 s[92:95], s[0:1], 64""")
        p("v_and_b32 v1, 63, v0\nv_lshrrev_b32 v4, 6, v0")
        p(f"v_readfirstlane_b32 {sW}, v4")
        p(f"""s_mov_b32 s6, 0x200000
             s_mov_b32 s7, 0x20000
             s_mov_b32 s10, 0x180000
             s_mov_b32 s11, 0x20000
             s_lshr_b32 {sU}, s2, 3
             s_and_b32 {sKC}, s2, 7
             s_and_b32 {sRQ}, {sU}, 3
             s_and_b32 {sG}, s2, 6
             s_lshl_b32 {sG}, {sG}, 1
             s_add_u32 {sG}, {sG}, {sRQ}
             s_lshr_b32 {sT1}, s2, 5
             s_and_b32 {sT2}, s2, 1
             s_lshl_b32 {sTA}, {sG}, 1
             s_add_u32 {sTA}, {sTA}, {sT2}
             s_lshl_b32 {sXL}, {sW}, 14
             s_lshl_b32 {sXB}, {sTA}, 16
             s_add_u32 {sXB}, {sXB}, {sXL}
             s_xor_b32 {sMA}, {sT1}, 4
             s_mul_i32 {sWB}, {sW}, {16*3072}
             s_lshl_b32 {sT0}, {sMA}, 7
             s_add_u32 {sWB}, {sWB}, {sT0}
             s_lshl_b32 {sWL}, {sW}, 11
             s_add_u32 {sC0}, {sT1}, {sKC}""")
        rot = self.o.get('rot', 6)
        if rot == 7:
            p(f"s_lshl_b32 {sT0}, {sU}, 2\ns_add_u32 {sC0}, {sC0}, {sT0}")
        if rot == 8:
            p(f"s_lshl_b32 {sT0}, {sRQ}, 1\ns_add_u32 {sC0}, {sC0}, {sT0}")
        if rot == 0:
            p(f"s_mov_b32 {sC0}, 0")
        if rot == 1:
            p(f"s_mov_b32 {sC0}, {sKC}")
        if rot == 9:
            p(f"s_lshl_b32 {sC0}, {sT1}, 1\ns_add_u32 {sC0}, {sC0}, {sKC}")
        p(f"""v_lshrrev_b32 v4, 3, v1
             v_and_b32 v5, 7, v1
             v_lshrrev_b32 v3, 4, v1
             v_xor_b32 v6, v5, v3
             v_lshlrev_b32 v6, 4, v6
             v_lshl_add_u32 v6, v4, 10, v6
             v_xor_b32 v7, 64, v6
             v_add_u32 v7, 7168, v7
             v_and_b32 v3, 1, v3
             v_lshlrev_b32 v3, 2, v3
             v_xor_b32 v5, v5, v3
             v_lshlrev_b32 v5, 4, v5
             v_mul_u32_u24 v8, 3072, v4
             v_add_u32 v8, v8, v5
             v_add_u32 v9, {8*3072-1024}, v8""")
        p("WAITALL lgkm")
        p("s_mov_b64 s[4:5], s[76:77]\ns_mov_b64 s[8:9], s[78:79]")

    def dmaW(self, t, c):
        base, po = ((KB, 1024), (VB, 2048), (0, 0))[t]
        tag = f"{'AVQ'[t]}{c}"
        S = Seq()
        S(f"s_add_u32 m0, {sWL}, {base + c*8192 - po}")
        S(f"buffer_load_dwordx4 v8, {WQKV}, s{75+c} offen offset:{po} lds", tag=tag)
        return ctx([list(S), [Inst(f"buffer_load_dwordx4 v9, {WQKV}, s{75+c} offen offset:{po+1024} lds", tag=tag)]])

    def dmaA(self, c):
        wc = f"s{75+c}"
        g = self.dmaW(0, c)
        g[0] = list(Seq()(f"""s_add_u32 {sT0}, {sC0}, {c}
             s_and_b32 {sT0}, {sT0}, 7
             s_mul_i32 {wc}, {sT0}, {64*3072}
             s_add_u32 {wc}, {wc}, {sWB}
             s_lshl_b32 {sT0}, {sT0}, 7""")) + g[0]
        nt = " nt" if self.o.get('xnt', 0) else ""
        S = Seq()
        S(f"s_add_u32 m0, {sWL}, {c*8192}\ns_add_u32 {sT0}, {sT0}, {sXB}")
        S(f"buffer_load_dwordx4 v6, {X}, {sT0} offen{nt} lds", tag=f"A{c}")
        g += [list(S), [Inst(f"buffer_load_dwordx4 v7, {X}, {sT0} offen offset:1024{nt} lds", tag=f"A{c}")]]
        return ctx(g)

    def dmaWO(self, q):
        S = Seq()
        S(f"""s_add_u32 {sT0}, {sA}, {q*65536}
             s_add_u32 m0, {sB}, {q*16384}
             s_and_b32 {sT0}, {sT0}, 0x7ffff""")
        g = []
        for k in range(4):
            S(f"buffer_load_dwordx4 v{WOD+k}, {WO}, {sT0} offen offset:{k*1024} lds", tag=f"WO{q>>2}")
            g.append(list(S))
            S = Seq()
        return ctx(g)

    def rload(self):
        nt = " nt" if self.o.get('rnt', 1) else ""
        g = []
        for k, (ad, srd, s0, s1) in enumerate(((RL1, W1, sKVL, sZL), (RL3, W3, sKVL, sZL), (RL2, W2, sPQL, sHST))):
            g.append(list(Seq()(f"s_add_u32 m0, {sSTA}, {k*2048}\nbuffer_load_dwordx4 {ad}, {srd}, {s0} offen{nt} lds")))
            g.append(list(Seq()(f"buffer_load_dwordx4 {ad}, {srd}, {s1} offen offset:1024{nt} lds", tag=f"RL{k}")))
            ctx(g[-2:])
        return g[4:] + g[:4]

    def miscA(self):
        M = Seq()
        a, b, c, d = "v208", "v209", "v210", "v211"
        M(f"""v_lshl_add_u32 {RL2}, v4, 10, v5
             v_mul_u32_u24 v4, 3584, v4
             v_add_u32 {RL1}, v4, v5
             v_xor_b32 {RL3}, 32, {RL1}
             v_mov_b32 v4, 1
             v_lshlrev_b32 {L4}, 2, v1
             s_mov_b32 {sLOG2E}, 0x3fb8aa3b
             s_mov_b32 {sMSKHI}, 0xffff0000
             s_mov_b32 {sEPS6}, 0x358637bd
             s_mov_b32 s62, 0
             s_mov_b32 s63, -1
             s_mov_b32 s64, 0xffff0000
             s_mov_b32 s65, 0xffff0000
             s_mov_b32 s96, 0x22222222
             s_mov_b32 s97, 0x22222222
             s_mov_b32 s98, 0x44444444
             s_mov_b32 s99, 0x44444444
             s_mov_b32 s70, 0x88888888
             s_mov_b32 s71, 0x88888888
             s_and_b32 {sM}, s2, 1
             s_lshl_b32 {sM}, {sM}, 3
             s_lshr_b32 {sT1}, s2, 5
             s_add_u32 {sM}, {sM}, {sT1}
             s_and_b32 {sCB}, {sM}, 3
             s_and_b32 {sT1}, {sW}, 1
             s_lshr_b32 {sT2}, {sW}, 1
             s_lshl_b32 {sMA}, {sMA}, 1
             s_add_u32 {sMA}, {sMA}, {sT2}
             s_lshl_b32 {sTA}, {sTA}, 1
             s_add_u32 {sTA}, {sTA}, {sT1}""")
        M(f"""v_and_b32 {a}, 31, v1
             v_lshrrev_b32 {b}, 5, v1
             v_bfe_u32 {c}, v1, 1, 3
             v_xor_b32 {c}, {b}, {c}
             v_lshlrev_b32 {c}, 4, {c}
             v_lshl_add_u32 {c}, {a}, 7, {c}
             s_lshl_b32 {sT3}, {sT1}, 12
             s_lshl_b32 {sT4}, {sW}, 5
             s_add_u32 {sT3}, {sT3}, {sT4}
             v_xor_b32 v10, {sT3}, {c}
             v_xor_b32 v11, 32, v10
             v_xor_b32 v12, 64, v10
             v_xor_b32 v13, 96, v10
             s_lshl_b32 {sT3}, {sCB}, 1
             s_add_u32 {sT3}, {sT3}, {sT2}
             s_sub_u32 {sT3}, {sT3}, {sC0}
             s_and_b32 {sT3}, {sT3}, 7
             s_lshl_b32 {sT3}, {sT3}, 1
             s_lshr_b32 {sT4}, s2, 7
             s_add_u32 {sT3}, {sT3}, {sT4}
             s_lshl_b32 {sT3}, {sT3}, 6
             s_add_u32 {sT3}, {sT3}, {sT1}
             s_lshl_b32 {sT3}, {sT3}, 6
             v_xor_b32 v14, {sT3}, {c}
             v_xor_b32 v15, 32, v14""")
        M(f"""s_lshl_b32 {sT3}, {sT2}, 8
             s_add_u32 {sT3}, {sT3}, {hex(XCH)}
             v_lshl_add_u32 {XCR}, {a}, 3, {sT3}
             s_lshl_b32 {sT3}, {sT1}, 2
             v_add_u32 {XCW}, {sT3}, {XCR}
             s_lshl_b32 {sT3}, {sW}, 9
             s_add_u32 {sT3}, {sT3}, {hex(XCH+2048)}
             v_lshl_add_u32 {STW}, v1, 3, {sT3}
             v_xor_b32 {STR}, 1024, {STW}
             v_lshlrev_b32 {KVW}, 4, {a}
             v_lshl_add_u32 {KVW}, {b}, 10, {KVW}
             s_add_u32 {sT3}, {sWL}, {hex(KVS)}
             v_add_u32 {KVW}, {sT3}, {KVW}
             s_lshl_b32 {sT3}, {sW}, 7
             s_add_u32 {sT3}, {sT3}, {hex(ZS)}
             v_lshl_add_u32 {ZW}, {a}, 2, {sT3}
             s_lshl_b32 {sT3}, {sT2}, 2
             s_add_u32 {sT3}, {sT3}, {sT1}
             s_lshl_b32 {sT4}, {sT3}, 10
             s_add_u32 {sT4}, {sT4}, {hex(KVS)}
             v_add_u32 {KVR}, {sT4}, {L4}
             s_lshl_b32 {sT4}, {sT3}, 6
             s_add_u32 {sT4}, {sT4}, {hex(ZS)}
             v_and_b32 {d}, 15, v1
             v_lshl_add_u32 {ZR}, {d}, 2, {sT4}
             v_lshrrev_b32 {d}, 4, v1
             v_lshl_add_u32 {ZAT}, {d}, 27, {L4}
             v_lshl_add_u32 {CSAT}, {b}, 27, {L4}
             v_lshrrev_b32 {LM8}, 3, v1
             v_lshlrev_b32 {LM8}, 27, {LM8}
             v_min_u32 {FA1}, 1, v1
             v_lshlrev_b32 {FA1}, 27, {FA1}
             s_lshl_b32 {sT3}, {sMA}, 1
             s_add_u32 {sT3}, {sT3}, {sT1}
             s_lshl_b32 {sKVA}, {sT3}, 10
             s_add_u32 {sKVA}, {sKVA}, {hex(KVM)}
             s_lshl_b32 {sZA}, {sT3}, 6
             s_add_u32 {sZA}, {sZA}, {hex(ZP)}
             s_lshl_b32 {sPQS}, {sTA}, 2
             s_lshr_b32 {sT3}, {sMA}, 2
             s_add_u32 {sPQS}, {sPQS}, {sT3}
             s_lshl_b32 {sPQS}, {sPQS}, 3
             s_and_b32 {sT3}, {sMA}, 3
             s_add_u32 {sPQS}, {sPQS}, {sT3}
             s_lshl_b32 {sPQS}, {sPQS}, 11
             s_add_u32 {sPQS}, {sPQS}, {hex(PQ)}
             s_lshl_b32 {sHS}, {sG}, 2
             s_add_u32 {sHS}, {sHS}, {sW}
             s_lshl_b32 {sHS}, {sHS}, 4
             s_add_u32 {sHS}, {sHS}, {sM}
             s_lshl_b32 {sHS}, {sHS}, 14
             s_add_u32 {sHS}, {sHS}, {hex(HH+4096)}""")
        M(f"""v_bfe_u32 {c}, v1, 2, 2
             v_lshlrev_b32 {a}, 10, {b}
             v_lshl_add_u32 {a}, {c}, 7, {a}
             v_bfe_u32 {c}, v1, 4, 1
             v_bfe_u32 {d}, v1, 3, 1
             v_lshl_add_u32 {d}, {d}, 1, {c}
             v_lshl_add_u32 {a}, {d}, 5, {a}
             v_and_b32 {d}, 1, v1
             v_lshl_add_u32 {RT2A}, {d}, 4, {a}
             v_bfe_u32 {d}, v1, 1, 1
             v_lshl_add_u32 {RT2A}, {d}, 3, {RT2A}
             v_and_b32 {d}, 3, v1
             v_lshl_add_u32 {a}, {d}, 3, {a}
             s_lshl_b32 {sT3}, {sT2}, 6
             s_add_u32 {sT3}, {sT3}, {sWL}
             s_add_u32 {sT4}, {sT3}, {hex(KB)}
             v_xor_b32 v{TRK}, {sT4}, {a}
             s_add_u32 {sT4}, {sT3}, {hex(VB)}
             v_xor_b32 v{TRP}, {sT4}, {RT2A}""")
        for j in range(1, 4):
            M(f"v_xor_b32 v{TRK+j}, {j*2048}, v{TRK}\nv_xor_b32 v{TRP+j}, {j*2048}, v{TRP}")
        M(f"""s_lshl_b32 {sT3}, {sW}, 5
             s_add_u32 {sT3}, {sT3}, {hex(RST)}
             v_xor_b32 {RT13}, {sT3}, {a if self.o.get('c16', 1) else RT2A}
             v_lshl_add_u32 {RT13}, {c}, 11, {RT13}
             s_mul_i32 {sSTA}, {sW}, 6144
             s_add_u32 {sSTA}, {sSTA}, {hex(RST)}
             v_add_u32 {RT2A}, {sSTA}, {a if self.o.get('d16', 1) else RT2A}
             v_xor_b32 {RT2B}, 64, {RT2A}""")
        M(f"""v_lshrrev_b32 {a}, 2, v1
             v_xor_b32 {a}, {a}, {c}
             v_and_b32 {a}, 1, {a}
             v_or_b32 {a}, {a}, {d}
             v_cmp_eq_u32 vcc, 0, {a}
             v_mov_b32 v20, 0x3f803f80
             v_mov_b32 v21, 0x3f803f80
             v_mov_b32 v22, 0x3f803f80
             v_mov_b32 v23, 0x3f803f80
             v_cndmask_b32 v16, 0, v20, vcc
             v_cndmask_b32 v17, 0, v20, vcc
             v_cndmask_b32 v18, 0, v20, vcc
             v_cndmask_b32 v19, 0, v20, vcc""")
        for r in (162, 163, 166, 167, 170, 171, 174, 175, 177, 178, 179):
            M(f"v_mov_b32 v{r}, 0")
        M(f"""v_lshrrev_b32 {a}, 4, v1
             v_bfe_u32 {c}, v1, 2, 2
             v_xor_b32 {c}, {c}, {a}
             v_lshlrev_b32 {c}, 6, {c}
             v_lshl_add_u32 {c}, {a}, 10, {c}
             v_lshl_add_u32 v{WOD}, {d}, 4, {c}
             v_add_u32 v{WOD+1}, 3072, v{WOD}
             v_add_u32 v{WOD+2}, 6144, v{WOD}
             v_add_u32 v{WOD+3}, 9216, v{WOD}
             s_lshl_b32 {sA}, {sRQ}, 17
             s_add_u32 {sA}, {sA}, {sXL}
             s_lshl_b32 {sT3}, {sCB}, 8
             s_add_u32 {sA}, {sA}, {sT3}""")
        M(f"""s_lshl_b32 {sT3}, {sKC}, 2
             s_add_u32 {sT3}, {sT3}, {sW}
             s_mul_i32 {sKVL}, {sT3}, {16*3584}
             s_lshl_b32 {sT3}, {sU}, 7
             s_add_u32 {sKVL}, {sKVL}, {sT3}
             s_lshl_b32 {sT2}, {sU}, 2
             s_add_u32 {sT2}, {sT2}, {sW}
             s_lshl_b32 {sPQL}, {sT2}, 14
             s_lshl_b32 {sT3}, {sKC}, 7
             s_add_u32 {sPQL}, {sPQL}, {sT3}
             s_add_u32 {sHST}, {sPQL}, 7168
             s_lshl_b32 {sRC}, {sT2}, 7
             s_add_u32 {sRC}, {sRC}, {hex(CS)}
             s_mul_i32 {sT3}, {sT2}, 9363
             s_lshr_b32 {sT3}, {sT3}, 16
             s_add_u32 {sT2}, {sT2}, {sT3}
             s_and_b32 {sT3}, {sKC}, 6
             s_add_u32 {sT3}, {sT3}, {sKC}
             s_lshl_b32 {sRW}, {sT2}, 4
             s_add_u32 {sRW}, {sRW}, {sT3}
             s_lshl_b32 {sRW}, {sRW}, 12
             s_add_u32 {sRW}, {sRW}, {hex(W13R)}
             s_andn2_b32 {sT3}, {sT2}, 3
             s_add_u32 {sT3}, {sT3}, {sT2}
             s_lshl_b32 {sR2}, {sKC}, 8
             s_add_u32 {sR2}, {sR2}, {sT3}
             s_lshl_b32 {sR2}, {sR2}, 11
             s_add_u32 {sR2}, {sR2}, {hex(W2R)}""")
        dup = self.o.get('dup', 3)
        if self.o.get('grp', 1):
            m13 = sum((par13(t) ^ m) << (8 * m + t) for m in range(2) for t in range(8))
            m2 = sum(par2(pr, t) << (8 * pr + t) for pr in range(4) for t in range(8))
            M(f"""s_and_b32 {sT3}, {sT2}, 15
                 s_lshr_b32 {sT3}, {hex(m13)}, {sT3}
                 s_lshr_b32 {sT4}, {hex(m2)}, {sT2}
                 s_xor_b32 {sT4}, {sT4}, {sKC}""")
        else:
            M(f"s_lshr_b32 {sT3}, {sKC}, 1\ns_lshr_b32 {sT4}, {sT2}, 5")
        M(f"""s_and_b32 {sT3}, {sT3}, {0 if dup & 1 else 1}
             s_lshl_b32 {sT3}, {sT3}, 13
             s_add_u32 {sRW}, {sRW}, {sT3}
             s_and_b32 {sT4}, {sT4}, {0 if dup & 2 else 1}
             s_lshl_b32 {sT4}, {sT4}, 13
             s_add_u32 {sR2}, {sR2}, {sT4}
             s_cmp_ge_u32 s2, 224
             s_cselect_b32 {sRW}, {hex(OOB)}, {sRW}
             s_cselect_b32 {sR2}, {hex(OOB)}, {sR2}
             s_cselect_b32 {sRC}, {hex(OOB)}, {sRC}
             s_cselect_b32 {sKVL}, {hex(OOB)}, {sKVL}
             s_add_u32 {sZL}, {sKVL}, {8*3584-1024}
             s_and_b32 {sSIG}, {sU}, 15
             s_lshl_b32 {sSIG}, {sSIG}, 8
             s_add_u32 {sSIG}, {sSIG}, {hex(CNT)}
             s_cmp_eq_u32 {sW}, 0
             s_cselect_b32 {sSIG}, {sSIG}, {hex(OOB)}""")
        return M

    def miscB(self):
        M = Seq()
        a, b, c, d = "v208", "v209", "v210", "v211"
        M(f"""s_lshr_b32 {sTB}, {sM}, 2
             s_lshl_b32 {sT3}, {sG}, 2
             s_add_u32 {sTB}, {sTB}, {sT3}
             s_lshl_b32 {sT4}, {sRQ}, 1
             s_add_u32 {sT4}, {sT4}, {sW}
             s_and_b32 {sT4}, {sT4}, 7
             s_lshl_b32 {sKVL}, {sT4}, 12
             s_add_u32 {sKVL}, {sKVL}, {hex(KVM)}
             s_xor_b32 {bK2}, {sKVL}, 0x4000
             s_lshl_b32 {sT2}, {sTB}, 16
             s_and_b32 {sPQL}, {sT4}, 6
             s_add_u32 {sPQL}, {sPQL}, {sT4}
             s_lshl_b32 {sPQL}, {sPQL}, 12
             s_add_u32 {sPQL}, {sPQL}, {sT2}
             s_add_u32 {sPQL}, {sPQL}, {hex(PQ)}
             s_xor_b32 {sPQL}, {sPQL}, {sP1}
             s_xor_b32 {bQ2}, {sPQL}, 0x8000
             s_lshl_b32 {sT4}, {sT4}, 8
             s_mov_b32 {sZL}, {hex(ZP)}
             s_lshl_b32 {sHST}, {sCB}, 14
             s_add_u32 {sHST}, {sHST}, {sT2}
             s_add_u32 {sHST}, {sHST}, {sWL}
             s_add_u32 {sHST}, {sHST}, {hex(HB)}
             s_xor_b32 {sHST}, {sHST}, {sPE}
             s_lshl_b32 {sSTA}, {sTB}, 4
             s_add_u32 {sSTA}, {sSTA}, {sCB}
             s_lshl_b32 {sSTA}, {sSTA}, 14
             s_add_u32 {sSTA}, {sSTA}, {hex(HH+7168+768)}
             s_xor_b32 {sSTA}, {sSTA}, {sP2}
             s_lshl_b32 {sD}, {sTB}, 2
             s_add_u32 {sD}, {sD}, {sCB}
             s_lshl_b32 {sD}, {sD}, 16
             s_add_u32 {sD}, {sD}, {sXL}
             s_add_u32 {sD}, {sD}, {hex(HH+7168)}
             s_xor_b32 {sD}, {sD}, {sP2}
             v_lshrrev_b32 {b}, 5, v1
             v_and_b32 {a}, 31, v1
             v_lshlrev_b32 {ROWA}, 10, {a}
             v_lshl_add_u32 {ROWA}, {b}, 4, {ROWA}
             v_lshlrev_b32 v41, 3, {a}
             v_lshl_add_u32 v41, {b}, 10, v41
             v_xor_b32 v41, {sT4}, v41
             v_bfe_u32 {c}, v1, 2, 2
             v_and_b32 {a}, 1, v1
             v_lshlrev_b32 {a}, 4, {a}
             v_bfe_u32 {d}, v1, 1, 1
             v_lshl_add_u32 {a}, {d}, 3, {a}
             v_lshl_add_u32 {d}, {b}, 11, {a}
             v_lshl_add_u32 {d}, {c}, 8, {d}
             v_xor_b32 {c}, {sW}, {c}
             v_lshl_add_u32 {d}, {c}, 6, {d}
             v_bfe_u32 {c}, v1, 4, 1
             v_lshl_add_u32 {d}, {c}, 5, {d}""")
        for q in range(4):
            M(f"""s_xor_b32 {sT2}, {sW}, {q}
                 s_lshl_b32 {sT3}, {sT2}, 14
                 v_add_u32 v{WOT+q}, {sT3}, {d}
                 s_lshl_b32 {sT2}, {sT2}, 12
                 s_add_u32 {sT2}, {sT2}, 0x20000
                 v_add_u32 v{OAD+q}, {sT2}, {L16}""")
        M(f"""s_lshl_b32 {sT2}, {sW}, 12
             s_add_u32 {sT2}, {sT2}, {0x20000+16384+3072}
             v_add_u32 {ZBW}, {sT2}, {L4}
             v_xor_b32 {d}, 1, {c}
             v_lshlrev_b32 {d}, 5, {d}
             v_lshl_add_u32 {d}, {b}, 4, {d}
             v_add_u32 {ZBR}, {sT2}, {d}
             v_lshrrev_b32 {d}, 4, v1
             v_lshlrev_b32 {P256}, 8, v1
             v_lshl_add_u32 {P256}, {d}, 27, {P256}
             s_lshl_b32 {bTL}, {sW}, 13
             s_lshr_b32 {sT2}, {sTBL}, {sKC}
             s_and_b32 {sT2}, {sT2}, 0x2000
             s_lshl_b32 {bGP}, {sKC}, 14
             s_add_u32 {bGP}, {bGP}, {sT2}
             s_add_u32 {bGP}, {bGP}, {hex(CNT)}
             s_add_u32 {bRP}, {bGP}, 4096""")
        for k in range(8):
            M(f"v_lshlrev_b32 v{192+2*k}, 16, v{24+k}\nv_and_b32 v{193+2*k}, {sMSKHI}, v{24+k}")
        return M

    def phaseA(self):
        p = self.p
        o = self.o
        pre = o.get('pre', 0)
        if pre:
            nt = " nt" if o.get('xnt', 0) else ""
            p(f"""s_lshl_b32 {sT3}, {sMA}, 2
                 s_add_u32 {sT3}, {sT3}, {sW}
                 s_lshl_b32 {sT3}, {sT3}, 11
                 s_lshl_b32 {sT4}, {sTA}, 16
                 s_add_u32 {sT3}, {sT3}, {sT4}
                 s_lshl_b32 {sT4}, s2, 2
                 s_add_u32 {sT4}, {sT4}, {sW}
                 s_mul_i32 {sT4}, {sT4}, 1536
                 v_lshrrev_b32 v196, 2, v1
                 v_lshlrev_b32 v196, 7, v196
                 v_min_u32 v197, 1408, v196""")
            if pre & 1:
                p(f"buffer_load_dword v194, v196, {X}, {sT3} offen{nt}")
            if pre & 2:
                p(f"buffer_load_dword v195, v197, {WQKV}, {sT4} offen")
        p.extend(flat(self.dmaA(0)))
        p(f"v_lshlrev_b32 {L16}, 4, v1")
        if o.get('codepf', 1):
            p(f"""s_getpc_b64 s[70:71]
                 s_lshl_b32 {sT3}, {sU}, 2
                 s_add_u32 {sT3}, {sT3}, {sW}
                 s_lshl_b32 {sT4}, {sT3}, 8
                 v_lshrrev_b32 v200, 5, v1
                 v_lshl_add_u32 v200, v200, 7, {sT4}
                 v_min_u32 v200, CODE_PF_MAX, v200
                 global_load_dword v201, v200, s[70:71]""")
        tch = Seq()
        touch = o.get('touch', 7)
        tch(f"""s_lshl_b32 {sCc}, s2, 2
             s_add_u32 {sCc}, {sCc}, {sW}
             s_lshr_b32 {sT4}, {sCc}, 1
             s_mul_i32 {sT4}, {sT4}, 3072
             s_and_b32 {sT5}, {sCc}, 1
             s_lshl_b32 {sT5}, {sT5}, 11
             s_add_u32 {sT4}, {sT4}, {sT5}
             s_lshl_b32 {sCc}, {sCc}, 9
             v_lshrrev_b32 v202, 3, v1
             v_lshlrev_b32 v202, 7, v202
             v_lshrrev_b32 v42, 4, v1
             v_lshlrev_b32 v42, 7, v42""")
        if touch & 4:
            tch(f"""s_lshl_b32 {sT3}, {sU}, 2
                 s_add_u32 {sT3}, {sT3}, {sW}
                 s_mul_i32 {sT3}, {sT3}, {4*3072}
                 v_min_u32 v200, 11, v1
                 v_lshlrev_b32 v200, 10, v200
                 buffer_load_dword v198, v200, {WQKV}, {sT3} offen offset:384""")
        if touch & 1:
            tch(f"buffer_load_dword v203, v202, {WQKV}, {sT4} offen")
        tat = o.get('tat', -1)
        if tat == -2:
            p.extend(tch)
        d1 = self.dmaA(1)
        n1 = o.get('d1', 4)
        p.extend(flat(d1[:n1]))
        if tat == -1:
            p.extend(tch)
        for srd, src, sz in ((12, 80, 0x80000), (16, 84, 0x1C0000), (20, 86, 0x1C0000), (24, 88, 0x1C0000),
                             (28, 90, 0x200000), (36, 92, 256), (32, 94, WS_SIZE)):
            p(f"s_mov_b64 s[{srd}:{srd+1}], s[{src}:{src+1}]\ns_mov_b32 s{srd+2}, {hex(sz)}\ns_mov_b32 s{srd+3}, 0x20000")
        tlb = o.get('tlb', 0)
        if tlb:
            p(f"""v_min_u32 v194, 1, v1
                 v_lshlrev_b32 v194, 27, v194
                 s_lshl_b32 {sT3}, {sW}, 5
                 s_add_u32 {sT3}, {sT3}, {sU}
                 s_lshl_b32 {sT4}, {sT3}, 21
                 buffer_load_dword v195, v194, {WS}, {sT4} offen""")
            if tlb & 2:
                for k, srd in enumerate((OUT, W1, W3, W2, WO, DBG)):
                    p(f"""s_cmp_eq_u32 {sT3}, {24+k}
                         s_cselect_b32 {sT4}, 0, {hex(OOB)}
                         buffer_load_dword v{188+k}, v194, {srd}, {sT4} offen""")
        if o.get('wsoff'):
            p(f"s_add_u32 s32, s32, {o['wsoff'] << 20}\ns_addc_u32 s33, s33, 0")
        Lz = self.lab("z")
        p(f"""s_lshl_b32 {sB}, {sW}, 8
             s_add_u32 {sB}, {sB}, 224
             s_cmp_lt_u32 s2, {sB}
             s_cbranch_scc1 {Lz}""")
        padr = f"""s_sub_u32 {sT2}, s2, 224
             s_and_b32 {sT1}, {sU}, 1
             s_lshl_b32 {sT3}, {sT1}, 5
             s_add_u32 {sT3}, {sT3}, {sT2}
             s_lshl_b32 {sT3}, {sT3}, 8
             s_add_u32 {sT3}, {sT3}, {hex(PROBE)}
             s_xor_b32 {sT4}, {sT3}, 0x2000
             s_waitcnt lgkmcnt(0)
             s_buffer_load_dword {sT5}, {WS}, {sT3} glc
             s_buffer_load_dword {sT5}, {WS}, {sT4} glc"""
        p(f"""{padr.replace(sT5, sD)}
             v_mov_b32 v16, 0
             v_mov_b32 v17, 0
             v_mov_b32 v18, 0
             v_mov_b32 v19, 0
             v_lshrrev_b32 v20, 3, v1
             v_lshl_add_u32 v20, v20, 7, {L16}
             s_lshl_b32 {sT4}, {sT2}, 11
             s_lshl_b32 {sT3}, {sT2}, 12
             s_add_u32 {sT3}, {sT3}, {hex(CNT)}
             s_add_u32 {sT4}, {sT4}, {hex(KVM)}
             buffer_store_dwordx4 v[16:19], {L16}, {WS}, {sT4} offen sc1
             buffer_store_dwordx4 v[16:19], {L16}, {WS}, {sT4} offen offset:1024 sc1
             buffer_store_dwordx4 v[16:19], v20, {WS}, {sT3} offen sc1
             buffer_store_dwordx4 v[16:19], v20, {WS}, {sT3} offen offset:2048 sc1""", cond=True)
        p(f"{Lz}:")
        probe = f"""{padr}
             s_getreg_b32 {sT4}, hwreg(HW_REG_XCC_ID, 2, 1)
             s_waitcnt lgkmcnt(1)
             s_nop {o.get('pnop', 15)}
             s_getreg_b32 {sT2}, hwreg(HW_REG_IB_STS, 8, 4)
             s_waitcnt lgkmcnt(0)
             s_min_u32 {sT2}, {sT2}, 1
             s_xor_b32 {sT1}, {sT1}, {sT4}
             s_cmp_lg_u32 {sT1}, {sT2}
             s_cselect_b32 {sT2}, 64, 4096
             s_add_u32 {sT2}, {sT2}, 1
             s_add_u32 {sT5}, {sKC}, 18
             s_lshl_b32 {sT4}, {sT4}, {sT5}
             s_cmp_eq_u32 {sU}, 28
             s_cselect_b32 {sT4}, {sT4}, 0
             s_add_u32 {sT2}, {sT2}, {sT4}
             v_mov_b32 v46, {sT2}"""
        p.extend(self.miscA())
        if o.get('pat', 0) == 0:
            Lz = self.lab("z")
            p(f"s_cmp_lt_u32 s2, {sB}\ns_cbranch_scc1 {Lz}")
            p(probe, cond=True)
            p(f"{Lz}:")
            probe = ""
        if tat == 0:
            p.extend(tch)
        SEL, ONES = v(16, 4), v(20, 4)
        XS, XQ0, XQ1, CSA, ZA = 252, 248, 32, 36, 44
        AK, AV, AQ, RB, AKV = 48, 64, 80, 96, 112
        WR = 128
        XM, WP, RS_ = 160, 164, 176

        def wread(t, s, dst=None):
            n = t * 32 + s
            addr = (TRK, TRP, TRK)[t]
            return trpair(('v', WR + 4 * (n % 6) if dst is None else dst), f"v{addr+(s&3)}", (s >> 2) * 8192, 512)

        def wf(t, s):
            return v(WR + 4 * ((t * 32 + s) % 6), 4)

        def csm(f, first):
            return mf16(CSA, SEL, f, "0" if first else None)

        def cswrite(t):
            S = split2(41, CSA, 41)
            S(f"ds_write_b32 {XCW}, v41 offset:{t*512}", tag=f"x{t}")
            return list(S)

        def csget(t):
            return [Inst(f"ds_read_b64 {v(WP+4*t,2)}, {XCR} offset:{t*512}")]

        def xread(s):
            return [Inst(f"ds_read_b128 {a_(4*s,4)}, v{10+(s&3)} offset:{(s>>2)*8192}")]

        p.extend(flat(d1[n1:]))
        d2 = self.dmaA(2)
        n2_ = o.get('d2', 4)
        p.extend(flat(d2[:n2_]))
        self.stamp("A_issued")
        p("WAITTAG A0\ns_barrier")
        self.stamp("A_c0")
        p.extend(xread(0) + wread(0, 0) + xread(1) + wread(0, 1))
        p.extend(flat(d2[n2_:]))
        ad = o.get('ad', 4)
        nv1 = o.get('nv1', 14)
        vq = flat([self.dmaW(1, k) for k in range(8)])
        pend = self.dmaA(3) if ad == 4 else []
        for s in range(32):
            c, j = s >> 2, s & 3
            xf = a_(4 * s, 4)
            z = "0" if s == 0 else None
            p.append(mf32(AK, xf, wf(0, s), z))
            if j == 2 and c < 7:
                p(f"WAITTAG A{c+1}\ns_barrier")
                self.stamp(f"a{c+1}")
                assert not pend
                if c == 1:
                    p(f"s_cmp_ge_u32 s2, {sB}")
                    self.ool("s_cbranch_scc1", f"{probe}\nbuffer_atomic_add v46, {FA1}, {DBG}, 0 offen sc1")
                if c + 1 == tat:
                    p.extend(tch)
                if c + ad < 8:
                    pend = self.dmaA(c + ad)
                else:
                    pend, vq = vq[:4], vq[4:]
            if s == 30:
                p("WAITTAG V1\ns_barrier")
                k = max(0, nv1 - (16 - len(vq)))
                assert k <= 2
                pend, vq = vq[:k], vq[k:]
            if s + 2 < 32:
                p.extend(xread(s + 2) + wread(0, s + 2))
            else:
                p.extend(wread(1, s + 2 - 32))
            if s == 28:
                p("ds_read_b128 v[24:27], v14\nds_read_b128 v[28:31], v15", tag="xres")
            for _ in range(2 if s < 2 else 1):
                if pend:
                    p.extend(pend.pop(0))
            if j % 2 == 0:
                p.append(csm(wf(0, s), s == 0))
            if j < 2:
                p.append(mf16(XS, SEL, xf, z))
                p.append(mf4(XQ0, a_(4 * s, 2), a_(4 * s, 2), z))
                p.append(mf4(XQ1, a_(4 * s + 2, 2), a_(4 * s + 2, 2), z))
            if s == 30:
                for k in range(4):
                    p(f"v_add_f32 v{XQ0+k}, v{XQ0+k}, v{XQ1+k}")
                p(f"""v_cndmask_b32 v197, v{XQ0}, v{XQ0+1}, s[96:97]
                     v_cndmask_b32 v197, v197, v{XQ0+2}, s[98:99]
                     v_cndmask_b32 v197, v197, v{XQ0+3}, s[70:71]
                     v_mov_b32 v196, v197""")
            if s == 31:
                p(f"""v_permlane32_swap_b32 v196, v197
                     v_add_f32 v{XS+1}, v196, v197
                     ds_write_b64 {STW}, {v(XS,2)}""")
                p.extend(cswrite(0))
        assert not pend
        self.stamp("A_loop")
        CT = (204, 208, ZA)
        kb = o.get('kb', 9)

        def tilepass(t, acc, order):
            nm = "VQ"[t - 1]
            G = []
            for s in range(32):
                A_, B_ = (a_(4 * s, 4), wf(t, s)) if order == 0 else (wf(t, s), a_(4 * s, 4))
                g = Seq()
                g.append(mf32(acc, A_, B_, "0" if s == 0 else None))
                if t == 1 and s == 2:
                    g("WAITTAG x0 xres" + (" V3" if ad == 4 else "") + "\ns_barrier")
                    g(f"ds_read_b64 v[198:199], {STR}")
                    g.extend(csget(0))
                if t == 2 and o.get('fb', 0) & 2:
                    if s == 4:
                        g("WAITTAG Q3\ns_barrier")
                    if s == kb:
                        assert kb <= 12
                        g("WAITTAG kvp Q7\ns_barrier")
                elif t == 1 and o.get('fb', 0) & 1:
                    if s == 12:
                        g("WAITTAG V7\ns_barrier")
                elif s % 8 == 4 and s < 28 and ((t, s) != (1, 4) or ad != 4):
                    g(f"WAITTAG {nm}{(s+4)//4+1} kvp\ns_barrier")
                elif t == 2 and s == kb:
                    g("WAITTAG kvp\ns_barrier")
                if s == 28:
                    g(f"WAITTAG x{t}" + (" Q1" if t == 1 else "") + "\ns_barrier")
                    g.extend(csget(t))
                if t == 1 and s < 2:
                    g.extend(wread(t, 2 + 2 * s) + wread(t, 3 + 2 * s))
                elif s + 4 < 32:
                    g.extend(wread(t, s + 4))
                elif t == 1:
                    g.extend(wread(2, s + 4 - 32))
                if s in (20, 21, 22):
                    g.extend(wread(t, 26 + 2 * (s - 20), CT[s - 20]))
                if s % 2 == 0 and s < 26 and (t, s) != (1, 0):
                    g.append(csm(wf(t, s), (t, s) == (2, 0)))
                if (t, s) == (1, 1):
                    g.append(csm(wf(t, 0), True))
                if s in (23, 24, 25):
                    g.append(csm(v(CT[s - 23], 4), False))
                if s == 26:
                    g.extend(cswrite(t))
                G.append(list(g))
            return G

        def phi(acc, scale, T, dst):
            S = Seq()
            for h in range(2):
                r = range(8 * h, 8 * h + 8)
                for i in r:
                    S(f"v_fma_f32 v{acc+i}, v{acc+i}, {scale(i)}, {sEPS6}")
                for i in r:
                    S(f"v_mul_f32 v{T+(i&7)}, {sLOG2E}, v{acc+i}")
                for i in r:
                    S(f"v_exp_f32_e64 v{T+(i&7)}, v{T+(i&7)} clamp")
                    S(f"v_max_f32 v{acc+i}, {sEPS6}, v{acc+i}")
                for i in r:
                    S(f"v_add_f32 v{acc+i}, v{acc+i}, v{T+(i&7)}")
                for i in range(4 * h, 4 * h + 4):
                    S(f"v_cvt_pk_bf16_f32 v{dst+i}, v{acc+2*i}, v{acc+2*i+1}")
            return S
        E = Seq()
        E(f"""v_add_f32 v198, v198, v{XS}
             v_add_f32 v197, v199, v{XS+1}
             v_mul_f32 v199, 0x3b000000, v198
             v_mul_f32 v197, 0x3b000000, v197
             v_cvt_pk_bf16_f32 v198, -v199, -v199
             v_fma_f32 v197, -v199, v199, v197
             v_cndmask_b32 v{XM}, v198, 0, {sHILANES}
             v_cndmask_b32 v{XM+1}, v198, 0, {sHILANES}
             v_max_f32 v197, 0, v197
             v_add_f32 v197, 0x3727c5ac, v197
             v_rsq_f32 v40, v197""")
        E.append(mf32(AK, v(XM, 4), v(WP, 4)))
        E.extend(split2(RS_, 40, 198))
        E(f"v_cndmask_b32 v{RS_}, v{RS_}, 0, {sHILANES}")
        E.append(mf32(RB, v(RS_, 4), ONES, "0"))
        PK = phi(AK, lambda i: f"v{RB+i}", 196, 180)
        G = tilepass(1, AV, 0)
        v2e = o.get('v2e', 2)
        qq = flat([self.dmaW(2, k) for k in range(8)])
        nq2 = o.get('nq2', 16)
        G = weave(G, vq, 0, v2e)
        G = weave(G, qq[:nq2], max(3, v2e), o.get('q2end', 30))
        G[0] += [Inst(f"v_subrev_u32 v{TRK+j}, {hex(VB)}, v{TRP+j}") for j in range(4)]
        G[12] += [Inst(f"buffer_load_dword v5, {FA1}, {DBG}, 0 offen sc1")]
        n2 = o.get('pk2', 88)
        G = weave(G, list(E), 4, 8)
        G = weave(G, PK[:n2], 10, 32)
        for k in range(3, 31, 4):
            G[k] += self.sub(lambda: self.stamp(f"v{k}"))
        p.extend(flat(G))
        p.append(mf32(AV, v(XM, 4), v(WP + 4, 4)))
        self.stamp("A_v")
        if o.get('skew') is not None:
            p(f"""s_not_b32 s101, s100
                 v_mov_b32 v43, s101
                 buffer_atomic_umax v43, {FA1}, {DBG}, 0 offen offset:128 sc1
                 v_mov_b32 v41, s100
                 buffer_atomic_umax v41, {FA1}, {DBG}, 0 offen offset:192 sc1""")
        E = Seq()
        E.extend(PK[n2:])
        for i in range(16):
            E(f"v_mul_f32 v{AV+i}, v{AV+i}, v{RB+i}")
        for i in range(8):
            E(f"v_cvt_pk_bf16_f32 v{188+i}, v{AV+2*i}, v{AV+2*i+1}")
        G = tilepass(2, AQ, 1)
        rq = self.rload()
        if o.get('nor'):
            rq = []
        if touch & 2:
            rq = rq[:2] + [[Inst(f"buffer_load_dword v42, v42, {WO}, {sCc} offen")]] + rq[2:]
        e2 = o.get('e2', 0)
        R2T = trpair(('a', 144), RT2A, 4096, 512) + trpair(('a', 148), RT2B, 4096, 512)
        R2S = [Inst(f"buffer_store_dwordx4 a[144:147], {L16}, {WS}, {sR2} offen sc1", tag="pub1" if e2 else "pubR"),
               Inst(f"buffer_store_dwordx4 a[148:151], {L16}, {WS}, {sR2} offen offset:1024 sc1", tag="pub1" if e2 else "pubR")]
        dup = o.get('dup', 3)
        if dup & 2:
            assert not e2
            R2S += [Inst(x.text.replace(L16, L16H), tag=x.tag) for x in R2S]
        if e2:
            G[e2] += [Inst("WAITTAG RL2")] + R2T
            G[e2 + 3] += R2S[:1]
            G[e2 + 5] += R2S[1:]
            R2T, R2S = [], []
        r0 = o.get('r0', 0)
        if nq2 < 16:
            G = weave(G, qq[nq2:], 0, r0)
        G = weave(G, rq, r0, o.get('r1', r0 + 7))
        if o.get('rwait'):
            G[o.get('r1', 7)] += list(Seq()("WAITALL vm")) + self.sub(lambda: self.stamp("A_rland"))
        woq = flat([self.dmaWO(q) for q in range(8)])
        nw3 = o.get('wo3', 0)
        G[13] += [Inst(f"s_lshl_b32 {sB}, {sW}, 12")]
        if nw3:
            G = weave(G, woq[:nw3], o.get('wo30', 26), 32)
        G = weave(G, list(E), 0, kb - 5)
        G[kb - 5] += [mf32(AKV, v(180, 4), v(188, 4), "0"), mf32(AKV, v(184, 4), v(192, 4)),
                 mf16(ZA, SEL, v(180, 4), "0"), mf16(ZA, SEL, v(184, 4))]
        G[kb - 4] += self.sub(lambda: self.spin("v5", None, "0", "1", "32", srd=DBG, mode='check', sleep=4, field=63))
        S = Seq()
        S(f"""v_readfirstlane_b32 {sT2}, v5
             s_bfe_u32 {sT3}, {sT2}, 0x60006
             s_bfe_u32 {sT4}, {sT2}, 0x6000c
             s_lshr_b32 {sT2}, {sT2}, 5""")
        S = [[i] for i in S] + [list(Seq()(f"""s_cmp_gt_u32 {sT4}, {sT3}
             s_cselect_b32 {sT3}, {'0, -1' if o.get('parx') else '-1, 0'}"""))]
        S += [[i] for i in Seq()(f"""s_xor_b32 {sTBL}, {sT2}, {sT3}
             s_lshr_b32 {sT2}, {sTBL}, {sKC}
             s_lshl_b32 {sT3}, {sG}, 10
             s_xor_b32 {sP1}, {sT2}, {sT3}
             s_and_b32 {sP1}, {sP1}, 0x2000
             s_xor_b32 {sPQS}, {sPQS}, {sP1}
             s_lshr_b32 {sPE}, {sTBL}, 3
             s_and_b32 {sPE}, {sPE}, 0x2000
             s_lshl_b32 {sT4}, {sG}, 12
             s_xor_b32 {sP2}, {sT3}, {sT4}
             s_and_b32 {sP2}, {sP2}, 0x2000
             s_xor_b32 {sP2}, {sP2}, {sPE}
             s_xor_b32 {sHS}, {sHS}, {sP2}
             v_mov_b32 v176, 0
             v_lshrrev_b32_e64 {P4K}, v1, {sTBL}
             v_and_b32 {P4K}, 0x2000, {P4K}
             v_lshl_add_u32 {P4K}, v1, 14, {P4K}
             v_or_b32 {P4K}, {P4K}, {LM8}""")]
        S += [[Inst(f"buffer_store_dwordx4 v[176:179], {L16}, {WS}, {sHS} offen offset:3072 sc1", tag="pub1")]]
        G = weave(G, S, 19, 31)
        S = Seq()
        for i in range(8):
            S(f"v_cndmask_b32 v{196+i}, v{AKV+i}, v{AKV+8+i}, {sB4LANES}")
        S(f"""ds_write_b128 {KVW}, v[196:199]
             ds_write_b128 {KVW}, v[200:203] offset:512""")
        S(f"ds_write_b32 {ZW}, v{ZA}", tag="kvp")
        G = weave(G, list(S), kb - 3, kb - 1)
        S = Seq()
        for k in range(4):
            S(f"ds_read2st64_b32 v[{112+2*k}:{113+2*k}], {KVR} offset0:{k} offset1:{k+8}")
        S(f"ds_read2_b32 v[120:121], {ZR} offset0:0 offset1:32")
        G = weave(G, list(S), kb, kb + 2)
        S = Seq()
        for k in range(5):
            S(f"v_add_f32 v{112+2*k}, v{112+2*k}, v{113+2*k}")
        for k in range(4):
            S(f"buffer_atomic_add_f32 v{112+2*k}, {L4}, {WS}, {sKVA} offen offset:{k*256}", tag="pub1")
        S(f"buffer_atomic_add_f32 v120, {ZAT}, {WS}, {sZA} offen", tag="pub1")
        G = weave(G, list(S), kb + 3, kb + 8)
        for k in range(3, 31, 4):
            G[k] += self.sub(lambda: self.stamp(f"v{k}"))
        p.extend(flat(G))
        p.append(mf32(AQ, v(WP + 8, 4), v(XM, 4)))
        self.stamp("A_q")
        woq = woq[nw3:]
        t1, t3, t2 = o.get('wot1', 0), o.get('wot3', 6), o.get('wot2', 2)
        assert nw3 + t1 == 0
        p.extend(flat(woq[:t1]))
        woq = woq[t1:]
        ph = phi(AQ, lambda i: "v40", 196, 180)
        h = len(ph) // 2
        p.extend(ph[:h])
        p(f"buffer_store_dwordx4 v[180:183], {L16}, {WS}, {sPQS} offen sc1", tag="pub1")
        p.extend(ph[h:])
        p(f"buffer_store_dwordx4 v[184:187], {L16}, {WS}, {sPQS} offen offset:1024 sc1", tag="pub1")
        self.stamp("A_pqst")
        p("s_barrier")
        MB = list(self.miscB()) + self.miscC()
        nb = o.get('mb1', 140)
        assert nb >= len(self.miscB())
        p.extend(flat(woq[:t3]))
        p("s_nop 0")
        p.extend(MB[:nb])
        p("s_nop 0")
        p.extend(flat(woq[t3:t3 + t2]))
        woq = woq[t3 + t2:]
        p("WAITTAG pub1\ns_barrier")
        p(f"buffer_atomic_add v4, {P4K}, {WS}, {sSIG} offen sc1")
        self.stamp("A_sig")
        for s in range(4):
            p.extend(trpair(('a', 128 + 4 * s), RT13, s * 6144, 512))
        p.extend(R2T)
        p(f"v_add_u32 {L16H}, 0x2000, {L16}")
        t4 = o.get('wot4', 16)
        assert t3 + t2 + t4 >= 16
        p.extend(flat(woq[:t4]))
        for s in range(4):
            p.append(mf16(RCS, SEL, a_(128 + 4 * s, 4), "0" if s == 0 else None))
            p(f"buffer_store_dwordx4 {a_(128+4*s,4)}, {L16}, {WS}, {sRW} offen offset:{s*1024} {o.get('rfl', 'sc1').replace('_', ' ')}", tag=f"pubR{s}")
            if dup & 1:
                p(f"buffer_store_dwordx4 {a_(128+4*s,4)}, {L16H}, {WS}, {sRW} offen offset:{s*1024} sc1", tag=f"pubR{s}")
        p.extend(R2S)
        p(f"buffer_atomic_add_f32 v{RCS}, {CSAT}, {WS}, {sRC} offen", tag="pubC")
        self.stamp("A_rst")
        p(f"s_add_u32 {sSIG}, {sSIG}, 4096")
        self.wo_rest = woq[t4:]
        self.mb_rest = MB[nb:]

    def dmaT(self, t, slot):
        g = []
        for h in range(2):
            S = Seq()
            S(f"s_add_u32 m0, {bTL}, {slot*32768+h*4096}\ns_add_u32 {sT0}, {bTX if self.o.get('grp', 1) and par13(t) and not self.o.get('dup', 3) & 1 else bTA}, {t*65536+h*4096}")
            for k in range(4):
                S(f"buffer_load_dwordx4 {L16}, {WS}, {sT0} offen offset:{k*1024} sc1 lds", tag=f"T{t}")
                g.append(list(S))
                S = Seq()
            ctx(g[-4:])
        return g

    def phaseB(self):
        p = self.p
        o = self.o
        AH = 192
        W = [trpair(('a', 4 * i), f"v{WOT+((i>>2)&3)}", (i & 3) * 4096, 1024) for i in range(32)]
        PQR = 224
        LD = [Inst(f"buffer_load_dwordx2 v[32:33], v41, {WS}, {sZL} offen sc1")]
        for q in range(4):
            for i in (2 * q, 2 * q + 1):
                LD.append(Inst(f"buffer_load_dwordx4 {v(48+4*i,4)}, {L16}, {WS}, {sKVL if i < 4 else bK2} offen offset:{(i&3)*1024} sc1"))
            for i in (2 * q, 2 * q + 1):
                LD.append(Inst(f"buffer_load_dwordx4 {a_(PQR+4*i,4)}, {L16}, {WS}, {sPQL if i < 4 else bQ2} offen offset:{(i&3)*1024} sc1"))
        ZB = Seq()(f"v_cvt_pk_bf16_f32 v32, v32, v33\nds_write_b32 {ZBW}, v32")
        for k in range(4):
            ZB(f"ds_read_b128 {v(96+4*k,4)}, {ZBR} offset:{k*64}")
        p("WAITTAG WO0\ns_barrier")
        self.stamp("B_wo")
        pm = o.get('pm', 0)
        pl = list(Seq()(f"""s_cmp_eq_u32 {sW}, 1
             s_cselect_b32 {bGP}, {bGP}, {hex(OOB)}
             s_cselect_b64 s[26:27], 0xffff, 0
             buffer_load_dword v5, {P256}, {WS}, {bGP} offen sc1"""))
        if pm == 2:
            p.extend(pl)
        p.extend(flat(W[:16]))
        if pm == 1:
            p.extend(pl)
        for q in range(4):
            p(f"v_add_u32 v{WOT+q}, 0x10000, v{WOT+q}")
        mb2 = o.get('mb2', 30)
        p.extend(self.mb_rest[:mb2])
        self.stamp("B_prepoll")
        if pm:
            self.spin("v5", P256, bGP, "s[26:27]", "16", sleep=o.get('sleep1', 1), mode='check')
        else:
            self.spin("v5", P256, bGP, "0xffff", "16", sleep=o.get('sleep1', 1), wave=o.get('pw', 1))
        if o.get('seg0'):
            p("WAITTAG WO1x pubR0")
            self.stamp("B_r0")
            p("WAITTAG pubR3")
            self.stamp("B_r3")
            p("WAITTAG pubR")
            self.stamp("B_r5")
        p("WAITTAG pubC")
        self.stamp("B_rack")
        p("WAITALL lgkm\ns_barrier")
        self.stamp("B_sync1")
        LD.insert(o.get('rsat', 0), Inst(f"buffer_atomic_add v4, {P4K}, {WS}, {sSIG} offen sc1"))
        nl0 = o.get('nl0', 14)
        p.extend(LD[:10] + [Inst('s_nop 0')] + self.mb_rest[mb2:] + ZB + LD[10:nl0])

        def prep(q):
            S = Seq()
            for k in range(4):
                S(f"v_cvt_pk_bf16_f32 v{80+4*q+k}, v{48+8*q+2*k}, v{48+8*q+2*k+1}")
            for k in range(4):
                S(f"v_cndmask_b32 v{112+8*q+k}, v{80+4*q+k}, v{96+4*q+k}, {sB4LANES}")
            for k in range(4):
                S(f"v_cndmask_b32 v{116+8*q+k}, v{96+4*q+k}, v{80+4*q+k}, {sB4LANES}")
            return S
        NA = [144, 160, 176]
        steps = [(pr + k, t) for pr in (0, 2) for t in range(3) for k in range(2)]
        d16 = o.get('d16', 1)
        steps += [(pr, t) for t in (3, 4, 5, 6) for pr in range(4)]
        w2o = [f"{cW2x if o.get('grp', 1) and par2(pr, t) and not o.get('dup', 3) & 2 else cW2}, {pr * 32768 + (t >> 2) * 16384 + (t & 3) * 2048}" for pr, t in steps]
        hho = [pr * 16384 + t * 1024 for pr, t in steps]
        w2l = []
        for i in range(16):
            S = Seq()
            if d16:
                ad = W2B if i & 1 else W2A
                if i % 2 == 0:
                    S(f"s_add_u32 {sKC}, {w2o[i]}")
                S(f"buffer_load_dwordx4 {a_(128+8*i,4)}, {ad}, {WS}, {sKC} offen sc1")
                w2l.append(list(S))
                w2l.append([Inst(f"buffer_load_dwordx4 {a_(132+8*i,4)}, {ad}, {WS}, {sKC} offen offset:256 sc1")])
                if i & 1:
                    ctx(w2l[-4:])
                continue
            S(f"s_add_u32 {sKC}, {w2o[i]}")
            S(f"buffer_load_dwordx4 {a_(128+8*i,4)}, {W2A}, {WS}, {sKC} offen sc1")
            w2l.append(list(S))
            w2l.append([Inst(f"buffer_load_dwordx4 {a_(132+8*i,4)}, {W2B}, {WS}, {sKC} offen sc1")])
            ctx(w2l[-2:])
        self.steps, self.w2o, self.hho = steps, w2o, hho
        nw1, nw2 = (o.get('nw1', 6), o.get('nw2', 6)) if o.get('e2', 0) else (0, 0)
        assert nw1 <= 24
        W1, W2_, w2l = w2l[:nw1], w2l[nw1:nw1 + nw2], w2l[nw1 + nw2:]
        self.n_w2rest = len(w2l)
        TQ = flat([self.dmaT(t, t) for t in range(2)]) + w2l
        n2, n3 = o.get('tq2', 6), o.get('tq3', 10)

        def num(i):
            return mf32(NA[i % 3], v(112 + 4 * i, 4), a_(PQR + 4 * i, 4), "0")

        def fin(i):
            n = NA[i % 3] + 8 * (i & 1)
            d = NA[i % 3] + 8 * (1 - (i & 1))
            S = Seq()
            S(f"v_add_f32 v{d}, {sEPS6}, v{d}\nv_rcp_f32 v{d}, v{d}")
            for k in range(8):
                S(f"v_mul_f32 v{n+k}, v{n+k}, v{d}")
            for k in range(4):
                S(f"v_cvt_pk_bf16_f32 v{48+4*i+k}, v{n+2*k}, v{n+2*k+1}")
            return S

        def owrite(i):
            return Inst(f"ds_write_b128 v{OAD}, {v(48+4*i,4)} offset:{(i>>2)*16384+(i&3)*1024}", tag=f"o{i}")

        OR = (16, 20, 36, 44, 208, 248)

        def oreg(k):
            return OR[k % 6] if k < 16 else 80 + 4 * (k & 7)

        def oread(k):
            return Inst(f"ds_read_b128 {v(oreg(k),4)}, v{OAD+((k>>2)&3)} offset:{(k>>4)*16384+(k&3)*1024}")

        def acc(k):
            own = (k & 12) == 0
            return mf32(AH, a_(4 * k, 4), v(48 + 4 * ((k >> 4) * 4 + (k & 3)) if own else oreg(k), 4))
        self.stamp("bz")
        p.extend(prep(0))
        self.stamp("bp")
        p.append(num(0))
        p.append(num(1))
        VM = [[x] for x in LD[nl0:]] + list(self.wo_rest)
        per = o.get('per', 3)
        rl, rc = o.get('rl', 7), o.get('rc', 8)
        kk = 4
        for i in range(8):
            if i + 2 < 8:
                if i % 2 == 0:
                    p.extend(prep(i // 2 + 1))
                p.append(num(i + 2))
            if i >= 1:
                p.append(owrite(i - 1))
            if i == 5:
                p("WAITTAG o3\ns_barrier")
                p.extend([oread(k) for k in range(4, 9)])
            for _ in range(per):
                if VM:
                    p.extend(VM.pop(0))
            if i == rl:
                p(f"buffer_load_dword v5, {P256}, {WS}, {bRP} offen sc1")
            if i >= 5:
                for _ in range(-(-nw1 // 3)):
                    if W1:
                        p.extend(W1.pop(0))
            F = fin(i)
            self.stamp(f"b{i}")
            if i < 5:
                p.extend(F[:7])
                if i >= 1:
                    p.append(acc(i - 1))
                p.extend(F[7:])
            else:
                cuts = (8, 14) if i == 5 else (2, 6, 10, 14)
                lo = 0
                for c in cuts:
                    p.extend(F[lo:c])
                    lo = c
                    p.append(acc(kk))
                    if kk + 5 < 16:
                        p.append(oread(kk + 5))
                    kk += 1
        p.append(owrite(7))
        assert not VM
        self.stamp("B_st1")
        p.append(acc(kk))
        p("WAITTAG WO1 o7\ns_barrier")
        for k in range(16, 20):
            p.extend(W[k])
        assert kk == 14
        G = [[acc(15)] + W[20] + [oread(20)]]
        for k in range(16, 32):
            g = [acc(k)]
            if k + 5 < 32:
                g += W[k + 5] + [oread(k + 5)]
            G.append(g)
        if rl >= 8:
            G[rl - 8] += [Inst(f"buffer_load_dword v5, {P256}, {WS}, {bRP} offen sc1")]
        G[rc] += self.sub(lambda: self.spin("v5", P256, bRP, "0xffff", "16", mode='check', sleep=2))
        G = weave(G, W2_, 0, rc)
        G = weave(G, TQ[:n2], rc + 1, 17)
        p.extend(flat(G))
        for k in range(8):
            p(f"v_cvt_pk_bf16_f32 v{48+k}, v{AH+2*k}, v{AH+2*k+1}")
            if k == 3:
                p(f"buffer_store_dwordx4 v[48:51], {L16}, {WS}, {sHST} offen sc1", tag="pub2")
        p(f"buffer_store_dwordx4 v[52:55], {L16}, {WS}, {sHST} offen offset:1024 sc1", tag="pub2")
        p(f"v_add_f32 v56, v{AH}, v{AH+1}\nv_mul_f32 v57, v{AH}, v{AH}\nv_add_f32 v58, v{AH+2}, v{AH+3}\nv_mul_f32 v59, v{AH+1}, v{AH+1}")
        for k in range(2, 16):
            if k >= 4:
                p(f"v_add_f32 v{56+2*(k&1)}, v{56+2*(k&1)}, v{AH+k}")
            p(f"v_fmac_f32 v{57+2*(k&1)}, v{AH+k}, v{AH+k}")
        p("""v_add_f32 v56, v56, v58
             v_add_f32 v57, v57, v59
             v_permlane32_swap_b32 v56, v57
             v_add_f32 v56, v56, v57""")
        p(f"buffer_atomic_add_f32 v56, {L4}, {WS}, {sSTA} offen", tag="pub2")
        self.stamp("B_hst")
        for t in range(7):
            p(f"buffer_load_dword v{160+t}, {CSL}, {WS}, {cCS} offen offset:{t*128} sc1")
        p.extend(flat(TQ[n2:n2 + n3]))
        p(f"WAITTAG pub2\nbuffer_store_dword v4, {FA1}, {WS}, {sD} offen offset:512 sc1\ns_barrier")
        self.t1_late = n2 < 16
        self.stamp("B_sig")
        self.tq_rest = TQ[n2 + n3:]

    def miscC(self):
        M = Seq()
        def half(d, x):
            return f"s_and_b32 {d}, {x if self.o.get('grp', 1) else sW}, 1\ns_lshl_b32 {d}, {d}, 13"

        def near(d, x):
            return f"s_lshl_b32 {d}, {x}, 11\ns_xor_b32 {d}, {d}, {bGP}\ns_and_b32 {d}, {d}, 0x2000"
        DL = "v45"
        if self.o.get('d16', 1):
            M(f"""v_bfe_u32 v46, v1, 4, 1
                 v_and_b32 {DL}, 0xf0, {L16}
                 v_lshl_add_u32 {DL}, v46, 9, {DL}
                 v_lshrrev_b32 v46, 5, v1""")
        else:
            M(f"v_mov_b32 {DL}, {L16}\nv_mov_b32 v46, 0")
        M(f"""s_bfe_i32 {sT1}, {sTBL}, 0x10010
             s_xor_b32 {sT1}, {sT1}, {sTBL}
             s_and_b32 {sT1}, {sT1}, 0xe000
             s_bcnt1_i32_b32 {sT1}, {sT1}
             s_sub_u32 {sT1}, {sKC}, {sT1}""")
        if self.o.get('cmap', 1):
            M(f"""s_and_b32 {sGC}, {sT1}, 4
                 s_lshl_b32 {sGC}, {sGC}, 1
                 s_and_b32 {sT2}, {sU}, 7
                 s_add_u32 {sGC}, {sGC}, {sT2}
                 s_and_b32 {sMC}, {sT1}, 3
                 s_lshl_b32 {sMC}, {sMC}, 2
                 s_lshr_b32 {sT2}, {sU}, 3
                 s_add_u32 {sMC}, {sMC}, {sT2}""")
        else:
            M(f"""s_and_b32 {sGC}, {sT1}, 6
                 s_lshl_b32 {sGC}, {sGC}, 1
                 s_add_u32 {sGC}, {sGC}, {sRQ}
                 s_and_b32 {sMC}, {sT1}, 1
                 s_lshl_b32 {sMC}, {sMC}, 3
                 s_lshr_b32 {sT2}, {sU}, 2
                 s_add_u32 {sMC}, {sMC}, {sT2}""")
        M(f"""s_lshl_b32 {sT1}, {sGC}, 10
             s_lshl_b32 {sT2}, {sGC}, 12
             s_xor_b32 {sP2}, {sT1}, {sT2}
             s_and_b32 {sP2}, {sP2}, 0x2000
             s_xor_b32 {sP2}, {sP2}, {sPE}
             s_lshl_b32 {bTA}, {sMC}, 19
             s_add_u32 {bTA}, {bTA}, {sXL}
             {near(sT2, sMC) if self.o.get('dup', 3) & 1 else half(sT2, sMC)}
             s_add_u32 {bTA}, {bTA}, {sT2}
             s_add_u32 {bTA}, {bTA}, {hex(W13R)}
             s_xor_b32 {bTX}, {bTA}, 0x2000""")
        M(f"""s_lshl_b32 {sT1}, {sGC}, 2
             s_add_u32 {sT2}, {sT1}, {sW}
             s_lshl_b32 {cHS2}, {sT2}, 4
             s_add_u32 {cHS2}, {cHS2}, {sMC}
             s_lshl_b32 {cHS2}, {cHS2}, 14
             s_add_u32 {cHS2}, {cHS2}, {hex(HH+4096)}
             s_xor_b32 {cHS2}, {cHS2}, {sP2}
             s_lshl_b32 {cHB}, {sT2}, 16
             s_add_u32 {cHB}, {cHB}, {hex(HB)}
             s_xor_b32 {cHB}, {cHB}, {sPE}
             s_sub_u32 {cHS}, {cHS2}, 4096
             s_lshl_b32 {sT3}, {sMC}, 14
             s_sub_u32 {cPL}, {cHS2}, {sT3}
             s_add_u32 {cPL}, {cPL}, {3072+512}
             s_add_u32 {cST}, {cPL}, 256
             v_lshlrev_b32 {HPA}, 14, v1
             v_and_b32 {PA2}, 12, {L4}
             v_or_b32 {PA2}, {PA2}, {LM8}
             v_bfe_u32 v44, v1, 2, 1
             v_lshl_add_u32 {PA2}, v44, 18, {PA2}
             s_mul_i32 {cCS}, {sMC}, {7*128}
             s_add_u32 {cCS}, {cCS}, {hex(CS)}
             s_and_b32 {sCB}, {sMC}, 7
             s_lshl_b32 {cW2}, {sCB}, 19
             s_lshl_b32 {sT3}, {sW}, 17
             s_add_u32 {cW2}, {cW2}, {sT3}
             {near(sT3, sCB) if self.o.get('dup', 3) & 2 else half(sT3, sCB)}
             s_add_u32 {cW2}, {cW2}, {sT3}
             s_add_u32 {cW2}, {cW2}, {hex(W2R)}
             s_xor_b32 {cW2x}, {cW2}, 0x2000
             s_and_b32 {sT3}, {sW}, 1
             s_lshl_b32 {sT2}, {sT3}, 10
             v_add_u32 {W2A}, {sT2}, {DL}
             v_xor_b32 {W2B}, 1024, {W2A}
             v_lshrrev_b32 v44, 4, v1
             v_lshl_add_u32 {LB0}, v44, {8 if self.o.get('c16', 1) else 31}, {L16}
             v_and_b32 {LB0}, 0xffff, {LB0}
             v_add_u32 {LB1}, 0x10000, {LB0}
             v_add_u32 {LB2}, 0x20000, {LB0}
             s_add_u32 {sT2}, {bTL}, 0x10000
             v_add_u32 {WLA}, {sT2}, {W2A}
             v_add_u32 {WLB}, {sT2}, {W2B}
             v_lshl_add_u32 {WLA}, v46, 11, {WLA}
             v_lshl_add_u32 {WLB}, v46, 11, {WLB}
             v_lshl_add_u32 {W2A}, v46, 15, {W2A}
             v_lshl_add_u32 {W2B}, v46, 15, {W2B}
             v_add_u32 {WLC}, 0x10000, {WLA}
             v_add_u32 {WLD}, 0x10000, {WLB}
             v_and_b32 {CSL}, 0x7c, {L4}
             s_lshr_b32 {sT2}, {sMC}, 3
             s_lshl_b32 {sT2}, {sT2}, 1
             s_add_u32 {sT1}, {sT1}, {sT2}
             s_lshl_b32 {cHL}, {sT1}, 18
             s_lshl_b32 {sT2}, {sW}, 16
             s_add_u32 {cHL}, {cHL}, {sT2}
             s_add_u32 {cHL}, {cHL}, {hex(HH)}
             s_xor_b32 {cHL}, {cHL}, {sP2}
             s_lshr_b32 {sT2}, {sW}, 1
             s_add_u32 {sT1}, {sT1}, {sT2}
             s_lshl_b32 {sT2}, {sT2}, 18
             v_add_u32 {HHA}, {sT2}, {DL}
             v_lshl_add_u32 {HHA}, v46, 14, {HHA}
             v_xor_b32 {HHB}, 0x40000, {HHA}
             s_lshl_b32 {sT1}, {sT1}, 15
             s_lshl_b32 {sT2}, {sCB}, 1
             s_add_u32 {sT2}, {sT2}, {sT3}
             s_lshl_b32 {cOUT}, {sT2}, 6
             s_add_u32 {cOUT}, {cOUT}, {sT1}
             s_lshr_b32 {cHR}, {sT2}, 2
             s_lshl_b32 {cHR}, {cHR}, 13
             s_add_u32 {cHR}, {cHR}, {sT1}
             s_and_b32 {sT2}, {sT2}, 3
             s_lshl_b32 {sT2}, {sT2}, 10
             s_add_u32 {cHR}, {cHR}, {sT2}
             s_lshl_b32 {cHR}, {cHR}, 1
             s_add_u32 {cHR}, {cHR}, {hex(HB)}
             s_xor_b32 {cHR}, {cHR}, {sPE}
             s_add_u32 {cPP}, {cHL}, 7168
             s_add_u32 {cPQ}, {cPP}, 0x40000
             s_and_b32 {sT3}, {sMC}, 3
             s_mul_i32 {sT3}, {sT3}, {16384-4}
             s_sub_u32 {cPS}, {cHS2}, {sT3}""")
        return list(M)

    def phaseCD(self):
        p = self.p
        o = self.o
        sub = self.sub
        bar = lambda s_: list(Seq()(s_))
        steps, w2o, hho = self.steps, self.w2o, self.hho

        def dmaW2(part):
            g = []
            for k in range(4):
                S = Seq()
                S(f"s_add_u32 m0, {bTL}, {(2+part)*32768+k*2048}\ns_add_u32 {sT0}, {w2o[16+4*part+k]}")
                S(f"buffer_load_dwordx4 {L16}, {WS}, {sT0} offen sc1 lds", tag=f"W2L{part}")
                g.append(list(S))
                g.append([Inst(f"buffer_load_dwordx4 {L16}, {WS}, {sT0} offen offset:1024 sc1 lds", tag=f"W2L{part}")])
                ctx(g[-2:])
            return g

        def pub(tag, st):
            if o.get('nopub'):
                return []
            return bar(f"WAITTAG {tag}\nbuffer_store_dword v4, {FA1}, {WS}, {cPS} offen offset:{3072+128*st} sc1")

        vp = str(o.get('vp', 'x0123'))

        def pollld(st):
            if o.get('nopoll'):
                return []
            if str(st) in vp:
                return bar(f"buffer_load_dword v5, {PA2}, {WS}, {cPP} offen sc1")
            return list(Seq()(f"""s_buffer_load_dwordx4 s[8:11], {WS}, {cPP} glc
                 s_buffer_load_dwordx4 s[12:15], {WS}, {cPQ} glc""", cond=True))

        def pollchk(st):
            if o.get('nopoll'):
                return []
            if str(st) in vp:
                return sub(lambda: self.spin("v5", PA2, cPP, "0xff", "1", mode='check', sleep=o.get('sleep2', 2))) + \
                    bar(f"s_add_u32 {cPP}, {cPP}, 128\ns_add_u32 {cPQ}, {cPQ}, 128")
            red = """s_and_b64 s[8:9], s[8:9], s[10:11]
                 s_and_b64 s[12:13], s[12:13], s[14:15]
                 s_and_b64 s[8:9], s[8:9], s[12:13]
                 s_and_b32 s8, s8, s9"""

            def f():
                Lp = self.lab("sp")
                if o.get('stamps') == 3:
                    self.p(f"s_mov_b32 {sT5}, 0")
                self.p("WAITALL lgkm\n" + red)
                self.ool("s_cbranch_scc0", f"""s_mov_b32 {sT5}, 0
                     {Lp}:
                     s_sleep {o.get('sleep2', 2)}
                     s_buffer_load_dwordx4 s[8:11], {WS}, {cPP} glc
                     s_buffer_load_dwordx4 s[12:15], {WS}, {cPQ} glc
                     s_add_u32 {sT5}, {sT5}, 1
                     s_waitcnt lgkmcnt(0)
                     {red}
                     s_lshr_b32 s9, {sT5}, 15
                     s_or_b32 s8, s8, s9
                     s_cbranch_scc0 {Lp}""")
                self.p(f"s_add_u32 {cPP}, {cPP}, 128\ns_add_u32 {cPQ}, {cPQ}, 128")
                if o.get('stamps') == 3:
                    self.p(f"v_writelane_b32 v{STV}, {sT5}, {self.nstamp}")
                    self.nstamp += 1
                    self.stamp_names.append(f"P{st}")
            return sub(f)

        kt = max(0, len(self.tq_rest) - self.n_w2rest)
        FQ = self.tq_rest[:kt] + self.dmaT(2, 2) + self.dmaT(3, 3) + self.dmaT(4, 4) + self.tq_rest[kt:]
        npre, npre2 = o.get('tq4', 12), o.get('tq5', 0)
        p.extend(flat(FQ[:npre]))
        FQ = FQ[npre:]
        c16 = o.get('c16', 1)
        CSR, CSF, MEANF, C1, C2 = 160, 168, 176, 180, 181
        CSU, CSG, MEANG = 213, 220, 228
        p("s_nop 0")
        for k in (1, 2, 3, 5, 6, 7, 9, 10, 11):
            p(f"v_mov_b32 v{CSF+k}, 0")
            if c16:
                p(f"v_mov_b32 v{CSG+k}, 0")
        for t in range(7):
            p.extend(split2(CSR + t, CSR + t, 184))
        if c16:
            for t in range(7):
                p(f"v_mov_b32 v{CSU+t}, v{CSR+t}")
            for t in range(7):
                p(f"v_permlane16_swap_b32 v{CSR+t}, v{CSU+t}")
            p(f"s_mov_b64 s[8:9], 0xffff\nv_mov_b32 v{CSG}, v{CSU}\nv_mov_b32 v{CSG+4}, v{CSU+1}")
        p(f"v_mov_b32 v{CSF}, v{CSR}\nv_mov_b32 v{CSF+4}, v{CSR+1}")
        p("s_nop 0")
        p.extend(flat(FQ[:npre2]))
        FQ = FQ[npre2:]
        self.stamp("C_prepoll")
        self.spin("v5", HPA, cPL, "0xffff", "1", mode='all', sleep=o.get('sleep3', 0))
        self.stamp("C_sync2")

        c16 = o.get('c16', 1)
        fo = (lambda s: (s >> 1) * 2048 + (s & 1) * 256) if c16 else (lambda s: s * 1024)

        def hload(s):
            S = Seq()
            if s % 4 == 0 and s:
                S(f"s_add_u32 {cHB}, {cHB}, {4096 if s % 8 else 12288}")
            S(f"buffer_load_dwordx4 {a_(4*s,4)}, {LB0}, {WS}, {cHB} offen offset:{fo(s&3)} sc1")
            return list(S)
        HL = o.get('hla', 10)
        for s in range(HL):
            p.extend(hload(s))
        if self.t1_late:
            p("WAITTAG T1\ns_barrier")
        ACC = [48, 64, 80, 96, 112]
        acc_of = [0, 1, 2, 3, 0, 1, 2]
        slot_of = [0, 1, 2, 3, 4, 0, 1]
        WR, NR = 128, 8
        CSR, CSF, MEANF, C1, C2 = 160, 168, 176, 180, 181
        T = 184
        LK = o.get('lk', 5)
        F0 = Seq()
        for k in range(4):
            F0(f"buffer_load_dword v{T+4+k}, {L4}, {WS}, {cST} offen sc1\ns_add_u32 {cST}, {cST}, 16384")
        F1 = Seq()
        F1(f"""v_add_f32 v{T}, v{T+4}, v{T+5}
             v_add_f32 v{T+1}, v{T+6}, v{T+7}
             v_add_f32 v{T}, v{T}, v{T+1}
             v_mov_b32 v{T+1}, v{T}
             v_permlane32_swap_b32 v{T}, v{T+1}
             v_mul_f32 v{T}, 0x3b000000, v{T}
             v_mul_f32 v{T+1}, 0x3b000000, v{T+1}
             v_cvt_pk_bf16_f32 v{MEANF}, -v{T}, -v{T}
             v_fma_f32 v{T+1}, -v{T}, v{T}, v{T+1}
             v_max_f32 v{T+1}, 0, v{T+1}
             v_add_f32 v{C2}, 0x3727c5ac, v{T+1}
             v_rsq_f32 v{C1}, v{C2}
             v_mul_f32 v{C1}, 0xbfb8aa3b, v{C1}""")
        if c16:
            prs = [(MEANF, MEANG), (C2, C2 + 2), (C1, C1 + 2)]
            for x, y in prs:
                F1(f"v_mov_b32 v{y}, v{x}")
            for x, y in prs:
                F1(f"v_permlane16_swap_b32 v{x}, v{y}")
            F1(f"""v_cndmask_b32 v{MEANF}, 0, v{MEANF}, s[8:9]
                 v_cndmask_b32 v{MEANG}, 0, v{MEANG}, s[8:9]""")
        else:
            F1(f"v_cndmask_b32 v{MEANF}, v{MEANF}, 0, {sHILANES}")

        def tread(t, s, n):
            sl = slot_of[t]
            base = (LB0, LB0, LB1, LB1, LB2)[sl]
            return [Inst(f"ds_read_b128 {v(WR+4*(n%NR),4)}, {base} offset:{(sl&1)*32768*(sl<4)+fo(s)}")]

        def corr(t):
            A = ACC[acc_of[t]]
            if c16:
                return [mf16(A + 8 * gu + 4 * th, v((CSF, CSG)[gu] + 4 * (t & 1), 4), v((MEANF, MEANG)[th], 4))
                        for gu, th in ((0, 0), (0, 1), (1, 1), (1, 0))]
            return [mf32(A, v(CSF + 4 * (t & 1), 4), v(MEANF, 4))]

        def cm(t, s, n):
            A, w = ACC[acc_of[t]], v(WR + 4 * (n % NR), 4)
            if not c16:
                return [mf32(A, w, a_(4 * s, 4), "0" if s == 0 else None)]
            gu = s & 1
            r = [mf16(A + 8 * gu + 4 * th, w, a_(8 * (s >> 1) + 4 * th, 4), "0" if s < 2 else None) for th in (gu, 1 - gu)]
            r[1].tag = "second"
            return r

        def spread(G):
            out = []
            for g in G:
                g = hoist(g)
                if len(g) > 1 and g[1].tag == "second":
                    m, rest, c, k = g[1], g[2:], 0, 0
                    m.tag = None
                    tot = sum(cost(x) for x in rest if not x.cond)
                    while k < len(rest) and c + cost(rest[k]) <= max(9.7, tot / 2 + 2.2) and not rest[k].cond \
                            and rest[k].kind not in ('branch', 'label') and not rest[k].op.startswith('v_cmp'):
                        c += cost(rest[k])
                        k += 1
                    g = [g[0]] + rest[:k] + [m] + rest[k:]
                out += g
            return out
        G = []
        for n in range(64):
            s, t = divmod(n, 2)
            g = cm(t, s, n)
            if n + LK < 64:
                g += tread((n + LK) % 2, (n + LK) // 2, n + LK)
            else:
                if n + LK == 64:
                    g += bar("WAITTAG T2\ns_barrier")
                g += tread(2, n + LK - 64, n + LK)
            if t == 0 and s + HL < 32:
                g += hload(s + HL)
            G.append(g)
        G.append(corr(0))
        G.append(corr(1))
        for n in range(LK):
            p.extend(tread(n % 2, n // 2, n))
        G = weave(G, list(F0), 1, o.get('f0', 20))
        G = weave(G, list(F1), o.get('f1', 40), 63)
        e0 = 2 * (32 - HL)
        ng = min(len(FQ), o.get('g1q', 8))
        G = weave(G, FQ[:ng], e0, 66)
        FQ = FQ[ng:]
        p.extend(spread(G))
        self.stamp("C_g1")

        def epi(t, tmp):
            A = ACC[acc_of[t]]
            S = Seq()
            for j in range(8):
                S(f"v_mul_f32 v{tmp+j}, v{A+j}, v{C1+2*c16*(j>>2)}")
            for j in range(8):
                S(f"v_exp_f32 v{tmp+j}, v{tmp+j}")
                S(f"v_mul_f32 v{A+j}, v{A+j}, v{A+8+j}")
            for j in range(8):
                S(f"v_fma_f32 v{tmp+j}, v{tmp+j}, v{C2+2*c16*(j>>2)}, v{C2+2*c16*(j>>2)}")
                if j >= 2:
                    S(f"v_rcp_f32 v{tmp+j-2}, v{tmp+j-2}")
            for j in range(8):
                S(f"v_mul_f32 v{A+j}, v{A+j}, v{tmp+j}")
                if j < 2:
                    S(f"v_rcp_f32 v{tmp+6+j}, v{tmp+6+j}")
            for j in (0, 2, 1, 3):
                S(f"v_cvt_pk_bf16_f32 v{tmp+8+j}, v{A+2*j}, v{A+2*j+1}")
            if c16:
                S(f"v_permlane16_swap_b32 v{tmp+8}, v{tmp+10}\nv_permlane16_swap_b32 v{tmp+9}, v{tmp+11}")
            S(f"buffer_store_dwordx4 {v(tmp+8,4)}, {L16}, {WS}, {cHS if t < 4 else cHS2} offen offset:{(t&3)*1024} sc1", tag=f"hh{t}")
            return list(S)

        def tilepass(t, n0):
            G = []
            for s in range(32):
                n = n0 + s
                g = cm(t, s, n)
                if s + LK < 32:
                    g += tread(t, s + LK, n + LK)
                elif t < 6:
                    if s + LK == 32:
                        g += bar(f"WAITTAG T{t+1}\ns_barrier")
                    g += tread(t + 1, s + LK - 32, n + LK)
                if s == 16:
                    g += bar(f"v_mov_b32 v{CSF+4*(t&1)}, v{CSR+t}")
                if s == 17 and c16:
                    g += bar(f"v_mov_b32 v{CSG+4*(t&1)}, v{CSU+t}")
                G.append(g)
            G.append(corr(t))
            return G

        d16 = o.get('d16', 1)

        def hhload(i):
            S = Seq()
            if d16:
                ad = HHB if i & 1 else HHA
                S(f"s_add_u32 {sCc}, {cHL}, {hho[i & ~1]}")
                S(f"buffer_load_dwordx4 {a_(8*(i&15),4)}, {ad}, {WS}, {sCc} offen sc1")
                return ctx([list(S), [Inst(f"buffer_load_dwordx4 {a_(8*(i&15)+4,4)}, {ad}, {WS}, {sCc} offen offset:256 sc1")]])
            S(f"s_add_u32 {sCc}, {cHL}, {hho[i]}")
            S(f"buffer_load_dwordx4 {a_(8*(i&15),4)}, {HHA}, {WS}, {sCc} offen sc1")
            return ctx([list(S), [Inst(f"buffer_load_dwordx4 {a_(8*(i&15)+4,4)}, {HHB}, {WS}, {sCc} offen sc1")]])

        EP = [epi(t, T + 12 * (t & 1)) for t in range(7)]
        P = {t: tilepass(t, 32 * t) for t in range(2, 7)}
        q = o.get('cq', 18)
        ee = o.get('ee', 20)
        LA = o.get('dla', 7)
        G = weave(P[2], FQ[:q], 0, 32)
        FQ = self.dmaT(5, 0) + FQ[q:]
        FQ = FQ[:q] + self.dmaT(6, 1) + FQ[q:] + dmaW2(0) + dmaW2(1) + dmaW2(2)
        G = weave(G, EP[0] + EP[1][:26], 2, 33)
        p.extend(self.xf(spread(G)))
        self.stamp("C_t2")
        q3 = min(q, len(FQ) - 24)
        G = weave(P[3], FQ[:q3], 0, 32)
        FQ = FQ[q3:]
        G = weave(G, EP[1][26:] + EP[2], 0, 33)
        p.extend(self.xf(spread(G)))
        self.stamp("C_t3")
        q4 = min(q, len(FQ) - 16)
        G = weave(P[4], FQ[:q4], 0, 32)
        FQ = FQ[q4:]
        G = weave(G, EP[3], 2, ee)
        G[o.get('p1at', 26)] += pub("hh2", 0)
        p.extend(self.xf(spread(G)))
        self.stamp("C_t4")
        q5 = min(q, len(FQ) - 8)
        G = weave(P[5], FQ[:q5], 0, 32)
        FQ = FQ[q5:]
        G[o.get('l1', 14)] += pollld(0)
        G[1] += bar(f"buffer_load_dwordx4 v[24:27], {L16}, {WS}, {cHR} offen sc1")
        G[3] += bar(f"buffer_load_dwordx4 v[28:31], {L16}, {WS}, {cHR} offen offset:1024 sc1")
        G = weave(G, EP[4], 2, ee)
        p.extend(self.xf(spread(G)))
        self.stamp("C_t5")
        G = P[6]
        c1 = o.get('c1', 1)
        n6 = min(o.get('n6', 0), len(FQ))
        if n6:
            G = weave(G, FQ[:n6], 0, max(c1, 1))
            FQ = FQ[n6:]
        G[c1] += pollchk(0)
        hq = [x for i in range(LA) for x in hhload(i)]
        G = weave(G, hq, c1 + 1, 33)
        S = Seq()
        if d16:
            for i in (24, 25, 28, 29):
                S(f"v_permlane16_swap_b32 v{i}, v{i+2}")
        for i in range(8):
            S(f"v_lshlrev_b32 v{48+2*i}, 16, v{24+i}\nv_and_b32 v{49+2*i}, {sMSKHI}, v{24+i}")
        for k in range(4):
            S(f"""s_xor_b32 {sT1}, {sW}, {k}
                 s_mul_i32 {sT1}, {sT1}, 12288
                 v_add_u32 v{36+k}, {sT1}, {L16}""")
        G = weave(G, list(S), ee + 1, 33)
        G = weave(G, EP[5], 2, ee)
        G[o.get('p2at', 12)] += pub("hh4", 1)
        p.extend(self.xf(spread(G)))
        self.stamp("C_t6")

        DA = [48, 64, 96, 112]

        def w2r(i, a):
            return (128, 168, 128)[(i - 16) // 4] + 8 * (i % 4) + 4 * a

        def w2read(i):
            part, k = divmod(i - 16, 4)
            r = bar(f"WAITTAG W2L{part}") if k == 0 else []
            for a in range(2):
                ad = ((WLA, WLB), (WLA, WLB), (WLC, WLD))[part][k & 1 if d16 else a]
                r.append(Inst(f"ds_read_b128 {v(w2r(i, a), 4)}, {ad} offset:{(part&1)*32768 + ((k&2)*2048 + a*256 if d16 else k*2048)}"))
            return r

        def w2f(i, a):
            return a_(128 + 8 * i + 4 * a, 4) if i < 16 else v(w2r(i, a), 4)

        def dm(i, k):
            a, b = k & 1, k >> 1
            if d16:
                j, ch = i & ~1, i & 1
                r = [mf16(DA[k] + 8 * ch + 4 * th, w2f(j + a, ch), a_(8 * ((j + b) & 15) + 4 * th, 4), "0" if j == 0 and k else None)
                     for th in (ch, 1 - ch)]
                r[1].tag = "second"
                return r
            return [mf32(DA[k], w2f(i, a), a_(8 * (i & 15) + 4 * b, 4), "0" if i == 0 and k else None)]
        nl = o.get('nl', 4)
        if d16:
            assert nl % 2 == 0
            G = [dm(j + ch, k) for j in range(0, 28 - nl, 2) for k in (0, 1, 3, 2) for ch in range(2)]
        else:
            G = [dm(i, k) for i in range(28 - nl) for k in (1, 3, 2, 0)]
        G += [dm(i, k) for k in (1, 3, 2, 0) for i in range(28 - nl, 28)]
        for i in range(16, 28):
            G[min(4 * i - 7 - 2 * d16 * (i & 1), 4 * (28 - nl) - 8 + (i - (28 - nl)))] += w2read(i)
        c2, c3, c4 = o.get('c2', 22), o.get('c3', 54), o.get('c4', 76)
        l2, l3, l4 = o.get('l2', 6), o.get('l3', 37), o.get('l4', 62)
        G[l2] += pollld(1)
        G = weave(G, EP[6], 1, o.get('e6', 11))
        G[o.get('p3at', 12)] += pub("hh5", 2)
        G[l3] += pollld(2)
        G[o.get('p4at', 38)] += pub("hh6", 3)
        G[o.get('dbar', 40)] += bar("s_barrier")
        hs = lambda a, b: [x for i in range(a, b) for x in hhload(i)]
        G = weave(G, hs(LA, 12), 0, c2)
        G[c2] += pollchk(1)
        nf = max(0, len(FQ) - o.get('nf', 8))
        G = weave(G, hs(12, 16) + FQ[:nf] + hs(16, 20), c2 + 1, c3)
        G[c3] += pollchk(2)
        G = weave(G, hs(20, 24), c3 + 1, l4)
        G[l4] += pollld(3)
        G = weave(G, FQ[nf:], l4 + 1, c4)
        G[c4] += pollchk(3)
        G = weave(G, hs(24, 28), c4 + 1, c4 + o.get('h4', 9))
        WRT = [[Inst(f"ds_write_b128 v{36+k}, {v(DA[k]+4*q_,4)} offset:{(k-1)*4096+q_*1024}") for q_ in range(4)] for k in (1, 3, 2)]
        if nl >= 2:
            for n in range(3):
                G = weave(G, WRT[n], 112 - (3 - n) * nl + 1, 112 - (2 - n) * nl + (1 if n < 2 else 0))
        else:
            G[111] += flat(WRT)
        for k in sorted(set(list(range(8, 112, 8)) + [c2 - 1, c2, c3 - 1, c3, c4 - 1, c4])):
            G[k] += sub(lambda: self.stamp(f"d{k}"))
        p.extend(self.xf(spread(G)))
        self.stamp("D_loop")
        p("WAITALL lgkm\ns_barrier")
        for q_ in range(4):
            for k in range(3):
                p(f"ds_read_b128 {v(160+16*k+4*q_,4)}, v36 offset:{k*4096+q_*1024}")
        for q_ in range(4):
            for j in range(2):
                r = 4 * q_ + 2 * j
                p(f"v_pk_add_f32 {v(48+r,2)}, {v(48+r,2)}, {v(160+r,2)}")
                p(f"v_pk_add_f32 {v(176+r,2)}, {v(176+r,2)}, {v(192+r,2)}")
            for j in range(2):
                r = 4 * q_ + 2 * j
                p(f"v_pk_add_f32 {v(48+r,2)}, {v(48+r,2)}, {v(176+r,2)}")
            for j in range(2):
                p(f"v_cvt_pk_bf16_f32 v{112+2*q_+j}, v{48+4*q_+2*j}, v{48+4*q_+2*j+1}")
            if q_ & 1 and d16:
                p(f"v_permlane16_swap_b32 v{110+2*q_}, v{112+2*q_}\nv_permlane16_swap_b32 v{111+2*q_}, v{113+2*q_}")
            if q_ & 1:
                p(f"buffer_store_dwordx4 {v(112+4*(q_>>1),4)}, {ROWA}, {OUT}, {cOUT} offen offset:{32*(q_>>1)}" + ["", " sc1", " nt", " sc0 sc1"][o.get('outst', 0)])
        self.stamp("D_end")

    def finish(self):
        p = self.p
        if self.o.get('stamps'):
            p("WAITALL vm")
            self.stamp("D_drained")
            p(f"""s_lshl_b32 {sT0}, s2, 2
                 s_add_u32 {sT0}, {sT0}, {sW}
                 s_lshl_b32 {sT0}, {sT0}, 7
                 s_add_u32 {sT0}, {sT0}, {hex(STAMP)}
                 s_mov_b32 exec_hi, 0
                 buffer_store_dword v{STV}, {L4}, {WS}, {sT0} offen""")
        if self.o.get('padto'):
            p("WAITALL vm")
            if self.o.get('skew') is not None:
                p(f"""buffer_load_dword v43, off, {DBG}, 0 offset:128 sc1
                     buffer_load_dword v41, off, {DBG}, 0 offset:192 sc1
                     v_not_b32 v43, v43
                     v_readfirstlane_b32 s72, v43
                     v_readfirstlane_b32 s73, v41""")
                if self.o['skew'] < 0:
                    p("s_sub_u32 s101, s73, s72")
                else:
                    p("s_sub_u32 s101, s100, s72")
                p(f"""s_min_u32 s101, s101, 2000
                     s_lshl_b32 s101, s101, 3
                     s_add_u32 s100, s72, s101
                     s_lshl_b32 s72, s2, 2
                     s_add_u32 s72, s72, {sW}
                     s_cmp_lg_u32 s72, {max(self.o['skew'], 0) * 4}
                     s_cbranch_scc1 L_end""")
            if self.o.get('mx'):
                p(f"""s_lshl_b32 s72, s101, 8
                     s_add_u32 s72, s72, s2
                     v_mov_b32 v41, s72
                     s_cmp_eq_u32 {sW}, 0
                     s_cselect_b32 s73, 0, {hex(OOB)}
                     buffer_atomic_umax v41, {FA1}, {DBG}, s73 offen offset:192 sc1
                     s_waitcnt vmcnt(0)
                     L_pad0:
                     s_memrealtime s[72:73]
                     s_waitcnt lgkmcnt(0)
                     s_sub_u32 s72, s72, s100
                     s_cmp_lt_i32 s72, {self.o['padto']-200}
                     s_cbranch_scc1 L_pad0
                     buffer_load_dword v41, off, {DBG}, 0 offset:192 sc1
                     v_readfirstlane_b32 s72, v41""")
                if self.o['mx'] == 1:
                    p("s_lshl_b32 s101, s101, 8\ns_sub_u32 s101, s72, s101\ns_lshr_b32 s101, s101, 8\ns_min_u32 s101, s101, 1000\ns_lshl_b32 s101, s101, 4")
                elif self.o['mx'] == 2:
                    p("s_bfe_u32 s101, s72, 0x50003\ns_mul_i32 s101, s101, 200")
                else:
                    p("s_and_b32 s101, s72, 7\ns_mul_i32 s101, s101, 500")
                p("s_add_u32 s100, s100, s101")
            if self.o.get('rel'):
                p("s_memrealtime s[72:73]\ns_waitcnt lgkmcnt(0)\ns_add_u32 s100, s72, s101")
            if self.o.get('seg0'):
                p(f"s_lshl_b32 s72, s2, 2\ns_add_u32 s72, s72, {sW}\ns_cmp_lg_u32 s72, {self.o.get('segw', 150)}\ns_cbranch_scc1 L_end")
            p("L_pad:\ns_memrealtime s[72:73]\ns_waitcnt lgkmcnt(0)\ns_sub_u32 s72, s72, s100")
            p(f"s_cmp_lt_i32 s72, {self.o['padto']}\ns_cbranch_scc1 L_pad")
        p("L_end:\ns_endpgm")

    def build(self):
        if self.o.get('stamps') or self.o.get('padto'):
            self.p("s_memtime s[100:101]" if self.o.get('stamps') == 2 else "s_memrealtime s[100:101]")
        self.setup()
        if self.o.get('seg0') == 'start':
            self.p("s_mov_b32 s101, s100")
        if self.o.get('stamps'):
            self.p(f"v_mov_b32 v{STV}, s100")
            self.nstamp = 1
            self.stamp_names.append("start")
        self.p.extend(self.xf(self.sub(self.phaseA), 'xa'))
        self.p.extend(self.xf(self.sub(self.phaseB), 'xb'))
        self.phaseCD()
        self.finish()
        sk = str(self.o.get('skel', ''))
        if sk:
            Q = Seq()
            for i in self.p:
                if 'm' in sk and i.kind == 'mfma':
                    r = sorted(i.srcab)
                    for x in (r[0], r[-1]):
                        Q(f"v_accvgpr_read_b32 v40, {x}" if x[0] == 'a' else f"v_mov_b32 v40, {x}")
                    continue
                if 'e' in sk and i.kind in ('valu', 'trans') and not i.cond and i.op.endswith(('f32', 'f32_e64')):
                    continue
                if 'v' in sk and i.kind in ('vload', 'dma') and not i.cond and 'dwordx4' in i.op:
                    continue
                if 's' in sk and i.kind == 'vstore' and not i.cond and (i.wide or 'f32' in i.op) and 'v[176:179]' not in i.text:
                    continue
                Q.append(i)
            self.p = Q
        ns = str(self.o.get('nosc', ''))
        for i in self.p:
            if i.kind in ('vload', 'dma') and 'dwordx' in i.op and not i.cond:
                for ch, regs in (('k', (sKVL, bK2, sZL)), ('q', (sPQL, bQ2)), ('h', (cHB,)), ('t', (sT0, sKC)), ('d', (sCc,))):
                    if ch in ns and any(f"{WS}, {r} " in i.text for r in regs):
                        i.text = i.text.replace(" sc1", "")
        import dsl
        dsl.MERGE = self.o.get('mg', 1)
        return finalize(self.p, self.o.get('fill', 1))


def emit(opt):
    g = Gen(opt)
    prog = g.build()
    hdr = open(os.path.join(os.path.dirname(os.path.abspath(__file__)), "header.txt")).read()
    body = "\n".join(("" if i.kind == 'label' else "    ") + i.text for i in prog)
    txt = hdr + f"""; @launch grid=(256,1,1) block=(256,1,1) lds=163840
.amdgcn_target "amdgcn-amd-amdhsa--gfx950"
.set CODE_PF_MAX, {opt.get('code_bytes', 0)}
.text
.globl {NAME}_kernel
.p2align 8
.type {NAME}_kernel,@function
{NAME}_kernel:
{body}
.section .rodata,"a"
.p2align 6
.amdhsa_kernel {NAME}_kernel
  .amdhsa_next_free_vgpr 512
  .amdhsa_next_free_sgpr 102
  .amdhsa_accum_offset 256
  .amdhsa_group_segment_fixed_size 0
  .amdhsa_kernarg_size 80
  .amdhsa_user_sgpr_count 2
  .amdhsa_user_sgpr_kernarg_segment_ptr 1
  .amdhsa_system_sgpr_workgroup_id_x 1
.end_amdhsa_kernel
"""
    return txt, g.stamp_names


def code_size(txt):
    import subprocess, tempfile
    with tempfile.TemporaryDirectory() as d:
        open(d + "/k.s", "w").write(txt)
        r = subprocess.run(["clang", "-x", "assembler", "-target", "amdgcn-amd-amdhsa",
                            "-mcpu=gfx950", "-c", d + "/k.s", "-o", d + "/k.o"], capture_output=True, text=True)
        if r.returncode:
            print("\n".join(r.stderr.split("\n")[:30]))
            raise SystemExit(1)
        r = subprocess.run(["llvm-objdump", "-h", d + "/k.o"], capture_output=True, text=True)
        for line in r.stdout.split("\n"):
            f = line.split()
            if len(f) > 2 and f[1] == ".text":
                return int(f[2], 16)


def main():
    opt = {}
    out = None
    for a in sys.argv[1:]:
        if '=' in a:
            k, val = a.split('=')
            try:
                opt[k] = int(val, 0)
            except ValueError:
                opt[k] = val
        else:
            out = a
    opt['code_bytes'] = 4096
    txt, names = emit(opt)
    sz = code_size(txt)
    opt['code_bytes'] = (sz - 1024) & ~3
    txt, names = emit(opt)
    open(out, "w").write(txt)
    if names:
        open(out + ".names", "w").write(" ".join(names))
    print(out, "code bytes", sz, "lines", txt.count("\n"), "stamps", len(names))


if __name__ == "__main__":
    main()
```

```python
import sys, os
sys.path.insert(0, os.path.dirname(os.path.abspath(__file__)))
from dsl import *

NAME = "sequential_preLN__linear_attn_block__glu_gated_swiglu__prompt"

CNT = 0x20000
KVM = 0x10000
ST = 0x18000
CS = 0x1C000
ZP = 0x1F800
STAMP = 0xC0000
PQ = 0x400000
HB = 0x800000
HH = 0x1000000
W13R = 0x2000000
W2R = 0x2800000
PROBE = 0x100000
WS_SIZE = 0x2C00000
OOB = 0x7f000000

X, WQKV, WO, W1, W3, W2, OUT, WS, DBG = [f"s[{a}:{a+3}]" for a in range(4, 40, 4)]
(sW, sG, sM, sC0, sT0, sT1, sT2, sT3, sXB, sWB, sXL, sWL, sTB, sCB, sRQ, sLOG2E,
 sU, sKC, sT4, sT5, sMSKHI, sEPS6) = [f"s{i}" for i in range(40, 62)]
sHILANES = "s[62:63]"
sB4LANES = "s[64:65]"
sA, sB, sCc, sD = "s66", "s67", "s68", "s69"
sKVA, sZA, sPQS, sRW, sR2, sRC, sKVL, sZL, sPQL, sSIG, sHST, sSTA = [f"s{i}" for i in range(84, 96)]
sMA, sTA, sHS = "s3", "s74", "s83"
sP1, sPE, sP2, sTBL = "s96", "s97", "s98", "s99"
STV = 0

VB, KB, XCH, RST, KVS, ZS = 0x10000, 0x18000, 0x20000, 0x22000, 0, 0x21000

L16, L4 = "v2", "v3"
TRK, TRP = 152, 156
XCW, XCR, KVW, ZW, STW, KVR, ZR, ZAT, STR = [f"v{i}" for i in range(212, 221)]
WOD, WOT, OAD = 221, 225, 229
ROWA, ZBW, ZBR, P256 = "v233", "v234", "v235", "v236"
RL1, RL3, RL2, RT13, RT2A, RT2B, CSAT, P4K, FA1, LM8, PA2 = [f"v{i}" for i in range(237, 248)]
RCS = 248
L16H = "v47"


def v(a, n=1):
    return f"v{a}" if n == 1 else f"v[{a}:{a+n-1}]"


def a_(a, n=1):
    return f"a{a}" if n == 1 else f"a[{a}:{a+n-1}]"


def mf32(d, A, B, c=None):
    return Inst(f"v_mfma_f32_32x32x16_bf16 {v(d,16)}, {A}, {B}, {v(d,16) if c is None else c}")


def mf16(d, A, B, c=None):
    return Inst(f"v_mfma_f32_16x16x32_bf16 {v(d,4)}, {A}, {B}, {v(d,4) if c is None else c}")


def mf4(d, A, B, c=None):
    return Inst(f"v_mfma_f32_4x4x4_16b_bf16 {v(d,4)}, {A}, {B}, {v(d,4) if c is None else c}")


def trpair(dst, addr, off, step):
    k, b = dst
    return [Inst(f"ds_read_b64_tr_b16 {k}[{b}:{b+1}], {addr} offset:{off}"),
            Inst(f"ds_read_b64_tr_b16 {k}[{b+2}:{b+3}], {addr} offset:{off+step}")]


def par13(t):
    return (t >> 1) & 1


def par2(pr, t):
    return (pr >> 1) if t < 3 else (t & 1) ^ 1


def split2(dst, src, t):
    return Seq()(f"""v_cvt_pk_bf16_f32 v{t}, v{src}, v{src}
         v_lshlrev_b32 v{t}, 16, v{t}
         v_sub_f32 v{t}, v{src}, v{t}
         v_cvt_pk_bf16_f32 v{dst}, v{src}, v{t}""")


cHB, cST, cHS, cHR, cCS, cW2, cHL, cOUT, cHS2 = [f"s{i}" for i in range(75, 84)]
cPP, cPQ, cPS, cPL, bTA, bTL, bK2, bQ2, bGP, bRP, bTX, cW2x, sGC, sMC = [f"s{i}" for i in (4, 5, 6, 7, 16, 17, 18, 19, 20, 21, 22, 23, 24, 25)]
W2A, W2B, LB1, LB2, WLA, WLB, WLC, WLD = [f"v{i}" for i in range(6, 14)]
CSL, HHA, HHB, HPA, LB0 = "v14", "v15", "v42", "v43", "v212"


class Gen:
    def __init__(self, opt):
        self.o = opt
        self.p = Seq()
        self.nl = 0
        self.nstamp = 0
        self.stamp_names = []

    def lab(self, s):
        self.nl += 1
        return f"L_{s}_{self.nl}"

    def stamp(self, name):
        if self.o.get('padat') == name:
            self.p("WAITALL lgkm\ns_memrealtime s[100:101]\nWAITALL lgkm")
        clk = "s_memtime" if self.o.get('segc') else "s_memrealtime"
        if self.o.get('seg0') == name:
            self.p(f"WAITALL lgkm\n{clk} s[72:73]\nWAITALL lgkm\ns_mov_b32 s101, s72")
        if self.o.get('seg1') == name:
            self.p(f"WAITALL lgkm\n{clk} s[72:73]\nWAITALL lgkm\ns_sub_u32 s101, s72, s101")
            if self.o.get('lo') is not None:
                self.p(f"s_cmp_lt_u32 s101, {self.o['thr']}\ns_movk_i32 s101, {self.o['hi']}\ns_cselect_b32 s101, {self.o['lo']}, s101")
            else:
                self.p(f"s_lshl_b32 s101, s101, {self.o.get('amp', 4)}")
            self.p("s_add_u32 s100, s100, s101")
        if self.o.get('stamps', 3) == 3:
            return
        fine = str(self.o.get('fine', ''))
        if name[0].islower() and name[0] not in fine:
            return
        if fine and name[0].isupper() and name[0].lower() not in fine and name not in ('C_t6', 'B_sync1', 'C_sync2', 'D_drained', 'A_loop', 'A_v', 'A_q'):
            return
        p = self.p
        if self.o.get('nb'):
            if self.nstamp > 1:
                p(f"v_writelane_b32 v{STV}, s72, {self.nstamp-1}", cond=True)
            p("s_memrealtime s[72:73]" if self.o['stamps'] == 1 else "s_memtime s[72:73]", cond=True)
            if name == 'D_drained':
                p(f"s_waitcnt lgkmcnt(0)\nv_writelane_b32 v{STV}, s72, {self.nstamp}", cond=True)
            self.nstamp += 1
            self.stamp_names.append(name)
            return
        p("WAITALL lgkm")
        p("s_memrealtime s[72:73]" if self.o['stamps'] == 1 else "s_memtime s[72:73]")
        p("WAITALL lgkm")
        p(f"v_writelane_b32 v{STV}, s72, {self.nstamp}")
        self.nstamp += 1
        self.stamp_names.append(name)

    def sub(self, fn):
        save = self.p
        self.p = Seq()
        fn()
        r = list(self.p)
        self.p = save
        return r

    def xf(self, L, key='x'):
        x = self.o.get(key, '')
        out = []
        for i in L:
            if 'v' in x and i.kind in ('vload', 'dma') and not i.cond and 'dwordx4' in i.op:
                continue
            if 'e' in x and i.kind in ('valu', 'trans') and not i.cond and i.op.endswith(('f32', 'f32_e64')):
                continue
            if 'l' in x and i.kind == 'dsr':
                continue
            if 's' in x and i.kind == 'vstore' and 'store' in i.op and not i.cond:
                continue
            if 'b' in x and i.op == 's_barrier':
                continue
            if 'm' in x and i.kind == 'mfma' and i.passes < 8:
                continue
            out.append(i)
        return out

    def ool(self, branch, text):
        p = self.p
        L, R = self.lab("o"), self.lab("r")
        p(f"{branch} {L}")
        n = len(p)
        p(f"{L}:\n{text}\ns_branch {R}", cond=True)
        for i in p[n:]:
            i.ool = L
        p(f"{R}:")

    def spin(self, vt, vaddr, soff, mask, target, srd=WS, mode='wave0', sleep=0, field=None, wave=0):
        p = self.p
        Lp = self.lab("pl")
        addr = f"{vaddr}, {srd}, {soff} offen" if vaddr else f"off, {srd}, {soff}"
        ext = f"v_and_b32 v43, {field}, {vt}\n" if field is not None else ""
        vc = "v43" if field is not None else vt
        loop = f"""s_mov_b32 {sT5}, 0
             s_mov_b64 exec, {mask}
             {Lp}:
             {f's_sleep {sleep}' if sleep else ''}
             buffer_load_dword {vt}, {addr} sc1
             s_add_u32 {sT5}, {sT5}, 1
             s_waitcnt vmcnt(0)
             {ext}v_cmp_gt_u32 vcc, {target}, {vc}
             s_cmp_ge_u32 {sT5}, 0x8000
             s_cselect_b64 vcc, 0, vcc
             s_and_b64 exec, exec, vcc
             s_cbranch_scc1 {Lp}
             s_mov_b64 exec, -1"""
        if self.o.get('stamps') == 3:
            p(f"s_mov_b32 {sT5}, 0")
        if mode == 'check':
            p(f"{ext}v_cmp_gt_u32 vcc, {target}, {vc}\ns_and_b64 vcc, vcc, {mask}")
            self.ool("s_cbranch_scc1", loop)
        elif mode == 'wave0':
            Ld = self.lab("pd")
            p(f"s_cmp_lg_u32 {sW}, {wave}\ns_cbranch_scc1 {Ld}")
            p(loop, cond=True)
            p(f"{Ld}:")
        else:
            p(loop, cond=True)
            p("s_waitcnt vmcnt(0)")
        if self.o.get('stamps') == 3:
            p(f"v_writelane_b32 v{STV}, {sT5}, {self.nstamp}")
            self.nstamp += 1
            self.stamp_names.append(f"spin{self.nstamp}")

    def setup(self):
        p = self.p
        p(f"""s_cmp_ge_u32 s2, 256
             s_cbranch_scc1 L_end
             s_load_dwordx16 s[76:91], s[0:1], 0
             s_load_dwordx4 s[92:95], s[0:1], 64""")
        p("v_and_b32 v1, 63, v0\nv_lshrrev_b32 v4, 6, v0")
        p(f"v_readfirstlane_b32 {sW}, v4")
        p(f"""s_mov_b32 s6, 0x200000
             s_mov_b32 s7, 0x20000
             s_mov_b32 s10, 0x180000
             s_mov_b32 s11, 0x20000
             s_lshr_b32 {sU}, s2, 3
             s_and_b32 {sKC}, s2, 7
             s_and_b32 {sRQ}, {sU}, 3
             s_and_b32 {sG}, s2, 6
             s_lshl_b32 {sG}, {sG}, 1
             s_add_u32 {sG}, {sG}, {sRQ}
             s_lshr_b32 {sT1}, s2, 5
             s_and_b32 {sT2}, s2, 1
             s_lshl_b32 {sTA}, {sG}, 1
             s_add_u32 {sTA}, {sTA}, {sT2}
             s_lshl_b32 {sXL}, {sW}, 14
             s_lshl_b32 {sXB}, {sTA}, 16
             s_add_u32 {sXB}, {sXB}, {sXL}
             s_xor_b32 {sMA}, {sT1}, 4
             s_mul_i32 {sWB}, {sW}, {16*3072}
             s_lshl_b32 {sT0}, {sMA}, 7
             s_add_u32 {sWB}, {sWB}, {sT0}
             s_lshl_b32 {sWL}, {sW}, 11
             s_add_u32 {sC0}, {sT1}, {sKC}""")
        rot = self.o.get('rot', 6)
        if rot == 7:
            p(f"s_lshl_b32 {sT0}, {sU}, 2\ns_add_u32 {sC0}, {sC0}, {sT0}")
        if rot == 8:
            p(f"s_lshl_b32 {sT0}, {sRQ}, 1\ns_add_u32 {sC0}, {sC0}, {sT0}")
        if rot == 0:
            p(f"s_mov_b32 {sC0}, 0")
        if rot == 1:
            p(f"s_mov_b32 {sC0}, {sKC}")
        if rot == 9:
            p(f"s_lshl_b32 {sC0}, {sT1}, 1\ns_add_u32 {sC0}, {sC0}, {sKC}")
        p(f"""v_lshrrev_b32 v4, 3, v1
             v_and_b32 v5, 7, v1
             v_lshrrev_b32 v3, 4, v1
             v_xor_b32 v6, v5, v3
             v_lshlrev_b32 v6, 4, v6
             v_lshl_add_u32 v6, v4, 10, v6
             v_xor_b32 v7, 64, v6
             v_add_u32 v7, 7168, v7
             v_and_b32 v3, 1, v3
             v_lshlrev_b32 v3, 2, v3
             v_xor_b32 v5, v5, v3
             v_lshlrev_b32 v5, 4, v5
             v_mul_u32_u24 v8, 3072, v4
             v_add_u32 v8, v8, v5
             v_add_u32 v9, {8*3072-1024}, v8""")
        p("WAITALL lgkm")
        p("s_mov_b64 s[4:5], s[76:77]\ns_mov_b64 s[8:9], s[78:79]")

    def dmaW(self, t, c):
        base, po = ((KB, 1024), (VB, 2048), (0, 0))[t]
        tag = f"{'AVQ'[t]}{c}"
        S = Seq()
        S(f"s_add_u32 m0, {sWL}, {base + c*8192 - po}")
        S(f"buffer_load_dwordx4 v8, {WQKV}, s{75+c} offen offset:{po} lds", tag=tag)
        return ctx([list(S), [Inst(f"buffer_load_dwordx4 v9, {WQKV}, s{75+c} offen offset:{po+1024} lds", tag=tag)]])

    def dmaA(self, c):
        wc = f"s{75+c}"
        g = self.dmaW(0, c)
        g[0] = list(Seq()(f"""s_add_u32 {sT0}, {sC0}, {c}
             s_and_b32 {sT0}, {sT0}, 7
             s_mul_i32 {wc}, {sT0}, {64*3072}
             s_add_u32 {wc}, {wc}, {sWB}
             s_lshl_b32 {sT0}, {sT0}, 7""")) + g[0]
        nt = " nt" if self.o.get('xnt', 0) else ""
        S = Seq()
        S(f"s_add_u32 m0, {sWL}, {c*8192}\ns_add_u32 {sT0}, {sT0}, {sXB}")
        S(f"buffer_load_dwordx4 v6, {X}, {sT0} offen{nt} lds", tag=f"A{c}")
        g += [list(S), [Inst(f"buffer_load_dwordx4 v7, {X}, {sT0} offen offset:1024{nt} lds", tag=f"A{c}")]]
        return ctx(g)

    def dmaWO(self, q):
        S = Seq()
        S(f"""s_add_u32 {sT0}, {sA}, {q*65536}
             s_add_u32 m0, {sB}, {q*16384}
             s_and_b32 {sT0}, {sT0}, 0x7ffff""")
        g = []
        for k in range(4):
            S(f"buffer_load_dwordx4 v{WOD+k}, {WO}, {sT0} offen offset:{k*1024} lds", tag=f"WO{q>>2}")
            g.append(list(S))
            S = Seq()
        return ctx(g)

    def rload(self):
        nt = " nt" if self.o.get('rnt', 1) else ""
        g = []
        for k, (ad, srd, s0, s1) in enumerate(((RL1, W1, sKVL, sZL), (RL3, W3, sKVL, sZL), (RL2, W2, sPQL, sHST))):
            g.append(list(Seq()(f"s_add_u32 m0, {sSTA}, {k*2048}\nbuffer_load_dwordx4 {ad}, {srd}, {s0} offen{nt} lds")))
            g.append(list(Seq()(f"buffer_load_dwordx4 {ad}, {srd}, {s1} offen offset:1024{nt} lds", tag=f"RL{k}")))
            ctx(g[-2:])
        return g[4:] + g[:4]

    def miscA(self):
        M = Seq()
        a, b, c, d = "v208", "v209", "v210", "v211"
        M(f"""v_lshl_add_u32 {RL2}, v4, 10, v5
             v_mul_u32_u24 v4, 3584, v4
             v_add_u32 {RL1}, v4, v5
             v_xor_b32 {RL3}, 32, {RL1}
             v_mov_b32 v4, 1
             v_lshlrev_b32 {L4}, 2, v1
             s_mov_b32 {sLOG2E}, 0x3fb8aa3b
             s_mov_b32 {sMSKHI}, 0xffff0000
             s_mov_b32 {sEPS6}, 0x358637bd
             s_mov_b32 s62, 0
             s_mov_b32 s63, -1
             s_mov_b32 s64, 0xffff0000
             s_mov_b32 s65, 0xffff0000
             s_mov_b32 s96, 0x22222222
             s_mov_b32 s97, 0x22222222
             s_mov_b32 s98, 0x44444444
             s_mov_b32 s99, 0x44444444
             s_mov_b32 s70, 0x88888888
             s_mov_b32 s71, 0x88888888
             s_and_b32 {sM}, s2, 1
             s_lshl_b32 {sM}, {sM}, 3
             s_lshr_b32 {sT1}, s2, 5
             s_add_u32 {sM}, {sM}, {sT1}
             s_and_b32 {sCB}, {sM}, 3
             s_and_b32 {sT1}, {sW}, 1
             s_lshr_b32 {sT2}, {sW}, 1
             s_lshl_b32 {sMA}, {sMA}, 1
             s_add_u32 {sMA}, {sMA}, {sT2}
             s_lshl_b32 {sTA}, {sTA}, 1
             s_add_u32 {sTA}, {sTA}, {sT1}""")
        M(f"""v_and_b32 {a}, 31, v1
             v_lshrrev_b32 {b}, 5, v1
             v_bfe_u32 {c}, v1, 1, 3
             v_xor_b32 {c}, {b}, {c}
             v_lshlrev_b32 {c}, 4, {c}
             v_lshl_add_u32 {c}, {a}, 7, {c}
             s_lshl_b32 {sT3}, {sT1}, 12
             s_lshl_b32 {sT4}, {sW}, 5
             s_add_u32 {sT3}, {sT3}, {sT4}
             v_xor_b32 v10, {sT3}, {c}
             v_xor_b32 v11, 32, v10
             v_xor_b32 v12, 64, v10
             v_xor_b32 v13, 96, v10
             s_lshl_b32 {sT3}, {sCB}, 1
             s_add_u32 {sT3}, {sT3}, {sT2}
             s_sub_u32 {sT3}, {sT3}, {sC0}
             s_and_b32 {sT3}, {sT3}, 7
             s_lshl_b32 {sT3}, {sT3}, 1
             s_lshr_b32 {sT4}, s2, 7
             s_add_u32 {sT3}, {sT3}, {sT4}
             s_lshl_b32 {sT3}, {sT3}, 6
             s_add_u32 {sT3}, {sT3}, {sT1}
             s_lshl_b32 {sT3}, {sT3}, 6
             v_xor_b32 v14, {sT3}, {c}
             v_xor_b32 v15, 32, v14""")
        M(f"""s_lshl_b32 {sT3}, {sT2}, 8
             s_add_u32 {sT3}, {sT3}, {hex(XCH)}
             v_lshl_add_u32 {XCR}, {a}, 3, {sT3}
             s_lshl_b32 {sT3}, {sT1}, 2
             v_add_u32 {XCW}, {sT3}, {XCR}
             s_lshl_b32 {sT3}, {sW}, 9
             s_add_u32 {sT3}, {sT3}, {hex(XCH+2048)}
             v_lshl_add_u32 {STW}, v1, 3, {sT3}
             v_xor_b32 {STR}, 1024, {STW}
             v_lshlrev_b32 {KVW}, 4, {a}
             v_lshl_add_u32 {KVW}, {b}, 10, {KVW}
             s_add_u32 {sT3}, {sWL}, {hex(KVS)}
             v_add_u32 {KVW}, {sT3}, {KVW}
             s_lshl_b32 {sT3}, {sW}, 7
             s_add_u32 {sT3}, {sT3}, {hex(ZS)}
             v_lshl_add_u32 {ZW}, {a}, 2, {sT3}
             s_lshl_b32 {sT3}, {sT2}, 2
             s_add_u32 {sT3}, {sT3}, {sT1}
             s_lshl_b32 {sT4}, {sT3}, 10
             s_add_u32 {sT4}, {sT4}, {hex(KVS)}
             v_add_u32 {KVR}, {sT4}, {L4}
             s_lshl_b32 {sT4}, {sT3}, 6
             s_add_u32 {sT4}, {sT4}, {hex(ZS)}
             v_and_b32 {d}, 15, v1
             v_lshl_add_u32 {ZR}, {d}, 2, {sT4}
             v_lshrrev_b32 {d}, 4, v1
             v_lshl_add_u32 {ZAT}, {d}, 27, {L4}
             v_lshl_add_u32 {CSAT}, {b}, 27, {L4}
             v_lshrrev_b32 {LM8}, 3, v1
             v_lshlrev_b32 {LM8}, 27, {LM8}
             v_min_u32 {FA1}, 1, v1
             v_lshlrev_b32 {FA1}, 27, {FA1}
             s_lshl_b32 {sT3}, {sMA}, 1
             s_add_u32 {sT3}, {sT3}, {sT1}
             s_lshl_b32 {sKVA}, {sT3}, 10
             s_add_u32 {sKVA}, {sKVA}, {hex(KVM)}
             s_lshl_b32 {sZA}, {sT3}, 6
             s_add_u32 {sZA}, {sZA}, {hex(ZP)}
             s_lshl_b32 {sPQS}, {sTA}, 2
             s_lshr_b32 {sT3}, {sMA}, 2
             s_add_u32 {sPQS}, {sPQS}, {sT3}
             s_lshl_b32 {sPQS}, {sPQS}, 3
             s_and_b32 {sT3}, {sMA}, 3
             s_add_u32 {sPQS}, {sPQS}, {sT3}
             s_lshl_b32 {sPQS}, {sPQS}, 11
             s_add_u32 {sPQS}, {sPQS}, {hex(PQ)}
             s_lshl_b32 {sHS}, {sG}, 2
             s_add_u32 {sHS}, {sHS}, {sW}
             s_lshl_b32 {sHS}, {sHS}, 4
             s_add_u32 {sHS}, {sHS}, {sM}
             s_lshl_b32 {sHS}, {sHS}, 14
             s_add_u32 {sHS}, {sHS}, {hex(HH+4096)}""")
        M(f"""v_bfe_u32 {c}, v1, 2, 2
             v_lshlrev_b32 {a}, 10, {b}
             v_lshl_add_u32 {a}, {c}, 7, {a}
             v_bfe_u32 {c}, v1, 4, 1
             v_bfe_u32 {d}, v1, 3, 1
             v_lshl_add_u32 {d}, {d}, 1, {c}
             v_lshl_add_u32 {a}, {d}, 5, {a}
             v_and_b32 {d}, 1, v1
             v_lshl_add_u32 {RT2A}, {d}, 4, {a}
             v_bfe_u32 {d}, v1, 1, 1
             v_lshl_add_u32 {RT2A}, {d}, 3, {RT2A}
             v_and_b32 {d}, 3, v1
             v_lshl_add_u32 {a}, {d}, 3, {a}
             s_lshl_b32 {sT3}, {sT2}, 6
             s_add_u32 {sT3}, {sT3}, {sWL}
             s_add_u32 {sT4}, {sT3}, {hex(KB)}
             v_xor_b32 v{TRK}, {sT4}, {a}
             s_add_u32 {sT4}, {sT3}, {hex(VB)}
             v_xor_b32 v{TRP}, {sT4}, {RT2A}""")
        for j in range(1, 4):
            M(f"v_xor_b32 v{TRK+j}, {j*2048}, v{TRK}\nv_xor_b32 v{TRP+j}, {j*2048}, v{TRP}")
        M(f"""s_lshl_b32 {sT3}, {sW}, 5
             s_add_u32 {sT3}, {sT3}, {hex(RST)}
             v_xor_b32 {RT13}, {sT3}, {a if self.o.get('c16', 1) else RT2A}
             v_lshl_add_u32 {RT13}, {c}, 11, {RT13}
             s_mul_i32 {sSTA}, {sW}, 6144
             s_add_u32 {sSTA}, {sSTA}, {hex(RST)}
             v_add_u32 {RT2A}, {sSTA}, {a if self.o.get('d16', 1) else RT2A}
             v_xor_b32 {RT2B}, 64, {RT2A}""")
        M(f"""v_lshrrev_b32 {a}, 2, v1
             v_xor_b32 {a}, {a}, {c}
             v_and_b32 {a}, 1, {a}
             v_or_b32 {a}, {a}, {d}
             v_cmp_eq_u32 vcc, 0, {a}
             v_mov_b32 v20, 0x3f803f80
             v_mov_b32 v21, 0x3f803f80
             v_mov_b32 v22, 0x3f803f80
             v_mov_b32 v23, 0x3f803f80
             v_cndmask_b32 v16, 0, v20, vcc
             v_cndmask_b32 v17, 0, v20, vcc
             v_cndmask_b32 v18, 0, v20, vcc
             v_cndmask_b32 v19, 0, v20, vcc""")
        for r in (162, 163, 166, 167, 170, 171, 174, 175, 177, 178, 179):
            M(f"v_mov_b32 v{r}, 0")
        M(f"""v_lshrrev_b32 {a}, 4, v1
             v_bfe_u32 {c}, v1, 2, 2
             v_xor_b32 {c}, {c}, {a}
             v_lshlrev_b32 {c}, 6, {c}
             v_lshl_add_u32 {c}, {a}, 10, {c}
             v_lshl_add_u32 v{WOD}, {d}, 4, {c}
             v_add_u32 v{WOD+1}, 3072, v{WOD}
             v_add_u32 v{WOD+2}, 6144, v{WOD}
             v_add_u32 v{WOD+3}, 9216, v{WOD}
             s_lshl_b32 {sA}, {sRQ}, 17
             s_add_u32 {sA}, {sA}, {sXL}
             s_lshl_b32 {sT3}, {sCB}, 8
             s_add_u32 {sA}, {sA}, {sT3}""")
        M(f"""s_lshl_b32 {sT3}, {sKC}, 2
             s_add_u32 {sT3}, {sT3}, {sW}
             s_mul_i32 {sKVL}, {sT3}, {16*3584}
             s_lshl_b32 {sT3}, {sU}, 7
             s_add_u32 {sKVL}, {sKVL}, {sT3}
             s_lshl_b32 {sT2}, {sU}, 2
             s_add_u32 {sT2}, {sT2}, {sW}
             s_lshl_b32 {sPQL}, {sT2}, 14
             s_lshl_b32 {sT3}, {sKC}, 7
             s_add_u32 {sPQL}, {sPQL}, {sT3}
             s_add_u32 {sHST}, {sPQL}, 7168
             s_lshl_b32 {sRC}, {sT2}, 7
             s_add_u32 {sRC}, {sRC}, {hex(CS)}
             s_mul_i32 {sT3}, {sT2}, 9363
             s_lshr_b32 {sT3}, {sT3}, 16
             s_add_u32 {sT2}, {sT2}, {sT3}
             s_and_b32 {sT3}, {sKC}, 6
             s_add_u32 {sT3}, {sT3}, {sKC}
             s_lshl_b32 {sRW}, {sT2}, 4
             s_add_u32 {sRW}, {sRW}, {sT3}
             s_lshl_b32 {sRW}, {sRW}, 12
             s_add_u32 {sRW}, {sRW}, {hex(W13R)}
             s_andn2_b32 {sT3}, {sT2}, 3
             s_add_u32 {sT3}, {sT3}, {sT2}
             s_lshl_b32 {sR2}, {sKC}, 8
             s_add_u32 {sR2}, {sR2}, {sT3}
             s_lshl_b32 {sR2}, {sR2}, 11
             s_add_u32 {sR2}, {sR2}, {hex(W2R)}""")
        dup = self.o.get('dup', 2)
        if self.o.get('grp', 1):
            m13 = sum((par13(t) ^ m) << (8 * m + t) for m in range(2) for t in range(8))
            m2 = sum(par2(pr, t) << (8 * pr + t) for pr in range(4) for t in range(8))
            M(f"""s_and_b32 {sT3}, {sT2}, 15
                 s_lshr_b32 {sT3}, {hex(m13)}, {sT3}
                 s_lshr_b32 {sT4}, {hex(m2)}, {sT2}
                 s_xor_b32 {sT4}, {sT4}, {sKC}""")
        else:
            M(f"s_lshr_b32 {sT3}, {sKC}, 1\ns_lshr_b32 {sT4}, {sT2}, 5")
        M(f"""s_and_b32 {sT3}, {sT3}, {0 if dup & 1 else 1}
             s_lshl_b32 {sT3}, {sT3}, 13
             s_add_u32 {sRW}, {sRW}, {sT3}
             s_and_b32 {sT4}, {sT4}, {0 if dup & 2 else 1}
             s_lshl_b32 {sT4}, {sT4}, 13
             s_add_u32 {sR2}, {sR2}, {sT4}
             s_cmp_ge_u32 s2, 224
             s_cselect_b32 {sRW}, {hex(OOB)}, {sRW}
             s_cselect_b32 {sR2}, {hex(OOB)}, {sR2}
             s_cselect_b32 {sRC}, {hex(OOB)}, {sRC}
             s_cselect_b32 {sKVL}, {hex(OOB)}, {sKVL}
             s_add_u32 {sZL}, {sKVL}, {8*3584-1024}
             s_and_b32 {sSIG}, {sU}, 15
             s_lshl_b32 {sSIG}, {sSIG}, 8
             s_add_u32 {sSIG}, {sSIG}, {hex(CNT)}
             s_cmp_eq_u32 {sW}, 0
             s_cselect_b32 {sSIG}, {sSIG}, {hex(OOB)}""")
        return M

    def miscB(self):
        M = Seq()
        a, b, c, d = "v208", "v209", "v210", "v211"
        M(f"""s_lshr_b32 {sTB}, {sM}, 2
             s_lshl_b32 {sT3}, {sG}, 2
             s_add_u32 {sTB}, {sTB}, {sT3}
             s_lshl_b32 {sT4}, {sRQ}, 1
             s_add_u32 {sT4}, {sT4}, {sW}
             s_and_b32 {sT4}, {sT4}, 7
             s_lshl_b32 {sKVL}, {sT4}, 12
             s_add_u32 {sKVL}, {sKVL}, {hex(KVM)}
             s_xor_b32 {bK2}, {sKVL}, 0x4000
             s_lshl_b32 {sT2}, {sTB}, 16
             s_and_b32 {sPQL}, {sT4}, 6
             s_add_u32 {sPQL}, {sPQL}, {sT4}
             s_lshl_b32 {sPQL}, {sPQL}, 12
             s_add_u32 {sPQL}, {sPQL}, {sT2}
             s_add_u32 {sPQL}, {sPQL}, {hex(PQ)}
             s_xor_b32 {sPQL}, {sPQL}, {sP1}
             s_xor_b32 {bQ2}, {sPQL}, 0x8000
             s_lshl_b32 {sT4}, {sT4}, 8
             s_mov_b32 {sZL}, {hex(ZP)}
             s_lshl_b32 {sHST}, {sCB}, 14
             s_add_u32 {sHST}, {sHST}, {sT2}
             s_add_u32 {sHST}, {sHST}, {sWL}
             s_add_u32 {sHST}, {sHST}, {hex(HB)}
             s_xor_b32 {sHST}, {sHST}, {sPE}
             s_lshl_b32 {sSTA}, {sTB}, 4
             s_add_u32 {sSTA}, {sSTA}, {sCB}
             s_lshl_b32 {sSTA}, {sSTA}, 14
             s_add_u32 {sSTA}, {sSTA}, {hex(HH+7168+768)}
             s_xor_b32 {sSTA}, {sSTA}, {sP2}
             s_lshl_b32 {sD}, {sTB}, 2
             s_add_u32 {sD}, {sD}, {sCB}
             s_lshl_b32 {sD}, {sD}, 16
             s_add_u32 {sD}, {sD}, {sXL}
             s_add_u32 {sD}, {sD}, {hex(HH+7168)}
             s_xor_b32 {sD}, {sD}, {sP2}
             v_lshrrev_b32 {b}, 5, v1
             v_and_b32 {a}, 31, v1
             v_lshlrev_b32 {ROWA}, 10, {a}
             v_lshl_add_u32 {ROWA}, {b}, 4, {ROWA}
             v_lshlrev_b32 v41, 3, {a}
             v_lshl_add_u32 v41, {b}, 10, v41
             v_xor_b32 v41, {sT4}, v41
             v_bfe_u32 {c}, v1, 2, 2
             v_and_b32 {a}, 1, v1
             v_lshlrev_b32 {a}, 4, {a}
             v_bfe_u32 {d}, v1, 1, 1
             v_lshl_add_u32 {a}, {d}, 3, {a}
             v_lshl_add_u32 {d}, {b}, 11, {a}
             v_lshl_add_u32 {d}, {c}, 8, {d}
             v_xor_b32 {c}, {sW}, {c}
             v_lshl_add_u32 {d}, {c}, 6, {d}
             v_bfe_u32 {c}, v1, 4, 1
             v_lshl_add_u32 {d}, {c}, 5, {d}""")
        for q in range(4):
            M(f"""s_xor_b32 {sT2}, {sW}, {q}
                 s_lshl_b32 {sT3}, {sT2}, 14
                 v_add_u32 v{WOT+q}, {sT3}, {d}
                 s_lshl_b32 {sT2}, {sT2}, 12
                 s_add_u32 {sT2}, {sT2}, 0x20000
                 v_add_u32 v{OAD+q}, {sT2}, {L16}""")
        M(f"""s_lshl_b32 {sT2}, {sW}, 12
             s_add_u32 {sT2}, {sT2}, {0x20000+16384+3072}
             v_add_u32 {ZBW}, {sT2}, {L4}
             v_xor_b32 {d}, 1, {c}
             v_lshlrev_b32 {d}, 5, {d}
             v_lshl_add_u32 {d}, {b}, 4, {d}
             v_add_u32 {ZBR}, {sT2}, {d}
             v_lshrrev_b32 {d}, 4, v1
             v_lshlrev_b32 {P256}, 8, v1
             v_lshl_add_u32 {P256}, {d}, 27, {P256}
             s_lshl_b32 {bTL}, {sW}, 13
             s_lshr_b32 {sT2}, {sTBL}, {sKC}
             s_and_b32 {sT2}, {sT2}, 0x2000
             s_lshl_b32 {bGP}, {sKC}, 14
             s_add_u32 {bGP}, {bGP}, {sT2}
             s_add_u32 {bGP}, {bGP}, {hex(CNT)}
             s_add_u32 {bRP}, {bGP}, 4096""")
        for k in range(8):
            M(f"v_lshlrev_b32 v{192+2*k}, 16, v{24+k}\nv_and_b32 v{193+2*k}, {sMSKHI}, v{24+k}")
        return M

    def phaseA(self):
        p = self.p
        o = self.o
        pre = o.get('pre', 0)
        if pre:
            nt = " nt" if o.get('xnt', 0) else ""
            p(f"""s_lshl_b32 {sT3}, {sMA}, 2
                 s_add_u32 {sT3}, {sT3}, {sW}
                 s_lshl_b32 {sT3}, {sT3}, 11
                 s_lshl_b32 {sT4}, {sTA}, 16
                 s_add_u32 {sT3}, {sT3}, {sT4}
                 s_lshl_b32 {sT4}, s2, 2
                 s_add_u32 {sT4}, {sT4}, {sW}
                 s_mul_i32 {sT4}, {sT4}, 1536
                 v_lshrrev_b32 v196, 2, v1
                 v_lshlrev_b32 v196, 7, v196
                 v_min_u32 v197, 1408, v196""")
            if pre & 1:
                p(f"buffer_load_dword v194, v196, {X}, {sT3} offen{nt}")
            if pre & 2:
                p(f"buffer_load_dword v195, v197, {WQKV}, {sT4} offen")
        p.extend(flat(self.dmaA(0)))
        p(f"v_lshlrev_b32 {L16}, 4, v1")
        if o.get('codepf', 1):
            p(f"""s_getpc_b64 s[70:71]
                 s_lshl_b32 {sT3}, {sU}, 2
                 s_add_u32 {sT3}, {sT3}, {sW}
                 s_lshl_b32 {sT4}, {sT3}, 8
                 v_lshrrev_b32 v200, 5, v1
                 v_lshl_add_u32 v200, v200, 7, {sT4}
                 v_min_u32 v200, CODE_PF_MAX, v200
                 global_load_dword v201, v200, s[70:71]""")
        tch = Seq()
        touch = o.get('touch', 7)
        tch(f"""s_lshl_b32 {sCc}, s2, 2
             s_add_u32 {sCc}, {sCc}, {sW}
             s_lshr_b32 {sT4}, {sCc}, 1
             s_mul_i32 {sT4}, {sT4}, 3072
             s_and_b32 {sT5}, {sCc}, 1
             s_lshl_b32 {sT5}, {sT5}, 11
             s_add_u32 {sT4}, {sT4}, {sT5}
             s_lshl_b32 {sCc}, {sCc}, 9
             v_lshrrev_b32 v202, 3, v1
             v_lshlrev_b32 v202, 7, v202
             v_lshrrev_b32 v42, 4, v1
             v_lshlrev_b32 v42, 7, v42""")
        if touch & 4:
            tch(f"""s_lshl_b32 {sT3}, {sU}, 2
                 s_add_u32 {sT3}, {sT3}, {sW}
                 s_mul_i32 {sT3}, {sT3}, {4*3072}
                 v_min_u32 v200, 11, v1
                 v_lshlrev_b32 v200, 10, v200
                 buffer_load_dword v198, v200, {WQKV}, {sT3} offen offset:384""")
        if touch & 1:
            tch(f"buffer_load_dword v203, v202, {WQKV}, {sT4} offen")
        tat = o.get('tat', -1)
        if tat == -2:
            p.extend(tch)
        d1 = self.dmaA(1)
        n1 = o.get('d1', 4)
        p.extend(flat(d1[:n1]))
        if tat == -1:
            p.extend(tch)
        for srd, src, sz in ((12, 80, 0x80000), (16, 84, 0x1C0000), (20, 86, 0x1C0000), (24, 88, 0x1C0000),
                             (28, 90, 0x200000), (36, 92, 256), (32, 94, WS_SIZE)):
            p(f"s_mov_b64 s[{srd}:{srd+1}], s[{src}:{src+1}]\ns_mov_b32 s{srd+2}, {hex(sz)}\ns_mov_b32 s{srd+3}, 0x20000")
        tlb = o.get('tlb', 0)
        if tlb:
            p(f"""v_min_u32 v194, 1, v1
                 v_lshlrev_b32 v194, 27, v194
                 s_lshl_b32 {sT3}, {sW}, 5
                 s_add_u32 {sT3}, {sT3}, {sU}
                 s_lshl_b32 {sT4}, {sT3}, 21
                 buffer_load_dword v195, v194, {WS}, {sT4} offen""")
            if tlb & 2:
                for k, srd in enumerate((OUT, W1, W3, W2, WO, DBG)):
                    p(f"""s_cmp_eq_u32 {sT3}, {24+k}
                         s_cselect_b32 {sT4}, 0, {hex(OOB)}
                         buffer_load_dword v{188+k}, v194, {srd}, {sT4} offen""")
        if o.get('wsoff'):
            p(f"s_add_u32 s32, s32, {o['wsoff'] << 20}\ns_addc_u32 s33, s33, 0")
        Lz = self.lab("z")
        p(f"""s_lshl_b32 {sB}, {sW}, 8
             s_add_u32 {sB}, {sB}, 224
             s_cmp_lt_u32 s2, {sB}
             s_cbranch_scc1 {Lz}""")
        padr = f"""s_sub_u32 {sT2}, s2, 224
             s_and_b32 {sT1}, {sU}, 1
             s_lshl_b32 {sT3}, {sT1}, 5
             s_add_u32 {sT3}, {sT3}, {sT2}
             s_lshl_b32 {sT3}, {sT3}, 8
             s_add_u32 {sT3}, {sT3}, {hex(PROBE)}
             s_xor_b32 {sT4}, {sT3}, 0x2000
             s_waitcnt lgkmcnt(0)
             s_buffer_load_dword {sT5}, {WS}, {sT3} glc
             s_buffer_load_dword {sT5}, {WS}, {sT4} glc"""
        p(f"""{padr.replace(sT5, sD)}
             v_mov_b32 v16, 0
             v_mov_b32 v17, 0
             v_mov_b32 v18, 0
             v_mov_b32 v19, 0
             v_lshrrev_b32 v20, 3, v1
             v_lshl_add_u32 v20, v20, 7, {L16}
             s_lshl_b32 {sT4}, {sT2}, 11
             s_lshl_b32 {sT3}, {sT2}, 12
             s_add_u32 {sT3}, {sT3}, {hex(CNT)}
             s_add_u32 {sT4}, {sT4}, {hex(KVM)}
             buffer_store_dwordx4 v[16:19], {L16}, {WS}, {sT4} offen sc1
             buffer_store_dwordx4 v[16:19], {L16}, {WS}, {sT4} offen offset:1024 sc1
             buffer_store_dwordx4 v[16:19], v20, {WS}, {sT3} offen sc1
             buffer_store_dwordx4 v[16:19], v20, {WS}, {sT3} offen offset:2048 sc1""", cond=True)
        p(f"{Lz}:")
        probe = f"""{padr}
             s_getreg_b32 {sT4}, hwreg(HW_REG_XCC_ID, 2, 1)
             s_waitcnt lgkmcnt(1)
             s_nop {o.get('pnop', 15)}
             s_getreg_b32 {sT2}, hwreg(HW_REG_IB_STS, 8, 4)
             s_waitcnt lgkmcnt(0)
             s_min_u32 {sT2}, {sT2}, 1
             s_xor_b32 {sT1}, {sT1}, {sT4}
             s_cmp_lg_u32 {sT1}, {sT2}
             s_cselect_b32 {sT2}, 64, 4096
             s_add_u32 {sT2}, {sT2}, 1
             s_add_u32 {sT5}, {sKC}, 18
             s_lshl_b32 {sT4}, {sT4}, {sT5}
             s_cmp_eq_u32 {sU}, 28
             s_cselect_b32 {sT4}, {sT4}, 0
             s_add_u32 {sT2}, {sT2}, {sT4}
             v_mov_b32 v46, {sT2}"""
        p.extend(self.miscA())
        if o.get('pat', 0) == 0:
            Lz = self.lab("z")
            p(f"s_cmp_lt_u32 s2, {sB}\ns_cbranch_scc1 {Lz}")
            p(probe, cond=True)
            p(f"{Lz}:")
            probe = ""
        if tat == 0:
            p.extend(tch)
        SEL, ONES = v(16, 4), v(20, 4)
        XS, XQ0, XQ1, CSA, ZA = 252, 248, 32, 36, 44
        AK, AV, AQ, RB, AKV = 48, 64, 80, 96, 112
        WR = 128
        XM, WP, RS_ = 160, 164, 176

        def wread(t, s, dst=None):
            n = t * 32 + s
            addr = (TRK, TRP, TRK)[t]
            return trpair(('v', WR + 4 * (n % 6) if dst is None else dst), f"v{addr+(s&3)}", (s >> 2) * 8192, 512)

        def wf(t, s):
            return v(WR + 4 * ((t * 32 + s) % 6), 4)

        def csm(f, first):
            return mf16(CSA, SEL, f, "0" if first else None)

        def cswrite(t):
            S = split2(41, CSA, 41)
            S(f"ds_write_b32 {XCW}, v41 offset:{t*512}", tag=f"x{t}")
            return list(S)

        def csget(t):
            return [Inst(f"ds_read_b64 {v(WP+4*t,2)}, {XCR} offset:{t*512}")]

        def xread(s):
            return [Inst(f"ds_read_b128 {a_(4*s,4)}, v{10+(s&3)} offset:{(s>>2)*8192}")]

        p.extend(flat(d1[n1:]))
        d2 = self.dmaA(2)
        n2_ = o.get('d2', 4)
        p.extend(flat(d2[:n2_]))
        self.stamp("A_issued")
        p("WAITTAG A0\ns_barrier")
        self.stamp("A_c0")
        p.extend(xread(0) + wread(0, 0) + xread(1) + wread(0, 1))
        p.extend(flat(d2[n2_:]))
        ad = o.get('ad', 4)
        nv1 = o.get('nv1', 14)
        vq = flat([self.dmaW(1, k) for k in range(8)])
        pend = self.dmaA(3) if ad == 4 else []
        for s in range(32):
            c, j = s >> 2, s & 3
            xf = a_(4 * s, 4)
            z = "0" if s == 0 else None
            p.append(mf32(AK, xf, wf(0, s), z))
            if j == 2 and c < 7:
                p(f"WAITTAG A{c+1}\ns_barrier")
                self.stamp(f"a{c+1}")
                assert not pend
                if c == 1:
                    p(f"s_cmp_ge_u32 s2, {sB}")
                    self.ool("s_cbranch_scc1", f"{probe}\nbuffer_atomic_add v46, {FA1}, {DBG}, 0 offen sc1")
                if c + 1 == tat:
                    p.extend(tch)
                if c + ad < 8:
                    pend = self.dmaA(c + ad)
                else:
                    pend, vq = vq[:4], vq[4:]
            if s == 30:
                p("WAITTAG V1\ns_barrier")
                k = max(0, nv1 - (16 - len(vq)))
                assert k <= 2
                pend, vq = vq[:k], vq[k:]
            if s + 2 < 32:
                p.extend(xread(s + 2) + wread(0, s + 2))
            else:
                p.extend(wread(1, s + 2 - 32))
            if s == 28:
                p("ds_read_b128 v[24:27], v14\nds_read_b128 v[28:31], v15", tag="xres")
            for _ in range(2 if s < 2 else 1):
                if pend:
                    p.extend(pend.pop(0))
            if j % 2 == 0:
                p.append(csm(wf(0, s), s == 0))
            if j < 2:
                p.append(mf16(XS, SEL, xf, z))
                p.append(mf4(XQ0, a_(4 * s, 2), a_(4 * s, 2), z))
                p.append(mf4(XQ1, a_(4 * s + 2, 2), a_(4 * s + 2, 2), z))
            if s == 30:
                for k in range(4):
                    p(f"v_add_f32 v{XQ0+k}, v{XQ0+k}, v{XQ1+k}")
                p(f"""v_cndmask_b32 v197, v{XQ0}, v{XQ0+1}, s[96:97]
                     v_cndmask_b32 v197, v197, v{XQ0+2}, s[98:99]
                     v_cndmask_b32 v197, v197, v{XQ0+3}, s[70:71]
                     v_mov_b32 v196, v197""")
            if s == 31:
                p(f"""v_permlane32_swap_b32 v196, v197
                     v_add_f32 v{XS+1}, v196, v197
                     ds_write_b64 {STW}, {v(XS,2)}""")
                p.extend(cswrite(0))
        assert not pend
        self.stamp("A_loop")
        CT = (204, 208, ZA)
        kb = o.get('kb', 9)

        def tilepass(t, acc, order):
            nm = "VQ"[t - 1]
            G = []
            for s in range(32):
                A_, B_ = (a_(4 * s, 4), wf(t, s)) if order == 0 else (wf(t, s), a_(4 * s, 4))
                g = Seq()
                g.append(mf32(acc, A_, B_, "0" if s == 0 else None))
                if t == 1 and s == 2:
                    g("WAITTAG x0 xres" + (" V3" if ad == 4 else "") + "\ns_barrier")
                    g(f"ds_read_b64 v[198:199], {STR}")
                    g.extend(csget(0))
                if t == 2 and o.get('fb', 0) & 2:
                    if s == 4:
                        g("WAITTAG Q3\ns_barrier")
                    if s == kb:
                        assert kb <= 12
                        g("WAITTAG kvp Q7\ns_barrier")
                elif t == 1 and o.get('fb', 0) & 1:
                    if s == 12:
                        g("WAITTAG V7\ns_barrier")
                elif s % 8 == 4 and s < 28 and ((t, s) != (1, 4) or ad != 4):
                    g(f"WAITTAG {nm}{(s+4)//4+1} kvp\ns_barrier")
                elif t == 2 and s == kb:
                    g("WAITTAG kvp\ns_barrier")
                if s == 28:
                    g(f"WAITTAG x{t}" + (" Q1" if t == 1 else "") + "\ns_barrier")
                    g.extend(csget(t))
                if t == 1 and s < 2:
                    g.extend(wread(t, 2 + 2 * s) + wread(t, 3 + 2 * s))
                elif s + 4 < 32:
                    g.extend(wread(t, s + 4))
                elif t == 1:
                    g.extend(wread(2, s + 4 - 32))
                if s in (20, 21, 22):
                    g.extend(wread(t, 26 + 2 * (s - 20), CT[s - 20]))
                if s % 2 == 0 and s < 26 and (t, s) != (1, 0):
                    g.append(csm(wf(t, s), (t, s) == (2, 0)))
                if (t, s) == (1, 1):
                    g.append(csm(wf(t, 0), True))
                if s in (23, 24, 25):
                    g.append(csm(v(CT[s - 23], 4), False))
                if s == 26:
                    g.extend(cswrite(t))
                G.append(list(g))
            return G

        def phi(acc, scale, T, dst):
            S = Seq()
            for h in range(2):
                r = range(8 * h, 8 * h + 8)
                for i in r:
                    S(f"v_fma_f32 v{acc+i}, v{acc+i}, {scale(i)}, {sEPS6}")
                for i in r:
                    S(f"v_mul_f32 v{T+(i&7)}, {sLOG2E}, v{acc+i}")
                for i in r:
                    S(f"v_exp_f32_e64 v{T+(i&7)}, v{T+(i&7)} clamp")
                    S(f"v_max_f32 v{acc+i}, {sEPS6}, v{acc+i}")
                for i in r:
                    S(f"v_add_f32 v{acc+i}, v{acc+i}, v{T+(i&7)}")
                for i in range(4 * h, 4 * h + 4):
                    S(f"v_cvt_pk_bf16_f32 v{dst+i}, v{acc+2*i}, v{acc+2*i+1}")
            return S
        E = Seq()
        E(f"""v_add_f32 v198, v198, v{XS}
             v_add_f32 v197, v199, v{XS+1}
             v_mul_f32 v199, 0x3b000000, v198
             v_mul_f32 v197, 0x3b000000, v197
             v_cvt_pk_bf16_f32 v198, -v199, -v199
             v_fma_f32 v197, -v199, v199, v197
             v_cndmask_b32 v{XM}, v198, 0, {sHILANES}
             v_cndmask_b32 v{XM+1}, v198, 0, {sHILANES}
             v_max_f32 v197, 0, v197
             v_add_f32 v197, 0x3727c5ac, v197
             v_rsq_f32 v40, v197""")
        E.append(mf32(AK, v(XM, 4), v(WP, 4)))
        E.extend(split2(RS_, 40, 198))
        E(f"v_cndmask_b32 v{RS_}, v{RS_}, 0, {sHILANES}")
        E.append(mf32(RB, v(RS_, 4), ONES, "0"))
        PK = phi(AK, lambda i: f"v{RB+i}", 196, 180)
        G = tilepass(1, AV, 0)
        v2e = o.get('v2e', 2)
        qq = flat([self.dmaW(2, k) for k in range(8)])
        nq2 = o.get('nq2', 16)
        G = weave(G, vq, 0, v2e)
        G = weave(G, qq[:nq2], max(3, v2e), o.get('q2end', 30))
        G[0] += [Inst(f"v_subrev_u32 v{TRK+j}, {hex(VB)}, v{TRP+j}") for j in range(4)]
        G[12] += [Inst(f"buffer_load_dword v5, {FA1}, {DBG}, 0 offen sc1")]
        n2 = o.get('pk2', 88)
        G = weave(G, list(E), 4, 8)
        G = weave(G, PK[:n2], 10, 32)
        for k in range(3, 31, 4):
            G[k] += self.sub(lambda: self.stamp(f"v{k}"))
        p.extend(flat(G))
        p.append(mf32(AV, v(XM, 4), v(WP + 4, 4)))
        self.stamp("A_v")
        if o.get('skew') is not None:
            p(f"""s_not_b32 s101, s100
                 v_mov_b32 v43, s101
                 buffer_atomic_umax v43, {FA1}, {DBG}, 0 offen offset:128 sc1
                 v_mov_b32 v41, s100
                 buffer_atomic_umax v41, {FA1}, {DBG}, 0 offen offset:192 sc1""")
        E = Seq()
        E.extend(PK[n2:])
        for i in range(16):
            E(f"v_mul_f32 v{AV+i}, v{AV+i}, v{RB+i}")
        for i in range(8):
            E(f"v_cvt_pk_bf16_f32 v{188+i}, v{AV+2*i}, v{AV+2*i+1}")
        G = tilepass(2, AQ, 1)
        rq = self.rload()
        if o.get('nor'):
            rq = []
        if touch & 2:
            rq = rq[:2] + [[Inst(f"buffer_load_dword v42, v42, {WO}, {sCc} offen")]] + rq[2:]
        e2 = o.get('e2', 0)
        R2T = trpair(('a', 144), RT2A, 4096, 512) + trpair(('a', 148), RT2B, 4096, 512)
        R2S = [Inst(f"buffer_store_dwordx4 a[144:147], {L16}, {WS}, {sR2} offen sc1", tag="pub1" if e2 else "pubR"),
               Inst(f"buffer_store_dwordx4 a[148:151], {L16}, {WS}, {sR2} offen offset:1024 sc1", tag="pub1" if e2 else "pubR")]
        dup = o.get('dup', 2)
        if dup & 2:
            assert not e2
            R2S += [Inst(x.text.replace(L16, L16H), tag=x.tag) for x in R2S]
        if e2:
            G[e2] += [Inst("WAITTAG RL2")] + R2T
            G[e2 + 3] += R2S[:1]
            G[e2 + 5] += R2S[1:]
            R2T, R2S = [], []
        r0 = o.get('r0', 0)
        if nq2 < 16:
            G = weave(G, qq[nq2:], 0, r0)
        G = weave(G, rq, r0, o.get('r1', r0 + 7))
        if o.get('rwait'):
            G[o.get('r1', 7)] += list(Seq()("WAITALL vm")) + self.sub(lambda: self.stamp("A_rland"))
        woq = flat([self.dmaWO(q) for q in range(8)])
        nw3 = o.get('wo3', 0)
        G[13] += [Inst(f"s_lshl_b32 {sB}, {sW}, 12")]
        if nw3:
            G = weave(G, woq[:nw3], o.get('wo30', 26), 32)
        G = weave(G, list(E), 0, kb - 5)
        G[kb - 5] += [mf32(AKV, v(180, 4), v(188, 4), "0"), mf32(AKV, v(184, 4), v(192, 4)),
                 mf16(ZA, SEL, v(180, 4), "0"), mf16(ZA, SEL, v(184, 4))]
        G[kb - 4] += self.sub(lambda: self.spin("v5", None, "0", "1", "32", srd=DBG, mode='check', sleep=4, field=63))
        S = Seq()
        S(f"""v_readfirstlane_b32 {sT2}, v5
             s_bfe_u32 {sT3}, {sT2}, 0x60006
             s_bfe_u32 {sT4}, {sT2}, 0x6000c
             s_lshr_b32 {sT2}, {sT2}, 5""")
        S = [[i] for i in S] + [list(Seq()(f"""s_cmp_gt_u32 {sT4}, {sT3}
             s_cselect_b32 {sT3}, {'0, -1' if o.get('parx') else '-1, 0'}"""))]
        S += [[i] for i in Seq()(f"""s_xor_b32 {sTBL}, {sT2}, {sT3}
             s_lshr_b32 {sT2}, {sTBL}, {sKC}
             s_lshl_b32 {sT3}, {sG}, 10
             s_xor_b32 {sP1}, {sT2}, {sT3}
             s_and_b32 {sP1}, {sP1}, 0x2000
             s_xor_b32 {sPQS}, {sPQS}, {sP1}
             s_lshr_b32 {sPE}, {sTBL}, 3
             s_and_b32 {sPE}, {sPE}, 0x2000
             s_lshl_b32 {sT4}, {sG}, 12
             s_xor_b32 {sP2}, {sT3}, {sT4}
             s_and_b32 {sP2}, {sP2}, 0x2000
             s_xor_b32 {sP2}, {sP2}, {sPE}
             s_xor_b32 {sHS}, {sHS}, {sP2}
             v_mov_b32 v176, 0
             v_lshrrev_b32_e64 {P4K}, v1, {sTBL}
             v_and_b32 {P4K}, 0x2000, {P4K}
             v_lshl_add_u32 {P4K}, v1, 14, {P4K}
             v_or_b32 {P4K}, {P4K}, {LM8}""")]
        S += [[Inst(f"buffer_store_dwordx4 v[176:179], {L16}, {WS}, {sHS} offen offset:3072 sc1", tag="pub1")]]
        G = weave(G, S, 19, 31)
        S = Seq()
        for i in range(8):
            S(f"v_cndmask_b32 v{196+i}, v{AKV+i}, v{AKV+8+i}, {sB4LANES}")
        S(f"""ds_write_b128 {KVW}, v[196:199]
             ds_write_b128 {KVW}, v[200:203] offset:512""")
        S(f"ds_write_b32 {ZW}, v{ZA}", tag="kvp")
        G = weave(G, list(S), kb - 3, kb - 1)
        S = Seq()
        for k in range(4):
            S(f"ds_read2st64_b32 v[{112+2*k}:{113+2*k}], {KVR} offset0:{k} offset1:{k+8}")
        S(f"ds_read2_b32 v[120:121], {ZR} offset0:0 offset1:32")
        G = weave(G, list(S), kb, kb + 2)
        S = Seq()
        for k in range(5):
            S(f"v_add_f32 v{112+2*k}, v{112+2*k}, v{113+2*k}")
        for k in range(4):
            S(f"buffer_atomic_add_f32 v{112+2*k}, {L4}, {WS}, {sKVA} offen offset:{k*256}", tag="pub1")
        S(f"buffer_atomic_add_f32 v120, {ZAT}, {WS}, {sZA} offen", tag="pub1")
        G = weave(G, list(S), kb + 3, kb + 8)
        for k in range(3, 31, 4):
            G[k] += self.sub(lambda: self.stamp(f"v{k}"))
        p.extend(flat(G))
        p.append(mf32(AQ, v(WP + 8, 4), v(XM, 4)))
        self.stamp("A_q")
        woq = woq[nw3:]
        t1, t3, t2 = o.get('wot1', 0), o.get('wot3', 6), o.get('wot2', 2)
        assert nw3 + t1 == 0
        p.extend(flat(woq[:t1]))
        woq = woq[t1:]
        ph = phi(AQ, lambda i: "v40", 196, 180)
        h = len(ph) // 2
        p.extend(ph[:h])
        p(f"buffer_store_dwordx4 v[180:183], {L16}, {WS}, {sPQS} offen sc1", tag="pub1")
        p.extend(ph[h:])
        p(f"buffer_store_dwordx4 v[184:187], {L16}, {WS}, {sPQS} offen offset:1024 sc1", tag="pub1")
        self.stamp("A_pqst")
        p("s_barrier")
        MB = list(self.miscB()) + self.miscC()
        nb = o.get('mb1', 140)
        assert nb >= len(self.miscB())
        p.extend(flat(woq[:t3]))
        p("s_nop 0")
        p.extend(MB[:nb])
        p("s_nop 0")
        p.extend(flat(woq[t3:t3 + t2]))
        woq = woq[t3 + t2:]
        p("WAITTAG pub1\ns_barrier")
        p(f"buffer_atomic_add v4, {P4K}, {WS}, {sSIG} offen sc1")
        self.stamp("A_sig")
        for s in range(4):
            p.extend(trpair(('a', 128 + 4 * s), RT13, s * 6144, 512))
        p.extend(R2T)
        p(f"v_add_u32 {L16H}, 0x2000, {L16}")
        t4 = o.get('wot4', 16)
        assert t3 + t2 + t4 >= 16
        p.extend(flat(woq[:t4]))
        for s in range(4):
            p.append(mf16(RCS, SEL, a_(128 + 4 * s, 4), "0" if s == 0 else None))
            p(f"buffer_store_dwordx4 {a_(128+4*s,4)}, {L16}, {WS}, {sRW} offen offset:{s*1024} {o.get('rfl', 'sc1').replace('_', ' ')}", tag=f"pubR{s}")
            if dup & 1:
                p(f"buffer_store_dwordx4 {a_(128+4*s,4)}, {L16H}, {WS}, {sRW} offen offset:{s*1024} sc1", tag=f"pubR{s}")
        p.extend(R2S)
        p(f"buffer_atomic_add_f32 v{RCS}, {CSAT}, {WS}, {sRC} offen", tag="pubC")
        self.stamp("A_rst")
        p(f"s_add_u32 {sSIG}, {sSIG}, 4096")
        self.wo_rest = woq[t4:]
        self.mb_rest = MB[nb:]

    def dmaT(self, t, slot):
        g = []
        for h in range(2):
            S = Seq()
            S(f"s_add_u32 m0, {bTL}, {slot*32768+h*4096}\ns_add_u32 {sT0}, {bTX if self.o.get('grp', 1) and par13(t) and not self.o.get('dup', 2) & 1 else bTA}, {t*65536+h*4096}")
            for k in range(4):
                S(f"buffer_load_dwordx4 {L16}, {WS}, {sT0} offen offset:{k*1024} sc1 lds", tag=f"T{t}")
                g.append(list(S))
                S = Seq()
            ctx(g[-4:])
        return g

    def phaseB(self):
        p = self.p
        o = self.o
        AH = 192
        W = [trpair(('a', 4 * i), f"v{WOT+((i>>2)&3)}", (i & 3) * 4096, 1024) for i in range(32)]
        PQR = 224
        LD = [Inst(f"buffer_load_dwordx2 v[32:33], v41, {WS}, {sZL} offen sc1")]
        for q in range(4):
            for i in (2 * q, 2 * q + 1):
                LD.append(Inst(f"buffer_load_dwordx4 {v(48+4*i,4)}, {L16}, {WS}, {sKVL if i < 4 else bK2} offen offset:{(i&3)*1024} sc1"))
            for i in (2 * q, 2 * q + 1):
                LD.append(Inst(f"buffer_load_dwordx4 {a_(PQR+4*i,4)}, {L16}, {WS}, {sPQL if i < 4 else bQ2} offen offset:{(i&3)*1024} sc1"))
        ZB = Seq()(f"v_cvt_pk_bf16_f32 v32, v32, v33\nds_write_b32 {ZBW}, v32")
        for k in range(4):
            ZB(f"ds_read_b128 {v(96+4*k,4)}, {ZBR} offset:{k*64}")
        p("WAITTAG WO0\ns_barrier")
        self.stamp("B_wo")
        pm = o.get('pm', 0)
        pl = list(Seq()(f"""s_cmp_eq_u32 {sW}, 1
             s_cselect_b32 {bGP}, {bGP}, {hex(OOB)}
             s_cselect_b64 s[26:27], 0xffff, 0
             buffer_load_dword v5, {P256}, {WS}, {bGP} offen sc1"""))
        if pm == 2:
            p.extend(pl)
        p.extend(flat(W[:16]))
        if pm == 1:
            p.extend(pl)
        for q in range(4):
            p(f"v_add_u32 v{WOT+q}, 0x10000, v{WOT+q}")
        mb2 = o.get('mb2', 30)
        p.extend(self.mb_rest[:mb2])
        self.stamp("B_prepoll")
        if pm:
            self.spin("v5", P256, bGP, "s[26:27]", "16", sleep=o.get('sleep1', 1), mode='check')
        else:
            self.spin("v5", P256, bGP, "0xffff", "16", sleep=o.get('sleep1', 1), wave=o.get('pw', 1))
        if o.get('seg0'):
            p("WAITTAG WO1x pubR0")
            self.stamp("B_r0")
            p("WAITTAG pubR3")
            self.stamp("B_r3")
            p("WAITTAG pubR")
            self.stamp("B_r5")
        p("WAITTAG pubC")
        self.stamp("B_rack")
        p("WAITALL lgkm\ns_barrier")
        self.stamp("B_sync1")
        LD.insert(o.get('rsat', 0), Inst(f"buffer_atomic_add v4, {P4K}, {WS}, {sSIG} offen sc1"))
        nl0 = o.get('nl0', 14)
        p.extend(LD[:10] + [Inst('s_nop 0')] + self.mb_rest[mb2:] + ZB + LD[10:nl0])

        def prep(q):
            S = Seq()
            for k in range(4):
                S(f"v_cvt_pk_bf16_f32 v{80+4*q+k}, v{48+8*q+2*k}, v{48+8*q+2*k+1}")
            for k in range(4):
                S(f"v_cndmask_b32 v{112+8*q+k}, v{80+4*q+k}, v{96+4*q+k}, {sB4LANES}")
            for k in range(4):
                S(f"v_cndmask_b32 v{116+8*q+k}, v{96+4*q+k}, v{80+4*q+k}, {sB4LANES}")
            return S
        NA = [144, 160, 176]
        steps = [(pr + k, t) for pr in (0, 2) for t in range(3) for k in range(2)]
        d16 = o.get('d16', 1)
        steps += [(pr, t) for t in (3, 4, 5, 6) for pr in range(4)]
        w2o = [f"{cW2x if o.get('grp', 1) and par2(pr, t) and not o.get('dup', 2) & 2 else cW2}, {pr * 32768 + (t >> 2) * 16384 + (t & 3) * 2048}" for pr, t in steps]
        hho = [pr * 16384 + t * 1024 for pr, t in steps]
        w2l = []
        for i in range(16):
            S = Seq()
            if d16:
                ad = W2B if i & 1 else W2A
                if i % 2 == 0:
                    S(f"s_add_u32 {sKC}, {w2o[i]}")
                S(f"buffer_load_dwordx4 {a_(128+8*i,4)}, {ad}, {WS}, {sKC} offen sc1")
                w2l.append(list(S))
                w2l.append([Inst(f"buffer_load_dwordx4 {a_(132+8*i,4)}, {ad}, {WS}, {sKC} offen offset:256 sc1")])
                if i & 1:
                    ctx(w2l[-4:])
                continue
            S(f"s_add_u32 {sKC}, {w2o[i]}")
            S(f"buffer_load_dwordx4 {a_(128+8*i,4)}, {W2A}, {WS}, {sKC} offen sc1")
            w2l.append(list(S))
            w2l.append([Inst(f"buffer_load_dwordx4 {a_(132+8*i,4)}, {W2B}, {WS}, {sKC} offen sc1")])
            ctx(w2l[-2:])
        self.steps, self.w2o, self.hho = steps, w2o, hho
        nw1, nw2 = (o.get('nw1', 6), o.get('nw2', 6)) if o.get('e2', 0) else (0, 0)
        assert nw1 <= 24
        W1, W2_, w2l = w2l[:nw1], w2l[nw1:nw1 + nw2], w2l[nw1 + nw2:]
        self.n_w2rest = len(w2l)
        TQ = flat([self.dmaT(t, t) for t in range(2)]) + w2l
        n2, n3 = o.get('tq2', 6), o.get('tq3', 10)

        def num(i):
            return mf32(NA[i % 3], v(112 + 4 * i, 4), a_(PQR + 4 * i, 4), "0")

        def fin(i):
            n = NA[i % 3] + 8 * (i & 1)
            d = NA[i % 3] + 8 * (1 - (i & 1))
            S = Seq()
            S(f"v_add_f32 v{d}, {sEPS6}, v{d}\nv_rcp_f32 v{d}, v{d}")
            for k in range(8):
                S(f"v_mul_f32 v{n+k}, v{n+k}, v{d}")
            for k in range(4):
                S(f"v_cvt_pk_bf16_f32 v{48+4*i+k}, v{n+2*k}, v{n+2*k+1}")
            return S

        def owrite(i):
            return Inst(f"ds_write_b128 v{OAD}, {v(48+4*i,4)} offset:{(i>>2)*16384+(i&3)*1024}", tag=f"o{i}")

        OR = (16, 20, 36, 44, 208, 248)

        def oreg(k):
            return OR[k % 6] if k < 16 else 80 + 4 * (k & 7)

        def oread(k):
            return Inst(f"ds_read_b128 {v(oreg(k),4)}, v{OAD+((k>>2)&3)} offset:{(k>>4)*16384+(k&3)*1024}")

        def acc(k):
            own = (k & 12) == 0
            return mf32(AH, a_(4 * k, 4), v(48 + 4 * ((k >> 4) * 4 + (k & 3)) if own else oreg(k), 4))
        self.stamp("bz")
        p.extend(prep(0))
        self.stamp("bp")
        p.append(num(0))
        p.append(num(1))
        VM = [[x] for x in LD[nl0:]] + list(self.wo_rest)
        per = o.get('per', 3)
        rl, rc = o.get('rl', 7), o.get('rc', 8)
        kk = 4
        for i in range(8):
            if i + 2 < 8:
                if i % 2 == 0:
                    p.extend(prep(i // 2 + 1))
                p.append(num(i + 2))
            if i >= 1:
                p.append(owrite(i - 1))
            if i == 5:
                p("WAITTAG o3\ns_barrier")
                p.extend([oread(k) for k in range(4, 9)])
            for _ in range(per):
                if VM:
                    p.extend(VM.pop(0))
            if i == rl:
                p(f"buffer_load_dword v5, {P256}, {WS}, {bRP} offen sc1")
            if i >= 5:
                for _ in range(-(-nw1 // 3)):
                    if W1:
                        p.extend(W1.pop(0))
            F = fin(i)
            self.stamp(f"b{i}")
            if i < 5:
                p.extend(F[:7])
                if i >= 1:
                    p.append(acc(i - 1))
                p.extend(F[7:])
            else:
                cuts = (8, 14) if i == 5 else (2, 6, 10, 14)
                lo = 0
                for c in cuts:
                    p.extend(F[lo:c])
                    lo = c
                    p.append(acc(kk))
                    if kk + 5 < 16:
                        p.append(oread(kk + 5))
                    kk += 1
        p.append(owrite(7))
        assert not VM
        self.stamp("B_st1")
        p.append(acc(kk))
        p("WAITTAG WO1 o7\ns_barrier")
        for k in range(16, 20):
            p.extend(W[k])
        assert kk == 14
        G = [[acc(15)] + W[20] + [oread(20)]]
        for k in range(16, 32):
            g = [acc(k)]
            if k + 5 < 32:
                g += W[k + 5] + [oread(k + 5)]
            G.append(g)
        if rl >= 8:
            G[rl - 8] += [Inst(f"buffer_load_dword v5, {P256}, {WS}, {bRP} offen sc1")]
        G[rc] += self.sub(lambda: self.spin("v5", P256, bRP, "0xffff", "16", mode='check', sleep=2))
        G = weave(G, W2_, 0, rc)
        G = weave(G, TQ[:n2], rc + 1, 17)
        p.extend(flat(G))
        for k in range(8):
            p(f"v_cvt_pk_bf16_f32 v{48+k}, v{AH+2*k}, v{AH+2*k+1}")
            if k == 3:
                p(f"buffer_store_dwordx4 v[48:51], {L16}, {WS}, {sHST} offen sc1", tag="pub2")
        p(f"buffer_store_dwordx4 v[52:55], {L16}, {WS}, {sHST} offen offset:1024 sc1", tag="pub2")
        p(f"v_add_f32 v56, v{AH}, v{AH+1}\nv_mul_f32 v57, v{AH}, v{AH}\nv_add_f32 v58, v{AH+2}, v{AH+3}\nv_mul_f32 v59, v{AH+1}, v{AH+1}")
        for k in range(2, 16):
            if k >= 4:
                p(f"v_add_f32 v{56+2*(k&1)}, v{56+2*(k&1)}, v{AH+k}")
            p(f"v_fmac_f32 v{57+2*(k&1)}, v{AH+k}, v{AH+k}")
        p("""v_add_f32 v56, v56, v58
             v_add_f32 v57, v57, v59
             v_permlane32_swap_b32 v56, v57
             v_add_f32 v56, v56, v57""")
        p(f"buffer_atomic_add_f32 v56, {L4}, {WS}, {sSTA} offen", tag="pub2")
        self.stamp("B_hst")
        for t in range(7):
            p(f"buffer_load_dword v{160+t}, {CSL}, {WS}, {cCS} offen offset:{t*128} sc1")
        p.extend(flat(TQ[n2:n2 + n3]))
        p(f"WAITTAG pub2\nbuffer_store_dword v4, {FA1}, {WS}, {sD} offen offset:512 sc1\ns_barrier")
        self.t1_late = n2 < 16
        self.stamp("B_sig")
        self.tq_rest = TQ[n2 + n3:]

    def miscC(self):
        M = Seq()
        def half(d, x):
            return f"s_and_b32 {d}, {x if self.o.get('grp', 1) else sW}, 1\ns_lshl_b32 {d}, {d}, 13"

        def near(d, x):
            return f"s_lshl_b32 {d}, {x}, 11\ns_xor_b32 {d}, {d}, {bGP}\ns_and_b32 {d}, {d}, 0x2000"
        DL = "v45"
        if self.o.get('d16', 1):
            M(f"""v_bfe_u32 v46, v1, 4, 1
                 v_and_b32 {DL}, 0xf0, {L16}
                 v_lshl_add_u32 {DL}, v46, 9, {DL}
                 v_lshrrev_b32 v46, 5, v1""")
        else:
            M(f"v_mov_b32 {DL}, {L16}\nv_mov_b32 v46, 0")
        M(f"""s_bfe_i32 {sT1}, {sTBL}, 0x10010
             s_xor_b32 {sT1}, {sT1}, {sTBL}
             s_and_b32 {sT1}, {sT1}, 0xe000
             s_bcnt1_i32_b32 {sT1}, {sT1}
             s_sub_u32 {sT1}, {sKC}, {sT1}""")
        if self.o.get('cmap', 1):
            M(f"""s_and_b32 {sGC}, {sT1}, 4
                 s_lshl_b32 {sGC}, {sGC}, 1
                 s_and_b32 {sT2}, {sU}, 7
                 s_add_u32 {sGC}, {sGC}, {sT2}
                 s_and_b32 {sMC}, {sT1}, 3
                 s_lshl_b32 {sMC}, {sMC}, 2
                 s_lshr_b32 {sT2}, {sU}, 3
                 s_add_u32 {sMC}, {sMC}, {sT2}""")
        else:
            M(f"""s_and_b32 {sGC}, {sT1}, 6
                 s_lshl_b32 {sGC}, {sGC}, 1
                 s_add_u32 {sGC}, {sGC}, {sRQ}
                 s_and_b32 {sMC}, {sT1}, 1
                 s_lshl_b32 {sMC}, {sMC}, 3
                 s_lshr_b32 {sT2}, {sU}, 2
                 s_add_u32 {sMC}, {sMC}, {sT2}""")
        M(f"""s_lshl_b32 {sT1}, {sGC}, 10
             s_lshl_b32 {sT2}, {sGC}, 12
             s_xor_b32 {sP2}, {sT1}, {sT2}
             s_and_b32 {sP2}, {sP2}, 0x2000
             s_xor_b32 {sP2}, {sP2}, {sPE}
             s_lshl_b32 {bTA}, {sMC}, 19
             s_add_u32 {bTA}, {bTA}, {sXL}
             {near(sT2, sMC) if self.o.get('dup', 2) & 1 else half(sT2, sMC)}
             s_add_u32 {bTA}, {bTA}, {sT2}
             s_add_u32 {bTA}, {bTA}, {hex(W13R)}
             s_xor_b32 {bTX}, {bTA}, 0x2000""")
        M(f"""s_lshl_b32 {sT1}, {sGC}, 2
             s_add_u32 {sT2}, {sT1}, {sW}
             s_lshl_b32 {cHS2}, {sT2}, 4
             s_add_u32 {cHS2}, {cHS2}, {sMC}
             s_lshl_b32 {cHS2}, {cHS2}, 14
             s_add_u32 {cHS2}, {cHS2}, {hex(HH+4096)}
             s_xor_b32 {cHS2}, {cHS2}, {sP2}
             s_lshl_b32 {cHB}, {sT2}, 16
             s_add_u32 {cHB}, {cHB}, {hex(HB)}
             s_xor_b32 {cHB}, {cHB}, {sPE}
             s_sub_u32 {cHS}, {cHS2}, 4096
             s_lshl_b32 {sT3}, {sMC}, 14
             s_sub_u32 {cPL}, {cHS2}, {sT3}
             s_add_u32 {cPL}, {cPL}, {3072+512}
             s_add_u32 {cST}, {cPL}, 256
             v_lshlrev_b32 {HPA}, 14, v1
             v_and_b32 {PA2}, 12, {L4}
             v_or_b32 {PA2}, {PA2}, {LM8}
             v_bfe_u32 v44, v1, 2, 1
             v_lshl_add_u32 {PA2}, v44, 18, {PA2}
             s_mul_i32 {cCS}, {sMC}, {7*128}
             s_add_u32 {cCS}, {cCS}, {hex(CS)}
             s_and_b32 {sCB}, {sMC}, 7
             s_lshl_b32 {cW2}, {sCB}, 19
             s_lshl_b32 {sT3}, {sW}, 17
             s_add_u32 {cW2}, {cW2}, {sT3}
             {near(sT3, sCB) if self.o.get('dup', 2) & 2 else half(sT3, sCB)}
             s_add_u32 {cW2}, {cW2}, {sT3}
             s_add_u32 {cW2}, {cW2}, {hex(W2R)}
             s_xor_b32 {cW2x}, {cW2}, 0x2000
             s_and_b32 {sT3}, {sW}, 1
             s_lshl_b32 {sT2}, {sT3}, 10
             v_add_u32 {W2A}, {sT2}, {DL}
             v_xor_b32 {W2B}, 1024, {W2A}
             v_lshrrev_b32 v44, 4, v1
             v_lshl_add_u32 {LB0}, v44, {8 if self.o.get('c16', 1) else 31}, {L16}
             v_and_b32 {LB0}, 0xffff, {LB0}
             v_add_u32 {LB1}, 0x10000, {LB0}
             v_add_u32 {LB2}, 0x20000, {LB0}
             s_add_u32 {sT2}, {bTL}, 0x10000
             v_add_u32 {WLA}, {sT2}, {W2A}
             v_add_u32 {WLB}, {sT2}, {W2B}
             v_lshl_add_u32 {WLA}, v46, 11, {WLA}
             v_lshl_add_u32 {WLB}, v46, 11, {WLB}
             v_lshl_add_u32 {W2A}, v46, 15, {W2A}
             v_lshl_add_u32 {W2B}, v46, 15, {W2B}
             v_add_u32 {WLC}, 0x10000, {WLA}
             v_add_u32 {WLD}, 0x10000, {WLB}
             v_and_b32 {CSL}, 0x7c, {L4}
             s_lshr_b32 {sT2}, {sMC}, 3
             s_lshl_b32 {sT2}, {sT2}, 1
             s_add_u32 {sT1}, {sT1}, {sT2}
             s_lshl_b32 {cHL}, {sT1}, 18
             s_lshl_b32 {sT2}, {sW}, 16
             s_add_u32 {cHL}, {cHL}, {sT2}
             s_add_u32 {cHL}, {cHL}, {hex(HH)}
             s_xor_b32 {cHL}, {cHL}, {sP2}
             s_lshr_b32 {sT2}, {sW}, 1
             s_add_u32 {sT1}, {sT1}, {sT2}
             s_lshl_b32 {sT2}, {sT2}, 18
             v_add_u32 {HHA}, {sT2}, {DL}
             v_lshl_add_u32 {HHA}, v46, 14, {HHA}
             v_xor_b32 {HHB}, 0x40000, {HHA}
             s_lshl_b32 {sT1}, {sT1}, 15
             s_lshl_b32 {sT2}, {sCB}, 1
             s_add_u32 {sT2}, {sT2}, {sT3}
             s_lshl_b32 {cOUT}, {sT2}, 6
             s_add_u32 {cOUT}, {cOUT}, {sT1}
             s_lshr_b32 {cHR}, {sT2}, 2
             s_lshl_b32 {cHR}, {cHR}, 13
             s_add_u32 {cHR}, {cHR}, {sT1}
             s_and_b32 {sT2}, {sT2}, 3
             s_lshl_b32 {sT2}, {sT2}, 10
             s_add_u32 {cHR}, {cHR}, {sT2}
             s_lshl_b32 {cHR}, {cHR}, 1
             s_add_u32 {cHR}, {cHR}, {hex(HB)}
             s_xor_b32 {cHR}, {cHR}, {sPE}
             s_add_u32 {cPP}, {cHL}, 7168
             s_add_u32 {cPQ}, {cPP}, 0x40000
             s_and_b32 {sT3}, {sMC}, 3
             s_mul_i32 {sT3}, {sT3}, {16384-4}
             s_sub_u32 {cPS}, {cHS2}, {sT3}""")
        return list(M)

    def phaseCD(self):
        p = self.p
        o = self.o
        sub = self.sub
        bar = lambda s_: list(Seq()(s_))
        steps, w2o, hho = self.steps, self.w2o, self.hho

        def dmaW2(part):
            g = []
            for k in range(4):
                S = Seq()
                S(f"s_add_u32 m0, {bTL}, {(2+part)*32768+k*2048}\ns_add_u32 {sT0}, {w2o[16+4*part+k]}")
                S(f"buffer_load_dwordx4 {L16}, {WS}, {sT0} offen sc1 lds", tag=f"W2L{part}")
                g.append(list(S))
                g.append([Inst(f"buffer_load_dwordx4 {L16}, {WS}, {sT0} offen offset:1024 sc1 lds", tag=f"W2L{part}")])
                ctx(g[-2:])
            return g

        def pub(tag, st):
            if o.get('nopub'):
                return []
            return bar(f"WAITTAG {tag}\nbuffer_store_dword v4, {FA1}, {WS}, {cPS} offen offset:{3072+128*st} sc1")

        vp = str(o.get('vp', 'x0123'))

        def pollld(st):
            if o.get('nopoll'):
                return []
            if str(st) in vp:
                return bar(f"buffer_load_dword v5, {PA2}, {WS}, {cPP} offen sc1")
            return list(Seq()(f"""s_buffer_load_dwordx4 s[8:11], {WS}, {cPP} glc
                 s_buffer_load_dwordx4 s[12:15], {WS}, {cPQ} glc""", cond=True))

        def pollchk(st):
            if o.get('nopoll'):
                return []
            if str(st) in vp:
                return sub(lambda: self.spin("v5", PA2, cPP, "0xff", "1", mode='check', sleep=o.get('sleep2', 2))) + \
                    bar(f"s_add_u32 {cPP}, {cPP}, 128\ns_add_u32 {cPQ}, {cPQ}, 128")
            red = """s_and_b64 s[8:9], s[8:9], s[10:11]
                 s_and_b64 s[12:13], s[12:13], s[14:15]
                 s_and_b64 s[8:9], s[8:9], s[12:13]
                 s_and_b32 s8, s8, s9"""

            def f():
                Lp = self.lab("sp")
                if o.get('stamps') == 3:
                    self.p(f"s_mov_b32 {sT5}, 0")
                self.p("WAITALL lgkm\n" + red)
                self.ool("s_cbranch_scc0", f"""s_mov_b32 {sT5}, 0
                     {Lp}:
                     s_sleep {o.get('sleep2', 2)}
                     s_buffer_load_dwordx4 s[8:11], {WS}, {cPP} glc
                     s_buffer_load_dwordx4 s[12:15], {WS}, {cPQ} glc
                     s_add_u32 {sT5}, {sT5}, 1
                     s_waitcnt lgkmcnt(0)
                     {red}
                     s_lshr_b32 s9, {sT5}, 15
                     s_or_b32 s8, s8, s9
                     s_cbranch_scc0 {Lp}""")
                self.p(f"s_add_u32 {cPP}, {cPP}, 128\ns_add_u32 {cPQ}, {cPQ}, 128")
                if o.get('stamps') == 3:
                    self.p(f"v_writelane_b32 v{STV}, {sT5}, {self.nstamp}")
                    self.nstamp += 1
                    self.stamp_names.append(f"P{st}")
            return sub(f)

        kt = max(0, len(self.tq_rest) - self.n_w2rest)
        FQ = self.tq_rest[:kt] + self.dmaT(2, 2) + self.dmaT(3, 3) + self.dmaT(4, 4) + self.tq_rest[kt:]
        npre, npre2 = o.get('tq4', 12), o.get('tq5', 0)
        p.extend(flat(FQ[:npre]))
        FQ = FQ[npre:]
        c16 = o.get('c16', 1)
        CSR, CSF, MEANF, C1, C2 = 160, 168, 176, 180, 181
        CSU, CSG, MEANG = 213, 220, 228
        p("s_nop 0")
        for k in (1, 2, 3, 5, 6, 7, 9, 10, 11):
            p(f"v_mov_b32 v{CSF+k}, 0")
            if c16:
                p(f"v_mov_b32 v{CSG+k}, 0")
        for t in range(7):
            p.extend(split2(CSR + t, CSR + t, 184))
        if c16:
            for t in range(7):
                p(f"v_mov_b32 v{CSU+t}, v{CSR+t}")
            for t in range(7):
                p(f"v_permlane16_swap_b32 v{CSR+t}, v{CSU+t}")
            p(f"s_mov_b64 s[8:9], 0xffff\nv_mov_b32 v{CSG}, v{CSU}\nv_mov_b32 v{CSG+4}, v{CSU+1}")
        p(f"v_mov_b32 v{CSF}, v{CSR}\nv_mov_b32 v{CSF+4}, v{CSR+1}")
        p("s_nop 0")
        p.extend(flat(FQ[:npre2]))
        FQ = FQ[npre2:]
        self.stamp("C_prepoll")
        self.spin("v5", HPA, cPL, "0xffff", "1", mode='all', sleep=o.get('sleep3', 0))
        self.stamp("C_sync2")

        c16 = o.get('c16', 1)
        fo = (lambda s: (s >> 1) * 2048 + (s & 1) * 256) if c16 else (lambda s: s * 1024)

        def hload(s):
            S = Seq()
            if s % 4 == 0 and s:
                S(f"s_add_u32 {cHB}, {cHB}, {4096 if s % 8 else 12288}")
            S(f"buffer_load_dwordx4 {a_(4*s,4)}, {LB0}, {WS}, {cHB} offen offset:{fo(s&3)} sc1")
            return list(S)
        HL = o.get('hla', 10)
        for s in range(HL):
            p.extend(hload(s))
        if self.t1_late:
            p("WAITTAG T1\ns_barrier")
        ACC = [48, 64, 80, 96, 112]
        acc_of = [0, 1, 2, 3, 0, 1, 2]
        slot_of = [0, 1, 2, 3, 4, 0, 1]
        WR, NR = 128, 8
        CSR, CSF, MEANF, C1, C2 = 160, 168, 176, 180, 181
        T = 184
        LK = o.get('lk', 5)
        F0 = Seq()
        for k in range(4):
            F0(f"buffer_load_dword v{T+4+k}, {L4}, {WS}, {cST} offen sc1\ns_add_u32 {cST}, {cST}, 16384")
        F1 = Seq()
        F1(f"""v_add_f32 v{T}, v{T+4}, v{T+5}
             v_add_f32 v{T+1}, v{T+6}, v{T+7}
             v_add_f32 v{T}, v{T}, v{T+1}
             v_mov_b32 v{T+1}, v{T}
             v_permlane32_swap_b32 v{T}, v{T+1}
             v_mul_f32 v{T}, 0x3b000000, v{T}
             v_mul_f32 v{T+1}, 0x3b000000, v{T+1}
             v_cvt_pk_bf16_f32 v{MEANF}, -v{T}, -v{T}
             v_fma_f32 v{T+1}, -v{T}, v{T}, v{T+1}
             v_max_f32 v{T+1}, 0, v{T+1}
             v_add_f32 v{C2}, 0x3727c5ac, v{T+1}
             v_rsq_f32 v{C1}, v{C2}
             v_mul_f32 v{C1}, 0xbfb8aa3b, v{C1}""")
        if c16:
            prs = [(MEANF, MEANG), (C2, C2 + 2), (C1, C1 + 2)]
            for x, y in prs:
                F1(f"v_mov_b32 v{y}, v{x}")
            for x, y in prs:
                F1(f"v_permlane16_swap_b32 v{x}, v{y}")
            F1(f"""v_cndmask_b32 v{MEANF}, 0, v{MEANF}, s[8:9]
                 v_cndmask_b32 v{MEANG}, 0, v{MEANG}, s[8:9]""")
        else:
            F1(f"v_cndmask_b32 v{MEANF}, v{MEANF}, 0, {sHILANES}")

        def tread(t, s, n):
            sl = slot_of[t]
            base = (LB0, LB0, LB1, LB1, LB2)[sl]
            return [Inst(f"ds_read_b128 {v(WR+4*(n%NR),4)}, {base} offset:{(sl&1)*32768*(sl<4)+fo(s)}")]

        def corr(t):
            A = ACC[acc_of[t]]
            if c16:
                return [mf16(A + 8 * gu + 4 * th, v((CSF, CSG)[gu] + 4 * (t & 1), 4), v((MEANF, MEANG)[th], 4))
                        for gu, th in ((0, 0), (0, 1), (1, 1), (1, 0))]
            return [mf32(A, v(CSF + 4 * (t & 1), 4), v(MEANF, 4))]

        def cm(t, s, n):
            A, w = ACC[acc_of[t]], v(WR + 4 * (n % NR), 4)
            if not c16:
                return [mf32(A, w, a_(4 * s, 4), "0" if s == 0 else None)]
            gu = s & 1
            r = [mf16(A + 8 * gu + 4 * th, w, a_(8 * (s >> 1) + 4 * th, 4), "0" if s < 2 else None) for th in (gu, 1 - gu)]
            r[1].tag = "second"
            return r

        def spread(G):
            out = []
            for g in G:
                g = hoist(g)
                if len(g) > 1 and g[1].tag == "second":
                    m, rest, c, k = g[1], g[2:], 0, 0
                    m.tag = None
                    tot = sum(cost(x) for x in rest if not x.cond)
                    while k < len(rest) and c + cost(rest[k]) <= max(9.7, tot / 2 + 2.2) and not rest[k].cond \
                            and rest[k].kind not in ('branch', 'label') and not rest[k].op.startswith('v_cmp'):
                        c += cost(rest[k])
                        k += 1
                    g = [g[0]] + rest[:k] + [m] + rest[k:]
                out += g
            return out
        G = []
        for n in range(64):
            s, t = divmod(n, 2)
            g = cm(t, s, n)
            if n + LK < 64:
                g += tread((n + LK) % 2, (n + LK) // 2, n + LK)
            else:
                if n + LK == 64:
                    g += bar("WAITTAG T2\ns_barrier")
                g += tread(2, n + LK - 64, n + LK)
            if t == 0 and s + HL < 32:
                g += hload(s + HL)
            G.append(g)
        G.append(corr(0))
        G.append(corr(1))
        for n in range(LK):
            p.extend(tread(n % 2, n // 2, n))
        G = weave(G, list(F0), 1, o.get('f0', 20))
        G = weave(G, list(F1), o.get('f1', 40), 63)
        e0 = 2 * (32 - HL)
        ng = min(len(FQ), o.get('g1q', 8))
        G = weave(G, FQ[:ng], e0, 66)
        FQ = FQ[ng:]
        p.extend(spread(G))
        self.stamp("C_g1")

        def epi(t, tmp):
            A = ACC[acc_of[t]]
            S = Seq()
            for j in range(8):
                S(f"v_mul_f32 v{tmp+j}, v{A+j}, v{C1+2*c16*(j>>2)}")
            for j in range(8):
                S(f"v_exp_f32 v{tmp+j}, v{tmp+j}")
                S(f"v_mul_f32 v{A+j}, v{A+j}, v{A+8+j}")
            for j in range(8):
                S(f"v_fma_f32 v{tmp+j}, v{tmp+j}, v{C2+2*c16*(j>>2)}, v{C2+2*c16*(j>>2)}")
                if j >= 2:
                    S(f"v_rcp_f32 v{tmp+j-2}, v{tmp+j-2}")
            for j in range(8):
                S(f"v_mul_f32 v{A+j}, v{A+j}, v{tmp+j}")
                if j < 2:
                    S(f"v_rcp_f32 v{tmp+6+j}, v{tmp+6+j}")
            for j in (0, 2, 1, 3):
                S(f"v_cvt_pk_bf16_f32 v{tmp+8+j}, v{A+2*j}, v{A+2*j+1}")
            if c16:
                S(f"v_permlane16_swap_b32 v{tmp+8}, v{tmp+10}\nv_permlane16_swap_b32 v{tmp+9}, v{tmp+11}")
            S(f"buffer_store_dwordx4 {v(tmp+8,4)}, {L16}, {WS}, {cHS if t < 4 else cHS2} offen offset:{(t&3)*1024} sc1", tag=f"hh{t}")
            return list(S)

        def tilepass(t, n0):
            G = []
            for s in range(32):
                n = n0 + s
                g = cm(t, s, n)
                if s + LK < 32:
                    g += tread(t, s + LK, n + LK)
                elif t < 6:
                    if s + LK == 32:
                        g += bar(f"WAITTAG T{t+1}\ns_barrier")
                    g += tread(t + 1, s + LK - 32, n + LK)
                if s == 16:
                    g += bar(f"v_mov_b32 v{CSF+4*(t&1)}, v{CSR+t}")
                if s == 17 and c16:
                    g += bar(f"v_mov_b32 v{CSG+4*(t&1)}, v{CSU+t}")
                G.append(g)
            G.append(corr(t))
            return G

        d16 = o.get('d16', 1)

        def hhload(i):
            S = Seq()
            if d16:
                ad = HHB if i & 1 else HHA
                S(f"s_add_u32 {sCc}, {cHL}, {hho[i & ~1]}")
                S(f"buffer_load_dwordx4 {a_(8*(i&15),4)}, {ad}, {WS}, {sCc} offen sc1")
                return ctx([list(S), [Inst(f"buffer_load_dwordx4 {a_(8*(i&15)+4,4)}, {ad}, {WS}, {sCc} offen offset:256 sc1")]])
            S(f"s_add_u32 {sCc}, {cHL}, {hho[i]}")
            S(f"buffer_load_dwordx4 {a_(8*(i&15),4)}, {HHA}, {WS}, {sCc} offen sc1")
            return ctx([list(S), [Inst(f"buffer_load_dwordx4 {a_(8*(i&15)+4,4)}, {HHB}, {WS}, {sCc} offen sc1")]])

        EP = [epi(t, T + 12 * (t & 1)) for t in range(7)]
        P = {t: tilepass(t, 32 * t) for t in range(2, 7)}
        q = o.get('cq', 18)
        ee = o.get('ee', 20)
        LA = o.get('dla', 7)
        G = weave(P[2], FQ[:q], 0, 32)
        FQ = self.dmaT(5, 0) + FQ[q:]
        FQ = FQ[:q] + self.dmaT(6, 1) + FQ[q:] + dmaW2(0) + dmaW2(1) + dmaW2(2)
        G = weave(G, EP[0] + EP[1][:26], 2, 33)
        p.extend(self.xf(spread(G)))
        self.stamp("C_t2")
        q3 = min(q, len(FQ) - 24)
        G = weave(P[3], FQ[:q3], 0, 32)
        FQ = FQ[q3:]
        G = weave(G, EP[1][26:] + EP[2], 0, 33)
        p.extend(self.xf(spread(G)))
        self.stamp("C_t3")
        q4 = min(q, len(FQ) - 16)
        G = weave(P[4], FQ[:q4], 0, 32)
        FQ = FQ[q4:]
        G = weave(G, EP[3], 2, ee)
        G[o.get('p1at', 26)] += pub("hh2", 0)
        p.extend(self.xf(spread(G)))
        self.stamp("C_t4")
        q5 = min(q, len(FQ) - 8)
        G = weave(P[5], FQ[:q5], 0, 32)
        FQ = FQ[q5:]
        G[o.get('l1', 14)] += pollld(0)
        G[1] += bar(f"buffer_load_dwordx4 v[24:27], {L16}, {WS}, {cHR} offen sc1")
        G[3] += bar(f"buffer_load_dwordx4 v[28:31], {L16}, {WS}, {cHR} offen offset:1024 sc1")
        G = weave(G, EP[4], 2, ee)
        p.extend(self.xf(spread(G)))
        self.stamp("C_t5")
        G = P[6]
        c1 = o.get('c1', 1)
        n6 = min(o.get('n6', 0), len(FQ))
        if n6:
            G = weave(G, FQ[:n6], 0, max(c1, 1))
            FQ = FQ[n6:]
        G[c1] += pollchk(0)
        hq = [x for i in range(LA) for x in hhload(i)]
        G = weave(G, hq, c1 + 1, 33)
        S = Seq()
        if d16:
            for i in (24, 25, 28, 29):
                S(f"v_permlane16_swap_b32 v{i}, v{i+2}")
        for i in range(8):
            S(f"v_lshlrev_b32 v{48+2*i}, 16, v{24+i}\nv_and_b32 v{49+2*i}, {sMSKHI}, v{24+i}")
        for k in range(4):
            S(f"""s_xor_b32 {sT1}, {sW}, {k}
                 s_mul_i32 {sT1}, {sT1}, 12288
                 v_add_u32 v{36+k}, {sT1}, {L16}""")
        G = weave(G, list(S), ee + 1, 33)
        G = weave(G, EP[5], 2, ee)
        G[o.get('p2at', 12)] += pub("hh4", 1)
        p.extend(self.xf(spread(G)))
        self.stamp("C_t6")

        DA = [48, 64, 96, 112]

        def w2r(i, a):
            return (128, 168, 128)[(i - 16) // 4] + 8 * (i % 4) + 4 * a

        def w2read(i):
            part, k = divmod(i - 16, 4)
            r = bar(f"WAITTAG W2L{part}") if k == 0 else []
            for a in range(2):
                ad = ((WLA, WLB), (WLA, WLB), (WLC, WLD))[part][k & 1 if d16 else a]
                r.append(Inst(f"ds_read_b128 {v(w2r(i, a), 4)}, {ad} offset:{(part&1)*32768 + ((k&2)*2048 + a*256 if d16 else k*2048)}"))
            return r

        def w2f(i, a):
            return a_(128 + 8 * i + 4 * a, 4) if i < 16 else v(w2r(i, a), 4)

        def dm(i, k):
            a, b = k & 1, k >> 1
            if d16:
                j, ch = i & ~1, i & 1
                r = [mf16(DA[k] + 8 * ch + 4 * th, w2f(j + a, ch), a_(8 * ((j + b) & 15) + 4 * th, 4), "0" if j == 0 and k else None)
                     for th in (ch, 1 - ch)]
                r[1].tag = "second"
                return r
            return [mf32(DA[k], w2f(i, a), a_(8 * (i & 15) + 4 * b, 4), "0" if i == 0 and k else None)]
        nl = o.get('nl', 4)
        if d16:
            assert nl % 2 == 0
            G = [dm(j + ch, k) for j in range(0, 28 - nl, 2) for k in (0, 1, 3, 2) for ch in range(2)]
        else:
            G = [dm(i, k) for i in range(28 - nl) for k in (1, 3, 2, 0)]
        G += [dm(i, k) for k in (1, 3, 2, 0) for i in range(28 - nl, 28)]
        for i in range(16, 28):
            G[min(4 * i - 7 - 2 * d16 * (i & 1), 4 * (28 - nl) - 8 + (i - (28 - nl)))] += w2read(i)
        c2, c3, c4 = o.get('c2', 22), o.get('c3', 54), o.get('c4', 76)
        l2, l3, l4 = o.get('l2', 6), o.get('l3', 37), o.get('l4', 62)
        G[l2] += pollld(1)
        G = weave(G, EP[6], 1, o.get('e6', 11))
        G[o.get('p3at', 12)] += pub("hh5", 2)
        G[l3] += pollld(2)
        G[o.get('p4at', 38)] += pub("hh6", 3)
        G[o.get('dbar', 40)] += bar("s_barrier")
        hs = lambda a, b: [x for i in range(a, b) for x in hhload(i)]
        G = weave(G, hs(LA, 12), 0, c2)
        G[c2] += pollchk(1)
        nf = max(0, len(FQ) - o.get('nf', 8))
        G = weave(G, hs(12, 16) + FQ[:nf] + hs(16, 20), c2 + 1, c3)
        G[c3] += pollchk(2)
        G = weave(G, hs(20, 24), c3 + 1, l4)
        G[l4] += pollld(3)
        G = weave(G, FQ[nf:], l4 + 1, c4)
        G[c4] += pollchk(3)
        G = weave(G, hs(24, 28), c4 + 1, c4 + o.get('h4', 9))
        WRT = [[Inst(f"ds_write_b128 v{36+k}, {v(DA[k]+4*q_,4)} offset:{(k-1)*4096+q_*1024}") for q_ in range(4)] for k in (1, 3, 2)]
        if nl >= 2:
            for n in range(3):
                G = weave(G, WRT[n], 112 - (3 - n) * nl + 1, 112 - (2 - n) * nl + (1 if n < 2 else 0))
        else:
            G[111] += flat(WRT)
        for k in sorted(set(list(range(8, 112, 8)) + [c2 - 1, c2, c3 - 1, c3, c4 - 1, c4])):
            G[k] += sub(lambda: self.stamp(f"d{k}"))
        p.extend(self.xf(spread(G)))
        self.stamp("D_loop")
        p("WAITALL lgkm\ns_barrier")
        for q_ in range(4):
            for k in range(3):
                p(f"ds_read_b128 {v(160+16*k+4*q_,4)}, v36 offset:{k*4096+q_*1024}")
        for q_ in range(4):
            for j in range(2):
                r = 4 * q_ + 2 * j
                p(f"v_pk_add_f32 {v(48+r,2)}, {v(48+r,2)}, {v(160+r,2)}")
                p(f"v_pk_add_f32 {v(176+r,2)}, {v(176+r,2)}, {v(192+r,2)}")
            for j in range(2):
                r = 4 * q_ + 2 * j
                p(f"v_pk_add_f32 {v(48+r,2)}, {v(48+r,2)}, {v(176+r,2)}")
            for j in range(2):
                p(f"v_cvt_pk_bf16_f32 v{112+2*q_+j}, v{48+4*q_+2*j}, v{48+4*q_+2*j+1}")
            if q_ & 1 and d16:
                p(f"v_permlane16_swap_b32 v{110+2*q_}, v{112+2*q_}\nv_permlane16_swap_b32 v{111+2*q_}, v{113+2*q_}")
            if q_ & 1:
                p(f"buffer_store_dwordx4 {v(112+4*(q_>>1),4)}, {ROWA}, {OUT}, {cOUT} offen offset:{32*(q_>>1)}" + ["", " sc1", " nt", " sc0 sc1"][o.get('outst', 0)])
        self.stamp("D_end")

    def finish(self):
        p = self.p
        if self.o.get('stamps'):
            p("WAITALL vm")
            self.stamp("D_drained")
            p(f"""s_lshl_b32 {sT0}, s2, 2
                 s_add_u32 {sT0}, {sT0}, {sW}
                 s_lshl_b32 {sT0}, {sT0}, 7
                 s_add_u32 {sT0}, {sT0}, {hex(STAMP)}
                 s_mov_b32 exec_hi, 0
                 buffer_store_dword v{STV}, {L4}, {WS}, {sT0} offen""")
        if self.o.get('padto'):
            p("WAITALL vm")
            if self.o.get('skew') is not None:
                p(f"""buffer_load_dword v43, off, {DBG}, 0 offset:128 sc1
                     buffer_load_dword v41, off, {DBG}, 0 offset:192 sc1
                     v_not_b32 v43, v43
                     v_readfirstlane_b32 s72, v43
                     v_readfirstlane_b32 s73, v41""")
                if self.o['skew'] < 0:
                    p("s_sub_u32 s101, s73, s72")
                else:
                    p("s_sub_u32 s101, s100, s72")
                p(f"""s_min_u32 s101, s101, 2000
                     s_lshl_b32 s101, s101, 3
                     s_add_u32 s100, s72, s101
                     s_lshl_b32 s72, s2, 2
                     s_add_u32 s72, s72, {sW}
                     s_cmp_lg_u32 s72, {max(self.o['skew'], 0) * 4}
                     s_cbranch_scc1 L_end""")
            if self.o.get('mx'):
                p(f"""s_lshl_b32 s72, s101, 8
                     s_add_u32 s72, s72, s2
                     v_mov_b32 v41, s72
                     s_cmp_eq_u32 {sW}, 0
                     s_cselect_b32 s73, 0, {hex(OOB)}
                     buffer_atomic_umax v41, {FA1}, {DBG}, s73 offen offset:192 sc1
                     s_waitcnt vmcnt(0)
                     L_pad0:
                     s_memrealtime s[72:73]
                     s_waitcnt lgkmcnt(0)
                     s_sub_u32 s72, s72, s100
                     s_cmp_lt_i32 s72, {self.o['padto']-200}
                     s_cbranch_scc1 L_pad0
                     buffer_load_dword v41, off, {DBG}, 0 offset:192 sc1
                     v_readfirstlane_b32 s72, v41""")
                if self.o['mx'] == 1:
                    p("s_lshl_b32 s101, s101, 8\ns_sub_u32 s101, s72, s101\ns_lshr_b32 s101, s101, 8\ns_min_u32 s101, s101, 1000\ns_lshl_b32 s101, s101, 4")
                elif self.o['mx'] == 2:
                    p("s_bfe_u32 s101, s72, 0x50003\ns_mul_i32 s101, s101, 200")
                else:
                    p("s_and_b32 s101, s72, 7\ns_mul_i32 s101, s101, 500")
                p("s_add_u32 s100, s100, s101")
            if self.o.get('rel'):
                p("s_memrealtime s[72:73]\ns_waitcnt lgkmcnt(0)\ns_add_u32 s100, s72, s101")
            if self.o.get('seg0'):
                p(f"s_lshl_b32 s72, s2, 2\ns_add_u32 s72, s72, {sW}\ns_cmp_lg_u32 s72, {self.o.get('segw', 150)}\ns_cbranch_scc1 L_end")
            p("L_pad:\ns_memrealtime s[72:73]\ns_waitcnt lgkmcnt(0)\ns_sub_u32 s72, s72, s100")
            p(f"s_cmp_lt_i32 s72, {self.o['padto']}\ns_cbranch_scc1 L_pad")
        p("L_end:\ns_endpgm")

    def build(self):
        if self.o.get('stamps') or self.o.get('padto'):
            self.p("s_memtime s[100:101]" if self.o.get('stamps') == 2 else "s_memrealtime s[100:101]")
        self.setup()
        if self.o.get('seg0') == 'start':
            self.p("s_mov_b32 s101, s100")
        if self.o.get('stamps'):
            self.p(f"v_mov_b32 v{STV}, s100")
            self.nstamp = 1
            self.stamp_names.append("start")
        self.p.extend(self.xf(self.sub(self.phaseA), 'xa'))
        self.p.extend(self.xf(self.sub(self.phaseB), 'xb'))
        self.phaseCD()
        self.finish()
        sk = str(self.o.get('skel', ''))
        if sk:
            Q = Seq()
            for i in self.p:
                if 'm' in sk and i.kind == 'mfma':
                    r = sorted(i.srcab)
                    for x in (r[0], r[-1]):
                        Q(f"v_accvgpr_read_b32 v40, {x}" if x[0] == 'a' else f"v_mov_b32 v40, {x}")
                    continue
                if 'e' in sk and i.kind in ('valu', 'trans') and not i.cond and i.op.endswith(('f32', 'f32_e64')):
                    continue
                if 'v' in sk and i.kind in ('vload', 'dma') and not i.cond and 'dwordx4' in i.op:
                    continue
                if 's' in sk and i.kind == 'vstore' and not i.cond and (i.wide or 'f32' in i.op) and 'v[176:179]' not in i.text:
                    continue
                Q.append(i)
            self.p = Q
        ns = str(self.o.get('nosc', ''))
        for i in self.p:
            if i.kind in ('vload', 'dma') and 'dwordx' in i.op and not i.cond:
                for ch, regs in (('k', (sKVL, bK2, sZL)), ('q', (sPQL, bQ2)), ('h', (cHB,)), ('t', (sT0, sKC)), ('d', (sCc,))):
                    if ch in ns and any(f"{WS}, {r} " in i.text for r in regs):
                        i.text = i.text.replace(" sc1", "")
        import dsl
        dsl.MERGE = self.o.get('mg', 1)
        return finalize(self.p, self.o.get('fill', 1))


def emit(opt):
    g = Gen(opt)
    prog = g.build()
    hdr = open(os.path.join(os.path.dirname(os.path.abspath(__file__)), "header.txt")).read()
    body = "\n".join(("" if i.kind == 'label' else "    ") + i.text for i in prog)
    txt = hdr + f"""; @launch grid=(256,1,1) block=(256,1,1) lds=163840
.amdgcn_target "amdgcn-amd-amdhsa--gfx950"
.set CODE_PF_MAX, {opt.get('code_bytes', 0)}
.text
.globl {NAME}_kernel
.p2align 8
.type {NAME}_kernel,@function
{NAME}_kernel:
{body}
.section .rodata,"a"
.p2align 6
.amdhsa_kernel {NAME}_kernel
  .amdhsa_next_free_vgpr 512
  .amdhsa_next_free_sgpr 102
  .amdhsa_accum_offset 256
  .amdhsa_group_segment_fixed_size 0
  .amdhsa_kernarg_size 80
  .amdhsa_user_sgpr_count 2
  .amdhsa_user_sgpr_kernarg_segment_ptr 1
  .amdhsa_system_sgpr_workgroup_id_x 1
.end_amdhsa_kernel
"""
    return txt, g.stamp_names


def code_size(txt):
    import subprocess, tempfile
    with tempfile.TemporaryDirectory() as d:
        open(d + "/k.s", "w").write(txt)
        r = subprocess.run(["clang", "-x", "assembler", "-target", "amdgcn-amd-amdhsa",
                            "-mcpu=gfx950", "-c", d + "/k.s", "-o", d + "/k.o"], capture_output=True, text=True)
        if r.returncode:
            print("\n".join(r.stderr.split("\n")[:30]))
            raise SystemExit(1)
        r = subprocess.run(["llvm-objdump", "-h", d + "/k.o"], capture_output=True, text=True)
        for line in r.stdout.split("\n"):
            f = line.split()
            if len(f) > 2 and f[1] == ".text":
                return int(f[2], 16)


def main():
    opt = {}
    out = None
    for a in sys.argv[1:]:
        if '=' in a:
            k, val = a.split('=')
            try:
                opt[k] = int(val, 0)
            except ValueError:
                opt[k] = val
        else:
            out = a
    opt['code_bytes'] = 4096
    txt, names = emit(opt)
    sz = code_size(txt)
    opt['code_bytes'] = (sz - 1024) & ~3
    txt, names = emit(opt)
    open(out, "w").write(txt)
    if names:
        open(out + ".names", "w").write(" ".join(names))
    print(out, "code bytes", sz, "lines", txt.count("\n"), "stamps", len(names))


if __name__ == "__main__":
    main()
```

```python
import sys, os
sys.path.insert(0, os.path.dirname(os.path.abspath(__file__)))
from dsl import *

NAME = "sequential_preLN__linear_attn_block__glu_gated_swiglu__prompt"

CNT = 0x20000
KVM = 0x10000
ST = 0x18000
CS = 0x1C000
ZP = 0x1F800
STAMP = 0xC0000
PQ = 0x400000
HB = 0x800000
HH = 0x1000000
W13R = 0x2000000
W2R = 0x2800000
PROBE = 0x100000
WS_SIZE = 0x2C00000
OOB = 0x7f000000

X, WQKV, WO, W1, W3, W2, OUT, WS, DBG = [f"s[{a}:{a+3}]" for a in range(4, 40, 4)]
(sW, sG, sM, sC0, sT0, sT1, sT2, sT3, sXB, sWB, sXL, sWL, sTB, sCB, sRQ, sLOG2E,
 sU, sKC, sT4, sT5, sMSKHI, sEPS6) = [f"s{i}" for i in range(40, 62)]
sHILANES = "s[62:63]"
sB4LANES = "s[64:65]"
sA, sB, sCc, sD = "s66", "s67", "s68", "s69"
sKVA, sZA, sPQS, sRW, sR2, sRC, sKVL, sZL, sPQL, sSIG, sHST, sSTA = [f"s{i}" for i in range(84, 96)]
sMA, sTA, sHS, sRL = "s3", "s74", "s83", "s1"
sP1, sPE, sP2, sTBL = "s96", "s97", "s98", "s99"
STV = 0

VB, KB, XCH, RST, KVS, ZS = 0x10000, 0x18000, 0x20000, 0x22000, 0, 0x21000

L16, L4 = "v2", "v3"
TRK, TRP = 152, 156
XCW, XCR, KVW, ZW, STW, KVR, ZR, ZAT, STR = [f"v{i}" for i in range(212, 221)]
WOD, WOT, OAD = 221, 225, 229
ROWA, ZBW, ZBR, P256 = "v233", "v234", "v235", "v236"
RL1, RL3, RL2, RT13, RT2A, RT2B, CSAT, P4K, FA1, LM8, PA2 = [f"v{i}" for i in range(237, 248)]
RCS = 248
L16H = "v252"


def v(a, n=1):
    return f"v{a}" if n == 1 else f"v[{a}:{a+n-1}]"


def a_(a, n=1):
    return f"a{a}" if n == 1 else f"a[{a}:{a+n-1}]"


def mf32(d, A, B, c=None):
    return Inst(f"v_mfma_f32_32x32x16_bf16 {v(d,16)}, {A}, {B}, {v(d,16) if c is None else c}")


def mf16(d, A, B, c=None):
    return Inst(f"v_mfma_f32_16x16x32_bf16 {v(d,4)}, {A}, {B}, {v(d,4) if c is None else c}")


def mf4(d, A, B, c=None):
    return Inst(f"v_mfma_f32_4x4x4_16b_bf16 {v(d,4)}, {A}, {B}, {v(d,4) if c is None else c}")


def trpair(dst, addr, off, step):
    k, b = dst
    return [Inst(f"ds_read_b64_tr_b16 {k}[{b}:{b+1}], {addr} offset:{off}"),
            Inst(f"ds_read_b64_tr_b16 {k}[{b+2}:{b+3}], {addr} offset:{off+step}")]


def par13(t):
    return (t >> 1) & 1


def par2(pr, t):
    return (pr >> 1) if t < 3 else (t & 1) ^ 1


def split2(dst, src, t):
    return Seq()(f"""v_cvt_pk_bf16_f32 v{t}, v{src}, v{src}
         v_lshlrev_b32 v{t}, 16, v{t}
         v_sub_f32 v{t}, v{src}, v{t}
         v_cvt_pk_bf16_f32 v{dst}, v{src}, v{t}""")


cHB, cST, cHS, cHR, cCS, cW2, cHL, cOUT, cHS2 = [f"s{i}" for i in range(75, 84)]
cPP, cPQ, cPS, cPL, bTA, bTL, bK2, bQ2, bGP, bRP, bTX, cW2x, sGC, sMC = [f"s{i}" for i in (4, 5, 6, 7, 16, 17, 18, 19, 20, 21, 22, 23, 24, 25)]
W2A, W2B, LB1, LB2, WLA, WLB, WLC, WLD = [f"v{i}" for i in range(6, 14)]
CSL, HHA, HHB, HPA, LB0 = "v14", "v15", "v42", "v43", "v212"


class Gen:
    def __init__(self, opt):
        self.o = opt
        self.p = Seq()
        self.nl = 0
        self.nstamp = 0
        self.stamp_names = []

    def lab(self, s):
        self.nl += 1
        return f"L_{s}_{self.nl}"

    def stamp(self, name):
        if self.o.get('padat') == name:
            self.p("WAITALL lgkm\ns_memrealtime s[100:101]\nWAITALL lgkm")
        clk = "s_memtime" if self.o.get('segc') else "s_memrealtime"
        if self.o.get('seg0') == name:
            self.p(f"WAITALL lgkm\n{clk} s[72:73]\nWAITALL lgkm\ns_mov_b32 s101, s72")
        if self.o.get('seg1') == name:
            self.p(f"WAITALL lgkm\n{clk} s[72:73]\nWAITALL lgkm\ns_sub_u32 s101, s72, s101")
            if self.o.get('lo') is not None:
                self.p(f"s_cmp_lt_u32 s101, {self.o['thr']}\ns_movk_i32 s101, {self.o['hi']}\ns_cselect_b32 s101, {self.o['lo']}, s101")
            else:
                self.p(f"s_lshl_b32 s101, s101, {self.o.get('amp', 4)}")
            self.p("s_add_u32 s100, s100, s101")
        if self.o.get('stamps', 3) == 3:
            return
        fine = str(self.o.get('fine', ''))
        if name[0].islower() and name[0] not in fine:
            return
        if fine and name[0].isupper() and name[0].lower() not in fine and name not in ('C_t6', 'B_sync1', 'C_sync2', 'D_drained', 'A_loop', 'A_v', 'A_q'):
            return
        p = self.p
        if self.o.get('nb'):
            if self.nstamp > 1:
                p(f"v_writelane_b32 v{STV}, s72, {self.nstamp-1}", cond=True)
            p("s_memrealtime s[72:73]" if self.o['stamps'] == 1 else "s_memtime s[72:73]", cond=True)
            if name == 'D_drained':
                p(f"s_waitcnt lgkmcnt(0)\nv_writelane_b32 v{STV}, s72, {self.nstamp}", cond=True)
            self.nstamp += 1
            self.stamp_names.append(name)
            return
        p("WAITALL lgkm")
        p("s_memrealtime s[72:73]" if self.o['stamps'] == 1 else "s_memtime s[72:73]")
        p("WAITALL lgkm")
        p(f"v_writelane_b32 v{STV}, s72, {self.nstamp}")
        self.nstamp += 1
        self.stamp_names.append(name)

    def sub(self, fn):
        save = self.p
        self.p = Seq()
        fn()
        r = list(self.p)
        self.p = save
        return r

    def xf(self, L, key='x'):
        x = self.o.get(key, '')
        out = []
        for i in L:
            if 'v' in x and i.kind in ('vload', 'dma') and not i.cond and 'dwordx4' in i.op:
                continue
            if 'e' in x and i.kind in ('valu', 'trans') and not i.cond and i.op.endswith(('f32', 'f32_e64')):
                continue
            if 'l' in x and i.kind == 'dsr':
                continue
            if 's' in x and i.kind == 'vstore' and 'store' in i.op and not i.cond:
                continue
            if 'b' in x and i.op == 's_barrier':
                continue
            if 'm' in x and i.kind == 'mfma' and i.passes < 8:
                continue
            out.append(i)
        return out

    def ool(self, branch, text):
        p = self.p
        L, R = self.lab("o"), self.lab("r")
        p(f"{branch} {L}")
        n = len(p)
        p(f"{L}:\n{text}\ns_branch {R}", cond=True)
        for i in p[n:]:
            i.ool = L
        p(f"{R}:")

    def spin(self, vt, vaddr, soff, mask, target, srd=WS, mode='wave0', sleep=0, field=None, wave=0):
        p = self.p
        Lp = self.lab("pl")
        addr = f"{vaddr}, {srd}, {soff} offen" if vaddr else f"off, {srd}, {soff}"
        ext = f"v_and_b32 v43, {field}, {vt}\n" if field is not None else ""
        vc = "v43" if field is not None else vt
        loop = f"""s_mov_b32 {sT5}, 0
             s_mov_b64 exec, {mask}
             {Lp}:
             {f's_sleep {sleep}' if sleep and self.o.get('slp', 0) else ''}
             buffer_load_dword {vt}, {addr} sc1
             s_add_u32 {sT5}, {sT5}, 1
             s_waitcnt vmcnt(0)
             {ext}v_cmp_gt_u32 vcc, {target}, {vc}
             s_cmp_ge_u32 {sT5}, 0x8000
             s_cselect_b64 vcc, 0, vcc
             s_and_b64 exec, exec, vcc
             s_cbranch_scc1 {Lp}
             s_mov_b64 exec, -1"""
        if self.o.get('stamps') == 3:
            p(f"s_mov_b32 {sT5}, 0")
        if mode == 'check':
            p(f"{ext}v_cmp_gt_u32 vcc, {target}, {vc}\ns_and_b64 vcc, vcc, {mask}")
            self.ool("s_cbranch_scc1", loop)
        elif mode == 'wave0':
            Ld = self.lab("pd")
            p(f"s_cmp_lg_u32 {sW}, {wave}\ns_cbranch_scc1 {Ld}")
            p(loop, cond=True)
            p(f"{Ld}:")
        else:
            p(loop, cond=True)
            p("s_waitcnt vmcnt(0)")
        if self.o.get('stamps') == 3:
            p(f"v_writelane_b32 v{STV}, {sT5}, {self.nstamp}")
            self.nstamp += 1
            self.stamp_names.append(f"spin{self.nstamp}")

    def setup(self):
        p = self.p
        p(f"""s_cmp_ge_u32 s2, 256
             s_cbranch_scc1 L_end
             s_load_dwordx16 s[76:91], s[0:1], 0
             s_load_dwordx4 s[92:95], s[0:1], 64""")
        p("v_and_b32 v1, 63, v0\nv_lshrrev_b32 v4, 6, v0")
        p(f"v_readfirstlane_b32 {sW}, v4")
        am = self.o.get('amap', 1)
        if am:
            hq = f"s_and_b32 {sT3}, s2, 1\ns_lshl_b32 {sMA}, {sT3}, 2\ns_lshr_b32 {sT0}, s2, 6\ns_add_u32 {sMA}, {sMA}, {sT0}"
            c0 = f"s_and_b32 {sC0}, {sT1}, 6\ns_add_u32 {sC0}, {sC0}, {sT3}\ns_lshr_b32 {sT0}, {sKC}, 1\ns_add_u32 {sC0}, {sC0}, {sT0}"
            if am == 1:
                c0 += f"\ns_lshl_b32 {sT0}, {sT2}, 2\ns_add_u32 {sC0}, {sC0}, {sT0}"
            if am == 2:
                c0 += f"\ns_add_u32 {sC0}, {sC0}, {sT0}"
            if am == 3:
                c0 += f"\ns_lshl_b32 {sT0}, {sRQ}, 1\ns_add_u32 {sC0}, {sC0}, {sT0}"
        else:
            hq = f"s_xor_b32 {sMA}, {sT1}, 4"
            c0 = f"s_add_u32 {sC0}, {sT1}, {sKC}"
        p(f"""s_mov_b32 s6, 0x200000
             s_mov_b32 s7, 0x20000
             s_mov_b32 s10, 0x180000
             s_mov_b32 s11, 0x20000
             s_lshr_b32 {sU}, s2, 3
             s_and_b32 {sKC}, s2, 7
             s_and_b32 {sRQ}, {sU}, 3
             s_and_b32 {sG}, s2, 6
             s_lshl_b32 {sG}, {sG}, 1
             s_add_u32 {sG}, {sG}, {sRQ}
             s_lshr_b32 {sT1}, s2, 5
             s_and_b32 {sT2}, {sT1 if am else 's2'}, 1
             s_lshl_b32 {sTA}, {sG}, 1
             s_add_u32 {sTA}, {sTA}, {sT2}
             s_lshl_b32 {sXL}, {sW}, 14
             s_lshl_b32 {sXB}, {sTA}, 16
             s_add_u32 {sXB}, {sXB}, {sXL}
             {hq}
             s_mul_i32 {sWB}, {sW}, {16*3072}
             s_lshl_b32 {sT0}, {sMA}, 7
             s_add_u32 {sWB}, {sWB}, {sT0}
             s_lshl_b32 {sWL}, {sW}, 11
             {c0}""")
        rot = self.o.get('rot', 6)
        if rot == 7:
            p(f"s_lshl_b32 {sT0}, {sU}, 2\ns_add_u32 {sC0}, {sC0}, {sT0}")
        if rot == 8:
            p(f"s_lshl_b32 {sT0}, {sRQ}, 1\ns_add_u32 {sC0}, {sC0}, {sT0}")
        if rot == 0:
            p(f"s_mov_b32 {sC0}, 0")
        if rot == 1:
            p(f"s_mov_b32 {sC0}, {sKC}")
        if rot == 9:
            p(f"s_lshl_b32 {sC0}, {sT1}, 1\ns_add_u32 {sC0}, {sC0}, {sKC}")
        p(f"""v_lshrrev_b32 v4, 3, v1
             v_and_b32 v5, 7, v1
             v_lshrrev_b32 v3, 4, v1
             v_xor_b32 v6, v5, v3
             v_lshlrev_b32 v6, 4, v6
             v_lshl_add_u32 v6, v4, 10, v6
             v_xor_b32 v7, 64, v6
             v_add_u32 v7, 7168, v7
             v_and_b32 v3, 1, v3
             v_lshlrev_b32 v3, 2, v3
             v_xor_b32 v5, v5, v3
             v_lshlrev_b32 v5, 4, v5
             v_mul_u32_u24 v8, 3072, v4
             v_add_u32 v8, v8, v5
             v_add_u32 v9, {8*3072-1024}, v8""")
        p("WAITALL lgkm")
        p("s_mov_b64 s[4:5], s[76:77]\ns_mov_b64 s[8:9], s[78:79]")

    def dmaW(self, t, c):
        base, po = ((KB, 1024), (VB, 2048), (0, 0))[t]
        tag = f"{'AVQ'[t]}{c}"
        S = Seq()
        S(f"s_add_u32 m0, {sWL}, {base + c*8192 - po}")
        S(f"buffer_load_dwordx4 v8, {WQKV}, s{75+c} offen offset:{po} lds", tag=tag)
        return ctx([list(S), [Inst(f"buffer_load_dwordx4 v9, {WQKV}, s{75+c} offen offset:{po+1024} lds", tag=tag)]])

    def dmaA(self, c):
        wc = f"s{75+c}"
        g = self.dmaW(0, c)
        g[0] = list(Seq()(f"""s_add_u32 {sT0}, {sC0}, {c}
             s_and_b32 {sT0}, {sT0}, 7
             s_mul_i32 {wc}, {sT0}, {64*3072}
             s_add_u32 {wc}, {wc}, {sWB}
             s_lshl_b32 {sT0}, {sT0}, 7""")) + g[0]
        nt = " nt" if self.o.get('xnt', 0) else ""
        S = Seq()
        S(f"s_add_u32 m0, {sWL}, {c*8192}\ns_add_u32 {sT0}, {sT0}, {sXB}")
        S(f"buffer_load_dwordx4 v6, {X}, {sT0} offen{nt} lds", tag=f"A{c}")
        g += [list(S), [Inst(f"buffer_load_dwordx4 v7, {X}, {sT0} offen offset:1024{nt} lds", tag=f"A{c}")]]
        return ctx(g)

    def dmaWO(self, q):
        S = Seq()
        S(f"""s_add_u32 {sT0}, {sA}, {q*65536}
             s_add_u32 m0, {sB}, {q*16384}
             s_and_b32 {sT0}, {sT0}, 0x7ffff""")
        g = []
        for k in range(4):
            S(f"buffer_load_dwordx4 v{WOD+k}, {WO}, {sT0} offen offset:{k*1024} lds", tag=f"WO{q>>2}")
            g.append(list(S))
            S = Seq()
        return ctx(g)

    def rload(self):
        nt = " nt" if self.o.get('rnt', 1) else ""
        g = []
        for k, (ad, srd, s0, s1) in enumerate(((RL1, W1, sKVL, sZL), (RL3, W3, sKVL, sZL), (RL2, W2, sPQL, sHST))):
            g.append(list(Seq()(f"s_add_u32 m0, {sSTA}, {k*2048}\nbuffer_load_dwordx4 {ad}, {srd}, {s0} offen{nt} lds")))
            g.append(list(Seq()(f"buffer_load_dwordx4 {ad}, {srd}, {s1} offen offset:1024{nt} lds", tag=f"RL{k}")))
            ctx(g[-2:])
        return g[4:] + g[:4]

    def miscA(self):
        M = Seq()
        a, b, c, d = "v208", "v209", "v210", "v211"
        am = self.o.get('amap', 1)
        cbx = f"s_lshr_b32 {sCB}, {sMA}, 1" if am else f"s_and_b32 {sCB}, {sM}, 3"
        M(f"""v_lshl_add_u32 {RL2}, v4, 10, v5
             v_mul_u32_u24 v4, 3584, v4
             v_add_u32 {RL1}, v4, v5
             v_xor_b32 {RL3}, 32, {RL1}
             v_mov_b32 v4, 1
             v_lshlrev_b32 {L4}, 2, v1
             s_mov_b32 {sLOG2E}, 0x3fb8aa3b
             s_mov_b32 {sMSKHI}, 0xffff0000
             s_mov_b32 {sEPS6}, 0x358637bd
             s_mov_b32 s62, 0
             s_mov_b32 s63, -1
             s_mov_b32 s64, 0xffff0000
             s_mov_b32 s65, 0xffff0000
             s_mov_b32 s96, 0x22222222
             s_mov_b32 s97, 0x22222222
             s_mov_b32 s98, 0x44444444
             s_mov_b32 s99, 0x44444444
             s_mov_b32 s70, 0x88888888
             s_mov_b32 s71, 0x88888888
             s_and_b32 {sM}, s2, 1
             s_lshl_b32 {sM}, {sM}, 3
             s_lshr_b32 {sT1}, s2, 5
             s_add_u32 {sM}, {sM}, {sT1}
             {cbx}
             s_and_b32 {sT1}, {sW}, 1
             s_lshr_b32 {sT2}, {sW}, 1
             s_lshl_b32 {sMA}, {sMA}, 1
             s_add_u32 {sMA}, {sMA}, {sT2}
             s_lshl_b32 {sTA}, {sTA}, 1
             s_add_u32 {sTA}, {sTA}, {sT1}""")
        M(f"""v_and_b32 {a}, 31, v1
             v_lshrrev_b32 {b}, 5, v1
             v_bfe_u32 {c}, v1, 1, 3
             v_xor_b32 {c}, {b}, {c}
             v_lshlrev_b32 {c}, 4, {c}
             v_lshl_add_u32 {c}, {a}, 7, {c}
             s_lshl_b32 {sT3}, {sT1}, 12
             s_lshl_b32 {sT4}, {sW}, 5
             s_add_u32 {sT3}, {sT3}, {sT4}
             v_xor_b32 v10, {sT3}, {c}
             v_xor_b32 v11, 32, v10
             v_xor_b32 v12, 64, v10
             v_xor_b32 v13, 96, v10
             s_lshl_b32 {sT3}, {sCB}, 1
             s_add_u32 {sT3}, {sT3}, {sT2}
             s_sub_u32 {sT3}, {sT3}, {sC0}
             s_and_b32 {sT3}, {sT3}, 7
             s_lshl_b32 {sT3}, {sT3}, 1
             s_bfe_u32 {sT4}, s2, {hex(0x10006 if am else 0x10007)}
             s_add_u32 {sT3}, {sT3}, {sT4}
             s_lshl_b32 {sT3}, {sT3}, 6
             s_add_u32 {sT3}, {sT3}, {sT1}
             s_lshl_b32 {sT3}, {sT3}, 6
             v_xor_b32 v14, {sT3}, {c}
             v_xor_b32 v15, 32, v14""")
        M(f"""s_lshl_b32 {sT3}, {sT2}, 8
             s_add_u32 {sT3}, {sT3}, {hex(XCH)}
             v_lshl_add_u32 {XCR}, {a}, 3, {sT3}
             s_lshl_b32 {sT3}, {sT1}, 2
             v_add_u32 {XCW}, {sT3}, {XCR}
             s_lshl_b32 {sT3}, {sW}, 9
             s_add_u32 {sT3}, {sT3}, {hex(XCH+2048)}
             v_lshl_add_u32 {STW}, v1, 3, {sT3}
             v_xor_b32 {STR}, 1024, {STW}
             v_lshlrev_b32 {KVW}, 4, {a}
             v_lshl_add_u32 {KVW}, {b}, 10, {KVW}
             s_add_u32 {sT3}, {sWL}, {hex(KVS)}
             v_add_u32 {KVW}, {sT3}, {KVW}
             s_lshl_b32 {sT3}, {sW}, 7
             s_add_u32 {sT3}, {sT3}, {hex(ZS)}
             v_lshl_add_u32 {ZW}, {a}, 2, {sT3}
             s_lshl_b32 {sT3}, {sT2}, 2
             s_add_u32 {sT3}, {sT3}, {sT1}
             s_lshl_b32 {sT4}, {sT3}, 10
             s_add_u32 {sT4}, {sT4}, {hex(KVS)}
             v_add_u32 {KVR}, {sT4}, {L4}
             s_lshl_b32 {sT4}, {sT3}, 6
             s_add_u32 {sT4}, {sT4}, {hex(ZS)}
             v_and_b32 {d}, 15, v1
             v_lshl_add_u32 {ZR}, {d}, 2, {sT4}
             v_lshrrev_b32 {d}, 4, v1
             v_lshl_add_u32 {ZAT}, {d}, 27, {L4}
             v_lshl_add_u32 {CSAT}, {b}, 27, {L4}
             v_lshrrev_b32 {LM8}, 3, v1
             v_lshlrev_b32 {LM8}, 27, {LM8}
             v_min_u32 {FA1}, 1, v1
             v_lshlrev_b32 {FA1}, 27, {FA1}
             s_lshl_b32 {sT3}, {sMA}, 1
             s_add_u32 {sT3}, {sT3}, {sT1}
             s_lshl_b32 {sKVA}, {sT3}, 10
             s_add_u32 {sKVA}, {sKVA}, {hex(KVM)}
             s_lshl_b32 {sZA}, {sT3}, 6
             s_add_u32 {sZA}, {sZA}, {hex(ZP)}
             s_lshl_b32 {sPQS}, {sTA}, 2
             s_lshr_b32 {sT3}, {sMA}, 2
             s_add_u32 {sPQS}, {sPQS}, {sT3}
             s_lshl_b32 {sPQS}, {sPQS}, 3
             s_and_b32 {sT3}, {sMA}, 3
             s_add_u32 {sPQS}, {sPQS}, {sT3}
             s_lshl_b32 {sPQS}, {sPQS}, 11
             s_add_u32 {sPQS}, {sPQS}, {hex(PQ)}
             s_lshl_b32 {sHS}, {sG}, 2
             s_add_u32 {sHS}, {sHS}, {sW}
             s_lshl_b32 {sHS}, {sHS}, 4
             s_add_u32 {sHS}, {sHS}, {sM}
             s_lshl_b32 {sHS}, {sHS}, 14
             s_add_u32 {sHS}, {sHS}, {hex(HH+4096)}""")
        M(f"""v_bfe_u32 {c}, v1, 2, 2
             v_lshlrev_b32 {a}, 10, {b}
             v_lshl_add_u32 {a}, {c}, 7, {a}
             v_bfe_u32 {c}, v1, 4, 1
             v_bfe_u32 {d}, v1, 3, 1
             v_lshl_add_u32 {d}, {d}, 1, {c}
             v_lshl_add_u32 {a}, {d}, 5, {a}
             v_and_b32 {d}, 1, v1
             v_lshl_add_u32 {RT2A}, {d}, 4, {a}
             v_bfe_u32 {d}, v1, 1, 1
             v_lshl_add_u32 {RT2A}, {d}, 3, {RT2A}
             v_and_b32 {d}, 3, v1
             v_lshl_add_u32 {a}, {d}, 3, {a}
             s_lshl_b32 {sT3}, {sT2}, 6
             s_add_u32 {sT3}, {sT3}, {sWL}
             s_add_u32 {sT4}, {sT3}, {hex(KB)}
             v_xor_b32 v{TRK}, {sT4}, {a}
             s_add_u32 {sT4}, {sT3}, {hex(VB)}
             v_xor_b32 v{TRP}, {sT4}, {RT2A}""")
        for j in range(1, 4):
            M(f"v_xor_b32 v{TRK+j}, {j*2048}, v{TRK}\nv_xor_b32 v{TRP+j}, {j*2048}, v{TRP}")
        M(f"""s_lshl_b32 {sT3}, {sW}, 5
             s_add_u32 {sT3}, {sT3}, {hex(RST)}
             v_xor_b32 {RT13}, {sT3}, {a if self.o.get('c16', 1) else RT2A}
             v_lshl_add_u32 {RT13}, {c}, 11, {RT13}
             s_mul_i32 {sSTA}, {sW}, 6144
             s_add_u32 {sSTA}, {sSTA}, {hex(RST)}
             v_add_u32 {RT2A}, {sSTA}, {a if self.o.get('d16', 1) else RT2A}
             v_xor_b32 {RT2B}, 64, {RT2A}""")
        M(f"""v_lshrrev_b32 {a}, 2, v1
             v_xor_b32 {a}, {a}, {c}
             v_and_b32 {a}, 1, {a}
             v_or_b32 {a}, {a}, {d}
             v_cmp_eq_u32 vcc, 0, {a}
             v_mov_b32 v20, 0x3f803f80
             v_mov_b32 v21, 0x3f803f80
             v_mov_b32 v22, 0x3f803f80
             v_mov_b32 v23, 0x3f803f80
             v_cndmask_b32 v16, 0, v20, vcc
             v_cndmask_b32 v17, 0, v20, vcc
             v_cndmask_b32 v18, 0, v20, vcc
             v_cndmask_b32 v19, 0, v20, vcc""")
        for r in (162, 163, 166, 167, 170, 171, 174, 175, 177, 178, 179):
            M(f"v_mov_b32 v{r}, 0")
        M(f"""v_lshrrev_b32 {a}, 4, v1
             v_bfe_u32 {c}, v1, 2, 2
             v_xor_b32 {c}, {c}, {a}
             v_lshlrev_b32 {c}, 6, {c}
             v_lshl_add_u32 {c}, {a}, 10, {c}
             v_lshl_add_u32 v{WOD}, {d}, 4, {c}
             v_add_u32 v{WOD+1}, 3072, v{WOD}
             v_add_u32 v{WOD+2}, 6144, v{WOD}
             v_add_u32 v{WOD+3}, 9216, v{WOD}
             s_lshl_b32 {sA}, {sRQ}, 17
             s_add_u32 {sA}, {sA}, {sXL}
             s_lshl_b32 {sT3}, {sCB}, 8
             s_add_u32 {sA}, {sA}, {sT3}""")
        M(f"""s_lshl_b32 {sT3}, {sKC}, 2
             s_add_u32 {sT3}, {sT3}, {sW}
             s_mul_i32 {sKVL}, {sT3}, {16*3584}
             s_lshl_b32 {sT3}, {sU}, 7
             s_add_u32 {sKVL}, {sKVL}, {sT3}
             s_lshl_b32 {sT2}, {sU}, 2
             s_add_u32 {sT2}, {sT2}, {sW}
             s_lshl_b32 {sPQL}, {sT2}, 14
             s_lshl_b32 {sT3}, {sKC}, 7
             s_add_u32 {sPQL}, {sPQL}, {sT3}
             s_add_u32 {sHST}, {sPQL}, 7168
             s_lshl_b32 {sRC}, {sT2}, 7
             s_add_u32 {sRC}, {sRC}, {hex(CS)}
             s_mul_i32 {sT3}, {sT2}, 9363
             s_lshr_b32 {sT3}, {sT3}, 16
             s_add_u32 {sT2}, {sT2}, {sT3}
             s_and_b32 {sT3}, {sKC}, 6
             s_add_u32 {sT3}, {sT3}, {sKC}
             s_lshl_b32 {sRW}, {sT2}, 4
             s_add_u32 {sRW}, {sRW}, {sT3}
             s_lshl_b32 {sRW}, {sRW}, 12
             s_add_u32 {sRW}, {sRW}, {hex(W13R)}
             s_andn2_b32 {sT3}, {sT2}, 3
             s_add_u32 {sT3}, {sT3}, {sT2}
             s_lshl_b32 {sR2}, {sKC}, 8
             s_add_u32 {sR2}, {sR2}, {sT3}
             s_lshl_b32 {sR2}, {sR2}, 11
             s_add_u32 {sR2}, {sR2}, {hex(W2R)}""")
        dup = self.o.get('dup', 2)
        if self.o.get('grp', 1):
            m13 = sum((par13(t) ^ m) << (8 * m + t) for m in range(2) for t in range(8))
            m2 = sum(par2(pr, t) << (8 * pr + t) for pr in range(4) for t in range(8))
            M(f"""s_and_b32 {sT3}, {sT2}, 15
                 s_lshr_b32 {sT3}, {hex(m13)}, {sT3}
                 s_lshr_b32 {sT4}, {hex(m2)}, {sT2}
                 s_xor_b32 {sT4}, {sT4}, {sKC}""")
        else:
            M(f"s_lshr_b32 {sT3}, {sKC}, 1\ns_lshr_b32 {sT4}, {sT2}, 5")
        M(f"""s_and_b32 {sT3}, {sT3}, {0 if dup & 1 else 1}
             s_lshl_b32 {sT3}, {sT3}, 13
             s_add_u32 {sRW}, {sRW}, {sT3}
             s_and_b32 {sT4}, {sT4}, {0 if dup & 2 else 1}
             s_lshl_b32 {sT4}, {sT4}, 13
             s_add_u32 {sR2}, {sR2}, {sT4}
             s_cmp_ge_u32 s2, 224
             s_cselect_b32 {sRW}, {hex(OOB)}, {sRW}
             s_cselect_b32 {sR2}, {hex(OOB)}, {sR2}
             s_cselect_b32 {sRC}, {hex(OOB)}, {sRC}
             s_cselect_b32 {sKVL}, {hex(OOB)}, {sKVL}
             s_and_b32 {sT3}, {sT2}, 7
             s_cmp_ge_u32 {sT3}, {self.o.get('lt', 4)}
             s_cselect_b32 {sRL}, {sRW}, {hex(OOB)}
             s_cselect_b32 {sRW}, {hex(OOB)}, {sRW}
             s_add_u32 {sZL}, {sKVL}, {8*3584-1024}
             s_and_b32 {sSIG}, {sU}, 15
             s_lshl_b32 {sSIG}, {sSIG}, 8
             s_add_u32 {sSIG}, {sSIG}, {hex(CNT)}
             s_cmp_eq_u32 {sW}, 0
             s_cselect_b32 {sSIG}, {sSIG}, {hex(OOB)}""")
        return M

    def miscB(self):
        M = Seq()
        a, b, c, d = "v208", "v209", "v210", "v211"
        M(f"""s_bfe_u32 {sTB}, s2, {hex(0x10006 if self.o.get('amap', 1) else 0x10007)}
             s_and_b32 {sT3}, {sTA}, 62
             s_add_u32 {sTB}, {sTB}, {sT3}
             s_lshl_b32 {sT4}, {sRQ}, 1
             s_add_u32 {sT4}, {sT4}, {sW}
             s_and_b32 {sT4}, {sT4}, 7
             s_lshl_b32 {sKVL}, {sT4}, 12
             s_add_u32 {sKVL}, {sKVL}, {hex(KVM)}
             s_xor_b32 {bK2}, {sKVL}, 0x4000
             s_lshl_b32 {sT2}, {sTB}, 16
             s_and_b32 {sPQL}, {sT4}, 6
             s_add_u32 {sPQL}, {sPQL}, {sT4}
             s_lshl_b32 {sPQL}, {sPQL}, 12
             s_add_u32 {sPQL}, {sPQL}, {sT2}
             s_add_u32 {sPQL}, {sPQL}, {hex(PQ)}
             s_xor_b32 {sPQL}, {sPQL}, {sP1}
             s_xor_b32 {bQ2}, {sPQL}, 0x8000
             s_lshl_b32 {sT4}, {sT4}, 8
             s_mov_b32 {sZL}, {hex(ZP)}
             s_lshl_b32 {sHST}, {sCB}, 14
             s_add_u32 {sHST}, {sHST}, {sT2}
             s_add_u32 {sHST}, {sHST}, {sWL}
             s_add_u32 {sHST}, {sHST}, {hex(HB)}
             s_xor_b32 {sHST}, {sHST}, {sPE}
             s_lshl_b32 {sSTA}, {sTB}, 4
             s_add_u32 {sSTA}, {sSTA}, {sCB}
             s_lshl_b32 {sSTA}, {sSTA}, 14
             s_add_u32 {sSTA}, {sSTA}, {hex(HH+7168+768)}
             s_xor_b32 {sSTA}, {sSTA}, {sP2}
             s_lshl_b32 {sD}, {sTB}, 2
             s_add_u32 {sD}, {sD}, {sCB}
             s_lshl_b32 {sD}, {sD}, 16
             s_add_u32 {sD}, {sD}, {sXL}
             s_add_u32 {sD}, {sD}, {hex(HH+7168)}
             s_xor_b32 {sD}, {sD}, {sP2}
             v_lshrrev_b32 {b}, 5, v1
             v_and_b32 {a}, 31, v1
             v_lshlrev_b32 {ROWA}, 10, {a}
             v_lshl_add_u32 {ROWA}, {b}, 4, {ROWA}
             v_lshlrev_b32 v41, 3, {a}
             v_lshl_add_u32 v41, {b}, 10, v41
             v_xor_b32 v41, {sT4}, v41
             v_bfe_u32 {c}, v1, 2, 2
             v_and_b32 {a}, 1, v1
             v_lshlrev_b32 {a}, 4, {a}
             v_bfe_u32 {d}, v1, 1, 1
             v_lshl_add_u32 {a}, {d}, 3, {a}
             v_lshl_add_u32 {d}, {b}, 11, {a}
             v_lshl_add_u32 {d}, {c}, 8, {d}
             v_xor_b32 {c}, {sW}, {c}
             v_lshl_add_u32 {d}, {c}, 6, {d}
             v_bfe_u32 {c}, v1, 4, 1
             v_lshl_add_u32 {d}, {c}, 5, {d}""")
        for q in range(4):
            M(f"""s_xor_b32 {sT2}, {sW}, {q}
                 s_lshl_b32 {sT3}, {sT2}, 14
                 v_add_u32 v{WOT+q}, {sT3}, {d}
                 s_lshl_b32 {sT2}, {sT2}, 12
                 s_add_u32 {sT2}, {sT2}, 0x20000
                 v_add_u32 v{OAD+q}, {sT2}, {L16}""")
        M(f"""s_lshl_b32 {sT2}, {sW}, 12
             s_add_u32 {sT2}, {sT2}, {0x20000+16384+3072}
             v_add_u32 {ZBW}, {sT2}, {L4}
             v_xor_b32 {d}, 1, {c}
             v_lshlrev_b32 {d}, 5, {d}
             v_lshl_add_u32 {d}, {b}, 4, {d}
             v_add_u32 {ZBR}, {sT2}, {d}
             v_lshrrev_b32 {d}, 4, v1
             v_lshlrev_b32 {P256}, 8, v1
             v_lshl_add_u32 {P256}, {d}, 27, {P256}
             s_lshl_b32 {bTL}, {sW}, 13
             s_lshr_b32 {sT2}, {sTBL}, {sKC}
             s_and_b32 {sT2}, {sT2}, 0x2000
             s_lshl_b32 {bGP}, {sKC}, 14
             s_add_u32 {bGP}, {bGP}, {sT2}
             s_add_u32 {bGP}, {bGP}, {hex(CNT)}
             s_add_u32 {bRP}, {bGP}, 4096""")
        for k in range(8):
            M(f"v_lshlrev_b32 v{192+2*k}, 16, v{24+k}\nv_and_b32 v{193+2*k}, {sMSKHI}, v{24+k}")
        return M

    def phaseA(self):
        p = self.p
        o = self.o
        pre = o.get('pre', 0)
        if pre:
            nt = " nt" if o.get('xnt', 0) else ""
            p(f"""s_lshl_b32 {sT3}, {sMA}, 2
                 s_add_u32 {sT3}, {sT3}, {sW}
                 s_lshl_b32 {sT3}, {sT3}, 11
                 s_lshl_b32 {sT4}, {sTA}, 16
                 s_add_u32 {sT3}, {sT3}, {sT4}
                 s_lshl_b32 {sT4}, s2, 2
                 s_add_u32 {sT4}, {sT4}, {sW}
                 s_mul_i32 {sT4}, {sT4}, 1536
                 v_lshrrev_b32 v196, 2, v1
                 v_lshlrev_b32 v196, 7, v196
                 v_min_u32 v197, 1408, v196""")
            if pre & 1:
                p(f"buffer_load_dword v194, v196, {X}, {sT3} offen{nt}")
            if pre & 2:
                p(f"buffer_load_dword v195, v197, {WQKV}, {sT4} offen")
        p.extend(flat(self.dmaA(0)))
        p(f"v_lshlrev_b32 {L16}, 4, v1")
        if o.get('codepf', 1):
            p(f"""s_getpc_b64 s[70:71]
                 s_lshl_b32 {sT3}, {sU}, 2
                 s_add_u32 {sT3}, {sT3}, {sW}
                 s_lshl_b32 {sT4}, {sT3}, 8
                 v_lshrrev_b32 v200, 5, v1
                 v_lshl_add_u32 v200, v200, 7, {sT4}
                 v_min_u32 v200, CODE_PF_MAX, v200
                 global_load_dword v201, v200, s[70:71]""")
        tch = Seq()
        touch = o.get('touch', 3)
        tch(f"""s_lshl_b32 {sCc}, s2, 2
             s_add_u32 {sCc}, {sCc}, {sW}
             s_lshr_b32 {sT4}, {sCc}, 1
             s_mul_i32 {sT4}, {sT4}, 3072
             s_and_b32 {sT5}, {sCc}, 1
             s_lshl_b32 {sT5}, {sT5}, 11
             s_add_u32 {sT4}, {sT4}, {sT5}
             s_lshl_b32 {sCc}, {sCc}, 9
             v_lshrrev_b32 v202, 3, v1
             v_lshlrev_b32 v202, 7, v202
             v_lshrrev_b32 v42, 4, v1
             v_lshlrev_b32 v42, 7, v42""")
        if touch & 4:
            tch(f"""s_lshl_b32 {sT3}, {sU}, 2
                 s_add_u32 {sT3}, {sT3}, {sW}
                 s_mul_i32 {sT3}, {sT3}, {4*3072}
                 s_and_b32 {sT5}, s2, {1 if o.get('amap', 1) else 0}
                 s_lshl_b32 {sT5}, {sT5}, 24
                 s_add_u32 {sT3}, {sT3}, {sT5}
                 v_min_u32 v200, 11, v1
                 v_lshlrev_b32 v200, 10, v200
                 buffer_load_dword v198, v200, {WQKV}, {sT3} offen offset:384""")
        if touch & 1:
            tch(f"buffer_load_dword v203, v202, {WQKV}, {sT4} offen")
        tat = o.get('tat', -1)
        if tat == -2:
            p.extend(tch)
        d1 = self.dmaA(1)
        n1 = o.get('d1', 4)
        p.extend(flat(d1[:n1]))
        if tat == -1:
            p.extend(tch)
        for srd, src, sz in ((12, 80, 0x80000), (16, 84, 0x1C0000), (20, 86, 0x1C0000), (24, 88, 0x1C0000),
                             (28, 90, 0x200000), (36, 92, 256), (32, 94, WS_SIZE)):
            p(f"s_mov_b64 s[{srd}:{srd+1}], s[{src}:{src+1}]\ns_mov_b32 s{srd+2}, {hex(sz)}\ns_mov_b32 s{srd+3}, 0x20000")
        tlb = o.get('tlb', 0)
        if tlb:
            p(f"""v_min_u32 v194, 1, v1
                 v_lshlrev_b32 v194, 27, v194
                 s_lshl_b32 {sT3}, {sW}, 5
                 s_add_u32 {sT3}, {sT3}, {sU}
                 s_lshl_b32 {sT4}, {sT3}, 21
                 buffer_load_dword v195, v194, {WS}, {sT4} offen""")
            if tlb & 2:
                for k, srd in enumerate((OUT, W1, W3, W2, WO, DBG)):
                    p(f"""s_cmp_eq_u32 {sT3}, {24+k}
                         s_cselect_b32 {sT4}, 0, {hex(OOB)}
                         buffer_load_dword v{188+k}, v194, {srd}, {sT4} offen""")
        if o.get('wsoff'):
            p(f"s_add_u32 s32, s32, {o['wsoff'] << 20}\ns_addc_u32 s33, s33, 0")
        Lz = self.lab("z")
        p(f"""s_lshl_b32 {sB}, {sW}, 8
             s_add_u32 {sB}, {sB}, 224
             s_cmp_lt_u32 s2, {sB}
             s_cbranch_scc1 {Lz}""")
        padr = f"""s_sub_u32 {sT2}, s2, 224
             s_and_b32 {sT1}, {sU}, 1
             s_lshl_b32 {sT3}, {sT1}, 5
             s_add_u32 {sT3}, {sT3}, {sT2}
             s_lshl_b32 {sT3}, {sT3}, 8
             s_add_u32 {sT3}, {sT3}, {hex(PROBE)}
             s_xor_b32 {sT4}, {sT3}, 0x2000
             s_waitcnt lgkmcnt(0)
             s_buffer_load_dword {sT5}, {WS}, {sT3} glc
             s_buffer_load_dword {sT5}, {WS}, {sT4} glc"""
        p(f"""{padr.replace(sT5, sD)}
             v_mov_b32 v16, 0
             v_mov_b32 v17, 0
             v_mov_b32 v18, 0
             v_mov_b32 v19, 0
             s_lshl_b32 {sT4}, {sT2}, 11
             s_lshl_b32 {sT3}, {sT2}, 12
             s_add_u32 {sT3}, {sT3}, {hex(CNT)}
             s_add_u32 {sT4}, {sT4}, {hex(KVM)}
             buffer_store_dwordx4 v[16:19], {L16}, {WS}, {sT4} offen sc1
             buffer_store_dwordx4 v[16:19], {L16}, {WS}, {sT4} offen offset:1024 sc1
             buffer_store_dwordx4 v[16:19], {L16}, {WS}, {sT3} offen sc1
             buffer_store_dwordx4 v[16:19], {L16}, {WS}, {sT3} offen offset:1024 sc1
             buffer_store_dwordx4 v[16:19], {L16}, {WS}, {sT3} offen offset:2048 sc1
             buffer_store_dwordx4 v[16:19], {L16}, {WS}, {sT3} offen offset:3072 sc1""", cond=True)
        p(f"{Lz}:")
        probe = f"""{padr}
             s_getreg_b32 {sT4}, hwreg(HW_REG_XCC_ID, 2, 1)
             s_waitcnt lgkmcnt(1)
             s_nop {o.get('pnop', 15)}
             s_getreg_b32 {sT2}, hwreg(HW_REG_IB_STS, 8, 4)
             s_waitcnt lgkmcnt(0)
             s_min_u32 {sT2}, {sT2}, 1
             s_xor_b32 {sT1}, {sT1}, {sT4}
             s_cmp_lg_u32 {sT1}, {sT2}
             s_cselect_b32 {sT2}, 64, 4096
             s_add_u32 {sT2}, {sT2}, 1
             s_add_u32 {sT5}, {sKC}, 18
             s_lshl_b32 {sT4}, {sT4}, {sT5}
             s_cmp_eq_u32 {sU}, 28
             s_cselect_b32 {sT4}, {sT4}, 0
             s_add_u32 {sT2}, {sT2}, {sT4}
             v_mov_b32 v46, {sT2}"""
        MA = self.miscA()
        ma = o.get('ma', 999)
        p.extend(MA[:ma])
        if ma < len(MA):
            p("FENCE")
            p.extend(flat(d1[n1:]) + flat(self.dmaA(2)))
            p("FENCE")
            p.extend(MA[ma:])
        if o.get('pat', 1) == 0:
            Lz = self.lab("z")
            p(f"s_cmp_lt_u32 s2, {sB}\ns_cbranch_scc1 {Lz}")
            p(probe, cond=True)
            p(f"{Lz}:")
            probe = ""
        if tat == 0:
            p.extend(tch)
        SEL, ONES = v(16, 4), v(20, 4)
        XS, XQ0, XQ1, CSA, ZA = 252, 248, 32, 36, 44
        AK, AV, AQ, RB, AKV = 48, 64, 80, 96, 112
        WR = 128
        XM, WP, RS_ = 160, 164, 176

        def wread(t, s, dst=None):
            n = t * 32 + s
            addr = (TRK, TRP, TRK)[t]
            return trpair(('v', WR + 4 * (n % 6) if dst is None else dst), f"v{addr+(s&3)}", (s >> 2) * 8192, 512)

        def wf(t, s):
            return v(WR + 4 * ((t * 32 + s) % 6), 4)

        def csm(f, first):
            return mf16(CSA, SEL, f, "0" if first else None)

        def cswrite(t):
            S = split2(41, CSA, 41)
            S(f"ds_write_b32 {XCW}, v41 offset:{t*512}", tag=f"x{t}")
            return list(S)

        def csget(t):
            return [Inst(f"ds_read_b64 {v(WP+4*t,2)}, {XCR} offset:{t*512}")]

        def xread(s):
            return [Inst(f"ds_read_b128 {a_(4*s,4)}, v{10+(s&3)} offset:{(s>>2)*8192}")]

        if ma >= len(MA):
            p.extend(flat(d1[n1:]))
        d2 = self.dmaA(2) if ma >= len(MA) else []
        n2_ = o.get('d2', 4)
        p.extend(flat(d2[:n2_]))
        self.stamp("A_issued")
        p("WAITTAG A0\ns_barrier")
        self.stamp("A_c0")
        p.extend(xread(0) + wread(0, 0) + xread(1) + wread(0, 1))
        p.extend(flat(d2[n2_:]))
        ad = o.get('ad', 4)
        nv1 = o.get('nv1', 14)
        vq = flat([self.dmaW(1, k) for k in range(8)])
        pend = flat([self.dmaA(k) for k in range(3, ad)])
        for s in range(32):
            c, j = s >> 2, s & 3
            xf = a_(4 * s, 4)
            z = "0" if s == 0 else None
            p.append(mf32(AK, xf, wf(0, s), z))
            if j == 2 and c < 7:
                p(f"WAITTAG A{c+1}\ns_barrier")
                self.stamp(f"a{c+1}")
                assert not pend
                if c == 1:
                    p(f"s_cmp_ge_u32 s2, {sB}")
                    self.ool("s_cbranch_scc1", f"{probe}\nbuffer_atomic_add v46, {FA1}, {DBG}, 0 offen sc1")
                if c + 1 == tat:
                    p.extend(tch)
                if c + ad < 8:
                    pend = self.dmaA(c + ad)
                else:
                    pend, vq = vq[:4], vq[4:]
            if s == 30:
                p("WAITTAG V1\ns_barrier")
                k = max(0, nv1 - (16 - len(vq)))
                assert k <= 2
                pend, vq = vq[:k], vq[k:]
            if s + 2 < 32:
                p.extend(xread(s + 2) + wread(0, s + 2))
            else:
                p.extend(wread(1, s + 2 - 32))
            if s == 28:
                p("ds_read_b128 v[24:27], v14\nds_read_b128 v[28:31], v15", tag="xres")
            for _ in range(2 * (ad - 3) if s < 2 else 1):
                if pend:
                    p.extend(pend.pop(0))
            if j % 2 == 0:
                p.append(csm(wf(0, s), s == 0))
            if j < 2:
                p.append(mf16(XS, SEL, xf, z))
                p.append(mf4(XQ0, a_(4 * s, 2), a_(4 * s, 2), z))
                p.append(mf4(XQ1, a_(4 * s + 2, 2), a_(4 * s + 2, 2), z))
            if s == 30:
                for k in range(4):
                    p(f"v_add_f32 v{XQ0+k}, v{XQ0+k}, v{XQ1+k}")
                p(f"""v_cndmask_b32 v197, v{XQ0}, v{XQ0+1}, s[96:97]
                     v_cndmask_b32 v197, v197, v{XQ0+2}, s[98:99]
                     v_cndmask_b32 v197, v197, v{XQ0+3}, s[70:71]
                     v_mov_b32 v196, v197""")
            if s == 31:
                p(f"""v_permlane32_swap_b32 v196, v197
                     v_add_f32 v{XS+1}, v196, v197
                     ds_write_b64 {STW}, {v(XS,2)}""")
                p.extend(cswrite(0))
        assert not pend
        self.stamp("A_loop")
        CT = (204, 208, ZA)
        kb = o.get('kb', 9)

        def tilepass(t, acc, order):
            nm = "VQ"[t - 1]
            G = []
            for s in range(32):
                A_, B_ = (a_(4 * s, 4), wf(t, s)) if order == 0 else (wf(t, s), a_(4 * s, 4))
                g = Seq()
                g.append(mf32(acc, A_, B_, "0" if s == 0 else None))
                if t == 1 and s == 2:
                    g("WAITTAG x0 xres" + (" V3" if ad >= 4 else "") + "\ns_barrier")
                    g(f"ds_read_b64 v[198:199], {STR}")
                    g.extend(csget(0))
                if t == 2 and o.get('fb', 0) & 2:
                    if s == 4:
                        g("WAITTAG Q3\ns_barrier")
                    if s == kb:
                        assert kb <= 12
                        g("WAITTAG kvp Q7\ns_barrier")
                elif t == 1 and o.get('fb', 0) & 1:
                    if s == 12:
                        g("WAITTAG V7\ns_barrier")
                elif s % 8 == 4 and s < 28 and ((t, s) != (1, 4) or ad < 4):
                    g(f"WAITTAG {nm}{(s+4)//4+1} kvp\ns_barrier")
                elif t == 2 and s == kb:
                    g("WAITTAG kvp\ns_barrier")
                if s == 28:
                    g(f"WAITTAG x{t}" + (" Q1" if t == 1 else "") + "\ns_barrier")
                    g.extend(csget(t))
                if t == 1 and s < 2:
                    g.extend(wread(t, 2 + 2 * s) + wread(t, 3 + 2 * s))
                elif s + 4 < 32:
                    g.extend(wread(t, s + 4))
                elif t == 1:
                    g.extend(wread(2, s + 4 - 32))
                if s in (20, 21, 22):
                    g.extend(wread(t, 26 + 2 * (s - 20), CT[s - 20]))
                if s % 2 == 0 and s < 26 and (t, s) != (1, 0):
                    g.append(csm(wf(t, s), (t, s) == (2, 0)))
                if (t, s) == (1, 1):
                    g.append(csm(wf(t, 0), True))
                if s in (23, 24, 25):
                    g.append(csm(v(CT[s - 23], 4), False))
                if s == 26:
                    g.extend(cswrite(t))
                G.append(list(g))
            return G

        def phi(acc, scale, T, dst):
            S = Seq()
            for h in range(2):
                r = range(8 * h, 8 * h + 8)
                for i in r:
                    S(f"v_fma_f32 v{acc+i}, v{acc+i}, {scale(i)}, {sEPS6}")
                for i in r:
                    S(f"v_mul_f32 v{T+(i&7)}, {sLOG2E}, v{acc+i}")
                for i in r:
                    S(f"v_exp_f32_e64 v{T+(i&7)}, v{T+(i&7)} clamp")
                    S(f"v_max_f32 v{acc+i}, {sEPS6}, v{acc+i}")
                for i in r:
                    S(f"v_add_f32 v{acc+i}, v{acc+i}, v{T+(i&7)}")
                for i in range(4 * h, 4 * h + 4):
                    S(f"v_cvt_pk_bf16_f32 v{dst+i}, v{acc+2*i}, v{acc+2*i+1}")
            return S
        E = Seq()
        E(f"""v_add_f32 v198, v198, v{XS}
             v_add_f32 v197, v199, v{XS+1}
             v_mul_f32 v199, 0x3b000000, v198
             v_mul_f32 v197, 0x3b000000, v197
             v_cvt_pk_bf16_f32 v198, -v199, -v199
             v_fma_f32 v197, -v199, v199, v197
             v_cndmask_b32 v{XM}, v198, 0, {sHILANES}
             v_cndmask_b32 v{XM+1}, v198, 0, {sHILANES}
             v_max_f32 v197, 0, v197
             v_add_f32 v197, 0x3727c5ac, v197
             v_rsq_f32 v40, v197""")
        E.append(mf32(AK, v(XM, 4), v(WP, 4)))
        E.extend(split2(RS_, 40, 198))
        E(f"v_cndmask_b32 v{RS_}, v{RS_}, 0, {sHILANES}")
        E.append(mf32(RB, v(RS_, 4), ONES, "0"))
        PK = phi(AK, lambda i: f"v{RB+i}", 196, 180)
        G = tilepass(1, AV, 0)
        v2e = o.get('v2e', 2)
        qq = flat([self.dmaW(2, k) for k in range(8)])
        nq2 = o.get('nq2', 16)
        G = weave(G, vq, 0, v2e)
        G = weave(G, qq[:nq2], max(3, v2e), o.get('q2end', 30))
        G[0] += [Inst(f"v_subrev_u32 v{TRK+j}, {hex(VB)}, v{TRP+j}") for j in range(4)]
        G[12] += [Inst(f"buffer_load_dword v5, {FA1}, {DBG}, 0 offen sc1")]
        n2 = o.get('pk2', 88)
        G = weave(G, list(E), 4, 8)
        G = weave(G, PK[:n2], 10, 32)
        for k in range(3, 31, 4):
            G[k] += self.sub(lambda: self.stamp(f"v{k}"))
        p.extend(flat(G))
        p.append(mf32(AV, v(XM, 4), v(WP + 4, 4)))
        self.stamp("A_v")
        if o.get('skew') is not None:
            p(f"""s_not_b32 s101, s100
                 v_mov_b32 v43, s101
                 buffer_atomic_umax v43, {FA1}, {DBG}, 0 offen offset:128 sc1
                 v_mov_b32 v41, s100
                 buffer_atomic_umax v41, {FA1}, {DBG}, 0 offen offset:192 sc1""")
        E = Seq()
        E.extend(PK[n2:])
        for i in range(16):
            E(f"v_mul_f32 v{AV+i}, v{AV+i}, v{RB+i}")
        for i in range(8):
            E(f"v_cvt_pk_bf16_f32 v{188+i}, v{AV+2*i}, v{AV+2*i+1}")
        G = tilepass(2, AQ, 1)
        rq = self.rload()
        if o.get('nor'):
            rq = []
        if touch & 2:
            rq = rq[:2] + [[Inst(f"buffer_load_dword v42, v42, {WO}, {sCc} offen")]] + rq[2:]
        e2 = o.get('e2', 0)
        R2T = trpair(('a', 144), RT2A, 4096, 512) + trpair(('a', 148), RT2B, 4096, 512)
        R2S = [Inst(f"buffer_store_dwordx4 a[144:147], {L16}, {WS}, {sR2} offen sc1", tag="pub1" if e2 else "pubR"),
               Inst(f"buffer_store_dwordx4 a[148:151], {L16}, {WS}, {sR2} offen offset:1024 sc1", tag="pub1" if e2 else "pubR")]
        dup = o.get('dup', 2)
        if dup & 2:
            assert not e2
            R2S += [Inst(x.text.replace(L16, L16H), tag=x.tag) for x in R2S]
        if e2:
            G[e2] += [Inst("WAITTAG RL2")] + R2T
            G[e2 + 3] += R2S[:1]
            G[e2 + 5] += R2S[1:]
            R2T, R2S = [], []
        r0 = o.get('r0', 0)
        if nq2 < 16:
            G = weave(G, qq[nq2:], 0, r0)
        G = weave(G, rq, r0, o.get('r1', r0 + 7))
        if o.get('rwait'):
            G[o.get('r1', 7)] += list(Seq()("WAITALL vm")) + self.sub(lambda: self.stamp("A_rland"))
        woq = flat([self.dmaWO(q) for q in range(8)])
        nw3 = o.get('wo3', 0)
        G[13] += [Inst(f"s_lshl_b32 {sB}, {sW}, 12")]
        if nw3:
            G = weave(G, woq[:nw3], o.get('wo30', 26), 32)
        G = weave(G, list(E), 0, kb - 5)
        G[kb - 5] += [mf32(AKV, v(180, 4), v(188, 4), "0"), mf32(AKV, v(184, 4), v(192, 4)),
                 mf16(ZA, SEL, v(180, 4), "0"), mf16(ZA, SEL, v(184, 4))]
        G[kb - 4] += self.sub(lambda: self.spin("v5", None, "0", "1", "32", srd=DBG, mode='check', sleep=4, field=63))
        S = Seq()
        S(f"""v_readfirstlane_b32 {sT2}, v5
             s_bfe_u32 {sT3}, {sT2}, 0x60006
             s_bfe_u32 {sT4}, {sT2}, 0x6000c
             s_lshr_b32 {sT2}, {sT2}, 5""")
        S = [[i] for i in S] + [list(Seq()(f"""s_cmp_gt_u32 {sT4}, {sT3}
             s_cselect_b32 {sT3}, {'0, -1' if o.get('parx') else '-1, 0'}"""))]
        S += [[i] for i in Seq()(f"""s_xor_b32 {sTBL}, {sT2}, {sT3}
             s_and_b32 {sT2}, {sKC}, {6 if o.get('amap', 1) else 7}
             s_lshr_b32 {sT2}, {sTBL}, {sT2}
             s_lshl_b32 {sT3}, {sG}, 10
             s_xor_b32 {sP1}, {sT2}, {sT3}
             s_and_b32 {sP1}, {sP1}, 0x2000
             s_xor_b32 {sPQS}, {sPQS}, {sP1}
             s_lshr_b32 {sPE}, {sTBL}, 3
             s_and_b32 {sPE}, {sPE}, 0x2000
             s_lshl_b32 {sT4}, {sG}, 12
             s_xor_b32 {sP2}, {sT3}, {sT4}
             s_and_b32 {sP2}, {sP2}, 0x2000
             s_xor_b32 {sP2}, {sP2}, {sPE}
             s_xor_b32 {sHS}, {sHS}, {sP2}
             v_mov_b32 v176, 0
             v_lshrrev_b32_e64 {P4K}, v1, {sTBL}
             v_and_b32 {P4K}, 0x2000, {P4K}
             v_lshl_add_u32 {P4K}, v1, 14, {P4K}
             v_or_b32 {P4K}, {P4K}, {LM8}""")]
        S += [[Inst(f"buffer_store_dwordx4 v[176:179], {L16}, {WS}, {sHS} offen offset:3072 sc1", tag="pub1")]]
        G = weave(G, S, 19, 31)
        S = Seq()
        for i in range(8):
            S(f"v_cndmask_b32 v{196+i}, v{AKV+i}, v{AKV+8+i}, {sB4LANES}")
        S(f"""ds_write_b128 {KVW}, v[196:199]
             ds_write_b128 {KVW}, v[200:203] offset:512""")
        S(f"ds_write_b32 {ZW}, v{ZA}", tag="kvp")
        G = weave(G, list(S), kb - 3, kb - 1)
        S = Seq()
        for k in range(4):
            S(f"ds_read2st64_b32 v[{112+2*k}:{113+2*k}], {KVR} offset0:{k} offset1:{k+8}")
        S(f"ds_read2_b32 v[120:121], {ZR} offset0:0 offset1:32")
        G = weave(G, list(S), kb, kb + 2)
        S = Seq()
        for k in range(5):
            S(f"v_add_f32 v{112+2*k}, v{112+2*k}, v{113+2*k}")
        for k in range(4):
            S(f"buffer_atomic_add_f32 v{112+2*k}, {L4}, {WS}, {sKVA} offen offset:{k*256}", tag="pub1")
        S(f"buffer_atomic_add_f32 v120, {ZAT}, {WS}, {sZA} offen", tag="pub1")
        G = weave(G, list(S), kb + 3, kb + 8)
        for k in range(3, 31, 4):
            G[k] += self.sub(lambda: self.stamp(f"v{k}"))
        p.extend(flat(G))
        p.append(mf32(AQ, v(WP + 8, 4), v(XM, 4)))
        self.stamp("A_q")
        woq = woq[nw3:]
        t1, t3, t2 = o.get('wot1', 0), o.get('wot3', 6), o.get('wot2', 2)
        assert nw3 + t1 == 0
        p.extend(flat(woq[:t1]))
        woq = woq[t1:]
        ph = phi(AQ, lambda i: "v40", 196, 180)
        h = len(ph) // 2
        p.extend(ph[:h])
        p(f"buffer_store_dwordx4 v[180:183], {L16}, {WS}, {sPQS} offen sc1", tag="pub1")
        p.extend(ph[h:])
        p(f"buffer_store_dwordx4 v[184:187], {L16}, {WS}, {sPQS} offen offset:1024 sc1", tag="pub1")
        self.stamp("A_pqst")
        p("s_barrier")
        MB = list(self.miscB()) + self.miscC()
        nb = o.get('mb1', 140)
        assert nb >= len(self.miscB())
        p.extend(flat(woq[:t3]))
        p("FENCE")
        p.extend(MB[:nb])
        p("FENCE")
        p.extend(flat(woq[t3:t3 + t2]))
        woq = woq[t3 + t2:]
        p("WAITTAG pub1\ns_barrier")
        p(f"buffer_atomic_add v4, {P4K}, {WS}, {sSIG} offen sc1")
        self.stamp("A_sig")
        for s in range(4):
            p.extend(trpair(('a', 128 + 4 * s), RT13, s * 6144, 512))
        p.extend(R2T)
        p(f"v_add_u32 {L16H}, 0x2000, {L16}")
        t4 = o.get('wot4', 16)
        assert t3 + t2 + t4 >= 16
        t5 = o.get('wot5', 8)
        p.extend(flat(woq[:t5]))
        for s in range(4):
            p.append(mf16(RCS, SEL, a_(128 + 4 * s, 4), "0" if s == 0 else None))
            p(f"buffer_store_dwordx4 {a_(128+4*s,4)}, {L16}, {WS}, {sRW} offen offset:{s*1024} {o.get('rfl', 'sc1').replace('_', ' ')}", tag=f"pubR{s}")
            if dup & 1:
                p(f"buffer_store_dwordx4 {a_(128+4*s,4)}, {L16H}, {WS}, {sRW} offen offset:{s*1024} sc1", tag=f"pubR{s}")
        self.late = []
        if o.get('late', 1):
            assert not dup & 1
            if o.get('lt', 4) < 7:
                self.late += [Inst(f"buffer_store_dwordx4 {a_(128+4*s,4)}, {L16}, {WS}, {sRL} offen offset:{s*1024} sc1") for s in range(4)]
            self.late += R2S
            for x in self.late:
                x.tag = "pub2"
        else:
            assert o.get('lt', 4) >= 7
            p.extend(R2S)
        p(f"buffer_atomic_add_f32 v{RCS}, {CSAT}, {WS}, {sRC} offen", tag="pubC")
        self.stamp("A_rst")
        p(f"s_add_u32 {sSIG}, {sSIG}, 4096")
        p.extend(flat(woq[t5:t4]))
        self.wo_rest = woq[t4:]
        self.mb_rest = MB[nb:]

    def dmaT(self, t, slot):
        g = []
        for h in range(2):
            S = Seq()
            S(f"s_add_u32 m0, {bTL}, {slot*32768+h*4096}\ns_add_u32 {sT0}, {bTX if self.o.get('grp', 1) and par13(t) and not self.o.get('dup', 2) & 1 else bTA}, {t*65536+h*4096}")
            for k in range(4):
                S(f"buffer_load_dwordx4 {L16}, {WS}, {sT0} offen offset:{k*1024} sc1 lds", tag=f"T{t}")
                g.append(list(S))
                S = Seq()
            ctx(g[-4:])
        return g

    def phaseB(self):
        p = self.p
        o = self.o
        AH = 192
        W = [trpair(('a', 4 * i), f"v{WOT+((i>>2)&3)}", (i & 3) * 4096, 1024) for i in range(32)]
        PQR = 224
        LD = [Inst(f"buffer_load_dwordx2 v[32:33], v41, {WS}, {sZL} offen sc1")]
        for q in range(4):
            for i in (2 * q, 2 * q + 1):
                LD.append(Inst(f"buffer_load_dwordx4 {v(48+4*i,4)}, {L16}, {WS}, {sKVL if i < 4 else bK2} offen offset:{(i&3)*1024} sc1"))
            for i in (2 * q, 2 * q + 1):
                LD.append(Inst(f"buffer_load_dwordx4 {a_(PQR+4*i,4)}, {L16}, {WS}, {sPQL if i < 4 else bQ2} offen offset:{(i&3)*1024} sc1"))
        ZB = Seq()(f"v_cvt_pk_bf16_f32 v32, v32, v33\nds_write_b32 {ZBW}, v32")
        for k in range(4):
            ZB(f"ds_read_b128 {v(96+4*k,4)}, {ZBR} offset:{k*64}")
        p("WAITTAG WO0" + (" pubC" if o.get('er', 2) == 2 else "") + "\ns_barrier")
        if o.get('er', 2) == 2:
            p(f"buffer_atomic_add v4, {P4K}, {WS}, {sSIG} offen sc1")
        self.stamp("B_wo")
        pm = o.get('pm', 0)
        pl = list(Seq()(f"""s_cmp_eq_u32 {sW}, 1
             s_cselect_b32 {bGP}, {bGP}, {hex(OOB)}
             s_cselect_b64 s[26:27], 0xffff, 0
             buffer_load_dword v5, {P256}, {WS}, {bGP} offen sc1"""))
        if pm == 2:
            p.extend(pl)
        p.extend(flat(W[:16]))
        if pm == 1:
            p.extend(pl)
        for q in range(4):
            p(f"v_add_u32 v{WOT+q}, 0x10000, v{WOT+q}")
        mb2 = o.get('mb2', 99)
        p.extend(self.mb_rest[:mb2])
        er = o.get('er', 2)
        rsig = Inst(f"buffer_atomic_add v4, {P4K}, {WS}, {sSIG} offen sc1")
        if er == 1:
            p("WAITTAG pubC\ns_barrier")
            p.append(rsig)
        self.stamp("B_prepoll")
        if pm:
            self.spin("v5", P256, bGP, "s[26:27]", "16", sleep=o.get('sleep1', 1), mode='check')
        else:
            self.spin("v5", P256, bGP, "0xffff", "16", sleep=o.get('sleep1', 1), wave=o.get('pw', 1))
        if o.get('seg0'):
            p("WAITTAG WO1x pubR0")
            self.stamp("B_r0")
            p("WAITTAG pubR3")
            self.stamp("B_r3")
            p("WAITTAG pubR")
            self.stamp("B_r5")
        p("WAITTAG pubC")
        self.stamp("B_rack")
        p("WAITALL lgkm\ns_barrier")
        self.stamp("B_sync1")
        LD.insert(o.get('rsat', 0), Inst("FENCE") if er else rsig)
        nl0 = o.get('nl0', 14)
        p.extend(LD[:10] + [Inst('FENCE')] + self.mb_rest[mb2:] + ZB + LD[10:nl0])

        def prep(q):
            S = Seq()
            for k in range(4):
                S(f"v_cvt_pk_bf16_f32 v{80+4*q+k}, v{48+8*q+2*k}, v{48+8*q+2*k+1}")
            for k in range(4):
                S(f"v_cndmask_b32 v{112+8*q+k}, v{80+4*q+k}, v{96+4*q+k}, {sB4LANES}")
            for k in range(4):
                S(f"v_cndmask_b32 v{116+8*q+k}, v{96+4*q+k}, v{80+4*q+k}, {sB4LANES}")
            return S
        NA = [144, 160, 176]
        steps = [(pr + k, t) for pr in (0, 2) for t in range(3) for k in range(2)]
        d16 = o.get('d16', 1)
        steps += [(pr, t) for t in (3, 4, 5, 6) for pr in range(4)]
        w2o = [f"{cW2x if o.get('grp', 1) and par2(pr, t) and not o.get('dup', 2) & 2 else cW2}, {pr * 32768 + (t >> 2) * 16384 + (t & 3) * 2048}" for pr, t in steps]
        hho = [pr * 16384 + t * 1024 for pr, t in steps]
        w2l = []
        for i in range(16):
            S = Seq()
            if d16:
                ad = W2B if i & 1 else W2A
                if i % 2 == 0:
                    S(f"s_add_u32 {sKC}, {w2o[i]}")
                S(f"buffer_load_dwordx4 {a_(128+8*i,4)}, {ad}, {WS}, {sKC} offen sc1")
                w2l.append(list(S))
                w2l.append([Inst(f"buffer_load_dwordx4 {a_(132+8*i,4)}, {ad}, {WS}, {sKC} offen offset:256 sc1")])
                if i & 1:
                    ctx(w2l[-4:])
                continue
            S(f"s_add_u32 {sKC}, {w2o[i]}")
            S(f"buffer_load_dwordx4 {a_(128+8*i,4)}, {W2A}, {WS}, {sKC} offen sc1")
            w2l.append(list(S))
            w2l.append([Inst(f"buffer_load_dwordx4 {a_(132+8*i,4)}, {W2B}, {WS}, {sKC} offen sc1")])
            ctx(w2l[-2:])
        self.steps, self.w2o, self.hho = steps, w2o, hho
        nw1, nw2 = (o.get('nw1', 6), o.get('nw2', 6)) if o.get('e2', 0) else (0, 0)
        assert nw1 <= 24
        W1, W2_, w2l = w2l[:nw1], w2l[nw1:nw1 + nw2], w2l[nw1 + nw2:]
        self.n_w2rest = len(w2l)
        TQ = flat([self.dmaT(t, t) for t in range(2)]) + w2l
        n2, n3 = o.get('tq2', 8), o.get('tq3', 8)

        def num(i):
            return mf32(NA[i % 3], v(112 + 4 * i, 4), a_(PQR + 4 * i, 4), "0")

        def fin(i):
            n = NA[i % 3] + 8 * (i & 1)
            d = NA[i % 3] + 8 * (1 - (i & 1))
            S = Seq()
            S(f"v_add_f32 v{d}, {sEPS6}, v{d}\nv_rcp_f32 v{d}, v{d}")
            for k in range(8):
                S(f"v_mul_f32 v{n+k}, v{n+k}, v{d}")
            for k in range(4):
                S(f"v_cvt_pk_bf16_f32 v{48+4*i+k}, v{n+2*k}, v{n+2*k+1}")
            return S

        def owrite(i):
            return Inst(f"ds_write_b128 v{OAD}, {v(48+4*i,4)} offset:{(i>>2)*16384+(i&3)*1024}", tag=f"o{i}")

        OR = (16, 20, 36, 44, 208, 248)

        def oreg(k):
            return OR[k % 6] if k < 16 else 80 + 4 * (k & 7)

        def oread(k):
            return Inst(f"ds_read_b128 {v(oreg(k),4)}, v{OAD+((k>>2)&3)} offset:{(k>>4)*16384+(k&3)*1024}")

        def acc(k):
            own = (k & 12) == 0
            return mf32(AH, a_(4 * k, 4), v(48 + 4 * ((k >> 4) * 4 + (k & 3)) if own else oreg(k), 4))
        self.stamp("bz")
        p.extend(prep(0))
        self.stamp("bp")
        p.append(num(0))
        p.append(num(1))
        VM = [[x] for x in LD[nl0:]] + list(self.wo_rest)
        per = o.get('per', 3)
        rl, rc = o.get('rl', 4), o.get('rc', 0)
        kk = 4
        l0, nlate = o.get('l0', 4), len(self.late)
        for i in range(8):
            if i + 2 < 8:
                if i % 2 == 0:
                    p.extend(prep(i // 2 + 1))
                p.append(num(i + 2))
            if i >= 1:
                p.append(owrite(i - 1))
            if i == 5:
                p("WAITTAG o3\ns_barrier")
                p.extend([oread(k) for k in range(4, 9)])
            for _ in range(per):
                if VM:
                    p.extend(VM.pop(0))
            if i == rl:
                p(f"buffer_load_dword v5, {P256}, {WS}, {bRP} offen sc1")
            if i >= l0:
                for _ in range(-(-nlate // (8 - l0))):
                    if self.late:
                        p.append(self.late.pop(0))
            if i >= 5:
                for _ in range(-(-nw1 // 3)):
                    if W1:
                        p.extend(W1.pop(0))
            F = fin(i)
            self.stamp(f"b{i}")
            if i < 5:
                p.extend(F[:7])
                if i >= 1:
                    p.append(acc(i - 1))
                p.extend(F[7:])
            else:
                cuts = (8, 14) if i == 5 else (2, 6, 10, 14)
                lo = 0
                for c in cuts:
                    p.extend(F[lo:c])
                    lo = c
                    p.append(acc(kk))
                    if kk + 5 < 16:
                        p.append(oread(kk + 5))
                    kk += 1
        p.append(owrite(7))
        assert not VM
        self.stamp("B_st1")
        p.append(acc(kk))
        p("WAITTAG WO1 o7\ns_barrier")
        for k in range(16, 20):
            p.extend(W[k])
        assert kk == 14
        G = [[acc(15)] + W[20] + [oread(20)]]
        for k in range(16, 32):
            g = [acc(k)]
            if k + 5 < 32:
                g += W[k + 5] + [oread(k + 5)]
            G.append(g)
        if rl >= 8:
            G[rl - 8] += [Inst(f"buffer_load_dword v5, {P256}, {WS}, {bRP} offen sc1")]
        G[rc] += self.sub(lambda: self.spin("v5", P256, bRP, "0xffff", "16", mode='check', sleep=2))
        G = weave(G, W2_, 0, max(rc, 1))
        G = weave(G, TQ[:n2], rc + 1, 17)
        p.extend(flat(G))
        for k in range(8):
            p(f"v_cvt_pk_bf16_f32 v{48+k}, v{AH+2*k}, v{AH+2*k+1}")
            if k == 3:
                p(f"buffer_store_dwordx4 v[48:51], {L16}, {WS}, {sHST} offen sc1", tag="pub2")
        p(f"buffer_store_dwordx4 v[52:55], {L16}, {WS}, {sHST} offen offset:1024 sc1", tag="pub2")
        p(f"v_add_f32 v56, v{AH}, v{AH+1}\nv_mul_f32 v57, v{AH}, v{AH}\nv_add_f32 v58, v{AH+2}, v{AH+3}\nv_mul_f32 v59, v{AH+1}, v{AH+1}")
        for k in range(2, 16):
            if k >= 4:
                p(f"v_add_f32 v{56+2*(k&1)}, v{56+2*(k&1)}, v{AH+k}")
            p(f"v_fmac_f32 v{57+2*(k&1)}, v{AH+k}, v{AH+k}")
        p("""v_add_f32 v56, v56, v58
             v_add_f32 v57, v57, v59
             v_permlane32_swap_b32 v56, v57
             v_add_f32 v56, v56, v57""")
        p(f"buffer_atomic_add_f32 v56, {L4}, {WS}, {sSTA} offen", tag="pub2")
        self.stamp("B_hst")
        for t in range(7):
            p(f"buffer_load_dword v{160+t}, {CSL}, {WS}, {cCS} offen offset:{t*128} sc1")
        p.extend(flat(TQ[n2:n2 + n3]))
        p(f"WAITTAG pub2\nbuffer_store_dword v4, {FA1}, {WS}, {sD} offen offset:512 sc1\ns_barrier")
        if nlate:
            p(f"buffer_atomic_add v4, {P4K}, {WS}, {sSIG} offen offset:128 sc1")
            assert n2 + n3 <= 16
        self.nlate = nlate
        self.t1_late = n2 < 16
        self.stamp("B_sig")
        self.tq_rest = TQ[n2 + n3:]

    def miscC(self):
        M = Seq()
        def half(d, x):
            return f"s_and_b32 {d}, {x if self.o.get('grp', 1) else sW}, 1\ns_lshl_b32 {d}, {d}, 13"

        def near(d, x):
            return f"s_lshl_b32 {d}, {x}, 11\ns_xor_b32 {d}, {d}, {bGP}\ns_and_b32 {d}, {d}, 0x2000"
        DL = "v45"
        if self.o.get('d16', 1):
            M(f"""v_bfe_u32 v46, v1, 4, 1
                 v_and_b32 {DL}, 0xf0, {L16}
                 v_lshl_add_u32 {DL}, v46, 9, {DL}
                 v_lshrrev_b32 v46, 5, v1""")
        else:
            M(f"v_mov_b32 {DL}, {L16}\nv_mov_b32 v46, 0")
        M(f"""s_bfe_i32 {sT1}, {sTBL}, 0x10010
             s_xor_b32 {sT1}, {sT1}, {sTBL}
             s_and_b32 {sT1}, {sT1}, 0xe000
             s_bcnt1_i32_b32 {sT1}, {sT1}
             s_sub_u32 {sT1}, {sKC}, {sT1}""")
        if self.o.get('cmap', 1):
            M(f"""s_and_b32 {sGC}, {sT1}, 4
                 s_lshl_b32 {sGC}, {sGC}, 1
                 s_and_b32 {sT2}, {sU}, 7
                 s_add_u32 {sGC}, {sGC}, {sT2}
                 s_and_b32 {sMC}, {sT1}, 3
                 s_lshl_b32 {sMC}, {sMC}, 2
                 s_lshr_b32 {sT2}, {sU}, 3
                 s_add_u32 {sMC}, {sMC}, {sT2}""")
        else:
            M(f"""s_and_b32 {sGC}, {sT1}, 6
                 s_lshl_b32 {sGC}, {sGC}, 1
                 s_add_u32 {sGC}, {sGC}, {sRQ}
                 s_and_b32 {sMC}, {sT1}, 1
                 s_lshl_b32 {sMC}, {sMC}, 3
                 s_lshr_b32 {sT2}, {sU}, 2
                 s_add_u32 {sMC}, {sMC}, {sT2}""")
        M(f"""s_lshl_b32 {sT1}, {sGC}, 10
             s_lshl_b32 {sT2}, {sGC}, 12
             s_xor_b32 {sP2}, {sT1}, {sT2}
             s_and_b32 {sP2}, {sP2}, 0x2000
             s_xor_b32 {sP2}, {sP2}, {sPE}
             s_lshl_b32 {bTA}, {sMC}, 19
             s_add_u32 {bTA}, {bTA}, {sXL}
             {near(sT2, sMC) if self.o.get('dup', 2) & 1 else half(sT2, sMC)}
             s_add_u32 {bTA}, {bTA}, {sT2}
             s_add_u32 {bTA}, {bTA}, {hex(W13R)}
             s_xor_b32 {bTX}, {bTA}, 0x2000""")
        M(f"""s_lshl_b32 {sT1}, {sGC}, 2
             s_add_u32 {sT2}, {sT1}, {sW}
             s_lshl_b32 {cHS2}, {sT2}, 4
             s_add_u32 {cHS2}, {cHS2}, {sMC}
             s_lshl_b32 {cHS2}, {cHS2}, 14
             s_add_u32 {cHS2}, {cHS2}, {hex(HH+4096)}
             s_xor_b32 {cHS2}, {cHS2}, {sP2}
             s_lshl_b32 {cHB}, {sT2}, 16
             s_add_u32 {cHB}, {cHB}, {hex(HB)}
             s_xor_b32 {cHB}, {cHB}, {sPE}
             s_sub_u32 {cHS}, {cHS2}, 4096
             s_lshl_b32 {sT3}, {sMC}, 14
             s_sub_u32 {cPL}, {cHS2}, {sT3}
             s_add_u32 {cPL}, {cPL}, {3072+512}
             s_add_u32 {cST}, {cPL}, 256
             v_lshlrev_b32 {HPA}, 14, v1
             v_and_b32 {PA2}, 12, {L4}
             v_or_b32 {PA2}, {PA2}, {LM8}
             v_bfe_u32 v44, v1, 2, 1
             v_lshl_add_u32 {PA2}, v44, 18, {PA2}
             s_mul_i32 {cCS}, {sMC}, {7*128}
             s_add_u32 {cCS}, {cCS}, {hex(CS)}
             s_and_b32 {sCB}, {sMC}, 7
             s_lshl_b32 {cW2}, {sCB}, 19
             s_lshl_b32 {sT3}, {sW}, 17
             s_add_u32 {cW2}, {cW2}, {sT3}
             {near(sT3, sCB) if self.o.get('dup', 2) & 2 else half(sT3, sCB)}
             s_add_u32 {cW2}, {cW2}, {sT3}
             s_add_u32 {cW2}, {cW2}, {hex(W2R)}
             s_xor_b32 {cW2x}, {cW2}, 0x2000
             s_and_b32 {sT3}, {sW}, 1
             s_lshl_b32 {sT2}, {sT3}, 10
             v_add_u32 {W2A}, {sT2}, {DL}
             v_xor_b32 {W2B}, 1024, {W2A}
             v_lshrrev_b32 v44, 4, v1
             v_lshl_add_u32 {LB0}, v44, {8 if self.o.get('c16', 1) else 31}, {L16}
             v_and_b32 {LB0}, 0xffff, {LB0}
             v_add_u32 {LB1}, 0x10000, {LB0}
             v_add_u32 {LB2}, 0x20000, {LB0}
             s_add_u32 {sT2}, {bTL}, 0x10000
             v_add_u32 {WLA}, {sT2}, {W2A}
             v_add_u32 {WLB}, {sT2}, {W2B}
             v_lshl_add_u32 {WLA}, v46, 11, {WLA}
             v_lshl_add_u32 {WLB}, v46, 11, {WLB}
             v_lshl_add_u32 {W2A}, v46, 15, {W2A}
             v_lshl_add_u32 {W2B}, v46, 15, {W2B}
             v_add_u32 {WLC}, 0x10000, {WLA}
             v_add_u32 {WLD}, 0x10000, {WLB}
             v_and_b32 {CSL}, 0x7c, {L4}
             s_lshr_b32 {sT2}, {sMC}, 3
             s_lshl_b32 {sT2}, {sT2}, 1
             s_add_u32 {sT1}, {sT1}, {sT2}
             s_lshl_b32 {cHL}, {sT1}, 18
             s_lshl_b32 {sT2}, {sW}, 16
             s_add_u32 {cHL}, {cHL}, {sT2}
             s_add_u32 {cHL}, {cHL}, {hex(HH)}
             s_xor_b32 {cHL}, {cHL}, {sP2}
             s_lshr_b32 {sT2}, {sW}, 1
             s_add_u32 {sT1}, {sT1}, {sT2}
             s_lshl_b32 {sT2}, {sT2}, 18
             v_add_u32 {HHA}, {sT2}, {DL}
             v_lshl_add_u32 {HHA}, v46, 14, {HHA}
             v_xor_b32 {HHB}, 0x40000, {HHA}
             s_lshl_b32 {sT1}, {sT1}, 15
             s_lshl_b32 {sT2}, {sCB}, 1
             s_add_u32 {sT2}, {sT2}, {sT3}
             s_lshl_b32 {cOUT}, {sT2}, 6
             s_add_u32 {cOUT}, {cOUT}, {sT1}
             s_lshr_b32 {cHR}, {sT2}, 2
             s_lshl_b32 {cHR}, {cHR}, 13
             s_add_u32 {cHR}, {cHR}, {sT1}
             s_and_b32 {sT2}, {sT2}, 3
             s_lshl_b32 {sT2}, {sT2}, 10
             s_add_u32 {cHR}, {cHR}, {sT2}
             s_lshl_b32 {cHR}, {cHR}, 1
             s_add_u32 {cHR}, {cHR}, {hex(HB)}
             s_xor_b32 {cHR}, {cHR}, {sPE}
             s_add_u32 {cPP}, {cHL}, 7168
             s_add_u32 {cPQ}, {cPP}, 0x40000
             s_and_b32 {sT3}, {sMC}, 3
             s_mul_i32 {sT3}, {sT3}, {16384-4}
             s_sub_u32 {cPS}, {cHS2}, {sT3}""")
        return list(M)

    def phaseCD(self):
        p = self.p
        o = self.o
        sub = self.sub
        bar = lambda s_: list(Seq()(s_))
        steps, w2o, hho = self.steps, self.w2o, self.hho

        def dmaW2(part):
            g = []
            for k in range(4):
                S = Seq()
                S(f"s_add_u32 m0, {bTL}, {(2+part)*32768+k*2048}\ns_add_u32 {sT0}, {w2o[16+4*part+k]}")
                S(f"buffer_load_dwordx4 {L16}, {WS}, {sT0} offen sc1 lds", tag=f"W2L{part}")
                g.append(list(S))
                g.append([Inst(f"buffer_load_dwordx4 {L16}, {WS}, {sT0} offen offset:1024 sc1 lds", tag=f"W2L{part}")])
                ctx(g[-2:])
            return g

        def pub(tag, st):
            if o.get('nopub'):
                return []
            return bar(f"WAITTAG {tag}\nbuffer_store_dword v4, {FA1}, {WS}, {cPS} offen offset:{3072+128*st} sc1")

        vp = str(o.get('vp', 'x0123'))

        def pollld(st):
            if o.get('nopoll'):
                return []
            if str(st) in vp:
                return bar(f"buffer_load_dword v5, {PA2}, {WS}, {cPP} offen sc1")
            return list(Seq()(f"""s_buffer_load_dwordx4 s[8:11], {WS}, {cPP} glc
                 s_buffer_load_dwordx4 s[12:15], {WS}, {cPQ} glc""", cond=True))

        def pollchk(st):
            if o.get('nopoll'):
                return []
            if str(st) in vp:
                return sub(lambda: self.spin("v5", PA2, cPP, "0xff", "1", mode='check', sleep=o.get('sleep2', 2))) + \
                    bar(f"s_add_u32 {cPP}, {cPP}, 128\ns_add_u32 {cPQ}, {cPQ}, 128")
            red = """s_and_b64 s[8:9], s[8:9], s[10:11]
                 s_and_b64 s[12:13], s[12:13], s[14:15]
                 s_and_b64 s[8:9], s[8:9], s[12:13]
                 s_and_b32 s8, s8, s9"""

            def f():
                Lp = self.lab("sp")
                if o.get('stamps') == 3:
                    self.p(f"s_mov_b32 {sT5}, 0")
                self.p("WAITALL lgkm\n" + red)
                self.ool("s_cbranch_scc0", f"""s_mov_b32 {sT5}, 0
                     {Lp}:
                     s_sleep {o.get('sleep2', 2)}
                     s_buffer_load_dwordx4 s[8:11], {WS}, {cPP} glc
                     s_buffer_load_dwordx4 s[12:15], {WS}, {cPQ} glc
                     s_add_u32 {sT5}, {sT5}, 1
                     s_waitcnt lgkmcnt(0)
                     {red}
                     s_lshr_b32 s9, {sT5}, 15
                     s_or_b32 s8, s8, s9
                     s_cbranch_scc0 {Lp}""")
                self.p(f"s_add_u32 {cPP}, {cPP}, 128\ns_add_u32 {cPQ}, {cPQ}, 128")
                if o.get('stamps') == 3:
                    self.p(f"v_writelane_b32 v{STV}, {sT5}, {self.nstamp}")
                    self.nstamp += 1
                    self.stamp_names.append(f"P{st}")
            return sub(f)

        kt = max(0, len(self.tq_rest) - self.n_w2rest)
        FQ = self.tq_rest[:kt] + self.dmaT(2, 2) + self.dmaT(3, 3) + self.dmaT(4, 4) + self.tq_rest[kt:]
        npre, npre2 = o.get('tq4', 12), o.get('tq5', 0)
        p.extend(flat(FQ[:npre]))
        FQ = FQ[npre:]
        c16 = o.get('c16', 1)
        CSR, CSF, MEANF, C1, C2 = 160, 168, 176, 180, 181
        CSU, CSG, MEANG = 213, 220, 228
        p("FENCE")
        for k in (1, 2, 3, 5, 6, 7, 9, 10, 11):
            p(f"v_mov_b32 v{CSF+k}, 0")
            if c16:
                p(f"v_mov_b32 v{CSG+k}, 0")
        for t in range(7):
            p.extend(split2(CSR + t, CSR + t, 184))
        if c16:
            for t in range(7):
                p(f"v_mov_b32 v{CSU+t}, v{CSR+t}")
            for t in range(7):
                p(f"v_permlane16_swap_b32 v{CSR+t}, v{CSU+t}")
            p(f"s_mov_b64 s[8:9], 0xffff\nv_mov_b32 v{CSG}, v{CSU}\nv_mov_b32 v{CSG+4}, v{CSU+1}")
        p(f"v_mov_b32 v{CSF}, v{CSR}\nv_mov_b32 v{CSF+4}, v{CSR+1}")
        p("FENCE")
        p.extend(flat(FQ[:npre2]))
        FQ = FQ[npre2:]
        self.stamp("C_prepoll")
        self.spin("v5", HPA, cPL, "0xffff", "1", mode='all', sleep=o.get('sleep3', 0))
        self.stamp("C_sync2")

        c16 = o.get('c16', 1)
        fo = (lambda s: (s >> 1) * 2048 + (s & 1) * 256) if c16 else (lambda s: s * 1024)

        def hload(s):
            S = Seq()
            if s % 4 == 0 and s:
                S(f"s_add_u32 {cHB}, {cHB}, {4096 if s % 8 else 12288}")
            S(f"buffer_load_dwordx4 {a_(4*s,4)}, {LB0}, {WS}, {cHB} offen offset:{fo(s&3)} sc1")
            return list(S)
        HL = o.get('hla', 10)
        for s in range(HL):
            p.extend(hload(s))
        if self.t1_late:
            p("WAITTAG T1\ns_barrier")
        ACC = [48, 64, 80, 96, 112]
        acc_of = [0, 1, 2, 3, 0, 1, 2]
        slot_of = [0, 1, 2, 3, 4, 0, 1]
        WR, NR = 128, 8
        CSR, CSF, MEANF, C1, C2 = 160, 168, 176, 180, 181
        T = 184
        LK = o.get('lk', 5)
        F0 = Seq()
        for k in range(4):
            F0(f"buffer_load_dword v{T+4+k}, {L4}, {WS}, {cST} offen sc1\ns_add_u32 {cST}, {cST}, 16384")
        F1 = Seq()
        F1(f"""v_add_f32 v{T}, v{T+4}, v{T+5}
             v_add_f32 v{T+1}, v{T+6}, v{T+7}
             v_add_f32 v{T}, v{T}, v{T+1}
             v_mov_b32 v{T+1}, v{T}
             v_permlane32_swap_b32 v{T}, v{T+1}
             v_mul_f32 v{T}, 0x3b000000, v{T}
             v_mul_f32 v{T+1}, 0x3b000000, v{T+1}
             v_cvt_pk_bf16_f32 v{MEANF}, -v{T}, -v{T}
             v_fma_f32 v{T+1}, -v{T}, v{T}, v{T+1}
             v_max_f32 v{T+1}, 0, v{T+1}
             v_add_f32 v{C2}, 0x3727c5ac, v{T+1}
             v_rsq_f32 v{C1}, v{C2}
             v_mul_f32 v{C1}, 0xbfb8aa3b, v{C1}""")
        if c16:
            prs = [(MEANF, MEANG), (C2, C2 + 2), (C1, C1 + 2)]
            for x, y in prs:
                F1(f"v_mov_b32 v{y}, v{x}")
            for x, y in prs:
                F1(f"v_permlane16_swap_b32 v{x}, v{y}")
            F1(f"""v_cndmask_b32 v{MEANF}, 0, v{MEANF}, s[8:9]
                 v_cndmask_b32 v{MEANG}, 0, v{MEANG}, s[8:9]""")
        else:
            F1(f"v_cndmask_b32 v{MEANF}, v{MEANF}, 0, {sHILANES}")

        def tread(t, s, n):
            sl = slot_of[t]
            base = (LB0, LB0, LB1, LB1, LB2)[sl]
            return [Inst(f"ds_read_b128 {v(WR+4*(n%NR),4)}, {base} offset:{(sl&1)*32768*(sl<4)+fo(s)}")]

        def corr(t):
            A = ACC[acc_of[t]]
            if c16:
                return [mf16(A + 8 * gu + 4 * th, v((CSF, CSG)[gu] + 4 * (t & 1), 4), v((MEANF, MEANG)[th], 4))
                        for gu, th in ((0, 0), (0, 1), (1, 1), (1, 0))]
            return [mf32(A, v(CSF + 4 * (t & 1), 4), v(MEANF, 4))]

        def cm(t, s, n):
            A, w = ACC[acc_of[t]], v(WR + 4 * (n % NR), 4)
            if not c16:
                return [mf32(A, w, a_(4 * s, 4), "0" if s == 0 else None)]
            gu = s & 1
            r = [mf16(A + 8 * gu + 4 * th, w, a_(8 * (s >> 1) + 4 * th, 4), "0" if s < 2 else None) for th in (gu, 1 - gu)]
            r[1].tag = "second"
            return r

        def spread(G):
            out = []
            for g in G:
                g = hoist(g)
                if len(g) > 1 and g[1].tag == "second":
                    m, rest, c, k = g[1], g[2:], 0, 0
                    m.tag = None
                    tot = sum(cost(x) for x in rest if not x.cond)
                    while k < len(rest) and c + cost(rest[k]) <= max(9.7, tot / 2 + 2.2) and not rest[k].cond \
                            and rest[k].kind not in ('branch', 'label') and not rest[k].op.startswith('v_cmp'):
                        c += cost(rest[k])
                        k += 1
                    g = [g[0]] + rest[:k] + [m] + rest[k:]
                out += g
            return out
        G = []
        for n in range(64):
            s, t = divmod(n, 2)
            g = cm(t, s, n)
            if n + LK < 64:
                g += tread((n + LK) % 2, (n + LK) // 2, n + LK)
            else:
                if n + LK == 64:
                    g += bar("WAITTAG T2\ns_barrier")
                g += tread(2, n + LK - 64, n + LK)
            if t == 0 and s + HL < 32:
                g += hload(s + HL)
            G.append(g)
        G.append(corr(0))
        G.append(corr(1))
        for n in range(LK):
            p.extend(tread(n % 2, n // 2, n))
        G = weave(G, list(F0), 1, o.get('f0', 20))
        G = weave(G, list(F1), o.get('f1', 40), 63)
        e0 = 2 * (32 - HL)
        if self.nlate:
            assert npre + npre2 <= kt + 8 * (min(o.get('lt', 4), 5) - 2)
            G[e0 - 22] += bar(f"s_add_u32 {bRP}, {bRP}, 128\nbuffer_load_dword v5, {P256}, {WS}, {bRP} offen sc1")
            G[e0 - 1] += sub(lambda: self.spin("v5", P256, bRP, "0xffff", "16", mode='check', sleep=2))
        ng = min(len(FQ), o.get('g1q', 8))
        G = weave(G, FQ[:ng], e0, 66)
        FQ = FQ[ng:]
        p.extend(spread(G))
        self.stamp("C_g1")

        def epi(t, tmp):
            A = ACC[acc_of[t]]
            S = Seq()
            for j in range(8):
                S(f"v_mul_f32 v{tmp+j}, v{A+j}, v{C1+2*c16*(j>>2)}")
            for j in range(8):
                S(f"v_exp_f32 v{tmp+j}, v{tmp+j}")
                S(f"v_mul_f32 v{A+j}, v{A+j}, v{A+8+j}")
            for j in range(8):
                S(f"v_fma_f32 v{tmp+j}, v{tmp+j}, v{C2+2*c16*(j>>2)}, v{C2+2*c16*(j>>2)}")
                if j >= 2:
                    S(f"v_rcp_f32 v{tmp+j-2}, v{tmp+j-2}")
            for j in range(8):
                S(f"v_mul_f32 v{A+j}, v{A+j}, v{tmp+j}")
                if j < 2:
                    S(f"v_rcp_f32 v{tmp+6+j}, v{tmp+6+j}")
            for j in (0, 2, 1, 3):
                S(f"v_cvt_pk_bf16_f32 v{tmp+8+j}, v{A+2*j}, v{A+2*j+1}")
            if c16:
                S(f"v_permlane16_swap_b32 v{tmp+8}, v{tmp+10}\nv_permlane16_swap_b32 v{tmp+9}, v{tmp+11}")
            S(f"buffer_store_dwordx4 {v(tmp+8,4)}, {L16}, {WS}, {cHS if t < 4 else cHS2} offen offset:{(t&3)*1024} sc1", tag=f"hh{t}")
            return list(S)

        def tilepass(t, n0):
            G = []
            for s in range(32):
                n = n0 + s
                g = cm(t, s, n)
                if s + LK < 32:
                    g += tread(t, s + LK, n + LK)
                elif t < 6:
                    if s + LK == 32:
                        g += bar(f"WAITTAG T{t+1}\ns_barrier")
                    g += tread(t + 1, s + LK - 32, n + LK)
                if s == 16:
                    g += bar(f"v_mov_b32 v{CSF+4*(t&1)}, v{CSR+t}")
                if s == 17 and c16:
                    g += bar(f"v_mov_b32 v{CSG+4*(t&1)}, v{CSU+t}")
                G.append(g)
            G.append(corr(t))
            return G

        d16 = o.get('d16', 1)

        def hhload(i):
            S = Seq()
            if d16:
                ad = HHB if i & 1 else HHA
                S(f"s_add_u32 {sCc}, {cHL}, {hho[i & ~1]}")
                S(f"buffer_load_dwordx4 {a_(8*(i&15),4)}, {ad}, {WS}, {sCc} offen sc1")
                return ctx([list(S), [Inst(f"buffer_load_dwordx4 {a_(8*(i&15)+4,4)}, {ad}, {WS}, {sCc} offen offset:256 sc1")]])
            S(f"s_add_u32 {sCc}, {cHL}, {hho[i]}")
            S(f"buffer_load_dwordx4 {a_(8*(i&15),4)}, {HHA}, {WS}, {sCc} offen sc1")
            return ctx([list(S), [Inst(f"buffer_load_dwordx4 {a_(8*(i&15)+4,4)}, {HHB}, {WS}, {sCc} offen sc1")]])

        EP = [epi(t, T + 12 * (t & 1)) for t in range(7)]
        P = {t: tilepass(t, 32 * t) for t in range(2, 7)}
        q = o.get('cq', 18)
        ee = o.get('ee', 20)
        LA = o.get('dla', 7)
        G = weave(P[2], FQ[:q], 0, 32)
        FQ = self.dmaT(5, 0) + FQ[q:]
        FQ = FQ[:q] + self.dmaT(6, 1) + FQ[q:] + dmaW2(0) + dmaW2(1) + dmaW2(2)
        G = weave(G, EP[0] + EP[1][:26], 2, 33)
        p.extend(self.xf(spread(G)))
        self.stamp("C_t2")
        q3 = min(q, len(FQ) - 24)
        G = weave(P[3], FQ[:q3], 0, 32)
        FQ = FQ[q3:]
        G = weave(G, EP[1][26:] + EP[2], 0, 33)
        p.extend(self.xf(spread(G)))
        self.stamp("C_t3")
        q4 = min(q, len(FQ) - 16)
        G = weave(P[4], FQ[:q4], 0, 32)
        FQ = FQ[q4:]
        G = weave(G, EP[3], 2, ee)
        G[o.get('p1at', 26)] += pub("hh2", 0)
        p.extend(self.xf(spread(G)))
        self.stamp("C_t4")
        q5 = min(q, len(FQ) - 8)
        G = weave(P[5], FQ[:q5], 0, 32)
        FQ = FQ[q5:]
        G[o.get('l1', 14)] += pollld(0)
        G[1] += bar(f"buffer_load_dwordx4 v[24:27], {L16}, {WS}, {cHR} offen sc1")
        G[3] += bar(f"buffer_load_dwordx4 v[28:31], {L16}, {WS}, {cHR} offen offset:1024 sc1")
        G = weave(G, EP[4], 2, ee)
        p.extend(self.xf(spread(G)))
        self.stamp("C_t5")
        G = P[6]
        c1 = o.get('c1', 1)
        n6 = min(o.get('n6', 0), len(FQ))
        if n6:
            G = weave(G, FQ[:n6], 0, max(c1, 1))
            FQ = FQ[n6:]
        G[c1] += pollchk(0)
        hq = [x for i in range(LA) for x in hhload(i)]
        G = weave(G, hq, c1 + 1, 33)
        S = Seq()
        if d16:
            for i in (24, 25, 28, 29):
                S(f"v_permlane16_swap_b32 v{i}, v{i+2}")
        for i in range(8):
            S(f"v_lshlrev_b32 v{48+2*i}, 16, v{24+i}\nv_and_b32 v{49+2*i}, {sMSKHI}, v{24+i}")
        for k in range(4):
            S(f"""s_xor_b32 {sT1}, {sW}, {k}
                 s_mul_i32 {sT1}, {sT1}, 12288
                 v_add_u32 v{36+k}, {sT1}, {L16}""")
        G = weave(G, list(S), ee + 1, 33)
        G = weave(G, EP[5], 2, ee)
        G[o.get('p2at', 12)] += pub("hh4", 1)
        p.extend(self.xf(spread(G)))
        self.stamp("C_t6")

        DA = [48, 64, 96, 112]

        def w2r(i, a):
            return (128, 168, 128)[(i - 16) // 4] + 8 * (i % 4) + 4 * a

        def w2read(i):
            part, k = divmod(i - 16, 4)
            r = bar(f"WAITTAG W2L{part}") if k == 0 else []
            for a in range(2):
                ad = ((WLA, WLB), (WLA, WLB), (WLC, WLD))[part][k & 1 if d16 else a]
                r.append(Inst(f"ds_read_b128 {v(w2r(i, a), 4)}, {ad} offset:{(part&1)*32768 + ((k&2)*2048 + a*256 if d16 else k*2048)}"))
            return r

        def w2f(i, a):
            return a_(128 + 8 * i + 4 * a, 4) if i < 16 else v(w2r(i, a), 4)

        def dm(i, k):
            a, b = k & 1, k >> 1
            if d16:
                j, ch = i & ~1, i & 1
                r = [mf16(DA[k] + 8 * ch + 4 * th, w2f(j + a, ch), a_(8 * ((j + b) & 15) + 4 * th, 4), "0" if j == 0 and k else None)
                     for th in (ch, 1 - ch)]
                r[1].tag = "second"
                return r
            return [mf32(DA[k], w2f(i, a), a_(8 * (i & 15) + 4 * b, 4), "0" if i == 0 and k else None)]
        nl = o.get('nl', 4)
        if d16:
            assert nl % 2 == 0
            G = [dm(j + ch, k) for j in range(0, 28 - nl, 2) for k in (0, 1, 3, 2) for ch in range(2)]
        else:
            G = [dm(i, k) for i in range(28 - nl) for k in (1, 3, 2, 0)]
        G += [dm(i, k) for k in (1, 3, 2, 0) for i in range(28 - nl, 28)]
        for i in range(16, 28):
            G[min(4 * i - 7 - 2 * d16 * (i & 1), 4 * (28 - nl) - 8 + (i - (28 - nl)))] += w2read(i)
        c2, c3, c4 = o.get('c2', 22), o.get('c3', 54), o.get('c4', 76)
        l2, l3, l4 = o.get('l2', 6), o.get('l3', 37), o.get('l4', 62)
        G[l2] += pollld(1)
        G = weave(G, EP[6], 1, o.get('e6', 11))
        G[o.get('p3at', 12)] += pub("hh5", 2)
        G[l3] += pollld(2)
        G[o.get('p4at', 38)] += pub("hh6", 3)
        G[o.get('dbar', 40)] += bar("s_barrier")
        hs = lambda a, b: [x for i in range(a, b) for x in hhload(i)]
        G = weave(G, hs(LA, 12), 0, c2)
        G[c2] += pollchk(1)
        nf = max(0, len(FQ) - o.get('nf', 8))
        G = weave(G, hs(12, 16) + FQ[:nf] + hs(16, 20), c2 + 1, c3)
        G[c3] += pollchk(2)
        G = weave(G, hs(20, 24), c3 + 1, l4)
        G[l4] += pollld(3)
        G = weave(G, FQ[nf:], l4 + 1, c4)
        G[c4] += pollchk(3)
        G = weave(G, hs(24, 28), c4 + 1, c4 + o.get('h4', 9))
        WRT = [[Inst(f"ds_write_b128 v{36+k}, {v(DA[k]+4*q_,4)} offset:{(k-1)*4096+q_*1024}") for q_ in range(4)] for k in (1, 3, 2)]
        if nl >= 2:
            for n in range(3):
                G = weave(G, WRT[n], 112 - (3 - n) * nl + 1, 112 - (2 - n) * nl + (1 if n < 2 else 0))
        else:
            G[111] += flat(WRT)
        for k in sorted(set(list(range(8, 112, 8)) + [c2 - 1, c2, c3 - 1, c3, c4 - 1, c4])):
            G[k] += sub(lambda: self.stamp(f"d{k}"))
        p.extend(self.xf(spread(G)))
        self.stamp("D_loop")
        p("WAITALL lgkm\ns_barrier")
        for q_ in range(4):
            for k in range(3):
                p(f"ds_read_b128 {v(160+16*k+4*q_,4)}, v36 offset:{k*4096+q_*1024}")
        for q_ in range(4):
            for j in range(2):
                r = 4 * q_ + 2 * j
                p(f"v_pk_add_f32 {v(48+r,2)}, {v(48+r,2)}, {v(160+r,2)}")
                p(f"v_pk_add_f32 {v(176+r,2)}, {v(176+r,2)}, {v(192+r,2)}")
            for j in range(2):
                r = 4 * q_ + 2 * j
                p(f"v_pk_add_f32 {v(48+r,2)}, {v(48+r,2)}, {v(176+r,2)}")
            for j in range(2):
                p(f"v_cvt_pk_bf16_f32 v{112+2*q_+j}, v{48+4*q_+2*j}, v{48+4*q_+2*j+1}")
            if q_ & 1 and d16:
                p(f"v_permlane16_swap_b32 v{110+2*q_}, v{112+2*q_}\nv_permlane16_swap_b32 v{111+2*q_}, v{113+2*q_}")
            if q_ & 1:
                p(f"buffer_store_dwordx4 {v(112+4*(q_>>1),4)}, {ROWA}, {OUT}, {cOUT} offen offset:{32*(q_>>1)}" + ["", " sc1", " nt", " sc0 sc1"][o.get('outst', 0)])
        self.stamp("D_end")

    def finish(self):
        p = self.p
        if self.o.get('stamps'):
            p("WAITALL vm")
            self.stamp("D_drained")
            p(f"""s_lshl_b32 {sT0}, s2, 2
                 s_add_u32 {sT0}, {sT0}, {sW}
                 s_lshl_b32 {sT0}, {sT0}, 7
                 s_add_u32 {sT0}, {sT0}, {hex(STAMP)}
                 s_mov_b32 exec_hi, 0
                 buffer_store_dword v{STV}, {L4}, {WS}, {sT0} offen""")
        if self.o.get('padto'):
            p("WAITALL vm")
            if self.o.get('skew') is not None:
                p(f"""buffer_load_dword v43, off, {DBG}, 0 offset:128 sc1
                     buffer_load_dword v41, off, {DBG}, 0 offset:192 sc1
                     v_not_b32 v43, v43
                     v_readfirstlane_b32 s72, v43
                     v_readfirstlane_b32 s73, v41""")
                if self.o['skew'] < 0:
                    p("s_sub_u32 s101, s73, s72")
                else:
                    p("s_sub_u32 s101, s100, s72")
                p(f"""s_min_u32 s101, s101, 2000
                     s_lshl_b32 s101, s101, 3
                     s_add_u32 s100, s72, s101
                     s_lshl_b32 s72, s2, 2
                     s_add_u32 s72, s72, {sW}
                     s_cmp_lg_u32 s72, {max(self.o['skew'], 0) * 4}
                     s_cbranch_scc1 L_end""")
            if self.o.get('mx'):
                p(f"""s_lshl_b32 s72, s101, 8
                     s_add_u32 s72, s72, s2
                     v_mov_b32 v41, s72
                     s_cmp_eq_u32 {sW}, 0
                     s_cselect_b32 s73, 0, {hex(OOB)}
                     buffer_atomic_umax v41, {FA1}, {DBG}, s73 offen offset:192 sc1
                     s_waitcnt vmcnt(0)
                     L_pad0:
                     s_memrealtime s[72:73]
                     s_waitcnt lgkmcnt(0)
                     s_sub_u32 s72, s72, s100
                     s_cmp_lt_i32 s72, {self.o['padto']-200}
                     s_cbranch_scc1 L_pad0
                     buffer_load_dword v41, off, {DBG}, 0 offset:192 sc1
                     v_readfirstlane_b32 s72, v41""")
                if self.o['mx'] == 1:
                    p("s_lshl_b32 s101, s101, 8\ns_sub_u32 s101, s72, s101\ns_lshr_b32 s101, s101, 8\ns_min_u32 s101, s101, 1000\ns_lshl_b32 s101, s101, 4")
                elif self.o['mx'] == 2:
                    p("s_bfe_u32 s101, s72, 0x50003\ns_mul_i32 s101, s101, 200")
                else:
                    p("s_and_b32 s101, s72, 7\ns_mul_i32 s101, s101, 500")
                p("s_add_u32 s100, s100, s101")
            if self.o.get('rel'):
                p("s_memrealtime s[72:73]\ns_waitcnt lgkmcnt(0)\ns_add_u32 s100, s72, s101")
            if self.o.get('seg0'):
                p(f"s_lshl_b32 s72, s2, 2\ns_add_u32 s72, s72, {sW}\ns_cmp_lg_u32 s72, {self.o.get('segw', 150)}\ns_cbranch_scc1 L_end")
            p("L_pad:\ns_memrealtime s[72:73]\ns_waitcnt lgkmcnt(0)\ns_sub_u32 s72, s72, s100")
            p(f"s_cmp_lt_i32 s72, {self.o['padto']}\ns_cbranch_scc1 L_pad")
        p("L_end:\ns_endpgm")

    def build(self):
        if self.o.get('stamps') or self.o.get('padto'):
            self.p("s_memtime s[100:101]" if self.o.get('stamps') == 2 else "s_memrealtime s[100:101]")
        self.setup()
        if self.o.get('seg0') == 'start':
            self.p("s_mov_b32 s101, s100")
        if self.o.get('stamps'):
            self.p(f"v_mov_b32 v{STV}, s100")
            self.nstamp = 1
            self.stamp_names.append("start")
        self.p.extend(self.xf(self.sub(self.phaseA), 'xa'))
        self.p.extend(self.xf(self.sub(self.phaseB), 'xb'))
        self.phaseCD()
        self.finish()
        sk = str(self.o.get('skel', ''))
        if sk:
            Q = Seq()
            for i in self.p:
                if 'm' in sk and i.kind == 'mfma':
                    r = sorted(i.srcab)
                    for x in (r[0], r[-1]):
                        Q(f"v_accvgpr_read_b32 v40, {x}" if x[0] == 'a' else f"v_mov_b32 v40, {x}")
                    continue
                if 'e' in sk and i.kind in ('valu', 'trans') and not i.cond and i.op.endswith(('f32', 'f32_e64')):
                    continue
                if 'v' in sk and i.kind in ('vload', 'dma') and not i.cond and 'dwordx4' in i.op:
                    continue
                if 's' in sk and i.kind == 'vstore' and not i.cond and (i.wide or 'f32' in i.op) and 'v[176:179]' not in i.text:
                    continue
                Q.append(i)
            self.p = Q
        ns = str(self.o.get('nosc', ''))
        for i in self.p:
            if i.kind in ('vload', 'dma') and 'dwordx' in i.op and not i.cond:
                for ch, regs in (('k', (sKVL, bK2, sZL)), ('q', (sPQL, bQ2)), ('h', (cHB,)), ('t', (sT0, sKC)), ('d', (sCc,))):
                    if ch in ns and any(f"{WS}, {r} " in i.text for r in regs):
                        i.text = i.text.replace(" sc1", "")
        import dsl
        dsl.MERGE = self.o.get('mg', 1)
        return finalize(self.p, self.o.get('fill', 1))


def emit(opt):
    g = Gen(opt)
    prog = g.build()
    hdr = open(os.path.join(os.path.dirname(os.path.abspath(__file__)), "header.txt")).read()
    body = "\n".join(("" if i.kind == 'label' else "    ") + i.text for i in prog)
    txt = hdr + f"""; @launch grid=(256,1,1) block=(256,1,1) lds=163840
.amdgcn_target "amdgcn-amd-amdhsa--gfx950"
.set CODE_PF_MAX, {opt.get('code_bytes', 0)}
.text
.globl {NAME}_kernel
.p2align 8
.type {NAME}_kernel,@function
{NAME}_kernel:
{body}
.section .rodata,"a"
.p2align 6
.amdhsa_kernel {NAME}_kernel
  .amdhsa_next_free_vgpr 512
  .amdhsa_next_free_sgpr 102
  .amdhsa_accum_offset 256
  .amdhsa_group_segment_fixed_size 0
  .amdhsa_kernarg_size 80
  .amdhsa_user_sgpr_count 2
  .amdhsa_user_sgpr_kernarg_segment_ptr 1
  .amdhsa_system_sgpr_workgroup_id_x 1
.end_amdhsa_kernel
"""
    return txt, g.stamp_names


def code_size(txt):
    import subprocess, tempfile
    with tempfile.TemporaryDirectory() as d:
        open(d + "/k.s", "w").write(txt)
        r = subprocess.run(["clang", "-x", "assembler", "-target", "amdgcn-amd-amdhsa",
                            "-mcpu=gfx950", "-c", d + "/k.s", "-o", d + "/k.o"], capture_output=True, text=True)
        if r.returncode:
            print("\n".join(r.stderr.split("\n")[:30]))
            raise SystemExit(1)
        r = subprocess.run(["llvm-objdump", "-h", d + "/k.o"], capture_output=True, text=True)
        for line in r.stdout.split("\n"):
            f = line.split()
            if len(f) > 2 and f[1] == ".text":
                return int(f[2], 16)


def main():
    opt = {}
    out = None
    for a in sys.argv[1:]:
        if '=' in a:
            k, val = a.split('=')
            try:
                opt[k] = int(val, 0)
            except ValueError:
                opt[k] = val
        else:
            out = a
    opt['code_bytes'] = 4096
    txt, names = emit(opt)
    sz = code_size(txt)
    opt['code_bytes'] = (sz - 1024) & ~3
    txt, names = emit(opt)
    open(out, "w").write(txt)
    if names:
        open(out + ".names", "w").write(" ".join(names))
    print(out, "code bytes", sz, "lines", txt.count("\n"), "stamps", len(names))


if __name__ == "__main__":
    main()
```

```python
import re

REG_RE = re.compile(r'(?<![\w.])([vas])\[(\d+):(\d+)\]|(?<![\w.])([vas])(\d+)(?![\w\[])|\b(vcc|exec|m0)\b')
TRANS = ('v_exp_f32', 'v_log_f32', 'v_rcp_f32', 'v_rsq_f32', 'v_sqrt_f32', 'v_sin_f32', 'v_cos_f32')


def regs_of(s):
    out = []
    for m in REG_RE.finditer(s):
        if m.group(1):
            out += [f"{m.group(1)}{i}" for i in range(int(m.group(2)), int(m.group(3)) + 1)]
        elif m.group(4):
            out.append(f"{m.group(4)}{m.group(5)}")
        else:
            out.append(m.group(6))
    return out


class Inst:
    __slots__ = ('text', 'op', 'kind', 'rd', 'wr', 'passes', 'tag', 'cond', 'srcc', 'srcab', 'wide', 'arg', 'ctx', 'ool')

    def __init__(self, text, tag=None, cond=False):
        self.text = text
        self.tag = tag
        self.cond = cond
        self.passes = 0
        self.srcc = set()
        self.srcab = set()
        self.wide = False
        self.arg = None
        self.ctx = None
        self.ool = None
        self.rd = set()
        self.wr = set()
        t = text.split(';')[0].strip()
        if t.endswith(':'):
            self.op = 'label'
            self.kind = 'label'
            return
        sp = t.split(None, 1)
        op = sp[0]
        self.op = op
        rest = sp[1] if len(sp) > 1 else ''
        ops = [o.strip() for o in rest.split(',')] if rest else []
        R = [regs_of(o) for o in ops]
        allr = [r for x in R for r in x]
        if op.startswith('v_mfma'):
            self.kind = 'mfma'
            self.wr = set(R[0])
            self.srcab = set(R[1]) | set(R[2])
            self.srcc = set(R[3])
            self.rd = self.srcab | self.srcc
            self.passes = 8 if '32x32x16' in op else 4 if '16x16x32' in op else 2 if '4x4x4' in op else None
            assert self.passes, op
        elif op.startswith('v_'):
            self.kind = 'trans' if op.replace('_e64', '').replace('_e32', '') in TRANS else 'valu'
            self.wr = set(R[0])
            self.rd = set(r for x in R[1:] for r in x)
            if 'swap' in op:
                self.wr = set(allr)
                self.rd = set(allr)
            if op.startswith(('v_fmac', 'v_dot2c', 'v_writelane')) or 'dpp' in text or 'row_' in text or 'quad_perm' in text:
                self.rd |= set(R[0])
            if '_co_' in op:
                self.wr |= set(R[1])
                self.rd = set(r for x in R[2:] for r in x)
        elif op.startswith(('buffer_load', 'global_load')):
            if re.search(r'\blds\b', rest) or '_lds_' in op:
                self.kind = 'dma'
                self.rd = set(allr) | {'m0'}
            else:
                self.kind = 'vload'
                self.wr = set(R[0])
                self.rd = set(r for x in R[1:] for r in x)
        elif op.startswith(('buffer_store', 'global_store', 'buffer_atomic', 'global_atomic')):
            self.kind = 'vstore'
            self.rd = set(allr)
            self.wide = op.endswith(('x3', 'x4'))
            if self.wide:
                self.arg = set(R[0]) if op.startswith('buffer') else set(R[1])
            if 'atomic' in op and re.search(r'\bsc0\b', rest):
                self.wr = set(R[0])
        elif op.startswith('ds_read') or op.startswith('ds_bperm') or op.startswith('ds_swizzle'):
            self.kind = 'dsr'
            self.wr = set(R[0])
            self.rd = set(r for x in R[1:] for r in x)
        elif op.startswith(('ds_write', 'ds_add')):
            self.kind = 'dsw'
            self.rd = set(allr)
        elif op.startswith(('s_load', 's_buffer_load', 's_memtime', 's_memrealtime')):
            self.kind = 'smem'
            self.wr = set(R[0])
            self.rd = set(r for x in R[1:] for r in x)
        elif op == 's_waitcnt':
            self.kind = 'wait'
        elif op == 's_nop':
            self.kind = 'nop'
            self.arg = int(rest, 0)
        elif op in ('s_barrier', 's_sleep', 's_endpgm', 's_setprio'):
            self.kind = 'misc'
        elif op.startswith(('s_branch', 's_cbranch')):
            self.kind = 'branch'
            if 'vcc' in op:
                self.rd = {'vcc'}
        elif op.startswith('s_cmp') or op.startswith('s_bitcmp'):
            self.kind = 'salu'
            self.rd = set(allr)
        elif op.startswith('s_'):
            self.kind = 'salu'
            self.wr = set(R[0])
            self.rd = set(r for x in R[1:] for r in x)
            if 'saveexec' in op:
                self.wr.add('exec')
        elif op == 'FENCE':
            self.kind = 'waittag'
            self.arg = []
        elif op == 'WAITTAG':
            self.kind = 'waittag'
            self.arg = rest.split()
        elif op == 'WAITALL':
            self.kind = 'waitall'
            self.arg = rest.strip()
        elif op.startswith('.'):
            self.kind = 'label'
        else:
            raise ValueError(text)


class Seq(list):
    def __call__(self, text, tag=None, cond=False):
        for line in text.strip().split('\n'):
            line = line.strip()
            if line and not line.startswith(';'):
                self.append(Inst(line, tag, cond))
        return self


MERGE = 1
SINK = 1


def insert_waits(prog):
    out = []
    vm = []
    lg = []
    smem_out = False

    def emit(nv, nl):
        parts = []
        if nv is not None:
            parts.append(f"vmcnt({min(nv, 63)})")
        if nl is not None:
            parts.append(f"lgkmcnt({min(nl, 15)})")
        out.append(Inst("s_waitcnt " + " ".join(parts)))

    for idx, ins in enumerate(prog):
        if ins.cond:
            touch = ins.rd | ins.wr
            for q in (vm, lg):
                for e in q:
                    assert not (e[0] & touch), f"cond inst touches pending reg: {ins.text}"
            out.append(ins)
            continue
        nv = nl = None
        if ins.kind == 'waittag':
            for name in ins.arg:
                for i in range(len(vm) - 1, -1, -1):
                    if vm[i][1] == name:
                        n = len(vm) - 1 - i
                        nv = n if nv is None else min(nv, n)
                        break
                for i in range(len(lg) - 1, -1, -1):
                    if lg[i][1] == name:
                        n = len(lg) - 1 - i
                        nl = n if nl is None else min(nl, n)
                        break
        elif ins.kind == 'waitall':
            if 'vm' in ins.arg:
                nv = 0
            if 'lgkm' in ins.arg:
                nl = 0
        elif ins.kind == 'wait':
            m = re.search(r'vmcnt\((\d+)\)', ins.text)
            if m:
                n = int(m.group(1))
                vm = vm[len(vm) - n:] if n < len(vm) else vm
            m = re.search(r'lgkmcnt\((\d+)\)', ins.text)
            if m:
                n = int(m.group(1))
                if n == 0:
                    lg = []
                    smem_out = False
                elif not smem_out:
                    lg = lg[len(lg) - n:] if n < len(lg) else lg
            out.append(ins)
            continue
        else:
            touch = ins.rd | ins.wr
            for i in range(len(vm) - 1, -1, -1):
                if vm[i][0] & touch:
                    nv = len(vm) - 1 - i
                    break
            for i in range(len(lg) - 1, -1, -1):
                if lg[i][0] & touch:
                    nl = len(lg) - 1 - i
                    break
            if nl is not None and ins.kind == 'mfma' and nl >= 3:
                seen = merged = 0
                n0 = nl
                for j in range(idx + 1, min(idx + 16 * MERGE, len(prog))):
                    nx = prog[j]
                    if nx.kind == 'mfma':
                        seen += 1
                        n2 = None
                        for i in range(len(lg) - 1, -1, -1):
                            if lg[i][0] & nx.rd:
                                n2 = len(lg) - 1 - i
                                break
                        if n2 is not None and n2 < nl:
                            if n2 >= nl - 2 and (3 * n2 >= 2 * n0 or (n2 >= 3 and n2 == nl - 1)):
                                nl = n2
                                merged += 1
                                seen = 0
                                if merged < MERGE:
                                    continue
                            break
                        if seen >= 2:
                            break
        if nl is not None and smem_out:
            nl = 0
        if nv is not None or nl is not None:
            emit(nv, nl)
            if nv is not None:
                vm = vm[len(vm) - nv:] if nv else []
            if nl is not None:
                lg = lg[len(lg) - nl:] if nl else []
                if nl == 0:
                    smem_out = False
        if ins.kind in ('waittag', 'waitall'):
            continue
        if ins.kind in ('vload', 'vstore', 'dma'):
            if len(vm) >= 62:
                emit(61, None)
                vm = vm[len(vm) - 61:]
            vm.append((set(ins.wr), ins.tag))
        elif ins.kind in ('dsr', 'dsw'):
            if len(lg) >= 15:
                n = 0 if smem_out else 14
                emit(None, n)
                lg = lg[len(lg) - n:] if n else []
                smem_out = smem_out and n != 0
            lg.append((set(ins.wr), ins.tag))
        elif ins.kind == 'smem':
            lg.append((set(ins.wr), ins.tag))
            smem_out = True
        out.append(ins)
    return out


MF_VALU = {2: 5, 4: 8, 8: 12}
MF_OVL = {2: 4, 4: 6, 8: 10}
MF_WAR = {2: 1, 4: 3, 8: 7}


def need(p, c):
    n = 0
    isv = lambda r: r[0] in 'va' and r != 'vcc'
    pv = p.kind in ('valu', 'trans')
    cv = c.kind in ('valu', 'trans')
    cmem = c.kind in ('vload', 'vstore', 'dma', 'dsr', 'dsw')
    if pv:
        wv = {r for r in p.wr if isv(r)}
        ws = p.wr - wv
        if c.kind == 'mfma' and wv & c.rd:
            n = max(n, 2)
        if cv:
            if p.kind == 'trans' and wv & c.rd:
                n = max(n, 1)
            if 'permlane' in c.op and wv & c.rd:
                n = max(n, 2)
            if ('row_' in c.text or 'quad_perm' in c.text or 'dpp' in c.text) and wv & c.rd:
                n = max(n, 2)
            if c.op.startswith(('v_readfirstlane', 'v_readlane')) and wv & c.rd:
                n = max(n, 1)
            if ws & c.rd:
                n = max(n, 4 if c.op.startswith(('v_readlane', 'v_writelane')) else 2)
        if p.kind == 'trans' and cmem and wv & c.rd:
            n = max(n, 1)
        if c.kind in ('vload', 'vstore', 'dma') and ws & c.rd:
            n = max(n, 5)
        if c.kind in ('salu', 'smem') and ws & c.rd:
            n = max(n, 1)
        if c.kind == 'branch' and ws & c.rd:
            n = max(n, 5)
    if p.kind == 'mfma':
        if (cv or cmem) and p.wr & (c.rd | c.wr):
            n = max(n, MF_VALU[p.passes])
        if c.kind == 'mfma':
            if p.wr & c.srcab:
                n = max(n, MF_VALU[p.passes])
            if p.wr & c.srcc:
                if p.wr == c.srcc and p.passes == c.passes:
                    n = max(n, 2 if p.passes == 2 else 0)
                else:
                    n = max(n, MF_OVL[p.passes])
            elif p.wr & c.wr:
                n = max(n, MF_OVL[p.passes])
        if cv and p.srcc & c.wr:
            n = max(n, MF_WAR[p.passes])
    if p.kind == 'salu' and 'm0' in p.wr and c.kind == 'dma':
        n = max(n, 1)
    if p.kind == 'vstore' and p.wide and p.arg & c.wr:
        n = max(n, 2)
    return n


def insert_nops(prog):
    out = []
    hist = []
    pos = 0
    nnops = 0
    for ins in prog:
        if ins.kind == 'label':
            out.append(ins)
            continue
        req = 0
        for p, pp in hist:
            d = pos - pp
            w = need(p, ins)
            if w > d:
                req = max(req, w - d)
        if req:
            k = req
            while k > 0:
                t = min(k, 16)
                out.append(Inst(f"s_nop {t - 1}", cond=ins.cond))
                out[-1].ool = ins.ool
                k -= t
            nnops += 1
            if not ins.cond:
                pos += req
        out.append(ins)
        if not ins.cond:
            pos += (ins.arg + 1) if ins.kind == 'nop' else 1
        if ins.kind in ('valu', 'trans', 'mfma', 'salu', 'vstore'):
            hist.append((ins, pos))
        hist = [(p, pp) for p, pp in hist if pos - pp < 14]
    return out, nnops


def hoist(prog):
    out = []
    for ins in prog:
        i = len(out)
        if ins.kind in ('dsr', 'dsw', 'vload', 'vstore', 'dma', 'salu') and not ins.cond and 'exec' not in ins.wr:
            while i > 0:
                q = out[i - 1]
                if q.kind not in ('valu', 'trans') or q.cond:
                    break
                if (q.wr & (ins.rd | ins.wr)) or (q.rd & ins.wr):
                    break
                i -= 1
            if i > 0 and out[i - 1].kind in ('valu', 'trans'):
                i = len(out)
        out.insert(i, ins)
    return out


_ctx = [0]


def ctx(groups):
    _ctx[0] += 1
    for g in groups:
        for i in (g if isinstance(g, list) else [g]):
            i.ctx = _ctx[0]
    return groups


def check(prog):
    own = {}
    for i in prog:
        if i.ctx is not None:
            own.setdefault(i.ctx, set()).update(r for r in i.wr if r[0] == 's' or r == 'm0')
    last = {}
    waited = set()
    for i in prog:
        if i.ctx is not None and i.kind in ('dma', 'vload', 'vstore'):
            for r in i.rd & own[i.ctx]:
                assert last.get(r) == i.ctx, f"scalar context broken at: {i.text}"
        for r in i.wr:
            last[r] = i.ctx
        if i.kind == 'waittag':
            waited.update(i.arg)
        elif i.tag and i.tag in waited and i.tag not in ('kvp', 'rtr'):
            raise AssertionError(f"op issued after wait on its tag {i.tag}: {i.text}")


def cost(i):
    if i.kind == 'valu':
        return 5.3 if i.op.startswith(('v_fma_', 'v_cvt_pk', 'v_cndmask', 'v_lshl_add', 'v_bfe', 'v_perm')) else 4.4
    if i.kind == 'trans':
        return 8.6
    if i.kind in ('label',):
        return 0
    return 4.3


def fill(prog, window=40):
    prog = list(prog)
    out = []
    now = 0.0
    free = 0.0
    lastp = 0
    ldage = {}
    i = 0
    while i < len(prog):
        ins = prog[i]
        if ins.kind == 'mfma' and not ins.cond:
            j = i + 1
            crossed_rd, crossed_wr = set(ins.rd), set(ins.wr)
            while free - now > 6.5 and j < min(i + window, len(prog)):
                c = prog[j]
                if c.cond or c.kind in ('label', 'branch', 'waitall', 'smem', 'nop') or 'exec' in c.wr:
                    break
                ok = c.kind in ('valu', 'trans') and not c.op.startswith(('v_writelane', 'v_readfirst', 'v_cmp'))
                if SINK and j == i + 1 and ins.passes < 8 and lastp == 8 and c.kind in ('dsr', 'vload', 'dma', 'vstore', 'salu') \
                        and out[-1].kind not in ('valu', 'trans'):
                    ok = True
                if ok and (c.rd & crossed_wr or c.wr & (crossed_rd | crossed_wr)):
                    ok = False
                if ok:
                    for r in c.rd | c.wr:
                        if r in ldage and (ldage[r][0] == 'vload' or len(out) - ldage[r][1] < 24):
                            ok = False
                if ok:
                    d = 0
                    for q in reversed(out[-16:]):
                        if need(q, c) > d:
                            ok = False
                            break
                        if q.kind not in ('label', 'waittag', 'waitall') and not q.cond:
                            d += 1
                if ok and cost(c) > free - now - 2:
                    ok = False
                if ok:
                    out.append(c)
                    now += cost(c)
                    for r in c.rd | c.wr:
                        ldage.pop(r, None)
                    if c.kind in ('vload', 'dsr'):
                        for r in c.wr:
                            ldage[r] = (c.kind, len(out))
                    del prog[j]
                else:
                    crossed_rd |= c.rd
                    crossed_wr |= c.wr
                    j += 1
            now = max(now + 2, free)
            dur = {8: 32, 4: 16, 2: 8 if lastp == 2 else 16}[ins.passes]
            free = now + dur
            now += 8
            lastp = ins.passes
        elif not ins.cond:
            now += cost(ins)
        for r in ins.rd | ins.wr:
            ldage.pop(r, None)
        if ins.kind in ('vload', 'dsr'):
            for r in ins.wr:
                ldage[r] = (ins.kind, len(out))
        out.append(ins)
        i += 1
    return out


def m0fix(prog):
    p = list(prog)
    for i in range(1, len(p) - 1):
        a, b, c = p[i - 1], p[i], p[i + 1]
        if b.kind == 'salu' and 'm0' in b.wr and c.kind == 'dma' and not b.cond and not a.cond \
                and a.kind in ('dsr', 'mfma', 'valu', 'trans', 'vload', 'vstore') and not (a.wr & b.rd):
            p[i - 1], p[i] = b, a
    return p


def layout(prog):
    main = [i for i in prog if i.ool is None]
    rest = [i for i in prog if i.ool is not None]
    return main + rest


def finalize(prog, dofill=True):
    check(prog)
    p = hoist(prog)
    if dofill:
        p = fill(p)
    p = insert_waits(m0fix(p))
    p, n = insert_nops(p)
    return layout(p)


def weave(main, fills, start=0, end=None):
    end = len(main) if end is None else end
    n = end - start
    out = [list(g) for g in main]
    k = 0
    for i in range(n):
        tgt = (len(fills) * (i + 1) + n - 1) // n
        while k < tgt:
            f = fills[k]
            out[start + i] += f if isinstance(f, list) else [f]
            k += 1
    assert k == len(fills)
    return out


def flat(groups):
    return [i for g in groups for i in g]
```

```python
import sys, os
sys.path.insert(0, os.path.dirname(os.path.abspath(__file__)))
from dsl import *

NAME = "sequential_preLN__linear_attn_block__glu_gated_swiglu__prompt"

CNT = 0x20000
KVM = 0x10000
ST = 0x18000
CS = 0x1C000
ZP = 0x1F800
STAMP = 0xC0000
PQ = 0x400000
HB = 0x800000
HH = 0x1000000
W13R = 0x2000000
W2R = 0x2800000
PROBE = 0x100000
XB2 = 0x2C00000
WS_SIZE = 0x3400000
OOB = 0x7f000000

X, WQKV, WO, W1, W3, W2, OUT, WS, DBG = [f"s[{a}:{a+3}]" for a in range(4, 40, 4)]
(sW, sG, sM, sC0, sT0, sT1, sT2, sT3, sXB, sWB, sXL, sWL, sTB, sCB, sRQ, sLOG2E,
 sU, sKC, sT4, sT5, sMSKHI, sEPS6) = [f"s{i}" for i in range(40, 62)]
sHILANES = "s[62:63]"
sB4LANES = "s[64:65]"
sA, sB, sCc, sD = "s66", "s67", "s68", "s69"
sKVA, sZA, sPQS, sRW, sR2, sRC, sKVL, sZL, sPQL, sSIG, sHST, sSTA = [f"s{i}" for i in range(84, 96)]
sMA, sTA, sHS, sRL = "s3", "s74", "s83", "s1"
sP1, sPE, sP2, sTBL = "s96", "s97", "s98", "s99"
STV = 0

VB, KB, XCH, RST, KVS, ZS = 0x10000, 0x18000, 0x20000, 0x22000, 0, 0x21000

L16, L4 = "v2", "v3"
TRK, TRP = 152, 156
XCW, XCR, KVW, ZW, STW, KVR, ZR, ZAT, STR = [f"v{i}" for i in range(212, 221)]
WOD, WOT, OAD = 221, 225, 229
ROWA, ZBW, ZBR, P256 = "v233", "v234", "v235", "v236"
RL1, RL3, RL2, RT13, RT2A, RT2B, CSAT, P4K, FA1, LM8, PA2 = [f"v{i}" for i in range(237, 248)]
RCS = 248
L16H = "v252"


def v(a, n=1):
    return f"v{a}" if n == 1 else f"v[{a}:{a+n-1}]"


def a_(a, n=1):
    return f"a{a}" if n == 1 else f"a[{a}:{a+n-1}]"


def mf32(d, A, B, c=None):
    return Inst(f"v_mfma_f32_32x32x16_bf16 {v(d,16)}, {A}, {B}, {v(d,16) if c is None else c}")


def mf16(d, A, B, c=None):
    return Inst(f"v_mfma_f32_16x16x32_bf16 {v(d,4)}, {A}, {B}, {v(d,4) if c is None else c}")


def mf4(d, A, B, c=None):
    return Inst(f"v_mfma_f32_4x4x4_16b_bf16 {v(d,4)}, {A}, {B}, {v(d,4) if c is None else c}")


def trpair(dst, addr, off, step):
    k, b = dst
    return [Inst(f"ds_read_b64_tr_b16 {k}[{b}:{b+1}], {addr} offset:{off}"),
            Inst(f"ds_read_b64_tr_b16 {k}[{b+2}:{b+3}], {addr} offset:{off+step}")]


def par13(t):
    return (t >> 1) & 1


def par2(pr, t):
    return (pr >> 1) if t < 3 else (t & 1) ^ 1


def split2(dst, src, t):
    return Seq()(f"""v_cvt_pk_bf16_f32 v{t}, v{src}, v{src}
         v_lshlrev_b32 v{t}, 16, v{t}
         v_sub_f32 v{t}, v{src}, v{t}
         v_cvt_pk_bf16_f32 v{dst}, v{src}, v{t}""")


cHB, cST, cHS, cHR, cCS, cW2, cHL, cOUT, cHS2 = [f"s{i}" for i in range(75, 84)]
cPP, cPQ, cPS, cPL, bTA, bTL, bK2, bQ2, bGP, bRP, bTX, cW2x, sGC, sMC = [f"s{i}" for i in (4, 5, 6, 7, 16, 17, 18, 19, 20, 21, 22, 23, 24, 25)]
W2A, W2B, LB1, LB2, WLA, WLB, WLC, WLD = [f"v{i}" for i in range(6, 14)]
CSL, HHA, HHB, HPA, LB0 = "v14", "v15", "v42", "v43", "v212"


class Gen:
    def __init__(self, opt):
        self.o = opt
        self.p = Seq()
        self.nl = 0
        self.nstamp = 0
        self.stamp_names = []

    def lab(self, s):
        self.nl += 1
        return f"L_{s}_{self.nl}"

    def stamp(self, name):
        if self.o.get('padat') == name:
            self.p("WAITALL lgkm\ns_memrealtime s[100:101]\nWAITALL lgkm")
        clk = "s_memtime" if self.o.get('segc') else "s_memrealtime"
        if self.o.get('seg0') == name:
            self.p(f"WAITALL lgkm\n{clk} s[72:73]\nWAITALL lgkm\ns_mov_b32 s101, s72")
        if self.o.get('seg1') == name:
            self.p(f"WAITALL lgkm\n{clk} s[72:73]\nWAITALL lgkm\ns_sub_u32 s101, s72, s101")
            if self.o.get('lo') is not None:
                self.p(f"s_cmp_lt_u32 s101, {self.o['thr']}\ns_movk_i32 s101, {self.o['hi']}\ns_cselect_b32 s101, {self.o['lo']}, s101")
            else:
                self.p(f"s_lshl_b32 s101, s101, {self.o.get('amp', 4)}")
            self.p("s_add_u32 s100, s100, s101")
        if self.o.get('stamps', 3) == 3:
            return
        fine = str(self.o.get('fine', ''))
        if name[0].islower() and name[0] not in fine:
            return
        if fine and name[0].isupper() and name[0].lower() not in fine and name not in ('C_t6', 'B_sync1', 'C_sync2', 'D_drained', 'A_loop', 'A_v', 'A_q'):
            return
        p = self.p
        if self.o.get('nb'):
            if self.nstamp > 1:
                p(f"v_writelane_b32 v{STV}, s72, {self.nstamp-1}", cond=True)
            p("s_memrealtime s[72:73]" if self.o['stamps'] == 1 else "s_memtime s[72:73]", cond=True)
            if name == 'D_drained':
                p(f"s_waitcnt lgkmcnt(0)\nv_writelane_b32 v{STV}, s72, {self.nstamp}", cond=True)
            self.nstamp += 1
            self.stamp_names.append(name)
            return
        p("WAITALL lgkm")
        p("s_memrealtime s[72:73]" if self.o['stamps'] == 1 else "s_memtime s[72:73]")
        p("WAITALL lgkm")
        p(f"v_writelane_b32 v{STV}, s72, {self.nstamp}")
        self.nstamp += 1
        self.stamp_names.append(name)

    def sub(self, fn):
        save = self.p
        self.p = Seq()
        fn()
        r = list(self.p)
        self.p = save
        return r

    def xf(self, L, key='x'):
        x = self.o.get(key, '')
        out = []
        for i in L:
            if 'v' in x and i.kind in ('vload', 'dma') and not i.cond and 'dwordx4' in i.op:
                continue
            if 'e' in x and i.kind in ('valu', 'trans') and not i.cond and i.op.endswith(('f32', 'f32_e64')):
                continue
            if 'l' in x and i.kind == 'dsr':
                continue
            if 's' in x and i.kind == 'vstore' and 'store' in i.op and not i.cond:
                continue
            if 'b' in x and i.op == 's_barrier':
                continue
            if 'm' in x and i.kind == 'mfma' and i.passes < 8:
                continue
            out.append(i)
        return out

    def ool(self, branch, text):
        p = self.p
        L, R = self.lab("o"), self.lab("r")
        p(f"{branch} {L}")
        n = len(p)
        p(f"{L}:\n{text}\ns_branch {R}", cond=True)
        for i in p[n:]:
            i.ool = L
        p(f"{R}:")

    def spin(self, vt, vaddr, soff, mask, target, srd=WS, mode='wave0', sleep=0, field=None, wave=0):
        p = self.p
        Lp = self.lab("pl")
        addr = f"{vaddr}, {srd}, {soff} offen" if vaddr else f"off, {srd}, {soff}"
        ext = f"v_and_b32 v43, {field}, {vt}\n" if field is not None else ""
        vc = "v43" if field is not None else vt
        loop = f"""s_mov_b32 {sT5}, 0
             s_mov_b64 exec, {mask}
             {Lp}:
             {f's_sleep {sleep}' if sleep and self.o.get('slp', 0) else ''}
             buffer_load_dword {vt}, {addr} sc1
             s_add_u32 {sT5}, {sT5}, 1
             s_waitcnt vmcnt(0)
             {ext}v_cmp_gt_u32 vcc, {target}, {vc}
             s_cmp_ge_u32 {sT5}, 0x8000
             s_cselect_b64 vcc, 0, vcc
             s_and_b64 exec, exec, vcc
             s_cbranch_scc1 {Lp}
             s_mov_b64 exec, -1"""
        if self.o.get('stamps') == 3:
            p(f"s_mov_b32 {sT5}, 0")
        if mode == 'check':
            p(f"{ext}v_cmp_gt_u32 vcc, {target}, {vc}\ns_and_b64 vcc, vcc, {mask}")
            self.ool("s_cbranch_scc1", loop)
        elif mode == 'wave0':
            Ld = self.lab("pd")
            p(f"s_cmp_lg_u32 {sW}, {wave}\ns_cbranch_scc1 {Ld}")
            p(loop, cond=True)
            p(f"{Ld}:")
        else:
            p(loop, cond=True)
            p("s_waitcnt vmcnt(0)")
        if self.o.get('stamps') == 3:
            p(f"v_writelane_b32 v{STV}, {sT5}, {self.nstamp}")
            self.nstamp += 1
            self.stamp_names.append(f"spin{self.nstamp}")

    def setup(self):
        p = self.p
        p(f"""s_cmp_ge_u32 s2, 256
             s_cbranch_scc1 L_end
             s_load_dwordx16 s[76:91], s[0:1], 0
             s_load_dwordx4 s[92:95], s[0:1], 64""")
        if self.o.get('codepf', 1):
            p(f"""s_getpc_b64 s[70:71]
                 s_lshr_b32 s3, s2, 3
                 s_lshl_b32 s3, s3, 10
                 v_lshrrev_b32 v200, 5, v0
                 v_lshl_add_u32 v200, v200, 7, s3
                 v_min_u32 v200, CODE_PF_MAX, v200
                 global_load_dword v201, v200, s[70:71]""")
        if self.o.get('rotid'):
            p(f"s_add_u32 s3, s2, {self.o['rotid']}\ns_and_b32 s3, s3, 7\ns_andn2_b32 s2, s2, 7\ns_or_b32 s2, s2, s3")
        p("v_and_b32 v1, 63, v0\nv_lshrrev_b32 v4, 6, v0")
        p(f"v_readfirstlane_b32 {sW}, v4")
        am = self.o.get('amap', 1)
        if am:
            hq = f"s_and_b32 {sT3}, s2, 1\ns_lshl_b32 {sMA}, {sT3}, 2\ns_lshr_b32 {sT0}, s2, 6\ns_add_u32 {sMA}, {sMA}, {sT0}"
            c0 = f"s_and_b32 {sC0}, {sT1}, 6\ns_add_u32 {sC0}, {sC0}, {sT3}\ns_lshr_b32 {sT0}, {sKC}, 1\ns_add_u32 {sC0}, {sC0}, {sT0}"
            if am == 1:
                c0 += f"\ns_lshl_b32 {sT0}, {sT2}, 2\ns_add_u32 {sC0}, {sC0}, {sT0}"
            if am == 2:
                c0 += f"\ns_add_u32 {sC0}, {sC0}, {sT0}"
            if am == 3:
                c0 += f"\ns_lshl_b32 {sT0}, {sRQ}, 1\ns_add_u32 {sC0}, {sC0}, {sT0}"
        else:
            hq = f"s_xor_b32 {sMA}, {sT1}, 4"
            c0 = f"s_add_u32 {sC0}, {sT1}, {sKC}"
        p(f"""s_mov_b32 s6, 0x200000
             s_mov_b32 s7, 0x20000
             s_mov_b32 s10, 0x180000
             s_mov_b32 s11, 0x20000
             s_lshr_b32 {sU}, s2, 3
             s_and_b32 {sKC}, s2, 7
             s_and_b32 {sRQ}, {sU}, 3
             s_and_b32 {sG}, s2, 6
             s_lshl_b32 {sG}, {sG}, 1
             s_add_u32 {sG}, {sG}, {sRQ}
             s_lshr_b32 {sT1}, s2, 5
             s_and_b32 {sT2}, {sT1 if am else 's2'}, 1
             s_lshl_b32 {sTA}, {sG}, 1
             s_add_u32 {sTA}, {sTA}, {sT2}
             s_lshl_b32 {sXL}, {sW}, 14
             s_lshl_b32 {sXB}, {sTA}, 16
             s_add_u32 {sXB}, {sXB}, {sXL}
             {hq}
             s_mul_i32 {sWB}, {sW}, {16*3072}
             s_lshl_b32 {sT0}, {sMA}, 7
             s_add_u32 {sWB}, {sWB}, {sT0}
             s_lshl_b32 {sWL}, {sW}, 11
             {c0}""")
        rot = self.o.get('rot', 6)
        if rot == 7:
            p(f"s_lshl_b32 {sT0}, {sU}, 2\ns_add_u32 {sC0}, {sC0}, {sT0}")
        if rot == 8:
            p(f"s_lshl_b32 {sT0}, {sRQ}, 1\ns_add_u32 {sC0}, {sC0}, {sT0}")
        if rot == 0:
            p(f"s_mov_b32 {sC0}, 0")
        if rot == 1:
            p(f"s_mov_b32 {sC0}, {sKC}")
        if rot == 9:
            p(f"s_lshl_b32 {sC0}, {sT1}, 1\ns_add_u32 {sC0}, {sC0}, {sKC}")
        p(f"""v_lshrrev_b32 v4, 3, v1
             v_and_b32 v5, 7, v1
             v_lshrrev_b32 v3, 4, v1
             v_xor_b32 v6, v5, v3
             v_lshlrev_b32 v6, 4, v6
             v_lshl_add_u32 v6, v4, 10, v6
             v_xor_b32 v7, 64, v6
             v_add_u32 v7, 7168, v7
             v_and_b32 v3, 1, v3
             v_lshlrev_b32 v3, 2, v3
             v_xor_b32 v5, v5, v3
             v_lshlrev_b32 v5, 4, v5
             v_mul_u32_u24 v8, 3072, v4
             v_add_u32 v8, v8, v5
             v_add_u32 v9, {8*3072-1024}, v8""")
        p("WAITALL lgkm")
        p("s_mov_b64 s[4:5], s[76:77]\ns_mov_b64 s[8:9], s[78:79]")

    def dmaW(self, t, c):
        base, po = ((KB, 1024), (VB, 2048), (0, 0))[t]
        tag = f"{'AVQ'[t]}{c}"
        S = Seq()
        S(f"s_add_u32 m0, {sWL}, {base + c*8192 - po}")
        S(f"buffer_load_dwordx4 v8, {WQKV}, s{75+c} offen offset:{po} lds", tag=tag)
        return ctx([list(S), [Inst(f"buffer_load_dwordx4 v9, {WQKV}, s{75+c} offen offset:{po+1024} lds", tag=tag)]])

    def dmaA(self, c):
        wc = f"s{75+c}"
        g = self.dmaW(0, c)
        g[0] = list(Seq()(f"""s_add_u32 {sT0}, {sC0}, {c}
             s_and_b32 {sT0}, {sT0}, 7
             s_mul_i32 {wc}, {sT0}, {64*3072}
             s_add_u32 {wc}, {wc}, {sWB}
             s_lshl_b32 {sT0}, {sT0}, 7""")) + g[0]
        nt = " nt" if self.o.get('xnt', 0) else ""
        S = Seq()
        S(f"s_add_u32 m0, {sWL}, {c*8192}\ns_add_u32 {sT0}, {sT0}, {sXB}")
        S(f"buffer_load_dwordx4 v6, {X}, {sT0} offen{nt} lds", tag=f"A{c}")
        g += [list(S), [Inst(f"buffer_load_dwordx4 v7, {X}, {sT0} offen offset:1024{nt} lds", tag=f"A{c}")]]
        return ctx(g)

    def dmaWO(self, q):
        S = Seq()
        S(f"""s_add_u32 {sT0}, {sA}, {q*65536}
             s_add_u32 m0, {sB}, {q*16384}
             s_and_b32 {sT0}, {sT0}, 0x7ffff""")
        g = []
        for k in range(4):
            S(f"buffer_load_dwordx4 v{WOD+k}, {WO}, {sT0} offen offset:{k*1024} lds", tag=f"WO{q>>2}")
            g.append(list(S))
            S = Seq()
        return ctx(g)

    def rload(self):
        nt = " nt" if self.o.get('rnt', 1) else ""
        g = []
        for k, (ad, srd, s0, s1) in enumerate(((RL1, W1, sKVL, sZL), (RL3, W3, sKVL, sZL), (RL2, W2, sPQL, sHST))):
            g.append(list(Seq()(f"s_add_u32 m0, {sSTA}, {k*2048}\nbuffer_load_dwordx4 {ad}, {srd}, {s0} offen{nt} lds")))
            g.append(list(Seq()(f"buffer_load_dwordx4 {ad}, {srd}, {s1} offen offset:1024{nt} lds", tag=f"RL{k}")))
            ctx(g[-2:])
        return g[4:] + g[:4]

    def miscA(self):
        M = Seq()
        a, b, c, d = "v208", "v209", "v210", "v211"
        am = self.o.get('amap', 1)
        cbx = f"s_lshr_b32 {sCB}, {sMA}, 1" if am else f"s_and_b32 {sCB}, {sM}, 3"
        M(f"""v_lshl_add_u32 {RL2}, v4, 10, v5
             v_mul_u32_u24 v4, 3584, v4
             v_add_u32 {RL1}, v4, v5
             v_xor_b32 {RL3}, 32, {RL1}
             v_mov_b32 v4, 1
             v_lshlrev_b32 {L4}, 2, v1
             s_mov_b32 {sLOG2E}, 0x3fb8aa3b
             s_mov_b32 {sMSKHI}, 0xffff0000
             s_mov_b32 {sEPS6}, 0x358637bd
             s_mov_b32 s62, 0
             s_mov_b32 s63, -1
             s_mov_b32 s64, 0xffff0000
             s_mov_b32 s65, 0xffff0000
             s_mov_b32 s96, 0x22222222
             s_mov_b32 s97, 0x22222222
             s_mov_b32 s98, 0x44444444
             s_mov_b32 s99, 0x44444444
             s_mov_b32 s70, 0x88888888
             s_mov_b32 s71, 0x88888888
             s_and_b32 {sM}, s2, 1
             s_lshl_b32 {sM}, {sM}, 3
             s_lshr_b32 {sT1}, s2, 5
             s_add_u32 {sM}, {sM}, {sT1}
             {cbx}
             s_and_b32 {sT1}, {sW}, 1
             s_lshr_b32 {sT2}, {sW}, 1
             s_lshl_b32 {sMA}, {sMA}, 1
             s_add_u32 {sMA}, {sMA}, {sT2}
             s_lshl_b32 {sTA}, {sTA}, 1
             s_add_u32 {sTA}, {sTA}, {sT1}""")
        M(f"""v_and_b32 {a}, 31, v1
             v_lshrrev_b32 {b}, 5, v1
             v_bfe_u32 {c}, v1, 1, 3
             v_xor_b32 {c}, {b}, {c}
             v_lshlrev_b32 {c}, 4, {c}
             v_lshl_add_u32 {c}, {a}, 7, {c}
             s_lshl_b32 {sT3}, {sT1}, 12
             s_lshl_b32 {sT4}, {sW}, 5
             s_add_u32 {sT3}, {sT3}, {sT4}
             v_xor_b32 v10, {sT3}, {c}
             v_xor_b32 v11, 32, v10
             v_xor_b32 v12, 64, v10
             v_xor_b32 v13, 96, v10
             s_lshl_b32 {sT3}, {sCB}, 1
             s_add_u32 {sT3}, {sT3}, {sT2}
             s_sub_u32 {sT3}, {sT3}, {sC0}
             s_and_b32 {sT3}, {sT3}, 7
             s_lshl_b32 {sT3}, {sT3}, 1
             s_bfe_u32 {sT4}, s2, {hex(0x10006 if am else 0x10007)}
             s_add_u32 {sT3}, {sT3}, {sT4}
             s_lshl_b32 {sT3}, {sT3}, 6
             s_add_u32 {sT3}, {sT3}, {sT1}
             s_lshl_b32 {sT3}, {sT3}, 6
             v_xor_b32 v14, {sT3}, {c}
             v_xor_b32 v15, 32, v14""")
        M(f"""s_lshl_b32 {sT3}, {sT2}, 8
             s_add_u32 {sT3}, {sT3}, {hex(XCH)}
             v_lshl_add_u32 {XCR}, {a}, 3, {sT3}
             s_lshl_b32 {sT3}, {sT1}, 2
             v_add_u32 {XCW}, {sT3}, {XCR}
             s_lshl_b32 {sT3}, {sW}, 9
             s_add_u32 {sT3}, {sT3}, {hex(XCH+2048)}
             v_lshl_add_u32 {STW}, v1, 3, {sT3}
             v_xor_b32 {STR}, 1024, {STW}
             v_lshlrev_b32 {KVW}, 4, {a}
             v_lshl_add_u32 {KVW}, {b}, 10, {KVW}
             s_add_u32 {sT3}, {sWL}, {hex(KVS)}
             v_add_u32 {KVW}, {sT3}, {KVW}
             s_lshl_b32 {sT3}, {sW}, 7
             s_add_u32 {sT3}, {sT3}, {hex(ZS)}
             v_lshl_add_u32 {ZW}, {a}, 2, {sT3}
             s_lshl_b32 {sT3}, {sT2}, 2
             s_add_u32 {sT3}, {sT3}, {sT1}
             s_lshl_b32 {sT4}, {sT3}, 10
             s_add_u32 {sT4}, {sT4}, {hex(KVS)}
             v_add_u32 {KVR}, {sT4}, {L4}
             s_lshl_b32 {sT4}, {sT3}, 6
             s_add_u32 {sT4}, {sT4}, {hex(ZS)}
             v_and_b32 {d}, 15, v1
             v_lshl_add_u32 {ZR}, {d}, 2, {sT4}
             v_lshrrev_b32 {d}, 4, v1
             v_lshl_add_u32 {ZAT}, {d}, 27, {L4}
             v_lshl_add_u32 {CSAT}, {b}, 27, {L4}
             v_lshrrev_b32 {LM8}, 3, v1
             v_lshlrev_b32 {LM8}, 27, {LM8}
             v_min_u32 {FA1}, 1, v1
             v_lshlrev_b32 {FA1}, 27, {FA1}
             s_lshl_b32 {sT3}, {sMA}, 1
             s_add_u32 {sT3}, {sT3}, {sT1}
             s_lshl_b32 {sKVA}, {sT3}, 10
             s_add_u32 {sKVA}, {sKVA}, {hex(KVM)}
             s_lshl_b32 {sZA}, {sT3}, 6
             s_add_u32 {sZA}, {sZA}, {hex(ZP)}
             s_lshl_b32 {sPQS}, {sTA}, 2
             s_lshr_b32 {sT3}, {sMA}, 2
             s_add_u32 {sPQS}, {sPQS}, {sT3}
             s_lshl_b32 {sPQS}, {sPQS}, 3
             s_and_b32 {sT3}, {sMA}, 3
             s_add_u32 {sPQS}, {sPQS}, {sT3}
             s_lshl_b32 {sPQS}, {sPQS}, 11
             s_add_u32 {sPQS}, {sPQS}, {hex(PQ)}
             s_lshl_b32 {sHS}, {sG}, 2
             s_add_u32 {sHS}, {sHS}, {sW}
             s_lshl_b32 {sHS}, {sHS}, 4
             s_add_u32 {sHS}, {sHS}, {sM}
             s_lshl_b32 {sHS}, {sHS}, 14
             s_add_u32 {sHS}, {sHS}, {hex(HH+4096)}""")
        M(f"""v_bfe_u32 {c}, v1, 2, 2
             v_lshlrev_b32 {a}, 10, {b}
             v_lshl_add_u32 {a}, {c}, 7, {a}
             v_bfe_u32 {c}, v1, 4, 1
             v_bfe_u32 {d}, v1, 3, 1
             v_lshl_add_u32 {d}, {d}, 1, {c}
             v_lshl_add_u32 {a}, {d}, 5, {a}
             v_and_b32 {d}, 1, v1
             v_lshl_add_u32 {RT2A}, {d}, 4, {a}
             v_bfe_u32 {d}, v1, 1, 1
             v_lshl_add_u32 {RT2A}, {d}, 3, {RT2A}
             v_and_b32 {d}, 3, v1
             v_lshl_add_u32 {a}, {d}, 3, {a}
             s_lshl_b32 {sT3}, {sT2}, 6
             s_add_u32 {sT3}, {sT3}, {sWL}
             s_add_u32 {sT4}, {sT3}, {hex(KB)}
             v_xor_b32 v{TRK}, {sT4}, {a}
             s_add_u32 {sT4}, {sT3}, {hex(VB)}
             v_xor_b32 v{TRP}, {sT4}, {RT2A}""")
        for j in range(1, 4):
            M(f"v_xor_b32 v{TRK+j}, {j*2048}, v{TRK}\nv_xor_b32 v{TRP+j}, {j*2048}, v{TRP}")
        M(f"""s_lshl_b32 {sT3}, {sW}, 5
             s_add_u32 {sT3}, {sT3}, {hex(RST)}
             v_xor_b32 {RT13}, {sT3}, {a if self.o.get('c16', 1) else RT2A}
             v_lshl_add_u32 {RT13}, {c}, 11, {RT13}
             s_mul_i32 {sSTA}, {sW}, 6144
             s_add_u32 {sSTA}, {sSTA}, {hex(RST)}
             v_add_u32 {RT2A}, {sSTA}, {a if self.o.get('d16', 1) else RT2A}
             v_xor_b32 {RT2B}, 64, {RT2A}""")
        M(f"""v_lshrrev_b32 {a}, 2, v1
             v_xor_b32 {a}, {a}, {c}
             v_and_b32 {a}, 1, {a}
             v_or_b32 {a}, {a}, {d}
             v_cmp_eq_u32 vcc, 0, {a}
             v_mov_b32 v20, 0x3f803f80
             v_mov_b32 v21, 0x3f803f80
             v_mov_b32 v22, 0x3f803f80
             v_mov_b32 v23, 0x3f803f80
             v_cndmask_b32 v16, 0, v20, vcc
             v_cndmask_b32 v17, 0, v20, vcc
             v_cndmask_b32 v18, 0, v20, vcc
             v_cndmask_b32 v19, 0, v20, vcc""")
        for r in (162, 163, 166, 167, 170, 171, 174, 175, 177, 178, 179):
            M(f"v_mov_b32 v{r}, 0")
        M(f"""v_lshrrev_b32 {a}, 4, v1
             v_bfe_u32 {c}, v1, 2, 2
             v_xor_b32 {c}, {c}, {a}
             v_lshlrev_b32 {c}, 6, {c}
             v_lshl_add_u32 {c}, {a}, 10, {c}
             v_lshl_add_u32 v{WOD}, {d}, 4, {c}
             v_add_u32 v{WOD+1}, 3072, v{WOD}
             v_add_u32 v{WOD+2}, 6144, v{WOD}
             v_add_u32 v{WOD+3}, 9216, v{WOD}
             s_lshl_b32 {sA}, {sRQ}, 17
             s_add_u32 {sA}, {sA}, {sXL}
             s_lshl_b32 {sT3}, {sCB}, 8
             s_add_u32 {sA}, {sA}, {sT3}""")
        M(f"""s_lshl_b32 {sT3}, {sKC}, 2
             s_add_u32 {sT3}, {sT3}, {sW}
             s_mul_i32 {sKVL}, {sT3}, {16*3584}
             s_lshl_b32 {sT3}, {sU}, 7
             s_add_u32 {sKVL}, {sKVL}, {sT3}
             s_lshl_b32 {sT2}, {sU}, 2
             s_add_u32 {sT2}, {sT2}, {sW}
             s_lshl_b32 {sPQL}, {sT2}, 14
             s_lshl_b32 {sT3}, {sKC}, 7
             s_add_u32 {sPQL}, {sPQL}, {sT3}
             s_add_u32 {sHST}, {sPQL}, 7168
             s_lshl_b32 {sRC}, {sT2}, 7
             s_add_u32 {sRC}, {sRC}, {hex(CS)}
             s_mul_i32 {sT3}, {sT2}, 9363
             s_lshr_b32 {sT3}, {sT3}, 16
             s_add_u32 {sT2}, {sT2}, {sT3}
             s_and_b32 {sT3}, {sKC}, 6
             s_add_u32 {sT3}, {sT3}, {sKC}
             s_lshl_b32 {sRW}, {sT2}, 4
             s_add_u32 {sRW}, {sRW}, {sT3}
             s_lshl_b32 {sRW}, {sRW}, 12
             s_add_u32 {sRW}, {sRW}, {hex(W13R)}
             s_andn2_b32 {sT3}, {sT2}, 3
             s_add_u32 {sT3}, {sT3}, {sT2}
             s_lshl_b32 {sR2}, {sKC}, 8
             s_add_u32 {sR2}, {sR2}, {sT3}
             s_lshl_b32 {sR2}, {sR2}, 11
             s_add_u32 {sR2}, {sR2}, {hex(W2R)}""")
        dup = self.o.get('dup', 0)
        if self.o.get('grp', 1):
            m13 = sum((par13(t) ^ m) << (8 * m + t) for m in range(2) for t in range(8))
            m2 = sum(par2(pr, t) << (8 * pr + t) for pr in range(4) for t in range(8))
            M(f"""s_and_b32 {sT3}, {sT2}, 15
                 s_lshr_b32 {sT3}, {hex(m13)}, {sT3}
                 s_lshr_b32 {sT4}, {hex(m2)}, {sT2}
                 s_xor_b32 {sT4}, {sT4}, {sKC}""")
        else:
            M(f"s_lshr_b32 {sT3}, {sKC}, 1\ns_lshr_b32 {sT4}, {sT2}, 5")
        M(f"""s_and_b32 {sT3}, {sT3}, {0 if dup & 1 else 1}
             s_lshl_b32 {sT3}, {sT3}, 13
             s_add_u32 {sRW}, {sRW}, {sT3}
             s_and_b32 {sT4}, {sT4}, {0 if dup & 2 else 1}
             s_lshl_b32 {sT4}, {sT4}, 13
             s_add_u32 {sR2}, {sR2}, {sT4}
             s_cmp_ge_u32 s2, 224
             s_cselect_b32 {sRW}, {hex(OOB)}, {sRW}
             s_cselect_b32 {sR2}, {hex(OOB)}, {sR2}
             s_cselect_b32 {sRC}, {hex(OOB)}, {sRC}
             s_cselect_b32 {sKVL}, {hex(OOB)}, {sKVL}
             s_and_b32 {sT3}, {sT2}, 7
             s_cmp_ge_u32 {sT3}, {self.o.get('lt', 4)}
             s_cselect_b32 {sRL}, {sRW}, {hex(OOB)}
             s_cselect_b32 {sRW}, {hex(OOB)}, {sRW}
             s_add_u32 {sZL}, {sKVL}, {8*3584-1024}
             s_and_b32 {sSIG}, {sU}, 15
             s_lshl_b32 {sSIG}, {sSIG}, 8
             s_add_u32 {sSIG}, {sSIG}, {hex(CNT)}
             s_cmp_eq_u32 {sW}, 0
             s_cselect_b32 {sSIG}, {sSIG}, {hex(OOB)}""")
        return M

    def miscB(self):
        M = Seq()
        a, b, c, d = "v208", "v209", "v210", "v211"
        M(f"""s_bfe_u32 {sTB}, s2, {hex(0x10006 if self.o.get('amap', 1) else 0x10007)}
             s_and_b32 {sT3}, {sTA}, 62
             s_add_u32 {sTB}, {sTB}, {sT3}
             s_lshl_b32 {sT4}, {sRQ}, 1
             s_add_u32 {sT4}, {sT4}, {sW}
             s_and_b32 {sT4}, {sT4}, 7
             s_lshl_b32 {sKVL}, {sT4}, 12
             s_add_u32 {sKVL}, {sKVL}, {hex(KVM)}
             s_xor_b32 {bK2}, {sKVL}, 0x4000
             s_lshl_b32 {sT2}, {sTB}, 16
             s_and_b32 {sPQL}, {sT4}, 6
             s_add_u32 {sPQL}, {sPQL}, {sT4}
             s_lshl_b32 {sPQL}, {sPQL}, 12
             s_add_u32 {sPQL}, {sPQL}, {sT2}
             s_add_u32 {sPQL}, {sPQL}, {hex(PQ)}
             s_xor_b32 {sPQL}, {sPQL}, {sP1}
             s_xor_b32 {bQ2}, {sPQL}, 0x8000
             s_lshl_b32 {sT4}, {sT4}, 8
             s_mov_b32 {sZL}, {hex(ZP)}
             s_lshl_b32 {sHST}, {sCB}, 14
             s_add_u32 {sHST}, {sHST}, {sT2}
             s_add_u32 {sHST}, {sHST}, {sWL}
             s_add_u32 {sHST}, {sHST}, {hex(HB)}
             s_xor_b32 {sHST}, {sHST}, {sPE}
             s_lshl_b32 {sSTA}, {sTB}, 4
             s_add_u32 {sSTA}, {sSTA}, {sCB}
             s_lshl_b32 {sSTA}, {sSTA}, 14
             s_add_u32 {sSTA}, {sSTA}, {hex(HH+7168+768)}
             s_xor_b32 {sSTA}, {sSTA}, {sP2}
             s_lshl_b32 {sD}, {sTB}, 2
             s_add_u32 {sD}, {sD}, {sCB}
             s_lshl_b32 {sD}, {sD}, 16
             s_add_u32 {sD}, {sD}, {sXL}
             s_add_u32 {sD}, {sD}, {hex(HH+7168)}
             s_xor_b32 {sD}, {sD}, {sP2}
             v_lshrrev_b32 {b}, 5, v1
             v_and_b32 {a}, 31, v1
             v_lshlrev_b32 {ROWA}, 10, {a}
             v_lshl_add_u32 {ROWA}, {b}, 4, {ROWA}
             v_lshlrev_b32 v41, 3, {a}
             v_lshl_add_u32 v41, {b}, 10, v41
             v_xor_b32 v41, {sT4}, v41
             v_bfe_u32 {c}, v1, 2, 2
             v_and_b32 {a}, 1, v1
             v_lshlrev_b32 {a}, 4, {a}
             v_bfe_u32 {d}, v1, 1, 1
             v_lshl_add_u32 {a}, {d}, 3, {a}
             v_lshl_add_u32 {d}, {b}, 11, {a}
             v_lshl_add_u32 {d}, {c}, 8, {d}
             v_xor_b32 {c}, {sW}, {c}
             v_lshl_add_u32 {d}, {c}, 6, {d}
             v_bfe_u32 {c}, v1, 4, 1
             v_lshl_add_u32 {d}, {c}, 5, {d}""")
        for q in range(4):
            M(f"""s_xor_b32 {sT2}, {sW}, {q}
                 s_lshl_b32 {sT3}, {sT2}, 14
                 v_add_u32 v{WOT+q}, {sT3}, {d}
                 s_lshl_b32 {sT2}, {sT2}, 12
                 s_add_u32 {sT2}, {sT2}, 0x20000
                 v_add_u32 v{OAD+q}, {sT2}, {L16}""")
        M(f"""s_lshl_b32 {sT2}, {sW}, 12
             s_add_u32 {sT2}, {sT2}, {0x20000+16384+3072}
             v_add_u32 {ZBW}, {sT2}, {L4}
             v_xor_b32 {d}, 1, {c}
             v_lshlrev_b32 {d}, 5, {d}
             v_lshl_add_u32 {d}, {b}, 4, {d}
             v_add_u32 {ZBR}, {sT2}, {d}
             v_lshrrev_b32 {d}, 4, v1
             v_lshlrev_b32 {P256}, 8, v1
             v_lshl_add_u32 {P256}, {d}, 27, {P256}
             s_lshl_b32 {bTL}, {sW}, 13
             s_lshr_b32 {sT2}, {sTBL}, {sKC}
             s_and_b32 {sT2}, {sT2}, 0x2000
             s_lshl_b32 {bGP}, {sKC}, 14
             s_add_u32 {bGP}, {bGP}, {sT2}
             s_add_u32 {bGP}, {bGP}, {hex(CNT)}
             s_add_u32 {bRP}, {bGP}, 4096""")
        for k in range(8):
            M(f"v_lshlrev_b32 v{192+2*k}, 16, v{24+k}\nv_and_b32 v{193+2*k}, {sMSKHI}, v{24+k}")
        return M

    def phaseA(self):
        p = self.p
        o = self.o
        pre = o.get('pre', 0)
        if pre:
            nt = " nt" if o.get('xnt', 0) else ""
            p(f"""s_lshl_b32 {sT3}, {sMA}, 2
                 s_add_u32 {sT3}, {sT3}, {sW}
                 s_lshl_b32 {sT3}, {sT3}, 11
                 s_lshl_b32 {sT4}, {sTA}, 16
                 s_add_u32 {sT3}, {sT3}, {sT4}
                 s_lshl_b32 {sT4}, s2, 2
                 s_add_u32 {sT4}, {sT4}, {sW}
                 s_mul_i32 {sT4}, {sT4}, 1536
                 v_lshrrev_b32 v196, 2, v1
                 v_lshlrev_b32 v196, 7, v196
                 v_min_u32 v197, 1408, v196""")
            if pre & 1:
                p(f"buffer_load_dword v194, v196, {X}, {sT3} offen{nt}")
            if pre & 2:
                p(f"buffer_load_dword v195, v197, {WQKV}, {sT4} offen")
        self.stamp("s_karg")
        p.extend(flat(self.dmaA(0)))
        self.stamp("s_dma0")
        p(f"v_lshlrev_b32 {L16}, 4, v1")
        tch = Seq()
        touch = o.get('touch', 3)
        tch(f"""s_lshl_b32 {sCc}, s2, 2
             s_add_u32 {sCc}, {sCc}, {sW}
             s_lshr_b32 {sT4}, {sCc}, 1
             s_mul_i32 {sT4}, {sT4}, 3072
             s_and_b32 {sT5}, {sCc}, 1
             s_lshl_b32 {sT5}, {sT5}, 11
             s_add_u32 {sT4}, {sT4}, {sT5}
             s_lshl_b32 {sCc}, {sCc}, 9
             v_lshrrev_b32 v202, 3, v1
             v_lshlrev_b32 v202, 7, v202
             v_lshrrev_b32 v42, 4, v1
             v_lshlrev_b32 v42, 7, v42""")
        if touch & 4:
            tch(f"""s_lshl_b32 {sT3}, {sU}, 2
                 s_add_u32 {sT3}, {sT3}, {sW}
                 s_mul_i32 {sT3}, {sT3}, {4*3072}
                 s_and_b32 {sT5}, s2, {1 if o.get('amap', 1) else 0}
                 s_lshl_b32 {sT5}, {sT5}, 24
                 s_add_u32 {sT3}, {sT3}, {sT5}
                 v_min_u32 v200, 11, v1
                 v_lshlrev_b32 v200, 10, v200
                 buffer_load_dword v198, v200, {WQKV}, {sT3} offen offset:384""")
        if touch & 1:
            tch(f"buffer_load_dword v203, v202, {WQKV}, {sT4} offen")
        tat = o.get('tat', -1)
        if tat == -2:
            p.extend(tch)
        d1 = self.dmaA(1)
        n1 = o.get('d1', 4)
        p.extend(flat(d1[:n1]))
        if tat == -1:
            p.extend(tch)
        for srd, src, sz in ((12, 80, 0x80000), (16, 84, 0x1C0000), (20, 86, 0x1C0000), (24, 88, 0x1C0000),
                             (28, 90, 0x200000), (36, 92, 256), (32, 94, WS_SIZE)):
            p(f"s_mov_b64 s[{srd}:{srd+1}], s[{src}:{src+1}]\ns_mov_b32 s{srd+2}, {hex(sz)}\ns_mov_b32 s{srd+3}, 0x20000")
        self.stamp("s_srd")
        tlb = o.get('tlb', 0)
        if tlb:
            p(f"""v_min_u32 v194, 1, v1
                 v_lshlrev_b32 v194, 27, v194
                 s_lshl_b32 {sT3}, {sW}, 5
                 s_add_u32 {sT3}, {sT3}, {sU}
                 s_lshl_b32 {sT4}, {sT3}, 21
                 buffer_load_dword v195, v194, {WS}, {sT4} offen""")
            if tlb & 2:
                for k, srd in enumerate((OUT, W1, W3, W2, WO, DBG)):
                    p(f"""s_cmp_eq_u32 {sT3}, {24+k}
                         s_cselect_b32 {sT4}, 0, {hex(OOB)}
                         buffer_load_dword v{188+k}, v194, {srd}, {sT4} offen""")
        if o.get('wsoff'):
            p(f"s_add_u32 s32, s32, {o['wsoff'] << 20}\ns_addc_u32 s33, s33, 0")
        Lz = self.lab("z")
        p(f"""s_lshl_b32 {sB}, {sW}, 8
             s_add_u32 {sB}, {sB}, 224
             s_cmp_lt_u32 s2, {sB}
             s_cbranch_scc1 {Lz}""")
        padr = f"""s_sub_u32 {sT2}, s2, 224
             s_and_b32 {sT1}, {sU}, 1
             s_lshl_b32 {sT3}, {sT1}, 5
             s_add_u32 {sT3}, {sT3}, {sT2}
             s_lshl_b32 {sT3}, {sT3}, 8
             s_add_u32 {sT3}, {sT3}, {hex(PROBE)}
             s_xor_b32 {sT4}, {sT3}, 0x2000
             s_waitcnt lgkmcnt(0)
             s_buffer_load_dword {sT5}, {WS}, {sT3} glc
             s_buffer_load_dword {sT5}, {WS}, {sT4} glc"""
        p(f"""{padr.replace(sT5, sD)}
             v_mov_b32 v16, 0
             v_mov_b32 v17, 0
             v_mov_b32 v18, 0
             v_mov_b32 v19, 0
             s_lshl_b32 {sT4}, {sT2}, 11
             s_lshl_b32 {sT3}, {sT2}, 12
             s_add_u32 {sT3}, {sT3}, {hex(CNT)}
             s_add_u32 {sT4}, {sT4}, {hex(KVM)}
             buffer_store_dwordx4 v[16:19], {L16}, {WS}, {sT4} offen sc1
             buffer_store_dwordx4 v[16:19], {L16}, {WS}, {sT4} offen offset:1024 sc1
             buffer_store_dwordx4 v[16:19], {L16}, {WS}, {sT3} offen sc1
             buffer_store_dwordx4 v[16:19], {L16}, {WS}, {sT3} offen offset:1024 sc1
             buffer_store_dwordx4 v[16:19], {L16}, {WS}, {sT3} offen offset:2048 sc1
             buffer_store_dwordx4 v[16:19], {L16}, {WS}, {sT3} offen offset:3072 sc1""", cond=True)
        p(f"{Lz}:")
        probe = f"""{padr}
             s_getreg_b32 {sT4}, hwreg(HW_REG_XCC_ID, 2, 1)
             s_waitcnt lgkmcnt(1)
             s_nop {o.get('pnop', 15)}
             s_getreg_b32 {sT2}, hwreg(HW_REG_IB_STS, 8, 4)
             s_waitcnt lgkmcnt(0)
             s_min_u32 {sT2}, {sT2}, 1
             s_xor_b32 {sT1}, {sT1}, {sT4}
             s_cmp_lg_u32 {sT1}, {sT2}
             s_cselect_b32 {sT2}, 64, 4096
             s_add_u32 {sT2}, {sT2}, 1
             s_add_u32 {sT5}, {sKC}, 18
             s_lshl_b32 {sT4}, {sT4}, {sT5}
             s_cmp_eq_u32 {sU}, 28
             s_cselect_b32 {sT4}, {sT4}, 0
             s_add_u32 {sT2}, {sT2}, {sT4}
             v_mov_b32 v46, {sT2}"""
        MA = self.miscA()
        ma = o.get('ma', 999)
        p.extend(MA[:ma])
        if ma < len(MA):
            p("FENCE")
            p.extend(flat(d1[n1:]) + flat(self.dmaA(2)))
            p("FENCE")
            p.extend(MA[ma:])
        self.stamp("s_misc")
        if o.get('pat', 0) == 0:
            Lz = self.lab("z")
            p(f"s_cmp_lt_u32 s2, {sB}\ns_cbranch_scc1 {Lz}")
            p(probe, cond=True)
            p(f"{Lz}:")
            probe = ""
        if tat == 0:
            p.extend(tch)
        SEL, ONES = v(16, 4), v(20, 4)
        XS, XQ0, XQ1, CSA, ZA = 252, 248, 32, 36, 44
        AK, AV, AQ, RB, AKV = 48, 64, 80, 96, 112
        WR = 128
        XM, WP, RS_ = 160, 164, 176

        def wread(t, s, dst=None):
            n = t * 32 + s
            addr = (TRK, TRP, TRK)[t]
            return trpair(('v', WR + 4 * (n % 6) if dst is None else dst), f"v{addr+(s&3)}", (s >> 2) * 8192, 512)

        def wf(t, s):
            return v(WR + 4 * ((t * 32 + s) % 6), 4)

        def csm(f, first):
            return mf16(CSA, SEL, f, "0" if first else None)

        def cswrite(t):
            S = split2(41, CSA, 41)
            S(f"ds_write_b32 {XCW}, v41 offset:{t*512}", tag=f"x{t}")
            return list(S)

        def csget(t):
            return [Inst(f"ds_read_b64 {v(WP+4*t,2)}, {XCR} offset:{t*512}")]

        def xread(s):
            return [Inst(f"ds_read_b128 {a_(4*s,4)}, v{10+(s&3)} offset:{(s>>2)*8192}")]

        if ma >= len(MA):
            p.extend(flat(d1[n1:]))
        d2 = self.dmaA(2) if ma >= len(MA) else []
        n2_ = o.get('dd2', 4)
        p.extend(flat(d2[:n2_]))
        self.stamp("A_issued")
        p("WAITTAG A0\ns_barrier")
        self.stamp("A_c0")
        p.extend(xread(0) + wread(0, 0) + xread(1) + wread(0, 1))
        p.extend(flat(d2[n2_:]))
        ad = o.get('ad', 4)
        nv1 = o.get('nv1', 14)
        vq = flat([self.dmaW(1, k) for k in range(8)])
        pend = flat([self.dmaA(k) for k in range(3, ad)])
        for s in range(32):
            c, j = s >> 2, s & 3
            xf = a_(4 * s, 4)
            z = "0" if s == 0 else None
            p.append(mf32(AK, xf, wf(0, s), z))
            if j == 2 and c < 7:
                p(f"WAITTAG A{c+1}\ns_barrier")
                self.stamp(f"a{c+1}")
                assert not pend
                if c == 1:
                    p(f"s_cmp_ge_u32 s2, {sB}")
                    self.ool("s_cbranch_scc1", f"{probe}\nbuffer_atomic_add v46, {FA1}, {DBG}, 0 offen sc1")
                if c + 1 == tat:
                    p.extend(tch)
                if c + ad < 8:
                    pend = self.dmaA(c + ad)
                else:
                    pend, vq = vq[:4], vq[4:]
            if s == 30:
                p("WAITTAG V1\ns_barrier")
                k = max(0, nv1 - (16 - len(vq)))
                assert k <= 2
                pend, vq = vq[:k], vq[k:]
            if s + 2 < 32:
                p.extend(xread(s + 2) + wread(0, s + 2))
            else:
                p.extend(wread(1, s + 2 - 32))
            if s == 28:
                p("ds_read_b128 v[24:27], v14\nds_read_b128 v[28:31], v15", tag="xres")
            for _ in range(2 * (ad - 3) if s < 2 else 1):
                if pend:
                    p.extend(pend.pop(0))
            if j % 2 == 0:
                p.append(csm(wf(0, s), s == 0))
            if j < 2:
                p.append(mf16(XS, SEL, xf, z))
                p.append(mf4(XQ0, a_(4 * s, 2), a_(4 * s, 2), z))
                p.append(mf4(XQ1, a_(4 * s + 2, 2), a_(4 * s + 2, 2), z))
            if s == 30:
                for k in range(4):
                    p(f"v_add_f32 v{XQ0+k}, v{XQ0+k}, v{XQ1+k}")
                p(f"""v_cndmask_b32 v197, v{XQ0}, v{XQ0+1}, s[96:97]
                     v_cndmask_b32 v197, v197, v{XQ0+2}, s[98:99]
                     v_cndmask_b32 v197, v197, v{XQ0+3}, s[70:71]
                     v_mov_b32 v196, v197""")
            if s == 31:
                p(f"""v_permlane32_swap_b32 v196, v197
                     v_add_f32 v{XS+1}, v196, v197
                     ds_write_b64 {STW}, {v(XS,2)}""")
                p.extend(cswrite(0))
        assert not pend
        self.stamp("A_loop")
        CT = (204, 208, ZA)
        kb = o.get('kb', 11)

        def tilepass(t, acc, order):
            nm = "VQ"[t - 1]
            G = []
            for s in range(32):
                A_, B_ = (a_(4 * s, 4), wf(t, s)) if order == 0 else (wf(t, s), a_(4 * s, 4))
                g = Seq()
                g.append(mf32(acc, A_, B_, "0" if s == 0 else None))
                if t == 1 and s == 2:
                    g("WAITTAG x0 xres" + (" V3" if ad >= 4 else "") + "\ns_barrier")
                    g(f"ds_read_b64 v[198:199], {STR}")
                    g.extend(csget(0))
                if t == 2 and o.get('fb', 2) & 2:
                    if s == 4:
                        g("WAITTAG Q3\ns_barrier")
                    if s == kb:
                        assert kb <= 12
                        g("WAITTAG kvp Q7\ns_barrier")
                elif t == 1 and o.get('fb', 2) & 1:
                    if s == 12:
                        g("WAITTAG V7\ns_barrier")
                elif s % 8 == 4 and s < 28 and ((t, s) != (1, 4) or ad < 4):
                    g(f"WAITTAG {nm}{(s+4)//4+1} kvp\ns_barrier")
                elif t == 2 and s == kb:
                    g("WAITTAG kvp\ns_barrier")
                if s == 28:
                    g(f"WAITTAG x{t}" + (" Q1" if t == 1 else "") + "\ns_barrier")
                    g.extend(csget(t))
                if t == 1 and s < 2:
                    g.extend(wread(t, 2 + 2 * s) + wread(t, 3 + 2 * s))
                elif s + 4 < 32:
                    g.extend(wread(t, s + 4))
                elif t == 1:
                    g.extend(wread(2, s + 4 - 32))
                if s in (20, 21, 22):
                    g.extend(wread(t, 26 + 2 * (s - 20), CT[s - 20]))
                if s % 2 == 0 and s < 26 and (t, s) != (1, 0):
                    g.append(csm(wf(t, s), (t, s) == (2, 0)))
                if (t, s) == (1, 1):
                    g.append(csm(wf(t, 0), True))
                if s in (23, 24, 25):
                    g.append(csm(v(CT[s - 23], 4), False))
                if s == 26:
                    g.extend(cswrite(t))
                G.append(list(g))
            return G

        def phi(acc, scale, T, dst):
            S = Seq()
            for h in range(2):
                r = range(8 * h, 8 * h + 8)
                for i in r:
                    S(f"v_fma_f32 v{acc+i}, v{acc+i}, {scale(i)}, {sEPS6}")
                for i in r:
                    S(f"v_mul_f32 v{T+(i&7)}, {sLOG2E}, v{acc+i}")
                for i in r:
                    S(f"v_exp_f32_e64 v{T+(i&7)}, v{T+(i&7)} clamp")
                    S(f"v_max_f32 v{acc+i}, {sEPS6}, v{acc+i}")
                for i in r:
                    S(f"v_add_f32 v{acc+i}, v{acc+i}, v{T+(i&7)}")
                for i in range(4 * h, 4 * h + 4):
                    S(f"v_cvt_pk_bf16_f32 v{dst+i}, v{acc+2*i}, v{acc+2*i+1}")
            return S
        E = Seq()
        E(f"""v_add_f32 v198, v198, v{XS}
             v_add_f32 v197, v199, v{XS+1}
             v_mul_f32 v199, 0x3b000000, v198
             v_mul_f32 v197, 0x3b000000, v197
             v_cvt_pk_bf16_f32 v198, -v199, -v199
             v_fma_f32 v197, -v199, v199, v197
             v_cndmask_b32 v{XM}, v198, 0, {sHILANES}
             v_cndmask_b32 v{XM+1}, v198, 0, {sHILANES}
             v_max_f32 v197, 0, v197
             v_add_f32 v197, 0x3727c5ac, v197
             v_rsq_f32 v40, v197""")
        E.append(mf32(AK, v(XM, 4), v(WP, 4)))
        E.extend(split2(RS_, 40, 198))
        E(f"v_cndmask_b32 v{RS_}, v{RS_}, 0, {sHILANES}")
        E.append(mf32(RB, v(RS_, 4), ONES, "0"))
        PK = phi(AK, lambda i: f"v{RB+i}", 196, 180)
        G = tilepass(1, AV, 0)
        v2e = o.get('v2e', 2)
        qq = flat([self.dmaW(2, k) for k in range(8)])
        nq2 = o.get('nq2', 16)
        G = weave(G, vq, 0, v2e)
        G = weave(G, qq[:nq2], max(3, v2e), o.get('q2end', 30))
        G[0] += [Inst(f"v_subrev_u32 v{TRK+j}, {hex(VB)}, v{TRP+j}") for j in range(4)]
        G[12] += [Inst(f"buffer_load_dword v5, {FA1}, {DBG}, 0 offen sc1")]
        n2 = o.get('pk2', 88)
        G = weave(G, list(E), 4, 8)
        G = weave(G, PK[:n2], 10, 32)
        for k in range(3, 31, 4):
            G[k] += self.sub(lambda: self.stamp(f"v{k}"))
        p.extend(flat(G))
        p.append(mf32(AV, v(XM, 4), v(WP + 4, 4)))
        self.stamp("A_v")
        if o.get('skew') is not None:
            p(f"""s_not_b32 s101, s100
                 v_mov_b32 v43, s101
                 buffer_atomic_umax v43, {FA1}, {DBG}, 0 offen offset:128 sc1
                 v_mov_b32 v41, s100
                 buffer_atomic_umax v41, {FA1}, {DBG}, 0 offen offset:192 sc1""")
        E = Seq()
        E.extend(PK[n2:])
        for i in range(16):
            E(f"v_mul_f32 v{AV+i}, v{AV+i}, v{RB+i}")
        for i in range(8):
            E(f"v_cvt_pk_bf16_f32 v{188+i}, v{AV+2*i}, v{AV+2*i+1}")
        G = tilepass(2, AQ, 1)
        rq = self.rload()
        if o.get('nor'):
            rq = []
        if touch & 2:
            rq = rq[:2] + [[Inst(f"buffer_load_dword v42, v42, {WO}, {sCc} offen")]] + rq[2:]
        e2 = o.get('e2', 0)
        R2T = trpair(('a', 144), RT2A, 4096, 512) + trpair(('a', 148), RT2B, 4096, 512)
        R2S = [Inst(f"buffer_store_dwordx4 a[144:147], {L16}, {WS}, {sR2} offen sc1", tag="pub1" if e2 else "pubR"),
               Inst(f"buffer_store_dwordx4 a[148:151], {L16}, {WS}, {sR2} offen offset:1024 sc1", tag="pub1" if e2 else "pubR")]
        dup = o.get('dup', 0)
        if dup & 2:
            assert not e2
            R2S += [Inst(x.text.replace(L16, L16H), tag=x.tag) for x in R2S]
        if e2:
            G[e2] += [Inst("WAITTAG RL2")] + R2T
            G[e2 + 3] += R2S[:1]
            G[e2 + 5] += R2S[1:]
            R2T, R2S = [], []
        r0 = o.get('r0', 0)
        if nq2 < 16:
            G = weave(G, qq[nq2:], 0, r0)
        G = weave(G, rq, r0, o.get('r1', r0 + 7))
        if o.get('rwait'):
            G[o.get('r1', 7)] += list(Seq()("WAITALL vm")) + self.sub(lambda: self.stamp("A_rland"))
        woq = flat([self.dmaWO(q) for q in range(8)])
        nw3 = o.get('wo3', 0)
        G[13] += [Inst(f"s_lshl_b32 {sB}, {sW}, 12")]
        if nw3:
            G = weave(G, woq[:nw3], o.get('wo30', 26), 32)
        G = weave(G, list(E), 0, kb - 5)
        G[kb - 5] += [mf32(AKV, v(180, 4), v(188, 4), "0"), mf32(AKV, v(184, 4), v(192, 4)),
                 mf16(ZA, SEL, v(180, 4), "0"), mf16(ZA, SEL, v(184, 4))]
        G[kb - 4] += self.sub(lambda: self.spin("v5", None, "0", "1", "32", srd=DBG, mode='check', sleep=4, field=63))
        S = Seq()
        S(f"""v_readfirstlane_b32 {sT2}, v5
             s_bfe_u32 {sT3}, {sT2}, 0x60006
             s_bfe_u32 {sT4}, {sT2}, 0x6000c
             s_lshr_b32 {sT2}, {sT2}, 5""")
        S = [[i] for i in S] + [list(Seq()(f"""s_cmp_gt_u32 {sT4}, {sT3}
             s_cselect_b32 {sT3}, {'0, -1' if o.get('parx') else '-1, 0'}"""))]
        S += [[i] for i in Seq()(f"""s_xor_b32 {sTBL}, {sT2}, {sT3}
             s_and_b32 {sT2}, {sKC}, {6 if o.get('amap', 1) else 7}
             s_lshr_b32 {sT2}, {sTBL}, {sT2}
             s_lshl_b32 {sT3}, {sG}, 10
             s_xor_b32 {sP1}, {sT2}, {sT3}
             s_and_b32 {sP1}, {sP1}, 0x2000
             s_xor_b32 {sPQS}, {sPQS}, {sP1}
             s_lshr_b32 {sPE}, {sTBL}, 3
             s_and_b32 {sPE}, {sPE}, 0x2000
             s_lshl_b32 {sT4}, {sG}, 12
             s_xor_b32 {sP2}, {sT3}, {sT4}
             s_and_b32 {sP2}, {sP2}, 0x2000
             s_xor_b32 {sP2}, {sP2}, {sPE}
             s_xor_b32 {sHS}, {sHS}, {sP2}
             v_mov_b32 v176, 0
             v_lshrrev_b32_e64 {P4K}, v1, {sTBL}
             v_and_b32 {P4K}, 0x2000, {P4K}
             v_lshl_add_u32 {P4K}, v1, 14, {P4K}
             v_or_b32 {P4K}, {P4K}, {LM8}""")]
        S += [[Inst(f"buffer_store_dwordx4 v[176:179], {L16}, {WS}, {sHS} offen offset:3072 sc1", tag="pub1")]]
        G = weave(G, S, 19, 31)
        S = Seq()
        for i in range(8):
            S(f"v_cndmask_b32 v{196+i}, v{AKV+i}, v{AKV+8+i}, {sB4LANES}")
        S(f"""ds_write_b128 {KVW}, v[196:199]
             ds_write_b128 {KVW}, v[200:203] offset:512""")
        S(f"ds_write_b32 {ZW}, v{ZA}", tag="kvp")
        G = weave(G, list(S), kb - 3, kb - 1)
        S = Seq()
        for k in range(4):
            S(f"ds_read2st64_b32 v[{112+2*k}:{113+2*k}], {KVR} offset0:{k} offset1:{k+8}")
        S(f"ds_read2_b32 v[120:121], {ZR} offset0:0 offset1:32")
        G = weave(G, list(S), kb, kb + 2)
        S = Seq()
        for k in range(5):
            S(f"v_add_f32 v{112+2*k}, v{112+2*k}, v{113+2*k}")
        for k in range(4):
            S(f"buffer_atomic_add_f32 v{112+2*k}, {L4}, {WS}, {sKVA} offen offset:{k*256}", tag="pub1")
        S(f"buffer_atomic_add_f32 v120, {ZAT}, {WS}, {sZA} offen", tag="pub1")
        G = weave(G, list(S), kb + 3, kb + 8)
        for k in range(3, 31, 4):
            G[k] += self.sub(lambda: self.stamp(f"v{k}"))
        p.extend(flat(G))
        p.append(mf32(AQ, v(WP + 8, 4), v(XM, 4)))
        self.stamp("A_q")
        woq = woq[nw3:]
        t1, t3, t2 = o.get('wot1', 0), o.get('wot3', 6), o.get('wot2', 2)
        assert nw3 + t1 == 0
        p.extend(flat(woq[:t1]))
        woq = woq[t1:]
        ph = phi(AQ, lambda i: "v40", 196, 180)
        if o.get('pk', 1):
            ph = Seq()
            p(f"v_mov_b32 v41, {sEPS6}\nv_mov_b32 v204, {sLOG2E}")
            for h in range(2):
                r = range(8 * h, 8 * h + 8)
                for i in r[::2]:
                    ph(f"v_pk_fma_f32 {v(AQ+i,2)}, {v(AQ+i,2)}, v[40:41], v[40:41] op_sel:[0,0,1] op_sel_hi:[1,0,1]")
                for i in r[::2]:
                    ph(f"v_pk_mul_f32 {v(196+(i&7),2)}, {v(AQ+i,2)}, v[204:205] op_sel_hi:[1,0]")
                for i in r:
                    ph(f"v_exp_f32_e64 v{196+(i&7)}, v{196+(i&7)} clamp")
                    ph(f"v_max_f32 v{AQ+i}, {sEPS6}, v{AQ+i}")
                for i in r[::2]:
                    ph(f"v_pk_add_f32 {v(AQ+i,2)}, {v(AQ+i,2)}, {v(196+(i&7),2)}")
                for i in range(4 * h, 4 * h + 4):
                    ph(f"v_cvt_pk_bf16_f32 v{180+i}, v{AQ+2*i}, v{AQ+2*i+1}")
        h = len(ph) // 2
        p.extend(ph[:h])
        p(f"buffer_store_dwordx4 v[180:183], {L16}, {WS}, {sPQS} offen sc1", tag="pub1")
        p.extend(ph[h:])
        p(f"buffer_store_dwordx4 v[184:187], {L16}, {WS}, {sPQS} offen offset:1024 sc1", tag="pub1")
        self.stamp("A_pqst")
        p("s_barrier")
        MB = list(self.miscB()) + self.miscC()
        nb = o.get('mb1', 140)
        assert nb >= len(self.miscB())
        p.extend(flat(woq[:t3]))
        p("FENCE")
        p.extend(MB[:nb])
        p("FENCE")
        p.extend(flat(woq[t3:t3 + t2]))
        woq = woq[t3 + t2:]
        p("WAITTAG pub1\ns_barrier")
        p(f"buffer_atomic_add v4, {P4K}, {WS}, {sSIG} offen sc1")
        self.stamp("A_sig")
        for s in range(4):
            p.extend(trpair(('a', 128 + 4 * s), RT13, s * 6144, 512))
        p.extend(R2T)
        p(f"v_add_u32 {L16H}, 0x2000, {L16}")
        t4 = o.get('wot4', 16)
        assert t3 + t2 + t4 >= 16
        t5 = o.get('wot5', 8)
        p.extend(flat(woq[:t5]))
        for s in range(4):
            p.append(mf16(RCS, SEL, a_(128 + 4 * s, 4), "0" if s == 0 else None))
            p(f"buffer_store_dwordx4 {a_(128+4*s,4)}, {L16}, {WS}, {sRW} offen offset:{s*1024} {o.get('rfl', 'sc1').replace('_', ' ')}", tag=f"pubR{s}")
            if dup & 1:
                p(f"buffer_store_dwordx4 {a_(128+4*s,4)}, {L16H}, {WS}, {sRW} offen offset:{s*1024} sc1", tag=f"pubR{s}")
        self.late = []
        if o.get('late', 1):
            assert not dup & 1
            if o.get('lt', 4) < 7:
                self.late += [Inst(f"buffer_store_dwordx4 {a_(128+4*s,4)}, {L16}, {WS}, {sRL} offen offset:{s*1024} sc1") for s in range(4)]
            self.late += R2S
            for x in self.late:
                x.tag = "pub2"
        else:
            assert o.get('lt', 4) >= 7
            p.extend(R2S)
        p(f"buffer_atomic_add_f32 v{RCS}, {CSAT}, {WS}, {sRC} offen", tag="pubC")
        self.stamp("A_rst")
        p(f"s_add_u32 {sSIG}, {sSIG}, 4096")
        p.extend(flat(woq[t5:t4]))
        self.wo_rest = woq[t4:]
        self.mb_rest = MB[nb:]

    def dmaT(self, t, slot):
        g = []
        for h in range(2):
            S = Seq()
            S(f"s_add_u32 m0, {bTL}, {slot*32768+h*4096}\ns_add_u32 {sT0}, {bTX if self.o.get('grp', 1) and par13(t) and not self.o.get('dup', 0) & 1 else bTA}, {t*65536+h*4096}")
            for k in range(4):
                S(f"buffer_load_dwordx4 {L16}, {WS}, {sT0} offen offset:{k*1024} sc1 lds", tag=f"T{t}")
                g.append(list(S))
                S = Seq()
            ctx(g[-4:])
        return g

    def phaseB(self):
        p = self.p
        o = self.o
        AH = 192
        W = [trpair(('a', 4 * i), f"v{WOT+((i>>2)&3)}", (i & 3) * 4096, 1024) for i in range(32)]
        PQR = 224
        LD = [Inst(f"buffer_load_dwordx2 v[32:33], v41, {WS}, {sZL} offen sc1")]
        for q in range(4):
            for i in (2 * q, 2 * q + 1):
                LD.append(Inst(f"buffer_load_dwordx4 {v(48+4*i,4)}, {L16}, {WS}, {sKVL if i < 4 else bK2} offen offset:{(i&3)*1024} sc1"))
            for i in (2 * q, 2 * q + 1):
                LD.append(Inst(f"buffer_load_dwordx4 {a_(PQR+4*i,4)}, {L16}, {WS}, {sPQL if i < 4 else bQ2} offen offset:{(i&3)*1024} sc1"))
        ZB = Seq()(f"v_cvt_pk_bf16_f32 v32, v32, v33\nds_write_b32 {ZBW}, v32")
        for k in range(4):
            ZB(f"ds_read_b128 {v(96+4*k,4)}, {ZBR} offset:{k*64}")
        p("WAITTAG WO0" + (" pubC" if o.get('er', 2) == 2 else "") + "\ns_barrier")
        if o.get('er', 2) == 2:
            p(f"buffer_atomic_add v4, {P4K}, {WS}, {sSIG} offen sc1")
        self.stamp("B_wo")
        pm = o.get('pm', 0)
        pl = list(Seq()(f"""s_cmp_eq_u32 {sW}, 1
             s_cselect_b32 {bGP}, {bGP}, {hex(OOB)}
             s_cselect_b64 s[26:27], 0xffff, 0
             buffer_load_dword v5, {P256}, {WS}, {bGP} offen sc1"""))
        if pm == 2:
            p.extend(pl)
        p.extend(flat(W[:16]))
        if pm == 1:
            p.extend(pl)
        for q in range(4):
            p(f"v_add_u32 v{WOT+q}, 0x10000, v{WOT+q}")
        mb2 = o.get('mb2', 99)
        p.extend(self.mb_rest[:mb2])
        er = o.get('er', 2)
        rsig = Inst(f"buffer_atomic_add v4, {P4K}, {WS}, {sSIG} offen sc1")
        if er == 1:
            p("WAITTAG pubC\ns_barrier")
            p.append(rsig)
        self.stamp("B_prepoll")
        if pm:
            self.spin("v5", P256, bGP, "s[26:27]", "16", sleep=o.get('sleep1', 1), mode='check')
        else:
            self.spin("v5", P256, bGP, "0xffff", "16", sleep=o.get('sleep1', 1), wave=o.get('pw', 1))
        if o.get('seg0'):
            p("WAITTAG WO1x pubR0")
            self.stamp("B_r0")
            p("WAITTAG pubR3")
            self.stamp("B_r3")
            p("WAITTAG pubR")
            self.stamp("B_r5")
        p("WAITTAG pubC")
        self.stamp("B_rack")
        p("WAITALL lgkm\ns_barrier")
        self.stamp("B_sync1")
        LD.insert(o.get('rsat', 0), Inst("FENCE") if er else rsig)
        nl0 = o.get('nl0', 14)
        p.extend(LD[:10] + [Inst('FENCE')] + self.mb_rest[mb2:] + ZB + LD[10:nl0])

        def prep(q):
            S = Seq()
            for k in range(4):
                S(f"v_cvt_pk_bf16_f32 v{80+4*q+k}, v{48+8*q+2*k}, v{48+8*q+2*k+1}")
            for k in range(4):
                S(f"v_cndmask_b32 v{112+8*q+k}, v{80+4*q+k}, v{96+4*q+k}, {sB4LANES}")
            for k in range(4):
                S(f"v_cndmask_b32 v{116+8*q+k}, v{96+4*q+k}, v{80+4*q+k}, {sB4LANES}")
            return S
        NA = [144, 160, 176]
        steps = [(pr + k, t) for pr in (0, 2) for t in range(3) for k in range(2)]
        d16 = o.get('d16', 1)
        steps += [(pr, t) for t in (3, 4, 5, 6) for pr in range(4)]
        w2o = [f"{cW2x if o.get('grp', 1) and par2(pr, t) and not o.get('dup', 0) & 2 else cW2}, {pr * 32768 + (t >> 2) * 16384 + (t & 3) * 2048}" for pr, t in steps]
        hho = [pr * 16384 + t * 1024 for pr, t in steps]
        w2l = []
        for i in range(16):
            S = Seq()
            if d16:
                ad = W2B if i & 1 else W2A
                if i % 2 == 0:
                    S(f"s_add_u32 {sKC}, {w2o[i]}")
                S(f"buffer_load_dwordx4 {a_(128+8*i,4)}, {ad}, {WS}, {sKC} offen sc1")
                w2l.append(list(S))
                w2l.append([Inst(f"buffer_load_dwordx4 {a_(132+8*i,4)}, {ad}, {WS}, {sKC} offen offset:256 sc1")])
                if i & 1:
                    ctx(w2l[-4:])
                continue
            S(f"s_add_u32 {sKC}, {w2o[i]}")
            S(f"buffer_load_dwordx4 {a_(128+8*i,4)}, {W2A}, {WS}, {sKC} offen sc1")
            w2l.append(list(S))
            w2l.append([Inst(f"buffer_load_dwordx4 {a_(132+8*i,4)}, {W2B}, {WS}, {sKC} offen sc1")])
            ctx(w2l[-2:])
        self.steps, self.w2o, self.hho = steps, w2o, hho
        if o.get('d2', 0):
            w2l = []
        nw1, nw2 = (o.get('nw1', 6), o.get('nw2', 6)) if o.get('e2', 0) else (0, 0)
        assert nw1 <= 24
        W1, W2_, w2l = w2l[:nw1], w2l[nw1:nw1 + nw2], w2l[nw1 + nw2:]
        self.n_w2rest = len(w2l)
        TQ = flat([self.dmaT(t, t) for t in range(2)]) + w2l
        n2, n3 = o.get('tq2', 8), o.get('tq3', 8)

        def num(i):
            return mf32(NA[i % 3], v(112 + 4 * i, 4), a_(PQR + 4 * i, 4), "0")

        def fin(i):
            n = NA[i % 3] + 8 * (i & 1)
            d = NA[i % 3] + 8 * (1 - (i & 1))
            S = Seq()
            S(f"v_add_f32 v{d}, {sEPS6}, v{d}\nv_rcp_f32 v{d}, v{d}")
            for k in range(8):
                S(f"v_mul_f32 v{n+k}, v{n+k}, v{d}")
            for k in range(4):
                S(f"v_cvt_pk_bf16_f32 v{48+4*i+k}, v{n+2*k}, v{n+2*k+1}")
            return S

        def owrite(i):
            return Inst(f"ds_write_b128 v{OAD}, {v(48+4*i,4)} offset:{(i>>2)*16384+(i&3)*1024}", tag=f"o{i}")

        OR = (16, 20, 36, 44, 208, 248)

        def oreg(k):
            return OR[k % 6] if k < 16 else 80 + 4 * (k & 7)

        def oread(k):
            return Inst(f"ds_read_b128 {v(oreg(k),4)}, v{OAD+((k>>2)&3)} offset:{(k>>4)*16384+(k&3)*1024}")

        def acc(k):
            own = (k & 12) == 0
            return mf32(AH, a_(4 * k, 4), v(48 + 4 * ((k >> 4) * 4 + (k & 3)) if own else oreg(k), 4))
        self.stamp("bz")
        p.extend(prep(0))
        self.stamp("bp")
        p.append(num(0))
        p.append(num(1))
        VM = [[x] for x in LD[nl0:]] + list(self.wo_rest)
        per = o.get('per', 3)
        rl, rc = o.get('rl', 4), o.get('rc', 0)
        kk = 4
        l0, nlate = o.get('l0', 4), len(self.late)
        for i in range(8):
            if i + 2 < 8:
                if i % 2 == 0:
                    p.extend(prep(i // 2 + 1))
                p.append(num(i + 2))
            if i >= 1:
                p.append(owrite(i - 1))
            if i == 5:
                p("WAITTAG o3\ns_barrier")
                p.extend([oread(k) for k in range(4, 9)])
            for _ in range(per):
                if VM:
                    p.extend(VM.pop(0))
            if i == rl:
                p(f"buffer_load_dword v5, {P256}, {WS}, {bRP} offen sc1")
            if i >= l0:
                for _ in range(-(-nlate // (8 - l0))):
                    if self.late:
                        p.append(self.late.pop(0))
            if i >= 5:
                for _ in range(-(-nw1 // 3)):
                    if W1:
                        p.extend(W1.pop(0))
            F = fin(i)
            self.stamp(f"b{i}")
            if i < 5:
                p.extend(F[:7])
                if i >= 1:
                    p.append(acc(i - 1))
                p.extend(F[7:])
            else:
                cuts = (8, 14) if i == 5 else (2, 6, 10, 14)
                lo = 0
                for c in cuts:
                    p.extend(F[lo:c])
                    lo = c
                    p.append(acc(kk))
                    if kk + 5 < 16:
                        p.append(oread(kk + 5))
                    kk += 1
        p.append(owrite(7))
        assert not VM
        self.stamp("B_st1")
        p.append(acc(kk))
        p("WAITTAG WO1 o7\ns_barrier")
        for k in range(16, 20):
            p.extend(W[k])
        assert kk == 14
        G = [[acc(15)] + W[20] + [oread(20)]]
        for k in range(16, 32):
            g = [acc(k)]
            if k + 5 < 32:
                g += W[k + 5] + [oread(k + 5)]
            G.append(g)
        if rl >= 8:
            G[rl - 8] += [Inst(f"buffer_load_dword v5, {P256}, {WS}, {bRP} offen sc1")]
        G[rc] += self.sub(lambda: self.spin("v5", P256, bRP, "0xffff", "16", mode='check', sleep=2))
        G = weave(G, W2_, 0, max(rc, 1))
        G = weave(G, TQ[:n2], rc + 1, 17)
        p.extend(flat(G))
        for k in range(8):
            p(f"v_cvt_pk_bf16_f32 v{48+k}, v{AH+2*k}, v{AH+2*k+1}")
            if k == 3:
                p(f"buffer_store_dwordx4 v[48:51], {L16}, {WS}, {sHST} offen sc1", tag="pub2")
        p(f"buffer_store_dwordx4 v[52:55], {L16}, {WS}, {sHST} offen offset:1024 sc1", tag="pub2")
        p(f"v_add_f32 v56, v{AH}, v{AH+1}\nv_mul_f32 v57, v{AH}, v{AH}\nv_add_f32 v58, v{AH+2}, v{AH+3}\nv_mul_f32 v59, v{AH+1}, v{AH+1}")
        for k in range(2, 16):
            if k >= 4:
                p(f"v_add_f32 v{56+2*(k&1)}, v{56+2*(k&1)}, v{AH+k}")
            p(f"v_fmac_f32 v{57+2*(k&1)}, v{AH+k}, v{AH+k}")
        p("""v_add_f32 v56, v56, v58
             v_add_f32 v57, v57, v59
             v_permlane32_swap_b32 v56, v57
             v_add_f32 v56, v56, v57""")
        p(f"buffer_atomic_add_f32 v56, {L4}, {WS}, {sSTA} offen", tag="pub2")
        self.stamp("B_hst")
        for t in range(7):
            p(f"buffer_load_dword v{160+t}, {CSL}, {WS}, {cCS} offen offset:{t*128} sc1")
        p.extend(flat(TQ[n2:n2 + n3]))
        p(f"WAITTAG pub2\nbuffer_store_dword v4, {FA1}, {WS}, {sD} offen offset:512 sc1\ns_barrier")
        if nlate:
            p(f"buffer_atomic_add v4, {P4K}, {WS}, {sSIG} offen offset:128 sc1")
            assert n2 + n3 <= 16
        self.nlate = nlate
        self.t1_late = n2 < 16
        self.stamp("B_sig")
        self.tq_rest = TQ[n2 + n3:]

    def miscC(self):
        M = Seq()
        def half(d, x):
            return f"s_and_b32 {d}, {x if self.o.get('grp', 1) else sW}, 1\ns_lshl_b32 {d}, {d}, 13"

        def near(d, x):
            return f"s_lshl_b32 {d}, {x}, 11\ns_xor_b32 {d}, {d}, {bGP}\ns_and_b32 {d}, {d}, 0x2000"
        DL = "v45"
        if self.o.get('d16', 1):
            M(f"""v_bfe_u32 v46, v1, 4, 1
                 v_and_b32 {DL}, 0xf0, {L16}
                 v_lshl_add_u32 {DL}, v46, 9, {DL}
                 v_lshrrev_b32 v46, 5, v1""")
        else:
            M(f"v_mov_b32 {DL}, {L16}\nv_mov_b32 v46, 0")
        M(f"""s_bfe_i32 {sT1}, {sTBL}, 0x10010
             s_xor_b32 {sT1}, {sT1}, {sTBL}
             s_and_b32 {sT1}, {sT1}, 0xe000
             s_bcnt1_i32_b32 {sT1}, {sT1}
             s_sub_u32 {sT1}, {sKC}, {sT1}""")
        if self.o.get('cmap', 1):
            M(f"""s_and_b32 {sGC}, {sT1}, 4
                 s_lshl_b32 {sGC}, {sGC}, 1
                 s_and_b32 {sT2}, {sU}, 7
                 s_add_u32 {sGC}, {sGC}, {sT2}
                 s_and_b32 {sMC}, {sT1}, 3
                 s_lshl_b32 {sMC}, {sMC}, 2
                 s_lshr_b32 {sT2}, {sU}, 3
                 s_add_u32 {sMC}, {sMC}, {sT2}""")
        else:
            M(f"""s_and_b32 {sGC}, {sT1}, 6
                 s_lshl_b32 {sGC}, {sGC}, 1
                 s_add_u32 {sGC}, {sGC}, {sRQ}
                 s_and_b32 {sMC}, {sT1}, 1
                 s_lshl_b32 {sMC}, {sMC}, 3
                 s_lshr_b32 {sT2}, {sU}, 2
                 s_add_u32 {sMC}, {sMC}, {sT2}""")
        M(f"""s_lshl_b32 {sT1}, {sGC}, 10
             s_lshl_b32 {sT2}, {sGC}, 12
             s_xor_b32 {sP2}, {sT1}, {sT2}
             s_and_b32 {sP2}, {sP2}, 0x2000
             s_xor_b32 {sP2}, {sP2}, {sPE}
             s_lshl_b32 {bTA}, {sMC}, 19
             s_add_u32 {bTA}, {bTA}, {sXL}
             {near(sT2, sMC) if self.o.get('dup', 0) & 1 else half(sT2, sMC)}
             s_add_u32 {bTA}, {bTA}, {sT2}
             s_add_u32 {bTA}, {bTA}, {hex(W13R)}
             s_xor_b32 {bTX}, {bTA}, 0x2000""")
        M(f"""s_lshl_b32 {sT1}, {sGC}, 2
             s_add_u32 {sT2}, {sT1}, {sW}
             s_lshl_b32 {cHS2}, {sT2}, 4
             s_add_u32 {cHS2}, {cHS2}, {sMC}
             s_lshl_b32 {cHS2}, {cHS2}, 14
             s_add_u32 {cHS2}, {cHS2}, {hex(HH+4096)}
             s_xor_b32 {cHS2}, {cHS2}, {sP2}
             s_lshl_b32 {cHB}, {sT2}, 16
             s_add_u32 {cHB}, {cHB}, {hex(HB)}
             s_xor_b32 {cHB}, {cHB}, {sPE}
             s_sub_u32 {cHS}, {cHS2}, 4096
             s_lshl_b32 {sT3}, {sMC}, 14
             s_sub_u32 {cPL}, {cHS2}, {sT3}
             s_add_u32 {cPL}, {cPL}, {3072+512}
             s_add_u32 {cST}, {cPL}, 256
             v_lshlrev_b32 {HPA}, 14, v1
             v_and_b32 {PA2}, 12, {L4}
             v_or_b32 {PA2}, {PA2}, {LM8}
             v_bfe_u32 v44, v1, 2, 1
             v_lshl_add_u32 {PA2}, v44, {16 if self.o.get('d2', 0) else 18}, {PA2}
             s_mul_i32 {cCS}, {sMC}, {7*128}
             s_add_u32 {cCS}, {cCS}, {hex(CS)}
             s_and_b32 {sCB}, {sMC}, 7""")
        k0 = len(M)
        M(f"""             s_lshl_b32 {cW2}, {sCB}, 19
             s_lshl_b32 {sT3}, {sW}, 17
             s_add_u32 {cW2}, {cW2}, {sT3}
             {near(sT3, sCB) if self.o.get('dup', 0) & 2 else half(sT3, sCB)}
             s_add_u32 {cW2}, {cW2}, {sT3}
             s_add_u32 {cW2}, {cW2}, {hex(W2R)}
             s_xor_b32 {cW2x}, {cW2}, 0x2000
             s_and_b32 {sT3}, {sW}, 1
             s_lshl_b32 {sT2}, {sT3}, 10
             v_add_u32 {W2A}, {sT2}, {DL}
             v_xor_b32 {W2B}, 1024, {W2A}
             v_lshrrev_b32 v44, 4, v1
             v_lshl_add_u32 {LB0}, v44, {8 if self.o.get('c16', 1) else 31}, {L16}
             v_and_b32 {LB0}, 0xffff, {LB0}
             v_add_u32 {LB1}, 0x10000, {LB0}
             v_add_u32 {LB2}, 0x20000, {LB0}
             s_add_u32 {sT2}, {bTL}, 0x10000
             v_add_u32 {WLA}, {sT2}, {W2A}
             v_add_u32 {WLB}, {sT2}, {W2B}
             v_lshl_add_u32 {WLA}, v46, 11, {WLA}
             v_lshl_add_u32 {WLB}, v46, 11, {WLB}
             v_lshl_add_u32 {W2A}, v46, 15, {W2A}
             v_lshl_add_u32 {W2B}, v46, 15, {W2B}
             v_add_u32 {WLC}, 0x10000, {WLA}
             v_add_u32 {WLD}, 0x10000, {WLB}
             v_and_b32 {CSL}, 0x7c, {L4}
             s_lshr_b32 {sT2}, {sMC}, 3
             s_lshl_b32 {sT2}, {sT2}, 1
             s_add_u32 {sT1}, {sT1}, {sT2}
             s_lshl_b32 {cHL}, {sT1}, 18
             s_lshl_b32 {sT2}, {sW}, 16
             s_add_u32 {cHL}, {cHL}, {sT2}
             s_add_u32 {cHL}, {cHL}, {hex(HH)}
             s_xor_b32 {cHL}, {cHL}, {sP2}
             s_lshr_b32 {sT2}, {sW}, 1
             s_add_u32 {sT1}, {sT1}, {sT2}
             s_lshl_b32 {sT2}, {sT2}, 18
             v_add_u32 {HHA}, {sT2}, {DL}
             v_lshl_add_u32 {HHA}, v46, 14, {HHA}
             v_xor_b32 {HHB}, 0x40000, {HHA}
             s_lshl_b32 {sT1}, {sT1}, 15
             s_lshl_b32 {sT2}, {sCB}, 1
             s_add_u32 {sT2}, {sT2}, {sT3}
             s_lshl_b32 {cOUT}, {sT2}, 6
             s_add_u32 {cOUT}, {cOUT}, {sT1}
             s_lshr_b32 {cHR}, {sT2}, 2
             s_lshl_b32 {cHR}, {cHR}, 13
             s_add_u32 {cHR}, {cHR}, {sT1}
             s_and_b32 {sT2}, {sT2}, 3
             s_lshl_b32 {sT2}, {sT2}, 10
             s_add_u32 {cHR}, {cHR}, {sT2}
             s_lshl_b32 {cHR}, {cHR}, 1
             s_add_u32 {cHR}, {cHR}, {hex(HB)}
             s_xor_b32 {cHR}, {cHR}, {sPE}
             s_add_u32 {cPP}, {cHL}, 7168
             s_add_u32 {cPQ}, {cPP}, 0x40000
             s_and_b32 {sT3}, {sMC}, 3
             s_mul_i32 {sT3}, {sT3}, {16384-4}
             s_sub_u32 {cPS}, {cHS2}, {sT3}""")
        if self.o.get('d2', 0):
            assert self.o.get('d16', 1) and self.o.get('dup', 0) & 2
            while not M[k0].text.startswith(f"s_and_b32 {sT3}, {sMC}, 3"):
                del M[k0]
            M(f"""s_lshr_b32 {sT3}, {sMC}, 3
                 s_lshl_b32 {cW2}, {sCB}, 1
                 s_add_u32 {cW2}, {cW2}, {sT3}
                 s_lshl_b32 {cOUT}, {cW2}, 6
                 s_andn2_b32 {cHR}, {cW2}, 3
                 s_add_u32 {cHR}, {cHR}, {cW2}
                 s_lshl_b32 {cHR}, {cHR}, 11
                 s_add_u32 {cHR}, {cHR}, {cHB}
                 s_lshl_b32 {cW2}, {cW2}, 2
                 s_add_u32 {cW2}, {cW2}, {sW}
                 s_lshl_b32 {cW2}, {cW2}, 16
                 {near(sT2, sCB)}
                 s_add_u32 {cW2}, {cW2}, {sT2}
                 s_add_u32 {cW2}, {cW2}, {hex(W2R)}
                 s_lshl_b32 {sT2}, {sT3}, 10
                 v_lshl_add_u32 {W2A}, v46, 11, {DL}
                 v_add_u32 {W2A}, {sT2}, {W2A}
                 v_xor_b32 {W2B}, 1024, {W2A}
                 v_add_u32 {WLA}, 0x10000, {W2A}
                 v_add_u32 {WLB}, 0x10000, {W2B}
                 v_add_u32 {WLC}, 0x20000, {W2A}
                 v_add_u32 {WLD}, 0x20000, {W2B}
                 v_lshrrev_b32 v44, 4, v1
                 v_lshl_add_u32 {LB0}, v44, {8 if self.o.get('c16', 1) else 31}, {L16}
                 v_and_b32 {LB0}, 0xffff, {LB0}
                 v_add_u32 {LB1}, 0x10000, {LB0}
                 v_add_u32 {LB2}, 0x20000, {LB0}
                 v_and_b32 {CSL}, 0x7c, {L4}
                 v_lshl_add_u32 {HHA}, v46, 14, {DL}
                 s_lshl_b32 {sT2}, {sCB}, 14
                 s_sub_u32 {cHL}, {cHS}, {sT2}
                 s_add_u32 {cPP}, {cHL}, 7168
                 s_sub_u32 {cPQ}, {cPL}, 512
                 v_bfe_u32 v44, v1, 2, 2
                 v_and_b32 {HHB}, 0xf800000c, {ZAT}
                 v_lshl_add_u32 {HHB}, v44, 16, {HHB}
                 s_add_u32 {sT1}, {sT1}, {sW}
                 s_lshl_b32 {sT2}, {sT1}, 15
                 s_add_u32 {cOUT}, {cOUT}, {sT2}
                 s_lshl_b32 {cW2x}, {sT1}, 5
                 s_andn2_b32 {sT2}, {sMC}, 1
                 s_add_u32 {sT2}, {sT2}, {sMC}
                 s_add_u32 {cW2x}, {cW2x}, {sT2}
                 s_lshl_b32 {cW2x}, {cW2x}, 12
                 s_lshr_b32 {sT2}, {sGC}, 1
                 s_xor_b32 {sT2}, {sT2}, {sGC}
                 s_lshl_b32 {sT2}, {sT2}, 11
                 s_xor_b32 {sT2}, {sT2}, {sPE}
                 s_and_b32 {sT2}, {sT2}, 0x2000
                 s_add_u32 {cW2x}, {cW2x}, {sT2}
                 s_add_u32 {cW2x}, {cW2x}, {hex(XB2)}""")
        return list(M)

    def phaseCD(self):
        p = self.p
        o = self.o
        sub = self.sub
        bar = lambda s_: list(Seq()(s_))
        steps, w2o, hho = self.steps, self.w2o, self.hho

        def dmaW2(part):
            g = []
            for k in range(4):
                S = Seq()
                S(f"s_add_u32 m0, {bTL}, {(2+part)*32768+k*2048}\ns_add_u32 {sT0}, {w2o[16+4*part+k]}")
                S(f"buffer_load_dwordx4 {L16}, {WS}, {sT0} offen sc1 lds", tag=f"W2L{part}")
                g.append(list(S))
                g.append([Inst(f"buffer_load_dwordx4 {L16}, {WS}, {sT0} offen offset:1024 sc1 lds", tag=f"W2L{part}")])
                ctx(g[-2:])
            return g

        def pub(tag, st):
            if o.get('nopub'):
                return []
            return bar(f"WAITTAG {tag}\nbuffer_store_dword v4, {FA1}, {WS}, {cPS} offen offset:{3072+128*st} sc1")

        vp = str(o.get('vp', 'x0123'))

        def pollld(st):
            if o.get('nopoll'):
                return []
            if str(st) in vp:
                return bar(f"buffer_load_dword v5, {PA2}, {WS}, {cPP} offen sc1")
            return list(Seq()(f"""s_buffer_load_dwordx4 s[8:11], {WS}, {cPP} glc
                 s_buffer_load_dwordx4 s[12:15], {WS}, {cPQ} glc""", cond=True))

        def pollchk(st):
            if o.get('nopoll'):
                return []
            if str(st) in vp:
                return sub(lambda: self.spin("v5", PA2, cPP, "0xff", "1", mode='check', sleep=o.get('sleep2', 2))) + \
                    bar(f"s_add_u32 {cPP}, {cPP}, 128" + ("" if o.get('d2', 0) else f"\ns_add_u32 {cPQ}, {cPQ}, 128"))
            red = """s_and_b64 s[8:9], s[8:9], s[10:11]
                 s_and_b64 s[12:13], s[12:13], s[14:15]
                 s_and_b64 s[8:9], s[8:9], s[12:13]
                 s_and_b32 s8, s8, s9"""

            def f():
                Lp = self.lab("sp")
                if o.get('stamps') == 3:
                    self.p(f"s_mov_b32 {sT5}, 0")
                self.p("WAITALL lgkm\n" + red)
                self.ool("s_cbranch_scc0", f"""s_mov_b32 {sT5}, 0
                     {Lp}:
                     s_sleep {o.get('sleep2', 2)}
                     s_buffer_load_dwordx4 s[8:11], {WS}, {cPP} glc
                     s_buffer_load_dwordx4 s[12:15], {WS}, {cPQ} glc
                     s_add_u32 {sT5}, {sT5}, 1
                     s_waitcnt lgkmcnt(0)
                     {red}
                     s_lshr_b32 s9, {sT5}, 15
                     s_or_b32 s8, s8, s9
                     s_cbranch_scc0 {Lp}""")
                self.p(f"s_add_u32 {cPP}, {cPP}, 128\ns_add_u32 {cPQ}, {cPQ}, 128")
                if o.get('stamps') == 3:
                    self.p(f"v_writelane_b32 v{STV}, {sT5}, {self.nstamp}")
                    self.nstamp += 1
                    self.stamp_names.append(f"P{st}")
            return sub(f)

        kt = max(0, len(self.tq_rest) - self.n_w2rest)
        FQ = self.tq_rest[:kt] + self.dmaT(2, 2) + self.dmaT(3, 3) + self.dmaT(4, 4) + self.tq_rest[kt:]
        npre, npre2 = o.get('tq4', 12), o.get('tq5', 0)
        p.extend(flat(FQ[:npre]))
        FQ = FQ[npre:]
        c16 = o.get('c16', 1)
        CSR, CSF, MEANF, C1, C2 = 160, 168, 176, 180, 181
        CSU, CSG, MEANG = 213, 220, 228
        p("FENCE")
        for k in (1, 2, 3, 5, 6, 7, 9, 10, 11):
            p(f"v_mov_b32 v{CSF+k}, 0")
            if c16:
                p(f"v_mov_b32 v{CSG+k}, 0")
        for t in range(7):
            p.extend(split2(CSR + t, CSR + t, 184))
        if c16:
            for t in range(7):
                p(f"v_mov_b32 v{CSU+t}, v{CSR+t}")
            for t in range(7):
                p(f"v_permlane16_swap_b32 v{CSR+t}, v{CSU+t}")
            p(f"s_mov_b64 s[8:9], 0xffff\nv_mov_b32 v{CSG}, v{CSU}\nv_mov_b32 v{CSG+4}, v{CSU+1}")
        p(f"v_mov_b32 v{CSF}, v{CSR}\nv_mov_b32 v{CSF+4}, v{CSR+1}")
        p("FENCE")
        p.extend(flat(FQ[:npre2]))
        FQ = FQ[npre2:]
        self.stamp("C_prepoll")
        self.spin("v5", HPA, cPL, "0xffff", "1", mode='all', sleep=o.get('sleep3', 0))
        self.stamp("C_sync2")

        c16 = o.get('c16', 1)
        fo = (lambda s: (s >> 1) * 2048 + (s & 1) * 256) if c16 else (lambda s: s * 1024)

        def hload(s):
            S = Seq()
            if s % 4 == 0 and s:
                S(f"s_add_u32 {cHB}, {cHB}, {4096 if s % 8 else 12288}")
            S(f"buffer_load_dwordx4 {a_(4*s,4)}, {LB0}, {WS}, {cHB} offen offset:{fo(s&3)} sc1")
            return list(S)
        HL = o.get('hla', 10)
        for s in range(HL):
            p.extend(hload(s))
        if self.t1_late:
            p("WAITTAG T1\ns_barrier")
        ACC = [48, 64, 80, 96, 112]
        acc_of = [0, 1, 2, 3, 0, 1, 2]
        slot_of = [0, 1, 2, 3, 4, 0, 1]
        WR, NR = 128, 8
        CSR, CSF, MEANF, C1, C2 = 160, 168, 176, 180, 181
        T = 184
        LK = o.get('lk', 5)
        F0 = Seq()
        for k in range(4):
            F0(f"buffer_load_dword v{T+4+k}, {L4}, {WS}, {cST} offen sc1\ns_add_u32 {cST}, {cST}, 16384")
        F1 = Seq()
        F1(f"""v_add_f32 v{T}, v{T+4}, v{T+5}
             v_add_f32 v{T+1}, v{T+6}, v{T+7}
             v_add_f32 v{T}, v{T}, v{T+1}
             v_mov_b32 v{T+1}, v{T}
             v_permlane32_swap_b32 v{T}, v{T+1}
             v_mul_f32 v{T}, 0x3b000000, v{T}
             v_mul_f32 v{T+1}, 0x3b000000, v{T+1}
             v_cvt_pk_bf16_f32 v{MEANF}, -v{T}, -v{T}
             v_fma_f32 v{T+1}, -v{T}, v{T}, v{T+1}
             v_max_f32 v{T+1}, 0, v{T+1}
             v_add_f32 v{C2}, 0x3727c5ac, v{T+1}
             v_rsq_f32 v{C1}, v{C2}
             v_mul_f32 v{C1}, 0xbfb8aa3b, v{C1}""")
        if c16:
            prs = [(MEANF, MEANG), (C2, C2 + 2), (C1, C1 + 2)]
            for x, y in prs:
                F1(f"v_mov_b32 v{y}, v{x}")
            for x, y in prs:
                F1(f"v_permlane16_swap_b32 v{x}, v{y}")
            F1(f"""v_cndmask_b32 v{MEANF}, 0, v{MEANF}, s[8:9]
                 v_cndmask_b32 v{MEANG}, 0, v{MEANG}, s[8:9]""")
        else:
            F1(f"v_cndmask_b32 v{MEANF}, v{MEANF}, 0, {sHILANES}")

        def tread(t, s, n):
            sl = slot_of[t]
            base = (LB0, LB0, LB1, LB1, LB2)[sl]
            return [Inst(f"ds_read_b128 {v(WR+4*(n%NR),4)}, {base} offset:{(sl&1)*32768*(sl<4)+fo(s)}")]

        def corr(t):
            A = ACC[acc_of[t]]
            if c16:
                return [mf16(A + 8 * gu + 4 * th, v((CSF, CSG)[gu] + 4 * (t & 1), 4), v((MEANF, MEANG)[th], 4))
                        for gu, th in ((0, 0), (0, 1), (1, 1), (1, 0))]
            return [mf32(A, v(CSF + 4 * (t & 1), 4), v(MEANF, 4))]

        def cm(t, s, n):
            A, w = ACC[acc_of[t]], v(WR + 4 * (n % NR), 4)
            if not c16:
                return [mf32(A, w, a_(4 * s, 4), "0" if s == 0 else None)]
            gu = s & 1
            r = [mf16(A + 8 * gu + 4 * th, w, a_(8 * (s >> 1) + 4 * th, 4), "0" if s < 2 else None) for th in (gu, 1 - gu)]
            r[1].tag = "second"
            return r

        def spread(G):
            out = []
            for g in G:
                g = hoist(g)
                if len(g) > 1 and g[1].tag == "second":
                    m, rest, c, k = g[1], g[2:], 0, 0
                    m.tag = None
                    tot = sum(cost(x) for x in rest if not x.cond)
                    while k < len(rest) and c + cost(rest[k]) <= max(9.7, tot / 2 + 2.2) and not rest[k].cond \
                            and rest[k].kind not in ('branch', 'label') and not rest[k].op.startswith('v_cmp'):
                        c += cost(rest[k])
                        k += 1
                    g = [g[0]] + rest[:k] + [m] + rest[k:]
                out += g
            return out
        G = []
        for n in range(64):
            s, t = divmod(n, 2)
            g = cm(t, s, n)
            if n + LK < 64:
                g += tread((n + LK) % 2, (n + LK) // 2, n + LK)
            else:
                if n + LK == 64:
                    g += bar("WAITTAG T2\ns_barrier")
                g += tread(2, n + LK - 64, n + LK)
            if t == 0 and s + HL < 32:
                g += hload(s + HL)
            G.append(g)
        G.append(corr(0))
        G.append(corr(1))
        for n in range(LK):
            p.extend(tread(n % 2, n // 2, n))
        G = weave(G, list(F0), 1, o.get('f0', 20))
        G = weave(G, list(F1), o.get('f1', 40), 63)
        e0 = 2 * (32 - HL)
        if self.nlate:
            assert npre + npre2 <= kt + 8 * (min(o.get('lt', 4), 5) - 2)
            G[e0 - 22] += bar(f"s_add_u32 {bRP}, {bRP}, 128\nbuffer_load_dword v5, {P256}, {WS}, {bRP} offen sc1")
            G[e0 - 1] += sub(lambda: self.spin("v5", P256, bRP, "0xffff", "16", mode='check', sleep=2))
        ng = min(len(FQ), o.get('g1q', 8))
        G = weave(G, FQ[:ng], e0, 66)
        FQ = FQ[ng:]
        p.extend(spread(G))
        self.stamp("C_g1")

        def epi(t, tmp):
            A = ACC[acc_of[t]]
            S = Seq()
            for j in range(8):
                S(f"v_mul_f32 v{tmp+j}, v{A+j}, v{C1+2*c16*(j>>2)}")
            for j in range(8):
                S(f"v_exp_f32 v{tmp+j}, v{tmp+j}")
                S(f"v_mul_f32 v{A+j}, v{A+j}, v{A+8+j}")
            for j in range(8):
                S(f"v_fma_f32 v{tmp+j}, v{tmp+j}, v{C2+2*c16*(j>>2)}, v{C2+2*c16*(j>>2)}")
                if j >= 2:
                    S(f"v_rcp_f32 v{tmp+j-2}, v{tmp+j-2}")
            for j in range(8):
                S(f"v_mul_f32 v{A+j}, v{A+j}, v{tmp+j}")
                if j < 2:
                    S(f"v_rcp_f32 v{tmp+6+j}, v{tmp+6+j}")
            for j in (0, 2, 1, 3):
                S(f"v_cvt_pk_bf16_f32 v{tmp+8+j}, v{A+2*j}, v{A+2*j+1}")
            if c16:
                S(f"v_permlane16_swap_b32 v{tmp+8}, v{tmp+10}\nv_permlane16_swap_b32 v{tmp+9}, v{tmp+11}")
            S(f"buffer_store_dwordx4 {v(tmp+8,4)}, {L16}, {WS}, {cHS if t < 4 else cHS2} offen offset:{(t&3)*1024} sc1", tag=f"hh{t}")
            return list(S)

        def tilepass(t, n0):
            G = []
            for s in range(32):
                n = n0 + s
                g = cm(t, s, n)
                if s + LK < 32:
                    g += tread(t, s + LK, n + LK)
                elif t < 6:
                    if s + LK == 32:
                        g += bar(f"WAITTAG T{t+1}\ns_barrier")
                    g += tread(t + 1, s + LK - 32, n + LK)
                if s == 16:
                    g += bar(f"v_mov_b32 v{CSF+4*(t&1)}, v{CSR+t}")
                if s == 17 and c16:
                    g += bar(f"v_mov_b32 v{CSG+4*(t&1)}, v{CSU+t}")
                G.append(g)
            G.append(corr(t))
            return G

        d16 = o.get('d16', 1)

        def hhload(i):
            S = Seq()
            if d16:
                ad = HHB if i & 1 else HHA
                S(f"s_add_u32 {sCc}, {cHL}, {hho[i & ~1]}")
                S(f"buffer_load_dwordx4 {a_(8*(i&15),4)}, {ad}, {WS}, {sCc} offen sc1")
                return ctx([list(S), [Inst(f"buffer_load_dwordx4 {a_(8*(i&15)+4,4)}, {ad}, {WS}, {sCc} offen offset:256 sc1")]])
            S(f"s_add_u32 {sCc}, {cHL}, {hho[i]}")
            S(f"buffer_load_dwordx4 {a_(8*(i&15),4)}, {HHA}, {WS}, {sCc} offen sc1")
            return ctx([list(S), [Inst(f"buffer_load_dwordx4 {a_(8*(i&15)+4,4)}, {HHB}, {WS}, {sCc} offen sc1")]])

        EP = [epi(t, T + 12 * (t & 1)) for t in range(7)]
        P = {t: tilepass(t, 32 * t) for t in range(2, 7)}
        if o.get('d2', 0):
            return self.tailD2(locals())
        q = o.get('cq', 18)
        ee = o.get('ee', 20)
        LA = o.get('dla', 7)
        G = weave(P[2], FQ[:q], 0, 32)
        FQ = self.dmaT(5, 0) + FQ[q:]
        FQ = FQ[:q] + self.dmaT(6, 1) + FQ[q:] + dmaW2(0) + dmaW2(1) + dmaW2(2)
        G = weave(G, EP[0] + EP[1][:26], 2, 33)
        p.extend(self.xf(spread(G)))
        self.stamp("C_t2")
        q3 = min(q, len(FQ) - 24)
        G = weave(P[3], FQ[:q3], 0, 32)
        FQ = FQ[q3:]
        G = weave(G, EP[1][26:] + EP[2], 0, 33)
        p.extend(self.xf(spread(G)))
        self.stamp("C_t3")
        q4 = min(q, len(FQ) - 16)
        G = weave(P[4], FQ[:q4], 0, 32)
        FQ = FQ[q4:]
        G = weave(G, EP[3], 2, ee)
        G[o.get('p1at', 26)] += pub("hh2", 0)
        p.extend(self.xf(spread(G)))
        self.stamp("C_t4")
        q5 = min(q, len(FQ) - 8)
        G = weave(P[5], FQ[:q5], 0, 32)
        FQ = FQ[q5:]
        G[o.get('l1', 14)] += pollld(0)
        G[1] += bar(f"buffer_load_dwordx4 v[24:27], {L16}, {WS}, {cHR} offen sc1")
        G[3] += bar(f"buffer_load_dwordx4 v[28:31], {L16}, {WS}, {cHR} offen offset:1024 sc1")
        G = weave(G, EP[4], 2, ee)
        p.extend(self.xf(spread(G)))
        self.stamp("C_t5")
        G = P[6]
        c1 = o.get('c1', 1)
        n6 = min(o.get('n6', 0), len(FQ))
        if n6:
            G = weave(G, FQ[:n6], 0, max(c1, 1))
            FQ = FQ[n6:]
        G[c1] += pollchk(0)
        hq = [x for i in range(LA) for x in hhload(i)]
        G = weave(G, hq, c1 + 1, 33)
        S = Seq()
        if d16:
            for i in (24, 25, 28, 29):
                S(f"v_permlane16_swap_b32 v{i}, v{i+2}")
        for i in range(8):
            S(f"v_lshlrev_b32 v{48+2*i}, 16, v{24+i}\nv_and_b32 v{49+2*i}, {sMSKHI}, v{24+i}")
        for k in range(4):
            S(f"""s_xor_b32 {sT1}, {sW}, {k}
                 s_mul_i32 {sT1}, {sT1}, 12288
                 v_add_u32 v{36+k}, {sT1}, {L16}""")
        G = weave(G, list(S), ee + 1, 33)
        G = weave(G, EP[5], 2, ee)
        G[o.get('p2at', 12)] += pub("hh4", 1)
        p.extend(self.xf(spread(G)))
        self.stamp("C_t6")

        DA = [48, 64, 96, 112]

        def w2r(i, a):
            return (128, 168, 128)[(i - 16) // 4] + 8 * (i % 4) + 4 * a

        def w2read(i):
            part, k = divmod(i - 16, 4)
            r = bar(f"WAITTAG W2L{part}") if k == 0 else []
            for a in range(2):
                ad = ((WLA, WLB), (WLA, WLB), (WLC, WLD))[part][k & 1 if d16 else a]
                r.append(Inst(f"ds_read_b128 {v(w2r(i, a), 4)}, {ad} offset:{(part&1)*32768 + ((k&2)*2048 + a*256 if d16 else k*2048)}"))
            return r

        def w2f(i, a):
            return a_(128 + 8 * i + 4 * a, 4) if i < 16 else v(w2r(i, a), 4)

        def dm(i, k):
            a, b = k & 1, k >> 1
            if d16:
                j, ch = i & ~1, i & 1
                r = [mf16(DA[k] + 8 * ch + 4 * th, w2f(j + a, ch), a_(8 * ((j + b) & 15) + 4 * th, 4), "0" if j == 0 and k else None)
                     for th in (ch, 1 - ch)]
                r[1].tag = "second"
                return r
            return [mf32(DA[k], w2f(i, a), a_(8 * (i & 15) + 4 * b, 4), "0" if i == 0 and k else None)]
        nl = o.get('nl', 4)
        if d16:
            assert nl % 2 == 0
            G = [dm(j + ch, k) for j in range(0, 28 - nl, 2) for k in (0, 1, 3, 2) for ch in range(2)]
        else:
            G = [dm(i, k) for i in range(28 - nl) for k in (1, 3, 2, 0)]
        G += [dm(i, k) for k in (1, 3, 2, 0) for i in range(28 - nl, 28)]
        for i in range(16, 28):
            G[min(4 * i - 7 - 2 * d16 * (i & 1), 4 * (28 - nl) - 8 + (i - (28 - nl)))] += w2read(i)
        c2, c3, c4 = o.get('c2', 22), o.get('c3', 54), o.get('c4', 76)
        l2, l3, l4 = o.get('l2', 6), o.get('l3', 37), o.get('l4', 62)
        G[l2] += pollld(1)
        G = weave(G, EP[6], 1, o.get('e6', 11))
        G[o.get('p3at', 12)] += pub("hh5", 2)
        G[l3] += pollld(2)
        G[o.get('p4at', 38)] += pub("hh6", 3)
        G[o.get('dbar', 40)] += bar("s_barrier")
        hs = lambda a, b: [x for i in range(a, b) for x in hhload(i)]
        G = weave(G, hs(LA, 12), 0, c2)
        G[c2] += pollchk(1)
        nf = max(0, len(FQ) - o.get('nf', 8))
        G = weave(G, hs(12, 16) + FQ[:nf] + hs(16, 20), c2 + 1, c3)
        G[c3] += pollchk(2)
        G = weave(G, hs(20, 24), c3 + 1, l4)
        G[l4] += pollld(3)
        G = weave(G, FQ[nf:], l4 + 1, c4)
        G[c4] += pollchk(3)
        G = weave(G, hs(24, 28), c4 + 1, c4 + o.get('h4', 9))
        WRT = [[Inst(f"ds_write_b128 v{36+k}, {v(DA[k]+4*q_,4)} offset:{(k-1)*4096+q_*1024}") for q_ in range(4)] for k in (1, 3, 2)]
        if nl >= 2:
            for n in range(3):
                G = weave(G, WRT[n], 112 - (3 - n) * nl + 1, 112 - (2 - n) * nl + (1 if n < 2 else 0))
        else:
            G[111] += flat(WRT)
        for k in sorted(set(list(range(8, 112, 8)) + [c2 - 1, c2, c3 - 1, c3, c4 - 1, c4])):
            G[k] += sub(lambda: self.stamp(f"d{k}"))
        p.extend(self.xf(spread(G)))
        self.stamp("D_loop")
        p("WAITALL lgkm\ns_barrier")
        for q_ in range(4):
            for k in range(3):
                p(f"ds_read_b128 {v(160+16*k+4*q_,4)}, v36 offset:{k*4096+q_*1024}")
        for q_ in range(4):
            for j in range(2):
                r = 4 * q_ + 2 * j
                p(f"v_pk_add_f32 {v(48+r,2)}, {v(48+r,2)}, {v(160+r,2)}")
                p(f"v_pk_add_f32 {v(176+r,2)}, {v(176+r,2)}, {v(192+r,2)}")
            for j in range(2):
                r = 4 * q_ + 2 * j
                p(f"v_pk_add_f32 {v(48+r,2)}, {v(48+r,2)}, {v(176+r,2)}")
            for j in range(2):
                p(f"v_cvt_pk_bf16_f32 v{112+2*q_+j}, v{48+4*q_+2*j}, v{48+4*q_+2*j+1}")
            if q_ & 1 and d16:
                p(f"v_permlane16_swap_b32 v{110+2*q_}, v{112+2*q_}\nv_permlane16_swap_b32 v{111+2*q_}, v{113+2*q_}")
            if q_ & 1:
                p(f"buffer_store_dwordx4 {v(112+4*(q_>>1),4)}, {ROWA}, {OUT}, {cOUT} offen offset:{32*(q_>>1)}" + ["", " sc1", " nt", " sc0 sc1"][o.get('outst', 0)])
        self.stamp("D_end")

    def tailD2(self, L):
        p, o, sub = self.p, self.o, self.sub
        bar, spread, pub, pollld, pollchk, EP, P, FQ = (L[k] for k in "bar spread pub pollld pollchk EP P FQ".split())
        WR, NR = L['WR'], L['NR']
        wslot = (2, 2, 3, 3, 4, 4, 0)

        def dmaW(t):
            off = (t >> 2) * 16384 + (t & 3) * 2048
            S = Seq()
            S(f"""s_add_u32 m0, {sB}, {wslot[t]*32768 + (t&1)*16384}
                 s_add_u32 {sT0}, {cW2}, {off}""")
            g = []
            for k in range(4):
                if k == 2:
                    S(f"s_add_u32 {sT0}, {sT0}, {32768-2048}")
                S(f"buffer_load_dwordx4 {L16}, {WS}, {sT0} offen offset:{k*1024} sc1 lds", tag=f"W{t}")
                g.append(list(S))
                S = Seq()
            return ctx(g)

        def hreg(t, j):
            return (128 + 32 * t + 8 * j) & 255

        def hh(t):
            g = []
            for j in range(4):
                S = Seq()
                S(f"s_add_u32 {sCc}, {cHL}, {j*32768 + t*1024}")
                S(f"buffer_load_dwordx4 {a_(hreg(t, j),4)}, {HHA}, {WS}, {sCc} offen sc1")
                g += ctx([list(S), [Inst(f"buffer_load_dwordx4 {a_(hreg(t, j)+4,4)}, {HHA}, {WS}, {sCc} offen offset:256 sc1")]])
            return g
        q, ee = o.get('cq', 12), o.get('ee', 20)
        Q = [(2, x) for x in FQ + self.dmaT(5, 0) + self.dmaT(6, 1)]
        for t in range(7):
            Q += [(3 + t // 2, x) for x in dmaW(t)]
        H1 = hh(0) + hh(1) + hh(2)
        n5, n6 = o.get('h5', 0), o.get('h6', 14)
        for t in range(2, 7):
            G = P[t]
            G[1] += bar("s_barrier")
            n = 0
            while n < min(q if t < 6 else o.get('q6', 4), len(Q)) and Q[n][0] <= t:
                n += 1
            c1 = o.get('c1', 33 + 1) - 33 * (t - 5)
            end = min(32, c1) if t == 5 else max(c1, 2 + n) if t == 6 else 32
            G = weave(G, [x for _, x in Q[:n]], 2, end)
            Q = Q[n:]
            if t == 2:
                G = weave(G, EP[0] + EP[1][:26], 2, 33)
            elif t == 3:
                G = weave(G, EP[1][26:] + EP[2], 0, 33)
            else:
                G = weave(G, EP[t - 1], 2, ee)
            if t == 4:
                G[o.get('p1at', 26)] += pub("hh2", 0)
                G[0] += bar(f"buffer_load_dwordx4 v[24:27], {L16}, {WS}, {cHR} offen sc1")
                G[1] += bar(f"buffer_load_dwordx4 v[28:31], {L16}, {WS}, {cHR} offen offset:1024 sc1")
            if t == 2:
                G[0] += bar("v_mov_b32 v16, -1\nv_mov_b32 v17, -1\nv_mov_b32 v18, -1\nv_mov_b32 v19, -1")
                G = weave(G, [Inst(f"buffer_store_dwordx4 v[16:19], {L16}, {WS}, {cW2x} offen offset:{k*1024} sc1") for k in range(4)], 3, 27)
            if t == 5:
                G[o.get('l1', 14)] += bar(f"buffer_load_dword v5, {HHB}, {WS}, {cPQ} offen sc1")
            if t >= 5 and 0 <= c1 < 33:
                G[c1] += sub(lambda: self.spin("v5", HHB, cPQ, "0xffff", "1", mode='check')) + bar(f"s_add_u32 {cPP}, {cPP}, 128")
            if t == 5 and n5:
                G = weave(G, H1[:n5], c1 + 1, 33)
            if t == 6:
                G = weave(G, H1[n5:n5 + n6], max(end, c1 + 1), 33)
                S = Seq()
                for i in (24, 25, 28, 29):
                    S(f"v_permlane16_swap_b32 v{i}, v{i+2}")
                for i in range(8):
                    S(f"v_lshlrev_b32 v{48+2*i}, 16, v{24+i}\nv_and_b32 v{49+2*i}, {sMSKHI}, v{24+i}")
                G = weave(G, list(S), ee + 1, 33)
                G[o.get('p2at', 12)] += pub("hh4", 1)
                PT6 = G
                break
            p.extend(self.xf(spread(G)))
            self.stamp(f"C_t{t}")
        nk = o.get('nk', 3)
        order = [(t, j, k, ch) for t in range(7 - nk) for j in range(4) for k in (1, 0) for ch in range(2)]
        order += [(t, j, k, ch) for k in (1, 0) for t in range(7 - nk, 7) for j in range(4) for ch in range(2)]
        LK = o.get('dlk', 5)

        def aread(n):
            t, j, k, ch = order[n]
            ad = ((W2A, W2B), None, (WLA, WLB), (WLA, WLB), (WLC, WLD))[wslot[t]][k]
            off = (32768 if wslot[t] == 3 else 0) + (t & 1) * 16384 + j * 4096 + ch * 256
            return [Inst(f"ds_read_b128 {v(WR+4*(n%NR),4)}, {ad} offset:{off}")]
        first = {}
        for n, x in enumerate(order):
            first.setdefault(x[0], n)
        PT6[32 - LK] += bar("WAITTAG W3\ns_barrier")
        for n in range(LK):
            PT6[33 - LK + n] += aread(n)
        p.extend(self.xf(spread(PT6)))
        self.stamp("C_t6")
        G = []
        for n, (t, j, k, ch) in enumerate(order):
            A = (48, 96)[k] + 8 * ch
            g = [mf16(A + 4 * th, v(WR + 4 * (n % NR), 4), a_(hreg(t, j) + 4 * th, 4), "0" if k and t == 0 and j == 0 else None)
                 for th in (ch, 1 - ch)]
            g[1].tag = "second"
            if n + LK < 112:
                if n + LK == first[4]:
                    g += bar("WAITTAG W6\ns_barrier")
                g += aread(n + LK)
            G.append(g)
        c2, c3, c4 = o.get('c2', 20), o.get('c3', 50), o.get('c4', 66)
        G[o.get('l2', 6)] += pollld(1)
        G = weave(G, EP[6], 1, o.get('e6', 11))
        G[o.get('p3at', 12)] += pub("hh5", 2)
        G[o.get('p4at', 32)] += pub("hh6", 3)
        G[o.get('l3', 36)] += pollld(2)
        G = weave(G, H1[n5 + n6:], 0, c2)
        G[c2] += pollchk(1)
        G = weave(G, hh(3) + [x for _, x in Q] + hh(4), c2 + 1, c3)
        G[c3] += pollchk(2)
        G[o.get('l4', 54)] += pollld(3)
        G = weave(G, hh(5), c3 + 1, c3 + 9)
        G[c4] += pollchk(3)
        G = weave(G, hh(6), c4 + 1, c4 + 7)
        se = 112 - 8 * nk
        for k in range(4):
            G[se + 1 + k] += [Inst(f"buffer_store_dwordx4 {v(96+4*k,4)}, {L16}, {WS}, {cW2x} offen offset:{k*1024} sc1", tag="xs")]
        xl = "\n".join(f"buffer_load_dwordx4 {v(64+4*k,4)}, {L16}, {WS}, {cW2x} offen offset:{k*1024} sc1" for k in range(4))
        xa = o.get('xa_', 100)
        G[se + 5] += bar(f"s_xor_b32 {cW2x}, {cW2x}, 0x10000")
        G = weave(G, bar(xl), xa, xa + 4)
        for k in sorted(set(list(range(8, 112, 8)) + [c2 - 1, c2, c3 - 1, c3, c4 - 1, c4])):
            G[k] += sub(lambda: self.stamp(f"d{k}"))
        p.extend(self.xf(spread(G)))
        self.stamp("D_loop")
        chk = """v_max3_u32 v80, v64, v65, v66
             v_max3_u32 v81, v67, v68, v69
             v_max3_u32 v80, v80, v70, v71
             v_max3_u32 v81, v81, v72, v73
             v_max3_u32 v80, v80, v74, v75
             v_max3_u32 v81, v81, v76, v77
             v_max3_u32 v80, v80, v78, v79
             v_max_u32 v80, v80, v81
             v_cmp_eq_u32 vcc, -1, v80"""
        if o.get('stamps') == 3:
            p(f"s_mov_b32 {sT5}, 0")
        p(chk + "\ns_cmp_lg_u64 vcc, 0")
        Lp = self.lab("xp")
        self.ool("s_cbranch_scc1", f"""s_mov_b32 {sT5}, 0
             {Lp}:
             {xl}
             s_add_u32 {sT5}, {sT5}, 1
             s_waitcnt vmcnt(0)
             {chk}
             s_cmp_ge_u32 {sT5}, 0x8000
             s_cselect_b64 vcc, 0, vcc
             s_cmp_lg_u64 vcc, 0
             s_cbranch_scc1 {Lp}""")
        if o.get('stamps') == 3:
            p(f"v_writelane_b32 v{STV}, {sT5}, {self.nstamp}")
            self.nstamp += 1
            self.stamp_names.append("X")
        self.stamp("D_x")
        for q_ in range(4):
            for j in range(2):
                r = 4 * q_ + 2 * j
                p(f"v_pk_add_f32 {v(48+r,2)}, {v(48+r,2)}, {v(64+r,2)}")
            for j in range(2):
                p(f"v_cvt_pk_bf16_f32 v{112+2*q_+j}, v{48+4*q_+2*j}, v{48+4*q_+2*j+1}")
            if q_ & 1:
                p(f"v_permlane16_swap_b32 v{110+2*q_}, v{112+2*q_}\nv_permlane16_swap_b32 v{111+2*q_}, v{113+2*q_}")
                p(f"buffer_store_dwordx4 {v(112+4*(q_>>1),4)}, {ROWA}, {OUT}, {cOUT} offen offset:{32*(q_>>1)}")
        self.stamp("D_end")

    def finish(self):
        p = self.p
        if self.o.get('stamps'):
            p("WAITALL vm")
            self.stamp("D_drained")
            p(f"""s_lshl_b32 {sT0}, s2, 2
                 s_add_u32 {sT0}, {sT0}, {sW}
                 s_lshl_b32 {sT0}, {sT0}, 7
                 s_add_u32 {sT0}, {sT0}, {hex(STAMP)}
                 s_mov_b32 exec_hi, 0
                 buffer_store_dword v{STV}, {L4}, {WS}, {sT0} offen""")
        if self.o.get('padto'):
            p("WAITALL vm")
            if self.o.get('skew') is not None:
                p(f"""buffer_load_dword v43, off, {DBG}, 0 offset:128 sc1
                     buffer_load_dword v41, off, {DBG}, 0 offset:192 sc1
                     v_not_b32 v43, v43
                     v_readfirstlane_b32 s72, v43
                     v_readfirstlane_b32 s73, v41""")
                if self.o['skew'] < 0:
                    p("s_sub_u32 s101, s73, s72")
                else:
                    p("s_sub_u32 s101, s100, s72")
                p(f"""s_min_u32 s101, s101, 2000
                     s_lshl_b32 s101, s101, 3
                     s_add_u32 s100, s72, s101
                     s_lshl_b32 s72, s2, 2
                     s_add_u32 s72, s72, {sW}
                     s_cmp_lg_u32 s72, {max(self.o['skew'], 0) * 4}
                     s_cbranch_scc1 L_end""")
            if self.o.get('mx'):
                p(f"""s_lshl_b32 s72, s101, 8
                     s_add_u32 s72, s72, s2
                     v_mov_b32 v41, s72
                     s_cmp_eq_u32 {sW}, 0
                     s_cselect_b32 s73, 0, {hex(OOB)}
                     buffer_atomic_umax v41, {FA1}, {DBG}, s73 offen offset:192 sc1
                     s_waitcnt vmcnt(0)
                     L_pad0:
                     s_memrealtime s[72:73]
                     s_waitcnt lgkmcnt(0)
                     s_sub_u32 s72, s72, s100
                     s_cmp_lt_i32 s72, {self.o['padto']-200}
                     s_cbranch_scc1 L_pad0
                     buffer_load_dword v41, off, {DBG}, 0 offset:192 sc1
                     v_readfirstlane_b32 s72, v41""")
                if self.o['mx'] == 1:
                    p("s_lshl_b32 s101, s101, 8\ns_sub_u32 s101, s72, s101\ns_lshr_b32 s101, s101, 8\ns_min_u32 s101, s101, 1000\ns_lshl_b32 s101, s101, 4")
                elif self.o['mx'] == 2:
                    p("s_bfe_u32 s101, s72, 0x50003\ns_mul_i32 s101, s101, 200")
                else:
                    p("s_and_b32 s101, s72, 7\ns_mul_i32 s101, s101, 500")
                p("s_add_u32 s100, s100, s101")
            if self.o.get('rel'):
                p("s_memrealtime s[72:73]\ns_waitcnt lgkmcnt(0)\ns_add_u32 s100, s72, s101")
            if self.o.get('seg0'):
                p(f"s_lshl_b32 s72, s2, 2\ns_add_u32 s72, s72, {sW}\ns_cmp_lg_u32 s72, {self.o.get('segw', 150)}\ns_cbranch_scc1 L_end")
            p("L_pad:\ns_memrealtime s[72:73]\ns_waitcnt lgkmcnt(0)\ns_sub_u32 s72, s72, s100")
            p(f"s_cmp_lt_i32 s72, {self.o['padto']}\ns_cbranch_scc1 L_pad")
        p("L_end:\ns_endpgm")

    def build(self):
        if self.o.get('stamps') or self.o.get('padto'):
            self.p("s_memtime s[100:101]" if self.o.get('stamps') == 2 else "s_memrealtime s[100:101]")
        self.setup()
        if self.o.get('seg0') == 'start':
            self.p("s_mov_b32 s101, s100")
        if self.o.get('stamps'):
            self.p(f"v_mov_b32 v{STV}, s100")
            self.nstamp = 1
            self.stamp_names.append("start")
        self.p.extend(self.xf(self.sub(self.phaseA), 'xa'))
        self.p.extend(self.xf(self.sub(self.phaseB), 'xb'))
        self.phaseCD()
        self.finish()
        sk = str(self.o.get('skel', ''))
        if sk:
            Q = Seq()
            for i in self.p:
                if 'm' in sk and i.kind == 'mfma':
                    r = sorted(i.srcab)
                    for x in (r[0], r[-1]):
                        Q(f"v_accvgpr_read_b32 v40, {x}" if x[0] == 'a' else f"v_mov_b32 v40, {x}")
                    continue
                if 'e' in sk and i.kind in ('valu', 'trans') and not i.cond and i.op.endswith(('f32', 'f32_e64')):
                    continue
                if 'v' in sk and i.kind in ('vload', 'dma') and not i.cond and 'dwordx4' in i.op:
                    continue
                if 's' in sk and i.kind == 'vstore' and not i.cond and (i.wide or 'f32' in i.op) and 'v[176:179]' not in i.text:
                    continue
                Q.append(i)
            self.p = Q
        ns = str(self.o.get('nosc', ''))
        for i in self.p:
            if i.kind in ('vload', 'dma') and 'dwordx' in i.op and not i.cond:
                for ch, regs in (('k', (sKVL, bK2, sZL)), ('q', (sPQL, bQ2)), ('h', (cHB,)), ('t', (sT0, sKC)), ('d', (sCc,))):
                    if ch in ns and any(f"{WS}, {r} " in i.text for r in regs):
                        i.text = i.text.replace(" sc1", "")
        import dsl
        dsl.MERGE = self.o.get('mg', 1)
        dsl.SINK = self.o.get('sink', 1)
        return finalize(self.p, self.o.get('fill', 1))


def emit(opt):
    g = Gen(opt)
    prog = g.build()
    hdr = open(os.path.join(os.path.dirname(os.path.abspath(__file__)), "header.txt")).read()
    body = "\n".join(("" if i.kind == 'label' else "    ") + i.text for i in prog)
    txt = hdr + f"""; @launch grid=(256,1,1) block=(256,1,1) lds=163840
.amdgcn_target "amdgcn-amd-amdhsa--gfx950"
.set CODE_PF_MAX, {opt.get('code_bytes', 0)}
.text
.globl {NAME}_kernel
.p2align 8
.type {NAME}_kernel,@function
{NAME}_kernel:
{body}
.section .rodata,"a"
.p2align 6
.amdhsa_kernel {NAME}_kernel
  .amdhsa_next_free_vgpr 512
  .amdhsa_next_free_sgpr 102
  .amdhsa_accum_offset 256
  .amdhsa_group_segment_fixed_size 0
  .amdhsa_kernarg_size 80
  .amdhsa_user_sgpr_count 2
  .amdhsa_user_sgpr_kernarg_segment_ptr 1
  .amdhsa_system_sgpr_workgroup_id_x 1
.end_amdhsa_kernel
"""
    return txt, g.stamp_names


def code_size(txt):
    import subprocess, tempfile
    with tempfile.TemporaryDirectory() as d:
        open(d + "/k.s", "w").write(txt)
        r = subprocess.run(["clang", "-x", "assembler", "-target", "amdgcn-amd-amdhsa",
                            "-mcpu=gfx950", "-c", d + "/k.s", "-o", d + "/k.o"], capture_output=True, text=True)
        if r.returncode:
            print("\n".join(r.stderr.split("\n")[:30]))
            raise SystemExit(1)
        r = subprocess.run(["llvm-objdump", "-h", d + "/k.o"], capture_output=True, text=True)
        for line in r.stdout.split("\n"):
            f = line.split()
            if len(f) > 2 and f[1] == ".text":
                return int(f[2], 16)


def main():
    opt = {}
    out = None
    for a in sys.argv[1:]:
        if '=' in a:
            k, val = a.split('=')
            try:
                opt[k] = int(val, 0)
            except ValueError:
                opt[k] = val
        else:
            out = a
    opt['code_bytes'] = 4096
    txt, names = emit(opt)
    sz = code_size(txt)
    opt['code_bytes'] = (sz - 64) & ~3
    txt, names = emit(opt)
    open(out, "w").write(txt)
    if names:
        open(out + ".names", "w").write(" ".join(names))
    print(out, "code bytes", sz, "lines", txt.count("\n"), "stamps", len(names))


if __name__ == "__main__":
    main()
```

```python
import sys, os
sys.path.insert(0, os.path.dirname(os.path.abspath(__file__)))
from dsl import *

NAME = "sequential_preLN__linear_attn_block__glu_gated_swiglu__prompt"

CNT = 0x20000
KVM = 0x10000
ST = 0x18000
CS = 0x1C000
ZP = 0x1F800
STAMP = 0xC0000
PQ = 0x400000
HB = 0x800000
HH = 0x1000000
W13R = 0x2000000
W2R = 0x2800000
PROBE = 0x100000
XB2 = 0x2C00000
WS_SIZE = 0x3400000
OOB = 0x7f000000

X, WQKV, WO, W1, W3, W2, OUT, WS, DBG = [f"s[{a}:{a+3}]" for a in range(4, 40, 4)]
(sW, sG, sM, sC0, sT0, sT1, sT2, sT3, sXB, sWB, sXL, sWL, sTB, sCB, sRQ, sLOG2E,
 sU, sKC, sT4, sT5, sMSKHI, sEPS6) = [f"s{i}" for i in range(40, 62)]
sHILANES = "s[62:63]"
sB4LANES = "s[64:65]"
sA, sB, sCc, sD = "s66", "s67", "s68", "s69"
sKVA, sZA, sPQS, sRW, sR2, sRC, sKVL, sZL, sPQL, sSIG, sHST, sSTA = [f"s{i}" for i in range(84, 96)]
sMA, sTA, sHS, sRL = "s3", "s74", "s83", "s1"
sP1, sPE, sP2, sTBL = "s96", "s97", "s98", "s99"
STV = 0

VB, KB, XCH, RST, KVS, ZS = 0x10000, 0x18000, 0x20000, 0x22000, 0, 0x21000

L16, L4 = "v2", "v3"
TRK, TRP = 152, 156
XCW, XCR, KVW, ZW, STW, KVR, ZR, ZAT, STR = [f"v{i}" for i in range(212, 221)]
WOD, WOT, OAD = 221, 225, 229
ROWA, ZBW, ZBR, P256 = "v233", "v234", "v235", "v236"
RL1, RL3, RL2, RT13, RT2A, RT2B, CSAT, P4K, FA1, LM8, PA2 = [f"v{i}" for i in range(237, 248)]
RCS = 248
L16H = "v252"


def v(a, n=1):
    return f"v{a}" if n == 1 else f"v[{a}:{a+n-1}]"


def a_(a, n=1):
    return f"a{a}" if n == 1 else f"a[{a}:{a+n-1}]"


def mf32(d, A, B, c=None):
    return Inst(f"v_mfma_f32_32x32x16_bf16 {v(d,16)}, {A}, {B}, {v(d,16) if c is None else c}")


def mf16(d, A, B, c=None):
    return Inst(f"v_mfma_f32_16x16x32_bf16 {v(d,4)}, {A}, {B}, {v(d,4) if c is None else c}")


def mf4(d, A, B, c=None):
    return Inst(f"v_mfma_f32_4x4x4_16b_bf16 {v(d,4)}, {A}, {B}, {v(d,4) if c is None else c}")


def trpair(dst, addr, off, step):
    k, b = dst
    return [Inst(f"ds_read_b64_tr_b16 {k}[{b}:{b+1}], {addr} offset:{off}"),
            Inst(f"ds_read_b64_tr_b16 {k}[{b+2}:{b+3}], {addr} offset:{off+step}")]


def par13(t):
    return (t >> 1) & 1


def par2(pr, t):
    return (pr >> 1) if t < 3 else (t & 1) ^ 1


def split2(dst, src, t):
    return Seq()(f"""v_cvt_pk_bf16_f32 v{t}, v{src}, v{src}
         v_lshlrev_b32 v{t}, 16, v{t}
         v_sub_f32 v{t}, v{src}, v{t}
         v_cvt_pk_bf16_f32 v{dst}, v{src}, v{t}""")


cHB, cST, cHS, cHR, cCS, cW2, cHL, cOUT, cHS2 = [f"s{i}" for i in range(75, 84)]
cPP, cPQ, cPS, cPL, bTA, bTL, bK2, bQ2, bGP, bRP, bTX, cW2x, sGC, sMC = [f"s{i}" for i in (4, 5, 6, 7, 16, 17, 18, 19, 20, 21, 22, 23, 24, 25)]
W2A, W2B, LB1, LB2, WLA, WLB, WLC, WLD = [f"v{i}" for i in range(6, 14)]
CSL, HHA, HHB, HPA, LB0 = "v14", "v15", "v42", "v43", "v212"


class Gen:
    def __init__(self, opt):
        self.o = opt
        self.p = Seq()
        self.nl = 0
        self.nstamp = 0
        self.stamp_names = []

    def lab(self, s):
        self.nl += 1
        return f"L_{s}_{self.nl}"

    def stamp(self, name):
        if self.o.get('padat') == name:
            self.p("WAITALL lgkm\ns_memrealtime s[100:101]\nWAITALL lgkm")
        clk = "s_memtime" if self.o.get('segc') else "s_memrealtime"
        if self.o.get('seg0') == name:
            self.p(f"WAITALL lgkm\n{clk} s[72:73]\nWAITALL lgkm\ns_mov_b32 s101, s72")
        if self.o.get('seg1') == name:
            self.p(f"WAITALL lgkm\n{clk} s[72:73]\nWAITALL lgkm\ns_sub_u32 s101, s72, s101")
            if self.o.get('lo') is not None:
                self.p(f"s_cmp_lt_u32 s101, {self.o['thr']}\ns_movk_i32 s101, {self.o['hi']}\ns_cselect_b32 s101, {self.o['lo']}, s101")
            else:
                self.p(f"s_lshl_b32 s101, s101, {self.o.get('amp', 4)}")
            self.p("s_add_u32 s100, s100, s101")
        if self.o.get('stamps', 3) == 3:
            return
        fine = str(self.o.get('fine', ''))
        if name[0].islower() and name[0] not in fine:
            return
        if fine and name[0].isupper() and name[0].lower() not in fine and name not in ('C_t6', 'B_sync1', 'C_sync2', 'D_drained', 'A_loop', 'A_v', 'A_q'):
            return
        p = self.p
        if self.o.get('nb'):
            if self.nstamp > 1:
                p(f"v_writelane_b32 v{STV}, s72, {self.nstamp-1}", cond=True)
            p("s_memrealtime s[72:73]" if self.o['stamps'] == 1 else "s_memtime s[72:73]", cond=True)
            if name == 'D_drained':
                p(f"s_waitcnt lgkmcnt(0)\nv_writelane_b32 v{STV}, s72, {self.nstamp}", cond=True)
            self.nstamp += 1
            self.stamp_names.append(name)
            return
        p("WAITALL lgkm")
        p("s_memrealtime s[72:73]" if self.o['stamps'] == 1 else "s_memtime s[72:73]")
        p("WAITALL lgkm")
        p(f"v_writelane_b32 v{STV}, s72, {self.nstamp}")
        self.nstamp += 1
        self.stamp_names.append(name)

    def sub(self, fn):
        save = self.p
        self.p = Seq()
        fn()
        r = list(self.p)
        self.p = save
        return r

    def xf(self, L, key='x'):
        x = self.o.get(key, '')
        out = []
        for i in L:
            if 'v' in x and i.kind in ('vload', 'dma') and not i.cond and 'dwordx4' in i.op:
                continue
            if 'e' in x and i.kind in ('valu', 'trans') and not i.cond and i.op.endswith(('f32', 'f32_e64')):
                continue
            if 'l' in x and i.kind == 'dsr':
                continue
            if 's' in x and i.kind == 'vstore' and 'store' in i.op and not i.cond:
                continue
            if 'b' in x and i.op == 's_barrier':
                continue
            if 'm' in x and i.kind == 'mfma' and i.passes < 8:
                continue
            out.append(i)
        return out

    def ool(self, branch, text):
        p = self.p
        L, R = self.lab("o"), self.lab("r")
        p(f"{branch} {L}")
        n = len(p)
        p(f"{L}:\n{text}\ns_branch {R}", cond=True)
        for i in p[n:]:
            i.ool = L
        p(f"{R}:")

    def spin(self, vt, vaddr, soff, mask, target, srd=WS, mode='wave0', sleep=0, field=None, wave=0):
        p = self.p
        Lp = self.lab("pl")
        addr = f"{vaddr}, {srd}, {soff} offen" if vaddr else f"off, {srd}, {soff}"
        ext = f"v_and_b32 v43, {field}, {vt}\n" if field is not None else ""
        vc = "v43" if field is not None else vt
        loop = f"""s_mov_b32 {sT5}, 0
             s_mov_b64 exec, {mask}
             {Lp}:
             {f's_sleep {sleep}' if sleep and self.o.get('slp', 0) else ''}
             buffer_load_dword {vt}, {addr} sc1
             s_add_u32 {sT5}, {sT5}, 1
             s_waitcnt vmcnt(0)
             {ext}v_cmp_gt_u32 vcc, {target}, {vc}
             s_cmp_ge_u32 {sT5}, 0x8000
             s_cselect_b64 vcc, 0, vcc
             s_and_b64 exec, exec, vcc
             s_cbranch_scc1 {Lp}
             s_mov_b64 exec, -1"""
        if self.o.get('stamps') == 3:
            p(f"s_mov_b32 {sT5}, 0")
        if mode == 'check':
            p(f"{ext}v_cmp_gt_u32 vcc, {target}, {vc}\ns_and_b64 vcc, vcc, {mask}")
            self.ool("s_cbranch_scc1", loop)
        elif mode == 'wave0':
            Ld = self.lab("pd")
            p(f"s_cmp_lg_u32 {sW}, {wave}\ns_cbranch_scc1 {Ld}")
            p(loop, cond=True)
            p(f"{Ld}:")
        else:
            p(loop, cond=True)
            p("s_waitcnt vmcnt(0)")
        if self.o.get('stamps') == 3:
            p(f"v_writelane_b32 v{STV}, {sT5}, {self.nstamp}")
            self.nstamp += 1
            self.stamp_names.append(f"spin{self.nstamp}")

    def setup(self):
        p = self.p
        p(f"""s_cmp_ge_u32 s2, 256
             s_cbranch_scc1 L_end
             s_load_dwordx16 s[76:91], s[0:1], 0
             s_load_dwordx4 s[92:95], s[0:1], 64""")
        if self.o.get('codepf', 1):
            p(f"""s_getpc_b64 s[70:71]
                 s_lshr_b32 s3, s2, 3
                 s_lshl_b32 s3, s3, 10
                 v_lshrrev_b32 v200, 5, v0
                 v_lshl_add_u32 v200, v200, 7, s3
                 v_min_u32 v200, CODE_PF_MAX, v200
                 global_load_dword v201, v200, s[70:71]""")
        if self.o.get('rotid'):
            p(f"s_add_u32 s3, s2, {self.o['rotid']}\ns_and_b32 s3, s3, 7\ns_andn2_b32 s2, s2, 7\ns_or_b32 s2, s2, s3")
        p("v_and_b32 v1, 63, v0\nv_lshrrev_b32 v4, 6, v0")
        p(f"v_readfirstlane_b32 {sW}, v4")
        am = self.o.get('amap', 1)
        if am:
            hq = f"s_and_b32 {sT3}, s2, 1\ns_lshl_b32 {sMA}, {sT3}, 2\ns_lshr_b32 {sT0}, s2, 6\ns_add_u32 {sMA}, {sMA}, {sT0}"
            c0 = f"s_and_b32 {sC0}, {sT1}, 6\ns_add_u32 {sC0}, {sC0}, {sT3}\ns_lshr_b32 {sT0}, {sKC}, 1\ns_add_u32 {sC0}, {sC0}, {sT0}"
            if am == 1:
                c0 += f"\ns_lshl_b32 {sT0}, {sT2}, 2\ns_add_u32 {sC0}, {sC0}, {sT0}"
            if am == 2:
                c0 += f"\ns_add_u32 {sC0}, {sC0}, {sT0}"
            if am == 3:
                c0 += f"\ns_lshl_b32 {sT0}, {sRQ}, 1\ns_add_u32 {sC0}, {sC0}, {sT0}"
        else:
            hq = f"s_xor_b32 {sMA}, {sT1}, 4"
            c0 = f"s_add_u32 {sC0}, {sT1}, {sKC}"
        p(f"""s_mov_b32 s6, 0x200000
             s_mov_b32 s7, 0x20000
             s_mov_b32 s10, 0x180000
             s_mov_b32 s11, 0x20000
             s_lshr_b32 {sU}, s2, 3
             s_and_b32 {sKC}, s2, 7
             s_and_b32 {sRQ}, {sU}, 3
             s_and_b32 {sG}, s2, 6
             s_lshl_b32 {sG}, {sG}, 1
             s_add_u32 {sG}, {sG}, {sRQ}
             s_lshr_b32 {sT1}, s2, 5
             s_and_b32 {sT2}, {sT1 if am else 's2'}, 1
             s_lshl_b32 {sTA}, {sG}, 1
             s_add_u32 {sTA}, {sTA}, {sT2}
             s_lshl_b32 {sXL}, {sW}, 14
             s_lshl_b32 {sXB}, {sTA}, 16
             s_add_u32 {sXB}, {sXB}, {sXL}
             {hq}
             s_mul_i32 {sWB}, {sW}, {16*3072}
             s_lshl_b32 {sT0}, {sMA}, 7
             s_add_u32 {sWB}, {sWB}, {sT0}
             s_lshl_b32 {sWL}, {sW}, 11
             {c0}""")
        rot = self.o.get('rot', 6)
        if rot == 7:
            p(f"s_lshl_b32 {sT0}, {sU}, 2\ns_add_u32 {sC0}, {sC0}, {sT0}")
        if rot == 8:
            p(f"s_lshl_b32 {sT0}, {sRQ}, 1\ns_add_u32 {sC0}, {sC0}, {sT0}")
        if rot == 0:
            p(f"s_mov_b32 {sC0}, 0")
        if rot == 1:
            p(f"s_mov_b32 {sC0}, {sKC}")
        if rot == 9:
            p(f"s_lshl_b32 {sC0}, {sT1}, 1\ns_add_u32 {sC0}, {sC0}, {sKC}")
        p(f"""v_lshrrev_b32 v4, 3, v1
             v_and_b32 v5, 7, v1
             v_lshrrev_b32 v3, 4, v1
             v_xor_b32 v6, v5, v3
             v_lshlrev_b32 v6, 4, v6
             v_lshl_add_u32 v6, v4, 10, v6
             v_xor_b32 v7, 64, v6
             v_add_u32 v7, 7168, v7
             v_and_b32 v3, 1, v3
             v_lshlrev_b32 v3, 2, v3
             v_xor_b32 v5, v5, v3
             v_lshlrev_b32 v5, 4, v5
             v_mul_u32_u24 v8, 3072, v4
             v_add_u32 v8, v8, v5
             v_add_u32 v9, {8*3072-1024}, v8""")
        p("WAITALL lgkm")
        p("s_mov_b64 s[4:5], s[76:77]\ns_mov_b64 s[8:9], s[78:79]")

    def dmaW(self, t, c):
        base, po = ((KB, 1024), (VB, 2048), (0, 0))[t]
        tag = f"{'AVQ'[t]}{c}"
        S = Seq()
        S(f"s_add_u32 m0, {sWL}, {base + c*8192 - po}")
        S(f"buffer_load_dwordx4 v8, {WQKV}, s{75+c} offen offset:{po} lds", tag=tag)
        return ctx([list(S), [Inst(f"buffer_load_dwordx4 v9, {WQKV}, s{75+c} offen offset:{po+1024} lds", tag=tag)]])

    def dmaA(self, c):
        wc = f"s{75+c}"
        g = self.dmaW(0, c)
        g[0] = list(Seq()(f"""s_add_u32 {sT0}, {sC0}, {c}
             s_and_b32 {sT0}, {sT0}, 7
             s_mul_i32 {wc}, {sT0}, {64*3072}
             s_add_u32 {wc}, {wc}, {sWB}
             s_lshl_b32 {sT0}, {sT0}, 7""")) + g[0]
        nt = " nt" if self.o.get('xnt', 0) else ""
        S = Seq()
        S(f"s_add_u32 m0, {sWL}, {c*8192}\ns_add_u32 {sT0}, {sT0}, {sXB}")
        S(f"buffer_load_dwordx4 v6, {X}, {sT0} offen{nt} lds", tag=f"A{c}")
        g += [list(S), [Inst(f"buffer_load_dwordx4 v7, {X}, {sT0} offen offset:1024{nt} lds", tag=f"A{c}")]]
        return ctx(g)

    def dmaWO(self, q):
        S = Seq()
        S(f"""s_add_u32 {sT0}, {sA}, {q*65536}
             s_add_u32 m0, {sB}, {q*16384}
             s_and_b32 {sT0}, {sT0}, 0x7ffff""")
        g = []
        for k in range(4):
            S(f"buffer_load_dwordx4 v{WOD+k}, {WO}, {sT0} offen offset:{k*1024} lds", tag=f"WO{q>>2}")
            g.append(list(S))
            S = Seq()
        return ctx(g)

    def rload(self):
        nt = " nt" if self.o.get('rnt', 1) else ""
        g = []
        for k, (ad, srd, s0, s1) in enumerate(((RL1, W1, sKVL, sZL), (RL3, W3, sKVL, sZL), (RL2, W2, sPQL, sHST))):
            g.append(list(Seq()(f"s_add_u32 m0, {sSTA}, {k*2048}\nbuffer_load_dwordx4 {ad}, {srd}, {s0} offen{nt} lds")))
            g.append(list(Seq()(f"buffer_load_dwordx4 {ad}, {srd}, {s1} offen offset:1024{nt} lds", tag=f"RL{k}")))
            ctx(g[-2:])
        return g[4:] + g[:4]

    def miscA(self):
        M = Seq()
        a, b, c, d = "v208", "v209", "v210", "v211"
        am = self.o.get('amap', 1)
        cbx = f"s_lshr_b32 {sCB}, {sMA}, 1" if am else f"s_and_b32 {sCB}, {sM}, 3"
        M(f"""v_lshl_add_u32 {RL2}, v4, 10, v5
             v_mul_u32_u24 v4, 3584, v4
             v_add_u32 {RL1}, v4, v5
             v_xor_b32 {RL3}, 32, {RL1}
             v_mov_b32 v4, 1
             v_lshlrev_b32 {L4}, 2, v1
             s_mov_b32 {sLOG2E}, 0x3fb8aa3b
             s_mov_b32 {sMSKHI}, 0xffff0000
             s_mov_b32 {sEPS6}, 0x358637bd
             s_mov_b32 s62, 0
             s_mov_b32 s63, -1
             s_mov_b32 s64, 0xffff0000
             s_mov_b32 s65, 0xffff0000
             s_mov_b32 s96, 0x22222222
             s_mov_b32 s97, 0x22222222
             s_mov_b32 s98, 0x44444444
             s_mov_b32 s99, 0x44444444
             s_mov_b32 s70, 0x88888888
             s_mov_b32 s71, 0x88888888
             s_and_b32 {sM}, s2, 1
             s_lshl_b32 {sM}, {sM}, 3
             s_lshr_b32 {sT1}, s2, 5
             s_add_u32 {sM}, {sM}, {sT1}
             {cbx}
             s_and_b32 {sT1}, {sW}, 1
             s_lshr_b32 {sT2}, {sW}, 1
             s_lshl_b32 {sMA}, {sMA}, 1
             s_add_u32 {sMA}, {sMA}, {sT2}
             s_lshl_b32 {sTA}, {sTA}, 1
             s_add_u32 {sTA}, {sTA}, {sT1}""")
        M(f"""v_and_b32 {a}, 31, v1
             v_lshrrev_b32 {b}, 5, v1
             v_bfe_u32 {c}, v1, 1, 3
             v_xor_b32 {c}, {b}, {c}
             v_lshlrev_b32 {c}, 4, {c}
             v_lshl_add_u32 {c}, {a}, 7, {c}
             s_lshl_b32 {sT3}, {sT1}, 12
             s_lshl_b32 {sT4}, {sW}, 5
             s_add_u32 {sT3}, {sT3}, {sT4}
             v_xor_b32 v10, {sT3}, {c}
             v_xor_b32 v11, 32, v10
             v_xor_b32 v12, 64, v10
             v_xor_b32 v13, 96, v10
             s_lshl_b32 {sT3}, {sCB}, 1
             s_add_u32 {sT3}, {sT3}, {sT2}
             s_sub_u32 {sT3}, {sT3}, {sC0}
             s_and_b32 {sT3}, {sT3}, 7
             s_lshl_b32 {sT3}, {sT3}, 1
             s_bfe_u32 {sT4}, s2, {hex(0x10006 if am else 0x10007)}
             s_add_u32 {sT3}, {sT3}, {sT4}
             s_lshl_b32 {sT3}, {sT3}, 6
             s_add_u32 {sT3}, {sT3}, {sT1}
             s_lshl_b32 {sT3}, {sT3}, 6
             v_xor_b32 v14, {sT3}, {c}
             v_xor_b32 v15, 32, v14""")
        M(f"""s_lshl_b32 {sT3}, {sT2}, 8
             s_add_u32 {sT3}, {sT3}, {hex(XCH)}
             v_lshl_add_u32 {XCR}, {a}, 3, {sT3}
             s_lshl_b32 {sT3}, {sT1}, 2
             v_add_u32 {XCW}, {sT3}, {XCR}
             s_lshl_b32 {sT3}, {sW}, 9
             s_add_u32 {sT3}, {sT3}, {hex(XCH+2048)}
             v_lshl_add_u32 {STW}, v1, 3, {sT3}
             v_xor_b32 {STR}, 1024, {STW}
             v_lshlrev_b32 {KVW}, 4, {a}
             v_lshl_add_u32 {KVW}, {b}, 10, {KVW}
             s_add_u32 {sT3}, {sWL}, {hex(KVS)}
             v_add_u32 {KVW}, {sT3}, {KVW}
             s_lshl_b32 {sT3}, {sW}, 7
             s_add_u32 {sT3}, {sT3}, {hex(ZS)}
             v_lshl_add_u32 {ZW}, {a}, 2, {sT3}
             s_lshl_b32 {sT3}, {sT2}, 2
             s_add_u32 {sT3}, {sT3}, {sT1}
             s_lshl_b32 {sT4}, {sT3}, 10
             s_add_u32 {sT4}, {sT4}, {hex(KVS)}
             v_add_u32 {KVR}, {sT4}, {L4}
             s_lshl_b32 {sT4}, {sT3}, 6
             s_add_u32 {sT4}, {sT4}, {hex(ZS)}
             v_and_b32 {d}, 15, v1
             v_lshl_add_u32 {ZR}, {d}, 2, {sT4}
             v_lshrrev_b32 {d}, 4, v1
             v_lshl_add_u32 {ZAT}, {d}, 27, {L4}
             v_lshl_add_u32 {CSAT}, {b}, 27, {L4}
             v_lshrrev_b32 {LM8}, 3, v1
             v_lshlrev_b32 {LM8}, 27, {LM8}
             v_min_u32 {FA1}, 1, v1
             v_lshlrev_b32 {FA1}, 27, {FA1}
             s_lshl_b32 {sT3}, {sMA}, 1
             s_add_u32 {sT3}, {sT3}, {sT1}
             s_lshl_b32 {sKVA}, {sT3}, 10
             s_add_u32 {sKVA}, {sKVA}, {hex(KVM)}
             s_lshl_b32 {sZA}, {sT3}, 6
             s_add_u32 {sZA}, {sZA}, {hex(ZP)}
             s_lshl_b32 {sPQS}, {sTA}, 2
             s_lshr_b32 {sT3}, {sMA}, 2
             s_add_u32 {sPQS}, {sPQS}, {sT3}
             s_lshl_b32 {sPQS}, {sPQS}, 3
             s_and_b32 {sT3}, {sMA}, 3
             s_add_u32 {sPQS}, {sPQS}, {sT3}
             s_lshl_b32 {sPQS}, {sPQS}, 11
             s_add_u32 {sPQS}, {sPQS}, {hex(PQ)}
             s_lshl_b32 {sHS}, {sG}, 2
             s_add_u32 {sHS}, {sHS}, {sW}
             s_lshl_b32 {sHS}, {sHS}, 4
             s_add_u32 {sHS}, {sHS}, {sM}
             s_lshl_b32 {sHS}, {sHS}, 14
             s_add_u32 {sHS}, {sHS}, {hex(HH+4096)}""")
        M(f"""v_bfe_u32 {c}, v1, 2, 2
             v_lshlrev_b32 {a}, 10, {b}
             v_lshl_add_u32 {a}, {c}, 7, {a}
             v_bfe_u32 {c}, v1, 4, 1
             v_bfe_u32 {d}, v1, 3, 1
             v_lshl_add_u32 {d}, {d}, 1, {c}
             v_lshl_add_u32 {a}, {d}, 5, {a}
             v_and_b32 {d}, 1, v1
             v_lshl_add_u32 {RT2A}, {d}, 4, {a}
             v_bfe_u32 {d}, v1, 1, 1
             v_lshl_add_u32 {RT2A}, {d}, 3, {RT2A}
             v_and_b32 {d}, 3, v1
             v_lshl_add_u32 {a}, {d}, 3, {a}
             s_lshl_b32 {sT3}, {sT2}, 6
             s_add_u32 {sT3}, {sT3}, {sWL}
             s_add_u32 {sT4}, {sT3}, {hex(KB)}
             v_xor_b32 v{TRK}, {sT4}, {a}
             s_add_u32 {sT4}, {sT3}, {hex(VB)}
             v_xor_b32 v{TRP}, {sT4}, {RT2A}""")
        for j in range(1, 4):
            M(f"v_xor_b32 v{TRK+j}, {j*2048}, v{TRK}\nv_xor_b32 v{TRP+j}, {j*2048}, v{TRP}")
        M(f"""s_lshl_b32 {sT3}, {sW}, 5
             s_add_u32 {sT3}, {sT3}, {hex(RST)}
             v_xor_b32 {RT13}, {sT3}, {a if self.o.get('c16', 1) else RT2A}
             v_lshl_add_u32 {RT13}, {c}, 11, {RT13}
             s_mul_i32 {sSTA}, {sW}, 6144
             s_add_u32 {sSTA}, {sSTA}, {hex(RST)}
             v_add_u32 {RT2A}, {sSTA}, {a if self.o.get('d16', 1) else RT2A}
             v_xor_b32 {RT2B}, 64, {RT2A}""")
        M(f"""v_lshrrev_b32 {a}, 2, v1
             v_xor_b32 {a}, {a}, {c}
             v_and_b32 {a}, 1, {a}
             v_or_b32 {a}, {a}, {d}
             v_cmp_eq_u32 vcc, 0, {a}
             v_mov_b32 v20, 0x3f803f80
             v_mov_b32 v21, 0x3f803f80
             v_mov_b32 v22, 0x3f803f80
             v_mov_b32 v23, 0x3f803f80
             v_cndmask_b32 v16, 0, v20, vcc
             v_cndmask_b32 v17, 0, v20, vcc
             v_cndmask_b32 v18, 0, v20, vcc
             v_cndmask_b32 v19, 0, v20, vcc""")
        for r in (162, 163, 166, 167, 170, 171, 174, 175, 177, 178, 179):
            M(f"v_mov_b32 v{r}, 0")
        M(f"""v_lshrrev_b32 {a}, 4, v1
             v_bfe_u32 {c}, v1, 2, 2
             v_xor_b32 {c}, {c}, {a}
             v_lshlrev_b32 {c}, 6, {c}
             v_lshl_add_u32 {c}, {a}, 10, {c}
             v_lshl_add_u32 v{WOD}, {d}, 4, {c}
             v_add_u32 v{WOD+1}, 3072, v{WOD}
             v_add_u32 v{WOD+2}, 6144, v{WOD}
             v_add_u32 v{WOD+3}, 9216, v{WOD}
             s_lshl_b32 {sA}, {sRQ}, 17
             s_add_u32 {sA}, {sA}, {sXL}
             s_lshl_b32 {sT3}, {sCB}, 8
             s_add_u32 {sA}, {sA}, {sT3}""")
        M(f"""s_lshl_b32 {sT3}, {sKC}, 2
             s_add_u32 {sT3}, {sT3}, {sW}
             s_mul_i32 {sKVL}, {sT3}, {16*3584}
             s_lshl_b32 {sT3}, {sU}, 7
             s_add_u32 {sKVL}, {sKVL}, {sT3}
             s_lshl_b32 {sT2}, {sU}, 2
             s_add_u32 {sT2}, {sT2}, {sW}
             s_lshl_b32 {sPQL}, {sT2}, 14
             s_lshl_b32 {sT3}, {sKC}, 7
             s_add_u32 {sPQL}, {sPQL}, {sT3}
             s_add_u32 {sHST}, {sPQL}, 7168
             s_lshl_b32 {sRC}, {sT2}, 7
             s_add_u32 {sRC}, {sRC}, {hex(CS)}
             s_mul_i32 {sT3}, {sT2}, 9363
             s_lshr_b32 {sT3}, {sT3}, 16
             s_add_u32 {sT2}, {sT2}, {sT3}
             s_and_b32 {sT3}, {sKC}, 6
             s_add_u32 {sT3}, {sT3}, {sKC}
             s_lshl_b32 {sRW}, {sT2}, 4
             s_add_u32 {sRW}, {sRW}, {sT3}
             s_lshl_b32 {sRW}, {sRW}, 12
             s_add_u32 {sRW}, {sRW}, {hex(W13R)}
             s_andn2_b32 {sT3}, {sT2}, 3
             s_add_u32 {sT3}, {sT3}, {sT2}
             s_lshl_b32 {sR2}, {sKC}, 8
             s_add_u32 {sR2}, {sR2}, {sT3}
             s_lshl_b32 {sR2}, {sR2}, 11
             s_add_u32 {sR2}, {sR2}, {hex(W2R)}""")
        dup = self.o.get('dup', 2)
        if self.o.get('grp', 1):
            m13 = sum((par13(t) ^ m) << (8 * m + t) for m in range(2) for t in range(8))
            m2 = sum(par2(pr, t) << (8 * pr + t) for pr in range(4) for t in range(8))
            M(f"""s_and_b32 {sT3}, {sT2}, 15
                 s_lshr_b32 {sT3}, {hex(m13)}, {sT3}
                 s_lshr_b32 {sT4}, {hex(m2)}, {sT2}
                 s_xor_b32 {sT4}, {sT4}, {sKC}""")
        else:
            M(f"s_lshr_b32 {sT3}, {sKC}, 1\ns_lshr_b32 {sT4}, {sT2}, 5")
        M(f"""s_and_b32 {sT3}, {sT3}, {0 if dup & 1 else 1}
             s_lshl_b32 {sT3}, {sT3}, 13
             s_add_u32 {sRW}, {sRW}, {sT3}
             s_and_b32 {sT4}, {sT4}, {0 if dup & 2 else 1}
             s_lshl_b32 {sT4}, {sT4}, 13
             s_add_u32 {sR2}, {sR2}, {sT4}
             s_cmp_ge_u32 s2, 224
             s_cselect_b32 {sRW}, {hex(OOB)}, {sRW}
             s_cselect_b32 {sR2}, {hex(OOB)}, {sR2}
             s_cselect_b32 {sRC}, {hex(OOB)}, {sRC}
             s_cselect_b32 {sKVL}, {hex(OOB)}, {sKVL}
             s_and_b32 {sT3}, {sT2}, 7
             s_cmp_ge_u32 {sT3}, {self.o.get('lt', 4)}
             s_cselect_b32 {sRL}, {sRW}, {hex(OOB)}
             s_cselect_b32 {sRW}, {hex(OOB)}, {sRW}
             s_add_u32 {sZL}, {sKVL}, {8*3584-1024}
             s_and_b32 {sSIG}, {sU}, 15
             s_lshl_b32 {sSIG}, {sSIG}, 8
             s_add_u32 {sSIG}, {sSIG}, {hex(CNT)}
             s_cmp_eq_u32 {sW}, 0
             s_cselect_b32 {sSIG}, {sSIG}, {hex(OOB)}""")
        return M

    def miscB0(self):
        M = Seq()
        a, b, c, d = "v208", "v209", "v210", "v211"
        M(f"""v_lshrrev_b32 {b}, 5, v1
             v_and_b32 {a}, 31, v1
             v_lshlrev_b32 {ROWA}, 10, {a}
             v_lshl_add_u32 {ROWA}, {b}, 4, {ROWA}
             v_bfe_u32 {c}, v1, 2, 2
             v_and_b32 {a}, 1, v1
             v_lshlrev_b32 {a}, 4, {a}
             v_bfe_u32 {d}, v1, 1, 1
             v_lshl_add_u32 {a}, {d}, 3, {a}
             v_lshl_add_u32 {d}, {b}, 11, {a}
             v_lshl_add_u32 {d}, {c}, 8, {d}
             v_xor_b32 {c}, {sW}, {c}
             v_lshl_add_u32 {d}, {c}, 6, {d}
             v_bfe_u32 {c}, v1, 4, 1
             v_lshl_add_u32 {d}, {c}, 5, {d}""")
        for q in range(4):
            M(f"""s_xor_b32 {sT2}, {sW}, {q}
                 s_lshl_b32 {sT3}, {sT2}, 14
                 v_add_u32 v{WOT+q}, {sT3}, {d}
                 s_lshl_b32 {sT2}, {sT2}, 12
                 s_add_u32 {sT2}, {sT2}, 0x20000
                 v_add_u32 v{OAD+q}, {sT2}, {L16}""")
        M(f"""s_lshl_b32 {sT2}, {sW}, 12
             s_add_u32 {sT2}, {sT2}, {0x20000+16384+3072}
             v_add_u32 {ZBW}, {sT2}, {L4}
             v_xor_b32 {d}, 1, {c}
             v_lshlrev_b32 {d}, 5, {d}
             v_lshl_add_u32 {d}, {b}, 4, {d}
             v_add_u32 {ZBR}, {sT2}, {d}
             v_lshrrev_b32 {d}, 4, v1
             v_lshlrev_b32 {P256}, 8, v1
             v_lshl_add_u32 {P256}, {d}, 27, {P256}""")
        return M

    def miscB(self):
        M = Seq()
        a, b, c, d = "v208", "v209", "v210", "v211"
        M(f"""s_bfe_u32 {sTB}, s2, {hex(0x10006 if self.o.get('amap', 1) else 0x10007)}
             s_and_b32 {sT3}, {sTA}, 62
             s_add_u32 {sTB}, {sTB}, {sT3}
             s_lshl_b32 {sT4}, {sRQ}, 1
             s_add_u32 {sT4}, {sT4}, {sW}
             s_and_b32 {sT4}, {sT4}, 7
             s_lshl_b32 {sKVL}, {sT4}, 12
             s_add_u32 {sKVL}, {sKVL}, {hex(KVM)}
             s_xor_b32 {bK2}, {sKVL}, 0x4000
             s_lshl_b32 {sT2}, {sTB}, 16
             s_and_b32 {sPQL}, {sT4}, 6
             s_add_u32 {sPQL}, {sPQL}, {sT4}
             s_lshl_b32 {sPQL}, {sPQL}, 12
             s_add_u32 {sPQL}, {sPQL}, {sT2}
             s_add_u32 {sPQL}, {sPQL}, {hex(PQ)}
             s_xor_b32 {sPQL}, {sPQL}, {sP1}
             s_xor_b32 {bQ2}, {sPQL}, 0x8000
             s_lshl_b32 {sT4}, {sT4}, 8
             s_mov_b32 {sZL}, {hex(ZP)}
             s_lshl_b32 {sHST}, {sCB}, 14
             s_add_u32 {sHST}, {sHST}, {sT2}
             s_add_u32 {sHST}, {sHST}, {sWL}
             s_add_u32 {sHST}, {sHST}, {hex(HB)}
             s_xor_b32 {sHST}, {sHST}, {sPE}
             s_lshl_b32 {sSTA}, {sTB}, 4
             s_add_u32 {sSTA}, {sSTA}, {sCB}
             s_lshl_b32 {sSTA}, {sSTA}, 14
             s_add_u32 {sSTA}, {sSTA}, {hex(HH+7168+768)}
             s_xor_b32 {sSTA}, {sSTA}, {sP2}
             s_lshl_b32 {sD}, {sTB}, 2
             s_add_u32 {sD}, {sD}, {sCB}
             s_lshl_b32 {sD}, {sD}, 16
             s_add_u32 {sD}, {sD}, {sXL}
             s_add_u32 {sD}, {sD}, {hex(HH+7168)}
             s_xor_b32 {sD}, {sD}, {sP2}
             v_and_b32 v41, 31, v1
             v_lshrrev_b32 {b}, 5, v1
             v_lshlrev_b32 v41, 3, v41
             v_lshl_add_u32 v41, {b}, 10, v41
             v_xor_b32 v41, {sT4}, v41
             s_lshl_b32 {bTL}, {sW}, 13
             s_lshr_b32 {sT2}, {sTBL}, {sKC}
             s_and_b32 {sT2}, {sT2}, 0x2000
             s_lshl_b32 {bGP}, {sKC}, 14
             s_add_u32 {bGP}, {bGP}, {sT2}
             s_add_u32 {bGP}, {bGP}, {hex(CNT)}
             s_add_u32 {bRP}, {bGP}, 4096""")
        for k in range(8):
            M(f"v_lshlrev_b32 v{192+2*k}, 16, v{24+k}\nv_and_b32 v{193+2*k}, {sMSKHI}, v{24+k}")
        return M

    def phaseA(self):
        p = self.p
        o = self.o
        pre = o.get('pre', 0)
        if pre:
            nt = " nt" if o.get('xnt', 0) else ""
            p(f"""s_lshl_b32 {sT3}, {sMA}, 2
                 s_add_u32 {sT3}, {sT3}, {sW}
                 s_lshl_b32 {sT3}, {sT3}, 11
                 s_lshl_b32 {sT4}, {sTA}, 16
                 s_add_u32 {sT3}, {sT3}, {sT4}
                 s_lshl_b32 {sT4}, s2, 2
                 s_add_u32 {sT4}, {sT4}, {sW}
                 s_mul_i32 {sT4}, {sT4}, 1536
                 v_lshrrev_b32 v196, 2, v1
                 v_lshlrev_b32 v196, 7, v196
                 v_min_u32 v197, 1408, v196""")
            if pre & 1:
                p(f"buffer_load_dword v194, v196, {X}, {sT3} offen{nt}")
            if pre & 2:
                p(f"buffer_load_dword v195, v197, {WQKV}, {sT4} offen")
        self.stamp("s_karg")
        p.extend(flat(self.dmaA(0)))
        self.stamp("s_dma0")
        p(f"v_lshlrev_b32 {L16}, 4, v1")
        tch = Seq()
        touch = o.get('touch', 3)
        tch(f"""s_lshl_b32 {sCc}, s2, 2
             s_add_u32 {sCc}, {sCc}, {sW}
             s_lshr_b32 {sT4}, {sCc}, 1
             s_mul_i32 {sT4}, {sT4}, 3072
             s_and_b32 {sT5}, {sCc}, 1
             s_lshl_b32 {sT5}, {sT5}, 11
             s_add_u32 {sT4}, {sT4}, {sT5}
             s_lshl_b32 {sCc}, {sCc}, 9
             v_lshrrev_b32 v202, 3, v1
             v_lshlrev_b32 v202, 7, v202
             v_lshrrev_b32 v42, 4, v1
             v_lshlrev_b32 v42, 7, v42""")
        if touch & 4:
            tch(f"""s_lshl_b32 {sT3}, {sU}, 2
                 s_add_u32 {sT3}, {sT3}, {sW}
                 s_mul_i32 {sT3}, {sT3}, {4*3072}
                 s_and_b32 {sT5}, s2, {1 if o.get('amap', 1) else 0}
                 s_lshl_b32 {sT5}, {sT5}, 24
                 s_add_u32 {sT3}, {sT3}, {sT5}
                 v_min_u32 v200, 11, v1
                 v_lshlrev_b32 v200, 10, v200
                 buffer_load_dword v198, v200, {WQKV}, {sT3} offen offset:384""")
        if touch & 1:
            tch(f"buffer_load_dword v203, v202, {WQKV}, {sT4} offen")
        tat = o.get('tat', -1)
        if tat == -2:
            p.extend(tch)
        d1 = self.dmaA(1)
        n1 = o.get('d1', 4)
        p.extend(flat(d1[:n1]))
        if tat == -1:
            p.extend(tch)
        for srd, src, sz in ((12, 80, 0x80000), (16, 84, 0x1C0000), (20, 86, 0x1C0000), (24, 88, 0x1C0000),
                             (28, 90, 0x200000), (36, 92, 256), (32, 94, WS_SIZE)):
            p(f"s_mov_b64 s[{srd}:{srd+1}], s[{src}:{src+1}]\ns_mov_b32 s{srd+2}, {hex(sz)}\ns_mov_b32 s{srd+3}, 0x20000")
        self.stamp("s_srd")
        tlb = o.get('tlb', 0)
        if tlb:
            p(f"""v_min_u32 v194, 1, v1
                 v_lshlrev_b32 v194, 27, v194
                 s_lshl_b32 {sT3}, {sW}, 5
                 s_add_u32 {sT3}, {sT3}, {sU}
                 s_lshl_b32 {sT4}, {sT3}, 21
                 buffer_load_dword v195, v194, {WS}, {sT4} offen""")
            if tlb & 2:
                for k, srd in enumerate((OUT, W1, W3, W2, WO, DBG)):
                    p(f"""s_cmp_eq_u32 {sT3}, {24+k}
                         s_cselect_b32 {sT4}, 0, {hex(OOB)}
                         buffer_load_dword v{188+k}, v194, {srd}, {sT4} offen""")
        if o.get('wsoff'):
            p(f"s_add_u32 s32, s32, {o['wsoff'] << 20}\ns_addc_u32 s33, s33, 0")
        Lz = self.lab("z")
        p(f"""s_lshl_b32 {sB}, {sW}, 8
             s_add_u32 {sB}, {sB}, 224
             s_cmp_lt_u32 s2, {sB}
             s_cbranch_scc1 {Lz}""")
        padr = f"""s_sub_u32 {sT2}, s2, 224
             s_and_b32 {sT1}, {sU}, 1
             s_lshl_b32 {sT3}, {sT1}, 5
             s_add_u32 {sT3}, {sT3}, {sT2}
             s_lshl_b32 {sT3}, {sT3}, 8
             s_add_u32 {sT3}, {sT3}, {hex(PROBE)}
             s_xor_b32 {sT4}, {sT3}, 0x2000
             s_waitcnt lgkmcnt(0)
             s_buffer_load_dword {sT5}, {WS}, {sT3} glc
             s_buffer_load_dword {sT5}, {WS}, {sT4} glc"""
        p(f"""{padr.replace(sT5, sD)}
             v_mov_b32 v16, 0
             v_mov_b32 v17, 0
             v_mov_b32 v18, 0
             v_mov_b32 v19, 0
             s_lshl_b32 {sT4}, {sT2}, 11
             s_lshl_b32 {sT3}, {sT2}, 12
             s_add_u32 {sT3}, {sT3}, {hex(CNT)}
             s_add_u32 {sT4}, {sT4}, {hex(KVM)}
             buffer_store_dwordx4 v[16:19], {L16}, {WS}, {sT4} offen sc1
             buffer_store_dwordx4 v[16:19], {L16}, {WS}, {sT4} offen offset:1024 sc1
             buffer_store_dwordx4 v[16:19], {L16}, {WS}, {sT3} offen sc1
             buffer_store_dwordx4 v[16:19], {L16}, {WS}, {sT3} offen offset:1024 sc1
             buffer_store_dwordx4 v[16:19], {L16}, {WS}, {sT3} offen offset:2048 sc1
             buffer_store_dwordx4 v[16:19], {L16}, {WS}, {sT3} offen offset:3072 sc1""", cond=True)
        p(f"{Lz}:")
        probe = f"""{padr}
             s_getreg_b32 {sT4}, hwreg(HW_REG_XCC_ID, 2, 1)
             s_waitcnt lgkmcnt(1)
             s_nop {o.get('pnop', 15)}
             s_getreg_b32 {sT2}, hwreg(HW_REG_IB_STS, 8, 4)
             s_waitcnt lgkmcnt(0)
             s_min_u32 {sT2}, {sT2}, 1
             s_xor_b32 {sT1}, {sT1}, {sT4}
             s_cmp_lg_u32 {sT1}, {sT2}
             s_cselect_b32 {sT2}, 64, 4096
             s_add_u32 {sT2}, {sT2}, 1
             s_add_u32 {sT5}, {sKC}, 18
             s_lshl_b32 {sT4}, {sT4}, {sT5}
             s_cmp_eq_u32 {sU}, 28
             s_cselect_b32 {sT4}, {sT4}, 0
             s_add_u32 {sT2}, {sT2}, {sT4}
             v_mov_b32 v46, {sT2}"""
        MA = self.miscA()
        MA2 = []
        if o.get('a2', 0):
            k = max(i for i, x in enumerate(MA) if x.text.startswith(f"s_lshl_b32 {sT3}, {sKC}, 2"))
            k2 = min(i for i, x in enumerate(MA) if i > k and x.op.startswith("s_cmp"))
            MA, MA2 = MA[:k], MA[k:k2] + [MA[k2:]]
        ma = o.get('ma', 999)
        p.extend(MA[:ma])
        if ma < len(MA):
            p("FENCE")
            p.extend(flat(d1[n1:]) + flat(self.dmaA(2)))
            p("FENCE")
            p.extend(MA[ma:])
        self.stamp("s_misc")
        if o.get('pat', 0) == 0:
            Lz = self.lab("z")
            p(f"s_cmp_lt_u32 s2, {sB}\ns_cbranch_scc1 {Lz}")
            p(probe, cond=True)
            p(f"{Lz}:")
            probe = ""
        if tat == 0:
            p.extend(tch)
        SEL, ONES = v(16, 4), v(20, 4)
        XS, XQ0, XQ1, CSA, ZA = 252, 248, 32, 36, 44
        AK, AV, AQ, RB, AKV = 48, 64, 80, 96, 112
        WR = 128
        XM, WP, RS_ = 160, 164, 176

        def wread(t, s, dst=None):
            n = t * 32 + s
            addr = (TRK, TRP, TRK)[t]
            return trpair(('v', WR + 4 * (n % 6) if dst is None else dst), f"v{addr+(s&3)}", (s >> 2) * 8192, 512)

        def wf(t, s):
            return v(WR + 4 * ((t * 32 + s) % 6), 4)

        def csm(f, first):
            return mf16(CSA, SEL, f, "0" if first else None)

        def cswrite(t):
            S = split2(41, CSA, 41)
            S(f"ds_write_b32 {XCW}, v41 offset:{t*512}", tag=f"x{t}")
            return list(S)

        def csget(t):
            return [Inst(f"ds_read_b64 {v(WP+4*t,2)}, {XCR} offset:{t*512}")]

        def xread(s):
            return [Inst(f"ds_read_b128 {a_(4*s,4)}, v{10+(s&3)} offset:{(s>>2)*8192}")]

        if ma >= len(MA):
            p.extend(flat(d1[n1:]))
        d2 = self.dmaA(2) if ma >= len(MA) else []
        n2_ = o.get('dd2', 4)
        p.extend(flat(d2[:n2_]))
        self.stamp("A_issued")
        p("WAITTAG A0\ns_barrier")
        self.stamp("A_c0")
        p.extend(xread(0) + wread(0, 0) + xread(1) + wread(0, 1))
        p.extend(flat(d2[n2_:]))
        ad = o.get('ad', 3)
        nv1 = o.get('nv1', 10)
        vq = flat([self.dmaW(1, k) for k in range(8)])
        pend = flat([self.dmaA(k) for k in range(3, ad)])
        M0 = list(self.miscB0()) if o.get('b0', 1) else []
        M0 = MA2 + M0
        per0 = -(-len(M0) // o.get('b0n', 24))
        for s in range(32):
            c, j = s >> 2, s & 3
            xf = a_(4 * s, 4)
            z = "0" if s == 0 else None
            p.append(mf32(AK, xf, wf(0, s), z))
            if j == 2 and c < 7:
                p(f"WAITTAG A{c+1}\ns_barrier")
                self.stamp(f"a{c+1}")
                assert not pend
                if c == 1:
                    p(f"s_cmp_ge_u32 s2, {sB}")
                    self.ool("s_cbranch_scc1", f"{probe}\nbuffer_atomic_add v46, {FA1}, {DBG}, 0 offen sc1")
                if c + 1 == tat:
                    p.extend(tch)
                if c + ad < 8:
                    pend = self.dmaA(c + ad)
                else:
                    pend, vq = vq[:4], vq[4:]
            if s == 30:
                p("WAITTAG V1\ns_barrier")
                k = max(0, nv1 - (16 - len(vq)))
                assert k <= 2
                pend, vq = vq[:k], vq[k:]
            if s + 2 < 32:
                p.extend(xread(s + 2) + wread(0, s + 2))
            else:
                p.extend(wread(1, s + 2 - 32))
            if s == 28:
                p("ds_read_b128 v[24:27], v14\nds_read_b128 v[28:31], v15", tag="xres")
            for _ in range(2 * (ad - 3) if s < 2 else 1):
                if pend:
                    p.extend(pend.pop(0))
            if j % 2 == 0:
                p.append(csm(wf(0, s), s == 0))
            if j < 2:
                p.append(mf16(XS, SEL, xf, z))
                p.append(mf4(XQ0, a_(4 * s, 2), a_(4 * s, 2), z))
                p.append(mf4(XQ1, a_(4 * s + 2, 2), a_(4 * s + 2, 2), z))
            for _ in range(per0):
                if M0:
                    x = M0.pop(0)
                    p.extend(x if isinstance(x, list) else [x])
            if s == 30:
                for k in range(4):
                    p(f"v_add_f32 v{XQ0+k}, v{XQ0+k}, v{XQ1+k}")
                p(f"""v_cndmask_b32 v197, v{XQ0}, v{XQ0+1}, s[96:97]
                     v_cndmask_b32 v197, v197, v{XQ0+2}, s[98:99]
                     v_cndmask_b32 v197, v197, v{XQ0+3}, s[70:71]
                     v_mov_b32 v196, v197""")
            if s == 31:
                p(f"""v_permlane32_swap_b32 v196, v197
                     v_add_f32 v{XS+1}, v196, v197
                     ds_write_b64 {STW}, {v(XS,2)}""")
                p.extend(cswrite(0))
        assert not pend
        self.stamp("A_loop")
        CT = (204, 208, ZA)
        kb = o.get('kb', 11)

        def tilepass(t, acc, order):
            nm = "VQ"[t - 1]
            G = []
            for s in range(32):
                A_, B_ = (a_(4 * s, 4), wf(t, s)) if order == 0 else (wf(t, s), a_(4 * s, 4))
                g = Seq()
                g.append(mf32(acc, A_, B_, "0" if s == 0 else None))
                if t == 1 and s == 2:
                    g("WAITTAG x0 xres" + (" V3" if ad >= 4 else "") + "\ns_barrier")
                    g(f"ds_read_b64 v[198:199], {STR}")
                    g.extend(csget(0))
                if t == 2 and o.get('fb', 2) & 2:
                    if s == 4:
                        g("WAITTAG Q3\ns_barrier")
                    if s == kb:
                        assert kb <= 12
                        g("WAITTAG kvp Q7\ns_barrier")
                elif t == 1 and o.get('fb', 2) & 1:
                    if s == 12:
                        g("WAITTAG V7\ns_barrier")
                elif s % 8 == 4 and s < 28 and ((t, s) != (1, 4) or ad < 4):
                    g(f"WAITTAG {nm}{(s+4)//4+1} kvp\ns_barrier")
                elif t == 2 and s == kb:
                    g("WAITTAG kvp\ns_barrier")
                if s == 28:
                    g(f"WAITTAG x{t}" + (" Q1" if t == 1 else "") + "\ns_barrier")
                    g.extend(csget(t))
                if t == 1 and s < 2:
                    g.extend(wread(t, 2 + 2 * s) + wread(t, 3 + 2 * s))
                elif s + 4 < 32:
                    g.extend(wread(t, s + 4))
                elif t == 1:
                    g.extend(wread(2, s + 4 - 32))
                if s in (20, 21, 22):
                    g.extend(wread(t, 26 + 2 * (s - 20), CT[s - 20]))
                if s % 2 == 0 and s < 26 and (t, s) != (1, 0):
                    g.append(csm(wf(t, s), (t, s) == (2, 0)))
                if (t, s) == (1, 1):
                    g.append(csm(wf(t, 0), True))
                if s in (23, 24, 25):
                    g.append(csm(v(CT[s - 23], 4), False))
                if s == 26:
                    g.extend(cswrite(t))
                G.append(list(g))
            return G

        def phi(acc, scale, T, dst):
            S = Seq()
            for h in range(2):
                r = range(8 * h, 8 * h + 8)
                for i in r:
                    S(f"v_fma_f32 v{acc+i}, v{acc+i}, {scale(i)}, {sEPS6}")
                for i in r:
                    S(f"v_mul_f32 v{T+(i&7)}, {sLOG2E}, v{acc+i}")
                for i in r:
                    S(f"v_exp_f32_e64 v{T+(i&7)}, v{T+(i&7)} clamp")
                    S(f"v_max_f32 v{acc+i}, {sEPS6}, v{acc+i}")
                for i in r:
                    S(f"v_add_f32 v{acc+i}, v{acc+i}, v{T+(i&7)}")
                for i in range(4 * h, 4 * h + 4):
                    S(f"v_cvt_pk_bf16_f32 v{dst+i}, v{acc+2*i}, v{acc+2*i+1}")
            return S
        E = Seq()
        E(f"""v_add_f32 v198, v198, v{XS}
             v_add_f32 v197, v199, v{XS+1}
             v_mul_f32 v199, 0x3b000000, v198
             v_mul_f32 v197, 0x3b000000, v197
             v_cvt_pk_bf16_f32 v198, -v199, -v199
             v_fma_f32 v197, -v199, v199, v197
             v_cndmask_b32 v{XM}, v198, 0, {sHILANES}
             v_cndmask_b32 v{XM+1}, v198, 0, {sHILANES}
             v_max_f32 v197, 0, v197
             v_add_f32 v197, 0x3727c5ac, v197
             v_rsq_f32 v40, v197""")
        E.append(mf32(AK, v(XM, 4), v(WP, 4)))
        E.extend(split2(RS_, 40, 198))
        E(f"v_cndmask_b32 v{RS_}, v{RS_}, 0, {sHILANES}")
        E.append(mf32(RB, v(RS_, 4), ONES, "0"))
        PK = phi(AK, lambda i: f"v{RB+i}", 196, 180)
        G = tilepass(1, AV, 0)
        v2e = o.get('v2e', 4)
        qq = flat([self.dmaW(2, k) for k in range(8)])
        nq2 = o.get('nq2', 16)
        G = weave(G, vq, 0, v2e)
        G = weave(G, qq[:nq2], max(3, v2e), o.get('q2end', 30))
        G[0] += [Inst(f"v_subrev_u32 v{TRK+j}, {hex(VB)}, v{TRP+j}") for j in range(4)]
        G[12] += [Inst(f"buffer_load_dword v5, {FA1}, {DBG}, 0 offen sc1")]
        n2 = o.get('pk2', 88)
        G = weave(G, list(E), 4, 8)
        G = weave(G, PK[:n2], 10, 32)
        for k in range(3, 31, 4):
            G[k] += self.sub(lambda: self.stamp(f"v{k}"))
        p.extend(flat(G))
        p.append(mf32(AV, v(XM, 4), v(WP + 4, 4)))
        self.stamp("A_v")
        if o.get('skew') is not None:
            p(f"""s_not_b32 s101, s100
                 v_mov_b32 v43, s101
                 buffer_atomic_umax v43, {FA1}, {DBG}, 0 offen offset:128 sc1
                 v_mov_b32 v41, s100
                 buffer_atomic_umax v41, {FA1}, {DBG}, 0 offen offset:192 sc1""")
        E = Seq()
        E.extend(PK[n2:])
        for i in range(16):
            E(f"v_mul_f32 v{AV+i}, v{AV+i}, v{RB+i}")
        for i in range(8):
            E(f"v_cvt_pk_bf16_f32 v{188+i}, v{AV+2*i}, v{AV+2*i+1}")
        G = tilepass(2, AQ, 1)
        rq = self.rload()
        if o.get('nor'):
            rq = []
        if touch & 2:
            rq = rq[:2] + [[Inst(f"buffer_load_dword v42, v42, {WO}, {sCc} offen")]] + rq[2:]
        e2 = o.get('e2', 0)
        R2T = trpair(('a', 144), RT2A, 4096, 512) + trpair(('a', 148), RT2B, 4096, 512)
        R2S = [Inst(f"buffer_store_dwordx4 a[144:147], {L16}, {WS}, {sR2} offen sc1", tag="pub1" if e2 else "pubR"),
               Inst(f"buffer_store_dwordx4 a[148:151], {L16}, {WS}, {sR2} offen offset:1024 sc1", tag="pub1" if e2 else "pubR")]
        dup = o.get('dup', 2)
        if dup & 2:
            assert not e2
            R2S += [Inst(x.text.replace(L16, L16H), tag=x.tag) for x in R2S]
        if e2:
            G[e2] += [Inst("WAITTAG RL2")] + R2T
            G[e2 + 3] += R2S[:1]
            G[e2 + 5] += R2S[1:]
            R2T, R2S = [], []
        r0 = o.get('r0', 0)
        if nq2 < 16:
            G = weave(G, qq[nq2:], 0, r0)
        G = weave(G, rq, r0, o.get('r1', r0 + 7))
        if o.get('rwait'):
            G[o.get('r1', 7)] += list(Seq()("WAITALL vm")) + self.sub(lambda: self.stamp("A_rland"))
        woq = flat([self.dmaWO(q) for q in range(8)])
        nw3 = o.get('wo3', 0)
        G[13] += [Inst(f"s_lshl_b32 {sB}, {sW}, 12")]
        if nw3:
            G = weave(G, woq[:nw3], o.get('wo30', 26), 32)
        G = weave(G, list(E), 0, kb - 5)
        G[kb - 5] += [mf32(AKV, v(180, 4), v(188, 4), "0"), mf32(AKV, v(184, 4), v(192, 4)),
                 mf16(ZA, SEL, v(180, 4), "0"), mf16(ZA, SEL, v(184, 4))]
        G[kb - 4] += self.sub(lambda: self.spin("v5", None, "0", "1", "32", srd=DBG, mode='check', sleep=4, field=63))
        S = Seq()
        S(f"""v_readfirstlane_b32 {sT2}, v5
             s_bfe_u32 {sT3}, {sT2}, 0x60006
             s_bfe_u32 {sT4}, {sT2}, 0x6000c
             s_lshr_b32 {sT2}, {sT2}, 5""")
        S = [[i] for i in S] + [list(Seq()(f"""s_cmp_gt_u32 {sT4}, {sT3}
             s_cselect_b32 {sT3}, {'0, -1' if o.get('parx') else '-1, 0'}"""))]
        S += [[i] for i in Seq()(f"""s_xor_b32 {sTBL}, {sT2}, {sT3}
             s_and_b32 {sT2}, {sKC}, {6 if o.get('amap', 1) else 7}
             s_lshr_b32 {sT2}, {sTBL}, {sT2}
             s_lshl_b32 {sT3}, {sG}, 10
             s_xor_b32 {sP1}, {sT2}, {sT3}
             s_and_b32 {sP1}, {sP1}, 0x2000
             s_xor_b32 {sPQS}, {sPQS}, {sP1}
             s_lshr_b32 {sPE}, {sTBL}, 3
             s_and_b32 {sPE}, {sPE}, 0x2000
             s_lshl_b32 {sT4}, {sG}, 12
             s_xor_b32 {sP2}, {sT3}, {sT4}
             s_and_b32 {sP2}, {sP2}, 0x2000
             s_xor_b32 {sP2}, {sP2}, {sPE}
             s_xor_b32 {sHS}, {sHS}, {sP2}
             v_mov_b32 v176, 0
             v_lshrrev_b32_e64 {P4K}, v1, {sTBL}
             v_and_b32 {P4K}, 0x2000, {P4K}
             v_lshl_add_u32 {P4K}, v1, 14, {P4K}
             v_or_b32 {P4K}, {P4K}, {LM8}""")]
        S += [[Inst(f"buffer_store_dwordx4 v[176:179], {L16}, {WS}, {sHS} offen offset:3072 sc1", tag="pub1")]]
        G = weave(G, S, 19, 31)
        S = Seq()
        for i in range(8):
            S(f"v_cndmask_b32 v{196+i}, v{AKV+i}, v{AKV+8+i}, {sB4LANES}")
        S(f"""ds_write_b128 {KVW}, v[196:199]
             ds_write_b128 {KVW}, v[200:203] offset:512""")
        S(f"ds_write_b32 {ZW}, v{ZA}", tag="kvp")
        G = weave(G, list(S), kb - 3, kb - 1)
        S = Seq()
        for k in range(4):
            S(f"ds_read2st64_b32 v[{112+2*k}:{113+2*k}], {KVR} offset0:{k} offset1:{k+8}")
        S(f"ds_read2_b32 v[120:121], {ZR} offset0:0 offset1:32")
        G = weave(G, list(S), kb, kb + 2)
        S = Seq()
        for k in range(5):
            S(f"v_add_f32 v{112+2*k}, v{112+2*k}, v{113+2*k}")
        for k in range(4):
            S(f"buffer_atomic_add_f32 v{112+2*k}, {L4}, {WS}, {sKVA} offen offset:{k*256}", tag="pub1")
        S(f"buffer_atomic_add_f32 v120, {ZAT}, {WS}, {sZA} offen", tag="pub1")
        G = weave(G, list(S), kb + 3, kb + 8)
        for k in range(3, 31, 4):
            G[k] += self.sub(lambda: self.stamp(f"v{k}"))
        p.extend(flat(G))
        p.append(mf32(AQ, v(WP + 8, 4), v(XM, 4)))
        self.stamp("A_q")
        woq = woq[nw3:]
        t1, t3, t2 = o.get('wot1', 0), o.get('wot3', 6), o.get('wot2', 2)
        assert nw3 + t1 == 0
        p.extend(flat(woq[:t1]))
        woq = woq[t1:]
        ph = phi(AQ, lambda i: "v40", 196, 180)
        if o.get('pk', 1):
            ph = Seq()
            p(f"v_mov_b32 v41, {sEPS6}\nv_mov_b32 v204, {sLOG2E}")
            for h in range(2):
                r = range(8 * h, 8 * h + 8)
                for i in r[::2]:
                    ph(f"v_pk_fma_f32 {v(AQ+i,2)}, {v(AQ+i,2)}, v[40:41], v[40:41] op_sel:[0,0,1] op_sel_hi:[1,0,1]")
                for i in r[::2]:
                    ph(f"v_pk_mul_f32 {v(196+(i&7),2)}, {v(AQ+i,2)}, v[204:205] op_sel_hi:[1,0]")
                for i in r:
                    ph(f"v_exp_f32_e64 v{196+(i&7)}, v{196+(i&7)} clamp")
                    ph(f"v_max_f32 v{AQ+i}, {sEPS6}, v{AQ+i}")
                for i in r[::2]:
                    ph(f"v_pk_add_f32 {v(AQ+i,2)}, {v(AQ+i,2)}, {v(196+(i&7),2)}")
                for i in range(4 * h, 4 * h + 4):
                    ph(f"v_cvt_pk_bf16_f32 v{180+i}, v{AQ+2*i}, v{AQ+2*i+1}")
        h = len(ph) // 2
        p.extend(ph[:h])
        p(f"buffer_store_dwordx4 v[180:183], {L16}, {WS}, {sPQS} offen sc1", tag="pub1")
        p.extend(ph[h:])
        p(f"buffer_store_dwordx4 v[184:187], {L16}, {WS}, {sPQS} offen offset:1024 sc1", tag="pub1")
        self.stamp("A_pqst")
        p("s_barrier")
        MB = ([] if o.get('b0', 1) else list(self.miscB0())) + list(self.miscB())
        nb = max(o.get('mb1', 140), len(MB))
        MB += self.miscC()
        p.extend(flat(woq[:t3]))
        p("FENCE")
        p.extend(MB[:nb])
        p("FENCE")
        p.extend(flat(woq[t3:t3 + t2]))
        woq = woq[t3 + t2:]
        p("WAITTAG pub1\ns_barrier")
        p(f"buffer_atomic_add v4, {P4K}, {WS}, {sSIG} offen sc1")
        self.stamp("A_sig")
        for s in range(4):
            p.extend(trpair(('a', 128 + 4 * s), RT13, s * 6144, 512))
        p.extend(R2T)
        p(f"v_add_u32 {L16H}, 0x2000, {L16}")
        t4 = o.get('wot4', 20)
        assert t3 + t2 + t4 >= 16
        t5 = o.get('wot5', 8)
        p.extend(flat(woq[:t5]))
        for s in range(4):
            p.append(mf16(RCS, SEL, a_(128 + 4 * s, 4), "0" if s == 0 else None))
            p(f"buffer_store_dwordx4 {a_(128+4*s,4)}, {L16}, {WS}, {sRW} offen offset:{s*1024} {o.get('rfl', 'sc1').replace('_', ' ')}", tag=f"pubR{s}")
            if dup & 1:
                p(f"buffer_store_dwordx4 {a_(128+4*s,4)}, {L16H}, {WS}, {sRW} offen offset:{s*1024} sc1", tag=f"pubR{s}")
        self.late = []
        if o.get('late', 1):
            assert not dup & 1
            if o.get('lt', 4) < 7:
                self.late += [Inst(f"buffer_store_dwordx4 {a_(128+4*s,4)}, {L16}, {WS}, {sRL} offen offset:{s*1024} sc1") for s in range(4)]
            self.late += R2S
            for x in self.late:
                x.tag = "pub2"
        else:
            assert o.get('lt', 4) >= 7
            p.extend(R2S)
        p(f"buffer_atomic_add_f32 v{RCS}, {CSAT}, {WS}, {sRC} offen", tag="pubC")
        self.stamp("A_rst")
        p(f"s_add_u32 {sSIG}, {sSIG}, 4096")
        p.extend(flat(woq[t5:t4]))
        self.wo_rest = woq[t4:]
        self.mb_rest = MB[nb:]

    def dmaT(self, t, slot):
        g = []
        for h in range(2):
            S = Seq()
            S(f"s_add_u32 m0, {bTL}, {slot*32768+h*4096}\ns_add_u32 {sT0}, {bTX if self.o.get('grp', 1) and par13(t) and not self.o.get('dup', 2) & 1 else bTA}, {t*65536+h*4096}")
            for k in range(4):
                S(f"buffer_load_dwordx4 {L16}, {WS}, {sT0} offen offset:{k*1024} sc1 lds", tag=f"T{t}")
                g.append(list(S))
                S = Seq()
            ctx(g[-4:])
        return g

    def phaseB(self):
        p = self.p
        o = self.o
        AH = 192
        W = [trpair(('a', 4 * i), f"v{WOT+((i>>2)&3)}", (i & 3) * 4096, 1024) for i in range(32)]
        PQR = 224
        LD = [Inst(f"buffer_load_dwordx2 v[32:33], v41, {WS}, {sZL} offen sc1")]
        for q in range(4):
            for i in (2 * q, 2 * q + 1):
                LD.append(Inst(f"buffer_load_dwordx4 {v(48+4*i,4)}, {L16}, {WS}, {sKVL if i < 4 else bK2} offen offset:{(i&3)*1024} sc1"))
            for i in (2 * q, 2 * q + 1):
                LD.append(Inst(f"buffer_load_dwordx4 {a_(PQR+4*i,4)}, {L16}, {WS}, {sPQL if i < 4 else bQ2} offen offset:{(i&3)*1024} sc1"))
        ZB = Seq()(f"v_cvt_pk_bf16_f32 v32, v32, v33\nds_write_b32 {ZBW}, v32")
        for k in range(4):
            ZB(f"ds_read_b128 {v(96+4*k,4)}, {ZBR} offset:{k*64}")
        p("WAITTAG WO0" + (" pubC" if o.get('er', 2) == 2 else "") + "\ns_barrier")
        if o.get('er', 2) == 2:
            p(f"buffer_atomic_add v4, {P4K}, {WS}, {sSIG} offen sc1")
        self.stamp("B_wo")
        pm = o.get('pm', 0)
        pl = list(Seq()(f"""s_cmp_eq_u32 {sW}, 1
             s_cselect_b32 {bGP}, {bGP}, {hex(OOB)}
             s_cselect_b64 s[26:27], 0xffff, 0
             buffer_load_dword v5, {P256}, {WS}, {bGP} offen sc1"""))
        if pm == 2:
            p.extend(pl)
        p.extend(flat(W[:16]))
        if pm == 1:
            p.extend(pl)
        for q in range(4):
            p(f"v_add_u32 v{WOT+q}, 0x10000, v{WOT+q}")
        mb2 = o.get('mb2', 99)
        p.extend(self.mb_rest[:mb2])
        er = o.get('er', 2)
        rsig = Inst(f"buffer_atomic_add v4, {P4K}, {WS}, {sSIG} offen sc1")
        if er == 1:
            p("WAITTAG pubC\ns_barrier")
            p.append(rsig)
        self.stamp("B_prepoll")
        if pm:
            self.spin("v5", P256, bGP, "s[26:27]", "16", sleep=o.get('sleep1', 1), mode='check')
        else:
            self.spin("v5", P256, bGP, "0xffff", "16", sleep=o.get('sleep1', 1), wave=o.get('pw', 1))
        if o.get('seg0'):
            p("WAITTAG WO1x pubR0")
            self.stamp("B_r0")
            p("WAITTAG pubR3")
            self.stamp("B_r3")
            p("WAITTAG pubR")
            self.stamp("B_r5")
        p("WAITTAG pubC")
        self.stamp("B_rack")
        p("WAITALL lgkm\ns_barrier")
        self.stamp("B_sync1")
        LD.insert(o.get('rsat', 0), Inst("FENCE") if er else rsig)
        nl0 = o.get('nl0', 14)
        p.extend(LD[:10] + [Inst('FENCE')] + self.mb_rest[mb2:] + ZB + LD[10:nl0])

        def prep(q):
            S = Seq()
            for k in range(4):
                S(f"v_cvt_pk_bf16_f32 v{80+4*q+k}, v{48+8*q+2*k}, v{48+8*q+2*k+1}")
            for k in range(4):
                S(f"v_cndmask_b32 v{112+8*q+k}, v{80+4*q+k}, v{96+4*q+k}, {sB4LANES}")
            for k in range(4):
                S(f"v_cndmask_b32 v{116+8*q+k}, v{96+4*q+k}, v{80+4*q+k}, {sB4LANES}")
            return S
        NA = [144, 160, 176]
        steps = [(pr + k, t) for pr in (0, 2) for t in range(3) for k in range(2)]
        d16 = o.get('d16', 1)
        steps += [(pr, t) for t in (3, 4, 5, 6) for pr in range(4)]
        w2o = [f"{cW2x if o.get('grp', 1) and par2(pr, t) and not o.get('dup', 2) & 2 else cW2}, {pr * 32768 + (t >> 2) * 16384 + (t & 3) * 2048}" for pr, t in steps]
        hho = [pr * 16384 + t * 1024 for pr, t in steps]
        w2l = []
        for i in range(16):
            S = Seq()
            if d16:
                ad = W2B if i & 1 else W2A
                if i % 2 == 0:
                    S(f"s_add_u32 {sKC}, {w2o[i]}")
                S(f"buffer_load_dwordx4 {a_(128+8*i,4)}, {ad}, {WS}, {sKC} offen sc1")
                w2l.append(list(S))
                w2l.append([Inst(f"buffer_load_dwordx4 {a_(132+8*i,4)}, {ad}, {WS}, {sKC} offen offset:256 sc1")])
                if i & 1:
                    ctx(w2l[-4:])
                continue
            S(f"s_add_u32 {sKC}, {w2o[i]}")
            S(f"buffer_load_dwordx4 {a_(128+8*i,4)}, {W2A}, {WS}, {sKC} offen sc1")
            w2l.append(list(S))
            w2l.append([Inst(f"buffer_load_dwordx4 {a_(132+8*i,4)}, {W2B}, {WS}, {sKC} offen sc1")])
            ctx(w2l[-2:])
        self.steps, self.w2o, self.hho = steps, w2o, hho
        if o.get('d2', 0):
            w2l = []
        nw1, nw2 = (o.get('nw1', 6), o.get('nw2', 6)) if o.get('e2', 0) else (0, 0)
        assert nw1 <= 24
        W1, W2_, w2l = w2l[:nw1], w2l[nw1:nw1 + nw2], w2l[nw1 + nw2:]
        self.n_w2rest = len(w2l)
        TQ = flat([self.dmaT(t, t) for t in range(2)]) + w2l
        n2, n3 = o.get('tq2', 8), o.get('tq3', 8)

        def num(i):
            return mf32(NA[i % 3], v(112 + 4 * i, 4), a_(PQR + 4 * i, 4), "0")

        def fin(i):
            n = NA[i % 3] + 8 * (i & 1)
            d = NA[i % 3] + 8 * (1 - (i & 1))
            S = Seq()
            S(f"v_add_f32 v{d}, {sEPS6}, v{d}\nv_rcp_f32 v{d}, v{d}")
            for k in range(8):
                S(f"v_mul_f32 v{n+k}, v{n+k}, v{d}")
            for k in range(4):
                S(f"v_cvt_pk_bf16_f32 v{48+4*i+k}, v{n+2*k}, v{n+2*k+1}")
            return S

        def owrite(i):
            return Inst(f"ds_write_b128 v{OAD}, {v(48+4*i,4)} offset:{(i>>2)*16384+(i&3)*1024}", tag=f"o{i}")

        OR = (16, 20, 36, 44, 208, 248)

        def oreg(k):
            return OR[k % 6] if k < 16 else 80 + 4 * (k & 7)

        def oread(k):
            return Inst(f"ds_read_b128 {v(oreg(k),4)}, v{OAD+((k>>2)&3)} offset:{(k>>4)*16384+(k&3)*1024}")

        def acc(k):
            own = (k & 12) == 0
            return mf32(AH, a_(4 * k, 4), v(48 + 4 * ((k >> 4) * 4 + (k & 3)) if own else oreg(k), 4))
        self.stamp("bz")
        p.extend(prep(0))
        self.stamp("bp")
        p.append(num(0))
        p.append(num(1))
        VM = [[x] for x in LD[nl0:]] + list(self.wo_rest)
        per = o.get('per', 3)
        rl, rc = o.get('rl', 3), o.get('rc', 0)
        kk = 4
        l0, nlate = o.get('l0', 3), len(self.late)
        for i in range(8):
            if i + 2 < 8:
                if i % 2 == 0:
                    p.extend(prep(i // 2 + 1))
                p.append(num(i + 2))
            if i >= 1:
                p.append(owrite(i - 1))
            if i == 5:
                p("WAITTAG o3\ns_barrier")
                p.extend([oread(k) for k in range(4, 9)])
            for _ in range(per):
                if VM:
                    p.extend(VM.pop(0))
            if i == rl:
                p(f"buffer_load_dword v5, {P256}, {WS}, {bRP} offen sc1")
            if i >= l0:
                for _ in range(-(-nlate // (8 - l0))):
                    if self.late:
                        p.append(self.late.pop(0))
            if i >= 5:
                for _ in range(-(-nw1 // 3)):
                    if W1:
                        p.extend(W1.pop(0))
            F = fin(i)
            self.stamp(f"b{i}")
            if i < 5:
                p.extend(F[:7])
                if i >= 1:
                    p.append(acc(i - 1))
                p.extend(F[7:])
            else:
                cuts = (8, 14) if i == 5 else (2, 6, 10, 14)
                lo = 0
                for c in cuts:
                    p.extend(F[lo:c])
                    lo = c
                    p.append(acc(kk))
                    if kk + 5 < 16:
                        p.append(oread(kk + 5))
                    kk += 1
        p.append(owrite(7))
        assert not VM
        self.stamp("B_st1")
        p.append(acc(kk))
        p("WAITTAG WO1 o7\ns_barrier")
        for k in range(16, 20):
            p.extend(W[k])
        assert kk == 14
        G = [[acc(15)] + W[20] + [oread(20)]]
        for k in range(16, 32):
            g = [acc(k)]
            if k + 5 < 32:
                g += W[k + 5] + [oread(k + 5)]
            G.append(g)
        if rl >= 8:
            G[rl - 8] += [Inst(f"buffer_load_dword v5, {P256}, {WS}, {bRP} offen sc1")]
        G[rc] += self.sub(lambda: self.spin("v5", P256, bRP, "0xffff", "16", mode='check', sleep=2))
        G = weave(G, W2_, 0, max(rc, 1))
        G = weave(G, TQ[:n2], rc + 1, 17)
        p.extend(flat(G))
        for k in range(8):
            p(f"v_cvt_pk_bf16_f32 v{48+k}, v{AH+2*k}, v{AH+2*k+1}")
            if k == 3:
                p(f"buffer_store_dwordx4 v[48:51], {L16}, {WS}, {sHST} offen sc1", tag="pub2")
        p(f"buffer_store_dwordx4 v[52:55], {L16}, {WS}, {sHST} offen offset:1024 sc1", tag="pub2")
        p(f"v_add_f32 v56, v{AH}, v{AH+1}\nv_mul_f32 v57, v{AH}, v{AH}\nv_add_f32 v58, v{AH+2}, v{AH+3}\nv_mul_f32 v59, v{AH+1}, v{AH+1}")
        for k in range(2, 16):
            if k >= 4:
                p(f"v_add_f32 v{56+2*(k&1)}, v{56+2*(k&1)}, v{AH+k}")
            p(f"v_fmac_f32 v{57+2*(k&1)}, v{AH+k}, v{AH+k}")
        p("""v_add_f32 v56, v56, v58
             v_add_f32 v57, v57, v59
             v_permlane32_swap_b32 v56, v57
             v_add_f32 v56, v56, v57""")
        p(f"buffer_atomic_add_f32 v56, {L4}, {WS}, {sSTA} offen", tag="pub2")
        self.stamp("B_hst")
        for t in range(7):
            p(f"buffer_load_dword v{160+t}, {CSL}, {WS}, {cCS} offen offset:{t*128} sc1")
        p.extend(flat(TQ[n2:n2 + n3]))
        p(f"WAITTAG pub2\nbuffer_store_dword v4, {FA1}, {WS}, {sD} offen offset:512 sc1\ns_barrier")
        if nlate:
            p(f"buffer_atomic_add v4, {P4K}, {WS}, {sSIG} offen offset:128 sc1")
            assert n2 + n3 <= 16
        self.nlate = nlate
        self.t1_late = n2 < 16
        self.stamp("B_sig")
        self.tq_rest = TQ[n2 + n3:]

    def miscC(self):
        M = Seq()
        def half(d, x):
            return f"s_and_b32 {d}, {x if self.o.get('grp', 1) else sW}, 1\ns_lshl_b32 {d}, {d}, 13"

        def near(d, x):
            return f"s_lshl_b32 {d}, {x}, 11\ns_xor_b32 {d}, {d}, {bGP}\ns_and_b32 {d}, {d}, 0x2000"
        DL = "v45"
        if self.o.get('d16', 1):
            M(f"""v_bfe_u32 v46, v1, 4, 1
                 v_and_b32 {DL}, 0xf0, {L16}
                 v_lshl_add_u32 {DL}, v46, 9, {DL}
                 v_lshrrev_b32 v46, 5, v1""")
        else:
            M(f"v_mov_b32 {DL}, {L16}\nv_mov_b32 v46, 0")
        M(f"""s_bfe_i32 {sT1}, {sTBL}, 0x10010
             s_xor_b32 {sT1}, {sT1}, {sTBL}
             s_and_b32 {sT1}, {sT1}, 0xe000
             s_bcnt1_i32_b32 {sT1}, {sT1}
             s_sub_u32 {sT1}, {sKC}, {sT1}""")
        if self.o.get('cmap', 1):
            M(f"""s_and_b32 {sGC}, {sT1}, 4
                 s_lshl_b32 {sGC}, {sGC}, 1
                 s_and_b32 {sT2}, {sU}, 7
                 s_add_u32 {sGC}, {sGC}, {sT2}
                 s_and_b32 {sMC}, {sT1}, 3
                 s_lshl_b32 {sMC}, {sMC}, 2
                 s_lshr_b32 {sT2}, {sU}, 3
                 s_add_u32 {sMC}, {sMC}, {sT2}""")
        else:
            M(f"""s_and_b32 {sGC}, {sT1}, 6
                 s_lshl_b32 {sGC}, {sGC}, 1
                 s_add_u32 {sGC}, {sGC}, {sRQ}
                 s_and_b32 {sMC}, {sT1}, 1
                 s_lshl_b32 {sMC}, {sMC}, 3
                 s_lshr_b32 {sT2}, {sU}, 2
                 s_add_u32 {sMC}, {sMC}, {sT2}""")
        M(f"""s_lshl_b32 {sT1}, {sGC}, 10
             s_lshl_b32 {sT2}, {sGC}, 12
             s_xor_b32 {sP2}, {sT1}, {sT2}
             s_and_b32 {sP2}, {sP2}, 0x2000
             s_xor_b32 {sP2}, {sP2}, {sPE}
             s_lshl_b32 {bTA}, {sMC}, 19
             s_add_u32 {bTA}, {bTA}, {sXL}
             {near(sT2, sMC) if self.o.get('dup', 2) & 1 else half(sT2, sMC)}
             s_add_u32 {bTA}, {bTA}, {sT2}
             s_add_u32 {bTA}, {bTA}, {hex(W13R)}
             s_xor_b32 {bTX}, {bTA}, 0x2000""")
        M(f"""s_lshl_b32 {sT1}, {sGC}, 2
             s_add_u32 {sT2}, {sT1}, {sW}
             s_lshl_b32 {cHS2}, {sT2}, 4
             s_add_u32 {cHS2}, {cHS2}, {sMC}
             s_lshl_b32 {cHS2}, {cHS2}, 14
             s_add_u32 {cHS2}, {cHS2}, {hex(HH+4096)}
             s_xor_b32 {cHS2}, {cHS2}, {sP2}
             s_lshl_b32 {cHB}, {sT2}, 16
             s_add_u32 {cHB}, {cHB}, {hex(HB)}
             s_xor_b32 {cHB}, {cHB}, {sPE}
             s_sub_u32 {cHS}, {cHS2}, 4096
             s_lshl_b32 {sT3}, {sMC}, 14
             s_sub_u32 {cPL}, {cHS2}, {sT3}
             s_add_u32 {cPL}, {cPL}, {3072+512}
             s_add_u32 {cST}, {cPL}, 256
             v_lshlrev_b32 {HPA}, 14, v1
             v_and_b32 {PA2}, 12, {L4}
             v_or_b32 {PA2}, {PA2}, {LM8}
             v_bfe_u32 v44, v1, 2, 1
             v_lshl_add_u32 {PA2}, v44, {16 if self.o.get('d2', 0) else 18}, {PA2}
             s_mul_i32 {cCS}, {sMC}, {7*128}
             s_add_u32 {cCS}, {cCS}, {hex(CS)}
             s_and_b32 {sCB}, {sMC}, 7""")
        k0 = len(M)
        M(f"""             s_lshl_b32 {cW2}, {sCB}, 19
             s_lshl_b32 {sT3}, {sW}, 17
             s_add_u32 {cW2}, {cW2}, {sT3}
             {near(sT3, sCB) if self.o.get('dup', 2) & 2 else half(sT3, sCB)}
             s_add_u32 {cW2}, {cW2}, {sT3}
             s_add_u32 {cW2}, {cW2}, {hex(W2R)}
             s_xor_b32 {cW2x}, {cW2}, 0x2000
             s_and_b32 {sT3}, {sW}, 1
             s_lshl_b32 {sT2}, {sT3}, 10
             v_add_u32 {W2A}, {sT2}, {DL}
             v_xor_b32 {W2B}, 1024, {W2A}
             v_lshrrev_b32 v44, 4, v1
             v_lshl_add_u32 {LB0}, v44, {8 if self.o.get('c16', 1) else 31}, {L16}
             v_and_b32 {LB0}, 0xffff, {LB0}
             v_add_u32 {LB1}, 0x10000, {LB0}
             v_add_u32 {LB2}, 0x20000, {LB0}
             s_add_u32 {sT2}, {bTL}, 0x10000
             v_add_u32 {WLA}, {sT2}, {W2A}
             v_add_u32 {WLB}, {sT2}, {W2B}
             v_lshl_add_u32 {WLA}, v46, 11, {WLA}
             v_lshl_add_u32 {WLB}, v46, 11, {WLB}
             v_lshl_add_u32 {W2A}, v46, 15, {W2A}
             v_lshl_add_u32 {W2B}, v46, 15, {W2B}
             v_add_u32 {WLC}, 0x10000, {WLA}
             v_add_u32 {WLD}, 0x10000, {WLB}
             v_and_b32 {CSL}, 0x7c, {L4}
             s_lshr_b32 {sT2}, {sMC}, 3
             s_lshl_b32 {sT2}, {sT2}, 1
             s_add_u32 {sT1}, {sT1}, {sT2}
             s_lshl_b32 {cHL}, {sT1}, 18
             s_lshl_b32 {sT2}, {sW}, 16
             s_add_u32 {cHL}, {cHL}, {sT2}
             s_add_u32 {cHL}, {cHL}, {hex(HH)}
             s_xor_b32 {cHL}, {cHL}, {sP2}
             s_lshr_b32 {sT2}, {sW}, 1
             s_add_u32 {sT1}, {sT1}, {sT2}
             s_lshl_b32 {sT2}, {sT2}, 18
             v_add_u32 {HHA}, {sT2}, {DL}
             v_lshl_add_u32 {HHA}, v46, 14, {HHA}
             v_xor_b32 {HHB}, 0x40000, {HHA}
             s_lshl_b32 {sT1}, {sT1}, 15
             s_lshl_b32 {sT2}, {sCB}, 1
             s_add_u32 {sT2}, {sT2}, {sT3}
             s_lshl_b32 {cOUT}, {sT2}, 6
             s_add_u32 {cOUT}, {cOUT}, {sT1}
             s_lshr_b32 {cHR}, {sT2}, 2
             s_lshl_b32 {cHR}, {cHR}, 13
             s_add_u32 {cHR}, {cHR}, {sT1}
             s_and_b32 {sT2}, {sT2}, 3
             s_lshl_b32 {sT2}, {sT2}, 10
             s_add_u32 {cHR}, {cHR}, {sT2}
             s_lshl_b32 {cHR}, {cHR}, 1
             s_add_u32 {cHR}, {cHR}, {hex(HB)}
             s_xor_b32 {cHR}, {cHR}, {sPE}
             s_add_u32 {cPP}, {cHL}, 7168
             s_add_u32 {cPQ}, {cPP}, 0x40000
             s_and_b32 {sT3}, {sMC}, 3
             s_mul_i32 {sT3}, {sT3}, {16384-4}
             s_sub_u32 {cPS}, {cHS2}, {sT3}""")
        if self.o.get('d2', 0):
            assert self.o.get('d16', 1) and self.o.get('dup', 2) & 2
            while not M[k0].text.startswith(f"s_and_b32 {sT3}, {sMC}, 3"):
                del M[k0]
            M(f"""s_lshr_b32 {sT3}, {sMC}, 3
                 s_lshl_b32 {cW2}, {sCB}, 1
                 s_add_u32 {cW2}, {cW2}, {sT3}
                 s_lshl_b32 {cOUT}, {cW2}, 6
                 s_andn2_b32 {cHR}, {cW2}, 3
                 s_add_u32 {cHR}, {cHR}, {cW2}
                 s_lshl_b32 {cHR}, {cHR}, 11
                 s_add_u32 {cHR}, {cHR}, {cHB}
                 s_lshl_b32 {cW2}, {cW2}, 2
                 s_add_u32 {cW2}, {cW2}, {sW}
                 s_lshl_b32 {cW2}, {cW2}, 16
                 {near(sT2, sCB)}
                 s_add_u32 {cW2}, {cW2}, {sT2}
                 s_add_u32 {cW2}, {cW2}, {hex(W2R)}
                 s_lshl_b32 {sT2}, {sT3}, 10
                 v_lshl_add_u32 {W2A}, v46, 11, {DL}
                 v_add_u32 {W2A}, {sT2}, {W2A}
                 v_xor_b32 {W2B}, 1024, {W2A}
                 v_add_u32 {WLA}, 0x10000, {W2A}
                 v_add_u32 {WLB}, 0x10000, {W2B}
                 v_add_u32 {WLC}, 0x20000, {W2A}
                 v_add_u32 {WLD}, 0x20000, {W2B}
                 v_lshrrev_b32 v44, 4, v1
                 v_lshl_add_u32 {LB0}, v44, {8 if self.o.get('c16', 1) else 31}, {L16}
                 v_and_b32 {LB0}, 0xffff, {LB0}
                 v_add_u32 {LB1}, 0x10000, {LB0}
                 v_add_u32 {LB2}, 0x20000, {LB0}
                 v_and_b32 {CSL}, 0x7c, {L4}
                 v_lshl_add_u32 {HHA}, v46, 14, {DL}
                 s_lshl_b32 {sT2}, {sCB}, 14
                 s_sub_u32 {cHL}, {cHS}, {sT2}
                 s_add_u32 {cPP}, {cHL}, 7168
                 s_sub_u32 {cPQ}, {cPL}, 512
                 v_bfe_u32 v44, v1, 2, 2
                 v_and_b32 {HHB}, 0xf800000c, {ZAT}
                 v_lshl_add_u32 {HHB}, v44, 16, {HHB}
                 s_add_u32 {sT1}, {sT1}, {sW}
                 s_lshl_b32 {sT2}, {sT1}, 15
                 s_add_u32 {cOUT}, {cOUT}, {sT2}
                 s_lshl_b32 {cW2x}, {sT1}, 5
                 s_andn2_b32 {sT2}, {sMC}, 1
                 s_add_u32 {sT2}, {sT2}, {sMC}
                 s_add_u32 {cW2x}, {cW2x}, {sT2}
                 s_lshl_b32 {cW2x}, {cW2x}, 12
                 s_lshr_b32 {sT2}, {sGC}, 1
                 s_xor_b32 {sT2}, {sT2}, {sGC}
                 s_lshl_b32 {sT2}, {sT2}, 11
                 s_xor_b32 {sT2}, {sT2}, {sPE}
                 s_and_b32 {sT2}, {sT2}, 0x2000
                 s_add_u32 {cW2x}, {cW2x}, {sT2}
                 s_add_u32 {cW2x}, {cW2x}, {hex(XB2)}""")
        return list(M)

    def phaseCD(self):
        p = self.p
        o = self.o
        sub = self.sub
        bar = lambda s_: list(Seq()(s_))
        steps, w2o, hho = self.steps, self.w2o, self.hho

        def dmaW2(part):
            g = []
            for k in range(4):
                S = Seq()
                S(f"s_add_u32 m0, {bTL}, {(2+part)*32768+k*2048}\ns_add_u32 {sT0}, {w2o[16+4*part+k]}")
                S(f"buffer_load_dwordx4 {L16}, {WS}, {sT0} offen sc1 lds", tag=f"W2L{part}")
                g.append(list(S))
                g.append([Inst(f"buffer_load_dwordx4 {L16}, {WS}, {sT0} offen offset:1024 sc1 lds", tag=f"W2L{part}")])
                ctx(g[-2:])
            return g

        def pub(tag, st):
            if o.get('nopub'):
                return []
            return bar(f"WAITTAG {tag}\nbuffer_store_dword v4, {FA1}, {WS}, {cPS} offen offset:{3072+128*st} sc1")

        vp = str(o.get('vp', 'x0123'))

        def pollld(st):
            if o.get('nopoll'):
                return []
            if str(st) in vp:
                return bar(f"buffer_load_dword v5, {PA2}, {WS}, {cPP} offen sc1")
            return list(Seq()(f"""s_buffer_load_dwordx4 s[8:11], {WS}, {cPP} glc
                 s_buffer_load_dwordx4 s[12:15], {WS}, {cPQ} glc""", cond=True))

        def pollchk(st):
            if o.get('nopoll'):
                return []
            if str(st) in vp:
                return sub(lambda: self.spin("v5", PA2, cPP, "0xff", "1", mode='check', sleep=o.get('sleep2', 2))) + \
                    bar(f"s_add_u32 {cPP}, {cPP}, 128" + ("" if o.get('d2', 0) else f"\ns_add_u32 {cPQ}, {cPQ}, 128"))
            red = """s_and_b64 s[8:9], s[8:9], s[10:11]
                 s_and_b64 s[12:13], s[12:13], s[14:15]
                 s_and_b64 s[8:9], s[8:9], s[12:13]
                 s_and_b32 s8, s8, s9"""

            def f():
                Lp = self.lab("sp")
                if o.get('stamps') == 3:
                    self.p(f"s_mov_b32 {sT5}, 0")
                self.p("WAITALL lgkm\n" + red)
                self.ool("s_cbranch_scc0", f"""s_mov_b32 {sT5}, 0
                     {Lp}:
                     s_sleep {o.get('sleep2', 2)}
                     s_buffer_load_dwordx4 s[8:11], {WS}, {cPP} glc
                     s_buffer_load_dwordx4 s[12:15], {WS}, {cPQ} glc
                     s_add_u32 {sT5}, {sT5}, 1
                     s_waitcnt lgkmcnt(0)
                     {red}
                     s_lshr_b32 s9, {sT5}, 15
                     s_or_b32 s8, s8, s9
                     s_cbranch_scc0 {Lp}""")
                self.p(f"s_add_u32 {cPP}, {cPP}, 128\ns_add_u32 {cPQ}, {cPQ}, 128")
                if o.get('stamps') == 3:
                    self.p(f"v_writelane_b32 v{STV}, {sT5}, {self.nstamp}")
                    self.nstamp += 1
                    self.stamp_names.append(f"P{st}")
            return sub(f)

        kt = max(0, len(self.tq_rest) - self.n_w2rest)
        FQ = self.tq_rest[:kt] + self.dmaT(2, 2) + self.dmaT(3, 3) + self.dmaT(4, 4) + self.tq_rest[kt:]
        npre, npre2 = o.get('tq4', 12), o.get('tq5', 0)
        p.extend(flat(FQ[:npre]))
        FQ = FQ[npre:]
        c16 = o.get('c16', 1)
        CSR, CSF, MEANF, C1, C2 = 160, 168, 176, 180, 181
        CSU, CSG, MEANG = 213, 220, 228
        p("FENCE")
        for k in (1, 2, 3, 5, 6, 7, 9, 10, 11):
            p(f"v_mov_b32 v{CSF+k}, 0")
            if c16:
                p(f"v_mov_b32 v{CSG+k}, 0")
        for t in range(7):
            p.extend(split2(CSR + t, CSR + t, 184))
        if c16:
            for t in range(7):
                p(f"v_mov_b32 v{CSU+t}, v{CSR+t}")
            for t in range(7):
                p(f"v_permlane16_swap_b32 v{CSR+t}, v{CSU+t}")
            p(f"s_mov_b64 s[8:9], 0xffff\nv_mov_b32 v{CSG}, v{CSU}\nv_mov_b32 v{CSG+4}, v{CSU+1}")
        p(f"v_mov_b32 v{CSF}, v{CSR}\nv_mov_b32 v{CSF+4}, v{CSR+1}")
        p("FENCE")
        p.extend(flat(FQ[:npre2]))
        FQ = FQ[npre2:]
        self.stamp("C_prepoll")
        self.spin("v5", HPA, cPL, "0xffff", "1", mode='all', sleep=o.get('sleep3', 0))
        self.stamp("C_sync2")

        c16 = o.get('c16', 1)
        fo = (lambda s: (s >> 1) * 2048 + (s & 1) * 256) if c16 else (lambda s: s * 1024)

        def hload(s):
            S = Seq()
            if s % 4 == 0 and s:
                S(f"s_add_u32 {cHB}, {cHB}, {4096 if s % 8 else 12288}")
            S(f"buffer_load_dwordx4 {a_(4*s,4)}, {LB0}, {WS}, {cHB} offen offset:{fo(s&3)} sc1")
            return list(S)
        HL = o.get('hla', 10)
        for s in range(HL):
            p.extend(hload(s))
        if self.t1_late:
            p("WAITTAG T1\ns_barrier")
        ACC = [48, 64, 80, 96, 112]
        acc_of = [0, 1, 2, 3, 0, 1, 2]
        slot_of = [0, 1, 2, 3, 4, 0, 1]
        WR, NR = 128, 8
        CSR, CSF, MEANF, C1, C2 = 160, 168, 176, 180, 181
        T = 184
        LK = o.get('lk', 5)
        F0 = Seq()
        for k in range(4):
            F0(f"buffer_load_dword v{T+4+k}, {L4}, {WS}, {cST} offen sc1\ns_add_u32 {cST}, {cST}, 16384")
        F1 = Seq()
        F1(f"""v_add_f32 v{T}, v{T+4}, v{T+5}
             v_add_f32 v{T+1}, v{T+6}, v{T+7}
             v_add_f32 v{T}, v{T}, v{T+1}
             v_mov_b32 v{T+1}, v{T}
             v_permlane32_swap_b32 v{T}, v{T+1}
             v_mul_f32 v{T}, 0x3b000000, v{T}
             v_mul_f32 v{T+1}, 0x3b000000, v{T+1}
             v_cvt_pk_bf16_f32 v{MEANF}, -v{T}, -v{T}
             v_fma_f32 v{T+1}, -v{T}, v{T}, v{T+1}
             v_max_f32 v{T+1}, 0, v{T+1}
             v_add_f32 v{C2}, 0x3727c5ac, v{T+1}
             v_rsq_f32 v{C1}, v{C2}
             v_mul_f32 v{C1}, 0xbfb8aa3b, v{C1}""")
        if c16:
            prs = [(MEANF, MEANG), (C2, C2 + 2), (C1, C1 + 2)]
            for x, y in prs:
                F1(f"v_mov_b32 v{y}, v{x}")
            for x, y in prs:
                F1(f"v_permlane16_swap_b32 v{x}, v{y}")
            F1(f"""v_cndmask_b32 v{MEANF}, 0, v{MEANF}, s[8:9]
                 v_cndmask_b32 v{MEANG}, 0, v{MEANG}, s[8:9]""")
        else:
            F1(f"v_cndmask_b32 v{MEANF}, v{MEANF}, 0, {sHILANES}")

        def tread(t, s, n):
            sl = slot_of[t]
            base = (LB0, LB0, LB1, LB1, LB2)[sl]
            return [Inst(f"ds_read_b128 {v(WR+4*(n%NR),4)}, {base} offset:{(sl&1)*32768*(sl<4)+fo(s)}")]

        def corr(t):
            A = ACC[acc_of[t]]
            if c16:
                return [mf16(A + 8 * gu + 4 * th, v((CSF, CSG)[gu] + 4 * (t & 1), 4), v((MEANF, MEANG)[th], 4))
                        for gu, th in ((0, 0), (0, 1), (1, 1), (1, 0))]
            return [mf32(A, v(CSF + 4 * (t & 1), 4), v(MEANF, 4))]

        def cm(t, s, n):
            A, w = ACC[acc_of[t]], v(WR + 4 * (n % NR), 4)
            if not c16:
                return [mf32(A, w, a_(4 * s, 4), "0" if s == 0 else None)]
            gu = s & 1
            r = [mf16(A + 8 * gu + 4 * th, w, a_(8 * (s >> 1) + 4 * th, 4), "0" if s < 2 else None) for th in (gu, 1 - gu)]
            r[1].tag = "second"
            return r

        def spread(G):
            out = []
            for g in G:
                g = hoist(g)
                if len(g) > 1 and g[1].tag == "second":
                    m, rest, c, k = g[1], g[2:], 0, 0
                    m.tag = None
                    tot = sum(cost(x) for x in rest if not x.cond)
                    while k < len(rest) and c + cost(rest[k]) <= max(9.7, tot / 2 + 2.2) and not rest[k].cond \
                            and rest[k].kind not in ('branch', 'label') and not rest[k].op.startswith('v_cmp'):
                        c += cost(rest[k])
                        k += 1
                    g = [g[0]] + rest[:k] + [m] + rest[k:]
                out += g
            return out
        G = []
        for n in range(64):
            s, t = divmod(n, 2)
            g = cm(t, s, n)
            if n + LK < 64:
                g += tread((n + LK) % 2, (n + LK) // 2, n + LK)
            else:
                if n + LK == 64:
                    g += bar("WAITTAG T2\ns_barrier")
                g += tread(2, n + LK - 64, n + LK)
            if t == 0 and s + HL < 32:
                g += hload(s + HL)
            G.append(g)
        G.append(corr(0))
        G.append(corr(1))
        for n in range(LK):
            p.extend(tread(n % 2, n // 2, n))
        G = weave(G, list(F0), 1, o.get('f0', 20))
        G = weave(G, list(F1), o.get('f1', 40), 63)
        e0 = 2 * (32 - HL)
        if self.nlate:
            assert npre + npre2 <= kt + 8 * (min(o.get('lt', 4), 5) - 2)
            G[e0 - 22] += bar(f"s_add_u32 {bRP}, {bRP}, 128\nbuffer_load_dword v5, {P256}, {WS}, {bRP} offen sc1")
            G[e0 - 1] += sub(lambda: self.spin("v5", P256, bRP, "0xffff", "16", mode='check', sleep=2))
        ng = min(len(FQ), o.get('g1q', 8))
        G = weave(G, FQ[:ng], e0, 66)
        FQ = FQ[ng:]
        p.extend(spread(G))
        self.stamp("C_g1")

        def epi(t, tmp):
            A = ACC[acc_of[t]]
            S = Seq()
            for j in range(8):
                S(f"v_mul_f32 v{tmp+j}, v{A+j}, v{C1+2*c16*(j>>2)}")
            for j in range(8):
                S(f"v_exp_f32 v{tmp+j}, v{tmp+j}")
                S(f"v_mul_f32 v{A+j}, v{A+j}, v{A+8+j}")
            for j in range(8):
                S(f"v_fma_f32 v{tmp+j}, v{tmp+j}, v{C2+2*c16*(j>>2)}, v{C2+2*c16*(j>>2)}")
                if j >= 2:
                    S(f"v_rcp_f32 v{tmp+j-2}, v{tmp+j-2}")
            for j in range(8):
                S(f"v_mul_f32 v{A+j}, v{A+j}, v{tmp+j}")
                if j < 2:
                    S(f"v_rcp_f32 v{tmp+6+j}, v{tmp+6+j}")
            for j in (0, 2, 1, 3):
                S(f"v_cvt_pk_bf16_f32 v{tmp+8+j}, v{A+2*j}, v{A+2*j+1}")
            if c16:
                S(f"v_permlane16_swap_b32 v{tmp+8}, v{tmp+10}\nv_permlane16_swap_b32 v{tmp+9}, v{tmp+11}")
            S(f"buffer_store_dwordx4 {v(tmp+8,4)}, {L16}, {WS}, {cHS if t < 4 else cHS2} offen offset:{(t&3)*1024} sc1", tag=f"hh{t}")
            return list(S)

        def tilepass(t, n0):
            G = []
            for s in range(32):
                n = n0 + s
                g = cm(t, s, n)
                if s + LK < 32:
                    g += tread(t, s + LK, n + LK)
                elif t < 6:
                    if s + LK == 32:
                        g += bar(f"WAITTAG T{t+1}\ns_barrier")
                    g += tread(t + 1, s + LK - 32, n + LK)
                if s == 16:
                    g += bar(f"v_mov_b32 v{CSF+4*(t&1)}, v{CSR+t}")
                if s == 17 and c16:
                    g += bar(f"v_mov_b32 v{CSG+4*(t&1)}, v{CSU+t}")
                G.append(g)
            G.append(corr(t))
            return G

        d16 = o.get('d16', 1)

        def hhload(i):
            S = Seq()
            if d16:
                ad = HHB if i & 1 else HHA
                S(f"s_add_u32 {sCc}, {cHL}, {hho[i & ~1]}")
                S(f"buffer_load_dwordx4 {a_(8*(i&15),4)}, {ad}, {WS}, {sCc} offen sc1")
                return ctx([list(S), [Inst(f"buffer_load_dwordx4 {a_(8*(i&15)+4,4)}, {ad}, {WS}, {sCc} offen offset:256 sc1")]])
            S(f"s_add_u32 {sCc}, {cHL}, {hho[i]}")
            S(f"buffer_load_dwordx4 {a_(8*(i&15),4)}, {HHA}, {WS}, {sCc} offen sc1")
            return ctx([list(S), [Inst(f"buffer_load_dwordx4 {a_(8*(i&15)+4,4)}, {HHB}, {WS}, {sCc} offen sc1")]])

        EP = [epi(t, T + 12 * (t & 1)) for t in range(7)]
        P = {t: tilepass(t, 32 * t) for t in range(2, 7)}
        if o.get('d2', 0):
            return self.tailD2(locals())
        q = o.get('cq', 18)
        ee = o.get('ee', 20)
        LA = o.get('dla', 7)
        G = weave(P[2], FQ[:q], 0, 32)
        FQ = self.dmaT(5, 0) + FQ[q:]
        FQ = FQ[:q] + self.dmaT(6, 1) + FQ[q:] + dmaW2(0) + dmaW2(1) + dmaW2(2)
        G = weave(G, EP[0] + EP[1][:26], 2, 33)
        p.extend(self.xf(spread(G)))
        self.stamp("C_t2")
        q3 = min(q, len(FQ) - 24)
        G = weave(P[3], FQ[:q3], 0, 32)
        FQ = FQ[q3:]
        G = weave(G, EP[1][26:] + EP[2], 0, 33)
        p.extend(self.xf(spread(G)))
        self.stamp("C_t3")
        q4 = min(q, len(FQ) - 16)
        G = weave(P[4], FQ[:q4], 0, 32)
        FQ = FQ[q4:]
        G = weave(G, EP[3], 2, ee)
        G[o.get('p1at', 26)] += pub("hh2", 0)
        p.extend(self.xf(spread(G)))
        self.stamp("C_t4")
        q5 = min(q, len(FQ) - 8)
        G = weave(P[5], FQ[:q5], 0, 32)
        FQ = FQ[q5:]
        G[o.get('l1', 14)] += pollld(0)
        G[1] += bar(f"buffer_load_dwordx4 v[24:27], {L16}, {WS}, {cHR} offen sc1")
        G[3] += bar(f"buffer_load_dwordx4 v[28:31], {L16}, {WS}, {cHR} offen offset:1024 sc1")
        G = weave(G, EP[4], 2, ee)
        p.extend(self.xf(spread(G)))
        self.stamp("C_t5")
        G = P[6]
        c1 = o.get('c1', 1)
        n6 = min(o.get('n6', 0), len(FQ))
        if n6:
            G = weave(G, FQ[:n6], 0, max(c1, 1))
            FQ = FQ[n6:]
        G[c1] += pollchk(0)
        hq = [x for i in range(LA) for x in hhload(i)]
        G = weave(G, hq, c1 + 1, 33)
        S = Seq()
        if d16:
            for i in (24, 25, 28, 29):
                S(f"v_permlane16_swap_b32 v{i}, v{i+2}")
        for i in range(8):
            S(f"v_lshlrev_b32 v{48+2*i}, 16, v{24+i}\nv_and_b32 v{49+2*i}, {sMSKHI}, v{24+i}")
        for k in range(4):
            S(f"""s_xor_b32 {sT1}, {sW}, {k}
                 s_mul_i32 {sT1}, {sT1}, 12288
                 v_add_u32 v{36+k}, {sT1}, {L16}""")
        G = weave(G, list(S), ee + 1, 33)
        G = weave(G, EP[5], 2, ee)
        G[o.get('p2at', 12)] += pub("hh4", 1)
        p.extend(self.xf(spread(G)))
        self.stamp("C_t6")

        DA = [48, 64, 96, 112]

        def w2r(i, a):
            return (128, 168, 128)[(i - 16) // 4] + 8 * (i % 4) + 4 * a

        def w2read(i):
            part, k = divmod(i - 16, 4)
            r = bar(f"WAITTAG W2L{part}") if k == 0 else []
            for a in range(2):
                ad = ((WLA, WLB), (WLA, WLB), (WLC, WLD))[part][k & 1 if d16 else a]
                r.append(Inst(f"ds_read_b128 {v(w2r(i, a), 4)}, {ad} offset:{(part&1)*32768 + ((k&2)*2048 + a*256 if d16 else k*2048)}"))
            return r

        def w2f(i, a):
            return a_(128 + 8 * i + 4 * a, 4) if i < 16 else v(w2r(i, a), 4)

        def dm(i, k):
            a, b = k & 1, k >> 1
            if d16:
                j, ch = i & ~1, i & 1
                r = [mf16(DA[k] + 8 * ch + 4 * th, w2f(j + a, ch), a_(8 * ((j + b) & 15) + 4 * th, 4), "0" if j == 0 and k else None)
                     for th in (ch, 1 - ch)]
                r[1].tag = "second"
                return r
            return [mf32(DA[k], w2f(i, a), a_(8 * (i & 15) + 4 * b, 4), "0" if i == 0 and k else None)]
        nl = o.get('nl', 4)
        if d16:
            assert nl % 2 == 0
            G = [dm(j + ch, k) for j in range(0, 28 - nl, 2) for k in (0, 1, 3, 2) for ch in range(2)]
        else:
            G = [dm(i, k) for i in range(28 - nl) for k in (1, 3, 2, 0)]
        G += [dm(i, k) for k in (1, 3, 2, 0) for i in range(28 - nl, 28)]
        for i in range(16, 28):
            G[min(4 * i - 7 - 2 * d16 * (i & 1), 4 * (28 - nl) - 8 + (i - (28 - nl)))] += w2read(i)
        c2, c3, c4 = o.get('c2', 22), o.get('c3', 54), o.get('c4', 76)
        l2, l3, l4 = o.get('l2', 6), o.get('l3', 37), o.get('l4', 62)
        G[l2] += pollld(1)
        G = weave(G, EP[6], 1, o.get('e6', 11))
        G[o.get('p3at', 12)] += pub("hh5", 2)
        G[l3] += pollld(2)
        G[o.get('p4at', 38)] += pub("hh6", 3)
        G[o.get('dbar', 40)] += bar("s_barrier")
        hs = lambda a, b: [x for i in range(a, b) for x in hhload(i)]
        G = weave(G, hs(LA, 12), 0, c2)
        G[c2] += pollchk(1)
        nf = max(0, len(FQ) - o.get('nf', 8))
        G = weave(G, hs(12, 16) + FQ[:nf] + hs(16, 20), c2 + 1, c3)
        G[c3] += pollchk(2)
        G = weave(G, hs(20, 24), c3 + 1, l4)
        G[l4] += pollld(3)
        G = weave(G, FQ[nf:], l4 + 1, c4)
        G[c4] += pollchk(3)
        G = weave(G, hs(24, 28), c4 + 1, c4 + o.get('h4', 9))
        WRT = [[Inst(f"ds_write_b128 v{36+k}, {v(DA[k]+4*q_,4)} offset:{(k-1)*4096+q_*1024}") for q_ in range(4)] for k in (1, 3, 2)]
        if nl >= 2:
            for n in range(3):
                G = weave(G, WRT[n], 112 - (3 - n) * nl + 1, 112 - (2 - n) * nl + (1 if n < 2 else 0))
        else:
            G[111] += flat(WRT)
        for k in sorted(set(list(range(8, 112, 8)) + [c2 - 1, c2, c3 - 1, c3, c4 - 1, c4])):
            G[k] += sub(lambda: self.stamp(f"d{k}"))
        p.extend(self.xf(spread(G)))
        self.stamp("D_loop")
        p("WAITALL lgkm\ns_barrier")
        for q_ in range(4):
            for k in range(3):
                p(f"ds_read_b128 {v(160+16*k+4*q_,4)}, v36 offset:{k*4096+q_*1024}")
        for q_ in range(4):
            for j in range(2):
                r = 4 * q_ + 2 * j
                p(f"v_pk_add_f32 {v(48+r,2)}, {v(48+r,2)}, {v(160+r,2)}")
                p(f"v_pk_add_f32 {v(176+r,2)}, {v(176+r,2)}, {v(192+r,2)}")
            for j in range(2):
                r = 4 * q_ + 2 * j
                p(f"v_pk_add_f32 {v(48+r,2)}, {v(48+r,2)}, {v(176+r,2)}")
            for j in range(2):
                p(f"v_cvt_pk_bf16_f32 v{112+2*q_+j}, v{48+4*q_+2*j}, v{48+4*q_+2*j+1}")
            if q_ & 1 and d16:
                p(f"v_permlane16_swap_b32 v{110+2*q_}, v{112+2*q_}\nv_permlane16_swap_b32 v{111+2*q_}, v{113+2*q_}")
            if q_ & 1:
                p(f"buffer_store_dwordx4 {v(112+4*(q_>>1),4)}, {ROWA}, {OUT}, {cOUT} offen offset:{32*(q_>>1)}" + ["", " sc1", " nt", " sc0 sc1"][o.get('outst', 0)])
        self.stamp("D_end")

    def tailD2(self, L):
        p, o, sub = self.p, self.o, self.sub
        bar, spread, pub, pollld, pollchk, EP, P, FQ = (L[k] for k in "bar spread pub pollld pollchk EP P FQ".split())
        WR, NR = L['WR'], L['NR']
        wslot = (2, 2, 3, 3, 4, 4, 0)

        def dmaW(t):
            off = (t >> 2) * 16384 + (t & 3) * 2048
            S = Seq()
            S(f"""s_add_u32 m0, {sB}, {wslot[t]*32768 + (t&1)*16384}
                 s_add_u32 {sT0}, {cW2}, {off}""")
            g = []
            for k in range(4):
                if k == 2:
                    S(f"s_add_u32 {sT0}, {sT0}, {32768-2048}")
                S(f"buffer_load_dwordx4 {L16}, {WS}, {sT0} offen offset:{k*1024} sc1 lds", tag=f"W{t}")
                g.append(list(S))
                S = Seq()
            return ctx(g)

        def hreg(t, j):
            return (128 + 32 * t + 8 * j) & 255

        def hh(t):
            g = []
            for j in range(4):
                S = Seq()
                S(f"s_add_u32 {sCc}, {cHL}, {j*32768 + t*1024}")
                S(f"buffer_load_dwordx4 {a_(hreg(t, j),4)}, {HHA}, {WS}, {sCc} offen sc1")
                g += ctx([list(S), [Inst(f"buffer_load_dwordx4 {a_(hreg(t, j)+4,4)}, {HHA}, {WS}, {sCc} offen offset:256 sc1")]])
            return g
        q, ee = o.get('cq', 12), o.get('ee', 20)
        Q = [(2, x) for x in FQ + self.dmaT(5, 0) + self.dmaT(6, 1)]
        for t in range(7):
            Q += [(3 + t // 2, x) for x in dmaW(t)]
        H1 = hh(0) + hh(1) + hh(2)
        n5, n6 = o.get('h5', 0), o.get('h6', 14)
        for t in range(2, 7):
            G = P[t]
            G[1] += bar("s_barrier")
            n = 0
            while n < min(q if t < 6 else o.get('q6', 4), len(Q)) and Q[n][0] <= t:
                n += 1
            c1 = o.get('c1', 33 + 1) - 33 * (t - 5)
            end = min(32, c1) if t == 5 else max(c1, 2 + n) if t == 6 else 32
            G = weave(G, [x for _, x in Q[:n]], 2, end)
            Q = Q[n:]
            if t == 2:
                G = weave(G, EP[0] + EP[1][:26], 2, 33)
            elif t == 3:
                G = weave(G, EP[1][26:] + EP[2], 0, 33)
            else:
                G = weave(G, EP[t - 1], 2, ee)
            if t == 4:
                G[o.get('p1at', 26)] += pub("hh2", 0)
                G[0] += bar(f"buffer_load_dwordx4 v[24:27], {L16}, {WS}, {cHR} offen sc1")
                G[1] += bar(f"buffer_load_dwordx4 v[28:31], {L16}, {WS}, {cHR} offen offset:1024 sc1")
            if t == 2:
                G[0] += bar("v_mov_b32 v16, -1\nv_mov_b32 v17, -1\nv_mov_b32 v18, -1\nv_mov_b32 v19, -1")
                G = weave(G, [Inst(f"buffer_store_dwordx4 v[16:19], {L16}, {WS}, {cW2x} offen offset:{k*1024} sc1") for k in range(4)], 3, 27)
            if t == 5:
                G[o.get('l1', 14)] += bar(f"buffer_load_dword v5, {HHB}, {WS}, {cPQ} offen sc1")
            if t >= 5 and 0 <= c1 < 33:
                G[c1] += sub(lambda: self.spin("v5", HHB, cPQ, "0xffff", "1", mode='check')) + bar(f"s_add_u32 {cPP}, {cPP}, 128")
            if t == 5 and n5:
                G = weave(G, H1[:n5], c1 + 1, 33)
            if t == 6:
                G = weave(G, H1[n5:n5 + n6], max(end, c1 + 1), 33)
                S = Seq()
                for i in (24, 25, 28, 29):
                    S(f"v_permlane16_swap_b32 v{i}, v{i+2}")
                for i in range(8):
                    S(f"v_lshlrev_b32 v{48+2*i}, 16, v{24+i}\nv_and_b32 v{49+2*i}, {sMSKHI}, v{24+i}")
                G = weave(G, list(S), ee + 1, 33)
                G[o.get('p2at', 12)] += pub("hh4", 1)
                PT6 = G
                break
            p.extend(self.xf(spread(G)))
            self.stamp(f"C_t{t}")
        nk = o.get('nk', 3)
        order = [(t, j, k, ch) for t in range(7 - nk) for j in range(4) for k in (1, 0) for ch in range(2)]
        order += [(t, j, k, ch) for k in (1, 0) for t in range(7 - nk, 7) for j in range(4) for ch in range(2)]
        LK = o.get('dlk', 5)

        def aread(n):
            t, j, k, ch = order[n]
            ad = ((W2A, W2B), None, (WLA, WLB), (WLA, WLB), (WLC, WLD))[wslot[t]][k]
            off = (32768 if wslot[t] == 3 else 0) + (t & 1) * 16384 + j * 4096 + ch * 256
            return [Inst(f"ds_read_b128 {v(WR+4*(n%NR),4)}, {ad} offset:{off}")]
        first = {}
        for n, x in enumerate(order):
            first.setdefault(x[0], n)
        PT6[32 - LK] += bar("WAITTAG W3\ns_barrier")
        for n in range(LK):
            PT6[33 - LK + n] += aread(n)
        p.extend(self.xf(spread(PT6)))
        self.stamp("C_t6")
        G = []
        for n, (t, j, k, ch) in enumerate(order):
            A = (48, 96)[k] + 8 * ch
            g = [mf16(A + 4 * th, v(WR + 4 * (n % NR), 4), a_(hreg(t, j) + 4 * th, 4), "0" if k and t == 0 and j == 0 else None)
                 for th in (ch, 1 - ch)]
            g[1].tag = "second"
            if n + LK < 112:
                if n + LK == first[4]:
                    g += bar("WAITTAG W6\ns_barrier")
                g += aread(n + LK)
            G.append(g)
        c2, c3, c4 = o.get('c2', 20), o.get('c3', 50), o.get('c4', 66)
        G[o.get('l2', 6)] += pollld(1)
        G = weave(G, EP[6], 1, o.get('e6', 11))
        G[o.get('p3at', 12)] += pub("hh5", 2)
        G[o.get('p4at', 32)] += pub("hh6", 3)
        G[o.get('l3', 36)] += pollld(2)
        G = weave(G, H1[n5 + n6:], 0, c2)
        G[c2] += pollchk(1)
        G = weave(G, hh(3) + [x for _, x in Q] + hh(4), c2 + 1, c3)
        G[c3] += pollchk(2)
        G[o.get('l4', 54)] += pollld(3)
        G = weave(G, hh(5), c3 + 1, c3 + 9)
        G[c4] += pollchk(3)
        G = weave(G, hh(6), c4 + 1, c4 + 7)
        se = 112 - 8 * nk
        for k in range(4):
            G[se + 1 + k] += [Inst(f"buffer_store_dwordx4 {v(96+4*k,4)}, {L16}, {WS}, {cW2x} offen offset:{k*1024} sc1", tag="xs")]
        xl = "\n".join(f"buffer_load_dwordx4 {v(64+4*k,4)}, {L16}, {WS}, {cW2x} offen offset:{k*1024} sc1" for k in range(4))
        xa = o.get('xa_', 100)
        G[se + 5] += bar(f"s_xor_b32 {cW2x}, {cW2x}, 0x10000")
        G = weave(G, bar(xl), xa, xa + 4)
        for k in sorted(set(list(range(8, 112, 8)) + [c2 - 1, c2, c3 - 1, c3, c4 - 1, c4])):
            G[k] += sub(lambda: self.stamp(f"d{k}"))
        p.extend(self.xf(spread(G)))
        self.stamp("D_loop")
        chk = """v_max3_u32 v80, v64, v65, v66
             v_max3_u32 v81, v67, v68, v69
             v_max3_u32 v80, v80, v70, v71
             v_max3_u32 v81, v81, v72, v73
             v_max3_u32 v80, v80, v74, v75
             v_max3_u32 v81, v81, v76, v77
             v_max3_u32 v80, v80, v78, v79
             v_max_u32 v80, v80, v81
             v_cmp_eq_u32 vcc, -1, v80"""
        if o.get('stamps') == 3:
            p(f"s_mov_b32 {sT5}, 0")
        p(chk + "\ns_cmp_lg_u64 vcc, 0")
        Lp = self.lab("xp")
        self.ool("s_cbranch_scc1", f"""s_mov_b32 {sT5}, 0
             {Lp}:
             {xl}
             s_add_u32 {sT5}, {sT5}, 1
             s_waitcnt vmcnt(0)
             {chk}
             s_cmp_ge_u32 {sT5}, 0x8000
             s_cselect_b64 vcc, 0, vcc
             s_cmp_lg_u64 vcc, 0
             s_cbranch_scc1 {Lp}""")
        if o.get('stamps') == 3:
            p(f"v_writelane_b32 v{STV}, {sT5}, {self.nstamp}")
            self.nstamp += 1
            self.stamp_names.append("X")
        self.stamp("D_x")
        for q_ in range(4):
            for j in range(2):
                r = 4 * q_ + 2 * j
                p(f"v_pk_add_f32 {v(48+r,2)}, {v(48+r,2)}, {v(64+r,2)}")
            for j in range(2):
                p(f"v_cvt_pk_bf16_f32 v{112+2*q_+j}, v{48+4*q_+2*j}, v{48+4*q_+2*j+1}")
            if q_ & 1:
                p(f"v_permlane16_swap_b32 v{110+2*q_}, v{112+2*q_}\nv_permlane16_swap_b32 v{111+2*q_}, v{113+2*q_}")
                p(f"buffer_store_dwordx4 {v(112+4*(q_>>1),4)}, {ROWA}, {OUT}, {cOUT} offen offset:{32*(q_>>1)}")
        self.stamp("D_end")

    def finish(self):
        p = self.p
        if self.o.get('stamps'):
            p("WAITALL vm")
            self.stamp("D_drained")
            p(f"""s_lshl_b32 {sT0}, s2, 2
                 s_add_u32 {sT0}, {sT0}, {sW}
                 s_lshl_b32 {sT0}, {sT0}, 7
                 s_add_u32 {sT0}, {sT0}, {hex(STAMP)}
                 s_mov_b32 exec_hi, 0
                 buffer_store_dword v{STV}, {L4}, {WS}, {sT0} offen""")
        if self.o.get('padto'):
            p("WAITALL vm")
            if self.o.get('skew') is not None:
                p(f"""buffer_load_dword v43, off, {DBG}, 0 offset:128 sc1
                     buffer_load_dword v41, off, {DBG}, 0 offset:192 sc1
                     v_not_b32 v43, v43
                     v_readfirstlane_b32 s72, v43
                     v_readfirstlane_b32 s73, v41""")
                if self.o['skew'] < 0:
                    p("s_sub_u32 s101, s73, s72")
                else:
                    p("s_sub_u32 s101, s100, s72")
                p(f"""s_min_u32 s101, s101, 2000
                     s_lshl_b32 s101, s101, 3
                     s_add_u32 s100, s72, s101
                     s_lshl_b32 s72, s2, 2
                     s_add_u32 s72, s72, {sW}
                     s_cmp_lg_u32 s72, {max(self.o['skew'], 0) * 4}
                     s_cbranch_scc1 L_end""")
            if self.o.get('mx'):
                p(f"""s_lshl_b32 s72, s101, 8
                     s_add_u32 s72, s72, s2
                     v_mov_b32 v41, s72
                     s_cmp_eq_u32 {sW}, 0
                     s_cselect_b32 s73, 0, {hex(OOB)}
                     buffer_atomic_umax v41, {FA1}, {DBG}, s73 offen offset:192 sc1
                     s_waitcnt vmcnt(0)
                     L_pad0:
                     s_memrealtime s[72:73]
                     s_waitcnt lgkmcnt(0)
                     s_sub_u32 s72, s72, s100
                     s_cmp_lt_i32 s72, {self.o['padto']-200}
                     s_cbranch_scc1 L_pad0
                     buffer_load_dword v41, off, {DBG}, 0 offset:192 sc1
                     v_readfirstlane_b32 s72, v41""")
                if self.o['mx'] == 1:
                    p("s_lshl_b32 s101, s101, 8\ns_sub_u32 s101, s72, s101\ns_lshr_b32 s101, s101, 8\ns_min_u32 s101, s101, 1000\ns_lshl_b32 s101, s101, 4")
                elif self.o['mx'] == 2:
                    p("s_bfe_u32 s101, s72, 0x50003\ns_mul_i32 s101, s101, 200")
                else:
                    p("s_and_b32 s101, s72, 7\ns_mul_i32 s101, s101, 500")
                p("s_add_u32 s100, s100, s101")
            if self.o.get('rel'):
                p("s_memrealtime s[72:73]\ns_waitcnt lgkmcnt(0)\ns_add_u32 s100, s72, s101")
            if self.o.get('seg0'):
                p(f"s_lshl_b32 s72, s2, 2\ns_add_u32 s72, s72, {sW}\ns_cmp_lg_u32 s72, {self.o.get('segw', 150)}\ns_cbranch_scc1 L_end")
            p("L_pad:\ns_memrealtime s[72:73]\ns_waitcnt lgkmcnt(0)\ns_sub_u32 s72, s72, s100")
            p(f"s_cmp_lt_i32 s72, {self.o['padto']}\ns_cbranch_scc1 L_pad")
        p("L_end:\ns_endpgm")

    def build(self):
        if self.o.get('stamps') or self.o.get('padto'):
            self.p("s_memtime s[100:101]" if self.o.get('stamps') == 2 else "s_memrealtime s[100:101]")
        self.setup()
        if self.o.get('seg0') == 'start':
            self.p("s_mov_b32 s101, s100")
        if self.o.get('stamps'):
            self.p(f"v_mov_b32 v{STV}, s100")
            self.nstamp = 1
            self.stamp_names.append("start")
        self.p.extend(self.xf(self.sub(self.phaseA), 'xa'))
        self.p.extend(self.xf(self.sub(self.phaseB), 'xb'))
        self.phaseCD()
        self.finish()
        sk = str(self.o.get('skel', ''))
        if sk:
            Q = Seq()
            for i in self.p:
                if 'm' in sk and i.kind == 'mfma':
                    r = sorted(i.srcab)
                    for x in (r[0], r[-1]):
                        Q(f"v_accvgpr_read_b32 v40, {x}" if x[0] == 'a' else f"v_mov_b32 v40, {x}")
                    continue
                if 'e' in sk and i.kind in ('valu', 'trans') and not i.cond and i.op.endswith(('f32', 'f32_e64')):
                    continue
                if 'v' in sk and i.kind in ('vload', 'dma') and not i.cond and 'dwordx4' in i.op:
                    continue
                if 's' in sk and i.kind == 'vstore' and not i.cond and (i.wide or 'f32' in i.op) and 'v[176:179]' not in i.text:
                    continue
                Q.append(i)
            self.p = Q
        ns = str(self.o.get('nosc', ''))
        for i in self.p:
            if i.kind in ('vload', 'dma') and 'dwordx' in i.op and not i.cond:
                for ch, regs in (('k', (sKVL, bK2, sZL)), ('q', (sPQL, bQ2)), ('h', (cHB,)), ('t', (sT0, sKC)), ('d', (sCc,))):
                    if ch in ns and any(f"{WS}, {r} " in i.text for r in regs):
                        i.text = i.text.replace(" sc1", "")
        import dsl
        dsl.MERGE = self.o.get('mg', 1)
        dsl.SINK = self.o.get('sink', 1)
        return finalize(self.p, self.o.get('fill', 1))


def emit(opt):
    g = Gen(opt)
    prog = g.build()
    hdr = open(os.path.join(os.path.dirname(os.path.abspath(__file__)), "header.txt")).read()
    body = "\n".join(("" if i.kind == 'label' else "    ") + i.text for i in prog)
    txt = hdr + f"""; @launch grid=(256,1,1) block=(256,1,1) lds=163840
.amdgcn_target "amdgcn-amd-amdhsa--gfx950"
.set CODE_PF_MAX, {opt.get('code_bytes', 0)}
.text
.globl {NAME}_kernel
.p2align 8
.type {NAME}_kernel,@function
{NAME}_kernel:
{body}
.section .rodata,"a"
.p2align 6
.amdhsa_kernel {NAME}_kernel
  .amdhsa_next_free_vgpr 512
  .amdhsa_next_free_sgpr 102
  .amdhsa_accum_offset 256
  .amdhsa_group_segment_fixed_size 0
  .amdhsa_kernarg_size 80
  .amdhsa_user_sgpr_count 2
  .amdhsa_user_sgpr_kernarg_segment_ptr 1
  .amdhsa_system_sgpr_workgroup_id_x 1
.end_amdhsa_kernel
"""
    return txt, g.stamp_names


def code_size(txt):
    import subprocess, tempfile
    with tempfile.TemporaryDirectory() as d:
        open(d + "/k.s", "w").write(txt)
        r = subprocess.run(["clang", "-x", "assembler", "-target", "amdgcn-amd-amdhsa",
                            "-mcpu=gfx950", "-c", d + "/k.s", "-o", d + "/k.o"], capture_output=True, text=True)
        if r.returncode:
            print("\n".join(r.stderr.split("\n")[:30]))
            raise SystemExit(1)
        r = subprocess.run(["llvm-objdump", "-h", d + "/k.o"], capture_output=True, text=True)
        for line in r.stdout.split("\n"):
            f = line.split()
            if len(f) > 2 and f[1] == ".text":
                return int(f[2], 16)


def main():
    opt = {}
    out = None
    for a in sys.argv[1:]:
        if '=' in a:
            k, val = a.split('=')
            try:
                opt[k] = int(val, 0)
            except ValueError:
                opt[k] = val
        else:
            out = a
    opt['code_bytes'] = 4096
    txt, names = emit(opt)
    sz = code_size(txt)
    opt['code_bytes'] = (sz - 64) & ~3
    txt, names = emit(opt)
    open(out, "w").write(txt)
    if names:
        open(out + ".names", "w").write(" ".join(names))
    print(out, "code bytes", sz, "lines", txt.count("\n"), "stamps", len(names))


if __name__ == "__main__":
    main()
```
